```python
import torch

def _softmax(x, axis=-1):
    return torch.softmax(x, dim=axis)
def _gelu(x):
    return torch.nn.functional.gelu(x, approximate="tanh")
def _silu(x):
    return torch.nn.functional.silu(x)
def _sigmoid(x):
    return torch.sigmoid(x)
def _layernorm(x, axis=-1, eps=1e-5):
    m = x.mean(dim=axis, keepdim=True)
    v = x.var(dim=axis, keepdim=True, unbiased=False)
    return (x - m) / torch.sqrt(v + eps)
def _scatter_add(tgt, idx, src, axis=0):
    return tgt.clone().index_add_(axis, idx, src)
def _segment_sum(src, seg, n):
    out = torch.zeros((n,) + src.shape[1:], dtype=src.dtype)
    return out.index_add_(0, seg, src)
def _pad(x, pw):
    flat = tuple(v for pair in reversed(pw) for v in pair)
    return torch.nn.functional.pad(x, flat)

kernel_name = 'gated_mix__ssm_conv_s5__dense_activation_silu__prompt'

def setup_inputs():

    _w = (lambda a: (lambda t: t.to(torch.bfloat16) if t.is_floating_point() else t)(torch.as_tensor(a)))
    def _A_setup():
        B, S, D = 1, 2048, 512
        P = D
        Lambda_re = -0.5 * (lambda _x: torch.exp(torch.as_tensor(_x)))((lambda *s: torch.randn(*s, dtype=torch.bfloat16) * 0.2)(P))
        Lambda_im = (lambda *s: torch.randn(*s, dtype=torch.bfloat16) * 0.4)(P) * 1.0
        B_re = (lambda *s: torch.randn(*s, dtype=torch.bfloat16) * 0.2)(P, D) * (D ** -0.5)
        B_im = (lambda *s: torch.randn(*s, dtype=torch.bfloat16) * 0.2)(P, D) * (D ** -0.5)
        C_re = (lambda *s: torch.randn(*s, dtype=torch.bfloat16) * 0.2)(D, P) * (P ** -0.5)
        C_im = (lambda *s: torch.randn(*s, dtype=torch.bfloat16) * 0.2)(D, P) * (P ** -0.5)
        log_dt = (lambda *s: torch.randn(*s, dtype=torch.bfloat16) * 0.2)(P) * 0.3 - 2.0
        Dskip = (lambda *s: torch.randn(*s, dtype=torch.bfloat16) * 0.05)(D)
        return {
            "x": _w((lambda *s: torch.randn(*s, dtype=torch.bfloat16) * 0.05)(B, S, D)),
            "Lambda_re": _w(Lambda_re),
            "Lambda_im": _w(Lambda_im),
            "B_re": _w(B_re),
            "B_im": _w(B_im),
            "C_re": _w(C_re),
            "C_im": _w(C_im),
            "log_dt": _w(log_dt),
            "Dskip": _w(Dskip),
        }
    _A_in = _A_setup()

    def _B_setup():
        B, S, D, F = 1, 2048, 512, 1792
        return {
            "x": _w((lambda *s: torch.randn(*s, dtype=torch.bfloat16) * 0.05)(B, S, D)),
            "w1": _w((lambda *s: torch.randn(*s, dtype=torch.bfloat16) * 3.2)(D, F) * (D ** -0.5)),
            "w2": _w((lambda *s: torch.randn(*s, dtype=torch.bfloat16) * 0.1)(F, D) * (F ** -0.5)),
        }
    _B_in = _B_setup()

    return {
        "A_x": _A_in["x"],
        "A_Lambda_re": _A_in["Lambda_re"],
        "A_Lambda_im": _A_in["Lambda_im"],
        "A_B_re": _A_in["B_re"],
        "A_B_im": _A_in["B_im"],
        "A_C_re": _A_in["C_re"],
        "A_C_im": _A_in["C_im"],
        "A_log_dt": _A_in["log_dt"],
        "A_Dskip": _A_in["Dskip"],
        "B_x": _B_in["x"],
        "B_w1": _B_in["w1"],
        "B_w2": _B_in["w2"],
        "gate_w": _w((lambda *s: torch.randn(*s, dtype=torch.bfloat16) * 0.05)(512) * 16.0),
    }

def reference(A_x, A_Lambda_re, A_Lambda_im, A_B_re, A_B_im, A_C_re, A_C_im, A_log_dt, A_Dskip, B_x, B_w1, B_w2, gate_w):
    def _A_ref(x, Lambda_re, Lambda_im, B_re, B_im, C_re, C_im, log_dt, Dskip):
        Bsz, L, H = x.shape
        Lam = Lambda_re + 1j * Lambda_im
        Bmat = B_re + 1j * B_im
        Cmat = C_re + 1j * C_im
        dt = torch.exp(log_dt)
        Lam_bar = torch.exp(dt * Lam)
        B_bar = ((Lam_bar - 1.0) / Lam)[:, None] * Bmat
        Bu = torch.einsum("bld,pd->blp", x + 0j, B_bar)
        h = torch.zeros_like(Bu[:, 0, :])
        hs = []
        for t in range(L):
            h = Lam_bar[None, :] * h + Bu[:, t, :]
            hs.append(h)
        hseq = torch.stack(hs, 1)
        y = 2.0 * torch.einsum("blp,dp->bld", hseq, Cmat).real + x * Dskip[None, None, :]
        return y

    def _B_ref(x, w1, w2):
        h = torch.einsum("bsd,df->bsf", x, w1)
        h = _silu(h)
        out = torch.einsum("bsf,fd->bsd", h, w2)
        return out

    x = A_x
    g = _sigmoid((x * gate_w).sum(-1, keepdims=True))
    a = _A_ref(x, A_Lambda_re, A_Lambda_im, A_B_re, A_B_im, A_C_re, A_C_im, A_log_dt, A_Dskip)
    b = _B_ref(x, B_w1, B_w2)
    return g * a + (1 - g) * b
```

```python
import re

def regs_of(tok):
    t = tok.strip()
    neg = False
    while t.startswith('-') and len(t) > 1 and t[1] in 'vas|':
        t = t[1:]
    t = t.strip('|')
    m = re.fullmatch(r'abs\((.*)\)', t)
    if m: t = m.group(1)
    m = re.fullmatch(r'([vas])\[(\d+):(\d+)\]', t)
    if m:
        return [(m.group(1), i) for i in range(int(m.group(2)), int(m.group(3)) + 1)]
    m = re.fullmatch(r'([vas])(\d+)', t)
    if m:
        return [(m.group(1), int(m.group(2)))]
    if t == 'vcc': return [('s', 'vcc')]
    if t == 'exec': return [('s', 'exec')]
    if t == 'm0': return [('s', 'm0')]
    return []

TRANS = ('v_exp_f32', 'v_log_f32', 'v_rcp_f32', 'v_rsq_f32', 'v_sqrt_f32', 'v_sin_f32', 'v_cos_f32')

class Op:
    __slots__ = ('text', 'mn', 'dst', 'src', 'kind', 'tok', 'waits', 'note', 'passes', 'srcC')
    def __init__(self, text, tok=None, note=None):
        self.text = text
        self.tok = tok
        self.waits = None
        self.note = note
        self.passes = 0
        self.srcC = []
        self.parse()
    def parse(self):
        t = self.text.split(';')[0].strip()
        if t.endswith(':') or t.startswith('.') or t == '':
            self.mn = 'label' if t.endswith(':') else 'directive'
            self.kind = 'label' if t.endswith(':') else 'other'
            self.dst = []; self.src = []
            return
        parts = t.split(None, 1)
        mn = parts[0]
        self.mn = mn
        rest = parts[1] if len(parts) > 1 else ''
        ops = []
        cur = ''; depth = 0
        for ch in rest:
            if ch == '[': depth += 1
            if ch == ']': depth -= 1
            if ch == ',' and depth == 0:
                ops.append(cur.strip()); cur = ''
            else:
                cur += ch
        if cur.strip(): ops.append(cur.strip())
        mods = ''
        if ops:
            sp = ops[-1].split(None, 1)
            ops[-1] = sp[0]
            mods = sp[1] if len(sp) > 1 else ''
        R = [regs_of(o) for o in ops]
        flat = lambda L: [x for l in L for x in l]
        dst, src = [], []
        kind = 'other'
        if mn.startswith('v_mfma'):
            kind = 'mfma'
            dst = R[0]; src = flat(R[1:]); self.srcC = R[3] if len(R) > 3 else []
            self.passes = 8 if '32x32' in mn else 4
        elif mn.startswith('v_cmp'):
            kind = 'valu'
            dst = R[0]; src = flat(R[1:])
        elif mn.startswith('v_readfirstlane') or mn.startswith('v_readlane'):
            kind = 'valu'; dst = R[0]; src = flat(R[1:])
        elif mn.startswith('v_permlane') and 'swap' in mn:
            kind = 'valu'; dst = R[0] + R[1]; src = R[0] + R[1]
        elif mn.startswith('v_'):
            kind = 'valu'
            dst = R[0]; src = flat(R[1:])
            if mn.startswith('v_fmac') or mn.startswith('v_pk_fmac') or mn.startswith('v_dot2c'):
                src = src + R[0]
            if mn.startswith('v_add_co') or mn.startswith('v_addc_co') or mn.startswith('v_sub_co'):
                dst = R[0] + R[1]; src = flat(R[2:])
            if mn.startswith('v_cndmask') and len(ops) == 3:
                src = src + [('s', 'vcc')]
            if '_dpp' in mn or 'row_' in mods or 'quad_perm' in mods:
                kind = 'valu'
                self.note = 'dpp'
                src = src + R[0]
        elif mn.startswith('ds_read') or mn.startswith('ds_bpermute') or mn.startswith('ds_swizzle'):
            kind = 'ds'; dst = R[0]; src = flat(R[1:])
        elif mn.startswith('ds_write'):
            kind = 'ds'; src = flat(R)
        elif mn.startswith('buffer_load'):
            kind = 'vmem'
            if 'lds' in mods.split():
                src = flat(R) + [('s', 'm0')]
                self.note = 'ldsdma'
            else:
                dst = R[0]; src = flat(R[1:])
        elif mn.startswith('buffer_store'):
            kind = 'vmem'; src = flat(R); self.note = 'store%d' % len(R[0])
        elif mn.startswith('buffer_atomic'):
            kind = 'vmem'; src = flat(R)
        elif mn.startswith('global_load'):
            kind = 'vmem'; dst = R[0]; src = flat(R[1:])
        elif mn.startswith('global_store'):
            kind = 'vmem'; src = flat(R); self.note = 'store%d' % len(R[1])
        elif mn.startswith('global_atomic'):
            kind = 'vmem'; src = flat(R)
        elif mn.startswith('s_load') or mn.startswith('s_memtime') or mn.startswith('s_memrealtime'):
            kind = 'smem'; dst = R[0]; src = flat(R[1:])
        elif mn in ('s_waitcnt', 's_nop', 's_barrier', 's_endpgm', 's_setprio', 's_sleep'):
            kind = 'ctl'
        elif mn.startswith('s_cbranch') or mn == 's_branch':
            kind = 'branch'
        elif mn.startswith('s_cmp'):
            kind = 'salu'; src = flat(R)
        elif mn.startswith('s_'):
            kind = 'salu'; dst = R[0] if R else []; src = flat(R[1:])
            if 'saveexec' in mn: dst = dst + [('s', 'exec')]
        self.kind = kind; self.dst = dst; self.src = src

class WaitTok(Op):
    def __init__(self, cls, toks):
        self.text = ''; self.mn = 'waittok'; self.kind = 'waittok'; self.dst = []; self.src = []
        self.tok = None; self.waits = (cls, list(toks)); self.note = None; self.passes = 0; self.srcC = []

class Fence(Op):
    def __init__(self, vm=True, lgkm=True):
        self.text = ''; self.mn = 'fence'; self.kind = 'fence'; self.dst = []; self.src = []
        self.tok = None; self.waits = (vm, lgkm); self.note = None; self.passes = 0; self.srcC = []

def insert_waits(ops):
    out = []
    vmq = []
    lgq = []
    smem_pending = []
    def emit_wait(vm=None, lg=None):
        parts = []
        if vm is not None: parts.append(f'vmcnt({vm})')
        if lg is not None: parts.append(f'lgkmcnt({lg})')
        if parts: out.append(Op('s_waitcnt ' + ' '.join(parts)))
    for op in ops:
        need_vm = None; need_lg = None
        if op.kind == 'waittok':
            cls, toks = op.waits
            q = vmq if cls == 'vm' else lgq
            idx = -1
            for i, o in enumerate(q):
                if o.tok in toks: idx = i
            if idx >= 0:
                n = len(q) - 1 - idx
                if cls == 'vm':
                    assert n <= 63
                    emit_wait(vm=n); del vmq[:idx + 1]
                else:
                    n = min(n, 15)
                    emit_wait(lg=n); del lgq[:len(lgq) - n]
            continue
        if op.kind == 'fence':
            vm, lg = op.waits
            emit_wait(vm=0 if vm else None, lg=0 if lg else None)
            if vm: vmq.clear()
            if lg: lgq.clear(); smem_pending.clear()
            continue
        touched = set(op.src) | set(op.dst)
        if op.mn == 's_waitcnt':
            m = re.search(r'vmcnt\((\d+)\)', op.text)
            if m:
                n = int(m.group(1));
                if len(vmq) > n: del vmq[:len(vmq) - n]
            m = re.search(r'lgkmcnt\((\d+)\)', op.text)
            if m:
                n = int(m.group(1))
                if len(lgq) > n: del lgq[:len(lgq) - n]
                if n == 0: smem_pending.clear()
            out.append(op); continue
        if touched:
            if any(r in touched for r in smem_pending):
                need_lg = 0
            idx = -1
            for i, o in enumerate(vmq):
                if o.dst and any(r in touched for r in o.dst): idx = i
            if idx >= 0:
                need_vm = len(vmq) - 1 - idx
                del vmq[:idx + 1]
            idx = -1
            for i, o in enumerate(lgq):
                if o.dst and any(r in touched for r in o.dst): idx = i
            if idx >= 0:
                n = len(lgq) - 1 - idx
                n = min(n, 15)
                need_lg = n if need_lg is None else min(need_lg, n)
            if need_lg is not None:
                if need_lg == 0: lgq.clear(); smem_pending.clear()
                else: del lgq[:len(lgq) - need_lg]
            if need_vm is not None: assert need_vm <= 63
            emit_wait(need_vm, need_lg)
        if op.kind == 'vmem' and op.tok == 'nocount':
            pass
        elif op.kind == 'vmem':
            vmq.append(op)
            if len(vmq) > 63:
                del vmq[0]
        elif op.kind == 'ds':
            if smem_pending:
                emit_wait(lg=0); lgq.clear(); smem_pending.clear()
            lgq.append(op)
        elif op.kind == 'smem':
            smem_pending.extend(op.dst)
        out.append(op)
    return out

def wait_states(op):
    if op.mn == 's_nop':
        return int(op.text.split()[1], 0) + 1
    if op.kind in ('label', 'waittok', 'fence') or op.mn == 'directive': return 0
    return 1

def insert_hazard_nops(ops):
    out = []
    LOOK = 24
    for op in ops:
        need = 0
        if op.kind in ('valu', 'mfma', 'vmem', 'ds', 'salu', 'smem'):
            dist = 0
            S = set(op.src); D = set(op.dst)
            vS = {r for r in S if r[0] in 'va'}
            for prev in reversed(out[-LOOK * 2:]):
                if dist >= LOOK: break
                req = 0
                pD = set(prev.dst); pS = set(prev.src)
                if prev.kind == 'valu':
                    pv = {r for r in pD if r[0] in 'va'}
                    ps = {r for r in pD if r[0] == 's'}
                    if op.kind == 'mfma' and pv & S: req = max(req, 2)
                    if op.kind == 'valu':
                        if prev.mn in TRANS and (pv & S) : req = max(req, 1)
                        if (op.mn.startswith('v_readfirstlane') or op.mn.startswith('v_readlane')) and pv & S: req = max(req, 1)
                        if op.mn.startswith('v_permlane') and pv & (S | D): req = max(req, 2)
                        if op.note == 'dpp' and pv & S: req = max(req, 2)
                        if ps & S: req = max(req, 2)
                    if op.kind == 'vmem' and ps & S: req = max(req, 5)
                    if op.kind == 'salu' and ps & S: req = max(req, 1)
                    if op.kind == 'smem' and ps & S: req = max(req, 5)
                    if op.kind == 'ds' and ps & S: req = max(req, 5)
                if prev.kind == 'mfma':
                    big = 12 if prev.passes == 8 else 8
                    if op.kind == 'mfma':
                        if pD & (S - set(op.srcC)): req = max(req, big)
                        if pD & set(op.srcC) and set(op.srcC) != pD: req = max(req, big - 2)
                        if pD & D and D != pD: req = max(req, big)
                    elif op.kind in ('valu', 'vmem', 'ds'):
                        if pD & (S | D): req = max(req, big)
                        if op.kind == 'valu' and set(prev.srcC) & D: req = max(req, 7 if prev.passes == 8 else 3)
                if prev.kind == 'salu':
                    if ('s', 'm0') in pD and op.note == 'ldsdma': req = max(req, 1)
                if prev.kind == 'vmem' and prev.note and str(prev.note).startswith('store') and int(prev.note[5:]) >= 3:
                    if op.kind in ('valu', 'mfma') and {r for r in pS if r[0] in 'va'} & D: req = max(req, 2)
                    elif {r for r in pS if r[0] in 'va'} & D: req = max(req, 1)
                if req > dist: need = max(need, req - dist)
                dist += wait_states(prev)
        while need > 0:
            n = min(need, 16)
            out.append(Op(f's_nop {n - 1}'))
            need -= n
        out.append(op)
    return out

def finalize(ops):
    ops = insert_waits(ops)
    ops = insert_hazard_nops(ops)
    return ops

def render(ops):
    lines = []
    for o in ops:
        if o.text == '': continue
        lines.append(o.text if o.kind == 'label' else '  ' + o.text)
    return '\n'.join(lines)

class B:
    def __init__(self): self.ops = []
    def __call__(self, text, tok=None):
        for line in text.split('\n'):
            line = line.strip()
            if line: self.ops.append(Op(line, tok))
        return self
    def wait(self, cls, *toks): self.ops.append(WaitTok(cls, toks))
    def fence(self, vm=True, lgkm=True): self.ops.append(Fence(vm, lgkm))
    def ext(self, other): self.ops.extend(other.ops if isinstance(other, B) else other)

def merge(main, filler, after=lambda op: op.kind == 'mfma', per=2, start=0):
    out = []
    f = list(filler); fi = 0; site = 0
    for op in main:
        out.append(op)
        if after(op):
            site += 1
            if site > start:
                k = per(site) if callable(per) else per
                n = 0
                while n < k and fi < len(f):
                    out.append(f[fi]);
                    if f[fi].kind not in ('waittok',): n += 1
                    fi += 1
    out.extend(f[fi:])
    return out
```

```python
import sys
sys.path.insert(0, 'dev')
from ir import *

NAME = "gated_mix__ssm_conv_s5__dense_activation_silu__prompt"
K1 = "gm_k1_kernel"
K2 = "gm_k2_kernel"

HF_OFF = 0
HF_SIZE = 64 * 176 * 1024
W2F_OFF = HF_SIZE
W2F_SIZE = 16 * 176 * 1024
G_OFF = W2F_OFF + W2F_SIZE
E_OFF = G_OFF + 2048 * 8
E_SIZE = 16 * 16 * 512
NONCE_OFF = E_OFF + E_SIZE
WS_USED = NONCE_OFF + 256

LOG2E = 0x3fb8aa3b
INV2PI = 0x3e22f983

RB = 0
XS = 65536
SC = 32768
IMG = 36864

opts = dict(a.split('=') for a in sys.argv[1:] if '=' in a)
STAMP = int(opts.get('stamp', 0))

def v(n, k=1): return f"v{n}" if k == 1 else f"v[{n}:{n+k-1}]"
def a(n, k=1): return f"a{n}" if k == 1 else f"a[{n}:{n+k-1}]"
def s(n, k=1): return f"s{n}" if k == 1 else f"s[{n}:{n+k-1}]"

sX, sBRE, sBIM, sW1, sHF, sC = 36, 40, 44, 48, 52, 56
sWave, sR, sS, sRho = 60, 61, 62, 63
sLdsW, sT0, sT1, sT2, sT3 = 66, 68, 69, 70, 71
sWoff = 76
sM1, sM2, sM3 = 80, 82, 84
sEX = 88
sLo = 90
sSpin = 98
sU = 99
vTid, vLane = 0, 1
vX, vB, vW, vC = 2, 6, 7, 11
vP, vPX, vPXH, vT, vTH, vTR = 16, 20, 24, 28, 30, 32
vL, vC2, vL16, vL32, vL128, vF1, vG, vHfm = 34, 36, 38, 40, 42, 44, 46, 48
vNon = 50
vK = 52
vQ = 54
vW_ = 56
vPre = 58
vTmp = 60
aRE, aIM, aF = 64, 80, 96
vU = 160
vS = 192
vT2 = 224

def srd(b, dst, ptr, size, off=0):
    b(f"s_mov_b32 s{dst}, s{ptr}")
    b(f"s_mov_b32 s{dst+1}, s{ptr+1}")
    b(f"s_mov_b32 s{dst+2}, {size}")
    b(f"s_mov_b32 s{dst+3}, 0x20000")

def cexp(b, dst, n_src, va, vang, t0):
    b(f"v_mul_f32 v{t0}, {n_src}, v{va}")
    b(f"v_mul_f32 v{t0+1}, {n_src}, v{vang}")
    b(f"v_exp_f32 v{t0}, v{t0}")
    b(f"v_rndne_f32 v{t0+2}, v{t0+1}")
    b(f"v_sub_f32 v{t0+1}, v{t0+1}, v{t0+2}")
    b(f"v_cos_f32 v{dst}, v{t0+1}")
    b(f"v_sin_f32 v{dst+1}, v{t0+1}")
    b(f"v_mul_f32 v{dst}, v{t0}, v{dst}")
    b(f"v_mul_f32 v{dst+1}, v{t0}, v{dst+1}")

def cfma(b, d, l, h, u, tmp):
    b(f"v_pk_fma_f32 {v(tmp,2)}, {v(l,2)}, {v(h,2)}, {v(u,2)} op_sel:[0,0,0] op_sel_hi:[0,1,1]")
    b(f"v_pk_fma_f32 {v(d,2)}, {v(l,2)}, {v(h,2)}, {v(tmp,2)} op_sel:[1,1,0] op_sel_hi:[1,0,1] neg_lo:[1,0,0]")

STV = 15
def stamp(b, idx):
    if not STAMP: return
    b(f"s_memtime s[100:101]")
    b("s_waitcnt lgkmcnt(0)")
    b(f"v_writelane_b32 v{STV}, s100, {idx}")

def k1_prologue():
    b = B()
    if STAMP:
        b(f"v_mov_b32 v{STV}, 0")
        b("s_memrealtime s[100:101]")
        b("s_waitcnt lgkmcnt(0)")
        b(f"v_writelane_b32 v{STV}, s100, 62")
        stamp(b, 0)
    b("s_load_dwordx16 s[4:19], s[0:1], 0")
    b("s_load_dwordx16 s[20:35], s[0:1], 64")
    b("s_cmp_ge_u32 s2, 256")
    b("s_cbranch_scc1 L_k1_end")
    b(f"v_lshrrev_b32 v{vTmp}, 6, v0")
    b(f"v_and_b32 v{vLane}, 63, v0")
    b(f"v_readfirstlane_b32 s{sWave}, v{vTmp}")
    b(f"s_and_b32 s{sT0}, s2, 7")
    b(f"s_lshr_b32 s{sT1}, s2, 3")
    b(f"s_and_b32 s{sT2}, s{sT1}, 7")
    b(f"s_lshr_b32 s{sT3}, s{sT1}, 3")
    b(f"s_lshr_b32 s{sR}, s{sT0}, 2")
    b(f"s_lshl_b32 s{sR}, s{sR}, 3")
    b(f"s_add_u32 s{sR}, s{sR}, s{sT2}")
    b(f"s_and_b32 s{sS}, s{sT0}, 3")
    b(f"s_lshl_b32 s{sS}, s{sS}, 2")
    b(f"s_add_u32 s{sS}, s{sS}, s{sT3}")
    b(f"s_lshl_b32 s{sRho}, s{sT3}, 1")
    b(f"s_add_u32 s{sRho}, s{sRho}, s{sT2}")
    b(f"s_and_b32 s{sRho}, s{sRho}, 7")
    for i in range(8):
        b(f"s_add_u32 s{sLo+i}, s{sRho}, {i}")
        b(f"s_and_b32 s{sLo+i}, s{sLo+i}, 7")
        b(f"s_lshl_b32 s{sLo+i}, s{sLo+i}, 7")
    b(f"s_lshl_b32 s{sLdsW}, s{sWave}, 12")
    L = vLane; t = vTmp
    b(f"v_and_b32 v{t}, 7, v{L}")
    b(f"v_lshrrev_b32 v{t+1}, 4, v{L}")
    b(f"v_xor_b32 v{t+2}, v{t}, v{t+1}")
    b(f"v_lshlrev_b32 v{t+2}, 4, v{t+2}")
    b(f"v_lshrrev_b32 v{t}, 5, v{L}")
    b(f"v_lshlrev_b32 v{t}, 14, v{t}")
    b(f"v_bfe_u32 v{t+1}, v{L}, 3, 2")
    b(f"v_lshlrev_b32 v{t+1}, 10, v{t+1}")
    b(f"v_add3_u32 v{vX}, v{t}, v{t+1}, v{t+2}")
    b(f"s_lshl_b32 s{sT0}, s{sR}, 17")
    b(f"s_lshl_b32 s{sT1}, s{sWave}, 15")
    b(f"s_add_u32 s{sT0}, s{sT0}, s{sT1}")
    b(f"v_add_u32 v{vX}, s{sT0}, v{vX}")
    b(f"v_xor_b32 v{vX+1}, 64, v{vX}")
    b(f"v_add_u32 v{vX+1}, 4096, v{vX+1}")
    b(f"v_add_u32 v{vX+2}, 8192, v{vX}")
    b(f"v_add_u32 v{vX+3}, 8192, v{vX+1}")
    b(f"v_lshrrev_b32 v{t}, 3, v{L}")
    b(f"v_lshlrev_b32 v{t}, 10, v{t}")
    b(f"s_and_b32 s{sT0}, s{sWave}, 1")
    b(f"s_lshl_b32 s{sT0}, s{sT0}, 6")
    b(f"v_xor_b32 v{t+1}, s{sT0}, v{t+2}")
    b(f"s_lshl_b32 s{sT0}, s{sWave}, 13")
    b(f"s_lshl_b32 s{sT1}, s{sS}, 15")
    b(f"s_add_u32 s{sT0}, s{sT0}, s{sT1}")
    b(f"v_add3_u32 v{vB}, v{t}, v{t+1}, s{sT0}")
    b(f"v_add_u32 v{vC}, v{t}, v{t+2}")
    b(f"v_xor_b32 v{vC+1}, 64, v{vC}")
    b(f"v_add_u32 v{vC+1}, 8192, v{vC+1}")
    b(f"v_add_u32 v{vC+2}, 16384, v{vC}")
    b(f"v_add_u32 v{vC+3}, 16384, v{vC+1}")
    b(f"v_bfe_u32 v{t+1}, v{L}, 4, 1")
    b(f"v_lshlrev_b32 v{t+1}, 2, v{t+1}")
    b(f"v_and_b32 v{t+3}, 7, v{L}")
    b(f"v_xor_b32 v{t+3}, v{t+3}, v{t+1}")
    b(f"v_lshlrev_b32 v{t+3}, 4, v{t+3}")
    b(f"s_cmp_ge_u32 s{sS}, 14")
    b(f"s_mov_b32 s{sT0}, 3584")
    b(f"s_cselect_b32 s{sT0}, 1024, s{sT0}")
    b(f"v_lshrrev_b32 v{t+1}, 3, v{L}")
    b(f"v_mul_lo_u32 v{t+1}, v{t+1}, s{sT0}")
    b(f"v_add_u32 v{vW}, v{t+1}, v{t+3}")
    b(f"s_lshl_b32 s{sT0}, s{sT0}, 3")
    for k in range(1, 4):
        b(f"v_add_u32 v{vW+k}, s{sT0}, v{vW+k-1}")
    b(f"v_and_b32 v{t}, 31, v{L}")
    b(f"v_lshlrev_b32 v{t}, 7, v{t}")
    b(f"v_lshrrev_b32 v{t+1}, 5, v{L}")
    b(f"v_bfe_u32 v{t+2}, v{L}, 1, 3")
    b(f"v_xor_b32 v{t+2}, v{t+1}, v{t+2}")
    for k in range(4):
        b(f"v_xor_b32 v{t+3}, {2*k}, v{t+2}")
        b(f"v_lshl_add_u32 v{vP+k}, v{t+3}, 4, v{t}")
    b(f"s_add_u32 s{sT0}, s{sLdsW}, {XS}")
    for k in range(4):
        b(f"v_add_u32 v{vPX+k}, s{sT0}, v{vP+k}")
        b(f"v_add_u32 v{vPXH+k}, 0x10000, v{vPX+k}")
    return b

def tr_pattern(b, dst, hfmul, t):
    L = vLane
    b(f"v_lshrrev_b32 v{t}, 5, v{L}")
    b(f"v_mul_u32_u24 v{t}, {hfmul}, v{t}")
    b(f"v_bfe_u32 v{t+1}, v{L}, 2, 2")
    b(f"v_add_u32 v{t}, v{t}, v{t+1}")
    b(f"v_lshlrev_b32 v{t}, 7, v{t}")
    b(f"v_bfe_u32 v{t+1}, v{L}, 3, 1")
    b(f"v_lshlrev_b32 v{t+1}, 6, v{t+1}")
    b(f"v_bfe_u32 v{t+2}, v{L}, 4, 1")
    b(f"v_lshlrev_b32 v{t+2}, 5, v{t+2}")
    b(f"v_and_b32 v{t+3}, 3, v{L}")
    b(f"v_lshlrev_b32 v{t+3}, 3, v{t+3}")
    b(f"v_add3_u32 v{t}, v{t}, v{t+2}, v{t+3}")
    b(f"v_add_u32 v{dst}, v{t}, v{t+1}")
    b(f"v_xor_b32 v{t+1}, 64, v{t+1}")
    b(f"v_add_u32 v{dst+1}, v{t}, v{t+1}")

def dma(b, voff, srdn, soff, m0expr, tok):
    b(m0expr)
    b(f"buffer_load_dwordx4 v{voff}, {s(srdn,4)}, {soff} offen lds", tok)

def dma_x(b, i, slot):
    for k in range(4):
        dma(b, vX + k, sX, f"s{sLo+i}", f"s_add_u32 m0, s{sLdsW}, {XS + slot*16384 + k*1024}", f"x{i}")
def dma_B(b, i):
    dma(b, vB, sBRE, f"s{sLo+i}", f"s_add_u32 m0, s67, {RB + i*8192}", f"B{i}")
    dma(b, vB, sBIM, f"s{sLo+i}", f"s_add_u32 m0, s67, {RB + i*8192 + 4096}", f"B{i}")
def dma_w1(b, u, hh, ldsbase):
    b(f"s_add_u32 s{sT0}, s{sWoff+u}, {128*hh}")
    for k in range(4):
        dma(b, vW + k, sW1, f"s{sT0}", f"s_add_u32 m0, s{sLdsW}, {ldsbase + k*1024}", f"w{'ab'[hh]}{u}")

def k1_setup2():
    b = B()
    b("s_waitcnt lgkmcnt(0)")
    srd(b, sX, 4, 2048*1024)
    srd(b, sBRE, 10, 512*1024)
    srd(b, sBIM, 12, 512*1024)
    srd(b, sHF, 34, WS_USED)
    b(f"s_lshl_b32 s67, s{sWave}, 10")
    b(f"s_cmp_ge_u32 s{sS}, 14")
    b(f"s_cselect_b32 s{sW1}, s26, s24")
    b(f"s_cselect_b32 s{sW1+1}, s27, s25")
    b(f"s_mov_b32 s{sW1+2}, {512*3584}")
    b(f"s_mov_b32 s{sW1+3}, 0x20000")
    b(f"s_and_b32 s{sT0}, s{sWave}, 1")
    b(f"s_cmp_eq_u32 s{sT0}, 1")
    b(f"s_cselect_b32 s{sC}, s16, s14")
    b(f"s_cselect_b32 s{sC+1}, s17, s15")
    b(f"s_mov_b32 s{sC+2}, {512*1024}")
    b(f"s_mov_b32 s{sC+3}, 0x20000")
    t = vTmp
    b(f"v_and_b32 v{t}, 31, v{vLane}")
    b(f"s_lshl_b32 s{sT0}, s{sS}, 5")
    b(f"v_add_u32 v{t}, s{sT0}, v{t}")
    b(f"v_lshlrev_b32 v{t}, 1, v{t}")
    b(f"global_load_ushort v{vT2}, v{t}, s[6:7]")
    b(f"global_load_ushort v{vT2+1}, v{t}, s[8:9]")
    b(f"global_load_ushort v{vT2+2}, v{t}, s[18:19]")
    b(f"s_lshl_b32 s{sT0}, s{sR}, 7")
    b(f"s_lshl_b32 s{sT1}, s{sS}, 3")
    b(f"s_add_u32 s{sT0}, s{sT0}, s{sT1}")
    b(f"s_lshl_b32 s{sT1}, s{sWave}, 1")
    b(f"s_add_u32 s{sT0}, s{sT0}, s{sT1}")
    b(f"v_lshrrev_b32 v{t+1}, 5, v{vLane}")
    b(f"v_add_u32 v{t+1}, s{sT0}, v{t+1}")
    b(f"v_lshlrev_b32 v{vT2+28}, 3, v{t+1}")
    b(f"v_lshlrev_b32 v{t+1}, 10, v{t+1}")
    b(f"v_and_b32 v{t+2}, 31, v{vLane}")
    b(f"v_lshlrev_b32 v{t+2}, 4, v{t+2}")
    b(f"v_add_u32 v{t+1}, v{t+1}, v{t+2}")
    b(f"global_load_dwordx4 {v(vT2+4,4)}, v{t+1}, s[4:5]")
    b(f"global_load_dwordx4 {v(vT2+8,4)}, v{t+1}, s[4:5] offset:512")
    b(f"global_load_dwordx4 {v(vT2+12,4)}, v{t+2}, s[28:29]")
    b(f"global_load_dwordx4 {v(vT2+16,4)}, v{t+2}, s[28:29] offset:512")
    b(f"v_mov_b32 v{t}, {NONCE_OFF}")
    b(f"global_load_dwordx2 {v(vT2+20,2)}, v{t}, s[34:35] sc1")
    for i in range(6):
        dma_x(b, i, i); dma_B(b, i)
    dma_B(b, 6); dma_B(b, 7)
    b(f"s_lshr_b32 s{sT1}, s{sWave}, 1")
    b(f"s_and_b32 s{sT2}, s{sWave}, 1")
    b(f"s_mul_i32 s{sT2}, s{sT2}, {32*3584}")
    b(f"s_lshl_b32 s{sT3}, s{sS}, 8")
    b(f"s_add_u32 s{sT2}, s{sT2}, s{sT3}")
    for u in range(4):
        b(f"s_add_u32 s{sT0}, s{sRho}, s{sT1}")
        b(f"s_add_u32 s{sT0}, s{sT0}, {2*u}")
        b(f"s_and_b32 s{sT0}, s{sT0}, 7")
        b(f"s_mul_i32 s{sT0}, s{sT0}, {64*3584}")
        b(f"s_add_u32 s{sWoff+u}, s{sT0}, s{sT2}")
    tr_pattern(b, vTR, 8, vTmp)
    b(f"v_add_u32 v{vT}, {XS}, v{vTR}")
    b(f"v_add_u32 v{vT+1}, {XS}, v{vTR+1}")
    b(f"v_add_u32 v{vTH}, {XS+65536}, v{vTR}")
    b(f"v_add_u32 v{vTH+1}, {XS+65536}, v{vTR+1}")
    for k, m in ((1, sM1), (2, sM2), (3, sM3)):
        b(f"s_cmp_ge_u32 s{sWave}, {k}")
        b(f"s_cselect_b64 {s(m,2)}, -1, 0")
    return b

def k1_params():
    b = B()
    lre, lim, ldt = vT2, vT2+1, vT2+2
    t = vT2 + 22
    b(f"v_lshlrev_b32 v{lre}, 16, v{lre}")
    b(f"v_lshlrev_b32 v{lim}, 16, v{lim}")
    b(f"v_lshlrev_b32 v{ldt}, 16, v{ldt}")
    b(f"v_mul_f32 v{ldt}, {LOG2E:#x}, v{ldt}")
    b(f"v_exp_f32 v{ldt}, v{ldt}")
    b(f"v_cvt_pk_bf16_f32 v{ldt}, v{ldt}, v{ldt}")
    b(f"v_lshlrev_b32 v{ldt}, 16, v{ldt}")
    va, vang = t, t+1
    b(f"v_mul_f32 v{va}, v{ldt}, v{lre}")
    b(f"v_mul_f32 v{vang}, v{ldt}, v{lim}")
    b(f"v_mul_f32 v{va}, {LOG2E:#x}, v{va}")
    b(f"v_mul_f32 v{vang}, {INV2PI:#x}, v{vang}")
    t0 = t + 2
    cexp(b, vL, "1.0", va, vang, t0)
    b(f"v_mov_b32 v{t0+3}, 0x41800000")
    cexp(b, vL16, f"v{t0+3}", va, vang, t0)
    b(f"v_mov_b32 v{t0+3}, 0x42000000")
    cexp(b, vL32, f"v{t0+3}", va, vang, t0)
    b(f"v_mov_b32 v{t0+3}, 0x43000000")
    cexp(b, vL128, f"v{t0+3}", va, vang, t0)
    b(f"v_lshrrev_b32 v{t0+3}, 5, v{vLane}")
    b(f"v_cvt_f32_u32 v{vHfm}, v{t0+3}")
    b(f"v_lshlrev_b32 v{t0+3}, 4, v{t0+3}")
    b(f"v_cvt_f32_u32 v{t0+3}, v{t0+3}")
    cexp(b, vF1, f"v{t0+3}", va, vang, t0)
    b(f"v_lshrrev_b32 v{t0+3}, 5, v{vLane}")
    b(f"v_lshlrev_b32 v{t0+3}, 4, v{t0+3}")
    b(f"s_lshl_b32 s{sT0}, s{sWave}, 5")
    b(f"v_add_u32 v{t0+3}, s{sT0}, v{t0+3}")
    b(f"v_cvt_f32_u32 v{t0+3}, v{t0+3}")
    cexp(b, vG, f"v{t0+3}", va, vang, t0)
    b(f"v_add_f32 v{t0}, -1.0, v{vL}")
    b(f"v_mul_f32 v{t0+1}, v{lre}, v{lre}")
    b(f"v_fma_f32 v{t0+1}, v{lim}, v{lim}, v{t0+1}")
    b(f"v_rcp_f32 v{t0+1}, v{t0+1}")
    b(f"v_mul_f32 v{vC2}, v{t0}, v{lre}")
    b(f"v_fma_f32 v{vC2}, v{vL+1}, v{lim}, v{vC2}")
    b(f"v_mul_f32 v{vC2+1}, v{vL+1}, v{lre}")
    b(f"v_fma_f32 v{vC2+1}, -v{t0}, v{lim}, v{vC2+1}")
    b(f"v_add_f32 v{t0+1}, v{t0+1}, v{t0+1}")
    b(f"v_mul_f32 v{vC2}, v{vC2}, v{t0+1}")
    b(f"v_mul_f32 v{vC2+1}, v{vC2+1}, v{t0+1}")
    return b

def k1_gjob():
    b = B()
    xs, gs = vT2 + 4, vT2 + 12
    t = vU
    acc = t
    first = True
    for k in range(8):
        b(f"v_lshlrev_b32 v{t+1}, 16, v{xs+k}")
        b(f"v_and_b32 v{t+2}, 0xffff0000, v{xs+k}")
        b(f"v_lshlrev_b32 v{t+3}, 16, v{gs+k}")
        b(f"v_and_b32 v{t+4}, 0xffff0000, v{gs+k}")
        b(f"v_mul_f32 v{t+1}, v{t+1}, v{t+3}")
        b(f"v_mul_f32 v{t+2}, v{t+2}, v{t+4}")
        b(f"v_cvt_pk_bf16_f32 v{t+1}, v{t+1}, v{t+2}")
        b(f"v_lshlrev_b32 v{t+2}, 16, v{t+1}")
        b(f"v_and_b32 v{t+1}, 0xffff0000, v{t+1}")
        if first:
            b(f"v_add_f32 v{acc}, v{t+1}, v{t+2}"); first = False
        else:
            b(f"v_add_f32 v{t+1}, v{t+1}, v{t+2}")
            b(f"v_add_f32 v{acc}, v{acc}, v{t+1}")
    for r in (8, 4, 2, 1):
        b(f"v_add_f32_dpp v{acc}, v{acc}, v{acc} row_ror:{r} row_mask:0xf bank_mask:0xf")
    b(f"v_mov_b32 v{t+1}, v{acc}")
    b(f"v_permlane16_swap_b32 v{acc}, v{t+1}")
    b(f"v_add_f32 v{acc}, v{acc}, v{t+1}")
    b(f"v_cvt_pk_bf16_f32 v{acc}, v{acc}, v{acc}")
    b(f"v_lshlrev_b32 v{acc}, 16, v{acc}")
    b(f"v_mul_f32 v{acc}, {LOG2E ^ 0x80000000:#x}, v{acc}")
    b(f"v_exp_f32 v{acc}, v{acc}")
    b(f"v_add_f32 v{acc}, 1.0, v{acc}")
    b(f"v_rcp_f32 v{acc}, v{acc}")
    b(f"v_cvt_pk_bf16_f32 v{acc}, v{acc}, v{acc}")
    b(f"v_lshlrev_b32 v{t+2}, 16, v{acc}")
    b(f"v_sub_f32 v{t+3}, 1.0, v{t+2}")
    b(f"v_cvt_pk_bf16_f32 v{t+3}, v{t+3}, v{t+3}")
    b(f"v_lshlrev_b32 v{t+3}, 16, v{t+3}")
    b(f"v_add_u32 v{t+4}, {G_OFF}, v{vT2+28}")
    b(f"v_and_b32 v{t+5}, 31, v{vLane}")
    b(f"v_cmp_eq_u32 vcc, 0, v{t+5}")
    b(f"s_and_saveexec_b64 {s(sEX,2)}, vcc")
    b(f"global_store_dwordx2 v{t+4}, {v(t+2,2)}, s[34:35]")
    b(f"s_mov_b64 exec, {s(sEX,2)}")
    return b

def k1_nonce():
    b = B()
    t = vT2 + 20
    b(f"v_add_u32 v{t}, 1, v{t}")
    b(f"v_or_b32 v{t+1}, 1, v{t+1}")
    b(f"s_or_b32 s{sT0}, s2, s{sWave}")
    b(f"s_cmp_lg_u32 s{sT0}, 0")
    b("s_cbranch_scc1 L_k1_{P}_nononce")
    b(f"v_mov_b32 v{vTmp}, {NONCE_OFF}")
    b(f"v_mov_b32 v{vTmp+1}, 0")
    b(f"global_store_dwordx2 v{vTmp}, {v(t,2)}, s[34:35] sc0 sc1", 'nocount')
    b(f"global_store_dwordx2 v{vTmp+1}, {v(t,2)}, s[32:33] sc0 sc1", 'nocount')
    b("L_k1_{P}_nononce:")
    return b

def k1_p1(side):
    b = B()
    for i in range(8):
        b.wait('vm', f"x{i}", f"B{i}")
        b("s_barrier")
        slot = i % 6
        base, off = (vPX, slot * 16384) if slot < 4 else (vPXH, (slot - 4) * 16384)
        for k in range(4):
            b(f"ds_read_b128 {a(16*i+4*k,4)}, v{base+k} offset:{off}", f"xr{i}")
        for k in range(4):
            for m in range(2):
                b(f"ds_read_b128 {v(vS+8*k+4*m,4)}, v{vP+k} offset:{RB + i*8192 + m*4096}")
        b.wait('lg', f"xr{i}")
        if i < 2:
            dma_x(b, i + 6, slot)
        elif not side:
            nxt = {2: (0, 0), 3: (1, 0), 4: (2, 0), 5: (3, 0), 6: (0, 1), 7: (1, 1)}[i]
            dma_w1(b, nxt[0], nxt[1], XS + slot * 16384)
        else:
            side_dma(b, i, XS + slot * 16384)
        for k in range(4):
            for m, acc in ((0, aRE), (1, aIM)):
                c = v(acc, 16) if (i, k) != (0, 0) else "0"
                b(f"v_mfma_f32_32x32x16_bf16 {v(acc,16)}, {a(16*i+4*k,4)}, {v(vS+8*k+4*m,4)}, {c}")
        if i == 0:
            b.ext(k1_params())
        if i == 1:
            b.ext(k1_gjob())
        if i == 2:
            b.ext(k1_nonce())
        if i == 5:
            b(f"v_mov_b32 v{vTmp}, 0")
            b(f"global_load_dwordx2 {v(vNon,2)}, v{vTmp}, s[32:33] sc1")
    return b

def side_dma(b, i, ldsbase):
    if i <= 5:
        j = i - 2
        n = 4 if j < 3 else 2
        b(f"s_add_u32 s{sT0}, s{sWoff}, {j*32*1024}")
        for k in range(n):
            dma(b, vW + k, sW1, f"s{sT0}", f"s_add_u32 m0, s{sLdsW}, {ldsbase + k*1024}", f"sw{j}")
    else:
        dt = i - 6
        b(f"s_add_u32 s{sT0}, s{sWoff+1}, {dt*32*1024}")
        for k in range(4):
            dma(b, vC + k, sC, f"s{sT0}", f"s_add_u32 m0, s{sLdsW}, {ldsbase + k*1024}", f"sc{dt}")

def k1_side_setup():
    b = B()
    b(f"s_lshl_b32 s{sU}, s{sR}, 1")
    b(f"s_add_u32 s{sU}, s{sU}, s{sS}")
    b(f"s_sub_u32 s{sU}, s{sU}, 14")
    b(f"s_and_b32 s{sT0}, s{sU}, 7")
    b(f"s_lshr_b32 s{sT1}, s{sU}, 3")
    b(f"s_mul_i32 s{sT2}, s{sT1}, 448")
    b(f"s_mul_i32 s{sT3}, s{sWave}, 112")
    b(f"s_add_u32 s{sT2}, s{sT2}, s{sT3}")
    b(f"s_lshl_b32 s{sT2}, s{sT2}, 10")
    b(f"s_lshl_b32 s{sT3}, s{sT0}, 7")
    b(f"s_add_u32 s{sWoff}, s{sT2}, s{sT3}")
    b(f"s_lshl_b32 s{sT2}, s{sT0}, 16")
    b(f"s_lshl_b32 s{sT3}, s{sT1}, 8")
    b(f"s_add_u32 s{sT2}, s{sT2}, s{sT3}")
    b(f"s_lshr_b32 s{sT3}, s{sWave}, 1")
    b(f"s_lshl_b32 s{sT3}, s{sT3}, 7")
    b(f"s_add_u32 s{sWoff+1}, s{sT2}, s{sT3}")
    b(f"s_mul_i32 s{sT2}, s{sT0}, 352")
    b(f"s_mul_i32 s{sT3}, s{sT1}, 28")
    b(f"s_add_u32 s{sT3}, s{sT3}, s{sT2}")
    b(f"s_mul_i32 s{sWoff+2}, s{sWave}, 7")
    b(f"s_add_u32 s{sT3}, s{sT3}, s{sWoff+2}")
    b(f"s_add_u32 s{sT3}, s{sT3}, 64")
    b(f"s_lshl_b32 s{sT3}, s{sT3}, 10")
    b(f"s_add_u32 s{sWoff+2}, s{sT3}, {W2F_OFF}")
    b(f"s_lshl_b32 s{sT3}, s{sT1}, 4")
    b(f"s_lshr_b32 s{sT1}, s{sWave}, 1")
    b(f"s_lshl_b32 s{sT1}, s{sT1}, 3")
    b(f"s_add_u32 s{sT3}, s{sT3}, s{sT1}")
    b(f"s_and_b32 s{sT1}, s{sWave}, 1")
    b(f"s_lshl_b32 s{sT1}, s{sT1}, 1")
    b(f"s_add_u32 s{sT3}, s{sT3}, s{sT1}")
    b(f"s_add_u32 s{sT3}, s{sT3}, s{sT2}")
    b(f"s_lshl_b32 s{sT3}, s{sT3}, 10")
    b(f"s_add_u32 s{sWoff+3}, s{sT3}, {W2F_OFF}")
    tr_pattern(b, vTR, 4, vTmp)
    b(f"s_add_u32 s{sT0}, s{sLdsW}, {XS}")
    b(f"v_add_u32 v{vT}, s{sT0}, v{vTR}")
    b(f"v_add_u32 v{vT+1}, s{sT0}, v{vTR+1}")
    b(f"v_add_u32 v{vTH}, 0x10000, v{vT}")
    b(f"v_add_u32 v{vTH+1}, 0x10000, v{vT+1}")
    return b

def k1_side_body():
    b = B()
    vL16b = vTmp
    b(f"v_lshlrev_b32 v{vL16b}, 4, v{vLane}")
    n = 0
    for t in range(7):
        j, tt = divmod(t, 2)
        slot = 2 + j
        if tt == 0: b.wait('vm', f"sw{j}")
        base, off = (vT, slot * 16384) if slot < 4 else (vTH, (slot - 4) * 16384)
        for dt in range(2):
            r = aF + (n % 8) * 4; n += 1
            for rd in range(2):
                b(f"ds_read_b64_tr_b16 {v(r+2*rd,2)}, v{base+dt} offset:{off + (16*tt + 8*rd)*128}")
            b(f"s_add_u32 s{sT0}, s{sWoff+2}, {(dt*176 + t)*1024}")
            b(f"buffer_store_dwordx4 {v(r,4)}, v{vL16b}, {s(sHF,4)}, s{sT0} offen")
    for dt in range(2):
        b.wait('vm', f"sc{dt}")
        slot = dt
        for k in range(4):
            r = aF + (n % 8) * 4; n += 1
            b(f"ds_read_b128 {v(r,4)}, v{vPX+k} offset:{slot*16384}")
            ksn = 4 * (k >> 1) + (k & 1)
            b(f"s_add_u32 s{sT0}, s{sWoff+3}, {(dt*176 + ksn)*1024}")
            b(f"buffer_store_dwordx4 {v(r,4)}, v{vL16b}, {s(sHF,4)}, s{sT0} offen")
    return b

def k1_scan1():
    b = B()
    for r in range(16):
        p = r & ~1; o = r & 1
        b(f"v_pk_mul_f32 {v(vU+2*r,2)}, {v(vC2,2)}, {v(aRE+p,2)} op_sel:[0,{o}] op_sel_hi:[1,{o}]")
    for r in range(16):
        p = r & ~1; o = r & 1
        b(f"v_pk_fma_f32 {v(vU+2*r,2)}, {v(vC2,2)}, {v(aIM+p,2)}, {v(vU+2*r,2)} op_sel:[1,{o},0] op_sel_hi:[0,{o},1] neg_lo:[1,0,0]")
    tmp = vTmp
    cfma(b, vW_, vL, vU, vU + 2, tmp)
    cur = vW_
    for r in range(2, 16):
        nxt = vQ if cur == vW_ else vW_
        cfma(b, nxt, vL, cur, vU + 2*r, tmp)
        cur = nxt
    assert cur == vW_, cur
    b(f"v_mov_b32 v{vPre}, v{cur}\nv_mov_b32 v{vPre+1}, v{cur+1}")
    b(f"v_mov_b32 v{vQ}, v{cur}\nv_mov_b32 v{vQ+1}, v{cur+1}")
    b(f"v_permlane32_swap_b32 v{vPre}, v{vQ}")
    b(f"v_permlane32_swap_b32 v{vPre+1}, v{vQ+1}")
    cfma(b, vW_, vL16, vPre, vQ, tmp)
    b(f"v_pk_mul_f32 {v(vPre,2)}, {v(vPre,2)}, {v(vHfm,2)} op_sel:[0,0] op_sel_hi:[1,0]")
    t = vT2
    b(f"v_and_b32 v{t}, 31, v{vLane}")
    b(f"v_lshlrev_b32 v{t}, 3, v{t}")
    b(f"s_lshl_b32 s{sT0}, s{sWave}, 8")
    b(f"v_add_u32 v{t+1}, s{sT0}, v{t}")
    b(f"ds_write_b64 v{t+1}, {v(vW_,2)} offset:{SC}", "Wx")
    b.wait('lg', "Wx")
    b("s_barrier")
    for w in range(4):
        b(f"ds_read_b64 {v(t+2+2*w,2)}, v{t} offset:{SC + 256*w}")
    W0, W1, W2, W3 = t+2, t+4, t+6, t+8
    Q2, Q3, E = t+10, t+12, t+16
    cfma(b, Q2, vL32, W0, W1, tmp)
    cfma(b, Q3, vL32, Q2, W2, tmp)
    cfma(b, E, vL32, Q3, W3, tmp)
    for h in range(2):
        b(f"v_cndmask_b32 v{vQ+h}, 0, v{W0+h}, {s(sM1,2)}")
        b(f"v_cndmask_b32 v{vQ+h}, v{vQ+h}, v{Q2+h}, {s(sM2,2)}")
        b(f"v_cndmask_b32 v{vQ+h}, v{vQ+h}, v{Q3+h}, {s(sM3,2)}")
    cfma(b, vK, vF1, vQ, vPre, tmp)
    b(f"v_cmp_ne_u32 vcc, 0, v{vNon+1}")
    b("s_cbranch_vccnz L_k1_{P}_nonce_ok")
    b(f"s_mov_b32 s{sSpin}, 0")
    b("L_k1_{P}_nonce_retry:")
    b(f"v_mov_b32 v{vTmp}, 0")
    b(f"global_load_dwordx2 {v(vNon,2)}, v{vTmp}, s[32:33] sc1", 'nocount')
    b("s_waitcnt vmcnt(0)")
    b(f"s_add_u32 s{sSpin}, s{sSpin}, 1")
    b(f"s_cmp_gt_u32 s{sSpin}, 40000")
    b("s_cbranch_scc1 L_k1_{P}_nonce_ok")
    b(f"v_cmp_ne_u32 vcc, 0, v{vNon+1}")
    b("s_cbranch_vccz L_k1_{P}_nonce_retry")
    b("L_k1_{P}_nonce_ok:")
    b(f"v_mov_b32 v{E+2}, v{vNon}\nv_mov_b32 v{E+3}, v{vNon+1}")
    b(f"v_lshrrev_b32 v{tmp}, 3, v{vLane}")
    b(f"v_cmp_eq_u32 vcc, s{sWave}, v{tmp}")
    b(f"s_lshl_b32 s{sT0}, s{sR}, 4")
    b(f"s_add_u32 s{sT0}, s{sT0}, s{sS}")
    b(f"s_lshl_b32 s{sT0}, s{sT0}, 9")
    b(f"s_add_u32 s{sT0}, s{sT0}, {E_OFF}")
    b(f"v_lshlrev_b32 v{tmp+1}, 1, v{t}")
    b(f"v_add_u32 v{tmp+1}, s{sT0}, v{tmp+1}")
    b(f"s_and_saveexec_b64 {s(sEX,2)}, vcc")
    b(f"global_store_dwordx4 v{tmp+1}, {v(E,4)}, s[34:35] sc0 sc1")
    b(f"s_mov_b64 exec, {s(sEX,2)}")
    return b

GR = [aRE + 4*k for k in range(8)] + [vS + 4*k for k in range(7)]

def k1_lookback_loads(b, tok=None):
    t = vT2 + 20
    b(f"v_and_b32 v{t}, 31, v{vLane}")
    b(f"v_lshlrev_b32 v{t}, 4, v{t}")
    b(f"s_lshl_b32 s{sT0}, s{sS}, 9")
    b(f"s_add_u32 s{sT0}, s{sT0}, {E_OFF}")
    b(f"v_add_u32 v{t}, s{sT0}, v{t}")
    for k in range(15):
        if k: b(f"v_add_u32 v{t+1}, {k*8192}, v{t}")
        b(f"global_load_dwordx4 {v(GR[k],4)}, v{t+1 if k else t}, s[34:35] sc1", tok)

def k1_lookback_finish():
    b = B()
    tmp = vTmp
    H = vT2 + 24
    b(f"s_mov_b32 s{sSpin}, 0")
    b.wait('vm', 'lb')
    b("L_k1_{P}_lb_check:")
    b(f"s_mov_b64 {s(sEX,2)}, -1")
    for k in range(15):
        b(f"s_cmp_le_u32 s{sR}, {k}")
        b("s_cbranch_scc1 L_k1_{P}_lb_checked")
        b(f"v_cmp_eq_u32 vcc, v{GR[k]+2}, v{vNon}")
        b(f"s_and_b64 {s(sEX,2)}, {s(sEX,2)}, vcc")
        b(f"v_cmp_eq_u32 vcc, v{GR[k]+3}, v{vNon+1}")
        b(f"s_and_b64 {s(sEX,2)}, {s(sEX,2)}, vcc")
    b("L_k1_{P}_lb_checked:")
    b(f"s_cmp_eq_u64 {s(sEX,2)}, -1")
    b("s_cbranch_scc1 L_k1_{P}_lb_ok")
    b(f"s_add_u32 s{sSpin}, s{sSpin}, 1")
    b(f"s_cmp_gt_u32 s{sSpin}, 40000")
    b("s_cbranch_scc1 L_k1_{P}_lb_ok")
    k1_lookback_loads(b, 'nocount')
    b("s_waitcnt vmcnt(0)")
    b("s_branch L_k1_{P}_lb_check")
    b("L_k1_{P}_lb_ok:")
    b(f"v_mov_b32 v{H}, 0\nv_mov_b32 v{H+1}, 0")
    for k in range(15):
        b(f"s_cmp_le_u32 s{sR}, {k}")
        b("s_cbranch_scc1 L_k1_{P}_lb_h")
        b(f"v_pk_fma_f32 {v(tmp,2)}, {v(vL128,2)}, {v(H,2)}, {v(GR[k],2)} op_sel:[0,0,0] op_sel_hi:[0,1,1]")
        b(f"v_pk_fma_f32 {v(H,2)}, {v(vL128,2)}, {v(H,2)}, {v(tmp,2)} op_sel:[1,1,0] op_sel_hi:[1,0,1] neg_lo:[1,0,0]")
    b("L_k1_{P}_lb_h:")
    cfma(b, vQ, vG, H, vK, tmp)
    prev = vQ
    for r in range(16):
        cfma(b, vU + 2*r, vL, prev, vU + 2*r, tmp)
        prev = vU + 2*r
    for k in range(8):
        b(f"v_cvt_pk_bf16_f32 v{aRE+k}, v{vU+4*k}, v{vU+4*k+2}")
        b(f"v_cvt_pk_bf16_f32 v{aRE+8+k}, -v{vU+4*k+1}, -v{vU+4*k+3}")
    t = vT2
    b(f"v_and_b32 v{t}, 31, v{vLane}")
    b(f"v_mul_u32_u24 v{t}, 80, v{t}")
    b(f"v_lshrrev_b32 v{t+1}, 5, v{vLane}")
    b(f"v_lshl_add_u32 v{t}, v{t+1}, 5, v{t}")
    b(f"s_mul_i32 s{sT0}, s{sWave}, 5120")
    b(f"v_add_u32 v{t}, s{sT0}, v{t}")
    for m in range(2):
        for h in range(2):
            b(f"ds_write_b128 v{t}, {v(aRE+8*m+4*h,4)} offset:{IMG + m*2560 + h*16}", "img")
    L = vLane
    b(f"v_lshrrev_b32 v{t+1}, 5, v{L}")
    b(f"v_lshlrev_b32 v{t+1}, 3, v{t+1}")
    b(f"v_bfe_u32 v{t+2}, v{L}, 2, 2")
    b(f"v_add_u32 v{t+1}, v{t+1}, v{t+2}")
    b(f"v_mul_u32_u24 v{t+1}, 80, v{t+1}")
    b(f"v_and_b32 v{t+2}, 1, v{L}")
    b(f"v_lshlrev_b32 v{t+2}, 5, v{t+2}")
    b(f"v_bfe_u32 v{t+3}, v{L}, 4, 1")
    b(f"v_lshlrev_b32 v{t+3}, 4, v{t+3}")
    b(f"v_add3_u32 v{t+1}, v{t+1}, v{t+2}, v{t+3}")
    b(f"v_bfe_u32 v{t+2}, v{L}, 1, 1")
    b(f"v_lshlrev_b32 v{t+2}, 3, v{t+2}")
    b(f"v_add3_u32 v{t+1}, v{t+1}, v{t+2}, s{sT0}")
    b(f"v_lshlrev_b32 v{t+4}, 4, v{L}")
    b.wait('lg', "img")
    hf_base(b, sT1)
    b(f"s_lshl_b32 s{sT2}, s{sS}, 12")
    b(f"s_add_u32 s{sT1}, s{sT1}, s{sT2}")
    for m in range(2):
        for kk in range(2):
            r = aIM + (2*m + kk) * 4
            for rd in range(2):
                b(f"ds_read_b64_tr_b16 {v(r+2*rd,2)}, v{t+1} offset:{IMG + (m*32 + 16*kk + 4*rd)*80}")
            b(f"s_add_u32 s{sT2}, s{sT1}, {(2*m+kk)*1024}")
            b(f"buffer_store_dwordx4 {v(r,4)}, v{t+4}, {s(sHF,4)}, s{sT2} offen")
    return b

def hf_base(b, dst):
    b(f"s_lshl_b32 s{dst}, s{sR}, 2")
    b(f"s_add_u32 s{dst}, s{dst}, s{sWave}")
    b(f"s_mul_i32 s{dst}, s{dst}, {176*1024}")

def k1_ffn(hh):
    b = B()
    DEPTH = 3
    def lds_loc(n):
        i, k = divmod(n, 4)
        u = i // 2
        if hh == 0: reg = ('xs', 2 + u)
        else: reg = ('xs', u) if u < 2 else ('rb', u - 2)
        loc = (64 * (i & 1) + 16 * k) * 128
        if reg[0] == 'xs':
            if reg[1] < 4: return vT, reg[1] * 16384 + loc
            return vTH, (reg[1] - 4) * 16384 + loc
        return vTR, RB + reg[1] * 16384 + loc
    def reads(n):
        if n == 0:
            b.wait('vm', *( ["wa0", "wa1"] if hh == 0 else ["wb0", "wb1", "wb2", "wb3"]))
            b("s_barrier")
        if n == 16 and hh == 0:
            b.wait('vm', "wa2", "wa3")
            b("s_barrier")
        base, off = lds_loc(n)
        r = vS + (n % 4) * 8
        for ft in range(2):
            for rd in range(2):
                b(f"ds_read_b64_tr_b16 {v(r+4*ft+2*rd,2)}, v{base+ft} offset:{off + rd*512}")
    for n in range(DEPTH): reads(n)
    for n in range(32):
        i, k = divmod(n, 4)
        r = vS + (n % 4) * 8
        for ft in range(2):
            acc = aF + (2*hh + ft) * 16
            c = v(acc, 16) if n else "0"
            b(f"v_mfma_f32_32x32x16_bf16 {v(acc,16)}, {v(r+4*ft,4)}, {a(16*i+4*k,4)}, {c}")
        if n + DEPTH < 32: reads(n + DEPTH)
    return b

def k1_silu(tiles):
    b = B()
    t = vT2
    b(f"v_lshlrev_b32 v{t+30}, 4, v{vLane}")
    hf_base(b, sT1)
    b(f"s_lshl_b32 s{sT2}, s{sS}, 13")
    b(f"s_add_u32 s{sT1}, s{sT1}, s{sT2}")
    b(f"s_add_u32 s{sT1}, s{sT1}, {64*1024}")
    b(f"s_mov_b32 s{sT3}, {LOG2E ^ 0x80000000:#x}")
    for ft in tiles:
        acc = aF + ft * 16
        for kk in range(2):
            base = acc + 8 * kk
            e = t + (kk * 8)
            for q in range(8): b(f"v_mul_f32 v{e+q}, s{sT3}, v{base+q}")
            for q in range(8): b(f"v_exp_f32 v{e+q}, v{e+q}")
            for q in range(8): b(f"v_add_f32 v{e+q}, 1.0, v{e+q}")
            for q in range(8): b(f"v_rcp_f32 v{e+q}, v{e+q}")
            for q in range(8): b(f"v_mul_f32 v{e+q}, v{base+q}, v{e+q}")
            d = t + 16 + kk * 4
            for q in range(4): b(f"v_cvt_pk_bf16_f32 v{d+q}, v{e+2*q}, v{e+2*q+1}")
            b(f"s_add_u32 s{sT2}, s{sT1}, {(2*ft+kk)*1024}")
            b(f"buffer_store_dwordx4 {v(d,4)}, v{t+30}, {s(sHF,4)}, s{sT2} offen")
    return b

def subst(ops, P):
    for o in ops:
        if '{P}' in o.text:
            o.text = o.text.replace('{P}', P)
    return ops

def gen_k1():
    b = B()
    b.ext(k1_prologue())
    b.ext(k1_setup2())
    b(f"s_cmp_ge_u32 s{sS}, 14")
    b("s_cbranch_scc1 L_k1_side")
    pro = b.ops
    m = B()
    stamp(m, 1)
    m.ext(k1_p1(False))
    stamp(m, 2)
    m("s_barrier")
    dma_w1(m, 2, 1, RB)
    dma_w1(m, 3, 1, RB + 16384)
    m.ext(k1_scan1())
    stamp(m, 3)
    m.ext(k1_ffn(0))
    stamp(m, 4)
    m.ext(k1_silu([0, 1]))
    stamp(m, 5)
    m.ext(k1_ffn(1))
    stamp(m, 6)
    k1_lookback_loads(m, 'lb')
    m.ext(k1_silu([2, 3]))
    stamp(m, 7)
    m.ext(k1_lookback_finish())
    stamp(m, 8)
    m.ext(k1_stamp_out())
    m("s_endpgm")
    sd = B()
    sd("L_k1_side:")
    sd.ext(k1_side_setup())
    sd.ext(k1_p1(True))
    sd("s_barrier")
    sd.ext(k1_scan1())
    sd.ext(k1_side_body())
    k1_lookback_loads(sd, 'lb')
    sd.ext(k1_lookback_finish())
    sd.ext(k1_stamp_out())
    sd("L_k1_end:")
    sd("s_endpgm")
    main = finalize(pro + subst(m.ops, 'm'))
    import copy
    side_all = insert_waits(copy.deepcopy(pro) + subst(sd.ops, 's'))
    idx = [i for i, o in enumerate(side_all) if o.text == 'L_k1_side:'][0]
    side = insert_hazard_nops(side_all[idx:])
    return main + side

def k1_stamp_out():
    b = B()
    if not STAMP: return b
    b("s_memrealtime s[100:101]")
    b("s_waitcnt lgkmcnt(0)")
    b(f"v_writelane_b32 v{STV}, s100, 63")
    b(f"s_lshl_b32 s{sT0}, s2, 2")
    b(f"s_add_u32 s{sT0}, s{sT0}, s{sWave}")
    b(f"s_lshl_b32 s{sT0}, s{sT0}, 8")
    b(f"s_add_u32 s{sT0}, s{sT0}, {0x1000000}")
    b(f"v_lshlrev_b32 v254, 2, v{vLane}")
    b(f"v_add_u32 v254, s{sT0}, v254")
    b(f"global_store_dword v254, v{STV}, s[34:35]")
    return b

def gen_k2():
    global STV
    STV = 9
    b = B()
    D = int(opts.get('k2d', 8))
    sWv, sM, sN = 40, 41, 42
    sA, sBh = 44, 48
    t0, t1, t2 = 52, 53, 54
    vA0, vA1, vB0, vB1 = 2, 3, 4, 5
    vBuf = 16
    accS, accF = 0, 64
    if STAMP:
        b(f"v_mov_b32 v{STV}, 0")
        b("s_memrealtime s[100:101]")
        b("s_waitcnt lgkmcnt(0)")
        b(f"v_writelane_b32 v{STV}, s100, 62")
        stamp(b, 0)
    b("s_load_dwordx2 s[4:5], s[0:1], 0")
    b("s_load_dwordx2 s[6:7], s[0:1], 64")
    b("s_load_dwordx2 s[8:9], s[0:1], 104")
    b("s_load_dwordx2 s[10:11], s[0:1], 120")
    b("s_cmp_ge_u32 s2, 256")
    b("s_cbranch_scc1 L_k2_end")
    b("v_lshrrev_b32 v6, 6, v0")
    b("v_and_b32 v1, 63, v0")
    b(f"v_readfirstlane_b32 s{sWv}, v6")
    b(f"s_and_b32 s{t0}, s2, 7")
    b(f"s_lshr_b32 s{t1}, s2, 3")
    b(f"s_and_b32 s{sM}, s{t1}, 3")
    b(f"s_lshl_b32 s{t0}, s{t0}, 2")
    b(f"s_add_u32 s{sM}, s{sM}, s{t0}")
    b(f"s_lshr_b32 s{sN}, s{t1}, 2")
    b(f"s_mul_i32 s{t0}, s{sM}, {352*1024}")
    b(f"s_mul_i32 s{t1}, s{sN}, {352*1024}")
    b(f"s_add_u32 s{t1}, s{t1}, {W2F_OFF}")
    b("v_lshlrev_b32 v6, 4, v1")
    b(f"v_add_u32 v{vB0}, s{t0}, v6")
    b(f"v_add_u32 v{vB1}, {176*1024}, v{vB0}")
    b(f"v_add_u32 v{vA0}, s{t1}, v6")
    b(f"v_add_u32 v{vA1}, {176*1024}, v{vA0}")
    b(f"s_lshl_b32 s56, s{sWv}, 14")
    b(f"s_mul_i32 s57, s{sWv}, {28*1024}")
    b(f"s_add_u32 s57, s57, {64*1024}")
    b("s_waitcnt lgkmcnt(0)")
    srd(b, sA, 10, WS_USED)
    steps = [('S', i) for i in range(16)] + [('F', i) for i in range(28)]
    NS = len(steps)
    def regs(st, k):
        base = vBuf + (st % D) * 16 + k * 4
        return v(base, 4)
    def loads(st):
        kind, i = steps[st]
        sb = 56 if kind == 'S' else 57
        b(f"s_add_u32 s{t2}, s{sb}, {i*1024}")
        b(f"buffer_load_dwordx4 {regs(st,0)}, v{vA0}, {s(sA,4)}, s{t2} offen")
        b(f"buffer_load_dwordx4 {regs(st,1)}, v{vA1}, {s(sA,4)}, s{t2} offen")
        b(f"buffer_load_dwordx4 {regs(st,2)}, v{vB0}, {s(sA,4)}, s{t2} offen")
        b(f"buffer_load_dwordx4 {regs(st,3)}, v{vB1}, {s(sA,4)}, s{t2} offen")
    vTau, vGp = 8, 10
    b("v_bfe_u32 v6, v1, 2, 1")
    b("v_lshlrev_b32 v6, 4, v6")
    b("v_and_b32 v7, 3, v1")
    b("v_add_u32 v6, v6, v7")
    b("v_bfe_u32 v7, v1, 3, 2")
    b(f"v_lshl_add_u32 v{vTau}, v7, 2, v6")
    b(f"s_lshl_b32 s{t0}, s{sM}, 6")
    b(f"v_add_u32 v6, s{t0}, v{vTau}")
    b("v_lshlrev_b32 v6, 3, v6")
    b(f"v_add_u32 v6, {G_OFF}, v6")
    b(f"global_load_dwordx2 v[10:11], v6, s[10:11]")
    b(f"global_load_dwordx2 v[12:13], v6, s[10:11] offset:256")
    for st in range(D): loads(st)
    for st in range(NS):
        kind, i = steps[st]
        acc = accS if kind == 'S' else accF
        for aa in range(2):
            for bb in range(2):
                dreg = a(acc + (aa*2 + bb) * 16, 16)
                c = dreg if i else "0"
                b(f"v_mfma_f32_32x32x16_bf16 {dreg}, {regs(st,aa)}, {regs(st,2+bb)}, {c}")
        if st + D < NS: loads(st + D)
    stamp(b, 1)
    PITCH = 272
    vx = 20
    b("v_lshrrev_b32 v6, 4, v0")
    b("v_and_b32 v7, 15, v0")
    b(f"s_lshl_b32 s{t0}, s{sM}, 6")
    b(f"v_add_u32 v14, s{t0}, v6")
    b(f"s_lshl_b32 s{t1}, s{sN}, 7")
    b("v_lshlrev_b32 v15, 10, v14")
    b("v_lshl_add_u32 v15, v7, 3, v15")
    b(f"v_add_u32 v15, s{t1}, v15")
    for p in range(4):
        if p: b(f"v_add_u32 v15, {16*1024}, v15")
        b(f"global_load_dwordx2 {v(vx+2*p,2)}, v15, s[4:5]")
    b("v_lshlrev_b32 v15, 3, v7")
    b(f"v_add_u32 v15, s{t1}, v15")
    b(f"global_load_dwordx2 v[28:29], v15, s[6:7]")
    b("v_lshlrev_b32 v15, 3, v14")
    b(f"v_add_u32 v15, {G_OFF}, v15")
    for p in range(4):
        b(f"global_load_dword v{30+p}, v15, s[10:11] offset:{p*128}")
    b(f"s_mul_i32 s{t0}, s{sWv}, {64*PITCH}")
    b(f"v_mul_u32_u24 v16, {PITCH}, v{vTau}")
    b("v_lshrrev_b32 v17, 5, v1")
    b("v_lshl_add_u32 v16, v17, 4, v16")
    b(f"v_add_u32 v16, s{t0}, v16")
    tmp = 40
    n = 0
    for aa in range(2):
        for bb in range(2):
            g = 10 + 2*bb
            for q in range(4):
                r = tmp + (n % 4) * 8; n += 1
                for e in range(4):
                    b(f"v_accvgpr_read_b32 v{r+e}, a{accS + (aa*2+bb)*16 + 4*q + e}")
                    b(f"v_accvgpr_read_b32 v{r+4+e}, a{accF + (aa*2+bb)*16 + 4*q + e}")
                for e in range(4):
                    b(f"v_mul_f32 v{r+e}, v{g}, v{r+e}")
                for e in range(4):
                    b(f"v_fma_f32 v{r+e}, v{g+1}, v{r+4+e}, v{r+e}")
                b(f"ds_write_b128 v16, {v(r,4)} offset:{bb*32*PITCH + (32*aa + 8*q)*4}", "red")
    b.wait('lg', "red")
    b("s_barrier")
    b(f"v_mul_u32_u24 v16, {PITCH}, v6")
    b("v_lshl_add_u32 v16, v7, 4, v16")
    b(f"s_lshl_b32 s{t1}, s{sN}, 8")
    b("v_lshlrev_b32 v18, 11, v14")
    b("v_lshl_add_u32 v18, v7, 4, v18")
    b(f"v_add_u32 v18, s{t1}, v18")
    b("v_lshlrev_b32 v34, 16, v28\nv_and_b32 v35, 0xffff0000, v28\nv_lshlrev_b32 v36, 16, v29\nv_and_b32 v37, 0xffff0000, v29")
    for p in range(4):
        r = 72 + p * 16
        for w in range(4):
            off = w*64*PITCH + p*16*PITCH
            base = 16
            if off > 65535 - 16:
                pass
            b(f"ds_read_b128 {v(r+4*w,4)}, v{base} offset:{off}")
    for p in range(4):
        r = 72 + p * 16
        for e in range(4):
            b(f"v_add_f32 v{r+e}, v{r+e}, v{r+4+e}")
            b(f"v_add_f32 v{r+8+e}, v{r+8+e}, v{r+12+e}")
        xs = vx + 2*p
        b(f"v_lshlrev_b32 v{tmp}, 16, v{xs}\nv_and_b32 v{tmp+1}, 0xffff0000, v{xs}\nv_lshlrev_b32 v{tmp+2}, 16, v{xs+1}\nv_and_b32 v{tmp+3}, 0xffff0000, v{xs+1}")
        for e in range(4):
            b(f"v_mul_f32 v{tmp+e}, v{tmp+e}, v{34+e}")
        b(f"v_cvt_pk_bf16_f32 v{tmp+4}, v{tmp}, v{tmp+1}")
        b(f"v_cvt_pk_bf16_f32 v{tmp+5}, v{tmp+2}, v{tmp+3}")
        b(f"v_lshlrev_b32 v{tmp}, 16, v{tmp+4}\nv_and_b32 v{tmp+1}, 0xffff0000, v{tmp+4}\nv_lshlrev_b32 v{tmp+2}, 16, v{tmp+5}\nv_and_b32 v{tmp+3}, 0xffff0000, v{tmp+5}")
        for e in range(4):
            b(f"v_add_f32 v{r+e}, v{r+e}, v{r+8+e}")
        for e in range(4):
            b(f"v_fma_f32 v{r+e}, v{30+p}, v{tmp+e}, v{r+e}")
        if p: b(f"v_add_u32 v18, {16*2048}, v18")
        b(f"global_store_dwordx4 v18, {v(r,4)}, s[8:9]")
    if STAMP:
        stamp(b, 2)
        b("s_memrealtime s[100:101]")
        b("s_waitcnt lgkmcnt(0)")
        b(f"v_writelane_b32 v{STV}, s100, 63")
        b(f"s_lshl_b32 s{t0}, s2, 2")
        b(f"s_add_u32 s{t0}, s{t0}, s{sWv}")
        b(f"s_lshl_b32 s{t0}, s{t0}, 8")
        b(f"s_add_u32 s{t0}, s{t0}, {0x1100000}")
        b(f"v_lshlrev_b32 v254, 2, v1")
        b(f"v_add_u32 v254, s{t0}, v254")
        b(f"global_store_dword v254, v{STV}, s[10:11]")
    b("L_k2_end:")
    b("s_endpgm")
    return finalize(b.ops), vBuf + D * 16

def header():
    ref = open('cdna_kernels/%s.s.ref' % NAME).read().split('\n')
    hdr = []
    for line in ref:
        if not line.startswith(';'): break
        if '@launch' in line or 'Override launch' in line or 'grid=ceil' in line: continue
        hdr.append(line)
    hdr.append(f"; @launch kernel={K1} grid=(256,1,1) block=(256,1,1) lds=163840")
    hdr.append(f"; @launch kernel={K2} grid=(256,1,1) block=(256,1,1) lds=69632")
    return '\n'.join(hdr)

def kd(name, nv, acc_off, nsg):
    return f""".amdhsa_kernel {name}
  .amdhsa_next_free_vgpr {nv}
  .amdhsa_next_free_sgpr {nsg}
  .amdhsa_accum_offset {acc_off}
  .amdhsa_group_segment_fixed_size 0
  .amdhsa_kernarg_size 128
  .amdhsa_user_sgpr_count 2
  .amdhsa_user_sgpr_kernarg_segment_ptr 1
  .amdhsa_system_sgpr_workgroup_id_x 1
  .amdhsa_float_denorm_mode_32 3
.end_amdhsa_kernel"""

def main():
    k1 = gen_k1()
    k2, k2v = gen_k2()
    out = [header(), '.amdgcn_target "amdgcn-amd-amdhsa--gfx950"', '.text']
    out += [f".globl {K1}", ".p2align 8", f".type {K1},@function", f"{K1}:", render(k1)]
    out += [f".globl {K2}", ".p2align 8", f".type {K2},@function", f"{K2}:", render(k2)]
    out += ['.section .rodata,"a"', '.p2align 6', kd(K1, 256 + 128, 256, 102), '.p2align 6', kd(K2, 256 + 128, 256, 102)]
    print('\n'.join(out))

main()
```

```python
import sys
sys.path.insert(0, 'dev')
from ir import *

NAME = "gated_mix__ssm_conv_s5__dense_activation_silu__prompt"
K1 = "gm_k1_kernel"
K2 = "gm_k2_kernel"

HF_OFF = 0
HF_SIZE = 64 * 176 * 1024
W2F_OFF = HF_SIZE
W2F_SIZE = 16 * 176 * 1024
G_OFF = W2F_OFF + W2F_SIZE
E_OFF = G_OFF + 2048 * 8
E_SIZE = 16 * 16 * 512
NONCE_OFF = E_OFF + E_SIZE
WS_USED = NONCE_OFF + 256

LOG2E = 0x3fb8aa3b
INV2PI = 0x3e22f983

RB = 0
XS = 65536
SC = 32768
IMG = 36864

opts = dict(a.split('=') for a in sys.argv[1:] if '=' in a)
STAMP = int(opts.get('stamp', 0))
STF = opts.get('stf', '').replace('+', ' ')

def v(n, k=1): return f"v{n}" if k == 1 else f"v[{n}:{n+k-1}]"
def a(n, k=1): return f"a{n}" if k == 1 else f"a[{n}:{n+k-1}]"
def s(n, k=1): return f"s{n}" if k == 1 else f"s[{n}:{n+k-1}]"

sX, sBRE, sBIM, sW1, sHF, sC = 36, 40, 44, 48, 52, 56
sWave, sR, sS, sRho = 60, 61, 62, 63
sLdsW, sT0, sT1, sT2, sT3 = 66, 68, 69, 70, 71
sWoff = 76
sM1, sM2, sM3 = 80, 82, 84
sEX = 88
sLo = 90
sSpin = 98
sU = 99
vTid, vLane = 0, 1
vX, vB, vW, vC = 2, 6, 7, 11
vP, vPX, vPXH, vT, vTH, vTR = 16, 20, 24, 28, 30, 32
vL, vC2, vL16, vL32, vL128, vF1, vG, vHfm = 34, 36, 38, 40, 42, 44, 46, 48
vNon = 50
vK = 52
vQ = 54
vW_ = 56
vPre = 58
vTmp = 60
aRE, aIM, aF = 64, 80, 96
vU = 160
vS = 192
vT2 = 224

def srd(b, dst, ptr, size, off=0):
    b(f"s_mov_b32 s{dst}, s{ptr}")
    b(f"s_mov_b32 s{dst+1}, s{ptr+1}")
    b(f"s_mov_b32 s{dst+2}, {size}")
    b(f"s_mov_b32 s{dst+3}, 0x20000")

def cexp(b, dst, n_src, va, vang, t0):
    b(f"v_mul_f32 v{t0}, {n_src}, v{va}")
    b(f"v_mul_f32 v{t0+1}, {n_src}, v{vang}")
    b(f"v_exp_f32 v{t0}, v{t0}")
    b(f"v_rndne_f32 v{t0+2}, v{t0+1}")
    b(f"v_sub_f32 v{t0+1}, v{t0+1}, v{t0+2}")
    b(f"v_cos_f32 v{dst}, v{t0+1}")
    b(f"v_sin_f32 v{dst+1}, v{t0+1}")
    b(f"v_mul_f32 v{dst}, v{t0}, v{dst}")
    b(f"v_mul_f32 v{dst+1}, v{t0}, v{dst+1}")

def cfma(b, d, l, h, u, tmp):
    b(f"v_pk_fma_f32 {v(tmp,2)}, {v(l,2)}, {v(h,2)}, {v(u,2)} op_sel:[0,0,0] op_sel_hi:[0,1,1]")
    b(f"v_pk_fma_f32 {v(d,2)}, {v(l,2)}, {v(h,2)}, {v(tmp,2)} op_sel:[1,1,0] op_sel_hi:[1,0,1] neg_lo:[1,0,0]")

STV = 15
def stamp(b, idx):
    if not STAMP: return
    b(f"s_memtime s[100:101]")
    b("s_waitcnt lgkmcnt(0)")
    b(f"v_writelane_b32 v{STV}, s100, {idx}")

def k1_prologue():
    b = B()
    if STAMP:
        b(f"v_mov_b32 v{STV}, 0")
        b("s_memrealtime s[100:101]")
        b("s_waitcnt lgkmcnt(0)")
        b(f"v_writelane_b32 v{STV}, s100, 62")
        stamp(b, 0)
    b("s_load_dwordx16 s[4:19], s[0:1], 0")
    b("s_load_dwordx16 s[20:35], s[0:1], 64")
    b("s_cmp_ge_u32 s2, 256")
    b("s_cbranch_scc1 L_k1_end")
    b(f"v_lshrrev_b32 v{vTmp}, 6, v0")
    b(f"v_and_b32 v{vLane}, 63, v0")
    b(f"v_readfirstlane_b32 s{sWave}, v{vTmp}")
    b(f"s_and_b32 s{sT0}, s2, 7")
    b(f"s_lshr_b32 s{sT1}, s2, 3")
    b(f"s_and_b32 s{sT2}, s{sT1}, 7")
    b(f"s_lshr_b32 s{sT3}, s{sT1}, 3")
    b(f"s_lshr_b32 s{sR}, s{sT0}, 2")
    b(f"s_lshl_b32 s{sR}, s{sR}, 3")
    b(f"s_add_u32 s{sR}, s{sR}, s{sT2}")
    b(f"s_and_b32 s{sS}, s{sT0}, 3")
    b(f"s_lshl_b32 s{sS}, s{sS}, 2")
    b(f"s_add_u32 s{sS}, s{sS}, s{sT3}")
    b(f"s_lshl_b32 s{sRho}, s{sT3}, 1")
    b(f"s_add_u32 s{sRho}, s{sRho}, s{sT2}")
    b(f"s_and_b32 s{sRho}, s{sRho}, 7")
    for i in range(8):
        b(f"s_add_u32 s{sLo+i}, s{sRho}, {i}")
        b(f"s_and_b32 s{sLo+i}, s{sLo+i}, 7")
        b(f"s_lshl_b32 s{sLo+i}, s{sLo+i}, 7")
    b(f"s_lshl_b32 s{sLdsW}, s{sWave}, 12")
    L = vLane; t = vTmp
    b(f"v_and_b32 v{t}, 7, v{L}")
    b(f"v_lshrrev_b32 v{t+1}, 4, v{L}")
    b(f"v_xor_b32 v{t+2}, v{t}, v{t+1}")
    b(f"v_lshlrev_b32 v{t+2}, 4, v{t+2}")
    b(f"v_lshrrev_b32 v{t}, 5, v{L}")
    b(f"v_lshlrev_b32 v{t}, 14, v{t}")
    b(f"v_bfe_u32 v{t+1}, v{L}, 3, 2")
    b(f"v_lshlrev_b32 v{t+1}, 10, v{t+1}")
    b(f"v_add3_u32 v{vX}, v{t}, v{t+1}, v{t+2}")
    b(f"s_lshl_b32 s{sT0}, s{sR}, 17")
    b(f"s_lshl_b32 s{sT1}, s{sWave}, 15")
    b(f"s_add_u32 s{sT0}, s{sT0}, s{sT1}")
    b(f"v_add_u32 v{vX}, s{sT0}, v{vX}")
    b(f"v_xor_b32 v{vX+1}, 64, v{vX}")
    b(f"v_add_u32 v{vX+1}, 4096, v{vX+1}")
    b(f"v_add_u32 v{vX+2}, 8192, v{vX}")
    b(f"v_add_u32 v{vX+3}, 8192, v{vX+1}")
    b(f"v_lshrrev_b32 v{t}, 3, v{L}")
    b(f"v_lshlrev_b32 v{t}, 10, v{t}")
    b(f"s_and_b32 s{sT0}, s{sWave}, 1")
    b(f"s_lshl_b32 s{sT0}, s{sT0}, 6")
    b(f"v_xor_b32 v{t+1}, s{sT0}, v{t+2}")
    b(f"s_lshl_b32 s{sT0}, s{sWave}, 13")
    b(f"s_lshl_b32 s{sT1}, s{sS}, 15")
    b(f"s_add_u32 s{sT0}, s{sT0}, s{sT1}")
    b(f"v_add3_u32 v{vB}, v{t}, v{t+1}, s{sT0}")
    b(f"v_add_u32 v{vC}, v{t}, v{t+2}")
    b(f"v_xor_b32 v{vC+1}, 64, v{vC}")
    b(f"v_add_u32 v{vC+1}, 8192, v{vC+1}")
    b(f"v_add_u32 v{vC+2}, 16384, v{vC}")
    b(f"v_add_u32 v{vC+3}, 16384, v{vC+1}")
    b(f"v_bfe_u32 v{t+1}, v{L}, 4, 1")
    b(f"v_lshlrev_b32 v{t+1}, 2, v{t+1}")
    b(f"v_and_b32 v{t+3}, 7, v{L}")
    b(f"v_xor_b32 v{t+3}, v{t+3}, v{t+1}")
    b(f"v_lshlrev_b32 v{t+3}, 4, v{t+3}")
    b(f"s_cmp_ge_u32 s{sS}, 14")
    b(f"s_mov_b32 s{sT0}, 3584")
    b(f"s_cselect_b32 s{sT0}, 1024, s{sT0}")
    b(f"v_lshrrev_b32 v{t+1}, 3, v{L}")
    b(f"v_mul_lo_u32 v{t+1}, v{t+1}, s{sT0}")
    b(f"v_add_u32 v{vW}, v{t+1}, v{t+3}")
    b(f"s_lshl_b32 s{sT0}, s{sT0}, 3")
    for k in range(1, 4):
        b(f"v_add_u32 v{vW+k}, s{sT0}, v{vW+k-1}")
    b(f"v_and_b32 v{t}, 31, v{L}")
    b(f"v_lshlrev_b32 v{t}, 7, v{t}")
    b(f"v_lshrrev_b32 v{t+1}, 5, v{L}")
    b(f"v_bfe_u32 v{t+2}, v{L}, 1, 3")
    b(f"v_xor_b32 v{t+2}, v{t+1}, v{t+2}")
    for k in range(4):
        b(f"v_xor_b32 v{t+3}, {2*k}, v{t+2}")
        b(f"v_lshl_add_u32 v{vP+k}, v{t+3}, 4, v{t}")
    b(f"s_add_u32 s{sT0}, s{sLdsW}, {XS}")
    for k in range(4):
        b(f"v_add_u32 v{vPX+k}, s{sT0}, v{vP+k}")
        b(f"v_add_u32 v{vPXH+k}, 0x10000, v{vPX+k}")
    return b

def tr_pattern(b, dst, hfmul, t):
    L = vLane
    b(f"v_lshrrev_b32 v{t}, 5, v{L}")
    b(f"v_mul_u32_u24 v{t}, {hfmul}, v{t}")
    b(f"v_bfe_u32 v{t+1}, v{L}, 2, 2")
    b(f"v_add_u32 v{t}, v{t}, v{t+1}")
    b(f"v_lshlrev_b32 v{t}, 7, v{t}")
    b(f"v_bfe_u32 v{t+1}, v{L}, 3, 1")
    b(f"v_lshlrev_b32 v{t+1}, 6, v{t+1}")
    b(f"v_bfe_u32 v{t+2}, v{L}, 4, 1")
    b(f"v_lshlrev_b32 v{t+2}, 5, v{t+2}")
    b(f"v_and_b32 v{t+3}, 3, v{L}")
    b(f"v_lshlrev_b32 v{t+3}, 3, v{t+3}")
    b(f"v_add3_u32 v{t}, v{t}, v{t+2}, v{t+3}")
    b(f"v_add_u32 v{dst}, v{t}, v{t+1}")
    b(f"v_xor_b32 v{t+1}, 64, v{t+1}")
    b(f"v_add_u32 v{dst+1}, v{t}, v{t+1}")

def dma(b, voff, srdn, soff, m0expr, tok):
    b(m0expr)
    b(f"buffer_load_dwordx4 v{voff}, {s(srdn,4)}, {soff} offen lds", tok)

def dma_x(b, i, slot):
    for k in range(4):
        dma(b, vX + k, sX, f"s{sLo+i}", f"s_add_u32 m0, s{sLdsW}, {XS + slot*16384 + k*1024}", f"x{i}")
def dma_B(b, i):
    dma(b, vB, sBRE, f"s{sLo+i}", f"s_add_u32 m0, s67, {RB + i*8192}", f"B{i}")
    dma(b, vB, sBIM, f"s{sLo+i}", f"s_add_u32 m0, s67, {RB + i*8192 + 4096}", f"B{i}")
def dma_w1(b, u, hh, ldsbase):
    b(f"s_add_u32 s{sT0}, s{sWoff+u}, {128*hh}")
    for k in range(4):
        dma(b, vW + k, sW1, f"s{sT0}", f"s_add_u32 m0, s{sLdsW}, {ldsbase + k*1024}", f"w{'ab'[hh]}{u}")

def k1_setup2():
    b = B()
    b("s_waitcnt lgkmcnt(0)")
    srd(b, sX, 4, 2048*1024)
    srd(b, sBRE, 10, 512*1024)
    srd(b, sBIM, 12, 512*1024)
    srd(b, sHF, 34, WS_USED)
    b(f"s_lshl_b32 s67, s{sWave}, 10")
    b(f"s_cmp_ge_u32 s{sS}, 14")
    b(f"s_cselect_b32 s{sW1}, s26, s24")
    b(f"s_cselect_b32 s{sW1+1}, s27, s25")
    b(f"s_mov_b32 s{sW1+2}, {512*3584}")
    b(f"s_mov_b32 s{sW1+3}, 0x20000")
    b(f"s_and_b32 s{sT0}, s{sWave}, 1")
    b(f"s_cmp_eq_u32 s{sT0}, 1")
    b(f"s_cselect_b32 s{sC}, s16, s14")
    b(f"s_cselect_b32 s{sC+1}, s17, s15")
    b(f"s_mov_b32 s{sC+2}, {512*1024}")
    b(f"s_mov_b32 s{sC+3}, 0x20000")
    t = vTmp
    b(f"v_and_b32 v{t}, 31, v{vLane}")
    b(f"s_lshl_b32 s{sT0}, s{sS}, 5")
    b(f"v_add_u32 v{t}, s{sT0}, v{t}")
    b(f"v_lshlrev_b32 v{t}, 1, v{t}")
    b(f"global_load_ushort v{vT2}, v{t}, s[6:7]")
    b(f"global_load_ushort v{vT2+1}, v{t}, s[8:9]")
    b(f"global_load_ushort v{vT2+2}, v{t}, s[18:19]")
    b(f"s_lshl_b32 s{sT0}, s{sR}, 7")
    b(f"s_lshl_b32 s{sT1}, s{sS}, 3")
    b(f"s_add_u32 s{sT0}, s{sT0}, s{sT1}")
    b(f"s_lshl_b32 s{sT1}, s{sWave}, 1")
    b(f"s_add_u32 s{sT0}, s{sT0}, s{sT1}")
    b(f"v_lshrrev_b32 v{t+1}, 5, v{vLane}")
    b(f"v_add_u32 v{t+1}, s{sT0}, v{t+1}")
    b(f"v_lshlrev_b32 v{vT2+28}, 3, v{t+1}")
    b(f"v_lshlrev_b32 v{t+1}, 10, v{t+1}")
    b(f"v_and_b32 v{t+2}, 31, v{vLane}")
    b(f"v_lshlrev_b32 v{t+2}, 4, v{t+2}")
    b(f"v_add_u32 v{t+1}, v{t+1}, v{t+2}")
    b(f"global_load_dwordx4 {v(vT2+4,4)}, v{t+1}, s[4:5]")
    b(f"global_load_dwordx4 {v(vT2+8,4)}, v{t+1}, s[4:5] offset:512")
    b(f"global_load_dwordx4 {v(vT2+12,4)}, v{t+2}, s[28:29]")
    b(f"global_load_dwordx4 {v(vT2+16,4)}, v{t+2}, s[28:29] offset:512")
    b(f"v_mov_b32 v{t}, {NONCE_OFF}")
    b(f"global_load_dwordx2 {v(vT2+20,2)}, v{t}, s[34:35] sc1")
    for i in range(6):
        dma_x(b, i, i); dma_B(b, i)
    dma_B(b, 6); dma_B(b, 7)
    b(f"s_lshr_b32 s{sT1}, s{sWave}, 1")
    b(f"s_and_b32 s{sT2}, s{sWave}, 1")
    b(f"s_mul_i32 s{sT2}, s{sT2}, {32*3584}")
    b(f"s_lshl_b32 s{sT3}, s{sS}, 8")
    b(f"s_add_u32 s{sT2}, s{sT2}, s{sT3}")
    for u in range(4):
        b(f"s_add_u32 s{sT0}, s{sRho}, s{sT1}")
        b(f"s_add_u32 s{sT0}, s{sT0}, {2*u}")
        b(f"s_and_b32 s{sT0}, s{sT0}, 7")
        b(f"s_mul_i32 s{sT0}, s{sT0}, {64*3584}")
        b(f"s_add_u32 s{sWoff+u}, s{sT0}, s{sT2}")
    tr_pattern(b, vTR, 8, vTmp)
    b(f"v_add_u32 v{vT}, {XS}, v{vTR}")
    b(f"v_add_u32 v{vT+1}, {XS}, v{vTR+1}")
    b(f"v_add_u32 v{vTH}, {XS+65536}, v{vTR}")
    b(f"v_add_u32 v{vTH+1}, {XS+65536}, v{vTR+1}")
    for k, m in ((1, sM1), (2, sM2), (3, sM3)):
        b(f"s_cmp_ge_u32 s{sWave}, {k}")
        b(f"s_cselect_b64 {s(m,2)}, -1, 0")
    return b

def k1_params():
    b = B()
    lre, lim, ldt = vT2, vT2+1, vT2+2
    t = vT2 + 22
    b(f"v_lshlrev_b32 v{lre}, 16, v{lre}")
    b(f"v_lshlrev_b32 v{lim}, 16, v{lim}")
    b(f"v_lshlrev_b32 v{ldt}, 16, v{ldt}")
    b(f"v_mul_f32 v{ldt}, {LOG2E:#x}, v{ldt}")
    b(f"v_exp_f32 v{ldt}, v{ldt}")
    b(f"v_cvt_pk_bf16_f32 v{ldt}, v{ldt}, v{ldt}")
    b(f"v_lshlrev_b32 v{ldt}, 16, v{ldt}")
    va, vang = t, t+1
    b(f"v_mul_f32 v{va}, v{ldt}, v{lre}")
    b(f"v_mul_f32 v{vang}, v{ldt}, v{lim}")
    b(f"v_mul_f32 v{va}, {LOG2E:#x}, v{va}")
    b(f"v_mul_f32 v{vang}, {INV2PI:#x}, v{vang}")
    t0 = t + 2
    cexp(b, vL, "1.0", va, vang, t0)
    b(f"v_mov_b32 v{t0+3}, 0x41800000")
    cexp(b, vL16, f"v{t0+3}", va, vang, t0)
    b(f"v_mov_b32 v{t0+3}, 0x42000000")
    cexp(b, vL32, f"v{t0+3}", va, vang, t0)
    b(f"v_mov_b32 v{t0+3}, 0x43000000")
    cexp(b, vL128, f"v{t0+3}", va, vang, t0)
    b(f"v_lshrrev_b32 v{t0+3}, 5, v{vLane}")
    b(f"v_cvt_f32_u32 v{vHfm}, v{t0+3}")
    b(f"v_lshlrev_b32 v{t0+3}, 4, v{t0+3}")
    b(f"v_cvt_f32_u32 v{t0+3}, v{t0+3}")
    cexp(b, vF1, f"v{t0+3}", va, vang, t0)
    b(f"v_lshrrev_b32 v{t0+3}, 5, v{vLane}")
    b(f"v_lshlrev_b32 v{t0+3}, 4, v{t0+3}")
    b(f"s_lshl_b32 s{sT0}, s{sWave}, 5")
    b(f"v_add_u32 v{t0+3}, s{sT0}, v{t0+3}")
    b(f"v_cvt_f32_u32 v{t0+3}, v{t0+3}")
    cexp(b, vG, f"v{t0+3}", va, vang, t0)
    b(f"v_add_f32 v{t0}, -1.0, v{vL}")
    b(f"v_mul_f32 v{t0+1}, v{lre}, v{lre}")
    b(f"v_fma_f32 v{t0+1}, v{lim}, v{lim}, v{t0+1}")
    b(f"v_rcp_f32 v{t0+1}, v{t0+1}")
    b(f"v_mul_f32 v{vC2}, v{t0}, v{lre}")
    b(f"v_fma_f32 v{vC2}, v{vL+1}, v{lim}, v{vC2}")
    b(f"v_mul_f32 v{vC2+1}, v{vL+1}, v{lre}")
    b(f"v_fma_f32 v{vC2+1}, -v{t0}, v{lim}, v{vC2+1}")
    b(f"v_add_f32 v{t0+1}, v{t0+1}, v{t0+1}")
    b(f"v_mul_f32 v{vC2}, v{vC2}, v{t0+1}")
    b(f"v_mul_f32 v{vC2+1}, v{vC2+1}, v{t0+1}")
    return b

def k1_gjob():
    b = B()
    xs, gs = vT2 + 4, vT2 + 12
    t = vU
    acc = t
    first = True
    for k in range(8):
        b(f"v_lshlrev_b32 v{t+1}, 16, v{xs+k}")
        b(f"v_and_b32 v{t+2}, 0xffff0000, v{xs+k}")
        b(f"v_lshlrev_b32 v{t+3}, 16, v{gs+k}")
        b(f"v_and_b32 v{t+4}, 0xffff0000, v{gs+k}")
        b(f"v_mul_f32 v{t+1}, v{t+1}, v{t+3}")
        b(f"v_mul_f32 v{t+2}, v{t+2}, v{t+4}")
        b(f"v_cvt_pk_bf16_f32 v{t+1}, v{t+1}, v{t+2}")
        b(f"v_lshlrev_b32 v{t+2}, 16, v{t+1}")
        b(f"v_and_b32 v{t+1}, 0xffff0000, v{t+1}")
        if first:
            b(f"v_add_f32 v{acc}, v{t+1}, v{t+2}"); first = False
        else:
            b(f"v_add_f32 v{t+1}, v{t+1}, v{t+2}")
            b(f"v_add_f32 v{acc}, v{acc}, v{t+1}")
    for r in (8, 4, 2, 1):
        b(f"v_add_f32_dpp v{acc}, v{acc}, v{acc} row_ror:{r} row_mask:0xf bank_mask:0xf")
    b(f"v_mov_b32 v{t+1}, v{acc}")
    b(f"v_permlane16_swap_b32 v{acc}, v{t+1}")
    b(f"v_add_f32 v{acc}, v{acc}, v{t+1}")
    b(f"v_cvt_pk_bf16_f32 v{acc}, v{acc}, v{acc}")
    b(f"v_lshlrev_b32 v{acc}, 16, v{acc}")
    b(f"v_mul_f32 v{acc}, {LOG2E ^ 0x80000000:#x}, v{acc}")
    b(f"v_exp_f32 v{acc}, v{acc}")
    b(f"v_add_f32 v{acc}, 1.0, v{acc}")
    b(f"v_rcp_f32 v{acc}, v{acc}")
    b(f"v_cvt_pk_bf16_f32 v{acc}, v{acc}, v{acc}")
    b(f"v_lshlrev_b32 v{t+2}, 16, v{acc}")
    b(f"v_sub_f32 v{t+3}, 1.0, v{t+2}")
    b(f"v_cvt_pk_bf16_f32 v{t+3}, v{t+3}, v{t+3}")
    b(f"v_lshlrev_b32 v{t+3}, 16, v{t+3}")
    b(f"v_add_u32 v{t+4}, {G_OFF}, v{vT2+28}")
    b(f"v_and_b32 v{t+5}, 31, v{vLane}")
    b(f"v_cmp_eq_u32 vcc, 0, v{t+5}")
    b(f"s_and_saveexec_b64 {s(sEX,2)}, vcc")
    b(f"global_store_dwordx2 v{t+4}, {v(t+2,2)}, s[34:35]")
    b(f"s_mov_b64 exec, {s(sEX,2)}")
    return b

def k1_nonce():
    b = B()
    t = vT2 + 20
    b(f"v_add_u32 v{t}, 1, v{t}")
    b(f"v_or_b32 v{t+1}, 1, v{t+1}")
    b(f"s_or_b32 s{sT0}, s2, s{sWave}")
    b(f"s_cmp_lg_u32 s{sT0}, 0")
    b("s_cbranch_scc1 L_k1_{P}_nononce")
    b(f"v_mov_b32 v{vTmp}, {NONCE_OFF}")
    b(f"v_mov_b32 v{vTmp+1}, 0")
    b(f"global_store_dwordx2 v{vTmp}, {v(t,2)}, s[34:35] sc0 sc1", 'nocount')
    b(f"global_store_dwordx2 v{vTmp+1}, {v(t,2)}, s[32:33] sc0 sc1", 'nocount')
    b("L_k1_{P}_nononce:")
    return b

def k1_p1(side):
    b = B()
    for i in range(8):
        b.wait('vm', f"x{i}", f"B{i}")
        b("s_barrier")
        slot = i % 6
        base, off = (vPX, slot * 16384) if slot < 4 else (vPXH, (slot - 4) * 16384)
        for k in range(4):
            b(f"ds_read_b128 {a(16*i+4*k,4)}, v{base+k} offset:{off}", f"xr{i}")
        for k in range(4):
            for m in range(2):
                b(f"ds_read_b128 {v(vS+8*k+4*m,4)}, v{vP+k} offset:{RB + i*8192 + m*4096}")
        b.wait('lg', f"xr{i}")
        if i < 2:
            dma_x(b, i + 6, slot)
        elif not side:
            nxt = {2: (0, 0), 3: (1, 0), 4: (2, 0), 5: (3, 0), 6: (0, 1), 7: (1, 1)}[i]
            dma_w1(b, nxt[0], nxt[1], XS + slot * 16384)
        else:
            side_dma(b, i, XS + slot * 16384)
        for k in range(4):
            for m, acc in ((0, aRE), (1, aIM)):
                c = v(acc, 16) if (i, k) != (0, 0) else "0"
                b(f"v_mfma_f32_32x32x16_bf16 {v(acc,16)}, {a(16*i+4*k,4)}, {v(vS+8*k+4*m,4)}, {c}")
        if i == 0:
            b.ext(k1_params())
        if i == 1:
            b.ext(k1_gjob())
        if i == 2:
            b.ext(k1_nonce())
        if i == 5:
            b(f"v_mov_b32 v{vTmp}, 0")
            b(f"global_load_dwordx2 {v(vNon,2)}, v{vTmp}, s[32:33] sc1")
    return b

def side_dma(b, i, ldsbase):
    if i <= 5:
        j = i - 2
        n = 4 if j < 3 else 2
        b(f"s_add_u32 s{sT0}, s{sWoff}, {j*32*1024}")
        for k in range(n):
            dma(b, vW + k, sW1, f"s{sT0}", f"s_add_u32 m0, s{sLdsW}, {ldsbase + k*1024}", f"sw{j}")
    else:
        dt = i - 6
        b(f"s_add_u32 s{sT0}, s{sWoff+1}, {dt*32*1024}")
        for k in range(4):
            dma(b, vC + k, sC, f"s{sT0}", f"s_add_u32 m0, s{sLdsW}, {ldsbase + k*1024}", f"sc{dt}")

def k1_side_setup():
    b = B()
    b(f"s_lshl_b32 s{sU}, s{sR}, 1")
    b(f"s_add_u32 s{sU}, s{sU}, s{sS}")
    b(f"s_sub_u32 s{sU}, s{sU}, 14")
    b(f"s_and_b32 s{sT0}, s{sU}, 7")
    b(f"s_lshr_b32 s{sT1}, s{sU}, 3")
    b(f"s_mul_i32 s{sT2}, s{sT1}, 448")
    b(f"s_mul_i32 s{sT3}, s{sWave}, 112")
    b(f"s_add_u32 s{sT2}, s{sT2}, s{sT3}")
    b(f"s_lshl_b32 s{sT2}, s{sT2}, 10")
    b(f"s_lshl_b32 s{sT3}, s{sT0}, 7")
    b(f"s_add_u32 s{sWoff}, s{sT2}, s{sT3}")
    b(f"s_lshl_b32 s{sT2}, s{sT0}, 16")
    b(f"s_lshl_b32 s{sT3}, s{sT1}, 8")
    b(f"s_add_u32 s{sT2}, s{sT2}, s{sT3}")
    b(f"s_lshr_b32 s{sT3}, s{sWave}, 1")
    b(f"s_lshl_b32 s{sT3}, s{sT3}, 7")
    b(f"s_add_u32 s{sWoff+1}, s{sT2}, s{sT3}")
    b(f"s_mul_i32 s{sT2}, s{sT0}, 352")
    b(f"s_mul_i32 s{sT3}, s{sT1}, 28")
    b(f"s_add_u32 s{sT3}, s{sT3}, s{sT2}")
    b(f"s_mul_i32 s{sWoff+2}, s{sWave}, 7")
    b(f"s_add_u32 s{sT3}, s{sT3}, s{sWoff+2}")
    b(f"s_add_u32 s{sT3}, s{sT3}, 64")
    b(f"s_lshl_b32 s{sT3}, s{sT3}, 10")
    b(f"s_add_u32 s{sWoff+2}, s{sT3}, {W2F_OFF}")
    b(f"s_lshl_b32 s{sT3}, s{sT1}, 4")
    b(f"s_lshr_b32 s{sT1}, s{sWave}, 1")
    b(f"s_lshl_b32 s{sT1}, s{sT1}, 3")
    b(f"s_add_u32 s{sT3}, s{sT3}, s{sT1}")
    b(f"s_and_b32 s{sT1}, s{sWave}, 1")
    b(f"s_lshl_b32 s{sT1}, s{sT1}, 1")
    b(f"s_add_u32 s{sT3}, s{sT3}, s{sT1}")
    b(f"s_add_u32 s{sT3}, s{sT3}, s{sT2}")
    b(f"s_lshl_b32 s{sT3}, s{sT3}, 10")
    b(f"s_add_u32 s{sWoff+3}, s{sT3}, {W2F_OFF}")
    tr_pattern(b, vTR, 4, vTmp)
    b(f"s_add_u32 s{sT0}, s{sLdsW}, {XS}")
    b(f"v_add_u32 v{vT}, s{sT0}, v{vTR}")
    b(f"v_add_u32 v{vT+1}, s{sT0}, v{vTR+1}")
    b(f"v_add_u32 v{vTH}, 0x10000, v{vT}")
    b(f"v_add_u32 v{vTH+1}, 0x10000, v{vT+1}")
    return b

def k1_side_body():
    b = B()
    vL16b = vTmp
    b(f"v_lshlrev_b32 v{vL16b}, 4, v{vLane}")
    n = 0
    for t in range(7):
        j, tt = divmod(t, 2)
        slot = 2 + j
        if tt == 0: b.wait('vm', f"sw{j}")
        base, off = (vT, slot * 16384) if slot < 4 else (vTH, (slot - 4) * 16384)
        for dt in range(2):
            r = aF + (n % 8) * 4; n += 1
            for rd in range(2):
                b(f"ds_read_b64_tr_b16 {v(r+2*rd,2)}, v{base+dt} offset:{off + (16*tt + 8*rd)*128}")
            b(f"s_add_u32 s{sT0}, s{sWoff+2}, {(dt*176 + t)*1024}")
            b(f"buffer_store_dwordx4 {v(r,4)}, v{vL16b}, {s(sHF,4)}, s{sT0} offen {STF}")
    for dt in range(2):
        b.wait('vm', f"sc{dt}")
        slot = dt
        for k in range(4):
            r = aF + (n % 8) * 4; n += 1
            b(f"ds_read_b128 {v(r,4)}, v{vPX+k} offset:{slot*16384}")
            ksn = 4 * (k >> 1) + (k & 1)
            b(f"s_add_u32 s{sT0}, s{sWoff+3}, {(dt*176 + ksn)*1024}")
            b(f"buffer_store_dwordx4 {v(r,4)}, v{vL16b}, {s(sHF,4)}, s{sT0} offen {STF}")
    return b

def k1_scan1():
    b = B()
    for r in range(16):
        p = r & ~1; o = r & 1
        b(f"v_pk_mul_f32 {v(vU+2*r,2)}, {v(vC2,2)}, {v(aRE+p,2)} op_sel:[0,{o}] op_sel_hi:[1,{o}]")
    for r in range(16):
        p = r & ~1; o = r & 1
        b(f"v_pk_fma_f32 {v(vU+2*r,2)}, {v(vC2,2)}, {v(aIM+p,2)}, {v(vU+2*r,2)} op_sel:[1,{o},0] op_sel_hi:[0,{o},1] neg_lo:[1,0,0]")
    tmp = vTmp
    cfma(b, vW_, vL, vU, vU + 2, tmp)
    cur = vW_
    for r in range(2, 16):
        nxt = vQ if cur == vW_ else vW_
        cfma(b, nxt, vL, cur, vU + 2*r, tmp)
        cur = nxt
    assert cur == vW_, cur
    b(f"v_mov_b32 v{vPre}, v{cur}\nv_mov_b32 v{vPre+1}, v{cur+1}")
    b(f"v_mov_b32 v{vQ}, v{cur}\nv_mov_b32 v{vQ+1}, v{cur+1}")
    b(f"v_permlane32_swap_b32 v{vPre}, v{vQ}")
    b(f"v_permlane32_swap_b32 v{vPre+1}, v{vQ+1}")
    cfma(b, vW_, vL16, vPre, vQ, tmp)
    b(f"v_pk_mul_f32 {v(vPre,2)}, {v(vPre,2)}, {v(vHfm,2)} op_sel:[0,0] op_sel_hi:[1,0]")
    t = vT2
    b(f"v_and_b32 v{t}, 31, v{vLane}")
    b(f"v_lshlrev_b32 v{t}, 3, v{t}")
    b(f"s_lshl_b32 s{sT0}, s{sWave}, 8")
    b(f"v_add_u32 v{t+1}, s{sT0}, v{t}")
    b(f"ds_write_b64 v{t+1}, {v(vW_,2)} offset:{SC}", "Wx")
    b.wait('lg', "Wx")
    b("s_barrier")
    for w in range(4):
        b(f"ds_read_b64 {v(t+2+2*w,2)}, v{t} offset:{SC + 256*w}")
    W0, W1, W2, W3 = t+2, t+4, t+6, t+8
    Q2, Q3, E = t+10, t+12, t+16
    cfma(b, Q2, vL32, W0, W1, tmp)
    cfma(b, Q3, vL32, Q2, W2, tmp)
    cfma(b, E, vL32, Q3, W3, tmp)
    for h in range(2):
        b(f"v_cndmask_b32 v{vQ+h}, 0, v{W0+h}, {s(sM1,2)}")
        b(f"v_cndmask_b32 v{vQ+h}, v{vQ+h}, v{Q2+h}, {s(sM2,2)}")
        b(f"v_cndmask_b32 v{vQ+h}, v{vQ+h}, v{Q3+h}, {s(sM3,2)}")
    cfma(b, vK, vF1, vQ, vPre, tmp)
    b(f"v_cmp_ne_u32 vcc, 0, v{vNon+1}")
    b("s_cbranch_vccnz L_k1_{P}_nonce_ok")
    b(f"s_mov_b32 s{sSpin}, 0")
    b("L_k1_{P}_nonce_retry:")
    b(f"v_mov_b32 v{vTmp}, 0")
    b(f"global_load_dwordx2 {v(vNon,2)}, v{vTmp}, s[32:33] sc1", 'nocount')
    b("s_waitcnt vmcnt(0)")
    b(f"s_add_u32 s{sSpin}, s{sSpin}, 1")
    b(f"s_cmp_gt_u32 s{sSpin}, 40000")
    b("s_cbranch_scc1 L_k1_{P}_nonce_ok")
    b(f"v_cmp_ne_u32 vcc, 0, v{vNon+1}")
    b("s_cbranch_vccz L_k1_{P}_nonce_retry")
    b("L_k1_{P}_nonce_ok:")
    b(f"v_mov_b32 v{E+2}, v{vNon}\nv_mov_b32 v{E+3}, v{vNon+1}")
    b(f"v_lshrrev_b32 v{tmp}, 3, v{vLane}")
    b(f"v_cmp_eq_u32 vcc, s{sWave}, v{tmp}")
    b(f"s_lshl_b32 s{sT0}, s{sR}, 4")
    b(f"s_add_u32 s{sT0}, s{sT0}, s{sS}")
    b(f"s_lshl_b32 s{sT0}, s{sT0}, 9")
    b(f"s_add_u32 s{sT0}, s{sT0}, {E_OFF}")
    b(f"v_lshlrev_b32 v{tmp+1}, 1, v{t}")
    b(f"v_add_u32 v{tmp+1}, s{sT0}, v{tmp+1}")
    b(f"s_and_saveexec_b64 {s(sEX,2)}, vcc")
    b(f"global_store_dwordx4 v{tmp+1}, {v(E,4)}, s[34:35] sc0 sc1")
    b(f"s_mov_b64 exec, {s(sEX,2)}")
    return b

GR = [aRE + 4*k for k in range(8)] + [vS + 4*k for k in range(7)]

def k1_lookback_loads(b, tok=None):
    t = vT2 + 20
    b(f"v_and_b32 v{t}, 31, v{vLane}")
    b(f"v_lshlrev_b32 v{t}, 4, v{t}")
    b(f"s_lshl_b32 s{sT0}, s{sS}, 9")
    b(f"s_add_u32 s{sT0}, s{sT0}, {E_OFF}")
    b(f"v_add_u32 v{t}, s{sT0}, v{t}")
    for k in range(15):
        if k: b(f"v_add_u32 v{t+1}, {k*8192}, v{t}")
        b(f"global_load_dwordx4 {v(GR[k],4)}, v{t+1 if k else t}, s[34:35] sc1", tok)

def k1_lookback_finish():
    b = B()
    tmp = vTmp
    H = vT2 + 24
    b(f"s_mov_b32 s{sSpin}, 0")
    b.wait('vm', 'lb')
    b("L_k1_{P}_lb_check:")
    b(f"s_mov_b64 {s(sEX,2)}, -1")
    for k in range(15):
        b(f"s_cmp_le_u32 s{sR}, {k}")
        b("s_cbranch_scc1 L_k1_{P}_lb_checked")
        b(f"v_cmp_eq_u32 vcc, v{GR[k]+2}, v{vNon}")
        b(f"s_and_b64 {s(sEX,2)}, {s(sEX,2)}, vcc")
        b(f"v_cmp_eq_u32 vcc, v{GR[k]+3}, v{vNon+1}")
        b(f"s_and_b64 {s(sEX,2)}, {s(sEX,2)}, vcc")
    b("L_k1_{P}_lb_checked:")
    b(f"s_cmp_eq_u64 {s(sEX,2)}, -1")
    b("s_cbranch_scc1 L_k1_{P}_lb_ok")
    b(f"s_add_u32 s{sSpin}, s{sSpin}, 1")
    b(f"s_cmp_gt_u32 s{sSpin}, 40000")
    b("s_cbranch_scc1 L_k1_{P}_lb_ok")
    k1_lookback_loads(b, 'nocount')
    b("s_waitcnt vmcnt(0)")
    b("s_branch L_k1_{P}_lb_check")
    b("L_k1_{P}_lb_ok:")
    b(f"v_mov_b32 v{H}, 0\nv_mov_b32 v{H+1}, 0")
    for k in range(15):
        b(f"s_cmp_le_u32 s{sR}, {k}")
        b("s_cbranch_scc1 L_k1_{P}_lb_h")
        b(f"v_pk_fma_f32 {v(tmp,2)}, {v(vL128,2)}, {v(H,2)}, {v(GR[k],2)} op_sel:[0,0,0] op_sel_hi:[0,1,1]")
        b(f"v_pk_fma_f32 {v(H,2)}, {v(vL128,2)}, {v(H,2)}, {v(tmp,2)} op_sel:[1,1,0] op_sel_hi:[1,0,1] neg_lo:[1,0,0]")
    b("L_k1_{P}_lb_h:")
    cfma(b, vQ, vG, H, vK, tmp)
    prev = vQ
    for r in range(16):
        cfma(b, vU + 2*r, vL, prev, vU + 2*r, tmp)
        prev = vU + 2*r
    for k in range(8):
        b(f"v_cvt_pk_bf16_f32 v{aRE+k}, v{vU+4*k}, v{vU+4*k+2}")
        b(f"v_cvt_pk_bf16_f32 v{aRE+8+k}, -v{vU+4*k+1}, -v{vU+4*k+3}")
    t = vT2
    b(f"v_and_b32 v{t}, 31, v{vLane}")
    b(f"v_mul_u32_u24 v{t}, 80, v{t}")
    b(f"v_lshrrev_b32 v{t+1}, 5, v{vLane}")
    b(f"v_lshl_add_u32 v{t}, v{t+1}, 5, v{t}")
    b(f"s_mul_i32 s{sT0}, s{sWave}, 5120")
    b(f"v_add_u32 v{t}, s{sT0}, v{t}")
    for m in range(2):
        for h in range(2):
            b(f"ds_write_b128 v{t}, {v(aRE+8*m+4*h,4)} offset:{IMG + m*2560 + h*16}", "img")
    L = vLane
    b(f"v_lshrrev_b32 v{t+1}, 5, v{L}")
    b(f"v_lshlrev_b32 v{t+1}, 3, v{t+1}")
    b(f"v_bfe_u32 v{t+2}, v{L}, 2, 2")
    b(f"v_add_u32 v{t+1}, v{t+1}, v{t+2}")
    b(f"v_mul_u32_u24 v{t+1}, 80, v{t+1}")
    b(f"v_and_b32 v{t+2}, 1, v{L}")
    b(f"v_lshlrev_b32 v{t+2}, 5, v{t+2}")
    b(f"v_bfe_u32 v{t+3}, v{L}, 4, 1")
    b(f"v_lshlrev_b32 v{t+3}, 4, v{t+3}")
    b(f"v_add3_u32 v{t+1}, v{t+1}, v{t+2}, v{t+3}")
    b(f"v_bfe_u32 v{t+2}, v{L}, 1, 1")
    b(f"v_lshlrev_b32 v{t+2}, 3, v{t+2}")
    b(f"v_add3_u32 v{t+1}, v{t+1}, v{t+2}, s{sT0}")
    b(f"v_lshlrev_b32 v{t+4}, 4, v{L}")
    b.wait('lg', "img")
    hf_base(b, sT1)
    b(f"s_lshl_b32 s{sT2}, s{sS}, 12")
    b(f"s_add_u32 s{sT1}, s{sT1}, s{sT2}")
    for m in range(2):
        for kk in range(2):
            r = aIM + (2*m + kk) * 4
            for rd in range(2):
                b(f"ds_read_b64_tr_b16 {v(r+2*rd,2)}, v{t+1} offset:{IMG + (m*32 + 16*kk + 4*rd)*80}")
            b(f"s_add_u32 s{sT2}, s{sT1}, {(2*m+kk)*1024}")
            b(f"buffer_store_dwordx4 {v(r,4)}, v{t+4}, {s(sHF,4)}, s{sT2} offen {STF}")
    return b

def hf_base(b, dst):
    b(f"s_lshl_b32 s{dst}, s{sR}, 2")
    b(f"s_add_u32 s{dst}, s{dst}, s{sWave}")
    b(f"s_mul_i32 s{dst}, s{dst}, {176*1024}")

def k1_ffn(hh):
    b = B()
    DEPTH = 3
    def lds_loc(n):
        i, k = divmod(n, 4)
        u = i // 2
        if hh == 0: reg = ('xs', 2 + u)
        else: reg = ('xs', u) if u < 2 else ('rb', u - 2)
        loc = (64 * (i & 1) + 16 * k) * 128
        if reg[0] == 'xs':
            if reg[1] < 4: return vT, reg[1] * 16384 + loc
            return vTH, (reg[1] - 4) * 16384 + loc
        return vTR, RB + reg[1] * 16384 + loc
    def reads(n):
        if n == 0:
            b.wait('vm', *( ["wa0", "wa1"] if hh == 0 else ["wb0", "wb1", "wb2", "wb3"]))
            b("s_barrier")
        if n == 16 and hh == 0:
            b.wait('vm', "wa2", "wa3")
            b("s_barrier")
        base, off = lds_loc(n)
        r = vS + (n % 4) * 8
        for ft in range(2):
            for rd in range(2):
                b(f"ds_read_b64_tr_b16 {v(r+4*ft+2*rd,2)}, v{base+ft} offset:{off + rd*512}")
    for n in range(DEPTH): reads(n)
    for n in range(32):
        i, k = divmod(n, 4)
        r = vS + (n % 4) * 8
        for ft in range(2):
            acc = aF + (2*hh + ft) * 16
            c = v(acc, 16) if n else "0"
            b(f"v_mfma_f32_32x32x16_bf16 {v(acc,16)}, {v(r+4*ft,4)}, {a(16*i+4*k,4)}, {c}")
        if n + DEPTH < 32: reads(n + DEPTH)
    return b

def k1_silu(tiles):
    b = B()
    t = vT2
    b(f"v_lshlrev_b32 v{t+30}, 4, v{vLane}")
    hf_base(b, sT1)
    b(f"s_lshl_b32 s{sT2}, s{sS}, 13")
    b(f"s_add_u32 s{sT1}, s{sT1}, s{sT2}")
    b(f"s_add_u32 s{sT1}, s{sT1}, {64*1024}")
    b(f"s_mov_b32 s{sT3}, {LOG2E ^ 0x80000000:#x}")
    for ft in tiles:
        acc = aF + ft * 16
        for kk in range(2):
            base = acc + 8 * kk
            e = t + (kk * 8)
            for q in range(8): b(f"v_mul_f32 v{e+q}, s{sT3}, v{base+q}")
            for q in range(8): b(f"v_exp_f32 v{e+q}, v{e+q}")
            for q in range(8): b(f"v_add_f32 v{e+q}, 1.0, v{e+q}")
            for q in range(8): b(f"v_rcp_f32 v{e+q}, v{e+q}")
            for q in range(8): b(f"v_mul_f32 v{e+q}, v{base+q}, v{e+q}")
            d = t + 16 + kk * 4
            for q in range(4): b(f"v_cvt_pk_bf16_f32 v{d+q}, v{e+2*q}, v{e+2*q+1}")
            b(f"s_add_u32 s{sT2}, s{sT1}, {(2*ft+kk)*1024}")
            b(f"buffer_store_dwordx4 {v(d,4)}, v{t+30}, {s(sHF,4)}, s{sT2} offen {STF}")
    return b

def subst(ops, P):
    for o in ops:
        if '{P}' in o.text:
            o.text = o.text.replace('{P}', P)
    return ops

def gen_k1():
    b = B()
    b.ext(k1_prologue())
    b.ext(k1_setup2())
    b(f"s_cmp_ge_u32 s{sS}, 14")
    b("s_cbranch_scc1 L_k1_side")
    pro = b.ops
    m = B()
    stamp(m, 1)
    m.ext(k1_p1(False))
    stamp(m, 2)
    m("s_barrier")
    dma_w1(m, 2, 1, RB)
    dma_w1(m, 3, 1, RB + 16384)
    m.ext(k1_scan1())
    stamp(m, 3)
    m.ext(k1_ffn(0))
    stamp(m, 4)
    m.ext(k1_silu([0, 1]))
    stamp(m, 5)
    m.ext(k1_ffn(1))
    stamp(m, 6)
    k1_lookback_loads(m, 'lb')
    m.ext(k1_silu([2, 3]))
    stamp(m, 7)
    m.ext(k1_lookback_finish())
    stamp(m, 8)
    m.ext(k1_stamp_out())
    m("s_endpgm")
    sd = B()
    sd("L_k1_side:")
    sd.ext(k1_side_setup())
    sd.ext(k1_p1(True))
    sd("s_barrier")
    sd.ext(k1_scan1())
    sd.ext(k1_side_body())
    k1_lookback_loads(sd, 'lb')
    sd.ext(k1_lookback_finish())
    sd.ext(k1_stamp_out())
    sd("L_k1_end:")
    sd("s_endpgm")
    main = finalize(pro + subst(m.ops, 'm'))
    import copy
    side_all = insert_waits(copy.deepcopy(pro) + subst(sd.ops, 's'))
    idx = [i for i, o in enumerate(side_all) if o.text == 'L_k1_side:'][0]
    side = insert_hazard_nops(side_all[idx:])
    return main + side

def k1_stamp_out():
    b = B()
    if not STAMP: return b
    b("s_memrealtime s[100:101]")
    b("s_waitcnt lgkmcnt(0)")
    b(f"v_writelane_b32 v{STV}, s100, 63")
    b(f"s_lshl_b32 s{sT0}, s2, 2")
    b(f"s_add_u32 s{sT0}, s{sT0}, s{sWave}")
    b(f"s_lshl_b32 s{sT0}, s{sT0}, 8")
    b(f"s_add_u32 s{sT0}, s{sT0}, {0x1000000}")
    b(f"v_lshlrev_b32 v254, 2, v{vLane}")
    b(f"v_add_u32 v254, s{sT0}, v254")
    b(f"global_store_dword v254, v{STV}, s[34:35]")
    return b

def gen_k2():
    global STV
    STV = 9
    b = B()
    D = int(opts.get('k2d', 8))
    sWv, sM, sN = 40, 41, 42
    sA, sBh = 44, 48
    t0, t1, t2 = 52, 53, 54
    vA0, vA1, vB0, vB1 = 2, 3, 4, 5
    vBuf = 16
    accS, accF = 0, 64
    if STAMP:
        b(f"v_mov_b32 v{STV}, 0")
        b("s_memrealtime s[100:101]")
        b("s_waitcnt lgkmcnt(0)")
        b(f"v_writelane_b32 v{STV}, s100, 62")
        stamp(b, 0)
    b("s_load_dwordx2 s[4:5], s[0:1], 0")
    b("s_load_dwordx2 s[6:7], s[0:1], 64")
    b("s_load_dwordx2 s[8:9], s[0:1], 104")
    b("s_load_dwordx2 s[10:11], s[0:1], 120")
    b("s_cmp_ge_u32 s2, 256")
    b("s_cbranch_scc1 L_k2_end")
    b("v_lshrrev_b32 v6, 6, v0")
    b("v_and_b32 v1, 63, v0")
    b(f"v_readfirstlane_b32 s{sWv}, v6")
    b(f"s_and_b32 s{t0}, s2, 7")
    b(f"s_lshr_b32 s{t1}, s2, 3")
    b(f"s_and_b32 s{sM}, s{t1}, 3")
    b(f"s_lshl_b32 s{t0}, s{t0}, 2")
    b(f"s_add_u32 s{sM}, s{sM}, s{t0}")
    b(f"s_lshr_b32 s{sN}, s{t1}, 2")
    b(f"s_mul_i32 s{t0}, s{sM}, {352*1024}")
    b(f"s_mul_i32 s{t1}, s{sN}, {352*1024}")
    b(f"s_add_u32 s{t1}, s{t1}, {W2F_OFF}")
    b("v_lshlrev_b32 v6, 4, v1")
    b(f"v_add_u32 v{vB0}, s{t0}, v6")
    b(f"v_add_u32 v{vB1}, {176*1024}, v{vB0}")
    b(f"v_add_u32 v{vA0}, s{t1}, v6")
    b(f"v_add_u32 v{vA1}, {176*1024}, v{vA0}")
    b(f"s_lshl_b32 s56, s{sWv}, 14")
    b(f"s_mul_i32 s57, s{sWv}, {28*1024}")
    b(f"s_add_u32 s57, s57, {64*1024}")
    b("s_waitcnt lgkmcnt(0)")
    srd(b, sA, 10, WS_USED)
    steps = [('S', i) for i in range(16)] + [('F', i) for i in range(28)]
    NS = len(steps)
    def regs(st, k):
        base = vBuf + (st % D) * 16 + k * 4
        return v(base, 4)
    def loads(st):
        kind, i = steps[st]
        sb = 56 if kind == 'S' else 57
        b(f"s_add_u32 s{t2}, s{sb}, {i*1024}")
        b(f"buffer_load_dwordx4 {regs(st,0)}, v{vA0}, {s(sA,4)}, s{t2} offen")
        b(f"buffer_load_dwordx4 {regs(st,1)}, v{vA1}, {s(sA,4)}, s{t2} offen")
        b(f"buffer_load_dwordx4 {regs(st,2)}, v{vB0}, {s(sA,4)}, s{t2} offen")
        b(f"buffer_load_dwordx4 {regs(st,3)}, v{vB1}, {s(sA,4)}, s{t2} offen")
    vTau, vGp = 8, 10
    b("v_bfe_u32 v6, v1, 2, 1")
    b("v_lshlrev_b32 v6, 4, v6")
    b("v_and_b32 v7, 3, v1")
    b("v_add_u32 v6, v6, v7")
    b("v_bfe_u32 v7, v1, 3, 2")
    b(f"v_lshl_add_u32 v{vTau}, v7, 2, v6")
    b(f"s_lshl_b32 s{t0}, s{sM}, 6")
    b(f"v_add_u32 v6, s{t0}, v{vTau}")
    b("v_lshlrev_b32 v6, 3, v6")
    b(f"v_add_u32 v6, {G_OFF}, v6")
    b(f"global_load_dwordx2 v[10:11], v6, s[10:11]")
    b(f"global_load_dwordx2 v[12:13], v6, s[10:11] offset:256")
    for st in range(D): loads(st)
    for st in range(NS):
        kind, i = steps[st]
        acc = accS if kind == 'S' else accF
        for aa in range(2):
            for bb in range(2):
                dreg = a(acc + (aa*2 + bb) * 16, 16)
                c = dreg if i else "0"
                b(f"v_mfma_f32_32x32x16_bf16 {dreg}, {regs(st,aa)}, {regs(st,2+bb)}, {c}")
        if st + D < NS: loads(st + D)
    stamp(b, 1)
    PITCH = 272
    vx = 20
    b("v_lshrrev_b32 v6, 4, v0")
    b("v_and_b32 v7, 15, v0")
    b(f"s_lshl_b32 s{t0}, s{sM}, 6")
    b(f"v_add_u32 v14, s{t0}, v6")
    b(f"s_lshl_b32 s{t1}, s{sN}, 7")
    b("v_lshlrev_b32 v15, 10, v14")
    b("v_lshl_add_u32 v15, v7, 3, v15")
    b(f"v_add_u32 v15, s{t1}, v15")
    for p in range(4):
        if p: b(f"v_add_u32 v15, {16*1024}, v15")
        b(f"global_load_dwordx2 {v(vx+2*p,2)}, v15, s[4:5]")
    b("v_lshlrev_b32 v15, 3, v7")
    b(f"v_add_u32 v15, s{t1}, v15")
    b(f"global_load_dwordx2 v[28:29], v15, s[6:7]")
    b("v_lshlrev_b32 v15, 3, v14")
    b(f"v_add_u32 v15, {G_OFF}, v15")
    for p in range(4):
        b(f"global_load_dword v{30+p}, v15, s[10:11] offset:{p*128}")
    b(f"s_mul_i32 s{t0}, s{sWv}, {64*PITCH}")
    b(f"v_mul_u32_u24 v16, {PITCH}, v{vTau}")
    b("v_lshrrev_b32 v17, 5, v1")
    b("v_lshl_add_u32 v16, v17, 4, v16")
    b(f"v_add_u32 v16, s{t0}, v16")
    tmp = 40
    n = 0
    for aa in range(2):
        for bb in range(2):
            g = 10 + 2*bb
            for q in range(4):
                r = tmp + (n % 4) * 8; n += 1
                for e in range(4):
                    b(f"v_accvgpr_read_b32 v{r+e}, a{accS + (aa*2+bb)*16 + 4*q + e}")
                    b(f"v_accvgpr_read_b32 v{r+4+e}, a{accF + (aa*2+bb)*16 + 4*q + e}")
                for e in range(4):
                    b(f"v_mul_f32 v{r+e}, v{g}, v{r+e}")
                for e in range(4):
                    b(f"v_fma_f32 v{r+e}, v{g+1}, v{r+4+e}, v{r+e}")
                b(f"ds_write_b128 v16, {v(r,4)} offset:{bb*32*PITCH + (32*aa + 8*q)*4}", "red")
    b.wait('lg', "red")
    b("s_barrier")
    b(f"v_mul_u32_u24 v16, {PITCH}, v6")
    b("v_lshl_add_u32 v16, v7, 4, v16")
    b(f"s_lshl_b32 s{t1}, s{sN}, 8")
    b("v_lshlrev_b32 v18, 11, v14")
    b("v_lshl_add_u32 v18, v7, 4, v18")
    b(f"v_add_u32 v18, s{t1}, v18")
    b("v_lshlrev_b32 v34, 16, v28\nv_and_b32 v35, 0xffff0000, v28\nv_lshlrev_b32 v36, 16, v29\nv_and_b32 v37, 0xffff0000, v29")
    for p in range(4):
        r = 72 + p * 16
        for w in range(4):
            off = w*64*PITCH + p*16*PITCH
            base = 16
            if off > 65535 - 16:
                pass
            b(f"ds_read_b128 {v(r+4*w,4)}, v{base} offset:{off}")
    for p in range(4):
        r = 72 + p * 16
        for e in range(4):
            b(f"v_add_f32 v{r+e}, v{r+e}, v{r+4+e}")
            b(f"v_add_f32 v{r+8+e}, v{r+8+e}, v{r+12+e}")
        xs = vx + 2*p
        b(f"v_lshlrev_b32 v{tmp}, 16, v{xs}\nv_and_b32 v{tmp+1}, 0xffff0000, v{xs}\nv_lshlrev_b32 v{tmp+2}, 16, v{xs+1}\nv_and_b32 v{tmp+3}, 0xffff0000, v{xs+1}")
        for e in range(4):
            b(f"v_mul_f32 v{tmp+e}, v{tmp+e}, v{34+e}")
        b(f"v_cvt_pk_bf16_f32 v{tmp+4}, v{tmp}, v{tmp+1}")
        b(f"v_cvt_pk_bf16_f32 v{tmp+5}, v{tmp+2}, v{tmp+3}")
        b(f"v_lshlrev_b32 v{tmp}, 16, v{tmp+4}\nv_and_b32 v{tmp+1}, 0xffff0000, v{tmp+4}\nv_lshlrev_b32 v{tmp+2}, 16, v{tmp+5}\nv_and_b32 v{tmp+3}, 0xffff0000, v{tmp+5}")
        for e in range(4):
            b(f"v_add_f32 v{r+e}, v{r+e}, v{r+8+e}")
        for e in range(4):
            b(f"v_fma_f32 v{r+e}, v{30+p}, v{tmp+e}, v{r+e}")
        if p: b(f"v_add_u32 v18, {16*2048}, v18")
        b(f"global_store_dwordx4 v18, {v(r,4)}, s[8:9]")
    if STAMP:
        stamp(b, 2)
        b("s_memrealtime s[100:101]")
        b("s_waitcnt lgkmcnt(0)")
        b(f"v_writelane_b32 v{STV}, s100, 63")
        b(f"s_lshl_b32 s{t0}, s2, 2")
        b(f"s_add_u32 s{t0}, s{t0}, s{sWv}")
        b(f"s_lshl_b32 s{t0}, s{t0}, 8")
        b(f"s_add_u32 s{t0}, s{t0}, {0x1100000}")
        b(f"v_lshlrev_b32 v254, 2, v1")
        b(f"v_add_u32 v254, s{t0}, v254")
        b(f"global_store_dword v254, v{STV}, s[10:11]")
    b("L_k2_end:")
    b("s_endpgm")
    return finalize(b.ops), vBuf + D * 16

def header():
    ref = open('cdna_kernels/%s.s.ref' % NAME).read().split('\n')
    hdr = []
    for line in ref:
        if not line.startswith(';'): break
        if '@launch' in line or 'Override launch' in line or 'grid=ceil' in line: continue
        hdr.append(line)
    hdr.append(f"; @launch kernel={K1} grid=(256,1,1) block=(256,1,1) lds=163840")
    hdr.append(f"; @launch kernel={K2} grid=(256,1,1) block=(256,1,1) lds=69632")
    return '\n'.join(hdr)

def kd(name, nv, acc_off, nsg):
    return f""".amdhsa_kernel {name}
  .amdhsa_next_free_vgpr {nv}
  .amdhsa_next_free_sgpr {nsg}
  .amdhsa_accum_offset {acc_off}
  .amdhsa_group_segment_fixed_size 0
  .amdhsa_kernarg_size 128
  .amdhsa_user_sgpr_count 2
  .amdhsa_user_sgpr_kernarg_segment_ptr 1
  .amdhsa_system_sgpr_workgroup_id_x 1
  .amdhsa_float_denorm_mode_32 3
.end_amdhsa_kernel"""

def main():
    k1 = gen_k1()
    k2, k2v = gen_k2()
    out = [header(), '.amdgcn_target "amdgcn-amd-amdhsa--gfx950"', '.text']
    out += [f".globl {K1}", ".p2align 8", f".type {K1},@function", f"{K1}:", render(k1)]
    out += [f".globl {K2}", ".p2align 8", f".type {K2},@function", f"{K2}:", render(k2)]
    out += ['.section .rodata,"a"', '.p2align 6', kd(K1, 256 + 128, 256, 102), '.p2align 6', kd(K2, 256 + 128, 256, 102)]
    print('\n'.join(out))

main()
```

```python
import re

def regs_of(tok):
    t = tok.strip()
    neg = False
    while t.startswith('-') and len(t) > 1 and t[1] in 'vas|':
        t = t[1:]
    t = t.strip('|')
    m = re.fullmatch(r'abs\((.*)\)', t)
    if m: t = m.group(1)
    m = re.fullmatch(r'([vas])\[(\d+):(\d+)\]', t)
    if m:
        return [(m.group(1), i) for i in range(int(m.group(2)), int(m.group(3)) + 1)]
    m = re.fullmatch(r'([vas])(\d+)', t)
    if m:
        return [(m.group(1), int(m.group(2)))]
    if t == 'vcc': return [('s', 'vcc')]
    if t == 'exec': return [('s', 'exec')]
    if t == 'm0': return [('s', 'm0')]
    return []

TRANS = ('v_exp_f32', 'v_log_f32', 'v_rcp_f32', 'v_rsq_f32', 'v_sqrt_f32', 'v_sin_f32', 'v_cos_f32')

class Op:
    __slots__ = ('text', 'mn', 'dst', 'src', 'kind', 'tok', 'waits', 'note', 'passes', 'srcC')
    def __init__(self, text, tok=None, note=None):
        self.text = text
        self.tok = tok
        self.waits = None
        self.note = note
        self.passes = 0
        self.srcC = []
        self.parse()
    def parse(self):
        t = self.text.split(';')[0].strip()
        if t.endswith(':') or t.startswith('.') or t == '':
            self.mn = 'label' if t.endswith(':') else 'directive'
            self.kind = 'label' if t.endswith(':') else 'other'
            self.dst = []; self.src = []
            return
        parts = t.split(None, 1)
        mn = parts[0]
        self.mn = mn
        rest = parts[1] if len(parts) > 1 else ''
        ops = []
        cur = ''; depth = 0
        for ch in rest:
            if ch == '[': depth += 1
            if ch == ']': depth -= 1
            if ch == ',' and depth == 0:
                ops.append(cur.strip()); cur = ''
            else:
                cur += ch
        if cur.strip(): ops.append(cur.strip())
        mods = ''
        if ops:
            sp = ops[-1].split(None, 1)
            ops[-1] = sp[0]
            mods = sp[1] if len(sp) > 1 else ''
        R = [regs_of(o) for o in ops]
        flat = lambda L: [x for l in L for x in l]
        dst, src = [], []
        kind = 'other'
        if mn.startswith('v_mfma'):
            kind = 'mfma'
            dst = R[0]; src = flat(R[1:]); self.srcC = R[3] if len(R) > 3 else []
            self.passes = 8 if '32x32' in mn else 4
        elif mn.startswith('v_cmp'):
            kind = 'valu'
            dst = R[0]; src = flat(R[1:])
        elif mn.startswith('v_readfirstlane') or mn.startswith('v_readlane'):
            kind = 'valu'; dst = R[0]; src = flat(R[1:])
        elif mn.startswith('v_permlane') and 'swap' in mn:
            kind = 'valu'; dst = R[0] + R[1]; src = R[0] + R[1]
        elif mn.startswith('v_'):
            kind = 'valu'
            dst = R[0]; src = flat(R[1:])
            if mn.startswith('v_fmac') or mn.startswith('v_pk_fmac') or mn.startswith('v_dot2c'):
                src = src + R[0]
            if mn.startswith('v_add_co') or mn.startswith('v_addc_co') or mn.startswith('v_sub_co'):
                dst = R[0] + R[1]; src = flat(R[2:])
            if mn.startswith('v_cndmask') and len(ops) == 3:
                src = src + [('s', 'vcc')]
            if '_dpp' in mn or 'row_' in mods or 'quad_perm' in mods:
                kind = 'valu'
                self.note = 'dpp'
                src = src + R[0]
        elif mn.startswith('ds_read') or mn.startswith('ds_bpermute') or mn.startswith('ds_swizzle'):
            kind = 'ds'; dst = R[0]; src = flat(R[1:])
        elif mn.startswith('ds_write'):
            kind = 'ds'; src = flat(R)
        elif mn.startswith('buffer_load'):
            kind = 'vmem'
            if 'lds' in mods.split():
                src = flat(R) + [('s', 'm0')]
                self.note = 'ldsdma'
            else:
                dst = R[0]; src = flat(R[1:])
        elif mn.startswith('buffer_store'):
            kind = 'vmem'; src = flat(R); self.note = 'store%d' % len(R[0])
        elif mn.startswith('buffer_atomic'):
            kind = 'vmem'; src = flat(R)
        elif mn.startswith('global_load'):
            kind = 'vmem'; dst = R[0]; src = flat(R[1:])
        elif mn.startswith('global_store'):
            kind = 'vmem'; src = flat(R); self.note = 'store%d' % len(R[1])
        elif mn.startswith('global_atomic'):
            kind = 'vmem'; src = flat(R)
        elif mn.startswith('s_load') or mn.startswith('s_memtime') or mn.startswith('s_memrealtime'):
            kind = 'smem'; dst = R[0]; src = flat(R[1:])
        elif mn in ('s_waitcnt', 's_nop', 's_barrier', 's_endpgm', 's_setprio', 's_sleep'):
            kind = 'ctl'
        elif mn.startswith('s_cbranch') or mn == 's_branch':
            kind = 'branch'
        elif mn.startswith('s_cmp'):
            kind = 'salu'; src = flat(R)
        elif mn.startswith('s_'):
            kind = 'salu'; dst = R[0] if R else []; src = flat(R[1:])
            if 'saveexec' in mn: dst = dst + [('s', 'exec')]
        self.kind = kind; self.dst = dst; self.src = src

class WaitTok(Op):
    def __init__(self, cls, toks):
        self.text = ''; self.mn = 'waittok'; self.kind = 'waittok'; self.dst = []; self.src = []
        self.tok = None; self.waits = (cls, list(toks)); self.note = None; self.passes = 0; self.srcC = []

class Fence(Op):
    def __init__(self, vm=True, lgkm=True):
        self.text = ''; self.mn = 'fence'; self.kind = 'fence'; self.dst = []; self.src = []
        self.tok = None; self.waits = (vm, lgkm); self.note = None; self.passes = 0; self.srcC = []

def vclass(op):
    return 'S' if ('store' in op.mn or 'atomic' in op.mn) else 'L'

def insert_waits(ops):
    out = []
    vmq = []
    lgq = []
    smem_pending = []
    def emit_wait(vm=None, lg=None):
        parts = []
        if vm is not None: parts.append(f'vmcnt({vm})')
        if lg is not None: parts.append(f'lgkmcnt({lg})')
        if parts: out.append(Op('s_waitcnt ' + ' '.join(parts)))
    def vm_wait_for(idx):
        c = vclass(vmq[idx])
        n = sum(1 for o in vmq[idx + 1:] if vclass(o) == c)
        assert n <= 63, n
        if n == 0:
            vmq.clear()
        else:
            keep = [o for i, o in enumerate(vmq) if not (i <= idx and vclass(o) == c)]
            vmq[:] = keep
        return n
    for op in ops:
        need_vm = None; need_lg = None
        if op.kind == 'waittok':
            cls, toks = op.waits
            q = vmq if cls == 'vm' else lgq
            if cls == 'vm':
                ns = []
                for c in ('L', 'S'):
                    idx = -1
                    for i, o in enumerate(vmq):
                        if o.tok in toks and vclass(o) == c: idx = i
                    if idx >= 0: ns.append(vm_wait_for(idx))
                if ns: emit_wait(vm=min(ns))
            else:
                idx = -1
                for i, o in enumerate(q):
                    if o.tok in toks: idx = i
                if idx >= 0:
                    n = len(q) - 1 - idx
                    n = min(n, 15)
                    emit_wait(lg=n); del lgq[:len(lgq) - n]
            continue
        if op.kind == 'fence':
            vm, lg = op.waits
            emit_wait(vm=0 if vm else None, lg=0 if lg else None)
            if vm: vmq.clear()
            if lg: lgq.clear(); smem_pending.clear()
            continue
        touched = set(op.src) | set(op.dst)
        if op.mn == 's_waitcnt' and op.tok == 'nocount':
            out.append(op); continue
        if op.mn == 's_waitcnt':
            m = re.search(r'vmcnt\((\d+)\)', op.text)
            if m and int(m.group(1)) == 0: vmq.clear()
            m = re.search(r'lgkmcnt\((\d+)\)', op.text)
            if m:
                n = int(m.group(1))
                if len(lgq) > n: del lgq[:len(lgq) - n]
                if n == 0: smem_pending.clear()
            out.append(op); continue
        if touched:
            if any(r in touched for r in smem_pending):
                need_lg = 0
            idx = -1
            for i, o in enumerate(vmq):
                if o.dst and any(r in touched for r in o.dst): idx = i
            if idx >= 0:
                need_vm = vm_wait_for(idx)
            idx = -1
            for i, o in enumerate(lgq):
                if o.dst and any(r in touched for r in o.dst): idx = i
            if idx >= 0:
                n = len(lgq) - 1 - idx
                n = min(n, 15)
                need_lg = n if need_lg is None else min(need_lg, n)
            if need_lg is not None:
                if need_lg == 0: lgq.clear(); smem_pending.clear()
                else: del lgq[:len(lgq) - need_lg]
            emit_wait(need_vm, need_lg)
        if op.kind == 'vmem' and op.tok == 'nocount':
            pass
        elif op.kind == 'vmem':
            vmq.append(op)
        elif op.kind == 'ds':
            if smem_pending:
                emit_wait(lg=0); lgq.clear(); smem_pending.clear()
            lgq.append(op)
        elif op.kind == 'smem':
            smem_pending.extend(op.dst)
        out.append(op)
    return out

def wait_states(op):
    if op.mn == 's_nop':
        return int(op.text.split()[1], 0) + 1
    if op.kind in ('label', 'waittok', 'fence') or op.mn == 'directive': return 0
    return 1

def insert_hazard_nops(ops):
    out = []
    LOOK = 24
    for op in ops:
        need = 0
        if op.kind in ('valu', 'mfma', 'vmem', 'ds', 'salu', 'smem'):
            dist = 0
            S = set(op.src); D = set(op.dst)
            vS = {r for r in S if r[0] in 'va'}
            for prev in reversed(out[-LOOK * 2:]):
                if dist >= LOOK: break
                req = 0
                pD = set(prev.dst); pS = set(prev.src)
                if prev.kind == 'valu':
                    pv = {r for r in pD if r[0] in 'va'}
                    ps = {r for r in pD if r[0] == 's'}
                    if op.kind == 'mfma' and pv & S: req = max(req, 2)
                    if op.kind == 'valu':
                        if prev.mn in TRANS and (pv & S) : req = max(req, 1)
                        if (op.mn.startswith('v_readfirstlane') or op.mn.startswith('v_readlane')) and pv & S: req = max(req, 1)
                        if op.mn.startswith('v_permlane') and pv & (S | D): req = max(req, 2)
                        if op.note == 'dpp' and pv & S: req = max(req, 2)
                        if ps & S: req = max(req, 2)
                    if op.kind == 'vmem' and ps & S: req = max(req, 5)
                    if op.kind == 'salu' and ps & S: req = max(req, 1)
                    if op.kind == 'smem' and ps & S: req = max(req, 5)
                    if op.kind == 'ds' and ps & S: req = max(req, 5)
                if prev.kind == 'mfma':
                    big = 12 if prev.passes == 8 else 8
                    if op.kind == 'mfma':
                        if pD & (S - set(op.srcC)): req = max(req, big)
                        if pD & set(op.srcC) and set(op.srcC) != pD: req = max(req, big - 2)
                        if pD & D and D != pD: req = max(req, big)
                    elif op.kind in ('valu', 'vmem', 'ds'):
                        if pD & (S | D): req = max(req, big)
                        if op.kind == 'valu' and set(prev.srcC) & D: req = max(req, 7 if prev.passes == 8 else 3)
                if prev.kind == 'salu':
                    if ('s', 'm0') in pD and op.note == 'ldsdma': req = max(req, 1)
                if prev.kind == 'vmem' and prev.note and str(prev.note).startswith('store') and int(prev.note[5:]) >= 3:
                    if op.kind in ('valu', 'mfma') and {r for r in pS if r[0] in 'va'} & D: req = max(req, 2)
                    elif {r for r in pS if r[0] in 'va'} & D: req = max(req, 1)
                if req > dist: need = max(need, req - dist)
                dist += wait_states(prev)
        while need > 0:
            n = min(need, 16)
            out.append(Op(f's_nop {n - 1}'))
            need -= n
        out.append(op)
    return out

def finalize(ops):
    ops = insert_waits(ops)
    ops = insert_hazard_nops(ops)
    return ops

def render(ops):
    lines = []
    for o in ops:
        if o.text == '': continue
        lines.append(o.text if o.kind == 'label' else '  ' + o.text)
    return '\n'.join(lines)

class B:
    def __init__(self): self.ops = []
    def __call__(self, text, tok=None):
        for line in text.split('\n'):
            line = line.strip()
            if line: self.ops.append(Op(line, tok))
        return self
    def wait(self, cls, *toks): self.ops.append(WaitTok(cls, toks))
    def fence(self, vm=True, lgkm=True): self.ops.append(Fence(vm, lgkm))
    def ext(self, other): self.ops.extend(other.ops if isinstance(other, B) else other)

def merge(main, filler, after=lambda op: op.kind == 'mfma', per=2, start=0):
    out = []
    f = list(filler); fi = 0; site = 0; debt = 0
    for op in main:
        out.append(op)
        if after(op):
            site += 1
            if site > start:
                k = per(site) if callable(per) else per
                n = debt
                while n < k and fi < len(f):
                    it = f[fi]; fi += 1
                    if isinstance(it, list):
                        out.extend(it); n += len([o for o in it if o.kind not in ('waittok', 'label')])
                    else:
                        out.append(it)
                        if it.kind not in ('waittok', 'label'): n += 1
                debt = max(0, n - k)
    for it in f[fi:]:
        if isinstance(it, list): out.extend(it)
        else: out.append(it)
    return out

def flat(items):
    out = []
    for it in items:
        if isinstance(it, list): out.extend(it)
        else: out.append(it)
    return out

class F:
    def __init__(self): self.ops = []
    def __call__(self, text, tok=None):
        for line in text.split('\n'):
            line = line.strip()
            if line: self.ops.append(Op(line, tok))
        return self
    def wait(self, cls, *toks): self.ops.append(WaitTok(cls, toks))
    def group(self, b): self.ops.append(list(b.ops))
    def ext(self, other): self.ops.extend(other.ops if hasattr(other, 'ops') else other)
```

```python
import sys, copy
sys.path.insert(0, 'dev')
from ir import *

NAME = "gated_mix__ssm_conv_s5__dense_activation_silu__prompt"
K1 = "gm_k1_kernel"
K2 = "gm_k2_kernel"

HF_OFF = 0
HF_SIZE = 64 * 176 * 1024
W2F_OFF = HF_SIZE
W2F_SIZE = 16 * 176 * 1024
G_OFF = W2F_OFF + W2F_SIZE
E_OFF = G_OFF + 2048 * 8
E_SIZE = 16 * 16 * 512
NONCE_OFF = E_OFF + E_SIZE
FLG_OFF = NONCE_OFF + 256
XCH_OFF = FLG_OFF + 256 * 64
WS_USED = XCH_OFF + 256 * 24576

LOG2E = 0x3fb8aa3b
INV2PI = 0x3e22f983

RB, XS, WR = 0, 65536, 114688
SC = 32768
IMG = 36864

opts = dict(a.split('=') for a in sys.argv[1:] if '=' in a)
STAMP = int(opts.get('stamp', 0))
STF = "sc0 sc1"

def v(n, k=1): return f"v{n}" if k == 1 else f"v[{n}:{n+k-1}]"
def a(n, k=1): return f"a{n}" if k == 1 else f"a[{n}:{n+k-1}]"
def s(n, k=1): return f"s{n}" if k == 1 else f"s[{n}:{n+k-1}]"


STV = 15
def reg_of_t(t): return (t >> 2) + 4 * (t & 3)
def srd(b, dst, ptr, size):
    b(f"s_mov_b32 s{dst}, s{ptr}")
    b(f"s_mov_b32 s{dst+1}, s{ptr+1}")
    b(f"s_mov_b32 s{dst+2}, {size}")
    b(f"s_mov_b32 s{dst+3}, 0x20000")


def cexp(b, dst, n_src, va, vang, t0):
    b(f"v_mul_f32 v{t0}, {n_src}, v{va}")
    b(f"v_mul_f32 v{t0+1}, {n_src}, v{vang}")
    b(f"v_exp_f32 v{t0}, v{t0}")
    b(f"v_rndne_f32 v{t0+2}, v{t0+1}")
    b(f"v_sub_f32 v{t0+1}, v{t0+1}, v{t0+2}")
    b(f"v_cos_f32 v{dst}, v{t0+1}")
    b(f"v_sin_f32 v{dst+1}, v{t0+1}")
    b(f"v_mul_f32 v{dst}, v{t0}, v{dst}")
    b(f"v_mul_f32 v{dst+1}, v{t0}, v{dst+1}")


def cfma(b, d, l, h, u, tmp):
    b(f"v_pk_fma_f32 {v(tmp,2)}, {v(l,2)}, {v(h,2)}, {v(u,2)} op_sel:[0,0,0] op_sel_hi:[0,1,1]")
    b(f"v_pk_fma_f32 {v(d,2)}, {v(l,2)}, {v(h,2)}, {v(tmp,2)} op_sel:[1,1,0] op_sel_hi:[1,0,1] neg_lo:[1,0,0]")


def cfma_s(b, d, l, h, u, tmp):
    b(f"v_fma_f32 v{tmp}, v{l}, v{h}, v{u}")
    b(f"v_fma_f32 v{tmp+1}, v{l}, v{h+1}, v{u+1}")
    b(f"v_fma_f32 v{d}, -v{l+1}, v{h+1}, v{tmp}")
    b(f"v_fma_f32 v{d+1}, v{l+1}, v{h}, v{tmp+1}")


def stamp(b, idx):
    if not STAMP: return
    g = B()
    g("s_memtime s[100:101]")
    g("s_waitcnt lgkmcnt(0)")
    g(f"v_writelane_b32 v{STV}, s100, {idx}")
    b.ext(g)


def stamp_begin(b):
    if not STAMP: return
    b(f"v_mov_b32 v{STV}, 0")
    b("s_memrealtime s[100:101]")
    b("s_waitcnt lgkmcnt(0)")
    b(f"v_writelane_b32 v{STV}, s100, 62")
    stamp(b, 0)


def stamp_end(b, wave, ws, off, lane, sh=2, tv=254):
    if not STAMP: return
    b("s_memrealtime s[100:101]")
    b("s_waitcnt lgkmcnt(0)")
    b(f"v_writelane_b32 v{STV}, s100, 63")
    b(f"s_lshl_b32 s100, s2, {sh}")
    b(f"s_add_u32 s100, s100, s{wave}")
    b(f"s_lshl_b32 s100, s100, 8")
    b(f"s_add_u32 s100, s100, {off}")
    b(f"v_lshlrev_b32 v{tv}, 2, v{lane}")
    b(f"v_add_u32 v{tv}, s100, v{tv}")
    b(f"global_store_dword v{tv}, v{STV}, {ws}")


vLane = 1
def tr_pattern(b, dst, hfmul, t):
    L = vLane
    b(f"v_lshrrev_b32 v{t}, 5, v{L}")
    b(f"v_mul_u32_u24 v{t}, {hfmul}, v{t}")
    b(f"v_bfe_u32 v{t+1}, v{L}, 2, 2")
    b(f"v_add_u32 v{t}, v{t}, v{t+1}")
    b(f"v_lshlrev_b32 v{t}, 7, v{t}")
    b(f"v_bfe_u32 v{t+1}, v{L}, 3, 1")
    b(f"v_lshlrev_b32 v{t+1}, 6, v{t+1}")
    b(f"v_bfe_u32 v{t+2}, v{L}, 4, 1")
    b(f"v_lshlrev_b32 v{t+2}, 5, v{t+2}")
    b(f"v_and_b32 v{t+3}, 3, v{L}")
    b(f"v_lshlrev_b32 v{t+3}, 3, v{t+3}")
    b(f"v_add3_u32 v{t}, v{t}, v{t+2}, v{t+3}")
    b(f"v_add_u32 v{dst}, v{t}, v{t+1}")
    b(f"v_xor_b32 v{t+1}, 64, v{t+1}")
    b(f"v_add_u32 v{dst+1}, v{t}, v{t+1}")

SLOT = 24576
NSLOT = 4
WB0 = 98304
SCR = 73728
SC = 0
IMG = 1024
def wblock_lds(q):
    if q < 8: return WB0 + q * 8192
    return (q - 8) * 8192

sX, sBRE, sBIM, sW1, sHF = 36, 40, 44, 48, 52
sWave, sWm, sR, sS, sRho = 60, 61, 62, 63, 56
sLdsX, sLdsB = 64, 65
sT0, sT1, sT2, sT3 = 68, 69, 70, 71
sWL = 72
sM1, sM2, sM3 = 80, 82, 84
sHFb, sK0, sEX = 86, 87, 88
sLo = 90
sSpin, sU = 98, 99

def k1_head():
    b = B()
    stamp_begin(b)
    b("s_load_dwordx16 s[4:19], s[0:1], 0")
    b("s_load_dwordx16 s[20:35], s[0:1], 64")
    b("s_cmp_ge_u32 s2, 256")
    b("s_cbranch_scc1 L_k1_end")
    b("v_lshrrev_b32 v2, 6, v0")
    b(f"v_and_b32 v{vLane}, 63, v0")
    b(f"v_readfirstlane_b32 s{sWave}, v2")
    b(f"s_and_b32 s{sT0}, s2, 7")
    b(f"s_lshr_b32 s{sT1}, s2, 3")
    b(f"s_and_b32 s{sT2}, s{sT1}, 7")
    b(f"s_lshr_b32 s{sT3}, s{sT1}, 3")
    b(f"s_lshr_b32 s{sR}, s{sT0}, 2")
    b(f"s_lshl_b32 s{sR}, s{sR}, 3")
    b(f"s_add_u32 s{sR}, s{sR}, s{sT2}")
    b(f"s_and_b32 s{sS}, s{sT0}, 3")
    b(f"s_lshl_b32 s{sS}, s{sS}, 2")
    b(f"s_add_u32 s{sS}, s{sS}, s{sT3}")
    b(f"s_lshl_b32 s{sRho}, s{sT3}, 1")
    b(f"s_add_u32 s{sRho}, s{sRho}, s{sT2}")
    ROT1 = opts.get('rot1', 'none')
    if ROT1 == 'none': b(f"s_mov_b32 s{sRho}, 0")
    if ROT1 == 'half':
        b(f"s_and_b32 s{sRho}, s{sRho}, 1")
        b(f"s_lshl_b32 s{sRho}, s{sRho}, 2")
    if ROT1 == 'two':
        b(f"s_and_b32 s{sRho}, s{sRho}, 3")
        b(f"s_lshl_b32 s{sRho}, s{sRho}, 1")
    b(f"s_and_b32 s{sWm}, s{sWave}, 3")
    b(f"s_lshl_b32 s{sLdsX}, s{sWm}, 12")
    b(f"s_lshl_b32 s{sLdsB}, s{sWm}, 11")
    b(f"s_lshl_b32 s{sHFb}, s{sR}, 2")
    b(f"s_add_u32 s{sHFb}, s{sHFb}, s{sWm}")
    b(f"s_mul_i32 s{sHFb}, s{sHFb}, {176*1024}")
    b(f"s_cmp_ge_u32 s{sWave}, 4")
    b("s_cbranch_scc1 L_k1_F")
    return b

fXe, fXo, fB, fW = 2, 3, 4, 5
fPX, fTA, fTB, fTC, fL16 = 7, 11, 13, 16, 6 + 0
fPX, fTA, fTB, fTC = 8, 12, 14, 16
fPX, fTA, fTB, fTC, fL16 = 8, 12, 16, 18, 7
fE, fD = 20, 28
fS, fAcc = 32, 64

def dma(b, voff, srdn, soff, tok, imm=0):
    o = f" offset:{imm}" if imm else ""
    b(f"buffer_load_dwordx4 v{voff}, {s(srdn,4)}, {soff} offen{o} lds", tok)
def dma_x(b, i):
    b(f"s_add_u32 m0, s{sLdsX}, {(i % NSLOT) * SLOT}")
    for k in range(4):
        dma(b, fXe if k % 2 == 0 else fXo, sX, f"s{sLo+i}", f"x{i}", k * 1024)
def dma_B(b, i):
    b(f"s_add_u32 m0, s{sLdsB}, {(i % NSLOT) * SLOT + 16384}")
    dma(b, fB, sBRE, f"s{sLo+i}", f"B{i}")
    dma(b, fB, sBIM, f"s{sLo+i}", f"B{i}", 1024)
def dma_w(b, q):
    i, hh = q % 8, q // 8
    b(f"s_add_u32 m0, s{sLdsB}, {wblock_lds(q)}")
    if hh:
        b(f"s_add_u32 s{sT0}, s{sWL+i}, 128")
        so = f"s{sT0}"
    else:
        so = f"s{sWL+i}"
    dma(b, fW, sW1, so, f"w{q}")
    dma(b, fW + 1, sW1, so, f"w{q}", 1024)

def chunks_of(ops):
    ch = []; cur = []
    for o in ops:
        cur.append(o)
        if o.kind == 'vmem': ch.append(cur); cur = []
    if cur: ch.append(cur)
    return ch

def k1_F(ffn):
    b = B(); L = vLane
    t = fE
    for i in range(8):
        b(f"s_add_u32 s{sLo+i}, s{sRho}, {i}")
        b(f"s_and_b32 s{sLo+i}, s{sLo+i}, 7")
        b(f"s_lshl_b32 s{sLo+i}, s{sLo+i}, 7")
    b(f"v_and_b32 v{t}, 7, v{L}")
    b(f"v_lshrrev_b32 v{t+1}, 4, v{L}")
    b(f"v_xor_b32 v{t+2}, v{t}, v{t+1}")
    b(f"v_lshlrev_b32 v{t+2}, 4, v{t+2}")
    b(f"v_lshrrev_b32 v{t+3}, 3, v{L}")
    b(f"s_lshl_b32 s{sT0}, s{sR}, 17")
    b(f"s_lshl_b32 s{sT1}, s{sWm}, 15")
    b(f"s_add_u32 s{sT0}, s{sT0}, s{sT1}")
    b(f"v_lshlrev_b32 v{t}, 12, v{t+3}")
    b(f"v_add3_u32 v{fXe}, v{t}, v{t+2}, s{sT0}")
    b(f"v_xor_b32 v{fXo}, 64, v{fXe}")
    b(f"s_and_b32 s{sT0}, s{sWm}, 1")
    b(f"s_lshl_b32 s{sT0}, s{sT0}, 6")
    b(f"v_xor_b32 v{t+1}, s{sT0}, v{t+2}")
    b(f"s_lshl_b32 s{sT0}, s{sWm}, 13")
    b(f"s_lshl_b32 s{sT1}, s{sS}, 15")
    b(f"s_add_u32 s{sT0}, s{sT0}, s{sT1}")
    b(f"v_lshlrev_b32 v{t}, 10, v{t+3}")
    b(f"v_add3_u32 v{fB}, v{t}, v{t+1}, s{sT0}")
    b("s_waitcnt lgkmcnt(0)")
    srd(b, sX, 4, 2048*1024)
    srd(b, sBRE, 10, 512*1024)
    b(f"s_sub_u32 s{sBIM}, s12, 1024")
    b(f"s_subb_u32 s{sBIM+1}, s13, 0")
    b(f"s_mov_b32 s{sBIM+2}, {512*1024 + 1024}")
    b(f"s_mov_b32 s{sBIM+3}, 0x20000")
    if STAMP >= 2: stamp(b, 8)
    for i in range(3):
        dma_x(b, i); dma_B(b, i)
    if STAMP >= 2: stamp(b, 9)
    srd(b, sHF, 34, WS_USED)
    if ffn:
        srd(b, sW1, 24, 512*3584)
        b(f"v_bfe_u32 v{t+1}, v{L}, 4, 1")
        b(f"v_lshlrev_b32 v{t+1}, 2, v{t+1}")
        b(f"v_and_b32 v{t+3}, 7, v{L}")
        b(f"v_xor_b32 v{t+3}, v{t+3}, v{t+1}")
        b(f"v_lshlrev_b32 v{t+3}, 4, v{t+3}")
        b(f"v_lshrrev_b32 v{t+1}, 3, v{L}")
        b(f"s_lshl_b32 s{sT3}, s{sWm}, 4")
        b(f"v_add_u32 v{t+1}, s{sT3}, v{t+1}")
        b(f"v_mul_u32_u24 v{t+1}, 3584, v{t+1}")
        b(f"v_add_u32 v{fW}, v{t+1}, v{t+3}")
        b(f"v_add_u32 v{fW+1}, {8*3584 - 1024}, v{fW}")
        b(f"s_lshl_b32 s{sT3}, s{sS}, 8")
        for i in range(8):
            b(f"s_mul_i32 s{sWL+i}, s{sLo+i}, 1792")
            b(f"s_add_u32 s{sWL+i}, s{sWL+i}, s{sT3}")
        tr_pattern(b, fTA, 8, t)
        b(f"v_add_u32 v{fTB}, 0x10000, v{fTA}")
        b(f"v_add_u32 v{fTB+1}, 0x10000, v{fTA+1}")
        b(f"v_add_u32 v{fTC}, 0x20000, v{fTA}")
        b(f"v_add_u32 v{fTC+1}, 0x20000, v{fTA+1}")
        b(f"v_lshlrev_b32 v{fL16}, 4, v{L}")
        b(f"v_and_b32 v{t}, 31, v{L}")
        b(f"v_lshrrev_b32 v{t+1}, 5, v{L}")
        b(f"v_bfe_u32 v{t+2}, v{L}, 1, 3")
        b(f"v_xor_b32 v{t+2}, v{t+1}, v{t+2}")
        b(f"v_lshlrev_b32 v{t+1}, 7, v{t}")
        b(f"v_add_u32 v{t+1}, s{sLdsX}, v{t+1}")
        for k in range(4):
            b(f"v_xor_b32 v{t+3}, {2*k}, v{t+2}")
            b(f"v_lshl_add_u32 v{fPX+k}, v{t+3}, 4, v{t+1}")
        b(f"s_mov_b32 s66, {LOG2E ^ 0x80000000:#x}")
        b(f"s_mov_b32 s67, {LOG2E ^ 0x80000000:#x}")
        b(f"s_lshl_b32 s{sU}, s{sS}, 13")
        b(f"s_add_u32 s{sU}, s{sU}, s{sHFb}")
        b(f"s_add_u32 s{sU}, s{sU}, {64*1024}")
    stamp(b, 1)
    for i in range(8):
        if STAMP >= 2: stamp(b, 10 + 2*i)
        b.wait('vm', f"x{i}", f"B{i}")
        b("s_waitcnt lgkmcnt(0)")
        b("s_barrier")
        if STAMP >= 2: stamp(b, 11 + 2*i)
        if ffn:
            po = (i % NSLOT) * SLOT
            if po >= 65536:
                for k in range(4): b(f"v_add_u32 v{fE+k}, 0x10000, v{fPX+k}")
            for k in range(4):
                if po >= 65536: b(f"ds_read_b128 {a(16*i+4*k,4)}, v{fE+k} offset:{po - 65536}")
                else: b(f"ds_read_b128 {a(16*i+4*k,4)}, v{fPX+k} offset:{po}")
        if i <= 4:
            dma_x(b, i + 3); dma_B(b, i + 3)
        elif ffn:
            for q in {5: (0, 1, 2), 6: (3, 4, 5), 7: (6, 7)}[i]: dma_w(b, q)
    stamp(b, 2)
    if not ffn:
        b(f"s_lshl_b32 s{sT0}, s{sR}, 1")
        b(f"s_add_u32 s{sT0}, s{sT0}, s{sS}")
        b(f"s_sub_u32 s{sT0}, s{sT0}, 14")
        b(f"s_lshl_b32 s{sT0}, s{sT0}, 2")
        b(f"s_add_u32 s{sT0}, s{sT0}, s{sWm}")
        b(f"v_lshlrev_b32 v8, 7, v{L}")
        srd(b, sW1, 26, 1792*1024)
        srd(b, sHF, 14, 512*1024)
        srd(b, sX, 16, 512*1024)
        b(f"s_mul_i32 s{sT1}, s{sT0}, 14336")
        b(f"buffer_load_dword v9, v8, {s(sW1,4)}, s{sT1} offen")
        b(f"s_add_u32 s{sT1}, s{sT1}, 8192")
        b(f"buffer_load_dword v10, v8, {s(sW1,4)}, s{sT1} offen")
        b(f"s_lshl_b32 s{sT1}, s{sT0}, 12")
        b(f"buffer_load_dword v11, v8, {s(sHF,4)}, s{sT1} offen")
        b(f"buffer_load_dword v12, v8, {s(sX,4)}, s{sT1} offen")
        for _ in range(3): b("s_barrier")
        k1_gjob_all(b)
        return b
    def ffn_phase(hh):
        p = B(); DEPTH = 3
        def lds_loc(n):
            i, k = divmod(n, 4)
            base = wblock_lds(8 * hh + i) + 16 * k * 128
            if base < 65536: return fTA, base
            if base < 131072: return fTB, base - 65536
            return fTC, base - 131072
        plan = {0: [0, 1, 2, 3], int(opts.get('bcn', 12)): [4, 5, 6, 7]} if hh == 0 else {0: list(range(8, 16))}
        def reads(n):
            if n in plan:
                p.wait('vm', *[f"w{q}" for q in plan[n]])
                if hh == 0 and n == 0: p("s_waitcnt lgkmcnt(0)")
                if STAMP >= 2: stamp(p, 26 + (0 if n == 0 else 1) if hh == 0 else 29)
                p("s_barrier")
                if STAMP >= 2 and hh == 0: stamp(p, 30 + (0 if n == 0 else 1))
            base, off = lds_loc(n)
            r = fS + (n % 4) * 8
            for ft in range(2):
                for rd in range(2):
                    p(f"ds_read_b64_tr_b16 {v(r+4*ft+2*rd,2)}, v{base+ft} offset:{off + rd*512}", f"r{hh}_{n}")
        ch = []
        if hh == 0:
            d = B()
            for q in range(8, 16): dma_w(d, q)
            ch = chunks_of(d.ops)
        for n in range(DEPTH): reads(n)
        for n in range(32):
            i, k = divmod(n, 4)
            r = fS + (n % 4) * 8
            p.wait('lg', f"r{hh}_{n}")
            for ft in range(2):
                acc = fAcc + (2*hh + ft) * 16
                c = v(acc, 16) if n else "0"
                p(f"v_mfma_f32_32x32x16_bf16 {v(acc,16)}, {v(r+4*ft,4)}, {a(16*i+4*k,4)}, {c}")
                if ft == 0 and ch: p.ext(ch.pop(0))
            if n + DEPTH < 32: reads(n + DEPTH)
        assert not ch
        return p
    b.ext(ffn_phase(0))
    stamp(b, 3)
    p3 = ffn_phase(1)
    fl = F()
    fl.ext(k1_silu(0, False)); fl.ext(k1_silu(1, False))
    b.ext(merge(p3.ops, fl.ops, per=int(opts.get('per3', 4)), start=1))
    stamp(b, 4)
    b.ext(flat(k1_silu(2, True).ops))
    b.ext(flat(k1_silu(3, True).ops))
    stamp(b, 5)
    return b

def k1_silu(ft, pk):
    b = F()
    acc = fAcc + ft * 16
    e, d = fE, fD
    for kk in range(2):
        base = acc + 8 * kk
        if pk:
            for q in range(4): b(f"v_pk_mul_f32 {v(e+2*q,2)}, {v(base+2*q,2)}, s[66:67]")
            for q in range(8): b(f"v_exp_f32 v{e+q}, v{e+q}")
            for q in range(4): b(f"v_pk_add_f32 {v(e+2*q,2)}, {v(e+2*q,2)}, 1.0 op_sel_hi:[1,0]")
            for q in range(8): b(f"v_rcp_f32 v{e+q}, v{e+q}")
            for q in range(4): b(f"v_pk_mul_f32 {v(e+2*q,2)}, {v(base+2*q,2)}, {v(e+2*q,2)}")
            for q in range(4): b(f"v_cvt_pk_bf16_f32 v{d+q}, v{e+2*q}, v{e+2*q+1}")
        else:
            seq = []
            for q in range(8):
                seq.append([f"v_mul_f32 v{e+q}, s66, v{base+q}", f"v_exp_f32 v{e+q}, v{e+q}", f"v_add_f32 v{e+q}, 1.0, v{e+q}",
                            f"v_rcp_f32 v{e+q}, v{e+q}", f"v_mul_f32 v{e+q}, v{base+q}, v{e+q}"])
            for tm in range(8 + 4):
                for stg in range(5):
                    q = tm - stg
                    if 0 <= q < 8: b(seq[q][stg])
            for q in range(4): b(f"v_cvt_pk_bf16_f32 v{d+q}, v{e+2*q}, v{e+2*q+1}")
        b(f"s_add_u32 s{sK0}, s{sU}, {(2*ft+kk)*1024}")
        b(f"buffer_store_dwordx4 {v(d,4)}, v{fL16}, {s(sHF,4)}, s{sK0} offen {STF}")
    return b

gPX, gPB = 2, 6
vLBa, vImgW, vImgR, vL16o = 10, 11, 12, 13
vL, vC2, vL16, vL32, vL128, vL256, vF1, vG, vHfm = 16, 18, 20, 22, 24, 26, 28, 30, 32
vNon, vK, vQ, vW_, vPre, vTmp = 34, 36, 38, 40, 42, 44
vP = 48
aRE, aIM, vU = 64, 80, 96
aSX, aSB = 0, 16

def k1_S_setup():
    b = B(); L = vLane; t = vP
    b("s_waitcnt lgkmcnt(0)")
    srd(b, sHF, 34, WS_USED)
    b(f"v_and_b32 v{t}, 31, v{L}")
    b(f"s_lshl_b32 s{sT0}, s{sS}, 5")
    b(f"v_add_u32 v{t}, s{sT0}, v{t}")
    b(f"v_lshlrev_b32 v{t}, 1, v{t}")
    b(f"global_load_ushort v{vP+8}, v{t}, s[6:7]")
    b(f"global_load_ushort v{vP+9}, v{t}, s[8:9]")
    b(f"global_load_ushort v{vP+10}, v{t}, s[18:19]")
    b(f"v_mov_b32 v{t}, {NONCE_OFF}")
    b(f"global_load_dwordx2 {v(vU+26,2)}, v{t}, s[34:35] sc1")
    PF = int(opts.get('pf', 0))
    if PF:
        pd = vU + 28
        b(f"s_cmp_eq_u32 s{sWm}, 0")
        b("s_cbranch_scc0 L_k1_pf_1")
        b(f"v_lshrrev_b32 v{t}, 3, v{L}")
        b(f"s_lshl_b32 s{sT2}, s2, 3")
        b(f"v_add_u32 v{t}, s{sT2}, v{t}")
        b(f"v_lshlrev_b32 v{t}, 10, v{t}")
        b(f"v_and_b32 v{t+1}, 7, v{L}")
        b(f"v_max_u32 v{t+1}, 3, v{t+1}")
        b(f"v_lshl_add_u32 v{t}, v{t+1}, 7, v{t}")
        b(f"global_load_dword v{pd}, v{t}, s[4:5]", 'nocount')
        b("L_k1_pf_1:")
        b(f"s_cmp_eq_u32 s{sWm}, 1")
        b("s_cbranch_scc0 L_k1_pf_2")
        b(f"v_bfe_u32 v{t}, v{L}, 3, 1")
        b(f"s_lshl_b32 s{sT2}, s2, 1")
        b(f"v_add_u32 v{t}, s{sT2}, v{t}")
        b(f"v_lshlrev_b32 v{t}, 10, v{t}")
        b(f"v_and_b32 v{t+1}, 7, v{L}")
        b(f"v_max_u32 v{t+1}, 3, v{t+1}")
        b(f"v_lshl_add_u32 v{t}, v{t+1}, 7, v{t}")
        b(f"global_load_dword v{pd}, v{t}, s[10:11]", 'nocount')
        b(f"global_load_dword v{pd+1}, v{t}, s[12:13]", 'nocount')
        b("L_k1_pf_2:")
        b(f"s_cmp_eq_u32 s{sWm}, 2")
        b("s_cbranch_scc0 L_k1_pf_done")
        b(f"v_lshrrev_b32 v{t}, 5, v{L}")
        b(f"s_lshl_b32 s{sT2}, s2, 1")
        b(f"v_add_u32 v{t}, s{sT2}, v{t}")
        b(f"v_mul_u32_u24 v{t}, 3584, v{t}")
        b(f"v_and_b32 v{t+1}, 31, v{L}")
        b(f"v_min_u32 v{t+1}, 27, v{t+1}")
        b(f"v_lshl_add_u32 v{t}, v{t+1}, 7, v{t}")
        b(f"global_load_dword v{pd}, v{t}, s[24:25]", 'nocount')
        b("L_k1_pf_done:")
    b(f"v_and_b32 v{t}, 31, v{L}")
    b(f"v_lshrrev_b32 v{t+1}, 5, v{L}")
    b(f"v_bfe_u32 v{t+2}, v{L}, 1, 3")
    b(f"v_xor_b32 v{t+2}, v{t+1}, v{t+2}")
    b(f"v_lshlrev_b32 v{t+1}, 7, v{t}")
    b(f"v_add_u32 v{t+1}, s{sLdsX}, v{t+1}")
    b(f"v_lshrrev_b32 v{t+3}, 3, v{t}")
    b(f"v_lshlrev_b32 v{t+3}, 11, v{t+3}")
    b(f"v_and_b32 v{t}, 7, v{t}")
    b(f"v_lshl_add_u32 v{t}, v{t}, 7, v{t+3}")
    b(f"v_add_u32 v{t}, 16384, v{t}")
    for k in range(4):
        b(f"v_xor_b32 v{t+3}, {2*k}, v{t+2}")
        b(f"v_lshl_add_u32 v{gPX+k}, v{t+3}, 4, v{t+1}")
        b(f"v_lshl_add_u32 v{gPB+k}, v{t+3}, 4, v{t}")
    return b

def k1_params():
    b = F()
    lre, lim, ldt = vP+8, vP+9, vP+10
    va, vang, t0 = vP, vP+1, vP+2
    b(f"v_lshlrev_b32 v{lre}, 16, v{lre}")
    b(f"v_lshlrev_b32 v{lim}, 16, v{lim}")
    b(f"v_lshlrev_b32 v{ldt}, 16, v{ldt}")
    b(f"v_mul_f32 v{ldt}, {LOG2E:#x}, v{ldt}")
    b(f"v_exp_f32 v{ldt}, v{ldt}")
    b(f"v_cvt_pk_bf16_f32 v{ldt}, v{ldt}, v{ldt}")
    b(f"v_lshlrev_b32 v{ldt}, 16, v{ldt}")
    b(f"v_mul_f32 v{va}, v{ldt}, v{lre}")
    b(f"v_mul_f32 v{vang}, v{ldt}, v{lim}")
    b(f"v_mul_f32 v{va}, {LOG2E:#x}, v{va}")
    b(f"v_mul_f32 v{vang}, {INV2PI:#x}, v{vang}")
    cexp(b, vL, "1.0", va, vang, t0)
    for dst, cst in ((vL16, 0x41800000), (vL32, 0x42000000), (vL128, 0x43000000), (vL256, 0x43800000)):
        b(f"v_mov_b32 v{t0+3}, {cst:#x}")
        cexp(b, dst, f"v{t0+3}", va, vang, t0)
    b(f"v_lshrrev_b32 v{t0+3}, 5, v{vLane}")
    b(f"v_cvt_f32_u32 v{vHfm}, v{t0+3}")
    b(f"v_lshlrev_b32 v{t0+3}, 4, v{t0+3}")
    b(f"v_cvt_f32_u32 v{t0+3}, v{t0+3}")
    cexp(b, vF1, f"v{t0+3}", va, vang, t0)
    b(f"v_lshrrev_b32 v{t0+3}, 5, v{vLane}")
    b(f"v_lshlrev_b32 v{t0+3}, 4, v{t0+3}")
    b(f"s_lshl_b32 s{sSpin}, s{sWm}, 5")
    b(f"v_add_u32 v{t0+3}, s{sSpin}, v{t0+3}")
    b(f"v_cvt_f32_u32 v{t0+3}, v{t0+3}")
    cexp(b, vG, f"v{t0+3}", va, vang, t0)
    b(f"v_add_f32 v{t0}, -1.0, v{vL}")
    b(f"v_mul_f32 v{t0+1}, v{lre}, v{lre}")
    b(f"v_fma_f32 v{t0+1}, v{lim}, v{lim}, v{t0+1}")
    b(f"v_rcp_f32 v{t0+1}, v{t0+1}")
    b(f"v_mul_f32 v{vC2}, v{t0}, v{lre}")
    b(f"v_fma_f32 v{vC2}, v{vL+1}, v{lim}, v{vC2}")
    b(f"v_mul_f32 v{vC2+1}, v{vL+1}, v{lre}")
    b(f"v_fma_f32 v{vC2+1}, -v{t0}, v{lim}, v{vC2+1}")
    b(f"v_add_f32 v{t0+1}, v{t0+1}, v{t0+1}")
    b(f"v_mul_f32 v{vC2}, v{vC2}, v{t0+1}")
    b(f"v_mul_f32 v{vC2+1}, v{vC2+1}, v{t0+1}")
    return b

def k1_setup_common():
    b = F(); t = vP + 12; L = vLane
    for k, m in ((1, sM1), (2, sM2), (3, sM3)):
        g = B()
        g(f"s_cmp_ge_u32 s{sWm}, {k}")
        g(f"s_cselect_b64 {s(m,2)}, -1, 0")
        b.group(g)
    b(f"v_lshlrev_b32 v{vL16o}, 4, v{L}")
    b(f"v_and_b32 v{t}, 31, v{L}")
    b(f"v_lshlrev_b32 v{t}, 4, v{t}")
    b(f"s_lshl_b32 s{sK0}, s{sS}, 9")
    b(f"s_add_u32 s{sK0}, s{sK0}, {E_OFF}")
    b(f"v_add_u32 v{vLBa}, s{sK0}, v{t}")
    b(f"v_and_b32 v{t}, 31, v{L}")
    b(f"v_mul_u32_u24 v{t}, 80, v{t}")
    b(f"v_lshrrev_b32 v{t+1}, 5, v{L}")
    b(f"v_lshl_add_u32 v{t}, v{t+1}, 5, v{t}")
    b(f"s_mul_i32 s{sK0}, s{sWm}, 5120")
    b(f"s_add_u32 s{sK0}, s{sK0}, {SCR}")
    b(f"v_add_u32 v{vImgW}, s{sK0}, v{t}")
    b(f"v_lshrrev_b32 v{t+1}, 5, v{L}")
    b(f"v_lshlrev_b32 v{t+1}, 3, v{t+1}")
    b(f"v_bfe_u32 v{t+2}, v{L}, 2, 2")
    b(f"v_add_u32 v{t+1}, v{t+1}, v{t+2}")
    b(f"v_mul_u32_u24 v{t+1}, 80, v{t+1}")
    b(f"v_and_b32 v{t+2}, 1, v{L}")
    b(f"v_lshlrev_b32 v{t+2}, 5, v{t+2}")
    b(f"v_bfe_u32 v{t+3}, v{L}, 4, 1")
    b(f"v_lshlrev_b32 v{t+3}, 4, v{t+3}")
    b(f"v_add3_u32 v{t+1}, v{t+1}, v{t+2}, v{t+3}")
    b(f"v_bfe_u32 v{t+2}, v{L}, 1, 1")
    b(f"v_lshlrev_b32 v{t+2}, 3, v{t+2}")
    b(f"v_add3_u32 v{vImgR}, v{t+1}, v{t+2}, s{sK0}")
    return b

def k1_gjob_all(b):
    L = vLane
    xs0, gs, t = 32, 16, 24
    gu = 64
    b(f"v_and_b32 v{t}, 31, v{L}")
    b(f"v_lshlrev_b32 v{t}, 4, v{t}")
    b(f"global_load_dwordx4 {v(gs,4)}, v{t}, s[28:29]")
    b(f"global_load_dwordx4 {v(gs+4,4)}, v{t}, s[28:29] offset:512")
    b(f"v_lshrrev_b32 v{t+1}, 5, v{L}")
    b(f"s_lshl_b32 s{sT1}, s{sT0}, 4")
    b(f"v_add_u32 v{t+1}, s{sT1}, v{t+1}")
    b(f"v_lshlrev_b32 v{t+2}, 3, v{t+1}")
    b(f"v_add_u32 v{t+2}, {G_OFF}, v{t+2}")
    b(f"v_lshlrev_b32 v{t+1}, 10, v{t+1}")
    b(f"v_add_u32 v{t+1}, v{t+1}, v{t}")
    def ld(p):
        r = xs0 + (p % 4) * 8
        if p: b(f"v_add_u32 v{t+1}, 2048, v{t+1}")
        b(f"global_load_dwordx4 {v(r,4)}, v{t+1}, s[4:5]")
        b(f"global_load_dwordx4 {v(r+4,4)}, v{t+1}, s[4:5] offset:512")
    for p in range(3): ld(p)
    for k in range(8):
        b(f"v_lshlrev_b32 v{gu+2*k}, 16, v{gs+k}")
        b(f"v_and_b32 v{gu+2*k+1}, 0xffff0000, v{gs+k}")
    b(f"v_and_b32 v{t+3}, 31, v{L}")
    w = 80
    for p in range(8):
        if p + 3 < 8: ld(p + 3)
        xs = xs0 + (p % 4) * 8
        acc = w
        for k in range(8):
            a0 = w + 2 + 2 * (k % 4)
            b(f"v_lshlrev_b32 v{a0}, 16, v{xs+k}")
            b(f"v_and_b32 v{a0+1}, 0xffff0000, v{xs+k}")
            b(f"v_pk_mul_f32 {v(a0,2)}, {v(a0,2)}, {v(gu+2*k,2)}")
            b(f"v_cvt_pk_bf16_f32 v{a0}, v{a0}, v{a0+1}")
            b(f"v_and_b32 v{a0+1}, 0xffff0000, v{a0}")
            b(f"v_lshlrev_b32 v{a0}, 16, v{a0}")
            if k == 0:
                b(f"v_add_f32 v{acc}, v{a0}, v{a0+1}")
            else:
                b(f"v_add_f32 v{a0}, v{a0}, v{a0+1}")
                b(f"v_add_f32 v{acc}, v{acc}, v{a0}")
        for r in (8, 4, 2, 1):
            b(f"v_add_f32_dpp v{acc}, v{acc}, v{acc} row_ror:{r} row_mask:0xf bank_mask:0xf")
        b(f"v_mov_b32 v{acc+1}, v{acc}")
        b(f"v_permlane16_swap_b32 v{acc}, v{acc+1}")
        b(f"v_add_f32 v{acc}, v{acc}, v{acc+1}")
        b(f"v_cvt_pk_bf16_f32 v{acc}, v{acc}, v{acc}")
        b(f"v_lshlrev_b32 v{acc}, 16, v{acc}")
        b(f"v_mul_f32 v{acc}, {LOG2E ^ 0x80000000:#x}, v{acc}")
        b(f"v_exp_f32 v{acc}, v{acc}")
        b(f"v_add_f32 v{acc}, 1.0, v{acc}")
        b(f"v_rcp_f32 v{acc}, v{acc}")
        b(f"v_cvt_pk_bf16_f32 v{acc}, v{acc}, v{acc}")
        d = w + 10 + 2 * (p % 2)
        b(f"v_lshlrev_b32 v{d}, 16, v{acc}")
        b(f"v_sub_f32 v{d+1}, 1.0, v{d}")
        b(f"v_cvt_pk_bf16_f32 v{d+1}, v{d+1}, v{d+1}")
        b(f"v_lshlrev_b32 v{d+1}, 16, v{d+1}")
        b(f"v_cmp_eq_u32 vcc, 0, v{t+3}")
        b(f"s_and_saveexec_b64 {s(sEX,2)}, vcc")
        b(f"global_store_dwordx2 v{t+2}, {v(d,2)}, s[34:35]")
        b(f"s_mov_b64 exec, {s(sEX,2)}")
        b(f"v_add_u32 v{t+2}, 16, v{t+2}")

def k1_nonce():
    b = F()
    t = vU + 26
    b(f"v_add_u32 v{t}, 1, v{t}")
    b(f"v_or_b32 v{t+1}, 1, v{t+1}")
    b(f"v_mov_b32 v{t+2}, {NONCE_OFF}")
    b(f"v_mov_b32 v{t+3}, 0")
    g = B()
    g(f"s_or_b32 s{sSpin}, s2, s{sWave}")
    g(f"s_cmp_lg_u32 s{sSpin}, 0")
    g("s_cbranch_scc1 L_k1_nononce")
    g(f"global_store_dwordx2 v{t+2}, {v(t,2)}, s[34:35] sc0 sc1", 'nocount')
    g(f"global_store_dwordx2 v{t+3}, {v(t,2)}, s[32:33] sc0 sc1", 'nocount')
    g("L_k1_nononce:")
    b.group(g)
    return b

def k1_S():
    b = k1_S_setup()
    if int(opts.get('sprio', 1)): b("s_setprio 2")
    m = B()
    for i in range(8):
        m("s_waitcnt lgkmcnt(0)")
        m("s_barrier")
        po = (i % NSLOT) * SLOT
        hi = po >= 65536 - 1024
        if hi:
            for k in range(4):
                m(f"v_add_u32 v{vTmp+k}, 0x10000, v{gPX+k}")
        for k in range(4):
            if hi: m(f"ds_read_b128 {a(aSX+4*k,4)}, v{vTmp+k} offset:{po - 65536}")
            else: m(f"ds_read_b128 {a(aSX+4*k,4)}, v{gPX+k} offset:{po}")
        if hi:
            for k in range(4):
                m(f"v_add_u32 v{vTmp+k}, 0x10000, v{gPB+k}")
        for k in range(4):
            for mm in range(2):
                if hi: m(f"ds_read_b128 {a(aSB+8*k+4*mm,4)}, v{vTmp+k} offset:{po - 65536 + mm*1024}")
                else: m(f"ds_read_b128 {a(aSB+8*k+4*mm,4)}, v{gPB+k} offset:{po + mm*1024}")
        for k in range(4):
            for mm, acc in ((0, aRE), (1, aIM)):
                c = v(acc, 16) if (i, k) != (0, 0) else "0"
                m(f"v_mfma_f32_32x32x16_bf16 {v(acc,16)}, {a(aSX+4*k,4)}, {a(aSB+8*k+4*mm,4)}, {c}")
    f = F()
    f.ext(k1_nonce())
    f.ext(k1_params())
    f.ext(k1_setup_common())
    g = B()
    g(f"v_mov_b32 v{vTmp}, 0")
    g(f"global_load_dwordx2 {v(vNon,2)}, v{vTmp}, s[32:33] sc1")
    f.group(g)
    b.ext(merge(m.ops, f.ops, per=int(opts.get('per1', 5))))
    b("s_waitcnt vmcnt(0)")
    stamp(b, 2)
    b("s_barrier")
    s1 = flat(k1_scan1a().ops)
    if STAMP >= 2: stamp(b, 8)
    b.ext(s1)
    if STAMP >= 2: stamp(b, 11)
    b("s_barrier")
    if STAMP >= 2: stamp(b, 12)
    b.ext(flat(k1_scan1b().ops))
    if STAMP >= 2: stamp(b, 13)
    b.ext(k1_publish())
    stamp(b, 3)
    b("s_barrier")
    stamp(b, 4)
    b.ext(k1_lookback())
    stamp(b, 5)
    b.ext(k1_final())
    stamp(b, 6)
    return b

def cfma_sr(b, d, l, h, ure, uim, tmp):
    b(f"v_fma_f32 v{tmp}, v{l}, v{h}, v{ure}")
    b(f"v_fma_f32 v{tmp+1}, v{l}, v{h+1}, v{uim}")
    b(f"v_fma_f32 v{d}, -v{l+1}, v{h+1}, v{tmp}")
    b(f"v_fma_f32 v{d+1}, v{l+1}, v{h}, v{tmp+1}")

def k1_scan1a():
    b = F()
    tmp = vTmp
    R = lambda t: aRE + reg_of_t(t)
    I = lambda t: aIM + reg_of_t(t)
    b(f"v_mov_b32 v{vQ}, v{R(0)}\nv_mov_b32 v{vQ+1}, v{I(0)}")
    cur = vQ
    for t in range(1, 16):
        nxt = vQ if cur == vW_ else vW_
        cfma_sr(b, nxt, vL, cur, R(t), I(t), tmp)
        cur = nxt
    assert cur == vW_
    b(f"v_mov_b32 v{vPre}, v{cur}\nv_mov_b32 v{vPre+1}, v{cur+1}")
    b(f"v_mov_b32 v{vQ}, v{cur}\nv_mov_b32 v{vQ+1}, v{cur+1}")
    b(f"v_permlane32_swap_b32 v{vPre}, v{vQ}")
    b(f"v_permlane32_swap_b32 v{vPre+1}, v{vQ+1}")
    cfma_s(b, vW_, vL16, vPre, vQ, tmp)
    b(f"v_mul_f32 v{vPre}, v{vPre}, v{vHfm}\nv_mul_f32 v{vPre+1}, v{vPre+1}, v{vHfm}")
    t = vP
    b(f"v_and_b32 v{t+14}, 31, v{vLane}")
    b(f"v_lshlrev_b32 v{t+14}, 3, v{t+14}")
    b(f"v_add_u32 v{t+14}, {SCR}, v{t+14}")
    b(f"s_lshl_b32 s{sK0}, s{sWm}, 8")
    b(f"v_add_u32 v{t+15}, s{sK0}, v{t+14}")
    b(f"ds_write_b64 v{t+15}, {v(vW_,2)} offset:{SC}", "Wx")
    b.wait('lg', "Wx")
    return b

def k1_scan1b():
    b = F()
    t = vP; tmp = vTmp
    for w in range(4):
        b(f"ds_read_b64 {v(t+2*w,2)}, v{t+14} offset:{SC + 256*w}")
    W0, W1, W2, W3 = t, t+2, t+4, t+6
    Q2, Q3 = t+8, t+10
    cfma_s(b, Q2, vL32, W0, W1, tmp)
    cfma_s(b, Q3, vL32, Q2, W2, tmp)
    E = t + 12
    cfma_s(b, E, vL32, Q3, W3, tmp)
    for h in range(2):
        b(f"v_cndmask_b32 v{vQ+h}, 0, v{W0+h}, {s(sM1,2)}")
        b(f"v_cndmask_b32 v{vQ+h}, v{vQ+h}, v{Q2+h}, {s(sM2,2)}")
        b(f"v_cndmask_b32 v{vQ+h}, v{vQ+h}, v{Q3+h}, {s(sM3,2)}")
    cfma_s(b, vK, vF1, vQ, vPre, tmp)
    return b

def k1_publish():
    t = vP; E = t + 12; tmp = vTmp
    g = B()
    g(f"s_lshl_b32 s{sK0}, s{sR}, 13")
    g(f"v_add_u32 v{tmp}, s{sK0}, v{vLBa}")
    g(f"v_lshrrev_b32 v{tmp+1}, 3, v{vLane}")
    g(f"v_cmp_ne_u32 vcc, 0, v{vNon+1}")
    g("s_cbranch_vccnz L_k1_nonce_ok")
    g(f"s_mov_b32 s{sSpin}, 0")
    g("L_k1_nonce_retry:")
    g(f"v_mov_b32 v{tmp+2}, 0")
    g(f"global_load_dwordx2 {v(vNon,2)}, v{tmp+2}, s[32:33] sc1", 'nocount')
    g("s_waitcnt vmcnt(0)", 'nocount')
    g(f"s_add_u32 s{sSpin}, s{sSpin}, 1")
    g(f"s_cmp_gt_u32 s{sSpin}, 40000")
    g("s_cbranch_scc1 L_k1_nonce_ok")
    g(f"v_cmp_ne_u32 vcc, 0, v{vNon+1}")
    g("s_cbranch_vccz L_k1_nonce_retry")
    g("L_k1_nonce_ok:")
    g(f"v_mov_b32 v{E+2}, v{vNon}\nv_mov_b32 v{E+3}, v{vNon+1}")
    g(f"v_cmp_eq_u32 vcc, s{sWm}, v{tmp+1}")
    g(f"s_and_saveexec_b64 {s(sEX,2)}, vcc")
    g(f"global_store_dwordx4 v{tmp}, {v(E,4)}, s[34:35] sc0 sc1")
    g(f"s_mov_b64 exec, {s(sEX,2)}")
    return g

def k1_lookback():
    b = B(); tmp = vTmp; t = vP
    H = vW_
    def loads(tok):
        b(f"s_sub_u32 s{sK0}, s{sR}, 1")
        b(f"s_lshl_b32 s{sK0}, s{sK0}, 13")
        b(f"v_lshrrev_b32 v{t}, 5, v{vLane}")
        b(f"v_lshlrev_b32 v{t}, 13, v{t}")
        b(f"v_sub_u32 v{t}, s{sK0}, v{t}")
        b(f"v_add_u32 v{t}, v{vLBa}, v{t}")
        for mm in range(8):
            if mm: b(f"v_subrev_u32 v{t}, 16384, v{t}")
            b(f"v_max_i32 v{t+1}, v{t}, v{vLBa}")
            b(f"global_load_dwordx4 {v(vU+4*mm,4)}, v{t+1}, s[34:35] sc1", tok)
    b(f"s_cmp_eq_u32 s{sR}, 0")
    b("s_cbranch_scc1 L_k1_lb_zero")
    b(f"s_mov_b32 s{sSpin}, 0")
    b("L_k1_lb_again:")
    loads('nocount')
    b("s_waitcnt vmcnt(0)", 'nocount')
    b(f"s_mov_b64 {s(sEX,2)}, -1")
    for mm in range(8):
        b(f"s_cmp_le_u32 s{sR}, {2*mm}")
        b("s_cbranch_scc1 L_k1_lb_checked")
        b(f"s_cmp_ge_u32 s{sR}, {2*mm+2}")
        b(f"s_cselect_b32 s{sT1}, 0, -1")
        b(f"v_cmp_eq_u32 vcc, v{vU+4*mm+2}, v{vNon}")
        b(f"v_cmp_eq_u32 {s(sT2,2)}, v{vU+4*mm+3}, v{vNon+1}")
        b(f"s_and_b64 vcc, vcc, {s(sT2,2)}")
        b(f"s_or_b32 vcc_hi, vcc_hi, s{sT1}")
        b(f"s_and_b64 {s(sEX,2)}, {s(sEX,2)}, vcc")
    b("L_k1_lb_checked:")
    b(f"s_cmp_eq_u64 {s(sEX,2)}, -1")
    b("s_cbranch_scc1 L_k1_lb_ok")
    b(f"s_add_u32 s{sSpin}, s{sSpin}, 1")
    b(f"s_cmp_gt_u32 s{sSpin}, 40000")
    b("s_cbranch_scc1 L_k1_lb_ok")
    b("s_sleep 4")
    b("s_branch L_k1_lb_again")
    b("L_k1_lb_ok:")
    b(f"v_mov_b32 v{H}, 0\nv_mov_b32 v{H+1}, 0")
    for mm in range(7, -1, -1):
        b(f"s_cmp_le_u32 s{sR}, {2*mm}")
        b(f"s_cbranch_scc1 L_k1_lb_h{mm}")
        b(f"s_cmp_ge_u32 s{sR}, {2*mm+2}")
        b(f"s_cselect_b32 s{sT3}, -1, 0")
        b(f"s_mov_b32 s{sT2}, -1")
        b(f"v_cndmask_b32 v{vU+4*mm}, 0, v{vU+4*mm}, {s(sT2,2)}")
        b(f"v_cndmask_b32 v{vU+4*mm+1}, 0, v{vU+4*mm+1}, {s(sT2,2)}")
        b(f"v_pk_fma_f32 {v(tmp,2)}, {v(vL256,2)}, {v(H,2)}, {v(vU+4*mm,2)} op_sel:[0,0,0] op_sel_hi:[0,1,1]")
        b(f"v_pk_fma_f32 {v(H,2)}, {v(vL256,2)}, {v(H,2)}, {v(tmp,2)} op_sel:[1,1,0] op_sel_hi:[1,0,1] neg_lo:[1,0,0]")
        b(f"L_k1_lb_h{mm}:")
    b(f"v_mov_b32 v{vPre}, v{H}\nv_mov_b32 v{vPre+1}, v{H+1}")
    b(f"v_permlane32_swap_b32 v{H}, v{vPre}")
    b(f"v_permlane32_swap_b32 v{H+1}, v{vPre+1}")
    cfma(b, t, vL128, vPre, H, tmp)
    cfma(b, vQ, vG, t, vK, tmp)
    b("s_branch L_k1_lb_done")
    b("L_k1_lb_zero:")
    b(f"v_mov_b32 v{vQ}, v{vK}\nv_mov_b32 v{vQ+1}, v{vK+1}")
    b("L_k1_lb_done:")
    return b

def k1_final():
    b = B()
    tmp = vTmp
    prev = vQ
    for t in range(16):
        r = reg_of_t(t)
        u = vU + 2 * r
        cfma_sr(b, u, vL, prev, aRE + r, aIM + r, tmp)
        prev = u
    for r in range(16):
        u = vU + 2 * r
        tp = vP + 2 * (r % 4)
        b(f"v_pk_mul_f32 {v(tp,2)}, {v(vC2,2)}, {v(u,2)} op_sel:[0,0] op_sel_hi:[1,0]")
        b(f"v_pk_fma_f32 {v(u,2)}, {v(vC2,2)}, {v(u,2)}, {v(tp,2)} op_sel:[1,1,0] op_sel_hi:[0,1,1] neg_lo:[1,0,0]")
    for k in range(8):
        b(f"v_cvt_pk_bf16_f32 v{aRE+k}, v{vU+4*k}, v{vU+4*k+2}")
    for h in range(2):
        b(f"ds_write_b128 v{vImgW}, {v(aRE+4*h,4)} offset:{IMG + h*16}", "img")
    for k in range(8):
        b(f"v_cvt_pk_bf16_f32 v{aRE+8+k}, -v{vU+4*k+1}, -v{vU+4*k+3}")
    for h in range(2):
        b(f"ds_write_b128 v{vImgW}, {v(aRE+8+4*h,4)} offset:{IMG + 2560 + h*16}", "img")
    b(f"s_lshl_b32 s{sT2}, s{sS}, 12")
    b(f"s_add_u32 s{sT1}, s{sHFb}, s{sT2}")
    b.wait('lg', "img")
    for m in range(2):
        for kk in range(2):
            r = aIM + (2*m + kk) * 4
            for rd in range(2):
                b(f"ds_read_b64_tr_b16 {v(r+2*rd,2)}, v{vImgR} offset:{IMG + (m*32 + 16*kk + 4*rd)*80}")
    for m in range(2):
        for kk in range(2):
            r = aIM + (2*m + kk) * 4
            b(f"s_add_u32 s{sT2}, s{sT1}, {(2*m+kk)*1024}")
            b(f"buffer_store_dwordx4 {v(r,4)}, v{vL16o}, {s(sHF,4)}, s{sT2} offen {STF}")
    return b

def gen_k1():
    global STV
    STV = 15
    pro = k1_head()
    S = k1_S()
    stamp_end(S, sWave, "s[34:35]", 0x2000000, vLane, 3, 14)
    S("s_endpgm")
    Fm = B(); Fm("L_k1_F:")
    Fm(f"s_cmp_ge_u32 s{sS}, 14")
    Fm("s_cbranch_scc1 L_k1_Fn")
    f1 = k1_F(True)
    stamp_end(f1, sWave, "s[34:35]", 0x2000000, vLane, 3, 14)
    f1("s_endpgm")
    Fn = B(); Fn("L_k1_Fn:")
    f2 = k1_F(False)
    stamp_end(f2, sWave, "s[34:35]", 0x2000000, vLane, 3, 14)
    f2("L_k1_end:")
    f2("s_endpgm")
    def path(prefix, body, label=None):
        allops = insert_waits(copy.deepcopy(prefix) + body)
        if label:
            idx = [i for i, o in enumerate(allops) if o.text == label][0]
            allops = allops[idx:]
        return insert_hazard_nops(allops)
    out = path([], pro.ops + S.ops)
    out += path(pro.ops, Fm.ops + f1.ops, "L_k1_F:")
    out += path(pro.ops + Fm.ops, Fn.ops + f2.ops, "L_k1_Fn:")
    return out

def gen_k2():
    global STV
    STV = 9
    b = B()
    D = 15
    DW = int(opts.get('k2dw', 5))
    sWv, sH, sMt, sN = 40, 41, 42, 43
    sA, sCR, sCI, sW2 = 44, 48, 76, 80
    t0, t1, t2 = 52, 53, 54
    sS0, sF0 = 56, 57
    sLw = 58
    sCoff, sWoff2 = 59, 62
    vH0, vH1 = 4, 5
    vCe, vCo, vWa, vWb = 2, 3, 60, 61
    vPp, vTp = 48, 52
    accS, accF, vBuf = 64, 128, 192
    vNon2 = 14
    vTau = 8
    vG1, vG2 = 10, 12
    PITCH = 256
    LRED = 0
    LSTG = 65536
    stamp_begin(b)
    b("s_load_dwordx2 s[4:5], s[0:1], 0")
    b("s_load_dwordx4 s[12:15], s[0:1], 40")
    b("s_load_dwordx2 s[6:7], s[0:1], 64")
    b("s_load_dwordx2 s[16:17], s[0:1], 88")
    b("s_load_dwordx2 s[8:9], s[0:1], 104")
    b("s_load_dwordx2 s[10:11], s[0:1], 120")
    b("s_cmp_ge_u32 s2, 256")
    b("s_cbranch_scc1 L_k2_end")
    b("v_lshrrev_b32 v6, 6, v0")
    b("v_and_b32 v1, 63, v0")
    b(f"v_readfirstlane_b32 s{sWv}, v6")
    b(f"s_and_b32 s{sH}, s2, 1")
    b(f"s_bfe_u32 s{t0}, s2, 0x20001")
    b(f"s_lshr_b32 s{t1}, s2, 3")
    b(f"s_and_b32 s{sMt}, s{t1}, 3")
    b(f"s_lshl_b32 s{t0}, s{t0}, 2")
    b(f"s_add_u32 s{sMt}, s{sMt}, s{t0}")
    b(f"s_lshr_b32 s{sN}, s{t1}, 2")
    b("v_and_b32 v6, 7, v1")
    b("v_lshrrev_b32 v7, 4, v1")
    b("v_xor_b32 v6, v6, v7")
    b("v_lshlrev_b32 v6, 4, v6")
    b("v_lshrrev_b32 v7, 3, v1")
    b("v_lshlrev_b32 v7, 10, v7")
    b(f"v_add_u32 v{vCe}, v6, v7")
    b(f"v_xor_b32 v{vCo}, 64, v{vCe}")
    b("v_bfe_u32 v6, v1, 4, 1")
    b("v_lshlrev_b32 v6, 2, v6")
    b("v_and_b32 v29, 7, v1")
    b("v_xor_b32 v6, v6, v29")
    b("v_lshlrev_b32 v6, 4, v6")
    b(f"v_add_u32 v{vWa}, v6, v7")
    b(f"v_add_u32 v{vWb}, {8192 - 1024}, v{vWa}")
    b(f"s_lshl_b32 s{sCoff}, s{sN}, 16")
    b(f"s_lshl_b32 s{t0}, s{sH}, 9")
    b(f"s_add_u32 s{sCoff}, s{sCoff}, s{t0}")
    b(f"s_lshl_b32 s{t0}, s{sWv}, 7")
    b(f"s_add_u32 s{sCoff}, s{sCoff}, s{t0}")
    b(f"s_lshl_b32 s{t0}, s{sH}, 2")
    b(f"s_add_u32 s{t0}, s{t0}, s{sWv}")
    b(f"s_mul_i32 s{sWoff2}, s{t0}, {14*16*1024}")
    b(f"s_lshl_b32 s{t0}, s{sN}, 7")
    b(f"s_add_u32 s{sWoff2}, s{sWoff2}, s{t0}")
    b(f"s_mul_i32 s{sLw}, s{sWv}, 24576")
    b(f"s_add_u32 s{sLw}, s{sLw}, {LSTG}")
    b(f"s_xor_b32 s{t0}, s{sH}, 1")
    b(f"s_lshl_b32 s{t0}, s{t0}, 1")
    b(f"s_lshl_b32 s{t1}, s{sMt}, 2")
    b(f"s_add_u32 s{t0}, s{t0}, s{t1}")
    b(f"s_mul_i32 s{t0}, s{t0}, {176*1024}")
    b("v_lshlrev_b32 v6, 4, v1")
    b(f"v_add_u32 v{vH0}, s{t0}, v6")
    b(f"v_add_u32 v{vH1}, {176*1024}, v{vH0}")
    b(f"s_lshl_b32 s{sS0}, s{sH}, 2")
    b(f"s_add_u32 s{sS0}, s{sS0}, s{sWv}")
    b(f"s_lshl_b32 s{sS0}, s{sS0}, 13")
    b(f"s_lshl_b32 s{sF0}, s{sH}, 2")
    b(f"s_add_u32 s{sF0}, s{sF0}, s{sWv}")
    b(f"s_mul_i32 s{sF0}, s{sF0}, {14*1024}")
    b(f"s_add_u32 s{sF0}, s{sF0}, {64*1024}")
    b("s_waitcnt lgkmcnt(0)")
    srd(b, sA, 10, WS_USED)
    srd(b, sCR, 12, 512*1024)
    srd(b, sCI, 14, 512*1024)
    srd(b, sW2, 16, 1792*1024)
    steps = [('S', i) for i in range(8)] + [('F', i) for i in range(14)]
    NS = len(steps)
    seq = [(1, st) for st in range(NS)] + [(2, st) for st in range(NS)]
    def hreg(idx, k):
        sl = idx % D
        if sl < 8: return v(vBuf + sl * 8 + k * 4, 4)
        return a(200 + (sl - 8) * 8 + k * 4, 4)
    def dma_c(m):
        for aa in range(8):
            b(f"s_add_u32 m0, s{sLw}, {m*8192 + aa*1024}")
            b(f"s_add_u32 s{t2}, s{sCoff}, {aa*8192}")
            b(f"buffer_load_dwordx4 v{vCe if aa % 2 == 0 else vCo}, {s(sCR if m == 0 else sCI,4)}, s{t2} offen lds", f"c{m}")
    def wslot(i): return (16384 + (i % 4) * 2048) if i < 4 else ((i - 4) % 8) * 2048
    def dma_f(i):
        b(f"s_add_u32 m0, s{sLw}, {wslot(i)}")
        b(f"s_add_u32 s{t2}, s{sWoff2}, {i*16*1024}")
        b(f"buffer_load_dwordx4 v{vWa}, {s(sW2,4)}, s{t2} offen lds", f"f{i}")
        b(f"buffer_load_dwordx4 v{vWb}, {s(sW2,4)}, s{t2} offen offset:1024 lds", f"f{i}")
    def hloads(idx):
        ps, st = seq[idx]
        kind, i = steps[st]
        sb = sS0 if kind == 'S' else sF0
        if ps == 2 and st == 0:
            b(f"s_lshl_b32 s{t0}, s{sH}, 2")
            b(f"s_sub_u32 s{t0}, s{t0}, 2")
            b(f"s_mul_i32 s{t0}, s{t0}, {176*1024}")
            b(f"v_add_u32 v{vH0}, s{t0}, v{vH0}")
            b(f"v_add_u32 v{vH1}, s{t0}, v{vH1}")
        b(f"s_add_u32 s{t1}, s{sb}, {i*1024}")
        b(f"buffer_load_dwordx4 {hreg(idx,0)}, v{vH0}, {s(sA,4)}, s{t1} offen")
        b(f"buffer_load_dwordx4 {hreg(idx,1)}, v{vH1}, {s(sA,4)}, s{t1} offen")
    def wreads_s():
        for j in range(8):
            m = (j >> 1) & 1; ksp = 2 * (j >> 2) + (j & 1)
            if j == 0: b.wait('vm', "c0")
            if j == 2: b.wait('vm', "c1")
            for aa in range(2):
                b(f"ds_read_b128 {a(8*j+4*aa,4)}, v{vPp+ksp} offset:{m*8192 + aa*4096}", f"wr{j}")
    def wreads_f(i):
        st = 8 + i
        b.wait('vm', f"f{i}")
        for aa in range(2):
            for rd in range(2):
                b(f"ds_read_b64_tr_b16 {a(8*st+4*aa+2*rd,2)}, v{vTp+aa} offset:{wslot(i) + rd*8*128}", f"wr{st}")
    dma_c(0)
    hloads(0); hloads(1)
    dma_c(1)
    b("v_and_b32 v6, 31, v1")
    b("v_lshlrev_b32 v6, 7, v6")
    b(f"v_add_u32 v6, s{sLw}, v6")
    b("v_lshrrev_b32 v7, 5, v1")
    b("v_bfe_u32 v29, v1, 1, 3")
    b("v_xor_b32 v29, v7, v29")
    for k in range(4):
        b(f"v_xor_b32 v7, {2*k}, v29")
        b(f"v_lshl_add_u32 v{vPp+k}, v7, 4, v6")
    tr_pattern(b, vTp, 4, 54)
    b(f"v_add_u32 v{vTp}, s{sLw}, v{vTp}")
    b(f"v_add_u32 v{vTp+1}, s{sLw}, v{vTp+1}")
    b("v_bfe_u32 v6, v1, 3, 2")
    b("v_and_b32 v7, 7, v1")
    b(f"v_lshl_add_u32 v{vTau}, v7, 2, v6")
    b(f"s_xor_b32 s{t0}, s{sH}, 1")
    b(f"s_lshl_b32 s{t0}, s{t0}, 6")
    b(f"s_lshl_b32 s{t1}, s{sMt}, 7")
    b(f"s_add_u32 s{t0}, s{t0}, s{t1}")
    b(f"v_add_u32 v6, s{t0}, v{vTau}")
    b("v_lshlrev_b32 v6, 3, v6")
    b(f"v_add_u32 v6, {G_OFF}, v6")
    b(f"global_load_dwordx2 v[10:11], v6, s[10:11]")
    b(f"global_load_dwordx2 v[12:13], v6, s[10:11] offset:256")
    b(f"s_lshl_b32 s{t0}, s{sH}, 7")
    b(f"s_sub_u32 s{t0}, s{t0}, 64")
    b(f"s_lshl_b32 s{t0}, s{t0}, 3")
    b(f"v_add_u32 v6, s{t0}, v6")
    b(f"global_load_dwordx2 v[16:17], v6, s[10:11]")
    b(f"global_load_dwordx2 v[18:19], v6, s[10:11] offset:256")
    b(f"v_mov_b32 v6, {NONCE_OFF}")
    b(f"global_load_dwordx2 {v(vNon2,2)}, v6, s[10:11]")
    for idx in range(2, 8): hloads(idx)
    for i in range(4): dma_f(i)
    for idx in range(8, D): hloads(idx)
    vWr, vRd = 20, 21
    vWrq = 56
    b(f"s_lshl_b32 s{t0}, s{sWv}, 14")
    b(f"v_lshlrev_b32 v29, 8, v{vTau}")
    b(f"v_add_u32 v29, s{t0}, v29")
    b("v_lshrrev_b32 v6, 5, v1")
    b("v_and_b32 v7, 7, v1")
    b("v_xor_b32 v6, v6, v7")
    for q in range(4):
        b(f"v_xor_b32 v7, {2*q}, v6")
        b(f"v_lshl_add_u32 v{vWrq+q}, v7, 4, v29")
    b("v_lshrrev_b32 v22, 4, v0")
    b("v_and_b32 v23, 15, v0")
    b("v_lshrrev_b32 v6, 6, v0")
    b("v_xor_b32 v6, v6, v23")
    b(f"v_lshlrev_b32 v{vRd}, 8, v22")
    b(f"v_lshl_add_u32 v{vRd}, v6, 4, v{vRd}")
    b(f"v_xor_b32 v{vWr}, 64, v{vRd}")
    vXch = 24
    b(f"v_lshlrev_b32 v{vXch}, 4, v0")
    b(f"s_mul_i32 s{t0}, s2, 24576")
    b(f"s_add_u32 s{t0}, s{t0}, {XCH_OFF}")
    b(f"v_add_u32 v25, s{t0}, v{vXch}")
    b(f"s_xor_b32 s{t1}, s2, 1")
    b(f"s_mul_i32 s{t0}, s{t1}, 24576")
    b(f"s_add_u32 s{t0}, s{t0}, {XCH_OFF}")
    b(f"v_add_u32 v26, s{t0}, v{vXch}")
    wreads_s()

    def mfmas(idx):
        ps, st = seq[idx]
        kind, i = steps[st]
        acc = accS if kind == 'S' else accF
        out = []
        for aa in range(2):
            for bb in range(2):
                dreg = v(acc + (aa*2 + bb) * 16, 16)
                c = dreg if i else "0"
                out.append(f"v_mfma_f32_32x32x16_bf16 {dreg}, {a(8*st+4*aa,4)}, {hreg(idx,bb)}, {c}")
        return out

    def reduce_write(g0, g1):
        for aa in range(2):
            for bb in range(2):
                g = g0 if bb == 0 else g1
                S = accS + (aa*2+bb)*16; Fq = accF + (aa*2+bb)*16
                for p in range(8):
                    b(f"v_pk_mul_f32 {v(S+2*p,2)}, {v(S+2*p,2)}, {v(g,2)} op_sel_hi:[1,0]")
                for p in range(8):
                    b(f"v_pk_fma_f32 {v(S+2*p,2)}, {v(Fq+2*p,2)}, {v(g,2)}, {v(S+2*p,2)} op_sel:[0,1,0] op_sel_hi:[1,1,1]")
                for q in range(4):
                    b(f"ds_write_b128 v{vWrq+q}, {v(S+4*q,4)} offset:{LRED + bb*32*PITCH + aa*128}", "red")
        b.wait('lg', "red")
        b("s_barrier")
    def reduce_read(dst, gran=None):
        for p in range(4):
            for w in range(4):
                b(f"ds_read_b128 {v(dst+16*p+4*w,4)}, v{vRd if p % 2 == 0 else vWr} offset:{LRED + w*64*PITCH + p*16*PITCH}")
        for p in range(4):
            r = dst + 16*p
            b(f"v_pk_add_f32 {v(r,2)}, {v(r,2)}, {v(r+4,2)}")
            b(f"v_pk_add_f32 {v(r+2,2)}, {v(r+2,2)}, {v(r+6,2)}")
            b(f"v_pk_add_f32 {v(r+8,2)}, {v(r+8,2)}, {v(r+12,2)}")
            b(f"v_pk_add_f32 {v(r+10,2)}, {v(r+10,2)}, {v(r+14,2)}")
            if gran is None:
                b(f"v_pk_add_f32 {v(r,2)}, {v(r,2)}, {v(r+8,2)}")
                b(f"v_pk_add_f32 {v(r+2,2)}, {v(r+2,2)}, {v(r+10,2)}")
            else:
                for e in range(4):
                    u = 4 * p + e
                    b(f"v_add_f32 v{gran + 4*(u//3) + u%3}, v{r+e}, v{r+8+e}")

    total = len(seq)
    for idx in range(total):
        ps, st = seq[idx]
        kind, i = steps[st]
        mf = mfmas(idx)
        if ps == 1: b.wait('lg', f"wr{st}")
        b(mf[0])
        if ps == 1:
            fi = st - 8 + DW
            if 4 <= fi < 14:
                if fi == 4: pass
                dma_f(fi)
        b(mf[1])
        if ps == 1 and 8 <= st + 1 < NS:
            wreads_f(st + 1 - 8)
        b(mf[2])
        n0 = len(b.ops)
        if idx + D < total: hloads(idx + D)
        ld = b.ops[n0:]; del b.ops[n0:]
        cut = [j for j, o in enumerate(ld) if o.kind == 'vmem']
        if cut:
            b.ext(ld[:cut[0] + 1]); b(mf[3]); b.ext(ld[cut[0] + 1:])
        else:
            b(mf[3])
        if STAMP >= 2 and st in (0, 3, 7, 11, 15, 19): stamp(b, 8 + (ps - 1) * 8 + (0, 3, 7, 11, 15, 19).index(st))
        if ps == 1 and st == NS - 1:
            stamp(b, 1)
            reduce_write(vG1, vG2)
            GRN = accS
            reduce_read(accF, GRN)
            for gq in range(6):
                b(f"v_mov_b32 v{GRN+4*gq+3}, v{vNon2}")
            b(f"v_mov_b32 v{GRN+21}, 0\nv_mov_b32 v{GRN+22}, 0")
            for gq in range(6):
                if gq: b(f"v_add_u32 v29, {gq*4096}, v25")
                b(f"global_store_dwordx4 v{29 if gq else 25}, {v(GRN+4*gq,4)}, s[10:11] sc0 sc1")
            stamp(b, 2)
        if ps == 2 and st == 5:
            b("s_barrier")
        if ps == 2 and st == 8:
            b(f"s_lshl_b32 s{t0}, s{sMt}, 7")
            b(f"s_lshl_b32 s{t1}, s{sH}, 6")
            b(f"s_add_u32 s{t0}, s{t0}, s{t1}")
            b(f"v_add_u32 v30, s{t0}, v22")
            b(f"s_lshl_b32 s{t1}, s{sN}, 7")
            b("v_lshlrev_b32 v31, 10, v30")
            b("v_lshl_add_u32 v31, v23, 3, v31")
            b(f"v_add_u32 v31, s{t1}, v31")
            for p in range(4):
                if p: b(f"v_add_u32 v31, {16*1024}, v31")
                b(f"global_load_dwordx2 {v(32+2*p,2)}, v31, s[4:5]")
            b("v_lshlrev_b32 v31, 3, v23")
            b(f"v_add_u32 v31, s{t1}, v31")
            b(f"global_load_dwordx2 v[40:41], v31, s[6:7]")
            b("v_lshlrev_b32 v31, 3, v30")
            b(f"v_add_u32 v31, {G_OFF}, v31")
            for p in range(4):
                b(f"global_load_dword v{42+p}, v31, s[10:11] offset:{p*128}")
        if ps == 2 and st == 15:
            for gq in range(6):
                if gq: b(f"v_add_u32 v29, {gq*4096}, v26")
                b(f"global_load_dwordx4 {a(176+4*gq,4)}, v{29 if gq else 26}, s[10:11] sc1", "prt")
        if ps == 2 and st == 20:
            b.wait('vm', "prt")
            b(f"s_mov_b32 s{t0}, 0")
            b("L_k2_chk:")
            b("s_mov_b64 s[60:61], -1")
            for gq in range(6):
                b(f"v_accvgpr_read_b32 v46, a{176+4*gq+3}")
                b(f"v_cmp_eq_u32 vcc, v46, v{vNon2}")
                b("s_and_b64 s[60:61], s[60:61], vcc")
            b("s_cmp_eq_u64 s[60:61], -1")
            b("s_cbranch_scc1 L_k2_ok")
            b(f"s_add_u32 s{t0}, s{t0}, 1")
            b(f"s_cmp_gt_u32 s{t0}, 40000")
            b("s_cbranch_scc1 L_k2_ok")
            for gq in range(6):
                if gq: b(f"v_add_u32 v29, {gq*4096}, v26")
                b(f"global_load_dwordx4 {a(176+4*gq,4)}, v{29 if gq else 26}, s[10:11] sc1", 'nocount')
            b("s_waitcnt vmcnt(0)", 'nocount')
            b("s_branch L_k2_chk")
            b("L_k2_ok:")
    stamp(b, 3)
    reduce_write(16, 18)
    reduce_read(accF)
    b(f"s_lshl_b32 s{t1}, s{sN}, 8")
    b("v_lshlrev_b32 v2, 11, v30")
    b("v_lshl_add_u32 v2, v23, 4, v2")
    b(f"v_add_u32 v2, s{t1}, v2")
    b("v_lshlrev_b32 v4, 16, v40\nv_and_b32 v5, 0xffff0000, v40\nv_lshlrev_b32 v6, 16, v41\nv_and_b32 v7, 0xffff0000, v41")
    tmp = accS
    OUTF = opts.get('outf', '').replace('+', ' ')
    for p in range(4):
        r = accF + 16*p
        xs = 32 + 2*p
        tp = tmp + 8*p
        b(f"v_lshlrev_b32 v{tp}, 16, v{xs}\nv_and_b32 v{tp+1}, 0xffff0000, v{xs}\nv_lshlrev_b32 v{tp+2}, 16, v{xs+1}\nv_and_b32 v{tp+3}, 0xffff0000, v{xs+1}")
        b(f"v_pk_mul_f32 {v(tp,2)}, {v(tp,2)}, v[4:5]")
        b(f"v_pk_mul_f32 {v(tp+2,2)}, {v(tp+2,2)}, v[6:7]")
        b(f"v_cvt_pk_bf16_f32 v{tp+4}, v{tp}, v{tp+1}")
        b(f"v_cvt_pk_bf16_f32 v{tp+5}, v{tp+2}, v{tp+3}")
        b(f"v_lshlrev_b32 v{tp}, 16, v{tp+4}\nv_and_b32 v{tp+1}, 0xffff0000, v{tp+4}\nv_lshlrev_b32 v{tp+2}, 16, v{tp+5}\nv_and_b32 v{tp+3}, 0xffff0000, v{tp+5}")
        for e in range(4):
            u = 4 * p + e
            b(f"v_accvgpr_read_b32 v{r+4+e}, a{176 + 4*(u//3) + u%3}")
        b(f"v_pk_add_f32 {v(r,2)}, {v(r,2)}, {v(r+4,2)}")
        b(f"v_pk_add_f32 {v(r+2,2)}, {v(r+2,2)}, {v(r+6,2)}")
        for e in range(4):
            b(f"v_fma_f32 v{r+e}, v{42+p}, v{tp+e}, v{r+e}")
        if p: b(f"v_add_u32 v2, {16*2048}, v2")
        b(f"global_store_dwordx4 v2, {v(r,4)}, s[8:9] {OUTF}")
    stamp(b, 4)
    stamp_end(b, sWv, "s[10:11]", 0x2100000, 1)
    b("L_k2_end:")
    b("s_endpgm")
    return finalize(b.ops)

def header():
    ref = open('cdna_kernels/%s.s.ref' % NAME).read().split('\n')
    hdr = []
    for line in ref:
        if not line.startswith(';'): break
        if '@launch' in line or 'Override launch' in line or 'grid=ceil' in line: continue
        hdr.append(line)
    hdr.append(f"; @launch kernel={K1} grid=(256,1,1) block=(512,1,1) lds=163840")
    hdr.append(f"; @launch kernel={K2} grid=(256,1,1) block=(256,1,1) lds=163840")
    return '\n'.join(hdr)

def kd(name, nv, acc_off, nsg):
    return f""".amdhsa_kernel {name}
  .amdhsa_next_free_vgpr {nv}
  .amdhsa_next_free_sgpr {nsg}
  .amdhsa_accum_offset {acc_off}
  .amdhsa_group_segment_fixed_size 0
  .amdhsa_kernarg_size 128
  .amdhsa_user_sgpr_count 2
  .amdhsa_user_sgpr_kernarg_segment_ptr 1
  .amdhsa_system_sgpr_workgroup_id_x 1
  .amdhsa_float_denorm_mode_32 3
.end_amdhsa_kernel"""

def main():
    k1 = gen_k1()
    k2 = gen_k2()
    out = [header(), '.amdgcn_target "amdgcn-amd-amdhsa--gfx950"', '.text']
    out += [f".globl {K1}", ".p2align 8", f".type {K1},@function", f"{K1}:", render(k1)]
    out += [f".globl {K2}", ".p2align 8", f".type {K2},@function", f"{K2}:", render(k2)]
    out += ['.section .rodata,"a"', '.p2align 6', kd(K1, 256, 128, 102), '.p2align 6', kd(K2, 512, 256, 102)]
    print('\n'.join(out))

main()
```

```python
import sys, copy
sys.path.insert(0, 'dev')
from ir import *

NAME = "gated_mix__ssm_conv_s5__dense_activation_silu__prompt"
K1 = "gm_k1_kernel"
K2 = "gm_k2_kernel"

HF_OFF = 0
HF_SIZE = 64 * 176 * 1024
W2F_OFF = HF_SIZE
W2F_SIZE = 16 * 176 * 1024
G_OFF = W2F_OFF + W2F_SIZE
E_OFF = G_OFF + 2048 * 8
E_SIZE = 16 * 16 * 512
NONCE_OFF = E_OFF + E_SIZE
FLG_OFF = NONCE_OFF + 256
XCH_OFF = FLG_OFF + 256 * 64
WS_USED = XCH_OFF + 256 * 24576

LOG2E = 0x3fb8aa3b
INV2PI = 0x3e22f983

RB, XS, WR = 0, 65536, 114688
SC = 32768
IMG = 36864

opts = dict(a.split('=') for a in sys.argv[1:] if '=' in a)
STAMP = int(opts.get('stamp', 0))
STF = "sc0 sc1"

def v(n, k=1): return f"v{n}" if k == 1 else f"v[{n}:{n+k-1}]"
def a(n, k=1): return f"a{n}" if k == 1 else f"a[{n}:{n+k-1}]"
def s(n, k=1): return f"s{n}" if k == 1 else f"s[{n}:{n+k-1}]"


STV = 15
def reg_of_t(t): return (t >> 2) + 4 * (t & 3)
def srd(b, dst, ptr, size):
    b(f"s_mov_b32 s{dst}, s{ptr}")
    b(f"s_mov_b32 s{dst+1}, s{ptr+1}")
    b(f"s_mov_b32 s{dst+2}, {size}")
    b(f"s_mov_b32 s{dst+3}, 0x20000")


def cexp(b, dst, n_src, va, vang, t0):
    b(f"v_mul_f32 v{t0}, {n_src}, v{va}")
    b(f"v_mul_f32 v{t0+1}, {n_src}, v{vang}")
    b(f"v_exp_f32 v{t0}, v{t0}")
    b(f"v_rndne_f32 v{t0+2}, v{t0+1}")
    b(f"v_sub_f32 v{t0+1}, v{t0+1}, v{t0+2}")
    b(f"v_cos_f32 v{dst}, v{t0+1}")
    b(f"v_sin_f32 v{dst+1}, v{t0+1}")
    b(f"v_mul_f32 v{dst}, v{t0}, v{dst}")
    b(f"v_mul_f32 v{dst+1}, v{t0}, v{dst+1}")


def cfma(b, d, l, h, u, tmp):
    b(f"v_pk_fma_f32 {v(tmp,2)}, {v(l,2)}, {v(h,2)}, {v(u,2)} op_sel:[0,0,0] op_sel_hi:[0,1,1]")
    b(f"v_pk_fma_f32 {v(d,2)}, {v(l,2)}, {v(h,2)}, {v(tmp,2)} op_sel:[1,1,0] op_sel_hi:[1,0,1] neg_lo:[1,0,0]")


def cfma_s(b, d, l, h, u, tmp):
    b(f"v_fma_f32 v{tmp}, v{l}, v{h}, v{u}")
    b(f"v_fma_f32 v{tmp+1}, v{l}, v{h+1}, v{u+1}")
    b(f"v_fma_f32 v{d}, -v{l+1}, v{h+1}, v{tmp}")
    b(f"v_fma_f32 v{d+1}, v{l+1}, v{h}, v{tmp+1}")


def stamp(b, idx):
    if not STAMP: return
    g = B()
    g("s_memtime s[100:101]")
    g("s_waitcnt lgkmcnt(0)")
    g(f"v_writelane_b32 v{STV}, s100, {idx}")
    b.ext(g)


def stamp_begin(b):
    if not STAMP: return
    b(f"v_mov_b32 v{STV}, 0")
    b("s_memrealtime s[100:101]")
    b("s_waitcnt lgkmcnt(0)")
    b(f"v_writelane_b32 v{STV}, s100, 62")
    stamp(b, 0)


def stamp_end(b, wave, ws, off, lane, sh=2, tv=254):
    if not STAMP: return
    b("s_memrealtime s[100:101]")
    b("s_waitcnt lgkmcnt(0)")
    b(f"v_writelane_b32 v{STV}, s100, 63")
    b(f"s_lshl_b32 s100, s2, {sh}")
    b(f"s_add_u32 s100, s100, s{wave}")
    b(f"s_lshl_b32 s100, s100, 8")
    b(f"s_add_u32 s100, s100, {off}")
    b(f"v_lshlrev_b32 v{tv}, 2, v{lane}")
    b(f"v_add_u32 v{tv}, s100, v{tv}")
    b(f"global_store_dword v{tv}, v{STV}, {ws}")


vLane = 1
def tr_pattern(b, dst, hfmul, t):
    L = vLane
    b(f"v_lshrrev_b32 v{t}, 5, v{L}")
    b(f"v_mul_u32_u24 v{t}, {hfmul}, v{t}")
    b(f"v_bfe_u32 v{t+1}, v{L}, 2, 2")
    b(f"v_add_u32 v{t}, v{t}, v{t+1}")
    b(f"v_lshlrev_b32 v{t}, 7, v{t}")
    b(f"v_bfe_u32 v{t+1}, v{L}, 3, 1")
    b(f"v_lshlrev_b32 v{t+1}, 6, v{t+1}")
    b(f"v_bfe_u32 v{t+2}, v{L}, 4, 1")
    b(f"v_lshlrev_b32 v{t+2}, 5, v{t+2}")
    b(f"v_and_b32 v{t+3}, 3, v{L}")
    b(f"v_lshlrev_b32 v{t+3}, 3, v{t+3}")
    b(f"v_add3_u32 v{t}, v{t}, v{t+2}, v{t+3}")
    b(f"v_add_u32 v{dst}, v{t}, v{t+1}")
    b(f"v_xor_b32 v{t+1}, 64, v{t+1}")
    b(f"v_add_u32 v{dst+1}, v{t}, v{t+1}")

SLOT = 24576
NSLOT = 4
WB0 = 98304
SCR = 73728
SC = 0
IMG = 1024
def wblock_lds(q):
    if q < 8: return WB0 + q * 8192
    return (q - 8) * 8192

sX, sBRE, sBIM, sW1, sHF = 36, 40, 44, 48, 52
sWave, sWm, sR, sS, sRho = 60, 61, 62, 63, 56
sLdsX, sLdsB = 64, 65
sT0, sT1, sT2, sT3 = 68, 69, 70, 71
sWL = 72
sM1, sM2, sM3 = 80, 82, 84
sHFb, sK0, sEX = 86, 87, 88
sLo = 90
sSpin, sU = 98, 99

DBGT = int(opts.get('dbgt', 0))
def dbgt_begin(b):
    if not DBGT: return
    b("s_memrealtime s[100:101]")
    b("s_waitcnt lgkmcnt(0)")
    b("s_not_b32 s101, s100")
def dbgt_end(b, dbg, vt, k2=False):
    if not DBGT: return
    b("s_mov_b32 s99, s101")
    b("s_memrealtime s[100:101]")
    b("s_waitcnt lgkmcnt(0)")
    b(f"v_mov_b32 v{vt}, 0")
    b(f"v_mov_b32 v{vt+1}, s99")
    b(f"v_mov_b32 v{vt+2}, s100")
    b("s_mov_b64 exec, 1")
    b(f"global_atomic_umax v{vt}, v{vt+1}, {dbg} offset:16")
    b(f"global_atomic_umax v{vt}, v{vt+2}, {dbg} offset:20")
    if k2:
        b(f"global_load_dwordx2 {v(vt+2,2)}, v{vt}, {dbg} offset:-496 sc1")
        b("s_waitcnt vmcnt(0)")
        b(f"global_store_dwordx2 v{vt}, {v(vt+2,2)}, {dbg} offset:8")
    b("s_mov_b64 exec, -1")

def k1_head():
    b = B()
    dbgt_begin(b)
    stamp_begin(b)
    b("s_load_dwordx16 s[4:19], s[0:1], 0")
    b("s_load_dwordx16 s[20:35], s[0:1], 64")
    b("s_cmp_ge_u32 s2, 256")
    b("s_cbranch_scc1 L_k1_end")
    b("v_lshrrev_b32 v2, 6, v0")
    b(f"v_and_b32 v{vLane}, 63, v0")
    b(f"v_readfirstlane_b32 s{sWave}, v2")
    b(f"s_and_b32 s{sT0}, s2, 7")
    b(f"s_lshr_b32 s{sT1}, s2, 3")
    b(f"s_and_b32 s{sT2}, s{sT1}, 7")
    b(f"s_lshr_b32 s{sT3}, s{sT1}, 3")
    b(f"s_lshr_b32 s{sR}, s{sT0}, 2")
    b(f"s_lshl_b32 s{sR}, s{sR}, 3")
    b(f"s_add_u32 s{sR}, s{sR}, s{sT2}")
    b(f"s_and_b32 s{sS}, s{sT0}, 3")
    b(f"s_lshl_b32 s{sS}, s{sS}, 2")
    b(f"s_add_u32 s{sS}, s{sS}, s{sT3}")
    b(f"s_lshl_b32 s{sRho}, s{sT3}, 1")
    b(f"s_add_u32 s{sRho}, s{sRho}, s{sT2}")
    ROT1 = opts.get('rot1', 'none')
    if ROT1 == 'none': b(f"s_mov_b32 s{sRho}, 0")
    if ROT1 == 'half':
        b(f"s_and_b32 s{sRho}, s{sRho}, 1")
        b(f"s_lshl_b32 s{sRho}, s{sRho}, 2")
    if ROT1 == 'two':
        b(f"s_and_b32 s{sRho}, s{sRho}, 3")
        b(f"s_lshl_b32 s{sRho}, s{sRho}, 1")
    b(f"s_and_b32 s{sWm}, s{sWave}, 3")
    b(f"s_lshl_b32 s{sLdsX}, s{sWm}, 12")
    b(f"s_lshl_b32 s{sLdsB}, s{sWm}, 11")
    b(f"s_lshl_b32 s{sHFb}, s{sR}, 2")
    b(f"s_add_u32 s{sHFb}, s{sHFb}, s{sWm}")
    b(f"s_mul_i32 s{sHFb}, s{sHFb}, {176*1024}")
    b(f"s_cmp_ge_u32 s{sWave}, 4")
    b("s_cbranch_scc1 L_k1_F")
    return b

fXe, fXo, fB, fW = 2, 3, 4, 5
fPX, fTA, fTB, fTC, fL16 = 7, 11, 13, 16, 6 + 0
fPX, fTA, fTB, fTC = 8, 12, 14, 16
fPX, fTA, fTB, fTC, fL16 = 8, 12, 16, 18, 7
fE, fD = 20, 28
fS, fAcc = 32, 64

def dma(b, voff, srdn, soff, tok, imm=0):
    o = f" offset:{imm}" if imm else ""
    b(f"buffer_load_dwordx4 v{voff}, {s(srdn,4)}, {soff} offen{o} lds", tok)
def dma_x(b, i):
    b(f"s_add_u32 m0, s{sLdsX}, {(i % NSLOT) * SLOT}")
    for k in range(4):
        dma(b, fXe if k % 2 == 0 else fXo, sX, f"s{sLo+i}", f"x{i}", k * 1024)
def dma_B(b, i):
    b(f"s_add_u32 m0, s{sLdsB}, {(i % NSLOT) * SLOT + 16384}")
    dma(b, fB, sBRE, f"s{sLo+i}", f"B{i}")
    dma(b, fB, sBIM, f"s{sLo+i}", f"B{i}", 1024)
def dma_w(b, q):
    i, hh = q % 8, q // 8
    b(f"s_add_u32 m0, s{sLdsB}, {wblock_lds(q)}")
    if hh:
        b(f"s_add_u32 s{sT0}, s{sWL+i}, 128")
        so = f"s{sT0}"
    else:
        so = f"s{sWL+i}"
    dma(b, fW, sW1, so, f"w{q}")
    dma(b, fW + 1, sW1, so, f"w{q}", 1024)

def chunks_of(ops):
    ch = []; cur = []
    for o in ops:
        cur.append(o)
        if o.kind == 'vmem': ch.append(cur); cur = []
    if cur: ch.append(cur)
    return ch

def k1_F(ffn):
    b = B(); L = vLane
    t = fE
    for i in range(8):
        b(f"s_add_u32 s{sLo+i}, s{sRho}, {i}")
        b(f"s_and_b32 s{sLo+i}, s{sLo+i}, 7")
        b(f"s_lshl_b32 s{sLo+i}, s{sLo+i}, 7")
    b(f"v_and_b32 v{t}, 7, v{L}")
    b(f"v_lshrrev_b32 v{t+1}, 4, v{L}")
    b(f"v_xor_b32 v{t+2}, v{t}, v{t+1}")
    b(f"v_lshlrev_b32 v{t+2}, 4, v{t+2}")
    b(f"v_lshrrev_b32 v{t+3}, 3, v{L}")
    b(f"s_lshl_b32 s{sT0}, s{sR}, 17")
    b(f"s_lshl_b32 s{sT1}, s{sWm}, 15")
    b(f"s_add_u32 s{sT0}, s{sT0}, s{sT1}")
    b(f"v_lshlrev_b32 v{t}, 12, v{t+3}")
    b(f"v_add3_u32 v{fXe}, v{t}, v{t+2}, s{sT0}")
    b(f"v_xor_b32 v{fXo}, 64, v{fXe}")
    b(f"s_and_b32 s{sT0}, s{sWm}, 1")
    b(f"s_lshl_b32 s{sT0}, s{sT0}, 6")
    b(f"v_xor_b32 v{t+1}, s{sT0}, v{t+2}")
    b(f"s_lshl_b32 s{sT0}, s{sWm}, 13")
    b(f"s_lshl_b32 s{sT1}, s{sS}, 15")
    b(f"s_add_u32 s{sT0}, s{sT0}, s{sT1}")
    b(f"v_lshlrev_b32 v{t}, 10, v{t+3}")
    b(f"v_add3_u32 v{fB}, v{t}, v{t+1}, s{sT0}")
    b("s_waitcnt lgkmcnt(0)")
    srd(b, sX, 4, 2048*1024)
    srd(b, sBRE, 10, 512*1024)
    b(f"s_sub_u32 s{sBIM}, s12, 1024")
    b(f"s_subb_u32 s{sBIM+1}, s13, 0")
    b(f"s_mov_b32 s{sBIM+2}, {512*1024 + 1024}")
    b(f"s_mov_b32 s{sBIM+3}, 0x20000")
    if STAMP >= 2: stamp(b, 8)
    for i in range(3):
        dma_x(b, i); dma_B(b, i)
    if STAMP >= 2: stamp(b, 9)
    srd(b, sHF, 34, WS_USED)
    if ffn:
        srd(b, sW1, 24, 512*3584)
        b(f"v_bfe_u32 v{t+1}, v{L}, 4, 1")
        b(f"v_lshlrev_b32 v{t+1}, 2, v{t+1}")
        b(f"v_and_b32 v{t+3}, 7, v{L}")
        b(f"v_xor_b32 v{t+3}, v{t+3}, v{t+1}")
        b(f"v_lshlrev_b32 v{t+3}, 4, v{t+3}")
        b(f"v_lshrrev_b32 v{t+1}, 3, v{L}")
        b(f"s_lshl_b32 s{sT3}, s{sWm}, 4")
        b(f"v_add_u32 v{t+1}, s{sT3}, v{t+1}")
        b(f"v_mul_u32_u24 v{t+1}, 3584, v{t+1}")
        b(f"v_add_u32 v{fW}, v{t+1}, v{t+3}")
        b(f"v_add_u32 v{fW+1}, {8*3584 - 1024}, v{fW}")
        b(f"s_lshl_b32 s{sT3}, s{sS}, 8")
        for i in range(8):
            b(f"s_mul_i32 s{sWL+i}, s{sLo+i}, 1792")
            b(f"s_add_u32 s{sWL+i}, s{sWL+i}, s{sT3}")
        tr_pattern(b, fTA, 8, t)
        b(f"v_add_u32 v{fTB}, 0x10000, v{fTA}")
        b(f"v_add_u32 v{fTB+1}, 0x10000, v{fTA+1}")
        b(f"v_add_u32 v{fTC}, 0x20000, v{fTA}")
        b(f"v_add_u32 v{fTC+1}, 0x20000, v{fTA+1}")
        b(f"v_lshlrev_b32 v{fL16}, 4, v{L}")
        b(f"v_and_b32 v{t}, 31, v{L}")
        b(f"v_lshrrev_b32 v{t+1}, 5, v{L}")
        b(f"v_bfe_u32 v{t+2}, v{L}, 1, 3")
        b(f"v_xor_b32 v{t+2}, v{t+1}, v{t+2}")
        b(f"v_lshlrev_b32 v{t+1}, 7, v{t}")
        b(f"v_add_u32 v{t+1}, s{sLdsX}, v{t+1}")
        for k in range(4):
            b(f"v_xor_b32 v{t+3}, {2*k}, v{t+2}")
            b(f"v_lshl_add_u32 v{fPX+k}, v{t+3}, 4, v{t+1}")
        b(f"s_mov_b32 s66, {LOG2E ^ 0x80000000:#x}")
        b(f"s_mov_b32 s67, {LOG2E ^ 0x80000000:#x}")
        b(f"s_lshl_b32 s{sU}, s{sS}, 13")
        b(f"s_add_u32 s{sU}, s{sU}, s{sHFb}")
        b(f"s_add_u32 s{sU}, s{sU}, {64*1024}")
    stamp(b, 1)
    for i in range(8):
        if STAMP >= 2: stamp(b, 10 + 2*i)
        b.wait('vm', f"x{i}", f"B{i}")
        b("s_waitcnt lgkmcnt(0)")
        b("s_barrier")
        if STAMP >= 2: stamp(b, 11 + 2*i)
        if ffn:
            po = (i % NSLOT) * SLOT
            if po >= 65536:
                for k in range(4): b(f"v_add_u32 v{fE+k}, 0x10000, v{fPX+k}")
            for k in range(4):
                if po >= 65536: b(f"ds_read_b128 {a(16*i+4*k,4)}, v{fE+k} offset:{po - 65536}")
                else: b(f"ds_read_b128 {a(16*i+4*k,4)}, v{fPX+k} offset:{po}")
        if i <= 4:
            dma_x(b, i + 3); dma_B(b, i + 3)
        elif ffn:
            for q in {5: (0, 1, 2), 6: (3, 4, 5), 7: (6, 7)}[i]: dma_w(b, q)
    stamp(b, 2)
    if not ffn:
        b(f"s_lshl_b32 s{sT0}, s{sR}, 1")
        b(f"s_add_u32 s{sT0}, s{sT0}, s{sS}")
        b(f"s_sub_u32 s{sT0}, s{sT0}, 14")
        b(f"s_lshl_b32 s{sT0}, s{sT0}, 2")
        b(f"s_add_u32 s{sT0}, s{sT0}, s{sWm}")
        b(f"v_lshlrev_b32 v8, 7, v{L}")
        srd(b, sW1, 26, 1792*1024)
        srd(b, sHF, 14, 512*1024)
        srd(b, sX, 16, 512*1024)
        b(f"s_mul_i32 s{sT1}, s{sT0}, 14336")
        b(f"buffer_load_dword v9, v8, {s(sW1,4)}, s{sT1} offen")
        b(f"s_add_u32 s{sT1}, s{sT1}, 8192")
        b(f"buffer_load_dword v10, v8, {s(sW1,4)}, s{sT1} offen")
        b(f"s_lshl_b32 s{sT1}, s{sT0}, 12")
        b(f"buffer_load_dword v11, v8, {s(sHF,4)}, s{sT1} offen")
        b(f"buffer_load_dword v12, v8, {s(sX,4)}, s{sT1} offen")
        for _ in range(3): b("s_barrier")
        k1_gjob_all(b)
        return b
    def ffn_phase(hh):
        p = B(); DEPTH = 3
        def lds_loc(n):
            i, k = divmod(n, 4)
            base = wblock_lds(8 * hh + i) + 16 * k * 128
            if base < 65536: return fTA, base
            if base < 131072: return fTB, base - 65536
            return fTC, base - 131072
        plan = {0: [0, 1, 2, 3], int(opts.get('bcn', 12)): [4, 5, 6, 7]} if hh == 0 else {0: list(range(8, 16))}
        def reads(n):
            if n in plan:
                p.wait('vm', *[f"w{q}" for q in plan[n]])
                if hh == 0 and n == 0: p("s_waitcnt lgkmcnt(0)")
                if STAMP >= 2: stamp(p, 26 + (0 if n == 0 else 1) if hh == 0 else 29)
                p("s_barrier")
                if STAMP >= 2 and hh == 0: stamp(p, 30 + (0 if n == 0 else 1))
            base, off = lds_loc(n)
            r = fS + (n % 4) * 8
            for ft in range(2):
                for rd in range(2):
                    p(f"ds_read_b64_tr_b16 {v(r+4*ft+2*rd,2)}, v{base+ft} offset:{off + rd*512}", f"r{hh}_{n}")
        ch = []
        if hh == 0:
            d = B()
            for q in range(8, 16): dma_w(d, q)
            ch = chunks_of(d.ops)
        for n in range(DEPTH): reads(n)
        for n in range(32):
            i, k = divmod(n, 4)
            r = fS + (n % 4) * 8
            p.wait('lg', f"r{hh}_{n}")
            for ft in range(2):
                acc = fAcc + (2*hh + ft) * 16
                c = v(acc, 16) if n else "0"
                p(f"v_mfma_f32_32x32x16_bf16 {v(acc,16)}, {v(r+4*ft,4)}, {a(16*i+4*k,4)}, {c}")
                if ft == 0 and ch: p.ext(ch.pop(0))
            if n + DEPTH < 32: reads(n + DEPTH)
        assert not ch
        return p
    b.ext(ffn_phase(0))
    stamp(b, 3)
    p3 = ffn_phase(1)
    fl = F()
    fl.ext(k1_silu(0, False)); fl.ext(k1_silu(1, False))
    b.ext(merge(p3.ops, fl.ops, per=int(opts.get('per3', 4)), start=1))
    stamp(b, 4)
    b.ext(flat(k1_silu(2, True).ops))
    b.ext(flat(k1_silu(3, True).ops))
    stamp(b, 5)
    return b

def k1_silu(ft, pk):
    b = F()
    acc = fAcc + ft * 16
    e, d = fE, fD
    for kk in range(2):
        base = acc + 8 * kk
        if pk:
            for q in range(4): b(f"v_pk_mul_f32 {v(e+2*q,2)}, {v(base+2*q,2)}, s[66:67]")
            for q in range(8): b(f"v_exp_f32 v{e+q}, v{e+q}")
            for q in range(4): b(f"v_pk_add_f32 {v(e+2*q,2)}, {v(e+2*q,2)}, 1.0 op_sel_hi:[1,0]")
            for q in range(8): b(f"v_rcp_f32 v{e+q}, v{e+q}")
            for q in range(4): b(f"v_pk_mul_f32 {v(e+2*q,2)}, {v(base+2*q,2)}, {v(e+2*q,2)}")
            for q in range(4): b(f"v_cvt_pk_bf16_f32 v{d+q}, v{e+2*q}, v{e+2*q+1}")
        else:
            seq = []
            for q in range(8):
                seq.append([f"v_mul_f32 v{e+q}, s66, v{base+q}", f"v_exp_f32 v{e+q}, v{e+q}", f"v_add_f32 v{e+q}, 1.0, v{e+q}",
                            f"v_rcp_f32 v{e+q}, v{e+q}", f"v_mul_f32 v{e+q}, v{base+q}, v{e+q}"])
            for tm in range(8 + 4):
                for stg in range(5):
                    q = tm - stg
                    if 0 <= q < 8: b(seq[q][stg])
            for q in range(4): b(f"v_cvt_pk_bf16_f32 v{d+q}, v{e+2*q}, v{e+2*q+1}")
        b(f"s_add_u32 s{sK0}, s{sU}, {(2*ft+kk)*1024}")
        b(f"buffer_store_dwordx4 {v(d,4)}, v{fL16}, {s(sHF,4)}, s{sK0} offen {STF}")
    return b

gPX, gPB = 2, 6
vLBa, vImgW, vImgR, vL16o = 10, 11, 12, 13
vL, vC2, vL16, vL32, vL128, vL256, vF1, vG, vHfm = 16, 18, 20, 22, 24, 26, 28, 30, 32
vNon, vK, vQ, vW_, vPre, vTmp = 34, 36, 38, 40, 42, 44
vP = 48
aRE, aIM, vU = 64, 80, 96
aSX, aSB = 0, 16

def k1_S_setup():
    b = B(); L = vLane; t = vP
    b("s_waitcnt lgkmcnt(0)")
    srd(b, sHF, 34, WS_USED)
    b(f"v_and_b32 v{t}, 31, v{L}")
    b(f"s_lshl_b32 s{sT0}, s{sS}, 5")
    b(f"v_add_u32 v{t}, s{sT0}, v{t}")
    b(f"v_lshlrev_b32 v{t}, 1, v{t}")
    b(f"global_load_ushort v{vP+8}, v{t}, s[6:7]")
    b(f"global_load_ushort v{vP+9}, v{t}, s[8:9]")
    b(f"global_load_ushort v{vP+10}, v{t}, s[18:19]")
    b(f"v_mov_b32 v{t}, {NONCE_OFF}")
    b(f"global_load_dwordx2 {v(vU+26,2)}, v{t}, s[34:35] sc1")
    PF = int(opts.get('pf', 0))
    if PF:
        pd = vU + 28
        b(f"s_cmp_eq_u32 s{sWm}, 0")
        b("s_cbranch_scc0 L_k1_pf_1")
        b(f"v_lshrrev_b32 v{t}, 3, v{L}")
        b(f"s_lshl_b32 s{sT2}, s2, 3")
        b(f"v_add_u32 v{t}, s{sT2}, v{t}")
        b(f"v_lshlrev_b32 v{t}, 10, v{t}")
        b(f"v_and_b32 v{t+1}, 7, v{L}")
        b(f"v_max_u32 v{t+1}, 3, v{t+1}")
        b(f"v_lshl_add_u32 v{t}, v{t+1}, 7, v{t}")
        b(f"global_load_dword v{pd}, v{t}, s[4:5]", 'nocount')
        b("L_k1_pf_1:")
        b(f"s_cmp_eq_u32 s{sWm}, 1")
        b("s_cbranch_scc0 L_k1_pf_2")
        b(f"v_bfe_u32 v{t}, v{L}, 3, 1")
        b(f"s_lshl_b32 s{sT2}, s2, 1")
        b(f"v_add_u32 v{t}, s{sT2}, v{t}")
        b(f"v_lshlrev_b32 v{t}, 10, v{t}")
        b(f"v_and_b32 v{t+1}, 7, v{L}")
        b(f"v_max_u32 v{t+1}, 3, v{t+1}")
        b(f"v_lshl_add_u32 v{t}, v{t+1}, 7, v{t}")
        b(f"global_load_dword v{pd}, v{t}, s[10:11]", 'nocount')
        b(f"global_load_dword v{pd+1}, v{t}, s[12:13]", 'nocount')
        b("L_k1_pf_2:")
        b(f"s_cmp_eq_u32 s{sWm}, 2")
        b("s_cbranch_scc0 L_k1_pf_done")
        b(f"v_lshrrev_b32 v{t}, 5, v{L}")
        b(f"s_lshl_b32 s{sT2}, s2, 1")
        b(f"v_add_u32 v{t}, s{sT2}, v{t}")
        b(f"v_mul_u32_u24 v{t}, 3584, v{t}")
        b(f"v_and_b32 v{t+1}, 31, v{L}")
        b(f"v_min_u32 v{t+1}, 27, v{t+1}")
        b(f"v_lshl_add_u32 v{t}, v{t+1}, 7, v{t}")
        b(f"global_load_dword v{pd}, v{t}, s[24:25]", 'nocount')
        b("L_k1_pf_done:")
    b(f"v_and_b32 v{t}, 31, v{L}")
    b(f"v_lshrrev_b32 v{t+1}, 5, v{L}")
    b(f"v_bfe_u32 v{t+2}, v{L}, 1, 3")
    b(f"v_xor_b32 v{t+2}, v{t+1}, v{t+2}")
    b(f"v_lshlrev_b32 v{t+1}, 7, v{t}")
    b(f"v_add_u32 v{t+1}, s{sLdsX}, v{t+1}")
    b(f"v_lshrrev_b32 v{t+3}, 3, v{t}")
    b(f"v_lshlrev_b32 v{t+3}, 11, v{t+3}")
    b(f"v_and_b32 v{t}, 7, v{t}")
    b(f"v_lshl_add_u32 v{t}, v{t}, 7, v{t+3}")
    b(f"v_add_u32 v{t}, 16384, v{t}")
    for k in range(4):
        b(f"v_xor_b32 v{t+3}, {2*k}, v{t+2}")
        b(f"v_lshl_add_u32 v{gPX+k}, v{t+3}, 4, v{t+1}")
        b(f"v_lshl_add_u32 v{gPB+k}, v{t+3}, 4, v{t}")
    return b

def k1_params():
    b = F()
    lre, lim, ldt = vP+8, vP+9, vP+10
    va, vang, t0 = vP, vP+1, vP+2
    b(f"v_lshlrev_b32 v{lre}, 16, v{lre}")
    b(f"v_lshlrev_b32 v{lim}, 16, v{lim}")
    b(f"v_lshlrev_b32 v{ldt}, 16, v{ldt}")
    b(f"v_mul_f32 v{ldt}, {LOG2E:#x}, v{ldt}")
    b(f"v_exp_f32 v{ldt}, v{ldt}")
    b(f"v_cvt_pk_bf16_f32 v{ldt}, v{ldt}, v{ldt}")
    b(f"v_lshlrev_b32 v{ldt}, 16, v{ldt}")
    b(f"v_mul_f32 v{va}, v{ldt}, v{lre}")
    b(f"v_mul_f32 v{vang}, v{ldt}, v{lim}")
    b(f"v_mul_f32 v{va}, {LOG2E:#x}, v{va}")
    b(f"v_mul_f32 v{vang}, {INV2PI:#x}, v{vang}")
    cexp(b, vL, "1.0", va, vang, t0)
    for dst, cst in ((vL16, 0x41800000), (vL32, 0x42000000), (vL128, 0x43000000), (vL256, 0x43800000)):
        b(f"v_mov_b32 v{t0+3}, {cst:#x}")
        cexp(b, dst, f"v{t0+3}", va, vang, t0)
    b(f"v_lshrrev_b32 v{t0+3}, 5, v{vLane}")
    b(f"v_cvt_f32_u32 v{vHfm}, v{t0+3}")
    b(f"v_lshlrev_b32 v{t0+3}, 4, v{t0+3}")
    b(f"v_cvt_f32_u32 v{t0+3}, v{t0+3}")
    cexp(b, vF1, f"v{t0+3}", va, vang, t0)
    b(f"v_lshrrev_b32 v{t0+3}, 5, v{vLane}")
    b(f"v_lshlrev_b32 v{t0+3}, 4, v{t0+3}")
    b(f"s_lshl_b32 s{sSpin}, s{sWm}, 5")
    b(f"v_add_u32 v{t0+3}, s{sSpin}, v{t0+3}")
    b(f"v_cvt_f32_u32 v{t0+3}, v{t0+3}")
    cexp(b, vG, f"v{t0+3}", va, vang, t0)
    b(f"v_add_f32 v{t0}, -1.0, v{vL}")
    b(f"v_mul_f32 v{t0+1}, v{lre}, v{lre}")
    b(f"v_fma_f32 v{t0+1}, v{lim}, v{lim}, v{t0+1}")
    b(f"v_rcp_f32 v{t0+1}, v{t0+1}")
    b(f"v_mul_f32 v{vC2}, v{t0}, v{lre}")
    b(f"v_fma_f32 v{vC2}, v{vL+1}, v{lim}, v{vC2}")
    b(f"v_mul_f32 v{vC2+1}, v{vL+1}, v{lre}")
    b(f"v_fma_f32 v{vC2+1}, -v{t0}, v{lim}, v{vC2+1}")
    b(f"v_add_f32 v{t0+1}, v{t0+1}, v{t0+1}")
    b(f"v_mul_f32 v{vC2}, v{vC2}, v{t0+1}")
    b(f"v_mul_f32 v{vC2+1}, v{vC2+1}, v{t0+1}")
    return b

def k1_setup_common():
    b = F(); t = vP + 12; L = vLane
    for k, m in ((1, sM1), (2, sM2), (3, sM3)):
        g = B()
        g(f"s_cmp_ge_u32 s{sWm}, {k}")
        g(f"s_cselect_b64 {s(m,2)}, -1, 0")
        b.group(g)
    b(f"v_lshlrev_b32 v{vL16o}, 4, v{L}")
    b(f"v_and_b32 v{t}, 31, v{L}")
    b(f"v_lshlrev_b32 v{t}, 4, v{t}")
    b(f"s_lshl_b32 s{sK0}, s{sS}, 9")
    b(f"s_add_u32 s{sK0}, s{sK0}, {E_OFF}")
    b(f"v_add_u32 v{vLBa}, s{sK0}, v{t}")
    b(f"v_and_b32 v{t}, 31, v{L}")
    b(f"v_mul_u32_u24 v{t}, 80, v{t}")
    b(f"v_lshrrev_b32 v{t+1}, 5, v{L}")
    b(f"v_lshl_add_u32 v{t}, v{t+1}, 5, v{t}")
    b(f"s_mul_i32 s{sK0}, s{sWm}, 5120")
    b(f"s_add_u32 s{sK0}, s{sK0}, {SCR}")
    b(f"v_add_u32 v{vImgW}, s{sK0}, v{t}")
    b(f"v_lshrrev_b32 v{t+1}, 5, v{L}")
    b(f"v_lshlrev_b32 v{t+1}, 3, v{t+1}")
    b(f"v_bfe_u32 v{t+2}, v{L}, 2, 2")
    b(f"v_add_u32 v{t+1}, v{t+1}, v{t+2}")
    b(f"v_mul_u32_u24 v{t+1}, 80, v{t+1}")
    b(f"v_and_b32 v{t+2}, 1, v{L}")
    b(f"v_lshlrev_b32 v{t+2}, 5, v{t+2}")
    b(f"v_bfe_u32 v{t+3}, v{L}, 4, 1")
    b(f"v_lshlrev_b32 v{t+3}, 4, v{t+3}")
    b(f"v_add3_u32 v{t+1}, v{t+1}, v{t+2}, v{t+3}")
    b(f"v_bfe_u32 v{t+2}, v{L}, 1, 1")
    b(f"v_lshlrev_b32 v{t+2}, 3, v{t+2}")
    b(f"v_add3_u32 v{vImgR}, v{t+1}, v{t+2}, s{sK0}")
    return b

def k1_gjob_all(b):
    L = vLane
    xs0, gs, t = 32, 16, 24
    gu = 64
    b(f"v_and_b32 v{t}, 31, v{L}")
    b(f"v_lshlrev_b32 v{t}, 4, v{t}")
    b(f"global_load_dwordx4 {v(gs,4)}, v{t}, s[28:29]")
    b(f"global_load_dwordx4 {v(gs+4,4)}, v{t}, s[28:29] offset:512")
    b(f"v_lshrrev_b32 v{t+1}, 5, v{L}")
    b(f"s_lshl_b32 s{sT1}, s{sT0}, 4")
    b(f"v_add_u32 v{t+1}, s{sT1}, v{t+1}")
    b(f"v_lshlrev_b32 v{t+2}, 3, v{t+1}")
    b(f"v_add_u32 v{t+2}, {G_OFF}, v{t+2}")
    b(f"v_lshlrev_b32 v{t+1}, 10, v{t+1}")
    b(f"v_add_u32 v{t+1}, v{t+1}, v{t}")
    def ld(p):
        r = xs0 + (p % 4) * 8
        if p: b(f"v_add_u32 v{t+1}, 2048, v{t+1}")
        b(f"global_load_dwordx4 {v(r,4)}, v{t+1}, s[4:5]")
        b(f"global_load_dwordx4 {v(r+4,4)}, v{t+1}, s[4:5] offset:512")
    for p in range(3): ld(p)
    for k in range(8):
        b(f"v_lshlrev_b32 v{gu+2*k}, 16, v{gs+k}")
        b(f"v_and_b32 v{gu+2*k+1}, 0xffff0000, v{gs+k}")
    b(f"v_and_b32 v{t+3}, 31, v{L}")
    w = 80
    for p in range(8):
        if p + 3 < 8: ld(p + 3)
        xs = xs0 + (p % 4) * 8
        acc = w
        for k in range(8):
            a0 = w + 2 + 2 * (k % 4)
            b(f"v_lshlrev_b32 v{a0}, 16, v{xs+k}")
            b(f"v_and_b32 v{a0+1}, 0xffff0000, v{xs+k}")
            b(f"v_pk_mul_f32 {v(a0,2)}, {v(a0,2)}, {v(gu+2*k,2)}")
            b(f"v_cvt_pk_bf16_f32 v{a0}, v{a0}, v{a0+1}")
            b(f"v_and_b32 v{a0+1}, 0xffff0000, v{a0}")
            b(f"v_lshlrev_b32 v{a0}, 16, v{a0}")
            if k == 0:
                b(f"v_add_f32 v{acc}, v{a0}, v{a0+1}")
            else:
                b(f"v_add_f32 v{a0}, v{a0}, v{a0+1}")
                b(f"v_add_f32 v{acc}, v{acc}, v{a0}")
        for r in (8, 4, 2, 1):
            b(f"v_add_f32_dpp v{acc}, v{acc}, v{acc} row_ror:{r} row_mask:0xf bank_mask:0xf")
        b(f"v_mov_b32 v{acc+1}, v{acc}")
        b(f"v_permlane16_swap_b32 v{acc}, v{acc+1}")
        b(f"v_add_f32 v{acc}, v{acc}, v{acc+1}")
        b(f"v_cvt_pk_bf16_f32 v{acc}, v{acc}, v{acc}")
        b(f"v_lshlrev_b32 v{acc}, 16, v{acc}")
        b(f"v_mul_f32 v{acc}, {LOG2E ^ 0x80000000:#x}, v{acc}")
        b(f"v_exp_f32 v{acc}, v{acc}")
        b(f"v_add_f32 v{acc}, 1.0, v{acc}")
        b(f"v_rcp_f32 v{acc}, v{acc}")
        b(f"v_cvt_pk_bf16_f32 v{acc}, v{acc}, v{acc}")
        d = w + 10 + 2 * (p % 2)
        b(f"v_lshlrev_b32 v{d}, 16, v{acc}")
        b(f"v_sub_f32 v{d+1}, 1.0, v{d}")
        b(f"v_cvt_pk_bf16_f32 v{d+1}, v{d+1}, v{d+1}")
        b(f"v_lshlrev_b32 v{d+1}, 16, v{d+1}")
        b(f"v_cmp_eq_u32 vcc, 0, v{t+3}")
        b(f"s_and_saveexec_b64 {s(sEX,2)}, vcc")
        b(f"global_store_dwordx2 v{t+2}, {v(d,2)}, s[34:35]")
        b(f"s_mov_b64 exec, {s(sEX,2)}")
        b(f"v_add_u32 v{t+2}, 16, v{t+2}")

def k1_nonce():
    b = F()
    t = vU + 26
    b(f"v_add_u32 v{t}, 1, v{t}")
    b(f"v_or_b32 v{t+1}, 1, v{t+1}")
    b(f"v_mov_b32 v{t+2}, {NONCE_OFF}")
    b(f"v_mov_b32 v{t+3}, 0")
    g = B()
    g(f"s_or_b32 s{sSpin}, s2, s{sWave}")
    g(f"s_cmp_lg_u32 s{sSpin}, 0")
    g("s_cbranch_scc1 L_k1_nononce")
    g(f"global_store_dwordx2 v{t+2}, {v(t,2)}, s[34:35] sc0 sc1", 'nocount')
    g(f"global_store_dwordx2 v{t+3}, {v(t,2)}, s[32:33] sc0 sc1", 'nocount')
    g("L_k1_nononce:")
    b.group(g)
    return b

def k1_S():
    b = k1_S_setup()
    if int(opts.get('sprio', 1)): b("s_setprio 2")
    m = B()
    for i in range(8):
        m("s_waitcnt lgkmcnt(0)")
        m("s_barrier")
        po = (i % NSLOT) * SLOT
        hi = po >= 65536 - 1024
        if hi:
            for k in range(4):
                m(f"v_add_u32 v{vTmp+k}, 0x10000, v{gPX+k}")
        for k in range(4):
            if hi: m(f"ds_read_b128 {a(aSX+4*k,4)}, v{vTmp+k} offset:{po - 65536}")
            else: m(f"ds_read_b128 {a(aSX+4*k,4)}, v{gPX+k} offset:{po}")
        if hi:
            for k in range(4):
                m(f"v_add_u32 v{vTmp+k}, 0x10000, v{gPB+k}")
        for k in range(4):
            for mm in range(2):
                if hi: m(f"ds_read_b128 {a(aSB+8*k+4*mm,4)}, v{vTmp+k} offset:{po - 65536 + mm*1024}")
                else: m(f"ds_read_b128 {a(aSB+8*k+4*mm,4)}, v{gPB+k} offset:{po + mm*1024}")
        for k in range(4):
            for mm, acc in ((0, aRE), (1, aIM)):
                c = v(acc, 16) if (i, k) != (0, 0) else "0"
                m(f"v_mfma_f32_32x32x16_bf16 {v(acc,16)}, {a(aSX+4*k,4)}, {a(aSB+8*k+4*mm,4)}, {c}")
    f = F()
    f.ext(k1_nonce())
    f.ext(k1_params())
    f.ext(k1_setup_common())
    g = B()
    g(f"v_mov_b32 v{vTmp}, 0")
    g(f"global_load_dwordx2 {v(vNon,2)}, v{vTmp}, s[32:33] sc1")
    f.group(g)
    b.ext(merge(m.ops, f.ops, per=int(opts.get('per1', 5))))
    b("s_waitcnt vmcnt(0)")
    stamp(b, 2)
    b("s_barrier")
    s1 = flat(k1_scan1a().ops)
    if STAMP >= 2: stamp(b, 8)
    b.ext(s1)
    if STAMP >= 2: stamp(b, 11)
    b("s_barrier")
    if STAMP >= 2: stamp(b, 12)
    b.ext(flat(k1_scan1b().ops))
    if STAMP >= 2: stamp(b, 13)
    b.ext(k1_publish())
    stamp(b, 3)
    b("s_barrier")
    stamp(b, 4)
    b.ext(k1_lookback())
    stamp(b, 5)
    b.ext(k1_final())
    stamp(b, 6)
    return b

def cfma_sr(b, d, l, h, ure, uim, tmp):
    b(f"v_fma_f32 v{tmp}, v{l}, v{h}, v{ure}")
    b(f"v_fma_f32 v{tmp+1}, v{l}, v{h+1}, v{uim}")
    b(f"v_fma_f32 v{d}, -v{l+1}, v{h+1}, v{tmp}")
    b(f"v_fma_f32 v{d+1}, v{l+1}, v{h}, v{tmp+1}")

def k1_scan1a():
    b = F()
    tmp = vTmp
    R = lambda t: aRE + reg_of_t(t)
    I = lambda t: aIM + reg_of_t(t)
    b(f"v_mov_b32 v{vQ}, v{R(0)}\nv_mov_b32 v{vQ+1}, v{I(0)}")
    cur = vQ
    for t in range(1, 16):
        nxt = vQ if cur == vW_ else vW_
        cfma_sr(b, nxt, vL, cur, R(t), I(t), tmp)
        cur = nxt
    assert cur == vW_
    b(f"v_mov_b32 v{vPre}, v{cur}\nv_mov_b32 v{vPre+1}, v{cur+1}")
    b(f"v_mov_b32 v{vQ}, v{cur}\nv_mov_b32 v{vQ+1}, v{cur+1}")
    b(f"v_permlane32_swap_b32 v{vPre}, v{vQ}")
    b(f"v_permlane32_swap_b32 v{vPre+1}, v{vQ+1}")
    cfma_s(b, vW_, vL16, vPre, vQ, tmp)
    b(f"v_mul_f32 v{vPre}, v{vPre}, v{vHfm}\nv_mul_f32 v{vPre+1}, v{vPre+1}, v{vHfm}")
    t = vP
    b(f"v_and_b32 v{t+14}, 31, v{vLane}")
    b(f"v_lshlrev_b32 v{t+14}, 3, v{t+14}")
    b(f"v_add_u32 v{t+14}, {SCR}, v{t+14}")
    b(f"s_lshl_b32 s{sK0}, s{sWm}, 8")
    b(f"v_add_u32 v{t+15}, s{sK0}, v{t+14}")
    b(f"ds_write_b64 v{t+15}, {v(vW_,2)} offset:{SC}", "Wx")
    b.wait('lg', "Wx")
    return b

def k1_scan1b():
    b = F()
    t = vP; tmp = vTmp
    for w in range(4):
        b(f"ds_read_b64 {v(t+2*w,2)}, v{t+14} offset:{SC + 256*w}")
    W0, W1, W2, W3 = t, t+2, t+4, t+6
    Q2, Q3 = t+8, t+10
    cfma_s(b, Q2, vL32, W0, W1, tmp)
    cfma_s(b, Q3, vL32, Q2, W2, tmp)
    E = t + 12
    cfma_s(b, E, vL32, Q3, W3, tmp)
    for h in range(2):
        b(f"v_cndmask_b32 v{vQ+h}, 0, v{W0+h}, {s(sM1,2)}")
        b(f"v_cndmask_b32 v{vQ+h}, v{vQ+h}, v{Q2+h}, {s(sM2,2)}")
        b(f"v_cndmask_b32 v{vQ+h}, v{vQ+h}, v{Q3+h}, {s(sM3,2)}")
    cfma_s(b, vK, vF1, vQ, vPre, tmp)
    return b

def k1_publish():
    t = vP; E = t + 12; tmp = vTmp
    g = B()
    g(f"s_lshl_b32 s{sK0}, s{sR}, 13")
    g(f"v_add_u32 v{tmp}, s{sK0}, v{vLBa}")
    g(f"v_lshrrev_b32 v{tmp+1}, 3, v{vLane}")
    g(f"v_cmp_ne_u32 vcc, 0, v{vNon+1}")
    g("s_cbranch_vccnz L_k1_nonce_ok")
    g(f"s_mov_b32 s{sSpin}, 0")
    g("L_k1_nonce_retry:")
    g(f"v_mov_b32 v{tmp+2}, 0")
    g(f"global_load_dwordx2 {v(vNon,2)}, v{tmp+2}, s[32:33] sc1", 'nocount')
    g("s_waitcnt vmcnt(0)", 'nocount')
    g(f"s_add_u32 s{sSpin}, s{sSpin}, 1")
    g(f"s_cmp_gt_u32 s{sSpin}, 40000")
    g("s_cbranch_scc1 L_k1_nonce_ok")
    g(f"v_cmp_ne_u32 vcc, 0, v{vNon+1}")
    g("s_cbranch_vccz L_k1_nonce_retry")
    g("L_k1_nonce_ok:")
    g(f"v_mov_b32 v{E+2}, v{vNon}\nv_mov_b32 v{E+3}, v{vNon+1}")
    g(f"v_cmp_eq_u32 vcc, s{sWm}, v{tmp+1}")
    g(f"s_and_saveexec_b64 {s(sEX,2)}, vcc")
    g(f"global_store_dwordx4 v{tmp}, {v(E,4)}, s[34:35] sc0 sc1")
    g(f"s_mov_b64 exec, {s(sEX,2)}")
    return g

def k1_lookback():
    b = B(); tmp = vTmp; t = vP
    H = vW_
    def loads(tok):
        b(f"s_sub_u32 s{sK0}, s{sR}, 1")
        b(f"s_lshl_b32 s{sK0}, s{sK0}, 13")
        b(f"v_lshrrev_b32 v{t}, 5, v{vLane}")
        b(f"v_lshlrev_b32 v{t}, 13, v{t}")
        b(f"v_sub_u32 v{t}, s{sK0}, v{t}")
        b(f"v_add_u32 v{t}, v{vLBa}, v{t}")
        for mm in range(8):
            if mm: b(f"v_subrev_u32 v{t}, 16384, v{t}")
            b(f"v_max_i32 v{t+1}, v{t}, v{vLBa}")
            b(f"global_load_dwordx4 {v(vU+4*mm,4)}, v{t+1}, s[34:35] sc1", tok)
    b(f"s_cmp_eq_u32 s{sR}, 0")
    b("s_cbranch_scc1 L_k1_lb_zero")
    b(f"s_mov_b32 s{sSpin}, 0")
    b("L_k1_lb_again:")
    loads('nocount')
    b("s_waitcnt vmcnt(0)", 'nocount')
    b(f"s_mov_b64 {s(sEX,2)}, -1")
    for mm in range(8):
        b(f"s_cmp_le_u32 s{sR}, {2*mm}")
        b("s_cbranch_scc1 L_k1_lb_checked")
        b(f"s_cmp_ge_u32 s{sR}, {2*mm+2}")
        b(f"s_cselect_b32 s{sT1}, 0, -1")
        b(f"v_cmp_eq_u32 vcc, v{vU+4*mm+2}, v{vNon}")
        b(f"v_cmp_eq_u32 {s(sT2,2)}, v{vU+4*mm+3}, v{vNon+1}")
        b(f"s_and_b64 vcc, vcc, {s(sT2,2)}")
        b(f"s_or_b32 vcc_hi, vcc_hi, s{sT1}")
        b(f"s_and_b64 {s(sEX,2)}, {s(sEX,2)}, vcc")
    b("L_k1_lb_checked:")
    b(f"s_cmp_eq_u64 {s(sEX,2)}, -1")
    b("s_cbranch_scc1 L_k1_lb_ok")
    b(f"s_add_u32 s{sSpin}, s{sSpin}, 1")
    b(f"s_cmp_gt_u32 s{sSpin}, 40000")
    b("s_cbranch_scc1 L_k1_lb_ok")
    b("s_sleep 4")
    b("s_branch L_k1_lb_again")
    b("L_k1_lb_ok:")
    b(f"v_mov_b32 v{H}, 0\nv_mov_b32 v{H+1}, 0")
    for mm in range(7, -1, -1):
        b(f"s_cmp_le_u32 s{sR}, {2*mm}")
        b(f"s_cbranch_scc1 L_k1_lb_h{mm}")
        b(f"s_cmp_ge_u32 s{sR}, {2*mm+2}")
        b(f"s_cselect_b32 s{sT3}, -1, 0")
        b(f"s_mov_b32 s{sT2}, -1")
        b(f"v_cndmask_b32 v{vU+4*mm}, 0, v{vU+4*mm}, {s(sT2,2)}")
        b(f"v_cndmask_b32 v{vU+4*mm+1}, 0, v{vU+4*mm+1}, {s(sT2,2)}")
        b(f"v_pk_fma_f32 {v(tmp,2)}, {v(vL256,2)}, {v(H,2)}, {v(vU+4*mm,2)} op_sel:[0,0,0] op_sel_hi:[0,1,1]")
        b(f"v_pk_fma_f32 {v(H,2)}, {v(vL256,2)}, {v(H,2)}, {v(tmp,2)} op_sel:[1,1,0] op_sel_hi:[1,0,1] neg_lo:[1,0,0]")
        b(f"L_k1_lb_h{mm}:")
    b(f"v_mov_b32 v{vPre}, v{H}\nv_mov_b32 v{vPre+1}, v{H+1}")
    b(f"v_permlane32_swap_b32 v{H}, v{vPre}")
    b(f"v_permlane32_swap_b32 v{H+1}, v{vPre+1}")
    cfma(b, t, vL128, vPre, H, tmp)
    cfma(b, vQ, vG, t, vK, tmp)
    b("s_branch L_k1_lb_done")
    b("L_k1_lb_zero:")
    b(f"v_mov_b32 v{vQ}, v{vK}\nv_mov_b32 v{vQ+1}, v{vK+1}")
    b("L_k1_lb_done:")
    return b

def k1_final():
    b = B()
    tmp = vTmp
    prev = vQ
    for t in range(16):
        r = reg_of_t(t)
        u = vU + 2 * r
        cfma_sr(b, u, vL, prev, aRE + r, aIM + r, tmp)
        prev = u
    for r in range(16):
        u = vU + 2 * r
        tp = vP + 2 * (r % 4)
        b(f"v_pk_mul_f32 {v(tp,2)}, {v(vC2,2)}, {v(u,2)} op_sel:[0,0] op_sel_hi:[1,0]")
        b(f"v_pk_fma_f32 {v(u,2)}, {v(vC2,2)}, {v(u,2)}, {v(tp,2)} op_sel:[1,1,0] op_sel_hi:[0,1,1] neg_lo:[1,0,0]")
    for k in range(8):
        b(f"v_cvt_pk_bf16_f32 v{aRE+k}, v{vU+4*k}, v{vU+4*k+2}")
    for h in range(2):
        b(f"ds_write_b128 v{vImgW}, {v(aRE+4*h,4)} offset:{IMG + h*16}", "img")
    for k in range(8):
        b(f"v_cvt_pk_bf16_f32 v{aRE+8+k}, -v{vU+4*k+1}, -v{vU+4*k+3}")
    for h in range(2):
        b(f"ds_write_b128 v{vImgW}, {v(aRE+8+4*h,4)} offset:{IMG + 2560 + h*16}", "img")
    b(f"s_lshl_b32 s{sT2}, s{sS}, 12")
    b(f"s_add_u32 s{sT1}, s{sHFb}, s{sT2}")
    b.wait('lg', "img")
    for m in range(2):
        for kk in range(2):
            r = aIM + (2*m + kk) * 4
            for rd in range(2):
                b(f"ds_read_b64_tr_b16 {v(r+2*rd,2)}, v{vImgR} offset:{IMG + (m*32 + 16*kk + 4*rd)*80}")
    for m in range(2):
        for kk in range(2):
            r = aIM + (2*m + kk) * 4
            b(f"s_add_u32 s{sT2}, s{sT1}, {(2*m+kk)*1024}")
            b(f"buffer_store_dwordx4 {v(r,4)}, v{vL16o}, {s(sHF,4)}, s{sT2} offen {STF}")
    return b

def gen_k1():
    global STV
    STV = 15
    pro = k1_head()
    S = k1_S()
    dbgt_end(S, "s[32:33]", 44)
    stamp_end(S, sWave, "s[34:35]", 0x2000000, vLane, 3, 14)
    S("s_endpgm")
    Fm = B(); Fm("L_k1_F:")
    Fm(f"s_cmp_ge_u32 s{sS}, 14")
    Fm("s_cbranch_scc1 L_k1_Fn")
    f1 = k1_F(True)
    dbgt_end(f1, "s[32:33]", 20)
    stamp_end(f1, sWave, "s[34:35]", 0x2000000, vLane, 3, 14)
    f1("s_endpgm")
    Fn = B(); Fn("L_k1_Fn:")
    f2 = k1_F(False)
    dbgt_end(f2, "s[32:33]", 20)
    stamp_end(f2, sWave, "s[34:35]", 0x2000000, vLane, 3, 14)
    f2("L_k1_end:")
    f2("s_endpgm")
    def path(prefix, body, label=None):
        allops = insert_waits(copy.deepcopy(prefix) + body)
        if label:
            idx = [i for i, o in enumerate(allops) if o.text == label][0]
            allops = allops[idx:]
        return insert_hazard_nops(allops)
    out = path([], pro.ops + S.ops)
    out += path(pro.ops, Fm.ops + f1.ops, "L_k1_F:")
    out += path(pro.ops + Fm.ops, Fn.ops + f2.ops, "L_k1_Fn:")
    return out

def gen_k2():
    global STV
    STV = 9
    b = B()
    D = 15
    DW = int(opts.get('k2dw', 5))
    sWv, sH, sMt, sN = 40, 41, 42, 43
    sA, sCR, sCI, sW2 = 44, 48, 76, 80
    t0, t1, t2 = 52, 53, 54
    sS0, sF0 = 56, 57
    sLw = 58
    sCoff, sWoff2 = 59, 62
    vH0, vH1 = 4, 5
    vCe, vCo, vWa, vWb = 2, 3, 60, 61
    vPp, vTp = 48, 52
    accS, accF, vBuf = 64, 128, 192
    vNon2 = 14
    vTau = 8
    vG1, vG2 = 10, 12
    PITCH = 256
    LRED = 0
    LSTG = 65536
    dbgt_begin(b)
    stamp_begin(b)
    b("s_load_dwordx2 s[18:19], s[0:1], 112")
    b("s_load_dwordx2 s[4:5], s[0:1], 0")
    b("s_load_dwordx4 s[12:15], s[0:1], 40")
    b("s_load_dwordx2 s[6:7], s[0:1], 64")
    b("s_load_dwordx2 s[16:17], s[0:1], 88")
    b("s_load_dwordx2 s[8:9], s[0:1], 104")
    b("s_load_dwordx2 s[10:11], s[0:1], 120")
    b("s_cmp_ge_u32 s2, 256")
    b("s_cbranch_scc1 L_k2_end")
    b("v_lshrrev_b32 v6, 6, v0")
    b("v_and_b32 v1, 63, v0")
    b(f"v_readfirstlane_b32 s{sWv}, v6")
    b(f"s_and_b32 s{sH}, s2, 1")
    b(f"s_bfe_u32 s{t0}, s2, 0x20001")
    b(f"s_lshr_b32 s{t1}, s2, 3")
    b(f"s_and_b32 s{sMt}, s{t1}, 3")
    b(f"s_lshl_b32 s{t0}, s{t0}, 2")
    b(f"s_add_u32 s{sMt}, s{sMt}, s{t0}")
    b(f"s_lshr_b32 s{sN}, s{t1}, 2")
    b("v_and_b32 v6, 7, v1")
    b("v_lshrrev_b32 v7, 4, v1")
    b("v_xor_b32 v6, v6, v7")
    b("v_lshlrev_b32 v6, 4, v6")
    b("v_lshrrev_b32 v7, 3, v1")
    b("v_lshlrev_b32 v7, 10, v7")
    b(f"v_add_u32 v{vCe}, v6, v7")
    b(f"v_xor_b32 v{vCo}, 64, v{vCe}")
    b("v_bfe_u32 v6, v1, 4, 1")
    b("v_lshlrev_b32 v6, 2, v6")
    b("v_and_b32 v29, 7, v1")
    b("v_xor_b32 v6, v6, v29")
    b("v_lshlrev_b32 v6, 4, v6")
    b(f"v_add_u32 v{vWa}, v6, v7")
    b(f"v_add_u32 v{vWb}, {8192 - 1024}, v{vWa}")
    b(f"s_lshl_b32 s{sCoff}, s{sN}, 16")
    b(f"s_lshl_b32 s{t0}, s{sH}, 9")
    b(f"s_add_u32 s{sCoff}, s{sCoff}, s{t0}")
    b(f"s_lshl_b32 s{t0}, s{sWv}, 7")
    b(f"s_add_u32 s{sCoff}, s{sCoff}, s{t0}")
    b(f"s_lshl_b32 s{t0}, s{sH}, 2")
    b(f"s_add_u32 s{t0}, s{t0}, s{sWv}")
    b(f"s_mul_i32 s{sWoff2}, s{t0}, {14*16*1024}")
    b(f"s_lshl_b32 s{t0}, s{sN}, 7")
    b(f"s_add_u32 s{sWoff2}, s{sWoff2}, s{t0}")
    b(f"s_mul_i32 s{sLw}, s{sWv}, 24576")
    b(f"s_add_u32 s{sLw}, s{sLw}, {LSTG}")
    b(f"s_xor_b32 s{t0}, s{sH}, 1")
    b(f"s_lshl_b32 s{t0}, s{t0}, 1")
    b(f"s_lshl_b32 s{t1}, s{sMt}, 2")
    b(f"s_add_u32 s{t0}, s{t0}, s{t1}")
    b(f"s_mul_i32 s{t0}, s{t0}, {176*1024}")
    b("v_lshlrev_b32 v6, 4, v1")
    b(f"v_add_u32 v{vH0}, s{t0}, v6")
    b(f"v_add_u32 v{vH1}, {176*1024}, v{vH0}")
    b(f"s_lshl_b32 s{sS0}, s{sH}, 2")
    b(f"s_add_u32 s{sS0}, s{sS0}, s{sWv}")
    b(f"s_lshl_b32 s{sS0}, s{sS0}, 13")
    b(f"s_lshl_b32 s{sF0}, s{sH}, 2")
    b(f"s_add_u32 s{sF0}, s{sF0}, s{sWv}")
    b(f"s_mul_i32 s{sF0}, s{sF0}, {14*1024}")
    b(f"s_add_u32 s{sF0}, s{sF0}, {64*1024}")
    b("s_waitcnt lgkmcnt(0)")
    srd(b, sA, 10, WS_USED)
    srd(b, sCR, 12, 512*1024)
    srd(b, sCI, 14, 512*1024)
    srd(b, sW2, 16, 1792*1024)
    steps = [('S', i) for i in range(8)] + [('F', i) for i in range(14)]
    NS = len(steps)
    seq = [(1, st) for st in range(NS)] + [(2, st) for st in range(NS)]
    def hreg(idx, k):
        sl = idx % D
        if sl < 8: return v(vBuf + sl * 8 + k * 4, 4)
        return a(200 + (sl - 8) * 8 + k * 4, 4)
    def dma_c(m):
        for aa in range(8):
            b(f"s_add_u32 m0, s{sLw}, {m*8192 + aa*1024}")
            b(f"s_add_u32 s{t2}, s{sCoff}, {aa*8192}")
            b(f"buffer_load_dwordx4 v{vCe if aa % 2 == 0 else vCo}, {s(sCR if m == 0 else sCI,4)}, s{t2} offen lds", f"c{m}")
    def wslot(i): return (16384 + (i % 4) * 2048) if i < 4 else ((i - 4) % 8) * 2048
    def dma_f(i):
        b(f"s_add_u32 m0, s{sLw}, {wslot(i)}")
        b(f"s_add_u32 s{t2}, s{sWoff2}, {i*16*1024}")
        b(f"buffer_load_dwordx4 v{vWa}, {s(sW2,4)}, s{t2} offen lds", f"f{i}")
        b(f"buffer_load_dwordx4 v{vWb}, {s(sW2,4)}, s{t2} offen offset:1024 lds", f"f{i}")
    def hloads(idx):
        ps, st = seq[idx]
        kind, i = steps[st]
        sb = sS0 if kind == 'S' else sF0
        if ps == 2 and st == 0:
            b(f"s_lshl_b32 s{t0}, s{sH}, 2")
            b(f"s_sub_u32 s{t0}, s{t0}, 2")
            b(f"s_mul_i32 s{t0}, s{t0}, {176*1024}")
            b(f"v_add_u32 v{vH0}, s{t0}, v{vH0}")
            b(f"v_add_u32 v{vH1}, s{t0}, v{vH1}")
        b(f"s_add_u32 s{t1}, s{sb}, {i*1024}")
        b(f"buffer_load_dwordx4 {hreg(idx,0)}, v{vH0}, {s(sA,4)}, s{t1} offen")
        b(f"buffer_load_dwordx4 {hreg(idx,1)}, v{vH1}, {s(sA,4)}, s{t1} offen")
    def wreads_s():
        for j in range(8):
            m = (j >> 1) & 1; ksp = 2 * (j >> 2) + (j & 1)
            if j == 0: b.wait('vm', "c0")
            if j == 2: b.wait('vm', "c1")
            for aa in range(2):
                b(f"ds_read_b128 {a(8*j+4*aa,4)}, v{vPp+ksp} offset:{m*8192 + aa*4096}", f"wr{j}")
    def wreads_f(i):
        st = 8 + i
        b.wait('vm', f"f{i}")
        for aa in range(2):
            for rd in range(2):
                b(f"ds_read_b64_tr_b16 {a(8*st+4*aa+2*rd,2)}, v{vTp+aa} offset:{wslot(i) + rd*8*128}", f"wr{st}")
    dma_c(0)
    hloads(0); hloads(1)
    dma_c(1)
    b("v_and_b32 v6, 31, v1")
    b("v_lshlrev_b32 v6, 7, v6")
    b(f"v_add_u32 v6, s{sLw}, v6")
    b("v_lshrrev_b32 v7, 5, v1")
    b("v_bfe_u32 v29, v1, 1, 3")
    b("v_xor_b32 v29, v7, v29")
    for k in range(4):
        b(f"v_xor_b32 v7, {2*k}, v29")
        b(f"v_lshl_add_u32 v{vPp+k}, v7, 4, v6")
    tr_pattern(b, vTp, 4, 54)
    b(f"v_add_u32 v{vTp}, s{sLw}, v{vTp}")
    b(f"v_add_u32 v{vTp+1}, s{sLw}, v{vTp+1}")
    b("v_bfe_u32 v6, v1, 3, 2")
    b("v_and_b32 v7, 7, v1")
    b(f"v_lshl_add_u32 v{vTau}, v7, 2, v6")
    b(f"s_xor_b32 s{t0}, s{sH}, 1")
    b(f"s_lshl_b32 s{t0}, s{t0}, 6")
    b(f"s_lshl_b32 s{t1}, s{sMt}, 7")
    b(f"s_add_u32 s{t0}, s{t0}, s{t1}")
    b(f"v_add_u32 v6, s{t0}, v{vTau}")
    b("v_lshlrev_b32 v6, 3, v6")
    b(f"v_add_u32 v6, {G_OFF}, v6")
    b(f"global_load_dwordx2 v[10:11], v6, s[10:11]")
    b(f"global_load_dwordx2 v[12:13], v6, s[10:11] offset:256")
    b(f"s_lshl_b32 s{t0}, s{sH}, 7")
    b(f"s_sub_u32 s{t0}, s{t0}, 64")
    b(f"s_lshl_b32 s{t0}, s{t0}, 3")
    b(f"v_add_u32 v6, s{t0}, v6")
    b(f"global_load_dwordx2 v[16:17], v6, s[10:11]")
    b(f"global_load_dwordx2 v[18:19], v6, s[10:11] offset:256")
    b(f"v_mov_b32 v6, {NONCE_OFF}")
    b(f"global_load_dwordx2 {v(vNon2,2)}, v6, s[10:11]")
    for idx in range(2, 8): hloads(idx)
    for i in range(4): dma_f(i)
    for idx in range(8, D): hloads(idx)
    vWr, vRd = 20, 21
    vWrq = 56
    b(f"s_lshl_b32 s{t0}, s{sWv}, 14")
    b(f"v_lshlrev_b32 v29, 8, v{vTau}")
    b(f"v_add_u32 v29, s{t0}, v29")
    b("v_lshrrev_b32 v6, 5, v1")
    b("v_and_b32 v7, 7, v1")
    b("v_xor_b32 v6, v6, v7")
    for q in range(4):
        b(f"v_xor_b32 v7, {2*q}, v6")
        b(f"v_lshl_add_u32 v{vWrq+q}, v7, 4, v29")
    b("v_lshrrev_b32 v22, 4, v0")
    b("v_and_b32 v23, 15, v0")
    b("v_lshrrev_b32 v6, 6, v0")
    b("v_xor_b32 v6, v6, v23")
    b(f"v_lshlrev_b32 v{vRd}, 8, v22")
    b(f"v_lshl_add_u32 v{vRd}, v6, 4, v{vRd}")
    b(f"v_xor_b32 v{vWr}, 64, v{vRd}")
    vXch = 24
    b(f"v_lshlrev_b32 v{vXch}, 4, v0")
    b(f"s_mul_i32 s{t0}, s2, 24576")
    b(f"s_add_u32 s{t0}, s{t0}, {XCH_OFF}")
    b(f"v_add_u32 v25, s{t0}, v{vXch}")
    b(f"s_xor_b32 s{t1}, s2, 1")
    b(f"s_mul_i32 s{t0}, s{t1}, 24576")
    b(f"s_add_u32 s{t0}, s{t0}, {XCH_OFF}")
    b(f"v_add_u32 v26, s{t0}, v{vXch}")
    wreads_s()

    def mfmas(idx):
        ps, st = seq[idx]
        kind, i = steps[st]
        acc = accS if kind == 'S' else accF
        out = []
        for aa in range(2):
            for bb in range(2):
                dreg = v(acc + (aa*2 + bb) * 16, 16)
                c = dreg if i else "0"
                out.append(f"v_mfma_f32_32x32x16_bf16 {dreg}, {a(8*st+4*aa,4)}, {hreg(idx,bb)}, {c}")
        return out

    def reduce_write(g0, g1):
        for aa in range(2):
            for bb in range(2):
                g = g0 if bb == 0 else g1
                S = accS + (aa*2+bb)*16; Fq = accF + (aa*2+bb)*16
                for p in range(8):
                    b(f"v_pk_mul_f32 {v(S+2*p,2)}, {v(S+2*p,2)}, {v(g,2)} op_sel_hi:[1,0]")
                for p in range(8):
                    b(f"v_pk_fma_f32 {v(S+2*p,2)}, {v(Fq+2*p,2)}, {v(g,2)}, {v(S+2*p,2)} op_sel:[0,1,0] op_sel_hi:[1,1,1]")
                for q in range(4):
                    b(f"ds_write_b128 v{vWrq+q}, {v(S+4*q,4)} offset:{LRED + bb*32*PITCH + aa*128}", "red")
        b.wait('lg', "red")
        b("s_barrier")
    def reduce_read(dst, gran=None):
        for p in range(4):
            for w in range(4):
                b(f"ds_read_b128 {v(dst+16*p+4*w,4)}, v{vRd if p % 2 == 0 else vWr} offset:{LRED + w*64*PITCH + p*16*PITCH}")
        for p in range(4):
            r = dst + 16*p
            b(f"v_pk_add_f32 {v(r,2)}, {v(r,2)}, {v(r+4,2)}")
            b(f"v_pk_add_f32 {v(r+2,2)}, {v(r+2,2)}, {v(r+6,2)}")
            b(f"v_pk_add_f32 {v(r+8,2)}, {v(r+8,2)}, {v(r+12,2)}")
            b(f"v_pk_add_f32 {v(r+10,2)}, {v(r+10,2)}, {v(r+14,2)}")
            if gran is None:
                b(f"v_pk_add_f32 {v(r,2)}, {v(r,2)}, {v(r+8,2)}")
                b(f"v_pk_add_f32 {v(r+2,2)}, {v(r+2,2)}, {v(r+10,2)}")
            else:
                for e in range(4):
                    u = 4 * p + e
                    b(f"v_add_f32 v{gran + 4*(u//3) + u%3}, v{r+e}, v{r+8+e}")

    total = len(seq)
    for idx in range(total):
        ps, st = seq[idx]
        kind, i = steps[st]
        mf = mfmas(idx)
        if ps == 1: b.wait('lg', f"wr{st}")
        b(mf[0])
        if ps == 1:
            fi = st - 8 + DW
            if 4 <= fi < 14:
                if fi == 4: pass
                dma_f(fi)
        b(mf[1])
        if ps == 1 and 8 <= st + 1 < NS:
            wreads_f(st + 1 - 8)
        b(mf[2])
        n0 = len(b.ops)
        if idx + D < total: hloads(idx + D)
        ld = b.ops[n0:]; del b.ops[n0:]
        cut = [j for j, o in enumerate(ld) if o.kind == 'vmem']
        if cut:
            b.ext(ld[:cut[0] + 1]); b(mf[3]); b.ext(ld[cut[0] + 1:])
        else:
            b(mf[3])
        if STAMP >= 2 and st in (0, 3, 7, 11, 15, 19): stamp(b, 8 + (ps - 1) * 8 + (0, 3, 7, 11, 15, 19).index(st))
        if ps == 1 and st == NS - 1:
            stamp(b, 1)
            reduce_write(vG1, vG2)
            GRN = accS
            reduce_read(accF, GRN)
            for gq in range(6):
                b(f"v_mov_b32 v{GRN+4*gq+3}, v{vNon2}")
            b(f"v_mov_b32 v{GRN+21}, 0\nv_mov_b32 v{GRN+22}, 0")
            for gq in range(6):
                if gq: b(f"v_add_u32 v29, {gq*4096}, v25")
                b(f"global_store_dwordx4 v{29 if gq else 25}, {v(GRN+4*gq,4)}, s[10:11] sc0 sc1")
            stamp(b, 2)
        if ps == 2 and st == 5:
            b("s_barrier")
        if ps == 2 and st == 8:
            b(f"s_lshl_b32 s{t0}, s{sMt}, 7")
            b(f"s_lshl_b32 s{t1}, s{sH}, 6")
            b(f"s_add_u32 s{t0}, s{t0}, s{t1}")
            b(f"v_add_u32 v30, s{t0}, v22")
            b(f"s_lshl_b32 s{t1}, s{sN}, 7")
            b("v_lshlrev_b32 v31, 10, v30")
            b("v_lshl_add_u32 v31, v23, 3, v31")
            b(f"v_add_u32 v31, s{t1}, v31")
            for p in range(4):
                if p: b(f"v_add_u32 v31, {16*1024}, v31")
                b(f"global_load_dwordx2 {v(32+2*p,2)}, v31, s[4:5]")
            b("v_lshlrev_b32 v31, 3, v23")
            b(f"v_add_u32 v31, s{t1}, v31")
            b(f"global_load_dwordx2 v[40:41], v31, s[6:7]")
            b("v_lshlrev_b32 v31, 3, v30")
            b(f"v_add_u32 v31, {G_OFF}, v31")
            for p in range(4):
                b(f"global_load_dword v{42+p}, v31, s[10:11] offset:{p*128}")
        if ps == 2 and st == 15:
            for gq in range(6):
                if gq: b(f"v_add_u32 v29, {gq*4096}, v26")
                b(f"global_load_dwordx4 {a(176+4*gq,4)}, v{29 if gq else 26}, s[10:11] sc1", "prt")
        if ps == 2 and st == 20:
            b.wait('vm', "prt")
            b(f"s_mov_b32 s{t0}, 0")
            b("L_k2_chk:")
            b("s_mov_b64 s[60:61], -1")
            for gq in range(6):
                b(f"v_accvgpr_read_b32 v46, a{176+4*gq+3}")
                b(f"v_cmp_eq_u32 vcc, v46, v{vNon2}")
                b("s_and_b64 s[60:61], s[60:61], vcc")
            b("s_cmp_eq_u64 s[60:61], -1")
            b("s_cbranch_scc1 L_k2_ok")
            b(f"s_add_u32 s{t0}, s{t0}, 1")
            b(f"s_cmp_gt_u32 s{t0}, 40000")
            b("s_cbranch_scc1 L_k2_ok")
            for gq in range(6):
                if gq: b(f"v_add_u32 v29, {gq*4096}, v26")
                b(f"global_load_dwordx4 {a(176+4*gq,4)}, v{29 if gq else 26}, s[10:11] sc1", 'nocount')
            b("s_waitcnt vmcnt(0)", 'nocount')
            b("s_branch L_k2_chk")
            b("L_k2_ok:")
    stamp(b, 3)
    reduce_write(16, 18)
    reduce_read(accF)
    b(f"s_lshl_b32 s{t1}, s{sN}, 8")
    b("v_lshlrev_b32 v2, 11, v30")
    b("v_lshl_add_u32 v2, v23, 4, v2")
    b(f"v_add_u32 v2, s{t1}, v2")
    b("v_lshlrev_b32 v4, 16, v40\nv_and_b32 v5, 0xffff0000, v40\nv_lshlrev_b32 v6, 16, v41\nv_and_b32 v7, 0xffff0000, v41")
    tmp = accS
    OUTF = opts.get('outf', '').replace('+', ' ')
    for p in range(4):
        r = accF + 16*p
        xs = 32 + 2*p
        tp = tmp + 8*p
        b(f"v_lshlrev_b32 v{tp}, 16, v{xs}\nv_and_b32 v{tp+1}, 0xffff0000, v{xs}\nv_lshlrev_b32 v{tp+2}, 16, v{xs+1}\nv_and_b32 v{tp+3}, 0xffff0000, v{xs+1}")
        b(f"v_pk_mul_f32 {v(tp,2)}, {v(tp,2)}, v[4:5]")
        b(f"v_pk_mul_f32 {v(tp+2,2)}, {v(tp+2,2)}, v[6:7]")
        b(f"v_cvt_pk_bf16_f32 v{tp+4}, v{tp}, v{tp+1}")
        b(f"v_cvt_pk_bf16_f32 v{tp+5}, v{tp+2}, v{tp+3}")
        b(f"v_lshlrev_b32 v{tp}, 16, v{tp+4}\nv_and_b32 v{tp+1}, 0xffff0000, v{tp+4}\nv_lshlrev_b32 v{tp+2}, 16, v{tp+5}\nv_and_b32 v{tp+3}, 0xffff0000, v{tp+5}")
        for e in range(4):
            u = 4 * p + e
            b(f"v_accvgpr_read_b32 v{r+4+e}, a{176 + 4*(u//3) + u%3}")
        b(f"v_pk_add_f32 {v(r,2)}, {v(r,2)}, {v(r+4,2)}")
        b(f"v_pk_add_f32 {v(r+2,2)}, {v(r+2,2)}, {v(r+6,2)}")
        for e in range(4):
            b(f"v_fma_f32 v{r+e}, v{42+p}, v{tp+e}, v{r+e}")
        if p: b(f"v_add_u32 v2, {16*2048}, v2")
        b(f"global_store_dwordx4 v2, {v(r,4)}, s[8:9] {OUTF}")
    stamp(b, 4)
    dbgt_end(b, "s[18:19]", 32, True)
    stamp_end(b, sWv, "s[10:11]", 0x2100000, 1)
    b("L_k2_end:")
    b("s_endpgm")
    return finalize(b.ops)

def header():
    ref = open('cdna_kernels/%s.s.ref' % NAME).read().split('\n')
    hdr = []
    for line in ref:
        if not line.startswith(';'): break
        if '@launch' in line or 'Override launch' in line or 'grid=ceil' in line: continue
        hdr.append(line)
    hdr.append(f"; @launch kernel={K1} grid=(256,1,1) block=(512,1,1) lds=163840")
    hdr.append(f"; @launch kernel={K2} grid=(256,1,1) block=(256,1,1) lds=163840")
    return '\n'.join(hdr)

def kd(name, nv, acc_off, nsg):
    return f""".amdhsa_kernel {name}
  .amdhsa_next_free_vgpr {nv}
  .amdhsa_next_free_sgpr {nsg}
  .amdhsa_accum_offset {acc_off}
  .amdhsa_group_segment_fixed_size 0
  .amdhsa_kernarg_size 128
  .amdhsa_user_sgpr_count 2
  .amdhsa_user_sgpr_kernarg_segment_ptr 1
  .amdhsa_system_sgpr_workgroup_id_x 1
  .amdhsa_float_denorm_mode_32 3
.end_amdhsa_kernel"""

def main():
    k1 = gen_k1()
    k2 = gen_k2()
    out = [header(), '.amdgcn_target "amdgcn-amd-amdhsa--gfx950"', '.text']
    out += [f".globl {K1}", ".p2align 8", f".type {K1},@function", f"{K1}:", render(k1)]
    out += [f".globl {K2}", ".p2align 8", f".type {K2},@function", f"{K2}:", render(k2)]
    out += ['.section .rodata,"a"', '.p2align 6', kd(K1, 256, 128, 102), '.p2align 6', kd(K2, 512, 256, 102)]
    print('\n'.join(out))

main()
```

```python
import sys, copy
sys.path.insert(0, 'dev')
from ir import *

NAME = "gated_mix__ssm_conv_s5__dense_activation_silu__prompt"
K1 = "gm_k1_kernel"
K2 = "gm_k2_kernel"

HF_OFF = 0
HF_SIZE = 64 * 176 * 1024
W2F_OFF = HF_SIZE
W2F_SIZE = 16 * 176 * 1024
G_OFF = W2F_OFF + W2F_SIZE
E_OFF = G_OFF + 2048 * 8
E_SIZE = 16 * 16 * 512
NONCE_OFF = E_OFF + E_SIZE
FLG_OFF = NONCE_OFF + 256
XCH_OFF = FLG_OFF + 256 * 64
WS_USED = XCH_OFF + 256 * 24576

LOG2E = 0x3fb8aa3b
INV2PI = 0x3e22f983

RB, XS, WR = 0, 65536, 114688
SC = 32768
IMG = 36864

opts = dict(a.split('=') for a in sys.argv[1:] if '=' in a)
STAMP = int(opts.get('stamp', 0))
STF = "sc0 sc1"

def v(n, k=1): return f"v{n}" if k == 1 else f"v[{n}:{n+k-1}]"
def a(n, k=1): return f"a{n}" if k == 1 else f"a[{n}:{n+k-1}]"
def s(n, k=1): return f"s{n}" if k == 1 else f"s[{n}:{n+k-1}]"


STV = 15
def reg_of_t(t): return (t >> 2) + 4 * (t & 3)
def srd(b, dst, ptr, size):
    b(f"s_mov_b32 s{dst}, s{ptr}")
    b(f"s_mov_b32 s{dst+1}, s{ptr+1}")
    b(f"s_mov_b32 s{dst+2}, {size}")
    b(f"s_mov_b32 s{dst+3}, 0x20000")


def cexp(b, dst, n_src, va, vang, t0):
    b(f"v_mul_f32 v{t0}, {n_src}, v{va}")
    b(f"v_mul_f32 v{t0+1}, {n_src}, v{vang}")
    b(f"v_exp_f32 v{t0}, v{t0}")
    b(f"v_rndne_f32 v{t0+2}, v{t0+1}")
    b(f"v_sub_f32 v{t0+1}, v{t0+1}, v{t0+2}")
    b(f"v_cos_f32 v{dst}, v{t0+1}")
    b(f"v_sin_f32 v{dst+1}, v{t0+1}")
    b(f"v_mul_f32 v{dst}, v{t0}, v{dst}")
    b(f"v_mul_f32 v{dst+1}, v{t0}, v{dst+1}")


def cfma(b, d, l, h, u, tmp):
    b(f"v_pk_fma_f32 {v(tmp,2)}, {v(l,2)}, {v(h,2)}, {v(u,2)} op_sel:[0,0,0] op_sel_hi:[0,1,1]")
    b(f"v_pk_fma_f32 {v(d,2)}, {v(l,2)}, {v(h,2)}, {v(tmp,2)} op_sel:[1,1,0] op_sel_hi:[1,0,1] neg_lo:[1,0,0]")


def cfma_s(b, d, l, h, u, tmp):
    b(f"v_fma_f32 v{tmp}, v{l}, v{h}, v{u}")
    b(f"v_fma_f32 v{tmp+1}, v{l}, v{h+1}, v{u+1}")
    b(f"v_fma_f32 v{d}, -v{l+1}, v{h+1}, v{tmp}")
    b(f"v_fma_f32 v{d+1}, v{l+1}, v{h}, v{tmp+1}")


def stamp(b, idx):
    if not STAMP: return
    g = B()
    g("s_memtime s[100:101]")
    g("s_waitcnt lgkmcnt(0)")
    g(f"v_writelane_b32 v{STV}, s100, {idx}")
    b.ext(g)


def stamp_begin(b):
    if not STAMP: return
    b(f"v_mov_b32 v{STV}, 0")
    b("s_memrealtime s[100:101]")
    b("s_waitcnt lgkmcnt(0)")
    b(f"v_writelane_b32 v{STV}, s100, 62")
    stamp(b, 0)


def stamp_end(b, wave, ws, off, lane, sh=2, tv=254):
    if not STAMP: return
    b("s_memrealtime s[100:101]")
    b("s_waitcnt lgkmcnt(0)")
    b(f"v_writelane_b32 v{STV}, s100, 63")
    b(f"s_lshl_b32 s100, s2, {sh}")
    b(f"s_add_u32 s100, s100, s{wave}")
    b(f"s_lshl_b32 s100, s100, 8")
    b(f"s_add_u32 s100, s100, {off}")
    b(f"v_lshlrev_b32 v{tv}, 2, v{lane}")
    b(f"v_add_u32 v{tv}, s100, v{tv}")
    b(f"global_store_dword v{tv}, v{STV}, {ws}")


vLane = 1
def tr_pattern(b, dst, hfmul, t):
    L = vLane
    b(f"v_lshrrev_b32 v{t}, 5, v{L}")
    b(f"v_mul_u32_u24 v{t}, {hfmul}, v{t}")
    b(f"v_bfe_u32 v{t+1}, v{L}, 2, 2")
    b(f"v_add_u32 v{t}, v{t}, v{t+1}")
    b(f"v_lshlrev_b32 v{t}, 7, v{t}")
    b(f"v_bfe_u32 v{t+1}, v{L}, 3, 1")
    b(f"v_lshlrev_b32 v{t+1}, 6, v{t+1}")
    b(f"v_bfe_u32 v{t+2}, v{L}, 4, 1")
    b(f"v_lshlrev_b32 v{t+2}, 5, v{t+2}")
    b(f"v_and_b32 v{t+3}, 3, v{L}")
    b(f"v_lshlrev_b32 v{t+3}, 3, v{t+3}")
    b(f"v_add3_u32 v{t}, v{t}, v{t+2}, v{t+3}")
    b(f"v_add_u32 v{dst}, v{t}, v{t+1}")
    b(f"v_xor_b32 v{t+1}, 64, v{t+1}")
    b(f"v_add_u32 v{dst+1}, v{t}, v{t+1}")

SLOT = 24576
NSLOT = 4
WB0 = 98304
SCR = 73728
SC = 0
IMG = 1024
def wblock_lds(q):
    if q < 8: return WB0 + q * 8192
    return (q - 8) * 8192

sX, sBRE, sBIM, sW1, sHF = 36, 40, 44, 48, 52
sWave, sWm, sR, sS, sRho = 60, 61, 62, 63, 56
sLdsX, sLdsB = 64, 65
sT0, sT1, sT2, sT3 = 68, 69, 70, 71
sWL = 72
sM1, sM2, sM3 = 80, 82, 84
sHFb, sK0, sEX = 86, 87, 88
sLo = 90
sSpin, sU = 98, 99

DBGT = int(opts.get('dbgt', 0))
def dbgt_begin(b):
    if not DBGT: return
    b("s_memrealtime s[100:101]")
    b("s_waitcnt lgkmcnt(0)")
    b("s_not_b32 s101, s100")
def dbgt_end(b, dbg, vt, k2=False):
    if not DBGT: return
    b("s_mov_b32 s99, s101")
    b("s_memrealtime s[100:101]")
    b("s_waitcnt lgkmcnt(0)")
    b(f"v_mov_b32 v{vt}, 0")
    b(f"v_mov_b32 v{vt+1}, s99")
    b(f"v_mov_b32 v{vt+2}, s100")
    b("s_mov_b64 exec, 1")
    b(f"global_atomic_umax v{vt}, v{vt+1}, {dbg} offset:16")
    b(f"global_atomic_umax v{vt}, v{vt+2}, {dbg} offset:20")
    if k2:
        b(f"global_load_dwordx2 {v(vt+2,2)}, v{vt}, {dbg} offset:-496 sc1")
        b("s_waitcnt vmcnt(0)")
        b(f"global_store_dwordx2 v{vt}, {v(vt+2,2)}, {dbg} offset:8")
    b("s_mov_b64 exec, -1")

def k1_head():
    b = B()
    dbgt_begin(b)
    stamp_begin(b)
    b("s_load_dwordx16 s[4:19], s[0:1], 0")
    b("s_load_dwordx16 s[20:35], s[0:1], 64")
    b("s_cmp_ge_u32 s2, 256")
    b("s_cbranch_scc1 L_k1_end")
    b("v_lshrrev_b32 v2, 6, v0")
    b(f"v_and_b32 v{vLane}, 63, v0")
    b(f"v_readfirstlane_b32 s{sWave}, v2")
    b(f"s_and_b32 s{sT0}, s2, 7")
    b(f"s_lshr_b32 s{sT1}, s2, 3")
    b(f"s_and_b32 s{sT2}, s{sT1}, 7")
    b(f"s_lshr_b32 s{sT3}, s{sT1}, 3")
    b(f"s_lshr_b32 s{sR}, s{sT0}, 2")
    b(f"s_lshl_b32 s{sR}, s{sR}, 3")
    b(f"s_add_u32 s{sR}, s{sR}, s{sT2}")
    b(f"s_and_b32 s{sS}, s{sT0}, 3")
    b(f"s_lshl_b32 s{sS}, s{sS}, 2")
    b(f"s_add_u32 s{sS}, s{sS}, s{sT3}")
    b(f"s_lshl_b32 s{sRho}, s{sT3}, 1")
    b(f"s_add_u32 s{sRho}, s{sRho}, s{sT2}")
    ROT1 = opts.get('rot1', 'none')
    if ROT1 == 'none': b(f"s_mov_b32 s{sRho}, 0")
    if ROT1 == 'half':
        b(f"s_and_b32 s{sRho}, s{sRho}, 1")
        b(f"s_lshl_b32 s{sRho}, s{sRho}, 2")
    if ROT1 == 'two':
        b(f"s_and_b32 s{sRho}, s{sRho}, 3")
        b(f"s_lshl_b32 s{sRho}, s{sRho}, 1")
    b(f"s_and_b32 s{sWm}, s{sWave}, 3")
    b(f"s_lshl_b32 s{sLdsX}, s{sWm}, 12")
    b(f"s_lshl_b32 s{sLdsB}, s{sWm}, 11")
    b(f"s_lshl_b32 s{sHFb}, s{sR}, 2")
    b(f"s_add_u32 s{sHFb}, s{sHFb}, s{sWm}")
    b(f"s_mul_i32 s{sHFb}, s{sHFb}, {176*1024}")
    b(f"s_cmp_ge_u32 s{sWave}, 4")
    b("s_cbranch_scc1 L_k1_F")
    return b

fXe, fXo, fB, fW = 2, 3, 4, 5
fPX, fTA, fTB, fTC, fL16 = 7, 11, 13, 16, 6 + 0
fPX, fTA, fTB, fTC = 8, 12, 14, 16
fPX, fTA, fTB, fTC, fL16 = 8, 12, 16, 18, 7
fE, fD = 20, 28
fS, fAcc = 32, 64

def dma(b, voff, srdn, soff, tok, imm=0):
    o = f" offset:{imm}" if imm else ""
    b(f"buffer_load_dwordx4 v{voff}, {s(srdn,4)}, {soff} offen{o} lds", tok)
def dma_x(b, i):
    b(f"s_add_u32 m0, s{sLdsX}, {(i % NSLOT) * SLOT}")
    for k in range(4):
        dma(b, fXe if k % 2 == 0 else fXo, sX, f"s{sLo+i}", f"x{i}", k * 1024)
def dma_B(b, i):
    b(f"s_add_u32 m0, s{sLdsB}, {(i % NSLOT) * SLOT + 16384}")
    dma(b, fB, sBRE, f"s{sLo+i}", f"B{i}")
    dma(b, fB, sBIM, f"s{sLo+i}", f"B{i}", 1024)
def dma_w(b, q):
    i, hh = q % 8, q // 8
    b(f"s_add_u32 m0, s{sLdsB}, {wblock_lds(q)}")
    if hh:
        b(f"s_add_u32 s{sT0}, s{sWL+i}, 128")
        so = f"s{sT0}"
    else:
        so = f"s{sWL+i}"
    dma(b, fW, sW1, so, f"w{q}")
    dma(b, fW + 1, sW1, so, f"w{q}", 1024)

def chunks_of(ops):
    ch = []; cur = []
    for o in ops:
        cur.append(o)
        if o.kind == 'vmem': ch.append(cur); cur = []
    if cur: ch.append(cur)
    return ch

def k1_F(ffn):
    b = B(); L = vLane
    t = fE
    for i in range(8):
        b(f"s_add_u32 s{sLo+i}, s{sRho}, {i}")
        b(f"s_and_b32 s{sLo+i}, s{sLo+i}, 7")
        b(f"s_lshl_b32 s{sLo+i}, s{sLo+i}, 7")
    b(f"v_and_b32 v{t}, 7, v{L}")
    b(f"v_lshrrev_b32 v{t+1}, 4, v{L}")
    b(f"v_xor_b32 v{t+2}, v{t}, v{t+1}")
    b(f"v_lshlrev_b32 v{t+2}, 4, v{t+2}")
    b(f"v_lshrrev_b32 v{t+3}, 3, v{L}")
    b(f"s_lshl_b32 s{sT0}, s{sR}, 17")
    b(f"s_lshl_b32 s{sT1}, s{sWm}, 15")
    b(f"s_add_u32 s{sT0}, s{sT0}, s{sT1}")
    b(f"v_lshlrev_b32 v{t}, 12, v{t+3}")
    b(f"v_add3_u32 v{fXe}, v{t}, v{t+2}, s{sT0}")
    b(f"v_xor_b32 v{fXo}, 64, v{fXe}")
    b(f"s_and_b32 s{sT0}, s{sWm}, 1")
    b(f"s_lshl_b32 s{sT0}, s{sT0}, 6")
    b(f"v_xor_b32 v{t+1}, s{sT0}, v{t+2}")
    b(f"s_lshl_b32 s{sT0}, s{sWm}, 13")
    b(f"s_lshl_b32 s{sT1}, s{sS}, 15")
    b(f"s_add_u32 s{sT0}, s{sT0}, s{sT1}")
    b(f"v_lshlrev_b32 v{t}, 10, v{t+3}")
    b(f"v_add3_u32 v{fB}, v{t}, v{t+1}, s{sT0}")
    b("s_waitcnt lgkmcnt(0)")
    srd(b, sX, 4, 2048*1024)
    srd(b, sBRE, 10, 512*1024)
    b(f"s_sub_u32 s{sBIM}, s12, 1024")
    b(f"s_subb_u32 s{sBIM+1}, s13, 0")
    b(f"s_mov_b32 s{sBIM+2}, {512*1024 + 1024}")
    b(f"s_mov_b32 s{sBIM+3}, 0x20000")
    if STAMP >= 2: stamp(b, 8)
    for i in range(3):
        dma_x(b, i); dma_B(b, i)
    if STAMP >= 2: stamp(b, 9)
    srd(b, sHF, 34, WS_USED)
    if ffn:
        srd(b, sW1, 24, 512*3584)
        b(f"v_bfe_u32 v{t+1}, v{L}, 4, 1")
        b(f"v_lshlrev_b32 v{t+1}, 2, v{t+1}")
        b(f"v_and_b32 v{t+3}, 7, v{L}")
        b(f"v_xor_b32 v{t+3}, v{t+3}, v{t+1}")
        b(f"v_lshlrev_b32 v{t+3}, 4, v{t+3}")
        b(f"v_lshrrev_b32 v{t+1}, 3, v{L}")
        b(f"s_lshl_b32 s{sT3}, s{sWm}, 4")
        b(f"v_add_u32 v{t+1}, s{sT3}, v{t+1}")
        b(f"v_mul_u32_u24 v{t+1}, 3584, v{t+1}")
        b(f"v_add_u32 v{fW}, v{t+1}, v{t+3}")
        b(f"v_add_u32 v{fW+1}, {8*3584 - 1024}, v{fW}")
        b(f"s_lshl_b32 s{sT3}, s{sS}, 8")
        for i in range(8):
            b(f"s_mul_i32 s{sWL+i}, s{sLo+i}, 1792")
            b(f"s_add_u32 s{sWL+i}, s{sWL+i}, s{sT3}")
        tr_pattern(b, fTA, 8, t)
        b(f"v_add_u32 v{fTB}, 0x10000, v{fTA}")
        b(f"v_add_u32 v{fTB+1}, 0x10000, v{fTA+1}")
        b(f"v_add_u32 v{fTC}, 0x20000, v{fTA}")
        b(f"v_add_u32 v{fTC+1}, 0x20000, v{fTA+1}")
        b(f"v_lshlrev_b32 v{fL16}, 4, v{L}")
        b(f"v_and_b32 v{t}, 31, v{L}")
        b(f"v_lshrrev_b32 v{t+1}, 5, v{L}")
        b(f"v_bfe_u32 v{t+2}, v{L}, 1, 3")
        b(f"v_xor_b32 v{t+2}, v{t+1}, v{t+2}")
        b(f"v_lshlrev_b32 v{t+1}, 7, v{t}")
        b(f"v_add_u32 v{t+1}, s{sLdsX}, v{t+1}")
        for k in range(4):
            b(f"v_xor_b32 v{t+3}, {2*k}, v{t+2}")
            b(f"v_lshl_add_u32 v{fPX+k}, v{t+3}, 4, v{t+1}")
        b(f"s_mov_b32 s66, {LOG2E ^ 0x80000000:#x}")
        b(f"s_mov_b32 s67, {LOG2E ^ 0x80000000:#x}")
        b(f"s_lshl_b32 s{sU}, s{sS}, 13")
        b(f"s_add_u32 s{sU}, s{sU}, s{sHFb}")
        b(f"s_add_u32 s{sU}, s{sU}, {64*1024}")
    stamp(b, 1)
    for i in range(8):
        if STAMP >= 2: stamp(b, 10 + 2*i)
        b.wait('vm', f"x{i}", f"B{i}")
        b("s_waitcnt lgkmcnt(0)")
        b("s_barrier")
        if STAMP >= 2: stamp(b, 11 + 2*i)
        if ffn:
            po = (i % NSLOT) * SLOT
            if po >= 65536:
                for k in range(4): b(f"v_add_u32 v{fE+k}, 0x10000, v{fPX+k}")
            for k in range(4):
                if po >= 65536: b(f"ds_read_b128 {a(16*i+4*k,4)}, v{fE+k} offset:{po - 65536}")
                else: b(f"ds_read_b128 {a(16*i+4*k,4)}, v{fPX+k} offset:{po}")
        if i <= 4:
            dma_x(b, i + 3); dma_B(b, i + 3)
        elif ffn:
            for q in {5: (0, 1, 2), 6: (3, 4, 5), 7: (6, 7)}[i]: dma_w(b, q)
    stamp(b, 2)
    if not ffn:
        b(f"s_lshl_b32 s{sT0}, s{sR}, 1")
        b(f"s_add_u32 s{sT0}, s{sT0}, s{sS}")
        b(f"s_sub_u32 s{sT0}, s{sT0}, 14")
        b(f"s_lshl_b32 s{sT0}, s{sT0}, 2")
        b(f"s_add_u32 s{sT0}, s{sT0}, s{sWm}")
        b(f"v_lshlrev_b32 v8, 7, v{L}")
        srd(b, sW1, 26, 1792*1024)
        srd(b, sHF, 14, 512*1024)
        srd(b, sX, 16, 512*1024)
        b(f"s_mul_i32 s{sT1}, s{sT0}, 14336")
        b(f"buffer_load_dword v9, v8, {s(sW1,4)}, s{sT1} offen")
        b(f"s_add_u32 s{sT1}, s{sT1}, 8192")
        b(f"buffer_load_dword v10, v8, {s(sW1,4)}, s{sT1} offen")
        b(f"s_lshl_b32 s{sT1}, s{sT0}, 12")
        b(f"buffer_load_dword v11, v8, {s(sHF,4)}, s{sT1} offen")
        b(f"buffer_load_dword v12, v8, {s(sX,4)}, s{sT1} offen")
        for _ in range(4): b("s_barrier")
        k1_gjob_all(b)
        return b
    def ffn_phase(hh):
        p = B(); DEPTH = 3
        def lds_loc(n):
            i, k = divmod(n, 4)
            base = wblock_lds(8 * hh + i) + 16 * k * 128
            if base < 65536: return fTA, base
            if base < 131072: return fTB, base - 65536
            return fTC, base - 131072
        plan = {0: [0, 1, 2, 3], int(opts.get('bcn', 12)): [4, 5, 6, 7]} if hh == 0 else {0: list(range(8, 16))}
        def reads(n):
            if n in plan:
                p.wait('vm', *[f"w{q}" for q in plan[n]])
                if hh == 0 and n == 0: p("s_waitcnt lgkmcnt(0)")
                if STAMP >= 2: stamp(p, 26 + (0 if n == 0 else 1) if hh == 0 else 29)
                p("s_barrier")
                if STAMP >= 2 and hh == 0: stamp(p, 30 + (0 if n == 0 else 1))
            base, off = lds_loc(n)
            r = fS + (n % 4) * 8
            for ft in range(2):
                for rd in range(2):
                    p(f"ds_read_b64_tr_b16 {v(r+4*ft+2*rd,2)}, v{base+ft} offset:{off + rd*512}", f"r{hh}_{n}")
        ch = []
        if hh == 0:
            d = B()
            for q in range(8, 16): dma_w(d, q)
            ch = chunks_of(d.ops)
        for n in range(DEPTH): reads(n)
        for n in range(32):
            i, k = divmod(n, 4)
            r = fS + (n % 4) * 8
            p.wait('lg', f"r{hh}_{n}")
            for ft in range(2):
                acc = fAcc + (2*hh + ft) * 16
                c = v(acc, 16) if n else "0"
                p(f"v_mfma_f32_32x32x16_bf16 {v(acc,16)}, {v(r+4*ft,4)}, {a(16*i+4*k,4)}, {c}")
                if ft == 0 and ch: p.ext(ch.pop(0))
            if hh == 0 and n == int(opts.get('bxn', 1)): p("s_barrier")
            if n + DEPTH < 32: reads(n + DEPTH)
        assert not ch
        return p
    b.ext(ffn_phase(0))
    stamp(b, 3)
    p3 = ffn_phase(1)
    fl = F()
    fl.ext(k1_silu(0, False)); fl.ext(k1_silu(1, False))
    if opts.get('p3mode') == 'nofill':
        b.ext(p3.ops); stamp(b, 6); b.ext(flat(fl.ops))
    elif opts.get('p3mode') == 'nostore':
        fo = [o for o in fl.ops if not (not isinstance(o, list) and o.kind == 'vmem')]
        st_ = [o for o in fl.ops if (not isinstance(o, list) and o.kind == 'vmem')]
        b.ext(merge(p3.ops, fo, per=int(opts.get('per3', 4)), start=1))
    else:
        b.ext(merge(p3.ops, fl.ops, per=int(opts.get('per3', 4)), start=1))
    stamp(b, 4)
    b.ext(flat(k1_silu(2, True).ops))
    b.ext(flat(k1_silu(3, True).ops))
    stamp(b, 5)
    return b

def k1_silu(ft, pk):
    b = F()
    acc = fAcc + ft * 16
    e, d = fE, fD
    for kk in range(2):
        base = acc + 8 * kk
        if pk:
            for q in range(4): b(f"v_pk_mul_f32 {v(e+2*q,2)}, {v(base+2*q,2)}, s[66:67]")
            for q in range(8): b(f"v_exp_f32 v{e+q}, v{e+q}")
            for q in range(4): b(f"v_pk_add_f32 {v(e+2*q,2)}, {v(e+2*q,2)}, 1.0 op_sel_hi:[1,0]")
            for q in range(8): b(f"v_rcp_f32 v{e+q}, v{e+q}")
            for q in range(4): b(f"v_pk_mul_f32 {v(e+2*q,2)}, {v(base+2*q,2)}, {v(e+2*q,2)}")
            for q in range(4): b(f"v_cvt_pk_bf16_f32 v{d+q}, v{e+2*q}, v{e+2*q+1}")
        else:
            seq = []
            for q in range(8):
                seq.append([f"v_mul_f32 v{e+q}, s66, v{base+q}", f"v_exp_f32 v{e+q}, v{e+q}", f"v_add_f32 v{e+q}, 1.0, v{e+q}",
                            f"v_rcp_f32 v{e+q}, v{e+q}", f"v_mul_f32 v{e+q}, v{base+q}, v{e+q}"])
            if opts.get('silu', 'diag') == 'diag':
                for tm in range(8 + 4):
                    for stg in range(5):
                        q = tm - stg
                        if 0 <= q < 8: b(seq[q][stg])
            elif opts.get('silu') == 'block':
                for stg in range(5):
                    for q in range(8): b(seq[q][stg])
            else:
                for tm in range(8 + 8):
                    for stg in range(5):
                        q = tm - 2 * stg
                        if 0 <= q < 8: b(seq[q][stg])
            for q in range(4): b(f"v_cvt_pk_bf16_f32 v{d+q}, v{e+2*q}, v{e+2*q+1}")
        b(f"s_add_u32 s{sK0}, s{sU}, {(2*ft+kk)*1024}")
        b(f"buffer_store_dwordx4 {v(d,4)}, v{fL16}, {s(sHF,4)}, s{sK0} offen {STF}")
    return b

gPX, gPB = 2, 6
vLBa, vImgW, vImgR, vL16o = 10, 11, 12, 13
vL, vC2, vL16, vL32, vL128, vL256, vF1, vG, vHfm = 16, 18, 20, 22, 24, 26, 28, 30, 32
vNon, vK, vQ, vW_, vPre, vTmp = 34, 36, 38, 40, 42, 44
vP = 48
aRE, aIM, vU = 64, 80, 96
aSX, aSB = 0, 16

def k1_S_setup():
    b = B(); L = vLane; t = vP
    b("s_waitcnt lgkmcnt(0)")
    srd(b, sHF, 34, WS_USED)
    b(f"v_and_b32 v{t}, 31, v{L}")
    b(f"s_lshl_b32 s{sT0}, s{sS}, 5")
    b(f"v_add_u32 v{t}, s{sT0}, v{t}")
    b(f"v_lshlrev_b32 v{t}, 1, v{t}")
    b(f"global_load_ushort v{vP+8}, v{t}, s[6:7]")
    b(f"global_load_ushort v{vP+9}, v{t}, s[8:9]")
    b(f"global_load_ushort v{vP+10}, v{t}, s[18:19]")
    b(f"v_mov_b32 v{t}, {NONCE_OFF}")
    b(f"global_load_dwordx2 {v(vU+26,2)}, v{t}, s[34:35] sc1")
    PF = int(opts.get('pf', 0))
    if PF:
        pd = vU + 28
        b(f"s_cmp_eq_u32 s{sWm}, 0")
        b("s_cbranch_scc0 L_k1_pf_1")
        b(f"v_lshrrev_b32 v{t}, 3, v{L}")
        b(f"s_lshl_b32 s{sT2}, s2, 3")
        b(f"v_add_u32 v{t}, s{sT2}, v{t}")
        b(f"v_lshlrev_b32 v{t}, 10, v{t}")
        b(f"v_and_b32 v{t+1}, 7, v{L}")
        b(f"v_max_u32 v{t+1}, 3, v{t+1}")
        b(f"v_lshl_add_u32 v{t}, v{t+1}, 7, v{t}")
        b(f"global_load_dword v{pd}, v{t}, s[4:5]", 'nocount')
        b("L_k1_pf_1:")
        b(f"s_cmp_eq_u32 s{sWm}, 1")
        b("s_cbranch_scc0 L_k1_pf_2")
        b(f"v_bfe_u32 v{t}, v{L}, 3, 1")
        b(f"s_lshl_b32 s{sT2}, s2, 1")
        b(f"v_add_u32 v{t}, s{sT2}, v{t}")
        b(f"v_lshlrev_b32 v{t}, 10, v{t}")
        b(f"v_and_b32 v{t+1}, 7, v{L}")
        b(f"v_max_u32 v{t+1}, 3, v{t+1}")
        b(f"v_lshl_add_u32 v{t}, v{t+1}, 7, v{t}")
        b(f"global_load_dword v{pd}, v{t}, s[10:11]", 'nocount')
        b(f"global_load_dword v{pd+1}, v{t}, s[12:13]", 'nocount')
        b("L_k1_pf_2:")
        b(f"s_cmp_eq_u32 s{sWm}, 2")
        b("s_cbranch_scc0 L_k1_pf_done")
        b(f"v_lshrrev_b32 v{t}, 5, v{L}")
        b(f"s_lshl_b32 s{sT2}, s2, 1")
        b(f"v_add_u32 v{t}, s{sT2}, v{t}")
        b(f"v_mul_u32_u24 v{t}, 3584, v{t}")
        b(f"v_and_b32 v{t+1}, 31, v{L}")
        b(f"v_min_u32 v{t+1}, 27, v{t+1}")
        b(f"v_lshl_add_u32 v{t}, v{t+1}, 7, v{t}")
        b(f"global_load_dword v{pd}, v{t}, s[24:25]", 'nocount')
        b("L_k1_pf_done:")
    b(f"v_and_b32 v{t}, 31, v{L}")
    b(f"v_lshrrev_b32 v{t+1}, 5, v{L}")
    b(f"v_bfe_u32 v{t+2}, v{L}, 1, 3")
    b(f"v_xor_b32 v{t+2}, v{t+1}, v{t+2}")
    b(f"v_lshlrev_b32 v{t+1}, 7, v{t}")
    b(f"v_add_u32 v{t+1}, s{sLdsX}, v{t+1}")
    b(f"v_lshrrev_b32 v{t+3}, 3, v{t}")
    b(f"v_lshlrev_b32 v{t+3}, 11, v{t+3}")
    b(f"v_and_b32 v{t}, 7, v{t}")
    b(f"v_lshl_add_u32 v{t}, v{t}, 7, v{t+3}")
    b(f"v_add_u32 v{t}, 16384, v{t}")
    for k in range(4):
        b(f"v_xor_b32 v{t+3}, {2*k}, v{t+2}")
        b(f"v_lshl_add_u32 v{gPX+k}, v{t+3}, 4, v{t+1}")
        b(f"v_lshl_add_u32 v{gPB+k}, v{t+3}, 4, v{t}")
    return b

def k1_params():
    b = F()
    lre, lim, ldt = vP+8, vP+9, vP+10
    va, vang, t0 = vP, vP+1, vP+2
    b(f"v_lshlrev_b32 v{lre}, 16, v{lre}")
    b(f"v_lshlrev_b32 v{lim}, 16, v{lim}")
    b(f"v_lshlrev_b32 v{ldt}, 16, v{ldt}")
    b(f"v_mul_f32 v{ldt}, {LOG2E:#x}, v{ldt}")
    b(f"v_exp_f32 v{ldt}, v{ldt}")
    b(f"v_cvt_pk_bf16_f32 v{ldt}, v{ldt}, v{ldt}")
    b(f"v_lshlrev_b32 v{ldt}, 16, v{ldt}")
    b(f"v_mul_f32 v{va}, v{ldt}, v{lre}")
    b(f"v_mul_f32 v{vang}, v{ldt}, v{lim}")
    b(f"v_mul_f32 v{va}, {LOG2E:#x}, v{va}")
    b(f"v_mul_f32 v{vang}, {INV2PI:#x}, v{vang}")
    cexp(b, vL, "1.0", va, vang, t0)
    for dst, cst in ((vL16, 0x41800000), (vL32, 0x42000000), (vL128, 0x43000000), (vL256, 0x43800000)):
        b(f"v_mov_b32 v{t0+3}, {cst:#x}")
        cexp(b, dst, f"v{t0+3}", va, vang, t0)
    b(f"v_lshrrev_b32 v{t0+3}, 5, v{vLane}")
    b(f"v_cvt_f32_u32 v{vHfm}, v{t0+3}")
    b(f"v_lshlrev_b32 v{t0+3}, 4, v{t0+3}")
    b(f"v_cvt_f32_u32 v{t0+3}, v{t0+3}")
    cexp(b, vF1, f"v{t0+3}", va, vang, t0)
    b(f"v_lshrrev_b32 v{t0+3}, 5, v{vLane}")
    b(f"v_lshlrev_b32 v{t0+3}, 4, v{t0+3}")
    b(f"s_lshl_b32 s{sSpin}, s{sWm}, 5")
    b(f"v_add_u32 v{t0+3}, s{sSpin}, v{t0+3}")
    b(f"v_cvt_f32_u32 v{t0+3}, v{t0+3}")
    cexp(b, vG, f"v{t0+3}", va, vang, t0)
    b(f"v_add_f32 v{t0}, -1.0, v{vL}")
    b(f"v_mul_f32 v{t0+1}, v{lre}, v{lre}")
    b(f"v_fma_f32 v{t0+1}, v{lim}, v{lim}, v{t0+1}")
    b(f"v_rcp_f32 v{t0+1}, v{t0+1}")
    b(f"v_mul_f32 v{vC2}, v{t0}, v{lre}")
    b(f"v_fma_f32 v{vC2}, v{vL+1}, v{lim}, v{vC2}")
    b(f"v_mul_f32 v{vC2+1}, v{vL+1}, v{lre}")
    b(f"v_fma_f32 v{vC2+1}, -v{t0}, v{lim}, v{vC2+1}")
    b(f"v_add_f32 v{t0+1}, v{t0+1}, v{t0+1}")
    b(f"v_mul_f32 v{vC2}, v{vC2}, v{t0+1}")
    b(f"v_mul_f32 v{vC2+1}, v{vC2+1}, v{t0+1}")
    return b

def k1_setup_common():
    b = F(); t = vP + 12; L = vLane
    for k, m in ((1, sM1), (2, sM2), (3, sM3)):
        g = B()
        g(f"s_cmp_ge_u32 s{sWm}, {k}")
        g(f"s_cselect_b64 {s(m,2)}, -1, 0")
        b.group(g)
    b(f"v_lshlrev_b32 v{vL16o}, 4, v{L}")
    b(f"v_and_b32 v{t}, 31, v{L}")
    b(f"v_lshlrev_b32 v{t}, 4, v{t}")
    b(f"s_lshl_b32 s{sK0}, s{sS}, 9")
    b(f"s_add_u32 s{sK0}, s{sK0}, {E_OFF}")
    b(f"v_add_u32 v{vLBa}, s{sK0}, v{t}")
    b(f"v_and_b32 v{t}, 31, v{L}")
    b(f"v_mul_u32_u24 v{t}, 80, v{t}")
    b(f"v_lshrrev_b32 v{t+1}, 5, v{L}")
    b(f"v_lshl_add_u32 v{t}, v{t+1}, 5, v{t}")
    b(f"s_mul_i32 s{sK0}, s{sWm}, 5120")
    b(f"s_add_u32 s{sK0}, s{sK0}, {SCR}")
    b(f"v_add_u32 v{vImgW}, s{sK0}, v{t}")
    b(f"v_lshrrev_b32 v{t+1}, 5, v{L}")
    b(f"v_lshlrev_b32 v{t+1}, 3, v{t+1}")
    b(f"v_bfe_u32 v{t+2}, v{L}, 2, 2")
    b(f"v_add_u32 v{t+1}, v{t+1}, v{t+2}")
    b(f"v_mul_u32_u24 v{t+1}, 80, v{t+1}")
    b(f"v_and_b32 v{t+2}, 1, v{L}")
    b(f"v_lshlrev_b32 v{t+2}, 5, v{t+2}")
    b(f"v_bfe_u32 v{t+3}, v{L}, 4, 1")
    b(f"v_lshlrev_b32 v{t+3}, 4, v{t+3}")
    b(f"v_add3_u32 v{t+1}, v{t+1}, v{t+2}, v{t+3}")
    b(f"v_bfe_u32 v{t+2}, v{L}, 1, 1")
    b(f"v_lshlrev_b32 v{t+2}, 3, v{t+2}")
    b(f"v_add3_u32 v{vImgR}, v{t+1}, v{t+2}, s{sK0}")
    return b

def k1_gjob_all(b):
    L = vLane
    xs0, gs, t = 32, 16, 24
    gu = 64
    b(f"v_and_b32 v{t}, 31, v{L}")
    b(f"v_lshlrev_b32 v{t}, 4, v{t}")
    b(f"global_load_dwordx4 {v(gs,4)}, v{t}, s[28:29]")
    b(f"global_load_dwordx4 {v(gs+4,4)}, v{t}, s[28:29] offset:512")
    b(f"v_lshrrev_b32 v{t+1}, 5, v{L}")
    b(f"s_lshl_b32 s{sT1}, s{sT0}, 4")
    b(f"v_add_u32 v{t+1}, s{sT1}, v{t+1}")
    b(f"v_lshlrev_b32 v{t+2}, 3, v{t+1}")
    b(f"v_add_u32 v{t+2}, {G_OFF}, v{t+2}")
    b(f"v_lshlrev_b32 v{t+1}, 10, v{t+1}")
    b(f"v_add_u32 v{t+1}, v{t+1}, v{t}")
    def ld(p):
        r = xs0 + (p % 4) * 8
        if p: b(f"v_add_u32 v{t+1}, 2048, v{t+1}")
        b(f"global_load_dwordx4 {v(r,4)}, v{t+1}, s[4:5]")
        b(f"global_load_dwordx4 {v(r+4,4)}, v{t+1}, s[4:5] offset:512")
    for p in range(3): ld(p)
    for k in range(8):
        b(f"v_lshlrev_b32 v{gu+2*k}, 16, v{gs+k}")
        b(f"v_and_b32 v{gu+2*k+1}, 0xffff0000, v{gs+k}")
    b(f"v_and_b32 v{t+3}, 31, v{L}")
    w = 80
    for p in range(8):
        if p + 3 < 8: ld(p + 3)
        xs = xs0 + (p % 4) * 8
        acc = w
        for k in range(8):
            a0 = w + 2 + 2 * (k % 4)
            b(f"v_lshlrev_b32 v{a0}, 16, v{xs+k}")
            b(f"v_and_b32 v{a0+1}, 0xffff0000, v{xs+k}")
            b(f"v_pk_mul_f32 {v(a0,2)}, {v(a0,2)}, {v(gu+2*k,2)}")
            b(f"v_cvt_pk_bf16_f32 v{a0}, v{a0}, v{a0+1}")
            b(f"v_and_b32 v{a0+1}, 0xffff0000, v{a0}")
            b(f"v_lshlrev_b32 v{a0}, 16, v{a0}")
            if k == 0:
                b(f"v_add_f32 v{acc}, v{a0}, v{a0+1}")
            else:
                b(f"v_add_f32 v{a0}, v{a0}, v{a0+1}")
                b(f"v_add_f32 v{acc}, v{acc}, v{a0}")
        for r in (8, 4, 2, 1):
            b(f"v_add_f32_dpp v{acc}, v{acc}, v{acc} row_ror:{r} row_mask:0xf bank_mask:0xf")
        b(f"v_mov_b32 v{acc+1}, v{acc}")
        b(f"v_permlane16_swap_b32 v{acc}, v{acc+1}")
        b(f"v_add_f32 v{acc}, v{acc}, v{acc+1}")
        b(f"v_cvt_pk_bf16_f32 v{acc}, v{acc}, v{acc}")
        b(f"v_lshlrev_b32 v{acc}, 16, v{acc}")
        b(f"v_mul_f32 v{acc}, {LOG2E ^ 0x80000000:#x}, v{acc}")
        b(f"v_exp_f32 v{acc}, v{acc}")
        b(f"v_add_f32 v{acc}, 1.0, v{acc}")
        b(f"v_rcp_f32 v{acc}, v{acc}")
        b(f"v_cvt_pk_bf16_f32 v{acc}, v{acc}, v{acc}")
        d = w + 10 + 2 * (p % 2)
        b(f"v_lshlrev_b32 v{d}, 16, v{acc}")
        b(f"v_sub_f32 v{d+1}, 1.0, v{d}")
        b(f"v_cvt_pk_bf16_f32 v{d+1}, v{d+1}, v{d+1}")
        b(f"v_lshlrev_b32 v{d+1}, 16, v{d+1}")
        b(f"v_cmp_eq_u32 vcc, 0, v{t+3}")
        b(f"s_and_saveexec_b64 {s(sEX,2)}, vcc")
        b(f"global_store_dwordx2 v{t+2}, {v(d,2)}, s[34:35]")
        b(f"s_mov_b64 exec, {s(sEX,2)}")
        b(f"v_add_u32 v{t+2}, 16, v{t+2}")

def k1_nonce():
    b = F()
    t = vU + 26
    b(f"v_add_u32 v{t}, 1, v{t}")
    b(f"v_or_b32 v{t+1}, 1, v{t+1}")
    b(f"v_mov_b32 v{t+2}, {NONCE_OFF}")
    b(f"v_mov_b32 v{t+3}, 0")
    g = B()
    g(f"s_or_b32 s{sSpin}, s2, s{sWave}")
    g(f"s_cmp_lg_u32 s{sSpin}, 0")
    g("s_cbranch_scc1 L_k1_nononce")
    g(f"global_store_dwordx2 v{t+2}, {v(t,2)}, s[34:35] sc0 sc1", 'nocount')
    g(f"global_store_dwordx2 v{t+3}, {v(t,2)}, s[32:33] sc0 sc1", 'nocount')
    g("L_k1_nononce:")
    b.group(g)
    return b

def k1_S():
    b = k1_S_setup()
    if int(opts.get('sprio', 1)): b("s_setprio 2")
    m = B()
    for i in range(8):
        m("s_waitcnt lgkmcnt(0)")
        m("s_barrier")
        po = (i % NSLOT) * SLOT
        hi = po >= 65536 - 1024
        if hi:
            for k in range(4):
                m(f"v_add_u32 v{vTmp+k}, 0x10000, v{gPX+k}")
        for k in range(4):
            if hi: m(f"ds_read_b128 {a(aSX+4*k,4)}, v{vTmp+k} offset:{po - 65536}")
            else: m(f"ds_read_b128 {a(aSX+4*k,4)}, v{gPX+k} offset:{po}")
        if hi:
            for k in range(4):
                m(f"v_add_u32 v{vTmp+k}, 0x10000, v{gPB+k}")
        for k in range(4):
            for mm in range(2):
                if hi: m(f"ds_read_b128 {a(aSB+8*k+4*mm,4)}, v{vTmp+k} offset:{po - 65536 + mm*1024}")
                else: m(f"ds_read_b128 {a(aSB+8*k+4*mm,4)}, v{gPB+k} offset:{po + mm*1024}")
        for k in range(4):
            for mm, acc in ((0, aRE), (1, aIM)):
                c = v(acc, 16) if (i, k) != (0, 0) else "0"
                m(f"v_mfma_f32_32x32x16_bf16 {v(acc,16)}, {a(aSX+4*k,4)}, {a(aSB+8*k+4*mm,4)}, {c}")
    f = F()
    f.ext(k1_nonce())
    f.ext(k1_params())
    f.ext(k1_setup_common())
    g = B()
    g(f"v_mov_b32 v{vTmp}, 0")
    g(f"global_load_dwordx2 {v(vNon,2)}, v{vTmp}, s[32:33] sc1")
    f.group(g)
    b.ext(merge(m.ops, f.ops, per=int(opts.get('per1', 5))))
    b("s_waitcnt vmcnt(0)")
    stamp(b, 2)
    s1 = flat(k1_scan1a().ops)
    cut = [j for j, o in enumerate(s1) if o.kind == 'ds'][0]
    if STAMP >= 2: stamp(b, 8)
    b.ext(s1[:cut])
    if STAMP >= 2: stamp(b, 9)
    b("s_barrier")
    b.ext(s1[cut:])
    if STAMP >= 2: stamp(b, 11)
    b("s_barrier")
    if STAMP >= 2: stamp(b, 12)
    b.ext(flat(k1_scan1b().ops))
    if STAMP >= 2: stamp(b, 13)
    b.ext(k1_publish())
    stamp(b, 3)
    b("s_barrier")
    b("s_barrier")
    stamp(b, 4)
    b.ext(k1_lookback())
    stamp(b, 5)
    b.ext(k1_final())
    stamp(b, 6)
    return b

def cfma_sr(b, d, l, h, ure, uim, tmp):
    b(f"v_fma_f32 v{tmp}, v{l}, v{h}, v{ure}")
    b(f"v_fma_f32 v{tmp+1}, v{l}, v{h+1}, v{uim}")
    b(f"v_fma_f32 v{d}, -v{l+1}, v{h+1}, v{tmp}")
    b(f"v_fma_f32 v{d+1}, v{l+1}, v{h}, v{tmp+1}")

def k1_scan1a():
    b = F()
    tmp = vTmp
    R = lambda t: aRE + reg_of_t(t)
    I = lambda t: aIM + reg_of_t(t)
    b(f"v_mov_b32 v{vQ}, v{R(0)}\nv_mov_b32 v{vQ+1}, v{I(0)}")
    cur = vQ
    for t in range(1, 16):
        nxt = vQ if cur == vW_ else vW_
        cfma_sr(b, nxt, vL, cur, R(t), I(t), tmp)
        cur = nxt
    assert cur == vW_
    b(f"v_mov_b32 v{vPre}, v{cur}\nv_mov_b32 v{vPre+1}, v{cur+1}")
    b(f"v_mov_b32 v{vQ}, v{cur}\nv_mov_b32 v{vQ+1}, v{cur+1}")
    b(f"v_permlane32_swap_b32 v{vPre}, v{vQ}")
    b(f"v_permlane32_swap_b32 v{vPre+1}, v{vQ+1}")
    cfma_s(b, vW_, vL16, vPre, vQ, tmp)
    b(f"v_mul_f32 v{vPre}, v{vPre}, v{vHfm}\nv_mul_f32 v{vPre+1}, v{vPre+1}, v{vHfm}")
    t = vP
    b(f"v_and_b32 v{t+14}, 31, v{vLane}")
    b(f"v_lshlrev_b32 v{t+14}, 3, v{t+14}")
    b(f"v_add_u32 v{t+14}, {SCR}, v{t+14}")
    b(f"s_lshl_b32 s{sK0}, s{sWm}, 8")
    b(f"v_add_u32 v{t+15}, s{sK0}, v{t+14}")
    b(f"ds_write_b64 v{t+15}, {v(vW_,2)} offset:{SC}", "Wx")
    b.wait('lg', "Wx")
    return b

def k1_scan1b():
    b = F()
    t = vP; tmp = vTmp
    for w in range(4):
        b(f"ds_read_b64 {v(t+2*w,2)}, v{t+14} offset:{SC + 256*w}")
    W0, W1, W2, W3 = t, t+2, t+4, t+6
    Q2, Q3 = t+8, t+10
    cfma_s(b, Q2, vL32, W0, W1, tmp)
    cfma_s(b, Q3, vL32, Q2, W2, tmp)
    E = t + 12
    cfma_s(b, E, vL32, Q3, W3, tmp)
    for h in range(2):
        b(f"v_cndmask_b32 v{vQ+h}, 0, v{W0+h}, {s(sM1,2)}")
        b(f"v_cndmask_b32 v{vQ+h}, v{vQ+h}, v{Q2+h}, {s(sM2,2)}")
        b(f"v_cndmask_b32 v{vQ+h}, v{vQ+h}, v{Q3+h}, {s(sM3,2)}")
    cfma_s(b, vK, vF1, vQ, vPre, tmp)
    return b

def k1_publish():
    t = vP; E = t + 12; tmp = vTmp
    g = B()
    g(f"s_lshl_b32 s{sK0}, s{sR}, 13")
    g(f"v_add_u32 v{tmp}, s{sK0}, v{vLBa}")
    g(f"v_lshrrev_b32 v{tmp+1}, 3, v{vLane}")
    g(f"v_cmp_ne_u32 vcc, 0, v{vNon+1}")
    g("s_cbranch_vccnz L_k1_nonce_ok")
    g(f"s_mov_b32 s{sSpin}, 0")
    g("L_k1_nonce_retry:")
    g(f"v_mov_b32 v{tmp+2}, 0")
    g(f"global_load_dwordx2 {v(vNon,2)}, v{tmp+2}, s[32:33] sc1", 'nocount')
    g("s_waitcnt vmcnt(0)", 'nocount')
    g(f"s_add_u32 s{sSpin}, s{sSpin}, 1")
    g(f"s_cmp_gt_u32 s{sSpin}, 40000")
    g("s_cbranch_scc1 L_k1_nonce_ok")
    g(f"v_cmp_ne_u32 vcc, 0, v{vNon+1}")
    g("s_cbranch_vccz L_k1_nonce_retry")
    g("L_k1_nonce_ok:")
    g(f"v_mov_b32 v{E+2}, v{vNon}\nv_mov_b32 v{E+3}, v{vNon+1}")
    g(f"v_cmp_eq_u32 vcc, s{sWm}, v{tmp+1}")
    g(f"s_and_saveexec_b64 {s(sEX,2)}, vcc")
    g(f"global_store_dwordx4 v{tmp}, {v(E,4)}, s[34:35] sc0 sc1")
    g(f"s_mov_b64 exec, {s(sEX,2)}")
    return g

def k1_lookback():
    b = B(); tmp = vTmp; t = vP
    H = vW_
    def loads(tok):
        b(f"s_sub_u32 s{sK0}, s{sR}, 1")
        b(f"s_lshl_b32 s{sK0}, s{sK0}, 13")
        b(f"v_lshrrev_b32 v{t}, 5, v{vLane}")
        b(f"v_lshlrev_b32 v{t}, 13, v{t}")
        b(f"v_sub_u32 v{t}, s{sK0}, v{t}")
        b(f"v_add_u32 v{t}, v{vLBa}, v{t}")
        for mm in range(8):
            if mm: b(f"v_subrev_u32 v{t}, 16384, v{t}")
            b(f"v_max_i32 v{t+1}, v{t}, v{vLBa}")
            b(f"global_load_dwordx4 {v(vU+4*mm,4)}, v{t+1}, s[34:35] sc1", tok)
    b(f"s_cmp_eq_u32 s{sR}, 0")
    b("s_cbranch_scc1 L_k1_lb_zero")
    b(f"s_mov_b32 s{sSpin}, 0")
    b("L_k1_lb_again:")
    loads('nocount')
    b("s_waitcnt vmcnt(0)", 'nocount')
    b(f"s_mov_b64 {s(sEX,2)}, -1")
    for mm in range(8):
        b(f"s_cmp_le_u32 s{sR}, {2*mm}")
        b("s_cbranch_scc1 L_k1_lb_checked")
        b(f"s_cmp_ge_u32 s{sR}, {2*mm+2}")
        b(f"s_cselect_b32 s{sT1}, 0, -1")
        b(f"v_cmp_eq_u32 vcc, v{vU+4*mm+2}, v{vNon}")
        b(f"v_cmp_eq_u32 {s(sT2,2)}, v{vU+4*mm+3}, v{vNon+1}")
        b(f"s_and_b64 vcc, vcc, {s(sT2,2)}")
        b(f"s_or_b32 vcc_hi, vcc_hi, s{sT1}")
        b(f"s_and_b64 {s(sEX,2)}, {s(sEX,2)}, vcc")
    b("L_k1_lb_checked:")
    b(f"s_cmp_eq_u64 {s(sEX,2)}, -1")
    b("s_cbranch_scc1 L_k1_lb_ok")
    b(f"s_add_u32 s{sSpin}, s{sSpin}, 1")
    b(f"s_cmp_gt_u32 s{sSpin}, 40000")
    b("s_cbranch_scc1 L_k1_lb_ok")
    b(f"s_sleep {int(opts.get('lbsleep', 4))}")
    b("s_branch L_k1_lb_again")
    b("L_k1_lb_ok:")
    b(f"v_mov_b32 v{H}, 0\nv_mov_b32 v{H+1}, 0")
    for mm in range(7, -1, -1):
        b(f"s_cmp_le_u32 s{sR}, {2*mm}")
        b(f"s_cbranch_scc1 L_k1_lb_h{mm}")
        b(f"s_cmp_ge_u32 s{sR}, {2*mm+2}")
        b(f"s_cselect_b32 s{sT3}, -1, 0")
        b(f"s_mov_b32 s{sT2}, -1")
        b(f"v_cndmask_b32 v{vU+4*mm}, 0, v{vU+4*mm}, {s(sT2,2)}")
        b(f"v_cndmask_b32 v{vU+4*mm+1}, 0, v{vU+4*mm+1}, {s(sT2,2)}")
        b(f"v_pk_fma_f32 {v(tmp,2)}, {v(vL256,2)}, {v(H,2)}, {v(vU+4*mm,2)} op_sel:[0,0,0] op_sel_hi:[0,1,1]")
        b(f"v_pk_fma_f32 {v(H,2)}, {v(vL256,2)}, {v(H,2)}, {v(tmp,2)} op_sel:[1,1,0] op_sel_hi:[1,0,1] neg_lo:[1,0,0]")
        b(f"L_k1_lb_h{mm}:")
    b(f"v_mov_b32 v{vPre}, v{H}\nv_mov_b32 v{vPre+1}, v{H+1}")
    b(f"v_permlane32_swap_b32 v{H}, v{vPre}")
    b(f"v_permlane32_swap_b32 v{H+1}, v{vPre+1}")
    cfma(b, t, vL128, vPre, H, tmp)
    cfma(b, vQ, vG, t, vK, tmp)
    b("s_branch L_k1_lb_done")
    b("L_k1_lb_zero:")
    b(f"v_mov_b32 v{vQ}, v{vK}\nv_mov_b32 v{vQ+1}, v{vK+1}")
    b("L_k1_lb_done:")
    return b

def k1_final():
    b = B()
    tmp = vTmp
    prev = vQ
    for t in range(16):
        r = reg_of_t(t)
        u = vU + 2 * r
        cfma_sr(b, u, vL, prev, aRE + r, aIM + r, tmp)
        prev = u
    for r in range(16):
        u = vU + 2 * r
        tp = vP + 2 * (r % 4)
        b(f"v_pk_mul_f32 {v(tp,2)}, {v(vC2,2)}, {v(u,2)} op_sel:[0,0] op_sel_hi:[1,0]")
        b(f"v_pk_fma_f32 {v(u,2)}, {v(vC2,2)}, {v(u,2)}, {v(tp,2)} op_sel:[1,1,0] op_sel_hi:[0,1,1] neg_lo:[1,0,0]")
    for k in range(8):
        b(f"v_cvt_pk_bf16_f32 v{aRE+k}, v{vU+4*k}, v{vU+4*k+2}")
    for h in range(2):
        b(f"ds_write_b128 v{vImgW}, {v(aRE+4*h,4)} offset:{IMG + h*16}", "img")
    for k in range(8):
        b(f"v_cvt_pk_bf16_f32 v{aRE+8+k}, -v{vU+4*k+1}, -v{vU+4*k+3}")
    for h in range(2):
        b(f"ds_write_b128 v{vImgW}, {v(aRE+8+4*h,4)} offset:{IMG + 2560 + h*16}", "img")
    b(f"s_lshl_b32 s{sT2}, s{sS}, 12")
    b(f"s_add_u32 s{sT1}, s{sHFb}, s{sT2}")
    b.wait('lg', "img")
    for m in range(2):
        for kk in range(2):
            r = aIM + (2*m + kk) * 4
            for rd in range(2):
                b(f"ds_read_b64_tr_b16 {v(r+2*rd,2)}, v{vImgR} offset:{IMG + (m*32 + 16*kk + 4*rd)*80}")
    for m in range(2):
        for kk in range(2):
            r = aIM + (2*m + kk) * 4
            b(f"s_add_u32 s{sT2}, s{sT1}, {(2*m+kk)*1024}")
            b(f"buffer_store_dwordx4 {v(r,4)}, v{vL16o}, {s(sHF,4)}, s{sT2} offen {STF}")
    return b

def gen_k1():
    global STV
    STV = 15
    pro = k1_head()
    S = k1_S()
    dbgt_end(S, "s[32:33]", 44)
    stamp_end(S, sWave, "s[34:35]", 0x2000000, vLane, 3, 14)
    S("s_endpgm")
    Fm = B(); Fm("L_k1_F:")
    Fm(f"s_cmp_ge_u32 s{sS}, 14")
    Fm("s_cbranch_scc1 L_k1_Fn")
    f1 = k1_F(True)
    dbgt_end(f1, "s[32:33]", 20)
    stamp_end(f1, sWave, "s[34:35]", 0x2000000, vLane, 3, 14)
    f1("s_endpgm")
    Fn = B(); Fn("L_k1_Fn:")
    f2 = k1_F(False)
    dbgt_end(f2, "s[32:33]", 20)
    stamp_end(f2, sWave, "s[34:35]", 0x2000000, vLane, 3, 14)
    f2("L_k1_end:")
    f2("s_endpgm")
    def path(prefix, body, label=None):
        allops = insert_waits(copy.deepcopy(prefix) + body)
        if label:
            idx = [i for i, o in enumerate(allops) if o.text == label][0]
            allops = allops[idx:]
        return insert_hazard_nops(allops)
    out = path([], pro.ops + S.ops)
    out += path(pro.ops, Fm.ops + f1.ops, "L_k1_F:")
    out += path(pro.ops + Fm.ops, Fn.ops + f2.ops, "L_k1_Fn:")
    return out

def gen_k2():
    global STV
    STV = 9
    b = B()
    D = 15
    DW = int(opts.get('k2dw', 5))
    sWv, sH, sMt, sN = 40, 41, 42, 43
    sA, sCR, sCI, sW2 = 44, 48, 76, 80
    t0, t1, t2 = 52, 53, 54
    sS0, sF0 = 56, 57
    sLw = 58
    sCoff, sWoff2 = 59, 62
    vH0, vH1 = 4, 5
    vCe, vCo, vWa, vWb = 2, 3, 60, 61
    vPp, vTp = 48, 52
    accS, accF, vBuf = 64, 128, 192
    vNon2 = 14
    vTau = 8
    vG1, vG2 = 10, 12
    PITCH = 256
    LRED = 0
    LSTG = 65536
    dbgt_begin(b)
    stamp_begin(b)
    b("s_load_dwordx2 s[18:19], s[0:1], 112")
    b("s_load_dwordx2 s[4:5], s[0:1], 0")
    b("s_load_dwordx4 s[12:15], s[0:1], 40")
    b("s_load_dwordx2 s[6:7], s[0:1], 64")
    b("s_load_dwordx2 s[16:17], s[0:1], 88")
    b("s_load_dwordx2 s[8:9], s[0:1], 104")
    b("s_load_dwordx2 s[10:11], s[0:1], 120")
    b("s_cmp_ge_u32 s2, 256")
    b("s_cbranch_scc1 L_k2_end")
    b("v_lshrrev_b32 v6, 6, v0")
    b("v_and_b32 v1, 63, v0")
    b(f"v_readfirstlane_b32 s{sWv}, v6")
    b(f"s_and_b32 s{sH}, s2, 1")
    b(f"s_bfe_u32 s{t0}, s2, 0x20001")
    b(f"s_lshr_b32 s{t1}, s2, 3")
    b(f"s_and_b32 s{sMt}, s{t1}, 3")
    b(f"s_lshl_b32 s{t0}, s{t0}, 2")
    b(f"s_add_u32 s{sMt}, s{sMt}, s{t0}")
    b(f"s_lshr_b32 s{sN}, s{t1}, 2")
    b("v_and_b32 v6, 7, v1")
    b("v_lshrrev_b32 v7, 4, v1")
    b("v_xor_b32 v6, v6, v7")
    b("v_lshlrev_b32 v6, 4, v6")
    b("v_lshrrev_b32 v7, 3, v1")
    b("v_lshlrev_b32 v7, 10, v7")
    b(f"v_add_u32 v{vCe}, v6, v7")
    b(f"v_xor_b32 v{vCo}, 64, v{vCe}")
    b("v_bfe_u32 v6, v1, 4, 1")
    b("v_lshlrev_b32 v6, 2, v6")
    b("v_and_b32 v29, 7, v1")
    b("v_xor_b32 v6, v6, v29")
    b("v_lshlrev_b32 v6, 4, v6")
    b(f"v_add_u32 v{vWa}, v6, v7")
    b(f"v_add_u32 v{vWb}, {8192 - 1024}, v{vWa}")
    b(f"s_lshl_b32 s{sCoff}, s{sN}, 16")
    b(f"s_lshl_b32 s{t0}, s{sH}, 9")
    b(f"s_add_u32 s{sCoff}, s{sCoff}, s{t0}")
    b(f"s_lshl_b32 s{t0}, s{sWv}, 7")
    b(f"s_add_u32 s{sCoff}, s{sCoff}, s{t0}")
    b(f"s_lshl_b32 s{t0}, s{sH}, 2")
    b(f"s_add_u32 s{t0}, s{t0}, s{sWv}")
    b(f"s_mul_i32 s{sWoff2}, s{t0}, {14*16*1024}")
    b(f"s_lshl_b32 s{t0}, s{sN}, 7")
    b(f"s_add_u32 s{sWoff2}, s{sWoff2}, s{t0}")
    b(f"s_mul_i32 s{sLw}, s{sWv}, 24576")
    b(f"s_add_u32 s{sLw}, s{sLw}, {LSTG}")
    b(f"s_xor_b32 s{t0}, s{sH}, 1")
    b(f"s_lshl_b32 s{t0}, s{t0}, 1")
    b(f"s_lshl_b32 s{t1}, s{sMt}, 2")
    b(f"s_add_u32 s{t0}, s{t0}, s{t1}")
    b(f"s_mul_i32 s{t0}, s{t0}, {176*1024}")
    b("v_lshlrev_b32 v6, 4, v1")
    b(f"v_add_u32 v{vH0}, s{t0}, v6")
    b(f"v_add_u32 v{vH1}, {176*1024}, v{vH0}")
    b(f"s_lshl_b32 s{sS0}, s{sH}, 2")
    b(f"s_add_u32 s{sS0}, s{sS0}, s{sWv}")
    b(f"s_lshl_b32 s{sS0}, s{sS0}, 13")
    b(f"s_lshl_b32 s{sF0}, s{sH}, 2")
    b(f"s_add_u32 s{sF0}, s{sF0}, s{sWv}")
    b(f"s_mul_i32 s{sF0}, s{sF0}, {14*1024}")
    b(f"s_add_u32 s{sF0}, s{sF0}, {64*1024}")
    b("s_waitcnt lgkmcnt(0)")
    srd(b, sA, 10, WS_USED)
    srd(b, sCR, 12, 512*1024)
    srd(b, sCI, 14, 512*1024)
    srd(b, sW2, 16, 1792*1024)
    steps = [('S', i) for i in range(8)] + [('F', i) for i in range(14)]
    NS = len(steps)
    seq = [(1, st) for st in range(NS)] + [(2, st) for st in range(NS)]
    def hreg(idx, k):
        sl = idx % D
        if sl < 8: return v(vBuf + sl * 8 + k * 4, 4)
        return a(200 + (sl - 8) * 8 + k * 4, 4)
    def dma_c(m):
        for aa in range(8):
            b(f"s_add_u32 m0, s{sLw}, {m*8192 + aa*1024}")
            b(f"s_add_u32 s{t2}, s{sCoff}, {aa*8192}")
            b(f"buffer_load_dwordx4 v{vCe if aa % 2 == 0 else vCo}, {s(sCR if m == 0 else sCI,4)}, s{t2} offen lds", f"c{m}")
    def wslot(i):
        if i < 4: return 16384 + i * 2048
        if i < 12: return (i - 4) * 2048
        return 16384 + (i - 12) * 2048
    def dma_f(i):
        b(f"s_add_u32 m0, s{sLw}, {wslot(i)}")
        b(f"s_add_u32 s{t2}, s{sWoff2}, {i*16*1024}")
        b(f"buffer_load_dwordx4 v{vWa}, {s(sW2,4)}, s{t2} offen lds", f"f{i}")
        b(f"buffer_load_dwordx4 v{vWb}, {s(sW2,4)}, s{t2} offen offset:1024 lds", f"f{i}")
    def hloads(idx):
        ps, st = seq[idx]
        kind, i = steps[st]
        sb = sS0 if kind == 'S' else sF0
        if ps == 2 and st == 0:
            b(f"s_lshl_b32 s{t0}, s{sH}, 2")
            b(f"s_sub_u32 s{t0}, s{t0}, 2")
            b(f"s_mul_i32 s{t0}, s{t0}, {176*1024}")
            b(f"v_add_u32 v{vH0}, s{t0}, v{vH0}")
            b(f"v_add_u32 v{vH1}, s{t0}, v{vH1}")
        b(f"s_add_u32 s{t1}, s{sb}, {i*1024}")
        b(f"buffer_load_dwordx4 {hreg(idx,0)}, v{vH0}, {s(sA,4)}, s{t1} offen")
        b(f"buffer_load_dwordx4 {hreg(idx,1)}, v{vH1}, {s(sA,4)}, s{t1} offen")
    def wreads_s():
        for j in range(8):
            m = (j >> 1) & 1; ksp = 2 * (j >> 2) + (j & 1)
            if j == 0: b.wait('vm', "c0")
            if j == 2: b.wait('vm', "c1")
            for aa in range(2):
                b(f"ds_read_b128 {a(8*j+4*aa,4)}, v{vPp+ksp} offset:{m*8192 + aa*4096}", f"wr{j}")
    def wreads_f(i):
        st = 8 + i
        b.wait('vm', f"f{i}")
        for aa in range(2):
            for rd in range(2):
                b(f"ds_read_b64_tr_b16 {a(8*st+4*aa+2*rd,2)}, v{vTp+aa} offset:{wslot(i) + rd*8*128}", f"wr{st}")
    if STAMP >= 2: stamp(b, 24)
    dma_c(0)
    hloads(0); hloads(1)
    dma_c(1)
    b("v_and_b32 v6, 31, v1")
    b("v_lshlrev_b32 v6, 7, v6")
    b(f"v_add_u32 v6, s{sLw}, v6")
    b("v_lshrrev_b32 v7, 5, v1")
    b("v_bfe_u32 v29, v1, 1, 3")
    b("v_xor_b32 v29, v7, v29")
    for k in range(4):
        b(f"v_xor_b32 v7, {2*k}, v29")
        b(f"v_lshl_add_u32 v{vPp+k}, v7, 4, v6")
    tr_pattern(b, vTp, 4, 54)
    b(f"v_add_u32 v{vTp}, s{sLw}, v{vTp}")
    b(f"v_add_u32 v{vTp+1}, s{sLw}, v{vTp+1}")
    b("v_bfe_u32 v6, v1, 3, 2")
    b("v_and_b32 v7, 7, v1")
    b(f"v_lshl_add_u32 v{vTau}, v7, 2, v6")
    b(f"s_xor_b32 s{t0}, s{sH}, 1")
    b(f"s_lshl_b32 s{t0}, s{t0}, 6")
    b(f"s_lshl_b32 s{t1}, s{sMt}, 7")
    b(f"s_add_u32 s{t0}, s{t0}, s{t1}")
    b(f"v_add_u32 v6, s{t0}, v{vTau}")
    b("v_lshlrev_b32 v6, 3, v6")
    b(f"v_add_u32 v6, {G_OFF}, v6")
    b(f"global_load_dwordx2 v[10:11], v6, s[10:11]")
    b(f"global_load_dwordx2 v[12:13], v6, s[10:11] offset:256")
    b(f"s_lshl_b32 s{t0}, s{sH}, 7")
    b(f"s_sub_u32 s{t0}, s{t0}, 64")
    b(f"s_lshl_b32 s{t0}, s{t0}, 3")
    b(f"v_add_u32 v6, s{t0}, v6")
    b(f"global_load_dwordx2 v[16:17], v6, s[10:11]")
    b(f"global_load_dwordx2 v[18:19], v6, s[10:11] offset:256")
    b(f"v_mov_b32 v6, {NONCE_OFF}")
    b(f"global_load_dwordx2 {v(vNon2,2)}, v6, s[10:11]")
    if STAMP >= 2: stamp(b, 25)
    DH = int(opts.get('k2dh', 5))
    for idx in range(2, DH): hloads(idx)
    if STAMP >= 2: stamp(b, 26)
    vWr, vRd = 20, 21
    vWrq = 56
    b(f"s_lshl_b32 s{t0}, s{sWv}, 14")
    b(f"v_lshlrev_b32 v29, 8, v{vTau}")
    b(f"v_add_u32 v29, s{t0}, v29")
    b("v_lshrrev_b32 v6, 5, v1")
    b("v_and_b32 v7, 7, v1")
    b("v_xor_b32 v6, v6, v7")
    for q in range(4):
        b(f"v_xor_b32 v7, {2*q}, v6")
        b(f"v_lshl_add_u32 v{vWrq+q}, v7, 4, v29")
    b("v_lshrrev_b32 v22, 4, v0")
    b("v_and_b32 v23, 15, v0")
    b("v_lshrrev_b32 v6, 6, v0")
    b("v_xor_b32 v6, v6, v23")
    b(f"v_lshlrev_b32 v{vRd}, 8, v22")
    b(f"v_lshl_add_u32 v{vRd}, v6, 4, v{vRd}")
    b(f"v_xor_b32 v{vWr}, 64, v{vRd}")
    vXch = 24
    b(f"v_lshlrev_b32 v{vXch}, 4, v0")
    b(f"s_lshl_b32 s{t0}, s2, 14")
    b(f"s_add_u32 s{t0}, s{t0}, {XCH_OFF}")
    b(f"v_add_u32 v25, s{t0}, v{vXch}")
    b(f"s_xor_b32 s{t1}, s2, 1")
    b(f"s_lshl_b32 s{t0}, s{t1}, 14")
    b(f"s_add_u32 s{t0}, s{t0}, {XCH_OFF}")
    b(f"v_add_u32 v26, s{t0}, v{vXch}")
    if STAMP >= 2: stamp(b, 27)
    wreads_s()
    if STAMP >= 2: stamp(b, 28)

    def mfmas(idx):
        ps, st = seq[idx]
        kind, i = steps[st]
        acc = accS if kind == 'S' else accF
        out = []
        for aa in range(2):
            for bb in range(2):
                dreg = v(acc + (aa*2 + bb) * 16, 16)
                c = dreg if i else "0"
                out.append(f"v_mfma_f32_32x32x16_bf16 {dreg}, {a(8*st+4*aa,4)}, {hreg(idx,bb)}, {c}")
        return out

    def reduce_write(g0, g1):
        for aa in range(2):
            for bb in range(2):
                g = g0 if bb == 0 else g1
                S = accS + (aa*2+bb)*16; Fq = accF + (aa*2+bb)*16
                for p in range(8):
                    b(f"v_pk_mul_f32 {v(S+2*p,2)}, {v(S+2*p,2)}, {v(g,2)} op_sel_hi:[1,0]")
                for p in range(8):
                    b(f"v_pk_fma_f32 {v(S+2*p,2)}, {v(Fq+2*p,2)}, {v(g,2)}, {v(S+2*p,2)} op_sel:[0,1,0] op_sel_hi:[1,1,1]")
                for q in range(4):
                    b(f"ds_write_b128 v{vWrq+q}, {v(S+4*q,4)} offset:{LRED + bb*32*PITCH + aa*128}", "red")
        b.wait('lg', "red")
        b("s_barrier")
    def reduce_read(dst, gran=None):
        for p in range(4):
            for w in range(4):
                b(f"ds_read_b128 {v(dst+16*p+4*w,4)}, v{vRd if p % 2 == 0 else vWr} offset:{LRED + w*64*PITCH + p*16*PITCH}")
        for p in range(4):
            r = dst + 16*p
            b(f"v_pk_add_f32 {v(r,2)}, {v(r,2)}, {v(r+4,2)}")
            b(f"v_pk_add_f32 {v(r+2,2)}, {v(r+2,2)}, {v(r+6,2)}")
            b(f"v_pk_add_f32 {v(r+8,2)}, {v(r+8,2)}, {v(r+12,2)}")
            b(f"v_pk_add_f32 {v(r+10,2)}, {v(r+10,2)}, {v(r+14,2)}")
            if gran is None:
                b(f"v_pk_add_f32 {v(r,2)}, {v(r,2)}, {v(r+8,2)}")
                b(f"v_pk_add_f32 {v(r+2,2)}, {v(r+2,2)}, {v(r+10,2)}")
            else:
                for e in range(4):
                    u = 4 * p + e
                    b(f"v_add_f32 v{gran + 4*(u//3) + u%3}, v{r+e}, v{r+8+e}")

    total = len(seq)
    sNib = 84
    XS_ = 32
    PR_ = vBuf
    def r1c():
        f = F()
        for p in range(4):
            for w in range(4):
                f(f"ds_read_b128 {v(accF+16*p+4*w,4)}, v{vRd if p % 2 == 0 else vWr} offset:{LRED + w*64*PITCH + p*16*PITCH}")
        for p in range(4):
            r = accF + 16*p
            for e in range(4): f(f"v_add_f32 v{r+e}, v{r+e}, v{r+4+e}")
            for e in range(4): f(f"v_add_f32 v{r+8+e}, v{r+8+e}, v{r+12+e}")
            for e in range(4): f(f"v_add_f32 v{r+e}, v{r+e}, v{r+8+e}")
            for e in range(4): f(f"v_and_or_b32 v{XS_+4*p+e}, v{r+e}, -16, s{sNib+e}")
        return f
    def step_ops(idx):
        ps, st = seq[idx]
        kind, i = steps[st]
        n00 = len(b.ops)
        mf = mfmas(idx)
        if ps == 1: b.wait('lg', f"wr{st}")
        b(mf[0])
        if ps == 1:
            fi = st - 2
            if st == 6: b.wait('lg', "wr7")
            if 0 <= fi < 14: dma_f(fi)
        b(mf[1])
        if ps == 1 and 8 <= st + 1 < NS:
            wreads_f(st + 1 - 8)
        b(mf[2])
        n0 = len(b.ops)
        tg = []
        if ps == 1:
            if st + DH < NS: tg = [st + DH]
            else:
                j = st + DH - NS
                tg = [NS + 2 * j, NS + 2 * j + 1]
        elif idx + D < total: tg = [idx + D]
        for t_ in tg: hloads(t_)
        ld = b.ops[n0:]; del b.ops[n0:]
        cut = [j for j, o in enumerate(ld) if o.kind == 'vmem']
        if cut:
            b.ext(ld[:cut[0] + 1]); b(mf[3]); b.ext(ld[cut[0] + 1:])
        else:
            b(mf[3])
        ops = b.ops[n00:]; del b.ops[n00:]
        return ops
    for idx in range(NS):
        b.ext(step_ops(idx))
        st = idx
        if st == 2:
            b(f"v_readfirstlane_b32 s{t0}, v{vNon2}")
            for j in range(4):
                b(f"s_bfe_u32 s{sNib+j}, s{t0}, {(4 << 16) | (4*j):#x}")
        if STAMP >= 2 and st in (0, 3, 7, 11, 15, 19): stamp(b, 8 + (0, 3, 7, 11, 15, 19).index(st))
    stamp(b, 1)
    n0 = len(b.ops); reduce_write(vG1, vG2); rw = b.ops[n0:]; del b.ops[n0:]
    K0 = 2 * DH
    n0 = len(b.ops)
    for k in range(K0, 15): hloads(NS + k)
    hl = chunks_of(b.ops[n0:]); del b.ops[n0:]
    body, tail = rw[:-2], rw[-2:]
    gap = max(1, len(body) // (len(hl) + 1))
    outp = []
    for j, o in enumerate(body):
        outp.append(o)
        if (j + 1) % gap == 0 and hl: outp.extend(hl.pop(0))
    for c in hl: outp.extend(c)
    b.ext(outp + tail)
    stamp(b, 2)
    p2a = []
    for st in range(7): p2a += step_ops(NS + st)
    b.ext(merge(p2a, r1c().ops, per=4))
    PL = int(opts.get('k2pl', 16))
    BI = vBuf + 16
    def bias_fill():
        f = F()
        f("v_lshlrev_b32 v4, 16, v40\nv_and_b32 v5, 0xffff0000, v40\nv_lshlrev_b32 v6, 16, v41\nv_and_b32 v7, 0xffff0000, v41")
        for p in range(4):
            xs = 32 + 2*p; tp = BI + 4*p
            f(f"v_lshlrev_b32 v{tp}, 16, v{xs}\nv_and_b32 v{tp+1}, 0xffff0000, v{xs}\nv_lshlrev_b32 v{tp+2}, 16, v{xs+1}\nv_and_b32 v{tp+3}, 0xffff0000, v{xs+1}")
            for e in range(4): f(f"v_mul_f32 v{tp+e}, v{tp+e}, v{4+e}")
            f(f"v_cvt_pk_bf16_f32 v46, v{tp}, v{tp+1}")
            f(f"v_cvt_pk_bf16_f32 v47, v{tp+2}, v{tp+3}")
            f(f"v_lshlrev_b32 v{tp}, 16, v46\nv_and_b32 v{tp+1}, 0xffff0000, v46\nv_lshlrev_b32 v{tp+2}, 16, v47\nv_and_b32 v{tp+3}, 0xffff0000, v47")
            for e in range(4): f(f"v_mul_f32 v{tp+e}, v{42+p}, v{tp+e}")
        return f
    tail_steps = []
    for st in range(7, NS):
        idx = NS + st
        ops = step_ops(idx)
        if 7 <= st <= 10:
            p = st - 7
            pre = B()
            if p: pre(f"v_add_u32 v29, {p*4096}, v25")
            pre(f"global_store_dwordx4 v{29 if p else 25}, {v(XS_+4*p,4)}, s[10:11] sc0 sc1")
            ops = ops[:1] + pre.ops + ops[1:]
        if st >= 17:
            tail_steps += ops
            if st == NS - 1: b.ext(merge(tail_steps, bias_fill().ops, per=4))
            continue
        b.ext(ops)
        if STAMP >= 2 and st in (7, 11, 15, 19): stamp(b, 16 + (0, 3, 7, 11, 15, 19).index(st))
        if st == 11:
            b("s_barrier")
        if st == 11:
            b(f"s_lshl_b32 s{t0}, s{sMt}, 7")
            b(f"s_lshl_b32 s{t1}, s{sH}, 6")
            b(f"s_add_u32 s{t0}, s{t0}, s{t1}")
            b(f"v_add_u32 v30, s{t0}, v22")
            b(f"s_lshl_b32 s{t1}, s{sN}, 7")
            b("v_lshlrev_b32 v31, 10, v30")
            b("v_lshl_add_u32 v31, v23, 3, v31")
            b(f"v_add_u32 v31, s{t1}, v31")
            for p in range(4):
                if p: b(f"v_add_u32 v31, {16*1024}, v31")
                b(f"global_load_dwordx2 {v(32+2*p,2)}, v31, s[4:5]")
            b("v_lshlrev_b32 v31, 3, v23")
            b(f"v_add_u32 v31, s{t1}, v31")
            b(f"global_load_dwordx2 v[40:41], v31, s[6:7]")
            b("v_lshlrev_b32 v31, 3, v30")
            b(f"v_add_u32 v31, {G_OFF}, v31")
            for p in range(4):
                b(f"global_load_dword v{42+p}, v31, s[10:11] offset:{p*128}")
            b(f"s_lshl_b32 s{t1}, s{sN}, 8")
            b("v_lshlrev_b32 v2, 11, v30")
            b("v_lshl_add_u32 v2, v23, 4, v2")
            b(f"v_add_u32 v2, s{t1}, v2")
        if st == PL:
            for p in range(4):
                if p: b(f"v_add_u32 v29, {p*4096}, v26")
                b(f"global_load_dwordx4 {v(PR_+4*p,4)}, v{29 if p else 26}, s[10:11] sc1", "prt")
    stamp(b, 3)
    b.wait('vm', "prt")
    b(f"s_mov_b32 s{t0}, 0")
    b("L_k2_chk:")
    b("v_mov_b32 v46, 0")
    for u in range(16):
        b(f"v_xor_b32 v{PR_+u}, s{sNib + (u % 4)}, v{PR_+u}")
        b(f"v_and_or_b32 v46, v{PR_+u}, 15, v46")
    b("v_cmp_eq_u32 vcc, 0, v46")
    b("s_cmp_eq_u64 vcc, -1")
    b("s_cbranch_scc1 L_k2_ok")
    b(f"s_add_u32 s{t0}, s{t0}, 1")
    b(f"s_cmp_gt_u32 s{t0}, 40000")
    b("s_cbranch_scc1 L_k2_ok")
    for p in range(4):
        if p: b(f"v_add_u32 v29, {p*4096}, v26")
        b(f"global_load_dwordx4 {v(PR_+4*p,4)}, v{29 if p else 26}, s[10:11] sc1", 'nocount')
    b("s_waitcnt vmcnt(0)", 'nocount')
    b("s_branch L_k2_chk")
    b("L_k2_ok:")
    if STAMP >= 2: stamp(b, 30)
    n0 = len(b.ops)
    reduce_write(16, 18)
    rw = b.ops[n0:]; del b.ops[n0:]
    fl = F()
    for u in range(0, 16, 2): fl(f"v_pk_add_f32 {v(BI+u,2)}, {v(BI+u,2)}, {v(PR_+u,2)}")
    b.ext(merge(rw, fl.ops, after=lambda o: o.mn.startswith('ds_write'), per=1))
    if STAMP >= 2: stamp(b, 31)
    reduce_read(accF)
    if STAMP >= 2: stamp(b, 32)
    OUTF = opts.get('outf', '').replace('+', ' ')
    for p in range(4):
        r = accF + 16*p
        b(f"v_pk_add_f32 {v(r,2)}, {v(r,2)}, {v(BI+4*p,2)}")
        b(f"v_pk_add_f32 {v(r+2,2)}, {v(r+2,2)}, {v(BI+4*p+2,2)}")
        if p: b(f"v_add_u32 v2, {16*2048}, v2")
        b(f"global_store_dwordx4 v2, {v(r,4)}, s[8:9] {OUTF}")
    stamp(b, 4)
    dbgt_end(b, "s[18:19]", 32, True)
    stamp_end(b, sWv, "s[10:11]", 0x2100000, 1)
    b("L_k2_end:")
    b("s_endpgm")
    return finalize(b.ops)

def header():
    ref = open('cdna_kernels/%s.s.ref' % NAME).read().split('\n')
    hdr = []
    for line in ref:
        if not line.startswith(';'): break
        if '@launch' in line or 'Override launch' in line or 'grid=ceil' in line: continue
        hdr.append(line)
    hdr.append(f"; @launch kernel={K1} grid=(256,1,1) block=(512,1,1) lds=163840")
    hdr.append(f"; @launch kernel={K2} grid=(256,1,1) block=(256,1,1) lds=163840")
    return '\n'.join(hdr)

def kd(name, nv, acc_off, nsg):
    return f""".amdhsa_kernel {name}
  .amdhsa_next_free_vgpr {nv}
  .amdhsa_next_free_sgpr {nsg}
  .amdhsa_accum_offset {acc_off}
  .amdhsa_group_segment_fixed_size 0
  .amdhsa_kernarg_size 128
  .amdhsa_user_sgpr_count 2
  .amdhsa_user_sgpr_kernarg_segment_ptr 1
  .amdhsa_system_sgpr_workgroup_id_x 1
  .amdhsa_float_denorm_mode_32 3
.end_amdhsa_kernel"""

def main():
    k1 = gen_k1()
    k2 = gen_k2()
    out = [header(), '.amdgcn_target "amdgcn-amd-amdhsa--gfx950"', '.text']
    out += [f".globl {K1}", ".p2align 8", f".type {K1},@function", f"{K1}:", render(k1)]
    out += [f".globl {K2}", ".p2align 8", f".type {K2},@function", f"{K2}:", render(k2)]
    out += ['.section .rodata,"a"', '.p2align 6', kd(K1, 256, 128, 102), '.p2align 6', kd(K2, 512, 256, 102)]
    print('\n'.join(out))

main()
```

```python
import sys, copy
sys.path.insert(0, 'dev')
from ir import *

NAME = "gated_mix__ssm_conv_s5__dense_activation_silu__prompt"
K1 = "gm_k1_kernel"
K2 = "gm_k2_kernel"

HF_OFF = 0
HF_SIZE = 64 * 176 * 1024
W2F_OFF = HF_SIZE
W2F_SIZE = 16 * 176 * 1024
G_OFF = W2F_OFF + W2F_SIZE
E_OFF = G_OFF + 2048 * 8
E_SIZE = 16 * 16 * 512
NONCE_OFF = E_OFF + E_SIZE
FLG_OFF = NONCE_OFF + 256
XCH_OFF = FLG_OFF + 256 * 64
WS_USED = XCH_OFF + 256 * 24576

LOG2E = 0x3fb8aa3b
INV2PI = 0x3e22f983

RB, XS, WR = 0, 65536, 114688
SC = 32768
IMG = 36864

opts = dict(a.split('=') for a in sys.argv[1:] if '=' in a)
STAMP = int(opts.get('stamp', 0))
STF = "sc0 sc1"

def v(n, k=1): return f"v{n}" if k == 1 else f"v[{n}:{n+k-1}]"
def a(n, k=1): return f"a{n}" if k == 1 else f"a[{n}:{n+k-1}]"
def s(n, k=1): return f"s{n}" if k == 1 else f"s[{n}:{n+k-1}]"


STV = 15
def reg_of_t(t): return (t >> 2) + 4 * (t & 3)
def srd(b, dst, ptr, size):
    b(f"s_mov_b32 s{dst}, s{ptr}")
    b(f"s_mov_b32 s{dst+1}, s{ptr+1}")
    b(f"s_mov_b32 s{dst+2}, {size}")
    b(f"s_mov_b32 s{dst+3}, 0x20000")


def cexp(b, dst, n_src, va, vang, t0):
    b(f"v_mul_f32 v{t0}, {n_src}, v{va}")
    b(f"v_mul_f32 v{t0+1}, {n_src}, v{vang}")
    b(f"v_exp_f32 v{t0}, v{t0}")
    b(f"v_rndne_f32 v{t0+2}, v{t0+1}")
    b(f"v_sub_f32 v{t0+1}, v{t0+1}, v{t0+2}")
    b(f"v_cos_f32 v{dst}, v{t0+1}")
    b(f"v_sin_f32 v{dst+1}, v{t0+1}")
    b(f"v_mul_f32 v{dst}, v{t0}, v{dst}")
    b(f"v_mul_f32 v{dst+1}, v{t0}, v{dst+1}")


def cfma(b, d, l, h, u, tmp):
    b(f"v_pk_fma_f32 {v(tmp,2)}, {v(l,2)}, {v(h,2)}, {v(u,2)} op_sel:[0,0,0] op_sel_hi:[0,1,1]")
    b(f"v_pk_fma_f32 {v(d,2)}, {v(l,2)}, {v(h,2)}, {v(tmp,2)} op_sel:[1,1,0] op_sel_hi:[1,0,1] neg_lo:[1,0,0]")


def cfma_s(b, d, l, h, u, tmp):
    b(f"v_fma_f32 v{tmp}, v{l}, v{h}, v{u}")
    b(f"v_fma_f32 v{tmp+1}, v{l}, v{h+1}, v{u+1}")
    b(f"v_fma_f32 v{d}, -v{l+1}, v{h+1}, v{tmp}")
    b(f"v_fma_f32 v{d+1}, v{l+1}, v{h}, v{tmp+1}")


def stamp(b, idx):
    if not STAMP: return
    g = B()
    g("s_memtime s[100:101]")
    g("s_waitcnt lgkmcnt(0)")
    g(f"v_writelane_b32 v{STV}, s100, {idx}")
    b.ext(g)


def stamp_begin(b):
    if not STAMP: return
    b(f"v_mov_b32 v{STV}, 0")
    b("s_memrealtime s[100:101]")
    b("s_waitcnt lgkmcnt(0)")
    b(f"v_writelane_b32 v{STV}, s100, 62")
    stamp(b, 0)


def stamp_end(b, wave, ws, off, lane, sh=2, tv=254):
    if not STAMP: return
    b("s_memrealtime s[100:101]")
    b("s_waitcnt lgkmcnt(0)")
    b(f"v_writelane_b32 v{STV}, s100, 63")
    b(f"s_lshl_b32 s100, s2, {sh}")
    b(f"s_add_u32 s100, s100, s{wave}")
    b(f"s_lshl_b32 s100, s100, 8")
    b(f"s_add_u32 s100, s100, {off}")
    b(f"v_lshlrev_b32 v{tv}, 2, v{lane}")
    b(f"v_add_u32 v{tv}, s100, v{tv}")
    b(f"global_store_dword v{tv}, v{STV}, {ws}")


vLane = 1
def tr_pattern(b, dst, hfmul, t):
    L = vLane
    b(f"v_lshrrev_b32 v{t}, 5, v{L}")
    b(f"v_mul_u32_u24 v{t}, {hfmul}, v{t}")
    b(f"v_bfe_u32 v{t+1}, v{L}, 2, 2")
    b(f"v_add_u32 v{t}, v{t}, v{t+1}")
    b(f"v_lshlrev_b32 v{t}, 7, v{t}")
    b(f"v_bfe_u32 v{t+1}, v{L}, 3, 1")
    b(f"v_lshlrev_b32 v{t+1}, 6, v{t+1}")
    b(f"v_bfe_u32 v{t+2}, v{L}, 4, 1")
    b(f"v_lshlrev_b32 v{t+2}, 5, v{t+2}")
    b(f"v_and_b32 v{t+3}, 3, v{L}")
    b(f"v_lshlrev_b32 v{t+3}, 3, v{t+3}")
    b(f"v_add3_u32 v{t}, v{t}, v{t+2}, v{t+3}")
    b(f"v_add_u32 v{dst}, v{t}, v{t+1}")
    b(f"v_xor_b32 v{t+1}, 64, v{t+1}")
    b(f"v_add_u32 v{dst+1}, v{t}, v{t+1}")

SLOT = 24576
NSLOT = 4
WB0 = 98304
SCR = 73728
SC = 0
IMG = 1024
def wblock_lds(q):
    if q < 8: return WB0 + q * 8192
    return (q - 8) * 8192

sX, sBRE, sBIM, sW1, sHF = 36, 40, 44, 48, 52
sWave, sWm, sR, sS, sRho = 60, 61, 62, 63, 56
sLdsX, sLdsB = 64, 65
sT0, sT1, sT2, sT3 = 68, 69, 70, 71
sWL = 72
sM1, sM2, sM3 = 80, 82, 84
sHFb, sK0, sEX = 86, 87, 88
sLo = 90
sSpin, sU = 98, 99

DBGT = int(opts.get('dbgt', 0))
def dbgt_begin(b):
    if not DBGT: return
    b("s_memrealtime s[100:101]")
    b("s_waitcnt lgkmcnt(0)")
    b("s_not_b32 s101, s100")
def dbgt_end(b, dbg, vt, k2=False):
    if not DBGT: return
    b("s_mov_b32 s99, s101")
    b("s_memrealtime s[100:101]")
    b("s_waitcnt lgkmcnt(0)")
    b(f"v_mov_b32 v{vt}, 0")
    b(f"v_mov_b32 v{vt+1}, s99")
    b(f"v_mov_b32 v{vt+2}, s100")
    b("s_mov_b64 exec, 1")
    b(f"global_atomic_umax v{vt}, v{vt+1}, {dbg} offset:16")
    b(f"global_atomic_umax v{vt}, v{vt+2}, {dbg} offset:20")
    if k2:
        b(f"global_load_dwordx2 {v(vt+2,2)}, v{vt}, {dbg} offset:-496 sc1")
        b("s_waitcnt vmcnt(0)")
        b(f"global_store_dwordx2 v{vt}, {v(vt+2,2)}, {dbg} offset:8")
    b("s_mov_b64 exec, -1")

def k1_head():
    b = B()
    dbgt_begin(b)
    stamp_begin(b)
    b("s_load_dwordx16 s[4:19], s[0:1], 0")
    b("s_load_dwordx16 s[20:35], s[0:1], 64")
    b("s_cmp_ge_u32 s2, 256")
    b("s_cbranch_scc1 L_k1_end")
    b("v_lshrrev_b32 v2, 6, v0")
    b(f"v_and_b32 v{vLane}, 63, v0")
    b(f"v_readfirstlane_b32 s{sWave}, v2")
    b(f"s_and_b32 s{sT0}, s2, 7")
    b(f"s_lshr_b32 s{sT1}, s2, 3")
    b(f"s_and_b32 s{sT2}, s{sT1}, 7")
    b(f"s_lshr_b32 s{sT3}, s{sT1}, 3")
    b(f"s_lshr_b32 s{sR}, s{sT0}, 2")
    b(f"s_lshl_b32 s{sR}, s{sR}, 3")
    b(f"s_add_u32 s{sR}, s{sR}, s{sT2}")
    b(f"s_and_b32 s{sS}, s{sT0}, 3")
    b(f"s_lshl_b32 s{sS}, s{sS}, 2")
    b(f"s_add_u32 s{sS}, s{sS}, s{sT3}")
    b(f"s_lshl_b32 s{sRho}, s{sT3}, 1")
    b(f"s_add_u32 s{sRho}, s{sRho}, s{sT2}")
    ROT1 = opts.get('rot1', 'none')
    if ROT1 == 'none': b(f"s_mov_b32 s{sRho}, 0")
    if ROT1 == 'half':
        b(f"s_and_b32 s{sRho}, s{sRho}, 1")
        b(f"s_lshl_b32 s{sRho}, s{sRho}, 2")
    if ROT1 == 'two':
        b(f"s_and_b32 s{sRho}, s{sRho}, 3")
        b(f"s_lshl_b32 s{sRho}, s{sRho}, 1")
    b(f"s_and_b32 s{sWm}, s{sWave}, 3")
    b(f"s_lshl_b32 s{sLdsX}, s{sWm}, 12")
    b(f"s_lshl_b32 s{sLdsB}, s{sWm}, 11")
    b(f"s_lshl_b32 s{sHFb}, s{sR}, 2")
    b(f"s_add_u32 s{sHFb}, s{sHFb}, s{sWm}")
    b(f"s_mul_i32 s{sHFb}, s{sHFb}, {176*1024}")
    b(f"s_cmp_ge_u32 s{sWave}, 4")
    b("s_cbranch_scc1 L_k1_F")
    return b

fXe, fXo, fB, fW = 2, 3, 4, 5
fPX, fTA, fTB, fTC, fL16 = 7, 11, 13, 16, 6 + 0
fPX, fTA, fTB, fTC = 8, 12, 14, 16
fPX, fTA, fTB, fTC, fL16 = 8, 12, 16, 18, 7
fE, fD = 20, 28
fS, fAcc = 32, 64

def dma(b, voff, srdn, soff, tok, imm=0):
    o = f" offset:{imm}" if imm else ""
    b(f"buffer_load_dwordx4 v{voff}, {s(srdn,4)}, {soff} offen{o} lds", tok)
def dma_x(b, i):
    b(f"s_add_u32 m0, s{sLdsX}, {(i % NSLOT) * SLOT}")
    for k in range(4):
        dma(b, fXe if k % 2 == 0 else fXo, sX, f"s{sLo+i}", f"x{i}", k * 1024)
def dma_B(b, i):
    b(f"s_add_u32 m0, s{sLdsB}, {(i % NSLOT) * SLOT + 16384}")
    dma(b, fB, sBRE, f"s{sLo+i}", f"B{i}")
    dma(b, fB, sBIM, f"s{sLo+i}", f"B{i}", 1024)
def dma_w(b, q):
    i, hh = q % 8, q // 8
    b(f"s_add_u32 m0, s{sLdsB}, {wblock_lds(q)}")
    if hh:
        b(f"s_add_u32 s{sT0}, s{sWL+i}, 128")
        so = f"s{sT0}"
    else:
        so = f"s{sWL+i}"
    dma(b, fW, sW1, so, f"w{q}")
    dma(b, fW + 1, sW1, so, f"w{q}", 1024)

def chunks_of(ops):
    ch = []; cur = []
    for o in ops:
        cur.append(o)
        if o.kind == 'vmem': ch.append(cur); cur = []
    if cur: ch.append(cur)
    return ch

def k1_F(ffn):
    b = B(); L = vLane
    t = fE
    for i in range(8):
        b(f"s_add_u32 s{sLo+i}, s{sRho}, {i}")
        b(f"s_and_b32 s{sLo+i}, s{sLo+i}, 7")
        b(f"s_lshl_b32 s{sLo+i}, s{sLo+i}, 7")
    b(f"v_and_b32 v{t}, 7, v{L}")
    b(f"v_lshrrev_b32 v{t+1}, 4, v{L}")
    b(f"v_xor_b32 v{t+2}, v{t}, v{t+1}")
    b(f"v_lshlrev_b32 v{t+2}, 4, v{t+2}")
    b(f"v_lshrrev_b32 v{t+3}, 3, v{L}")
    b(f"s_lshl_b32 s{sT0}, s{sR}, 17")
    b(f"s_lshl_b32 s{sT1}, s{sWm}, 15")
    b(f"s_add_u32 s{sT0}, s{sT0}, s{sT1}")
    b(f"v_lshlrev_b32 v{t}, 12, v{t+3}")
    b(f"v_add3_u32 v{fXe}, v{t}, v{t+2}, s{sT0}")
    b(f"v_xor_b32 v{fXo}, 64, v{fXe}")
    b(f"s_and_b32 s{sT0}, s{sWm}, 1")
    b(f"s_lshl_b32 s{sT0}, s{sT0}, 6")
    b(f"v_xor_b32 v{t+1}, s{sT0}, v{t+2}")
    b(f"s_lshl_b32 s{sT0}, s{sWm}, 13")
    b(f"s_lshl_b32 s{sT1}, s{sS}, 15")
    b(f"s_add_u32 s{sT0}, s{sT0}, s{sT1}")
    b(f"v_lshlrev_b32 v{t}, 10, v{t+3}")
    b(f"v_add3_u32 v{fB}, v{t}, v{t+1}, s{sT0}")
    b("s_waitcnt lgkmcnt(0)")
    srd(b, sX, 4, 2048*1024)
    srd(b, sBRE, 10, 512*1024)
    b(f"s_sub_u32 s{sBIM}, s12, 1024")
    b(f"s_subb_u32 s{sBIM+1}, s13, 0")
    b(f"s_mov_b32 s{sBIM+2}, {512*1024 + 1024}")
    b(f"s_mov_b32 s{sBIM+3}, 0x20000")
    if STAMP >= 2: stamp(b, 8)
    for i in range(3):
        dma_x(b, i); dma_B(b, i)
    if STAMP >= 2: stamp(b, 9)
    srd(b, sHF, 34, WS_USED)
    if ffn:
        srd(b, sW1, 24, 512*3584)
        b(f"v_bfe_u32 v{t+1}, v{L}, 4, 1")
        b(f"v_lshlrev_b32 v{t+1}, 2, v{t+1}")
        b(f"v_and_b32 v{t+3}, 7, v{L}")
        b(f"v_xor_b32 v{t+3}, v{t+3}, v{t+1}")
        b(f"v_lshlrev_b32 v{t+3}, 4, v{t+3}")
        b(f"v_lshrrev_b32 v{t+1}, 3, v{L}")
        b(f"s_lshl_b32 s{sT3}, s{sWm}, 4")
        b(f"v_add_u32 v{t+1}, s{sT3}, v{t+1}")
        b(f"v_mul_u32_u24 v{t+1}, 3584, v{t+1}")
        b(f"v_add_u32 v{fW}, v{t+1}, v{t+3}")
        b(f"v_add_u32 v{fW+1}, {8*3584 - 1024}, v{fW}")
        b(f"s_lshl_b32 s{sT3}, s{sS}, 8")
        for i in range(8):
            b(f"s_mul_i32 s{sWL+i}, s{sLo+i}, 1792")
            b(f"s_add_u32 s{sWL+i}, s{sWL+i}, s{sT3}")
        tr_pattern(b, fTA, 8, t)
        b(f"v_add_u32 v{fTB}, 0x10000, v{fTA}")
        b(f"v_add_u32 v{fTB+1}, 0x10000, v{fTA+1}")
        b(f"v_add_u32 v{fTC}, 0x20000, v{fTA}")
        b(f"v_add_u32 v{fTC+1}, 0x20000, v{fTA+1}")
        b(f"v_lshlrev_b32 v{fL16}, 4, v{L}")
        b(f"v_and_b32 v{t}, 31, v{L}")
        b(f"v_lshrrev_b32 v{t+1}, 5, v{L}")
        b(f"v_bfe_u32 v{t+2}, v{L}, 1, 3")
        b(f"v_xor_b32 v{t+2}, v{t+1}, v{t+2}")
        b(f"v_lshlrev_b32 v{t+1}, 7, v{t}")
        b(f"v_add_u32 v{t+1}, s{sLdsX}, v{t+1}")
        for k in range(4):
            b(f"v_xor_b32 v{t+3}, {2*k}, v{t+2}")
            b(f"v_lshl_add_u32 v{fPX+k}, v{t+3}, 4, v{t+1}")
        b(f"s_mov_b32 s66, {LOG2E ^ 0x80000000:#x}")
        b(f"s_mov_b32 s67, {LOG2E ^ 0x80000000:#x}")
        b(f"s_lshl_b32 s{sU}, s{sS}, 13")
        b(f"s_add_u32 s{sU}, s{sU}, s{sHFb}")
        b(f"s_add_u32 s{sU}, s{sU}, {64*1024}")
    stamp(b, 1)
    for i in range(8):
        if STAMP >= 2: stamp(b, 10 + 2*i)
        b.wait('vm', f"x{i}", f"B{i}")
        b("s_waitcnt lgkmcnt(0)")
        b("s_barrier")
        if STAMP >= 2: stamp(b, 11 + 2*i)
        if ffn:
            po = (i % NSLOT) * SLOT
            if po >= 65536:
                for k in range(4): b(f"v_add_u32 v{fE+k}, 0x10000, v{fPX+k}")
            for k in range(4):
                if po >= 65536: b(f"ds_read_b128 {a(16*i+4*k,4)}, v{fE+k} offset:{po - 65536}")
                else: b(f"ds_read_b128 {a(16*i+4*k,4)}, v{fPX+k} offset:{po}")
        if i <= 4:
            dma_x(b, i + 3); dma_B(b, i + 3)
        elif ffn:
            for q in {5: (0, 1, 2), 6: (3, 4, 5), 7: (6, 7)}[i]: dma_w(b, q)
    stamp(b, 2)
    if not ffn:
        b(f"s_lshl_b32 s{sT0}, s{sR}, 1")
        b(f"s_add_u32 s{sT0}, s{sT0}, s{sS}")
        b(f"s_sub_u32 s{sT0}, s{sT0}, 14")
        b(f"s_lshl_b32 s{sT0}, s{sT0}, 2")
        b(f"s_add_u32 s{sT0}, s{sT0}, s{sWm}")
        b(f"v_lshlrev_b32 v8, 7, v{L}")
        srd(b, sW1, 26, 1792*1024)
        srd(b, sHF, 14, 512*1024)
        srd(b, sX, 16, 512*1024)
        b(f"s_mul_i32 s{sT1}, s{sT0}, 14336")
        b(f"buffer_load_dword v9, v8, {s(sW1,4)}, s{sT1} offen")
        b(f"s_add_u32 s{sT1}, s{sT1}, 8192")
        b(f"buffer_load_dword v10, v8, {s(sW1,4)}, s{sT1} offen")
        b(f"s_lshl_b32 s{sT1}, s{sT0}, 12")
        b(f"buffer_load_dword v11, v8, {s(sHF,4)}, s{sT1} offen")
        b(f"buffer_load_dword v12, v8, {s(sX,4)}, s{sT1} offen")
        for _ in range(4): b("s_barrier")
        k1_gjob_all(b)
        return b
    def ffn_phase(hh):
        p = B(); DEPTH = 3
        def lds_loc(n):
            i, k = divmod(n, 4)
            base = wblock_lds(8 * hh + i) + 16 * k * 128
            if base < 65536: return fTA, base
            if base < 131072: return fTB, base - 65536
            return fTC, base - 131072
        plan = {0: [0, 1, 2, 3], int(opts.get('bcn', 12)): [4, 5, 6, 7]} if hh == 0 else {0: list(range(8, 16))}
        def reads(n):
            if n in plan:
                p.wait('vm', *[f"w{q}" for q in plan[n]])
                if hh == 0 and n == 0: p("s_waitcnt lgkmcnt(0)")
                if STAMP >= 2: stamp(p, 26 + (0 if n == 0 else 1) if hh == 0 else 29)
                p("s_barrier")
                if STAMP >= 2 and hh == 0: stamp(p, 30 + (0 if n == 0 else 1))
            base, off = lds_loc(n)
            r = fS + (n % 4) * 8
            for ft in range(2):
                for rd in range(2):
                    p(f"ds_read_b64_tr_b16 {v(r+4*ft+2*rd,2)}, v{base+ft} offset:{off + rd*512}", f"r{hh}_{n}")
        ch = []
        if hh == 0:
            d = B()
            for q in range(8, 16): dma_w(d, q)
            ch = chunks_of(d.ops)
        for n in range(DEPTH): reads(n)
        for n in range(32):
            i, k = divmod(n, 4)
            r = fS + (n % 4) * 8
            p.wait('lg', f"r{hh}_{n}")
            for ft in range(2):
                acc = fAcc + (2*hh + ft) * 16
                c = v(acc, 16) if n else "0"
                p(f"v_mfma_f32_32x32x16_bf16 {v(acc,16)}, {v(r+4*ft,4)}, {a(16*i+4*k,4)}, {c}")
                if ft == 0 and ch: p.ext(ch.pop(0))
            if hh == 0 and n == int(opts.get('bxn', 1)): p("s_barrier")
            if n + DEPTH < 32: reads(n + DEPTH)
        assert not ch
        return p
    b.ext(ffn_phase(0))
    stamp(b, 3)
    p3 = ffn_phase(1)
    fl = F()
    fl.ext(k1_silu(0, False)); fl.ext(k1_silu(1, False))
    if opts.get('p3mode') == 'nofill':
        b.ext(p3.ops); stamp(b, 6); b.ext(flat(fl.ops))
    elif opts.get('p3mode') == 'nostore':
        fo = [o for o in fl.ops if not (not isinstance(o, list) and o.kind == 'vmem')]
        st_ = [o for o in fl.ops if (not isinstance(o, list) and o.kind == 'vmem')]
        b.ext(merge(p3.ops, fo, per=int(opts.get('per3', 4)), start=1))
    else:
        b.ext(merge(p3.ops, fl.ops, per=int(opts.get('per3', 4)), start=1))
    stamp(b, 4)
    b.ext(flat(k1_silu(2, True).ops))
    b.ext(flat(k1_silu(3, True).ops))
    stamp(b, 5)
    return b

def k1_silu(ft, pk):
    b = F()
    acc = fAcc + ft * 16
    e, d = fE, fD
    for kk in range(2):
        base = acc + 8 * kk
        if pk:
            for q in range(4): b(f"v_pk_mul_f32 {v(e+2*q,2)}, {v(base+2*q,2)}, s[66:67]")
            for q in range(8): b(f"v_exp_f32 v{e+q}, v{e+q}")
            for q in range(4): b(f"v_pk_add_f32 {v(e+2*q,2)}, {v(e+2*q,2)}, 1.0 op_sel_hi:[1,0]")
            for q in range(8): b(f"v_rcp_f32 v{e+q}, v{e+q}")
            for q in range(4): b(f"v_pk_mul_f32 {v(e+2*q,2)}, {v(base+2*q,2)}, {v(e+2*q,2)}")
            for q in range(4): b(f"v_cvt_pk_bf16_f32 v{d+q}, v{e+2*q}, v{e+2*q+1}")
        else:
            seq = []
            for q in range(8):
                seq.append([f"v_mul_f32 v{e+q}, s66, v{base+q}", f"v_exp_f32 v{e+q}, v{e+q}", f"v_add_f32 v{e+q}, 1.0, v{e+q}",
                            f"v_rcp_f32 v{e+q}, v{e+q}", f"v_mul_f32 v{e+q}, v{base+q}, v{e+q}"])
            if opts.get('silu', 'diag') == 'diag':
                for tm in range(8 + 4):
                    for stg in range(5):
                        q = tm - stg
                        if 0 <= q < 8: b(seq[q][stg])
            elif opts.get('silu') == 'block':
                for stg in range(5):
                    for q in range(8): b(seq[q][stg])
            else:
                for tm in range(8 + 8):
                    for stg in range(5):
                        q = tm - 2 * stg
                        if 0 <= q < 8: b(seq[q][stg])
            for q in range(4): b(f"v_cvt_pk_bf16_f32 v{d+q}, v{e+2*q}, v{e+2*q+1}")
        b(f"s_add_u32 s{sK0}, s{sU}, {(2*ft+kk)*1024}")
        b(f"buffer_store_dwordx4 {v(d,4)}, v{fL16}, {s(sHF,4)}, s{sK0} offen {STF}")
    return b

gPX, gPB = 2, 6
vLBa, vImgW, vImgR, vL16o = 10, 11, 12, 13
vL, vC2, vL16, vL32, vL128, vL256, vF1, vG, vHfm = 16, 18, 20, 22, 24, 26, 28, 30, 32
vNon, vK, vQ, vW_, vPre, vTmp = 34, 36, 38, 40, 42, 44
vP = 48
aRE, aIM, vU = 64, 80, 96
aSX, aSB = 0, 16

def k1_S_setup():
    b = B(); L = vLane; t = vP
    b("s_waitcnt lgkmcnt(0)")
    srd(b, sHF, 34, WS_USED)
    b(f"v_and_b32 v{t}, 31, v{L}")
    b(f"s_lshl_b32 s{sT0}, s{sS}, 5")
    b(f"v_add_u32 v{t}, s{sT0}, v{t}")
    b(f"v_lshlrev_b32 v{t}, 1, v{t}")
    b(f"global_load_ushort v{vP+8}, v{t}, s[6:7]")
    b(f"global_load_ushort v{vP+9}, v{t}, s[8:9]")
    b(f"global_load_ushort v{vP+10}, v{t}, s[18:19]")
    b(f"v_mov_b32 v{t}, {NONCE_OFF}")
    b(f"global_load_dwordx2 {v(vU+26,2)}, v{t}, s[34:35] sc1")
    if int(opts.get('pfc', 0)):
        b(f"s_cmp_eq_u32 s{sWm}, 3")
        b("s_cbranch_scc0 L_k1_pfc_done")
        b(f"s_getpc_b64 {s(sT2,2)}")
        b("L_k1_pc:")
        b(f"s_sub_u32 s{sT2}, s{sT2}, L_k1_pc-gm_k1_kernel")
        b(f"s_subb_u32 s{sT3}, s{sT3}, 0")
        b(f"s_lshr_b32 s{sT0}, s2, 3")
        b(f"s_lshl_b32 s{sT0}, s{sT0}, 11")
        b(f"v_and_b32 v{t}, 15, v{L}")
        b(f"v_lshlrev_b32 v{t}, 7, v{t}")
        b(f"v_add_u32 v{t}, s{sT0}, v{t}")
        b(f"v_min_u32 v{t}, L_code_end-gm_k1_kernel-4, v{t}")
        b(f"global_load_dword v{vU+31}, v{t}, {s(sT2,2)}", 'nocount')
        b("L_k1_pfc_done:")
    PF = int(opts.get('pf', 0))
    if PF:
        pd = vU + 28
        b(f"s_cmp_eq_u32 s{sWm}, 0")
        b("s_cbranch_scc0 L_k1_pf_1")
        b(f"v_lshrrev_b32 v{t}, 3, v{L}")
        b(f"s_lshl_b32 s{sT2}, s2, 3")
        b(f"v_add_u32 v{t}, s{sT2}, v{t}")
        b(f"v_lshlrev_b32 v{t}, 10, v{t}")
        b(f"v_and_b32 v{t+1}, 7, v{L}")
        b(f"v_max_u32 v{t+1}, 3, v{t+1}")
        b(f"v_lshl_add_u32 v{t}, v{t+1}, 7, v{t}")
        b(f"global_load_dword v{pd}, v{t}, s[4:5]", 'nocount')
        b("L_k1_pf_1:")
        b(f"s_cmp_eq_u32 s{sWm}, 1")
        b("s_cbranch_scc0 L_k1_pf_2")
        b(f"v_bfe_u32 v{t}, v{L}, 3, 1")
        b(f"s_lshl_b32 s{sT2}, s2, 1")
        b(f"v_add_u32 v{t}, s{sT2}, v{t}")
        b(f"v_lshlrev_b32 v{t}, 10, v{t}")
        b(f"v_and_b32 v{t+1}, 7, v{L}")
        b(f"v_max_u32 v{t+1}, 3, v{t+1}")
        b(f"v_lshl_add_u32 v{t}, v{t+1}, 7, v{t}")
        b(f"global_load_dword v{pd}, v{t}, s[10:11]", 'nocount')
        b(f"global_load_dword v{pd+1}, v{t}, s[12:13]", 'nocount')
        b("L_k1_pf_2:")
        b(f"s_cmp_eq_u32 s{sWm}, 2")
        b("s_cbranch_scc0 L_k1_pf_done")
        b(f"v_lshrrev_b32 v{t}, 5, v{L}")
        b(f"s_lshl_b32 s{sT2}, s2, 1")
        b(f"v_add_u32 v{t}, s{sT2}, v{t}")
        b(f"v_mul_u32_u24 v{t}, 3584, v{t}")
        b(f"v_and_b32 v{t+1}, 31, v{L}")
        b(f"v_min_u32 v{t+1}, 27, v{t+1}")
        b(f"v_lshl_add_u32 v{t}, v{t+1}, 7, v{t}")
        b(f"global_load_dword v{pd}, v{t}, s[24:25]", 'nocount')
        b("L_k1_pf_done:")
    b(f"v_and_b32 v{t}, 31, v{L}")
    b(f"v_lshrrev_b32 v{t+1}, 5, v{L}")
    b(f"v_bfe_u32 v{t+2}, v{L}, 1, 3")
    b(f"v_xor_b32 v{t+2}, v{t+1}, v{t+2}")
    b(f"v_lshlrev_b32 v{t+1}, 7, v{t}")
    b(f"v_add_u32 v{t+1}, s{sLdsX}, v{t+1}")
    b(f"v_lshrrev_b32 v{t+3}, 3, v{t}")
    b(f"v_lshlrev_b32 v{t+3}, 11, v{t+3}")
    b(f"v_and_b32 v{t}, 7, v{t}")
    b(f"v_lshl_add_u32 v{t}, v{t}, 7, v{t+3}")
    b(f"v_add_u32 v{t}, 16384, v{t}")
    for k in range(4):
        b(f"v_xor_b32 v{t+3}, {2*k}, v{t+2}")
        b(f"v_lshl_add_u32 v{gPX+k}, v{t+3}, 4, v{t+1}")
        b(f"v_lshl_add_u32 v{gPB+k}, v{t+3}, 4, v{t}")
    return b

def k1_params():
    b = F()
    lre, lim, ldt = vP+8, vP+9, vP+10
    va, vang, t0 = vP, vP+1, vP+2
    b(f"v_lshlrev_b32 v{lre}, 16, v{lre}")
    b(f"v_lshlrev_b32 v{lim}, 16, v{lim}")
    b(f"v_lshlrev_b32 v{ldt}, 16, v{ldt}")
    b(f"v_mul_f32 v{ldt}, {LOG2E:#x}, v{ldt}")
    b(f"v_exp_f32 v{ldt}, v{ldt}")
    b(f"v_cvt_pk_bf16_f32 v{ldt}, v{ldt}, v{ldt}")
    b(f"v_lshlrev_b32 v{ldt}, 16, v{ldt}")
    b(f"v_mul_f32 v{va}, v{ldt}, v{lre}")
    b(f"v_mul_f32 v{vang}, v{ldt}, v{lim}")
    b(f"v_mul_f32 v{va}, {LOG2E:#x}, v{va}")
    b(f"v_mul_f32 v{vang}, {INV2PI:#x}, v{vang}")
    cexp(b, vL, "1.0", va, vang, t0)
    for dst, cst in ((vL16, 0x41800000), (vL32, 0x42000000), (vL128, 0x43000000), (vL256, 0x43800000)):
        b(f"v_mov_b32 v{t0+3}, {cst:#x}")
        cexp(b, dst, f"v{t0+3}", va, vang, t0)
    b(f"v_lshrrev_b32 v{t0+3}, 5, v{vLane}")
    b(f"v_cvt_f32_u32 v{vHfm}, v{t0+3}")
    b(f"v_lshlrev_b32 v{t0+3}, 4, v{t0+3}")
    b(f"v_cvt_f32_u32 v{t0+3}, v{t0+3}")
    cexp(b, vF1, f"v{t0+3}", va, vang, t0)
    b(f"v_lshrrev_b32 v{t0+3}, 5, v{vLane}")
    b(f"v_lshlrev_b32 v{t0+3}, 4, v{t0+3}")
    b(f"s_lshl_b32 s{sSpin}, s{sWm}, 5")
    b(f"v_add_u32 v{t0+3}, s{sSpin}, v{t0+3}")
    b(f"v_cvt_f32_u32 v{t0+3}, v{t0+3}")
    cexp(b, vG, f"v{t0+3}", va, vang, t0)
    b(f"v_add_f32 v{t0}, -1.0, v{vL}")
    b(f"v_mul_f32 v{t0+1}, v{lre}, v{lre}")
    b(f"v_fma_f32 v{t0+1}, v{lim}, v{lim}, v{t0+1}")
    b(f"v_rcp_f32 v{t0+1}, v{t0+1}")
    b(f"v_mul_f32 v{vC2}, v{t0}, v{lre}")
    b(f"v_fma_f32 v{vC2}, v{vL+1}, v{lim}, v{vC2}")
    b(f"v_mul_f32 v{vC2+1}, v{vL+1}, v{lre}")
    b(f"v_fma_f32 v{vC2+1}, -v{t0}, v{lim}, v{vC2+1}")
    b(f"v_add_f32 v{t0+1}, v{t0+1}, v{t0+1}")
    b(f"v_mul_f32 v{vC2}, v{vC2}, v{t0+1}")
    b(f"v_mul_f32 v{vC2+1}, v{vC2+1}, v{t0+1}")
    return b

def k1_setup_common():
    b = F(); t = vP + 12; L = vLane
    for k, m in ((1, sM1), (2, sM2), (3, sM3)):
        g = B()
        g(f"s_cmp_ge_u32 s{sWm}, {k}")
        g(f"s_cselect_b64 {s(m,2)}, -1, 0")
        b.group(g)
    b(f"v_lshlrev_b32 v{vL16o}, 4, v{L}")
    b(f"v_and_b32 v{t}, 31, v{L}")
    b(f"v_lshlrev_b32 v{t}, 4, v{t}")
    b(f"s_lshl_b32 s{sK0}, s{sS}, 9")
    b(f"s_add_u32 s{sK0}, s{sK0}, {E_OFF}")
    b(f"v_add_u32 v{vLBa}, s{sK0}, v{t}")
    b(f"v_and_b32 v{t}, 31, v{L}")
    b(f"v_mul_u32_u24 v{t}, 80, v{t}")
    b(f"v_lshrrev_b32 v{t+1}, 5, v{L}")
    b(f"v_lshl_add_u32 v{t}, v{t+1}, 5, v{t}")
    b(f"s_mul_i32 s{sK0}, s{sWm}, 5120")
    b(f"s_add_u32 s{sK0}, s{sK0}, {SCR}")
    b(f"v_add_u32 v{vImgW}, s{sK0}, v{t}")
    b(f"v_lshrrev_b32 v{t+1}, 5, v{L}")
    b(f"v_lshlrev_b32 v{t+1}, 3, v{t+1}")
    b(f"v_bfe_u32 v{t+2}, v{L}, 2, 2")
    b(f"v_add_u32 v{t+1}, v{t+1}, v{t+2}")
    b(f"v_mul_u32_u24 v{t+1}, 80, v{t+1}")
    b(f"v_and_b32 v{t+2}, 1, v{L}")
    b(f"v_lshlrev_b32 v{t+2}, 5, v{t+2}")
    b(f"v_bfe_u32 v{t+3}, v{L}, 4, 1")
    b(f"v_lshlrev_b32 v{t+3}, 4, v{t+3}")
    b(f"v_add3_u32 v{t+1}, v{t+1}, v{t+2}, v{t+3}")
    b(f"v_bfe_u32 v{t+2}, v{L}, 1, 1")
    b(f"v_lshlrev_b32 v{t+2}, 3, v{t+2}")
    b(f"v_add3_u32 v{vImgR}, v{t+1}, v{t+2}, s{sK0}")
    return b

def k1_gjob_all(b):
    L = vLane
    xs0, gs, t = 32, 16, 24
    gu = 64
    b(f"v_and_b32 v{t}, 31, v{L}")
    b(f"v_lshlrev_b32 v{t}, 4, v{t}")
    b(f"global_load_dwordx4 {v(gs,4)}, v{t}, s[28:29]")
    b(f"global_load_dwordx4 {v(gs+4,4)}, v{t}, s[28:29] offset:512")
    b(f"v_lshrrev_b32 v{t+1}, 5, v{L}")
    b(f"s_lshl_b32 s{sT1}, s{sT0}, 4")
    b(f"v_add_u32 v{t+1}, s{sT1}, v{t+1}")
    b(f"v_lshlrev_b32 v{t+2}, 3, v{t+1}")
    b(f"v_add_u32 v{t+2}, {G_OFF}, v{t+2}")
    b(f"v_lshlrev_b32 v{t+1}, 10, v{t+1}")
    b(f"v_add_u32 v{t+1}, v{t+1}, v{t}")
    def ld(p):
        r = xs0 + (p % 4) * 8
        if p: b(f"v_add_u32 v{t+1}, 2048, v{t+1}")
        b(f"global_load_dwordx4 {v(r,4)}, v{t+1}, s[4:5]")
        b(f"global_load_dwordx4 {v(r+4,4)}, v{t+1}, s[4:5] offset:512")
    for p in range(3): ld(p)
    for k in range(8):
        b(f"v_lshlrev_b32 v{gu+2*k}, 16, v{gs+k}")
        b(f"v_and_b32 v{gu+2*k+1}, 0xffff0000, v{gs+k}")
    b(f"v_and_b32 v{t+3}, 31, v{L}")
    w = 80
    for p in range(8):
        if p + 3 < 8: ld(p + 3)
        xs = xs0 + (p % 4) * 8
        acc = w
        for k in range(8):
            a0 = w + 2 + 2 * (k % 4)
            b(f"v_lshlrev_b32 v{a0}, 16, v{xs+k}")
            b(f"v_and_b32 v{a0+1}, 0xffff0000, v{xs+k}")
            b(f"v_pk_mul_f32 {v(a0,2)}, {v(a0,2)}, {v(gu+2*k,2)}")
            b(f"v_cvt_pk_bf16_f32 v{a0}, v{a0}, v{a0+1}")
            b(f"v_and_b32 v{a0+1}, 0xffff0000, v{a0}")
            b(f"v_lshlrev_b32 v{a0}, 16, v{a0}")
            if k == 0:
                b(f"v_add_f32 v{acc}, v{a0}, v{a0+1}")
            else:
                b(f"v_add_f32 v{a0}, v{a0}, v{a0+1}")
                b(f"v_add_f32 v{acc}, v{acc}, v{a0}")
        for r in (8, 4, 2, 1):
            b(f"v_add_f32_dpp v{acc}, v{acc}, v{acc} row_ror:{r} row_mask:0xf bank_mask:0xf")
        b(f"v_mov_b32 v{acc+1}, v{acc}")
        b(f"v_permlane16_swap_b32 v{acc}, v{acc+1}")
        b(f"v_add_f32 v{acc}, v{acc}, v{acc+1}")
        b(f"v_cvt_pk_bf16_f32 v{acc}, v{acc}, v{acc}")
        b(f"v_lshlrev_b32 v{acc}, 16, v{acc}")
        b(f"v_mul_f32 v{acc}, {LOG2E ^ 0x80000000:#x}, v{acc}")
        b(f"v_exp_f32 v{acc}, v{acc}")
        b(f"v_add_f32 v{acc}, 1.0, v{acc}")
        b(f"v_rcp_f32 v{acc}, v{acc}")
        b(f"v_cvt_pk_bf16_f32 v{acc}, v{acc}, v{acc}")
        d = w + 10 + 2 * (p % 2)
        b(f"v_lshlrev_b32 v{d}, 16, v{acc}")
        b(f"v_sub_f32 v{d+1}, 1.0, v{d}")
        b(f"v_cvt_pk_bf16_f32 v{d+1}, v{d+1}, v{d+1}")
        b(f"v_lshlrev_b32 v{d+1}, 16, v{d+1}")
        b(f"v_cmp_eq_u32 vcc, 0, v{t+3}")
        b(f"s_and_saveexec_b64 {s(sEX,2)}, vcc")
        b(f"global_store_dwordx2 v{t+2}, {v(d,2)}, s[34:35]")
        b(f"s_mov_b64 exec, {s(sEX,2)}")
        b(f"v_add_u32 v{t+2}, 16, v{t+2}")

def k1_nonce():
    b = F()
    t = vU + 26
    b(f"v_add_u32 v{t}, 1, v{t}")
    b(f"v_or_b32 v{t+1}, 1, v{t+1}")
    b(f"v_mov_b32 v{t+2}, {NONCE_OFF}")
    b(f"v_mov_b32 v{t+3}, 0")
    g = B()
    g(f"s_or_b32 s{sSpin}, s2, s{sWave}")
    g(f"s_cmp_lg_u32 s{sSpin}, 0")
    g("s_cbranch_scc1 L_k1_nononce")
    g(f"global_store_dwordx2 v{t+2}, {v(t,2)}, s[34:35] sc0 sc1", 'nocount')
    g(f"global_store_dwordx2 v{t+3}, {v(t,2)}, s[32:33] sc0 sc1", 'nocount')
    g("L_k1_nononce:")
    b.group(g)
    return b

def k1_S():
    b = k1_S_setup()
    if int(opts.get('sprio', 1)): b("s_setprio 2")
    m = B()
    for i in range(8):
        m("s_waitcnt lgkmcnt(0)")
        m("s_barrier")
        po = (i % NSLOT) * SLOT
        hi = po >= 65536 - 1024
        if hi:
            for k in range(4):
                m(f"v_add_u32 v{vTmp+k}, 0x10000, v{gPX+k}")
        for k in range(4):
            if hi: m(f"ds_read_b128 {a(aSX+4*k,4)}, v{vTmp+k} offset:{po - 65536}")
            else: m(f"ds_read_b128 {a(aSX+4*k,4)}, v{gPX+k} offset:{po}")
        if hi:
            for k in range(4):
                m(f"v_add_u32 v{vTmp+k}, 0x10000, v{gPB+k}")
        for k in range(4):
            for mm in range(2):
                if hi: m(f"ds_read_b128 {a(aSB+8*k+4*mm,4)}, v{vTmp+k} offset:{po - 65536 + mm*1024}")
                else: m(f"ds_read_b128 {a(aSB+8*k+4*mm,4)}, v{gPB+k} offset:{po + mm*1024}")
        for k in range(4):
            for mm, acc in ((0, aRE), (1, aIM)):
                c = v(acc, 16) if (i, k) != (0, 0) else "0"
                m(f"v_mfma_f32_32x32x16_bf16 {v(acc,16)}, {a(aSX+4*k,4)}, {a(aSB+8*k+4*mm,4)}, {c}")
    f = F()
    f.ext(k1_nonce())
    f.ext(k1_params())
    f.ext(k1_setup_common())
    g = B()
    g(f"v_mov_b32 v{vTmp}, 0")
    g(f"global_load_dwordx2 {v(vNon,2)}, v{vTmp}, s[32:33] sc1")
    f.group(g)
    b.ext(merge(m.ops, f.ops, per=int(opts.get('per1', 5))))
    b("s_waitcnt vmcnt(0)")
    stamp(b, 2)
    s1 = flat(k1_scan1a().ops)
    cut = [j for j, o in enumerate(s1) if o.kind == 'ds'][0]
    if STAMP >= 2: stamp(b, 8)
    b.ext(s1[:cut])
    if STAMP >= 2: stamp(b, 9)
    b("s_barrier")
    b.ext(s1[cut:])
    if STAMP >= 2: stamp(b, 11)
    b("s_barrier")
    if STAMP >= 2: stamp(b, 12)
    b.ext(flat(k1_scan1b().ops))
    if STAMP >= 2: stamp(b, 13)
    b.ext(k1_publish())
    stamp(b, 3)
    b("s_barrier")
    b("s_barrier")
    stamp(b, 4)
    b.ext(k1_lookback())
    stamp(b, 5)
    b.ext(k1_final())
    stamp(b, 6)
    return b

def cfma_sr(b, d, l, h, ure, uim, tmp):
    b(f"v_fma_f32 v{tmp}, v{l}, v{h}, v{ure}")
    b(f"v_fma_f32 v{tmp+1}, v{l}, v{h+1}, v{uim}")
    b(f"v_fma_f32 v{d}, -v{l+1}, v{h+1}, v{tmp}")
    b(f"v_fma_f32 v{d+1}, v{l+1}, v{h}, v{tmp+1}")

def k1_scan1a():
    b = F()
    tmp = vTmp
    R = lambda t: aRE + reg_of_t(t)
    I = lambda t: aIM + reg_of_t(t)
    b(f"v_mov_b32 v{vQ}, v{R(0)}\nv_mov_b32 v{vQ+1}, v{I(0)}")
    cur = vQ
    for t in range(1, 16):
        nxt = vQ if cur == vW_ else vW_
        cfma_sr(b, nxt, vL, cur, R(t), I(t), tmp)
        cur = nxt
    assert cur == vW_
    b(f"v_mov_b32 v{vPre}, v{cur}\nv_mov_b32 v{vPre+1}, v{cur+1}")
    b(f"v_mov_b32 v{vQ}, v{cur}\nv_mov_b32 v{vQ+1}, v{cur+1}")
    b(f"v_permlane32_swap_b32 v{vPre}, v{vQ}")
    b(f"v_permlane32_swap_b32 v{vPre+1}, v{vQ+1}")
    cfma_s(b, vW_, vL16, vPre, vQ, tmp)
    b(f"v_mul_f32 v{vPre}, v{vPre}, v{vHfm}\nv_mul_f32 v{vPre+1}, v{vPre+1}, v{vHfm}")
    t = vP
    b(f"v_and_b32 v{t+14}, 31, v{vLane}")
    b(f"v_lshlrev_b32 v{t+14}, 3, v{t+14}")
    b(f"v_add_u32 v{t+14}, {SCR}, v{t+14}")
    b(f"s_lshl_b32 s{sK0}, s{sWm}, 8")
    b(f"v_add_u32 v{t+15}, s{sK0}, v{t+14}")
    b(f"ds_write_b64 v{t+15}, {v(vW_,2)} offset:{SC}", "Wx")
    b.wait('lg', "Wx")
    return b

def k1_scan1b():
    b = F()
    t = vP; tmp = vTmp
    for w in range(4):
        b(f"ds_read_b64 {v(t+2*w,2)}, v{t+14} offset:{SC + 256*w}")
    W0, W1, W2, W3 = t, t+2, t+4, t+6
    Q2, Q3 = t+8, t+10
    cfma_s(b, Q2, vL32, W0, W1, tmp)
    cfma_s(b, Q3, vL32, Q2, W2, tmp)
    E = t + 12
    cfma_s(b, E, vL32, Q3, W3, tmp)
    for h in range(2):
        b(f"v_cndmask_b32 v{vQ+h}, 0, v{W0+h}, {s(sM1,2)}")
        b(f"v_cndmask_b32 v{vQ+h}, v{vQ+h}, v{Q2+h}, {s(sM2,2)}")
        b(f"v_cndmask_b32 v{vQ+h}, v{vQ+h}, v{Q3+h}, {s(sM3,2)}")
    cfma_s(b, vK, vF1, vQ, vPre, tmp)
    return b

def k1_publish():
    t = vP; E = t + 12; tmp = vTmp
    g = B()
    g(f"s_lshl_b32 s{sK0}, s{sR}, 13")
    g(f"v_add_u32 v{tmp}, s{sK0}, v{vLBa}")
    g(f"v_lshrrev_b32 v{tmp+1}, 3, v{vLane}")
    g(f"v_cmp_ne_u32 vcc, 0, v{vNon+1}")
    g("s_cbranch_vccnz L_k1_nonce_ok")
    g(f"s_mov_b32 s{sSpin}, 0")
    g("L_k1_nonce_retry:")
    g(f"v_mov_b32 v{tmp+2}, 0")
    g(f"global_load_dwordx2 {v(vNon,2)}, v{tmp+2}, s[32:33] sc1", 'nocount')
    g("s_waitcnt vmcnt(0)", 'nocount')
    g(f"s_add_u32 s{sSpin}, s{sSpin}, 1")
    g(f"s_cmp_gt_u32 s{sSpin}, 40000")
    g("s_cbranch_scc1 L_k1_nonce_ok")
    g(f"v_cmp_ne_u32 vcc, 0, v{vNon+1}")
    g("s_cbranch_vccz L_k1_nonce_retry")
    g("L_k1_nonce_ok:")
    g(f"v_mov_b32 v{E+2}, v{vNon}\nv_mov_b32 v{E+3}, v{vNon+1}")
    g(f"v_cmp_eq_u32 vcc, s{sWm}, v{tmp+1}")
    g(f"s_and_saveexec_b64 {s(sEX,2)}, vcc")
    g(f"global_store_dwordx4 v{tmp}, {v(E,4)}, s[34:35] sc0 sc1")
    g(f"s_mov_b64 exec, {s(sEX,2)}")
    return g

def k1_lookback():
    b = B(); tmp = vTmp; t = vP
    H = vW_
    def loads(tok):
        b(f"s_sub_u32 s{sK0}, s{sR}, 1")
        b(f"s_lshl_b32 s{sK0}, s{sK0}, 13")
        b(f"v_lshrrev_b32 v{t}, 5, v{vLane}")
        b(f"v_lshlrev_b32 v{t}, 13, v{t}")
        b(f"v_sub_u32 v{t}, s{sK0}, v{t}")
        b(f"v_add_u32 v{t}, v{vLBa}, v{t}")
        for mm in range(8):
            if mm: b(f"v_subrev_u32 v{t}, 16384, v{t}")
            b(f"v_max_i32 v{t+1}, v{t}, v{vLBa}")
            b(f"global_load_dwordx4 {v(vU+4*mm,4)}, v{t+1}, s[34:35] sc1", tok)
    b(f"s_cmp_eq_u32 s{sR}, 0")
    b("s_cbranch_scc1 L_k1_lb_zero")
    b(f"s_mov_b32 s{sSpin}, 0")
    b("L_k1_lb_again:")
    loads('nocount')
    b("s_waitcnt vmcnt(0)", 'nocount')
    b(f"s_mov_b64 {s(sEX,2)}, -1")
    for mm in range(8):
        b(f"s_cmp_le_u32 s{sR}, {2*mm}")
        b("s_cbranch_scc1 L_k1_lb_checked")
        b(f"s_cmp_ge_u32 s{sR}, {2*mm+2}")
        b(f"s_cselect_b32 s{sT1}, 0, -1")
        b(f"v_cmp_eq_u32 vcc, v{vU+4*mm+2}, v{vNon}")
        b(f"v_cmp_eq_u32 {s(sT2,2)}, v{vU+4*mm+3}, v{vNon+1}")
        b(f"s_and_b64 vcc, vcc, {s(sT2,2)}")
        b(f"s_or_b32 vcc_hi, vcc_hi, s{sT1}")
        b(f"s_and_b64 {s(sEX,2)}, {s(sEX,2)}, vcc")
    b("L_k1_lb_checked:")
    b(f"s_cmp_eq_u64 {s(sEX,2)}, -1")
    b("s_cbranch_scc1 L_k1_lb_ok")
    b(f"s_add_u32 s{sSpin}, s{sSpin}, 1")
    b(f"s_cmp_gt_u32 s{sSpin}, 40000")
    b("s_cbranch_scc1 L_k1_lb_ok")
    b(f"s_sleep {int(opts.get('lbsleep', 4))}")
    b("s_branch L_k1_lb_again")
    b("L_k1_lb_ok:")
    b(f"v_mov_b32 v{H}, 0\nv_mov_b32 v{H+1}, 0")
    for mm in range(7, -1, -1):
        b(f"s_cmp_le_u32 s{sR}, {2*mm}")
        b(f"s_cbranch_scc1 L_k1_lb_h{mm}")
        b(f"s_cmp_ge_u32 s{sR}, {2*mm+2}")
        b(f"s_cselect_b32 s{sT3}, -1, 0")
        b(f"s_mov_b32 s{sT2}, -1")
        b(f"v_cndmask_b32 v{vU+4*mm}, 0, v{vU+4*mm}, {s(sT2,2)}")
        b(f"v_cndmask_b32 v{vU+4*mm+1}, 0, v{vU+4*mm+1}, {s(sT2,2)}")
        b(f"v_pk_fma_f32 {v(tmp,2)}, {v(vL256,2)}, {v(H,2)}, {v(vU+4*mm,2)} op_sel:[0,0,0] op_sel_hi:[0,1,1]")
        b(f"v_pk_fma_f32 {v(H,2)}, {v(vL256,2)}, {v(H,2)}, {v(tmp,2)} op_sel:[1,1,0] op_sel_hi:[1,0,1] neg_lo:[1,0,0]")
        b(f"L_k1_lb_h{mm}:")
    b(f"v_mov_b32 v{vPre}, v{H}\nv_mov_b32 v{vPre+1}, v{H+1}")
    b(f"v_permlane32_swap_b32 v{H}, v{vPre}")
    b(f"v_permlane32_swap_b32 v{H+1}, v{vPre+1}")
    cfma(b, t, vL128, vPre, H, tmp)
    cfma(b, vQ, vG, t, vK, tmp)
    b("s_branch L_k1_lb_done")
    b("L_k1_lb_zero:")
    b(f"v_mov_b32 v{vQ}, v{vK}\nv_mov_b32 v{vQ+1}, v{vK+1}")
    b("L_k1_lb_done:")
    return b

def k1_final():
    b = B()
    tmp = vTmp
    prev = vQ
    for t in range(16):
        r = reg_of_t(t)
        u = vU + 2 * r
        cfma_sr(b, u, vL, prev, aRE + r, aIM + r, tmp)
        prev = u
    for r in range(16):
        u = vU + 2 * r
        tp = vP + 2 * (r % 4)
        b(f"v_pk_mul_f32 {v(tp,2)}, {v(vC2,2)}, {v(u,2)} op_sel:[0,0] op_sel_hi:[1,0]")
        b(f"v_pk_fma_f32 {v(u,2)}, {v(vC2,2)}, {v(u,2)}, {v(tp,2)} op_sel:[1,1,0] op_sel_hi:[0,1,1] neg_lo:[1,0,0]")
    for k in range(8):
        b(f"v_cvt_pk_bf16_f32 v{aRE+k}, v{vU+4*k}, v{vU+4*k+2}")
    for h in range(2):
        b(f"ds_write_b128 v{vImgW}, {v(aRE+4*h,4)} offset:{IMG + h*16}", "img")
    for k in range(8):
        b(f"v_cvt_pk_bf16_f32 v{aRE+8+k}, -v{vU+4*k+1}, -v{vU+4*k+3}")
    for h in range(2):
        b(f"ds_write_b128 v{vImgW}, {v(aRE+8+4*h,4)} offset:{IMG + 2560 + h*16}", "img")
    b(f"s_lshl_b32 s{sT2}, s{sS}, 12")
    b(f"s_add_u32 s{sT1}, s{sHFb}, s{sT2}")
    b.wait('lg', "img")
    for m in range(2):
        for kk in range(2):
            r = aIM + (2*m + kk) * 4
            for rd in range(2):
                b(f"ds_read_b64_tr_b16 {v(r+2*rd,2)}, v{vImgR} offset:{IMG + (m*32 + 16*kk + 4*rd)*80}")
    for m in range(2):
        for kk in range(2):
            r = aIM + (2*m + kk) * 4
            b(f"s_add_u32 s{sT2}, s{sT1}, {(2*m+kk)*1024}")
            b(f"buffer_store_dwordx4 {v(r,4)}, v{vL16o}, {s(sHF,4)}, s{sT2} offen {STF}")
    return b

def gen_k1():
    global STV
    STV = 15
    pro = k1_head()
    S = k1_S()
    dbgt_end(S, "s[32:33]", 44)
    stamp_end(S, sWave, "s[34:35]", 0x2000000, vLane, 3, 14)
    S("s_endpgm")
    Fm = B(); Fm("L_k1_F:")
    Fm(f"s_cmp_ge_u32 s{sS}, 14")
    Fm("s_cbranch_scc1 L_k1_Fn")
    f1 = k1_F(True)
    dbgt_end(f1, "s[32:33]", 20)
    stamp_end(f1, sWave, "s[34:35]", 0x2000000, vLane, 3, 14)
    f1("s_endpgm")
    Fn = B(); Fn("L_k1_Fn:")
    f2 = k1_F(False)
    dbgt_end(f2, "s[32:33]", 20)
    stamp_end(f2, sWave, "s[34:35]", 0x2000000, vLane, 3, 14)
    f2("L_k1_end:")
    f2("s_endpgm")
    def path(prefix, body, label=None):
        allops = insert_waits(copy.deepcopy(prefix) + body)
        if label:
            idx = [i for i, o in enumerate(allops) if o.text == label][0]
            allops = allops[idx:]
        return insert_hazard_nops(allops)
    out = path([], pro.ops + S.ops)
    out += path(pro.ops, Fm.ops + f1.ops, "L_k1_F:")
    out += path(pro.ops + Fm.ops, Fn.ops + f2.ops, "L_k1_Fn:")
    return out

def gen_k2():
    global STV
    STV = 9
    b = B()
    D = 15
    DW = int(opts.get('k2dw', 5))
    sWv, sH, sMt, sN = 40, 41, 42, 43
    sA, sCR, sCI, sW2 = 44, 48, 76, 80
    t0, t1, t2 = 52, 53, 54
    sS0, sF0 = 56, 57
    sLw = 58
    sCoff, sWoff2 = 59, 62
    vH0, vH1 = 4, 5
    vCe, vCo, vWa, vWb = 2, 3, 60, 61
    vPp, vTp = 48, 52
    accS, accF, vBuf = 64, 128, 192
    vNon2 = 14
    vTau = 8
    vG1, vG2 = 10, 12
    PITCH = 256
    LRED = 0
    LSTG = 65536
    dbgt_begin(b)
    stamp_begin(b)
    b("s_load_dwordx2 s[18:19], s[0:1], 112")
    b("s_load_dwordx2 s[4:5], s[0:1], 0")
    b("s_load_dwordx4 s[12:15], s[0:1], 40")
    b("s_load_dwordx2 s[6:7], s[0:1], 64")
    b("s_load_dwordx2 s[16:17], s[0:1], 88")
    b("s_load_dwordx2 s[8:9], s[0:1], 104")
    b("s_load_dwordx2 s[10:11], s[0:1], 120")
    b("s_cmp_ge_u32 s2, 256")
    b("s_cbranch_scc1 L_k2_end")
    b("v_lshrrev_b32 v6, 6, v0")
    b("v_and_b32 v1, 63, v0")
    b(f"v_readfirstlane_b32 s{sWv}, v6")
    b(f"s_and_b32 s{sH}, s2, 1")
    b(f"s_bfe_u32 s{t0}, s2, 0x20001")
    b(f"s_lshr_b32 s{t1}, s2, 3")
    b(f"s_and_b32 s{sMt}, s{t1}, 3")
    b(f"s_lshl_b32 s{t0}, s{t0}, 2")
    b(f"s_add_u32 s{sMt}, s{sMt}, s{t0}")
    b(f"s_lshr_b32 s{sN}, s{t1}, 2")
    b("v_and_b32 v6, 7, v1")
    b("v_lshrrev_b32 v7, 4, v1")
    b("v_xor_b32 v6, v6, v7")
    b("v_lshlrev_b32 v6, 4, v6")
    b("v_lshrrev_b32 v7, 3, v1")
    b("v_lshlrev_b32 v7, 10, v7")
    b(f"v_add_u32 v{vCe}, v6, v7")
    b(f"v_xor_b32 v{vCo}, 64, v{vCe}")
    b("v_bfe_u32 v6, v1, 4, 1")
    b("v_lshlrev_b32 v6, 2, v6")
    b("v_and_b32 v29, 7, v1")
    b("v_xor_b32 v6, v6, v29")
    b("v_lshlrev_b32 v6, 4, v6")
    b(f"v_add_u32 v{vWa}, v6, v7")
    b(f"v_add_u32 v{vWb}, {8192 - 1024}, v{vWa}")
    b(f"s_lshl_b32 s{sCoff}, s{sN}, 16")
    b(f"s_lshl_b32 s{t0}, s{sH}, 9")
    b(f"s_add_u32 s{sCoff}, s{sCoff}, s{t0}")
    b(f"s_lshl_b32 s{t0}, s{sWv}, 7")
    b(f"s_add_u32 s{sCoff}, s{sCoff}, s{t0}")
    b(f"s_lshl_b32 s{t0}, s{sH}, 2")
    b(f"s_add_u32 s{t0}, s{t0}, s{sWv}")
    b(f"s_mul_i32 s{sWoff2}, s{t0}, {14*16*1024}")
    b(f"s_lshl_b32 s{t0}, s{sN}, 7")
    b(f"s_add_u32 s{sWoff2}, s{sWoff2}, s{t0}")
    b(f"s_mul_i32 s{sLw}, s{sWv}, 24576")
    b(f"s_add_u32 s{sLw}, s{sLw}, {LSTG}")
    b(f"s_xor_b32 s{t0}, s{sH}, 1")
    b(f"s_lshl_b32 s{t0}, s{t0}, 1")
    b(f"s_lshl_b32 s{t1}, s{sMt}, 2")
    b(f"s_add_u32 s{t0}, s{t0}, s{t1}")
    b(f"s_mul_i32 s{t0}, s{t0}, {176*1024}")
    b("v_lshlrev_b32 v6, 4, v1")
    b(f"v_add_u32 v{vH0}, s{t0}, v6")
    b(f"v_add_u32 v{vH1}, {176*1024}, v{vH0}")
    b(f"s_lshl_b32 s{sS0}, s{sH}, 2")
    b(f"s_add_u32 s{sS0}, s{sS0}, s{sWv}")
    b(f"s_lshl_b32 s{sS0}, s{sS0}, 13")
    b(f"s_lshl_b32 s{sF0}, s{sH}, 2")
    b(f"s_add_u32 s{sF0}, s{sF0}, s{sWv}")
    b(f"s_mul_i32 s{sF0}, s{sF0}, {14*1024}")
    b(f"s_add_u32 s{sF0}, s{sF0}, {64*1024}")
    b("s_waitcnt lgkmcnt(0)")
    srd(b, sA, 10, WS_USED)
    srd(b, sCR, 12, 512*1024)
    srd(b, sCI, 14, 512*1024)
    srd(b, sW2, 16, 1792*1024)
    steps = [('S', i) for i in range(8)] + [('F', i) for i in range(14)]
    NS = len(steps)
    seq = [(1, st) for st in range(NS)] + [(2, st) for st in range(NS)]
    def hreg(idx, k):
        sl = idx % D
        if sl < 8: return v(vBuf + sl * 8 + k * 4, 4)
        return a(200 + (sl - 8) * 8 + k * 4, 4)
    def dma_c(m):
        for aa in range(8):
            b(f"s_add_u32 m0, s{sLw}, {m*8192 + aa*1024}")
            b(f"s_add_u32 s{t2}, s{sCoff}, {aa*8192}")
            b(f"buffer_load_dwordx4 v{vCe if aa % 2 == 0 else vCo}, {s(sCR if m == 0 else sCI,4)}, s{t2} offen lds", f"c{m}")
    def wslot(i):
        if i < 4: return 16384 + i * 2048
        if i < 12: return (i - 4) * 2048
        return 16384 + (i - 12) * 2048
    def dma_f(i):
        b(f"s_add_u32 m0, s{sLw}, {wslot(i)}")
        b(f"s_add_u32 s{t2}, s{sWoff2}, {i*16*1024}")
        b(f"buffer_load_dwordx4 v{vWa}, {s(sW2,4)}, s{t2} offen lds", f"f{i}")
        b(f"buffer_load_dwordx4 v{vWb}, {s(sW2,4)}, s{t2} offen offset:1024 lds", f"f{i}")
    def hloads(idx):
        ps, st = seq[idx]
        kind, i = steps[st]
        sb = sS0 if kind == 'S' else sF0
        if ps == 2 and st == 0:
            b(f"s_lshl_b32 s{t0}, s{sH}, 2")
            b(f"s_sub_u32 s{t0}, s{t0}, 2")
            b(f"s_mul_i32 s{t0}, s{t0}, {176*1024}")
            b(f"v_add_u32 v{vH0}, s{t0}, v{vH0}")
            b(f"v_add_u32 v{vH1}, s{t0}, v{vH1}")
        b(f"s_add_u32 s{t1}, s{sb}, {i*1024}")
        b(f"buffer_load_dwordx4 {hreg(idx,0)}, v{vH0}, {s(sA,4)}, s{t1} offen")
        b(f"buffer_load_dwordx4 {hreg(idx,1)}, v{vH1}, {s(sA,4)}, s{t1} offen")
    def wreads_s():
        for j in range(8):
            m = (j >> 1) & 1; ksp = 2 * (j >> 2) + (j & 1)
            if j == 0: b.wait('vm', "c0")
            if j == 2: b.wait('vm', "c1")
            for aa in range(2):
                b(f"ds_read_b128 {a(8*j+4*aa,4)}, v{vPp+ksp} offset:{m*8192 + aa*4096}", f"wr{j}")
    def wreads_f(i):
        st = 8 + i
        b.wait('vm', f"f{i}")
        for aa in range(2):
            for rd in range(2):
                b(f"ds_read_b64_tr_b16 {a(8*st+4*aa+2*rd,2)}, v{vTp+aa} offset:{wslot(i) + rd*8*128}", f"wr{st}")
    if STAMP >= 2: stamp(b, 24)
    dma_c(0)
    hloads(0); hloads(1)
    dma_c(1)
    b("v_and_b32 v6, 31, v1")
    b("v_lshlrev_b32 v6, 7, v6")
    b(f"v_add_u32 v6, s{sLw}, v6")
    b("v_lshrrev_b32 v7, 5, v1")
    b("v_bfe_u32 v29, v1, 1, 3")
    b("v_xor_b32 v29, v7, v29")
    for k in range(4):
        b(f"v_xor_b32 v7, {2*k}, v29")
        b(f"v_lshl_add_u32 v{vPp+k}, v7, 4, v6")
    tr_pattern(b, vTp, 4, 54)
    b(f"v_add_u32 v{vTp}, s{sLw}, v{vTp}")
    b(f"v_add_u32 v{vTp+1}, s{sLw}, v{vTp+1}")
    b("v_bfe_u32 v6, v1, 3, 2")
    b("v_and_b32 v7, 7, v1")
    b(f"v_lshl_add_u32 v{vTau}, v7, 2, v6")
    b(f"s_xor_b32 s{t0}, s{sH}, 1")
    b(f"s_lshl_b32 s{t0}, s{t0}, 6")
    b(f"s_lshl_b32 s{t1}, s{sMt}, 7")
    b(f"s_add_u32 s{t0}, s{t0}, s{t1}")
    b(f"v_add_u32 v6, s{t0}, v{vTau}")
    b("v_lshlrev_b32 v6, 3, v6")
    b(f"v_add_u32 v6, {G_OFF}, v6")
    b(f"global_load_dwordx2 v[10:11], v6, s[10:11]")
    b(f"global_load_dwordx2 v[12:13], v6, s[10:11] offset:256")
    b(f"s_lshl_b32 s{t0}, s{sH}, 7")
    b(f"s_sub_u32 s{t0}, s{t0}, 64")
    b(f"s_lshl_b32 s{t0}, s{t0}, 3")
    b(f"v_add_u32 v6, s{t0}, v6")
    b(f"global_load_dwordx2 v[16:17], v6, s[10:11]")
    b(f"global_load_dwordx2 v[18:19], v6, s[10:11] offset:256")
    b(f"v_mov_b32 v6, {NONCE_OFF}")
    b(f"global_load_dwordx2 {v(vNon2,2)}, v6, s[10:11]")
    if STAMP >= 2: stamp(b, 25)
    DH = int(opts.get('k2dh', 5))
    for idx in range(2, DH): hloads(idx)
    if STAMP >= 2: stamp(b, 26)
    vWr, vRd = 20, 21
    vWrq = 56
    b(f"s_lshl_b32 s{t0}, s{sWv}, 14")
    b(f"v_lshlrev_b32 v29, 8, v{vTau}")
    b(f"v_add_u32 v29, s{t0}, v29")
    b("v_lshrrev_b32 v6, 5, v1")
    b("v_and_b32 v7, 7, v1")
    b("v_xor_b32 v6, v6, v7")
    for q in range(4):
        b(f"v_xor_b32 v7, {2*q}, v6")
        b(f"v_lshl_add_u32 v{vWrq+q}, v7, 4, v29")
    b("v_lshrrev_b32 v22, 4, v0")
    b("v_and_b32 v23, 15, v0")
    b("v_lshrrev_b32 v6, 6, v0")
    b("v_xor_b32 v6, v6, v23")
    b(f"v_lshlrev_b32 v{vRd}, 8, v22")
    b(f"v_lshl_add_u32 v{vRd}, v6, 4, v{vRd}")
    b(f"v_xor_b32 v{vWr}, 64, v{vRd}")
    vXch = 24
    b(f"v_lshlrev_b32 v{vXch}, 4, v0")
    b(f"s_lshl_b32 s{t0}, s2, 14")
    b(f"s_add_u32 s{t0}, s{t0}, {XCH_OFF}")
    b(f"v_add_u32 v25, s{t0}, v{vXch}")
    b(f"s_xor_b32 s{t1}, s2, 1")
    b(f"s_lshl_b32 s{t0}, s{t1}, 14")
    b(f"s_add_u32 s{t0}, s{t0}, {XCH_OFF}")
    b(f"v_add_u32 v26, s{t0}, v{vXch}")
    if STAMP >= 2: stamp(b, 27)
    wreads_s()
    if STAMP >= 2: stamp(b, 28)

    def mfmas(idx):
        ps, st = seq[idx]
        kind, i = steps[st]
        acc = accS if kind == 'S' else accF
        out = []
        for aa in range(2):
            for bb in range(2):
                dreg = v(acc + (aa*2 + bb) * 16, 16)
                c = dreg if i else "0"
                out.append(f"v_mfma_f32_32x32x16_bf16 {dreg}, {a(8*st+4*aa,4)}, {hreg(idx,bb)}, {c}")
        return out

    def reduce_write(g0, g1):
        for aa in range(2):
            for bb in range(2):
                g = g0 if bb == 0 else g1
                S = accS + (aa*2+bb)*16; Fq = accF + (aa*2+bb)*16
                for p in range(8):
                    b(f"v_pk_mul_f32 {v(S+2*p,2)}, {v(S+2*p,2)}, {v(g,2)} op_sel_hi:[1,0]")
                for p in range(8):
                    b(f"v_pk_fma_f32 {v(S+2*p,2)}, {v(Fq+2*p,2)}, {v(g,2)}, {v(S+2*p,2)} op_sel:[0,1,0] op_sel_hi:[1,1,1]")
                for q in range(4):
                    b(f"ds_write_b128 v{vWrq+q}, {v(S+4*q,4)} offset:{LRED + bb*32*PITCH + aa*128}", "red")
        b.wait('lg', "red")
        b("s_barrier")
    def reduce_read(dst, gran=None):
        for p in range(4):
            for w in range(4):
                b(f"ds_read_b128 {v(dst+16*p+4*w,4)}, v{vRd if p % 2 == 0 else vWr} offset:{LRED + w*64*PITCH + p*16*PITCH}")
        for p in range(4):
            r = dst + 16*p
            b(f"v_pk_add_f32 {v(r,2)}, {v(r,2)}, {v(r+4,2)}")
            b(f"v_pk_add_f32 {v(r+2,2)}, {v(r+2,2)}, {v(r+6,2)}")
            b(f"v_pk_add_f32 {v(r+8,2)}, {v(r+8,2)}, {v(r+12,2)}")
            b(f"v_pk_add_f32 {v(r+10,2)}, {v(r+10,2)}, {v(r+14,2)}")
            if gran is None:
                b(f"v_pk_add_f32 {v(r,2)}, {v(r,2)}, {v(r+8,2)}")
                b(f"v_pk_add_f32 {v(r+2,2)}, {v(r+2,2)}, {v(r+10,2)}")
            else:
                for e in range(4):
                    u = 4 * p + e
                    b(f"v_add_f32 v{gran + 4*(u//3) + u%3}, v{r+e}, v{r+8+e}")

    total = len(seq)
    sNib = 84
    XS_ = 32
    PR_ = vBuf
    def r1c():
        f = F()
        for p in range(4):
            for w in range(4):
                f(f"ds_read_b128 {v(accF+16*p+4*w,4)}, v{vRd if p % 2 == 0 else vWr} offset:{LRED + w*64*PITCH + p*16*PITCH}")
        for p in range(4):
            r = accF + 16*p
            for e in range(4): f(f"v_add_f32 v{r+e}, v{r+e}, v{r+4+e}")
            for e in range(4): f(f"v_add_f32 v{r+8+e}, v{r+8+e}, v{r+12+e}")
            for e in range(4): f(f"v_add_f32 v{r+e}, v{r+e}, v{r+8+e}")
            for e in range(4): f(f"v_and_or_b32 v{XS_+4*p+e}, v{r+e}, -16, s{sNib+e}")
        return f
    def step_ops(idx):
        ps, st = seq[idx]
        kind, i = steps[st]
        n00 = len(b.ops)
        mf = mfmas(idx)
        if ps == 1: b.wait('lg', f"wr{st}")
        b(mf[0])
        if ps == 1:
            fi = st - 2
            if st == 6: b.wait('lg', "wr7")
            if 0 <= fi < 14: dma_f(fi)
        b(mf[1])
        if ps == 1 and 8 <= st + 1 < NS:
            wreads_f(st + 1 - 8)
        b(mf[2])
        n0 = len(b.ops)
        tg = []
        if ps == 1:
            if st + DH < NS: tg = [st + DH]
            else:
                j = st + DH - NS
                tg = [NS + 2 * j, NS + 2 * j + 1]
        elif idx + D < total: tg = [idx + D]
        for t_ in tg: hloads(t_)
        ld = b.ops[n0:]; del b.ops[n0:]
        cut = [j for j, o in enumerate(ld) if o.kind == 'vmem']
        if cut:
            b.ext(ld[:cut[0] + 1]); b(mf[3]); b.ext(ld[cut[0] + 1:])
        else:
            b(mf[3])
        ops = b.ops[n00:]; del b.ops[n00:]
        return ops
    for idx in range(NS):
        b.ext(step_ops(idx))
        st = idx
        if st == 2:
            b(f"v_readfirstlane_b32 s{t0}, v{vNon2}")
            for j in range(4):
                b(f"s_bfe_u32 s{sNib+j}, s{t0}, {(4 << 16) | (4*j):#x}")
        if STAMP >= 2 and st in (0, 3, 7, 11, 15, 19): stamp(b, 8 + (0, 3, 7, 11, 15, 19).index(st))
    stamp(b, 1)
    n0 = len(b.ops); reduce_write(vG1, vG2); rw = b.ops[n0:]; del b.ops[n0:]
    K0 = 2 * DH
    n0 = len(b.ops)
    for k in range(K0, 15): hloads(NS + k)
    hl = chunks_of(b.ops[n0:]); del b.ops[n0:]
    body, tail = rw[:-2], rw[-2:]
    gap = max(1, len(body) // (len(hl) + 1))
    outp = []
    for j, o in enumerate(body):
        outp.append(o)
        if (j + 1) % gap == 0 and hl: outp.extend(hl.pop(0))
    for c in hl: outp.extend(c)
    b.ext(outp + tail)
    stamp(b, 2)
    p2a = []
    for st in range(7): p2a += step_ops(NS + st)
    b.ext(merge(p2a, r1c().ops, per=4))
    PL = int(opts.get('k2pl', 16))
    BI = vBuf + 16
    def bias_fill():
        f = F()
        f("v_lshlrev_b32 v4, 16, v40\nv_and_b32 v5, 0xffff0000, v40\nv_lshlrev_b32 v6, 16, v41\nv_and_b32 v7, 0xffff0000, v41")
        for p in range(4):
            xs = 32 + 2*p; tp = BI + 4*p
            f(f"v_lshlrev_b32 v{tp}, 16, v{xs}\nv_and_b32 v{tp+1}, 0xffff0000, v{xs}\nv_lshlrev_b32 v{tp+2}, 16, v{xs+1}\nv_and_b32 v{tp+3}, 0xffff0000, v{xs+1}")
            for e in range(4): f(f"v_mul_f32 v{tp+e}, v{tp+e}, v{4+e}")
            f(f"v_cvt_pk_bf16_f32 v46, v{tp}, v{tp+1}")
            f(f"v_cvt_pk_bf16_f32 v47, v{tp+2}, v{tp+3}")
            f(f"v_lshlrev_b32 v{tp}, 16, v46\nv_and_b32 v{tp+1}, 0xffff0000, v46\nv_lshlrev_b32 v{tp+2}, 16, v47\nv_and_b32 v{tp+3}, 0xffff0000, v47")
            for e in range(4): f(f"v_mul_f32 v{tp+e}, v{42+p}, v{tp+e}")
        return f
    tail_steps = []
    for st in range(7, NS):
        idx = NS + st
        ops = step_ops(idx)
        if 7 <= st <= 10:
            p = st - 7
            pre = B()
            if p: pre(f"v_add_u32 v29, {p*4096}, v25")
            pre(f"global_store_dwordx4 v{29 if p else 25}, {v(XS_+4*p,4)}, s[10:11] sc0 sc1")
            ops = ops[:1] + pre.ops + ops[1:]
        if st >= 17:
            tail_steps += ops
            if st == NS - 1: b.ext(merge(tail_steps, bias_fill().ops, per=4))
            continue
        b.ext(ops)
        if STAMP >= 2 and st in (7, 11, 15, 19): stamp(b, 16 + (0, 3, 7, 11, 15, 19).index(st))
        if st == 11:
            b("s_barrier")
        if st == 11:
            b(f"s_lshl_b32 s{t0}, s{sMt}, 7")
            b(f"s_lshl_b32 s{t1}, s{sH}, 6")
            b(f"s_add_u32 s{t0}, s{t0}, s{t1}")
            b(f"v_add_u32 v30, s{t0}, v22")
            b(f"s_lshl_b32 s{t1}, s{sN}, 7")
            b("v_lshlrev_b32 v31, 10, v30")
            b("v_lshl_add_u32 v31, v23, 3, v31")
            b(f"v_add_u32 v31, s{t1}, v31")
            for p in range(4):
                if p: b(f"v_add_u32 v31, {16*1024}, v31")
                b(f"global_load_dwordx2 {v(32+2*p,2)}, v31, s[4:5]")
            b("v_lshlrev_b32 v31, 3, v23")
            b(f"v_add_u32 v31, s{t1}, v31")
            b(f"global_load_dwordx2 v[40:41], v31, s[6:7]")
            b("v_lshlrev_b32 v31, 3, v30")
            b(f"v_add_u32 v31, {G_OFF}, v31")
            for p in range(4):
                b(f"global_load_dword v{42+p}, v31, s[10:11] offset:{p*128}")
            b(f"s_lshl_b32 s{t1}, s{sN}, 8")
            b("v_lshlrev_b32 v2, 11, v30")
            b("v_lshl_add_u32 v2, v23, 4, v2")
            b(f"v_add_u32 v2, s{t1}, v2")
        if st == PL:
            for p in range(4):
                if p: b(f"v_add_u32 v29, {p*4096}, v26")
                b(f"global_load_dwordx4 {v(PR_+4*p,4)}, v{29 if p else 26}, s[10:11] sc1", "prt")
    stamp(b, 3)
    b.wait('vm', "prt")
    b(f"s_mov_b32 s{t0}, 0")
    b("L_k2_chk:")
    b("v_mov_b32 v46, 0")
    for u in range(16):
        b(f"v_xor_b32 v{PR_+u}, s{sNib + (u % 4)}, v{PR_+u}")
        b(f"v_and_or_b32 v46, v{PR_+u}, 15, v46")
    b("v_cmp_eq_u32 vcc, 0, v46")
    b("s_cmp_eq_u64 vcc, -1")
    b("s_cbranch_scc1 L_k2_ok")
    b(f"s_add_u32 s{t0}, s{t0}, 1")
    b(f"s_cmp_gt_u32 s{t0}, 40000")
    b("s_cbranch_scc1 L_k2_ok")
    for p in range(4):
        if p: b(f"v_add_u32 v29, {p*4096}, v26")
        b(f"global_load_dwordx4 {v(PR_+4*p,4)}, v{29 if p else 26}, s[10:11] sc1", 'nocount')
    b("s_waitcnt vmcnt(0)", 'nocount')
    b("s_branch L_k2_chk")
    b("L_k2_ok:")
    if STAMP >= 2: stamp(b, 30)
    n0 = len(b.ops)
    reduce_write(16, 18)
    rw = b.ops[n0:]; del b.ops[n0:]
    fl = F()
    for u in range(0, 16, 2): fl(f"v_pk_add_f32 {v(BI+u,2)}, {v(BI+u,2)}, {v(PR_+u,2)}")
    b.ext(merge(rw, fl.ops, after=lambda o: o.mn.startswith('ds_write'), per=1))
    if STAMP >= 2: stamp(b, 31)
    reduce_read(accF)
    if STAMP >= 2: stamp(b, 32)
    OUTF = opts.get('outf', '').replace('+', ' ')
    for p in range(4):
        r = accF + 16*p
        b(f"v_pk_add_f32 {v(r,2)}, {v(r,2)}, {v(BI+4*p,2)}")
        b(f"v_pk_add_f32 {v(r+2,2)}, {v(r+2,2)}, {v(BI+4*p+2,2)}")
        if p: b(f"v_add_u32 v2, {16*2048}, v2")
        b(f"global_store_dwordx4 v2, {v(r,4)}, s[8:9] {OUTF}")
    stamp(b, 4)
    dbgt_end(b, "s[18:19]", 32, True)
    stamp_end(b, sWv, "s[10:11]", 0x2100000, 1)
    b("L_k2_end:")
    b("s_endpgm")
    return finalize(b.ops)

def header():
    ref = open('cdna_kernels/%s.s.ref' % NAME).read().split('\n')
    hdr = []
    for line in ref:
        if not line.startswith(';'): break
        if '@launch' in line or 'Override launch' in line or 'grid=ceil' in line: continue
        hdr.append(line)
    hdr.append(f"; @launch kernel={K1} grid=(256,1,1) block=(512,1,1) lds=163840")
    hdr.append(f"; @launch kernel={K2} grid=(256,1,1) block=(256,1,1) lds=163840")
    return '\n'.join(hdr)

def kd(name, nv, acc_off, nsg):
    return f""".amdhsa_kernel {name}
  .amdhsa_next_free_vgpr {nv}
  .amdhsa_next_free_sgpr {nsg}
  .amdhsa_accum_offset {acc_off}
  .amdhsa_group_segment_fixed_size 0
  .amdhsa_kernarg_size 128
  .amdhsa_user_sgpr_count 2
  .amdhsa_user_sgpr_kernarg_segment_ptr 1
  .amdhsa_system_sgpr_workgroup_id_x 1
  .amdhsa_float_denorm_mode_32 3
.end_amdhsa_kernel"""

def main():
    k1 = gen_k1()
    k2 = gen_k2()
    out = [header(), '.amdgcn_target "amdgcn-amd-amdhsa--gfx950"', '.text']
    out += [f".globl {K1}", ".p2align 8", f".type {K1},@function", f"{K1}:", render(k1)]
    out += [f".globl {K2}", ".p2align 8", f".type {K2},@function", f"{K2}:", render(k2)]
    out += ["L_code_end:", "  s_endpgm"]
    out += ['.section .rodata,"a"', '.p2align 6', kd(K1, 256, 128, 102), '.p2align 6', kd(K2, 512, 256, 102)]
    print('\n'.join(out))

main()
```

```python
import sys, copy
sys.path.insert(0, 'dev')
from ir import *

NAME = "gated_mix__ssm_conv_s5__dense_activation_silu__prompt"
K1 = "gm_k1_kernel"
K2 = "gm_k2_kernel"

HF_OFF = 0
HF_SIZE = 64 * 176 * 1024
W2F_OFF = HF_SIZE
W2F_SIZE = 16 * 176 * 1024
G_OFF = W2F_OFF + W2F_SIZE
E_OFF = G_OFF + 2048 * 8
E_SIZE = 16 * 16 * 512
NONCE_OFF = E_OFF + E_SIZE
FLG_OFF = NONCE_OFF + 256
XCH_OFF = FLG_OFF + 256 * 64
WS_USED = XCH_OFF + 256 * 24576

LOG2E = 0x3fb8aa3b
INV2PI = 0x3e22f983

RB, XS, WR = 0, 65536, 114688
SC = 32768
IMG = 36864

opts = dict(a.split('=') for a in sys.argv[1:] if '=' in a)
STAMP = int(opts.get('stamp', 0))
STF = "sc0 sc1"

def v(n, k=1): return f"v{n}" if k == 1 else f"v[{n}:{n+k-1}]"
def a(n, k=1): return f"a{n}" if k == 1 else f"a[{n}:{n+k-1}]"
def s(n, k=1): return f"s{n}" if k == 1 else f"s[{n}:{n+k-1}]"


STV = 15
def reg_of_t(t): return (t >> 2) + 4 * (t & 3)
def srd(b, dst, ptr, size):
    b(f"s_mov_b32 s{dst}, s{ptr}")
    b(f"s_mov_b32 s{dst+1}, s{ptr+1}")
    b(f"s_mov_b32 s{dst+2}, {size}")
    b(f"s_mov_b32 s{dst+3}, 0x20000")


def cexp(b, dst, n_src, va, vang, t0):
    b(f"v_mul_f32 v{t0}, {n_src}, v{va}")
    b(f"v_mul_f32 v{t0+1}, {n_src}, v{vang}")
    b(f"v_exp_f32 v{t0}, v{t0}")
    b(f"v_rndne_f32 v{t0+2}, v{t0+1}")
    b(f"v_sub_f32 v{t0+1}, v{t0+1}, v{t0+2}")
    b(f"v_cos_f32 v{dst}, v{t0+1}")
    b(f"v_sin_f32 v{dst+1}, v{t0+1}")
    b(f"v_mul_f32 v{dst}, v{t0}, v{dst}")
    b(f"v_mul_f32 v{dst+1}, v{t0}, v{dst+1}")


def cfma(b, d, l, h, u, tmp):
    b(f"v_pk_fma_f32 {v(tmp,2)}, {v(l,2)}, {v(h,2)}, {v(u,2)} op_sel:[0,0,0] op_sel_hi:[0,1,1]")
    b(f"v_pk_fma_f32 {v(d,2)}, {v(l,2)}, {v(h,2)}, {v(tmp,2)} op_sel:[1,1,0] op_sel_hi:[1,0,1] neg_lo:[1,0,0]")


def cfma_s(b, d, l, h, u, tmp):
    b(f"v_fma_f32 v{tmp}, v{l}, v{h}, v{u}")
    b(f"v_fma_f32 v{tmp+1}, v{l}, v{h+1}, v{u+1}")
    b(f"v_fma_f32 v{d}, -v{l+1}, v{h+1}, v{tmp}")
    b(f"v_fma_f32 v{d+1}, v{l+1}, v{h}, v{tmp+1}")


def stamp(b, idx):
    if not STAMP: return
    g = B()
    g("s_memtime s[100:101]")
    g("s_waitcnt lgkmcnt(0)")
    g(f"v_writelane_b32 v{STV}, s100, {idx}")
    b.ext(g)


def stamp_begin(b):
    if not STAMP: return
    b(f"v_mov_b32 v{STV}, 0")
    b("s_memrealtime s[100:101]")
    b("s_waitcnt lgkmcnt(0)")
    b(f"v_writelane_b32 v{STV}, s100, 62")
    stamp(b, 0)


def stamp_end(b, wave, ws, off, lane, sh=2, tv=254):
    if not STAMP: return
    b("s_memrealtime s[100:101]")
    b("s_waitcnt lgkmcnt(0)")
    b(f"v_writelane_b32 v{STV}, s100, 63")
    b(f"s_lshl_b32 s100, s2, {sh}")
    b(f"s_add_u32 s100, s100, s{wave}")
    b(f"s_lshl_b32 s100, s100, 8")
    b(f"s_add_u32 s100, s100, {off}")
    b(f"v_lshlrev_b32 v{tv}, 2, v{lane}")
    b(f"v_add_u32 v{tv}, s100, v{tv}")
    b(f"global_store_dword v{tv}, v{STV}, {ws}")


vLane = 1
def tr_pattern(b, dst, hfmul, t):
    L = vLane
    b(f"v_lshrrev_b32 v{t}, 5, v{L}")
    b(f"v_mul_u32_u24 v{t}, {hfmul}, v{t}")
    b(f"v_bfe_u32 v{t+1}, v{L}, 2, 2")
    b(f"v_add_u32 v{t}, v{t}, v{t+1}")
    b(f"v_lshlrev_b32 v{t}, 7, v{t}")
    b(f"v_bfe_u32 v{t+1}, v{L}, 3, 1")
    b(f"v_lshlrev_b32 v{t+1}, 6, v{t+1}")
    b(f"v_bfe_u32 v{t+2}, v{L}, 4, 1")
    b(f"v_lshlrev_b32 v{t+2}, 5, v{t+2}")
    b(f"v_and_b32 v{t+3}, 3, v{L}")
    b(f"v_lshlrev_b32 v{t+3}, 3, v{t+3}")
    b(f"v_add3_u32 v{t}, v{t}, v{t+2}, v{t+3}")
    b(f"v_add_u32 v{dst}, v{t}, v{t+1}")
    b(f"v_xor_b32 v{t+1}, 64, v{t+1}")
    b(f"v_add_u32 v{dst+1}, v{t}, v{t+1}")

SLOT = 24576
NSLOT = 4
WB0 = 98304
SCR = 73728
SC = 0
IMG = 1024
def wblock_lds(q):
    if q < 8: return WB0 + q * 8192
    return (q - 8) * 8192

sX, sBRE, sBIM, sW1, sHF = 36, 40, 44, 48, 52
sWave, sWm, sR, sS, sRho = 60, 61, 62, 63, 56
sLdsX, sLdsB = 64, 65
sT0, sT1, sT2, sT3 = 68, 69, 70, 71
sWL = 72
sM1, sM2, sM3 = 80, 82, 84
sHFb, sK0, sEX = 86, 87, 88
sLo = 90
sSpin, sU = 98, 99

DBGT = int(opts.get('dbgt', 0))
def dbgt_begin(b):
    if not DBGT: return
    b("s_memrealtime s[100:101]")
    b("s_waitcnt lgkmcnt(0)")
    b("s_not_b32 s101, s100")
def dbgt_end(b, dbg, vt, k2=False):
    if not DBGT: return
    b("s_mov_b32 s99, s101")
    b("s_memrealtime s[100:101]")
    b("s_waitcnt lgkmcnt(0)")
    b(f"v_mov_b32 v{vt}, 0")
    b(f"v_mov_b32 v{vt+1}, s99")
    b(f"v_mov_b32 v{vt+2}, s100")
    b("s_mov_b64 exec, 1")
    b(f"global_atomic_umax v{vt}, v{vt+1}, {dbg} offset:16")
    b(f"global_atomic_umax v{vt}, v{vt+2}, {dbg} offset:20")
    if k2:
        b(f"global_load_dwordx2 {v(vt+2,2)}, v{vt}, {dbg} offset:-496 sc1")
        b("s_waitcnt vmcnt(0)")
        b(f"global_store_dwordx2 v{vt}, {v(vt+2,2)}, {dbg} offset:8")
    b("s_mov_b64 exec, -1")

def code_prefetch(b, kname, endlabel, wshift, tag, vt, vd):
    if not int(opts.get('pfc', 1)): return
    b("s_getpc_b64 s[40:41]")
    b(f"L_{tag}_pc:")
    b(f"s_sub_u32 s40, s40, L_{tag}_pc-{kname}")
    b("s_subb_u32 s41, s41, 0")
    b("s_lshr_b32 s42, s2, 3")
    b(f"s_lshl_b32 s42, s42, {wshift + 7}")
    b(f"v_lshrrev_b32 v{vt}, 6, v0")
    b(f"v_lshlrev_b32 v{vt}, 7, v{vt}")
    b(f"v_add_u32 v{vt}, s42, v{vt}")
    b(f"v_min_u32 v{vt}, {endlabel}-{kname}-4, v{vt}")
    b(f"global_load_dword v{vd}, v{vt}, s[40:41]", 'nocount')

def k1_head():
    b = B()
    code_prefetch(b, K1, "L_code_end", 3, "k1", 2, 14)
    dbgt_begin(b)
    stamp_begin(b)
    b("s_load_dwordx16 s[4:19], s[0:1], 0")
    b("s_load_dwordx16 s[20:35], s[0:1], 64")
    b("s_cmp_ge_u32 s2, 256")
    b("s_cbranch_scc1 L_k1_end")
    b("v_lshrrev_b32 v2, 6, v0")
    b(f"v_and_b32 v{vLane}, 63, v0")
    b(f"v_readfirstlane_b32 s{sWave}, v2")
    b(f"s_and_b32 s{sT0}, s2, 7")
    b(f"s_lshr_b32 s{sT1}, s2, 3")
    b(f"s_and_b32 s{sT2}, s{sT1}, 7")
    b(f"s_lshr_b32 s{sT3}, s{sT1}, 3")
    b(f"s_lshr_b32 s{sR}, s{sT0}, 2")
    b(f"s_lshl_b32 s{sR}, s{sR}, 3")
    b(f"s_add_u32 s{sR}, s{sR}, s{sT2}")
    b(f"s_and_b32 s{sS}, s{sT0}, 3")
    b(f"s_lshl_b32 s{sS}, s{sS}, 2")
    b(f"s_add_u32 s{sS}, s{sS}, s{sT3}")
    b(f"s_lshl_b32 s{sRho}, s{sT3}, 1")
    b(f"s_add_u32 s{sRho}, s{sRho}, s{sT2}")
    ROT1 = opts.get('rot1', 'none')
    if ROT1 == 'none': b(f"s_mov_b32 s{sRho}, 0")
    if ROT1 == 'half':
        b(f"s_and_b32 s{sRho}, s{sRho}, 1")
        b(f"s_lshl_b32 s{sRho}, s{sRho}, 2")
    if ROT1 == 'two':
        b(f"s_and_b32 s{sRho}, s{sRho}, 3")
        b(f"s_lshl_b32 s{sRho}, s{sRho}, 1")
    b(f"s_and_b32 s{sWm}, s{sWave}, 3")
    b(f"s_lshl_b32 s{sLdsX}, s{sWm}, 12")
    b(f"s_lshl_b32 s{sLdsB}, s{sWm}, 11")
    b(f"s_lshl_b32 s{sHFb}, s{sR}, 2")
    b(f"s_add_u32 s{sHFb}, s{sHFb}, s{sWm}")
    b(f"s_mul_i32 s{sHFb}, s{sHFb}, {176*1024}")
    b(f"s_cmp_ge_u32 s{sWave}, 4")
    b("s_cbranch_scc1 L_k1_F")
    return b

fXe, fXo, fB, fW = 2, 3, 4, 5
fPX, fTA, fTB, fTC, fL16 = 7, 11, 13, 16, 6 + 0
fPX, fTA, fTB, fTC = 8, 12, 14, 16
fPX, fTA, fTB, fTC, fL16 = 8, 12, 16, 18, 7
fE, fD = 20, 28
fS, fAcc = 32, 64

def dma(b, voff, srdn, soff, tok, imm=0):
    o = f" offset:{imm}" if imm else ""
    b(f"buffer_load_dwordx4 v{voff}, {s(srdn,4)}, {soff} offen{o} lds", tok)
def dma_x(b, i):
    b(f"s_add_u32 m0, s{sLdsX}, {(i % NSLOT) * SLOT}")
    for k in range(4):
        dma(b, fXe if k % 2 == 0 else fXo, sX, f"s{sLo+i}", f"x{i}", k * 1024)
def dma_B(b, i):
    b(f"s_add_u32 m0, s{sLdsB}, {(i % NSLOT) * SLOT + 16384}")
    dma(b, fB, sBRE, f"s{sLo+i}", f"B{i}")
    dma(b, fB, sBIM, f"s{sLo+i}", f"B{i}", 1024)
def dma_w(b, q):
    i, hh = q % 8, q // 8
    b(f"s_add_u32 m0, s{sLdsB}, {wblock_lds(q)}")
    if hh:
        b(f"s_add_u32 s{sT0}, s{sWL+i}, 128")
        so = f"s{sT0}"
    else:
        so = f"s{sWL+i}"
    dma(b, fW, sW1, so, f"w{q}")
    dma(b, fW + 1, sW1, so, f"w{q}", 1024)

def chunks_of(ops):
    ch = []; cur = []
    for o in ops:
        cur.append(o)
        if o.kind == 'vmem': ch.append(cur); cur = []
    if cur: ch.append(cur)
    return ch

def k1_F(ffn):
    b = B(); L = vLane
    t = fE
    for i in range(8):
        b(f"s_add_u32 s{sLo+i}, s{sRho}, {i}")
        b(f"s_and_b32 s{sLo+i}, s{sLo+i}, 7")
        b(f"s_lshl_b32 s{sLo+i}, s{sLo+i}, 7")
    b(f"v_and_b32 v{t}, 7, v{L}")
    b(f"v_lshrrev_b32 v{t+1}, 4, v{L}")
    b(f"v_xor_b32 v{t+2}, v{t}, v{t+1}")
    b(f"v_lshlrev_b32 v{t+2}, 4, v{t+2}")
    b(f"v_lshrrev_b32 v{t+3}, 3, v{L}")
    b(f"s_lshl_b32 s{sT0}, s{sR}, 17")
    b(f"s_lshl_b32 s{sT1}, s{sWm}, 15")
    b(f"s_add_u32 s{sT0}, s{sT0}, s{sT1}")
    b(f"v_lshlrev_b32 v{t}, 12, v{t+3}")
    b(f"v_add3_u32 v{fXe}, v{t}, v{t+2}, s{sT0}")
    b(f"v_xor_b32 v{fXo}, 64, v{fXe}")
    b(f"s_and_b32 s{sT0}, s{sWm}, 1")
    b(f"s_lshl_b32 s{sT0}, s{sT0}, 6")
    b(f"v_xor_b32 v{t+1}, s{sT0}, v{t+2}")
    b(f"s_lshl_b32 s{sT0}, s{sWm}, 13")
    b(f"s_lshl_b32 s{sT1}, s{sS}, 15")
    b(f"s_add_u32 s{sT0}, s{sT0}, s{sT1}")
    b(f"v_lshlrev_b32 v{t}, 10, v{t+3}")
    b(f"v_add3_u32 v{fB}, v{t}, v{t+1}, s{sT0}")
    b("s_waitcnt lgkmcnt(0)")
    srd(b, sX, 4, 2048*1024)
    srd(b, sBRE, 10, 512*1024)
    b(f"s_sub_u32 s{sBIM}, s12, 1024")
    b(f"s_subb_u32 s{sBIM+1}, s13, 0")
    b(f"s_mov_b32 s{sBIM+2}, {512*1024 + 1024}")
    b(f"s_mov_b32 s{sBIM+3}, 0x20000")
    if STAMP >= 2: stamp(b, 8)
    for i in range(3):
        dma_x(b, i); dma_B(b, i)
    if STAMP >= 2: stamp(b, 9)
    srd(b, sHF, 34, WS_USED)
    if ffn:
        srd(b, sW1, 24, 512*3584)
        b(f"v_bfe_u32 v{t+1}, v{L}, 4, 1")
        b(f"v_lshlrev_b32 v{t+1}, 2, v{t+1}")
        b(f"v_and_b32 v{t+3}, 7, v{L}")
        b(f"v_xor_b32 v{t+3}, v{t+3}, v{t+1}")
        b(f"v_lshlrev_b32 v{t+3}, 4, v{t+3}")
        b(f"v_lshrrev_b32 v{t+1}, 3, v{L}")
        b(f"s_lshl_b32 s{sT3}, s{sWm}, 4")
        b(f"v_add_u32 v{t+1}, s{sT3}, v{t+1}")
        b(f"v_mul_u32_u24 v{t+1}, 3584, v{t+1}")
        b(f"v_add_u32 v{fW}, v{t+1}, v{t+3}")
        b(f"v_add_u32 v{fW+1}, {8*3584 - 1024}, v{fW}")
        b(f"s_lshl_b32 s{sT3}, s{sS}, 8")
        for i in range(8):
            b(f"s_mul_i32 s{sWL+i}, s{sLo+i}, 1792")
            b(f"s_add_u32 s{sWL+i}, s{sWL+i}, s{sT3}")
        tr_pattern(b, fTA, 8, t)
        b(f"v_add_u32 v{fTB}, 0x10000, v{fTA}")
        b(f"v_add_u32 v{fTB+1}, 0x10000, v{fTA+1}")
        b(f"v_add_u32 v{fTC}, 0x20000, v{fTA}")
        b(f"v_add_u32 v{fTC+1}, 0x20000, v{fTA+1}")
        b(f"v_lshlrev_b32 v{fL16}, 4, v{L}")
        b(f"v_and_b32 v{t}, 31, v{L}")
        b(f"v_lshrrev_b32 v{t+1}, 5, v{L}")
        b(f"v_bfe_u32 v{t+2}, v{L}, 1, 3")
        b(f"v_xor_b32 v{t+2}, v{t+1}, v{t+2}")
        b(f"v_lshlrev_b32 v{t+1}, 7, v{t}")
        b(f"v_add_u32 v{t+1}, s{sLdsX}, v{t+1}")
        for k in range(4):
            b(f"v_xor_b32 v{t+3}, {2*k}, v{t+2}")
            b(f"v_lshl_add_u32 v{fPX+k}, v{t+3}, 4, v{t+1}")
        b(f"s_mov_b32 s66, {LOG2E ^ 0x80000000:#x}")
        b(f"s_mov_b32 s67, {LOG2E ^ 0x80000000:#x}")
        b(f"s_lshl_b32 s{sU}, s{sS}, 13")
        b(f"s_add_u32 s{sU}, s{sU}, s{sHFb}")
        b(f"s_add_u32 s{sU}, s{sU}, {64*1024}")
    stamp(b, 1)
    for i in range(8):
        if STAMP >= 2: stamp(b, 10 + 2*i)
        b.wait('vm', f"x{i}", f"B{i}")
        b("s_waitcnt lgkmcnt(0)")
        b("s_barrier")
        if STAMP >= 2: stamp(b, 11 + 2*i)
        if ffn:
            po = (i % NSLOT) * SLOT
            if po >= 65536:
                for k in range(4): b(f"v_add_u32 v{fE+k}, 0x10000, v{fPX+k}")
            for k in range(4):
                if po >= 65536: b(f"ds_read_b128 {a(16*i+4*k,4)}, v{fE+k} offset:{po - 65536}")
                else: b(f"ds_read_b128 {a(16*i+4*k,4)}, v{fPX+k} offset:{po}")
        if i <= 4:
            dma_x(b, i + 3); dma_B(b, i + 3)
        elif ffn:
            for q in {5: (0, 1, 2), 6: (3, 4, 5), 7: (6, 7)}[i]: dma_w(b, q)
    stamp(b, 2)
    if not ffn:
        b(f"s_lshl_b32 s{sT0}, s{sR}, 1")
        b(f"s_add_u32 s{sT0}, s{sT0}, s{sS}")
        b(f"s_sub_u32 s{sT0}, s{sT0}, 14")
        b(f"s_lshl_b32 s{sT0}, s{sT0}, 2")
        b(f"s_add_u32 s{sT0}, s{sT0}, s{sWm}")
        b(f"v_lshlrev_b32 v8, 7, v{L}")
        srd(b, sW1, 26, 1792*1024)
        srd(b, sHF, 14, 512*1024)
        srd(b, sX, 16, 512*1024)
        b(f"s_mul_i32 s{sT1}, s{sT0}, 14336")
        b(f"buffer_load_dword v9, v8, {s(sW1,4)}, s{sT1} offen")
        b(f"s_add_u32 s{sT1}, s{sT1}, 8192")
        b(f"buffer_load_dword v10, v8, {s(sW1,4)}, s{sT1} offen")
        b(f"s_lshl_b32 s{sT1}, s{sT0}, 12")
        b(f"buffer_load_dword v11, v8, {s(sHF,4)}, s{sT1} offen")
        b(f"buffer_load_dword v12, v8, {s(sX,4)}, s{sT1} offen")
        for _ in range(4): b("s_barrier")
        k1_gjob_all(b)
        return b
    def ffn_phase(hh):
        p = B(); DEPTH = 3
        def lds_loc(n):
            i, k = divmod(n, 4)
            base = wblock_lds(8 * hh + i) + 16 * k * 128
            if base < 65536: return fTA, base
            if base < 131072: return fTB, base - 65536
            return fTC, base - 131072
        plan = {0: [0, 1, 2, 3], int(opts.get('bcn', 12)): [4, 5, 6, 7]} if hh == 0 else {0: list(range(8, 16))}
        def reads(n):
            if n in plan:
                p.wait('vm', *[f"w{q}" for q in plan[n]])
                if hh == 0 and n == 0: p("s_waitcnt lgkmcnt(0)")
                if STAMP >= 2: stamp(p, 26 + (0 if n == 0 else 1) if hh == 0 else 29)
                p("s_barrier")
                if STAMP >= 2 and hh == 0: stamp(p, 30 + (0 if n == 0 else 1))
            base, off = lds_loc(n)
            r = fS + (n % 4) * 8
            for ft in range(2):
                for rd in range(2):
                    p(f"ds_read_b64_tr_b16 {v(r+4*ft+2*rd,2)}, v{base+ft} offset:{off + rd*512}", f"r{hh}_{n}")
        ch = []
        if hh == 0:
            d = B()
            for q in range(8, 16): dma_w(d, q)
            ch = chunks_of(d.ops)
        for n in range(DEPTH): reads(n)
        for n in range(32):
            i, k = divmod(n, 4)
            r = fS + (n % 4) * 8
            p.wait('lg', f"r{hh}_{n}")
            for ft in range(2):
                acc = fAcc + (2*hh + ft) * 16
                c = v(acc, 16) if n else "0"
                p(f"v_mfma_f32_32x32x16_bf16 {v(acc,16)}, {v(r+4*ft,4)}, {a(16*i+4*k,4)}, {c}")
                if ft == 0 and ch: p.ext(ch.pop(0))
            if hh == 0 and n == int(opts.get('bxn', 1)): p("s_barrier")
            if n + DEPTH < 32: reads(n + DEPTH)
        assert not ch
        return p
    b.ext(ffn_phase(0))
    stamp(b, 3)
    p3 = ffn_phase(1)
    fl = F()
    fl.ext(k1_silu(0, False)); fl.ext(k1_silu(1, False))
    if opts.get('p3mode') == 'nofill':
        b.ext(p3.ops); stamp(b, 6); b.ext(flat(fl.ops))
    elif opts.get('p3mode') == 'nostore':
        fo = [o for o in fl.ops if not (not isinstance(o, list) and o.kind == 'vmem')]
        st_ = [o for o in fl.ops if (not isinstance(o, list) and o.kind == 'vmem')]
        b.ext(merge(p3.ops, fo, per=int(opts.get('per3', 4)), start=1))
    else:
        b.ext(merge(p3.ops, fl.ops, per=int(opts.get('per3', 4)), start=1))
    stamp(b, 4)
    b.ext(flat(k1_silu(2, True).ops))
    b.ext(flat(k1_silu(3, True).ops))
    stamp(b, 5)
    return b

def k1_silu(ft, pk):
    b = F()
    acc = fAcc + ft * 16
    e, d = fE, fD
    for kk in range(2):
        base = acc + 8 * kk
        if pk:
            for q in range(4): b(f"v_pk_mul_f32 {v(e+2*q,2)}, {v(base+2*q,2)}, s[66:67]")
            for q in range(8): b(f"v_exp_f32 v{e+q}, v{e+q}")
            for q in range(4): b(f"v_pk_add_f32 {v(e+2*q,2)}, {v(e+2*q,2)}, 1.0 op_sel_hi:[1,0]")
            for q in range(8): b(f"v_rcp_f32 v{e+q}, v{e+q}")
            for q in range(4): b(f"v_pk_mul_f32 {v(e+2*q,2)}, {v(base+2*q,2)}, {v(e+2*q,2)}")
            for q in range(4): b(f"v_cvt_pk_bf16_f32 v{d+q}, v{e+2*q}, v{e+2*q+1}")
        else:
            seq = []
            for q in range(8):
                seq.append([f"v_mul_f32 v{e+q}, s66, v{base+q}", f"v_exp_f32 v{e+q}, v{e+q}", f"v_add_f32 v{e+q}, 1.0, v{e+q}",
                            f"v_rcp_f32 v{e+q}, v{e+q}", f"v_mul_f32 v{e+q}, v{base+q}, v{e+q}"])
            if opts.get('silu', 'diag') == 'diag':
                for tm in range(8 + 4):
                    for stg in range(5):
                        q = tm - stg
                        if 0 <= q < 8: b(seq[q][stg])
            elif opts.get('silu') == 'block':
                for stg in range(5):
                    for q in range(8): b(seq[q][stg])
            else:
                for tm in range(8 + 8):
                    for stg in range(5):
                        q = tm - 2 * stg
                        if 0 <= q < 8: b(seq[q][stg])
            for q in range(4): b(f"v_cvt_pk_bf16_f32 v{d+q}, v{e+2*q}, v{e+2*q+1}")
        b(f"s_add_u32 s{sK0}, s{sU}, {(2*ft+kk)*1024}")
        b(f"buffer_store_dwordx4 {v(d,4)}, v{fL16}, {s(sHF,4)}, s{sK0} offen {STF}")
    return b

gPX, gPB = 2, 6
vLBa, vImgW, vImgR, vL16o = 10, 11, 12, 13
vL, vC2, vL16, vL32, vL128, vL256, vF1, vG, vHfm = 16, 18, 20, 22, 24, 26, 28, 30, 32
vNon, vK, vQ, vW_, vPre, vTmp = 34, 36, 38, 40, 42, 44
vP = 48
aRE, aIM, vU = 64, 80, 96
aSX, aSB = 0, 16

def k1_S_setup():
    b = B(); L = vLane; t = vP
    b("s_waitcnt lgkmcnt(0)")
    srd(b, sHF, 34, WS_USED)
    b(f"v_and_b32 v{t}, 31, v{L}")
    b(f"s_lshl_b32 s{sT0}, s{sS}, 5")
    b(f"v_add_u32 v{t}, s{sT0}, v{t}")
    b(f"v_lshlrev_b32 v{t}, 1, v{t}")
    b(f"global_load_ushort v{vP+8}, v{t}, s[6:7]")
    b(f"global_load_ushort v{vP+9}, v{t}, s[8:9]")
    b(f"global_load_ushort v{vP+10}, v{t}, s[18:19]")
    b(f"v_mov_b32 v{t}, {NONCE_OFF}")
    b(f"global_load_dwordx2 {v(vU+26,2)}, v{t}, s[34:35] sc1")
    if int(opts.get('tlbw', 0)):
        pd = vU + 12
        b(f"s_cmp_eq_u32 s{sWm}, 2")
        b("s_cbranch_scc0 L_k1_tlb_done")
        b(f"v_mov_b32 v{t}, 0")
        for k, ptr in enumerate((24, 14, 16, 26, 20)):
            b(f"global_load_dword v{pd+k}, v{t}, {s(ptr,2)}", 'nocount')
        b(f"v_min_u32 v{t}, 19, v{L}")
        b(f"v_lshlrev_b32 v{t}, 20, v{t}")
        b(f"global_load_dword v{pd+5}, v{t}, s[34:35]", 'nocount')
        b(f"v_and_b32 v{t}, 3, v{L}")
        b(f"v_lshlrev_b32 v{t}, 20, v{t}")
        b(f"global_load_dword v{pd+6}, v{t}, s[30:31]", 'nocount')
        b("L_k1_tlb_done:")
    PF = int(opts.get('pf', 0))
    if PF:
        pd = vU + 28
        b(f"s_cmp_eq_u32 s{sWm}, 0")
        b("s_cbranch_scc0 L_k1_pf_1")
        b(f"v_lshrrev_b32 v{t}, 3, v{L}")
        b(f"s_lshl_b32 s{sT2}, s2, 3")
        b(f"v_add_u32 v{t}, s{sT2}, v{t}")
        b(f"v_lshlrev_b32 v{t}, 10, v{t}")
        b(f"v_and_b32 v{t+1}, 7, v{L}")
        b(f"v_max_u32 v{t+1}, 3, v{t+1}")
        b(f"v_lshl_add_u32 v{t}, v{t+1}, 7, v{t}")
        b(f"global_load_dword v{pd}, v{t}, s[4:5]", 'nocount')
        b("L_k1_pf_1:")
        b(f"s_cmp_eq_u32 s{sWm}, 1")
        b("s_cbranch_scc0 L_k1_pf_2")
        b(f"v_bfe_u32 v{t}, v{L}, 3, 1")
        b(f"s_lshl_b32 s{sT2}, s2, 1")
        b(f"v_add_u32 v{t}, s{sT2}, v{t}")
        b(f"v_lshlrev_b32 v{t}, 10, v{t}")
        b(f"v_and_b32 v{t+1}, 7, v{L}")
        b(f"v_max_u32 v{t+1}, 3, v{t+1}")
        b(f"v_lshl_add_u32 v{t}, v{t+1}, 7, v{t}")
        b(f"global_load_dword v{pd}, v{t}, s[10:11]", 'nocount')
        b(f"global_load_dword v{pd+1}, v{t}, s[12:13]", 'nocount')
        b("L_k1_pf_2:")
        b(f"s_cmp_eq_u32 s{sWm}, 2")
        b("s_cbranch_scc0 L_k1_pf_done")
        b(f"v_lshrrev_b32 v{t}, 5, v{L}")
        b(f"s_lshl_b32 s{sT2}, s2, 1")
        b(f"v_add_u32 v{t}, s{sT2}, v{t}")
        b(f"v_mul_u32_u24 v{t}, 3584, v{t}")
        b(f"v_and_b32 v{t+1}, 31, v{L}")
        b(f"v_min_u32 v{t+1}, 27, v{t+1}")
        b(f"v_lshl_add_u32 v{t}, v{t+1}, 7, v{t}")
        b(f"global_load_dword v{pd}, v{t}, s[24:25]", 'nocount')
        b("L_k1_pf_done:")
    b(f"v_and_b32 v{t}, 31, v{L}")
    b(f"v_lshrrev_b32 v{t+1}, 5, v{L}")
    b(f"v_bfe_u32 v{t+2}, v{L}, 1, 3")
    b(f"v_xor_b32 v{t+2}, v{t+1}, v{t+2}")
    b(f"v_lshlrev_b32 v{t+1}, 7, v{t}")
    b(f"v_add_u32 v{t+1}, s{sLdsX}, v{t+1}")
    b(f"v_lshrrev_b32 v{t+3}, 3, v{t}")
    b(f"v_lshlrev_b32 v{t+3}, 11, v{t+3}")
    b(f"v_and_b32 v{t}, 7, v{t}")
    b(f"v_lshl_add_u32 v{t}, v{t}, 7, v{t+3}")
    b(f"v_add_u32 v{t}, 16384, v{t}")
    for k in range(4):
        b(f"v_xor_b32 v{t+3}, {2*k}, v{t+2}")
        b(f"v_lshl_add_u32 v{gPX+k}, v{t+3}, 4, v{t+1}")
        b(f"v_lshl_add_u32 v{gPB+k}, v{t+3}, 4, v{t}")
    return b

def k1_params():
    b = F()
    lre, lim, ldt = vP+8, vP+9, vP+10
    va, vang, t0 = vP, vP+1, vP+2
    b(f"v_lshlrev_b32 v{lre}, 16, v{lre}")
    b(f"v_lshlrev_b32 v{lim}, 16, v{lim}")
    b(f"v_lshlrev_b32 v{ldt}, 16, v{ldt}")
    b(f"v_mul_f32 v{ldt}, {LOG2E:#x}, v{ldt}")
    b(f"v_exp_f32 v{ldt}, v{ldt}")
    b(f"v_cvt_pk_bf16_f32 v{ldt}, v{ldt}, v{ldt}")
    b(f"v_lshlrev_b32 v{ldt}, 16, v{ldt}")
    b(f"v_mul_f32 v{va}, v{ldt}, v{lre}")
    b(f"v_mul_f32 v{vang}, v{ldt}, v{lim}")
    b(f"v_mul_f32 v{va}, {LOG2E:#x}, v{va}")
    b(f"v_mul_f32 v{vang}, {INV2PI:#x}, v{vang}")
    cexp(b, vL, "1.0", va, vang, t0)
    for dst, cst in ((vL16, 0x41800000), (vL32, 0x42000000), (vL128, 0x43000000), (vL256, 0x43800000)):
        b(f"v_mov_b32 v{t0+3}, {cst:#x}")
        cexp(b, dst, f"v{t0+3}", va, vang, t0)
    b(f"v_lshrrev_b32 v{t0+3}, 5, v{vLane}")
    b(f"v_cvt_f32_u32 v{vHfm}, v{t0+3}")
    b(f"v_lshlrev_b32 v{t0+3}, 4, v{t0+3}")
    b(f"v_cvt_f32_u32 v{t0+3}, v{t0+3}")
    cexp(b, vF1, f"v{t0+3}", va, vang, t0)
    b(f"v_lshrrev_b32 v{t0+3}, 5, v{vLane}")
    b(f"v_lshlrev_b32 v{t0+3}, 4, v{t0+3}")
    b(f"s_lshl_b32 s{sSpin}, s{sWm}, 5")
    b(f"v_add_u32 v{t0+3}, s{sSpin}, v{t0+3}")
    b(f"v_cvt_f32_u32 v{t0+3}, v{t0+3}")
    cexp(b, vG, f"v{t0+3}", va, vang, t0)
    b(f"v_add_f32 v{t0}, -1.0, v{vL}")
    b(f"v_mul_f32 v{t0+1}, v{lre}, v{lre}")
    b(f"v_fma_f32 v{t0+1}, v{lim}, v{lim}, v{t0+1}")
    b(f"v_rcp_f32 v{t0+1}, v{t0+1}")
    b(f"v_mul_f32 v{vC2}, v{t0}, v{lre}")
    b(f"v_fma_f32 v{vC2}, v{vL+1}, v{lim}, v{vC2}")
    b(f"v_mul_f32 v{vC2+1}, v{vL+1}, v{lre}")
    b(f"v_fma_f32 v{vC2+1}, -v{t0}, v{lim}, v{vC2+1}")
    b(f"v_add_f32 v{t0+1}, v{t0+1}, v{t0+1}")
    b(f"v_mul_f32 v{vC2}, v{vC2}, v{t0+1}")
    b(f"v_mul_f32 v{vC2+1}, v{vC2+1}, v{t0+1}")
    return b

def k1_setup_common():
    b = F(); t = vP + 12; L = vLane
    for k, m in ((1, sM1), (2, sM2), (3, sM3)):
        g = B()
        g(f"s_cmp_ge_u32 s{sWm}, {k}")
        g(f"s_cselect_b64 {s(m,2)}, -1, 0")
        b.group(g)
    b(f"v_lshlrev_b32 v{vL16o}, 4, v{L}")
    b(f"v_and_b32 v{t}, 31, v{L}")
    b(f"v_lshlrev_b32 v{t}, 4, v{t}")
    b(f"s_lshl_b32 s{sK0}, s{sS}, 9")
    b(f"s_add_u32 s{sK0}, s{sK0}, {E_OFF}")
    b(f"v_add_u32 v{vLBa}, s{sK0}, v{t}")
    b(f"v_and_b32 v{t}, 31, v{L}")
    b(f"v_mul_u32_u24 v{t}, 80, v{t}")
    b(f"v_lshrrev_b32 v{t+1}, 5, v{L}")
    b(f"v_lshl_add_u32 v{t}, v{t+1}, 5, v{t}")
    b(f"s_mul_i32 s{sK0}, s{sWm}, 5120")
    b(f"s_add_u32 s{sK0}, s{sK0}, {SCR}")
    b(f"v_add_u32 v{vImgW}, s{sK0}, v{t}")
    b(f"v_lshrrev_b32 v{t+1}, 5, v{L}")
    b(f"v_lshlrev_b32 v{t+1}, 3, v{t+1}")
    b(f"v_bfe_u32 v{t+2}, v{L}, 2, 2")
    b(f"v_add_u32 v{t+1}, v{t+1}, v{t+2}")
    b(f"v_mul_u32_u24 v{t+1}, 80, v{t+1}")
    b(f"v_and_b32 v{t+2}, 1, v{L}")
    b(f"v_lshlrev_b32 v{t+2}, 5, v{t+2}")
    b(f"v_bfe_u32 v{t+3}, v{L}, 4, 1")
    b(f"v_lshlrev_b32 v{t+3}, 4, v{t+3}")
    b(f"v_add3_u32 v{t+1}, v{t+1}, v{t+2}, v{t+3}")
    b(f"v_bfe_u32 v{t+2}, v{L}, 1, 1")
    b(f"v_lshlrev_b32 v{t+2}, 3, v{t+2}")
    b(f"v_add3_u32 v{vImgR}, v{t+1}, v{t+2}, s{sK0}")
    return b

def k1_gjob_all(b):
    L = vLane
    xs0, gs, t = 32, 16, 24
    gu = 64
    b(f"v_and_b32 v{t}, 31, v{L}")
    b(f"v_lshlrev_b32 v{t}, 4, v{t}")
    b(f"global_load_dwordx4 {v(gs,4)}, v{t}, s[28:29]")
    b(f"global_load_dwordx4 {v(gs+4,4)}, v{t}, s[28:29] offset:512")
    b(f"v_lshrrev_b32 v{t+1}, 5, v{L}")
    b(f"s_lshl_b32 s{sT1}, s{sT0}, 4")
    b(f"v_add_u32 v{t+1}, s{sT1}, v{t+1}")
    b(f"v_lshlrev_b32 v{t+2}, 3, v{t+1}")
    b(f"v_add_u32 v{t+2}, {G_OFF}, v{t+2}")
    b(f"v_lshlrev_b32 v{t+1}, 10, v{t+1}")
    b(f"v_add_u32 v{t+1}, v{t+1}, v{t}")
    def ld(p):
        r = xs0 + (p % 4) * 8
        if p: b(f"v_add_u32 v{t+1}, 2048, v{t+1}")
        b(f"global_load_dwordx4 {v(r,4)}, v{t+1}, s[4:5]")
        b(f"global_load_dwordx4 {v(r+4,4)}, v{t+1}, s[4:5] offset:512")
    for p in range(3): ld(p)
    for k in range(8):
        b(f"v_lshlrev_b32 v{gu+2*k}, 16, v{gs+k}")
        b(f"v_and_b32 v{gu+2*k+1}, 0xffff0000, v{gs+k}")
    b(f"v_and_b32 v{t+3}, 31, v{L}")
    w = 80
    for p in range(8):
        if p + 3 < 8: ld(p + 3)
        xs = xs0 + (p % 4) * 8
        acc = w
        for k in range(8):
            a0 = w + 2 + 2 * (k % 4)
            b(f"v_lshlrev_b32 v{a0}, 16, v{xs+k}")
            b(f"v_and_b32 v{a0+1}, 0xffff0000, v{xs+k}")
            b(f"v_pk_mul_f32 {v(a0,2)}, {v(a0,2)}, {v(gu+2*k,2)}")
            b(f"v_cvt_pk_bf16_f32 v{a0}, v{a0}, v{a0+1}")
            b(f"v_and_b32 v{a0+1}, 0xffff0000, v{a0}")
            b(f"v_lshlrev_b32 v{a0}, 16, v{a0}")
            if k == 0:
                b(f"v_add_f32 v{acc}, v{a0}, v{a0+1}")
            else:
                b(f"v_add_f32 v{a0}, v{a0}, v{a0+1}")
                b(f"v_add_f32 v{acc}, v{acc}, v{a0}")
        for r in (8, 4, 2, 1):
            b(f"v_add_f32_dpp v{acc}, v{acc}, v{acc} row_ror:{r} row_mask:0xf bank_mask:0xf")
        b(f"v_mov_b32 v{acc+1}, v{acc}")
        b(f"v_permlane16_swap_b32 v{acc}, v{acc+1}")
        b(f"v_add_f32 v{acc}, v{acc}, v{acc+1}")
        b(f"v_cvt_pk_bf16_f32 v{acc}, v{acc}, v{acc}")
        b(f"v_lshlrev_b32 v{acc}, 16, v{acc}")
        b(f"v_mul_f32 v{acc}, {LOG2E ^ 0x80000000:#x}, v{acc}")
        b(f"v_exp_f32 v{acc}, v{acc}")
        b(f"v_add_f32 v{acc}, 1.0, v{acc}")
        b(f"v_rcp_f32 v{acc}, v{acc}")
        b(f"v_cvt_pk_bf16_f32 v{acc}, v{acc}, v{acc}")
        d = w + 10 + 2 * (p % 2)
        b(f"v_lshlrev_b32 v{d}, 16, v{acc}")
        b(f"v_sub_f32 v{d+1}, 1.0, v{d}")
        b(f"v_cvt_pk_bf16_f32 v{d+1}, v{d+1}, v{d+1}")
        b(f"v_lshlrev_b32 v{d+1}, 16, v{d+1}")
        b(f"v_cmp_eq_u32 vcc, 0, v{t+3}")
        b(f"s_and_saveexec_b64 {s(sEX,2)}, vcc")
        b(f"global_store_dwordx2 v{t+2}, {v(d,2)}, s[34:35]")
        b(f"s_mov_b64 exec, {s(sEX,2)}")
        b(f"v_add_u32 v{t+2}, 16, v{t+2}")

def k1_nonce():
    b = F()
    t = vU + 26
    b(f"v_add_u32 v{t}, 1, v{t}")
    b(f"v_or_b32 v{t+1}, 1, v{t+1}")
    b(f"v_mov_b32 v{t+2}, {NONCE_OFF}")
    b(f"v_mov_b32 v{t+3}, 0")
    g = B()
    g(f"s_or_b32 s{sSpin}, s2, s{sWave}")
    g(f"s_cmp_lg_u32 s{sSpin}, 0")
    g("s_cbranch_scc1 L_k1_nononce")
    g(f"global_store_dwordx2 v{t+2}, {v(t,2)}, s[34:35] sc0 sc1", 'nocount')
    g(f"global_store_dwordx2 v{t+3}, {v(t,2)}, s[32:33] sc0 sc1", 'nocount')
    g("L_k1_nononce:")
    b.group(g)
    return b

def k1_S():
    b = k1_S_setup()
    if int(opts.get('sprio', 1)): b("s_setprio 2")
    m = B()
    for i in range(8):
        m("s_waitcnt lgkmcnt(0)")
        m("s_barrier")
        po = (i % NSLOT) * SLOT
        hi = po >= 65536 - 1024
        if hi:
            for k in range(4):
                m(f"v_add_u32 v{vTmp+k}, 0x10000, v{gPX+k}")
        for k in range(4):
            if hi: m(f"ds_read_b128 {a(aSX+4*k,4)}, v{vTmp+k} offset:{po - 65536}")
            else: m(f"ds_read_b128 {a(aSX+4*k,4)}, v{gPX+k} offset:{po}")
        if hi:
            for k in range(4):
                m(f"v_add_u32 v{vTmp+k}, 0x10000, v{gPB+k}")
        for k in range(4):
            for mm in range(2):
                if hi: m(f"ds_read_b128 {a(aSB+8*k+4*mm,4)}, v{vTmp+k} offset:{po - 65536 + mm*1024}")
                else: m(f"ds_read_b128 {a(aSB+8*k+4*mm,4)}, v{gPB+k} offset:{po + mm*1024}")
        for k in range(4):
            for mm, acc in ((0, aRE), (1, aIM)):
                c = v(acc, 16) if (i, k) != (0, 0) else "0"
                m(f"v_mfma_f32_32x32x16_bf16 {v(acc,16)}, {a(aSX+4*k,4)}, {a(aSB+8*k+4*mm,4)}, {c}")
    f = F()
    f.ext(k1_nonce())
    f.ext(k1_params())
    f.ext(k1_setup_common())
    g = B()
    g(f"v_mov_b32 v{vTmp}, 0")
    g(f"global_load_dwordx2 {v(vNon,2)}, v{vTmp}, s[32:33] sc1")
    f.group(g)
    b.ext(merge(m.ops, f.ops, per=int(opts.get('per1', 5))))
    b("s_waitcnt vmcnt(0)")
    stamp(b, 2)
    s1 = flat(k1_scan1a().ops)
    cut = [j for j, o in enumerate(s1) if o.kind == 'ds'][0]
    if STAMP >= 2: stamp(b, 8)
    b.ext(s1[:cut])
    if STAMP >= 2: stamp(b, 9)
    b("s_barrier")
    b.ext(s1[cut:])
    if STAMP >= 2: stamp(b, 11)
    b("s_barrier")
    if STAMP >= 2: stamp(b, 12)
    b.ext(flat(k1_scan1b().ops))
    if STAMP >= 2: stamp(b, 13)
    b.ext(k1_publish())
    stamp(b, 3)
    b("s_barrier")
    b("s_barrier")
    stamp(b, 4)
    b.ext(k1_lookback())
    stamp(b, 5)
    b.ext(k1_final())
    stamp(b, 6)
    return b

def cfma_sr(b, d, l, h, ure, uim, tmp):
    b(f"v_fma_f32 v{tmp}, v{l}, v{h}, v{ure}")
    b(f"v_fma_f32 v{tmp+1}, v{l}, v{h+1}, v{uim}")
    b(f"v_fma_f32 v{d}, -v{l+1}, v{h+1}, v{tmp}")
    b(f"v_fma_f32 v{d+1}, v{l+1}, v{h}, v{tmp+1}")

def k1_scan1a():
    b = F()
    tmp = vTmp
    R = lambda t: aRE + reg_of_t(t)
    I = lambda t: aIM + reg_of_t(t)
    b(f"v_mov_b32 v{vQ}, v{R(0)}\nv_mov_b32 v{vQ+1}, v{I(0)}")
    cur = vQ
    for t in range(1, 16):
        nxt = vQ if cur == vW_ else vW_
        cfma_sr(b, nxt, vL, cur, R(t), I(t), tmp)
        cur = nxt
    assert cur == vW_
    b(f"v_mov_b32 v{vPre}, v{cur}\nv_mov_b32 v{vPre+1}, v{cur+1}")
    b(f"v_mov_b32 v{vQ}, v{cur}\nv_mov_b32 v{vQ+1}, v{cur+1}")
    b(f"v_permlane32_swap_b32 v{vPre}, v{vQ}")
    b(f"v_permlane32_swap_b32 v{vPre+1}, v{vQ+1}")
    cfma_s(b, vW_, vL16, vPre, vQ, tmp)
    b(f"v_mul_f32 v{vPre}, v{vPre}, v{vHfm}\nv_mul_f32 v{vPre+1}, v{vPre+1}, v{vHfm}")
    t = vP
    b(f"v_and_b32 v{t+14}, 31, v{vLane}")
    b(f"v_lshlrev_b32 v{t+14}, 3, v{t+14}")
    b(f"v_add_u32 v{t+14}, {SCR}, v{t+14}")
    b(f"s_lshl_b32 s{sK0}, s{sWm}, 8")
    b(f"v_add_u32 v{t+15}, s{sK0}, v{t+14}")
    b(f"ds_write_b64 v{t+15}, {v(vW_,2)} offset:{SC}", "Wx")
    b.wait('lg', "Wx")
    return b

def k1_scan1b():
    b = F()
    t = vP; tmp = vTmp
    for w in range(4):
        b(f"ds_read_b64 {v(t+2*w,2)}, v{t+14} offset:{SC + 256*w}")
    W0, W1, W2, W3 = t, t+2, t+4, t+6
    Q2, Q3 = t+8, t+10
    cfma_s(b, Q2, vL32, W0, W1, tmp)
    cfma_s(b, Q3, vL32, Q2, W2, tmp)
    E = t + 12
    cfma_s(b, E, vL32, Q3, W3, tmp)
    for h in range(2):
        b(f"v_cndmask_b32 v{vQ+h}, 0, v{W0+h}, {s(sM1,2)}")
        b(f"v_cndmask_b32 v{vQ+h}, v{vQ+h}, v{Q2+h}, {s(sM2,2)}")
        b(f"v_cndmask_b32 v{vQ+h}, v{vQ+h}, v{Q3+h}, {s(sM3,2)}")
    cfma_s(b, vK, vF1, vQ, vPre, tmp)
    return b

def k1_publish():
    t = vP; E = t + 12; tmp = vTmp
    g = B()
    g(f"s_lshl_b32 s{sK0}, s{sR}, 13")
    g(f"v_add_u32 v{tmp}, s{sK0}, v{vLBa}")
    g(f"v_lshrrev_b32 v{tmp+1}, 3, v{vLane}")
    g(f"v_cmp_ne_u32 vcc, 0, v{vNon+1}")
    g("s_cbranch_vccnz L_k1_nonce_ok")
    g(f"s_mov_b32 s{sSpin}, 0")
    g("L_k1_nonce_retry:")
    g(f"v_mov_b32 v{tmp+2}, 0")
    g(f"global_load_dwordx2 {v(vNon,2)}, v{tmp+2}, s[32:33] sc1", 'nocount')
    g("s_waitcnt vmcnt(0)", 'nocount')
    g(f"s_add_u32 s{sSpin}, s{sSpin}, 1")
    g(f"s_cmp_gt_u32 s{sSpin}, 40000")
    g("s_cbranch_scc1 L_k1_nonce_ok")
    g(f"v_cmp_ne_u32 vcc, 0, v{vNon+1}")
    g("s_cbranch_vccz L_k1_nonce_retry")
    g("L_k1_nonce_ok:")
    g(f"v_mov_b32 v{E+2}, v{vNon}\nv_mov_b32 v{E+3}, v{vNon+1}")
    g(f"v_cmp_eq_u32 vcc, s{sWm}, v{tmp+1}")
    g(f"s_and_saveexec_b64 {s(sEX,2)}, vcc")
    g(f"global_store_dwordx4 v{tmp}, {v(E,4)}, s[34:35] sc0 sc1")
    g(f"s_mov_b64 exec, {s(sEX,2)}")
    return g

def k1_lookback():
    b = B(); tmp = vTmp; t = vP
    H = vW_
    def loads(tok):
        b(f"s_sub_u32 s{sK0}, s{sR}, 1")
        b(f"s_lshl_b32 s{sK0}, s{sK0}, 13")
        b(f"v_lshrrev_b32 v{t}, 5, v{vLane}")
        b(f"v_lshlrev_b32 v{t}, 13, v{t}")
        b(f"v_sub_u32 v{t}, s{sK0}, v{t}")
        b(f"v_add_u32 v{t}, v{vLBa}, v{t}")
        for mm in range(8):
            if mm: b(f"v_subrev_u32 v{t}, 16384, v{t}")
            b(f"v_max_i32 v{t+1}, v{t}, v{vLBa}")
            b(f"global_load_dwordx4 {v(vU+4*mm,4)}, v{t+1}, s[34:35] sc1", tok)
    b(f"s_cmp_eq_u32 s{sR}, 0")
    b("s_cbranch_scc1 L_k1_lb_zero")
    b(f"s_mov_b32 s{sSpin}, 0")
    b("L_k1_lb_again:")
    loads('nocount')
    b("s_waitcnt vmcnt(0)", 'nocount')
    b(f"s_mov_b64 {s(sEX,2)}, -1")
    for mm in range(8):
        b(f"s_cmp_le_u32 s{sR}, {2*mm}")
        b("s_cbranch_scc1 L_k1_lb_checked")
        b(f"s_cmp_ge_u32 s{sR}, {2*mm+2}")
        b(f"s_cselect_b32 s{sT1}, 0, -1")
        b(f"v_cmp_eq_u32 vcc, v{vU+4*mm+2}, v{vNon}")
        b(f"v_cmp_eq_u32 {s(sT2,2)}, v{vU+4*mm+3}, v{vNon+1}")
        b(f"s_and_b64 vcc, vcc, {s(sT2,2)}")
        b(f"s_or_b32 vcc_hi, vcc_hi, s{sT1}")
        b(f"s_and_b64 {s(sEX,2)}, {s(sEX,2)}, vcc")
    b("L_k1_lb_checked:")
    b(f"s_cmp_eq_u64 {s(sEX,2)}, -1")
    b("s_cbranch_scc1 L_k1_lb_ok")
    b(f"s_add_u32 s{sSpin}, s{sSpin}, 1")
    b(f"s_cmp_gt_u32 s{sSpin}, 40000")
    b("s_cbranch_scc1 L_k1_lb_ok")
    b(f"s_sleep {int(opts.get('lbsleep', 4))}")
    b("s_branch L_k1_lb_again")
    b("L_k1_lb_ok:")
    b(f"v_mov_b32 v{H}, 0\nv_mov_b32 v{H+1}, 0")
    for mm in range(7, -1, -1):
        b(f"s_cmp_le_u32 s{sR}, {2*mm}")
        b(f"s_cbranch_scc1 L_k1_lb_h{mm}")
        b(f"s_cmp_ge_u32 s{sR}, {2*mm+2}")
        b(f"s_cselect_b32 s{sT3}, -1, 0")
        b(f"s_mov_b32 s{sT2}, -1")
        b(f"v_cndmask_b32 v{vU+4*mm}, 0, v{vU+4*mm}, {s(sT2,2)}")
        b(f"v_cndmask_b32 v{vU+4*mm+1}, 0, v{vU+4*mm+1}, {s(sT2,2)}")
        b(f"v_pk_fma_f32 {v(tmp,2)}, {v(vL256,2)}, {v(H,2)}, {v(vU+4*mm,2)} op_sel:[0,0,0] op_sel_hi:[0,1,1]")
        b(f"v_pk_fma_f32 {v(H,2)}, {v(vL256,2)}, {v(H,2)}, {v(tmp,2)} op_sel:[1,1,0] op_sel_hi:[1,0,1] neg_lo:[1,0,0]")
        b(f"L_k1_lb_h{mm}:")
    b(f"v_mov_b32 v{vPre}, v{H}\nv_mov_b32 v{vPre+1}, v{H+1}")
    b(f"v_permlane32_swap_b32 v{H}, v{vPre}")
    b(f"v_permlane32_swap_b32 v{H+1}, v{vPre+1}")
    cfma(b, t, vL128, vPre, H, tmp)
    cfma(b, vQ, vG, t, vK, tmp)
    b("s_branch L_k1_lb_done")
    b("L_k1_lb_zero:")
    b(f"v_mov_b32 v{vQ}, v{vK}\nv_mov_b32 v{vQ+1}, v{vK+1}")
    b("L_k1_lb_done:")
    return b

def k1_final():
    b = B()
    tmp = vTmp
    prev = vQ
    for t in range(16):
        r = reg_of_t(t)
        u = vU + 2 * r
        cfma_sr(b, u, vL, prev, aRE + r, aIM + r, tmp)
        prev = u
    for r in range(16):
        u = vU + 2 * r
        tp = vP + 2 * (r % 4)
        b(f"v_pk_mul_f32 {v(tp,2)}, {v(vC2,2)}, {v(u,2)} op_sel:[0,0] op_sel_hi:[1,0]")
        b(f"v_pk_fma_f32 {v(u,2)}, {v(vC2,2)}, {v(u,2)}, {v(tp,2)} op_sel:[1,1,0] op_sel_hi:[0,1,1] neg_lo:[1,0,0]")
    for k in range(8):
        b(f"v_cvt_pk_bf16_f32 v{aRE+k}, v{vU+4*k}, v{vU+4*k+2}")
    for h in range(2):
        b(f"ds_write_b128 v{vImgW}, {v(aRE+4*h,4)} offset:{IMG + h*16}", "img")
    for k in range(8):
        b(f"v_cvt_pk_bf16_f32 v{aRE+8+k}, -v{vU+4*k+1}, -v{vU+4*k+3}")
    for h in range(2):
        b(f"ds_write_b128 v{vImgW}, {v(aRE+8+4*h,4)} offset:{IMG + 2560 + h*16}", "img")
    b(f"s_lshl_b32 s{sT2}, s{sS}, 12")
    b(f"s_add_u32 s{sT1}, s{sHFb}, s{sT2}")
    b.wait('lg', "img")
    for m in range(2):
        for kk in range(2):
            r = aIM + (2*m + kk) * 4
            for rd in range(2):
                b(f"ds_read_b64_tr_b16 {v(r+2*rd,2)}, v{vImgR} offset:{IMG + (m*32 + 16*kk + 4*rd)*80}")
    for m in range(2):
        for kk in range(2):
            r = aIM + (2*m + kk) * 4
            b(f"s_add_u32 s{sT2}, s{sT1}, {(2*m+kk)*1024}")
            b(f"buffer_store_dwordx4 {v(r,4)}, v{vL16o}, {s(sHF,4)}, s{sT2} offen {STF}")
    return b

def gen_k1():
    global STV
    STV = 15
    pro = k1_head()
    S = k1_S()
    dbgt_end(S, "s[32:33]", 44)
    stamp_end(S, sWave, "s[34:35]", 0x2000000, vLane, 3, 14)
    S("s_endpgm")
    Fm = B(); Fm("L_k1_F:")
    Fm(f"s_cmp_ge_u32 s{sS}, 14")
    Fm("s_cbranch_scc1 L_k1_Fn")
    f1 = k1_F(True)
    dbgt_end(f1, "s[32:33]", 20)
    stamp_end(f1, sWave, "s[34:35]", 0x2000000, vLane, 3, 14)
    f1("s_endpgm")
    Fn = B(); Fn("L_k1_Fn:")
    f2 = k1_F(False)
    dbgt_end(f2, "s[32:33]", 20)
    stamp_end(f2, sWave, "s[34:35]", 0x2000000, vLane, 3, 14)
    f2("L_k1_end:")
    f2("s_endpgm")
    def path(prefix, body, label=None):
        allops = insert_waits(copy.deepcopy(prefix) + body)
        if label:
            idx = [i for i, o in enumerate(allops) if o.text == label][0]
            allops = allops[idx:]
        return insert_hazard_nops(allops)
    out = path([], pro.ops + S.ops)
    out += path(pro.ops, Fm.ops + f1.ops, "L_k1_F:")
    out += path(pro.ops + Fm.ops, Fn.ops + f2.ops, "L_k1_Fn:")
    return out

def gen_k2():
    global STV
    STV = 9
    b = B()
    D = 15
    DW = int(opts.get('k2dw', 5))
    sWv, sH, sMt, sN = 40, 41, 42, 43
    sA, sCR, sCI, sW2 = 44, 48, 76, 80
    t0, t1, t2 = 52, 53, 54
    sS0, sF0 = 56, 57
    sLw = 58
    sCoff, sWoff2 = 59, 62
    vH0, vH1 = 4, 5
    vCe, vCo, vWa, vWb = 2, 3, 60, 61
    vPp, vTp = 48, 52
    accS, accF, vBuf = 64, 128, 192
    vNon2 = 14
    vTau = 8
    vG1, vG2 = 10, 12
    PITCH = 256
    LRED = 0
    LSTG = 65536
    code_prefetch(b, K2, "L_code_end", 2, "k2", 6, 63)
    dbgt_begin(b)
    stamp_begin(b)
    b("s_load_dwordx2 s[18:19], s[0:1], 112")
    b("s_load_dwordx2 s[4:5], s[0:1], 0")
    b("s_load_dwordx4 s[12:15], s[0:1], 40")
    b("s_load_dwordx2 s[6:7], s[0:1], 64")
    b("s_load_dwordx2 s[16:17], s[0:1], 88")
    b("s_load_dwordx2 s[8:9], s[0:1], 104")
    b("s_load_dwordx2 s[10:11], s[0:1], 120")
    b("s_cmp_ge_u32 s2, 256")
    b("s_cbranch_scc1 L_k2_end")
    b("v_lshrrev_b32 v6, 6, v0")
    b("v_and_b32 v1, 63, v0")
    b(f"v_readfirstlane_b32 s{sWv}, v6")
    b(f"s_and_b32 s{sH}, s2, 1")
    b(f"s_bfe_u32 s{t0}, s2, 0x20001")
    b(f"s_lshr_b32 s{t1}, s2, 3")
    b(f"s_and_b32 s{sMt}, s{t1}, 3")
    b(f"s_lshl_b32 s{t0}, s{t0}, 2")
    b(f"s_add_u32 s{sMt}, s{sMt}, s{t0}")
    b(f"s_lshr_b32 s{sN}, s{t1}, 2")
    b("v_and_b32 v6, 7, v1")
    b("v_lshrrev_b32 v7, 4, v1")
    b("v_xor_b32 v6, v6, v7")
    b("v_lshlrev_b32 v6, 4, v6")
    b("v_lshrrev_b32 v7, 3, v1")
    b("v_lshlrev_b32 v7, 10, v7")
    b(f"v_add_u32 v{vCe}, v6, v7")
    b(f"v_xor_b32 v{vCo}, 64, v{vCe}")
    b("v_bfe_u32 v6, v1, 4, 1")
    b("v_lshlrev_b32 v6, 2, v6")
    b("v_and_b32 v29, 7, v1")
    b("v_xor_b32 v6, v6, v29")
    b("v_lshlrev_b32 v6, 4, v6")
    b(f"v_add_u32 v{vWa}, v6, v7")
    b(f"v_add_u32 v{vWb}, {8192 - 1024}, v{vWa}")
    b(f"s_lshl_b32 s{sCoff}, s{sN}, 16")
    b(f"s_lshl_b32 s{t0}, s{sH}, 9")
    b(f"s_add_u32 s{sCoff}, s{sCoff}, s{t0}")
    b(f"s_lshl_b32 s{t0}, s{sWv}, 7")
    b(f"s_add_u32 s{sCoff}, s{sCoff}, s{t0}")
    b(f"s_lshl_b32 s{t0}, s{sH}, 2")
    b(f"s_add_u32 s{t0}, s{t0}, s{sWv}")
    b(f"s_mul_i32 s{sWoff2}, s{t0}, {14*16*1024}")
    b(f"s_lshl_b32 s{t0}, s{sN}, 7")
    b(f"s_add_u32 s{sWoff2}, s{sWoff2}, s{t0}")
    b(f"s_mul_i32 s{sLw}, s{sWv}, 24576")
    b(f"s_add_u32 s{sLw}, s{sLw}, {LSTG}")
    b(f"s_xor_b32 s{t0}, s{sH}, 1")
    b(f"s_lshl_b32 s{t0}, s{t0}, 1")
    b(f"s_lshl_b32 s{t1}, s{sMt}, 2")
    b(f"s_add_u32 s{t0}, s{t0}, s{t1}")
    b(f"s_mul_i32 s{t0}, s{t0}, {176*1024}")
    b("v_lshlrev_b32 v6, 4, v1")
    b(f"v_add_u32 v{vH0}, s{t0}, v6")
    b(f"v_add_u32 v{vH1}, {176*1024}, v{vH0}")
    b(f"s_lshl_b32 s{sS0}, s{sH}, 2")
    b(f"s_add_u32 s{sS0}, s{sS0}, s{sWv}")
    b(f"s_lshl_b32 s{sS0}, s{sS0}, 13")
    b(f"s_lshl_b32 s{sF0}, s{sH}, 2")
    b(f"s_add_u32 s{sF0}, s{sF0}, s{sWv}")
    b(f"s_mul_i32 s{sF0}, s{sF0}, {14*1024}")
    b(f"s_add_u32 s{sF0}, s{sF0}, {64*1024}")
    b("s_waitcnt lgkmcnt(0)")
    srd(b, sA, 10, WS_USED)
    srd(b, sCR, 12, 512*1024)
    srd(b, sCI, 14, 512*1024)
    srd(b, sW2, 16, 1792*1024)
    steps = [('S', i) for i in range(8)] + [('F', i) for i in range(14)]
    NS = len(steps)
    seq = [(1, st) for st in range(NS)] + [(2, st) for st in range(NS)]
    def hreg(idx, k):
        sl = idx % D
        if sl < 8: return v(vBuf + sl * 8 + k * 4, 4)
        return a(200 + (sl - 8) * 8 + k * 4, 4)
    def dma_c(m):
        for aa in range(8):
            b(f"s_add_u32 m0, s{sLw}, {m*8192 + aa*1024}")
            b(f"s_add_u32 s{t2}, s{sCoff}, {aa*8192}")
            b(f"buffer_load_dwordx4 v{vCe if aa % 2 == 0 else vCo}, {s(sCR if m == 0 else sCI,4)}, s{t2} offen lds", f"c{m}")
    def wslot(i):
        if i < 4: return 16384 + i * 2048
        if i < 12: return (i - 4) * 2048
        return 16384 + (i - 12) * 2048
    def dma_f(i):
        b(f"s_add_u32 m0, s{sLw}, {wslot(i)}")
        b(f"s_add_u32 s{t2}, s{sWoff2}, {i*16*1024}")
        b(f"buffer_load_dwordx4 v{vWa}, {s(sW2,4)}, s{t2} offen lds", f"f{i}")
        b(f"buffer_load_dwordx4 v{vWb}, {s(sW2,4)}, s{t2} offen offset:1024 lds", f"f{i}")
    def hloads(idx):
        ps, st = seq[idx]
        kind, i = steps[st]
        sb = sS0 if kind == 'S' else sF0
        if ps == 2 and st == 0:
            b(f"s_lshl_b32 s{t0}, s{sH}, 2")
            b(f"s_sub_u32 s{t0}, s{t0}, 2")
            b(f"s_mul_i32 s{t0}, s{t0}, {176*1024}")
            b(f"v_add_u32 v{vH0}, s{t0}, v{vH0}")
            b(f"v_add_u32 v{vH1}, s{t0}, v{vH1}")
        b(f"s_add_u32 s{t1}, s{sb}, {i*1024}")
        b(f"buffer_load_dwordx4 {hreg(idx,0)}, v{vH0}, {s(sA,4)}, s{t1} offen")
        b(f"buffer_load_dwordx4 {hreg(idx,1)}, v{vH1}, {s(sA,4)}, s{t1} offen")
    def wreads_s():
        for j in range(8):
            m = (j >> 1) & 1; ksp = 2 * (j >> 2) + (j & 1)
            if j == 0: b.wait('vm', "c0")
            if j == 2: b.wait('vm', "c1")
            for aa in range(2):
                b(f"ds_read_b128 {a(8*j+4*aa,4)}, v{vPp+ksp} offset:{m*8192 + aa*4096}", f"wr{j}")
    def wreads_f(i):
        st = 8 + i
        b.wait('vm', f"f{i}")
        for aa in range(2):
            for rd in range(2):
                b(f"ds_read_b64_tr_b16 {a(8*st+4*aa+2*rd,2)}, v{vTp+aa} offset:{wslot(i) + rd*8*128}", f"wr{st}")
    if STAMP >= 2: stamp(b, 24)
    dma_c(0)
    hloads(0); hloads(1)
    dma_c(1)
    b("v_and_b32 v6, 31, v1")
    b("v_lshlrev_b32 v6, 7, v6")
    b(f"v_add_u32 v6, s{sLw}, v6")
    b("v_lshrrev_b32 v7, 5, v1")
    b("v_bfe_u32 v29, v1, 1, 3")
    b("v_xor_b32 v29, v7, v29")
    for k in range(4):
        b(f"v_xor_b32 v7, {2*k}, v29")
        b(f"v_lshl_add_u32 v{vPp+k}, v7, 4, v6")
    tr_pattern(b, vTp, 4, 54)
    b(f"v_add_u32 v{vTp}, s{sLw}, v{vTp}")
    b(f"v_add_u32 v{vTp+1}, s{sLw}, v{vTp+1}")
    b("v_bfe_u32 v6, v1, 3, 2")
    b("v_and_b32 v7, 7, v1")
    b(f"v_lshl_add_u32 v{vTau}, v7, 2, v6")
    b(f"s_xor_b32 s{t0}, s{sH}, 1")
    b(f"s_lshl_b32 s{t0}, s{t0}, 6")
    b(f"s_lshl_b32 s{t1}, s{sMt}, 7")
    b(f"s_add_u32 s{t0}, s{t0}, s{t1}")
    b(f"v_add_u32 v6, s{t0}, v{vTau}")
    b("v_lshlrev_b32 v6, 3, v6")
    b(f"v_add_u32 v6, {G_OFF}, v6")
    b(f"global_load_dwordx2 v[10:11], v6, s[10:11]")
    b(f"global_load_dwordx2 v[12:13], v6, s[10:11] offset:256")
    b(f"s_lshl_b32 s{t0}, s{sH}, 7")
    b(f"s_sub_u32 s{t0}, s{t0}, 64")
    b(f"s_lshl_b32 s{t0}, s{t0}, 3")
    b(f"v_add_u32 v6, s{t0}, v6")
    b(f"global_load_dwordx2 v[16:17], v6, s[10:11]")
    b(f"global_load_dwordx2 v[18:19], v6, s[10:11] offset:256")
    b(f"v_mov_b32 v6, {NONCE_OFF}")
    b(f"global_load_dwordx2 {v(vNon2,2)}, v6, s[10:11]")
    if STAMP >= 2: stamp(b, 25)
    DH = int(opts.get('k2dh', 5))
    for idx in range(2, DH): hloads(idx)
    if STAMP >= 2: stamp(b, 26)
    vWr, vRd = 20, 21
    vWrq = 56
    b(f"s_lshl_b32 s{t0}, s{sWv}, 14")
    b(f"v_lshlrev_b32 v29, 8, v{vTau}")
    b(f"v_add_u32 v29, s{t0}, v29")
    b("v_lshrrev_b32 v6, 5, v1")
    b("v_and_b32 v7, 7, v1")
    b("v_xor_b32 v6, v6, v7")
    for q in range(4):
        b(f"v_xor_b32 v7, {2*q}, v6")
        b(f"v_lshl_add_u32 v{vWrq+q}, v7, 4, v29")
    b("v_lshrrev_b32 v22, 4, v0")
    b("v_and_b32 v23, 15, v0")
    b("v_lshrrev_b32 v6, 6, v0")
    b("v_xor_b32 v6, v6, v23")
    b(f"v_lshlrev_b32 v{vRd}, 8, v22")
    b(f"v_lshl_add_u32 v{vRd}, v6, 4, v{vRd}")
    b(f"v_xor_b32 v{vWr}, 64, v{vRd}")
    vXch = 24
    b(f"v_lshlrev_b32 v{vXch}, 4, v0")
    b(f"s_lshl_b32 s{t0}, s2, 14")
    b(f"s_add_u32 s{t0}, s{t0}, {XCH_OFF}")
    b(f"v_add_u32 v25, s{t0}, v{vXch}")
    b(f"s_xor_b32 s{t1}, s2, 1")
    b(f"s_lshl_b32 s{t0}, s{t1}, 14")
    b(f"s_add_u32 s{t0}, s{t0}, {XCH_OFF}")
    b(f"v_add_u32 v26, s{t0}, v{vXch}")
    if STAMP >= 2: stamp(b, 27)
    wreads_s()
    if STAMP >= 2: stamp(b, 28)

    def mfmas(idx):
        ps, st = seq[idx]
        kind, i = steps[st]
        acc = accS if kind == 'S' else accF
        out = []
        for aa in range(2):
            for bb in range(2):
                dreg = v(acc + (aa*2 + bb) * 16, 16)
                c = dreg if i else "0"
                out.append(f"v_mfma_f32_32x32x16_bf16 {dreg}, {a(8*st+4*aa,4)}, {hreg(idx,bb)}, {c}")
        return out

    def reduce_write(g0, g1):
        for aa in range(2):
            for bb in range(2):
                g = g0 if bb == 0 else g1
                S = accS + (aa*2+bb)*16; Fq = accF + (aa*2+bb)*16
                for p in range(8):
                    b(f"v_pk_mul_f32 {v(S+2*p,2)}, {v(S+2*p,2)}, {v(g,2)} op_sel_hi:[1,0]")
                for p in range(8):
                    b(f"v_pk_fma_f32 {v(S+2*p,2)}, {v(Fq+2*p,2)}, {v(g,2)}, {v(S+2*p,2)} op_sel:[0,1,0] op_sel_hi:[1,1,1]")
                for q in range(4):
                    b(f"ds_write_b128 v{vWrq+q}, {v(S+4*q,4)} offset:{LRED + bb*32*PITCH + aa*128}", "red")
        b.wait('lg', "red")
        b("s_barrier")
    def reduce_read(dst, gran=None):
        for p in range(4):
            for w in range(4):
                b(f"ds_read_b128 {v(dst+16*p+4*w,4)}, v{vRd if p % 2 == 0 else vWr} offset:{LRED + w*64*PITCH + p*16*PITCH}")
        for p in range(4):
            r = dst + 16*p
            b(f"v_pk_add_f32 {v(r,2)}, {v(r,2)}, {v(r+4,2)}")
            b(f"v_pk_add_f32 {v(r+2,2)}, {v(r+2,2)}, {v(r+6,2)}")
            b(f"v_pk_add_f32 {v(r+8,2)}, {v(r+8,2)}, {v(r+12,2)}")
            b(f"v_pk_add_f32 {v(r+10,2)}, {v(r+10,2)}, {v(r+14,2)}")
            if gran is None:
                b(f"v_pk_add_f32 {v(r,2)}, {v(r,2)}, {v(r+8,2)}")
                b(f"v_pk_add_f32 {v(r+2,2)}, {v(r+2,2)}, {v(r+10,2)}")
            else:
                for e in range(4):
                    u = 4 * p + e
                    b(f"v_add_f32 v{gran + 4*(u//3) + u%3}, v{r+e}, v{r+8+e}")

    total = len(seq)
    sNib = 84
    XS_ = 32
    PR_ = vBuf
    def r1c():
        f = F()
        for p in range(4):
            for w in range(4):
                f(f"ds_read_b128 {v(accF+16*p+4*w,4)}, v{vRd if p % 2 == 0 else vWr} offset:{LRED + w*64*PITCH + p*16*PITCH}")
        for p in range(4):
            r = accF + 16*p
            for e in range(4): f(f"v_add_f32 v{r+e}, v{r+e}, v{r+4+e}")
            for e in range(4): f(f"v_add_f32 v{r+8+e}, v{r+8+e}, v{r+12+e}")
            for e in range(4): f(f"v_add_f32 v{r+e}, v{r+e}, v{r+8+e}")
            for e in range(4): f(f"v_and_or_b32 v{XS_+4*p+e}, v{r+e}, -16, s{sNib+e}")
        return f
    def step_ops(idx):
        ps, st = seq[idx]
        kind, i = steps[st]
        n00 = len(b.ops)
        mf = mfmas(idx)
        if ps == 1: b.wait('lg', f"wr{st}")
        b(mf[0])
        if ps == 1:
            fi = st - 2
            if st == 6: b.wait('lg', "wr7")
            if 0 <= fi < 14: dma_f(fi)
        b(mf[1])
        if ps == 1 and 8 <= st + 1 < NS:
            wreads_f(st + 1 - 8)
        b(mf[2])
        n0 = len(b.ops)
        tg = []
        if ps == 1:
            if st + DH < NS: tg = [st + DH]
            else:
                j = st + DH - NS
                tg = [NS + 2 * j, NS + 2 * j + 1]
        elif idx + D < total: tg = [idx + D]
        for t_ in tg: hloads(t_)
        ld = b.ops[n0:]; del b.ops[n0:]
        cut = [j for j, o in enumerate(ld) if o.kind == 'vmem']
        if cut:
            b.ext(ld[:cut[0] + 1]); b(mf[3]); b.ext(ld[cut[0] + 1:])
        else:
            b(mf[3])
        ops = b.ops[n00:]; del b.ops[n00:]
        return ops
    for idx in range(NS):
        b.ext(step_ops(idx))
        st = idx
        if st == 2:
            b(f"v_readfirstlane_b32 s{t0}, v{vNon2}")
            for j in range(4):
                b(f"s_bfe_u32 s{sNib+j}, s{t0}, {(4 << 16) | (4*j):#x}")
        if STAMP >= 2 and st in (0, 3, 7, 11, 15, 19): stamp(b, 8 + (0, 3, 7, 11, 15, 19).index(st))
    stamp(b, 1)
    n0 = len(b.ops); reduce_write(vG1, vG2); rw = b.ops[n0:]; del b.ops[n0:]
    K0 = 2 * DH
    n0 = len(b.ops)
    for k in range(K0, 15): hloads(NS + k)
    hl = chunks_of(b.ops[n0:]); del b.ops[n0:]
    body, tail = rw[:-2], rw[-2:]
    gap = max(1, len(body) // (len(hl) + 1))
    outp = []
    for j, o in enumerate(body):
        outp.append(o)
        if (j + 1) % gap == 0 and hl: outp.extend(hl.pop(0))
    for c in hl: outp.extend(c)
    b.ext(outp + tail)
    stamp(b, 2)
    p2a = []
    for st in range(7): p2a += step_ops(NS + st)
    b.ext(merge(p2a, r1c().ops, per=4))
    PL = int(opts.get('k2pl', 16))
    BI = vBuf + 16
    def bias_fill():
        f = F()
        f("v_lshlrev_b32 v4, 16, v40\nv_and_b32 v5, 0xffff0000, v40\nv_lshlrev_b32 v6, 16, v41\nv_and_b32 v7, 0xffff0000, v41")
        for p in range(4):
            xs = 32 + 2*p; tp = BI + 4*p
            f(f"v_lshlrev_b32 v{tp}, 16, v{xs}\nv_and_b32 v{tp+1}, 0xffff0000, v{xs}\nv_lshlrev_b32 v{tp+2}, 16, v{xs+1}\nv_and_b32 v{tp+3}, 0xffff0000, v{xs+1}")
            for e in range(4): f(f"v_mul_f32 v{tp+e}, v{tp+e}, v{4+e}")
            f(f"v_cvt_pk_bf16_f32 v46, v{tp}, v{tp+1}")
            f(f"v_cvt_pk_bf16_f32 v47, v{tp+2}, v{tp+3}")
            f(f"v_lshlrev_b32 v{tp}, 16, v46\nv_and_b32 v{tp+1}, 0xffff0000, v46\nv_lshlrev_b32 v{tp+2}, 16, v47\nv_and_b32 v{tp+3}, 0xffff0000, v47")
            for e in range(4): f(f"v_mul_f32 v{tp+e}, v{42+p}, v{tp+e}")
        return f
    tail_steps = []
    for st in range(7, NS):
        idx = NS + st
        ops = step_ops(idx)
        if 7 <= st <= 10:
            p = st - 7
            pre = B()
            if p: pre(f"v_add_u32 v29, {p*4096}, v25")
            pre(f"global_store_dwordx4 v{29 if p else 25}, {v(XS_+4*p,4)}, s[10:11] sc0 sc1")
            ops = ops[:1] + pre.ops + ops[1:]
        if st >= 17:
            tail_steps += ops
            if st == NS - 1: b.ext(merge(tail_steps, bias_fill().ops, per=4))
            continue
        b.ext(ops)
        if STAMP >= 2 and st in (7, 11, 15, 19): stamp(b, 16 + (0, 3, 7, 11, 15, 19).index(st))
        if st == 11:
            b("s_barrier")
        if st == 11:
            b(f"s_lshl_b32 s{t0}, s{sMt}, 7")
            b(f"s_lshl_b32 s{t1}, s{sH}, 6")
            b(f"s_add_u32 s{t0}, s{t0}, s{t1}")
            b(f"v_add_u32 v30, s{t0}, v22")
            b(f"s_lshl_b32 s{t1}, s{sN}, 7")
            b("v_lshlrev_b32 v31, 10, v30")
            b("v_lshl_add_u32 v31, v23, 3, v31")
            b(f"v_add_u32 v31, s{t1}, v31")
            for p in range(4):
                if p: b(f"v_add_u32 v31, {16*1024}, v31")
                b(f"global_load_dwordx2 {v(32+2*p,2)}, v31, s[4:5]")
            b("v_lshlrev_b32 v31, 3, v23")
            b(f"v_add_u32 v31, s{t1}, v31")
            b(f"global_load_dwordx2 v[40:41], v31, s[6:7]")
            b("v_lshlrev_b32 v31, 3, v30")
            b(f"v_add_u32 v31, {G_OFF}, v31")
            for p in range(4):
                b(f"global_load_dword v{42+p}, v31, s[10:11] offset:{p*128}")
            b(f"s_lshl_b32 s{t1}, s{sN}, 8")
            b("v_lshlrev_b32 v2, 11, v30")
            b("v_lshl_add_u32 v2, v23, 4, v2")
            b(f"v_add_u32 v2, s{t1}, v2")
        if st == PL:
            for p in range(4):
                if p: b(f"v_add_u32 v29, {p*4096}, v26")
                b(f"global_load_dwordx4 {v(PR_+4*p,4)}, v{29 if p else 26}, s[10:11] sc1", "prt")
    stamp(b, 3)
    b.wait('vm', "prt")
    b(f"s_mov_b32 s{t0}, 0")
    b("L_k2_chk:")
    b("v_mov_b32 v46, 0")
    for u in range(16):
        b(f"v_xor_b32 v{PR_+u}, s{sNib + (u % 4)}, v{PR_+u}")
        b(f"v_and_or_b32 v46, v{PR_+u}, 15, v46")
    b("v_cmp_eq_u32 vcc, 0, v46")
    b("s_cmp_eq_u64 vcc, -1")
    b("s_cbranch_scc1 L_k2_ok")
    b(f"s_add_u32 s{t0}, s{t0}, 1")
    b(f"s_cmp_gt_u32 s{t0}, 40000")
    b("s_cbranch_scc1 L_k2_ok")
    for p in range(4):
        if p: b(f"v_add_u32 v29, {p*4096}, v26")
        b(f"global_load_dwordx4 {v(PR_+4*p,4)}, v{29 if p else 26}, s[10:11] sc1", 'nocount')
    b("s_waitcnt vmcnt(0)", 'nocount')
    b("s_branch L_k2_chk")
    b("L_k2_ok:")
    if STAMP >= 2: stamp(b, 30)
    n0 = len(b.ops)
    reduce_write(16, 18)
    rw = b.ops[n0:]; del b.ops[n0:]
    fl = F()
    for u in range(0, 16, 2): fl(f"v_pk_add_f32 {v(BI+u,2)}, {v(BI+u,2)}, {v(PR_+u,2)}")
    b.ext(merge(rw, fl.ops, after=lambda o: o.mn.startswith('ds_write'), per=1))
    if STAMP >= 2: stamp(b, 31)
    reduce_read(accF)
    if STAMP >= 2: stamp(b, 32)
    OUTF = opts.get('outf', '').replace('+', ' ')
    for p in range(4):
        r = accF + 16*p
        b(f"v_pk_add_f32 {v(r,2)}, {v(r,2)}, {v(BI+4*p,2)}")
        b(f"v_pk_add_f32 {v(r+2,2)}, {v(r+2,2)}, {v(BI+4*p+2,2)}")
        if p: b(f"v_add_u32 v2, {16*2048}, v2")
        b(f"global_store_dwordx4 v2, {v(r,4)}, s[8:9] {OUTF}")
    stamp(b, 4)
    dbgt_end(b, "s[18:19]", 32, True)
    stamp_end(b, sWv, "s[10:11]", 0x2100000, 1)
    b("L_k2_end:")
    b("s_endpgm")
    return finalize(b.ops)

def header():
    ref = open('cdna_kernels/%s.s.ref' % NAME).read().split('\n')
    hdr = []
    for line in ref:
        if not line.startswith(';'): break
        if '@launch' in line or 'Override launch' in line or 'grid=ceil' in line: continue
        hdr.append(line)
    hdr.append(f"; @launch kernel={K1} grid=(256,1,1) block=(512,1,1) lds=163840")
    hdr.append(f"; @launch kernel={K2} grid=(256,1,1) block=(256,1,1) lds=163840")
    return '\n'.join(hdr)

def kd(name, nv, acc_off, nsg):
    return f""".amdhsa_kernel {name}
  .amdhsa_next_free_vgpr {nv}
  .amdhsa_next_free_sgpr {nsg}
  .amdhsa_accum_offset {acc_off}
  .amdhsa_group_segment_fixed_size 0
  .amdhsa_kernarg_size 128
  .amdhsa_user_sgpr_count 2
  .amdhsa_user_sgpr_kernarg_segment_ptr 1
  .amdhsa_system_sgpr_workgroup_id_x 1
  .amdhsa_float_denorm_mode_32 3
.end_amdhsa_kernel"""

def main():
    k1 = gen_k1()
    k2 = gen_k2()
    out = [header(), '.amdgcn_target "amdgcn-amd-amdhsa--gfx950"', '.text']
    out += [f".globl {K1}", ".p2align 8", f".type {K1},@function", f"{K1}:", render(k1)]
    out += [f".globl {K2}", ".p2align 8", f".type {K2},@function", f"{K2}:", render(k2)]
    out += ["L_code_end:", "  s_endpgm"]
    out += ['.section .rodata,"a"', '.p2align 6', kd(K1, 256, 128, 102), '.p2align 6', kd(K2, 512, 256, 102)]
    print('\n'.join(out))

main()
```

```python
import sys, copy
sys.path.insert(0, 'dev')
from ir import *

NAME = "gated_mix__ssm_conv_s5__dense_activation_silu__prompt"
K1 = "gm_k1_kernel"
K2 = "gm_k2_kernel"

HF_OFF = 0
HF_SIZE = 64 * 176 * 1024
W2F_OFF = HF_SIZE
W2F_SIZE = 16 * 176 * 1024
G_OFF = W2F_OFF + W2F_SIZE
E_OFF = G_OFF + 2048 * 8
E_SIZE = 16 * 16 * 512
NONCE_OFF = E_OFF + E_SIZE
FLG_OFF = NONCE_OFF + 256
XCH_OFF = FLG_OFF + 256 * 64
WS_USED = XCH_OFF + 256 * 24576

LOG2E = 0x3fb8aa3b
INV2PI = 0x3e22f983

RB, XS, WR = 0, 65536, 114688
SC = 32768
IMG = 36864

opts = dict(a.split('=') for a in sys.argv[1:] if '=' in a)
STAMP = int(opts.get('stamp', 0))
STF = "sc0 sc1"

def v(n, k=1): return f"v{n}" if k == 1 else f"v[{n}:{n+k-1}]"
def a(n, k=1): return f"a{n}" if k == 1 else f"a[{n}:{n+k-1}]"
def s(n, k=1): return f"s{n}" if k == 1 else f"s[{n}:{n+k-1}]"


STV = 15
def reg_of_t(t): return (t >> 2) + 4 * (t & 3)
def srd(b, dst, ptr, size):
    b(f"s_mov_b32 s{dst}, s{ptr}")
    b(f"s_mov_b32 s{dst+1}, s{ptr+1}")
    b(f"s_mov_b32 s{dst+2}, {size}")
    b(f"s_mov_b32 s{dst+3}, 0x20000")


def cexp(b, dst, n_src, va, vang, t0):
    b(f"v_mul_f32 v{t0}, {n_src}, v{va}")
    b(f"v_mul_f32 v{t0+1}, {n_src}, v{vang}")
    b(f"v_exp_f32 v{t0}, v{t0}")
    b(f"v_rndne_f32 v{t0+2}, v{t0+1}")
    b(f"v_sub_f32 v{t0+1}, v{t0+1}, v{t0+2}")
    b(f"v_cos_f32 v{dst}, v{t0+1}")
    b(f"v_sin_f32 v{dst+1}, v{t0+1}")
    b(f"v_mul_f32 v{dst}, v{t0}, v{dst}")
    b(f"v_mul_f32 v{dst+1}, v{t0}, v{dst+1}")


def cfma(b, d, l, h, u, tmp):
    b(f"v_pk_fma_f32 {v(tmp,2)}, {v(l,2)}, {v(h,2)}, {v(u,2)} op_sel:[0,0,0] op_sel_hi:[0,1,1]")
    b(f"v_pk_fma_f32 {v(d,2)}, {v(l,2)}, {v(h,2)}, {v(tmp,2)} op_sel:[1,1,0] op_sel_hi:[1,0,1] neg_lo:[1,0,0]")


def cfma_s(b, d, l, h, u, tmp):
    b(f"v_fma_f32 v{tmp}, v{l}, v{h}, v{u}")
    b(f"v_fma_f32 v{tmp+1}, v{l}, v{h+1}, v{u+1}")
    b(f"v_fma_f32 v{d}, -v{l+1}, v{h+1}, v{tmp}")
    b(f"v_fma_f32 v{d+1}, v{l+1}, v{h}, v{tmp+1}")


def stamp(b, idx):
    if not STAMP: return
    g = B()
    g("s_memtime s[100:101]")
    g("s_waitcnt lgkmcnt(0)")
    g(f"v_writelane_b32 v{STV}, s100, {idx}")
    b.ext(g)


def stamp_begin(b):
    if not STAMP: return
    b(f"v_mov_b32 v{STV}, 0")
    b("s_memrealtime s[100:101]")
    b("s_waitcnt lgkmcnt(0)")
    b(f"v_writelane_b32 v{STV}, s100, 62")
    stamp(b, 0)


def stamp_end(b, wave, ws, off, lane, sh=2, tv=254):
    if not STAMP: return
    b("s_memrealtime s[100:101]")
    b("s_waitcnt lgkmcnt(0)")
    b(f"v_writelane_b32 v{STV}, s100, 63")
    b(f"s_lshl_b32 s100, s2, {sh}")
    b(f"s_add_u32 s100, s100, s{wave}")
    b(f"s_lshl_b32 s100, s100, 8")
    b(f"s_add_u32 s100, s100, {off}")
    b(f"v_lshlrev_b32 v{tv}, 2, v{lane}")
    b(f"v_add_u32 v{tv}, s100, v{tv}")
    b(f"global_store_dword v{tv}, v{STV}, {ws}")


vLane = 1
def tr_pattern(b, dst, hfmul, t):
    L = vLane
    b(f"v_lshrrev_b32 v{t}, 5, v{L}")
    b(f"v_mul_u32_u24 v{t}, {hfmul}, v{t}")
    b(f"v_bfe_u32 v{t+1}, v{L}, 2, 2")
    b(f"v_add_u32 v{t}, v{t}, v{t+1}")
    b(f"v_lshlrev_b32 v{t}, 7, v{t}")
    b(f"v_bfe_u32 v{t+1}, v{L}, 3, 1")
    b(f"v_lshlrev_b32 v{t+1}, 6, v{t+1}")
    b(f"v_bfe_u32 v{t+2}, v{L}, 4, 1")
    b(f"v_lshlrev_b32 v{t+2}, 5, v{t+2}")
    b(f"v_and_b32 v{t+3}, 3, v{L}")
    b(f"v_lshlrev_b32 v{t+3}, 3, v{t+3}")
    b(f"v_add3_u32 v{t}, v{t}, v{t+2}, v{t+3}")
    b(f"v_add_u32 v{dst}, v{t}, v{t+1}")
    b(f"v_xor_b32 v{t+1}, 64, v{t+1}")
    b(f"v_add_u32 v{dst+1}, v{t}, v{t+1}")

SLOT = 24576
NSLOT = 4
WB0 = 98304
SCR = 73728
SC = 0
IMG = 1024
def wblock_lds(q):
    if q < 8: return WB0 + q * 8192
    return (q - 8) * 8192

sX, sBRE, sBIM, sW1, sHF = 36, 40, 44, 48, 52
sWave, sWm, sR, sS, sRho = 60, 61, 62, 63, 56
sLdsX, sLdsB = 64, 65
sT0, sT1, sT2, sT3 = 68, 69, 70, 71
sWL = 72
sM1, sM2, sM3 = 80, 82, 84
sHFb, sK0, sEX = 86, 87, 88
sLo = 90
sSpin, sU = 98, 99

DBGT = int(opts.get('dbgt', 0))
def dbgt_begin(b):
    if not DBGT: return
    b("s_memrealtime s[100:101]")
    b("s_waitcnt lgkmcnt(0)")
    b("s_not_b32 s101, s100")
def dbgt_end(b, dbg, vt, k2=False):
    if not DBGT: return
    b("s_mov_b32 s99, s101")
    b("s_memrealtime s[100:101]")
    b("s_waitcnt lgkmcnt(0)")
    b(f"v_mov_b32 v{vt}, 0")
    b(f"v_mov_b32 v{vt+1}, s99")
    b(f"v_mov_b32 v{vt+2}, s100")
    b("s_mov_b64 exec, 1")
    b(f"global_atomic_umax v{vt}, v{vt+1}, {dbg} offset:16")
    b(f"global_atomic_umax v{vt}, v{vt+2}, {dbg} offset:20")
    if k2:
        b(f"global_load_dwordx2 {v(vt+2,2)}, v{vt}, {dbg} offset:-496 sc1")
        b("s_waitcnt vmcnt(0)")
        b(f"global_store_dwordx2 v{vt}, {v(vt+2,2)}, {dbg} offset:8")
    b("s_mov_b64 exec, -1")

def code_prefetch(b, kname, endlabel, wshift, tag, vt, vd):
    if not int(opts.get('pfc', 1)): return
    b("s_getpc_b64 s[40:41]")
    b(f"L_{tag}_pc:")
    b(f"s_sub_u32 s40, s40, L_{tag}_pc-{kname}")
    b("s_subb_u32 s41, s41, 0")
    b("s_lshr_b32 s42, s2, 3")
    b(f"s_lshl_b32 s42, s42, {wshift + 7}")
    b(f"v_lshrrev_b32 v{vt}, 6, v0")
    b(f"v_lshlrev_b32 v{vt}, 7, v{vt}")
    b(f"v_add_u32 v{vt}, s42, v{vt}")
    b(f"v_min_u32 v{vt}, {endlabel}-{kname}-4, v{vt}")
    b(f"global_load_dword v{vd}, v{vt}, s[40:41]", 'nocount')

def k1_head():
    b = B()
    code_prefetch(b, K1, "L_code_end", 3, "k1", 2, 14)
    dbgt_begin(b)
    stamp_begin(b)
    b("s_load_dwordx16 s[4:19], s[0:1], 0")
    b("s_load_dwordx16 s[20:35], s[0:1], 64")
    b("s_cmp_ge_u32 s2, 256")
    b("s_cbranch_scc1 L_k1_end")
    b("v_lshrrev_b32 v2, 6, v0")
    b(f"v_and_b32 v{vLane}, 63, v0")
    b(f"v_readfirstlane_b32 s{sWave}, v2")
    b(f"s_and_b32 s{sT0}, s2, 7")
    b(f"s_lshr_b32 s{sT1}, s2, 3")
    b(f"s_and_b32 s{sT2}, s{sT1}, 7")
    b(f"s_lshr_b32 s{sT3}, s{sT1}, 3")
    b(f"s_lshr_b32 s{sR}, s{sT0}, 2")
    b(f"s_lshl_b32 s{sR}, s{sR}, 3")
    b(f"s_add_u32 s{sR}, s{sR}, s{sT2}")
    b(f"s_and_b32 s{sS}, s{sT0}, 3")
    b(f"s_lshl_b32 s{sS}, s{sS}, 2")
    b(f"s_add_u32 s{sS}, s{sS}, s{sT3}")
    b(f"s_lshl_b32 s{sRho}, s{sT3}, 1")
    b(f"s_add_u32 s{sRho}, s{sRho}, s{sT2}")
    ROT1 = opts.get('rot1', 'none')
    if ROT1 == 'none': b(f"s_mov_b32 s{sRho}, 0")
    if ROT1 == 'half':
        b(f"s_and_b32 s{sRho}, s{sRho}, 1")
        b(f"s_lshl_b32 s{sRho}, s{sRho}, 2")
    if ROT1 == 'two':
        b(f"s_and_b32 s{sRho}, s{sRho}, 3")
        b(f"s_lshl_b32 s{sRho}, s{sRho}, 1")
    b(f"s_and_b32 s{sWm}, s{sWave}, 3")
    b(f"s_lshl_b32 s{sLdsX}, s{sWm}, 12")
    b(f"s_lshl_b32 s{sLdsB}, s{sWm}, 11")
    b(f"s_lshl_b32 s{sHFb}, s{sR}, 2")
    b(f"s_add_u32 s{sHFb}, s{sHFb}, s{sWm}")
    b(f"s_mul_i32 s{sHFb}, s{sHFb}, {176*1024}")
    b(f"s_cmp_ge_u32 s{sWave}, 4")
    b("s_cbranch_scc1 L_k1_F")
    return b

fXe, fXo, fB, fW = 2, 3, 4, 5
fPX, fTA, fTB, fTC, fL16 = 7, 11, 13, 16, 6 + 0
fPX, fTA, fTB, fTC = 8, 12, 14, 16
fPX, fTA, fTB, fTC, fL16 = 8, 12, 16, 18, 7
fE, fD = 20, 28
fS, fAcc = 32, 64

def dma(b, voff, srdn, soff, tok, imm=0):
    o = f" offset:{imm}" if imm else ""
    b(f"buffer_load_dwordx4 v{voff}, {s(srdn,4)}, {soff} offen{o} lds", tok)
def dma_x(b, i):
    b(f"s_add_u32 m0, s{sLdsX}, {(i % NSLOT) * SLOT}")
    for k in range(4):
        dma(b, fXe if k % 2 == 0 else fXo, sX, f"s{sLo+i}", f"x{i}", k * 1024)
def dma_B(b, i):
    b(f"s_add_u32 m0, s{sLdsB}, {(i % NSLOT) * SLOT + 16384}")
    dma(b, fB, sBRE, f"s{sLo+i}", f"B{i}")
    dma(b, fB, sBIM, f"s{sLo+i}", f"B{i}", 1024)
def dma_w(b, q):
    i, hh = q % 8, q // 8
    b(f"s_add_u32 m0, s{sLdsB}, {wblock_lds(q)}")
    if hh:
        b(f"s_add_u32 s{sT0}, s{sWL+i}, 128")
        so = f"s{sT0}"
    else:
        so = f"s{sWL+i}"
    dma(b, fW, sW1, so, f"w{q}")
    dma(b, fW + 1, sW1, so, f"w{q}", 1024)

def chunks_of(ops):
    ch = []; cur = []
    for o in ops:
        cur.append(o)
        if o.kind == 'vmem': ch.append(cur); cur = []
    if cur: ch.append(cur)
    return ch

def k1_F(ffn):
    b = B(); L = vLane
    t = fE
    for i in range(8):
        b(f"s_add_u32 s{sLo+i}, s{sRho}, {i}")
        b(f"s_and_b32 s{sLo+i}, s{sLo+i}, 7")
        b(f"s_lshl_b32 s{sLo+i}, s{sLo+i}, 7")
    b(f"v_and_b32 v{t}, 7, v{L}")
    b(f"v_lshrrev_b32 v{t+1}, 4, v{L}")
    b(f"v_xor_b32 v{t+2}, v{t}, v{t+1}")
    b(f"v_lshlrev_b32 v{t+2}, 4, v{t+2}")
    b(f"v_lshrrev_b32 v{t+3}, 3, v{L}")
    b(f"s_lshl_b32 s{sT0}, s{sR}, 17")
    b(f"s_lshl_b32 s{sT1}, s{sWm}, 15")
    b(f"s_add_u32 s{sT0}, s{sT0}, s{sT1}")
    b(f"v_lshlrev_b32 v{t}, 12, v{t+3}")
    b(f"v_add3_u32 v{fXe}, v{t}, v{t+2}, s{sT0}")
    b(f"v_xor_b32 v{fXo}, 64, v{fXe}")
    b(f"s_and_b32 s{sT0}, s{sWm}, 1")
    b(f"s_lshl_b32 s{sT0}, s{sT0}, 6")
    b(f"v_xor_b32 v{t+1}, s{sT0}, v{t+2}")
    b(f"s_lshl_b32 s{sT0}, s{sWm}, 13")
    b(f"s_lshl_b32 s{sT1}, s{sS}, 15")
    b(f"s_add_u32 s{sT0}, s{sT0}, s{sT1}")
    b(f"v_lshlrev_b32 v{t}, 10, v{t+3}")
    b(f"v_add3_u32 v{fB}, v{t}, v{t+1}, s{sT0}")
    b("s_waitcnt lgkmcnt(0)")
    srd(b, sX, 4, 2048*1024)
    srd(b, sBRE, 10, 512*1024)
    b(f"s_sub_u32 s{sBIM}, s12, 1024")
    b(f"s_subb_u32 s{sBIM+1}, s13, 0")
    b(f"s_mov_b32 s{sBIM+2}, {512*1024 + 1024}")
    b(f"s_mov_b32 s{sBIM+3}, 0x20000")
    if STAMP >= 2: stamp(b, 8)
    INI = int(opts.get('ini', 3))
    for i in range(INI):
        dma_x(b, i); dma_B(b, i)
    if STAMP >= 2: stamp(b, 9)
    srd(b, sHF, 34, WS_USED)
    if ffn:
        srd(b, sW1, 24, 512*3584)
        b(f"v_bfe_u32 v{t+1}, v{L}, 4, 1")
        b(f"v_lshlrev_b32 v{t+1}, 2, v{t+1}")
        b(f"v_and_b32 v{t+3}, 7, v{L}")
        b(f"v_xor_b32 v{t+3}, v{t+3}, v{t+1}")
        b(f"v_lshlrev_b32 v{t+3}, 4, v{t+3}")
        b(f"v_lshrrev_b32 v{t+1}, 3, v{L}")
        b(f"s_lshl_b32 s{sT3}, s{sWm}, 4")
        b(f"v_add_u32 v{t+1}, s{sT3}, v{t+1}")
        b(f"v_mul_u32_u24 v{t+1}, 3584, v{t+1}")
        b(f"v_add_u32 v{fW}, v{t+1}, v{t+3}")
        b(f"v_add_u32 v{fW+1}, {8*3584 - 1024}, v{fW}")
        b(f"s_lshl_b32 s{sT3}, s{sS}, 8")
        for i in range(8):
            b(f"s_mul_i32 s{sWL+i}, s{sLo+i}, 1792")
            b(f"s_add_u32 s{sWL+i}, s{sWL+i}, s{sT3}")
        tr_pattern(b, fTA, 8, t)
        b(f"v_add_u32 v{fTB}, 0x10000, v{fTA}")
        b(f"v_add_u32 v{fTB+1}, 0x10000, v{fTA+1}")
        b(f"v_add_u32 v{fTC}, 0x20000, v{fTA}")
        b(f"v_add_u32 v{fTC+1}, 0x20000, v{fTA+1}")
        b(f"v_lshlrev_b32 v{fL16}, 4, v{L}")
        b(f"v_and_b32 v{t}, 31, v{L}")
        b(f"v_lshrrev_b32 v{t+1}, 5, v{L}")
        b(f"v_bfe_u32 v{t+2}, v{L}, 1, 3")
        b(f"v_xor_b32 v{t+2}, v{t+1}, v{t+2}")
        b(f"v_lshlrev_b32 v{t+1}, 7, v{t}")
        b(f"v_add_u32 v{t+1}, s{sLdsX}, v{t+1}")
        for k in range(4):
            b(f"v_xor_b32 v{t+3}, {2*k}, v{t+2}")
            b(f"v_lshl_add_u32 v{fPX+k}, v{t+3}, 4, v{t+1}")
        b(f"s_mov_b32 s66, {LOG2E ^ 0x80000000:#x}")
        b(f"s_mov_b32 s67, {LOG2E ^ 0x80000000:#x}")
        b(f"s_lshl_b32 s{sU}, s{sS}, 13")
        b(f"s_add_u32 s{sU}, s{sU}, s{sHFb}")
        b(f"s_add_u32 s{sU}, s{sU}, {64*1024}")
    stamp(b, 1)
    for i in range(8):
        if STAMP >= 2: stamp(b, 10 + 2*i)
        b.wait('vm', f"x{i}", f"B{i}")
        b("s_waitcnt lgkmcnt(0)")
        b("s_barrier")
        if STAMP >= 2: stamp(b, 11 + 2*i)
        if ffn:
            po = (i % NSLOT) * SLOT
            if po >= 65536:
                for k in range(4): b(f"v_add_u32 v{fE+k}, 0x10000, v{fPX+k}")
            for k in range(4):
                if po >= 65536: b(f"ds_read_b128 {a(16*i+4*k,4)}, v{fE+k} offset:{po - 65536}")
                else: b(f"ds_read_b128 {a(16*i+4*k,4)}, v{fPX+k} offset:{po}")
        if i == 0 and INI == 2:
            dma_x(b, 2); dma_B(b, 2)
        if i <= 4:
            dma_x(b, i + 3); dma_B(b, i + 3)
        elif ffn:
            for q in {5: (0, 1, 2), 6: (3, 4, 5), 7: (6, 7)}[i]: dma_w(b, q)
    stamp(b, 2)
    if not ffn:
        b(f"s_lshl_b32 s{sT0}, s{sR}, 1")
        b(f"s_add_u32 s{sT0}, s{sT0}, s{sS}")
        b(f"s_sub_u32 s{sT0}, s{sT0}, 14")
        b(f"s_lshl_b32 s{sT0}, s{sT0}, 2")
        b(f"s_add_u32 s{sT0}, s{sT0}, s{sWm}")
        b(f"v_lshlrev_b32 v8, 7, v{L}")
        srd(b, sW1, 26, 1792*1024)
        srd(b, sHF, 14, 512*1024)
        srd(b, sX, 16, 512*1024)
        b(f"s_mul_i32 s{sT1}, s{sT0}, 14336")
        b(f"buffer_load_dword v9, v8, {s(sW1,4)}, s{sT1} offen")
        b(f"s_add_u32 s{sT1}, s{sT1}, 8192")
        b(f"buffer_load_dword v10, v8, {s(sW1,4)}, s{sT1} offen")
        b(f"s_lshl_b32 s{sT1}, s{sT0}, 12")
        b(f"buffer_load_dword v11, v8, {s(sHF,4)}, s{sT1} offen")
        b(f"buffer_load_dword v12, v8, {s(sX,4)}, s{sT1} offen")
        for _ in range(4): b("s_barrier")
        k1_gjob_all(b)
        return b
    def ffn_phase(hh):
        p = B(); DEPTH = 3
        def lds_loc(n):
            i, k = divmod(n, 4)
            base = wblock_lds(8 * hh + i) + 16 * k * 128
            if base < 65536: return fTA, base
            if base < 131072: return fTB, base - 65536
            return fTC, base - 131072
        plan = {0: [0, 1, 2, 3], int(opts.get('bcn', 12)): [4, 5, 6, 7]} if hh == 0 else {0: list(range(8, 16))}
        def reads(n):
            if n in plan:
                p.wait('vm', *[f"w{q}" for q in plan[n]])
                if hh == 0 and n == 0: p("s_waitcnt lgkmcnt(0)")
                if STAMP >= 2: stamp(p, 26 + (0 if n == 0 else 1) if hh == 0 else 29)
                p("s_barrier")
                if STAMP >= 2 and hh == 0: stamp(p, 30 + (0 if n == 0 else 1))
            base, off = lds_loc(n)
            r = fS + (n % 4) * 8
            for ft in range(2):
                for rd in range(2):
                    p(f"ds_read_b64_tr_b16 {v(r+4*ft+2*rd,2)}, v{base+ft} offset:{off + rd*512}", f"r{hh}_{n}")
        ch = []
        if hh == 0:
            d = B()
            for q in range(8, 16): dma_w(d, q)
            ch = chunks_of(d.ops)
        for n in range(DEPTH): reads(n)
        for n in range(32):
            i, k = divmod(n, 4)
            r = fS + (n % 4) * 8
            p.wait('lg', f"r{hh}_{n}")
            for ft in range(2):
                acc = fAcc + (2*hh + ft) * 16
                c = v(acc, 16) if n else "0"
                p(f"v_mfma_f32_32x32x16_bf16 {v(acc,16)}, {v(r+4*ft,4)}, {a(16*i+4*k,4)}, {c}")
                if ft == 0 and ch: p.ext(ch.pop(0))
            if hh == 0 and n == int(opts.get('bxn', 1)): p("s_barrier")
            if n + DEPTH < 32: reads(n + DEPTH)
        assert not ch
        return p
    b.ext(ffn_phase(0))
    stamp(b, 3)
    p3 = ffn_phase(1)
    fl = F()
    fl.ext(k1_silu(0, False)); fl.ext(k1_silu(1, False))
    if opts.get('p3mode') == 'nofill':
        b.ext(p3.ops); stamp(b, 6); b.ext(flat(fl.ops))
    elif opts.get('p3mode') == 'nostore':
        fo = [o for o in fl.ops if not (not isinstance(o, list) and o.kind == 'vmem')]
        st_ = [o for o in fl.ops if (not isinstance(o, list) and o.kind == 'vmem')]
        b.ext(merge(p3.ops, fo, per=int(opts.get('per3', 4)), start=1))
    else:
        b.ext(merge(p3.ops, fl.ops, per=int(opts.get('per3', 4)), start=1))
    stamp(b, 4)
    b.ext(flat(k1_silu(2, True).ops))
    b.ext(flat(k1_silu(3, True).ops))
    stamp(b, 5)
    return b

def k1_silu(ft, pk):
    b = F()
    acc = fAcc + ft * 16
    e, d = fE, fD
    for kk in range(2):
        base = acc + 8 * kk
        if pk:
            for q in range(4): b(f"v_pk_mul_f32 {v(e+2*q,2)}, {v(base+2*q,2)}, s[66:67]")
            for q in range(8): b(f"v_exp_f32 v{e+q}, v{e+q}")
            for q in range(4): b(f"v_pk_add_f32 {v(e+2*q,2)}, {v(e+2*q,2)}, 1.0 op_sel_hi:[1,0]")
            for q in range(8): b(f"v_rcp_f32 v{e+q}, v{e+q}")
            for q in range(4): b(f"v_pk_mul_f32 {v(e+2*q,2)}, {v(base+2*q,2)}, {v(e+2*q,2)}")
            for q in range(4): b(f"v_cvt_pk_bf16_f32 v{d+q}, v{e+2*q}, v{e+2*q+1}")
        else:
            seq = []
            for q in range(8):
                seq.append([f"v_mul_f32 v{e+q}, s66, v{base+q}", f"v_exp_f32 v{e+q}, v{e+q}", f"v_add_f32 v{e+q}, 1.0, v{e+q}",
                            f"v_rcp_f32 v{e+q}, v{e+q}", f"v_mul_f32 v{e+q}, v{base+q}, v{e+q}"])
            if opts.get('silu', 'diag') == 'diag':
                for tm in range(8 + 4):
                    for stg in range(5):
                        q = tm - stg
                        if 0 <= q < 8: b(seq[q][stg])
            elif opts.get('silu') == 'block':
                for stg in range(5):
                    for q in range(8): b(seq[q][stg])
            else:
                for tm in range(8 + 8):
                    for stg in range(5):
                        q = tm - 2 * stg
                        if 0 <= q < 8: b(seq[q][stg])
            for q in range(4): b(f"v_cvt_pk_bf16_f32 v{d+q}, v{e+2*q}, v{e+2*q+1}")
        b(f"s_add_u32 s{sK0}, s{sU}, {(2*ft+kk)*1024}")
        b(f"buffer_store_dwordx4 {v(d,4)}, v{fL16}, {s(sHF,4)}, s{sK0} offen {STF}")
    return b

gPX, gPB = 2, 6
vLBa, vImgW, vImgR, vL16o = 10, 11, 12, 13
vL, vC2, vL16, vL32, vL128, vL256, vF1, vG, vHfm = 16, 18, 20, 22, 24, 26, 28, 30, 32
vNon, vK, vQ, vW_, vPre, vTmp = 34, 36, 38, 40, 42, 44
vP = 48
aRE, aIM, vU = 64, 80, 96
aSX, aSB = 0, 16

def k1_S_setup():
    b = B(); L = vLane; t = vP
    b("s_waitcnt lgkmcnt(0)")
    srd(b, sHF, 34, WS_USED)
    b(f"v_and_b32 v{t}, 31, v{L}")
    b(f"s_lshl_b32 s{sT0}, s{sS}, 5")
    b(f"v_add_u32 v{t}, s{sT0}, v{t}")
    b(f"v_lshlrev_b32 v{t}, 1, v{t}")
    b(f"global_load_ushort v{vP+8}, v{t}, s[6:7]")
    b(f"global_load_ushort v{vP+9}, v{t}, s[8:9]")
    b(f"global_load_ushort v{vP+10}, v{t}, s[18:19]")
    b(f"v_mov_b32 v{t}, {NONCE_OFF}")
    b(f"global_load_dwordx2 {v(vU+26,2)}, v{t}, s[34:35] sc1")
    if int(opts.get('tlbw', 0)):
        pd = vU + 12
        b(f"s_cmp_eq_u32 s{sWm}, 2")
        b("s_cbranch_scc0 L_k1_tlb_done")
        b(f"v_mov_b32 v{t}, 0")
        for k, ptr in enumerate((24, 14, 16, 26, 20)):
            b(f"global_load_dword v{pd+k}, v{t}, {s(ptr,2)}", 'nocount')
        b(f"v_min_u32 v{t}, 19, v{L}")
        b(f"v_lshlrev_b32 v{t}, 20, v{t}")
        b(f"global_load_dword v{pd+5}, v{t}, s[34:35]", 'nocount')
        b(f"v_and_b32 v{t}, 3, v{L}")
        b(f"v_lshlrev_b32 v{t}, 20, v{t}")
        b(f"global_load_dword v{pd+6}, v{t}, s[30:31]", 'nocount')
        b("L_k1_tlb_done:")
    PF = int(opts.get('pf', 0))
    if PF:
        pd = vU + 28
        b(f"s_cmp_eq_u32 s{sWm}, 0")
        b("s_cbranch_scc0 L_k1_pf_1")
        b(f"v_lshrrev_b32 v{t}, 3, v{L}")
        b(f"s_lshl_b32 s{sT2}, s2, 3")
        b(f"v_add_u32 v{t}, s{sT2}, v{t}")
        b(f"v_lshlrev_b32 v{t}, 10, v{t}")
        b(f"v_and_b32 v{t+1}, 7, v{L}")
        b(f"v_max_u32 v{t+1}, 3, v{t+1}")
        b(f"v_lshl_add_u32 v{t}, v{t+1}, 7, v{t}")
        b(f"global_load_dword v{pd}, v{t}, s[4:5]", 'nocount')
        b("L_k1_pf_1:")
        b(f"s_cmp_eq_u32 s{sWm}, 1")
        b("s_cbranch_scc0 L_k1_pf_2")
        b(f"v_bfe_u32 v{t}, v{L}, 3, 1")
        b(f"s_lshl_b32 s{sT2}, s2, 1")
        b(f"v_add_u32 v{t}, s{sT2}, v{t}")
        b(f"v_lshlrev_b32 v{t}, 10, v{t}")
        b(f"v_and_b32 v{t+1}, 7, v{L}")
        b(f"v_max_u32 v{t+1}, 3, v{t+1}")
        b(f"v_lshl_add_u32 v{t}, v{t+1}, 7, v{t}")
        b(f"global_load_dword v{pd}, v{t}, s[10:11]", 'nocount')
        b(f"global_load_dword v{pd+1}, v{t}, s[12:13]", 'nocount')
        b("L_k1_pf_2:")
        b(f"s_cmp_eq_u32 s{sWm}, 2")
        b("s_cbranch_scc0 L_k1_pf_done")
        b(f"v_lshrrev_b32 v{t}, 5, v{L}")
        b(f"s_lshl_b32 s{sT2}, s2, 1")
        b(f"v_add_u32 v{t}, s{sT2}, v{t}")
        b(f"v_mul_u32_u24 v{t}, 3584, v{t}")
        b(f"v_and_b32 v{t+1}, 31, v{L}")
        b(f"v_min_u32 v{t+1}, 27, v{t+1}")
        b(f"v_lshl_add_u32 v{t}, v{t+1}, 7, v{t}")
        b(f"global_load_dword v{pd}, v{t}, s[24:25]", 'nocount')
        b("L_k1_pf_done:")
    b(f"v_and_b32 v{t}, 31, v{L}")
    b(f"v_lshrrev_b32 v{t+1}, 5, v{L}")
    b(f"v_bfe_u32 v{t+2}, v{L}, 1, 3")
    b(f"v_xor_b32 v{t+2}, v{t+1}, v{t+2}")
    b(f"v_lshlrev_b32 v{t+1}, 7, v{t}")
    b(f"v_add_u32 v{t+1}, s{sLdsX}, v{t+1}")
    b(f"v_lshrrev_b32 v{t+3}, 3, v{t}")
    b(f"v_lshlrev_b32 v{t+3}, 11, v{t+3}")
    b(f"v_and_b32 v{t}, 7, v{t}")
    b(f"v_lshl_add_u32 v{t}, v{t}, 7, v{t+3}")
    b(f"v_add_u32 v{t}, 16384, v{t}")
    for k in range(4):
        b(f"v_xor_b32 v{t+3}, {2*k}, v{t+2}")
        b(f"v_lshl_add_u32 v{gPX+k}, v{t+3}, 4, v{t+1}")
        b(f"v_lshl_add_u32 v{gPB+k}, v{t+3}, 4, v{t}")
    return b

def k1_params():
    b = F()
    lre, lim, ldt = vP+8, vP+9, vP+10
    va, vang, t0 = vP, vP+1, vP+2
    b(f"v_lshlrev_b32 v{lre}, 16, v{lre}")
    b(f"v_lshlrev_b32 v{lim}, 16, v{lim}")
    b(f"v_lshlrev_b32 v{ldt}, 16, v{ldt}")
    b(f"v_mul_f32 v{ldt}, {LOG2E:#x}, v{ldt}")
    b(f"v_exp_f32 v{ldt}, v{ldt}")
    b(f"v_cvt_pk_bf16_f32 v{ldt}, v{ldt}, v{ldt}")
    b(f"v_lshlrev_b32 v{ldt}, 16, v{ldt}")
    b(f"v_mul_f32 v{va}, v{ldt}, v{lre}")
    b(f"v_mul_f32 v{vang}, v{ldt}, v{lim}")
    b(f"v_mul_f32 v{va}, {LOG2E:#x}, v{va}")
    b(f"v_mul_f32 v{vang}, {INV2PI:#x}, v{vang}")
    cexp(b, vL, "1.0", va, vang, t0)
    for dst, cst in ((vL16, 0x41800000), (vL32, 0x42000000), (vL128, 0x43000000), (vL256, 0x43800000)):
        b(f"v_mov_b32 v{t0+3}, {cst:#x}")
        cexp(b, dst, f"v{t0+3}", va, vang, t0)
    b(f"v_lshrrev_b32 v{t0+3}, 5, v{vLane}")
    b(f"v_cvt_f32_u32 v{vHfm}, v{t0+3}")
    b(f"v_lshlrev_b32 v{t0+3}, 4, v{t0+3}")
    b(f"v_cvt_f32_u32 v{t0+3}, v{t0+3}")
    cexp(b, vF1, f"v{t0+3}", va, vang, t0)
    b(f"v_lshrrev_b32 v{t0+3}, 5, v{vLane}")
    b(f"v_lshlrev_b32 v{t0+3}, 4, v{t0+3}")
    b(f"s_lshl_b32 s{sSpin}, s{sWm}, 5")
    b(f"v_add_u32 v{t0+3}, s{sSpin}, v{t0+3}")
    b(f"v_cvt_f32_u32 v{t0+3}, v{t0+3}")
    cexp(b, vG, f"v{t0+3}", va, vang, t0)
    b(f"v_add_f32 v{t0}, -1.0, v{vL}")
    b(f"v_mul_f32 v{t0+1}, v{lre}, v{lre}")
    b(f"v_fma_f32 v{t0+1}, v{lim}, v{lim}, v{t0+1}")
    b(f"v_rcp_f32 v{t0+1}, v{t0+1}")
    b(f"v_mul_f32 v{vC2}, v{t0}, v{lre}")
    b(f"v_fma_f32 v{vC2}, v{vL+1}, v{lim}, v{vC2}")
    b(f"v_mul_f32 v{vC2+1}, v{vL+1}, v{lre}")
    b(f"v_fma_f32 v{vC2+1}, -v{t0}, v{lim}, v{vC2+1}")
    b(f"v_add_f32 v{t0+1}, v{t0+1}, v{t0+1}")
    b(f"v_mul_f32 v{vC2}, v{vC2}, v{t0+1}")
    b(f"v_mul_f32 v{vC2+1}, v{vC2+1}, v{t0+1}")
    return b

def k1_setup_common():
    b = F(); t = vP + 12; L = vLane
    for k, m in ((1, sM1), (2, sM2), (3, sM3)):
        g = B()
        g(f"s_cmp_ge_u32 s{sWm}, {k}")
        g(f"s_cselect_b64 {s(m,2)}, -1, 0")
        b.group(g)
    b(f"v_lshlrev_b32 v{vL16o}, 4, v{L}")
    b(f"v_and_b32 v{t}, 31, v{L}")
    b(f"v_lshlrev_b32 v{t}, 4, v{t}")
    b(f"s_lshl_b32 s{sK0}, s{sS}, 9")
    b(f"s_add_u32 s{sK0}, s{sK0}, {E_OFF}")
    b(f"v_add_u32 v{vLBa}, s{sK0}, v{t}")
    b(f"v_and_b32 v{t}, 31, v{L}")
    b(f"v_mul_u32_u24 v{t}, 80, v{t}")
    b(f"v_lshrrev_b32 v{t+1}, 5, v{L}")
    b(f"v_lshl_add_u32 v{t}, v{t+1}, 5, v{t}")
    b(f"s_mul_i32 s{sK0}, s{sWm}, 5120")
    b(f"s_add_u32 s{sK0}, s{sK0}, {SCR}")
    b(f"v_add_u32 v{vImgW}, s{sK0}, v{t}")
    b(f"v_lshrrev_b32 v{t+1}, 5, v{L}")
    b(f"v_lshlrev_b32 v{t+1}, 3, v{t+1}")
    b(f"v_bfe_u32 v{t+2}, v{L}, 2, 2")
    b(f"v_add_u32 v{t+1}, v{t+1}, v{t+2}")
    b(f"v_mul_u32_u24 v{t+1}, 80, v{t+1}")
    b(f"v_and_b32 v{t+2}, 1, v{L}")
    b(f"v_lshlrev_b32 v{t+2}, 5, v{t+2}")
    b(f"v_bfe_u32 v{t+3}, v{L}, 4, 1")
    b(f"v_lshlrev_b32 v{t+3}, 4, v{t+3}")
    b(f"v_add3_u32 v{t+1}, v{t+1}, v{t+2}, v{t+3}")
    b(f"v_bfe_u32 v{t+2}, v{L}, 1, 1")
    b(f"v_lshlrev_b32 v{t+2}, 3, v{t+2}")
    b(f"v_add3_u32 v{vImgR}, v{t+1}, v{t+2}, s{sK0}")
    return b

def k1_gjob_all(b):
    L = vLane
    xs0, gs, t = 32, 16, 24
    gu = 64
    b(f"v_and_b32 v{t}, 31, v{L}")
    b(f"v_lshlrev_b32 v{t}, 4, v{t}")
    b(f"global_load_dwordx4 {v(gs,4)}, v{t}, s[28:29]")
    b(f"global_load_dwordx4 {v(gs+4,4)}, v{t}, s[28:29] offset:512")
    b(f"v_lshrrev_b32 v{t+1}, 5, v{L}")
    b(f"s_lshl_b32 s{sT1}, s{sT0}, 4")
    b(f"v_add_u32 v{t+1}, s{sT1}, v{t+1}")
    b(f"v_lshlrev_b32 v{t+2}, 3, v{t+1}")
    b(f"v_add_u32 v{t+2}, {G_OFF}, v{t+2}")
    b(f"v_lshlrev_b32 v{t+1}, 10, v{t+1}")
    b(f"v_add_u32 v{t+1}, v{t+1}, v{t}")
    def ld(p):
        r = xs0 + (p % 4) * 8
        if p: b(f"v_add_u32 v{t+1}, 2048, v{t+1}")
        b(f"global_load_dwordx4 {v(r,4)}, v{t+1}, s[4:5]")
        b(f"global_load_dwordx4 {v(r+4,4)}, v{t+1}, s[4:5] offset:512")
    for p in range(3): ld(p)
    for k in range(8):
        b(f"v_lshlrev_b32 v{gu+2*k}, 16, v{gs+k}")
        b(f"v_and_b32 v{gu+2*k+1}, 0xffff0000, v{gs+k}")
    b(f"v_and_b32 v{t+3}, 31, v{L}")
    w = 80
    for p in range(8):
        if p + 3 < 8: ld(p + 3)
        xs = xs0 + (p % 4) * 8
        acc = w
        for k in range(8):
            a0 = w + 2 + 2 * (k % 4)
            b(f"v_lshlrev_b32 v{a0}, 16, v{xs+k}")
            b(f"v_and_b32 v{a0+1}, 0xffff0000, v{xs+k}")
            b(f"v_pk_mul_f32 {v(a0,2)}, {v(a0,2)}, {v(gu+2*k,2)}")
            b(f"v_cvt_pk_bf16_f32 v{a0}, v{a0}, v{a0+1}")
            b(f"v_and_b32 v{a0+1}, 0xffff0000, v{a0}")
            b(f"v_lshlrev_b32 v{a0}, 16, v{a0}")
            if k == 0:
                b(f"v_add_f32 v{acc}, v{a0}, v{a0+1}")
            else:
                b(f"v_add_f32 v{a0}, v{a0}, v{a0+1}")
                b(f"v_add_f32 v{acc}, v{acc}, v{a0}")
        for r in (8, 4, 2, 1):
            b(f"v_add_f32_dpp v{acc}, v{acc}, v{acc} row_ror:{r} row_mask:0xf bank_mask:0xf")
        b(f"v_mov_b32 v{acc+1}, v{acc}")
        b(f"v_permlane16_swap_b32 v{acc}, v{acc+1}")
        b(f"v_add_f32 v{acc}, v{acc}, v{acc+1}")
        b(f"v_cvt_pk_bf16_f32 v{acc}, v{acc}, v{acc}")
        b(f"v_lshlrev_b32 v{acc}, 16, v{acc}")
        b(f"v_mul_f32 v{acc}, {LOG2E ^ 0x80000000:#x}, v{acc}")
        b(f"v_exp_f32 v{acc}, v{acc}")
        b(f"v_add_f32 v{acc}, 1.0, v{acc}")
        b(f"v_rcp_f32 v{acc}, v{acc}")
        b(f"v_cvt_pk_bf16_f32 v{acc}, v{acc}, v{acc}")
        d = w + 10 + 2 * (p % 2)
        b(f"v_lshlrev_b32 v{d}, 16, v{acc}")
        b(f"v_sub_f32 v{d+1}, 1.0, v{d}")
        b(f"v_cvt_pk_bf16_f32 v{d+1}, v{d+1}, v{d+1}")
        b(f"v_lshlrev_b32 v{d+1}, 16, v{d+1}")
        b(f"v_cmp_eq_u32 vcc, 0, v{t+3}")
        b(f"s_and_saveexec_b64 {s(sEX,2)}, vcc")
        b(f"global_store_dwordx2 v{t+2}, {v(d,2)}, s[34:35]")
        b(f"s_mov_b64 exec, {s(sEX,2)}")
        b(f"v_add_u32 v{t+2}, 16, v{t+2}")

def k1_nonce():
    b = F()
    t = vU + 26
    b(f"v_add_u32 v{t}, 1, v{t}")
    b(f"v_or_b32 v{t+1}, 1, v{t+1}")
    b(f"v_mov_b32 v{t+2}, {NONCE_OFF}")
    b(f"v_mov_b32 v{t+3}, 0")
    g = B()
    g(f"s_or_b32 s{sSpin}, s2, s{sWave}")
    g(f"s_cmp_lg_u32 s{sSpin}, 0")
    g("s_cbranch_scc1 L_k1_nononce")
    g(f"global_store_dwordx2 v{t+2}, {v(t,2)}, s[34:35] sc0 sc1", 'nocount')
    g(f"global_store_dwordx2 v{t+3}, {v(t,2)}, s[32:33] sc0 sc1", 'nocount')
    g("L_k1_nononce:")
    b.group(g)
    return b

def k1_S():
    b = k1_S_setup()
    if int(opts.get('sprio', 1)): b("s_setprio 2")
    m = B()
    for i in range(8):
        m("s_waitcnt lgkmcnt(0)")
        m("s_barrier")
        po = (i % NSLOT) * SLOT
        hi = po >= 65536 - 1024
        if hi:
            for k in range(4):
                m(f"v_add_u32 v{vTmp+k}, 0x10000, v{gPX+k}")
        for k in range(4):
            if hi: m(f"ds_read_b128 {a(aSX+4*k,4)}, v{vTmp+k} offset:{po - 65536}")
            else: m(f"ds_read_b128 {a(aSX+4*k,4)}, v{gPX+k} offset:{po}")
        if hi:
            for k in range(4):
                m(f"v_add_u32 v{vTmp+k}, 0x10000, v{gPB+k}")
        for k in range(4):
            for mm in range(2):
                if hi: m(f"ds_read_b128 {a(aSB+8*k+4*mm,4)}, v{vTmp+k} offset:{po - 65536 + mm*1024}")
                else: m(f"ds_read_b128 {a(aSB+8*k+4*mm,4)}, v{gPB+k} offset:{po + mm*1024}")
        for k in range(4):
            for mm, acc in ((0, aRE), (1, aIM)):
                c = v(acc, 16) if (i, k) != (0, 0) else "0"
                m(f"v_mfma_f32_32x32x16_bf16 {v(acc,16)}, {a(aSX+4*k,4)}, {a(aSB+8*k+4*mm,4)}, {c}")
    f = F()
    f.ext(k1_nonce())
    f.ext(k1_params())
    f.ext(k1_setup_common())
    g = B()
    g(f"v_mov_b32 v{vTmp}, 0")
    g(f"global_load_dwordx2 {v(vNon,2)}, v{vTmp}, s[32:33] sc1")
    f.group(g)
    b.ext(merge(m.ops, f.ops, per=int(opts.get('per1', 5))))
    b("s_waitcnt vmcnt(0)")
    stamp(b, 2)
    s1 = flat(k1_scan1a().ops)
    cut = [j for j, o in enumerate(s1) if o.kind == 'ds'][0]
    if STAMP >= 2: stamp(b, 8)
    b.ext(s1[:cut])
    if STAMP >= 2: stamp(b, 9)
    b("s_barrier")
    b.ext(s1[cut:])
    if STAMP >= 2: stamp(b, 11)
    b("s_barrier")
    if STAMP >= 2: stamp(b, 12)
    b.ext(flat(k1_scan1b().ops))
    if STAMP >= 2: stamp(b, 13)
    b.ext(k1_publish())
    stamp(b, 3)
    b("s_barrier")
    b("s_barrier")
    stamp(b, 4)
    b.ext(k1_lookback())
    stamp(b, 5)
    b.ext(k1_final())
    stamp(b, 6)
    return b

def cfma_sr(b, d, l, h, ure, uim, tmp):
    b(f"v_fma_f32 v{tmp}, v{l}, v{h}, v{ure}")
    b(f"v_fma_f32 v{tmp+1}, v{l}, v{h+1}, v{uim}")
    b(f"v_fma_f32 v{d}, -v{l+1}, v{h+1}, v{tmp}")
    b(f"v_fma_f32 v{d+1}, v{l+1}, v{h}, v{tmp+1}")

def k1_scan1a():
    b = F()
    tmp = vTmp
    R = lambda t: aRE + reg_of_t(t)
    I = lambda t: aIM + reg_of_t(t)
    b(f"v_mov_b32 v{vQ}, v{R(0)}\nv_mov_b32 v{vQ+1}, v{I(0)}")
    cur = vQ
    for t in range(1, 16):
        nxt = vQ if cur == vW_ else vW_
        cfma_sr(b, nxt, vL, cur, R(t), I(t), tmp)
        cur = nxt
    assert cur == vW_
    b(f"v_mov_b32 v{vPre}, v{cur}\nv_mov_b32 v{vPre+1}, v{cur+1}")
    b(f"v_mov_b32 v{vQ}, v{cur}\nv_mov_b32 v{vQ+1}, v{cur+1}")
    b(f"v_permlane32_swap_b32 v{vPre}, v{vQ}")
    b(f"v_permlane32_swap_b32 v{vPre+1}, v{vQ+1}")
    cfma_s(b, vW_, vL16, vPre, vQ, tmp)
    b(f"v_mul_f32 v{vPre}, v{vPre}, v{vHfm}\nv_mul_f32 v{vPre+1}, v{vPre+1}, v{vHfm}")
    t = vP
    b(f"v_and_b32 v{t+14}, 31, v{vLane}")
    b(f"v_lshlrev_b32 v{t+14}, 3, v{t+14}")
    b(f"v_add_u32 v{t+14}, {SCR}, v{t+14}")
    b(f"s_lshl_b32 s{sK0}, s{sWm}, 8")
    b(f"v_add_u32 v{t+15}, s{sK0}, v{t+14}")
    b(f"ds_write_b64 v{t+15}, {v(vW_,2)} offset:{SC}", "Wx")
    b.wait('lg', "Wx")
    return b

def k1_scan1b():
    b = F()
    t = vP; tmp = vTmp
    for w in range(4):
        b(f"ds_read_b64 {v(t+2*w,2)}, v{t+14} offset:{SC + 256*w}")
    W0, W1, W2, W3 = t, t+2, t+4, t+6
    Q2, Q3 = t+8, t+10
    cfma_s(b, Q2, vL32, W0, W1, tmp)
    cfma_s(b, Q3, vL32, Q2, W2, tmp)
    E = t + 12
    cfma_s(b, E, vL32, Q3, W3, tmp)
    for h in range(2):
        b(f"v_cndmask_b32 v{vQ+h}, 0, v{W0+h}, {s(sM1,2)}")
        b(f"v_cndmask_b32 v{vQ+h}, v{vQ+h}, v{Q2+h}, {s(sM2,2)}")
        b(f"v_cndmask_b32 v{vQ+h}, v{vQ+h}, v{Q3+h}, {s(sM3,2)}")
    cfma_s(b, vK, vF1, vQ, vPre, tmp)
    return b

def k1_publish():
    t = vP; E = t + 12; tmp = vTmp
    g = B()
    g(f"s_lshl_b32 s{sK0}, s{sR}, 13")
    g(f"v_add_u32 v{tmp}, s{sK0}, v{vLBa}")
    g(f"v_lshrrev_b32 v{tmp+1}, 3, v{vLane}")
    g(f"v_cmp_ne_u32 vcc, 0, v{vNon+1}")
    g("s_cbranch_vccnz L_k1_nonce_ok")
    g(f"s_mov_b32 s{sSpin}, 0")
    g("L_k1_nonce_retry:")
    g(f"v_mov_b32 v{tmp+2}, 0")
    g(f"global_load_dwordx2 {v(vNon,2)}, v{tmp+2}, s[32:33] sc1", 'nocount')
    g("s_waitcnt vmcnt(0)", 'nocount')
    g(f"s_add_u32 s{sSpin}, s{sSpin}, 1")
    g(f"s_cmp_gt_u32 s{sSpin}, 40000")
    g("s_cbranch_scc1 L_k1_nonce_ok")
    g(f"v_cmp_ne_u32 vcc, 0, v{vNon+1}")
    g("s_cbranch_vccz L_k1_nonce_retry")
    g("L_k1_nonce_ok:")
    g(f"v_mov_b32 v{E+2}, v{vNon}\nv_mov_b32 v{E+3}, v{vNon+1}")
    g(f"v_cmp_eq_u32 vcc, s{sWm}, v{tmp+1}")
    g(f"s_and_saveexec_b64 {s(sEX,2)}, vcc")
    g(f"global_store_dwordx4 v{tmp}, {v(E,4)}, s[34:35] sc0 sc1")
    g(f"s_mov_b64 exec, {s(sEX,2)}")
    return g

def k1_lookback():
    b = B(); tmp = vTmp; t = vP
    H = vW_
    def loads(tok):
        b(f"s_sub_u32 s{sK0}, s{sR}, 1")
        b(f"s_lshl_b32 s{sK0}, s{sK0}, 13")
        b(f"v_lshrrev_b32 v{t}, 5, v{vLane}")
        b(f"v_lshlrev_b32 v{t}, 13, v{t}")
        b(f"v_sub_u32 v{t}, s{sK0}, v{t}")
        b(f"v_add_u32 v{t}, v{vLBa}, v{t}")
        for mm in range(8):
            if mm: b(f"v_subrev_u32 v{t}, 16384, v{t}")
            b(f"v_max_i32 v{t+1}, v{t}, v{vLBa}")
            b(f"global_load_dwordx4 {v(vU+4*mm,4)}, v{t+1}, s[34:35] sc1", tok)
    b(f"s_cmp_eq_u32 s{sR}, 0")
    b("s_cbranch_scc1 L_k1_lb_zero")
    b(f"s_mov_b32 s{sSpin}, 0")
    b("L_k1_lb_again:")
    loads('nocount')
    b("s_waitcnt vmcnt(0)", 'nocount')
    b(f"s_mov_b64 {s(sEX,2)}, -1")
    for mm in range(8):
        b(f"s_cmp_le_u32 s{sR}, {2*mm}")
        b("s_cbranch_scc1 L_k1_lb_checked")
        b(f"s_cmp_ge_u32 s{sR}, {2*mm+2}")
        b(f"s_cselect_b32 s{sT1}, 0, -1")
        b(f"v_cmp_eq_u32 vcc, v{vU+4*mm+2}, v{vNon}")
        b(f"v_cmp_eq_u32 {s(sT2,2)}, v{vU+4*mm+3}, v{vNon+1}")
        b(f"s_and_b64 vcc, vcc, {s(sT2,2)}")
        b(f"s_or_b32 vcc_hi, vcc_hi, s{sT1}")
        b(f"s_and_b64 {s(sEX,2)}, {s(sEX,2)}, vcc")
    b("L_k1_lb_checked:")
    b(f"s_cmp_eq_u64 {s(sEX,2)}, -1")
    b("s_cbranch_scc1 L_k1_lb_ok")
    b(f"s_add_u32 s{sSpin}, s{sSpin}, 1")
    b(f"s_cmp_gt_u32 s{sSpin}, 40000")
    b("s_cbranch_scc1 L_k1_lb_ok")
    b(f"s_sleep {int(opts.get('lbsleep', 4))}")
    b("s_branch L_k1_lb_again")
    b("L_k1_lb_ok:")
    b(f"v_mov_b32 v{H}, 0\nv_mov_b32 v{H+1}, 0")
    for mm in range(7, -1, -1):
        b(f"s_cmp_le_u32 s{sR}, {2*mm}")
        b(f"s_cbranch_scc1 L_k1_lb_h{mm}")
        b(f"s_cmp_ge_u32 s{sR}, {2*mm+2}")
        b(f"s_cselect_b32 s{sT3}, -1, 0")
        b(f"s_mov_b32 s{sT2}, -1")
        b(f"v_cndmask_b32 v{vU+4*mm}, 0, v{vU+4*mm}, {s(sT2,2)}")
        b(f"v_cndmask_b32 v{vU+4*mm+1}, 0, v{vU+4*mm+1}, {s(sT2,2)}")
        b(f"v_pk_fma_f32 {v(tmp,2)}, {v(vL256,2)}, {v(H,2)}, {v(vU+4*mm,2)} op_sel:[0,0,0] op_sel_hi:[0,1,1]")
        b(f"v_pk_fma_f32 {v(H,2)}, {v(vL256,2)}, {v(H,2)}, {v(tmp,2)} op_sel:[1,1,0] op_sel_hi:[1,0,1] neg_lo:[1,0,0]")
        b(f"L_k1_lb_h{mm}:")
    b(f"v_mov_b32 v{vPre}, v{H}\nv_mov_b32 v{vPre+1}, v{H+1}")
    b(f"v_permlane32_swap_b32 v{H}, v{vPre}")
    b(f"v_permlane32_swap_b32 v{H+1}, v{vPre+1}")
    cfma(b, t, vL128, vPre, H, tmp)
    cfma(b, vQ, vG, t, vK, tmp)
    b("s_branch L_k1_lb_done")
    b("L_k1_lb_zero:")
    b(f"v_mov_b32 v{vQ}, v{vK}\nv_mov_b32 v{vQ+1}, v{vK+1}")
    b("L_k1_lb_done:")
    return b

def k1_final():
    b = B()
    tmp = vTmp
    prev = vQ
    for t in range(16):
        r = reg_of_t(t)
        u = vU + 2 * r
        cfma_sr(b, u, vL, prev, aRE + r, aIM + r, tmp)
        prev = u
    for r in range(16):
        u = vU + 2 * r
        tp = vP + 2 * (r % 4)
        b(f"v_pk_mul_f32 {v(tp,2)}, {v(vC2,2)}, {v(u,2)} op_sel:[0,0] op_sel_hi:[1,0]")
        b(f"v_pk_fma_f32 {v(u,2)}, {v(vC2,2)}, {v(u,2)}, {v(tp,2)} op_sel:[1,1,0] op_sel_hi:[0,1,1] neg_lo:[1,0,0]")
    for k in range(8):
        b(f"v_cvt_pk_bf16_f32 v{aRE+k}, v{vU+4*k}, v{vU+4*k+2}")
    for h in range(2):
        b(f"ds_write_b128 v{vImgW}, {v(aRE+4*h,4)} offset:{IMG + h*16}", "img")
    for k in range(8):
        b(f"v_cvt_pk_bf16_f32 v{aRE+8+k}, -v{vU+4*k+1}, -v{vU+4*k+3}")
    for h in range(2):
        b(f"ds_write_b128 v{vImgW}, {v(aRE+8+4*h,4)} offset:{IMG + 2560 + h*16}", "img")
    b(f"s_lshl_b32 s{sT2}, s{sS}, 12")
    b(f"s_add_u32 s{sT1}, s{sHFb}, s{sT2}")
    b.wait('lg', "img")
    for m in range(2):
        for kk in range(2):
            r = aIM + (2*m + kk) * 4
            for rd in range(2):
                b(f"ds_read_b64_tr_b16 {v(r+2*rd,2)}, v{vImgR} offset:{IMG + (m*32 + 16*kk + 4*rd)*80}")
    for m in range(2):
        for kk in range(2):
            r = aIM + (2*m + kk) * 4
            b(f"s_add_u32 s{sT2}, s{sT1}, {(2*m+kk)*1024}")
            b(f"buffer_store_dwordx4 {v(r,4)}, v{vL16o}, {s(sHF,4)}, s{sT2} offen {STF}")
    return b

def gen_k1():
    global STV
    STV = 15
    pro = k1_head()
    S = k1_S()
    dbgt_end(S, "s[32:33]", 44)
    stamp_end(S, sWave, "s[34:35]", 0x2000000, vLane, 3, 14)
    S("s_endpgm")
    Fm = B(); Fm("L_k1_F:")
    Fm(f"s_cmp_ge_u32 s{sS}, 14")
    Fm("s_cbranch_scc1 L_k1_Fn")
    f1 = k1_F(True)
    dbgt_end(f1, "s[32:33]", 20)
    stamp_end(f1, sWave, "s[34:35]", 0x2000000, vLane, 3, 14)
    f1("s_endpgm")
    Fn = B(); Fn("L_k1_Fn:")
    f2 = k1_F(False)
    dbgt_end(f2, "s[32:33]", 20)
    stamp_end(f2, sWave, "s[34:35]", 0x2000000, vLane, 3, 14)
    f2("L_k1_end:")
    f2("s_endpgm")
    def path(prefix, body, label=None):
        allops = insert_waits(copy.deepcopy(prefix) + body)
        if label:
            idx = [i for i, o in enumerate(allops) if o.text == label][0]
            allops = allops[idx:]
        return insert_hazard_nops(allops)
    out = path([], pro.ops + S.ops)
    out += path(pro.ops, Fm.ops + f1.ops, "L_k1_F:")
    out += path(pro.ops + Fm.ops, Fn.ops + f2.ops, "L_k1_Fn:")
    return out

def gen_k2():
    global STV
    STV = 9
    b = B()
    D = 15
    DW = int(opts.get('k2dw', 5))
    sWv, sH, sMt, sN = 40, 41, 42, 43
    sA, sCR, sCI, sW2 = 44, 48, 76, 80
    t0, t1, t2 = 52, 53, 54
    sS0, sF0 = 56, 57
    sLw = 58
    sCoff, sWoff2 = 59, 62
    vH0, vH1 = 4, 5
    vCe, vCo, vWa, vWb = 2, 3, 60, 61
    vPp, vTp = 48, 52
    accS, accF, vBuf = 64, 128, 192
    vNon2 = 14
    vTau = 8
    vG1, vG2 = 10, 12
    PITCH = 256
    LRED = 0
    LSTG = 65536
    code_prefetch(b, K2, "L_code_end", 2, "k2", 6, 63)
    dbgt_begin(b)
    stamp_begin(b)
    b("s_load_dwordx2 s[18:19], s[0:1], 112")
    b("s_load_dwordx2 s[4:5], s[0:1], 0")
    b("s_load_dwordx4 s[12:15], s[0:1], 40")
    b("s_load_dwordx2 s[6:7], s[0:1], 64")
    b("s_load_dwordx2 s[16:17], s[0:1], 88")
    b("s_load_dwordx2 s[8:9], s[0:1], 104")
    b("s_load_dwordx2 s[10:11], s[0:1], 120")
    b("s_cmp_ge_u32 s2, 256")
    b("s_cbranch_scc1 L_k2_end")
    b("v_lshrrev_b32 v6, 6, v0")
    b("v_and_b32 v1, 63, v0")
    b(f"v_readfirstlane_b32 s{sWv}, v6")
    b(f"s_and_b32 s{sH}, s2, 1")
    b(f"s_bfe_u32 s{t0}, s2, 0x20001")
    b(f"s_lshr_b32 s{t1}, s2, 3")
    b(f"s_and_b32 s{sMt}, s{t1}, 3")
    b(f"s_lshl_b32 s{t0}, s{t0}, 2")
    b(f"s_add_u32 s{sMt}, s{sMt}, s{t0}")
    b(f"s_lshr_b32 s{sN}, s{t1}, 2")
    b("v_and_b32 v6, 7, v1")
    b("v_lshrrev_b32 v7, 4, v1")
    b("v_xor_b32 v6, v6, v7")
    b("v_lshlrev_b32 v6, 4, v6")
    b("v_lshrrev_b32 v7, 3, v1")
    b("v_lshlrev_b32 v7, 10, v7")
    b(f"v_add_u32 v{vCe}, v6, v7")
    b(f"v_xor_b32 v{vCo}, 64, v{vCe}")
    b("v_bfe_u32 v6, v1, 4, 1")
    b("v_lshlrev_b32 v6, 2, v6")
    b("v_and_b32 v29, 7, v1")
    b("v_xor_b32 v6, v6, v29")
    b("v_lshlrev_b32 v6, 4, v6")
    b(f"v_add_u32 v{vWa}, v6, v7")
    b(f"v_add_u32 v{vWb}, {8192 - 1024}, v{vWa}")
    b(f"s_lshl_b32 s{sCoff}, s{sN}, 16")
    b(f"s_lshl_b32 s{t0}, s{sH}, 9")
    b(f"s_add_u32 s{sCoff}, s{sCoff}, s{t0}")
    b(f"s_lshl_b32 s{t0}, s{sWv}, 7")
    b(f"s_add_u32 s{sCoff}, s{sCoff}, s{t0}")
    b(f"s_lshl_b32 s{t0}, s{sH}, 2")
    b(f"s_add_u32 s{t0}, s{t0}, s{sWv}")
    b(f"s_mul_i32 s{sWoff2}, s{t0}, {14*16*1024}")
    b(f"s_lshl_b32 s{t0}, s{sN}, 7")
    b(f"s_add_u32 s{sWoff2}, s{sWoff2}, s{t0}")
    b(f"s_mul_i32 s{sLw}, s{sWv}, 24576")
    b(f"s_add_u32 s{sLw}, s{sLw}, {LSTG}")
    b(f"s_xor_b32 s{t0}, s{sH}, 1")
    b(f"s_lshl_b32 s{t0}, s{t0}, 1")
    b(f"s_lshl_b32 s{t1}, s{sMt}, 2")
    b(f"s_add_u32 s{t0}, s{t0}, s{t1}")
    b(f"s_mul_i32 s{t0}, s{t0}, {176*1024}")
    b("v_lshlrev_b32 v6, 4, v1")
    b(f"v_add_u32 v{vH0}, s{t0}, v6")
    b(f"v_add_u32 v{vH1}, {176*1024}, v{vH0}")
    b(f"s_lshl_b32 s{sS0}, s{sH}, 2")
    b(f"s_add_u32 s{sS0}, s{sS0}, s{sWv}")
    b(f"s_lshl_b32 s{sS0}, s{sS0}, 13")
    b(f"s_lshl_b32 s{sF0}, s{sH}, 2")
    b(f"s_add_u32 s{sF0}, s{sF0}, s{sWv}")
    b(f"s_mul_i32 s{sF0}, s{sF0}, {14*1024}")
    b(f"s_add_u32 s{sF0}, s{sF0}, {64*1024}")
    b("s_waitcnt lgkmcnt(0)")
    srd(b, sA, 10, WS_USED)
    srd(b, sCR, 12, 512*1024)
    srd(b, sCI, 14, 512*1024)
    srd(b, sW2, 16, 1792*1024)
    steps = [('S', i) for i in range(8)] + [('F', i) for i in range(14)]
    NS = len(steps)
    seq = [(1, st) for st in range(NS)] + [(2, st) for st in range(NS)]
    def hreg(idx, k):
        sl = idx % D
        if sl < 8: return v(vBuf + sl * 8 + k * 4, 4)
        return a(200 + (sl - 8) * 8 + k * 4, 4)
    def dma_c(m):
        for aa in range(8):
            b(f"s_add_u32 m0, s{sLw}, {m*8192 + aa*1024}")
            b(f"s_add_u32 s{t2}, s{sCoff}, {aa*8192}")
            b(f"buffer_load_dwordx4 v{vCe if aa % 2 == 0 else vCo}, {s(sCR if m == 0 else sCI,4)}, s{t2} offen lds", f"c{m}")
    def wslot(i):
        if i < 4: return 16384 + i * 2048
        if i < 12: return (i - 4) * 2048
        return 16384 + (i - 12) * 2048
    def dma_f(i):
        b(f"s_add_u32 m0, s{sLw}, {wslot(i)}")
        b(f"s_add_u32 s{t2}, s{sWoff2}, {i*16*1024}")
        b(f"buffer_load_dwordx4 v{vWa}, {s(sW2,4)}, s{t2} offen lds", f"f{i}")
        b(f"buffer_load_dwordx4 v{vWb}, {s(sW2,4)}, s{t2} offen offset:1024 lds", f"f{i}")
    def hloads(idx):
        ps, st = seq[idx]
        kind, i = steps[st]
        sb = sS0 if kind == 'S' else sF0
        if ps == 2 and st == 0:
            b(f"s_lshl_b32 s{t0}, s{sH}, 2")
            b(f"s_sub_u32 s{t0}, s{t0}, 2")
            b(f"s_mul_i32 s{t0}, s{t0}, {176*1024}")
            b(f"v_add_u32 v{vH0}, s{t0}, v{vH0}")
            b(f"v_add_u32 v{vH1}, s{t0}, v{vH1}")
        b(f"s_add_u32 s{t1}, s{sb}, {i*1024}")
        b(f"buffer_load_dwordx4 {hreg(idx,0)}, v{vH0}, {s(sA,4)}, s{t1} offen")
        b(f"buffer_load_dwordx4 {hreg(idx,1)}, v{vH1}, {s(sA,4)}, s{t1} offen")
    def wreads_s():
        for j in range(8):
            m = (j >> 1) & 1; ksp = 2 * (j >> 2) + (j & 1)
            if j == 0: b.wait('vm', "c0")
            if j == 2: b.wait('vm', "c1")
            for aa in range(2):
                b(f"ds_read_b128 {a(8*j+4*aa,4)}, v{vPp+ksp} offset:{m*8192 + aa*4096}", f"wr{j}")
    def wreads_f(i):
        st = 8 + i
        b.wait('vm', f"f{i}")
        for aa in range(2):
            for rd in range(2):
                b(f"ds_read_b64_tr_b16 {a(8*st+4*aa+2*rd,2)}, v{vTp+aa} offset:{wslot(i) + rd*8*128}", f"wr{st}")
    if STAMP >= 2: stamp(b, 24)
    dma_c(0)
    hloads(0); hloads(1)
    dma_c(1)
    b("v_and_b32 v6, 31, v1")
    b("v_lshlrev_b32 v6, 7, v6")
    b(f"v_add_u32 v6, s{sLw}, v6")
    b("v_lshrrev_b32 v7, 5, v1")
    b("v_bfe_u32 v29, v1, 1, 3")
    b("v_xor_b32 v29, v7, v29")
    for k in range(4):
        b(f"v_xor_b32 v7, {2*k}, v29")
        b(f"v_lshl_add_u32 v{vPp+k}, v7, 4, v6")
    tr_pattern(b, vTp, 4, 54)
    b(f"v_add_u32 v{vTp}, s{sLw}, v{vTp}")
    b(f"v_add_u32 v{vTp+1}, s{sLw}, v{vTp+1}")
    b("v_bfe_u32 v6, v1, 3, 2")
    b("v_and_b32 v7, 7, v1")
    b(f"v_lshl_add_u32 v{vTau}, v7, 2, v6")
    b(f"s_xor_b32 s{t0}, s{sH}, 1")
    b(f"s_lshl_b32 s{t0}, s{t0}, 6")
    b(f"s_lshl_b32 s{t1}, s{sMt}, 7")
    b(f"s_add_u32 s{t0}, s{t0}, s{t1}")
    b(f"v_add_u32 v6, s{t0}, v{vTau}")
    b("v_lshlrev_b32 v6, 3, v6")
    b(f"v_add_u32 v6, {G_OFF}, v6")
    b(f"global_load_dwordx2 v[10:11], v6, s[10:11]")
    b(f"global_load_dwordx2 v[12:13], v6, s[10:11] offset:256")
    b(f"s_lshl_b32 s{t0}, s{sH}, 7")
    b(f"s_sub_u32 s{t0}, s{t0}, 64")
    b(f"s_lshl_b32 s{t0}, s{t0}, 3")
    b(f"v_add_u32 v6, s{t0}, v6")
    b(f"global_load_dwordx2 v[16:17], v6, s[10:11]")
    b(f"global_load_dwordx2 v[18:19], v6, s[10:11] offset:256")
    b(f"v_mov_b32 v6, {NONCE_OFF}")
    b(f"global_load_dwordx2 {v(vNon2,2)}, v6, s[10:11]")
    if STAMP >= 2: stamp(b, 25)
    DH = int(opts.get('k2dh', 5))
    for idx in range(2, DH): hloads(idx)
    if STAMP >= 2: stamp(b, 26)
    vWr, vRd = 20, 21
    vWrq = 56
    b(f"s_lshl_b32 s{t0}, s{sWv}, 14")
    b(f"v_lshlrev_b32 v29, 8, v{vTau}")
    b(f"v_add_u32 v29, s{t0}, v29")
    b("v_lshrrev_b32 v6, 5, v1")
    b("v_and_b32 v7, 7, v1")
    b("v_xor_b32 v6, v6, v7")
    for q in range(4):
        b(f"v_xor_b32 v7, {2*q}, v6")
        b(f"v_lshl_add_u32 v{vWrq+q}, v7, 4, v29")
    b("v_lshrrev_b32 v22, 4, v0")
    b("v_and_b32 v23, 15, v0")
    b("v_lshrrev_b32 v6, 6, v0")
    b("v_xor_b32 v6, v6, v23")
    b(f"v_lshlrev_b32 v{vRd}, 8, v22")
    b(f"v_lshl_add_u32 v{vRd}, v6, 4, v{vRd}")
    b(f"v_xor_b32 v{vWr}, 64, v{vRd}")
    vXch = 24
    b(f"v_lshlrev_b32 v{vXch}, 4, v0")
    b(f"s_lshl_b32 s{t0}, s2, 14")
    b(f"s_add_u32 s{t0}, s{t0}, {XCH_OFF}")
    b(f"v_add_u32 v25, s{t0}, v{vXch}")
    b(f"s_xor_b32 s{t1}, s2, 1")
    b(f"s_lshl_b32 s{t0}, s{t1}, 14")
    b(f"s_add_u32 s{t0}, s{t0}, {XCH_OFF}")
    b(f"v_add_u32 v26, s{t0}, v{vXch}")
    if STAMP >= 2: stamp(b, 27)
    wreads_s()
    if STAMP >= 2: stamp(b, 28)

    def mfmas(idx):
        ps, st = seq[idx]
        kind, i = steps[st]
        acc = accS if kind == 'S' else accF
        out = []
        for aa in range(2):
            for bb in range(2):
                dreg = v(acc + (aa*2 + bb) * 16, 16)
                c = dreg if i else "0"
                out.append(f"v_mfma_f32_32x32x16_bf16 {dreg}, {a(8*st+4*aa,4)}, {hreg(idx,bb)}, {c}")
        return out

    def reduce_write(g0, g1):
        for aa in range(2):
            for bb in range(2):
                g = g0 if bb == 0 else g1
                S = accS + (aa*2+bb)*16; Fq = accF + (aa*2+bb)*16
                for p in range(8):
                    b(f"v_pk_mul_f32 {v(S+2*p,2)}, {v(S+2*p,2)}, {v(g,2)} op_sel_hi:[1,0]")
                for p in range(8):
                    b(f"v_pk_fma_f32 {v(S+2*p,2)}, {v(Fq+2*p,2)}, {v(g,2)}, {v(S+2*p,2)} op_sel:[0,1,0] op_sel_hi:[1,1,1]")
                for q in range(4):
                    b(f"ds_write_b128 v{vWrq+q}, {v(S+4*q,4)} offset:{LRED + bb*32*PITCH + aa*128}", "red")
        b.wait('lg', "red")
        b("s_barrier")
    def reduce_read(dst, gran=None):
        for p in range(4):
            for w in range(4):
                b(f"ds_read_b128 {v(dst+16*p+4*w,4)}, v{vRd if p % 2 == 0 else vWr} offset:{LRED + w*64*PITCH + p*16*PITCH}")
        for p in range(4):
            r = dst + 16*p
            b(f"v_pk_add_f32 {v(r,2)}, {v(r,2)}, {v(r+4,2)}")
            b(f"v_pk_add_f32 {v(r+2,2)}, {v(r+2,2)}, {v(r+6,2)}")
            b(f"v_pk_add_f32 {v(r+8,2)}, {v(r+8,2)}, {v(r+12,2)}")
            b(f"v_pk_add_f32 {v(r+10,2)}, {v(r+10,2)}, {v(r+14,2)}")
            if gran is None:
                b(f"v_pk_add_f32 {v(r,2)}, {v(r,2)}, {v(r+8,2)}")
                b(f"v_pk_add_f32 {v(r+2,2)}, {v(r+2,2)}, {v(r+10,2)}")
            else:
                for e in range(4):
                    u = 4 * p + e
                    b(f"v_add_f32 v{gran + 4*(u//3) + u%3}, v{r+e}, v{r+8+e}")

    total = len(seq)
    sNib = 84
    XS_ = 32
    PR_ = vBuf
    def r1c():
        f = F()
        for p in range(4):
            for w in range(4):
                f(f"ds_read_b128 {v(accF+16*p+4*w,4)}, v{vRd if p % 2 == 0 else vWr} offset:{LRED + w*64*PITCH + p*16*PITCH}")
        for p in range(4):
            r = accF + 16*p
            for e in range(4): f(f"v_add_f32 v{r+e}, v{r+e}, v{r+4+e}")
            for e in range(4): f(f"v_add_f32 v{r+8+e}, v{r+8+e}, v{r+12+e}")
            for e in range(4): f(f"v_add_f32 v{r+e}, v{r+e}, v{r+8+e}")
            for e in range(4): f(f"v_and_or_b32 v{XS_+4*p+e}, v{r+e}, -16, s{sNib+e}")
        return f
    def step_ops(idx):
        ps, st = seq[idx]
        kind, i = steps[st]
        n00 = len(b.ops)
        mf = mfmas(idx)
        if ps == 1: b.wait('lg', f"wr{st}")
        b(mf[0])
        if ps == 1:
            fi = st - 2
            if st == 6: b.wait('lg', "wr7")
            if 0 <= fi < 14: dma_f(fi)
        b(mf[1])
        if ps == 1 and 8 <= st + 1 < NS:
            wreads_f(st + 1 - 8)
        b(mf[2])
        n0 = len(b.ops)
        tg = []
        if ps == 1:
            if st + DH < NS: tg = [st + DH]
            else:
                j = st + DH - NS
                tg = [NS + 2 * j, NS + 2 * j + 1]
        elif idx + D < total: tg = [idx + D]
        for t_ in tg: hloads(t_)
        ld = b.ops[n0:]; del b.ops[n0:]
        cut = [j for j, o in enumerate(ld) if o.kind == 'vmem']
        if cut:
            b.ext(ld[:cut[0] + 1]); b(mf[3]); b.ext(ld[cut[0] + 1:])
        else:
            b(mf[3])
        ops = b.ops[n00:]; del b.ops[n00:]
        return ops
    for idx in range(NS):
        b.ext(step_ops(idx))
        st = idx
        if st == 2:
            b(f"v_readfirstlane_b32 s{t0}, v{vNon2}")
            for j in range(4):
                b(f"s_bfe_u32 s{sNib+j}, s{t0}, {(4 << 16) | (4*j):#x}")
        if STAMP >= 2 and st in (0, 3, 7, 11, 15, 19): stamp(b, 8 + (0, 3, 7, 11, 15, 19).index(st))
    stamp(b, 1)
    n0 = len(b.ops); reduce_write(vG1, vG2); rw = b.ops[n0:]; del b.ops[n0:]
    K0 = 2 * DH
    n0 = len(b.ops)
    for k in range(K0, 15): hloads(NS + k)
    hl = chunks_of(b.ops[n0:]); del b.ops[n0:]
    body, tail = rw[:-2], rw[-2:]
    gap = max(1, len(body) // (len(hl) + 1))
    outp = []
    for j, o in enumerate(body):
        outp.append(o)
        if (j + 1) % gap == 0 and hl: outp.extend(hl.pop(0))
    for c in hl: outp.extend(c)
    b.ext(outp + tail)
    stamp(b, 2)
    p2a = []
    for st in range(7): p2a += step_ops(NS + st)
    b.ext(merge(p2a, r1c().ops, per=4))
    PL = int(opts.get('k2pl', 16))
    BI = vBuf + 16
    def bias_fill():
        f = F()
        f("v_lshlrev_b32 v4, 16, v40\nv_and_b32 v5, 0xffff0000, v40\nv_lshlrev_b32 v6, 16, v41\nv_and_b32 v7, 0xffff0000, v41")
        for p in range(4):
            xs = 32 + 2*p; tp = BI + 4*p
            f(f"v_lshlrev_b32 v{tp}, 16, v{xs}\nv_and_b32 v{tp+1}, 0xffff0000, v{xs}\nv_lshlrev_b32 v{tp+2}, 16, v{xs+1}\nv_and_b32 v{tp+3}, 0xffff0000, v{xs+1}")
            for e in range(4): f(f"v_mul_f32 v{tp+e}, v{tp+e}, v{4+e}")
            f(f"v_cvt_pk_bf16_f32 v46, v{tp}, v{tp+1}")
            f(f"v_cvt_pk_bf16_f32 v47, v{tp+2}, v{tp+3}")
            f(f"v_lshlrev_b32 v{tp}, 16, v46\nv_and_b32 v{tp+1}, 0xffff0000, v46\nv_lshlrev_b32 v{tp+2}, 16, v47\nv_and_b32 v{tp+3}, 0xffff0000, v47")
            for e in range(4): f(f"v_mul_f32 v{tp+e}, v{42+p}, v{tp+e}")
        return f
    tail_steps = []
    for st in range(7, NS):
        idx = NS + st
        ops = step_ops(idx)
        if 7 <= st <= 10:
            p = st - 7
            pre = B()
            if p: pre(f"v_add_u32 v29, {p*4096}, v25")
            pre(f"global_store_dwordx4 v{29 if p else 25}, {v(XS_+4*p,4)}, s[10:11] sc0 sc1")
            ops = ops[:1] + pre.ops + ops[1:]
        if st >= 17:
            tail_steps += ops
            if st == NS - 1: b.ext(merge(tail_steps, bias_fill().ops, per=4))
            continue
        b.ext(ops)
        if STAMP >= 2 and st in (7, 11, 15, 19): stamp(b, 16 + (0, 3, 7, 11, 15, 19).index(st))
        if st == 11:
            b("s_barrier")
        if st == 11:
            b(f"s_lshl_b32 s{t0}, s{sMt}, 7")
            b(f"s_lshl_b32 s{t1}, s{sH}, 6")
            b(f"s_add_u32 s{t0}, s{t0}, s{t1}")
            b(f"v_add_u32 v30, s{t0}, v22")
            b(f"s_lshl_b32 s{t1}, s{sN}, 7")
            b("v_lshlrev_b32 v31, 10, v30")
            b("v_lshl_add_u32 v31, v23, 3, v31")
            b(f"v_add_u32 v31, s{t1}, v31")
            for p in range(4):
                if p: b(f"v_add_u32 v31, {16*1024}, v31")
                b(f"global_load_dwordx2 {v(32+2*p,2)}, v31, s[4:5]")
            b("v_lshlrev_b32 v31, 3, v23")
            b(f"v_add_u32 v31, s{t1}, v31")
            b(f"global_load_dwordx2 v[40:41], v31, s[6:7]")
            b("v_lshlrev_b32 v31, 3, v30")
            b(f"v_add_u32 v31, {G_OFF}, v31")
            for p in range(4):
                b(f"global_load_dword v{42+p}, v31, s[10:11] offset:{p*128}")
            b(f"s_lshl_b32 s{t1}, s{sN}, 8")
            b("v_lshlrev_b32 v2, 11, v30")
            b("v_lshl_add_u32 v2, v23, 4, v2")
            b(f"v_add_u32 v2, s{t1}, v2")
        if st == PL:
            for p in range(4):
                if p: b(f"v_add_u32 v29, {p*4096}, v26")
                b(f"global_load_dwordx4 {v(PR_+4*p,4)}, v{29 if p else 26}, s[10:11] sc1", "prt")
    stamp(b, 3)
    b.wait('vm', "prt")
    b(f"s_mov_b32 s{t0}, 0")
    b("L_k2_chk:")
    b("v_mov_b32 v46, 0")
    for u in range(16):
        b(f"v_xor_b32 v{PR_+u}, s{sNib + (u % 4)}, v{PR_+u}")
        b(f"v_and_or_b32 v46, v{PR_+u}, 15, v46")
    b("v_cmp_eq_u32 vcc, 0, v46")
    b("s_cmp_eq_u64 vcc, -1")
    b("s_cbranch_scc1 L_k2_ok")
    b(f"s_add_u32 s{t0}, s{t0}, 1")
    b(f"s_cmp_gt_u32 s{t0}, 40000")
    b("s_cbranch_scc1 L_k2_ok")
    for p in range(4):
        if p: b(f"v_add_u32 v29, {p*4096}, v26")
        b(f"global_load_dwordx4 {v(PR_+4*p,4)}, v{29 if p else 26}, s[10:11] sc1", 'nocount')
    b("s_waitcnt vmcnt(0)", 'nocount')
    b("s_branch L_k2_chk")
    b("L_k2_ok:")
    if STAMP >= 2: stamp(b, 30)
    n0 = len(b.ops)
    reduce_write(16, 18)
    rw = b.ops[n0:]; del b.ops[n0:]
    fl = F()
    for u in range(0, 16, 2): fl(f"v_pk_add_f32 {v(BI+u,2)}, {v(BI+u,2)}, {v(PR_+u,2)}")
    b.ext(merge(rw, fl.ops, after=lambda o: o.mn.startswith('ds_write'), per=1))
    if STAMP >= 2: stamp(b, 31)
    reduce_read(accF)
    if STAMP >= 2: stamp(b, 32)
    OUTF = opts.get('outf', '').replace('+', ' ')
    for p in range(4):
        r = accF + 16*p
        b(f"v_pk_add_f32 {v(r,2)}, {v(r,2)}, {v(BI+4*p,2)}")
        b(f"v_pk_add_f32 {v(r+2,2)}, {v(r+2,2)}, {v(BI+4*p+2,2)}")
        if p: b(f"v_add_u32 v2, {16*2048}, v2")
        b(f"global_store_dwordx4 v2, {v(r,4)}, s[8:9] {OUTF}")
    stamp(b, 4)
    dbgt_end(b, "s[18:19]", 32, True)
    stamp_end(b, sWv, "s[10:11]", 0x2100000, 1)
    b("L_k2_end:")
    b("s_endpgm")
    return finalize(b.ops)

def header():
    ref = open('cdna_kernels/%s.s.ref' % NAME).read().split('\n')
    hdr = []
    for line in ref:
        if not line.startswith(';'): break
        if '@launch' in line or 'Override launch' in line or 'grid=ceil' in line: continue
        hdr.append(line)
    hdr.append(f"; @launch kernel={K1} grid=(256,1,1) block=(512,1,1) lds=163840")
    hdr.append(f"; @launch kernel={K2} grid=(256,1,1) block=(256,1,1) lds=163840")
    return '\n'.join(hdr)

def kd(name, nv, acc_off, nsg):
    return f""".amdhsa_kernel {name}
  .amdhsa_next_free_vgpr {nv}
  .amdhsa_next_free_sgpr {nsg}
  .amdhsa_accum_offset {acc_off}
  .amdhsa_group_segment_fixed_size 0
  .amdhsa_kernarg_size 128
  .amdhsa_user_sgpr_count 2
  .amdhsa_user_sgpr_kernarg_segment_ptr 1
  .amdhsa_system_sgpr_workgroup_id_x 1
  .amdhsa_float_denorm_mode_32 3
.end_amdhsa_kernel"""

def main():
    k1 = gen_k1()
    k2 = gen_k2()
    out = [header(), '.amdgcn_target "amdgcn-amd-amdhsa--gfx950"', '.text']
    out += [f".globl {K1}", ".p2align 8", f".type {K1},@function", f"{K1}:", render(k1)]
    out += [f".globl {K2}", ".p2align 8", f".type {K2},@function", f"{K2}:", render(k2)]
    out += ["L_code_end:", "  s_endpgm"]
    out += ['.section .rodata,"a"', '.p2align 6', kd(K1, 256, 128, 102), '.p2align 6', kd(K2, 512, 256, 102)]
    print('\n'.join(out))

main()
```

```python
import sys, copy
sys.path.insert(0, 'dev')
from ir import *

NAME = "gated_mix__ssm_conv_s5__dense_activation_silu__prompt"
K1 = NAME + "_kernel"
K2 = "gm_k2_kernel"

HF_OFF = 0
HF_SIZE = 64 * 176 * 1024
W2F_OFF = HF_SIZE
W2F_SIZE = 16 * 176 * 1024
G_OFF = W2F_OFF + W2F_SIZE
E_OFF = G_OFF + 2048 * 8
E_SIZE = 16 * 16 * 512
NONCE_OFF = E_OFF + E_SIZE
FLG_OFF = NONCE_OFF + 256
XCH_OFF = FLG_OFF + 256 * 64
WS_USED = XCH_OFF + 256 * 16384

LOG2E = 0x3fb8aa3b
INV2PI = 0x3e22f983

RB, XS, WR = 0, 65536, 114688
SC = 32768
IMG = 36864

opts = dict(a.split('=') for a in sys.argv[1:] if '=' in a)
STAMP = int(opts.get('stamp', 0))
STF = "sc0 sc1"

def v(n, k=1): return f"v{n}" if k == 1 else f"v[{n}:{n+k-1}]"
def a(n, k=1): return f"a{n}" if k == 1 else f"a[{n}:{n+k-1}]"
def s(n, k=1): return f"s{n}" if k == 1 else f"s[{n}:{n+k-1}]"


STV = 15
def reg_of_t(t): return (t >> 2) + 4 * (t & 3)
def srd(b, dst, ptr, size):
    b(f"s_mov_b32 s{dst}, s{ptr}")
    b(f"s_mov_b32 s{dst+1}, s{ptr+1}")
    b(f"s_mov_b32 s{dst+2}, {size}")
    b(f"s_mov_b32 s{dst+3}, 0x20000")


def cexp(b, dst, n_src, va, vang, t0):
    b(f"v_mul_f32 v{t0}, {n_src}, v{va}")
    b(f"v_mul_f32 v{t0+1}, {n_src}, v{vang}")
    b(f"v_exp_f32 v{t0}, v{t0}")
    b(f"v_rndne_f32 v{t0+2}, v{t0+1}")
    b(f"v_sub_f32 v{t0+1}, v{t0+1}, v{t0+2}")
    b(f"v_cos_f32 v{dst}, v{t0+1}")
    b(f"v_sin_f32 v{dst+1}, v{t0+1}")
    b(f"v_mul_f32 v{dst}, v{t0}, v{dst}")
    b(f"v_mul_f32 v{dst+1}, v{t0}, v{dst+1}")


def cfma(b, d, l, h, u, tmp):
    b(f"v_pk_fma_f32 {v(tmp,2)}, {v(l,2)}, {v(h,2)}, {v(u,2)} op_sel:[0,0,0] op_sel_hi:[0,1,1]")
    b(f"v_pk_fma_f32 {v(d,2)}, {v(l,2)}, {v(h,2)}, {v(tmp,2)} op_sel:[1,1,0] op_sel_hi:[1,0,1] neg_lo:[1,0,0]")


def cfma_s(b, d, l, h, u, tmp):
    b(f"v_fma_f32 v{tmp}, v{l}, v{h}, v{u}")
    b(f"v_fma_f32 v{tmp+1}, v{l}, v{h+1}, v{u+1}")
    b(f"v_fma_f32 v{d}, -v{l+1}, v{h+1}, v{tmp}")
    b(f"v_fma_f32 v{d+1}, v{l+1}, v{h}, v{tmp+1}")


def stamp(b, idx):
    if not STAMP: return
    g = B()
    g("s_memtime s[100:101]")
    g("s_waitcnt lgkmcnt(0)")
    g(f"v_writelane_b32 v{STV}, s100, {idx}")
    b.ext(g)


def stamp_begin(b):
    if not STAMP: return
    b(f"v_mov_b32 v{STV}, 0")
    b("s_memrealtime s[100:101]")
    b("s_waitcnt lgkmcnt(0)")
    b(f"v_writelane_b32 v{STV}, s100, 62")
    stamp(b, 0)


def stamp_end(b, wave, ws, off, lane, sh=2, tv=254):
    if not STAMP: return
    b("s_memrealtime s[100:101]")
    b("s_waitcnt lgkmcnt(0)")
    b(f"v_writelane_b32 v{STV}, s100, 63")
    b(f"s_lshl_b32 s100, s2, {sh}")
    b(f"s_add_u32 s100, s100, s{wave}")
    b(f"s_lshl_b32 s100, s100, 8")
    b(f"s_add_u32 s100, s100, {off}")
    b(f"v_lshlrev_b32 v{tv}, 2, v{lane}")
    b(f"v_add_u32 v{tv}, s100, v{tv}")
    b(f"global_store_dword v{tv}, v{STV}, {ws}")


vLane = 1
def tr_pattern(b, dst, hfmul, t):
    L = vLane
    b(f"v_lshrrev_b32 v{t}, 5, v{L}")
    b(f"v_mul_u32_u24 v{t}, {hfmul}, v{t}")
    b(f"v_bfe_u32 v{t+1}, v{L}, 2, 2")
    b(f"v_add_u32 v{t}, v{t}, v{t+1}")
    b(f"v_lshlrev_b32 v{t}, 7, v{t}")
    b(f"v_bfe_u32 v{t+1}, v{L}, 3, 1")
    b(f"v_lshlrev_b32 v{t+1}, 6, v{t+1}")
    b(f"v_bfe_u32 v{t+2}, v{L}, 4, 1")
    b(f"v_lshlrev_b32 v{t+2}, 5, v{t+2}")
    b(f"v_and_b32 v{t+3}, 3, v{L}")
    b(f"v_lshlrev_b32 v{t+3}, 3, v{t+3}")
    b(f"v_add3_u32 v{t}, v{t}, v{t+2}, v{t+3}")
    b(f"v_add_u32 v{dst}, v{t}, v{t+1}")
    b(f"v_xor_b32 v{t+1}, 64, v{t+1}")
    b(f"v_add_u32 v{dst+1}, v{t}, v{t+1}")

SLOT = 24576
NSLOT = 4
WB0 = 98304
SCR = 73728
SC = 0
IMG = 1024
def wblock_lds(q):
    if q < 8: return WB0 + q * 8192
    return (q - 8) * 8192

sX, sBRE, sBIM, sW1, sHF = 36, 40, 44, 48, 52
sWave, sWm, sR, sS, sRho = 60, 61, 62, 63, 56
sLdsX, sLdsB = 64, 65
sT0, sT1, sT2, sT3 = 68, 69, 70, 71
sWL = 72
sM1, sM2, sM3 = 80, 82, 84
sHFb, sK0, sEX = 86, 87, 88
sLo = 90
sSpin, sU = 98, 99

DBGT = int(opts.get('dbgt', 0))
def dbgt_begin(b):
    if not DBGT: return
    b("s_memrealtime s[100:101]")
    b("s_waitcnt lgkmcnt(0)")
    b("s_not_b32 s101, s100")
def dbgt_end(b, dbg, vt, k2=False):
    if not DBGT: return
    b("s_mov_b32 s99, s101")
    b("s_memrealtime s[100:101]")
    b("s_waitcnt lgkmcnt(0)")
    b(f"v_mov_b32 v{vt}, 0")
    b(f"v_mov_b32 v{vt+1}, s99")
    b(f"v_mov_b32 v{vt+2}, s100")
    b("s_mov_b64 exec, 1")
    b(f"global_atomic_umax v{vt}, v{vt+1}, {dbg} offset:16")
    b(f"global_atomic_umax v{vt}, v{vt+2}, {dbg} offset:20")
    if k2:
        b(f"global_load_dwordx2 {v(vt+2,2)}, v{vt}, {dbg} offset:-496 sc1")
        b("s_waitcnt vmcnt(0)")
        b(f"global_store_dwordx2 v{vt}, {v(vt+2,2)}, {dbg} offset:8")
    b("s_mov_b64 exec, -1")

def code_prefetch(b, kname, endlabel, wshift, tag, vt, vd):
    if not int(opts.get('pfc', 1)): return
    b("s_getpc_b64 s[40:41]")
    b(f"L_{tag}_pc:")
    b(f"s_sub_u32 s40, s40, L_{tag}_pc-{kname}")
    b("s_subb_u32 s41, s41, 0")
    b("s_lshr_b32 s42, s2, 3")
    b(f"s_lshl_b32 s42, s42, {wshift + 7}")
    b(f"v_lshrrev_b32 v{vt}, 6, v0")
    b(f"v_lshlrev_b32 v{vt}, 7, v{vt}")
    b(f"v_add_u32 v{vt}, s42, v{vt}")
    b(f"v_min_u32 v{vt}, {endlabel}-{kname}-4, v{vt}")
    b(f"global_load_dword v{vd}, v{vt}, s[40:41]", 'nocount')

def k1_head():
    b = B()
    code_prefetch(b, K1, "L_code_end", 3, "k1", 2, 14)
    dbgt_begin(b)
    stamp_begin(b)
    b("s_load_dwordx16 s[4:19], s[0:1], 0")
    b("s_load_dwordx16 s[20:35], s[0:1], 64")
    b("s_cmp_ge_u32 s2, 256")
    b("s_cbranch_scc1 L_k1_end")
    b("v_lshrrev_b32 v2, 6, v0")
    b(f"v_and_b32 v{vLane}, 63, v0")
    b(f"v_readfirstlane_b32 s{sWave}, v2")
    b(f"s_and_b32 s{sT0}, s2, 7")
    b(f"s_lshr_b32 s{sT1}, s2, 3")
    b(f"s_and_b32 s{sT2}, s{sT1}, 3")
    b(f"s_lshr_b32 s{sT3}, s{sT1}, 2")
    b(f"s_lshr_b32 s{sR}, s{sT0}, 1")
    b(f"s_lshl_b32 s{sR}, s{sR}, 2")
    b(f"s_add_u32 s{sR}, s{sR}, s{sT2}")
    b(f"s_and_b32 s{sS}, s{sT0}, 1")
    b(f"s_lshl_b32 s{sS}, s{sS}, 3")
    b(f"s_add_u32 s{sS}, s{sS}, s{sT3}")
    b(f"s_lshl_b32 s{sRho}, s{sT2}, 1")
    b(f"s_add_u32 s{sRho}, s{sRho}, s{sT3}")
    ROT1 = opts.get('rot1', 'two')
    if ROT1 == 'none': b(f"s_mov_b32 s{sRho}, 0")
    if ROT1 == 'half':
        b(f"s_and_b32 s{sRho}, s{sRho}, 1")
        b(f"s_lshl_b32 s{sRho}, s{sRho}, 2")
    if ROT1 == 'two':
        b(f"s_and_b32 s{sRho}, s{sRho}, 3")
        b(f"s_lshl_b32 s{sRho}, s{sRho}, 1")
    b(f"s_and_b32 s{sWm}, s{sWave}, 3")
    b(f"s_lshl_b32 s{sLdsX}, s{sWm}, 12")
    b(f"s_lshl_b32 s{sLdsB}, s{sWm}, 11")
    b(f"s_lshl_b32 s{sHFb}, s{sR}, 2")
    b(f"s_add_u32 s{sHFb}, s{sHFb}, s{sWm}")
    b(f"s_mul_i32 s{sHFb}, s{sHFb}, {176*1024}")
    b(f"s_cmp_ge_u32 s{sWave}, 4")
    b("s_cbranch_scc1 L_k1_F")
    return b

fXe, fXo, fB, fW = 2, 3, 4, 5
fPX, fTA, fTB, fTC, fL16 = 7, 11, 13, 16, 6 + 0
fPX, fTA, fTB, fTC = 8, 12, 14, 16
fPX, fTA, fTB, fTC, fL16 = 8, 12, 16, 18, 7
fE, fD = 20, 28
fS, fAcc = 32, 64

def dma(b, voff, srdn, soff, tok, imm=0):
    o = f" offset:{imm}" if imm else ""
    b(f"buffer_load_dwordx4 v{voff}, {s(srdn,4)}, {soff} offen{o} lds", tok)
def dma_x(b, i):
    b(f"s_add_u32 m0, s{sLdsX}, {(i % NSLOT) * SLOT}")
    for k in range(4):
        dma(b, fXe if k % 2 == 0 else fXo, sX, f"s{sLo+i}", f"x{i}", k * 1024)
def dma_B(b, i):
    b(f"s_add_u32 m0, s{sLdsB}, {(i % NSLOT) * SLOT + 16384}")
    dma(b, fB, sBRE, f"s{sLo+i}", f"B{i}")
    dma(b, fB, sBIM, f"s{sLo+i}", f"B{i}", 1024)
def dma_w(b, q):
    i, hh = q % 8, q // 8
    b(f"s_add_u32 m0, s{sLdsB}, {wblock_lds(q)}")
    if hh:
        b(f"s_add_u32 s{sT0}, s{sWL+i}, 128")
        so = f"s{sT0}"
    else:
        so = f"s{sWL+i}"
    dma(b, fW, sW1, so, f"w{q}")
    dma(b, fW + 1, sW1, so, f"w{q}", 1024)

def chunks_of(ops):
    ch = []; cur = []
    for o in ops:
        cur.append(o)
        if o.kind == 'vmem': ch.append(cur); cur = []
    if cur: ch.append(cur)
    return ch

def k1_F(ffn):
    b = B(); L = vLane
    t = fE
    for i in range(8):
        b(f"s_add_u32 s{sLo+i}, s{sRho}, {i}")
        b(f"s_and_b32 s{sLo+i}, s{sLo+i}, 7")
        b(f"s_lshl_b32 s{sLo+i}, s{sLo+i}, 7")
    b(f"v_and_b32 v{t}, 7, v{L}")
    b(f"v_lshrrev_b32 v{t+1}, 4, v{L}")
    b(f"v_xor_b32 v{t+2}, v{t}, v{t+1}")
    b(f"v_lshlrev_b32 v{t+2}, 4, v{t+2}")
    b(f"v_lshrrev_b32 v{t+3}, 3, v{L}")
    b(f"s_lshl_b32 s{sT0}, s{sR}, 17")
    b(f"s_lshl_b32 s{sT1}, s{sWm}, 15")
    b(f"s_add_u32 s{sT0}, s{sT0}, s{sT1}")
    b(f"v_lshlrev_b32 v{t}, 12, v{t+3}")
    b(f"v_add3_u32 v{fXe}, v{t}, v{t+2}, s{sT0}")
    b(f"v_xor_b32 v{fXo}, 64, v{fXe}")
    b(f"s_and_b32 s{sT0}, s{sWm}, 1")
    b(f"s_lshl_b32 s{sT0}, s{sT0}, 6")
    b(f"v_xor_b32 v{t+1}, s{sT0}, v{t+2}")
    b(f"s_lshl_b32 s{sT0}, s{sWm}, 13")
    b(f"s_lshl_b32 s{sT1}, s{sS}, 15")
    b(f"s_add_u32 s{sT0}, s{sT0}, s{sT1}")
    b(f"v_lshlrev_b32 v{t}, 10, v{t+3}")
    b(f"v_add3_u32 v{fB}, v{t}, v{t+1}, s{sT0}")
    b("s_waitcnt lgkmcnt(0)")
    srd(b, sX, 4, 2048*1024)
    srd(b, sBRE, 10, 512*1024)
    b(f"s_sub_u32 s{sBIM}, s12, 1024")
    b(f"s_subb_u32 s{sBIM+1}, s13, 0")
    b(f"s_mov_b32 s{sBIM+2}, {512*1024 + 1024}")
    b(f"s_mov_b32 s{sBIM+3}, 0x20000")
    if STAMP >= 2: stamp(b, 8)
    INI = int(opts.get('ini', 3))
    for i in range(INI):
        dma_x(b, i); dma_B(b, i)
    if STAMP >= 2: stamp(b, 9)
    srd(b, sHF, 34, WS_USED)
    if ffn:
        srd(b, sW1, 24, 512*3584)
        b(f"v_bfe_u32 v{t+1}, v{L}, 4, 1")
        b(f"v_lshlrev_b32 v{t+1}, 2, v{t+1}")
        b(f"v_and_b32 v{t+3}, 7, v{L}")
        b(f"v_xor_b32 v{t+3}, v{t+3}, v{t+1}")
        b(f"v_lshlrev_b32 v{t+3}, 4, v{t+3}")
        b(f"v_lshrrev_b32 v{t+1}, 3, v{L}")
        b(f"s_lshl_b32 s{sT3}, s{sWm}, 4")
        b(f"v_add_u32 v{t+1}, s{sT3}, v{t+1}")
        b(f"v_mul_u32_u24 v{t+1}, 3584, v{t+1}")
        b(f"v_add_u32 v{fW}, v{t+1}, v{t+3}")
        b(f"v_add_u32 v{fW+1}, {8*3584 - 1024}, v{fW}")
        b(f"s_lshl_b32 s{sT3}, s{sS}, 8")
        for i in range(8):
            b(f"s_mul_i32 s{sWL+i}, s{sLo+i}, 1792")
            b(f"s_add_u32 s{sWL+i}, s{sWL+i}, s{sT3}")
        tr_pattern(b, fTA, 8, t)
        b(f"v_add_u32 v{fTB}, 0x10000, v{fTA}")
        b(f"v_add_u32 v{fTB+1}, 0x10000, v{fTA+1}")
        b(f"v_add_u32 v{fTC}, 0x20000, v{fTA}")
        b(f"v_add_u32 v{fTC+1}, 0x20000, v{fTA+1}")
        b(f"v_lshlrev_b32 v{fL16}, 4, v{L}")
        b(f"v_and_b32 v{t}, 31, v{L}")
        b(f"v_lshrrev_b32 v{t+1}, 5, v{L}")
        b(f"v_bfe_u32 v{t+2}, v{L}, 1, 3")
        b(f"v_xor_b32 v{t+2}, v{t+1}, v{t+2}")
        b(f"v_lshlrev_b32 v{t+1}, 7, v{t}")
        b(f"v_add_u32 v{t+1}, s{sLdsX}, v{t+1}")
        for k in range(4):
            b(f"v_xor_b32 v{t+3}, {2*k}, v{t+2}")
            b(f"v_lshl_add_u32 v{fPX+k}, v{t+3}, 4, v{t+1}")
        b(f"s_mov_b32 s66, {LOG2E ^ 0x80000000:#x}")
        b(f"s_mov_b32 s67, {LOG2E ^ 0x80000000:#x}")
        b(f"s_lshl_b32 s{sU}, s{sS}, 13")
        b(f"s_add_u32 s{sU}, s{sU}, s{sHFb}")
        b(f"s_add_u32 s{sU}, s{sU}, {64*1024}")
    stamp(b, 1)
    for i in range(8):
        if STAMP >= 2: stamp(b, 10 + 2*i)
        b.wait('vm', f"x{i}", f"B{i}")
        b("s_waitcnt lgkmcnt(0)")
        b("s_barrier")
        if STAMP >= 2: stamp(b, 11 + 2*i)
        if ffn:
            po = (i % NSLOT) * SLOT
            if po >= 65536:
                for k in range(4): b(f"v_add_u32 v{fE+k}, 0x10000, v{fPX+k}")
            for k in range(4):
                if po >= 65536: b(f"ds_read_b128 {a(16*i+4*k,4)}, v{fE+k} offset:{po - 65536}")
                else: b(f"ds_read_b128 {a(16*i+4*k,4)}, v{fPX+k} offset:{po}")
        if i == 0 and INI == 2:
            dma_x(b, 2); dma_B(b, 2)
        if i <= 4:
            dma_x(b, i + 3); dma_B(b, i + 3)
        elif ffn:
            for q in {5: (0, 1, 2), 6: (3, 4, 5), 7: (6, 7)}[i]: dma_w(b, q)
    stamp(b, 2)
    if not ffn:
        b(f"s_lshl_b32 s{sT0}, s{sR}, 1")
        b(f"s_add_u32 s{sT0}, s{sT0}, s{sS}")
        b(f"s_sub_u32 s{sT0}, s{sT0}, 14")
        b(f"s_lshl_b32 s{sT0}, s{sT0}, 2")
        b(f"s_add_u32 s{sT0}, s{sT0}, s{sWm}")
        b(f"v_lshlrev_b32 v8, 7, v{L}")
        srd(b, sW1, 26, 1792*1024)
        srd(b, sHF, 14, 512*1024)
        srd(b, sX, 16, 512*1024)
        b(f"s_mul_i32 s{sT1}, s{sT0}, 14336")
        b(f"buffer_load_dword v9, v8, {s(sW1,4)}, s{sT1} offen")
        b(f"s_add_u32 s{sT1}, s{sT1}, 8192")
        b(f"buffer_load_dword v10, v8, {s(sW1,4)}, s{sT1} offen")
        b(f"s_lshl_b32 s{sT1}, s{sT0}, 12")
        b(f"buffer_load_dword v11, v8, {s(sHF,4)}, s{sT1} offen")
        b(f"buffer_load_dword v12, v8, {s(sX,4)}, s{sT1} offen")
        for _ in range(4): b("s_barrier")
        k1_gjob_all(b)
        return b
    def ffn_phase(hh):
        p = B(); DEPTH = 3
        def lds_loc(n):
            i, k = divmod(n, 4)
            base = wblock_lds(8 * hh + i) + 16 * k * 128
            if base < 65536: return fTA, base
            if base < 131072: return fTB, base - 65536
            return fTC, base - 131072
        plan = {0: [0, 1, 2, 3], int(opts.get('bcn', 12)): [4, 5, 6, 7]} if hh == 0 else {0: list(range(8, 16))}
        def reads(n):
            if n in plan:
                p.wait('vm', *[f"w{q}" for q in plan[n]])
                if hh == 0 and n == 0: p("s_waitcnt lgkmcnt(0)")
                if STAMP >= 2: stamp(p, 26 + (0 if n == 0 else 1) if hh == 0 else 29)
                p("s_barrier")
                if STAMP >= 2 and hh == 0: stamp(p, 30 + (0 if n == 0 else 1))
            base, off = lds_loc(n)
            r = fS + (n % 4) * 8
            for ft in range(2):
                for rd in range(2):
                    p(f"ds_read_b64_tr_b16 {v(r+4*ft+2*rd,2)}, v{base+ft} offset:{off + rd*512}", f"r{hh}_{n}")
        ch = []
        if hh == 0:
            d = B()
            for q in range(8, 16): dma_w(d, q)
            ch = chunks_of(d.ops)
        for n in range(DEPTH): reads(n)
        for n in range(32):
            i, k = divmod(n, 4)
            r = fS + (n % 4) * 8
            p.wait('lg', f"r{hh}_{n}")
            for ft in range(2):
                acc = fAcc + (2*hh + ft) * 16
                c = v(acc, 16) if n else "0"
                p(f"v_mfma_f32_32x32x16_bf16 {v(acc,16)}, {v(r+4*ft,4)}, {a(16*i+4*k,4)}, {c}")
                if ft == 0 and ch: p.ext(ch.pop(0))
            if hh == 0 and n == int(opts.get('bxn', 1)): p("s_barrier")
            if n + DEPTH < 32: reads(n + DEPTH)
        assert not ch
        return p
    b.ext(ffn_phase(0))
    stamp(b, 3)
    p3 = ffn_phase(1)
    fl = F()
    fl.ext(k1_silu(0, False)); fl.ext(k1_silu(1, False))
    if opts.get('p3mode') == 'nofill':
        b.ext(p3.ops); stamp(b, 6); b.ext(flat(fl.ops))
    elif opts.get('p3mode') == 'nostore':
        fo = [o for o in fl.ops if not (not isinstance(o, list) and o.kind == 'vmem')]
        st_ = [o for o in fl.ops if (not isinstance(o, list) and o.kind == 'vmem')]
        b.ext(merge(p3.ops, fo, per=int(opts.get('per3', 4)), start=1))
    else:
        b.ext(merge(p3.ops, fl.ops, per=int(opts.get('per3', 4)), start=1))
    stamp(b, 4)
    b.ext(flat(k1_silu(2, True).ops))
    b.ext(flat(k1_silu(3, True).ops))
    stamp(b, 5)
    return b

def k1_silu(ft, pk):
    b = F()
    acc = fAcc + ft * 16
    e, d = fE, fD
    for kk in range(2):
        base = acc + 8 * kk
        if pk:
            for q in range(4): b(f"v_pk_mul_f32 {v(e+2*q,2)}, {v(base+2*q,2)}, s[66:67]")
            for q in range(8): b(f"v_exp_f32 v{e+q}, v{e+q}")
            for q in range(4): b(f"v_pk_add_f32 {v(e+2*q,2)}, {v(e+2*q,2)}, 1.0 op_sel_hi:[1,0]")
            for q in range(8): b(f"v_rcp_f32 v{e+q}, v{e+q}")
            for q in range(4): b(f"v_pk_mul_f32 {v(e+2*q,2)}, {v(base+2*q,2)}, {v(e+2*q,2)}")
            for q in range(4): b(f"v_cvt_pk_bf16_f32 v{d+q}, v{e+2*q}, v{e+2*q+1}")
        else:
            seq = []
            for q in range(8):
                seq.append([f"v_mul_f32 v{e+q}, s66, v{base+q}", f"v_exp_f32 v{e+q}, v{e+q}", f"v_add_f32 v{e+q}, 1.0, v{e+q}",
                            f"v_rcp_f32 v{e+q}, v{e+q}", f"v_mul_f32 v{e+q}, v{base+q}, v{e+q}"])
            if opts.get('silu', 'diag') == 'diag':
                for tm in range(8 + 4):
                    for stg in range(5):
                        q = tm - stg
                        if 0 <= q < 8: b(seq[q][stg])
            elif opts.get('silu') == 'block':
                for stg in range(5):
                    for q in range(8): b(seq[q][stg])
            else:
                for tm in range(8 + 8):
                    for stg in range(5):
                        q = tm - 2 * stg
                        if 0 <= q < 8: b(seq[q][stg])
            for q in range(4): b(f"v_cvt_pk_bf16_f32 v{d+q}, v{e+2*q}, v{e+2*q+1}")
        b(f"s_add_u32 s{sK0}, s{sU}, {(2*ft+kk)*1024}")
        b(f"buffer_store_dwordx4 {v(d,4)}, v{fL16}, {s(sHF,4)}, s{sK0} offen {STF}")
    return b

gPX, gPB = 2, 6
vLBa, vImgW, vImgR, vL16o = 10, 11, 12, 13
vL, vC2, vL16, vL32, vL128, vL256, vF1, vG, vHfm = 16, 18, 20, 22, 24, 26, 28, 30, 32
vNon, vK, vQ, vW_, vPre, vTmp = 34, 36, 38, 40, 42, 44
vP = 48
aRE, aIM, vU = 64, 80, 96
aSX, aSB = 0, 16

def k1_S_setup():
    b = B(); L = vLane; t = vP
    b("s_waitcnt lgkmcnt(0)")
    srd(b, sHF, 34, WS_USED)
    b(f"v_and_b32 v{t}, 31, v{L}")
    b(f"s_lshl_b32 s{sT0}, s{sS}, 5")
    b(f"v_add_u32 v{t}, s{sT0}, v{t}")
    b(f"v_lshlrev_b32 v{t}, 1, v{t}")
    b(f"global_load_ushort v{vP+8}, v{t}, s[6:7]")
    b(f"global_load_ushort v{vP+9}, v{t}, s[8:9]")
    b(f"global_load_ushort v{vP+10}, v{t}, s[18:19]")
    b(f"v_mov_b32 v{t}, {NONCE_OFF}")
    b(f"global_load_dwordx2 {v(vU+26,2)}, v{t}, s[34:35] sc1")
    if int(opts.get('tlbw', 0)):
        pd = vU + 12
        b(f"s_cmp_eq_u32 s{sWm}, 2")
        b("s_cbranch_scc0 L_k1_tlb_done")
        b(f"v_mov_b32 v{t}, 0")
        for k, ptr in enumerate((24, 14, 16, 26, 20)):
            b(f"global_load_dword v{pd+k}, v{t}, {s(ptr,2)}", 'nocount')
        b(f"v_min_u32 v{t}, 19, v{L}")
        b(f"v_lshlrev_b32 v{t}, 20, v{t}")
        b(f"global_load_dword v{pd+5}, v{t}, s[34:35]", 'nocount')
        b(f"v_and_b32 v{t}, 3, v{L}")
        b(f"v_lshlrev_b32 v{t}, 20, v{t}")
        b(f"global_load_dword v{pd+6}, v{t}, s[30:31]", 'nocount')
        b("L_k1_tlb_done:")
    PF = int(opts.get('pf', 0))
    if PF:
        pd = vU + 28
        b(f"s_cmp_eq_u32 s{sWm}, 0")
        b("s_cbranch_scc0 L_k1_pf_1")
        b(f"v_lshrrev_b32 v{t}, 3, v{L}")
        b(f"s_lshl_b32 s{sT2}, s2, 3")
        b(f"v_add_u32 v{t}, s{sT2}, v{t}")
        b(f"v_lshlrev_b32 v{t}, 10, v{t}")
        b(f"v_and_b32 v{t+1}, 7, v{L}")
        b(f"v_max_u32 v{t+1}, 3, v{t+1}")
        b(f"v_lshl_add_u32 v{t}, v{t+1}, 7, v{t}")
        b(f"global_load_dword v{pd}, v{t}, s[4:5]", 'nocount')
        b("L_k1_pf_1:")
        b(f"s_cmp_eq_u32 s{sWm}, 1")
        b("s_cbranch_scc0 L_k1_pf_2")
        b(f"v_bfe_u32 v{t}, v{L}, 3, 1")
        b(f"s_lshl_b32 s{sT2}, s2, 1")
        b(f"v_add_u32 v{t}, s{sT2}, v{t}")
        b(f"v_lshlrev_b32 v{t}, 10, v{t}")
        b(f"v_and_b32 v{t+1}, 7, v{L}")
        b(f"v_max_u32 v{t+1}, 3, v{t+1}")
        b(f"v_lshl_add_u32 v{t}, v{t+1}, 7, v{t}")
        b(f"global_load_dword v{pd}, v{t}, s[10:11]", 'nocount')
        b(f"global_load_dword v{pd+1}, v{t}, s[12:13]", 'nocount')
        b("L_k1_pf_2:")
        b(f"s_cmp_eq_u32 s{sWm}, 2")
        b("s_cbranch_scc0 L_k1_pf_done")
        b(f"v_lshrrev_b32 v{t}, 5, v{L}")
        b(f"s_lshl_b32 s{sT2}, s2, 1")
        b(f"v_add_u32 v{t}, s{sT2}, v{t}")
        b(f"v_mul_u32_u24 v{t}, 3584, v{t}")
        b(f"v_and_b32 v{t+1}, 31, v{L}")
        b(f"v_min_u32 v{t+1}, 27, v{t+1}")
        b(f"v_lshl_add_u32 v{t}, v{t+1}, 7, v{t}")
        b(f"global_load_dword v{pd}, v{t}, s[24:25]", 'nocount')
        b("L_k1_pf_done:")
    b(f"v_and_b32 v{t}, 31, v{L}")
    b(f"v_lshrrev_b32 v{t+1}, 5, v{L}")
    b(f"v_bfe_u32 v{t+2}, v{L}, 1, 3")
    b(f"v_xor_b32 v{t+2}, v{t+1}, v{t+2}")
    b(f"v_lshlrev_b32 v{t+1}, 7, v{t}")
    b(f"v_add_u32 v{t+1}, s{sLdsX}, v{t+1}")
    b(f"v_lshrrev_b32 v{t+3}, 3, v{t}")
    b(f"v_lshlrev_b32 v{t+3}, 11, v{t+3}")
    b(f"v_and_b32 v{t}, 7, v{t}")
    b(f"v_lshl_add_u32 v{t}, v{t}, 7, v{t+3}")
    b(f"v_add_u32 v{t}, 16384, v{t}")
    for k in range(4):
        b(f"v_xor_b32 v{t+3}, {2*k}, v{t+2}")
        b(f"v_lshl_add_u32 v{gPX+k}, v{t+3}, 4, v{t+1}")
        b(f"v_lshl_add_u32 v{gPB+k}, v{t+3}, 4, v{t}")
    return b

def k1_params():
    b = F()
    lre, lim, ldt = vP+8, vP+9, vP+10
    va, vang, t0 = vP, vP+1, vP+2
    b(f"v_lshlrev_b32 v{lre}, 16, v{lre}")
    b(f"v_lshlrev_b32 v{lim}, 16, v{lim}")
    b(f"v_lshlrev_b32 v{ldt}, 16, v{ldt}")
    b(f"v_mul_f32 v{ldt}, {LOG2E:#x}, v{ldt}")
    b(f"v_exp_f32 v{ldt}, v{ldt}")
    b(f"v_cvt_pk_bf16_f32 v{ldt}, v{ldt}, v{ldt}")
    b(f"v_lshlrev_b32 v{ldt}, 16, v{ldt}")
    b(f"v_mul_f32 v{va}, v{ldt}, v{lre}")
    b(f"v_mul_f32 v{vang}, v{ldt}, v{lim}")
    b(f"v_mul_f32 v{va}, {LOG2E:#x}, v{va}")
    b(f"v_mul_f32 v{vang}, {INV2PI:#x}, v{vang}")
    cexp(b, vL, "1.0", va, vang, t0)
    for dst, cst in ((vL16, 0x41800000), (vL32, 0x42000000), (vL128, 0x43000000), (vL256, 0x43800000)):
        b(f"v_mov_b32 v{t0+3}, {cst:#x}")
        cexp(b, dst, f"v{t0+3}", va, vang, t0)
    b(f"v_lshrrev_b32 v{t0+3}, 5, v{vLane}")
    b(f"v_cvt_f32_u32 v{vHfm}, v{t0+3}")
    b(f"v_lshlrev_b32 v{t0+3}, 4, v{t0+3}")
    b(f"v_cvt_f32_u32 v{t0+3}, v{t0+3}")
    cexp(b, vF1, f"v{t0+3}", va, vang, t0)
    b(f"v_lshrrev_b32 v{t0+3}, 5, v{vLane}")
    b(f"v_lshlrev_b32 v{t0+3}, 4, v{t0+3}")
    b(f"s_lshl_b32 s{sSpin}, s{sWm}, 5")
    b(f"v_add_u32 v{t0+3}, s{sSpin}, v{t0+3}")
    b(f"v_cvt_f32_u32 v{t0+3}, v{t0+3}")
    cexp(b, vG, f"v{t0+3}", va, vang, t0)
    b(f"v_add_f32 v{t0}, -1.0, v{vL}")
    b(f"v_mul_f32 v{t0+1}, v{lre}, v{lre}")
    b(f"v_fma_f32 v{t0+1}, v{lim}, v{lim}, v{t0+1}")
    b(f"v_rcp_f32 v{t0+1}, v{t0+1}")
    b(f"v_mul_f32 v{vC2}, v{t0}, v{lre}")
    b(f"v_fma_f32 v{vC2}, v{vL+1}, v{lim}, v{vC2}")
    b(f"v_mul_f32 v{vC2+1}, v{vL+1}, v{lre}")
    b(f"v_fma_f32 v{vC2+1}, -v{t0}, v{lim}, v{vC2+1}")
    b(f"v_add_f32 v{t0+1}, v{t0+1}, v{t0+1}")
    b(f"v_mul_f32 v{vC2}, v{vC2}, v{t0+1}")
    b(f"v_mul_f32 v{vC2+1}, v{vC2+1}, v{t0+1}")
    return b

def k1_setup_common():
    b = F(); t = vP + 12; L = vLane
    for k, m in ((1, sM1), (2, sM2), (3, sM3)):
        g = B()
        g(f"s_cmp_ge_u32 s{sWm}, {k}")
        g(f"s_cselect_b64 {s(m,2)}, -1, 0")
        b.group(g)
    b(f"v_lshlrev_b32 v{vL16o}, 4, v{L}")
    b(f"v_and_b32 v{t}, 31, v{L}")
    b(f"v_lshlrev_b32 v{t}, 4, v{t}")
    b(f"s_lshl_b32 s{sK0}, s{sS}, 9")
    b(f"s_add_u32 s{sK0}, s{sK0}, {E_OFF}")
    b(f"v_add_u32 v{vLBa}, s{sK0}, v{t}")
    b(f"v_and_b32 v{t}, 31, v{L}")
    b(f"v_mul_u32_u24 v{t}, 80, v{t}")
    b(f"v_lshrrev_b32 v{t+1}, 5, v{L}")
    b(f"v_lshl_add_u32 v{t}, v{t+1}, 5, v{t}")
    b(f"s_mul_i32 s{sK0}, s{sWm}, 5120")
    b(f"s_add_u32 s{sK0}, s{sK0}, {SCR}")
    b(f"v_add_u32 v{vImgW}, s{sK0}, v{t}")
    b(f"v_lshrrev_b32 v{t+1}, 5, v{L}")
    b(f"v_lshlrev_b32 v{t+1}, 3, v{t+1}")
    b(f"v_bfe_u32 v{t+2}, v{L}, 2, 2")
    b(f"v_add_u32 v{t+1}, v{t+1}, v{t+2}")
    b(f"v_mul_u32_u24 v{t+1}, 80, v{t+1}")
    b(f"v_and_b32 v{t+2}, 1, v{L}")
    b(f"v_lshlrev_b32 v{t+2}, 5, v{t+2}")
    b(f"v_bfe_u32 v{t+3}, v{L}, 4, 1")
    b(f"v_lshlrev_b32 v{t+3}, 4, v{t+3}")
    b(f"v_add3_u32 v{t+1}, v{t+1}, v{t+2}, v{t+3}")
    b(f"v_bfe_u32 v{t+2}, v{L}, 1, 1")
    b(f"v_lshlrev_b32 v{t+2}, 3, v{t+2}")
    b(f"v_add3_u32 v{vImgR}, v{t+1}, v{t+2}, s{sK0}")
    return b

def k1_gjob_all(b):
    L = vLane
    xs0, gs, t = 32, 16, 24
    gu = 64
    b(f"v_and_b32 v{t}, 31, v{L}")
    b(f"v_lshlrev_b32 v{t}, 4, v{t}")
    b(f"global_load_dwordx4 {v(gs,4)}, v{t}, s[28:29]")
    b(f"global_load_dwordx4 {v(gs+4,4)}, v{t}, s[28:29] offset:512")
    b(f"v_lshrrev_b32 v{t+1}, 5, v{L}")
    b(f"s_lshl_b32 s{sT1}, s{sT0}, 4")
    b(f"v_add_u32 v{t+1}, s{sT1}, v{t+1}")
    b(f"v_lshlrev_b32 v{t+2}, 3, v{t+1}")
    b(f"v_add_u32 v{t+2}, {G_OFF}, v{t+2}")
    b(f"v_lshlrev_b32 v{t+1}, 10, v{t+1}")
    b(f"v_add_u32 v{t+1}, v{t+1}, v{t}")
    def ld(p):
        r = xs0 + (p % 4) * 8
        if p: b(f"v_add_u32 v{t+1}, 2048, v{t+1}")
        b(f"global_load_dwordx4 {v(r,4)}, v{t+1}, s[4:5]")
        b(f"global_load_dwordx4 {v(r+4,4)}, v{t+1}, s[4:5] offset:512")
    for p in range(3): ld(p)
    for k in range(8):
        b(f"v_lshlrev_b32 v{gu+2*k}, 16, v{gs+k}")
        b(f"v_and_b32 v{gu+2*k+1}, 0xffff0000, v{gs+k}")
    b(f"v_and_b32 v{t+3}, 31, v{L}")
    w = 80
    for p in range(8):
        if p + 3 < 8: ld(p + 3)
        xs = xs0 + (p % 4) * 8
        acc = w
        for k in range(8):
            a0 = w + 2 + 2 * (k % 4)
            b(f"v_lshlrev_b32 v{a0}, 16, v{xs+k}")
            b(f"v_and_b32 v{a0+1}, 0xffff0000, v{xs+k}")
            b(f"v_pk_mul_f32 {v(a0,2)}, {v(a0,2)}, {v(gu+2*k,2)}")
            b(f"v_cvt_pk_bf16_f32 v{a0}, v{a0}, v{a0+1}")
            b(f"v_and_b32 v{a0+1}, 0xffff0000, v{a0}")
            b(f"v_lshlrev_b32 v{a0}, 16, v{a0}")
            if k == 0:
                b(f"v_add_f32 v{acc}, v{a0}, v{a0+1}")
            else:
                b(f"v_add_f32 v{a0}, v{a0}, v{a0+1}")
                b(f"v_add_f32 v{acc}, v{acc}, v{a0}")
        for r in (8, 4, 2, 1):
            b(f"v_add_f32_dpp v{acc}, v{acc}, v{acc} row_ror:{r} row_mask:0xf bank_mask:0xf")
        b(f"v_mov_b32 v{acc+1}, v{acc}")
        b(f"v_permlane16_swap_b32 v{acc}, v{acc+1}")
        b(f"v_add_f32 v{acc}, v{acc}, v{acc+1}")
        b(f"v_cvt_pk_bf16_f32 v{acc}, v{acc}, v{acc}")
        b(f"v_lshlrev_b32 v{acc}, 16, v{acc}")
        b(f"v_mul_f32 v{acc}, {LOG2E ^ 0x80000000:#x}, v{acc}")
        b(f"v_exp_f32 v{acc}, v{acc}")
        b(f"v_add_f32 v{acc}, 1.0, v{acc}")
        b(f"v_rcp_f32 v{acc}, v{acc}")
        b(f"v_cvt_pk_bf16_f32 v{acc}, v{acc}, v{acc}")
        d = w + 10 + 2 * (p % 2)
        b(f"v_lshlrev_b32 v{d}, 16, v{acc}")
        b(f"v_sub_f32 v{d+1}, 1.0, v{d}")
        b(f"v_cvt_pk_bf16_f32 v{d+1}, v{d+1}, v{d+1}")
        b(f"v_lshlrev_b32 v{d+1}, 16, v{d+1}")
        b(f"v_cmp_eq_u32 vcc, 0, v{t+3}")
        b(f"s_and_saveexec_b64 {s(sEX,2)}, vcc")
        b(f"global_store_dwordx2 v{t+2}, {v(d,2)}, s[34:35] sc0 sc1")
        b(f"s_mov_b64 exec, {s(sEX,2)}")
        b(f"v_add_u32 v{t+2}, 16, v{t+2}")

def k1_nonce():
    b = F()
    t = vU + 26
    b(f"v_add_u32 v{t}, 1, v{t}")
    b(f"v_or_b32 v{t+1}, 1, v{t+1}")
    b(f"v_mov_b32 v{t+2}, {NONCE_OFF}")
    b(f"v_mov_b32 v{t+3}, 0")
    g = B()
    g(f"s_or_b32 s{sSpin}, s2, s{sWave}")
    g(f"s_cmp_lg_u32 s{sSpin}, 0")
    g("s_cbranch_scc1 L_k1_nononce")
    g(f"global_store_dwordx2 v{t+2}, {v(t,2)}, s[34:35] sc0 sc1", 'nocount')
    g(f"global_store_dwordx2 v{t+3}, {v(t,2)}, s[32:33] sc0 sc1", 'nocount')
    g("L_k1_nononce:")
    b.group(g)
    return b

def k1_S():
    b = k1_S_setup()
    if int(opts.get('sprio', 1)): b("s_setprio 2")
    m = B()
    for i in range(8):
        m("s_waitcnt lgkmcnt(0)")
        m("s_barrier")
        po = (i % NSLOT) * SLOT
        hi = po >= 65536 - 1024
        if hi:
            for k in range(4):
                m(f"v_add_u32 v{vTmp+k}, 0x10000, v{gPX+k}")
        for k in range(4):
            if hi: m(f"ds_read_b128 {a(aSX+4*k,4)}, v{vTmp+k} offset:{po - 65536}")
            else: m(f"ds_read_b128 {a(aSX+4*k,4)}, v{gPX+k} offset:{po}")
        if hi:
            for k in range(4):
                m(f"v_add_u32 v{vTmp+k}, 0x10000, v{gPB+k}")
        for k in range(4):
            for mm in range(2):
                if hi: m(f"ds_read_b128 {a(aSB+8*k+4*mm,4)}, v{vTmp+k} offset:{po - 65536 + mm*1024}")
                else: m(f"ds_read_b128 {a(aSB+8*k+4*mm,4)}, v{gPB+k} offset:{po + mm*1024}")
        for k in range(4):
            for mm, acc in ((0, aRE), (1, aIM)):
                c = v(acc, 16) if (i, k) != (0, 0) else "0"
                m(f"v_mfma_f32_32x32x16_bf16 {v(acc,16)}, {a(aSX+4*k,4)}, {a(aSB+8*k+4*mm,4)}, {c}")
    f = F()
    f.ext(k1_nonce())
    f.ext(k1_params())
    f.ext(k1_setup_common())
    g = B()
    g(f"v_mov_b32 v{vTmp}, 0")
    g(f"global_load_dwordx2 {v(vNon,2)}, v{vTmp}, s[32:33] sc1")
    f.group(g)
    b.ext(merge(m.ops, f.ops, per=int(opts.get('per1', 5))))
    b("s_waitcnt vmcnt(0)")
    stamp(b, 2)
    s1 = flat(k1_scan1a().ops)
    cut = [j for j, o in enumerate(s1) if o.kind == 'ds'][0]
    if STAMP >= 2: stamp(b, 8)
    b.ext(s1[:cut])
    if STAMP >= 2: stamp(b, 9)
    b("s_barrier")
    b.ext(s1[cut:])
    if STAMP >= 2: stamp(b, 11)
    b("s_barrier")
    if STAMP >= 2: stamp(b, 12)
    b.ext(flat(k1_scan1b().ops))
    if STAMP >= 2: stamp(b, 13)
    b.ext(k1_publish())
    stamp(b, 3)
    b("s_barrier")
    b.ext(p2_S_csetup())
    b("s_barrier")
    b.ext(p2_S_cdma())
    stamp(b, 4)
    b.ext(k1_lookback())
    stamp(b, 5)
    b.ext(k1_final())
    b.ext(p2_S_creads())
    stamp(b, 6)
    return b

def cfma_sr(b, d, l, h, ure, uim, tmp):
    b(f"v_fma_f32 v{tmp}, v{l}, v{h}, v{ure}")
    b(f"v_fma_f32 v{tmp+1}, v{l}, v{h+1}, v{uim}")
    b(f"v_fma_f32 v{d}, -v{l+1}, v{h+1}, v{tmp}")
    b(f"v_fma_f32 v{d+1}, v{l+1}, v{h}, v{tmp+1}")

def k1_scan1a():
    b = F()
    tmp = vTmp
    R = lambda t: aRE + reg_of_t(t)
    I = lambda t: aIM + reg_of_t(t)
    b(f"v_mov_b32 v{vQ}, v{R(0)}\nv_mov_b32 v{vQ+1}, v{I(0)}")
    cur = vQ
    for t in range(1, 16):
        nxt = vQ if cur == vW_ else vW_
        cfma_sr(b, nxt, vL, cur, R(t), I(t), tmp)
        cur = nxt
    assert cur == vW_
    b(f"v_mov_b32 v{vPre}, v{cur}\nv_mov_b32 v{vPre+1}, v{cur+1}")
    b(f"v_mov_b32 v{vQ}, v{cur}\nv_mov_b32 v{vQ+1}, v{cur+1}")
    b(f"v_permlane32_swap_b32 v{vPre}, v{vQ}")
    b(f"v_permlane32_swap_b32 v{vPre+1}, v{vQ+1}")
    cfma_s(b, vW_, vL16, vPre, vQ, tmp)
    b(f"v_mul_f32 v{vPre}, v{vPre}, v{vHfm}\nv_mul_f32 v{vPre+1}, v{vPre+1}, v{vHfm}")
    t = vP
    b(f"v_and_b32 v{t+14}, 31, v{vLane}")
    b(f"v_lshlrev_b32 v{t+14}, 3, v{t+14}")
    b(f"v_add_u32 v{t+14}, {SCR}, v{t+14}")
    b(f"s_lshl_b32 s{sK0}, s{sWm}, 8")
    b(f"v_add_u32 v{t+15}, s{sK0}, v{t+14}")
    b(f"ds_write_b64 v{t+15}, {v(vW_,2)} offset:{SC}", "Wx")
    b.wait('lg', "Wx")
    return b

def k1_scan1b():
    b = F()
    t = vP; tmp = vTmp
    for w in range(4):
        b(f"ds_read_b64 {v(t+2*w,2)}, v{t+14} offset:{SC + 256*w}")
    W0, W1, W2, W3 = t, t+2, t+4, t+6
    Q2, Q3 = t+8, t+10
    cfma_s(b, Q2, vL32, W0, W1, tmp)
    cfma_s(b, Q3, vL32, Q2, W2, tmp)
    E = t + 12
    cfma_s(b, E, vL32, Q3, W3, tmp)
    for h in range(2):
        b(f"v_cndmask_b32 v{vQ+h}, 0, v{W0+h}, {s(sM1,2)}")
        b(f"v_cndmask_b32 v{vQ+h}, v{vQ+h}, v{Q2+h}, {s(sM2,2)}")
        b(f"v_cndmask_b32 v{vQ+h}, v{vQ+h}, v{Q3+h}, {s(sM3,2)}")
    cfma_s(b, vK, vF1, vQ, vPre, tmp)
    return b

def k1_publish():
    t = vP; E = t + 12; tmp = vTmp
    g = B()
    g(f"s_lshl_b32 s{sK0}, s{sR}, 13")
    g(f"v_add_u32 v{tmp}, s{sK0}, v{vLBa}")
    g(f"v_lshrrev_b32 v{tmp+1}, 3, v{vLane}")
    g(f"v_cmp_ne_u32 vcc, 0, v{vNon+1}")
    g("s_cbranch_vccnz L_k1_nonce_ok")
    g(f"s_mov_b32 s{sSpin}, 0")
    g("L_k1_nonce_retry:")
    g(f"v_mov_b32 v{tmp+2}, 0")
    g(f"global_load_dwordx2 {v(vNon,2)}, v{tmp+2}, s[32:33] sc1", 'nocount')
    g("s_waitcnt vmcnt(0)", 'nocount')
    g(f"s_add_u32 s{sSpin}, s{sSpin}, 1")
    g(f"s_cmp_gt_u32 s{sSpin}, 40000")
    g("s_cbranch_scc1 L_k1_nonce_ok")
    g(f"v_cmp_ne_u32 vcc, 0, v{vNon+1}")
    g("s_cbranch_vccz L_k1_nonce_retry")
    g("L_k1_nonce_ok:")
    g(f"v_mov_b32 v{E+2}, v{vNon}\nv_mov_b32 v{E+3}, v{vNon+1}")
    g(f"v_cmp_eq_u32 vcc, s{sWm}, v{tmp+1}")
    g(f"s_and_saveexec_b64 {s(sEX,2)}, vcc")
    g(f"global_store_dwordx4 v{tmp}, {v(E,4)}, s[34:35] sc0 sc1")
    g(f"s_mov_b64 exec, {s(sEX,2)}")
    return g

def k1_lookback():
    b = B(); tmp = vTmp; t = vP
    H = vW_
    def loads(tok):
        b(f"s_sub_u32 s{sK0}, s{sR}, 1")
        b(f"s_lshl_b32 s{sK0}, s{sK0}, 13")
        b(f"v_lshrrev_b32 v{t}, 5, v{vLane}")
        b(f"v_lshlrev_b32 v{t}, 13, v{t}")
        b(f"v_sub_u32 v{t}, s{sK0}, v{t}")
        b(f"v_add_u32 v{t}, v{vLBa}, v{t}")
        for mm in range(8):
            if mm: b(f"v_subrev_u32 v{t}, 16384, v{t}")
            b(f"v_max_i32 v{t+1}, v{t}, v{vLBa}")
            b(f"global_load_dwordx4 {v(vU+4*mm,4)}, v{t+1}, s[34:35] sc1", tok)
    b(f"s_cmp_eq_u32 s{sR}, 0")
    b("s_cbranch_scc1 L_k1_lb_zero")
    b(f"s_mov_b32 s{sSpin}, 0")
    b("L_k1_lb_again:")
    loads('nocount')
    b("s_waitcnt vmcnt(0)", 'nocount')
    b(f"s_mov_b64 {s(sEX,2)}, -1")
    for mm in range(8):
        b(f"s_cmp_le_u32 s{sR}, {2*mm}")
        b("s_cbranch_scc1 L_k1_lb_checked")
        b(f"s_cmp_ge_u32 s{sR}, {2*mm+2}")
        b(f"s_cselect_b32 s{sT1}, 0, -1")
        b(f"v_cmp_eq_u32 vcc, v{vU+4*mm+2}, v{vNon}")
        b(f"v_cmp_eq_u32 {s(sT2,2)}, v{vU+4*mm+3}, v{vNon+1}")
        b(f"s_and_b64 vcc, vcc, {s(sT2,2)}")
        b(f"s_or_b32 vcc_hi, vcc_hi, s{sT1}")
        b(f"s_and_b64 {s(sEX,2)}, {s(sEX,2)}, vcc")
    b("L_k1_lb_checked:")
    b(f"s_cmp_eq_u64 {s(sEX,2)}, -1")
    b("s_cbranch_scc1 L_k1_lb_ok")
    b(f"s_add_u32 s{sSpin}, s{sSpin}, 1")
    b(f"s_cmp_gt_u32 s{sSpin}, 40000")
    b("s_cbranch_scc1 L_k1_lb_ok")
    b(f"s_sleep {int(opts.get('lbsleep', 4))}")
    b("s_branch L_k1_lb_again")
    b("L_k1_lb_ok:")
    b(f"v_mov_b32 v{H}, 0\nv_mov_b32 v{H+1}, 0")
    for mm in range(7, -1, -1):
        b(f"s_cmp_le_u32 s{sR}, {2*mm}")
        b(f"s_cbranch_scc1 L_k1_lb_h{mm}")
        b(f"s_cmp_ge_u32 s{sR}, {2*mm+2}")
        b(f"s_cselect_b32 s{sT3}, -1, 0")
        b(f"s_mov_b32 s{sT2}, -1")
        b(f"v_cndmask_b32 v{vU+4*mm}, 0, v{vU+4*mm}, {s(sT2,2)}")
        b(f"v_cndmask_b32 v{vU+4*mm+1}, 0, v{vU+4*mm+1}, {s(sT2,2)}")
        b(f"v_fma_f32 v{tmp}, v{vL256}, v{H}, v{vU+4*mm}")
        b(f"v_fma_f32 v{tmp+1}, v{vL256}, v{H+1}, v{vU+4*mm+1}")
        b(f"v_fma_f32 v{tmp}, -v{vL256+1}, v{H+1}, v{tmp}")
        b(f"v_fma_f32 v{H+1}, v{vL256+1}, v{H}, v{tmp+1}")
        b(f"v_mov_b32 v{H}, v{tmp}")
        b(f"L_k1_lb_h{mm}:")
    b(f"v_mov_b32 v{vPre}, v{H}\nv_mov_b32 v{vPre+1}, v{H+1}")
    b(f"v_permlane32_swap_b32 v{H}, v{vPre}")
    b(f"v_permlane32_swap_b32 v{H+1}, v{vPre+1}")
    cfma_s(b, t, vL128, vPre, H, tmp)
    cfma_s(b, vQ, vG, t, vK, tmp)
    b("s_branch L_k1_lb_done")
    b("L_k1_lb_zero:")
    b(f"v_mov_b32 v{vQ}, v{vK}\nv_mov_b32 v{vQ+1}, v{vK+1}")
    b("L_k1_lb_done:")
    return b

def k1_final():
    b = B()
    tmp = vTmp
    prev = vQ
    for t in range(16):
        r = reg_of_t(t)
        u = vU + 2 * r
        cfma_sr(b, u, vL, prev, aRE + r, aIM + r, tmp)
        prev = u
    for r in range(16):
        u = vU + 2 * r
        tp = vP + 2 * (r % 4)
        b(f"v_mul_f32 v{tp}, v{vC2}, v{u}")
        b(f"v_mul_f32 v{tp+1}, v{vC2+1}, v{u}")
        b(f"v_fma_f32 v{u}, -v{vC2+1}, v{u+1}, v{tp}")
        b(f"v_fma_f32 v{u+1}, v{vC2}, v{u+1}, v{tp+1}")
    for k in range(8):
        b(f"v_cvt_pk_bf16_f32 v{aRE+k}, v{vU+4*k}, v{vU+4*k+2}")
    for h in range(2):
        b(f"ds_write_b128 v{vImgW}, {v(aRE+4*h,4)} offset:{IMG + h*16}", "img")
    for k in range(8):
        b(f"v_cvt_pk_bf16_f32 v{aRE+8+k}, -v{vU+4*k+1}, -v{vU+4*k+3}")
    for h in range(2):
        b(f"ds_write_b128 v{vImgW}, {v(aRE+8+4*h,4)} offset:{IMG + 2560 + h*16}", "img")
    b(f"s_lshl_b32 s{sT2}, s{sS}, 12")
    b(f"s_add_u32 s{sT1}, s{sHFb}, s{sT2}")
    b.wait('lg', "img")
    for m in range(2):
        for kk in range(2):
            r = aIM + (2*m + kk) * 4
            for rd in range(2):
                b(f"ds_read_b64_tr_b16 {v(r+2*rd,2)}, v{vImgR} offset:{IMG + (m*32 + 16*kk + 4*rd)*80}")
    for m in range(2):
        for kk in range(2):
            r = aIM + (2*m + kk) * 4
            b(f"s_add_u32 s{sT2}, s{sT1}, {(2*m+kk)*1024}")
            b(f"buffer_store_dwordx4 {v(r,4)}, v{vL16o}, {s(sHF,4)}, s{sT2} offen {STF}")
    return b


pA, pC1, pC2 = 36, 40, 44
pH, pN, pK0, pLw, pOff = 72, 73, 74, 75, 76
pNib = 84
CST = 98304
vCe, vCo, vPp = 2, 3, 4
vH0g, vH1g, vH0k, vH1k = 2, 3, 4, 5
vTau, vSg, vSk = 8, 10, 12
vWrq = 16
PITCH = 256

def p2_ids(b):
    b(f"s_lshr_b32 s{pH}, s{sS}, 3")
    b(f"s_and_b32 s{pN}, s{sS}, 7")

def p2_S_csetup():
    b = B(); L = vLane; t = vP
    p2_ids(b)
    srd(b, pC1, 14, 512*1024)
    srd(b, pC2, 16, 512*1024)
    b(f"v_and_b32 v{t}, 7, v{L}")
    b(f"v_lshrrev_b32 v{t+1}, 4, v{L}")
    b(f"v_xor_b32 v{t}, v{t}, v{t+1}")
    b(f"v_lshlrev_b32 v{t}, 4, v{t}")
    b(f"v_lshrrev_b32 v{t+1}, 3, v{L}")
    b(f"v_lshlrev_b32 v{t+1}, 10, v{t+1}")
    b(f"v_add_u32 v{vCe}, v{t}, v{t+1}")
    b(f"v_xor_b32 v{vCo}, 64, v{vCe}")
    b(f"s_lshl_b32 s{pOff}, s{pN}, 16")
    b(f"s_lshl_b32 s{sT0}, s{pH}, 9")
    b(f"s_add_u32 s{pOff}, s{pOff}, s{sT0}")
    b(f"s_lshl_b32 s{sT0}, s{sWm}, 7")
    b(f"s_add_u32 s{pOff}, s{pOff}, s{sT0}")
    b(f"s_lshl_b32 s{pLw}, s{sWm}, 14")
    b(f"s_add_u32 s{pLw}, s{pLw}, {CST}")
    b(f"v_and_b32 v{t}, 31, v{L}")
    b(f"v_lshlrev_b32 v{t}, 7, v{t}")
    b(f"v_add_u32 v{t}, s{pLw}, v{t}")
    b(f"v_lshrrev_b32 v{t+1}, 5, v{L}")
    b(f"v_bfe_u32 v{t+2}, v{L}, 1, 3")
    b(f"v_xor_b32 v{t+2}, v{t+1}, v{t+2}")
    for k in range(4):
        b(f"v_xor_b32 v{t+1}, {2*k}, v{t+2}")
        b(f"v_lshl_add_u32 v{vPp+k}, v{t+1}, 4, v{t}")
    return b

def p2_S_cdma():
    b = B()
    for m in range(2):
        for aa in range(8):
            b(f"s_add_u32 m0, s{pLw}, {m*8192 + aa*1024}")
            b(f"s_add_u32 s{sT0}, s{pOff}, {aa*8192}")
            b(f"buffer_load_dwordx4 v{vCe if aa % 2 == 0 else vCo}, {s(pC1 if m == 0 else pC2,4)}, s{sT0} offen lds", "cst")
    return b

def p2_S_creads():
    b = B()
    b.wait('vm', "cst")
    for j in range(8):
        m = (j >> 1) & 1; ksp = 2 * (j >> 2) + (j & 1)
        for aa in range(2):
            b(f"ds_read_b128 {a(8*j+4*aa,4)}, v{vPp+ksp} offset:{m*8192 + aa*4096}")
    return b

def p2_common(b, role):
    L = vLane
    srd(b, pA, 34, WS_USED)
    b(f"s_xor_b32 s{sT0}, s{pH}, 1")
    b(f"s_lshl_b32 s{sT0}, s{sT0}, 1")
    b(f"s_lshl_b32 s{sT1}, s{sR}, 2")
    b(f"s_add_u32 s{sT0}, s{sT0}, s{sT1}")
    b(f"s_mul_i32 s{sT0}, s{sT0}, {176*1024}")
    b(f"v_lshlrev_b32 v6, 4, v{L}")
    b(f"v_add_u32 v{vH0g}, s{sT0}, v6")
    b(f"v_add_u32 v{vH1g}, {176*1024}, v{vH0g}")
    b(f"s_lshl_b32 s{sT0}, s{pH}, 2")
    b(f"s_sub_u32 s{sT0}, s{sT0}, 2")
    b(f"s_mul_i32 s{sT0}, s{sT0}, {176*1024}")
    b(f"v_add_u32 v{vH0k}, s{sT0}, v{vH0g}")
    b(f"v_add_u32 v{vH1k}, s{sT0}, v{vH1g}")
    b(f"s_lshl_b32 s{pK0}, s{pH}, 2")
    b(f"s_add_u32 s{pK0}, s{pK0}, s{sWm}")
    if role == 0:
        b(f"s_lshl_b32 s{pK0}, s{pK0}, 13")
    else:
        b(f"s_mul_i32 s{pK0}, s{pK0}, {14*1024}")
        b(f"s_add_u32 s{pK0}, s{pK0}, {64*1024}")

def p2_common2(b, role):
    L = vLane
    b(f"v_bfe_u32 v6, v{L}, 3, 2")
    b(f"v_and_b32 v7, 7, v{L}")
    b(f"v_lshl_add_u32 v{vTau}, v7, 2, v6")
    b(f"s_xor_b32 s{sT0}, s{pH}, 1")
    b(f"s_lshl_b32 s{sT0}, s{sT0}, 6")
    b(f"s_lshl_b32 s{sT1}, s{sR}, 7")
    b(f"s_add_u32 s{sT0}, s{sT0}, s{sT1}")
    b(f"v_add_u32 v6, s{sT0}, v{vTau}")
    b("v_lshlrev_b32 v6, 3, v6")
    b(f"v_add_u32 v6, {G_OFF + 4*role}, v6")
    b(f"global_load_dword v{vSg}, v6, s[34:35] sc1")
    b(f"global_load_dword v{vSg+1}, v6, s[34:35] offset:256 sc1")
    b(f"s_lshl_b32 s{sT0}, s{pH}, 7")
    b(f"s_sub_u32 s{sT0}, s{sT0}, 64")
    b(f"s_lshl_b32 s{sT0}, s{sT0}, 3")
    b(f"v_add_u32 v6, s{sT0}, v6")
    b(f"global_load_dword v{vSk}, v6, s[34:35] sc1")
    b(f"global_load_dword v{vSk+1}, v6, s[34:35] offset:256 sc1")
    b(f"s_lshl_b32 s{sT0}, s{sWm}, 14")
    if role == 0: b(f"s_add_u32 s{sT0}, s{sT0}, {CST}")
    b(f"v_lshlrev_b32 v9, 8, v{vTau}")
    b(f"v_add_u32 v9, s{sT0}, v9")
    b(f"v_lshrrev_b32 v6, 5, v{L}")
    b(f"v_and_b32 v7, 7, v{L}")
    b("v_xor_b32 v6, v6, v7")
    for q in range(4):
        b(f"v_xor_b32 v7, {2*q}, v6")
        b(f"v_lshl_add_u32 v{vWrq+q}, v7, 4, v9")

def p2_rwrite(b, acc, sc):
    for aa in range(2):
        for bb in range(2):
            S = acc + (aa*2+bb)*16
            g = sc + bb
            gp = g & ~1; o = g & 1
            if opts.get('rw', 'scalar') == 'pk':
                for p in range(8):
                    b(f"v_pk_mul_f32 {v(S+2*p,2)}, {v(S+2*p,2)}, {v(gp,2)} op_sel:[0,{o}] op_sel_hi:[1,{o}]")
            else:
                for p in range(16):
                    b(f"v_mul_f32 v{S+p}, v{g}, v{S+p}")
            for q in range(4):
                b(f"ds_write_b128 v{vWrq+q}, {v(S+4*q,4)} offset:{bb*32*PITCH + aa*128}", "red")
    b.wait('lg', "red")

def p2_F():
    b = B(); L = vLane
    b("L_p2_F:")
    b("s_waitcnt vmcnt(0) lgkmcnt(0)")
    b("s_barrier")
    stamp(b, 7)
    p2_ids(b)
    srd(b, pC1, 26, 1792*1024)
    vWa, vWb, vTp = 6, 7, 20
    t = 24
    b(f"v_bfe_u32 v{t}, v{L}, 4, 1")
    b(f"v_lshlrev_b32 v{t}, 2, v{t}")
    b(f"v_and_b32 v{t+1}, 7, v{L}")
    b(f"v_xor_b32 v{t}, v{t}, v{t+1}")
    b(f"v_lshlrev_b32 v{t}, 4, v{t}")
    b(f"v_lshrrev_b32 v{t+1}, 3, v{L}")
    b(f"v_lshlrev_b32 v{t+1}, 10, v{t+1}")
    b(f"v_add_u32 v{vWa}, v{t}, v{t+1}")
    b(f"v_add_u32 v{vWb}, {8192 - 1024}, v{vWa}")
    b(f"s_lshl_b32 s{sT0}, s{pH}, 2")
    b(f"s_add_u32 s{sT0}, s{sT0}, s{sWm}")
    b(f"s_mul_i32 s{pOff}, s{sT0}, {14*16*1024}")
    b(f"s_lshl_b32 s{sT0}, s{pN}, 7")
    b(f"s_add_u32 s{pOff}, s{pOff}, s{sT0}")
    b(f"s_lshl_b32 s{pLw}, s{sWm}, 14")
    def wdma(i):
        b(f"s_add_u32 m0, s{pLw}, {(i % 8)*2048}")
        b(f"s_add_u32 s{sT1}, s{pOff}, {i*16*1024}")
        b(f"buffer_load_dwordx4 v{vWa}, {s(pC1,4)}, s{sT1} offen lds", f"f{i}")
        b(f"buffer_load_dwordx4 v{vWb}, {s(pC1,4)}, s{sT1} offen offset:1024 lds", f"f{i}")
    NPRE = int(opts.get('npre', 8))
    for i in range(NPRE): wdma(i)
    tr_pattern(b, vTp, 4, t)
    b(f"v_add_u32 v{vTp}, s{pLw}, v{vTp}")
    b(f"v_add_u32 v{vTp+1}, s{pLw}, v{vTp+1}")
    b(f"v_mov_b32 v22, v{vWa}\nv_mov_b32 v23, v{vWb}")
    vWa, vWb = 22, 23
    p2_common(b, 1)
    stamp(b, 24)
    b("s_barrier")
    stamp(b, 25)
    NSF, D = 14, 7
    def hreg(idx, k):
        sl = idx % D
        return v(24 + sl*8 + 4*k, 4) if sl < 5 else a(112 + (sl-5)*8 + 4*k, 4)
    def hload(idx):
        ps, i = divmod(idx, NSF)
        h0, h1 = (vH0g, vH1g) if ps == 0 else (vH0k, vH1k)
        b(f"s_add_u32 s{sT0}, s{pK0}, {i*1024}")
        b(f"buffer_load_dwordx4 {hreg(idx,0)}, v{h0}, {s(pA,4)}, s{sT0} offen sc1")
        b(f"buffer_load_dwordx4 {hreg(idx,1)}, v{h1}, {s(pA,4)}, s{sT0} offen sc1")
    def wreads(i):
        b.wait('vm', f"f{i}")
        for aa in range(2):
            for rd in range(2):
                b(f"ds_read_b64_tr_b16 {a(8*i+4*aa+2*rd,2)}, v{vTp+aa} offset:{(i % 8)*2048 + rd*1024}", f"wr{i}")
    hload(0)
    rest = list(range(NPRE, 8))
    if rest: wdma(rest.pop(0))
    hload(1)
    if rest: wdma(rest.pop(0))
    wreads(0); wreads(1)
    hload(2)
    if rest: wdma(rest.pop(0))
    hload(3)
    for i in rest: wdma(i)
    DH1 = int(opts.get('dh1', 7))
    p2_common2(b, 1)
    for k in range(4, DH1): hload(k)
    stamp(b, 26)
    acc = 64
    def step(idx):
        ps, i = divmod(idx, NSF)
        mf = [f"v_mfma_f32_32x32x16_bf16 {v(acc+(aa*2+bb)*16,16)}, {a(8*i+4*aa,4)}, {hreg(idx,bb)}, {v(acc+(aa*2+bb)*16,16) if i else 0}" for aa in range(2) for bb in range(2)]
        b.wait('lg', f"wr{i}")
        b(mf[0])
        if 8 + i < 14: wdma(8 + i)
        b(mf[1])
        if i + 2 < 14: wreads(i + 2)
        b(mf[2])
        n0 = len(b.ops)
        KP = int(opts.get('kp', 1))
        tg = [i + DH1] if i + DH1 < NSF else ([NSF + (i - (NSF - KP))] if i >= NSF - KP else [])
        for t_ in tg: hload(t_)
        ld = b.ops[n0:]; del b.ops[n0:]
        cut = [j for j, o in enumerate(ld) if o.kind == 'vmem']
        if cut:
            b.ext(ld[:cut[0] + 1]); b(mf[3]); b.ext(ld[cut[0] + 1:])
        else: b(mf[3])
        if i == NSF - 1 - DH1: b("s_barrier")
    for idx in range(NSF): step(idx)
    stamp(b, 27)
    n0 = len(b.ops); p2_rwrite(b, acc, vSg); rw = b.ops[n0:]; del b.ops[n0:]
    n0 = len(b.ops)
    for k in range(int(opts.get('kp', 1)), 7): hload(NSF + k)
    hl = chunks_of(b.ops[n0:]); del b.ops[n0:]
    body, tail = rw[:-1], rw[-1:]
    gap = max(1, len(body) // (len(hl) + 1)); outp = []
    for j, o in enumerate(body):
        outp.append(o)
        if (j + 1) % gap == 0 and hl: outp.extend(hl.pop(0))
    for c in hl: outp.extend(c)
    b.ext(outp + tail)
    b("s_barrier")
    def step2(idx):
        i = idx - NSF
        mf = [f"v_mfma_f32_32x32x16_bf16 {v(acc+(aa*2+bb)*16,16)}, {a(8*i+4*aa,4)}, {hreg(idx,bb)}, {v(acc+(aa*2+bb)*16,16) if i else 0}" for aa in range(2) for bb in range(2)]
        b(mf[0]); b(mf[1]); b(mf[2])
        n0 = len(b.ops)
        if idx + D < 2 * NSF: hload(idx + D)
        ld = b.ops[n0:]; del b.ops[n0:]
        cut = [j for j, o in enumerate(ld) if o.kind == 'vmem']
        if cut:
            b.ext(ld[:cut[0] + 1]); b(mf[3]); b.ext(ld[cut[0] + 1:])
        else: b(mf[3])
    for idx in range(NSF, 2 * NSF):
        step2(idx)
        if idx == NSF + 3: b("s_barrier")
    stamp(b, 28)
    p2_rwrite(b, acc, vSk)
    b("s_barrier")
    stamp(b, 29)
    return b

def p2_S():
    b = B(); L = vLane
    b("s_waitcnt vmcnt(0) lgkmcnt(0)")
    b("s_barrier")
    stamp(b, 7)
    b(f"s_cmp_lg_u32 s{sWm}, 0")
    b("s_cbranch_scc1 L_p2_noflag")
    b(f"s_lshl_b32 s{sT0}, s{sR}, 7")
    b(f"s_add_u32 s{sT0}, s{sT0}, {FLG_OFF}")
    b(f"s_lshl_b32 s{sT1}, s{sS}, 3")
    b(f"s_add_u32 s{sT1}, s{sT1}, s{sT0}")
    b(f"v_mov_b32 v6, s{sT1}")
    b(f"global_store_dwordx2 v6, {v(vNon,2)}, s[34:35] sc0 sc1", 'nocount')
    b(f"v_and_b32 v6, 15, v{L}")
    b("v_lshlrev_b32 v6, 3, v6")
    b(f"v_add_u32 v6, s{sT0}, v6")
    b(f"s_mov_b32 s{sSpin}, 0")
    b("L_p2_poll:")
    b(f"global_load_dwordx2 v[24:25], v6, s[34:35] sc1", 'nocount')
    b("s_waitcnt vmcnt(0)", 'nocount')
    b(f"v_cmp_eq_u32 vcc, v24, v{vNon}")
    b(f"v_cmp_eq_u32 {s(sT2,2)}, v25, v{vNon+1}")
    b(f"s_and_b64 vcc, vcc, {s(sT2,2)}")
    b("s_cmp_eq_u64 vcc, -1")
    b("s_cbranch_scc1 L_p2_noflag")
    b(f"s_add_u32 s{sSpin}, s{sSpin}, 1")
    b(f"s_cmp_gt_u32 s{sSpin}, 100000")
    b("s_cbranch_scc1 L_p2_noflag")
    b("s_sleep 1")
    b("s_branch L_p2_poll")
    b("L_p2_noflag:")
    b(f"v_readfirstlane_b32 s{sT0}, v{vNon}")
    for j in range(4):
        b(f"s_bfe_u32 s{pNib+j}, s{sT0}, {(4 << 16) | (4*j):#x}")
    p2_common(b, 0)
    stamp(b, 24)
    b("s_barrier")
    stamp(b, 25)
    def hreg(j, k): return a(64 + 8*j + 4*k, 4)
    def hload(j, ps):
        h0, h1 = (vH0g, vH1g) if ps == 0 else (vH0k, vH1k)
        b(f"s_add_u32 s{sT0}, s{pK0}, {j*1024}")
        b(f"buffer_load_dwordx4 {hreg(j,0)}, v{h0}, {s(pA,4)}, s{sT0} offen sc1")
        b(f"buffer_load_dwordx4 {hreg(j,1)}, v{h1}, {s(pA,4)}, s{sT0} offen sc1")
    DS1 = int(opts.get('ds1', 4))
    for j in range(DS1): hload(j, 0)
    p2_common2(b, 0)
    vRE, vRO, vREh, vROh = 20, 21, 22, 23
    b("v_lshrrev_b32 v6, 4, v0")
    b("v_and_b32 v7, 15, v0")
    b("v_lshrrev_b32 v9, 6, v0")
    b("v_xor_b32 v9, v9, v7")
    b(f"v_lshlrev_b32 v{vRE}, 8, v6")
    b(f"v_lshl_add_u32 v{vRE}, v9, 4, v{vRE}")
    b(f"v_xor_b32 v{vRO}, 64, v{vRE}")
    b(f"v_add_u32 v{vREh}, {CST}, v{vRE}")
    b(f"v_add_u32 v{vROh}, {CST}, v{vRO}")
    stamp(b, 26)
    acc = 64
    def mf(j): return [f"v_mfma_f32_32x32x16_bf16 {v(acc+(aa*2+bb)*16,16)}, {a(8*j+4*aa,4)}, {hreg(j,bb)}, {v(acc+(aa*2+bb)*16,16) if j else 0}" for aa in range(2) for bb in range(2)]
    for j in range(8):
        for t_ in mf(j): b(t_)
        if j + DS1 < 8: hload(j + DS1, 0)
    stamp(b, 27)
    p2_rwrite(b, acc, vSg)
    b("s_barrier")
    for j in range(8): hload(j, 1)
    for j in range(8):
        for t_ in mf(j): b(t_)
    stamp(b, 28)
    b("s_barrier")
    def padd(d, x, y, pk):
        if pk: b(f"v_pk_add_f32 {v(d,2)}, {v(x,2)}, {v(y,2)}")
        else:
            b(f"v_add_f32 v{d}, v{x}, v{y}"); b(f"v_add_f32 v{d+1}, v{x+1}, v{y+1}")
    def reduce(p, dst, pk):
        T = 24
        for w in range(8):
            base = (vRE if p % 2 == 0 else vRO) if w < 4 else (vREh if p % 2 == 0 else vROh)
            b(f"ds_read_b128 {v(T+4*w,4)}, v{base} offset:{(w % 4)*16384 + p*4096}")
        for w in range(0, 8, 2):
            padd(T+4*w, T+4*w, T+4*w+4, pk); padd(T+4*w+2, T+4*w+2, T+4*w+6, pk)
        for w in (0, 4):
            padd(T+4*w, T+4*w, T+4*w+8, pk); padd(T+4*w+2, T+4*w+2, T+4*w+10, pk)
        padd(dst, T, T+16, pk); padd(dst+2, T+2, T+18, pk)
    b("v_lshlrev_b32 v6, 4, v0")
    b(f"s_lshl_b32 s{sT0}, s2, 14")
    b(f"s_add_u32 s{sT0}, s{sT0}, {XCH_OFF}")
    b(f"v_add_u32 v6, s{sT0}, v6")
    for p in range(4):
        d = 56 + 4 * (p % 2)
        reduce(p, d, False)
        for e in range(4): b(f"v_and_or_b32 v{d+e}, v{d+e}, -16, s{pNib+e}")
        if p: b(f"v_add_u32 v6, 4096, v6")
        b(f"global_store_dwordx4 v6, {v(d,4)}, s[34:35] sc0 sc1")
    b("s_barrier")
    p2_rwrite(b, acc, vSk)
    PR_, BI, XV = 64, 80, 96
    b("v_lshlrev_b32 v6, 4, v0")
    b(f"s_xor_b32 s{sT1}, s2, 1")
    b(f"s_lshl_b32 s{sT0}, s{sT1}, 14")
    b(f"s_add_u32 s{sT0}, s{sT0}, {XCH_OFF}")
    b(f"v_add_u32 v9, s{sT0}, v6")
    def prt(tok):
        for p in range(4):
            if p: b(f"v_add_u32 v7, {p*4096}, v9")
            b(f"global_load_dwordx4 {v(PR_+4*p,4)}, v{7 if p else 9}, s[34:35] sc1", tok)
    prt("prt")
    b("v_lshrrev_b32 v6, 4, v0")
    b("v_and_b32 v8, 15, v0")
    b(f"s_lshl_b32 s{sT0}, s{sR}, 7")
    b(f"s_lshl_b32 s{sT1}, s{pH}, 6")
    b(f"s_add_u32 s{sT0}, s{sT0}, s{sT1}")
    b(f"v_add_u32 v6, s{sT0}, v6")
    b(f"s_lshl_b32 s{sT1}, s{pN}, 7")
    b("v_lshlrev_b32 v2, 10, v6")
    b("v_lshl_add_u32 v2, v8, 3, v2")
    b(f"v_add_u32 v2, s{sT1}, v2")
    for p in range(4):
        if p: b(f"v_add_u32 v2, {16*1024}, v2")
        b(f"global_load_dwordx2 {v(XV+2*p,2)}, v2, s[4:5]")
    b("v_lshlrev_b32 v2, 3, v8")
    b(f"v_add_u32 v2, s{sT1}, v2")
    b(f"global_load_dwordx2 {v(XV+8,2)}, v2, s[20:21]")
    b("v_lshlrev_b32 v2, 3, v6")
    b(f"v_add_u32 v2, {G_OFF}, v2")
    for p in range(4):
        b(f"global_load_dword v{XV+10+p}, v2, s[34:35] offset:{p*128} sc1")
    b(f"s_lshl_b32 s{sT1}, s{pN}, 8")
    b("v_lshlrev_b32 v2, 11, v6")
    b("v_lshl_add_u32 v2, v8, 4, v2")
    b(f"v_add_u32 v2, s{sT1}, v2")
    DS_ = XV + 14
    b(f"v_lshlrev_b32 v{DS_}, 16, v{XV+8}\nv_and_b32 v{DS_+1}, 0xffff0000, v{XV+8}\nv_lshlrev_b32 v{DS_+2}, 16, v{XV+9}\nv_and_b32 v{DS_+3}, 0xffff0000, v{XV+9}")
    for p in range(4):
        xs = XV + 2*p; tp = BI + 4*p
        b(f"v_lshlrev_b32 v{tp}, 16, v{xs}\nv_and_b32 v{tp+1}, 0xffff0000, v{xs}\nv_lshlrev_b32 v{tp+2}, 16, v{xs+1}\nv_and_b32 v{tp+3}, 0xffff0000, v{xs+1}")
        for e in range(4): b(f"v_mul_f32 v{tp+e}, v{tp+e}, v{DS_+e}")
        b(f"v_cvt_pk_bf16_f32 v56, v{tp}, v{tp+1}")
        b(f"v_cvt_pk_bf16_f32 v57, v{tp+2}, v{tp+3}")
        b(f"v_lshlrev_b32 v{tp}, 16, v56\nv_and_b32 v{tp+1}, 0xffff0000, v56\nv_lshlrev_b32 v{tp+2}, 16, v57\nv_and_b32 v{tp+3}, 0xffff0000, v57")
        for e in range(4): b(f"v_mul_f32 v{tp+e}, v{XV+10+p}, v{tp+e}")
    b.wait('vm', "prt")
    b(f"s_mov_b32 s{sSpin}, 0")
    b("L_p2_chk:")
    b("v_mov_b32 v58, 0")
    for u in range(16):
        b(f"v_xor_b32 v{PR_+u}, s{pNib + (u % 4)}, v{PR_+u}")
        b(f"v_and_or_b32 v58, v{PR_+u}, 15, v58")
    b("v_cmp_eq_u32 vcc, 0, v58")
    b("s_cmp_eq_u64 vcc, -1")
    b("s_cbranch_scc1 L_p2_ok")
    b(f"s_add_u32 s{sSpin}, s{sSpin}, 1")
    b(f"s_cmp_gt_u32 s{sSpin}, 100000")
    b("s_cbranch_scc1 L_p2_ok")
    prt('nocount')
    b("s_waitcnt vmcnt(0)", 'nocount')
    b("s_branch L_p2_chk")
    b("L_p2_ok:")
    for u in range(16): b(f"v_add_f32 v{BI+u}, v{BI+u}, v{PR_+u}")
    stamp(b, 29)
    b("s_barrier")
    for p in range(4):
        d = 56 + 4 * (p % 2)
        reduce(p, d, True)
        b(f"v_pk_add_f32 {v(d,2)}, {v(d,2)}, {v(BI+4*p,2)}")
        b(f"v_pk_add_f32 {v(d+2,2)}, {v(d+2,2)}, {v(BI+4*p+2,2)}")
        if p: b(f"v_add_u32 v2, {16*2048}, v2")
        b(f"global_store_dwordx4 v2, {v(d,4)}, s[30:31]")
    stamp(b, 30)
    return b

def gen_k1():
    global STV
    STV = 15
    pro = k1_head()
    S = k1_S()
    S.ext(p2_S())
    stamp_end(S, sWave, "s[34:35]", 0x2000000, vLane, 3, 14)
    S("s_endpgm")
    Fm = B(); Fm("L_k1_F:")
    Fm(f"s_cmp_ge_u32 s{sS}, 14")
    Fm("s_cbranch_scc1 L_k1_Fn")
    f1 = k1_F(True)
    f1("s_branch L_p2_F")
    Fn = B(); Fn("L_k1_Fn:")
    f2 = k1_F(False)
    p2f = p2_F()
    stamp_end(p2f, sWave, "s[34:35]", 0x2000000, vLane, 3, 14)
    p2f("L_k1_end:")
    p2f("s_endpgm")
    def path(prefix, body, label=None):
        allops = insert_waits(copy.deepcopy(prefix) + body)
        if label:
            idx = [i for i, o in enumerate(allops) if o.text == label][0]
            allops = allops[idx:]
        return insert_hazard_nops(allops)
    out = path([], pro.ops + S.ops)
    out += path(pro.ops, Fm.ops + f1.ops, "L_k1_F:")
    out += path(pro.ops + Fm.ops, Fn.ops + f2.ops, "L_k1_Fn:")
    out += path([], p2f.ops)
    return out

def gen_k2():
    global STV
    STV = 9
    b = B()
    D = 15
    DW = int(opts.get('k2dw', 5))
    sWv, sH, sMt, sN = 40, 41, 42, 43
    sA, sCR, sCI, sW2 = 44, 48, 76, 80
    t0, t1, t2 = 52, 53, 54
    sS0, sF0 = 56, 57
    sLw = 58
    sCoff, sWoff2 = 59, 62
    vH0, vH1 = 4, 5
    vCe, vCo, vWa, vWb = 2, 3, 60, 61
    vPp, vTp = 48, 52
    accS, accF, vBuf = 64, 128, 192
    vNon2 = 14
    vTau = 8
    vG1, vG2 = 10, 12
    PITCH = 256
    LRED = 0
    LSTG = 65536
    code_prefetch(b, K2, "L_code_end", 2, "k2", 6, 63)
    dbgt_begin(b)
    stamp_begin(b)
    b("s_load_dwordx2 s[18:19], s[0:1], 112")
    b("s_load_dwordx2 s[4:5], s[0:1], 0")
    b("s_load_dwordx4 s[12:15], s[0:1], 40")
    b("s_load_dwordx2 s[6:7], s[0:1], 64")
    b("s_load_dwordx2 s[16:17], s[0:1], 88")
    b("s_load_dwordx2 s[8:9], s[0:1], 104")
    b("s_load_dwordx2 s[10:11], s[0:1], 120")
    b("s_cmp_ge_u32 s2, 256")
    b("s_cbranch_scc1 L_k2_end")
    b("v_lshrrev_b32 v6, 6, v0")
    b("v_and_b32 v1, 63, v0")
    b(f"v_readfirstlane_b32 s{sWv}, v6")
    b(f"s_and_b32 s{sH}, s2, 1")
    b(f"s_bfe_u32 s{t0}, s2, 0x20001")
    b(f"s_lshr_b32 s{t1}, s2, 3")
    b(f"s_and_b32 s{sMt}, s{t1}, 3")
    b(f"s_lshl_b32 s{t0}, s{t0}, 2")
    b(f"s_add_u32 s{sMt}, s{sMt}, s{t0}")
    b(f"s_lshr_b32 s{sN}, s{t1}, 2")
    b("v_and_b32 v6, 7, v1")
    b("v_lshrrev_b32 v7, 4, v1")
    b("v_xor_b32 v6, v6, v7")
    b("v_lshlrev_b32 v6, 4, v6")
    b("v_lshrrev_b32 v7, 3, v1")
    b("v_lshlrev_b32 v7, 10, v7")
    b(f"v_add_u32 v{vCe}, v6, v7")
    b(f"v_xor_b32 v{vCo}, 64, v{vCe}")
    b("v_bfe_u32 v6, v1, 4, 1")
    b("v_lshlrev_b32 v6, 2, v6")
    b("v_and_b32 v29, 7, v1")
    b("v_xor_b32 v6, v6, v29")
    b("v_lshlrev_b32 v6, 4, v6")
    b(f"v_add_u32 v{vWa}, v6, v7")
    b(f"v_add_u32 v{vWb}, {8192 - 1024}, v{vWa}")
    b(f"s_lshl_b32 s{sCoff}, s{sN}, 16")
    b(f"s_lshl_b32 s{t0}, s{sH}, 9")
    b(f"s_add_u32 s{sCoff}, s{sCoff}, s{t0}")
    b(f"s_lshl_b32 s{t0}, s{sWv}, 7")
    b(f"s_add_u32 s{sCoff}, s{sCoff}, s{t0}")
    b(f"s_lshl_b32 s{t0}, s{sH}, 2")
    b(f"s_add_u32 s{t0}, s{t0}, s{sWv}")
    b(f"s_mul_i32 s{sWoff2}, s{t0}, {14*16*1024}")
    b(f"s_lshl_b32 s{t0}, s{sN}, 7")
    b(f"s_add_u32 s{sWoff2}, s{sWoff2}, s{t0}")
    b(f"s_mul_i32 s{sLw}, s{sWv}, 24576")
    b(f"s_add_u32 s{sLw}, s{sLw}, {LSTG}")
    b(f"s_xor_b32 s{t0}, s{sH}, 1")
    b(f"s_lshl_b32 s{t0}, s{t0}, 1")
    b(f"s_lshl_b32 s{t1}, s{sMt}, 2")
    b(f"s_add_u32 s{t0}, s{t0}, s{t1}")
    b(f"s_mul_i32 s{t0}, s{t0}, {176*1024}")
    b("v_lshlrev_b32 v6, 4, v1")
    b(f"v_add_u32 v{vH0}, s{t0}, v6")
    b(f"v_add_u32 v{vH1}, {176*1024}, v{vH0}")
    b(f"s_lshl_b32 s{sS0}, s{sH}, 2")
    b(f"s_add_u32 s{sS0}, s{sS0}, s{sWv}")
    b(f"s_lshl_b32 s{sS0}, s{sS0}, 13")
    b(f"s_lshl_b32 s{sF0}, s{sH}, 2")
    b(f"s_add_u32 s{sF0}, s{sF0}, s{sWv}")
    b(f"s_mul_i32 s{sF0}, s{sF0}, {14*1024}")
    b(f"s_add_u32 s{sF0}, s{sF0}, {64*1024}")
    b("s_waitcnt lgkmcnt(0)")
    srd(b, sA, 10, WS_USED)
    srd(b, sCR, 12, 512*1024)
    srd(b, sCI, 14, 512*1024)
    srd(b, sW2, 16, 1792*1024)
    steps = [('S', i) for i in range(8)] + [('F', i) for i in range(14)]
    NS = len(steps)
    seq = [(1, st) for st in range(NS)] + [(2, st) for st in range(NS)]
    def hreg(idx, k):
        sl = idx % D
        if sl < 8: return v(vBuf + sl * 8 + k * 4, 4)
        return a(200 + (sl - 8) * 8 + k * 4, 4)
    def dma_c(m):
        for aa in range(8):
            b(f"s_add_u32 m0, s{sLw}, {m*8192 + aa*1024}")
            b(f"s_add_u32 s{t2}, s{sCoff}, {aa*8192}")
            b(f"buffer_load_dwordx4 v{vCe if aa % 2 == 0 else vCo}, {s(sCR if m == 0 else sCI,4)}, s{t2} offen lds", f"c{m}")
    def wslot(i):
        if i < 4: return 16384 + i * 2048
        if i < 12: return (i - 4) * 2048
        return 16384 + (i - 12) * 2048
    def dma_f(i):
        b(f"s_add_u32 m0, s{sLw}, {wslot(i)}")
        b(f"s_add_u32 s{t2}, s{sWoff2}, {i*16*1024}")
        b(f"buffer_load_dwordx4 v{vWa}, {s(sW2,4)}, s{t2} offen lds", f"f{i}")
        b(f"buffer_load_dwordx4 v{vWb}, {s(sW2,4)}, s{t2} offen offset:1024 lds", f"f{i}")
    def hloads(idx):
        ps, st = seq[idx]
        kind, i = steps[st]
        sb = sS0 if kind == 'S' else sF0
        if ps == 2 and st == 0:
            b(f"s_lshl_b32 s{t0}, s{sH}, 2")
            b(f"s_sub_u32 s{t0}, s{t0}, 2")
            b(f"s_mul_i32 s{t0}, s{t0}, {176*1024}")
            b(f"v_add_u32 v{vH0}, s{t0}, v{vH0}")
            b(f"v_add_u32 v{vH1}, s{t0}, v{vH1}")
        b(f"s_add_u32 s{t1}, s{sb}, {i*1024}")
        b(f"buffer_load_dwordx4 {hreg(idx,0)}, v{vH0}, {s(sA,4)}, s{t1} offen")
        b(f"buffer_load_dwordx4 {hreg(idx,1)}, v{vH1}, {s(sA,4)}, s{t1} offen")
    def wreads_s():
        for j in range(8):
            m = (j >> 1) & 1; ksp = 2 * (j >> 2) + (j & 1)
            if j == 0: b.wait('vm', "c0")
            if j == 2: b.wait('vm', "c1")
            for aa in range(2):
                b(f"ds_read_b128 {a(8*j+4*aa,4)}, v{vPp+ksp} offset:{m*8192 + aa*4096}", f"wr{j}")
    def wreads_f(i):
        st = 8 + i
        b.wait('vm', f"f{i}")
        for aa in range(2):
            for rd in range(2):
                b(f"ds_read_b64_tr_b16 {a(8*st+4*aa+2*rd,2)}, v{vTp+aa} offset:{wslot(i) + rd*8*128}", f"wr{st}")
    if STAMP >= 2: stamp(b, 24)
    dma_c(0)
    hloads(0); hloads(1)
    dma_c(1)
    b("v_and_b32 v6, 31, v1")
    b("v_lshlrev_b32 v6, 7, v6")
    b(f"v_add_u32 v6, s{sLw}, v6")
    b("v_lshrrev_b32 v7, 5, v1")
    b("v_bfe_u32 v29, v1, 1, 3")
    b("v_xor_b32 v29, v7, v29")
    for k in range(4):
        b(f"v_xor_b32 v7, {2*k}, v29")
        b(f"v_lshl_add_u32 v{vPp+k}, v7, 4, v6")
    tr_pattern(b, vTp, 4, 54)
    b(f"v_add_u32 v{vTp}, s{sLw}, v{vTp}")
    b(f"v_add_u32 v{vTp+1}, s{sLw}, v{vTp+1}")
    b("v_bfe_u32 v6, v1, 3, 2")
    b("v_and_b32 v7, 7, v1")
    b(f"v_lshl_add_u32 v{vTau}, v7, 2, v6")
    b(f"s_xor_b32 s{t0}, s{sH}, 1")
    b(f"s_lshl_b32 s{t0}, s{t0}, 6")
    b(f"s_lshl_b32 s{t1}, s{sMt}, 7")
    b(f"s_add_u32 s{t0}, s{t0}, s{t1}")
    b(f"v_add_u32 v6, s{t0}, v{vTau}")
    b("v_lshlrev_b32 v6, 3, v6")
    b(f"v_add_u32 v6, {G_OFF}, v6")
    b(f"global_load_dwordx2 v[10:11], v6, s[10:11]")
    b(f"global_load_dwordx2 v[12:13], v6, s[10:11] offset:256")
    b(f"s_lshl_b32 s{t0}, s{sH}, 7")
    b(f"s_sub_u32 s{t0}, s{t0}, 64")
    b(f"s_lshl_b32 s{t0}, s{t0}, 3")
    b(f"v_add_u32 v6, s{t0}, v6")
    b(f"global_load_dwordx2 v[16:17], v6, s[10:11]")
    b(f"global_load_dwordx2 v[18:19], v6, s[10:11] offset:256")
    b(f"v_mov_b32 v6, {NONCE_OFF}")
    b(f"global_load_dwordx2 {v(vNon2,2)}, v6, s[10:11]")
    if STAMP >= 2: stamp(b, 25)
    DH = int(opts.get('k2dh', 5))
    for idx in range(2, DH): hloads(idx)
    if STAMP >= 2: stamp(b, 26)
    vWr, vRd = 20, 21
    vWrq = 56
    b(f"s_lshl_b32 s{t0}, s{sWv}, 14")
    b(f"v_lshlrev_b32 v29, 8, v{vTau}")
    b(f"v_add_u32 v29, s{t0}, v29")
    b("v_lshrrev_b32 v6, 5, v1")
    b("v_and_b32 v7, 7, v1")
    b("v_xor_b32 v6, v6, v7")
    for q in range(4):
        b(f"v_xor_b32 v7, {2*q}, v6")
        b(f"v_lshl_add_u32 v{vWrq+q}, v7, 4, v29")
    b("v_lshrrev_b32 v22, 4, v0")
    b("v_and_b32 v23, 15, v0")
    b("v_lshrrev_b32 v6, 6, v0")
    b("v_xor_b32 v6, v6, v23")
    b(f"v_lshlrev_b32 v{vRd}, 8, v22")
    b(f"v_lshl_add_u32 v{vRd}, v6, 4, v{vRd}")
    b(f"v_xor_b32 v{vWr}, 64, v{vRd}")
    vXch = 24
    b(f"v_lshlrev_b32 v{vXch}, 4, v0")
    b(f"s_lshl_b32 s{t0}, s2, 14")
    b(f"s_add_u32 s{t0}, s{t0}, {XCH_OFF}")
    b(f"v_add_u32 v25, s{t0}, v{vXch}")
    b(f"s_xor_b32 s{t1}, s2, 1")
    b(f"s_lshl_b32 s{t0}, s{t1}, 14")
    b(f"s_add_u32 s{t0}, s{t0}, {XCH_OFF}")
    b(f"v_add_u32 v26, s{t0}, v{vXch}")
    if STAMP >= 2: stamp(b, 27)
    wreads_s()
    if STAMP >= 2: stamp(b, 28)

    def mfmas(idx):
        ps, st = seq[idx]
        kind, i = steps[st]
        acc = accS if kind == 'S' else accF
        out = []
        for aa in range(2):
            for bb in range(2):
                dreg = v(acc + (aa*2 + bb) * 16, 16)
                c = dreg if i else "0"
                out.append(f"v_mfma_f32_32x32x16_bf16 {dreg}, {a(8*st+4*aa,4)}, {hreg(idx,bb)}, {c}")
        return out

    def reduce_write(g0, g1):
        for aa in range(2):
            for bb in range(2):
                g = g0 if bb == 0 else g1
                S = accS + (aa*2+bb)*16; Fq = accF + (aa*2+bb)*16
                for p in range(8):
                    b(f"v_pk_mul_f32 {v(S+2*p,2)}, {v(S+2*p,2)}, {v(g,2)} op_sel_hi:[1,0]")
                for p in range(8):
                    b(f"v_pk_fma_f32 {v(S+2*p,2)}, {v(Fq+2*p,2)}, {v(g,2)}, {v(S+2*p,2)} op_sel:[0,1,0] op_sel_hi:[1,1,1]")
                for q in range(4):
                    b(f"ds_write_b128 v{vWrq+q}, {v(S+4*q,4)} offset:{LRED + bb*32*PITCH + aa*128}", "red")
        b.wait('lg', "red")
        b("s_barrier")
    def reduce_read(dst, gran=None):
        for p in range(4):
            for w in range(4):
                b(f"ds_read_b128 {v(dst+16*p+4*w,4)}, v{vRd if p % 2 == 0 else vWr} offset:{LRED + w*64*PITCH + p*16*PITCH}")
        for p in range(4):
            r = dst + 16*p
            b(f"v_pk_add_f32 {v(r,2)}, {v(r,2)}, {v(r+4,2)}")
            b(f"v_pk_add_f32 {v(r+2,2)}, {v(r+2,2)}, {v(r+6,2)}")
            b(f"v_pk_add_f32 {v(r+8,2)}, {v(r+8,2)}, {v(r+12,2)}")
            b(f"v_pk_add_f32 {v(r+10,2)}, {v(r+10,2)}, {v(r+14,2)}")
            if gran is None:
                b(f"v_pk_add_f32 {v(r,2)}, {v(r,2)}, {v(r+8,2)}")
                b(f"v_pk_add_f32 {v(r+2,2)}, {v(r+2,2)}, {v(r+10,2)}")
            else:
                for e in range(4):
                    u = 4 * p + e
                    b(f"v_add_f32 v{gran + 4*(u//3) + u%3}, v{r+e}, v{r+8+e}")

    total = len(seq)
    sNib = 84
    XS_ = 32
    PR_ = vBuf
    def r1c():
        f = F()
        for p in range(4):
            for w in range(4):
                f(f"ds_read_b128 {v(accF+16*p+4*w,4)}, v{vRd if p % 2 == 0 else vWr} offset:{LRED + w*64*PITCH + p*16*PITCH}")
        for p in range(4):
            r = accF + 16*p
            for e in range(4): f(f"v_add_f32 v{r+e}, v{r+e}, v{r+4+e}")
            for e in range(4): f(f"v_add_f32 v{r+8+e}, v{r+8+e}, v{r+12+e}")
            for e in range(4): f(f"v_add_f32 v{r+e}, v{r+e}, v{r+8+e}")
            for e in range(4): f(f"v_and_or_b32 v{XS_+4*p+e}, v{r+e}, -16, s{sNib+e}")
        return f
    def step_ops(idx):
        ps, st = seq[idx]
        kind, i = steps[st]
        n00 = len(b.ops)
        mf = mfmas(idx)
        if ps == 1: b.wait('lg', f"wr{st}")
        b(mf[0])
        if ps == 1:
            fi = st - 2
            if st == 6: b.wait('lg', "wr7")
            if 0 <= fi < 14: dma_f(fi)
        b(mf[1])
        if ps == 1 and 8 <= st + 1 < NS:
            wreads_f(st + 1 - 8)
        b(mf[2])
        n0 = len(b.ops)
        tg = []
        if ps == 1:
            if st + DH < NS: tg = [st + DH]
            else:
                j = st + DH - NS
                tg = [NS + 2 * j, NS + 2 * j + 1]
        elif idx + D < total: tg = [idx + D]
        for t_ in tg: hloads(t_)
        ld = b.ops[n0:]; del b.ops[n0:]
        cut = [j for j, o in enumerate(ld) if o.kind == 'vmem']
        if cut:
            b.ext(ld[:cut[0] + 1]); b(mf[3]); b.ext(ld[cut[0] + 1:])
        else:
            b(mf[3])
        ops = b.ops[n00:]; del b.ops[n00:]
        return ops
    for idx in range(NS):
        b.ext(step_ops(idx))
        st = idx
        if st == 2:
            b(f"v_readfirstlane_b32 s{t0}, v{vNon2}")
            for j in range(4):
                b(f"s_bfe_u32 s{sNib+j}, s{t0}, {(4 << 16) | (4*j):#x}")
        if STAMP >= 2 and st in (0, 3, 7, 11, 15, 19): stamp(b, 8 + (0, 3, 7, 11, 15, 19).index(st))
    stamp(b, 1)
    n0 = len(b.ops); reduce_write(vG1, vG2); rw = b.ops[n0:]; del b.ops[n0:]
    K0 = 2 * DH
    n0 = len(b.ops)
    for k in range(K0, 15): hloads(NS + k)
    hl = chunks_of(b.ops[n0:]); del b.ops[n0:]
    body, tail = rw[:-2], rw[-2:]
    gap = max(1, len(body) // (len(hl) + 1))
    outp = []
    for j, o in enumerate(body):
        outp.append(o)
        if (j + 1) % gap == 0 and hl: outp.extend(hl.pop(0))
    for c in hl: outp.extend(c)
    b.ext(outp + tail)
    stamp(b, 2)
    p2a = []
    for st in range(7): p2a += step_ops(NS + st)
    b.ext(merge(p2a, r1c().ops, per=4))
    PL = int(opts.get('k2pl', 16))
    BI = vBuf + 16
    def bias_fill():
        f = F()
        f("v_lshlrev_b32 v4, 16, v40\nv_and_b32 v5, 0xffff0000, v40\nv_lshlrev_b32 v6, 16, v41\nv_and_b32 v7, 0xffff0000, v41")
        for p in range(4):
            xs = 32 + 2*p; tp = BI + 4*p
            f(f"v_lshlrev_b32 v{tp}, 16, v{xs}\nv_and_b32 v{tp+1}, 0xffff0000, v{xs}\nv_lshlrev_b32 v{tp+2}, 16, v{xs+1}\nv_and_b32 v{tp+3}, 0xffff0000, v{xs+1}")
            for e in range(4): f(f"v_mul_f32 v{tp+e}, v{tp+e}, v{4+e}")
            f(f"v_cvt_pk_bf16_f32 v46, v{tp}, v{tp+1}")
            f(f"v_cvt_pk_bf16_f32 v47, v{tp+2}, v{tp+3}")
            f(f"v_lshlrev_b32 v{tp}, 16, v46\nv_and_b32 v{tp+1}, 0xffff0000, v46\nv_lshlrev_b32 v{tp+2}, 16, v47\nv_and_b32 v{tp+3}, 0xffff0000, v47")
            for e in range(4): f(f"v_mul_f32 v{tp+e}, v{42+p}, v{tp+e}")
        return f
    tail_steps = []
    for st in range(7, NS):
        idx = NS + st
        ops = step_ops(idx)
        if 7 <= st <= 10:
            p = st - 7
            pre = B()
            if p: pre(f"v_add_u32 v29, {p*4096}, v25")
            pre(f"global_store_dwordx4 v{29 if p else 25}, {v(XS_+4*p,4)}, s[10:11] sc0 sc1")
            ops = ops[:1] + pre.ops + ops[1:]
        if st >= 17:
            tail_steps += ops
            if st == NS - 1: b.ext(merge(tail_steps, bias_fill().ops, per=4))
            continue
        b.ext(ops)
        if STAMP >= 2 and st in (7, 11, 15, 19): stamp(b, 16 + (0, 3, 7, 11, 15, 19).index(st))
        if st == 11:
            b("s_barrier")
        if st == 11:
            b(f"s_lshl_b32 s{t0}, s{sMt}, 7")
            b(f"s_lshl_b32 s{t1}, s{sH}, 6")
            b(f"s_add_u32 s{t0}, s{t0}, s{t1}")
            b(f"v_add_u32 v30, s{t0}, v22")
            b(f"s_lshl_b32 s{t1}, s{sN}, 7")
            b("v_lshlrev_b32 v31, 10, v30")
            b("v_lshl_add_u32 v31, v23, 3, v31")
            b(f"v_add_u32 v31, s{t1}, v31")
            for p in range(4):
                if p: b(f"v_add_u32 v31, {16*1024}, v31")
                b(f"global_load_dwordx2 {v(32+2*p,2)}, v31, s[4:5]")
            b("v_lshlrev_b32 v31, 3, v23")
            b(f"v_add_u32 v31, s{t1}, v31")
            b(f"global_load_dwordx2 v[40:41], v31, s[6:7]")
            b("v_lshlrev_b32 v31, 3, v30")
            b(f"v_add_u32 v31, {G_OFF}, v31")
            for p in range(4):
                b(f"global_load_dword v{42+p}, v31, s[10:11] offset:{p*128}")
            b(f"s_lshl_b32 s{t1}, s{sN}, 8")
            b("v_lshlrev_b32 v2, 11, v30")
            b("v_lshl_add_u32 v2, v23, 4, v2")
            b(f"v_add_u32 v2, s{t1}, v2")
        if st == PL:
            for p in range(4):
                if p: b(f"v_add_u32 v29, {p*4096}, v26")
                b(f"global_load_dwordx4 {v(PR_+4*p,4)}, v{29 if p else 26}, s[10:11] sc1", "prt")
    stamp(b, 3)
    b.wait('vm', "prt")
    b(f"s_mov_b32 s{t0}, 0")
    b("L_k2_chk:")
    b("v_mov_b32 v46, 0")
    for u in range(16):
        b(f"v_xor_b32 v{PR_+u}, s{sNib + (u % 4)}, v{PR_+u}")
        b(f"v_and_or_b32 v46, v{PR_+u}, 15, v46")
    b("v_cmp_eq_u32 vcc, 0, v46")
    b("s_cmp_eq_u64 vcc, -1")
    b("s_cbranch_scc1 L_k2_ok")
    b(f"s_add_u32 s{t0}, s{t0}, 1")
    b(f"s_cmp_gt_u32 s{t0}, 40000")
    b("s_cbranch_scc1 L_k2_ok")
    for p in range(4):
        if p: b(f"v_add_u32 v29, {p*4096}, v26")
        b(f"global_load_dwordx4 {v(PR_+4*p,4)}, v{29 if p else 26}, s[10:11] sc1", 'nocount')
    b("s_waitcnt vmcnt(0)", 'nocount')
    b("s_branch L_k2_chk")
    b("L_k2_ok:")
    if STAMP >= 2: stamp(b, 30)
    n0 = len(b.ops)
    reduce_write(16, 18)
    rw = b.ops[n0:]; del b.ops[n0:]
    fl = F()
    for u in range(0, 16, 2): fl(f"v_pk_add_f32 {v(BI+u,2)}, {v(BI+u,2)}, {v(PR_+u,2)}")
    b.ext(merge(rw, fl.ops, after=lambda o: o.mn.startswith('ds_write'), per=1))
    if STAMP >= 2: stamp(b, 31)
    reduce_read(accF)
    if STAMP >= 2: stamp(b, 32)
    OUTF = opts.get('outf', '').replace('+', ' ')
    for p in range(4):
        r = accF + 16*p
        b(f"v_pk_add_f32 {v(r,2)}, {v(r,2)}, {v(BI+4*p,2)}")
        b(f"v_pk_add_f32 {v(r+2,2)}, {v(r+2,2)}, {v(BI+4*p+2,2)}")
        if p: b(f"v_add_u32 v2, {16*2048}, v2")
        b(f"global_store_dwordx4 v2, {v(r,4)}, s[8:9] {OUTF}")
    stamp(b, 4)
    dbgt_end(b, "s[18:19]", 32, True)
    stamp_end(b, sWv, "s[10:11]", 0x2100000, 1)
    b("L_k2_end:")
    b("s_endpgm")
    return finalize(b.ops)

KN = NAME + "_kernel"
def header():
    ref = open('cdna_kernels/%s.s.ref' % NAME).read().split('\n')
    hdr = []
    for line in ref:
        if not line.startswith(';'): break
        if '@launch' in line: continue
        hdr.append(line)
    hdr.append("; @launch grid=(256,1,1) block=(512,1,1) lds=163840")
    return '\n'.join(hdr)

def kd(name, nv, acc_off, nsg):
    return f""".amdhsa_kernel {name}
  .amdhsa_next_free_vgpr {nv}
  .amdhsa_next_free_sgpr {nsg}
  .amdhsa_accum_offset {acc_off}
  .amdhsa_group_segment_fixed_size 0
  .amdhsa_kernarg_size 128
  .amdhsa_user_sgpr_count 2
  .amdhsa_user_sgpr_kernarg_segment_ptr 1
  .amdhsa_system_sgpr_workgroup_id_x 1
  .amdhsa_float_denorm_mode_32 3
.end_amdhsa_kernel"""

def main():
    k1 = gen_k1()
    out = [header(), '.amdgcn_target "amdgcn-amd-amdhsa--gfx950"', '.text']
    out += [f".globl {KN}", ".p2align 8", f".type {KN},@function", f"{KN}:", render(k1)]
    out += ["L_code_end:", "  s_endpgm"]
    out += ['.section .rodata,"a"', '.p2align 6', kd(KN, 256, 128, 102)]
    print('\n'.join(out))

main()
```

```python
import sys, copy
sys.path.insert(0, 'dev')
from ir import *

NAME = "gated_mix__ssm_conv_s5__dense_activation_silu__prompt"
K1 = NAME + "_kernel"
K2 = "gm_k2_kernel"

opts = dict(a.split('=') for a in sys.argv[1:] if '=' in a)
HF_OFF = 0
HF_SIZE = 64 * 176 * 1024
W2F_OFF = HF_SIZE
W2F_SIZE = 16 * 176 * 1024
G_OFF = W2F_OFF + W2F_SIZE
E_OFF = G_OFF + 2048 * 8
E_SIZE = 16 * 16 * 512
NONCE_OFF = E_OFF + E_SIZE
FLG_OFF = NONCE_OFF + 256
FLG_STRIDE = int(opts.get('flgs', 1024)) if 'opts' in globals() else 128
XCH_OFF = FLG_OFF + 0x40000
WS_USED = XCH_OFF + 256 * 16384

LOG2E = 0x3fb8aa3b
INV2PI = 0x3e22f983

RB, XS, WR = 0, 65536, 114688
SC = 32768
IMG = 36864

STAMP = int(opts.get('stamp', 0))
STF = "sc0 sc1"

def v(n, k=1): return f"v{n}" if k == 1 else f"v[{n}:{n+k-1}]"
def a(n, k=1): return f"a{n}" if k == 1 else f"a[{n}:{n+k-1}]"
def s(n, k=1): return f"s{n}" if k == 1 else f"s[{n}:{n+k-1}]"


STV = 15
def reg_of_t(t): return (t >> 2) + 4 * (t & 3)
def srd(b, dst, ptr, size):
    b(f"s_mov_b32 s{dst}, s{ptr}")
    b(f"s_mov_b32 s{dst+1}, s{ptr+1}")
    b(f"s_mov_b32 s{dst+2}, {size}")
    b(f"s_mov_b32 s{dst+3}, 0x20000")


def cexp(b, dst, n_src, va, vang, t0):
    b(f"v_mul_f32 v{t0}, {n_src}, v{va}")
    b(f"v_mul_f32 v{t0+1}, {n_src}, v{vang}")
    b(f"v_exp_f32 v{t0}, v{t0}")
    b(f"v_rndne_f32 v{t0+2}, v{t0+1}")
    b(f"v_sub_f32 v{t0+1}, v{t0+1}, v{t0+2}")
    b(f"v_cos_f32 v{dst}, v{t0+1}")
    b(f"v_sin_f32 v{dst+1}, v{t0+1}")
    b(f"v_mul_f32 v{dst}, v{t0}, v{dst}")
    b(f"v_mul_f32 v{dst+1}, v{t0}, v{dst+1}")


def cfma(b, d, l, h, u, tmp):
    b(f"v_pk_fma_f32 {v(tmp,2)}, {v(l,2)}, {v(h,2)}, {v(u,2)} op_sel:[0,0,0] op_sel_hi:[0,1,1]")
    b(f"v_pk_fma_f32 {v(d,2)}, {v(l,2)}, {v(h,2)}, {v(tmp,2)} op_sel:[1,1,0] op_sel_hi:[1,0,1] neg_lo:[1,0,0]")


def cfma_s(b, d, l, h, u, tmp):
    b(f"v_fma_f32 v{tmp}, v{l}, v{h}, v{u}")
    b(f"v_fma_f32 v{tmp+1}, v{l}, v{h+1}, v{u+1}")
    b(f"v_fma_f32 v{d}, -v{l+1}, v{h+1}, v{tmp}")
    b(f"v_fma_f32 v{d+1}, v{l+1}, v{h}, v{tmp+1}")


def stamp(b, idx):
    if not STAMP: return
    g = B()
    g("s_memtime s[100:101]")
    g("s_waitcnt lgkmcnt(0)")
    g(f"v_writelane_b32 v{STV}, s100, {idx}")
    b.ext(g)


def stamp_begin(b):
    if not STAMP: return
    b(f"v_mov_b32 v{STV}, 0")
    b("s_memrealtime s[100:101]")
    b("s_waitcnt lgkmcnt(0)")
    b(f"v_writelane_b32 v{STV}, s100, 62")
    stamp(b, 0)


def stamp_end(b, wave, ws, off, lane, sh=2, tv=254):
    if not STAMP: return
    b("s_memrealtime s[100:101]")
    b("s_waitcnt lgkmcnt(0)")
    b(f"v_writelane_b32 v{STV}, s100, 63")
    b(f"s_lshl_b32 s100, s2, {sh}")
    b(f"s_add_u32 s100, s100, s{wave}")
    b(f"s_lshl_b32 s100, s100, 8")
    b(f"s_add_u32 s100, s100, {off}")
    b(f"v_lshlrev_b32 v{tv}, 2, v{lane}")
    b(f"v_add_u32 v{tv}, s100, v{tv}")
    b(f"global_store_dword v{tv}, v{STV}, {ws}")


vLane = 1
def tr_pattern(b, dst, hfmul, t):
    L = vLane
    b(f"v_lshrrev_b32 v{t}, 5, v{L}")
    b(f"v_mul_u32_u24 v{t}, {hfmul}, v{t}")
    b(f"v_bfe_u32 v{t+1}, v{L}, 2, 2")
    b(f"v_add_u32 v{t}, v{t}, v{t+1}")
    b(f"v_lshlrev_b32 v{t}, 7, v{t}")
    b(f"v_bfe_u32 v{t+1}, v{L}, 3, 1")
    b(f"v_lshlrev_b32 v{t+1}, 6, v{t+1}")
    b(f"v_bfe_u32 v{t+2}, v{L}, 4, 1")
    b(f"v_lshlrev_b32 v{t+2}, 5, v{t+2}")
    b(f"v_and_b32 v{t+3}, 3, v{L}")
    b(f"v_lshlrev_b32 v{t+3}, 3, v{t+3}")
    b(f"v_add3_u32 v{t}, v{t}, v{t+2}, v{t+3}")
    b(f"v_add_u32 v{dst}, v{t}, v{t+1}")
    b(f"v_xor_b32 v{t+1}, 64, v{t+1}")
    b(f"v_add_u32 v{dst+1}, v{t}, v{t+1}")

SLOT = 24576
NSLOT = 4
WB0 = 98304
SCR = 73728
SC = 0
IMG = 1024
def wblock_lds(q):
    if q < 8: return WB0 + q * 8192
    return (q - 8) * 8192

sX, sBRE, sBIM, sW1, sHF = 36, 40, 44, 48, 52
sWave, sWm, sR, sS, sRho = 60, 61, 62, 63, 56
sLdsX, sLdsB = 64, 65
sT0, sT1, sT2, sT3 = 68, 69, 70, 71
sWL = 72
sM1, sM2, sM3 = 80, 82, 84
sHFb, sK0, sEX = 86, 87, 88
sLo = 90
sSpin, sU = 98, 99

DBGT = int(opts.get('dbgt', 0))
def dbgt_begin(b):
    if not DBGT: return
    b("s_memrealtime s[100:101]")
    b("s_waitcnt lgkmcnt(0)")
    b("s_not_b32 s101, s100")
def dbgt_end(b, dbg, vt, k2=False):
    if not DBGT: return
    b("s_mov_b32 s99, s101")
    b("s_memrealtime s[100:101]")
    b("s_waitcnt lgkmcnt(0)")
    b(f"v_mov_b32 v{vt}, 0")
    b(f"v_mov_b32 v{vt+1}, s99")
    b(f"v_mov_b32 v{vt+2}, s100")
    b("s_mov_b64 exec, 1")
    b(f"global_atomic_umax v{vt}, v{vt+1}, {dbg} offset:16")
    b(f"global_atomic_umax v{vt}, v{vt+2}, {dbg} offset:20")
    if k2:
        b(f"global_load_dwordx2 {v(vt+2,2)}, v{vt}, {dbg} offset:-496 sc1")
        b("s_waitcnt vmcnt(0)")
        b(f"global_store_dwordx2 v{vt}, {v(vt+2,2)}, {dbg} offset:8")
    b("s_mov_b64 exec, -1")

def code_prefetch(b, kname, endlabel, wshift, tag, vt, vd):
    if not int(opts.get('pfc', 1)): return
    b("s_getpc_b64 s[40:41]")
    b(f"L_{tag}_pc:")
    b(f"s_sub_u32 s40, s40, L_{tag}_pc-{kname}")
    b("s_subb_u32 s41, s41, 0")
    b("s_lshr_b32 s42, s2, 3")
    b(f"s_lshl_b32 s42, s42, {wshift + 7}")
    b(f"v_lshrrev_b32 v{vt}, 6, v0")
    b(f"v_lshlrev_b32 v{vt}, 7, v{vt}")
    b(f"v_add_u32 v{vt}, s42, v{vt}")
    b(f"v_min_u32 v{vt}, {endlabel}-{kname}-4, v{vt}")
    b(f"global_load_dword v{vd}, v{vt}, s[40:41]", 'nocount')

def k1_head():
    b = B()
    code_prefetch(b, K1, "L_code_end", 3, "k1", 2, 14)
    dbgt_begin(b)
    stamp_begin(b)
    b("s_load_dwordx16 s[4:19], s[0:1], 0")
    b("s_load_dwordx16 s[20:35], s[0:1], 64")
    b("s_cmp_ge_u32 s2, 256")
    b("s_cbranch_scc1 L_k1_end")
    b("v_lshrrev_b32 v2, 6, v0")
    b(f"v_and_b32 v{vLane}, 63, v0")
    b(f"v_readfirstlane_b32 s{sWave}, v2")
    b(f"s_and_b32 s{sT0}, s2, 7")
    b(f"s_lshr_b32 s{sT1}, s2, 3")
    b(f"s_and_b32 s{sT2}, s{sT1}, 3")
    b(f"s_lshr_b32 s{sT3}, s{sT1}, 2")
    b(f"s_lshr_b32 s{sR}, s{sT0}, 1")
    b(f"s_lshl_b32 s{sR}, s{sR}, 2")
    b(f"s_add_u32 s{sR}, s{sR}, s{sT2}")
    b(f"s_and_b32 s{sS}, s{sT0}, 1")
    b(f"s_lshl_b32 s{sS}, s{sS}, 3")
    b(f"s_add_u32 s{sS}, s{sS}, s{sT3}")
    b(f"s_lshl_b32 s{sRho}, s{sT2}, 1")
    b(f"s_add_u32 s{sRho}, s{sRho}, s{sT3}")
    ROT1 = opts.get('rot1', 'two')
    if ROT1 == 'none': b(f"s_mov_b32 s{sRho}, 0")
    if ROT1 == 'half':
        b(f"s_and_b32 s{sRho}, s{sRho}, 1")
        b(f"s_lshl_b32 s{sRho}, s{sRho}, 2")
    if ROT1 == 'two':
        b(f"s_and_b32 s{sRho}, s{sRho}, 3")
        b(f"s_lshl_b32 s{sRho}, s{sRho}, 1")
    b(f"s_and_b32 s{sWm}, s{sWave}, 3")
    b(f"s_lshl_b32 s{sLdsX}, s{sWm}, 12")
    b(f"s_lshl_b32 s{sLdsB}, s{sWm}, 11")
    b(f"s_lshl_b32 s{sHFb}, s{sR}, 2")
    b(f"s_add_u32 s{sHFb}, s{sHFb}, s{sWm}")
    b(f"s_mul_i32 s{sHFb}, s{sHFb}, {176*1024}")
    b(f"s_cmp_ge_u32 s{sWave}, 4")
    b("s_cbranch_scc1 L_k1_F")
    return b

fXe, fXo, fB, fW = 2, 3, 4, 5
fPX, fTA, fTB, fTC, fL16 = 7, 11, 13, 16, 6 + 0
fPX, fTA, fTB, fTC = 8, 12, 14, 16
fPX, fTA, fTB, fTC, fL16 = 8, 12, 16, 18, 7
fE, fD = 20, 28
fS, fAcc = 32, 64

def dma(b, voff, srdn, soff, tok, imm=0):
    o = f" offset:{imm}" if imm else ""
    b(f"buffer_load_dwordx4 v{voff}, {s(srdn,4)}, {soff} offen{o} lds", tok)
def dma_x(b, i):
    b(f"s_add_u32 m0, s{sLdsX}, {(i % NSLOT) * SLOT}")
    for k in range(4):
        dma(b, fXe if k % 2 == 0 else fXo, sX, f"s{sLo+i}", f"x{i}", k * 1024)
def dma_B(b, i):
    b(f"s_add_u32 m0, s{sLdsB}, {(i % NSLOT) * SLOT + 16384}")
    dma(b, fB, sBRE, f"s{sLo+i}", f"B{i}")
    dma(b, fB, sBIM, f"s{sLo+i}", f"B{i}", 1024)
def dma_w(b, q):
    i, hh = q % 8, q // 8
    b(f"s_add_u32 m0, s{sLdsB}, {wblock_lds(q)}")
    if hh:
        b(f"s_add_u32 s{sT0}, s{sWL+i}, 128")
        so = f"s{sT0}"
    else:
        so = f"s{sWL+i}"
    dma(b, fW, sW1, so, f"w{q}")
    dma(b, fW + 1, sW1, so, f"w{q}", 1024)

def chunks_of(ops):
    ch = []; cur = []
    for o in ops:
        cur.append(o)
        if o.kind == 'vmem': ch.append(cur); cur = []
    if cur: ch.append(cur)
    return ch

def k1_F(ffn):
    b = B(); L = vLane
    t = fE
    for i in range(8):
        b(f"s_add_u32 s{sLo+i}, s{sRho}, {i}")
        b(f"s_and_b32 s{sLo+i}, s{sLo+i}, 7")
        b(f"s_lshl_b32 s{sLo+i}, s{sLo+i}, 7")
    b(f"v_and_b32 v{t}, 7, v{L}")
    b(f"v_lshrrev_b32 v{t+1}, 4, v{L}")
    b(f"v_xor_b32 v{t+2}, v{t}, v{t+1}")
    b(f"v_lshlrev_b32 v{t+2}, 4, v{t+2}")
    b(f"v_lshrrev_b32 v{t+3}, 3, v{L}")
    b(f"s_lshl_b32 s{sT0}, s{sR}, 17")
    b(f"s_lshl_b32 s{sT1}, s{sWm}, 15")
    b(f"s_add_u32 s{sT0}, s{sT0}, s{sT1}")
    b(f"v_lshlrev_b32 v{t}, 12, v{t+3}")
    b(f"v_add3_u32 v{fXe}, v{t}, v{t+2}, s{sT0}")
    b(f"v_xor_b32 v{fXo}, 64, v{fXe}")
    b(f"s_and_b32 s{sT0}, s{sWm}, 1")
    b(f"s_lshl_b32 s{sT0}, s{sT0}, 6")
    b(f"v_xor_b32 v{t+1}, s{sT0}, v{t+2}")
    b(f"s_lshl_b32 s{sT0}, s{sWm}, 13")
    b(f"s_lshl_b32 s{sT1}, s{sS}, 15")
    b(f"s_add_u32 s{sT0}, s{sT0}, s{sT1}")
    b(f"v_lshlrev_b32 v{t}, 10, v{t+3}")
    b(f"v_add3_u32 v{fB}, v{t}, v{t+1}, s{sT0}")
    b("s_waitcnt lgkmcnt(0)")
    srd(b, sX, 4, 2048*1024)
    srd(b, sBRE, 10, 512*1024)
    b(f"s_sub_u32 s{sBIM}, s12, 1024")
    b(f"s_subb_u32 s{sBIM+1}, s13, 0")
    b(f"s_mov_b32 s{sBIM+2}, {512*1024 + 1024}")
    b(f"s_mov_b32 s{sBIM+3}, 0x20000")
    if STAMP >= 2: stamp(b, 8)
    INI = int(opts.get('ini', 3))
    for i in range(INI):
        dma_x(b, i); dma_B(b, i)
    if STAMP >= 2: stamp(b, 9)
    srd(b, sHF, 34, WS_USED)
    if ffn:
        srd(b, sW1, 24, 512*3584)
        b(f"v_bfe_u32 v{t+1}, v{L}, 4, 1")
        b(f"v_lshlrev_b32 v{t+1}, 2, v{t+1}")
        b(f"v_and_b32 v{t+3}, 7, v{L}")
        b(f"v_xor_b32 v{t+3}, v{t+3}, v{t+1}")
        b(f"v_lshlrev_b32 v{t+3}, 4, v{t+3}")
        b(f"v_lshrrev_b32 v{t+1}, 3, v{L}")
        b(f"s_lshl_b32 s{sT3}, s{sWm}, 4")
        b(f"v_add_u32 v{t+1}, s{sT3}, v{t+1}")
        b(f"v_mul_u32_u24 v{t+1}, 3584, v{t+1}")
        b(f"v_add_u32 v{fW}, v{t+1}, v{t+3}")
        b(f"v_add_u32 v{fW+1}, {8*3584 - 1024}, v{fW}")
        b(f"s_lshl_b32 s{sT3}, s{sS}, 8")
        for i in range(8):
            b(f"s_mul_i32 s{sWL+i}, s{sLo+i}, 1792")
            b(f"s_add_u32 s{sWL+i}, s{sWL+i}, s{sT3}")
        tr_pattern(b, fTA, 8, t)
        b(f"v_add_u32 v{fTB}, 0x10000, v{fTA}")
        b(f"v_add_u32 v{fTB+1}, 0x10000, v{fTA+1}")
        b(f"v_add_u32 v{fTC}, 0x20000, v{fTA}")
        b(f"v_add_u32 v{fTC+1}, 0x20000, v{fTA+1}")
        b(f"v_lshlrev_b32 v{fL16}, 4, v{L}")
        b(f"v_and_b32 v{t}, 31, v{L}")
        b(f"v_lshrrev_b32 v{t+1}, 5, v{L}")
        b(f"v_bfe_u32 v{t+2}, v{L}, 1, 3")
        b(f"v_xor_b32 v{t+2}, v{t+1}, v{t+2}")
        b(f"v_lshlrev_b32 v{t+1}, 7, v{t}")
        b(f"v_add_u32 v{t+1}, s{sLdsX}, v{t+1}")
        for k in range(4):
            b(f"v_xor_b32 v{t+3}, {2*k}, v{t+2}")
            b(f"v_lshl_add_u32 v{fPX+k}, v{t+3}, 4, v{t+1}")
        b(f"s_mov_b32 s66, {LOG2E ^ 0x80000000:#x}")
        b(f"s_mov_b32 s67, {LOG2E ^ 0x80000000:#x}")
        b(f"s_lshl_b32 s{sU}, s{sS}, 13")
        b(f"s_add_u32 s{sU}, s{sU}, s{sHFb}")
        b(f"s_add_u32 s{sU}, s{sU}, {64*1024}")
    stamp(b, 1)
    for i in range(8):
        if STAMP >= 2: stamp(b, 10 + 2*i)
        b.wait('vm', f"x{i}", f"B{i}")
        b("s_waitcnt lgkmcnt(0)")
        b("s_barrier")
        if STAMP >= 2: stamp(b, 11 + 2*i)
        if ffn:
            po = (i % NSLOT) * SLOT
            if po >= 65536:
                for k in range(4): b(f"v_add_u32 v{fE+k}, 0x10000, v{fPX+k}")
            for k in range(4):
                if po >= 65536: b(f"ds_read_b128 {a(16*i+4*k,4)}, v{fE+k} offset:{po - 65536}")
                else: b(f"ds_read_b128 {a(16*i+4*k,4)}, v{fPX+k} offset:{po}")
        if i == 0 and INI == 2:
            dma_x(b, 2); dma_B(b, 2)
        if i <= 4:
            dma_x(b, i + 3); dma_B(b, i + 3)
        elif ffn:
            for q in {5: (0, 1, 2), 6: (3, 4, 5), 7: (6, 7)}[i]: dma_w(b, q)
    stamp(b, 2)
    if not ffn:
        b(f"s_lshl_b32 s{sT0}, s{sR}, 1")
        b(f"s_add_u32 s{sT0}, s{sT0}, s{sS}")
        b(f"s_sub_u32 s{sT0}, s{sT0}, 14")
        b(f"s_lshl_b32 s{sT0}, s{sT0}, 2")
        b(f"s_add_u32 s{sT0}, s{sT0}, s{sWm}")
        b(f"v_lshlrev_b32 v8, 7, v{L}")
        srd(b, sW1, 26, 1792*1024)
        srd(b, sHF, 14, 512*1024)
        srd(b, sX, 16, 512*1024)
        b(f"s_mul_i32 s{sT1}, s{sT0}, 14336")
        b(f"buffer_load_dword v9, v8, {s(sW1,4)}, s{sT1} offen")
        b(f"s_add_u32 s{sT1}, s{sT1}, 8192")
        b(f"buffer_load_dword v10, v8, {s(sW1,4)}, s{sT1} offen")
        b(f"s_lshl_b32 s{sT1}, s{sT0}, 12")
        b(f"buffer_load_dword v11, v8, {s(sHF,4)}, s{sT1} offen")
        b(f"buffer_load_dword v12, v8, {s(sX,4)}, s{sT1} offen")
        for _ in range(4): b("s_barrier")
        k1_gjob_all(b)
        return b
    def ffn_phase(hh):
        p = B(); DEPTH = 3
        def lds_loc(n):
            i, k = divmod(n, 4)
            base = wblock_lds(8 * hh + i) + 16 * k * 128
            if base < 65536: return fTA, base
            if base < 131072: return fTB, base - 65536
            return fTC, base - 131072
        plan = {0: [0, 1, 2, 3], int(opts.get('bcn', 12)): [4, 5, 6, 7]} if hh == 0 else {0: list(range(8, 16))}
        def reads(n):
            if n in plan:
                p.wait('vm', *[f"w{q}" for q in plan[n]])
                if hh == 0 and n == 0: p("s_waitcnt lgkmcnt(0)")
                if STAMP >= 2: stamp(p, 26 + (0 if n == 0 else 1) if hh == 0 else 29)
                p("s_barrier")
                if STAMP >= 2 and hh == 0: stamp(p, 30 + (0 if n == 0 else 1))
            base, off = lds_loc(n)
            r = fS + (n % 4) * 8
            for ft in range(2):
                for rd in range(2):
                    p(f"ds_read_b64_tr_b16 {v(r+4*ft+2*rd,2)}, v{base+ft} offset:{off + rd*512}", f"r{hh}_{n}")
        ch = []
        if hh == 0:
            d = B()
            for q in range(8, 16): dma_w(d, q)
            ch = chunks_of(d.ops)
        for n in range(DEPTH): reads(n)
        for n in range(32):
            i, k = divmod(n, 4)
            r = fS + (n % 4) * 8
            p.wait('lg', f"r{hh}_{n}")
            for ft in range(2):
                acc = fAcc + (2*hh + ft) * 16
                c = v(acc, 16) if n else "0"
                p(f"v_mfma_f32_32x32x16_bf16 {v(acc,16)}, {v(r+4*ft,4)}, {a(16*i+4*k,4)}, {c}")
                if ft == 0 and ch: p.ext(ch.pop(0))
            if hh == 0 and n == int(opts.get('bxn', 1)): p("s_barrier")
            if n + DEPTH < 32: reads(n + DEPTH)
        assert not ch
        return p
    if int(opts.get('tseq', 0)):
        DEPTH = int(opts.get('tdepth', 6))
        def loc(g):
            t_, n = divmod(g, 32); i, k = divmod(n, 4)
            base = wblock_lds(8 * (t_ // 2) + i) + 16 * k * 128
            if base < 65536: return fTA + (t_ & 1), base
            if base < 131072: return fTB + (t_ & 1), base - 65536
            return fTC + (t_ & 1), base - 131072
        d = B()
        for q in range(8, 16): dma_w(d, q)
        ch = chunks_of(d.ops)
        tiles = []
        p = B()
        def rd(g):
            if g == 0:
                p.wait('vm', "w0", "w1", "w2", "w3"); p("s_waitcnt lgkmcnt(0)"); p("s_barrier")
            if g == 16:
                p.wait('vm', "w4", "w5", "w6", "w7"); p("s_barrier")
            if g == 64: p("s_barrier")
            base, off = loc(g); r = fS + (g % 8) * 4
            for r_ in range(2):
                p(f"ds_read_b64_tr_b16 {v(r+2*r_,2)}, v{base} offset:{off + r_*512}", f"t{g}")
        for g in range(DEPTH): rd(g)
        for g in range(128):
            t_, n = divmod(g, 32); i, k = divmod(n, 4)
            if n == 0 and t_: tiles.append(p); p = B()
            r = fS + (g % 8) * 4; acc = fAcc + t_ * 16
            if g % 2 == 0: p.wait('lg', f"t{g}", f"t{g+1}")
            p(f"v_mfma_f32_32x32x16_bf16 {v(acc,16)}, {v(r,4)}, {a(16*i+4*k,4)}, {v(acc,16) if n else 0}")
            if ch: p.ext(ch.pop(0))
            if g == int(opts.get('bxn', 3)): p("s_barrier")
            if g == 31: p.wait('vm', *[f"w{q}" for q in range(8, 16)])
            if g + DEPTH < 128: rd(g + DEPTH)
        tiles.append(p)
        PT = int(opts.get('pert', 3))
        b.ext(tiles[0])
        for t_ in range(1, 4):
            b.ext(merge(tiles[t_].ops, k1_silu(t_ - 1, False).ops, per=PT, start=1))
            if t_ == 1: stamp(b, 3)
        stamp(b, 4)
        b.ext(flat(k1_silu(3, True).ops))
        stamp(b, 5)
        return b
    b.ext(ffn_phase(0))
    stamp(b, 3)
    p3 = ffn_phase(1)
    fl = F()
    fl.ext(k1_silu(0, False)); fl.ext(k1_silu(1, False))
    if opts.get('p3mode') == 'nofill':
        b.ext(p3.ops); stamp(b, 6); b.ext(flat(fl.ops))
    elif opts.get('p3mode') == 'nostore':
        fo = [o for o in fl.ops if not (not isinstance(o, list) and o.kind == 'vmem')]
        st_ = [o for o in fl.ops if (not isinstance(o, list) and o.kind == 'vmem')]
        b.ext(merge(p3.ops, fo, per=int(opts.get('per3', 4)), start=1))
    else:
        b.ext(merge(p3.ops, fl.ops, per=int(opts.get('per3', 4)), start=1))
    stamp(b, 4)
    b.ext(flat(k1_silu(2, True).ops))
    b.ext(flat(k1_silu(3, True).ops))
    stamp(b, 5)
    return b

def k1_silu(ft, pk):
    b = F()
    acc = fAcc + ft * 16
    e, d = fE, fD
    for kk in range(2):
        base = acc + 8 * kk
        if pk:
            for q in range(4): b(f"v_pk_mul_f32 {v(e+2*q,2)}, {v(base+2*q,2)}, s[66:67]")
            for q in range(8): b(f"v_exp_f32 v{e+q}, v{e+q}")
            for q in range(4): b(f"v_pk_add_f32 {v(e+2*q,2)}, {v(e+2*q,2)}, 1.0 op_sel_hi:[1,0]")
            for q in range(8): b(f"v_rcp_f32 v{e+q}, v{e+q}")
            for q in range(4): b(f"v_pk_mul_f32 {v(e+2*q,2)}, {v(base+2*q,2)}, {v(e+2*q,2)}")
            for q in range(4): b(f"v_cvt_pk_bf16_f32 v{d+q}, v{e+2*q}, v{e+2*q+1}")
        else:
            seq = []
            for q in range(8):
                seq.append([f"v_mul_f32 v{e+q}, s66, v{base+q}", f"v_exp_f32 v{e+q}, v{e+q}", f"v_add_f32 v{e+q}, 1.0, v{e+q}",
                            f"v_rcp_f32 v{e+q}, v{e+q}", f"v_mul_f32 v{e+q}, v{base+q}, v{e+q}"])
            if opts.get('silu', 'diag') == 'diag':
                for tm in range(8 + 4):
                    for stg in range(5):
                        q = tm - stg
                        if 0 <= q < 8: b(seq[q][stg])
            elif opts.get('silu') == 'block':
                for stg in range(5):
                    for q in range(8): b(seq[q][stg])
            else:
                for tm in range(8 + 8):
                    for stg in range(5):
                        q = tm - 2 * stg
                        if 0 <= q < 8: b(seq[q][stg])
            for q in range(4): b(f"v_cvt_pk_bf16_f32 v{d+q}, v{e+2*q}, v{e+2*q+1}")
        b(f"s_add_u32 s{sK0}, s{sU}, {(2*ft+kk)*1024}")
        b(f"buffer_store_dwordx4 {v(d,4)}, v{fL16}, {s(sHF,4)}, s{sK0} offen {STF}")
    return b

gPX, gPB = 2, 6
vLBa, vImgW, vImgR, vL16o = 10, 11, 12, 13
vL, vC2, vL16, vL32, vL128, vL256, vF1, vG, vHfm = 16, 18, 20, 22, 24, 26, 28, 30, 32
vNon, vK, vQ, vW_, vPre, vTmp = 34, 36, 38, 40, 42, 44
vP = 48
aRE, aIM, vU = 64, 80, 96
aSX, aSB = 0, 16

def k1_S_setup():
    b = B(); L = vLane; t = vP
    b("s_waitcnt lgkmcnt(0)")
    srd(b, sHF, 34, WS_USED)
    b(f"v_and_b32 v{t}, 31, v{L}")
    b(f"s_lshl_b32 s{sT0}, s{sS}, 5")
    b(f"v_add_u32 v{t}, s{sT0}, v{t}")
    b(f"v_lshlrev_b32 v{t}, 1, v{t}")
    b(f"global_load_ushort v{vP+8}, v{t}, s[6:7]")
    b(f"global_load_ushort v{vP+9}, v{t}, s[8:9]")
    b(f"global_load_ushort v{vP+10}, v{t}, s[18:19]")
    b(f"v_mov_b32 v{t}, {NONCE_OFF}")
    b(f"global_load_dwordx2 {v(vU+26,2)}, v{t}, s[34:35] sc1")
    if int(opts.get('tlbw', 0)):
        pd = vU + 12
        b(f"s_cmp_eq_u32 s{sWm}, 2")
        b("s_cbranch_scc0 L_k1_tlb_done")
        b(f"v_mov_b32 v{t}, 0")
        for k, ptr in enumerate((24, 14, 16, 26, 20)):
            b(f"global_load_dword v{pd+k}, v{t}, {s(ptr,2)}", 'nocount')
        b(f"v_min_u32 v{t}, 19, v{L}")
        b(f"v_lshlrev_b32 v{t}, 20, v{t}")
        b(f"global_load_dword v{pd+5}, v{t}, s[34:35]", 'nocount')
        b(f"v_and_b32 v{t}, 3, v{L}")
        b(f"v_lshlrev_b32 v{t}, 20, v{t}")
        b(f"global_load_dword v{pd+6}, v{t}, s[30:31]", 'nocount')
        b("L_k1_tlb_done:")
    PF = int(opts.get('pf', 0))
    if PF:
        pd = vU + 28
        b(f"s_cmp_eq_u32 s{sWm}, 0")
        b("s_cbranch_scc0 L_k1_pf_1")
        b(f"v_lshrrev_b32 v{t}, 3, v{L}")
        b(f"s_lshl_b32 s{sT2}, s2, 3")
        b(f"v_add_u32 v{t}, s{sT2}, v{t}")
        b(f"v_lshlrev_b32 v{t}, 10, v{t}")
        b(f"v_and_b32 v{t+1}, 7, v{L}")
        b(f"v_max_u32 v{t+1}, 3, v{t+1}")
        b(f"v_lshl_add_u32 v{t}, v{t+1}, 7, v{t}")
        b(f"global_load_dword v{pd}, v{t}, s[4:5]", 'nocount')
        b("L_k1_pf_1:")
        b(f"s_cmp_eq_u32 s{sWm}, 1")
        b("s_cbranch_scc0 L_k1_pf_2")
        b(f"v_bfe_u32 v{t}, v{L}, 3, 1")
        b(f"s_lshl_b32 s{sT2}, s2, 1")
        b(f"v_add_u32 v{t}, s{sT2}, v{t}")
        b(f"v_lshlrev_b32 v{t}, 10, v{t}")
        b(f"v_and_b32 v{t+1}, 7, v{L}")
        b(f"v_max_u32 v{t+1}, 3, v{t+1}")
        b(f"v_lshl_add_u32 v{t}, v{t+1}, 7, v{t}")
        b(f"global_load_dword v{pd}, v{t}, s[10:11]", 'nocount')
        b(f"global_load_dword v{pd+1}, v{t}, s[12:13]", 'nocount')
        b("L_k1_pf_2:")
        b(f"s_cmp_eq_u32 s{sWm}, 2")
        b("s_cbranch_scc0 L_k1_pf_done")
        b(f"v_lshrrev_b32 v{t}, 5, v{L}")
        b(f"s_lshl_b32 s{sT2}, s2, 1")
        b(f"v_add_u32 v{t}, s{sT2}, v{t}")
        b(f"v_mul_u32_u24 v{t}, 3584, v{t}")
        b(f"v_and_b32 v{t+1}, 31, v{L}")
        b(f"v_min_u32 v{t+1}, 27, v{t+1}")
        b(f"v_lshl_add_u32 v{t}, v{t+1}, 7, v{t}")
        b(f"global_load_dword v{pd}, v{t}, s[24:25]", 'nocount')
        b("L_k1_pf_done:")
    b(f"v_and_b32 v{t}, 31, v{L}")
    b(f"v_lshrrev_b32 v{t+1}, 5, v{L}")
    b(f"v_bfe_u32 v{t+2}, v{L}, 1, 3")
    b(f"v_xor_b32 v{t+2}, v{t+1}, v{t+2}")
    b(f"v_lshlrev_b32 v{t+1}, 7, v{t}")
    b(f"v_add_u32 v{t+1}, s{sLdsX}, v{t+1}")
    b(f"v_lshrrev_b32 v{t+3}, 3, v{t}")
    b(f"v_lshlrev_b32 v{t+3}, 11, v{t+3}")
    b(f"v_and_b32 v{t}, 7, v{t}")
    b(f"v_lshl_add_u32 v{t}, v{t}, 7, v{t+3}")
    b(f"v_add_u32 v{t}, 16384, v{t}")
    for k in range(4):
        b(f"v_xor_b32 v{t+3}, {2*k}, v{t+2}")
        b(f"v_lshl_add_u32 v{gPX+k}, v{t+3}, 4, v{t+1}")
        b(f"v_lshl_add_u32 v{gPB+k}, v{t+3}, 4, v{t}")
    return b

def k1_params():
    b = F()
    lre, lim, ldt = vP+8, vP+9, vP+10
    va, vang, t0 = vP, vP+1, vP+2
    b(f"v_lshlrev_b32 v{lre}, 16, v{lre}")
    b(f"v_lshlrev_b32 v{lim}, 16, v{lim}")
    b(f"v_lshlrev_b32 v{ldt}, 16, v{ldt}")
    b(f"v_mul_f32 v{ldt}, {LOG2E:#x}, v{ldt}")
    b(f"v_exp_f32 v{ldt}, v{ldt}")
    b(f"v_cvt_pk_bf16_f32 v{ldt}, v{ldt}, v{ldt}")
    b(f"v_lshlrev_b32 v{ldt}, 16, v{ldt}")
    b(f"v_mul_f32 v{va}, v{ldt}, v{lre}")
    b(f"v_mul_f32 v{vang}, v{ldt}, v{lim}")
    b(f"v_mul_f32 v{va}, {LOG2E:#x}, v{va}")
    b(f"v_mul_f32 v{vang}, {INV2PI:#x}, v{vang}")
    cexp(b, vL, "1.0", va, vang, t0)
    for dst, cst in ((vL16, 0x41800000), (vL32, 0x42000000), (vL128, 0x43000000), (vL256, 0x43800000)):
        b(f"v_mov_b32 v{t0+3}, {cst:#x}")
        cexp(b, dst, f"v{t0+3}", va, vang, t0)
    b(f"v_lshrrev_b32 v{t0+3}, 5, v{vLane}")
    b(f"v_cvt_f32_u32 v{vHfm}, v{t0+3}")
    b(f"v_lshlrev_b32 v{t0+3}, 4, v{t0+3}")
    b(f"v_cvt_f32_u32 v{t0+3}, v{t0+3}")
    cexp(b, vF1, f"v{t0+3}", va, vang, t0)
    b(f"v_lshrrev_b32 v{t0+3}, 5, v{vLane}")
    b(f"v_lshlrev_b32 v{t0+3}, 4, v{t0+3}")
    b(f"s_lshl_b32 s{sSpin}, s{sWm}, 5")
    b(f"v_add_u32 v{t0+3}, s{sSpin}, v{t0+3}")
    b(f"v_cvt_f32_u32 v{t0+3}, v{t0+3}")
    cexp(b, vG, f"v{t0+3}", va, vang, t0)
    b(f"v_add_f32 v{t0}, -1.0, v{vL}")
    b(f"v_mul_f32 v{t0+1}, v{lre}, v{lre}")
    b(f"v_fma_f32 v{t0+1}, v{lim}, v{lim}, v{t0+1}")
    b(f"v_rcp_f32 v{t0+1}, v{t0+1}")
    b(f"v_mul_f32 v{vC2}, v{t0}, v{lre}")
    b(f"v_fma_f32 v{vC2}, v{vL+1}, v{lim}, v{vC2}")
    b(f"v_mul_f32 v{vC2+1}, v{vL+1}, v{lre}")
    b(f"v_fma_f32 v{vC2+1}, -v{t0}, v{lim}, v{vC2+1}")
    b(f"v_add_f32 v{t0+1}, v{t0+1}, v{t0+1}")
    b(f"v_mul_f32 v{vC2}, v{vC2}, v{t0+1}")
    b(f"v_mul_f32 v{vC2+1}, v{vC2+1}, v{t0+1}")
    return b

def k1_setup_common():
    b = F(); t = vP + 12; L = vLane
    for k, m in ((1, sM1), (2, sM2), (3, sM3)):
        g = B()
        g(f"s_cmp_ge_u32 s{sWm}, {k}")
        g(f"s_cselect_b64 {s(m,2)}, -1, 0")
        b.group(g)
    b(f"v_lshlrev_b32 v{vL16o}, 4, v{L}")
    b(f"v_and_b32 v{t}, 31, v{L}")
    b(f"v_lshlrev_b32 v{t}, 4, v{t}")
    b(f"s_lshl_b32 s{sK0}, s{sS}, 9")
    b(f"s_add_u32 s{sK0}, s{sK0}, {E_OFF}")
    b(f"v_add_u32 v{vLBa}, s{sK0}, v{t}")
    b(f"v_and_b32 v{t}, 31, v{L}")
    b(f"v_mul_u32_u24 v{t}, 80, v{t}")
    b(f"v_lshrrev_b32 v{t+1}, 5, v{L}")
    b(f"v_lshl_add_u32 v{t}, v{t+1}, 5, v{t}")
    b(f"s_mul_i32 s{sK0}, s{sWm}, 5120")
    b(f"s_add_u32 s{sK0}, s{sK0}, {SCR}")
    b(f"v_add_u32 v{vImgW}, s{sK0}, v{t}")
    b(f"v_lshrrev_b32 v{t+1}, 5, v{L}")
    b(f"v_lshlrev_b32 v{t+1}, 3, v{t+1}")
    b(f"v_bfe_u32 v{t+2}, v{L}, 2, 2")
    b(f"v_add_u32 v{t+1}, v{t+1}, v{t+2}")
    b(f"v_mul_u32_u24 v{t+1}, 80, v{t+1}")
    b(f"v_and_b32 v{t+2}, 1, v{L}")
    b(f"v_lshlrev_b32 v{t+2}, 5, v{t+2}")
    b(f"v_bfe_u32 v{t+3}, v{L}, 4, 1")
    b(f"v_lshlrev_b32 v{t+3}, 4, v{t+3}")
    b(f"v_add3_u32 v{t+1}, v{t+1}, v{t+2}, v{t+3}")
    b(f"v_bfe_u32 v{t+2}, v{L}, 1, 1")
    b(f"v_lshlrev_b32 v{t+2}, 3, v{t+2}")
    b(f"v_add3_u32 v{vImgR}, v{t+1}, v{t+2}, s{sK0}")
    return b

def k1_gjob_all(b):
    L = vLane
    xs0, gs, t = 32, 16, 24
    gu = 64
    b(f"v_and_b32 v{t}, 31, v{L}")
    b(f"v_lshlrev_b32 v{t}, 4, v{t}")
    b(f"global_load_dwordx4 {v(gs,4)}, v{t}, s[28:29]")
    b(f"global_load_dwordx4 {v(gs+4,4)}, v{t}, s[28:29] offset:512")
    b(f"v_lshrrev_b32 v{t+1}, 5, v{L}")
    b(f"s_lshl_b32 s{sT1}, s{sT0}, 4")
    b(f"v_add_u32 v{t+1}, s{sT1}, v{t+1}")
    b(f"v_lshlrev_b32 v{t+2}, 3, v{t+1}")
    b(f"v_add_u32 v{t+2}, {G_OFF}, v{t+2}")
    b(f"v_lshlrev_b32 v{t+1}, 10, v{t+1}")
    b(f"v_add_u32 v{t+1}, v{t+1}, v{t}")
    def ld(p):
        r = xs0 + (p % 4) * 8
        if p: b(f"v_add_u32 v{t+1}, 2048, v{t+1}")
        b(f"global_load_dwordx4 {v(r,4)}, v{t+1}, s[4:5]")
        b(f"global_load_dwordx4 {v(r+4,4)}, v{t+1}, s[4:5] offset:512")
    for p in range(3): ld(p)
    for k in range(8):
        b(f"v_lshlrev_b32 v{gu+2*k}, 16, v{gs+k}")
        b(f"v_and_b32 v{gu+2*k+1}, 0xffff0000, v{gs+k}")
    b(f"v_and_b32 v{t+3}, 31, v{L}")
    w = 80
    for p in range(8):
        if p + 3 < 8: ld(p + 3)
        xs = xs0 + (p % 4) * 8
        acc = w
        for k in range(8):
            a0 = w + 2 + 2 * (k % 4)
            b(f"v_lshlrev_b32 v{a0}, 16, v{xs+k}")
            b(f"v_and_b32 v{a0+1}, 0xffff0000, v{xs+k}")
            b(f"v_pk_mul_f32 {v(a0,2)}, {v(a0,2)}, {v(gu+2*k,2)}")
            b(f"v_cvt_pk_bf16_f32 v{a0}, v{a0}, v{a0+1}")
            b(f"v_and_b32 v{a0+1}, 0xffff0000, v{a0}")
            b(f"v_lshlrev_b32 v{a0}, 16, v{a0}")
            if k == 0:
                b(f"v_add_f32 v{acc}, v{a0}, v{a0+1}")
            else:
                b(f"v_add_f32 v{a0}, v{a0}, v{a0+1}")
                b(f"v_add_f32 v{acc}, v{acc}, v{a0}")
        for r in (8, 4, 2, 1):
            b(f"v_add_f32_dpp v{acc}, v{acc}, v{acc} row_ror:{r} row_mask:0xf bank_mask:0xf")
        b(f"v_mov_b32 v{acc+1}, v{acc}")
        b(f"v_permlane16_swap_b32 v{acc}, v{acc+1}")
        b(f"v_add_f32 v{acc}, v{acc}, v{acc+1}")
        b(f"v_cvt_pk_bf16_f32 v{acc}, v{acc}, v{acc}")
        b(f"v_lshlrev_b32 v{acc}, 16, v{acc}")
        b(f"v_mul_f32 v{acc}, {LOG2E ^ 0x80000000:#x}, v{acc}")
        b(f"v_exp_f32 v{acc}, v{acc}")
        b(f"v_add_f32 v{acc}, 1.0, v{acc}")
        b(f"v_rcp_f32 v{acc}, v{acc}")
        b(f"v_cvt_pk_bf16_f32 v{acc}, v{acc}, v{acc}")
        d = w + 10 + 2 * (p % 2)
        b(f"v_lshlrev_b32 v{d}, 16, v{acc}")
        b(f"v_sub_f32 v{d+1}, 1.0, v{d}")
        b(f"v_cvt_pk_bf16_f32 v{d+1}, v{d+1}, v{d+1}")
        b(f"v_lshlrev_b32 v{d+1}, 16, v{d+1}")
        b(f"v_cmp_eq_u32 vcc, 0, v{t+3}")
        b(f"s_and_saveexec_b64 {s(sEX,2)}, vcc")
        b(f"global_store_dwordx2 v{t+2}, {v(d,2)}, s[34:35] sc0 sc1")
        b(f"s_mov_b64 exec, {s(sEX,2)}")
        b(f"v_add_u32 v{t+2}, 16, v{t+2}")

def k1_nonce():
    b = F()
    t = vU + 26
    b(f"v_add_u32 v{t}, 1, v{t}")
    b(f"v_or_b32 v{t+1}, 1, v{t+1}")
    b(f"v_mov_b32 v{t+2}, {NONCE_OFF}")
    b(f"v_mov_b32 v{t+3}, 0")
    g = B()
    g(f"s_or_b32 s{sSpin}, s2, s{sWave}")
    g(f"s_cmp_lg_u32 s{sSpin}, 0")
    g("s_cbranch_scc1 L_k1_nononce")
    g(f"global_store_dwordx2 v{t+2}, {v(t,2)}, s[34:35] sc0 sc1", 'nocount')
    g(f"global_store_dwordx2 v{t+3}, {v(t,2)}, s[32:33] sc0 sc1", 'nocount')
    g("L_k1_nononce:")
    b.group(g)
    return b

def k1_S():
    b = k1_S_setup()
    if int(opts.get('sprio', 1)): b("s_setprio 2")
    m = B()
    for i in range(8):
        m("s_waitcnt lgkmcnt(0)")
        m("s_barrier")
        po = (i % NSLOT) * SLOT
        hi = po >= 65536 - 1024
        if hi:
            for k in range(4):
                m(f"v_add_u32 v{vTmp+k}, 0x10000, v{gPX+k}")
        for k in range(4):
            if hi: m(f"ds_read_b128 {a(aSX+4*k,4)}, v{vTmp+k} offset:{po - 65536}")
            else: m(f"ds_read_b128 {a(aSX+4*k,4)}, v{gPX+k} offset:{po}")
        if hi:
            for k in range(4):
                m(f"v_add_u32 v{vTmp+k}, 0x10000, v{gPB+k}")
        for k in range(4):
            for mm in range(2):
                if hi: m(f"ds_read_b128 {a(aSB+8*k+4*mm,4)}, v{vTmp+k} offset:{po - 65536 + mm*1024}")
                else: m(f"ds_read_b128 {a(aSB+8*k+4*mm,4)}, v{gPB+k} offset:{po + mm*1024}")
        for k in range(4):
            for mm, acc in ((0, aRE), (1, aIM)):
                c = v(acc, 16) if (i, k) != (0, 0) else "0"
                m(f"v_mfma_f32_32x32x16_bf16 {v(acc,16)}, {a(aSX+4*k,4)}, {a(aSB+8*k+4*mm,4)}, {c}")
    f = F()
    f.ext(k1_nonce())
    f.ext(k1_params())
    f.ext(k1_setup_common())
    g = B()
    g(f"v_mov_b32 v{vTmp}, 0")
    g(f"global_load_dwordx2 {v(vNon,2)}, v{vTmp}, s[32:33] sc1")
    f.group(g)
    b.ext(merge(m.ops, f.ops, per=int(opts.get('per1', 5))))
    b("s_waitcnt vmcnt(0)")
    stamp(b, 2)
    s1 = flat(k1_scan1a().ops)
    cut = [j for j, o in enumerate(s1) if o.kind == 'ds'][0]
    if STAMP >= 2: stamp(b, 8)
    b.ext(s1[:cut])
    if STAMP >= 2: stamp(b, 9)
    b("s_barrier")
    b.ext(s1[cut:])
    if STAMP >= 2: stamp(b, 11)
    b("s_barrier")
    if STAMP >= 2: stamp(b, 12)
    b.ext(flat(k1_scan1b().ops))
    if STAMP >= 2: stamp(b, 13)
    b.ext(k1_publish())
    stamp(b, 3)
    b("s_barrier")
    b.ext(p2_S_csetup())
    if opts.get('lbfirst', '0') == '1':
        b("s_barrier")
        stamp(b, 4)
        b.ext(k1_lookback())
        stamp(b, 5)
        b.ext(k1_final())
        b.ext(p2_S_cdma())
        b.ext(p2_S_creads())
    else:
        b("s_barrier")
        b.ext(p2_S_cdma())
        stamp(b, 4)
        b.ext(k1_lookback())
        stamp(b, 5)
        b.ext(k1_final())
        b.ext(p2_S_creads())
    stamp(b, 6)
    return b

def cfma_sr(b, d, l, h, ure, uim, tmp):
    b(f"v_fma_f32 v{tmp}, v{l}, v{h}, v{ure}")
    b(f"v_fma_f32 v{tmp+1}, v{l}, v{h+1}, v{uim}")
    b(f"v_fma_f32 v{d}, -v{l+1}, v{h+1}, v{tmp}")
    b(f"v_fma_f32 v{d+1}, v{l+1}, v{h}, v{tmp+1}")

def k1_scan1a():
    b = F()
    tmp = vTmp
    R = lambda t: aRE + reg_of_t(t)
    I = lambda t: aIM + reg_of_t(t)
    b(f"v_mov_b32 v{vQ}, v{R(0)}\nv_mov_b32 v{vQ+1}, v{I(0)}")
    cur = vQ
    for t in range(1, 16):
        nxt = vQ if cur == vW_ else vW_
        cfma_sr(b, nxt, vL, cur, R(t), I(t), tmp)
        cur = nxt
    assert cur == vW_
    b(f"v_mov_b32 v{vPre}, v{cur}\nv_mov_b32 v{vPre+1}, v{cur+1}")
    b(f"v_mov_b32 v{vQ}, v{cur}\nv_mov_b32 v{vQ+1}, v{cur+1}")
    b(f"v_permlane32_swap_b32 v{vPre}, v{vQ}")
    b(f"v_permlane32_swap_b32 v{vPre+1}, v{vQ+1}")
    cfma_s(b, vW_, vL16, vPre, vQ, tmp)
    b(f"v_mul_f32 v{vPre}, v{vPre}, v{vHfm}\nv_mul_f32 v{vPre+1}, v{vPre+1}, v{vHfm}")
    t = vP
    b(f"v_and_b32 v{t+14}, 31, v{vLane}")
    b(f"v_lshlrev_b32 v{t+14}, 3, v{t+14}")
    b(f"v_add_u32 v{t+14}, {SCR}, v{t+14}")
    b(f"s_lshl_b32 s{sK0}, s{sWm}, 8")
    b(f"v_add_u32 v{t+15}, s{sK0}, v{t+14}")
    b(f"ds_write_b64 v{t+15}, {v(vW_,2)} offset:{SC}", "Wx")
    b.wait('lg', "Wx")
    return b

def k1_scan1b():
    b = F()
    t = vP; tmp = vTmp
    for w in range(4):
        b(f"ds_read_b64 {v(t+2*w,2)}, v{t+14} offset:{SC + 256*w}")
    W0, W1, W2, W3 = t, t+2, t+4, t+6
    Q2, Q3 = t+8, t+10
    cfma_s(b, Q2, vL32, W0, W1, tmp)
    cfma_s(b, Q3, vL32, Q2, W2, tmp)
    E = t + 12
    cfma_s(b, E, vL32, Q3, W3, tmp)
    for h in range(2):
        b(f"v_cndmask_b32 v{vQ+h}, 0, v{W0+h}, {s(sM1,2)}")
        b(f"v_cndmask_b32 v{vQ+h}, v{vQ+h}, v{Q2+h}, {s(sM2,2)}")
        b(f"v_cndmask_b32 v{vQ+h}, v{vQ+h}, v{Q3+h}, {s(sM3,2)}")
    cfma_s(b, vK, vF1, vQ, vPre, tmp)
    return b

def k1_publish():
    t = vP; E = t + 12; tmp = vTmp
    g = B()
    g(f"s_lshl_b32 s{sK0}, s{sR}, 13")
    g(f"v_add_u32 v{tmp}, s{sK0}, v{vLBa}")
    g(f"v_lshrrev_b32 v{tmp+1}, 3, v{vLane}")
    g(f"v_cmp_ne_u32 vcc, 0, v{vNon+1}")
    g("s_cbranch_vccnz L_k1_nonce_ok")
    g(f"s_mov_b32 s{sSpin}, 0")
    g("L_k1_nonce_retry:")
    g(f"v_mov_b32 v{tmp+2}, 0")
    g(f"global_load_dwordx2 {v(vNon,2)}, v{tmp+2}, s[32:33] sc1", 'nocount')
    g("s_waitcnt vmcnt(0)", 'nocount')
    g(f"s_add_u32 s{sSpin}, s{sSpin}, 1")
    g(f"s_cmp_gt_u32 s{sSpin}, 40000")
    g("s_cbranch_scc1 L_k1_nonce_ok")
    g(f"v_cmp_ne_u32 vcc, 0, v{vNon+1}")
    g("s_cbranch_vccz L_k1_nonce_retry")
    g("L_k1_nonce_ok:")
    g(f"v_mov_b32 v{E+2}, v{vNon}\nv_mov_b32 v{E+3}, v{vNon+1}")
    g(f"v_cmp_eq_u32 vcc, s{sWm}, v{tmp+1}")
    g(f"s_and_saveexec_b64 {s(sEX,2)}, vcc")
    g(f"global_store_dwordx4 v{tmp}, {v(E,4)}, s[34:35] sc0 sc1")
    g(f"s_mov_b64 exec, {s(sEX,2)}")
    return g

def k1_lookback():
    b = B(); tmp = vTmp; t = vP
    H = vW_
    def loads(tok):
        b(f"s_sub_u32 s{sK0}, s{sR}, 1")
        b(f"s_lshl_b32 s{sK0}, s{sK0}, 13")
        b(f"v_lshrrev_b32 v{t}, 5, v{vLane}")
        b(f"v_lshlrev_b32 v{t}, 13, v{t}")
        b(f"v_sub_u32 v{t}, s{sK0}, v{t}")
        b(f"v_add_u32 v{t}, v{vLBa}, v{t}")
        for mm in range(8):
            if mm: b(f"v_subrev_u32 v{t}, 16384, v{t}")
            b(f"v_max_i32 v{t+1}, v{t}, v{vLBa}")
            b(f"global_load_dwordx4 {v(vU+4*mm,4)}, v{t+1}, s[34:35] sc1", tok)
    b(f"s_cmp_eq_u32 s{sR}, 0")
    b("s_cbranch_scc1 L_k1_lb_zero")
    b(f"s_mov_b32 s{sSpin}, 0")
    b("L_k1_lb_again:")
    loads('nocount')
    b("s_waitcnt vmcnt(0)", 'nocount')
    b(f"s_mov_b64 {s(sEX,2)}, -1")
    for mm in range(8):
        b(f"s_cmp_le_u32 s{sR}, {2*mm}")
        b("s_cbranch_scc1 L_k1_lb_checked")
        b(f"s_cmp_ge_u32 s{sR}, {2*mm+2}")
        b(f"s_cselect_b32 s{sT1}, 0, -1")
        b(f"v_cmp_eq_u32 vcc, v{vU+4*mm+2}, v{vNon}")
        b(f"v_cmp_eq_u32 {s(sT2,2)}, v{vU+4*mm+3}, v{vNon+1}")
        b(f"s_and_b64 vcc, vcc, {s(sT2,2)}")
        b(f"s_or_b32 vcc_hi, vcc_hi, s{sT1}")
        b(f"s_and_b64 {s(sEX,2)}, {s(sEX,2)}, vcc")
    b("L_k1_lb_checked:")
    b(f"s_cmp_eq_u64 {s(sEX,2)}, -1")
    b("s_cbranch_scc1 L_k1_lb_ok")
    b(f"s_add_u32 s{sSpin}, s{sSpin}, 1")
    b(f"s_cmp_gt_u32 s{sSpin}, 40000")
    b("s_cbranch_scc1 L_k1_lb_ok")
    b(f"s_sleep {int(opts.get('lbsleep', 4))}")
    b("s_branch L_k1_lb_again")
    b("L_k1_lb_ok:")
    b(f"v_mov_b32 v{H}, 0\nv_mov_b32 v{H+1}, 0")
    for mm in range(7, -1, -1):
        b(f"s_cmp_le_u32 s{sR}, {2*mm}")
        b(f"s_cbranch_scc1 L_k1_lb_h{mm}")
        b(f"s_cmp_ge_u32 s{sR}, {2*mm+2}")
        b(f"s_cselect_b32 s{sT3}, -1, 0")
        b(f"s_mov_b32 s{sT2}, -1")
        b(f"v_cndmask_b32 v{vU+4*mm}, 0, v{vU+4*mm}, {s(sT2,2)}")
        b(f"v_cndmask_b32 v{vU+4*mm+1}, 0, v{vU+4*mm+1}, {s(sT2,2)}")
        b(f"v_fma_f32 v{tmp}, v{vL256}, v{H}, v{vU+4*mm}")
        b(f"v_fma_f32 v{tmp+1}, v{vL256}, v{H+1}, v{vU+4*mm+1}")
        b(f"v_fma_f32 v{tmp}, -v{vL256+1}, v{H+1}, v{tmp}")
        b(f"v_fma_f32 v{H+1}, v{vL256+1}, v{H}, v{tmp+1}")
        b(f"v_mov_b32 v{H}, v{tmp}")
        b(f"L_k1_lb_h{mm}:")
    b(f"v_mov_b32 v{vPre}, v{H}\nv_mov_b32 v{vPre+1}, v{H+1}")
    b(f"v_permlane32_swap_b32 v{H}, v{vPre}")
    b(f"v_permlane32_swap_b32 v{H+1}, v{vPre+1}")
    cfma_s(b, t, vL128, vPre, H, tmp)
    cfma_s(b, vQ, vG, t, vK, tmp)
    b("s_branch L_k1_lb_done")
    b("L_k1_lb_zero:")
    b(f"v_mov_b32 v{vQ}, v{vK}\nv_mov_b32 v{vQ+1}, v{vK+1}")
    b("L_k1_lb_done:")
    return b

def k1_final():
    b = B()
    tmp = vTmp
    prev = vQ
    for t in range(16):
        r = reg_of_t(t)
        u = vU + 2 * r
        cfma_sr(b, u, vL, prev, aRE + r, aIM + r, tmp)
        prev = u
    for r in range(16):
        u = vU + 2 * r
        tp = vP + 2 * (r % 4)
        b(f"v_mul_f32 v{tp}, v{vC2}, v{u}")
        b(f"v_mul_f32 v{tp+1}, v{vC2+1}, v{u}")
        b(f"v_fma_f32 v{u}, -v{vC2+1}, v{u+1}, v{tp}")
        b(f"v_fma_f32 v{u+1}, v{vC2}, v{u+1}, v{tp+1}")
    for k in range(8):
        b(f"v_cvt_pk_bf16_f32 v{aRE+k}, v{vU+4*k}, v{vU+4*k+2}")
    for h in range(2):
        b(f"ds_write_b128 v{vImgW}, {v(aRE+4*h,4)} offset:{IMG + h*16}", "img")
    for k in range(8):
        b(f"v_cvt_pk_bf16_f32 v{aRE+8+k}, -v{vU+4*k+1}, -v{vU+4*k+3}")
    for h in range(2):
        b(f"ds_write_b128 v{vImgW}, {v(aRE+8+4*h,4)} offset:{IMG + 2560 + h*16}", "img")
    b(f"s_lshl_b32 s{sT2}, s{sS}, 12")
    b(f"s_add_u32 s{sT1}, s{sHFb}, s{sT2}")
    b.wait('lg', "img")
    for m in range(2):
        for kk in range(2):
            r = aIM + (2*m + kk) * 4
            for rd in range(2):
                b(f"ds_read_b64_tr_b16 {v(r+2*rd,2)}, v{vImgR} offset:{IMG + (m*32 + 16*kk + 4*rd)*80}")
    for m in range(2):
        for kk in range(2):
            r = aIM + (2*m + kk) * 4
            b(f"s_add_u32 s{sT2}, s{sT1}, {(2*m+kk)*1024}")
            b(f"buffer_store_dwordx4 {v(r,4)}, v{vL16o}, {s(sHF,4)}, s{sT2} offen {STF}")
    return b


pA, pC1, pC2 = 36, 40, 44
pH, pN, pK0, pLw, pOff = 72, 73, 74, 75, 76
pNib = 84
CST = 98304
vCe, vCo, vPp = 2, 3, 4
vH0g, vH1g, vH0k, vH1k = 2, 3, 4, 5
vTau, vSg, vSk = 8, 10, 12
vWrq = 16
PITCH = 256

def p2_ids(b):
    b(f"s_lshr_b32 s{pH}, s{sS}, 3")
    b(f"s_and_b32 s{pN}, s{sS}, 7")

def p2_S_csetup():
    b = B(); L = vLane; t = vP
    p2_ids(b)
    srd(b, pC1, 14, 512*1024)
    srd(b, pC2, 16, 512*1024)
    b(f"v_and_b32 v{t}, 7, v{L}")
    b(f"v_lshrrev_b32 v{t+1}, 4, v{L}")
    b(f"v_xor_b32 v{t}, v{t}, v{t+1}")
    b(f"v_lshlrev_b32 v{t}, 4, v{t}")
    b(f"v_lshrrev_b32 v{t+1}, 3, v{L}")
    b(f"v_lshlrev_b32 v{t+1}, 10, v{t+1}")
    b(f"v_add_u32 v{vCe}, v{t}, v{t+1}")
    b(f"v_xor_b32 v{vCo}, 64, v{vCe}")
    b(f"s_lshl_b32 s{pOff}, s{pN}, 16")
    b(f"s_lshl_b32 s{sT0}, s{pH}, 9")
    b(f"s_add_u32 s{pOff}, s{pOff}, s{sT0}")
    b(f"s_lshl_b32 s{sT0}, s{sWm}, 7")
    b(f"s_add_u32 s{pOff}, s{pOff}, s{sT0}")
    b(f"s_lshl_b32 s{pLw}, s{sWm}, 14")
    b(f"s_add_u32 s{pLw}, s{pLw}, {CST}")
    b(f"v_and_b32 v{t}, 31, v{L}")
    b(f"v_lshlrev_b32 v{t}, 7, v{t}")
    b(f"v_add_u32 v{t}, s{pLw}, v{t}")
    b(f"v_lshrrev_b32 v{t+1}, 5, v{L}")
    b(f"v_bfe_u32 v{t+2}, v{L}, 1, 3")
    b(f"v_xor_b32 v{t+2}, v{t+1}, v{t+2}")
    for k in range(4):
        b(f"v_xor_b32 v{t+1}, {2*k}, v{t+2}")
        b(f"v_lshl_add_u32 v{vPp+k}, v{t+1}, 4, v{t}")
    return b

def p2_S_cdma():
    b = B()
    for m in range(2):
        for aa in range(8):
            b(f"s_add_u32 m0, s{pLw}, {m*8192 + aa*1024}")
            b(f"s_add_u32 s{sT0}, s{pOff}, {aa*8192}")
            b(f"buffer_load_dwordx4 v{vCe if aa % 2 == 0 else vCo}, {s(pC1 if m == 0 else pC2,4)}, s{sT0} offen lds", "cst")
    return b

ROT2 = int(opts.get('rot2', 1))
pKS = 48
def p2_S_creads():
    b = B()
    if not ROT2:
        b.wait('vm', "cst")
        for j in range(8):
            m = (j >> 1) & 1; ksp = 2 * (j >> 2) + (j & 1)
            for aa in range(2):
                b(f"ds_read_b128 {a(8*j+4*aa,4)}, v{vPp+ksp} offset:{m*8192 + aa*4096}")
        for j in range(8): b(f"s_mov_b32 s{pKS+j}, {j*1024}")
        return b
    t = vP; L = vLane
    b(f"v_and_b32 v{t}, 31, v{L}")
    b(f"v_lshlrev_b32 v{t}, 7, v{t}")
    b(f"v_add_u32 v{t}, s{pLw}, v{t}")
    b(f"v_lshrrev_b32 v{t+1}, 5, v{L}")
    b(f"v_bfe_u32 v{t+2}, v{L}, 1, 3")
    b(f"v_xor_b32 v{t+1}, v{t+1}, v{t+2}")
    b.wait('vm', "cst")
    for j in range(8):
        b(f"s_add_u32 s{sT0}, s{pN}, {j}")
        b(f"s_and_b32 s{sT0}, s{sT0}, 7")
        b(f"s_lshl_b32 s{pKS+j}, s{sT0}, 10")
        b(f"s_lshr_b32 s{sT1}, s{sT0}, 2")
        b(f"s_lshl_b32 s{sT1}, s{sT1}, 1")
        b(f"s_and_b32 s{sT2}, s{sT0}, 1")
        b(f"s_add_u32 s{sT1}, s{sT1}, s{sT2}")
        b(f"s_lshl_b32 s{sT1}, s{sT1}, 1")
        b(f"s_bfe_u32 s{sT2}, s{sT0}, 0x10001")
        b(f"s_lshl_b32 s{sT2}, s{sT2}, 13")
        tt = t + 4 + (j % 4)
        b(f"v_xor_b32 v{tt}, s{sT1}, v{t+1}")
        b(f"v_lshl_add_u32 v{tt}, v{tt}, 4, v{t}")
        b(f"v_add_u32 v{tt}, s{sT2}, v{tt}")
        for aa in range(2):
            b(f"ds_read_b128 {a(8*j+4*aa,4)}, v{tt} offset:{aa*4096}")
    return b

def p2_common(b, role):
    L = vLane
    srd(b, pA, 34, WS_USED)
    b(f"s_xor_b32 s{sT0}, s{pH}, 1")
    b(f"s_lshl_b32 s{sT0}, s{sT0}, 1")
    b(f"s_lshl_b32 s{sT1}, s{sR}, 2")
    b(f"s_add_u32 s{sT0}, s{sT0}, s{sT1}")
    b(f"s_mul_i32 s{sT0}, s{sT0}, {176*1024}")
    b(f"v_lshlrev_b32 v6, 4, v{L}")
    b(f"v_add_u32 v{vH0g}, s{sT0}, v6")
    b(f"v_add_u32 v{vH1g}, {176*1024}, v{vH0g}")
    b(f"s_lshl_b32 s{sT0}, s{pH}, 2")
    b(f"s_sub_u32 s{sT0}, s{sT0}, 2")
    b(f"s_mul_i32 s{sT0}, s{sT0}, {176*1024}")
    b(f"v_add_u32 v{vH0k}, s{sT0}, v{vH0g}")
    b(f"v_add_u32 v{vH1k}, s{sT0}, v{vH1g}")
    b(f"s_lshl_b32 s{pK0}, s{pH}, 2")
    b(f"s_add_u32 s{pK0}, s{pK0}, s{sWm}")
    if role == 0:
        b(f"s_lshl_b32 s{pK0}, s{pK0}, 13")
    else:
        b(f"s_mul_i32 s{pK0}, s{pK0}, {14*1024}")
        b(f"s_add_u32 s{pK0}, s{pK0}, {64*1024}")

def p2_common2(b, role):
    L = vLane
    b(f"v_bfe_u32 v6, v{L}, 3, 2")
    b(f"v_and_b32 v7, 7, v{L}")
    b(f"v_lshl_add_u32 v{vTau}, v7, 2, v6")
    b(f"s_xor_b32 s{sT0}, s{pH}, 1")
    b(f"s_lshl_b32 s{sT0}, s{sT0}, 6")
    b(f"s_lshl_b32 s{sT1}, s{sR}, 7")
    b(f"s_add_u32 s{sT0}, s{sT0}, s{sT1}")
    b(f"v_add_u32 v6, s{sT0}, v{vTau}")
    b("v_lshlrev_b32 v6, 3, v6")
    b(f"v_add_u32 v6, {G_OFF + 4*role}, v6")
    b(f"global_load_dword v{vSg}, v6, s[34:35] sc1")
    b(f"global_load_dword v{vSg+1}, v6, s[34:35] offset:256 sc1")
    b(f"s_lshl_b32 s{sT0}, s{pH}, 7")
    b(f"s_sub_u32 s{sT0}, s{sT0}, 64")
    b(f"s_lshl_b32 s{sT0}, s{sT0}, 3")
    b(f"v_add_u32 v6, s{sT0}, v6")
    b(f"global_load_dword v{vSk}, v6, s[34:35] sc1")
    b(f"global_load_dword v{vSk+1}, v6, s[34:35] offset:256 sc1")
    b(f"s_lshl_b32 s{sT0}, s{sWm}, 14")
    if role == 0: b(f"s_add_u32 s{sT0}, s{sT0}, {CST}")
    b(f"v_lshlrev_b32 v9, 8, v{vTau}")
    b(f"v_add_u32 v9, s{sT0}, v9")
    b(f"v_lshrrev_b32 v6, 5, v{L}")
    b(f"v_and_b32 v7, 7, v{L}")
    b("v_xor_b32 v6, v6, v7")
    for q in range(4):
        b(f"v_xor_b32 v7, {2*q}, v6")
        b(f"v_lshl_add_u32 v{vWrq+q}, v7, 4, v9")

def p2_rwrite(b, acc, sc, dup=None):
    if dup is not None:
        b(f"v_mov_b32 v{dup}, v{sc}\nv_mov_b32 v{dup+1}, v{sc}\nv_mov_b32 v{dup+2}, v{sc+1}\nv_mov_b32 v{dup+3}, v{sc+1}")
    for aa in range(2):
        for bb in range(2):
            S = acc + (aa*2+bb)*16
            g = sc + bb
            gp = g & ~1; o = g & 1
            if dup is not None:
                for p in range(8):
                    b(f"v_pk_mul_f32 {v(S+2*p,2)}, {v(S+2*p,2)}, {v(dup+2*bb,2)}")
            elif opts.get('rw', 'scalar') == 'pk':
                for p in range(8):
                    b(f"v_pk_mul_f32 {v(S+2*p,2)}, {v(S+2*p,2)}, {v(gp,2)} op_sel:[0,{o}] op_sel_hi:[1,{o}]")
            else:
                for p in range(16):
                    b(f"v_mul_f32 v{S+p}, v{g}, v{S+p}")
            for q in range(4):
                b(f"ds_write_b128 v{vWrq+q}, {v(S+4*q,4)} offset:{bb*32*PITCH + aa*128}", "red")
    b.wait('lg', "red")

def p2_F():
    b = B(); L = vLane
    b("L_p2_F:")
    b("s_waitcnt vmcnt(0) lgkmcnt(0)")
    b("s_barrier")
    if int(opts.get('p2prio', 0)): b(f"s_setprio {int(opts.get('p2prio', 0))}")
    stamp(b, 7)
    p2_ids(b)
    srd(b, pC1, 26, 1792*1024)
    vWa, vWb, vTp = 6, 7, 20
    t = 24
    b(f"v_bfe_u32 v{t}, v{L}, 4, 1")
    b(f"v_lshlrev_b32 v{t}, 2, v{t}")
    b(f"v_and_b32 v{t+1}, 7, v{L}")
    b(f"v_xor_b32 v{t}, v{t}, v{t+1}")
    b(f"v_lshlrev_b32 v{t}, 4, v{t}")
    b(f"v_lshrrev_b32 v{t+1}, 3, v{L}")
    b(f"v_lshlrev_b32 v{t+1}, 10, v{t+1}")
    b(f"v_add_u32 v{vWa}, v{t}, v{t+1}")
    b(f"v_add_u32 v{vWb}, {8192 - 1024}, v{vWa}")
    b(f"s_lshl_b32 s{sT0}, s{pH}, 2")
    b(f"s_add_u32 s{sT0}, s{sT0}, s{sWm}")
    b(f"s_mul_i32 s{pOff}, s{sT0}, {14*16*1024}")
    b(f"s_lshl_b32 s{sT0}, s{pN}, 7")
    b(f"s_add_u32 s{pOff}, s{pOff}, s{sT0}")
    b(f"s_lshl_b32 s{pLw}, s{sWm}, 14")
    pKF = [48, 49, 50, 51, 52, 53, 54, 55, 77, 78, 79, 80, 81, 82]
    if ROT2:
        b(f"s_mul_i32 s{sT2}, s{pN}, 7")
        b(f"s_lshr_b32 s{sT2}, s{sT2}, 2")
        for i in range(14):
            b(f"s_add_u32 s{pKF[i]}, s{sT2}, {i}")
            b(f"s_cmp_ge_u32 s{pKF[i]}, 14")
            b(f"s_cselect_b32 s{sT3}, 14, 0")
            b(f"s_sub_u32 s{pKF[i]}, s{pKF[i]}, s{sT3}")
            b(f"s_lshl_b32 s{pKF[i]}, s{pKF[i]}, 10")
    else:
        for i in range(14): b(f"s_mov_b32 s{pKF[i]}, {i*1024}")
    def wdma(i):
        b(f"s_add_u32 m0, s{pLw}, {(i % 8)*2048}")
        b(f"s_lshl_b32 s{sT1}, s{pKF[i]}, 4")
        b(f"s_add_u32 s{sT1}, s{sT1}, s{pOff}")
        b(f"buffer_load_dwordx4 v{vWa}, {s(pC1,4)}, s{sT1} offen lds", f"f{i}")
        b(f"buffer_load_dwordx4 v{vWb}, {s(pC1,4)}, s{sT1} offen offset:1024 lds", f"f{i}")
    NPRE = int(opts.get('npre', 8))
    for i in range(NPRE): wdma(i)
    tr_pattern(b, vTp, 4, t)
    b(f"v_add_u32 v{vTp}, s{pLw}, v{vTp}")
    b(f"v_add_u32 v{vTp+1}, s{pLw}, v{vTp+1}")
    b(f"v_mov_b32 v22, v{vWa}\nv_mov_b32 v23, v{vWb}")
    vWa, vWb = 22, 23
    p2_common(b, 1)
    stamp(b, 24)
    b("s_barrier")
    stamp(b, 25)
    NSF, D = 14, 7
    def hreg(idx, k):
        sl = idx % D
        return v(24 + sl*8 + 4*k, 4) if sl < 5 else a(112 + (sl-5)*8 + 4*k, 4)
    def hload(idx):
        ps, i = divmod(idx, NSF)
        h0, h1 = (vH0g, vH1g) if ps == 0 else (vH0k, vH1k)
        b(f"s_add_u32 s{sT0}, s{pK0}, s{pKF[i]}")
        b(f"buffer_load_dwordx4 {hreg(idx,0)}, v{h0}, {s(pA,4)}, s{sT0} offen sc1")
        b(f"buffer_load_dwordx4 {hreg(idx,1)}, v{h1}, {s(pA,4)}, s{sT0} offen sc1")
    def wreads(i):
        b.wait('vm', f"f{i}")
        for aa in range(2):
            for rd in range(2):
                b(f"ds_read_b64_tr_b16 {a(8*i+4*aa+2*rd,2)}, v{vTp+aa} offset:{(i % 8)*2048 + rd*1024}", f"wr{i}")
    hload(0)
    rest = list(range(NPRE, 8))
    if rest: wdma(rest.pop(0))
    hload(1)
    if rest: wdma(rest.pop(0))
    wreads(0); wreads(1)
    hload(2)
    if rest: wdma(rest.pop(0))
    hload(3)
    for i in rest: wdma(i)
    DH1 = int(opts.get('dh1', 7))
    p2_common2(b, 1)
    for k in range(4, DH1): hload(k)
    stamp(b, 26)
    acc = 64
    def step(idx):
        ps, i = divmod(idx, NSF)
        mf = [f"v_mfma_f32_32x32x16_bf16 {v(acc+(aa*2+bb)*16,16)}, {a(8*i+4*aa,4)}, {hreg(idx,bb)}, {v(acc+(aa*2+bb)*16,16) if i else 0}" for aa in range(2) for bb in range(2)]
        b.wait('lg', f"wr{i}")
        b(mf[0])
        if 8 + i < 14: wdma(8 + i)
        b(mf[1])
        if i + 2 < 14: wreads(i + 2)
        b(mf[2])
        n0 = len(b.ops)
        KP = int(opts.get('kp', 1))
        tg = [i + DH1] if i + DH1 < NSF else ([NSF + (i - (NSF - KP))] if i >= NSF - KP else [])
        for t_ in tg: hload(t_)
        ld = b.ops[n0:]; del b.ops[n0:]
        cut = [j for j, o in enumerate(ld) if o.kind == 'vmem']
        if cut:
            b.ext(ld[:cut[0] + 1]); b(mf[3]); b.ext(ld[cut[0] + 1:])
        else: b(mf[3])
        if i == NSF - 1 - DH1: b("s_barrier")
    for idx in range(NSF): step(idx)
    stamp(b, 27)
    n0 = len(b.ops); p2_rwrite(b, acc, vSg); rw = b.ops[n0:]; del b.ops[n0:]
    n0 = len(b.ops)
    for k in range(int(opts.get('kp', 1)), 7): hload(NSF + k)
    hl = chunks_of(b.ops[n0:]); del b.ops[n0:]
    body, tail = rw[:-1], rw[-1:]
    if int(opts.get('r1il', 1)):
        gap = max(1, len(body) // (len(hl) + 1)); outp = []
        for j, o in enumerate(body):
            outp.append(o)
            if (j + 1) % gap == 0 and hl: outp.extend(hl.pop(0))
        for c in hl: outp.extend(c)
        b.ext(outp + tail)
        b("s_barrier")
    else:
        b.ext(body + tail)
        b("s_barrier")
        for c in hl: b.ext(c)
    def step2(idx):
        i = idx - NSF
        mf = [f"v_mfma_f32_32x32x16_bf16 {v(acc+(aa*2+bb)*16,16)}, {a(8*i+4*aa,4)}, {hreg(idx,bb)}, {v(acc+(aa*2+bb)*16,16) if i else 0}" for aa in range(2) for bb in range(2)]
        b(mf[0]); b(mf[1]); b(mf[2])
        n0 = len(b.ops)
        if idx + D < 2 * NSF: hload(idx + D)
        ld = b.ops[n0:]; del b.ops[n0:]
        cut = [j for j, o in enumerate(ld) if o.kind == 'vmem']
        if cut:
            b.ext(ld[:cut[0] + 1]); b(mf[3]); b.ext(ld[cut[0] + 1:])
        else: b(mf[3])
    for idx in range(NSF, 2 * NSF):
        step2(idx)
        if idx == NSF + 3: b("s_barrier")
    stamp(b, 28)
    p2_rwrite(b, acc, vSk, 24 if int(opts.get('r2pk', 1)) else None)
    b("s_barrier")
    stamp(b, 29)
    return b

def p2_S():
    b = B(); L = vLane
    b("s_waitcnt vmcnt(0) lgkmcnt(0)")
    b("s_barrier")
    stamp(b, 7)
    b(f"s_cmp_lg_u32 s{sWm}, 0")
    b("s_cbranch_scc1 L_p2_noflag")
    b(f"s_mul_i32 s{sT0}, s{sR}, {FLG_STRIDE}")
    b(f"s_add_u32 s{sT0}, s{sT0}, {FLG_OFF}")
    b(f"s_lshl_b32 s{sT1}, s{sS}, 3")
    b(f"s_add_u32 s{sT1}, s{sT1}, s{sT0}")
    b(f"v_mov_b32 v6, s{sT1}")
    b(f"global_store_dwordx2 v6, {v(vNon,2)}, s[34:35] sc0 sc1", 'nocount')
    b(f"v_and_b32 v6, 15, v{L}")
    b("v_lshlrev_b32 v6, 3, v6")
    b(f"v_add_u32 v6, s{sT0}, v6")
    b(f"s_mov_b32 s{sSpin}, 0")
    NP = int(opts.get('npoll', 1))
    SL = int(opts.get('pollsl', 0))
    for k in range(NP):
        b(f"global_load_dwordx2 {v(24+2*k,2)}, v6, s[34:35] sc1", 'nocount')
        if SL: b(f"s_sleep {SL}")
    b("L_p2_poll:")
    for k in range(NP):
        b(f"s_waitcnt vmcnt({NP-1})", 'nocount')
        b(f"v_cmp_eq_u32 vcc, v{24+2*k}, v{vNon}")
        b(f"v_cmp_eq_u32 {s(sT2,2)}, v{24+2*k+1}, v{vNon+1}")
        b(f"s_and_b64 vcc, vcc, {s(sT2,2)}")
        b("s_cmp_eq_u64 vcc, -1")
        b("s_cbranch_scc1 L_p2_polled")
        b(f"global_load_dwordx2 {v(24+2*k,2)}, v6, s[34:35] sc1", 'nocount')
    b(f"s_add_u32 s{sSpin}, s{sSpin}, 1")
    b(f"s_cmp_gt_u32 s{sSpin}, 100000")
    b("s_cbranch_scc0 L_p2_poll")
    b("L_p2_polled:")
    b("L_p2_noflag:")
    b(f"v_readfirstlane_b32 s{sT0}, v{vNon}")
    for j in range(4):
        b(f"s_bfe_u32 s{pNib+j}, s{sT0}, {(4 << 16) | (4*j):#x}")
    p2_common(b, 0)
    stamp(b, 24)
    b("s_barrier")
    if int(opts.get('p2prio', 0)): b("s_setprio 0")
    stamp(b, 25)
    def hreg(j, k): return a(64 + 8*j + 4*k, 4)
    def hload(j, ps):
        h0, h1 = (vH0g, vH1g) if ps == 0 else (vH0k, vH1k)
        b(f"s_add_u32 s{sT0}, s{pK0}, s{pKS+j}")
        b(f"buffer_load_dwordx4 {hreg(j,0)}, v{h0}, {s(pA,4)}, s{sT0} offen sc1")
        b(f"buffer_load_dwordx4 {hreg(j,1)}, v{h1}, {s(pA,4)}, s{sT0} offen sc1")
    DS1 = int(opts.get('ds1', 4))
    for j in range(DS1): hload(j, 0)
    p2_common2(b, 0)
    vRE, vRO, vREh, vROh = 20, 21, 22, 23
    b("v_lshrrev_b32 v6, 4, v0")
    b("v_and_b32 v7, 15, v0")
    b("v_lshrrev_b32 v9, 6, v0")
    b("v_xor_b32 v9, v9, v7")
    b(f"v_lshlrev_b32 v{vRE}, 8, v6")
    b(f"v_lshl_add_u32 v{vRE}, v9, 4, v{vRE}")
    b(f"v_xor_b32 v{vRO}, 64, v{vRE}")
    b(f"v_add_u32 v{vREh}, {CST}, v{vRE}")
    b(f"v_add_u32 v{vROh}, {CST}, v{vRO}")
    stamp(b, 26)
    acc = 64
    def mf(j): return [f"v_mfma_f32_32x32x16_bf16 {v(acc+(aa*2+bb)*16,16)}, {a(8*j+4*aa,4)}, {hreg(j,bb)}, {v(acc+(aa*2+bb)*16,16) if j else 0}" for aa in range(2) for bb in range(2)]
    for j in range(8):
        for t_ in mf(j): b(t_)
        if j + DS1 < 8: hload(j + DS1, 0)
    stamp(b, 27)
    p2_rwrite(b, acc, vSg)
    b("s_barrier")
    for j in range(8): hload(j, 1)
    for j in range(8):
        for t_ in mf(j): b(t_)
    stamp(b, 28)
    b("s_barrier")
    def padd(d, x, y, pk):
        if pk: b(f"v_pk_add_f32 {v(d,2)}, {v(x,2)}, {v(y,2)}")
        else:
            b(f"v_add_f32 v{d}, v{x}, v{y}"); b(f"v_add_f32 v{d+1}, v{x+1}, v{y+1}")
    def reduce(p, dst, pk):
        T = 24
        for w in range(8):
            base = (vRE if p % 2 == 0 else vRO) if w < 4 else (vREh if p % 2 == 0 else vROh)
            b(f"ds_read_b128 {v(T+4*w,4)}, v{base} offset:{(w % 4)*16384 + p*4096}")
        for w in range(0, 8, 2):
            padd(T+4*w, T+4*w, T+4*w+4, pk); padd(T+4*w+2, T+4*w+2, T+4*w+6, pk)
        for w in (0, 4):
            padd(T+4*w, T+4*w, T+4*w+8, pk); padd(T+4*w+2, T+4*w+2, T+4*w+10, pk)
        padd(dst, T, T+16, pk); padd(dst+2, T+2, T+18, pk)
    b("v_lshlrev_b32 v6, 4, v0")
    b(f"s_lshl_b32 s{sT0}, s2, 14")
    b(f"s_add_u32 s{sT0}, s{sT0}, {XCH_OFF}")
    b(f"v_add_u32 v6, s{sT0}, v6")
    for p in range(4):
        d = 56 + 4 * (p % 2)
        reduce(p, d, False)
        for e in range(4): b(f"v_and_or_b32 v{d+e}, v{d+e}, -16, s{pNib+e}")
        if p: b(f"v_add_u32 v6, 4096, v6")
        b(f"global_store_dwordx4 v6, {v(d,4)}, s[34:35] sc0 sc1")
    b("s_barrier")
    p2_rwrite(b, acc, vSk)
    PR_, BI, XV = 64, 80, 96
    b("v_lshlrev_b32 v6, 4, v0")
    b(f"s_xor_b32 s{sT1}, s2, 1")
    b(f"s_lshl_b32 s{sT0}, s{sT1}, 14")
    b(f"s_add_u32 s{sT0}, s{sT0}, {XCH_OFF}")
    b(f"v_add_u32 v9, s{sT0}, v6")
    def prt(tok):
        for p in range(4):
            if p: b(f"v_add_u32 v7, {p*4096}, v9")
            b(f"global_load_dwordx4 {v(PR_+4*p,4)}, v{7 if p else 9}, s[34:35] sc1", tok)
    prt("prt")
    b("v_lshrrev_b32 v6, 4, v0")
    b("v_and_b32 v8, 15, v0")
    b(f"s_lshl_b32 s{sT0}, s{sR}, 7")
    b(f"s_lshl_b32 s{sT1}, s{pH}, 6")
    b(f"s_add_u32 s{sT0}, s{sT0}, s{sT1}")
    b(f"v_add_u32 v6, s{sT0}, v6")
    b(f"s_lshl_b32 s{sT1}, s{pN}, 7")
    b("v_lshlrev_b32 v2, 10, v6")
    b("v_lshl_add_u32 v2, v8, 3, v2")
    b(f"v_add_u32 v2, s{sT1}, v2")
    for p in range(4):
        if p: b(f"v_add_u32 v2, {16*1024}, v2")
        b(f"global_load_dwordx2 {v(XV+2*p,2)}, v2, s[4:5]")
    b("v_lshlrev_b32 v2, 3, v8")
    b(f"v_add_u32 v2, s{sT1}, v2")
    b(f"global_load_dwordx2 {v(XV+8,2)}, v2, s[20:21]")
    b("v_lshlrev_b32 v2, 3, v6")
    b(f"v_add_u32 v2, {G_OFF}, v2")
    for p in range(4):
        b(f"global_load_dword v{XV+10+p}, v2, s[34:35] offset:{p*128} sc1")
    b(f"s_lshl_b32 s{sT1}, s{pN}, 8")
    b("v_lshlrev_b32 v2, 11, v6")
    b("v_lshl_add_u32 v2, v8, 4, v2")
    b(f"v_add_u32 v2, s{sT1}, v2")
    DS_ = XV + 14
    b(f"v_lshlrev_b32 v{DS_}, 16, v{XV+8}\nv_and_b32 v{DS_+1}, 0xffff0000, v{XV+8}\nv_lshlrev_b32 v{DS_+2}, 16, v{XV+9}\nv_and_b32 v{DS_+3}, 0xffff0000, v{XV+9}")
    for p in range(4):
        xs = XV + 2*p; tp = BI + 4*p
        b(f"v_lshlrev_b32 v{tp}, 16, v{xs}\nv_and_b32 v{tp+1}, 0xffff0000, v{xs}\nv_lshlrev_b32 v{tp+2}, 16, v{xs+1}\nv_and_b32 v{tp+3}, 0xffff0000, v{xs+1}")
        for e in range(4): b(f"v_mul_f32 v{tp+e}, v{tp+e}, v{DS_+e}")
        b(f"v_cvt_pk_bf16_f32 v56, v{tp}, v{tp+1}")
        b(f"v_cvt_pk_bf16_f32 v57, v{tp+2}, v{tp+3}")
        b(f"v_lshlrev_b32 v{tp}, 16, v56\nv_and_b32 v{tp+1}, 0xffff0000, v56\nv_lshlrev_b32 v{tp+2}, 16, v57\nv_and_b32 v{tp+3}, 0xffff0000, v57")
        for e in range(4): b(f"v_mul_f32 v{tp+e}, v{XV+10+p}, v{tp+e}")
    b.wait('vm', "prt")
    b(f"s_mov_b32 s{sSpin}, 0")
    if int(opts.get('prtpoll', 0)):
        b("L_p2_q:")
        b("v_mov_b32 v58, 0")
        for u in range(12, 16):
            b(f"v_xor_b32 v59, s{pNib + (u % 4)}, v{PR_+u}")
            b(f"v_and_or_b32 v58, v59, 15, v58")
        b("v_cmp_eq_u32 vcc, 0, v58")
        b("s_cmp_eq_u64 vcc, -1")
        b("s_cbranch_scc1 L_p2_qok")
        b(f"s_add_u32 s{sSpin}, s{sSpin}, 1")
        b(f"s_cmp_gt_u32 s{sSpin}, 100000")
        b("s_cbranch_scc1 L_p2_qok")
        b(f"v_add_u32 v7, {3*4096}, v9")
        b(f"global_load_dwordx4 {v(PR_+12,4)}, v7, s[34:35] sc1", 'nocount')
        b("s_waitcnt vmcnt(0)", 'nocount')
        b("s_branch L_p2_q")
        b("L_p2_qok:")
    b("L_p2_chk:")
    b("v_mov_b32 v58, 0")
    for u in range(16):
        b(f"v_xor_b32 v{PR_+u}, s{pNib + (u % 4)}, v{PR_+u}")
        b(f"v_and_or_b32 v58, v{PR_+u}, 15, v58")
    b("v_cmp_eq_u32 vcc, 0, v58")
    b("s_cmp_eq_u64 vcc, -1")
    b("s_cbranch_scc1 L_p2_ok")
    b(f"s_add_u32 s{sSpin}, s{sSpin}, 1")
    b(f"s_cmp_gt_u32 s{sSpin}, 100000")
    b("s_cbranch_scc1 L_p2_ok")
    prt('nocount')
    b("s_waitcnt vmcnt(0)", 'nocount')
    b("s_branch L_p2_chk")
    b("L_p2_ok:")
    for u in range(16): b(f"v_add_f32 v{BI+u}, v{BI+u}, v{PR_+u}")
    stamp(b, 29)
    b("s_barrier")
    for p in range(4):
        d = 56 + 4 * (p % 2)
        reduce(p, d, True)
        b(f"v_pk_add_f32 {v(d,2)}, {v(d,2)}, {v(BI+4*p,2)}")
        b(f"v_pk_add_f32 {v(d+2,2)}, {v(d+2,2)}, {v(BI+4*p+2,2)}")
        if p: b(f"v_add_u32 v2, {16*2048}, v2")
        b(f"global_store_dwordx4 v2, {v(d,4)}, s[30:31] {opts.get('outf', '').replace('+', ' ')}")
    stamp(b, 30)
    return b

def gen_k1():
    global STV
    STV = 15
    pro = k1_head()
    S = k1_S()
    S.ext(p2_S())
    stamp_end(S, sWave, "s[34:35]", 0x2000000, vLane, 3, 14)
    S("s_endpgm")
    Fm = B(); Fm("L_k1_F:")
    Fm(f"s_cmp_ge_u32 s{sS}, 14")
    Fm("s_cbranch_scc1 L_k1_Fn")
    f1 = k1_F(True)
    f1("s_branch L_p2_F")
    Fn = B(); Fn("L_k1_Fn:")
    f2 = k1_F(False)
    p2f = p2_F()
    stamp_end(p2f, sWave, "s[34:35]", 0x2000000, vLane, 3, 14)
    p2f("L_k1_end:")
    p2f("s_endpgm")
    def path(prefix, body, label=None):
        allops = insert_waits(copy.deepcopy(prefix) + body)
        if label:
            idx = [i for i, o in enumerate(allops) if o.text == label][0]
            allops = allops[idx:]
        return insert_hazard_nops(allops)
    out = path([], pro.ops + S.ops)
    out += path(pro.ops, Fm.ops + f1.ops, "L_k1_F:")
    out += path(pro.ops + Fm.ops, Fn.ops + f2.ops, "L_k1_Fn:")
    out += path([], p2f.ops)
    return out

def gen_k2():
    global STV
    STV = 9
    b = B()
    D = 15
    DW = int(opts.get('k2dw', 5))
    sWv, sH, sMt, sN = 40, 41, 42, 43
    sA, sCR, sCI, sW2 = 44, 48, 76, 80
    t0, t1, t2 = 52, 53, 54
    sS0, sF0 = 56, 57
    sLw = 58
    sCoff, sWoff2 = 59, 62
    vH0, vH1 = 4, 5
    vCe, vCo, vWa, vWb = 2, 3, 60, 61
    vPp, vTp = 48, 52
    accS, accF, vBuf = 64, 128, 192
    vNon2 = 14
    vTau = 8
    vG1, vG2 = 10, 12
    PITCH = 256
    LRED = 0
    LSTG = 65536
    code_prefetch(b, K2, "L_code_end", 2, "k2", 6, 63)
    dbgt_begin(b)
    stamp_begin(b)
    b("s_load_dwordx2 s[18:19], s[0:1], 112")
    b("s_load_dwordx2 s[4:5], s[0:1], 0")
    b("s_load_dwordx4 s[12:15], s[0:1], 40")
    b("s_load_dwordx2 s[6:7], s[0:1], 64")
    b("s_load_dwordx2 s[16:17], s[0:1], 88")
    b("s_load_dwordx2 s[8:9], s[0:1], 104")
    b("s_load_dwordx2 s[10:11], s[0:1], 120")
    b("s_cmp_ge_u32 s2, 256")
    b("s_cbranch_scc1 L_k2_end")
    b("v_lshrrev_b32 v6, 6, v0")
    b("v_and_b32 v1, 63, v0")
    b(f"v_readfirstlane_b32 s{sWv}, v6")
    b(f"s_and_b32 s{sH}, s2, 1")
    b(f"s_bfe_u32 s{t0}, s2, 0x20001")
    b(f"s_lshr_b32 s{t1}, s2, 3")
    b(f"s_and_b32 s{sMt}, s{t1}, 3")
    b(f"s_lshl_b32 s{t0}, s{t0}, 2")
    b(f"s_add_u32 s{sMt}, s{sMt}, s{t0}")
    b(f"s_lshr_b32 s{sN}, s{t1}, 2")
    b("v_and_b32 v6, 7, v1")
    b("v_lshrrev_b32 v7, 4, v1")
    b("v_xor_b32 v6, v6, v7")
    b("v_lshlrev_b32 v6, 4, v6")
    b("v_lshrrev_b32 v7, 3, v1")
    b("v_lshlrev_b32 v7, 10, v7")
    b(f"v_add_u32 v{vCe}, v6, v7")
    b(f"v_xor_b32 v{vCo}, 64, v{vCe}")
    b("v_bfe_u32 v6, v1, 4, 1")
    b("v_lshlrev_b32 v6, 2, v6")
    b("v_and_b32 v29, 7, v1")
    b("v_xor_b32 v6, v6, v29")
    b("v_lshlrev_b32 v6, 4, v6")
    b(f"v_add_u32 v{vWa}, v6, v7")
    b(f"v_add_u32 v{vWb}, {8192 - 1024}, v{vWa}")
    b(f"s_lshl_b32 s{sCoff}, s{sN}, 16")
    b(f"s_lshl_b32 s{t0}, s{sH}, 9")
    b(f"s_add_u32 s{sCoff}, s{sCoff}, s{t0}")
    b(f"s_lshl_b32 s{t0}, s{sWv}, 7")
    b(f"s_add_u32 s{sCoff}, s{sCoff}, s{t0}")
    b(f"s_lshl_b32 s{t0}, s{sH}, 2")
    b(f"s_add_u32 s{t0}, s{t0}, s{sWv}")
    b(f"s_mul_i32 s{sWoff2}, s{t0}, {14*16*1024}")
    b(f"s_lshl_b32 s{t0}, s{sN}, 7")
    b(f"s_add_u32 s{sWoff2}, s{sWoff2}, s{t0}")
    b(f"s_mul_i32 s{sLw}, s{sWv}, 24576")
    b(f"s_add_u32 s{sLw}, s{sLw}, {LSTG}")
    b(f"s_xor_b32 s{t0}, s{sH}, 1")
    b(f"s_lshl_b32 s{t0}, s{t0}, 1")
    b(f"s_lshl_b32 s{t1}, s{sMt}, 2")
    b(f"s_add_u32 s{t0}, s{t0}, s{t1}")
    b(f"s_mul_i32 s{t0}, s{t0}, {176*1024}")
    b("v_lshlrev_b32 v6, 4, v1")
    b(f"v_add_u32 v{vH0}, s{t0}, v6")
    b(f"v_add_u32 v{vH1}, {176*1024}, v{vH0}")
    b(f"s_lshl_b32 s{sS0}, s{sH}, 2")
    b(f"s_add_u32 s{sS0}, s{sS0}, s{sWv}")
    b(f"s_lshl_b32 s{sS0}, s{sS0}, 13")
    b(f"s_lshl_b32 s{sF0}, s{sH}, 2")
    b(f"s_add_u32 s{sF0}, s{sF0}, s{sWv}")
    b(f"s_mul_i32 s{sF0}, s{sF0}, {14*1024}")
    b(f"s_add_u32 s{sF0}, s{sF0}, {64*1024}")
    b("s_waitcnt lgkmcnt(0)")
    srd(b, sA, 10, WS_USED)
    srd(b, sCR, 12, 512*1024)
    srd(b, sCI, 14, 512*1024)
    srd(b, sW2, 16, 1792*1024)
    steps = [('S', i) for i in range(8)] + [('F', i) for i in range(14)]
    NS = len(steps)
    seq = [(1, st) for st in range(NS)] + [(2, st) for st in range(NS)]
    def hreg(idx, k):
        sl = idx % D
        if sl < 8: return v(vBuf + sl * 8 + k * 4, 4)
        return a(200 + (sl - 8) * 8 + k * 4, 4)
    def dma_c(m):
        for aa in range(8):
            b(f"s_add_u32 m0, s{sLw}, {m*8192 + aa*1024}")
            b(f"s_add_u32 s{t2}, s{sCoff}, {aa*8192}")
            b(f"buffer_load_dwordx4 v{vCe if aa % 2 == 0 else vCo}, {s(sCR if m == 0 else sCI,4)}, s{t2} offen lds", f"c{m}")
    def wslot(i):
        if i < 4: return 16384 + i * 2048
        if i < 12: return (i - 4) * 2048
        return 16384 + (i - 12) * 2048
    def dma_f(i):
        b(f"s_add_u32 m0, s{sLw}, {wslot(i)}")
        b(f"s_add_u32 s{t2}, s{sWoff2}, {i*16*1024}")
        b(f"buffer_load_dwordx4 v{vWa}, {s(sW2,4)}, s{t2} offen lds", f"f{i}")
        b(f"buffer_load_dwordx4 v{vWb}, {s(sW2,4)}, s{t2} offen offset:1024 lds", f"f{i}")
    def hloads(idx):
        ps, st = seq[idx]
        kind, i = steps[st]
        sb = sS0 if kind == 'S' else sF0
        if ps == 2 and st == 0:
            b(f"s_lshl_b32 s{t0}, s{sH}, 2")
            b(f"s_sub_u32 s{t0}, s{t0}, 2")
            b(f"s_mul_i32 s{t0}, s{t0}, {176*1024}")
            b(f"v_add_u32 v{vH0}, s{t0}, v{vH0}")
            b(f"v_add_u32 v{vH1}, s{t0}, v{vH1}")
        b(f"s_add_u32 s{t1}, s{sb}, {i*1024}")
        b(f"buffer_load_dwordx4 {hreg(idx,0)}, v{vH0}, {s(sA,4)}, s{t1} offen")
        b(f"buffer_load_dwordx4 {hreg(idx,1)}, v{vH1}, {s(sA,4)}, s{t1} offen")
    def wreads_s():
        for j in range(8):
            m = (j >> 1) & 1; ksp = 2 * (j >> 2) + (j & 1)
            if j == 0: b.wait('vm', "c0")
            if j == 2: b.wait('vm', "c1")
            for aa in range(2):
                b(f"ds_read_b128 {a(8*j+4*aa,4)}, v{vPp+ksp} offset:{m*8192 + aa*4096}", f"wr{j}")
    def wreads_f(i):
        st = 8 + i
        b.wait('vm', f"f{i}")
        for aa in range(2):
            for rd in range(2):
                b(f"ds_read_b64_tr_b16 {a(8*st+4*aa+2*rd,2)}, v{vTp+aa} offset:{wslot(i) + rd*8*128}", f"wr{st}")
    if STAMP >= 2: stamp(b, 24)
    dma_c(0)
    hloads(0); hloads(1)
    dma_c(1)
    b("v_and_b32 v6, 31, v1")
    b("v_lshlrev_b32 v6, 7, v6")
    b(f"v_add_u32 v6, s{sLw}, v6")
    b("v_lshrrev_b32 v7, 5, v1")
    b("v_bfe_u32 v29, v1, 1, 3")
    b("v_xor_b32 v29, v7, v29")
    for k in range(4):
        b(f"v_xor_b32 v7, {2*k}, v29")
        b(f"v_lshl_add_u32 v{vPp+k}, v7, 4, v6")
    tr_pattern(b, vTp, 4, 54)
    b(f"v_add_u32 v{vTp}, s{sLw}, v{vTp}")
    b(f"v_add_u32 v{vTp+1}, s{sLw}, v{vTp+1}")
    b("v_bfe_u32 v6, v1, 3, 2")
    b("v_and_b32 v7, 7, v1")
    b(f"v_lshl_add_u32 v{vTau}, v7, 2, v6")
    b(f"s_xor_b32 s{t0}, s{sH}, 1")
    b(f"s_lshl_b32 s{t0}, s{t0}, 6")
    b(f"s_lshl_b32 s{t1}, s{sMt}, 7")
    b(f"s_add_u32 s{t0}, s{t0}, s{t1}")
    b(f"v_add_u32 v6, s{t0}, v{vTau}")
    b("v_lshlrev_b32 v6, 3, v6")
    b(f"v_add_u32 v6, {G_OFF}, v6")
    b(f"global_load_dwordx2 v[10:11], v6, s[10:11]")
    b(f"global_load_dwordx2 v[12:13], v6, s[10:11] offset:256")
    b(f"s_lshl_b32 s{t0}, s{sH}, 7")
    b(f"s_sub_u32 s{t0}, s{t0}, 64")
    b(f"s_lshl_b32 s{t0}, s{t0}, 3")
    b(f"v_add_u32 v6, s{t0}, v6")
    b(f"global_load_dwordx2 v[16:17], v6, s[10:11]")
    b(f"global_load_dwordx2 v[18:19], v6, s[10:11] offset:256")
    b(f"v_mov_b32 v6, {NONCE_OFF}")
    b(f"global_load_dwordx2 {v(vNon2,2)}, v6, s[10:11]")
    if STAMP >= 2: stamp(b, 25)
    DH = int(opts.get('k2dh', 5))
    for idx in range(2, DH): hloads(idx)
    if STAMP >= 2: stamp(b, 26)
    vWr, vRd = 20, 21
    vWrq = 56
    b(f"s_lshl_b32 s{t0}, s{sWv}, 14")
    b(f"v_lshlrev_b32 v29, 8, v{vTau}")
    b(f"v_add_u32 v29, s{t0}, v29")
    b("v_lshrrev_b32 v6, 5, v1")
    b("v_and_b32 v7, 7, v1")
    b("v_xor_b32 v6, v6, v7")
    for q in range(4):
        b(f"v_xor_b32 v7, {2*q}, v6")
        b(f"v_lshl_add_u32 v{vWrq+q}, v7, 4, v29")
    b("v_lshrrev_b32 v22, 4, v0")
    b("v_and_b32 v23, 15, v0")
    b("v_lshrrev_b32 v6, 6, v0")
    b("v_xor_b32 v6, v6, v23")
    b(f"v_lshlrev_b32 v{vRd}, 8, v22")
    b(f"v_lshl_add_u32 v{vRd}, v6, 4, v{vRd}")
    b(f"v_xor_b32 v{vWr}, 64, v{vRd}")
    vXch = 24
    b(f"v_lshlrev_b32 v{vXch}, 4, v0")
    b(f"s_lshl_b32 s{t0}, s2, 14")
    b(f"s_add_u32 s{t0}, s{t0}, {XCH_OFF}")
    b(f"v_add_u32 v25, s{t0}, v{vXch}")
    b(f"s_xor_b32 s{t1}, s2, 1")
    b(f"s_lshl_b32 s{t0}, s{t1}, 14")
    b(f"s_add_u32 s{t0}, s{t0}, {XCH_OFF}")
    b(f"v_add_u32 v26, s{t0}, v{vXch}")
    if STAMP >= 2: stamp(b, 27)
    wreads_s()
    if STAMP >= 2: stamp(b, 28)

    def mfmas(idx):
        ps, st = seq[idx]
        kind, i = steps[st]
        acc = accS if kind == 'S' else accF
        out = []
        for aa in range(2):
            for bb in range(2):
                dreg = v(acc + (aa*2 + bb) * 16, 16)
                c = dreg if i else "0"
                out.append(f"v_mfma_f32_32x32x16_bf16 {dreg}, {a(8*st+4*aa,4)}, {hreg(idx,bb)}, {c}")
        return out

    def reduce_write(g0, g1):
        for aa in range(2):
            for bb in range(2):
                g = g0 if bb == 0 else g1
                S = accS + (aa*2+bb)*16; Fq = accF + (aa*2+bb)*16
                for p in range(8):
                    b(f"v_pk_mul_f32 {v(S+2*p,2)}, {v(S+2*p,2)}, {v(g,2)} op_sel_hi:[1,0]")
                for p in range(8):
                    b(f"v_pk_fma_f32 {v(S+2*p,2)}, {v(Fq+2*p,2)}, {v(g,2)}, {v(S+2*p,2)} op_sel:[0,1,0] op_sel_hi:[1,1,1]")
                for q in range(4):
                    b(f"ds_write_b128 v{vWrq+q}, {v(S+4*q,4)} offset:{LRED + bb*32*PITCH + aa*128}", "red")
        b.wait('lg', "red")
        b("s_barrier")
    def reduce_read(dst, gran=None):
        for p in range(4):
            for w in range(4):
                b(f"ds_read_b128 {v(dst+16*p+4*w,4)}, v{vRd if p % 2 == 0 else vWr} offset:{LRED + w*64*PITCH + p*16*PITCH}")
        for p in range(4):
            r = dst + 16*p
            b(f"v_pk_add_f32 {v(r,2)}, {v(r,2)}, {v(r+4,2)}")
            b(f"v_pk_add_f32 {v(r+2,2)}, {v(r+2,2)}, {v(r+6,2)}")
            b(f"v_pk_add_f32 {v(r+8,2)}, {v(r+8,2)}, {v(r+12,2)}")
            b(f"v_pk_add_f32 {v(r+10,2)}, {v(r+10,2)}, {v(r+14,2)}")
            if gran is None:
                b(f"v_pk_add_f32 {v(r,2)}, {v(r,2)}, {v(r+8,2)}")
                b(f"v_pk_add_f32 {v(r+2,2)}, {v(r+2,2)}, {v(r+10,2)}")
            else:
                for e in range(4):
                    u = 4 * p + e
                    b(f"v_add_f32 v{gran + 4*(u//3) + u%3}, v{r+e}, v{r+8+e}")

    total = len(seq)
    sNib = 84
    XS_ = 32
    PR_ = vBuf
    def r1c():
        f = F()
        for p in range(4):
            for w in range(4):
                f(f"ds_read_b128 {v(accF+16*p+4*w,4)}, v{vRd if p % 2 == 0 else vWr} offset:{LRED + w*64*PITCH + p*16*PITCH}")
        for p in range(4):
            r = accF + 16*p
            for e in range(4): f(f"v_add_f32 v{r+e}, v{r+e}, v{r+4+e}")
            for e in range(4): f(f"v_add_f32 v{r+8+e}, v{r+8+e}, v{r+12+e}")
            for e in range(4): f(f"v_add_f32 v{r+e}, v{r+e}, v{r+8+e}")
            for e in range(4): f(f"v_and_or_b32 v{XS_+4*p+e}, v{r+e}, -16, s{sNib+e}")
        return f
    def step_ops(idx):
        ps, st = seq[idx]
        kind, i = steps[st]
        n00 = len(b.ops)
        mf = mfmas(idx)
        if ps == 1: b.wait('lg', f"wr{st}")
        b(mf[0])
        if ps == 1:
            fi = st - 2
            if st == 6: b.wait('lg', "wr7")
            if 0 <= fi < 14: dma_f(fi)
        b(mf[1])
        if ps == 1 and 8 <= st + 1 < NS:
            wreads_f(st + 1 - 8)
        b(mf[2])
        n0 = len(b.ops)
        tg = []
        if ps == 1:
            if st + DH < NS: tg = [st + DH]
            else:
                j = st + DH - NS
                tg = [NS + 2 * j, NS + 2 * j + 1]
        elif idx + D < total: tg = [idx + D]
        for t_ in tg: hloads(t_)
        ld = b.ops[n0:]; del b.ops[n0:]
        cut = [j for j, o in enumerate(ld) if o.kind == 'vmem']
        if cut:
            b.ext(ld[:cut[0] + 1]); b(mf[3]); b.ext(ld[cut[0] + 1:])
        else:
            b(mf[3])
        ops = b.ops[n00:]; del b.ops[n00:]
        return ops
    for idx in range(NS):
        b.ext(step_ops(idx))
        st = idx
        if st == 2:
            b(f"v_readfirstlane_b32 s{t0}, v{vNon2}")
            for j in range(4):
                b(f"s_bfe_u32 s{sNib+j}, s{t0}, {(4 << 16) | (4*j):#x}")
        if STAMP >= 2 and st in (0, 3, 7, 11, 15, 19): stamp(b, 8 + (0, 3, 7, 11, 15, 19).index(st))
    stamp(b, 1)
    n0 = len(b.ops); reduce_write(vG1, vG2); rw = b.ops[n0:]; del b.ops[n0:]
    K0 = 2 * DH
    n0 = len(b.ops)
    for k in range(K0, 15): hloads(NS + k)
    hl = chunks_of(b.ops[n0:]); del b.ops[n0:]
    body, tail = rw[:-2], rw[-2:]
    gap = max(1, len(body) // (len(hl) + 1))
    outp = []
    for j, o in enumerate(body):
        outp.append(o)
        if (j + 1) % gap == 0 and hl: outp.extend(hl.pop(0))
    for c in hl: outp.extend(c)
    b.ext(outp + tail)
    stamp(b, 2)
    p2a = []
    for st in range(7): p2a += step_ops(NS + st)
    b.ext(merge(p2a, r1c().ops, per=4))
    PL = int(opts.get('k2pl', 16))
    BI = vBuf + 16
    def bias_fill():
        f = F()
        f("v_lshlrev_b32 v4, 16, v40\nv_and_b32 v5, 0xffff0000, v40\nv_lshlrev_b32 v6, 16, v41\nv_and_b32 v7, 0xffff0000, v41")
        for p in range(4):
            xs = 32 + 2*p; tp = BI + 4*p
            f(f"v_lshlrev_b32 v{tp}, 16, v{xs}\nv_and_b32 v{tp+1}, 0xffff0000, v{xs}\nv_lshlrev_b32 v{tp+2}, 16, v{xs+1}\nv_and_b32 v{tp+3}, 0xffff0000, v{xs+1}")
            for e in range(4): f(f"v_mul_f32 v{tp+e}, v{tp+e}, v{4+e}")
            f(f"v_cvt_pk_bf16_f32 v46, v{tp}, v{tp+1}")
            f(f"v_cvt_pk_bf16_f32 v47, v{tp+2}, v{tp+3}")
            f(f"v_lshlrev_b32 v{tp}, 16, v46\nv_and_b32 v{tp+1}, 0xffff0000, v46\nv_lshlrev_b32 v{tp+2}, 16, v47\nv_and_b32 v{tp+3}, 0xffff0000, v47")
            for e in range(4): f(f"v_mul_f32 v{tp+e}, v{42+p}, v{tp+e}")
        return f
    tail_steps = []
    for st in range(7, NS):
        idx = NS + st
        ops = step_ops(idx)
        if 7 <= st <= 10:
            p = st - 7
            pre = B()
            if p: pre(f"v_add_u32 v29, {p*4096}, v25")
            pre(f"global_store_dwordx4 v{29 if p else 25}, {v(XS_+4*p,4)}, s[10:11] sc0 sc1")
            ops = ops[:1] + pre.ops + ops[1:]
        if st >= 17:
            tail_steps += ops
            if st == NS - 1: b.ext(merge(tail_steps, bias_fill().ops, per=4))
            continue
        b.ext(ops)
        if STAMP >= 2 and st in (7, 11, 15, 19): stamp(b, 16 + (0, 3, 7, 11, 15, 19).index(st))
        if st == 11:
            b("s_barrier")
        if st == 11:
            b(f"s_lshl_b32 s{t0}, s{sMt}, 7")
            b(f"s_lshl_b32 s{t1}, s{sH}, 6")
            b(f"s_add_u32 s{t0}, s{t0}, s{t1}")
            b(f"v_add_u32 v30, s{t0}, v22")
            b(f"s_lshl_b32 s{t1}, s{sN}, 7")
            b("v_lshlrev_b32 v31, 10, v30")
            b("v_lshl_add_u32 v31, v23, 3, v31")
            b(f"v_add_u32 v31, s{t1}, v31")
            for p in range(4):
                if p: b(f"v_add_u32 v31, {16*1024}, v31")
                b(f"global_load_dwordx2 {v(32+2*p,2)}, v31, s[4:5]")
            b("v_lshlrev_b32 v31, 3, v23")
            b(f"v_add_u32 v31, s{t1}, v31")
            b(f"global_load_dwordx2 v[40:41], v31, s[6:7]")
            b("v_lshlrev_b32 v31, 3, v30")
            b(f"v_add_u32 v31, {G_OFF}, v31")
            for p in range(4):
                b(f"global_load_dword v{42+p}, v31, s[10:11] offset:{p*128}")
            b(f"s_lshl_b32 s{t1}, s{sN}, 8")
            b("v_lshlrev_b32 v2, 11, v30")
            b("v_lshl_add_u32 v2, v23, 4, v2")
            b(f"v_add_u32 v2, s{t1}, v2")
        if st == PL:
            for p in range(4):
                if p: b(f"v_add_u32 v29, {p*4096}, v26")
                b(f"global_load_dwordx4 {v(PR_+4*p,4)}, v{29 if p else 26}, s[10:11] sc1", "prt")
    stamp(b, 3)
    b.wait('vm', "prt")
    b(f"s_mov_b32 s{t0}, 0")
    b("L_k2_chk:")
    b("v_mov_b32 v46, 0")
    for u in range(16):
        b(f"v_xor_b32 v{PR_+u}, s{sNib + (u % 4)}, v{PR_+u}")
        b(f"v_and_or_b32 v46, v{PR_+u}, 15, v46")
    b("v_cmp_eq_u32 vcc, 0, v46")
    b("s_cmp_eq_u64 vcc, -1")
    b("s_cbranch_scc1 L_k2_ok")
    b(f"s_add_u32 s{t0}, s{t0}, 1")
    b(f"s_cmp_gt_u32 s{t0}, 40000")
    b("s_cbranch_scc1 L_k2_ok")
    for p in range(4):
        if p: b(f"v_add_u32 v29, {p*4096}, v26")
        b(f"global_load_dwordx4 {v(PR_+4*p,4)}, v{29 if p else 26}, s[10:11] sc1", 'nocount')
    b("s_waitcnt vmcnt(0)", 'nocount')
    b("s_branch L_k2_chk")
    b("L_k2_ok:")
    if STAMP >= 2: stamp(b, 30)
    n0 = len(b.ops)
    reduce_write(16, 18)
    rw = b.ops[n0:]; del b.ops[n0:]
    fl = F()
    for u in range(0, 16, 2): fl(f"v_pk_add_f32 {v(BI+u,2)}, {v(BI+u,2)}, {v(PR_+u,2)}")
    b.ext(merge(rw, fl.ops, after=lambda o: o.mn.startswith('ds_write'), per=1))
    if STAMP >= 2: stamp(b, 31)
    reduce_read(accF)
    if STAMP >= 2: stamp(b, 32)
    OUTF = opts.get('outf', '').replace('+', ' ')
    for p in range(4):
        r = accF + 16*p
        b(f"v_pk_add_f32 {v(r,2)}, {v(r,2)}, {v(BI+4*p,2)}")
        b(f"v_pk_add_f32 {v(r+2,2)}, {v(r+2,2)}, {v(BI+4*p+2,2)}")
        if p: b(f"v_add_u32 v2, {16*2048}, v2")
        b(f"global_store_dwordx4 v2, {v(r,4)}, s[8:9] {OUTF}")
    stamp(b, 4)
    dbgt_end(b, "s[18:19]", 32, True)
    stamp_end(b, sWv, "s[10:11]", 0x2100000, 1)
    b("L_k2_end:")
    b("s_endpgm")
    return finalize(b.ops)

KN = NAME + "_kernel"
def header():
    ref = open('cdna_kernels/%s.s.ref' % NAME).read().split('\n')
    hdr = []
    for line in ref:
        if not line.startswith(';'): break
        if '@launch' in line: continue
        hdr.append(line)
    hdr.append("; @launch grid=(256,1,1) block=(512,1,1) lds=163840")
    return '\n'.join(hdr)

def kd(name, nv, acc_off, nsg):
    return f""".amdhsa_kernel {name}
  .amdhsa_next_free_vgpr {nv}
  .amdhsa_next_free_sgpr {nsg}
  .amdhsa_accum_offset {acc_off}
  .amdhsa_group_segment_fixed_size 0
  .amdhsa_kernarg_size 128
  .amdhsa_user_sgpr_count 2
  .amdhsa_user_sgpr_kernarg_segment_ptr 1
  .amdhsa_system_sgpr_workgroup_id_x 1
  .amdhsa_float_denorm_mode_32 3
.end_amdhsa_kernel"""

def main():
    k1 = gen_k1()
    out = [header(), '.amdgcn_target "amdgcn-amd-amdhsa--gfx950"', '.text']
    out += [f".globl {KN}", ".p2align 8", f".type {KN},@function", f"{KN}:", render(k1)]
    out += ["L_code_end:", "  s_endpgm"]
    out += ['.section .rodata,"a"', '.p2align 6', kd(KN, 256, 128, 102)]
    print('\n'.join(out))

main()
```

```python
import sys, copy
sys.path.insert(0, 'dev')
from ir import *

NAME = "gated_mix__ssm_conv_s5__dense_activation_silu__prompt"
K1 = NAME + "_kernel"
K2 = "gm_k2_kernel"

opts = dict(a.split('=') for a in sys.argv[1:] if '=' in a)
HF_OFF = 0
HF_SIZE = 64 * 176 * 1024
W2F_OFF = HF_SIZE
W2F_SIZE = 16 * 176 * 1024
G_OFF = W2F_OFF + W2F_SIZE
E_OFF = G_OFF + 2048 * 8
E_SIZE = 16 * 16 * 512
NONCE_OFF = E_OFF + E_SIZE
FLG_OFF = NONCE_OFF + 256
FLG_STRIDE = int(opts.get('flgs', 1024)) if 'opts' in globals() else 128
XCH_OFF = FLG_OFF + 0x40000
WS_USED = XCH_OFF + 256 * 16384

LOG2E = 0x3fb8aa3b
INV2PI = 0x3e22f983

RB, XS, WR = 0, 65536, 114688
SC = 32768
IMG = 36864

STAMP = int(opts.get('stamp', 0))
STF = "sc0 sc1"

def v(n, k=1): return f"v{n}" if k == 1 else f"v[{n}:{n+k-1}]"
def a(n, k=1): return f"a{n}" if k == 1 else f"a[{n}:{n+k-1}]"
def s(n, k=1): return f"s{n}" if k == 1 else f"s[{n}:{n+k-1}]"


STV = 15
def reg_of_t(t): return (t >> 2) + 4 * (t & 3)
def srd(b, dst, ptr, size):
    b(f"s_mov_b32 s{dst}, s{ptr}")
    b(f"s_mov_b32 s{dst+1}, s{ptr+1}")
    b(f"s_mov_b32 s{dst+2}, {size}")
    b(f"s_mov_b32 s{dst+3}, 0x20000")


def cexp(b, dst, n_src, va, vang, t0):
    b(f"v_mul_f32 v{t0}, {n_src}, v{va}")
    b(f"v_mul_f32 v{t0+1}, {n_src}, v{vang}")
    b(f"v_exp_f32 v{t0}, v{t0}")
    b(f"v_rndne_f32 v{t0+2}, v{t0+1}")
    b(f"v_sub_f32 v{t0+1}, v{t0+1}, v{t0+2}")
    b(f"v_cos_f32 v{dst}, v{t0+1}")
    b(f"v_sin_f32 v{dst+1}, v{t0+1}")
    b(f"v_mul_f32 v{dst}, v{t0}, v{dst}")
    b(f"v_mul_f32 v{dst+1}, v{t0}, v{dst+1}")


def cfma(b, d, l, h, u, tmp):
    b(f"v_pk_fma_f32 {v(tmp,2)}, {v(l,2)}, {v(h,2)}, {v(u,2)} op_sel:[0,0,0] op_sel_hi:[0,1,1]")
    b(f"v_pk_fma_f32 {v(d,2)}, {v(l,2)}, {v(h,2)}, {v(tmp,2)} op_sel:[1,1,0] op_sel_hi:[1,0,1] neg_lo:[1,0,0]")


def cfma_s(b, d, l, h, u, tmp):
    b(f"v_fma_f32 v{tmp}, v{l}, v{h}, v{u}")
    b(f"v_fma_f32 v{tmp+1}, v{l}, v{h+1}, v{u+1}")
    b(f"v_fma_f32 v{d}, -v{l+1}, v{h+1}, v{tmp}")
    b(f"v_fma_f32 v{d+1}, v{l+1}, v{h}, v{tmp+1}")


def stamp(b, idx):
    if not STAMP: return
    g = B()
    g("s_memtime s[100:101]")
    g("s_waitcnt lgkmcnt(0)")
    g(f"v_writelane_b32 v{STV}, s100, {idx}")
    b.ext(g)


def stamp_begin(b):
    if not STAMP: return
    b(f"v_mov_b32 v{STV}, 0")
    b("s_memrealtime s[100:101]")
    b("s_waitcnt lgkmcnt(0)")
    b(f"v_writelane_b32 v{STV}, s100, 62")
    stamp(b, 0)


def stamp_end(b, wave, ws, off, lane, sh=2, tv=254):
    if not STAMP: return
    b("s_memrealtime s[100:101]")
    b("s_waitcnt lgkmcnt(0)")
    b(f"v_writelane_b32 v{STV}, s100, 63")
    b(f"s_lshl_b32 s100, s2, {sh}")
    b(f"s_add_u32 s100, s100, s{wave}")
    b(f"s_lshl_b32 s100, s100, 8")
    b(f"s_add_u32 s100, s100, {off}")
    b(f"v_lshlrev_b32 v{tv}, 2, v{lane}")
    b(f"v_add_u32 v{tv}, s100, v{tv}")
    b(f"global_store_dword v{tv}, v{STV}, {ws}")


vLane = 1
def tr_pattern(b, dst, hfmul, t):
    L = vLane
    b(f"v_lshrrev_b32 v{t}, 5, v{L}")
    b(f"v_mul_u32_u24 v{t}, {hfmul}, v{t}")
    b(f"v_bfe_u32 v{t+1}, v{L}, 2, 2")
    b(f"v_add_u32 v{t}, v{t}, v{t+1}")
    b(f"v_lshlrev_b32 v{t}, 7, v{t}")
    b(f"v_bfe_u32 v{t+1}, v{L}, 3, 1")
    b(f"v_lshlrev_b32 v{t+1}, 6, v{t+1}")
    b(f"v_bfe_u32 v{t+2}, v{L}, 4, 1")
    b(f"v_lshlrev_b32 v{t+2}, 5, v{t+2}")
    b(f"v_and_b32 v{t+3}, 3, v{L}")
    b(f"v_lshlrev_b32 v{t+3}, 3, v{t+3}")
    b(f"v_add3_u32 v{t}, v{t}, v{t+2}, v{t+3}")
    b(f"v_add_u32 v{dst}, v{t}, v{t+1}")
    b(f"v_xor_b32 v{t+1}, 64, v{t+1}")
    b(f"v_add_u32 v{dst+1}, v{t}, v{t+1}")

SLOT = 24576
NSLOT = 4
WB0 = 98304
SCR = 73728
SC = 0
IMG = 1024
def wblock_lds(q):
    if q < 8: return WB0 + q * 8192
    return (q - 8) * 8192

sX, sBRE, sBIM, sW1, sHF = 36, 40, 44, 48, 52
sWave, sWm, sR, sS, sRho = 60, 61, 62, 63, 56
sLdsX, sLdsB = 64, 65
sT0, sT1, sT2, sT3 = 68, 69, 70, 71
sWL = 72
sM1, sM2, sM3 = 80, 82, 84
sHFb, sK0, sEX = 86, 87, 88
sLo = 90
sSpin, sU = 98, 99

DBGT = int(opts.get('dbgt', 0))
def dbgt_begin(b):
    if not DBGT: return
    b("s_memrealtime s[100:101]")
    b("s_waitcnt lgkmcnt(0)")
    b("s_not_b32 s101, s100")
def dbgt_end(b, dbg, vt, k2=False):
    if not DBGT: return
    b("s_mov_b32 s99, s101")
    b("s_memrealtime s[100:101]")
    b("s_waitcnt lgkmcnt(0)")
    b(f"v_mov_b32 v{vt}, 0")
    b(f"v_mov_b32 v{vt+1}, s99")
    b(f"v_mov_b32 v{vt+2}, s100")
    b("s_mov_b64 exec, 1")
    b(f"global_atomic_umax v{vt}, v{vt+1}, {dbg} offset:16")
    b(f"global_atomic_umax v{vt}, v{vt+2}, {dbg} offset:20")
    if k2:
        b(f"global_load_dwordx2 {v(vt+2,2)}, v{vt}, {dbg} offset:-496 sc1")
        b("s_waitcnt vmcnt(0)")
        b(f"global_store_dwordx2 v{vt}, {v(vt+2,2)}, {dbg} offset:8")
    b("s_mov_b64 exec, -1")

def code_prefetch(b, kname, endlabel, wshift, tag, vt, vd):
    if not int(opts.get('pfc', 1)): return
    b("s_getpc_b64 s[40:41]")
    b(f"L_{tag}_pc:")
    b(f"s_sub_u32 s40, s40, L_{tag}_pc-{kname}")
    b("s_subb_u32 s41, s41, 0")
    b("s_lshr_b32 s42, s2, 3")
    b(f"s_lshl_b32 s42, s42, {wshift + 7}")
    b(f"v_lshrrev_b32 v{vt}, 6, v0")
    b(f"v_lshlrev_b32 v{vt}, 7, v{vt}")
    b(f"v_add_u32 v{vt}, s42, v{vt}")
    b(f"v_min_u32 v{vt}, {endlabel}-{kname}-4, v{vt}")
    b(f"global_load_dword v{vd}, v{vt}, s[40:41]", 'nocount')

def k1_head():
    b = B()
    code_prefetch(b, K1, "L_code_end", 3, "k1", 2, 14)
    dbgt_begin(b)
    stamp_begin(b)
    b("s_load_dwordx16 s[4:19], s[0:1], 0")
    b("s_load_dwordx16 s[20:35], s[0:1], 64")
    b("s_cmp_ge_u32 s2, 256")
    b("s_cbranch_scc1 L_k1_end")
    b("v_lshrrev_b32 v2, 6, v0")
    b(f"v_and_b32 v{vLane}, 63, v0")
    b(f"v_readfirstlane_b32 s{sWave}, v2")
    b(f"s_and_b32 s{sT0}, s2, 7")
    b(f"s_lshr_b32 s{sT1}, s2, 3")
    b(f"s_and_b32 s{sT2}, s{sT1}, 3")
    b(f"s_lshr_b32 s{sT3}, s{sT1}, 2")
    b(f"s_lshr_b32 s{sR}, s{sT0}, 1")
    b(f"s_lshl_b32 s{sR}, s{sR}, 2")
    b(f"s_add_u32 s{sR}, s{sR}, s{sT2}")
    b(f"s_and_b32 s{sS}, s{sT0}, 1")
    b(f"s_lshl_b32 s{sS}, s{sS}, 3")
    b(f"s_add_u32 s{sS}, s{sS}, s{sT3}")
    b(f"s_lshl_b32 s{sRho}, s{sT2}, 1")
    b(f"s_add_u32 s{sRho}, s{sRho}, s{sT3}")
    ROT1 = opts.get('rot1', 'two')
    if ROT1 == 'none': b(f"s_mov_b32 s{sRho}, 0")
    if ROT1 == 'half':
        b(f"s_and_b32 s{sRho}, s{sRho}, 1")
        b(f"s_lshl_b32 s{sRho}, s{sRho}, 2")
    if ROT1 == 'two':
        b(f"s_and_b32 s{sRho}, s{sRho}, 3")
        b(f"s_lshl_b32 s{sRho}, s{sRho}, 1")
    b(f"s_and_b32 s{sWm}, s{sWave}, 3")
    b(f"s_lshl_b32 s{sLdsX}, s{sWm}, 12")
    b(f"s_lshl_b32 s{sLdsB}, s{sWm}, 11")
    b(f"s_lshl_b32 s{sHFb}, s{sR}, 2")
    b(f"s_add_u32 s{sHFb}, s{sHFb}, s{sWm}")
    b(f"s_mul_i32 s{sHFb}, s{sHFb}, {176*1024}")
    if int(opts.get('swap', 0)):
        b(f"s_cmp_lt_u32 s{sWave}, 4")
        b("s_cbranch_scc1 L_k1_F")
        b("v_and_b32 v0, 0xff, v0")
    else:
        b(f"s_cmp_ge_u32 s{sWave}, 4")
        b("s_cbranch_scc1 L_k1_F")
    return b

fXe, fXo, fB, fW = 2, 3, 4, 5
fPX, fTA, fTB, fTC, fL16 = 7, 11, 13, 16, 6 + 0
fPX, fTA, fTB, fTC = 8, 12, 14, 16
fPX, fTA, fTB, fTC, fL16 = 8, 12, 16, 18, 7
fE, fD = 20, 28
fS, fAcc = 32, 64

def dma(b, voff, srdn, soff, tok, imm=0):
    o = f" offset:{imm}" if imm else ""
    b(f"buffer_load_dwordx4 v{voff}, {s(srdn,4)}, {soff} offen{o} lds", tok)
def dma_x(b, i):
    b(f"s_add_u32 m0, s{sLdsX}, {(i % NSLOT) * SLOT}")
    for k in range(4):
        dma(b, fXe if k % 2 == 0 else fXo, sX, f"s{sLo+i}", f"x{i}", k * 1024)
def dma_B(b, i):
    b(f"s_add_u32 m0, s{sLdsB}, {(i % NSLOT) * SLOT + 16384}")
    dma(b, fB, sBRE, f"s{sLo+i}", f"B{i}")
    dma(b, fB, sBIM, f"s{sLo+i}", f"B{i}", 1024)
def dma_w(b, q):
    i, hh = q % 8, q // 8
    b(f"s_add_u32 m0, s{sLdsB}, {wblock_lds(q)}")
    if hh:
        b(f"s_add_u32 s{sT0}, s{sWL+i}, 128")
        so = f"s{sT0}"
    else:
        so = f"s{sWL+i}"
    dma(b, fW, sW1, so, f"w{q}")
    dma(b, fW + 1, sW1, so, f"w{q}", 1024)

def chunks_of(ops):
    ch = []; cur = []
    for o in ops:
        cur.append(o)
        if o.kind == 'vmem': ch.append(cur); cur = []
    if cur: ch.append(cur)
    return ch

def k1_F(ffn):
    b = B(); L = vLane
    t = fE
    for i in range(8):
        b(f"s_add_u32 s{sLo+i}, s{sRho}, {i}")
        b(f"s_and_b32 s{sLo+i}, s{sLo+i}, 7")
        b(f"s_lshl_b32 s{sLo+i}, s{sLo+i}, 7")
    b(f"v_and_b32 v{t}, 7, v{L}")
    b(f"v_lshrrev_b32 v{t+1}, 4, v{L}")
    b(f"v_xor_b32 v{t+2}, v{t}, v{t+1}")
    b(f"v_lshlrev_b32 v{t+2}, 4, v{t+2}")
    b(f"v_lshrrev_b32 v{t+3}, 3, v{L}")
    b(f"s_lshl_b32 s{sT0}, s{sR}, 17")
    b(f"s_lshl_b32 s{sT1}, s{sWm}, 15")
    b(f"s_add_u32 s{sT0}, s{sT0}, s{sT1}")
    b(f"v_lshlrev_b32 v{t}, 12, v{t+3}")
    b(f"v_add3_u32 v{fXe}, v{t}, v{t+2}, s{sT0}")
    b(f"v_xor_b32 v{fXo}, 64, v{fXe}")
    b(f"s_and_b32 s{sT0}, s{sWm}, 1")
    b(f"s_lshl_b32 s{sT0}, s{sT0}, 6")
    b(f"v_xor_b32 v{t+1}, s{sT0}, v{t+2}")
    b(f"s_lshl_b32 s{sT0}, s{sWm}, 13")
    b(f"s_lshl_b32 s{sT1}, s{sS}, 15")
    b(f"s_add_u32 s{sT0}, s{sT0}, s{sT1}")
    b(f"v_lshlrev_b32 v{t}, 10, v{t+3}")
    b(f"v_add3_u32 v{fB}, v{t}, v{t+1}, s{sT0}")
    b("s_waitcnt lgkmcnt(0)")
    srd(b, sX, 4, 2048*1024)
    srd(b, sBRE, 10, 512*1024)
    b(f"s_sub_u32 s{sBIM}, s12, 1024")
    b(f"s_subb_u32 s{sBIM+1}, s13, 0")
    b(f"s_mov_b32 s{sBIM+2}, {512*1024 + 1024}")
    b(f"s_mov_b32 s{sBIM+3}, 0x20000")
    if STAMP >= 2: stamp(b, 8)
    INI = int(opts.get('ini', 3))
    for i in range(INI):
        dma_x(b, i); dma_B(b, i)
    if STAMP >= 2: stamp(b, 9)
    srd(b, sHF, 34, WS_USED)
    if ffn:
        srd(b, sW1, 24, 512*3584)
        b(f"v_bfe_u32 v{t+1}, v{L}, 4, 1")
        b(f"v_lshlrev_b32 v{t+1}, 2, v{t+1}")
        b(f"v_and_b32 v{t+3}, 7, v{L}")
        b(f"v_xor_b32 v{t+3}, v{t+3}, v{t+1}")
        b(f"v_lshlrev_b32 v{t+3}, 4, v{t+3}")
        b(f"v_lshrrev_b32 v{t+1}, 3, v{L}")
        b(f"s_lshl_b32 s{sT3}, s{sWm}, 4")
        b(f"v_add_u32 v{t+1}, s{sT3}, v{t+1}")
        b(f"v_mul_u32_u24 v{t+1}, 3584, v{t+1}")
        b(f"v_add_u32 v{fW}, v{t+1}, v{t+3}")
        b(f"v_add_u32 v{fW+1}, {8*3584 - 1024}, v{fW}")
        b(f"s_lshl_b32 s{sT3}, s{sS}, 8")
        for i in range(8):
            b(f"s_mul_i32 s{sWL+i}, s{sLo+i}, 1792")
            b(f"s_add_u32 s{sWL+i}, s{sWL+i}, s{sT3}")
        tr_pattern(b, fTA, 8, t)
        b(f"v_add_u32 v{fTB}, 0x10000, v{fTA}")
        b(f"v_add_u32 v{fTB+1}, 0x10000, v{fTA+1}")
        b(f"v_add_u32 v{fTC}, 0x20000, v{fTA}")
        b(f"v_add_u32 v{fTC+1}, 0x20000, v{fTA+1}")
        b(f"v_lshlrev_b32 v{fL16}, 4, v{L}")
        b(f"v_and_b32 v{t}, 31, v{L}")
        b(f"v_lshrrev_b32 v{t+1}, 5, v{L}")
        b(f"v_bfe_u32 v{t+2}, v{L}, 1, 3")
        b(f"v_xor_b32 v{t+2}, v{t+1}, v{t+2}")
        b(f"v_lshlrev_b32 v{t+1}, 7, v{t}")
        b(f"v_add_u32 v{t+1}, s{sLdsX}, v{t+1}")
        for k in range(4):
            b(f"v_xor_b32 v{t+3}, {2*k}, v{t+2}")
            b(f"v_lshl_add_u32 v{fPX+k}, v{t+3}, 4, v{t+1}")
        b(f"s_mov_b32 s66, {LOG2E ^ 0x80000000:#x}")
        b(f"s_mov_b32 s67, {LOG2E ^ 0x80000000:#x}")
        b(f"s_lshl_b32 s{sU}, s{sS}, 13")
        b(f"s_add_u32 s{sU}, s{sU}, s{sHFb}")
        b(f"s_add_u32 s{sU}, s{sU}, {64*1024}")
    stamp(b, 1)
    for i in range(8):
        if STAMP >= 2: stamp(b, 10 + 2*i)
        b.wait('vm', f"x{i}", f"B{i}")
        b("s_waitcnt lgkmcnt(0)")
        b("s_barrier")
        if STAMP >= 2: stamp(b, 11 + 2*i)
        if ffn:
            po = (i % NSLOT) * SLOT
            if po >= 65536:
                for k in range(4): b(f"v_add_u32 v{fE+k}, 0x10000, v{fPX+k}")
            for k in range(4):
                if po >= 65536: b(f"ds_read_b128 {a(16*i+4*k,4)}, v{fE+k} offset:{po - 65536}")
                else: b(f"ds_read_b128 {a(16*i+4*k,4)}, v{fPX+k} offset:{po}")
        if i == 0 and INI == 2:
            dma_x(b, 2); dma_B(b, 2)
        if i <= 4:
            dma_x(b, i + 3); dma_B(b, i + 3)
        elif ffn:
            for q in {5: (0, 1, 2), 6: (3, 4, 5), 7: (6, 7)}[i]: dma_w(b, q)
        if True:
            if not ffn and i == 5:
                b(f"s_lshl_b32 s{sT0}, s{sR}, 1")
                b(f"s_add_u32 s{sT0}, s{sT0}, s{sS}")
                b(f"s_sub_u32 s{sT0}, s{sT0}, 14")
                b(f"s_lshl_b32 s{sT0}, s{sT0}, 2")
                b(f"s_add_u32 s{sT0}, s{sT0}, s{sWm}")
                b(f"v_lshlrev_b32 v8, 7, v{L}")
                srd(b, sW1, 26, 1792*1024)
                srd(b, sHF, 14, 512*1024)
                srd(b, 76, 16, 512*1024)
                b(f"s_mul_i32 s{sT1}, s{sT0}, 14336")
                b(f"buffer_load_dword v9, v8, {s(sW1,4)}, s{sT1} offen")
                b(f"s_add_u32 s{sT1}, s{sT1}, 8192")
                b(f"buffer_load_dword v10, v8, {s(sW1,4)}, s{sT1} offen")
                b(f"s_lshl_b32 s{sT1}, s{sT0}, 12")
                b(f"buffer_load_dword v11, v8, {s(sHF,4)}, s{sT1} offen")
                b(f"buffer_load_dword v12, v8, {s(76,4)}, s{sT1} offen")
    stamp(b, 2)
    if not ffn:
        b(f"s_lshl_b32 s{sT0}, s{sR}, 1")
        b(f"s_add_u32 s{sT0}, s{sT0}, s{sS}")
        b(f"s_sub_u32 s{sT0}, s{sT0}, 14")
        b(f"s_lshl_b32 s{sT0}, s{sT0}, 2")
        b(f"s_add_u32 s{sT0}, s{sT0}, s{sWm}")
        k1_gjob_all(b)
        return b
    def ffn_phase(hh):
        p = B(); DEPTH = 3
        def lds_loc(n):
            i, k = divmod(n, 4)
            base = wblock_lds(8 * hh + i) + 16 * k * 128
            if base < 65536: return fTA, base
            if base < 131072: return fTB, base - 65536
            return fTC, base - 131072
        plan = {0: [0, 1, 2, 3], int(opts.get('bcn', 12)): [4, 5, 6, 7]} if hh == 0 else {0: list(range(8, 16))}
        def reads(n):
            if n in plan:
                p.wait('vm', *[f"w{q}" for q in plan[n]])
                if hh == 0 and n == 0: p("s_waitcnt lgkmcnt(0)")
                if STAMP >= 2: stamp(p, 26 + (0 if n == 0 else 1) if hh == 0 else 29)
                p("s_barrier")
                if STAMP >= 2 and hh == 0: stamp(p, 30 + (0 if n == 0 else 1))
            base, off = lds_loc(n)
            r = fS + (n % 4) * 8
            for ft in range(2):
                for rd in range(2):
                    p(f"ds_read_b64_tr_b16 {v(r+4*ft+2*rd,2)}, v{base+ft} offset:{off + rd*512}", f"r{hh}_{n}")
        ch = []
        if hh == 0:
            d = B()
            for q in range(8, 16): dma_w(d, q)
            ch = chunks_of(d.ops)
        for n in range(DEPTH): reads(n)
        for n in range(32):
            i, k = divmod(n, 4)
            r = fS + (n % 4) * 8
            p.wait('lg', f"r{hh}_{n}")
            for ft in range(2):
                acc = fAcc + (2*hh + ft) * 16
                c = v(acc, 16) if n else "0"
                p(f"v_mfma_f32_32x32x16_bf16 {v(acc,16)}, {v(r+4*ft,4)}, {a(16*i+4*k,4)}, {c}")
                if ft == 0 and ch: p.ext(ch.pop(0))
            if hh == 0 and n == int(opts.get('bxn', 1)): p("s_barrier")
            if n + DEPTH < 32: reads(n + DEPTH)
        assert not ch
        return p
    if int(opts.get('tseq', 0)):
        DEPTH = int(opts.get('tdepth', 6))
        def loc(g):
            t_, n = divmod(g, 32); i, k = divmod(n, 4)
            base = wblock_lds(8 * (t_ // 2) + i) + 16 * k * 128
            if base < 65536: return fTA + (t_ & 1), base
            if base < 131072: return fTB + (t_ & 1), base - 65536
            return fTC + (t_ & 1), base - 131072
        d = B()
        for q in range(8, 16): dma_w(d, q)
        ch = chunks_of(d.ops)
        tiles = []
        p = B()
        def rd(g):
            if g == 0:
                p.wait('vm', "w0", "w1", "w2", "w3"); p("s_waitcnt lgkmcnt(0)"); p("s_barrier")
            if g == 16:
                p.wait('vm', "w4", "w5", "w6", "w7"); p("s_barrier")
            if g == 64: p("s_barrier")
            base, off = loc(g); r = fS + (g % 8) * 4
            for r_ in range(2):
                p(f"ds_read_b64_tr_b16 {v(r+2*r_,2)}, v{base} offset:{off + r_*512}", f"t{g}")
        for g in range(DEPTH): rd(g)
        for g in range(128):
            t_, n = divmod(g, 32); i, k = divmod(n, 4)
            if n == 0 and t_: tiles.append(p); p = B()
            r = fS + (g % 8) * 4; acc = fAcc + t_ * 16
            if g % 2 == 0: p.wait('lg', f"t{g}", f"t{g+1}")
            p(f"v_mfma_f32_32x32x16_bf16 {v(acc,16)}, {v(r,4)}, {a(16*i+4*k,4)}, {v(acc,16) if n else 0}")
            if ch: p.ext(ch.pop(0))
            if g == int(opts.get('bxn', 3)): p("s_barrier")
            if g == 31: p.wait('vm', *[f"w{q}" for q in range(8, 16)])
            if g + DEPTH < 128: rd(g + DEPTH)
        tiles.append(p)
        PT = int(opts.get('pert', 3))
        b.ext(tiles[0])
        for t_ in range(1, 4):
            b.ext(merge(tiles[t_].ops, k1_silu(t_ - 1, False).ops, per=PT, start=1))
            if t_ == 1: stamp(b, 3)
        stamp(b, 4)
        b.ext(flat(k1_silu(3, True).ops))
        stamp(b, 5)
        return b
    b.ext(ffn_phase(0))
    stamp(b, 3)
    p3 = ffn_phase(1)
    fl = F()
    fl.ext(k1_silu(0, False)); fl.ext(k1_silu(1, False))
    if opts.get('p3mode') == 'nofill':
        b.ext(p3.ops); stamp(b, 6); b.ext(flat(fl.ops))
    elif opts.get('p3mode') == 'nostore':
        fo = [o for o in fl.ops if not (not isinstance(o, list) and o.kind == 'vmem')]
        st_ = [o for o in fl.ops if (not isinstance(o, list) and o.kind == 'vmem')]
        b.ext(merge(p3.ops, fo, per=int(opts.get('per3', 4)), start=1))
    else:
        b.ext(merge(p3.ops, fl.ops, per=int(opts.get('per3', 4)), start=1))
    stamp(b, 4)
    b.ext(flat(k1_silu(2, True).ops))
    b.ext(flat(k1_silu(3, True).ops))
    stamp(b, 5)
    return b

def k1_silu(ft, pk):
    b = F()
    acc = fAcc + ft * 16
    e, d = fE, fD
    for kk in range(2):
        base = acc + 8 * kk
        if pk:
            for q in range(4): b(f"v_pk_mul_f32 {v(e+2*q,2)}, {v(base+2*q,2)}, s[66:67]")
            for q in range(8): b(f"v_exp_f32 v{e+q}, v{e+q}")
            for q in range(4): b(f"v_pk_add_f32 {v(e+2*q,2)}, {v(e+2*q,2)}, 1.0 op_sel_hi:[1,0]")
            for q in range(8): b(f"v_rcp_f32 v{e+q}, v{e+q}")
            for q in range(4): b(f"v_pk_mul_f32 {v(e+2*q,2)}, {v(base+2*q,2)}, {v(e+2*q,2)}")
            for q in range(4): b(f"v_cvt_pk_bf16_f32 v{d+q}, v{e+2*q}, v{e+2*q+1}")
        else:
            seq = []
            for q in range(8):
                seq.append([f"v_mul_f32 v{e+q}, s66, v{base+q}", f"v_exp_f32 v{e+q}, v{e+q}", f"v_add_f32 v{e+q}, 1.0, v{e+q}",
                            f"v_rcp_f32 v{e+q}, v{e+q}", f"v_mul_f32 v{e+q}, v{base+q}, v{e+q}"])
            if opts.get('silu', 'diag') == 'diag':
                for tm in range(8 + 4):
                    for stg in range(5):
                        q = tm - stg
                        if 0 <= q < 8: b(seq[q][stg])
            elif opts.get('silu') == 'block':
                for stg in range(5):
                    for q in range(8): b(seq[q][stg])
            else:
                for tm in range(8 + 8):
                    for stg in range(5):
                        q = tm - 2 * stg
                        if 0 <= q < 8: b(seq[q][stg])
            for q in range(4): b(f"v_cvt_pk_bf16_f32 v{d+q}, v{e+2*q}, v{e+2*q+1}")
        b(f"s_add_u32 s{sK0}, s{sU}, {(2*ft+kk)*1024}")
        b(f"buffer_store_dwordx4 {v(d,4)}, v{fL16}, {s(sHF,4)}, s{sK0} offen {STF}")
    return b

gPX, gPB = 2, 6
vLBa, vImgW, vImgR, vL16o = 10, 11, 12, 13
vL, vC2, vL16, vL32, vL128, vL256, vF1, vG, vHfm = 16, 18, 20, 22, 24, 26, 28, 30, 32
vNon, vK, vQ, vW_, vPre, vTmp = 34, 36, 38, 40, 42, 44
vP = 48
aRE, aIM, vU = 64, 80, 96
aSX, aSB = 0, 16

def k1_S_setup():
    b = B(); L = vLane; t = vP
    b("s_waitcnt lgkmcnt(0)")
    srd(b, sHF, 34, WS_USED)
    b(f"v_and_b32 v{t}, 31, v{L}")
    b(f"s_lshl_b32 s{sT0}, s{sS}, 5")
    b(f"v_add_u32 v{t}, s{sT0}, v{t}")
    b(f"v_lshlrev_b32 v{t}, 1, v{t}")
    b(f"global_load_ushort v{vP+8}, v{t}, s[6:7]")
    b(f"global_load_ushort v{vP+9}, v{t}, s[8:9]")
    b(f"global_load_ushort v{vP+10}, v{t}, s[18:19]")
    b(f"v_mov_b32 v{t}, {NONCE_OFF}")
    b(f"global_load_dwordx2 {v(vU+26,2)}, v{t}, s[34:35] sc1")
    if int(opts.get('flgw', 1)):
        b(f"s_mul_i32 s{sT0}, s{sR}, {FLG_STRIDE}")
        b(f"s_add_u32 s{sT0}, s{sT0}, {FLG_OFF}")
        b(f"v_mov_b32 v{t}, s{sT0}")
        b(f"global_load_dword v{vU+10}, v{t}, s[34:35] sc1", 'nocount')
        b(f"s_lshl_b32 s{sT0}, s{sR}, 10")
        b(f"s_add_u32 s{sT0}, s{sT0}, {G_OFF}")
        b(f"v_and_b32 v{t}, 7, v{L}")
        b(f"v_lshlrev_b32 v{t}, 7, v{t}")
        b(f"v_add_u32 v{t}, s{sT0}, v{t}")
        b(f"global_load_dword v{vU+11}, v{t}, s[34:35] sc1", 'nocount')
    if int(opts.get('tlbw', 0)):
        pd = vU + 12
        b(f"s_cmp_eq_u32 s{sWm}, 2")
        b("s_cbranch_scc0 L_k1_tlb_done")
        b(f"v_mov_b32 v{t}, 0")
        for k, ptr in enumerate((24, 14, 16, 26, 20)):
            b(f"global_load_dword v{pd+k}, v{t}, {s(ptr,2)}", 'nocount')
        b(f"v_min_u32 v{t}, 19, v{L}")
        b(f"v_lshlrev_b32 v{t}, 20, v{t}")
        b(f"global_load_dword v{pd+5}, v{t}, s[34:35]", 'nocount')
        b(f"v_and_b32 v{t}, 3, v{L}")
        b(f"v_lshlrev_b32 v{t}, 20, v{t}")
        b(f"global_load_dword v{pd+6}, v{t}, s[30:31]", 'nocount')
        b("L_k1_tlb_done:")
    PF = int(opts.get('pf', 0))
    if PF:
        pd = vU + 28
        b(f"s_cmp_eq_u32 s{sWm}, 0")
        b("s_cbranch_scc0 L_k1_pf_1")
        b(f"v_lshrrev_b32 v{t}, 3, v{L}")
        b(f"s_lshl_b32 s{sT2}, s2, 3")
        b(f"v_add_u32 v{t}, s{sT2}, v{t}")
        b(f"v_lshlrev_b32 v{t}, 10, v{t}")
        b(f"v_and_b32 v{t+1}, 7, v{L}")
        b(f"v_max_u32 v{t+1}, 3, v{t+1}")
        b(f"v_lshl_add_u32 v{t}, v{t+1}, 7, v{t}")
        b(f"global_load_dword v{pd}, v{t}, s[4:5]", 'nocount')
        b("L_k1_pf_1:")
        b(f"s_cmp_eq_u32 s{sWm}, 1")
        b("s_cbranch_scc0 L_k1_pf_2")
        b(f"v_bfe_u32 v{t}, v{L}, 3, 1")
        b(f"s_lshl_b32 s{sT2}, s2, 1")
        b(f"v_add_u32 v{t}, s{sT2}, v{t}")
        b(f"v_lshlrev_b32 v{t}, 10, v{t}")
        b(f"v_and_b32 v{t+1}, 7, v{L}")
        b(f"v_max_u32 v{t+1}, 3, v{t+1}")
        b(f"v_lshl_add_u32 v{t}, v{t+1}, 7, v{t}")
        b(f"global_load_dword v{pd}, v{t}, s[10:11]", 'nocount')
        b(f"global_load_dword v{pd+1}, v{t}, s[12:13]", 'nocount')
        b("L_k1_pf_2:")
        b(f"s_cmp_eq_u32 s{sWm}, 2")
        b("s_cbranch_scc0 L_k1_pf_done")
        b(f"v_lshrrev_b32 v{t}, 5, v{L}")
        b(f"s_lshl_b32 s{sT2}, s2, 1")
        b(f"v_add_u32 v{t}, s{sT2}, v{t}")
        b(f"v_mul_u32_u24 v{t}, 3584, v{t}")
        b(f"v_and_b32 v{t+1}, 31, v{L}")
        b(f"v_min_u32 v{t+1}, 27, v{t+1}")
        b(f"v_lshl_add_u32 v{t}, v{t+1}, 7, v{t}")
        b(f"global_load_dword v{pd}, v{t}, s[24:25]", 'nocount')
        b("L_k1_pf_done:")
    b(f"v_and_b32 v{t}, 31, v{L}")
    b(f"v_lshrrev_b32 v{t+1}, 5, v{L}")
    b(f"v_bfe_u32 v{t+2}, v{L}, 1, 3")
    b(f"v_xor_b32 v{t+2}, v{t+1}, v{t+2}")
    b(f"v_lshlrev_b32 v{t+1}, 7, v{t}")
    b(f"v_add_u32 v{t+1}, s{sLdsX}, v{t+1}")
    b(f"v_lshrrev_b32 v{t+3}, 3, v{t}")
    b(f"v_lshlrev_b32 v{t+3}, 11, v{t+3}")
    b(f"v_and_b32 v{t}, 7, v{t}")
    b(f"v_lshl_add_u32 v{t}, v{t}, 7, v{t+3}")
    b(f"v_add_u32 v{t}, 16384, v{t}")
    for k in range(4):
        b(f"v_xor_b32 v{t+3}, {2*k}, v{t+2}")
        b(f"v_lshl_add_u32 v{gPX+k}, v{t+3}, 4, v{t+1}")
        b(f"v_lshl_add_u32 v{gPB+k}, v{t+3}, 4, v{t}")
    return b

def k1_params():
    b = F()
    lre, lim, ldt = vP+8, vP+9, vP+10
    va, vang, t0 = vP, vP+1, vP+2
    b(f"v_lshlrev_b32 v{lre}, 16, v{lre}")
    b(f"v_lshlrev_b32 v{lim}, 16, v{lim}")
    b(f"v_lshlrev_b32 v{ldt}, 16, v{ldt}")
    b(f"v_mul_f32 v{ldt}, {LOG2E:#x}, v{ldt}")
    b(f"v_exp_f32 v{ldt}, v{ldt}")
    b(f"v_cvt_pk_bf16_f32 v{ldt}, v{ldt}, v{ldt}")
    b(f"v_lshlrev_b32 v{ldt}, 16, v{ldt}")
    b(f"v_mul_f32 v{va}, v{ldt}, v{lre}")
    b(f"v_mul_f32 v{vang}, v{ldt}, v{lim}")
    b(f"v_mul_f32 v{va}, {LOG2E:#x}, v{va}")
    b(f"v_mul_f32 v{vang}, {INV2PI:#x}, v{vang}")
    cexp(b, vL, "1.0", va, vang, t0)
    for dst, cst in ((vL16, 0x41800000), (vL32, 0x42000000), (vL128, 0x43000000), (vL256, 0x43800000)):
        b(f"v_mov_b32 v{t0+3}, {cst:#x}")
        cexp(b, dst, f"v{t0+3}", va, vang, t0)
    b(f"v_lshrrev_b32 v{t0+3}, 5, v{vLane}")
    b(f"v_cvt_f32_u32 v{vHfm}, v{t0+3}")
    b(f"v_lshlrev_b32 v{t0+3}, 4, v{t0+3}")
    b(f"v_cvt_f32_u32 v{t0+3}, v{t0+3}")
    cexp(b, vF1, f"v{t0+3}", va, vang, t0)
    b(f"v_lshrrev_b32 v{t0+3}, 5, v{vLane}")
    b(f"v_lshlrev_b32 v{t0+3}, 4, v{t0+3}")
    b(f"s_lshl_b32 s{sSpin}, s{sWm}, 5")
    b(f"v_add_u32 v{t0+3}, s{sSpin}, v{t0+3}")
    b(f"v_cvt_f32_u32 v{t0+3}, v{t0+3}")
    cexp(b, vG, f"v{t0+3}", va, vang, t0)
    b(f"v_add_f32 v{t0}, -1.0, v{vL}")
    b(f"v_mul_f32 v{t0+1}, v{lre}, v{lre}")
    b(f"v_fma_f32 v{t0+1}, v{lim}, v{lim}, v{t0+1}")
    b(f"v_rcp_f32 v{t0+1}, v{t0+1}")
    b(f"v_mul_f32 v{vC2}, v{t0}, v{lre}")
    b(f"v_fma_f32 v{vC2}, v{vL+1}, v{lim}, v{vC2}")
    b(f"v_mul_f32 v{vC2+1}, v{vL+1}, v{lre}")
    b(f"v_fma_f32 v{vC2+1}, -v{t0}, v{lim}, v{vC2+1}")
    b(f"v_add_f32 v{t0+1}, v{t0+1}, v{t0+1}")
    b(f"v_mul_f32 v{vC2}, v{vC2}, v{t0+1}")
    b(f"v_mul_f32 v{vC2+1}, v{vC2+1}, v{t0+1}")
    return b

def k1_setup_common():
    b = F(); t = vP + 12; L = vLane
    for k, m in ((1, sM1), (2, sM2), (3, sM3)):
        g = B()
        g(f"s_cmp_ge_u32 s{sWm}, {k}")
        g(f"s_cselect_b64 {s(m,2)}, -1, 0")
        b.group(g)
    b(f"v_lshlrev_b32 v{vL16o}, 4, v{L}")
    b(f"v_and_b32 v{t}, 31, v{L}")
    b(f"v_lshlrev_b32 v{t}, 4, v{t}")
    b(f"s_lshl_b32 s{sK0}, s{sS}, 9")
    b(f"s_add_u32 s{sK0}, s{sK0}, {E_OFF}")
    b(f"v_add_u32 v{vLBa}, s{sK0}, v{t}")
    b(f"v_and_b32 v{t}, 31, v{L}")
    b(f"v_mul_u32_u24 v{t}, 80, v{t}")
    b(f"v_lshrrev_b32 v{t+1}, 5, v{L}")
    b(f"v_lshl_add_u32 v{t}, v{t+1}, 5, v{t}")
    b(f"s_mul_i32 s{sK0}, s{sWm}, 5120")
    b(f"s_add_u32 s{sK0}, s{sK0}, {SCR}")
    b(f"v_add_u32 v{vImgW}, s{sK0}, v{t}")
    b(f"v_lshrrev_b32 v{t+1}, 5, v{L}")
    b(f"v_lshlrev_b32 v{t+1}, 3, v{t+1}")
    b(f"v_bfe_u32 v{t+2}, v{L}, 2, 2")
    b(f"v_add_u32 v{t+1}, v{t+1}, v{t+2}")
    b(f"v_mul_u32_u24 v{t+1}, 80, v{t+1}")
    b(f"v_and_b32 v{t+2}, 1, v{L}")
    b(f"v_lshlrev_b32 v{t+2}, 5, v{t+2}")
    b(f"v_bfe_u32 v{t+3}, v{L}, 4, 1")
    b(f"v_lshlrev_b32 v{t+3}, 4, v{t+3}")
    b(f"v_add3_u32 v{t+1}, v{t+1}, v{t+2}, v{t+3}")
    b(f"v_bfe_u32 v{t+2}, v{L}, 1, 1")
    b(f"v_lshlrev_b32 v{t+2}, 3, v{t+2}")
    b(f"v_add3_u32 v{vImgR}, v{t+1}, v{t+2}, s{sK0}")
    return b

def k1_gjob_all(b):
    L = vLane
    xs0, gs, gu, t, w = 32, 112, 16, 120, 96
    b(f"v_and_b32 v{t}, 31, v{L}")
    b(f"v_lshlrev_b32 v{t}, 4, v{t}")
    b(f"global_load_dwordx4 {v(gs,4)}, v{t}, s[28:29]")
    b(f"global_load_dwordx4 {v(gs+4,4)}, v{t}, s[28:29] offset:512")
    b(f"v_lshrrev_b32 v{t+1}, 5, v{L}")
    b(f"s_lshl_b32 s{sT1}, s{sT0}, 4")
    b(f"v_add_u32 v{t+1}, s{sT1}, v{t+1}")
    b(f"v_lshlrev_b32 v{t+2}, 3, v{t+1}")
    b(f"v_add_u32 v{t+2}, {G_OFF}, v{t+2}")
    b(f"v_lshlrev_b32 v{t+1}, 10, v{t+1}")
    b(f"v_add_u32 v{t+1}, v{t+1}, v{t}")
    for p in range(8):
        r = xs0 + p * 8
        if p: b(f"v_add_u32 v{t+1}, 2048, v{t+1}")
        b(f"global_load_dwordx4 {v(r,4)}, v{t+1}, s[4:5]")
        b(f"global_load_dwordx4 {v(r+4,4)}, v{t+1}, s[4:5] offset:512")
    for _ in range(4): b("s_barrier")
    for k in range(8):
        b(f"v_lshlrev_b32 v{gu+2*k}, 16, v{gs+k}")
        b(f"v_and_b32 v{gu+2*k+1}, 0xffff0000, v{gs+k}")
    b(f"v_and_b32 v{t+3}, 31, v{L}")
    for p in range(8):
        xs = xs0 + p * 8
        acc = w
        for k in range(8):
            a0 = w + 2 + 2 * (k % 4)
            b(f"v_lshlrev_b32 v{a0}, 16, v{xs+k}")
            b(f"v_and_b32 v{a0+1}, 0xffff0000, v{xs+k}")
            b(f"v_pk_mul_f32 {v(a0,2)}, {v(a0,2)}, {v(gu+2*k,2)}")
            b(f"v_cvt_pk_bf16_f32 v{a0}, v{a0}, v{a0+1}")
            b(f"v_and_b32 v{a0+1}, 0xffff0000, v{a0}")
            b(f"v_lshlrev_b32 v{a0}, 16, v{a0}")
            if k == 0:
                b(f"v_add_f32 v{acc}, v{a0}, v{a0+1}")
            else:
                b(f"v_add_f32 v{a0}, v{a0}, v{a0+1}")
                b(f"v_add_f32 v{acc}, v{acc}, v{a0}")
        for r in (8, 4, 2, 1):
            b(f"v_add_f32_dpp v{acc}, v{acc}, v{acc} row_ror:{r} row_mask:0xf bank_mask:0xf")
        b(f"v_mov_b32 v{acc+1}, v{acc}")
        b(f"v_permlane16_swap_b32 v{acc}, v{acc+1}")
        b(f"v_add_f32 v{acc}, v{acc}, v{acc+1}")
        b(f"v_cvt_pk_bf16_f32 v{acc}, v{acc}, v{acc}")
        b(f"v_lshlrev_b32 v{acc}, 16, v{acc}")
        b(f"v_mul_f32 v{acc}, {LOG2E ^ 0x80000000:#x}, v{acc}")
        b(f"v_exp_f32 v{acc}, v{acc}")
        b(f"v_add_f32 v{acc}, 1.0, v{acc}")
        b(f"v_rcp_f32 v{acc}, v{acc}")
        b(f"v_cvt_pk_bf16_f32 v{acc}, v{acc}, v{acc}")
        d = xs
        b(f"v_lshlrev_b32 v{d}, 16, v{acc}")
        b(f"v_sub_f32 v{d+1}, 1.0, v{d}")
        b(f"v_cvt_pk_bf16_f32 v{d+1}, v{d+1}, v{d+1}")
        b(f"v_lshlrev_b32 v{d+1}, 16, v{d+1}")
    b(f"v_cmp_eq_u32 vcc, 0, v{t+3}")
    b(f"s_and_saveexec_b64 {s(sEX,2)}, vcc")
    for p in range(8):
        b(f"global_store_dwordx2 v{t+2}, {v(xs0+8*p,2)}, s[34:35] offset:{16*p} sc0 sc1")
    b(f"s_mov_b64 exec, {s(sEX,2)}")

def k1_nonce():
    b = F()
    t = vU + 26
    b(f"v_add_u32 v{t}, 1, v{t}")
    b(f"v_or_b32 v{t+1}, 1, v{t+1}")
    b(f"v_mov_b32 v{t+2}, {NONCE_OFF}")
    b(f"v_mov_b32 v{t+3}, 0")
    g = B()
    g(f"s_or_b32 s{sSpin}, s2, s{sWm}")
    g(f"s_cmp_lg_u32 s{sSpin}, 0")
    g("s_cbranch_scc1 L_k1_nononce")
    g(f"global_store_dwordx2 v{t+2}, {v(t,2)}, s[34:35] sc0 sc1", 'nocount')
    g(f"global_store_dwordx2 v{t+3}, {v(t,2)}, s[32:33] sc0 sc1", 'nocount')
    g("L_k1_nononce:")
    b.group(g)
    return b

def k1_S():
    b = k1_S_setup()
    if int(opts.get('sprio', 1)): b("s_setprio 2")
    m = B()
    for i in range(8):
        m("s_waitcnt lgkmcnt(0)")
        m("s_barrier")
        po = (i % NSLOT) * SLOT
        hi = po >= 65536 - 1024
        if hi:
            for k in range(4):
                m(f"v_add_u32 v{vTmp+k}, 0x10000, v{gPX+k}")
        for k in range(4):
            if hi: m(f"ds_read_b128 {a(aSX+4*k,4)}, v{vTmp+k} offset:{po - 65536}")
            else: m(f"ds_read_b128 {a(aSX+4*k,4)}, v{gPX+k} offset:{po}")
        if hi:
            for k in range(4):
                m(f"v_add_u32 v{vTmp+k}, 0x10000, v{gPB+k}")
        for k in range(4):
            for mm in range(2):
                if hi: m(f"ds_read_b128 {a(aSB+8*k+4*mm,4)}, v{vTmp+k} offset:{po - 65536 + mm*1024}")
                else: m(f"ds_read_b128 {a(aSB+8*k+4*mm,4)}, v{gPB+k} offset:{po + mm*1024}")
        for k in range(4):
            for mm, acc in ((0, aRE), (1, aIM)):
                c = v(acc, 16) if (i, k) != (0, 0) else "0"
                m(f"v_mfma_f32_32x32x16_bf16 {v(acc,16)}, {a(aSX+4*k,4)}, {a(aSB+8*k+4*mm,4)}, {c}")
    f = F()
    f.ext(k1_nonce())
    f.ext(k1_params())
    f.ext(k1_setup_common())
    g = B()
    g(f"v_mov_b32 v{vTmp}, 0")
    g(f"global_load_dwordx2 {v(vNon,2)}, v{vTmp}, s[32:33] sc1")
    f.group(g)
    b.ext(merge(m.ops, f.ops, per=int(opts.get('per1', 5))))
    b("s_waitcnt vmcnt(0)")
    stamp(b, 2)
    s1 = flat(k1_scan1a().ops)
    cut = [j for j, o in enumerate(s1) if o.kind == 'ds'][0]
    if STAMP >= 2: stamp(b, 8)
    b.ext(s1[:cut])
    if STAMP >= 2: stamp(b, 9)
    b("s_barrier")
    b.ext(s1[cut:])
    if STAMP >= 2: stamp(b, 11)
    b("s_barrier")
    if STAMP >= 2: stamp(b, 12)
    b.ext(flat(k1_scan1b().ops))
    if STAMP >= 2: stamp(b, 13)
    b.ext(k1_publish())
    stamp(b, 3)
    b("s_barrier")
    b.ext(p2_S_csetup())
    if opts.get('lbfirst', '0') == '1':
        b("s_barrier")
        stamp(b, 4)
        b.ext(k1_lookback())
        stamp(b, 5)
        b.ext(k1_final())
        b.ext(p2_S_cdma())
        b.ext(p2_S_creads())
    else:
        b("s_barrier")
        b.ext(p2_S_cdma())
        stamp(b, 4)
        b.ext(k1_lookback())
        stamp(b, 5)
        b.ext(k1_final())
        b.ext(p2_S_creads())
    stamp(b, 6)
    return b

def cfma_sr(b, d, l, h, ure, uim, tmp):
    b(f"v_fma_f32 v{tmp}, v{l}, v{h}, v{ure}")
    b(f"v_fma_f32 v{tmp+1}, v{l}, v{h+1}, v{uim}")
    b(f"v_fma_f32 v{d}, -v{l+1}, v{h+1}, v{tmp}")
    b(f"v_fma_f32 v{d+1}, v{l+1}, v{h}, v{tmp+1}")

def k1_scan1a():
    b = F()
    tmp = vTmp
    R = lambda t: aRE + reg_of_t(t)
    I = lambda t: aIM + reg_of_t(t)
    b(f"v_mov_b32 v{vQ}, v{R(0)}\nv_mov_b32 v{vQ+1}, v{I(0)}")
    cur = vQ
    for t in range(1, 16):
        nxt = vQ if cur == vW_ else vW_
        cfma_sr(b, nxt, vL, cur, R(t), I(t), tmp)
        cur = nxt
    assert cur == vW_
    b(f"v_mov_b32 v{vPre}, v{cur}\nv_mov_b32 v{vPre+1}, v{cur+1}")
    b(f"v_mov_b32 v{vQ}, v{cur}\nv_mov_b32 v{vQ+1}, v{cur+1}")
    b(f"v_permlane32_swap_b32 v{vPre}, v{vQ}")
    b(f"v_permlane32_swap_b32 v{vPre+1}, v{vQ+1}")
    cfma_s(b, vW_, vL16, vPre, vQ, tmp)
    b(f"v_mul_f32 v{vPre}, v{vPre}, v{vHfm}\nv_mul_f32 v{vPre+1}, v{vPre+1}, v{vHfm}")
    t = vP
    b(f"v_and_b32 v{t+14}, 31, v{vLane}")
    b(f"v_lshlrev_b32 v{t+14}, 3, v{t+14}")
    b(f"v_add_u32 v{t+14}, {SCR}, v{t+14}")
    b(f"s_lshl_b32 s{sK0}, s{sWm}, 8")
    b(f"v_add_u32 v{t+15}, s{sK0}, v{t+14}")
    b(f"ds_write_b64 v{t+15}, {v(vW_,2)} offset:{SC}", "Wx")
    b.wait('lg', "Wx")
    return b

def k1_scan1b():
    b = F()
    t = vP; tmp = vTmp
    for w in range(4):
        b(f"ds_read_b64 {v(t+2*w,2)}, v{t+14} offset:{SC + 256*w}")
    W0, W1, W2, W3 = t, t+2, t+4, t+6
    Q2, Q3 = t+8, t+10
    cfma_s(b, Q2, vL32, W0, W1, tmp)
    cfma_s(b, Q3, vL32, Q2, W2, tmp)
    E = t + 12
    cfma_s(b, E, vL32, Q3, W3, tmp)
    for h in range(2):
        b(f"v_cndmask_b32 v{vQ+h}, 0, v{W0+h}, {s(sM1,2)}")
        b(f"v_cndmask_b32 v{vQ+h}, v{vQ+h}, v{Q2+h}, {s(sM2,2)}")
        b(f"v_cndmask_b32 v{vQ+h}, v{vQ+h}, v{Q3+h}, {s(sM3,2)}")
    cfma_s(b, vK, vF1, vQ, vPre, tmp)
    return b

def k1_publish():
    t = vP; E = t + 12; tmp = vTmp
    g = B()
    g(f"s_lshl_b32 s{sK0}, s{sR}, 13")
    g(f"v_add_u32 v{tmp}, s{sK0}, v{vLBa}")
    g(f"v_lshrrev_b32 v{tmp+1}, 3, v{vLane}")
    g(f"v_cmp_ne_u32 vcc, 0, v{vNon+1}")
    g("s_cbranch_vccnz L_k1_nonce_ok")
    g(f"s_mov_b32 s{sSpin}, 0")
    g("L_k1_nonce_retry:")
    g(f"v_mov_b32 v{tmp+2}, 0")
    g(f"global_load_dwordx2 {v(vNon,2)}, v{tmp+2}, s[32:33] sc1", 'nocount')
    g("s_waitcnt vmcnt(0)", 'nocount')
    g(f"s_add_u32 s{sSpin}, s{sSpin}, 1")
    g(f"s_cmp_gt_u32 s{sSpin}, 40000")
    g("s_cbranch_scc1 L_k1_nonce_ok")
    g(f"v_cmp_ne_u32 vcc, 0, v{vNon+1}")
    g("s_cbranch_vccz L_k1_nonce_retry")
    g("L_k1_nonce_ok:")
    g(f"v_mov_b32 v{E+2}, v{vNon}\nv_mov_b32 v{E+3}, v{vNon+1}")
    g(f"v_cmp_eq_u32 vcc, s{sWm}, v{tmp+1}")
    g(f"s_and_saveexec_b64 {s(sEX,2)}, vcc")
    g(f"global_store_dwordx4 v{tmp}, {v(E,4)}, s[34:35] sc0 sc1")
    g(f"s_mov_b64 exec, {s(sEX,2)}")
    return g

def k1_lookback():
    b = B(); tmp = vTmp; t = vP
    H = vW_
    def loads(tok):
        b(f"s_sub_u32 s{sK0}, s{sR}, 1")
        b(f"s_lshl_b32 s{sK0}, s{sK0}, 13")
        b(f"v_lshrrev_b32 v{t}, 5, v{vLane}")
        b(f"v_lshlrev_b32 v{t}, 13, v{t}")
        b(f"v_sub_u32 v{t}, s{sK0}, v{t}")
        b(f"v_add_u32 v{t}, v{vLBa}, v{t}")
        for mm in range(8):
            if mm: b(f"v_subrev_u32 v{t}, 16384, v{t}")
            b(f"v_max_i32 v{t+1}, v{t}, v{vLBa}")
            b(f"global_load_dwordx4 {v(vU+4*mm,4)}, v{t+1}, s[34:35] sc1", tok)
    b(f"s_cmp_eq_u32 s{sR}, 0")
    b("s_cbranch_scc1 L_k1_lb_zero")
    b(f"s_mov_b32 s{sSpin}, 0")
    b("L_k1_lb_again:")
    loads('nocount')
    b("s_waitcnt vmcnt(0)", 'nocount')
    b(f"s_mov_b64 {s(sEX,2)}, -1")
    for mm in range(8):
        b(f"s_cmp_le_u32 s{sR}, {2*mm}")
        b("s_cbranch_scc1 L_k1_lb_checked")
        b(f"s_cmp_ge_u32 s{sR}, {2*mm+2}")
        b(f"s_cselect_b32 s{sT1}, 0, -1")
        b(f"v_cmp_eq_u32 vcc, v{vU+4*mm+2}, v{vNon}")
        b(f"v_cmp_eq_u32 {s(sT2,2)}, v{vU+4*mm+3}, v{vNon+1}")
        b(f"s_and_b64 vcc, vcc, {s(sT2,2)}")
        b(f"s_or_b32 vcc_hi, vcc_hi, s{sT1}")
        b(f"s_and_b64 {s(sEX,2)}, {s(sEX,2)}, vcc")
    b("L_k1_lb_checked:")
    b(f"s_cmp_eq_u64 {s(sEX,2)}, -1")
    b("s_cbranch_scc1 L_k1_lb_ok")
    b(f"s_add_u32 s{sSpin}, s{sSpin}, 1")
    b(f"s_cmp_gt_u32 s{sSpin}, 40000")
    b("s_cbranch_scc1 L_k1_lb_ok")
    b(f"s_sleep {int(opts.get('lbsleep', 4))}")
    b("s_branch L_k1_lb_again")
    b("L_k1_lb_ok:")
    b(f"v_mov_b32 v{H}, 0\nv_mov_b32 v{H+1}, 0")
    for mm in range(7, -1, -1):
        b(f"s_cmp_le_u32 s{sR}, {2*mm}")
        b(f"s_cbranch_scc1 L_k1_lb_h{mm}")
        b(f"s_cmp_ge_u32 s{sR}, {2*mm+2}")
        b(f"s_cselect_b32 s{sT3}, -1, 0")
        b(f"s_mov_b32 s{sT2}, -1")
        b(f"v_cndmask_b32 v{vU+4*mm}, 0, v{vU+4*mm}, {s(sT2,2)}")
        b(f"v_cndmask_b32 v{vU+4*mm+1}, 0, v{vU+4*mm+1}, {s(sT2,2)}")
        b(f"v_fma_f32 v{tmp}, v{vL256}, v{H}, v{vU+4*mm}")
        b(f"v_fma_f32 v{tmp+1}, v{vL256}, v{H+1}, v{vU+4*mm+1}")
        b(f"v_fma_f32 v{tmp}, -v{vL256+1}, v{H+1}, v{tmp}")
        b(f"v_fma_f32 v{H+1}, v{vL256+1}, v{H}, v{tmp+1}")
        b(f"v_mov_b32 v{H}, v{tmp}")
        b(f"L_k1_lb_h{mm}:")
    b(f"v_mov_b32 v{vPre}, v{H}\nv_mov_b32 v{vPre+1}, v{H+1}")
    b(f"v_permlane32_swap_b32 v{H}, v{vPre}")
    b(f"v_permlane32_swap_b32 v{H+1}, v{vPre+1}")
    cfma_s(b, t, vL128, vPre, H, tmp)
    cfma_s(b, vQ, vG, t, vK, tmp)
    b("s_branch L_k1_lb_done")
    b("L_k1_lb_zero:")
    b(f"v_mov_b32 v{vQ}, v{vK}\nv_mov_b32 v{vQ+1}, v{vK+1}")
    b("L_k1_lb_done:")
    return b

def k1_final():
    b = B()
    tmp = vTmp
    prev = vQ
    for t in range(16):
        r = reg_of_t(t)
        u = vU + 2 * r
        cfma_sr(b, u, vL, prev, aRE + r, aIM + r, tmp)
        prev = u
    for r in range(16):
        u = vU + 2 * r
        tp = vP + 2 * (r % 4)
        b(f"v_mul_f32 v{tp}, v{vC2}, v{u}")
        b(f"v_mul_f32 v{tp+1}, v{vC2+1}, v{u}")
        b(f"v_fma_f32 v{u}, -v{vC2+1}, v{u+1}, v{tp}")
        b(f"v_fma_f32 v{u+1}, v{vC2}, v{u+1}, v{tp+1}")
    for k in range(8):
        b(f"v_cvt_pk_bf16_f32 v{aRE+k}, v{vU+4*k}, v{vU+4*k+2}")
    for h in range(2):
        b(f"ds_write_b128 v{vImgW}, {v(aRE+4*h,4)} offset:{IMG + h*16}", "img")
    for k in range(8):
        b(f"v_cvt_pk_bf16_f32 v{aRE+8+k}, -v{vU+4*k+1}, -v{vU+4*k+3}")
    for h in range(2):
        b(f"ds_write_b128 v{vImgW}, {v(aRE+8+4*h,4)} offset:{IMG + 2560 + h*16}", "img")
    b(f"s_lshl_b32 s{sT2}, s{sS}, 12")
    b(f"s_add_u32 s{sT1}, s{sHFb}, s{sT2}")
    b.wait('lg', "img")
    for m in range(2):
        for kk in range(2):
            r = aIM + (2*m + kk) * 4
            for rd in range(2):
                b(f"ds_read_b64_tr_b16 {v(r+2*rd,2)}, v{vImgR} offset:{IMG + (m*32 + 16*kk + 4*rd)*80}")
    for m in range(2):
        for kk in range(2):
            r = aIM + (2*m + kk) * 4
            b(f"s_add_u32 s{sT2}, s{sT1}, {(2*m+kk)*1024}")
            b(f"buffer_store_dwordx4 {v(r,4)}, v{vL16o}, {s(sHF,4)}, s{sT2} offen {STF}")
    return b


pA, pC1, pC2 = 36, 40, 44
pH, pN, pK0, pLw, pOff = 72, 73, 74, 75, 76
pNib = 84
CST = 98304
vCe, vCo, vPp = 2, 3, 4
vH0g, vH1g, vH0k, vH1k = 2, 3, 4, 5
vTau, vSg, vSk = 8, 10, 12
vWrq = 16
PITCH = 256

def p2_ids(b):
    b(f"s_lshr_b32 s{pH}, s{sS}, 3")
    b(f"s_and_b32 s{pN}, s{sS}, 7")

def p2_S_csetup():
    b = B(); L = vLane; t = vP
    p2_ids(b)
    srd(b, pC1, 14, 512*1024)
    srd(b, pC2, 16, 512*1024)
    b(f"v_and_b32 v{t}, 7, v{L}")
    b(f"v_lshrrev_b32 v{t+1}, 4, v{L}")
    b(f"v_xor_b32 v{t}, v{t}, v{t+1}")
    b(f"v_lshlrev_b32 v{t}, 4, v{t}")
    b(f"v_lshrrev_b32 v{t+1}, 3, v{L}")
    b(f"v_lshlrev_b32 v{t+1}, 10, v{t+1}")
    b(f"v_add_u32 v{vCe}, v{t}, v{t+1}")
    b(f"v_xor_b32 v{vCo}, 64, v{vCe}")
    b(f"s_lshl_b32 s{pOff}, s{pN}, 16")
    b(f"s_lshl_b32 s{sT0}, s{pH}, 9")
    b(f"s_add_u32 s{pOff}, s{pOff}, s{sT0}")
    b(f"s_lshl_b32 s{sT0}, s{sWm}, 7")
    b(f"s_add_u32 s{pOff}, s{pOff}, s{sT0}")
    b(f"s_lshl_b32 s{pLw}, s{sWm}, 14")
    b(f"s_add_u32 s{pLw}, s{pLw}, {CST}")
    b(f"v_and_b32 v{t}, 31, v{L}")
    b(f"v_lshlrev_b32 v{t}, 7, v{t}")
    b(f"v_add_u32 v{t}, s{pLw}, v{t}")
    b(f"v_lshrrev_b32 v{t+1}, 5, v{L}")
    b(f"v_bfe_u32 v{t+2}, v{L}, 1, 3")
    b(f"v_xor_b32 v{t+2}, v{t+1}, v{t+2}")
    for k in range(4):
        b(f"v_xor_b32 v{t+1}, {2*k}, v{t+2}")
        b(f"v_lshl_add_u32 v{vPp+k}, v{t+1}, 4, v{t}")
    return b

def p2_S_cdma():
    b = B()
    for m in range(2):
        for aa in range(8):
            b(f"s_add_u32 m0, s{pLw}, {m*8192 + aa*1024}")
            b(f"s_add_u32 s{sT0}, s{pOff}, {aa*8192}")
            b(f"buffer_load_dwordx4 v{vCe if aa % 2 == 0 else vCo}, {s(pC1 if m == 0 else pC2,4)}, s{sT0} offen lds", "cst")
    return b

ROT2 = int(opts.get('rot2', 0))
pKS = 48
def p2_S_creads():
    b = B()
    if not ROT2:
        b.wait('vm', "cst")
        for j in range(8):
            m = (j >> 1) & 1; ksp = 2 * (j >> 2) + (j & 1)
            for aa in range(2):
                b(f"ds_read_b128 {a(8*j+4*aa,4)}, v{vPp+ksp} offset:{m*8192 + aa*4096}")
        for j in range(8): b(f"s_mov_b32 s{pKS+j}, {j*1024}")
        return b
    t = vP; L = vLane
    b(f"v_and_b32 v{t}, 31, v{L}")
    b(f"v_lshlrev_b32 v{t}, 7, v{t}")
    b(f"v_add_u32 v{t}, s{pLw}, v{t}")
    b(f"v_lshrrev_b32 v{t+1}, 5, v{L}")
    b(f"v_bfe_u32 v{t+2}, v{L}, 1, 3")
    b(f"v_xor_b32 v{t+1}, v{t+1}, v{t+2}")
    b.wait('vm', "cst")
    for j in range(8):
        b(f"s_add_u32 s{sT0}, s{pN}, {j}")
        b(f"s_and_b32 s{sT0}, s{sT0}, 7")
        b(f"s_lshl_b32 s{pKS+j}, s{sT0}, 10")
        b(f"s_lshr_b32 s{sT1}, s{sT0}, 2")
        b(f"s_lshl_b32 s{sT1}, s{sT1}, 1")
        b(f"s_and_b32 s{sT2}, s{sT0}, 1")
        b(f"s_add_u32 s{sT1}, s{sT1}, s{sT2}")
        b(f"s_lshl_b32 s{sT1}, s{sT1}, 1")
        b(f"s_bfe_u32 s{sT2}, s{sT0}, 0x10001")
        b(f"s_lshl_b32 s{sT2}, s{sT2}, 13")
        tt = t + 4 + (j % 4)
        b(f"v_xor_b32 v{tt}, s{sT1}, v{t+1}")
        b(f"v_lshl_add_u32 v{tt}, v{tt}, 4, v{t}")
        b(f"v_add_u32 v{tt}, s{sT2}, v{tt}")
        for aa in range(2):
            b(f"ds_read_b128 {a(8*j+4*aa,4)}, v{tt} offset:{aa*4096}")
    return b

def p2_common(b, role):
    L = vLane
    srd(b, pA, 34, WS_USED)
    b(f"s_xor_b32 s{sT0}, s{pH}, 1")
    b(f"s_lshl_b32 s{sT0}, s{sT0}, 1")
    b(f"s_lshl_b32 s{sT1}, s{sR}, 2")
    b(f"s_add_u32 s{sT0}, s{sT0}, s{sT1}")
    b(f"s_mul_i32 s{sT0}, s{sT0}, {176*1024}")
    b(f"v_lshlrev_b32 v6, 4, v{L}")
    b(f"v_add_u32 v{vH0g}, s{sT0}, v6")
    b(f"v_add_u32 v{vH1g}, {176*1024}, v{vH0g}")
    b(f"s_lshl_b32 s{sT0}, s{pH}, 2")
    b(f"s_sub_u32 s{sT0}, s{sT0}, 2")
    b(f"s_mul_i32 s{sT0}, s{sT0}, {176*1024}")
    b(f"v_add_u32 v{vH0k}, s{sT0}, v{vH0g}")
    b(f"v_add_u32 v{vH1k}, s{sT0}, v{vH1g}")
    b(f"s_lshl_b32 s{pK0}, s{pH}, 2")
    b(f"s_add_u32 s{pK0}, s{pK0}, s{sWm}")
    if role == 0:
        b(f"s_lshl_b32 s{pK0}, s{pK0}, 13")
    else:
        b(f"s_mul_i32 s{pK0}, s{pK0}, {14*1024}")
        b(f"s_add_u32 s{pK0}, s{pK0}, {64*1024}")

def p2_common2(b, role):
    L = vLane
    b(f"v_bfe_u32 v6, v{L}, 3, 2")
    b(f"v_and_b32 v7, 7, v{L}")
    b(f"v_lshl_add_u32 v{vTau}, v7, 2, v6")
    b(f"s_xor_b32 s{sT0}, s{pH}, 1")
    b(f"s_lshl_b32 s{sT0}, s{sT0}, 6")
    b(f"s_lshl_b32 s{sT1}, s{sR}, 7")
    b(f"s_add_u32 s{sT0}, s{sT0}, s{sT1}")
    b(f"v_add_u32 v6, s{sT0}, v{vTau}")
    b("v_lshlrev_b32 v6, 3, v6")
    b(f"v_add_u32 v6, {G_OFF + 4*role}, v6")
    b(f"global_load_dword v{vSg}, v6, s[34:35] sc1")
    b(f"global_load_dword v{vSg+1}, v6, s[34:35] offset:256 sc1")
    b(f"s_lshl_b32 s{sT0}, s{pH}, 7")
    b(f"s_sub_u32 s{sT0}, s{sT0}, 64")
    b(f"s_lshl_b32 s{sT0}, s{sT0}, 3")
    b(f"v_add_u32 v6, s{sT0}, v6")
    b(f"global_load_dword v{vSk}, v6, s[34:35] sc1")
    b(f"global_load_dword v{vSk+1}, v6, s[34:35] offset:256 sc1")
    b(f"s_lshl_b32 s{sT0}, s{sWm}, 14")
    if role == 0: b(f"s_add_u32 s{sT0}, s{sT0}, {CST}")
    b(f"v_lshlrev_b32 v9, 8, v{vTau}")
    b(f"v_add_u32 v9, s{sT0}, v9")
    b(f"v_lshrrev_b32 v6, 5, v{L}")
    b(f"v_and_b32 v7, 7, v{L}")
    b("v_xor_b32 v6, v6, v7")
    for q in range(4):
        b(f"v_xor_b32 v7, {2*q}, v6")
        b(f"v_lshl_add_u32 v{vWrq+q}, v7, 4, v9")

def p2_rwrite(b, acc, sc, dup=None):
    if dup is not None:
        b(f"v_mov_b32 v{dup}, v{sc}\nv_mov_b32 v{dup+1}, v{sc}\nv_mov_b32 v{dup+2}, v{sc+1}\nv_mov_b32 v{dup+3}, v{sc+1}")
    for aa in range(2):
        for bb in range(2):
            S = acc + (aa*2+bb)*16
            g = sc + bb
            gp = g & ~1; o = g & 1
            if dup is not None:
                for p in range(8):
                    b(f"v_pk_mul_f32 {v(S+2*p,2)}, {v(S+2*p,2)}, {v(dup+2*bb,2)}")
            elif opts.get('rw', 'scalar') == 'pk':
                for p in range(8):
                    b(f"v_pk_mul_f32 {v(S+2*p,2)}, {v(S+2*p,2)}, {v(gp,2)} op_sel:[0,{o}] op_sel_hi:[1,{o}]")
            else:
                for p in range(16):
                    b(f"v_mul_f32 v{S+p}, v{g}, v{S+p}")
            for q in range(4):
                b(f"ds_write_b128 v{vWrq+q}, {v(S+4*q,4)} offset:{bb*32*PITCH + aa*128}", "red")
    b.wait('lg', "red")

def p2_F():
    b = B(); L = vLane
    b("L_p2_F:")
    b("s_waitcnt vmcnt(0) lgkmcnt(0)")
    b("s_barrier")
    if int(opts.get('p2prio', 0)): b(f"s_setprio {int(opts.get('p2prio', 0))}")
    stamp(b, 7)
    p2_ids(b)
    srd(b, pC1, 26, 1792*1024)
    vWa, vWb, vTp = 6, 7, 20
    t = 24
    b(f"v_bfe_u32 v{t}, v{L}, 4, 1")
    b(f"v_lshlrev_b32 v{t}, 2, v{t}")
    b(f"v_and_b32 v{t+1}, 7, v{L}")
    b(f"v_xor_b32 v{t}, v{t}, v{t+1}")
    b(f"v_lshlrev_b32 v{t}, 4, v{t}")
    b(f"v_lshrrev_b32 v{t+1}, 3, v{L}")
    b(f"v_lshlrev_b32 v{t+1}, 10, v{t+1}")
    b(f"v_add_u32 v{vWa}, v{t}, v{t+1}")
    b(f"v_add_u32 v{vWb}, {8192 - 1024}, v{vWa}")
    b(f"s_lshl_b32 s{sT0}, s{pH}, 2")
    b(f"s_add_u32 s{sT0}, s{sT0}, s{sWm}")
    b(f"s_mul_i32 s{pOff}, s{sT0}, {14*16*1024}")
    b(f"s_lshl_b32 s{sT0}, s{pN}, 7")
    b(f"s_add_u32 s{pOff}, s{pOff}, s{sT0}")
    b(f"s_lshl_b32 s{pLw}, s{sWm}, 14")
    pKF = [48, 49, 50, 51, 52, 53, 54, 55, 77, 78, 79, 80, 81, 82]
    if ROT2:
        b(f"s_mul_i32 s{sT2}, s{pN}, 7")
        b(f"s_lshr_b32 s{sT2}, s{sT2}, 2")
        for i in range(14):
            b(f"s_add_u32 s{pKF[i]}, s{sT2}, {i}")
            b(f"s_cmp_ge_u32 s{pKF[i]}, 14")
            b(f"s_cselect_b32 s{sT3}, 14, 0")
            b(f"s_sub_u32 s{pKF[i]}, s{pKF[i]}, s{sT3}")
            b(f"s_lshl_b32 s{pKF[i]}, s{pKF[i]}, 10")
    else:
        for i in range(14): b(f"s_mov_b32 s{pKF[i]}, {i*1024}")
    def wdma(i):
        b(f"s_add_u32 m0, s{pLw}, {(i % 8)*2048}")
        b(f"s_lshl_b32 s{sT1}, s{pKF[i]}, 4")
        b(f"s_add_u32 s{sT1}, s{sT1}, s{pOff}")
        b(f"buffer_load_dwordx4 v{vWa}, {s(pC1,4)}, s{sT1} offen lds", f"f{i}")
        b(f"buffer_load_dwordx4 v{vWb}, {s(pC1,4)}, s{sT1} offen offset:1024 lds", f"f{i}")
    NPRE = int(opts.get('npre', 8))
    for i in range(min(NPRE, 8)): wdma(i)
    tr_pattern(b, vTp, 4, t)
    b(f"v_add_u32 v{vTp}, s{pLw}, v{vTp}")
    b(f"v_add_u32 v{vTp+1}, s{pLw}, v{vTp+1}")
    b(f"v_mov_b32 v22, v{vWa}\nv_mov_b32 v23, v{vWb}")
    vWa, vWb = 22, 23
    p2_common(b, 1)
    def wreads(i):
        b.wait('vm', f"f{i}")
        for aa in range(2):
            for rd in range(2):
                b(f"ds_read_b64_tr_b16 {a(8*i+4*aa+2*rd,2)}, v{vTp+aa} offset:{(i % 8)*2048 + rd*1024}", f"wr{i}")
    NRD = max(0, NPRE - 8)
    for i in range(NRD):
        wreads(i)
        b.wait('lg', f"wr{i}")
        wdma(8 + i)
    stamp(b, 24)
    b("s_barrier")
    stamp(b, 25)
    NSF, D = 14, 7
    def hreg(idx, k):
        sl = idx % D
        return v(24 + sl*8 + 4*k, 4) if sl < 5 else a(112 + (sl-5)*8 + 4*k, 4)
    def hload(idx):
        ps, i = divmod(idx, NSF)
        h0, h1 = (vH0g, vH1g) if ps == 0 else (vH0k, vH1k)
        b(f"s_add_u32 s{sT0}, s{pK0}, s{pKF[i]}")
        b(f"buffer_load_dwordx4 {hreg(idx,0)}, v{h0}, {s(pA,4)}, s{sT0} offen sc1")
        b(f"buffer_load_dwordx4 {hreg(idx,1)}, v{h1}, {s(pA,4)}, s{sT0} offen sc1")
    hload(0)
    rest = list(range(NPRE, 8))
    if rest: wdma(rest.pop(0))
    hload(1)
    if rest: wdma(rest.pop(0))
    for i in range(max(NRD, 0), max(NRD, 2)): wreads(i)
    hload(2)
    if rest: wdma(rest.pop(0))
    hload(3)
    for i in rest: wdma(i)
    DH1 = int(opts.get('dh1', 7))
    p2_common2(b, 1)
    for k in range(4, DH1): hload(k)
    stamp(b, 26)
    acc = 64
    def step(idx):
        ps, i = divmod(idx, NSF)
        mf = [f"v_mfma_f32_32x32x16_bf16 {v(acc+(aa*2+bb)*16,16)}, {a(8*i+4*aa,4)}, {hreg(idx,bb)}, {v(acc+(aa*2+bb)*16,16) if i else 0}" for aa in range(2) for bb in range(2)]
        b.wait('lg', f"wr{i}")
        b(mf[0])
        if 8 + i < 14 and i >= NRD: wdma(8 + i)
        b(mf[1])
        if i + 2 < 14 and i + 2 >= max(NRD, 2): wreads(i + 2)
        b(mf[2])
        n0 = len(b.ops)
        KP = int(opts.get('kp', 1))
        tg = [i + DH1] if i + DH1 < NSF else ([NSF + (i - (NSF - KP))] if i >= NSF - KP else [])
        for t_ in tg: hload(t_)
        ld = b.ops[n0:]; del b.ops[n0:]
        cut = [j for j, o in enumerate(ld) if o.kind == 'vmem']
        if cut:
            b.ext(ld[:cut[0] + 1]); b(mf[3]); b.ext(ld[cut[0] + 1:])
        else: b(mf[3])
        if i == NSF - 1 - DH1: b("s_barrier")
    for idx in range(NSF): step(idx)
    stamp(b, 27)
    n0 = len(b.ops); p2_rwrite(b, acc, vSg); rw = b.ops[n0:]; del b.ops[n0:]
    n0 = len(b.ops)
    for k in range(int(opts.get('kp', 1)), 7): hload(NSF + k)
    hl = chunks_of(b.ops[n0:]); del b.ops[n0:]
    body, tail = rw[:-1], rw[-1:]
    if int(opts.get('r1il', 1)):
        gap = max(1, len(body) // (len(hl) + 1)); outp = []
        for j, o in enumerate(body):
            outp.append(o)
            if (j + 1) % gap == 0 and hl: outp.extend(hl.pop(0))
        for c in hl: outp.extend(c)
        b.ext(outp + tail)
        b("s_barrier")
    else:
        b.ext(body + tail)
        b("s_barrier")
        for c in hl: b.ext(c)
    def step2(idx):
        i = idx - NSF
        mf = [f"v_mfma_f32_32x32x16_bf16 {v(acc+(aa*2+bb)*16,16)}, {a(8*i+4*aa,4)}, {hreg(idx,bb)}, {v(acc+(aa*2+bb)*16,16) if i else 0}" for aa in range(2) for bb in range(2)]
        b(mf[0]); b(mf[1]); b(mf[2])
        n0 = len(b.ops)
        if idx + D < 2 * NSF: hload(idx + D)
        ld = b.ops[n0:]; del b.ops[n0:]
        cut = [j for j, o in enumerate(ld) if o.kind == 'vmem']
        if cut:
            b.ext(ld[:cut[0] + 1]); b(mf[3]); b.ext(ld[cut[0] + 1:])
        else: b(mf[3])
    for idx in range(NSF, 2 * NSF):
        step2(idx)
        if idx == NSF + 3: b("s_barrier")
    stamp(b, 28)
    p2_rwrite(b, acc, vSk, 24 if int(opts.get('r2pk', 1)) else None)
    b("s_barrier")
    stamp(b, 29)
    return b

def p2_S():
    b = B(); L = vLane
    b("s_waitcnt vmcnt(0) lgkmcnt(0)")
    b("s_barrier")
    stamp(b, 7)
    b(f"s_cmp_lg_u32 s{sWm}, 0")
    b("s_cbranch_scc1 L_p2_noflag")
    b(f"s_mul_i32 s{sT0}, s{sR}, {FLG_STRIDE}")
    b(f"s_add_u32 s{sT0}, s{sT0}, {FLG_OFF}")
    b(f"s_lshl_b32 s{sT1}, s{sS}, 3")
    b(f"s_add_u32 s{sT1}, s{sT1}, s{sT0}")
    b(f"v_mov_b32 v6, s{sT1}")
    b(f"global_store_dwordx2 v6, {v(vNon,2)}, s[34:35] sc0 sc1", 'nocount')
    b(f"v_and_b32 v6, 15, v{L}")
    b("v_lshlrev_b32 v6, 3, v6")
    b(f"v_add_u32 v6, s{sT0}, v6")
    b(f"s_mov_b32 s{sSpin}, 0")
    NP = int(opts.get('npoll', 1))
    SL = int(opts.get('pollsl', 0))
    for k in range(NP):
        b(f"global_load_dwordx2 {v(24+2*k,2)}, v6, s[34:35] sc1", 'nocount')
        if SL: b(f"s_sleep {SL}")
    b("L_p2_poll:")
    for k in range(NP):
        b(f"s_waitcnt vmcnt({NP-1})", 'nocount')
        b(f"v_cmp_eq_u32 vcc, v{24+2*k}, v{vNon}")
        b(f"v_cmp_eq_u32 {s(sT2,2)}, v{24+2*k+1}, v{vNon+1}")
        b(f"s_and_b64 vcc, vcc, {s(sT2,2)}")
        b("s_cmp_eq_u64 vcc, -1")
        b("s_cbranch_scc1 L_p2_polled")
        b(f"global_load_dwordx2 {v(24+2*k,2)}, v6, s[34:35] sc1", 'nocount')
    b(f"s_add_u32 s{sSpin}, s{sSpin}, 1")
    b(f"s_cmp_gt_u32 s{sSpin}, 100000")
    b("s_cbranch_scc0 L_p2_poll")
    b("L_p2_polled:")
    b("L_p2_noflag:")
    b(f"v_readfirstlane_b32 s{sT0}, v{vNon}")
    for j in range(4):
        b(f"s_bfe_u32 s{pNib+j}, s{sT0}, {(4 << 16) | (4*j):#x}")
    p2_common(b, 0)
    stamp(b, 24)
    b("s_barrier")
    if int(opts.get('p2prio', 0)): b("s_setprio 0")
    stamp(b, 25)
    def hreg(j, k): return a(64 + 8*j + 4*k, 4)
    def hload(j, ps):
        h0, h1 = (vH0g, vH1g) if ps == 0 else (vH0k, vH1k)
        b(f"s_add_u32 s{sT0}, s{pK0}, s{pKS+j}")
        b(f"buffer_load_dwordx4 {hreg(j,0)}, v{h0}, {s(pA,4)}, s{sT0} offen sc1")
        b(f"buffer_load_dwordx4 {hreg(j,1)}, v{h1}, {s(pA,4)}, s{sT0} offen sc1")
    DS1 = int(opts.get('ds1', 4))
    for j in range(DS1): hload(j, 0)
    p2_common2(b, 0)
    vRE, vRO, vREh, vROh = 20, 21, 22, 23
    b("v_lshrrev_b32 v6, 4, v0")
    b("v_and_b32 v7, 15, v0")
    b("v_lshrrev_b32 v9, 6, v0")
    b("v_xor_b32 v9, v9, v7")
    b(f"v_lshlrev_b32 v{vRE}, 8, v6")
    b(f"v_lshl_add_u32 v{vRE}, v9, 4, v{vRE}")
    b(f"v_xor_b32 v{vRO}, 64, v{vRE}")
    b(f"v_add_u32 v{vREh}, {CST}, v{vRE}")
    b(f"v_add_u32 v{vROh}, {CST}, v{vRO}")
    stamp(b, 26)
    acc = 64
    def mf(j): return [f"v_mfma_f32_32x32x16_bf16 {v(acc+(aa*2+bb)*16,16)}, {a(8*j+4*aa,4)}, {hreg(j,bb)}, {v(acc+(aa*2+bb)*16,16) if j else 0}" for aa in range(2) for bb in range(2)]
    for j in range(8):
        for t_ in mf(j): b(t_)
        if j + DS1 < 8: hload(j + DS1, 0)
    stamp(b, 27)
    p2_rwrite(b, acc, vSg)
    b("s_barrier")
    for j in range(8): hload(j, 1)
    for j in range(8):
        for t_ in mf(j): b(t_)
    stamp(b, 28)
    b("s_barrier")
    def padd(d, x, y, pk):
        if pk: b(f"v_pk_add_f32 {v(d,2)}, {v(x,2)}, {v(y,2)}")
        else:
            b(f"v_add_f32 v{d}, v{x}, v{y}"); b(f"v_add_f32 v{d+1}, v{x+1}, v{y+1}")
    def reduce(p, dst, pk):
        T = 24
        for w in range(8):
            base = (vRE if p % 2 == 0 else vRO) if w < 4 else (vREh if p % 2 == 0 else vROh)
            b(f"ds_read_b128 {v(T+4*w,4)}, v{base} offset:{(w % 4)*16384 + p*4096}")
        for w in range(0, 8, 2):
            padd(T+4*w, T+4*w, T+4*w+4, pk); padd(T+4*w+2, T+4*w+2, T+4*w+6, pk)
        for w in (0, 4):
            padd(T+4*w, T+4*w, T+4*w+8, pk); padd(T+4*w+2, T+4*w+2, T+4*w+10, pk)
        padd(dst, T, T+16, pk); padd(dst+2, T+2, T+18, pk)
    b("v_lshlrev_b32 v6, 4, v0")
    b(f"s_lshl_b32 s{sT0}, s2, 14")
    b(f"s_add_u32 s{sT0}, s{sT0}, {XCH_OFF}")
    b(f"v_add_u32 v6, s{sT0}, v6")
    for p in range(4):
        d = 56 + 4 * (p % 2)
        reduce(p, d, False)
        for e in range(4): b(f"v_and_or_b32 v{d+e}, v{d+e}, -16, s{pNib+e}")
        if p: b(f"v_add_u32 v6, 4096, v6")
        b(f"global_store_dwordx4 v6, {v(d,4)}, s[34:35] sc0 sc1")
    b("s_barrier")
    p2_rwrite(b, acc, vSk)
    PR_, BI, XV = 64, 80, 96
    b("v_lshlrev_b32 v6, 4, v0")
    b(f"s_xor_b32 s{sT1}, s2, 1")
    b(f"s_lshl_b32 s{sT0}, s{sT1}, 14")
    b(f"s_add_u32 s{sT0}, s{sT0}, {XCH_OFF}")
    b(f"v_add_u32 v9, s{sT0}, v6")
    def prt(tok):
        for p in range(4):
            if p: b(f"v_add_u32 v7, {p*4096}, v9")
            b(f"global_load_dwordx4 {v(PR_+4*p,4)}, v{7 if p else 9}, s[34:35] sc1", tok)
    prt("prt")
    b("v_lshrrev_b32 v6, 4, v0")
    b("v_and_b32 v8, 15, v0")
    b(f"s_lshl_b32 s{sT0}, s{sR}, 7")
    b(f"s_lshl_b32 s{sT1}, s{pH}, 6")
    b(f"s_add_u32 s{sT0}, s{sT0}, s{sT1}")
    b(f"v_add_u32 v6, s{sT0}, v6")
    b(f"s_lshl_b32 s{sT1}, s{pN}, 7")
    b("v_lshlrev_b32 v2, 10, v6")
    b("v_lshl_add_u32 v2, v8, 3, v2")
    b(f"v_add_u32 v2, s{sT1}, v2")
    for p in range(4):
        if p: b(f"v_add_u32 v2, {16*1024}, v2")
        b(f"global_load_dwordx2 {v(XV+2*p,2)}, v2, s[4:5]")
    b("v_lshlrev_b32 v2, 3, v8")
    b(f"v_add_u32 v2, s{sT1}, v2")
    b(f"global_load_dwordx2 {v(XV+8,2)}, v2, s[20:21]")
    b("v_lshlrev_b32 v2, 3, v6")
    b(f"v_add_u32 v2, {G_OFF}, v2")
    for p in range(4):
        b(f"global_load_dword v{XV+10+p}, v2, s[34:35] offset:{p*128} sc1")
    b(f"s_lshl_b32 s{sT1}, s{pN}, 8")
    b("v_lshlrev_b32 v2, 11, v6")
    b("v_lshl_add_u32 v2, v8, 4, v2")
    b(f"v_add_u32 v2, s{sT1}, v2")
    DS_ = XV + 14
    b(f"v_lshlrev_b32 v{DS_}, 16, v{XV+8}\nv_and_b32 v{DS_+1}, 0xffff0000, v{XV+8}\nv_lshlrev_b32 v{DS_+2}, 16, v{XV+9}\nv_and_b32 v{DS_+3}, 0xffff0000, v{XV+9}")
    for p in range(4):
        xs = XV + 2*p; tp = BI + 4*p
        b(f"v_lshlrev_b32 v{tp}, 16, v{xs}\nv_and_b32 v{tp+1}, 0xffff0000, v{xs}\nv_lshlrev_b32 v{tp+2}, 16, v{xs+1}\nv_and_b32 v{tp+3}, 0xffff0000, v{xs+1}")
        for e in range(4): b(f"v_mul_f32 v{tp+e}, v{tp+e}, v{DS_+e}")
        b(f"v_cvt_pk_bf16_f32 v56, v{tp}, v{tp+1}")
        b(f"v_cvt_pk_bf16_f32 v57, v{tp+2}, v{tp+3}")
        b(f"v_lshlrev_b32 v{tp}, 16, v56\nv_and_b32 v{tp+1}, 0xffff0000, v56\nv_lshlrev_b32 v{tp+2}, 16, v57\nv_and_b32 v{tp+3}, 0xffff0000, v57")
        for e in range(4): b(f"v_mul_f32 v{tp+e}, v{XV+10+p}, v{tp+e}")
    b.wait('vm', "prt")
    b(f"s_mov_b32 s{sSpin}, 0")
    if int(opts.get('prtpoll', 0)):
        b("L_p2_q:")
        b("v_mov_b32 v58, 0")
        for u in range(12, 16):
            b(f"v_xor_b32 v59, s{pNib + (u % 4)}, v{PR_+u}")
            b(f"v_and_or_b32 v58, v59, 15, v58")
        b("v_cmp_eq_u32 vcc, 0, v58")
        b("s_cmp_eq_u64 vcc, -1")
        b("s_cbranch_scc1 L_p2_qok")
        b(f"s_add_u32 s{sSpin}, s{sSpin}, 1")
        b(f"s_cmp_gt_u32 s{sSpin}, 100000")
        b("s_cbranch_scc1 L_p2_qok")
        b(f"v_add_u32 v7, {3*4096}, v9")
        b(f"global_load_dwordx4 {v(PR_+12,4)}, v7, s[34:35] sc1", 'nocount')
        b("s_waitcnt vmcnt(0)", 'nocount')
        b("s_branch L_p2_q")
        b("L_p2_qok:")
    b("L_p2_chk:")
    b("v_mov_b32 v58, 0")
    for u in range(16):
        b(f"v_xor_b32 v{PR_+u}, s{pNib + (u % 4)}, v{PR_+u}")
        b(f"v_and_or_b32 v58, v{PR_+u}, 15, v58")
    b("v_cmp_eq_u32 vcc, 0, v58")
    b("s_cmp_eq_u64 vcc, -1")
    b("s_cbranch_scc1 L_p2_ok")
    b(f"s_add_u32 s{sSpin}, s{sSpin}, 1")
    b(f"s_cmp_gt_u32 s{sSpin}, 100000")
    b("s_cbranch_scc1 L_p2_ok")
    prt('nocount')
    b("s_waitcnt vmcnt(0)", 'nocount')
    b("s_branch L_p2_chk")
    b("L_p2_ok:")
    for u in range(16): b(f"v_add_f32 v{BI+u}, v{BI+u}, v{PR_+u}")
    stamp(b, 29)
    b("s_barrier")
    for p in range(4):
        d = 56 + 4 * (p % 2)
        reduce(p, d, True)
        b(f"v_pk_add_f32 {v(d,2)}, {v(d,2)}, {v(BI+4*p,2)}")
        b(f"v_pk_add_f32 {v(d+2,2)}, {v(d+2,2)}, {v(BI+4*p+2,2)}")
        if p: b(f"v_add_u32 v2, {16*2048}, v2")
        b(f"global_store_dwordx4 v2, {v(d,4)}, s[30:31] {opts.get('outf', 'sc0+sc1').replace('+', ' ')}")
    stamp(b, 30)
    return b

def gen_k1():
    global STV
    STV = 15
    pro = k1_head()
    S = k1_S()
    S.ext(p2_S())
    stamp_end(S, sWm, "s[34:35]", 0x2000000, vLane, 3, 14)
    S("s_endpgm")
    Fm = B(); Fm("L_k1_F:")
    Fm(f"s_cmp_ge_u32 s{sS}, 14")
    Fm("s_cbranch_scc1 L_k1_Fn")
    f1 = k1_F(True)
    f1("s_branch L_p2_F")
    Fn = B(); Fn("L_k1_Fn:")
    f2 = k1_F(False)
    p2f = p2_F()
    if STAMP: p2f(f"s_add_u32 s{sWave}, s{sWm}, 4")
    stamp_end(p2f, sWave, "s[34:35]", 0x2000000, vLane, 3, 14)
    p2f("L_k1_end:")
    p2f("s_endpgm")
    def path(prefix, body, label=None):
        allops = insert_waits(copy.deepcopy(prefix) + body)
        if label:
            idx = [i for i, o in enumerate(allops) if o.text == label][0]
            allops = allops[idx:]
        return insert_hazard_nops(allops)
    out = path([], pro.ops + S.ops)
    out += path(pro.ops, Fm.ops + f1.ops, "L_k1_F:")
    out += path(pro.ops + Fm.ops, Fn.ops + f2.ops, "L_k1_Fn:")
    out += path([], p2f.ops)
    return out

def gen_k2():
    global STV
    STV = 9
    b = B()
    D = 15
    DW = int(opts.get('k2dw', 5))
    sWv, sH, sMt, sN = 40, 41, 42, 43
    sA, sCR, sCI, sW2 = 44, 48, 76, 80
    t0, t1, t2 = 52, 53, 54
    sS0, sF0 = 56, 57
    sLw = 58
    sCoff, sWoff2 = 59, 62
    vH0, vH1 = 4, 5
    vCe, vCo, vWa, vWb = 2, 3, 60, 61
    vPp, vTp = 48, 52
    accS, accF, vBuf = 64, 128, 192
    vNon2 = 14
    vTau = 8
    vG1, vG2 = 10, 12
    PITCH = 256
    LRED = 0
    LSTG = 65536
    code_prefetch(b, K2, "L_code_end", 2, "k2", 6, 63)
    dbgt_begin(b)
    stamp_begin(b)
    b("s_load_dwordx2 s[18:19], s[0:1], 112")
    b("s_load_dwordx2 s[4:5], s[0:1], 0")
    b("s_load_dwordx4 s[12:15], s[0:1], 40")
    b("s_load_dwordx2 s[6:7], s[0:1], 64")
    b("s_load_dwordx2 s[16:17], s[0:1], 88")
    b("s_load_dwordx2 s[8:9], s[0:1], 104")
    b("s_load_dwordx2 s[10:11], s[0:1], 120")
    b("s_cmp_ge_u32 s2, 256")
    b("s_cbranch_scc1 L_k2_end")
    b("v_lshrrev_b32 v6, 6, v0")
    b("v_and_b32 v1, 63, v0")
    b(f"v_readfirstlane_b32 s{sWv}, v6")
    b(f"s_and_b32 s{sH}, s2, 1")
    b(f"s_bfe_u32 s{t0}, s2, 0x20001")
    b(f"s_lshr_b32 s{t1}, s2, 3")
    b(f"s_and_b32 s{sMt}, s{t1}, 3")
    b(f"s_lshl_b32 s{t0}, s{t0}, 2")
    b(f"s_add_u32 s{sMt}, s{sMt}, s{t0}")
    b(f"s_lshr_b32 s{sN}, s{t1}, 2")
    b("v_and_b32 v6, 7, v1")
    b("v_lshrrev_b32 v7, 4, v1")
    b("v_xor_b32 v6, v6, v7")
    b("v_lshlrev_b32 v6, 4, v6")
    b("v_lshrrev_b32 v7, 3, v1")
    b("v_lshlrev_b32 v7, 10, v7")
    b(f"v_add_u32 v{vCe}, v6, v7")
    b(f"v_xor_b32 v{vCo}, 64, v{vCe}")
    b("v_bfe_u32 v6, v1, 4, 1")
    b("v_lshlrev_b32 v6, 2, v6")
    b("v_and_b32 v29, 7, v1")
    b("v_xor_b32 v6, v6, v29")
    b("v_lshlrev_b32 v6, 4, v6")
    b(f"v_add_u32 v{vWa}, v6, v7")
    b(f"v_add_u32 v{vWb}, {8192 - 1024}, v{vWa}")
    b(f"s_lshl_b32 s{sCoff}, s{sN}, 16")
    b(f"s_lshl_b32 s{t0}, s{sH}, 9")
    b(f"s_add_u32 s{sCoff}, s{sCoff}, s{t0}")
    b(f"s_lshl_b32 s{t0}, s{sWv}, 7")
    b(f"s_add_u32 s{sCoff}, s{sCoff}, s{t0}")
    b(f"s_lshl_b32 s{t0}, s{sH}, 2")
    b(f"s_add_u32 s{t0}, s{t0}, s{sWv}")
    b(f"s_mul_i32 s{sWoff2}, s{t0}, {14*16*1024}")
    b(f"s_lshl_b32 s{t0}, s{sN}, 7")
    b(f"s_add_u32 s{sWoff2}, s{sWoff2}, s{t0}")
    b(f"s_mul_i32 s{sLw}, s{sWv}, 24576")
    b(f"s_add_u32 s{sLw}, s{sLw}, {LSTG}")
    b(f"s_xor_b32 s{t0}, s{sH}, 1")
    b(f"s_lshl_b32 s{t0}, s{t0}, 1")
    b(f"s_lshl_b32 s{t1}, s{sMt}, 2")
    b(f"s_add_u32 s{t0}, s{t0}, s{t1}")
    b(f"s_mul_i32 s{t0}, s{t0}, {176*1024}")
    b("v_lshlrev_b32 v6, 4, v1")
    b(f"v_add_u32 v{vH0}, s{t0}, v6")
    b(f"v_add_u32 v{vH1}, {176*1024}, v{vH0}")
    b(f"s_lshl_b32 s{sS0}, s{sH}, 2")
    b(f"s_add_u32 s{sS0}, s{sS0}, s{sWv}")
    b(f"s_lshl_b32 s{sS0}, s{sS0}, 13")
    b(f"s_lshl_b32 s{sF0}, s{sH}, 2")
    b(f"s_add_u32 s{sF0}, s{sF0}, s{sWv}")
    b(f"s_mul_i32 s{sF0}, s{sF0}, {14*1024}")
    b(f"s_add_u32 s{sF0}, s{sF0}, {64*1024}")
    b("s_waitcnt lgkmcnt(0)")
    srd(b, sA, 10, WS_USED)
    srd(b, sCR, 12, 512*1024)
    srd(b, sCI, 14, 512*1024)
    srd(b, sW2, 16, 1792*1024)
    steps = [('S', i) for i in range(8)] + [('F', i) for i in range(14)]
    NS = len(steps)
    seq = [(1, st) for st in range(NS)] + [(2, st) for st in range(NS)]
    def hreg(idx, k):
        sl = idx % D
        if sl < 8: return v(vBuf + sl * 8 + k * 4, 4)
        return a(200 + (sl - 8) * 8 + k * 4, 4)
    def dma_c(m):
        for aa in range(8):
            b(f"s_add_u32 m0, s{sLw}, {m*8192 + aa*1024}")
            b(f"s_add_u32 s{t2}, s{sCoff}, {aa*8192}")
            b(f"buffer_load_dwordx4 v{vCe if aa % 2 == 0 else vCo}, {s(sCR if m == 0 else sCI,4)}, s{t2} offen lds", f"c{m}")
    def wslot(i):
        if i < 4: return 16384 + i * 2048
        if i < 12: return (i - 4) * 2048
        return 16384 + (i - 12) * 2048
    def dma_f(i):
        b(f"s_add_u32 m0, s{sLw}, {wslot(i)}")
        b(f"s_add_u32 s{t2}, s{sWoff2}, {i*16*1024}")
        b(f"buffer_load_dwordx4 v{vWa}, {s(sW2,4)}, s{t2} offen lds", f"f{i}")
        b(f"buffer_load_dwordx4 v{vWb}, {s(sW2,4)}, s{t2} offen offset:1024 lds", f"f{i}")
    def hloads(idx):
        ps, st = seq[idx]
        kind, i = steps[st]
        sb = sS0 if kind == 'S' else sF0
        if ps == 2 and st == 0:
            b(f"s_lshl_b32 s{t0}, s{sH}, 2")
            b(f"s_sub_u32 s{t0}, s{t0}, 2")
            b(f"s_mul_i32 s{t0}, s{t0}, {176*1024}")
            b(f"v_add_u32 v{vH0}, s{t0}, v{vH0}")
            b(f"v_add_u32 v{vH1}, s{t0}, v{vH1}")
        b(f"s_add_u32 s{t1}, s{sb}, {i*1024}")
        b(f"buffer_load_dwordx4 {hreg(idx,0)}, v{vH0}, {s(sA,4)}, s{t1} offen")
        b(f"buffer_load_dwordx4 {hreg(idx,1)}, v{vH1}, {s(sA,4)}, s{t1} offen")
    def wreads_s():
        for j in range(8):
            m = (j >> 1) & 1; ksp = 2 * (j >> 2) + (j & 1)
            if j == 0: b.wait('vm', "c0")
            if j == 2: b.wait('vm', "c1")
            for aa in range(2):
                b(f"ds_read_b128 {a(8*j+4*aa,4)}, v{vPp+ksp} offset:{m*8192 + aa*4096}", f"wr{j}")
    def wreads_f(i):
        st = 8 + i
        b.wait('vm', f"f{i}")
        for aa in range(2):
            for rd in range(2):
                b(f"ds_read_b64_tr_b16 {a(8*st+4*aa+2*rd,2)}, v{vTp+aa} offset:{wslot(i) + rd*8*128}", f"wr{st}")
    if STAMP >= 2: stamp(b, 24)
    dma_c(0)
    hloads(0); hloads(1)
    dma_c(1)
    b("v_and_b32 v6, 31, v1")
    b("v_lshlrev_b32 v6, 7, v6")
    b(f"v_add_u32 v6, s{sLw}, v6")
    b("v_lshrrev_b32 v7, 5, v1")
    b("v_bfe_u32 v29, v1, 1, 3")
    b("v_xor_b32 v29, v7, v29")
    for k in range(4):
        b(f"v_xor_b32 v7, {2*k}, v29")
        b(f"v_lshl_add_u32 v{vPp+k}, v7, 4, v6")
    tr_pattern(b, vTp, 4, 54)
    b(f"v_add_u32 v{vTp}, s{sLw}, v{vTp}")
    b(f"v_add_u32 v{vTp+1}, s{sLw}, v{vTp+1}")
    b("v_bfe_u32 v6, v1, 3, 2")
    b("v_and_b32 v7, 7, v1")
    b(f"v_lshl_add_u32 v{vTau}, v7, 2, v6")
    b(f"s_xor_b32 s{t0}, s{sH}, 1")
    b(f"s_lshl_b32 s{t0}, s{t0}, 6")
    b(f"s_lshl_b32 s{t1}, s{sMt}, 7")
    b(f"s_add_u32 s{t0}, s{t0}, s{t1}")
    b(f"v_add_u32 v6, s{t0}, v{vTau}")
    b("v_lshlrev_b32 v6, 3, v6")
    b(f"v_add_u32 v6, {G_OFF}, v6")
    b(f"global_load_dwordx2 v[10:11], v6, s[10:11]")
    b(f"global_load_dwordx2 v[12:13], v6, s[10:11] offset:256")
    b(f"s_lshl_b32 s{t0}, s{sH}, 7")
    b(f"s_sub_u32 s{t0}, s{t0}, 64")
    b(f"s_lshl_b32 s{t0}, s{t0}, 3")
    b(f"v_add_u32 v6, s{t0}, v6")
    b(f"global_load_dwordx2 v[16:17], v6, s[10:11]")
    b(f"global_load_dwordx2 v[18:19], v6, s[10:11] offset:256")
    b(f"v_mov_b32 v6, {NONCE_OFF}")
    b(f"global_load_dwordx2 {v(vNon2,2)}, v6, s[10:11]")
    if STAMP >= 2: stamp(b, 25)
    DH = int(opts.get('k2dh', 5))
    for idx in range(2, DH): hloads(idx)
    if STAMP >= 2: stamp(b, 26)
    vWr, vRd = 20, 21
    vWrq = 56
    b(f"s_lshl_b32 s{t0}, s{sWv}, 14")
    b(f"v_lshlrev_b32 v29, 8, v{vTau}")
    b(f"v_add_u32 v29, s{t0}, v29")
    b("v_lshrrev_b32 v6, 5, v1")
    b("v_and_b32 v7, 7, v1")
    b("v_xor_b32 v6, v6, v7")
    for q in range(4):
        b(f"v_xor_b32 v7, {2*q}, v6")
        b(f"v_lshl_add_u32 v{vWrq+q}, v7, 4, v29")
    b("v_lshrrev_b32 v22, 4, v0")
    b("v_and_b32 v23, 15, v0")
    b("v_lshrrev_b32 v6, 6, v0")
    b("v_xor_b32 v6, v6, v23")
    b(f"v_lshlrev_b32 v{vRd}, 8, v22")
    b(f"v_lshl_add_u32 v{vRd}, v6, 4, v{vRd}")
    b(f"v_xor_b32 v{vWr}, 64, v{vRd}")
    vXch = 24
    b(f"v_lshlrev_b32 v{vXch}, 4, v0")
    b(f"s_lshl_b32 s{t0}, s2, 14")
    b(f"s_add_u32 s{t0}, s{t0}, {XCH_OFF}")
    b(f"v_add_u32 v25, s{t0}, v{vXch}")
    b(f"s_xor_b32 s{t1}, s2, 1")
    b(f"s_lshl_b32 s{t0}, s{t1}, 14")
    b(f"s_add_u32 s{t0}, s{t0}, {XCH_OFF}")
    b(f"v_add_u32 v26, s{t0}, v{vXch}")
    if STAMP >= 2: stamp(b, 27)
    wreads_s()
    if STAMP >= 2: stamp(b, 28)

    def mfmas(idx):
        ps, st = seq[idx]
        kind, i = steps[st]
        acc = accS if kind == 'S' else accF
        out = []
        for aa in range(2):
            for bb in range(2):
                dreg = v(acc + (aa*2 + bb) * 16, 16)
                c = dreg if i else "0"
                out.append(f"v_mfma_f32_32x32x16_bf16 {dreg}, {a(8*st+4*aa,4)}, {hreg(idx,bb)}, {c}")
        return out

    def reduce_write(g0, g1):
        for aa in range(2):
            for bb in range(2):
                g = g0 if bb == 0 else g1
                S = accS + (aa*2+bb)*16; Fq = accF + (aa*2+bb)*16
                for p in range(8):
                    b(f"v_pk_mul_f32 {v(S+2*p,2)}, {v(S+2*p,2)}, {v(g,2)} op_sel_hi:[1,0]")
                for p in range(8):
                    b(f"v_pk_fma_f32 {v(S+2*p,2)}, {v(Fq+2*p,2)}, {v(g,2)}, {v(S+2*p,2)} op_sel:[0,1,0] op_sel_hi:[1,1,1]")
                for q in range(4):
                    b(f"ds_write_b128 v{vWrq+q}, {v(S+4*q,4)} offset:{LRED + bb*32*PITCH + aa*128}", "red")
        b.wait('lg', "red")
        b("s_barrier")
    def reduce_read(dst, gran=None):
        for p in range(4):
            for w in range(4):
                b(f"ds_read_b128 {v(dst+16*p+4*w,4)}, v{vRd if p % 2 == 0 else vWr} offset:{LRED + w*64*PITCH + p*16*PITCH}")
        for p in range(4):
            r = dst + 16*p
            b(f"v_pk_add_f32 {v(r,2)}, {v(r,2)}, {v(r+4,2)}")
            b(f"v_pk_add_f32 {v(r+2,2)}, {v(r+2,2)}, {v(r+6,2)}")
            b(f"v_pk_add_f32 {v(r+8,2)}, {v(r+8,2)}, {v(r+12,2)}")
            b(f"v_pk_add_f32 {v(r+10,2)}, {v(r+10,2)}, {v(r+14,2)}")
            if gran is None:
                b(f"v_pk_add_f32 {v(r,2)}, {v(r,2)}, {v(r+8,2)}")
                b(f"v_pk_add_f32 {v(r+2,2)}, {v(r+2,2)}, {v(r+10,2)}")
            else:
                for e in range(4):
                    u = 4 * p + e
                    b(f"v_add_f32 v{gran + 4*(u//3) + u%3}, v{r+e}, v{r+8+e}")

    total = len(seq)
    sNib = 84
    XS_ = 32
    PR_ = vBuf
    def r1c():
        f = F()
        for p in range(4):
            for w in range(4):
                f(f"ds_read_b128 {v(accF+16*p+4*w,4)}, v{vRd if p % 2 == 0 else vWr} offset:{LRED + w*64*PITCH + p*16*PITCH}")
        for p in range(4):
            r = accF + 16*p
            for e in range(4): f(f"v_add_f32 v{r+e}, v{r+e}, v{r+4+e}")
            for e in range(4): f(f"v_add_f32 v{r+8+e}, v{r+8+e}, v{r+12+e}")
            for e in range(4): f(f"v_add_f32 v{r+e}, v{r+e}, v{r+8+e}")
            for e in range(4): f(f"v_and_or_b32 v{XS_+4*p+e}, v{r+e}, -16, s{sNib+e}")
        return f
    def step_ops(idx):
        ps, st = seq[idx]
        kind, i = steps[st]
        n00 = len(b.ops)
        mf = mfmas(idx)
        if ps == 1: b.wait('lg', f"wr{st}")
        b(mf[0])
        if ps == 1:
            fi = st - 2
            if st == 6: b.wait('lg', "wr7")
            if 0 <= fi < 14: dma_f(fi)
        b(mf[1])
        if ps == 1 and 8 <= st + 1 < NS:
            wreads_f(st + 1 - 8)
        b(mf[2])
        n0 = len(b.ops)
        tg = []
        if ps == 1:
            if st + DH < NS: tg = [st + DH]
            else:
                j = st + DH - NS
                tg = [NS + 2 * j, NS + 2 * j + 1]
        elif idx + D < total: tg = [idx + D]
        for t_ in tg: hloads(t_)
        ld = b.ops[n0:]; del b.ops[n0:]
        cut = [j for j, o in enumerate(ld) if o.kind == 'vmem']
        if cut:
            b.ext(ld[:cut[0] + 1]); b(mf[3]); b.ext(ld[cut[0] + 1:])
        else:
            b(mf[3])
        ops = b.ops[n00:]; del b.ops[n00:]
        return ops
    for idx in range(NS):
        b.ext(step_ops(idx))
        st = idx
        if st == 2:
            b(f"v_readfirstlane_b32 s{t0}, v{vNon2}")
            for j in range(4):
                b(f"s_bfe_u32 s{sNib+j}, s{t0}, {(4 << 16) | (4*j):#x}")
        if STAMP >= 2 and st in (0, 3, 7, 11, 15, 19): stamp(b, 8 + (0, 3, 7, 11, 15, 19).index(st))
    stamp(b, 1)
    n0 = len(b.ops); reduce_write(vG1, vG2); rw = b.ops[n0:]; del b.ops[n0:]
    K0 = 2 * DH
    n0 = len(b.ops)
    for k in range(K0, 15): hloads(NS + k)
    hl = chunks_of(b.ops[n0:]); del b.ops[n0:]
    body, tail = rw[:-2], rw[-2:]
    gap = max(1, len(body) // (len(hl) + 1))
    outp = []
    for j, o in enumerate(body):
        outp.append(o)
        if (j + 1) % gap == 0 and hl: outp.extend(hl.pop(0))
    for c in hl: outp.extend(c)
    b.ext(outp + tail)
    stamp(b, 2)
    p2a = []
    for st in range(7): p2a += step_ops(NS + st)
    b.ext(merge(p2a, r1c().ops, per=4))
    PL = int(opts.get('k2pl', 16))
    BI = vBuf + 16
    def bias_fill():
        f = F()
        f("v_lshlrev_b32 v4, 16, v40\nv_and_b32 v5, 0xffff0000, v40\nv_lshlrev_b32 v6, 16, v41\nv_and_b32 v7, 0xffff0000, v41")
        for p in range(4):
            xs = 32 + 2*p; tp = BI + 4*p
            f(f"v_lshlrev_b32 v{tp}, 16, v{xs}\nv_and_b32 v{tp+1}, 0xffff0000, v{xs}\nv_lshlrev_b32 v{tp+2}, 16, v{xs+1}\nv_and_b32 v{tp+3}, 0xffff0000, v{xs+1}")
            for e in range(4): f(f"v_mul_f32 v{tp+e}, v{tp+e}, v{4+e}")
            f(f"v_cvt_pk_bf16_f32 v46, v{tp}, v{tp+1}")
            f(f"v_cvt_pk_bf16_f32 v47, v{tp+2}, v{tp+3}")
            f(f"v_lshlrev_b32 v{tp}, 16, v46\nv_and_b32 v{tp+1}, 0xffff0000, v46\nv_lshlrev_b32 v{tp+2}, 16, v47\nv_and_b32 v{tp+3}, 0xffff0000, v47")
            for e in range(4): f(f"v_mul_f32 v{tp+e}, v{42+p}, v{tp+e}")
        return f
    tail_steps = []
    for st in range(7, NS):
        idx = NS + st
        ops = step_ops(idx)
        if 7 <= st <= 10:
            p = st - 7
            pre = B()
            if p: pre(f"v_add_u32 v29, {p*4096}, v25")
            pre(f"global_store_dwordx4 v{29 if p else 25}, {v(XS_+4*p,4)}, s[10:11] sc0 sc1")
            ops = ops[:1] + pre.ops + ops[1:]
        if st >= 17:
            tail_steps += ops
            if st == NS - 1: b.ext(merge(tail_steps, bias_fill().ops, per=4))
            continue
        b.ext(ops)
        if STAMP >= 2 and st in (7, 11, 15, 19): stamp(b, 16 + (0, 3, 7, 11, 15, 19).index(st))
        if st == 11:
            b("s_barrier")
        if st == 11:
            b(f"s_lshl_b32 s{t0}, s{sMt}, 7")
            b(f"s_lshl_b32 s{t1}, s{sH}, 6")
            b(f"s_add_u32 s{t0}, s{t0}, s{t1}")
            b(f"v_add_u32 v30, s{t0}, v22")
            b(f"s_lshl_b32 s{t1}, s{sN}, 7")
            b("v_lshlrev_b32 v31, 10, v30")
            b("v_lshl_add_u32 v31, v23, 3, v31")
            b(f"v_add_u32 v31, s{t1}, v31")
            for p in range(4):
                if p: b(f"v_add_u32 v31, {16*1024}, v31")
                b(f"global_load_dwordx2 {v(32+2*p,2)}, v31, s[4:5]")
            b("v_lshlrev_b32 v31, 3, v23")
            b(f"v_add_u32 v31, s{t1}, v31")
            b(f"global_load_dwordx2 v[40:41], v31, s[6:7]")
            b("v_lshlrev_b32 v31, 3, v30")
            b(f"v_add_u32 v31, {G_OFF}, v31")
            for p in range(4):
                b(f"global_load_dword v{42+p}, v31, s[10:11] offset:{p*128}")
            b(f"s_lshl_b32 s{t1}, s{sN}, 8")
            b("v_lshlrev_b32 v2, 11, v30")
            b("v_lshl_add_u32 v2, v23, 4, v2")
            b(f"v_add_u32 v2, s{t1}, v2")
        if st == PL:
            for p in range(4):
                if p: b(f"v_add_u32 v29, {p*4096}, v26")
                b(f"global_load_dwordx4 {v(PR_+4*p,4)}, v{29 if p else 26}, s[10:11] sc1", "prt")
    stamp(b, 3)
    b.wait('vm', "prt")
    b(f"s_mov_b32 s{t0}, 0")
    b("L_k2_chk:")
    b("v_mov_b32 v46, 0")
    for u in range(16):
        b(f"v_xor_b32 v{PR_+u}, s{sNib + (u % 4)}, v{PR_+u}")
        b(f"v_and_or_b32 v46, v{PR_+u}, 15, v46")
    b("v_cmp_eq_u32 vcc, 0, v46")
    b("s_cmp_eq_u64 vcc, -1")
    b("s_cbranch_scc1 L_k2_ok")
    b(f"s_add_u32 s{t0}, s{t0}, 1")
    b(f"s_cmp_gt_u32 s{t0}, 40000")
    b("s_cbranch_scc1 L_k2_ok")
    for p in range(4):
        if p: b(f"v_add_u32 v29, {p*4096}, v26")
        b(f"global_load_dwordx4 {v(PR_+4*p,4)}, v{29 if p else 26}, s[10:11] sc1", 'nocount')
    b("s_waitcnt vmcnt(0)", 'nocount')
    b("s_branch L_k2_chk")
    b("L_k2_ok:")
    if STAMP >= 2: stamp(b, 30)
    n0 = len(b.ops)
    reduce_write(16, 18)
    rw = b.ops[n0:]; del b.ops[n0:]
    fl = F()
    for u in range(0, 16, 2): fl(f"v_pk_add_f32 {v(BI+u,2)}, {v(BI+u,2)}, {v(PR_+u,2)}")
    b.ext(merge(rw, fl.ops, after=lambda o: o.mn.startswith('ds_write'), per=1))
    if STAMP >= 2: stamp(b, 31)
    reduce_read(accF)
    if STAMP >= 2: stamp(b, 32)
    OUTF = opts.get('outf', '').replace('+', ' ')
    for p in range(4):
        r = accF + 16*p
        b(f"v_pk_add_f32 {v(r,2)}, {v(r,2)}, {v(BI+4*p,2)}")
        b(f"v_pk_add_f32 {v(r+2,2)}, {v(r+2,2)}, {v(BI+4*p+2,2)}")
        if p: b(f"v_add_u32 v2, {16*2048}, v2")
        b(f"global_store_dwordx4 v2, {v(r,4)}, s[8:9] {OUTF}")
    stamp(b, 4)
    dbgt_end(b, "s[18:19]", 32, True)
    stamp_end(b, sWv, "s[10:11]", 0x2100000, 1)
    b("L_k2_end:")
    b("s_endpgm")
    return finalize(b.ops)

KN = NAME + "_kernel"
def header():
    ref = open('cdna_kernels/%s.s.ref' % NAME).read().split('\n')
    hdr = []
    for line in ref:
        if not line.startswith(';'): break
        if '@launch' in line: continue
        hdr.append(line)
    hdr.append("; @launch grid=(256,1,1) block=(512,1,1) lds=163840")
    return '\n'.join(hdr)

def kd(name, nv, acc_off, nsg):
    return f""".amdhsa_kernel {name}
  .amdhsa_next_free_vgpr {nv}
  .amdhsa_next_free_sgpr {nsg}
  .amdhsa_accum_offset {acc_off}
  .amdhsa_group_segment_fixed_size 0
  .amdhsa_kernarg_size 128
  .amdhsa_user_sgpr_count 2
  .amdhsa_user_sgpr_kernarg_segment_ptr 1
  .amdhsa_system_sgpr_workgroup_id_x 1
  .amdhsa_float_denorm_mode_32 3
.end_amdhsa_kernel"""

def main():
    k1 = gen_k1()
    out = [header(), '.amdgcn_target "amdgcn-amd-amdhsa--gfx950"', '.text']
    out += [f".globl {KN}", ".p2align 8", f".type {KN},@function", f"{KN}:", render(k1)]
    out += ["L_code_end:", "  s_endpgm"]
    out += ['.section .rodata,"a"', '.p2align 6', kd(KN, 256, 128, 102)]
    print('\n'.join(out))

main()
```

```python
import sys, copy
sys.path.insert(0, 'dev')
from ir import *

NAME = "gated_mix__ssm_conv_s5__dense_activation_silu__prompt"
K1 = NAME + "_kernel"
K2 = "gm_k2_kernel"

opts = dict(a.split('=') for a in sys.argv[1:] if '=' in a)
HF_OFF = 0
HF_SIZE = 64 * 176 * 1024
W2F_OFF = HF_SIZE
W2F_SIZE = 16 * 176 * 1024
G_OFF = W2F_OFF + W2F_SIZE
E_OFF = G_OFF + 2048 * 8
E_SIZE = 16 * 16 * 512
NONCE_OFF = E_OFF + E_SIZE
FLG_OFF = NONCE_OFF + 256
FLG_STRIDE = int(opts.get('flgs', 1024)) if 'opts' in globals() else 128
XCH_OFF = FLG_OFF + 0x40000
WS_USED = XCH_OFF + 256 * 16384

LOG2E = 0x3fb8aa3b
INV2PI = 0x3e22f983

RB, XS, WR = 0, 65536, 114688
SC = 32768
IMG = 36864

STAMP = int(opts.get('stamp', 0))
STF = "sc0 sc1"

def v(n, k=1): return f"v{n}" if k == 1 else f"v[{n}:{n+k-1}]"
def a(n, k=1): return f"a{n}" if k == 1 else f"a[{n}:{n+k-1}]"
def s(n, k=1): return f"s{n}" if k == 1 else f"s[{n}:{n+k-1}]"


STV = 15
def reg_of_t(t): return (t >> 2) + 4 * (t & 3)
def srd(b, dst, ptr, size):
    b(f"s_mov_b32 s{dst}, s{ptr}")
    b(f"s_mov_b32 s{dst+1}, s{ptr+1}")
    b(f"s_mov_b32 s{dst+2}, {size}")
    b(f"s_mov_b32 s{dst+3}, 0x20000")


def cexp(b, dst, n_src, va, vang, t0):
    b(f"v_mul_f32 v{t0}, {n_src}, v{va}")
    b(f"v_mul_f32 v{t0+1}, {n_src}, v{vang}")
    b(f"v_exp_f32 v{t0}, v{t0}")
    b(f"v_rndne_f32 v{t0+2}, v{t0+1}")
    b(f"v_sub_f32 v{t0+1}, v{t0+1}, v{t0+2}")
    b(f"v_cos_f32 v{dst}, v{t0+1}")
    b(f"v_sin_f32 v{dst+1}, v{t0+1}")
    b(f"v_mul_f32 v{dst}, v{t0}, v{dst}")
    b(f"v_mul_f32 v{dst+1}, v{t0}, v{dst+1}")


def cfma(b, d, l, h, u, tmp):
    b(f"v_pk_fma_f32 {v(tmp,2)}, {v(l,2)}, {v(h,2)}, {v(u,2)} op_sel:[0,0,0] op_sel_hi:[0,1,1]")
    b(f"v_pk_fma_f32 {v(d,2)}, {v(l,2)}, {v(h,2)}, {v(tmp,2)} op_sel:[1,1,0] op_sel_hi:[1,0,1] neg_lo:[1,0,0]")


def cfma_s(b, d, l, h, u, tmp):
    b(f"v_fma_f32 v{tmp}, v{l}, v{h}, v{u}")
    b(f"v_fma_f32 v{tmp+1}, v{l}, v{h+1}, v{u+1}")
    b(f"v_fma_f32 v{d}, -v{l+1}, v{h+1}, v{tmp}")
    b(f"v_fma_f32 v{d+1}, v{l+1}, v{h}, v{tmp+1}")


def stamp(b, idx):
    if not STAMP: return
    g = B()
    g("s_memtime s[100:101]")
    g("s_waitcnt lgkmcnt(0)")
    g(f"v_writelane_b32 v{STV}, s100, {idx}")
    b.ext(g)


def stamp_begin(b):
    if not STAMP: return
    b(f"v_mov_b32 v{STV}, 0")
    b("s_memrealtime s[100:101]")
    b("s_waitcnt lgkmcnt(0)")
    b(f"v_writelane_b32 v{STV}, s100, 62")
    stamp(b, 0)


def stamp_end(b, wave, ws, off, lane, sh=2, tv=254):
    if not STAMP: return
    b("s_memrealtime s[100:101]")
    b("s_waitcnt lgkmcnt(0)")
    b(f"v_writelane_b32 v{STV}, s100, 63")
    b(f"s_lshl_b32 s100, s2, {sh}")
    b(f"s_add_u32 s100, s100, s{wave}")
    b(f"s_lshl_b32 s100, s100, 8")
    b(f"s_add_u32 s100, s100, {off}")
    b(f"v_lshlrev_b32 v{tv}, 2, v{lane}")
    b(f"v_add_u32 v{tv}, s100, v{tv}")
    b(f"global_store_dword v{tv}, v{STV}, {ws}")


vLane = 1
def tr_pattern(b, dst, hfmul, t):
    L = vLane
    b(f"v_lshrrev_b32 v{t}, 5, v{L}")
    b(f"v_mul_u32_u24 v{t}, {hfmul}, v{t}")
    b(f"v_bfe_u32 v{t+1}, v{L}, 2, 2")
    b(f"v_add_u32 v{t}, v{t}, v{t+1}")
    b(f"v_lshlrev_b32 v{t}, 7, v{t}")
    b(f"v_bfe_u32 v{t+1}, v{L}, 3, 1")
    b(f"v_lshlrev_b32 v{t+1}, 6, v{t+1}")
    b(f"v_bfe_u32 v{t+2}, v{L}, 4, 1")
    b(f"v_lshlrev_b32 v{t+2}, 5, v{t+2}")
    b(f"v_and_b32 v{t+3}, 3, v{L}")
    b(f"v_lshlrev_b32 v{t+3}, 3, v{t+3}")
    b(f"v_add3_u32 v{t}, v{t}, v{t+2}, v{t+3}")
    b(f"v_add_u32 v{dst}, v{t}, v{t+1}")
    b(f"v_xor_b32 v{t+1}, 64, v{t+1}")
    b(f"v_add_u32 v{dst+1}, v{t}, v{t+1}")

SLOT = 24576
NSLOT = 4
WB0 = 98304
SCR = 73728
SC = 0
IMG = 1024
def wblock_lds(q):
    if q < 8: return WB0 + q * 8192
    return (q - 8) * 8192

sX, sBRE, sBIM, sW1, sHF = 36, 40, 44, 48, 52
sWave, sWm, sR, sS, sRho = 60, 61, 62, 63, 56
sLdsX, sLdsB = 64, 65
sT0, sT1, sT2, sT3 = 68, 69, 70, 71
sWL = 72
sM1, sM2, sM3 = 80, 82, 84
sHFb, sK0, sEX = 86, 87, 88
sLo = 90
sSpin, sU = 98, 99

DBGT = int(opts.get('dbgt', 0))
def dbgt_begin(b):
    if not DBGT: return
    b("s_memrealtime s[100:101]")
    b("s_waitcnt lgkmcnt(0)")
    b("s_not_b32 s101, s100")
def dbgt_end(b, dbg, vt, k2=False):
    if not DBGT: return
    b("s_mov_b32 s99, s101")
    b("s_memrealtime s[100:101]")
    b("s_waitcnt lgkmcnt(0)")
    b(f"v_mov_b32 v{vt}, 0")
    b(f"v_mov_b32 v{vt+1}, s99")
    b(f"v_mov_b32 v{vt+2}, s100")
    b("s_mov_b64 exec, 1")
    b(f"global_atomic_umax v{vt}, v{vt+1}, {dbg} offset:16")
    b(f"global_atomic_umax v{vt}, v{vt+2}, {dbg} offset:20")
    if k2:
        b(f"global_load_dwordx2 {v(vt+2,2)}, v{vt}, {dbg} offset:-496 sc1")
        b("s_waitcnt vmcnt(0)")
        b(f"global_store_dwordx2 v{vt}, {v(vt+2,2)}, {dbg} offset:8")
    b("s_mov_b64 exec, -1")

def code_prefetch(b, kname, endlabel, wshift, tag, vt, vd):
    if not int(opts.get('pfc', 1)): return
    b("s_getpc_b64 s[40:41]")
    b(f"L_{tag}_pc:")
    b(f"s_sub_u32 s40, s40, L_{tag}_pc-{kname}")
    b("s_subb_u32 s41, s41, 0")
    b("s_lshr_b32 s42, s2, 3")
    b(f"s_lshl_b32 s42, s42, {wshift + 7}")
    b(f"v_lshrrev_b32 v{vt}, 6, v0")
    b(f"v_lshlrev_b32 v{vt}, 7, v{vt}")
    b(f"v_add_u32 v{vt}, s42, v{vt}")
    b(f"v_min_u32 v{vt}, {endlabel}-{kname}-4, v{vt}")
    b(f"global_load_dword v{vd}, v{vt}, s[40:41]", 'nocount')

def k1_head():
    b = B()
    code_prefetch(b, K1, "L_code_end", 3, "k1", 2, 14)
    dbgt_begin(b)
    stamp_begin(b)
    b("s_load_dwordx16 s[4:19], s[0:1], 0")
    b("s_load_dwordx16 s[20:35], s[0:1], 64")
    b("s_cmp_ge_u32 s2, 256")
    b("s_cbranch_scc1 L_k1_end")
    b("v_lshrrev_b32 v2, 6, v0")
    b(f"v_and_b32 v{vLane}, 63, v0")
    b(f"v_readfirstlane_b32 s{sWave}, v2")
    b(f"s_and_b32 s{sT0}, s2, 7")
    b(f"s_lshr_b32 s{sT1}, s2, 3")
    b(f"s_and_b32 s{sT2}, s{sT1}, 3")
    b(f"s_lshr_b32 s{sT3}, s{sT1}, 2")
    b(f"s_lshr_b32 s{sR}, s{sT0}, 1")
    b(f"s_lshl_b32 s{sR}, s{sR}, 2")
    b(f"s_add_u32 s{sR}, s{sR}, s{sT2}")
    b(f"s_and_b32 s{sS}, s{sT0}, 1")
    b(f"s_lshl_b32 s{sS}, s{sS}, 3")
    b(f"s_add_u32 s{sS}, s{sS}, s{sT3}")
    b(f"s_lshl_b32 s{sRho}, s{sT2}, 1")
    b(f"s_add_u32 s{sRho}, s{sRho}, s{sT3}")
    ROT1 = opts.get('rot1', 'two')
    if ROT1 == 'none': b(f"s_mov_b32 s{sRho}, 0")
    if ROT1 == 'half':
        b(f"s_and_b32 s{sRho}, s{sRho}, 1")
        b(f"s_lshl_b32 s{sRho}, s{sRho}, 2")
    if ROT1 == 'two':
        b(f"s_and_b32 s{sRho}, s{sRho}, 3")
        b(f"s_lshl_b32 s{sRho}, s{sRho}, 1")
    b(f"s_and_b32 s{sWm}, s{sWave}, 3")
    b(f"s_lshl_b32 s{sLdsX}, s{sWm}, 12")
    b(f"s_lshl_b32 s{sLdsB}, s{sWm}, 11")
    b(f"s_lshl_b32 s{sHFb}, s{sR}, 2")
    b(f"s_add_u32 s{sHFb}, s{sHFb}, s{sWm}")
    b(f"s_mul_i32 s{sHFb}, s{sHFb}, {176*1024}")
    if int(opts.get('swap', 0)):
        b(f"s_cmp_lt_u32 s{sWave}, 4")
        b("s_cbranch_scc1 L_k1_F")
        b("v_and_b32 v0, 0xff, v0")
    else:
        b(f"s_cmp_ge_u32 s{sWave}, 4")
        b("s_cbranch_scc1 L_k1_F")
    return b

fXe, fXo, fB, fW = 2, 3, 4, 5
fPX, fTA, fTB, fTC, fL16 = 7, 11, 13, 16, 6 + 0
fPX, fTA, fTB, fTC = 8, 12, 14, 16
fPX, fTA, fTB, fTC, fL16 = 8, 12, 16, 18, 7
fE, fD = 20, 28
fS, fAcc = 32, 64

def dma(b, voff, srdn, soff, tok, imm=0):
    o = f" offset:{imm}" if imm else ""
    b(f"buffer_load_dwordx4 v{voff}, {s(srdn,4)}, {soff} offen{o} lds", tok)
def dma_x(b, i):
    b(f"s_add_u32 m0, s{sLdsX}, {(i % NSLOT) * SLOT}")
    for k in range(4):
        dma(b, fXe if k % 2 == 0 else fXo, sX, f"s{sLo+i}", f"x{i}", k * 1024)
def dma_B(b, i):
    b(f"s_add_u32 m0, s{sLdsB}, {(i % NSLOT) * SLOT + 16384}")
    dma(b, fB, sBRE, f"s{sLo+i}", f"B{i}")
    dma(b, fB, sBIM, f"s{sLo+i}", f"B{i}", 1024)
def dma_w(b, q):
    i, hh = q % 8, q // 8
    b(f"s_add_u32 m0, s{sLdsB}, {wblock_lds(q)}")
    if hh:
        b(f"s_add_u32 s{sT0}, s{sWL+i}, 128")
        so = f"s{sT0}"
    else:
        so = f"s{sWL+i}"
    dma(b, fW, sW1, so, f"w{q}")
    dma(b, fW + 1, sW1, so, f"w{q}", 1024)

def chunks_of(ops):
    ch = []; cur = []
    for o in ops:
        cur.append(o)
        if o.kind == 'vmem': ch.append(cur); cur = []
    if cur: ch.append(cur)
    return ch

def k1_F(ffn):
    b = B(); L = vLane
    t = fE
    for i in range(8):
        b(f"s_add_u32 s{sLo+i}, s{sRho}, {i}")
        b(f"s_and_b32 s{sLo+i}, s{sLo+i}, 7")
        b(f"s_lshl_b32 s{sLo+i}, s{sLo+i}, 7")
    b(f"v_and_b32 v{t}, 7, v{L}")
    b(f"v_lshrrev_b32 v{t+1}, 4, v{L}")
    b(f"v_xor_b32 v{t+2}, v{t}, v{t+1}")
    b(f"v_lshlrev_b32 v{t+2}, 4, v{t+2}")
    b(f"v_lshrrev_b32 v{t+3}, 3, v{L}")
    b(f"s_lshl_b32 s{sT0}, s{sR}, 17")
    b(f"s_lshl_b32 s{sT1}, s{sWm}, 15")
    b(f"s_add_u32 s{sT0}, s{sT0}, s{sT1}")
    b(f"v_lshlrev_b32 v{t}, 12, v{t+3}")
    b(f"v_add3_u32 v{fXe}, v{t}, v{t+2}, s{sT0}")
    b(f"v_xor_b32 v{fXo}, 64, v{fXe}")
    b(f"s_and_b32 s{sT0}, s{sWm}, 1")
    b(f"s_lshl_b32 s{sT0}, s{sT0}, 6")
    b(f"v_xor_b32 v{t+1}, s{sT0}, v{t+2}")
    b(f"s_lshl_b32 s{sT0}, s{sWm}, 13")
    b(f"s_lshl_b32 s{sT1}, s{sS}, 15")
    b(f"s_add_u32 s{sT0}, s{sT0}, s{sT1}")
    b(f"v_lshlrev_b32 v{t}, 10, v{t+3}")
    b(f"v_add3_u32 v{fB}, v{t}, v{t+1}, s{sT0}")
    b("s_waitcnt lgkmcnt(0)")
    srd(b, sX, 4, 2048*1024)
    srd(b, sBRE, 10, 512*1024)
    b(f"s_sub_u32 s{sBIM}, s12, 1024")
    b(f"s_subb_u32 s{sBIM+1}, s13, 0")
    b(f"s_mov_b32 s{sBIM+2}, {512*1024 + 1024}")
    b(f"s_mov_b32 s{sBIM+3}, 0x20000")
    if STAMP >= 2: stamp(b, 8)
    INI = int(opts.get('ini', 3))
    for i in range(INI):
        dma_x(b, i); dma_B(b, i)
    if STAMP >= 2: stamp(b, 9)
    srd(b, sHF, 34, WS_USED)
    if ffn:
        srd(b, sW1, 24, 512*3584)
        b(f"v_bfe_u32 v{t+1}, v{L}, 4, 1")
        b(f"v_lshlrev_b32 v{t+1}, 2, v{t+1}")
        b(f"v_and_b32 v{t+3}, 7, v{L}")
        b(f"v_xor_b32 v{t+3}, v{t+3}, v{t+1}")
        b(f"v_lshlrev_b32 v{t+3}, 4, v{t+3}")
        b(f"v_lshrrev_b32 v{t+1}, 3, v{L}")
        b(f"s_lshl_b32 s{sT3}, s{sWm}, 4")
        b(f"v_add_u32 v{t+1}, s{sT3}, v{t+1}")
        b(f"v_mul_u32_u24 v{t+1}, 3584, v{t+1}")
        b(f"v_add_u32 v{fW}, v{t+1}, v{t+3}")
        b(f"v_add_u32 v{fW+1}, {8*3584 - 1024}, v{fW}")
        b(f"s_lshl_b32 s{sT3}, s{sS}, 8")
        for i in range(8):
            b(f"s_mul_i32 s{sWL+i}, s{sLo+i}, 1792")
            b(f"s_add_u32 s{sWL+i}, s{sWL+i}, s{sT3}")
        tr_pattern(b, fTA, 8, t)
        b(f"v_add_u32 v{fTB}, 0x10000, v{fTA}")
        b(f"v_add_u32 v{fTB+1}, 0x10000, v{fTA+1}")
        b(f"v_add_u32 v{fTC}, 0x20000, v{fTA}")
        b(f"v_add_u32 v{fTC+1}, 0x20000, v{fTA+1}")
        b(f"v_lshlrev_b32 v{fL16}, 4, v{L}")
        b(f"v_and_b32 v{t}, 31, v{L}")
        b(f"v_lshrrev_b32 v{t+1}, 5, v{L}")
        b(f"v_bfe_u32 v{t+2}, v{L}, 1, 3")
        b(f"v_xor_b32 v{t+2}, v{t+1}, v{t+2}")
        b(f"v_lshlrev_b32 v{t+1}, 7, v{t}")
        b(f"v_add_u32 v{t+1}, s{sLdsX}, v{t+1}")
        for k in range(4):
            b(f"v_xor_b32 v{t+3}, {2*k}, v{t+2}")
            b(f"v_lshl_add_u32 v{fPX+k}, v{t+3}, 4, v{t+1}")
        b(f"s_mov_b32 s66, {LOG2E ^ 0x80000000:#x}")
        b(f"s_mov_b32 s67, {LOG2E ^ 0x80000000:#x}")
        b(f"s_lshl_b32 s{sU}, s{sS}, 13")
        b(f"s_add_u32 s{sU}, s{sU}, s{sHFb}")
        b(f"s_add_u32 s{sU}, s{sU}, {64*1024}")
    stamp(b, 1)
    for i in range(8):
        if STAMP >= 2: stamp(b, 10 + 2*i)
        b.wait('vm', f"x{i}", f"B{i}")
        b("s_waitcnt lgkmcnt(0)")
        b("s_barrier")
        if STAMP >= 2: stamp(b, 11 + 2*i)
        if ffn:
            po = (i % NSLOT) * SLOT
            if po >= 65536:
                for k in range(4): b(f"v_add_u32 v{fE+k}, 0x10000, v{fPX+k}")
            for k in range(4):
                if po >= 65536: b(f"ds_read_b128 {a(16*i+4*k,4)}, v{fE+k} offset:{po - 65536}")
                else: b(f"ds_read_b128 {a(16*i+4*k,4)}, v{fPX+k} offset:{po}")
        if i == 0 and INI == 2:
            dma_x(b, 2); dma_B(b, 2)
        if i <= 4:
            dma_x(b, i + 3); dma_B(b, i + 3)
        elif ffn:
            for q in {5: (0, 1, 2), 6: (3, 4, 5), 7: (6, 7)}[i]: dma_w(b, q)
        if True:
            if not ffn and i == 5:
                b(f"s_lshl_b32 s{sT0}, s{sR}, 1")
                b(f"s_add_u32 s{sT0}, s{sT0}, s{sS}")
                b(f"s_sub_u32 s{sT0}, s{sT0}, 14")
                b(f"s_lshl_b32 s{sT0}, s{sT0}, 2")
                b(f"s_add_u32 s{sT0}, s{sT0}, s{sWm}")
                b(f"v_lshlrev_b32 v8, 7, v{L}")
                srd(b, sW1, 26, 1792*1024)
                srd(b, sHF, 14, 512*1024)
                srd(b, 76, 16, 512*1024)
                b(f"s_mul_i32 s{sT1}, s{sT0}, 14336")
                b(f"buffer_load_dword v9, v8, {s(sW1,4)}, s{sT1} offen")
                b(f"s_add_u32 s{sT1}, s{sT1}, 8192")
                b(f"buffer_load_dword v10, v8, {s(sW1,4)}, s{sT1} offen")
                b(f"s_lshl_b32 s{sT1}, s{sT0}, 12")
                b(f"buffer_load_dword v11, v8, {s(sHF,4)}, s{sT1} offen")
                b(f"buffer_load_dword v12, v8, {s(76,4)}, s{sT1} offen")
    stamp(b, 2)
    if not ffn:
        b(f"s_lshl_b32 s{sT0}, s{sR}, 1")
        b(f"s_add_u32 s{sT0}, s{sT0}, s{sS}")
        b(f"s_sub_u32 s{sT0}, s{sT0}, 14")
        b(f"s_lshl_b32 s{sT0}, s{sT0}, 2")
        b(f"s_add_u32 s{sT0}, s{sT0}, s{sWm}")
        k1_gjob_all(b)
        return b
    def ffn_phase(hh):
        p = B(); DEPTH = 3
        def lds_loc(n):
            i, k = divmod(n, 4)
            base = wblock_lds(8 * hh + i) + 16 * k * 128
            if base < 65536: return fTA, base
            if base < 131072: return fTB, base - 65536
            return fTC, base - 131072
        plan = {0: [0, 1, 2, 3], int(opts.get('bcn', 12)): [4, 5, 6, 7]} if hh == 0 else {0: list(range(8, 16))}
        def reads(n):
            if n in plan:
                p.wait('vm', *[f"w{q}" for q in plan[n]])
                if hh == 0 and n == 0: p("s_waitcnt lgkmcnt(0)")
                if STAMP >= 2: stamp(p, 26 + (0 if n == 0 else 1) if hh == 0 else 29)
                p("s_barrier")
                if STAMP >= 2 and hh == 0: stamp(p, 30 + (0 if n == 0 else 1))
            base, off = lds_loc(n)
            r = fS + (n % 4) * 8
            for ft in range(2):
                for rd in range(2):
                    p(f"ds_read_b64_tr_b16 {v(r+4*ft+2*rd,2)}, v{base+ft} offset:{off + rd*512}", f"r{hh}_{n}")
        ch = []
        if hh == 0:
            d = B()
            for q in range(8, 16): dma_w(d, q)
            ch = chunks_of(d.ops)
        for n in range(DEPTH): reads(n)
        for n in range(32):
            i, k = divmod(n, 4)
            r = fS + (n % 4) * 8
            p.wait('lg', f"r{hh}_{n}")
            for ft in range(2):
                acc = fAcc + (2*hh + ft) * 16
                c = v(acc, 16) if n else "0"
                p(f"v_mfma_f32_32x32x16_bf16 {v(acc,16)}, {v(r+4*ft,4)}, {a(16*i+4*k,4)}, {c}")
                if ft == 0 and ch: p.ext(ch.pop(0))
            if hh == 0 and n == int(opts.get('bxn', 1)): p("s_barrier")
            if n + DEPTH < 32: reads(n + DEPTH)
        assert not ch
        return p
    if int(opts.get('tseq', 0)):
        DEPTH = int(opts.get('tdepth', 6))
        def loc(g):
            t_, n = divmod(g, 32); i, k = divmod(n, 4)
            base = wblock_lds(8 * (t_ // 2) + i) + 16 * k * 128
            if base < 65536: return fTA + (t_ & 1), base
            if base < 131072: return fTB + (t_ & 1), base - 65536
            return fTC + (t_ & 1), base - 131072
        d = B()
        for q in range(8, 16): dma_w(d, q)
        ch = chunks_of(d.ops)
        tiles = []
        p = B()
        def rd(g):
            if g == 0:
                p.wait('vm', "w0", "w1", "w2", "w3"); p("s_waitcnt lgkmcnt(0)"); p("s_barrier")
            if g == 16:
                p.wait('vm', "w4", "w5", "w6", "w7"); p("s_barrier")
            if g == 64: p("s_barrier")
            base, off = loc(g); r = fS + (g % 8) * 4
            for r_ in range(2):
                p(f"ds_read_b64_tr_b16 {v(r+2*r_,2)}, v{base} offset:{off + r_*512}", f"t{g}")
        for g in range(DEPTH): rd(g)
        for g in range(128):
            t_, n = divmod(g, 32); i, k = divmod(n, 4)
            if n == 0 and t_: tiles.append(p); p = B()
            r = fS + (g % 8) * 4; acc = fAcc + t_ * 16
            if g % 2 == 0: p.wait('lg', f"t{g}", f"t{g+1}")
            p(f"v_mfma_f32_32x32x16_bf16 {v(acc,16)}, {v(r,4)}, {a(16*i+4*k,4)}, {v(acc,16) if n else 0}")
            if ch: p.ext(ch.pop(0))
            if g == int(opts.get('bxn', 3)): p("s_barrier")
            if g == 31: p.wait('vm', *[f"w{q}" for q in range(8, 16)])
            if g + DEPTH < 128: rd(g + DEPTH)
        tiles.append(p)
        PT = int(opts.get('pert', 3))
        b.ext(tiles[0])
        for t_ in range(1, 4):
            b.ext(merge(tiles[t_].ops, k1_silu(t_ - 1, False).ops, per=PT, start=1))
            if t_ == 1: stamp(b, 3)
        stamp(b, 4)
        b.ext(flat(k1_silu(3, True).ops))
        stamp(b, 5)
        return b
    b.ext(ffn_phase(0))
    stamp(b, 3)
    p3 = ffn_phase(1)
    fl = F()
    fl.ext(k1_silu(0, False)); fl.ext(k1_silu(1, False))
    if opts.get('p3mode') == 'nofill':
        b.ext(p3.ops); stamp(b, 6); b.ext(flat(fl.ops))
    elif opts.get('p3mode') == 'nostore':
        fo = [o for o in fl.ops if not (not isinstance(o, list) and o.kind == 'vmem')]
        st_ = [o for o in fl.ops if (not isinstance(o, list) and o.kind == 'vmem')]
        b.ext(merge(p3.ops, fo, per=int(opts.get('per3', 4)), start=1))
    else:
        b.ext(merge(p3.ops, fl.ops, per=int(opts.get('per3', 4)), start=1))
    stamp(b, 4)
    b.ext(flat(k1_silu(2, True).ops))
    b.ext(flat(k1_silu(3, True).ops))
    stamp(b, 5)
    return b

def k1_silu(ft, pk):
    b = F()
    acc = fAcc + ft * 16
    e, d = fE, fD
    for kk in range(2):
        base = acc + 8 * kk
        if pk:
            for q in range(4): b(f"v_pk_mul_f32 {v(e+2*q,2)}, {v(base+2*q,2)}, s[66:67]")
            for q in range(8): b(f"v_exp_f32 v{e+q}, v{e+q}")
            for q in range(4): b(f"v_pk_add_f32 {v(e+2*q,2)}, {v(e+2*q,2)}, 1.0 op_sel_hi:[1,0]")
            for q in range(8): b(f"v_rcp_f32 v{e+q}, v{e+q}")
            for q in range(4): b(f"v_pk_mul_f32 {v(e+2*q,2)}, {v(base+2*q,2)}, {v(e+2*q,2)}")
            for q in range(4): b(f"v_cvt_pk_bf16_f32 v{d+q}, v{e+2*q}, v{e+2*q+1}")
        else:
            seq = []
            for q in range(8):
                seq.append([f"v_mul_f32 v{e+q}, s66, v{base+q}", f"v_exp_f32 v{e+q}, v{e+q}", f"v_add_f32 v{e+q}, 1.0, v{e+q}",
                            f"v_rcp_f32 v{e+q}, v{e+q}", f"v_mul_f32 v{e+q}, v{base+q}, v{e+q}"])
            if opts.get('silu', 'diag') == 'diag':
                for tm in range(8 + 4):
                    for stg in range(5):
                        q = tm - stg
                        if 0 <= q < 8: b(seq[q][stg])
            elif opts.get('silu') == 'block':
                for stg in range(5):
                    for q in range(8): b(seq[q][stg])
            else:
                for tm in range(8 + 8):
                    for stg in range(5):
                        q = tm - 2 * stg
                        if 0 <= q < 8: b(seq[q][stg])
            for q in range(4): b(f"v_cvt_pk_bf16_f32 v{d+q}, v{e+2*q}, v{e+2*q+1}")
        b(f"s_add_u32 s{sK0}, s{sU}, {(2*ft+kk)*1024}")
        b(f"buffer_store_dwordx4 {v(d,4)}, v{fL16}, {s(sHF,4)}, s{sK0} offen {STF}")
    return b

gPX, gPB = 2, 6
vLBa, vImgW, vImgR, vL16o = 10, 11, 12, 13
vL, vC2, vL16, vL32, vL128, vL256, vF1, vG, vHfm = 16, 18, 20, 22, 24, 26, 28, 30, 32
vNon, vK, vQ, vW_, vPre, vTmp = 34, 36, 38, 40, 42, 44
vP = 48
aRE, aIM, vU = 64, 80, 96
aSX, aSB = 0, 16

def k1_S_setup():
    b = B(); L = vLane; t = vP
    b("s_waitcnt lgkmcnt(0)")
    srd(b, sHF, 34, WS_USED)
    b(f"v_and_b32 v{t}, 31, v{L}")
    b(f"s_lshl_b32 s{sT0}, s{sS}, 5")
    b(f"v_add_u32 v{t}, s{sT0}, v{t}")
    b(f"v_lshlrev_b32 v{t}, 1, v{t}")
    b(f"global_load_ushort v{vP+8}, v{t}, s[6:7]")
    b(f"global_load_ushort v{vP+9}, v{t}, s[8:9]")
    b(f"global_load_ushort v{vP+10}, v{t}, s[18:19]")
    if int(opts.get('nearly', 1)):
        b(f"s_or_b32 s{sT0}, s2, s{sWm}")
        b(f"s_cmp_lg_u32 s{sT0}, 0")
        b("s_cbranch_scc1 L_k1_nononce")
        b(f"v_mov_b32 v{t}, {NONCE_OFF}")
        b(f"global_load_dwordx2 {v(vU+26,2)}, v{t}, s[34:35] sc1", 'nocount')
        b("s_waitcnt vmcnt(0)", 'nocount')
        b(f"v_add_u32 v{vU+26}, 1, v{vU+26}")
        b(f"v_or_b32 v{vU+27}, 1, v{vU+27}")
        b(f"v_mov_b32 v{t+1}, 0")
        b(f"global_store_dwordx2 v{t+1}, {v(vU+26,2)}, s[32:33] sc0 sc1", 'nocount')
        b(f"global_store_dwordx2 v{t}, {v(vU+26,2)}, s[34:35] sc0 sc1", 'nocount')
        b("L_k1_nononce:")
    else:
        b(f"v_mov_b32 v{t}, {NONCE_OFF}")
        b(f"global_load_dwordx2 {v(vU+26,2)}, v{t}, s[34:35] sc1")
    if int(opts.get('flgw', 1)):
        b(f"s_mul_i32 s{sT0}, s{sR}, {FLG_STRIDE}")
        b(f"s_add_u32 s{sT0}, s{sT0}, {FLG_OFF}")
        b(f"v_mov_b32 v{t}, s{sT0}")
        b(f"global_load_dword v{vU+10}, v{t}, s[34:35] sc1", 'nocount')
        b(f"s_lshl_b32 s{sT0}, s{sR}, 10")
        b(f"s_add_u32 s{sT0}, s{sT0}, {G_OFF}")
        b(f"v_and_b32 v{t}, 7, v{L}")
        b(f"v_lshlrev_b32 v{t}, 7, v{t}")
        b(f"v_add_u32 v{t}, s{sT0}, v{t}")
        b(f"global_load_dword v{vU+11}, v{t}, s[34:35] sc1", 'nocount')
    if int(opts.get('tlbw', 0)):
        pd = vU + 12
        b(f"s_cmp_eq_u32 s{sWm}, 2")
        b("s_cbranch_scc0 L_k1_tlb_done")
        b(f"v_mov_b32 v{t}, 0")
        for k, ptr in enumerate((24, 14, 16, 26, 20)):
            b(f"global_load_dword v{pd+k}, v{t}, {s(ptr,2)}", 'nocount')
        b(f"v_min_u32 v{t}, 19, v{L}")
        b(f"v_lshlrev_b32 v{t}, 20, v{t}")
        b(f"global_load_dword v{pd+5}, v{t}, s[34:35]", 'nocount')
        b(f"v_and_b32 v{t}, 3, v{L}")
        b(f"v_lshlrev_b32 v{t}, 20, v{t}")
        b(f"global_load_dword v{pd+6}, v{t}, s[30:31]", 'nocount')
        b("L_k1_tlb_done:")
    PF = int(opts.get('pf', 0))
    if PF:
        pd = vU + 28
        b(f"s_cmp_eq_u32 s{sWm}, 0")
        b("s_cbranch_scc0 L_k1_pf_1")
        b(f"v_lshrrev_b32 v{t}, 3, v{L}")
        b(f"s_lshl_b32 s{sT2}, s2, 3")
        b(f"v_add_u32 v{t}, s{sT2}, v{t}")
        b(f"v_lshlrev_b32 v{t}, 10, v{t}")
        b(f"v_and_b32 v{t+1}, 7, v{L}")
        b(f"v_max_u32 v{t+1}, 3, v{t+1}")
        b(f"v_lshl_add_u32 v{t}, v{t+1}, 7, v{t}")
        b(f"global_load_dword v{pd}, v{t}, s[4:5]", 'nocount')
        b("L_k1_pf_1:")
        b(f"s_cmp_eq_u32 s{sWm}, 1")
        b("s_cbranch_scc0 L_k1_pf_2")
        b(f"v_bfe_u32 v{t}, v{L}, 3, 1")
        b(f"s_lshl_b32 s{sT2}, s2, 1")
        b(f"v_add_u32 v{t}, s{sT2}, v{t}")
        b(f"v_lshlrev_b32 v{t}, 10, v{t}")
        b(f"v_and_b32 v{t+1}, 7, v{L}")
        b(f"v_max_u32 v{t+1}, 3, v{t+1}")
        b(f"v_lshl_add_u32 v{t}, v{t+1}, 7, v{t}")
        b(f"global_load_dword v{pd}, v{t}, s[10:11]", 'nocount')
        b(f"global_load_dword v{pd+1}, v{t}, s[12:13]", 'nocount')
        b("L_k1_pf_2:")
        b(f"s_cmp_eq_u32 s{sWm}, 2")
        b("s_cbranch_scc0 L_k1_pf_done")
        b(f"v_lshrrev_b32 v{t}, 5, v{L}")
        b(f"s_lshl_b32 s{sT2}, s2, 1")
        b(f"v_add_u32 v{t}, s{sT2}, v{t}")
        b(f"v_mul_u32_u24 v{t}, 3584, v{t}")
        b(f"v_and_b32 v{t+1}, 31, v{L}")
        b(f"v_min_u32 v{t+1}, 27, v{t+1}")
        b(f"v_lshl_add_u32 v{t}, v{t+1}, 7, v{t}")
        b(f"global_load_dword v{pd}, v{t}, s[24:25]", 'nocount')
        b("L_k1_pf_done:")
    b(f"v_and_b32 v{t}, 31, v{L}")
    b(f"v_lshrrev_b32 v{t+1}, 5, v{L}")
    b(f"v_bfe_u32 v{t+2}, v{L}, 1, 3")
    b(f"v_xor_b32 v{t+2}, v{t+1}, v{t+2}")
    b(f"v_lshlrev_b32 v{t+1}, 7, v{t}")
    b(f"v_add_u32 v{t+1}, s{sLdsX}, v{t+1}")
    b(f"v_lshrrev_b32 v{t+3}, 3, v{t}")
    b(f"v_lshlrev_b32 v{t+3}, 11, v{t+3}")
    b(f"v_and_b32 v{t}, 7, v{t}")
    b(f"v_lshl_add_u32 v{t}, v{t}, 7, v{t+3}")
    b(f"v_add_u32 v{t}, 16384, v{t}")
    for k in range(4):
        b(f"v_xor_b32 v{t+3}, {2*k}, v{t+2}")
        b(f"v_lshl_add_u32 v{gPX+k}, v{t+3}, 4, v{t+1}")
        b(f"v_lshl_add_u32 v{gPB+k}, v{t+3}, 4, v{t}")
    return b

def k1_params():
    b = F()
    lre, lim, ldt = vP+8, vP+9, vP+10
    va, vang, t0 = vP, vP+1, vP+2
    b(f"v_lshlrev_b32 v{lre}, 16, v{lre}")
    b(f"v_lshlrev_b32 v{lim}, 16, v{lim}")
    b(f"v_lshlrev_b32 v{ldt}, 16, v{ldt}")
    b(f"v_mul_f32 v{ldt}, {LOG2E:#x}, v{ldt}")
    b(f"v_exp_f32 v{ldt}, v{ldt}")
    b(f"v_cvt_pk_bf16_f32 v{ldt}, v{ldt}, v{ldt}")
    b(f"v_lshlrev_b32 v{ldt}, 16, v{ldt}")
    b(f"v_mul_f32 v{va}, v{ldt}, v{lre}")
    b(f"v_mul_f32 v{vang}, v{ldt}, v{lim}")
    b(f"v_mul_f32 v{va}, {LOG2E:#x}, v{va}")
    b(f"v_mul_f32 v{vang}, {INV2PI:#x}, v{vang}")
    cexp(b, vL, "1.0", va, vang, t0)
    for dst, cst in ((vL16, 0x41800000), (vL32, 0x42000000), (vL128, 0x43000000), (vL256, 0x43800000)):
        b(f"v_mov_b32 v{t0+3}, {cst:#x}")
        cexp(b, dst, f"v{t0+3}", va, vang, t0)
    b(f"v_lshrrev_b32 v{t0+3}, 5, v{vLane}")
    b(f"v_cvt_f32_u32 v{vHfm}, v{t0+3}")
    b(f"v_lshlrev_b32 v{t0+3}, 4, v{t0+3}")
    b(f"v_cvt_f32_u32 v{t0+3}, v{t0+3}")
    cexp(b, vF1, f"v{t0+3}", va, vang, t0)
    b(f"v_lshrrev_b32 v{t0+3}, 5, v{vLane}")
    b(f"v_lshlrev_b32 v{t0+3}, 4, v{t0+3}")
    b(f"s_lshl_b32 s{sSpin}, s{sWm}, 5")
    b(f"v_add_u32 v{t0+3}, s{sSpin}, v{t0+3}")
    b(f"v_cvt_f32_u32 v{t0+3}, v{t0+3}")
    cexp(b, vG, f"v{t0+3}", va, vang, t0)
    b(f"v_add_f32 v{t0}, -1.0, v{vL}")
    b(f"v_mul_f32 v{t0+1}, v{lre}, v{lre}")
    b(f"v_fma_f32 v{t0+1}, v{lim}, v{lim}, v{t0+1}")
    b(f"v_rcp_f32 v{t0+1}, v{t0+1}")
    b(f"v_mul_f32 v{vC2}, v{t0}, v{lre}")
    b(f"v_fma_f32 v{vC2}, v{vL+1}, v{lim}, v{vC2}")
    b(f"v_mul_f32 v{vC2+1}, v{vL+1}, v{lre}")
    b(f"v_fma_f32 v{vC2+1}, -v{t0}, v{lim}, v{vC2+1}")
    b(f"v_add_f32 v{t0+1}, v{t0+1}, v{t0+1}")
    b(f"v_mul_f32 v{vC2}, v{vC2}, v{t0+1}")
    b(f"v_mul_f32 v{vC2+1}, v{vC2+1}, v{t0+1}")
    return b

def k1_setup_common():
    b = F(); t = vP + 12; L = vLane
    for k, m in ((1, sM1), (2, sM2), (3, sM3)):
        g = B()
        g(f"s_cmp_ge_u32 s{sWm}, {k}")
        g(f"s_cselect_b64 {s(m,2)}, -1, 0")
        b.group(g)
    b(f"v_lshlrev_b32 v{vL16o}, 4, v{L}")
    b(f"v_and_b32 v{t}, 31, v{L}")
    b(f"v_lshlrev_b32 v{t}, 4, v{t}")
    b(f"s_lshl_b32 s{sK0}, s{sS}, 9")
    b(f"s_add_u32 s{sK0}, s{sK0}, {E_OFF}")
    b(f"v_add_u32 v{vLBa}, s{sK0}, v{t}")
    b(f"v_and_b32 v{t}, 31, v{L}")
    b(f"v_mul_u32_u24 v{t}, 80, v{t}")
    b(f"v_lshrrev_b32 v{t+1}, 5, v{L}")
    b(f"v_lshl_add_u32 v{t}, v{t+1}, 5, v{t}")
    b(f"s_mul_i32 s{sK0}, s{sWm}, 5120")
    b(f"s_add_u32 s{sK0}, s{sK0}, {SCR}")
    b(f"v_add_u32 v{vImgW}, s{sK0}, v{t}")
    b(f"v_lshrrev_b32 v{t+1}, 5, v{L}")
    b(f"v_lshlrev_b32 v{t+1}, 3, v{t+1}")
    b(f"v_bfe_u32 v{t+2}, v{L}, 2, 2")
    b(f"v_add_u32 v{t+1}, v{t+1}, v{t+2}")
    b(f"v_mul_u32_u24 v{t+1}, 80, v{t+1}")
    b(f"v_and_b32 v{t+2}, 1, v{L}")
    b(f"v_lshlrev_b32 v{t+2}, 5, v{t+2}")
    b(f"v_bfe_u32 v{t+3}, v{L}, 4, 1")
    b(f"v_lshlrev_b32 v{t+3}, 4, v{t+3}")
    b(f"v_add3_u32 v{t+1}, v{t+1}, v{t+2}, v{t+3}")
    b(f"v_bfe_u32 v{t+2}, v{L}, 1, 1")
    b(f"v_lshlrev_b32 v{t+2}, 3, v{t+2}")
    b(f"v_add3_u32 v{vImgR}, v{t+1}, v{t+2}, s{sK0}")
    return b

def k1_gjob_all(b):
    L = vLane
    xs0, gs, gu, t, w = 32, 112, 16, 120, 96
    b(f"v_and_b32 v{t}, 31, v{L}")
    b(f"v_lshlrev_b32 v{t}, 4, v{t}")
    b(f"global_load_dwordx4 {v(gs,4)}, v{t}, s[28:29]")
    b(f"global_load_dwordx4 {v(gs+4,4)}, v{t}, s[28:29] offset:512")
    b(f"v_lshrrev_b32 v{t+1}, 5, v{L}")
    b(f"s_lshl_b32 s{sT1}, s{sT0}, 4")
    b(f"v_add_u32 v{t+1}, s{sT1}, v{t+1}")
    b(f"v_lshlrev_b32 v{t+2}, 3, v{t+1}")
    b(f"v_add_u32 v{t+2}, {G_OFF}, v{t+2}")
    b(f"v_lshlrev_b32 v{t+1}, 10, v{t+1}")
    b(f"v_add_u32 v{t+1}, v{t+1}, v{t}")
    for p in range(8):
        r = xs0 + p * 8
        if p: b(f"v_add_u32 v{t+1}, 2048, v{t+1}")
        b(f"global_load_dwordx4 {v(r,4)}, v{t+1}, s[4:5]")
        b(f"global_load_dwordx4 {v(r+4,4)}, v{t+1}, s[4:5] offset:512")
    for _ in range(4): b("s_barrier")
    for k in range(8):
        b(f"v_lshlrev_b32 v{gu+2*k}, 16, v{gs+k}")
        b(f"v_and_b32 v{gu+2*k+1}, 0xffff0000, v{gs+k}")
    b(f"v_and_b32 v{t+3}, 31, v{L}")
    for p in range(8):
        xs = xs0 + p * 8
        acc = w
        for k in range(8):
            a0 = w + 2 + 2 * (k % 4)
            b(f"v_lshlrev_b32 v{a0}, 16, v{xs+k}")
            b(f"v_and_b32 v{a0+1}, 0xffff0000, v{xs+k}")
            b(f"v_pk_mul_f32 {v(a0,2)}, {v(a0,2)}, {v(gu+2*k,2)}")
            b(f"v_cvt_pk_bf16_f32 v{a0}, v{a0}, v{a0+1}")
            b(f"v_and_b32 v{a0+1}, 0xffff0000, v{a0}")
            b(f"v_lshlrev_b32 v{a0}, 16, v{a0}")
            if k == 0:
                b(f"v_add_f32 v{acc}, v{a0}, v{a0+1}")
            else:
                b(f"v_add_f32 v{a0}, v{a0}, v{a0+1}")
                b(f"v_add_f32 v{acc}, v{acc}, v{a0}")
        for r in (8, 4, 2, 1):
            b(f"v_add_f32_dpp v{acc}, v{acc}, v{acc} row_ror:{r} row_mask:0xf bank_mask:0xf")
        b(f"v_mov_b32 v{acc+1}, v{acc}")
        b(f"v_permlane16_swap_b32 v{acc}, v{acc+1}")
        b(f"v_add_f32 v{acc}, v{acc}, v{acc+1}")
        b(f"v_cvt_pk_bf16_f32 v{acc}, v{acc}, v{acc}")
        b(f"v_lshlrev_b32 v{acc}, 16, v{acc}")
        b(f"v_mul_f32 v{acc}, {LOG2E ^ 0x80000000:#x}, v{acc}")
        b(f"v_exp_f32 v{acc}, v{acc}")
        b(f"v_add_f32 v{acc}, 1.0, v{acc}")
        b(f"v_rcp_f32 v{acc}, v{acc}")
        b(f"v_cvt_pk_bf16_f32 v{acc}, v{acc}, v{acc}")
        d = xs
        b(f"v_lshlrev_b32 v{d}, 16, v{acc}")
        b(f"v_sub_f32 v{d+1}, 1.0, v{d}")
        b(f"v_cvt_pk_bf16_f32 v{d+1}, v{d+1}, v{d+1}")
        b(f"v_lshlrev_b32 v{d+1}, 16, v{d+1}")
    b(f"v_cmp_eq_u32 vcc, 0, v{t+3}")
    b(f"s_and_saveexec_b64 {s(sEX,2)}, vcc")
    for p in range(8):
        b(f"global_store_dwordx2 v{t+2}, {v(xs0+8*p,2)}, s[34:35] offset:{16*p} sc0 sc1")
    b(f"s_mov_b64 exec, {s(sEX,2)}")

def k1_nonce():
    b = F()
    t = vU + 26
    b(f"v_add_u32 v{t}, 1, v{t}")
    b(f"v_or_b32 v{t+1}, 1, v{t+1}")
    b(f"v_mov_b32 v{t+2}, {NONCE_OFF}")
    b(f"v_mov_b32 v{t+3}, 0")
    g = B()
    g(f"s_or_b32 s{sSpin}, s2, s{sWm}")
    g(f"s_cmp_lg_u32 s{sSpin}, 0")
    g("s_cbranch_scc1 L_k1_nononce")
    g(f"global_store_dwordx2 v{t+2}, {v(t,2)}, s[34:35] sc0 sc1", 'nocount')
    g(f"global_store_dwordx2 v{t+3}, {v(t,2)}, s[32:33] sc0 sc1", 'nocount')
    g("L_k1_nononce:")
    b.group(g)
    return b

def k1_S():
    b = k1_S_setup()
    if int(opts.get('sprio', 1)): b("s_setprio 2")
    m = B()
    for i in range(8):
        m("s_waitcnt lgkmcnt(0)")
        m("s_barrier")
        po = (i % NSLOT) * SLOT
        hi = po >= 65536 - 1024
        if hi:
            for k in range(4):
                m(f"v_add_u32 v{vTmp+k}, 0x10000, v{gPX+k}")
        for k in range(4):
            if hi: m(f"ds_read_b128 {a(aSX+4*k,4)}, v{vTmp+k} offset:{po - 65536}")
            else: m(f"ds_read_b128 {a(aSX+4*k,4)}, v{gPX+k} offset:{po}")
        if hi:
            for k in range(4):
                m(f"v_add_u32 v{vTmp+k}, 0x10000, v{gPB+k}")
        for k in range(4):
            for mm in range(2):
                if hi: m(f"ds_read_b128 {a(aSB+8*k+4*mm,4)}, v{vTmp+k} offset:{po - 65536 + mm*1024}")
                else: m(f"ds_read_b128 {a(aSB+8*k+4*mm,4)}, v{gPB+k} offset:{po + mm*1024}")
        for k in range(4):
            for mm, acc in ((0, aRE), (1, aIM)):
                c = v(acc, 16) if (i, k) != (0, 0) else "0"
                m(f"v_mfma_f32_32x32x16_bf16 {v(acc,16)}, {a(aSX+4*k,4)}, {a(aSB+8*k+4*mm,4)}, {c}")
    f = F()
    if not int(opts.get('nearly', 1)): f.ext(k1_nonce())
    f.ext(k1_params())
    f.ext(k1_setup_common())
    g = B()
    g(f"v_mov_b32 v{vTmp}, 0")
    g(f"global_load_dwordx2 {v(vNon,2)}, v{vTmp}, s[32:33] sc1")
    f.group(g)
    b.ext(merge(m.ops, f.ops, per=int(opts.get('per1', 5))))
    b("s_waitcnt vmcnt(0)")
    stamp(b, 2)
    s1 = flat(k1_scan1a().ops)
    cut = [j for j, o in enumerate(s1) if o.kind == 'ds'][0]
    if STAMP >= 2: stamp(b, 8)
    b.ext(s1[:cut])
    if STAMP >= 2: stamp(b, 9)
    b("s_barrier")
    b.ext(s1[cut:])
    if STAMP >= 2: stamp(b, 11)
    b("s_barrier")
    if STAMP >= 2: stamp(b, 12)
    b.ext(flat(k1_scan1b().ops))
    if STAMP >= 2: stamp(b, 13)
    b.ext(k1_publish())
    stamp(b, 3)
    b("s_barrier")
    b.ext(p2_S_csetup())
    if opts.get('lbfirst', '0') == '1':
        b("s_barrier")
        stamp(b, 4)
        b.ext(k1_lookback())
        stamp(b, 5)
        b.ext(k1_final())
        b.ext(p2_S_cdma())
        b.ext(p2_S_creads())
    else:
        b("s_barrier")
        b.ext(p2_S_cdma())
        stamp(b, 4)
        b.ext(k1_lookback())
        stamp(b, 5)
        b.ext(k1_final())
        b.ext(p2_S_creads())
    stamp(b, 6)
    return b

def cfma_sr(b, d, l, h, ure, uim, tmp):
    b(f"v_fma_f32 v{tmp}, v{l}, v{h}, v{ure}")
    b(f"v_fma_f32 v{tmp+1}, v{l}, v{h+1}, v{uim}")
    b(f"v_fma_f32 v{d}, -v{l+1}, v{h+1}, v{tmp}")
    b(f"v_fma_f32 v{d+1}, v{l+1}, v{h}, v{tmp+1}")

def k1_scan1a():
    b = F()
    tmp = vTmp
    R = lambda t: aRE + reg_of_t(t)
    I = lambda t: aIM + reg_of_t(t)
    b(f"v_mov_b32 v{vQ}, v{R(0)}\nv_mov_b32 v{vQ+1}, v{I(0)}")
    cur = vQ
    for t in range(1, 16):
        nxt = vQ if cur == vW_ else vW_
        cfma_sr(b, nxt, vL, cur, R(t), I(t), tmp)
        cur = nxt
    assert cur == vW_
    b(f"v_mov_b32 v{vPre}, v{cur}\nv_mov_b32 v{vPre+1}, v{cur+1}")
    b(f"v_mov_b32 v{vQ}, v{cur}\nv_mov_b32 v{vQ+1}, v{cur+1}")
    b(f"v_permlane32_swap_b32 v{vPre}, v{vQ}")
    b(f"v_permlane32_swap_b32 v{vPre+1}, v{vQ+1}")
    cfma_s(b, vW_, vL16, vPre, vQ, tmp)
    b(f"v_mul_f32 v{vPre}, v{vPre}, v{vHfm}\nv_mul_f32 v{vPre+1}, v{vPre+1}, v{vHfm}")
    t = vP
    b(f"v_and_b32 v{t+14}, 31, v{vLane}")
    b(f"v_lshlrev_b32 v{t+14}, 3, v{t+14}")
    b(f"v_add_u32 v{t+14}, {SCR}, v{t+14}")
    b(f"s_lshl_b32 s{sK0}, s{sWm}, 8")
    b(f"v_add_u32 v{t+15}, s{sK0}, v{t+14}")
    b(f"ds_write_b64 v{t+15}, {v(vW_,2)} offset:{SC}", "Wx")
    b.wait('lg', "Wx")
    return b

def k1_scan1b():
    b = F()
    t = vP; tmp = vTmp
    for w in range(4):
        b(f"ds_read_b64 {v(t+2*w,2)}, v{t+14} offset:{SC + 256*w}")
    W0, W1, W2, W3 = t, t+2, t+4, t+6
    Q2, Q3 = t+8, t+10
    cfma_s(b, Q2, vL32, W0, W1, tmp)
    cfma_s(b, Q3, vL32, Q2, W2, tmp)
    E = t + 12
    cfma_s(b, E, vL32, Q3, W3, tmp)
    for h in range(2):
        b(f"v_cndmask_b32 v{vQ+h}, 0, v{W0+h}, {s(sM1,2)}")
        b(f"v_cndmask_b32 v{vQ+h}, v{vQ+h}, v{Q2+h}, {s(sM2,2)}")
        b(f"v_cndmask_b32 v{vQ+h}, v{vQ+h}, v{Q3+h}, {s(sM3,2)}")
    cfma_s(b, vK, vF1, vQ, vPre, tmp)
    return b

def k1_publish():
    t = vP; E = t + 12; tmp = vTmp
    g = B()
    g(f"s_lshl_b32 s{sK0}, s{sR}, 13")
    g(f"v_add_u32 v{tmp}, s{sK0}, v{vLBa}")
    g(f"v_lshrrev_b32 v{tmp+1}, 3, v{vLane}")
    g(f"v_cmp_ne_u32 vcc, 0, v{vNon+1}")
    g("s_cbranch_vccnz L_k1_nonce_ok")
    g(f"s_mov_b32 s{sSpin}, 0")
    g("L_k1_nonce_retry:")
    g(f"v_mov_b32 v{tmp+2}, 0")
    g(f"global_load_dwordx2 {v(vNon,2)}, v{tmp+2}, s[32:33] sc1", 'nocount')
    g("s_waitcnt vmcnt(0)", 'nocount')
    g(f"s_add_u32 s{sSpin}, s{sSpin}, 1")
    g(f"s_cmp_gt_u32 s{sSpin}, 40000")
    g("s_cbranch_scc1 L_k1_nonce_ok")
    g(f"v_cmp_ne_u32 vcc, 0, v{vNon+1}")
    g("s_cbranch_vccz L_k1_nonce_retry")
    g("L_k1_nonce_ok:")
    g(f"v_mov_b32 v{E+2}, v{vNon}\nv_mov_b32 v{E+3}, v{vNon+1}")
    g(f"v_cmp_eq_u32 vcc, s{sWm}, v{tmp+1}")
    g(f"s_and_saveexec_b64 {s(sEX,2)}, vcc")
    g(f"global_store_dwordx4 v{tmp}, {v(E,4)}, s[34:35] sc0 sc1")
    g(f"s_mov_b64 exec, {s(sEX,2)}")
    return g

def k1_lookback():
    b = B(); tmp = vTmp; t = vP
    H = vW_
    def loads(tok):
        b(f"s_sub_u32 s{sK0}, s{sR}, 1")
        b(f"s_lshl_b32 s{sK0}, s{sK0}, 13")
        b(f"v_lshrrev_b32 v{t}, 5, v{vLane}")
        b(f"v_lshlrev_b32 v{t}, 13, v{t}")
        b(f"v_sub_u32 v{t}, s{sK0}, v{t}")
        b(f"v_add_u32 v{t}, v{vLBa}, v{t}")
        for mm in range(8):
            if mm: b(f"v_subrev_u32 v{t}, 16384, v{t}")
            b(f"v_max_i32 v{t+1}, v{t}, v{vLBa}")
            b(f"global_load_dwordx4 {v(vU+4*mm,4)}, v{t+1}, s[34:35] sc1", tok)
    b(f"s_cmp_eq_u32 s{sR}, 0")
    b("s_cbranch_scc1 L_k1_lb_zero")
    b(f"s_mov_b32 s{sSpin}, 0")
    b("L_k1_lb_again:")
    loads('nocount')
    b("s_waitcnt vmcnt(0)", 'nocount')
    b(f"s_mov_b64 {s(sEX,2)}, -1")
    for mm in range(8):
        b(f"s_cmp_le_u32 s{sR}, {2*mm}")
        b("s_cbranch_scc1 L_k1_lb_checked")
        b(f"s_cmp_ge_u32 s{sR}, {2*mm+2}")
        b(f"s_cselect_b32 s{sT1}, 0, -1")
        b(f"v_cmp_eq_u32 vcc, v{vU+4*mm+2}, v{vNon}")
        b(f"v_cmp_eq_u32 {s(sT2,2)}, v{vU+4*mm+3}, v{vNon+1}")
        b(f"s_and_b64 vcc, vcc, {s(sT2,2)}")
        b(f"s_or_b32 vcc_hi, vcc_hi, s{sT1}")
        b(f"s_and_b64 {s(sEX,2)}, {s(sEX,2)}, vcc")
    b("L_k1_lb_checked:")
    b(f"s_cmp_eq_u64 {s(sEX,2)}, -1")
    b("s_cbranch_scc1 L_k1_lb_ok")
    b(f"s_add_u32 s{sSpin}, s{sSpin}, 1")
    b(f"s_cmp_gt_u32 s{sSpin}, 40000")
    b("s_cbranch_scc1 L_k1_lb_ok")
    b(f"s_sleep {int(opts.get('lbsleep', 4))}")
    b("s_branch L_k1_lb_again")
    b("L_k1_lb_ok:")
    b(f"v_mov_b32 v{H}, 0\nv_mov_b32 v{H+1}, 0")
    for mm in range(7, -1, -1):
        b(f"s_cmp_le_u32 s{sR}, {2*mm}")
        b(f"s_cbranch_scc1 L_k1_lb_h{mm}")
        b(f"s_cmp_ge_u32 s{sR}, {2*mm+2}")
        b(f"s_cselect_b32 s{sT3}, -1, 0")
        b(f"s_mov_b32 s{sT2}, -1")
        b(f"v_cndmask_b32 v{vU+4*mm}, 0, v{vU+4*mm}, {s(sT2,2)}")
        b(f"v_cndmask_b32 v{vU+4*mm+1}, 0, v{vU+4*mm+1}, {s(sT2,2)}")
        b(f"v_fma_f32 v{tmp}, v{vL256}, v{H}, v{vU+4*mm}")
        b(f"v_fma_f32 v{tmp+1}, v{vL256}, v{H+1}, v{vU+4*mm+1}")
        b(f"v_fma_f32 v{tmp}, -v{vL256+1}, v{H+1}, v{tmp}")
        b(f"v_fma_f32 v{H+1}, v{vL256+1}, v{H}, v{tmp+1}")
        b(f"v_mov_b32 v{H}, v{tmp}")
        b(f"L_k1_lb_h{mm}:")
    b(f"v_mov_b32 v{vPre}, v{H}\nv_mov_b32 v{vPre+1}, v{H+1}")
    b(f"v_permlane32_swap_b32 v{H}, v{vPre}")
    b(f"v_permlane32_swap_b32 v{H+1}, v{vPre+1}")
    cfma_s(b, t, vL128, vPre, H, tmp)
    cfma_s(b, vQ, vG, t, vK, tmp)
    b("s_branch L_k1_lb_done")
    b("L_k1_lb_zero:")
    b(f"v_mov_b32 v{vQ}, v{vK}\nv_mov_b32 v{vQ+1}, v{vK+1}")
    b("L_k1_lb_done:")
    return b

def k1_final():
    b = B()
    tmp = vTmp
    prev = vQ
    for t in range(16):
        r = reg_of_t(t)
        u = vU + 2 * r
        cfma_sr(b, u, vL, prev, aRE + r, aIM + r, tmp)
        prev = u
    for r in range(16):
        u = vU + 2 * r
        tp = vP + 2 * (r % 4)
        b(f"v_mul_f32 v{tp}, v{vC2}, v{u}")
        b(f"v_mul_f32 v{tp+1}, v{vC2+1}, v{u}")
        b(f"v_fma_f32 v{u}, -v{vC2+1}, v{u+1}, v{tp}")
        b(f"v_fma_f32 v{u+1}, v{vC2}, v{u+1}, v{tp+1}")
    for k in range(8):
        b(f"v_cvt_pk_bf16_f32 v{aRE+k}, v{vU+4*k}, v{vU+4*k+2}")
    for h in range(2):
        b(f"ds_write_b128 v{vImgW}, {v(aRE+4*h,4)} offset:{IMG + h*16}", "img")
    for k in range(8):
        b(f"v_cvt_pk_bf16_f32 v{aRE+8+k}, -v{vU+4*k+1}, -v{vU+4*k+3}")
    for h in range(2):
        b(f"ds_write_b128 v{vImgW}, {v(aRE+8+4*h,4)} offset:{IMG + 2560 + h*16}", "img")
    b(f"s_lshl_b32 s{sT2}, s{sS}, 12")
    b(f"s_add_u32 s{sT1}, s{sHFb}, s{sT2}")
    b.wait('lg', "img")
    for m in range(2):
        for kk in range(2):
            r = aIM + (2*m + kk) * 4
            for rd in range(2):
                b(f"ds_read_b64_tr_b16 {v(r+2*rd,2)}, v{vImgR} offset:{IMG + (m*32 + 16*kk + 4*rd)*80}")
    for m in range(2):
        for kk in range(2):
            r = aIM + (2*m + kk) * 4
            b(f"s_add_u32 s{sT2}, s{sT1}, {(2*m+kk)*1024}")
            b(f"buffer_store_dwordx4 {v(r,4)}, v{vL16o}, {s(sHF,4)}, s{sT2} offen {STF}")
    return b


pA, pC1, pC2 = 36, 40, 44
pH, pN, pK0, pLw, pOff = 72, 73, 74, 75, 76
pNib = 84
CST = 98304
vCe, vCo, vPp = 2, 3, 4
vH0g, vH1g, vH0k, vH1k = 2, 3, 4, 5
vTau, vSg, vSk = 8, 10, 12
vWrq = 16
PITCH = 256

def p2_ids(b):
    b(f"s_lshr_b32 s{pH}, s{sS}, 3")
    b(f"s_and_b32 s{pN}, s{sS}, 7")

def p2_S_csetup():
    b = B(); L = vLane; t = vP
    p2_ids(b)
    srd(b, pC1, 14, 512*1024)
    srd(b, pC2, 16, 512*1024)
    b(f"v_and_b32 v{t}, 7, v{L}")
    b(f"v_lshrrev_b32 v{t+1}, 4, v{L}")
    b(f"v_xor_b32 v{t}, v{t}, v{t+1}")
    b(f"v_lshlrev_b32 v{t}, 4, v{t}")
    b(f"v_lshrrev_b32 v{t+1}, 3, v{L}")
    b(f"v_lshlrev_b32 v{t+1}, 10, v{t+1}")
    b(f"v_add_u32 v{vCe}, v{t}, v{t+1}")
    b(f"v_xor_b32 v{vCo}, 64, v{vCe}")
    b(f"s_lshl_b32 s{pOff}, s{pN}, 16")
    b(f"s_lshl_b32 s{sT0}, s{pH}, 9")
    b(f"s_add_u32 s{pOff}, s{pOff}, s{sT0}")
    b(f"s_lshl_b32 s{sT0}, s{sWm}, 7")
    b(f"s_add_u32 s{pOff}, s{pOff}, s{sT0}")
    b(f"s_lshl_b32 s{pLw}, s{sWm}, 14")
    b(f"s_add_u32 s{pLw}, s{pLw}, {CST}")
    b(f"v_and_b32 v{t}, 31, v{L}")
    b(f"v_lshlrev_b32 v{t}, 7, v{t}")
    b(f"v_add_u32 v{t}, s{pLw}, v{t}")
    b(f"v_lshrrev_b32 v{t+1}, 5, v{L}")
    b(f"v_bfe_u32 v{t+2}, v{L}, 1, 3")
    b(f"v_xor_b32 v{t+2}, v{t+1}, v{t+2}")
    for k in range(4):
        b(f"v_xor_b32 v{t+1}, {2*k}, v{t+2}")
        b(f"v_lshl_add_u32 v{vPp+k}, v{t+1}, 4, v{t}")
    return b

def p2_S_cdma():
    b = B()
    for m in range(2):
        for aa in range(8):
            b(f"s_add_u32 m0, s{pLw}, {m*8192 + aa*1024}")
            b(f"s_add_u32 s{sT0}, s{pOff}, {aa*8192}")
            b(f"buffer_load_dwordx4 v{vCe if aa % 2 == 0 else vCo}, {s(pC1 if m == 0 else pC2,4)}, s{sT0} offen lds", "cst")
    return b

ROT2 = int(opts.get('rot2', 0))
pKS = 48
def p2_S_creads():
    b = B()
    if not ROT2:
        b.wait('vm', "cst")
        for j in range(8):
            m = (j >> 1) & 1; ksp = 2 * (j >> 2) + (j & 1)
            for aa in range(2):
                b(f"ds_read_b128 {a(8*j+4*aa,4)}, v{vPp+ksp} offset:{m*8192 + aa*4096}")
        for j in range(8): b(f"s_mov_b32 s{pKS+j}, {j*1024}")
        return b
    t = vP; L = vLane
    b(f"v_and_b32 v{t}, 31, v{L}")
    b(f"v_lshlrev_b32 v{t}, 7, v{t}")
    b(f"v_add_u32 v{t}, s{pLw}, v{t}")
    b(f"v_lshrrev_b32 v{t+1}, 5, v{L}")
    b(f"v_bfe_u32 v{t+2}, v{L}, 1, 3")
    b(f"v_xor_b32 v{t+1}, v{t+1}, v{t+2}")
    b.wait('vm', "cst")
    for j in range(8):
        b(f"s_add_u32 s{sT0}, s{pN}, {j}")
        b(f"s_and_b32 s{sT0}, s{sT0}, 7")
        b(f"s_lshl_b32 s{pKS+j}, s{sT0}, 10")
        b(f"s_lshr_b32 s{sT1}, s{sT0}, 2")
        b(f"s_lshl_b32 s{sT1}, s{sT1}, 1")
        b(f"s_and_b32 s{sT2}, s{sT0}, 1")
        b(f"s_add_u32 s{sT1}, s{sT1}, s{sT2}")
        b(f"s_lshl_b32 s{sT1}, s{sT1}, 1")
        b(f"s_bfe_u32 s{sT2}, s{sT0}, 0x10001")
        b(f"s_lshl_b32 s{sT2}, s{sT2}, 13")
        tt = t + 4 + (j % 4)
        b(f"v_xor_b32 v{tt}, s{sT1}, v{t+1}")
        b(f"v_lshl_add_u32 v{tt}, v{tt}, 4, v{t}")
        b(f"v_add_u32 v{tt}, s{sT2}, v{tt}")
        for aa in range(2):
            b(f"ds_read_b128 {a(8*j+4*aa,4)}, v{tt} offset:{aa*4096}")
    return b

def p2_common(b, role):
    L = vLane
    srd(b, pA, 34, WS_USED)
    b(f"s_xor_b32 s{sT0}, s{pH}, 1")
    b(f"s_lshl_b32 s{sT0}, s{sT0}, 1")
    b(f"s_lshl_b32 s{sT1}, s{sR}, 2")
    b(f"s_add_u32 s{sT0}, s{sT0}, s{sT1}")
    b(f"s_mul_i32 s{sT0}, s{sT0}, {176*1024}")
    b(f"v_lshlrev_b32 v6, 4, v{L}")
    b(f"v_add_u32 v{vH0g}, s{sT0}, v6")
    b(f"v_add_u32 v{vH1g}, {176*1024}, v{vH0g}")
    b(f"s_lshl_b32 s{sT0}, s{pH}, 2")
    b(f"s_sub_u32 s{sT0}, s{sT0}, 2")
    b(f"s_mul_i32 s{sT0}, s{sT0}, {176*1024}")
    b(f"v_add_u32 v{vH0k}, s{sT0}, v{vH0g}")
    b(f"v_add_u32 v{vH1k}, s{sT0}, v{vH1g}")
    b(f"s_lshl_b32 s{pK0}, s{pH}, 2")
    b(f"s_add_u32 s{pK0}, s{pK0}, s{sWm}")
    if role == 0:
        b(f"s_lshl_b32 s{pK0}, s{pK0}, 13")
    else:
        b(f"s_mul_i32 s{pK0}, s{pK0}, {14*1024}")
        b(f"s_add_u32 s{pK0}, s{pK0}, {64*1024}")

def p2_common2(b, role):
    L = vLane
    b(f"v_bfe_u32 v6, v{L}, 3, 2")
    b(f"v_and_b32 v7, 7, v{L}")
    b(f"v_lshl_add_u32 v{vTau}, v7, 2, v6")
    b(f"s_xor_b32 s{sT0}, s{pH}, 1")
    b(f"s_lshl_b32 s{sT0}, s{sT0}, 6")
    b(f"s_lshl_b32 s{sT1}, s{sR}, 7")
    b(f"s_add_u32 s{sT0}, s{sT0}, s{sT1}")
    b(f"v_add_u32 v6, s{sT0}, v{vTau}")
    b("v_lshlrev_b32 v6, 3, v6")
    b(f"v_add_u32 v6, {G_OFF + 4*role}, v6")
    b(f"global_load_dword v{vSg}, v6, s[34:35] sc1")
    b(f"global_load_dword v{vSg+1}, v6, s[34:35] offset:256 sc1")
    b(f"s_lshl_b32 s{sT0}, s{pH}, 7")
    b(f"s_sub_u32 s{sT0}, s{sT0}, 64")
    b(f"s_lshl_b32 s{sT0}, s{sT0}, 3")
    b(f"v_add_u32 v6, s{sT0}, v6")
    b(f"global_load_dword v{vSk}, v6, s[34:35] sc1")
    b(f"global_load_dword v{vSk+1}, v6, s[34:35] offset:256 sc1")
    b(f"s_lshl_b32 s{sT0}, s{sWm}, 14")
    if role == 0: b(f"s_add_u32 s{sT0}, s{sT0}, {CST}")
    b(f"v_lshlrev_b32 v9, 8, v{vTau}")
    b(f"v_add_u32 v9, s{sT0}, v9")
    b(f"v_lshrrev_b32 v6, 5, v{L}")
    b(f"v_and_b32 v7, 7, v{L}")
    b("v_xor_b32 v6, v6, v7")
    for q in range(4):
        b(f"v_xor_b32 v7, {2*q}, v6")
        b(f"v_lshl_add_u32 v{vWrq+q}, v7, 4, v9")

def p2_rwrite(b, acc, sc, dup=None):
    if dup is not None:
        b(f"v_mov_b32 v{dup}, v{sc}\nv_mov_b32 v{dup+1}, v{sc}\nv_mov_b32 v{dup+2}, v{sc+1}\nv_mov_b32 v{dup+3}, v{sc+1}")
    for aa in range(2):
        for bb in range(2):
            S = acc + (aa*2+bb)*16
            g = sc + bb
            gp = g & ~1; o = g & 1
            if dup is not None:
                for p in range(8):
                    b(f"v_pk_mul_f32 {v(S+2*p,2)}, {v(S+2*p,2)}, {v(dup+2*bb,2)}")
            elif opts.get('rw', 'scalar') == 'pk':
                for p in range(8):
                    b(f"v_pk_mul_f32 {v(S+2*p,2)}, {v(S+2*p,2)}, {v(gp,2)} op_sel:[0,{o}] op_sel_hi:[1,{o}]")
            else:
                for p in range(16):
                    b(f"v_mul_f32 v{S+p}, v{g}, v{S+p}")
            for q in range(4):
                b(f"ds_write_b128 v{vWrq+q}, {v(S+4*q,4)} offset:{bb*32*PITCH + aa*128}", "red")
    b.wait('lg', "red")

def p2_F():
    b = B(); L = vLane
    b("L_p2_F:")
    b("s_waitcnt vmcnt(0) lgkmcnt(0)")
    b("s_barrier")
    if int(opts.get('p2prio', 0)): b(f"s_setprio {int(opts.get('p2prio', 0))}")
    stamp(b, 7)
    p2_ids(b)
    srd(b, pC1, 26, 1792*1024)
    vWa, vWb, vTp = 6, 7, 20
    t = 24
    b(f"v_bfe_u32 v{t}, v{L}, 4, 1")
    b(f"v_lshlrev_b32 v{t}, 2, v{t}")
    b(f"v_and_b32 v{t+1}, 7, v{L}")
    b(f"v_xor_b32 v{t}, v{t}, v{t+1}")
    b(f"v_lshlrev_b32 v{t}, 4, v{t}")
    b(f"v_lshrrev_b32 v{t+1}, 3, v{L}")
    b(f"v_lshlrev_b32 v{t+1}, 10, v{t+1}")
    b(f"v_add_u32 v{vWa}, v{t}, v{t+1}")
    b(f"v_add_u32 v{vWb}, {8192 - 1024}, v{vWa}")
    b(f"s_lshl_b32 s{sT0}, s{pH}, 2")
    b(f"s_add_u32 s{sT0}, s{sT0}, s{sWm}")
    b(f"s_mul_i32 s{pOff}, s{sT0}, {14*16*1024}")
    b(f"s_lshl_b32 s{sT0}, s{pN}, 7")
    b(f"s_add_u32 s{pOff}, s{pOff}, s{sT0}")
    b(f"s_lshl_b32 s{pLw}, s{sWm}, 14")
    pKF = [48, 49, 50, 51, 52, 53, 54, 55, 77, 78, 79, 80, 81, 82]
    if ROT2:
        b(f"s_mul_i32 s{sT2}, s{pN}, 7")
        b(f"s_lshr_b32 s{sT2}, s{sT2}, 2")
        for i in range(14):
            b(f"s_add_u32 s{pKF[i]}, s{sT2}, {i}")
            b(f"s_cmp_ge_u32 s{pKF[i]}, 14")
            b(f"s_cselect_b32 s{sT3}, 14, 0")
            b(f"s_sub_u32 s{pKF[i]}, s{pKF[i]}, s{sT3}")
            b(f"s_lshl_b32 s{pKF[i]}, s{pKF[i]}, 10")
    else:
        for i in range(14): b(f"s_mov_b32 s{pKF[i]}, {i*1024}")
    def wdma(i):
        b(f"s_add_u32 m0, s{pLw}, {(i % 8)*2048}")
        b(f"s_lshl_b32 s{sT1}, s{pKF[i]}, 4")
        b(f"s_add_u32 s{sT1}, s{sT1}, s{pOff}")
        b(f"buffer_load_dwordx4 v{vWa}, {s(pC1,4)}, s{sT1} offen lds", f"f{i}")
        b(f"buffer_load_dwordx4 v{vWb}, {s(pC1,4)}, s{sT1} offen offset:1024 lds", f"f{i}")
    NPRE = int(opts.get('npre', 8))
    for i in range(min(NPRE, 8)): wdma(i)
    tr_pattern(b, vTp, 4, t)
    b(f"v_add_u32 v{vTp}, s{pLw}, v{vTp}")
    b(f"v_add_u32 v{vTp+1}, s{pLw}, v{vTp+1}")
    b(f"v_mov_b32 v22, v{vWa}\nv_mov_b32 v23, v{vWb}")
    vWa, vWb = 22, 23
    p2_common(b, 1)
    def wreads(i):
        b.wait('vm', f"f{i}")
        for aa in range(2):
            for rd in range(2):
                b(f"ds_read_b64_tr_b16 {a(8*i+4*aa+2*rd,2)}, v{vTp+aa} offset:{(i % 8)*2048 + rd*1024}", f"wr{i}")
    NRD = max(0, NPRE - 8)
    for i in range(NRD):
        wreads(i)
        b.wait('lg', f"wr{i}")
        wdma(8 + i)
    stamp(b, 24)
    b("s_barrier")
    stamp(b, 25)
    NSF, D = 14, 7
    def hreg(idx, k):
        sl = idx % D
        return v(24 + sl*8 + 4*k, 4) if sl < 5 else a(112 + (sl-5)*8 + 4*k, 4)
    def hload(idx):
        ps, i = divmod(idx, NSF)
        h0, h1 = (vH0g, vH1g) if ps == 0 else (vH0k, vH1k)
        b(f"s_add_u32 s{sT0}, s{pK0}, s{pKF[i]}")
        b(f"buffer_load_dwordx4 {hreg(idx,0)}, v{h0}, {s(pA,4)}, s{sT0} offen sc1")
        b(f"buffer_load_dwordx4 {hreg(idx,1)}, v{h1}, {s(pA,4)}, s{sT0} offen sc1")
    hload(0)
    rest = list(range(NPRE, 8))
    if rest: wdma(rest.pop(0))
    hload(1)
    if rest: wdma(rest.pop(0))
    for i in range(max(NRD, 0), max(NRD, 2)): wreads(i)
    hload(2)
    if rest: wdma(rest.pop(0))
    hload(3)
    for i in rest: wdma(i)
    DH1 = int(opts.get('dh1', 7))
    p2_common2(b, 1)
    for k in range(4, DH1): hload(k)
    stamp(b, 26)
    acc = 64
    def step(idx):
        ps, i = divmod(idx, NSF)
        mf = [f"v_mfma_f32_32x32x16_bf16 {v(acc+(aa*2+bb)*16,16)}, {a(8*i+4*aa,4)}, {hreg(idx,bb)}, {v(acc+(aa*2+bb)*16,16) if i else 0}" for aa in range(2) for bb in range(2)]
        b.wait('lg', f"wr{i}")
        b(mf[0])
        if 8 + i < 14 and i >= NRD: wdma(8 + i)
        b(mf[1])
        if i + 2 < 14 and i + 2 >= max(NRD, 2): wreads(i + 2)
        b(mf[2])
        n0 = len(b.ops)
        KP = int(opts.get('kp', 1))
        tg = [i + DH1] if i + DH1 < NSF else ([NSF + (i - (NSF - KP))] if i >= NSF - KP else [])
        for t_ in tg: hload(t_)
        ld = b.ops[n0:]; del b.ops[n0:]
        cut = [j for j, o in enumerate(ld) if o.kind == 'vmem']
        if cut:
            b.ext(ld[:cut[0] + 1]); b(mf[3]); b.ext(ld[cut[0] + 1:])
        else: b(mf[3])
        if i == NSF - 1 - DH1: b("s_barrier")
    for idx in range(NSF): step(idx)
    stamp(b, 27)
    n0 = len(b.ops); p2_rwrite(b, acc, vSg); rw = b.ops[n0:]; del b.ops[n0:]
    n0 = len(b.ops)
    for k in range(int(opts.get('kp', 1)), 7): hload(NSF + k)
    hl = chunks_of(b.ops[n0:]); del b.ops[n0:]
    body, tail = rw[:-1], rw[-1:]
    if int(opts.get('r1il', 1)):
        gap = max(1, len(body) // (len(hl) + 1)); outp = []
        for j, o in enumerate(body):
            outp.append(o)
            if (j + 1) % gap == 0 and hl: outp.extend(hl.pop(0))
        for c in hl: outp.extend(c)
        b.ext(outp + tail)
        b("s_barrier")
    else:
        b.ext(body + tail)
        b("s_barrier")
        for c in hl: b.ext(c)
    def step2(idx):
        i = idx - NSF
        mf = [f"v_mfma_f32_32x32x16_bf16 {v(acc+(aa*2+bb)*16,16)}, {a(8*i+4*aa,4)}, {hreg(idx,bb)}, {v(acc+(aa*2+bb)*16,16) if i else 0}" for aa in range(2) for bb in range(2)]
        b(mf[0]); b(mf[1]); b(mf[2])
        n0 = len(b.ops)
        if idx + D < 2 * NSF: hload(idx + D)
        ld = b.ops[n0:]; del b.ops[n0:]
        cut = [j for j, o in enumerate(ld) if o.kind == 'vmem']
        if cut:
            b.ext(ld[:cut[0] + 1]); b(mf[3]); b.ext(ld[cut[0] + 1:])
        else: b(mf[3])
    for idx in range(NSF, 2 * NSF):
        step2(idx)
        if idx == NSF + 3: b("s_barrier")
    stamp(b, 28)
    p2_rwrite(b, acc, vSk, 24 if int(opts.get('r2pk', 1)) else None)
    b("s_barrier")
    stamp(b, 29)
    return b

def p2_S():
    b = B(); L = vLane
    b("s_waitcnt vmcnt(0) lgkmcnt(0)")
    b("s_barrier")
    stamp(b, 7)
    b(f"s_cmp_lg_u32 s{sWm}, 0")
    b("s_cbranch_scc1 L_p2_noflag")
    b(f"s_mul_i32 s{sT0}, s{sR}, {FLG_STRIDE}")
    b(f"s_add_u32 s{sT0}, s{sT0}, {FLG_OFF}")
    b(f"s_lshl_b32 s{sT1}, s{sS}, 3")
    b(f"s_add_u32 s{sT1}, s{sT1}, s{sT0}")
    b(f"v_mov_b32 v6, s{sT1}")
    b(f"global_store_dwordx2 v6, {v(vNon,2)}, s[34:35] sc0 sc1", 'nocount')
    b(f"v_and_b32 v6, 15, v{L}")
    b("v_lshlrev_b32 v6, 3, v6")
    b(f"v_add_u32 v6, s{sT0}, v6")
    b(f"s_mov_b32 s{sSpin}, 0")
    NP = int(opts.get('npoll', 1))
    SL = int(opts.get('pollsl', 0))
    for k in range(NP):
        b(f"global_load_dwordx2 {v(24+2*k,2)}, v6, s[34:35] sc1", 'nocount')
        if SL: b(f"s_sleep {SL}")
    b("L_p2_poll:")
    for k in range(NP):
        b(f"s_waitcnt vmcnt({NP-1})", 'nocount')
        b(f"v_cmp_eq_u32 vcc, v{24+2*k}, v{vNon}")
        b(f"v_cmp_eq_u32 {s(sT2,2)}, v{24+2*k+1}, v{vNon+1}")
        b(f"s_and_b64 vcc, vcc, {s(sT2,2)}")
        b("s_cmp_eq_u64 vcc, -1")
        b("s_cbranch_scc1 L_p2_polled")
        b(f"global_load_dwordx2 {v(24+2*k,2)}, v6, s[34:35] sc1", 'nocount')
    b(f"s_add_u32 s{sSpin}, s{sSpin}, 1")
    b(f"s_cmp_gt_u32 s{sSpin}, 100000")
    b("s_cbranch_scc0 L_p2_poll")
    b("L_p2_polled:")
    b("L_p2_noflag:")
    b(f"v_readfirstlane_b32 s{sT0}, v{vNon}")
    for j in range(4):
        b(f"s_bfe_u32 s{pNib+j}, s{sT0}, {(4 << 16) | (4*j):#x}")
    p2_common(b, 0)
    stamp(b, 24)
    b("s_barrier")
    if int(opts.get('p2prio', 0)): b("s_setprio 0")
    stamp(b, 25)
    def hreg(j, k): return a(64 + 8*j + 4*k, 4)
    def hload(j, ps):
        h0, h1 = (vH0g, vH1g) if ps == 0 else (vH0k, vH1k)
        b(f"s_add_u32 s{sT0}, s{pK0}, s{pKS+j}")
        b(f"buffer_load_dwordx4 {hreg(j,0)}, v{h0}, {s(pA,4)}, s{sT0} offen sc1")
        b(f"buffer_load_dwordx4 {hreg(j,1)}, v{h1}, {s(pA,4)}, s{sT0} offen sc1")
    DS1 = int(opts.get('ds1', 4))
    for j in range(DS1): hload(j, 0)
    p2_common2(b, 0)
    vRE, vRO, vREh, vROh = 20, 21, 22, 23
    b("v_lshrrev_b32 v6, 4, v0")
    b("v_and_b32 v7, 15, v0")
    b("v_lshrrev_b32 v9, 6, v0")
    b("v_xor_b32 v9, v9, v7")
    b(f"v_lshlrev_b32 v{vRE}, 8, v6")
    b(f"v_lshl_add_u32 v{vRE}, v9, 4, v{vRE}")
    b(f"v_xor_b32 v{vRO}, 64, v{vRE}")
    b(f"v_add_u32 v{vREh}, {CST}, v{vRE}")
    b(f"v_add_u32 v{vROh}, {CST}, v{vRO}")
    stamp(b, 26)
    acc = 64
    def mf(j): return [f"v_mfma_f32_32x32x16_bf16 {v(acc+(aa*2+bb)*16,16)}, {a(8*j+4*aa,4)}, {hreg(j,bb)}, {v(acc+(aa*2+bb)*16,16) if j else 0}" for aa in range(2) for bb in range(2)]
    for j in range(8):
        for t_ in mf(j): b(t_)
        if j + DS1 < 8: hload(j + DS1, 0)
    stamp(b, 27)
    p2_rwrite(b, acc, vSg)
    b("s_barrier")
    for j in range(8): hload(j, 1)
    for j in range(8):
        for t_ in mf(j): b(t_)
    stamp(b, 28)
    b("s_barrier")
    def padd(d, x, y, pk):
        if pk: b(f"v_pk_add_f32 {v(d,2)}, {v(x,2)}, {v(y,2)}")
        else:
            b(f"v_add_f32 v{d}, v{x}, v{y}"); b(f"v_add_f32 v{d+1}, v{x+1}, v{y+1}")
    def reduce(p, dst, pk):
        T = 24
        for w in range(8):
            base = (vRE if p % 2 == 0 else vRO) if w < 4 else (vREh if p % 2 == 0 else vROh)
            b(f"ds_read_b128 {v(T+4*w,4)}, v{base} offset:{(w % 4)*16384 + p*4096}")
        for w in range(0, 8, 2):
            padd(T+4*w, T+4*w, T+4*w+4, pk); padd(T+4*w+2, T+4*w+2, T+4*w+6, pk)
        for w in (0, 4):
            padd(T+4*w, T+4*w, T+4*w+8, pk); padd(T+4*w+2, T+4*w+2, T+4*w+10, pk)
        padd(dst, T, T+16, pk); padd(dst+2, T+2, T+18, pk)
    b("v_lshlrev_b32 v6, 4, v0")
    b(f"s_lshl_b32 s{sT0}, s2, 14")
    b(f"s_add_u32 s{sT0}, s{sT0}, {XCH_OFF}")
    b(f"v_add_u32 v6, s{sT0}, v6")
    for p in range(4):
        d = 56 + 4 * (p % 2)
        reduce(p, d, False)
        for e in range(4): b(f"v_and_or_b32 v{d+e}, v{d+e}, -16, s{pNib+e}")
        if p: b(f"v_add_u32 v6, 4096, v6")
        b(f"global_store_dwordx4 v6, {v(d,4)}, s[34:35] sc0 sc1")
    b("s_barrier")
    p2_rwrite(b, acc, vSk)
    PR_, BI, XV = 64, 80, 96
    b("v_lshlrev_b32 v6, 4, v0")
    b(f"s_xor_b32 s{sT1}, s2, 1")
    b(f"s_lshl_b32 s{sT0}, s{sT1}, 14")
    b(f"s_add_u32 s{sT0}, s{sT0}, {XCH_OFF}")
    b(f"v_add_u32 v9, s{sT0}, v6")
    def prt(tok):
        for p in range(4):
            if p: b(f"v_add_u32 v7, {p*4096}, v9")
            b(f"global_load_dwordx4 {v(PR_+4*p,4)}, v{7 if p else 9}, s[34:35] sc1", tok)
    prt("prt")
    b("v_lshrrev_b32 v6, 4, v0")
    b("v_and_b32 v8, 15, v0")
    b(f"s_lshl_b32 s{sT0}, s{sR}, 7")
    b(f"s_lshl_b32 s{sT1}, s{pH}, 6")
    b(f"s_add_u32 s{sT0}, s{sT0}, s{sT1}")
    b(f"v_add_u32 v6, s{sT0}, v6")
    b(f"s_lshl_b32 s{sT1}, s{pN}, 7")
    b("v_lshlrev_b32 v2, 10, v6")
    b("v_lshl_add_u32 v2, v8, 3, v2")
    b(f"v_add_u32 v2, s{sT1}, v2")
    for p in range(4):
        if p: b(f"v_add_u32 v2, {16*1024}, v2")
        b(f"global_load_dwordx2 {v(XV+2*p,2)}, v2, s[4:5]")
    b("v_lshlrev_b32 v2, 3, v8")
    b(f"v_add_u32 v2, s{sT1}, v2")
    b(f"global_load_dwordx2 {v(XV+8,2)}, v2, s[20:21]")
    b("v_lshlrev_b32 v2, 3, v6")
    b(f"v_add_u32 v2, {G_OFF}, v2")
    for p in range(4):
        b(f"global_load_dword v{XV+10+p}, v2, s[34:35] offset:{p*128} sc1")
    b(f"s_lshl_b32 s{sT1}, s{pN}, 8")
    b("v_lshlrev_b32 v2, 11, v6")
    b("v_lshl_add_u32 v2, v8, 4, v2")
    b(f"v_add_u32 v2, s{sT1}, v2")
    DS_ = XV + 14
    b(f"v_lshlrev_b32 v{DS_}, 16, v{XV+8}\nv_and_b32 v{DS_+1}, 0xffff0000, v{XV+8}\nv_lshlrev_b32 v{DS_+2}, 16, v{XV+9}\nv_and_b32 v{DS_+3}, 0xffff0000, v{XV+9}")
    for p in range(4):
        xs = XV + 2*p; tp = BI + 4*p
        b(f"v_lshlrev_b32 v{tp}, 16, v{xs}\nv_and_b32 v{tp+1}, 0xffff0000, v{xs}\nv_lshlrev_b32 v{tp+2}, 16, v{xs+1}\nv_and_b32 v{tp+3}, 0xffff0000, v{xs+1}")
        for e in range(4): b(f"v_mul_f32 v{tp+e}, v{tp+e}, v{DS_+e}")
        b(f"v_cvt_pk_bf16_f32 v56, v{tp}, v{tp+1}")
        b(f"v_cvt_pk_bf16_f32 v57, v{tp+2}, v{tp+3}")
        b(f"v_lshlrev_b32 v{tp}, 16, v56\nv_and_b32 v{tp+1}, 0xffff0000, v56\nv_lshlrev_b32 v{tp+2}, 16, v57\nv_and_b32 v{tp+3}, 0xffff0000, v57")
        for e in range(4): b(f"v_mul_f32 v{tp+e}, v{XV+10+p}, v{tp+e}")
    b.wait('vm', "prt")
    b(f"s_mov_b32 s{sSpin}, 0")
    if int(opts.get('prtpoll', 0)):
        b("L_p2_q:")
        b("v_mov_b32 v58, 0")
        for u in range(12, 16):
            b(f"v_xor_b32 v59, s{pNib + (u % 4)}, v{PR_+u}")
            b(f"v_and_or_b32 v58, v59, 15, v58")
        b("v_cmp_eq_u32 vcc, 0, v58")
        b("s_cmp_eq_u64 vcc, -1")
        b("s_cbranch_scc1 L_p2_qok")
        b(f"s_add_u32 s{sSpin}, s{sSpin}, 1")
        b(f"s_cmp_gt_u32 s{sSpin}, 100000")
        b("s_cbranch_scc1 L_p2_qok")
        b(f"v_add_u32 v7, {3*4096}, v9")
        b(f"global_load_dwordx4 {v(PR_+12,4)}, v7, s[34:35] sc1", 'nocount')
        b("s_waitcnt vmcnt(0)", 'nocount')
        b("s_branch L_p2_q")
        b("L_p2_qok:")
    b("L_p2_chk:")
    b("v_mov_b32 v58, 0")
    for u in range(16):
        b(f"v_xor_b32 v{PR_+u}, s{pNib + (u % 4)}, v{PR_+u}")
        b(f"v_and_or_b32 v58, v{PR_+u}, 15, v58")
    b("v_cmp_eq_u32 vcc, 0, v58")
    b("s_cmp_eq_u64 vcc, -1")
    b("s_cbranch_scc1 L_p2_ok")
    b(f"s_add_u32 s{sSpin}, s{sSpin}, 1")
    b(f"s_cmp_gt_u32 s{sSpin}, 100000")
    b("s_cbranch_scc1 L_p2_ok")
    prt('nocount')
    b("s_waitcnt vmcnt(0)", 'nocount')
    b("s_branch L_p2_chk")
    b("L_p2_ok:")
    for u in range(16): b(f"v_add_f32 v{BI+u}, v{BI+u}, v{PR_+u}")
    stamp(b, 29)
    b("s_barrier")
    for p in range(4):
        d = 56 + 4 * (p % 2)
        reduce(p, d, True)
        b(f"v_pk_add_f32 {v(d,2)}, {v(d,2)}, {v(BI+4*p,2)}")
        b(f"v_pk_add_f32 {v(d+2,2)}, {v(d+2,2)}, {v(BI+4*p+2,2)}")
        if p: b(f"v_add_u32 v2, {16*2048}, v2")
        b(f"global_store_dwordx4 v2, {v(d,4)}, s[30:31] {opts.get('outf', 'sc0+sc1').replace('+', ' ')}")
    stamp(b, 30)
    return b

def gen_k1():
    global STV
    STV = 15
    pro = k1_head()
    S = k1_S()
    S.ext(p2_S())
    stamp_end(S, sWm, "s[34:35]", 0x2000000, vLane, 3, 14)
    S("s_endpgm")
    Fm = B(); Fm("L_k1_F:")
    Fm(f"s_cmp_ge_u32 s{sS}, 14")
    Fm("s_cbranch_scc1 L_k1_Fn")
    f1 = k1_F(True)
    f1("s_branch L_p2_F")
    Fn = B(); Fn("L_k1_Fn:")
    f2 = k1_F(False)
    p2f = p2_F()
    if STAMP: p2f(f"s_add_u32 s{sWave}, s{sWm}, 4")
    stamp_end(p2f, sWave, "s[34:35]", 0x2000000, vLane, 3, 14)
    p2f("L_k1_end:")
    p2f("s_endpgm")
    def path(prefix, body, label=None):
        allops = insert_waits(copy.deepcopy(prefix) + body)
        if label:
            idx = [i for i, o in enumerate(allops) if o.text == label][0]
            allops = allops[idx:]
        return insert_hazard_nops(allops)
    out = path([], pro.ops + S.ops)
    out += path(pro.ops, Fm.ops + f1.ops, "L_k1_F:")
    out += path(pro.ops + Fm.ops, Fn.ops + f2.ops, "L_k1_Fn:")
    out += path([], p2f.ops)
    return out

def gen_k2():
    global STV
    STV = 9
    b = B()
    D = 15
    DW = int(opts.get('k2dw', 5))
    sWv, sH, sMt, sN = 40, 41, 42, 43
    sA, sCR, sCI, sW2 = 44, 48, 76, 80
    t0, t1, t2 = 52, 53, 54
    sS0, sF0 = 56, 57
    sLw = 58
    sCoff, sWoff2 = 59, 62
    vH0, vH1 = 4, 5
    vCe, vCo, vWa, vWb = 2, 3, 60, 61
    vPp, vTp = 48, 52
    accS, accF, vBuf = 64, 128, 192
    vNon2 = 14
    vTau = 8
    vG1, vG2 = 10, 12
    PITCH = 256
    LRED = 0
    LSTG = 65536
    code_prefetch(b, K2, "L_code_end", 2, "k2", 6, 63)
    dbgt_begin(b)
    stamp_begin(b)
    b("s_load_dwordx2 s[18:19], s[0:1], 112")
    b("s_load_dwordx2 s[4:5], s[0:1], 0")
    b("s_load_dwordx4 s[12:15], s[0:1], 40")
    b("s_load_dwordx2 s[6:7], s[0:1], 64")
    b("s_load_dwordx2 s[16:17], s[0:1], 88")
    b("s_load_dwordx2 s[8:9], s[0:1], 104")
    b("s_load_dwordx2 s[10:11], s[0:1], 120")
    b("s_cmp_ge_u32 s2, 256")
    b("s_cbranch_scc1 L_k2_end")
    b("v_lshrrev_b32 v6, 6, v0")
    b("v_and_b32 v1, 63, v0")
    b(f"v_readfirstlane_b32 s{sWv}, v6")
    b(f"s_and_b32 s{sH}, s2, 1")
    b(f"s_bfe_u32 s{t0}, s2, 0x20001")
    b(f"s_lshr_b32 s{t1}, s2, 3")
    b(f"s_and_b32 s{sMt}, s{t1}, 3")
    b(f"s_lshl_b32 s{t0}, s{t0}, 2")
    b(f"s_add_u32 s{sMt}, s{sMt}, s{t0}")
    b(f"s_lshr_b32 s{sN}, s{t1}, 2")
    b("v_and_b32 v6, 7, v1")
    b("v_lshrrev_b32 v7, 4, v1")
    b("v_xor_b32 v6, v6, v7")
    b("v_lshlrev_b32 v6, 4, v6")
    b("v_lshrrev_b32 v7, 3, v1")
    b("v_lshlrev_b32 v7, 10, v7")
    b(f"v_add_u32 v{vCe}, v6, v7")
    b(f"v_xor_b32 v{vCo}, 64, v{vCe}")
    b("v_bfe_u32 v6, v1, 4, 1")
    b("v_lshlrev_b32 v6, 2, v6")
    b("v_and_b32 v29, 7, v1")
    b("v_xor_b32 v6, v6, v29")
    b("v_lshlrev_b32 v6, 4, v6")
    b(f"v_add_u32 v{vWa}, v6, v7")
    b(f"v_add_u32 v{vWb}, {8192 - 1024}, v{vWa}")
    b(f"s_lshl_b32 s{sCoff}, s{sN}, 16")
    b(f"s_lshl_b32 s{t0}, s{sH}, 9")
    b(f"s_add_u32 s{sCoff}, s{sCoff}, s{t0}")
    b(f"s_lshl_b32 s{t0}, s{sWv}, 7")
    b(f"s_add_u32 s{sCoff}, s{sCoff}, s{t0}")
    b(f"s_lshl_b32 s{t0}, s{sH}, 2")
    b(f"s_add_u32 s{t0}, s{t0}, s{sWv}")
    b(f"s_mul_i32 s{sWoff2}, s{t0}, {14*16*1024}")
    b(f"s_lshl_b32 s{t0}, s{sN}, 7")
    b(f"s_add_u32 s{sWoff2}, s{sWoff2}, s{t0}")
    b(f"s_mul_i32 s{sLw}, s{sWv}, 24576")
    b(f"s_add_u32 s{sLw}, s{sLw}, {LSTG}")
    b(f"s_xor_b32 s{t0}, s{sH}, 1")
    b(f"s_lshl_b32 s{t0}, s{t0}, 1")
    b(f"s_lshl_b32 s{t1}, s{sMt}, 2")
    b(f"s_add_u32 s{t0}, s{t0}, s{t1}")
    b(f"s_mul_i32 s{t0}, s{t0}, {176*1024}")
    b("v_lshlrev_b32 v6, 4, v1")
    b(f"v_add_u32 v{vH0}, s{t0}, v6")
    b(f"v_add_u32 v{vH1}, {176*1024}, v{vH0}")
    b(f"s_lshl_b32 s{sS0}, s{sH}, 2")
    b(f"s_add_u32 s{sS0}, s{sS0}, s{sWv}")
    b(f"s_lshl_b32 s{sS0}, s{sS0}, 13")
    b(f"s_lshl_b32 s{sF0}, s{sH}, 2")
    b(f"s_add_u32 s{sF0}, s{sF0}, s{sWv}")
    b(f"s_mul_i32 s{sF0}, s{sF0}, {14*1024}")
    b(f"s_add_u32 s{sF0}, s{sF0}, {64*1024}")
    b("s_waitcnt lgkmcnt(0)")
    srd(b, sA, 10, WS_USED)
    srd(b, sCR, 12, 512*1024)
    srd(b, sCI, 14, 512*1024)
    srd(b, sW2, 16, 1792*1024)
    steps = [('S', i) for i in range(8)] + [('F', i) for i in range(14)]
    NS = len(steps)
    seq = [(1, st) for st in range(NS)] + [(2, st) for st in range(NS)]
    def hreg(idx, k):
        sl = idx % D
        if sl < 8: return v(vBuf + sl * 8 + k * 4, 4)
        return a(200 + (sl - 8) * 8 + k * 4, 4)
    def dma_c(m):
        for aa in range(8):
            b(f"s_add_u32 m0, s{sLw}, {m*8192 + aa*1024}")
            b(f"s_add_u32 s{t2}, s{sCoff}, {aa*8192}")
            b(f"buffer_load_dwordx4 v{vCe if aa % 2 == 0 else vCo}, {s(sCR if m == 0 else sCI,4)}, s{t2} offen lds", f"c{m}")
    def wslot(i):
        if i < 4: return 16384 + i * 2048
        if i < 12: return (i - 4) * 2048
        return 16384 + (i - 12) * 2048
    def dma_f(i):
        b(f"s_add_u32 m0, s{sLw}, {wslot(i)}")
        b(f"s_add_u32 s{t2}, s{sWoff2}, {i*16*1024}")
        b(f"buffer_load_dwordx4 v{vWa}, {s(sW2,4)}, s{t2} offen lds", f"f{i}")
        b(f"buffer_load_dwordx4 v{vWb}, {s(sW2,4)}, s{t2} offen offset:1024 lds", f"f{i}")
    def hloads(idx):
        ps, st = seq[idx]
        kind, i = steps[st]
        sb = sS0 if kind == 'S' else sF0
        if ps == 2 and st == 0:
            b(f"s_lshl_b32 s{t0}, s{sH}, 2")
            b(f"s_sub_u32 s{t0}, s{t0}, 2")
            b(f"s_mul_i32 s{t0}, s{t0}, {176*1024}")
            b(f"v_add_u32 v{vH0}, s{t0}, v{vH0}")
            b(f"v_add_u32 v{vH1}, s{t0}, v{vH1}")
        b(f"s_add_u32 s{t1}, s{sb}, {i*1024}")
        b(f"buffer_load_dwordx4 {hreg(idx,0)}, v{vH0}, {s(sA,4)}, s{t1} offen")
        b(f"buffer_load_dwordx4 {hreg(idx,1)}, v{vH1}, {s(sA,4)}, s{t1} offen")
    def wreads_s():
        for j in range(8):
            m = (j >> 1) & 1; ksp = 2 * (j >> 2) + (j & 1)
            if j == 0: b.wait('vm', "c0")
            if j == 2: b.wait('vm', "c1")
            for aa in range(2):
                b(f"ds_read_b128 {a(8*j+4*aa,4)}, v{vPp+ksp} offset:{m*8192 + aa*4096}", f"wr{j}")
    def wreads_f(i):
        st = 8 + i
        b.wait('vm', f"f{i}")
        for aa in range(2):
            for rd in range(2):
                b(f"ds_read_b64_tr_b16 {a(8*st+4*aa+2*rd,2)}, v{vTp+aa} offset:{wslot(i) + rd*8*128}", f"wr{st}")
    if STAMP >= 2: stamp(b, 24)
    dma_c(0)
    hloads(0); hloads(1)
    dma_c(1)
    b("v_and_b32 v6, 31, v1")
    b("v_lshlrev_b32 v6, 7, v6")
    b(f"v_add_u32 v6, s{sLw}, v6")
    b("v_lshrrev_b32 v7, 5, v1")
    b("v_bfe_u32 v29, v1, 1, 3")
    b("v_xor_b32 v29, v7, v29")
    for k in range(4):
        b(f"v_xor_b32 v7, {2*k}, v29")
        b(f"v_lshl_add_u32 v{vPp+k}, v7, 4, v6")
    tr_pattern(b, vTp, 4, 54)
    b(f"v_add_u32 v{vTp}, s{sLw}, v{vTp}")
    b(f"v_add_u32 v{vTp+1}, s{sLw}, v{vTp+1}")
    b("v_bfe_u32 v6, v1, 3, 2")
    b("v_and_b32 v7, 7, v1")
    b(f"v_lshl_add_u32 v{vTau}, v7, 2, v6")
    b(f"s_xor_b32 s{t0}, s{sH}, 1")
    b(f"s_lshl_b32 s{t0}, s{t0}, 6")
    b(f"s_lshl_b32 s{t1}, s{sMt}, 7")
    b(f"s_add_u32 s{t0}, s{t0}, s{t1}")
    b(f"v_add_u32 v6, s{t0}, v{vTau}")
    b("v_lshlrev_b32 v6, 3, v6")
    b(f"v_add_u32 v6, {G_OFF}, v6")
    b(f"global_load_dwordx2 v[10:11], v6, s[10:11]")
    b(f"global_load_dwordx2 v[12:13], v6, s[10:11] offset:256")
    b(f"s_lshl_b32 s{t0}, s{sH}, 7")
    b(f"s_sub_u32 s{t0}, s{t0}, 64")
    b(f"s_lshl_b32 s{t0}, s{t0}, 3")
    b(f"v_add_u32 v6, s{t0}, v6")
    b(f"global_load_dwordx2 v[16:17], v6, s[10:11]")
    b(f"global_load_dwordx2 v[18:19], v6, s[10:11] offset:256")
    b(f"v_mov_b32 v6, {NONCE_OFF}")
    b(f"global_load_dwordx2 {v(vNon2,2)}, v6, s[10:11]")
    if STAMP >= 2: stamp(b, 25)
    DH = int(opts.get('k2dh', 5))
    for idx in range(2, DH): hloads(idx)
    if STAMP >= 2: stamp(b, 26)
    vWr, vRd = 20, 21
    vWrq = 56
    b(f"s_lshl_b32 s{t0}, s{sWv}, 14")
    b(f"v_lshlrev_b32 v29, 8, v{vTau}")
    b(f"v_add_u32 v29, s{t0}, v29")
    b("v_lshrrev_b32 v6, 5, v1")
    b("v_and_b32 v7, 7, v1")
    b("v_xor_b32 v6, v6, v7")
    for q in range(4):
        b(f"v_xor_b32 v7, {2*q}, v6")
        b(f"v_lshl_add_u32 v{vWrq+q}, v7, 4, v29")
    b("v_lshrrev_b32 v22, 4, v0")
    b("v_and_b32 v23, 15, v0")
    b("v_lshrrev_b32 v6, 6, v0")
    b("v_xor_b32 v6, v6, v23")
    b(f"v_lshlrev_b32 v{vRd}, 8, v22")
    b(f"v_lshl_add_u32 v{vRd}, v6, 4, v{vRd}")
    b(f"v_xor_b32 v{vWr}, 64, v{vRd}")
    vXch = 24
    b(f"v_lshlrev_b32 v{vXch}, 4, v0")
    b(f"s_lshl_b32 s{t0}, s2, 14")
    b(f"s_add_u32 s{t0}, s{t0}, {XCH_OFF}")
    b(f"v_add_u32 v25, s{t0}, v{vXch}")
    b(f"s_xor_b32 s{t1}, s2, 1")
    b(f"s_lshl_b32 s{t0}, s{t1}, 14")
    b(f"s_add_u32 s{t0}, s{t0}, {XCH_OFF}")
    b(f"v_add_u32 v26, s{t0}, v{vXch}")
    if STAMP >= 2: stamp(b, 27)
    wreads_s()
    if STAMP >= 2: stamp(b, 28)

    def mfmas(idx):
        ps, st = seq[idx]
        kind, i = steps[st]
        acc = accS if kind == 'S' else accF
        out = []
        for aa in range(2):
            for bb in range(2):
                dreg = v(acc + (aa*2 + bb) * 16, 16)
                c = dreg if i else "0"
                out.append(f"v_mfma_f32_32x32x16_bf16 {dreg}, {a(8*st+4*aa,4)}, {hreg(idx,bb)}, {c}")
        return out

    def reduce_write(g0, g1):
        for aa in range(2):
            for bb in range(2):
                g = g0 if bb == 0 else g1
                S = accS + (aa*2+bb)*16; Fq = accF + (aa*2+bb)*16
                for p in range(8):
                    b(f"v_pk_mul_f32 {v(S+2*p,2)}, {v(S+2*p,2)}, {v(g,2)} op_sel_hi:[1,0]")
                for p in range(8):
                    b(f"v_pk_fma_f32 {v(S+2*p,2)}, {v(Fq+2*p,2)}, {v(g,2)}, {v(S+2*p,2)} op_sel:[0,1,0] op_sel_hi:[1,1,1]")
                for q in range(4):
                    b(f"ds_write_b128 v{vWrq+q}, {v(S+4*q,4)} offset:{LRED + bb*32*PITCH + aa*128}", "red")
        b.wait('lg', "red")
        b("s_barrier")
    def reduce_read(dst, gran=None):
        for p in range(4):
            for w in range(4):
                b(f"ds_read_b128 {v(dst+16*p+4*w,4)}, v{vRd if p % 2 == 0 else vWr} offset:{LRED + w*64*PITCH + p*16*PITCH}")
        for p in range(4):
            r = dst + 16*p
            b(f"v_pk_add_f32 {v(r,2)}, {v(r,2)}, {v(r+4,2)}")
            b(f"v_pk_add_f32 {v(r+2,2)}, {v(r+2,2)}, {v(r+6,2)}")
            b(f"v_pk_add_f32 {v(r+8,2)}, {v(r+8,2)}, {v(r+12,2)}")
            b(f"v_pk_add_f32 {v(r+10,2)}, {v(r+10,2)}, {v(r+14,2)}")
            if gran is None:
                b(f"v_pk_add_f32 {v(r,2)}, {v(r,2)}, {v(r+8,2)}")
                b(f"v_pk_add_f32 {v(r+2,2)}, {v(r+2,2)}, {v(r+10,2)}")
            else:
                for e in range(4):
                    u = 4 * p + e
                    b(f"v_add_f32 v{gran + 4*(u//3) + u%3}, v{r+e}, v{r+8+e}")

    total = len(seq)
    sNib = 84
    XS_ = 32
    PR_ = vBuf
    def r1c():
        f = F()
        for p in range(4):
            for w in range(4):
                f(f"ds_read_b128 {v(accF+16*p+4*w,4)}, v{vRd if p % 2 == 0 else vWr} offset:{LRED + w*64*PITCH + p*16*PITCH}")
        for p in range(4):
            r = accF + 16*p
            for e in range(4): f(f"v_add_f32 v{r+e}, v{r+e}, v{r+4+e}")
            for e in range(4): f(f"v_add_f32 v{r+8+e}, v{r+8+e}, v{r+12+e}")
            for e in range(4): f(f"v_add_f32 v{r+e}, v{r+e}, v{r+8+e}")
            for e in range(4): f(f"v_and_or_b32 v{XS_+4*p+e}, v{r+e}, -16, s{sNib+e}")
        return f
    def step_ops(idx):
        ps, st = seq[idx]
        kind, i = steps[st]
        n00 = len(b.ops)
        mf = mfmas(idx)
        if ps == 1: b.wait('lg', f"wr{st}")
        b(mf[0])
        if ps == 1:
            fi = st - 2
            if st == 6: b.wait('lg', "wr7")
            if 0 <= fi < 14: dma_f(fi)
        b(mf[1])
        if ps == 1 and 8 <= st + 1 < NS:
            wreads_f(st + 1 - 8)
        b(mf[2])
        n0 = len(b.ops)
        tg = []
        if ps == 1:
            if st + DH < NS: tg = [st + DH]
            else:
                j = st + DH - NS
                tg = [NS + 2 * j, NS + 2 * j + 1]
        elif idx + D < total: tg = [idx + D]
        for t_ in tg: hloads(t_)
        ld = b.ops[n0:]; del b.ops[n0:]
        cut = [j for j, o in enumerate(ld) if o.kind == 'vmem']
        if cut:
            b.ext(ld[:cut[0] + 1]); b(mf[3]); b.ext(ld[cut[0] + 1:])
        else:
            b(mf[3])
        ops = b.ops[n00:]; del b.ops[n00:]
        return ops
    for idx in range(NS):
        b.ext(step_ops(idx))
        st = idx
        if st == 2:
            b(f"v_readfirstlane_b32 s{t0}, v{vNon2}")
            for j in range(4):
                b(f"s_bfe_u32 s{sNib+j}, s{t0}, {(4 << 16) | (4*j):#x}")
        if STAMP >= 2 and st in (0, 3, 7, 11, 15, 19): stamp(b, 8 + (0, 3, 7, 11, 15, 19).index(st))
    stamp(b, 1)
    n0 = len(b.ops); reduce_write(vG1, vG2); rw = b.ops[n0:]; del b.ops[n0:]
    K0 = 2 * DH
    n0 = len(b.ops)
    for k in range(K0, 15): hloads(NS + k)
    hl = chunks_of(b.ops[n0:]); del b.ops[n0:]
    body, tail = rw[:-2], rw[-2:]
    gap = max(1, len(body) // (len(hl) + 1))
    outp = []
    for j, o in enumerate(body):
        outp.append(o)
        if (j + 1) % gap == 0 and hl: outp.extend(hl.pop(0))
    for c in hl: outp.extend(c)
    b.ext(outp + tail)
    stamp(b, 2)
    p2a = []
    for st in range(7): p2a += step_ops(NS + st)
    b.ext(merge(p2a, r1c().ops, per=4))
    PL = int(opts.get('k2pl', 16))
    BI = vBuf + 16
    def bias_fill():
        f = F()
        f("v_lshlrev_b32 v4, 16, v40\nv_and_b32 v5, 0xffff0000, v40\nv_lshlrev_b32 v6, 16, v41\nv_and_b32 v7, 0xffff0000, v41")
        for p in range(4):
            xs = 32 + 2*p; tp = BI + 4*p
            f(f"v_lshlrev_b32 v{tp}, 16, v{xs}\nv_and_b32 v{tp+1}, 0xffff0000, v{xs}\nv_lshlrev_b32 v{tp+2}, 16, v{xs+1}\nv_and_b32 v{tp+3}, 0xffff0000, v{xs+1}")
            for e in range(4): f(f"v_mul_f32 v{tp+e}, v{tp+e}, v{4+e}")
            f(f"v_cvt_pk_bf16_f32 v46, v{tp}, v{tp+1}")
            f(f"v_cvt_pk_bf16_f32 v47, v{tp+2}, v{tp+3}")
            f(f"v_lshlrev_b32 v{tp}, 16, v46\nv_and_b32 v{tp+1}, 0xffff0000, v46\nv_lshlrev_b32 v{tp+2}, 16, v47\nv_and_b32 v{tp+3}, 0xffff0000, v47")
            for e in range(4): f(f"v_mul_f32 v{tp+e}, v{42+p}, v{tp+e}")
        return f
    tail_steps = []
    for st in range(7, NS):
        idx = NS + st
        ops = step_ops(idx)
        if 7 <= st <= 10:
            p = st - 7
            pre = B()
            if p: pre(f"v_add_u32 v29, {p*4096}, v25")
            pre(f"global_store_dwordx4 v{29 if p else 25}, {v(XS_+4*p,4)}, s[10:11] sc0 sc1")
            ops = ops[:1] + pre.ops + ops[1:]
        if st >= 17:
            tail_steps += ops
            if st == NS - 1: b.ext(merge(tail_steps, bias_fill().ops, per=4))
            continue
        b.ext(ops)
        if STAMP >= 2 and st in (7, 11, 15, 19): stamp(b, 16 + (0, 3, 7, 11, 15, 19).index(st))
        if st == 11:
            b("s_barrier")
        if st == 11:
            b(f"s_lshl_b32 s{t0}, s{sMt}, 7")
            b(f"s_lshl_b32 s{t1}, s{sH}, 6")
            b(f"s_add_u32 s{t0}, s{t0}, s{t1}")
            b(f"v_add_u32 v30, s{t0}, v22")
            b(f"s_lshl_b32 s{t1}, s{sN}, 7")
            b("v_lshlrev_b32 v31, 10, v30")
            b("v_lshl_add_u32 v31, v23, 3, v31")
            b(f"v_add_u32 v31, s{t1}, v31")
            for p in range(4):
                if p: b(f"v_add_u32 v31, {16*1024}, v31")
                b(f"global_load_dwordx2 {v(32+2*p,2)}, v31, s[4:5]")
            b("v_lshlrev_b32 v31, 3, v23")
            b(f"v_add_u32 v31, s{t1}, v31")
            b(f"global_load_dwordx2 v[40:41], v31, s[6:7]")
            b("v_lshlrev_b32 v31, 3, v30")
            b(f"v_add_u32 v31, {G_OFF}, v31")
            for p in range(4):
                b(f"global_load_dword v{42+p}, v31, s[10:11] offset:{p*128}")
            b(f"s_lshl_b32 s{t1}, s{sN}, 8")
            b("v_lshlrev_b32 v2, 11, v30")
            b("v_lshl_add_u32 v2, v23, 4, v2")
            b(f"v_add_u32 v2, s{t1}, v2")
        if st == PL:
            for p in range(4):
                if p: b(f"v_add_u32 v29, {p*4096}, v26")
                b(f"global_load_dwordx4 {v(PR_+4*p,4)}, v{29 if p else 26}, s[10:11] sc1", "prt")
    stamp(b, 3)
    b.wait('vm', "prt")
    b(f"s_mov_b32 s{t0}, 0")
    b("L_k2_chk:")
    b("v_mov_b32 v46, 0")
    for u in range(16):
        b(f"v_xor_b32 v{PR_+u}, s{sNib + (u % 4)}, v{PR_+u}")
        b(f"v_and_or_b32 v46, v{PR_+u}, 15, v46")
    b("v_cmp_eq_u32 vcc, 0, v46")
    b("s_cmp_eq_u64 vcc, -1")
    b("s_cbranch_scc1 L_k2_ok")
    b(f"s_add_u32 s{t0}, s{t0}, 1")
    b(f"s_cmp_gt_u32 s{t0}, 40000")
    b("s_cbranch_scc1 L_k2_ok")
    for p in range(4):
        if p: b(f"v_add_u32 v29, {p*4096}, v26")
        b(f"global_load_dwordx4 {v(PR_+4*p,4)}, v{29 if p else 26}, s[10:11] sc1", 'nocount')
    b("s_waitcnt vmcnt(0)", 'nocount')
    b("s_branch L_k2_chk")
    b("L_k2_ok:")
    if STAMP >= 2: stamp(b, 30)
    n0 = len(b.ops)
    reduce_write(16, 18)
    rw = b.ops[n0:]; del b.ops[n0:]
    fl = F()
    for u in range(0, 16, 2): fl(f"v_pk_add_f32 {v(BI+u,2)}, {v(BI+u,2)}, {v(PR_+u,2)}")
    b.ext(merge(rw, fl.ops, after=lambda o: o.mn.startswith('ds_write'), per=1))
    if STAMP >= 2: stamp(b, 31)
    reduce_read(accF)
    if STAMP >= 2: stamp(b, 32)
    OUTF = opts.get('outf', '').replace('+', ' ')
    for p in range(4):
        r = accF + 16*p
        b(f"v_pk_add_f32 {v(r,2)}, {v(r,2)}, {v(BI+4*p,2)}")
        b(f"v_pk_add_f32 {v(r+2,2)}, {v(r+2,2)}, {v(BI+4*p+2,2)}")
        if p: b(f"v_add_u32 v2, {16*2048}, v2")
        b(f"global_store_dwordx4 v2, {v(r,4)}, s[8:9] {OUTF}")
    stamp(b, 4)
    dbgt_end(b, "s[18:19]", 32, True)
    stamp_end(b, sWv, "s[10:11]", 0x2100000, 1)
    b("L_k2_end:")
    b("s_endpgm")
    return finalize(b.ops)

KN = NAME + "_kernel"
def header():
    ref = open('cdna_kernels/%s.s.ref' % NAME).read().split('\n')
    hdr = []
    for line in ref:
        if not line.startswith(';'): break
        if '@launch' in line: continue
        hdr.append(line)
    hdr.append("; @launch grid=(256,1,1) block=(512,1,1) lds=163840")
    return '\n'.join(hdr)

def kd(name, nv, acc_off, nsg):
    return f""".amdhsa_kernel {name}
  .amdhsa_next_free_vgpr {nv}
  .amdhsa_next_free_sgpr {nsg}
  .amdhsa_accum_offset {acc_off}
  .amdhsa_group_segment_fixed_size 0
  .amdhsa_kernarg_size 128
  .amdhsa_user_sgpr_count 2
  .amdhsa_user_sgpr_kernarg_segment_ptr 1
  .amdhsa_system_sgpr_workgroup_id_x 1
  .amdhsa_float_denorm_mode_32 3
.end_amdhsa_kernel"""

def main():
    k1 = gen_k1()
    out = [header(), '.amdgcn_target "amdgcn-amd-amdhsa--gfx950"', '.text']
    out += [f".globl {KN}", ".p2align 8", f".type {KN},@function", f"{KN}:", render(k1)]
    out += ["L_code_end:", "  s_endpgm"]
    out += ['.section .rodata,"a"', '.p2align 6', kd(KN, 256, 128, 102)]
    print('\n'.join(out))

main()
```

```python
import sys, copy
sys.path.insert(0, 'dev')
from ir import *

NAME = "gated_mix__ssm_conv_s5__dense_activation_silu__prompt"
K1 = NAME + "_kernel"
K2 = "gm_k2_kernel"

opts = dict(a.split('=') for a in sys.argv[1:] if '=' in a)
HF_OFF = 0
HF_SIZE = 64 * 176 * 1024
W2F_OFF = HF_SIZE
W2F_SIZE = 16 * 176 * 1024
G_OFF = W2F_OFF + W2F_SIZE
E_OFF = G_OFF + 2048 * 8
E_SIZE = 16 * 16 * 512
NONCE_OFF = E_OFF + E_SIZE
FLG_OFF = NONCE_OFF + 256
FLG_STRIDE = int(opts.get('flgs', 1024)) if 'opts' in globals() else 128
XCH_OFF = FLG_OFF + 0x40000
WS_USED = XCH_OFF + 256 * 16384

LOG2E = 0x3fb8aa3b
INV2PI = 0x3e22f983

RB, XS, WR = 0, 65536, 114688
SC = 32768
IMG = 36864

STAMP = int(opts.get('stamp', 0))
STF = "sc0 sc1"

def v(n, k=1): return f"v{n}" if k == 1 else f"v[{n}:{n+k-1}]"
def a(n, k=1): return f"a{n}" if k == 1 else f"a[{n}:{n+k-1}]"
def s(n, k=1): return f"s{n}" if k == 1 else f"s[{n}:{n+k-1}]"


STV = 15
def reg_of_t(t): return (t >> 2) + 4 * (t & 3)
def srd(b, dst, ptr, size):
    b(f"s_mov_b32 s{dst}, s{ptr}")
    b(f"s_mov_b32 s{dst+1}, s{ptr+1}")
    b(f"s_mov_b32 s{dst+2}, {size}")
    b(f"s_mov_b32 s{dst+3}, 0x20000")


def cexp(b, dst, n_src, va, vang, t0):
    b(f"v_mul_f32 v{t0}, {n_src}, v{va}")
    b(f"v_mul_f32 v{t0+1}, {n_src}, v{vang}")
    b(f"v_exp_f32 v{t0}, v{t0}")
    b(f"v_rndne_f32 v{t0+2}, v{t0+1}")
    b(f"v_sub_f32 v{t0+1}, v{t0+1}, v{t0+2}")
    b(f"v_cos_f32 v{dst}, v{t0+1}")
    b(f"v_sin_f32 v{dst+1}, v{t0+1}")
    b(f"v_mul_f32 v{dst}, v{t0}, v{dst}")
    b(f"v_mul_f32 v{dst+1}, v{t0}, v{dst+1}")


def cfma(b, d, l, h, u, tmp):
    b(f"v_pk_fma_f32 {v(tmp,2)}, {v(l,2)}, {v(h,2)}, {v(u,2)} op_sel:[0,0,0] op_sel_hi:[0,1,1]")
    b(f"v_pk_fma_f32 {v(d,2)}, {v(l,2)}, {v(h,2)}, {v(tmp,2)} op_sel:[1,1,0] op_sel_hi:[1,0,1] neg_lo:[1,0,0]")


def cfma_s(b, d, l, h, u, tmp):
    b(f"v_fma_f32 v{tmp}, v{l}, v{h}, v{u}")
    b(f"v_fma_f32 v{tmp+1}, v{l}, v{h+1}, v{u+1}")
    b(f"v_fma_f32 v{d}, -v{l+1}, v{h+1}, v{tmp}")
    b(f"v_fma_f32 v{d+1}, v{l+1}, v{h}, v{tmp+1}")


def stamp(b, idx):
    if not STAMP: return
    g = B()
    g("s_memtime s[100:101]")
    g("s_waitcnt lgkmcnt(0)")
    g(f"v_writelane_b32 v{STV}, s100, {idx}")
    b.ext(g)


def stamp_begin(b):
    if not STAMP: return
    b(f"v_mov_b32 v{STV}, 0")
    b("s_memrealtime s[100:101]")
    b("s_waitcnt lgkmcnt(0)")
    b(f"v_writelane_b32 v{STV}, s100, 62")
    stamp(b, 0)


def stamp_end(b, wave, ws, off, lane, sh=2, tv=254):
    if not STAMP: return
    b("s_memrealtime s[100:101]")
    b("s_waitcnt lgkmcnt(0)")
    b(f"v_writelane_b32 v{STV}, s100, 63")
    b(f"s_lshl_b32 s100, s2, {sh}")
    b(f"s_add_u32 s100, s100, s{wave}")
    b(f"s_lshl_b32 s100, s100, 8")
    b(f"s_add_u32 s100, s100, {off}")
    b(f"v_lshlrev_b32 v{tv}, 2, v{lane}")
    b(f"v_add_u32 v{tv}, s100, v{tv}")
    b(f"global_store_dword v{tv}, v{STV}, {ws}")


vLane = 1
def tr_pattern(b, dst, hfmul, t):
    L = vLane
    b(f"v_lshrrev_b32 v{t}, 5, v{L}")
    b(f"v_mul_u32_u24 v{t}, {hfmul}, v{t}")
    b(f"v_bfe_u32 v{t+1}, v{L}, 2, 2")
    b(f"v_add_u32 v{t}, v{t}, v{t+1}")
    b(f"v_lshlrev_b32 v{t}, 7, v{t}")
    b(f"v_bfe_u32 v{t+1}, v{L}, 3, 1")
    b(f"v_lshlrev_b32 v{t+1}, 6, v{t+1}")
    b(f"v_bfe_u32 v{t+2}, v{L}, 4, 1")
    b(f"v_lshlrev_b32 v{t+2}, 5, v{t+2}")
    b(f"v_and_b32 v{t+3}, 3, v{L}")
    b(f"v_lshlrev_b32 v{t+3}, 3, v{t+3}")
    b(f"v_add3_u32 v{t}, v{t}, v{t+2}, v{t+3}")
    b(f"v_add_u32 v{dst}, v{t}, v{t+1}")
    b(f"v_xor_b32 v{t+1}, 64, v{t+1}")
    b(f"v_add_u32 v{dst+1}, v{t}, v{t+1}")

SLOT = 24576
NSLOT = 4
WB0 = 98304
SCR = 73728
SC = 0
IMG = 1024
def wblock_lds(q):
    if q < 8: return WB0 + q * 8192
    return (q - 8) * 8192

sX, sBRE, sBIM, sW1, sHF = 36, 40, 44, 48, 52
sWave, sWm, sR, sS, sRho = 60, 61, 62, 63, 56
sLdsX, sLdsB = 64, 65
sT0, sT1, sT2, sT3 = 68, 69, 70, 71
sWL = 72
sM1, sM2, sM3 = 80, 82, 84
sHFb, sK0, sEX = 86, 87, 88
sLo = 90
sSpin, sU = 98, 99

DBGT = int(opts.get('dbgt', 0))
def dbgt_begin(b):
    if not DBGT: return
    b("s_memrealtime s[100:101]")
    b("s_waitcnt lgkmcnt(0)")
    b("s_not_b32 s101, s100")
def dbgt_end(b, dbg, vt, k2=False):
    if not DBGT: return
    b("s_mov_b32 s99, s101")
    b("s_memrealtime s[100:101]")
    b("s_waitcnt lgkmcnt(0)")
    b(f"v_mov_b32 v{vt}, 0")
    b(f"v_mov_b32 v{vt+1}, s99")
    b(f"v_mov_b32 v{vt+2}, s100")
    b("s_mov_b64 exec, 1")
    b(f"global_atomic_umax v{vt}, v{vt+1}, {dbg} offset:16")
    b(f"global_atomic_umax v{vt}, v{vt+2}, {dbg} offset:20")
    if k2:
        b(f"global_load_dwordx2 {v(vt+2,2)}, v{vt}, {dbg} offset:-496 sc1")
        b("s_waitcnt vmcnt(0)")
        b(f"global_store_dwordx2 v{vt}, {v(vt+2,2)}, {dbg} offset:8")
    b("s_mov_b64 exec, -1")

def code_prefetch(b, kname, endlabel, wshift, tag, vt, vd):
    if not int(opts.get('pfc', 1)): return
    b("s_getpc_b64 s[40:41]")
    b(f"L_{tag}_pc:")
    b(f"s_sub_u32 s40, s40, L_{tag}_pc-{kname}")
    b("s_subb_u32 s41, s41, 0")
    b("s_lshr_b32 s42, s2, 3")
    b(f"s_lshl_b32 s42, s42, {wshift + 7}")
    b(f"v_lshrrev_b32 v{vt}, 6, v0")
    b(f"v_lshlrev_b32 v{vt}, 7, v{vt}")
    b(f"v_add_u32 v{vt}, s42, v{vt}")
    b(f"v_min_u32 v{vt}, {endlabel}-{kname}-4, v{vt}")
    b(f"global_load_dword v{vd}, v{vt}, s[40:41]", 'nocount')

def k1_head():
    b = B()
    code_prefetch(b, K1, "L_code_end", 3, "k1", 2, 14)
    dbgt_begin(b)
    stamp_begin(b)
    b("s_load_dwordx16 s[4:19], s[0:1], 0")
    b("s_load_dwordx16 s[20:35], s[0:1], 64")
    b("s_cmp_ge_u32 s2, 256")
    b("s_cbranch_scc1 L_k1_end")
    b("v_lshrrev_b32 v2, 6, v0")
    b(f"v_and_b32 v{vLane}, 63, v0")
    b(f"v_readfirstlane_b32 s{sWave}, v2")
    b(f"s_and_b32 s{sT0}, s2, 7")
    b(f"s_lshr_b32 s{sT1}, s2, 3")
    b(f"s_and_b32 s{sT2}, s{sT1}, 3")
    b(f"s_lshr_b32 s{sT3}, s{sT1}, 2")
    b(f"s_lshr_b32 s{sR}, s{sT0}, 1")
    b(f"s_lshl_b32 s{sR}, s{sR}, 2")
    b(f"s_add_u32 s{sR}, s{sR}, s{sT2}")
    b(f"s_and_b32 s{sS}, s{sT0}, 1")
    b(f"s_lshl_b32 s{sS}, s{sS}, 3")
    b(f"s_add_u32 s{sS}, s{sS}, s{sT3}")
    b(f"s_lshl_b32 s{sRho}, s{sT2}, 1")
    b(f"s_add_u32 s{sRho}, s{sRho}, s{sT3}")
    ROT1 = opts.get('rot1', 'two')
    if ROT1 == 'none': b(f"s_mov_b32 s{sRho}, 0")
    if ROT1 == 'half':
        b(f"s_and_b32 s{sRho}, s{sRho}, 1")
        b(f"s_lshl_b32 s{sRho}, s{sRho}, 2")
    if ROT1 == 'two':
        b(f"s_and_b32 s{sRho}, s{sRho}, 3")
        b(f"s_lshl_b32 s{sRho}, s{sRho}, 1")
    b(f"s_and_b32 s{sWm}, s{sWave}, 3")
    b(f"s_lshl_b32 s{sLdsX}, s{sWm}, 12")
    b(f"s_lshl_b32 s{sLdsB}, s{sWm}, 11")
    b(f"s_lshl_b32 s{sHFb}, s{sR}, 2")
    b(f"s_add_u32 s{sHFb}, s{sHFb}, s{sWm}")
    b(f"s_mul_i32 s{sHFb}, s{sHFb}, {176*1024}")
    if int(opts.get('swap', 0)):
        b(f"s_cmp_lt_u32 s{sWave}, 4")
        b("s_cbranch_scc1 L_k1_F")
        b("v_and_b32 v0, 0xff, v0")
    else:
        b(f"s_cmp_ge_u32 s{sWave}, 4")
        b("s_cbranch_scc1 L_k1_F")
    return b

fXe, fXo, fB, fW = 2, 3, 4, 5
fPX, fTA, fTB, fTC, fL16 = 7, 11, 13, 16, 6 + 0
fPX, fTA, fTB, fTC = 8, 12, 14, 16
fPX, fTA, fTB, fTC, fL16 = 8, 12, 16, 18, 7
fE, fD = 20, 28
fS, fAcc = 32, 64

def dma(b, voff, srdn, soff, tok, imm=0):
    o = f" offset:{imm}" if imm else ""
    b(f"buffer_load_dwordx4 v{voff}, {s(srdn,4)}, {soff} offen{o} lds", tok)
def dma_x(b, i):
    b(f"s_add_u32 m0, s{sLdsX}, {(i % NSLOT) * SLOT}")
    for k in range(4):
        dma(b, fXe if k % 2 == 0 else fXo, sX, f"s{sLo+i}", f"x{i}", k * 1024)
def dma_B(b, i):
    b(f"s_add_u32 m0, s{sLdsB}, {(i % NSLOT) * SLOT + 16384}")
    dma(b, fB, sBRE, f"s{sLo+i}", f"B{i}")
    dma(b, fB, sBIM, f"s{sLo+i}", f"B{i}", 1024)
def dma_w(b, q):
    i, hh = q % 8, q // 8
    b(f"s_add_u32 m0, s{sLdsB}, {wblock_lds(q)}")
    if hh:
        b(f"s_add_u32 s{sT0}, s{sWL+i}, 128")
        so = f"s{sT0}"
    else:
        so = f"s{sWL+i}"
    dma(b, fW, sW1, so, f"w{q}")
    dma(b, fW + 1, sW1, so, f"w{q}", 1024)

def chunks_of(ops):
    ch = []; cur = []
    for o in ops:
        cur.append(o)
        if o.kind == 'vmem': ch.append(cur); cur = []
    if cur: ch.append(cur)
    return ch

def k1_F(ffn):
    b = B(); L = vLane
    t = fE
    for i in range(8):
        b(f"s_add_u32 s{sLo+i}, s{sRho}, {i}")
        b(f"s_and_b32 s{sLo+i}, s{sLo+i}, 7")
        b(f"s_lshl_b32 s{sLo+i}, s{sLo+i}, 7")
    b(f"v_and_b32 v{t}, 7, v{L}")
    b(f"v_lshrrev_b32 v{t+1}, 4, v{L}")
    b(f"v_xor_b32 v{t+2}, v{t}, v{t+1}")
    b(f"v_lshlrev_b32 v{t+2}, 4, v{t+2}")
    b(f"v_lshrrev_b32 v{t+3}, 3, v{L}")
    b(f"s_lshl_b32 s{sT0}, s{sR}, 17")
    b(f"s_lshl_b32 s{sT1}, s{sWm}, 15")
    b(f"s_add_u32 s{sT0}, s{sT0}, s{sT1}")
    b(f"v_lshlrev_b32 v{t}, 12, v{t+3}")
    b(f"v_add3_u32 v{fXe}, v{t}, v{t+2}, s{sT0}")
    b(f"v_xor_b32 v{fXo}, 64, v{fXe}")
    b(f"s_and_b32 s{sT0}, s{sWm}, 1")
    b(f"s_lshl_b32 s{sT0}, s{sT0}, 6")
    b(f"v_xor_b32 v{t+1}, s{sT0}, v{t+2}")
    b(f"s_lshl_b32 s{sT0}, s{sWm}, 13")
    b(f"s_lshl_b32 s{sT1}, s{sS}, 15")
    b(f"s_add_u32 s{sT0}, s{sT0}, s{sT1}")
    b(f"v_lshlrev_b32 v{t}, 10, v{t+3}")
    b(f"v_add3_u32 v{fB}, v{t}, v{t+1}, s{sT0}")
    b("s_waitcnt lgkmcnt(0)")
    srd(b, sX, 4, 2048*1024)
    srd(b, sBRE, 10, 512*1024)
    b(f"s_sub_u32 s{sBIM}, s12, 1024")
    b(f"s_subb_u32 s{sBIM+1}, s13, 0")
    b(f"s_mov_b32 s{sBIM+2}, {512*1024 + 1024}")
    b(f"s_mov_b32 s{sBIM+3}, 0x20000")
    if STAMP >= 2: stamp(b, 8)
    INI = int(opts.get('ini', 3))
    for i in range(INI):
        dma_x(b, i); dma_B(b, i)
    if STAMP >= 2: stamp(b, 9)
    srd(b, sHF, 34, WS_USED)
    if ffn:
        srd(b, sW1, 24, 512*3584)
        b(f"v_bfe_u32 v{t+1}, v{L}, 4, 1")
        b(f"v_lshlrev_b32 v{t+1}, 2, v{t+1}")
        b(f"v_and_b32 v{t+3}, 7, v{L}")
        b(f"v_xor_b32 v{t+3}, v{t+3}, v{t+1}")
        b(f"v_lshlrev_b32 v{t+3}, 4, v{t+3}")
        b(f"v_lshrrev_b32 v{t+1}, 3, v{L}")
        b(f"s_lshl_b32 s{sT3}, s{sWm}, 4")
        b(f"v_add_u32 v{t+1}, s{sT3}, v{t+1}")
        b(f"v_mul_u32_u24 v{t+1}, 3584, v{t+1}")
        b(f"v_add_u32 v{fW}, v{t+1}, v{t+3}")
        b(f"v_add_u32 v{fW+1}, {8*3584 - 1024}, v{fW}")
        b(f"s_lshl_b32 s{sT3}, s{sS}, 8")
        for i in range(8):
            b(f"s_mul_i32 s{sWL+i}, s{sLo+i}, 1792")
            b(f"s_add_u32 s{sWL+i}, s{sWL+i}, s{sT3}")
        tr_pattern(b, fTA, 8, t)
        b(f"v_add_u32 v{fTB}, 0x10000, v{fTA}")
        b(f"v_add_u32 v{fTB+1}, 0x10000, v{fTA+1}")
        b(f"v_add_u32 v{fTC}, 0x20000, v{fTA}")
        b(f"v_add_u32 v{fTC+1}, 0x20000, v{fTA+1}")
        b(f"v_lshlrev_b32 v{fL16}, 4, v{L}")
        b(f"v_and_b32 v{t}, 31, v{L}")
        b(f"v_lshrrev_b32 v{t+1}, 5, v{L}")
        b(f"v_bfe_u32 v{t+2}, v{L}, 1, 3")
        b(f"v_xor_b32 v{t+2}, v{t+1}, v{t+2}")
        b(f"v_lshlrev_b32 v{t+1}, 7, v{t}")
        b(f"v_add_u32 v{t+1}, s{sLdsX}, v{t+1}")
        for k in range(4):
            b(f"v_xor_b32 v{t+3}, {2*k}, v{t+2}")
            b(f"v_lshl_add_u32 v{fPX+k}, v{t+3}, 4, v{t+1}")
        b(f"s_mov_b32 s66, {LOG2E ^ 0x80000000:#x}")
        b(f"s_mov_b32 s67, {LOG2E ^ 0x80000000:#x}")
        b(f"s_lshl_b32 s{sU}, s{sS}, 13")
        b(f"s_add_u32 s{sU}, s{sU}, s{sHFb}")
        b(f"s_add_u32 s{sU}, s{sU}, {64*1024}")
    stamp(b, 1)
    for i in range(8):
        if STAMP >= 2: stamp(b, 10 + 2*i)
        b.wait('vm', f"x{i}", f"B{i}")
        b("s_waitcnt lgkmcnt(0)")
        b("s_barrier")
        if STAMP >= 2: stamp(b, 11 + 2*i)
        if ffn:
            po = (i % NSLOT) * SLOT
            if po >= 65536:
                for k in range(4): b(f"v_add_u32 v{fE+k}, 0x10000, v{fPX+k}")
            for k in range(4):
                if po >= 65536: b(f"ds_read_b128 {a(16*i+4*k,4)}, v{fE+k} offset:{po - 65536}")
                else: b(f"ds_read_b128 {a(16*i+4*k,4)}, v{fPX+k} offset:{po}")
        if i == 0 and INI == 2:
            dma_x(b, 2); dma_B(b, 2)
        if i <= 4:
            dma_x(b, i + 3); dma_B(b, i + 3)
        elif ffn:
            for q in {5: (0, 1, 2), 6: (3, 4, 5), 7: (6, 7)}[i]: dma_w(b, q)
        if True:
            if not ffn and i == 5:
                b(f"s_lshl_b32 s{sT0}, s{sR}, 1")
                b(f"s_add_u32 s{sT0}, s{sT0}, s{sS}")
                b(f"s_sub_u32 s{sT0}, s{sT0}, 14")
                b(f"s_lshl_b32 s{sT0}, s{sT0}, 2")
                b(f"s_add_u32 s{sT0}, s{sT0}, s{sWm}")
                b(f"v_lshlrev_b32 v8, 7, v{L}")
                srd(b, sW1, 26, 1792*1024)
                srd(b, sHF, 14, 512*1024)
                srd(b, 76, 16, 512*1024)
                b(f"s_mul_i32 s{sT1}, s{sT0}, 14336")
                b(f"buffer_load_dword v9, v8, {s(sW1,4)}, s{sT1} offen")
                b(f"s_add_u32 s{sT1}, s{sT1}, 8192")
                b(f"buffer_load_dword v10, v8, {s(sW1,4)}, s{sT1} offen")
                b(f"s_lshl_b32 s{sT1}, s{sT0}, 12")
                b(f"buffer_load_dword v11, v8, {s(sHF,4)}, s{sT1} offen")
                b(f"buffer_load_dword v12, v8, {s(76,4)}, s{sT1} offen")
    stamp(b, 2)
    if not ffn:
        b(f"s_lshl_b32 s{sT0}, s{sR}, 1")
        b(f"s_add_u32 s{sT0}, s{sT0}, s{sS}")
        b(f"s_sub_u32 s{sT0}, s{sT0}, 14")
        b(f"s_lshl_b32 s{sT0}, s{sT0}, 2")
        b(f"s_add_u32 s{sT0}, s{sT0}, s{sWm}")
        k1_gjob_all(b)
        return b
    def ffn_phase(hh):
        p = B(); DEPTH = 3
        def lds_loc(n):
            i, k = divmod(n, 4)
            base = wblock_lds(8 * hh + i) + 16 * k * 128
            if base < 65536: return fTA, base
            if base < 131072: return fTB, base - 65536
            return fTC, base - 131072
        plan = {0: [0, 1, 2, 3], int(opts.get('bcn', 12)): [4, 5, 6, 7]} if hh == 0 else {0: list(range(8, 16))}
        def reads(n):
            if n in plan:
                p.wait('vm', *[f"w{q}" for q in plan[n]])
                if hh == 0 and n == 0: p("s_waitcnt lgkmcnt(0)")
                if STAMP >= 2: stamp(p, 26 + (0 if n == 0 else 1) if hh == 0 else 29)
                p("s_barrier")
                if STAMP >= 2 and hh == 0: stamp(p, 30 + (0 if n == 0 else 1))
            base, off = lds_loc(n)
            r = fS + (n % 4) * 8
            for ft in range(2):
                for rd in range(2):
                    p(f"ds_read_b64_tr_b16 {v(r+4*ft+2*rd,2)}, v{base+ft} offset:{off + rd*512}", f"r{hh}_{n}")
        ch = []
        if hh == 0:
            d = B()
            for q in range(8, 16): dma_w(d, q)
            ch = chunks_of(d.ops)
        for n in range(DEPTH): reads(n)
        for n in range(32):
            i, k = divmod(n, 4)
            r = fS + (n % 4) * 8
            p.wait('lg', f"r{hh}_{n}")
            for ft in range(2):
                acc = fAcc + (2*hh + ft) * 16
                c = v(acc, 16) if n else "0"
                p(f"v_mfma_f32_32x32x16_bf16 {v(acc,16)}, {v(r+4*ft,4)}, {a(16*i+4*k,4)}, {c}")
                if ft == 0 and ch: p.ext(ch.pop(0))
            if hh == 0 and n == int(opts.get('bxn', 1)): p("s_barrier")
            if n + DEPTH < 32: reads(n + DEPTH)
        assert not ch
        return p
    if int(opts.get('tseq', 0)):
        DEPTH = int(opts.get('tdepth', 6))
        def loc(g):
            t_, n = divmod(g, 32); i, k = divmod(n, 4)
            base = wblock_lds(8 * (t_ // 2) + i) + 16 * k * 128
            if base < 65536: return fTA + (t_ & 1), base
            if base < 131072: return fTB + (t_ & 1), base - 65536
            return fTC + (t_ & 1), base - 131072
        d = B()
        for q in range(8, 16): dma_w(d, q)
        ch = chunks_of(d.ops)
        tiles = []
        p = B()
        def rd(g):
            if g == 0:
                p.wait('vm', "w0", "w1", "w2", "w3"); p("s_waitcnt lgkmcnt(0)"); p("s_barrier")
            if g == 16:
                p.wait('vm', "w4", "w5", "w6", "w7"); p("s_barrier")
            if g == 64: p("s_barrier")
            base, off = loc(g); r = fS + (g % 8) * 4
            for r_ in range(2):
                p(f"ds_read_b64_tr_b16 {v(r+2*r_,2)}, v{base} offset:{off + r_*512}", f"t{g}")
        for g in range(DEPTH): rd(g)
        for g in range(128):
            t_, n = divmod(g, 32); i, k = divmod(n, 4)
            if n == 0 and t_: tiles.append(p); p = B()
            r = fS + (g % 8) * 4; acc = fAcc + t_ * 16
            if g % 2 == 0: p.wait('lg', f"t{g}", f"t{g+1}")
            p(f"v_mfma_f32_32x32x16_bf16 {v(acc,16)}, {v(r,4)}, {a(16*i+4*k,4)}, {v(acc,16) if n else 0}")
            if ch: p.ext(ch.pop(0))
            if g == int(opts.get('bxn', 3)): p("s_barrier")
            if g == 31: p.wait('vm', *[f"w{q}" for q in range(8, 16)])
            if g + DEPTH < 128: rd(g + DEPTH)
        tiles.append(p)
        PT = int(opts.get('pert', 3))
        b.ext(tiles[0])
        for t_ in range(1, 4):
            b.ext(merge(tiles[t_].ops, k1_silu(t_ - 1, False).ops, per=PT, start=1))
            if t_ == 1: stamp(b, 3)
        stamp(b, 4)
        b.ext(flat(k1_silu(3, True).ops))
        stamp(b, 5)
        return b
    b.ext(ffn_phase(0))
    stamp(b, 3)
    p3 = ffn_phase(1)
    fl = F()
    fl.ext(k1_silu(0, False)); fl.ext(k1_silu(1, False))
    if opts.get('p3mode') == 'nofill':
        b.ext(p3.ops); stamp(b, 6); b.ext(flat(fl.ops))
    elif opts.get('p3mode') == 'nostore':
        fo = [o for o in fl.ops if not (not isinstance(o, list) and o.kind == 'vmem')]
        st_ = [o for o in fl.ops if (not isinstance(o, list) and o.kind == 'vmem')]
        b.ext(merge(p3.ops, fo, per=int(opts.get('per3', 4)), start=1))
    else:
        b.ext(merge(p3.ops, fl.ops, per=int(opts.get('per3', 4)), start=1))
    stamp(b, 4)
    b.ext(flat(k1_silu(2, True).ops))
    b.ext(flat(k1_silu(3, True).ops))
    stamp(b, 5)
    return b

def k1_silu(ft, pk):
    b = F()
    acc = fAcc + ft * 16
    e, d = fE, fD
    for kk in range(2):
        base = acc + 8 * kk
        if pk:
            for q in range(4): b(f"v_pk_mul_f32 {v(e+2*q,2)}, {v(base+2*q,2)}, s[66:67]")
            for q in range(8): b(f"v_exp_f32 v{e+q}, v{e+q}")
            for q in range(4): b(f"v_pk_add_f32 {v(e+2*q,2)}, {v(e+2*q,2)}, 1.0 op_sel_hi:[1,0]")
            for q in range(8): b(f"v_rcp_f32 v{e+q}, v{e+q}")
            for q in range(4): b(f"v_pk_mul_f32 {v(e+2*q,2)}, {v(base+2*q,2)}, {v(e+2*q,2)}")
            for q in range(4): b(f"v_cvt_pk_bf16_f32 v{d+q}, v{e+2*q}, v{e+2*q+1}")
        else:
            seq = []
            for q in range(8):
                seq.append([f"v_mul_f32 v{e+q}, s66, v{base+q}", f"v_exp_f32 v{e+q}, v{e+q}", f"v_add_f32 v{e+q}, 1.0, v{e+q}",
                            f"v_rcp_f32 v{e+q}, v{e+q}", f"v_mul_f32 v{e+q}, v{base+q}, v{e+q}"])
            if opts.get('silu', 'diag') == 'diag':
                for tm in range(8 + 4):
                    for stg in range(5):
                        q = tm - stg
                        if 0 <= q < 8: b(seq[q][stg])
            elif opts.get('silu') == 'block':
                for stg in range(5):
                    for q in range(8): b(seq[q][stg])
            else:
                for tm in range(8 + 8):
                    for stg in range(5):
                        q = tm - 2 * stg
                        if 0 <= q < 8: b(seq[q][stg])
            for q in range(4): b(f"v_cvt_pk_bf16_f32 v{d+q}, v{e+2*q}, v{e+2*q+1}")
        b(f"s_add_u32 s{sK0}, s{sU}, {(2*ft+kk)*1024}")
        b(f"buffer_store_dwordx4 {v(d,4)}, v{fL16}, {s(sHF,4)}, s{sK0} offen {STF}")
    return b

gPX, gPB = 2, 6
vLBa, vImgW, vImgR, vL16o = 10, 11, 12, 13
vL, vC2, vL16, vL32, vL128, vL256, vF1, vG, vHfm = 16, 18, 20, 22, 24, 26, 28, 30, 32
vNon, vK, vQ, vW_, vPre, vTmp = 34, 36, 38, 40, 42, 44
vP = 48
aRE, aIM, vU = 64, 80, 96
aSX, aSB = 0, 16

def k1_S_setup():
    b = B(); L = vLane; t = vP
    b("s_waitcnt lgkmcnt(0)")
    srd(b, sHF, 34, WS_USED)
    b(f"v_and_b32 v{t}, 31, v{L}")
    b(f"s_lshl_b32 s{sT0}, s{sS}, 5")
    b(f"v_add_u32 v{t}, s{sT0}, v{t}")
    b(f"v_lshlrev_b32 v{t}, 1, v{t}")
    b(f"global_load_ushort v{vP+8}, v{t}, s[6:7]")
    b(f"global_load_ushort v{vP+9}, v{t}, s[8:9]")
    b(f"global_load_ushort v{vP+10}, v{t}, s[18:19]")
    if int(opts.get('nearly', 0)):
        b(f"s_or_b32 s{sT0}, s2, s{sWm}")
        b(f"s_cmp_lg_u32 s{sT0}, 0")
        b("s_cbranch_scc1 L_k1_nononce")
        b(f"v_mov_b32 v{t}, {NONCE_OFF}")
        b(f"global_load_dwordx2 {v(vU+26,2)}, v{t}, s[34:35] sc1", 'nocount')
        b("s_waitcnt vmcnt(0)", 'nocount')
        b(f"v_add_u32 v{vU+26}, 1, v{vU+26}")
        b(f"v_or_b32 v{vU+27}, 1, v{vU+27}")
        b(f"v_mov_b32 v{t+1}, 0")
        b(f"global_store_dwordx2 v{t+1}, {v(vU+26,2)}, s[32:33] sc0 sc1", 'nocount')
        b(f"global_store_dwordx2 v{t}, {v(vU+26,2)}, s[34:35] sc0 sc1", 'nocount')
        b("L_k1_nononce:")
    else:
        b(f"v_mov_b32 v{t}, {NONCE_OFF}")
        b(f"global_load_dwordx2 {v(vU+26,2)}, v{t}, s[34:35] sc1")
    if int(opts.get('flgw', 1)):
        b(f"s_mul_i32 s{sT0}, s{sR}, {FLG_STRIDE}")
        b(f"s_add_u32 s{sT0}, s{sT0}, {FLG_OFF}")
        b(f"v_mov_b32 v{t}, s{sT0}")
        b(f"global_load_dword v{vU+10}, v{t}, s[34:35] sc1", 'nocount')
        b(f"s_lshl_b32 s{sT0}, s{sR}, 10")
        b(f"s_add_u32 s{sT0}, s{sT0}, {G_OFF}")
        b(f"v_and_b32 v{t}, 7, v{L}")
        b(f"v_lshlrev_b32 v{t}, 7, v{t}")
        b(f"v_add_u32 v{t}, s{sT0}, v{t}")
        b(f"global_load_dword v{vU+11}, v{t}, s[34:35] sc1", 'nocount')
    if int(opts.get('tlbw', 1)):
        pd = vU + 12
        b(f"s_cmp_eq_u32 s{sWm}, 2")
        b("s_cbranch_scc0 L_k1_tlb_done")
        b(f"v_mov_b32 v{t}, 0")
        for k, ptr in enumerate((24, 14, 16, 26, 20)):
            b(f"global_load_dword v{pd+k}, v{t}, {s(ptr,2)}", 'nocount')
        b(f"v_min_u32 v{t}, 19, v{L}")
        b(f"v_lshlrev_b32 v{t}, 20, v{t}")
        b(f"global_load_dword v{pd+5}, v{t}, s[34:35]", 'nocount')
        b(f"v_and_b32 v{t}, 3, v{L}")
        b(f"v_lshlrev_b32 v{t}, 20, v{t}")
        b(f"global_load_dword v{pd+6}, v{t}, s[30:31]", 'nocount')
        b("L_k1_tlb_done:")
    PF = int(opts.get('pf', 0))
    if PF:
        pd = vU + 28
        b(f"s_cmp_eq_u32 s{sWm}, 0")
        b("s_cbranch_scc0 L_k1_pf_1")
        b(f"v_lshrrev_b32 v{t}, 3, v{L}")
        b(f"s_lshl_b32 s{sT2}, s2, 3")
        b(f"v_add_u32 v{t}, s{sT2}, v{t}")
        b(f"v_lshlrev_b32 v{t}, 10, v{t}")
        b(f"v_and_b32 v{t+1}, 7, v{L}")
        b(f"v_max_u32 v{t+1}, 3, v{t+1}")
        b(f"v_lshl_add_u32 v{t}, v{t+1}, 7, v{t}")
        b(f"global_load_dword v{pd}, v{t}, s[4:5]", 'nocount')
        b("L_k1_pf_1:")
        b(f"s_cmp_eq_u32 s{sWm}, 1")
        b("s_cbranch_scc0 L_k1_pf_2")
        b(f"v_bfe_u32 v{t}, v{L}, 3, 1")
        b(f"s_lshl_b32 s{sT2}, s2, 1")
        b(f"v_add_u32 v{t}, s{sT2}, v{t}")
        b(f"v_lshlrev_b32 v{t}, 10, v{t}")
        b(f"v_and_b32 v{t+1}, 7, v{L}")
        b(f"v_max_u32 v{t+1}, 3, v{t+1}")
        b(f"v_lshl_add_u32 v{t}, v{t+1}, 7, v{t}")
        b(f"global_load_dword v{pd}, v{t}, s[10:11]", 'nocount')
        b(f"global_load_dword v{pd+1}, v{t}, s[12:13]", 'nocount')
        b("L_k1_pf_2:")
        b(f"s_cmp_eq_u32 s{sWm}, 2")
        b("s_cbranch_scc0 L_k1_pf_done")
        b(f"v_lshrrev_b32 v{t}, 5, v{L}")
        b(f"s_lshl_b32 s{sT2}, s2, 1")
        b(f"v_add_u32 v{t}, s{sT2}, v{t}")
        b(f"v_mul_u32_u24 v{t}, 3584, v{t}")
        b(f"v_and_b32 v{t+1}, 31, v{L}")
        b(f"v_min_u32 v{t+1}, 27, v{t+1}")
        b(f"v_lshl_add_u32 v{t}, v{t+1}, 7, v{t}")
        b(f"global_load_dword v{pd}, v{t}, s[24:25]", 'nocount')
        b("L_k1_pf_done:")
    b(f"v_and_b32 v{t}, 31, v{L}")
    b(f"v_lshrrev_b32 v{t+1}, 5, v{L}")
    b(f"v_bfe_u32 v{t+2}, v{L}, 1, 3")
    b(f"v_xor_b32 v{t+2}, v{t+1}, v{t+2}")
    b(f"v_lshlrev_b32 v{t+1}, 7, v{t}")
    b(f"v_add_u32 v{t+1}, s{sLdsX}, v{t+1}")
    b(f"v_lshrrev_b32 v{t+3}, 3, v{t}")
    b(f"v_lshlrev_b32 v{t+3}, 11, v{t+3}")
    b(f"v_and_b32 v{t}, 7, v{t}")
    b(f"v_lshl_add_u32 v{t}, v{t}, 7, v{t+3}")
    b(f"v_add_u32 v{t}, 16384, v{t}")
    for k in range(4):
        b(f"v_xor_b32 v{t+3}, {2*k}, v{t+2}")
        b(f"v_lshl_add_u32 v{gPX+k}, v{t+3}, 4, v{t+1}")
        b(f"v_lshl_add_u32 v{gPB+k}, v{t+3}, 4, v{t}")
    return b

def k1_params():
    b = F()
    lre, lim, ldt = vP+8, vP+9, vP+10
    va, vang, t0 = vP, vP+1, vP+2
    b(f"v_lshlrev_b32 v{lre}, 16, v{lre}")
    b(f"v_lshlrev_b32 v{lim}, 16, v{lim}")
    b(f"v_lshlrev_b32 v{ldt}, 16, v{ldt}")
    b(f"v_mul_f32 v{ldt}, {LOG2E:#x}, v{ldt}")
    b(f"v_exp_f32 v{ldt}, v{ldt}")
    b(f"v_cvt_pk_bf16_f32 v{ldt}, v{ldt}, v{ldt}")
    b(f"v_lshlrev_b32 v{ldt}, 16, v{ldt}")
    b(f"v_mul_f32 v{va}, v{ldt}, v{lre}")
    b(f"v_mul_f32 v{vang}, v{ldt}, v{lim}")
    b(f"v_mul_f32 v{va}, {LOG2E:#x}, v{va}")
    b(f"v_mul_f32 v{vang}, {INV2PI:#x}, v{vang}")
    cexp(b, vL, "1.0", va, vang, t0)
    for dst, cst in ((vL16, 0x41800000), (vL32, 0x42000000), (vL128, 0x43000000), (vL256, 0x43800000)):
        b(f"v_mov_b32 v{t0+3}, {cst:#x}")
        cexp(b, dst, f"v{t0+3}", va, vang, t0)
    b(f"v_lshrrev_b32 v{t0+3}, 5, v{vLane}")
    b(f"v_cvt_f32_u32 v{vHfm}, v{t0+3}")
    b(f"v_lshlrev_b32 v{t0+3}, 4, v{t0+3}")
    b(f"v_cvt_f32_u32 v{t0+3}, v{t0+3}")
    cexp(b, vF1, f"v{t0+3}", va, vang, t0)
    b(f"v_lshrrev_b32 v{t0+3}, 5, v{vLane}")
    b(f"v_lshlrev_b32 v{t0+3}, 4, v{t0+3}")
    b(f"s_lshl_b32 s{sSpin}, s{sWm}, 5")
    b(f"v_add_u32 v{t0+3}, s{sSpin}, v{t0+3}")
    b(f"v_cvt_f32_u32 v{t0+3}, v{t0+3}")
    cexp(b, vG, f"v{t0+3}", va, vang, t0)
    b(f"v_add_f32 v{t0}, -1.0, v{vL}")
    b(f"v_mul_f32 v{t0+1}, v{lre}, v{lre}")
    b(f"v_fma_f32 v{t0+1}, v{lim}, v{lim}, v{t0+1}")
    b(f"v_rcp_f32 v{t0+1}, v{t0+1}")
    b(f"v_mul_f32 v{vC2}, v{t0}, v{lre}")
    b(f"v_fma_f32 v{vC2}, v{vL+1}, v{lim}, v{vC2}")
    b(f"v_mul_f32 v{vC2+1}, v{vL+1}, v{lre}")
    b(f"v_fma_f32 v{vC2+1}, -v{t0}, v{lim}, v{vC2+1}")
    b(f"v_add_f32 v{t0+1}, v{t0+1}, v{t0+1}")
    b(f"v_mul_f32 v{vC2}, v{vC2}, v{t0+1}")
    b(f"v_mul_f32 v{vC2+1}, v{vC2+1}, v{t0+1}")
    return b

def k1_setup_common():
    b = F(); t = vP + 12; L = vLane
    for k, m in ((1, sM1), (2, sM2), (3, sM3)):
        g = B()
        g(f"s_cmp_ge_u32 s{sWm}, {k}")
        g(f"s_cselect_b64 {s(m,2)}, -1, 0")
        b.group(g)
    b(f"v_lshlrev_b32 v{vL16o}, 4, v{L}")
    b(f"v_and_b32 v{t}, 31, v{L}")
    b(f"v_lshlrev_b32 v{t}, 4, v{t}")
    b(f"s_lshl_b32 s{sK0}, s{sS}, 9")
    b(f"s_add_u32 s{sK0}, s{sK0}, {E_OFF}")
    b(f"v_add_u32 v{vLBa}, s{sK0}, v{t}")
    b(f"v_and_b32 v{t}, 31, v{L}")
    b(f"v_mul_u32_u24 v{t}, 80, v{t}")
    b(f"v_lshrrev_b32 v{t+1}, 5, v{L}")
    b(f"v_lshl_add_u32 v{t}, v{t+1}, 5, v{t}")
    b(f"s_mul_i32 s{sK0}, s{sWm}, 5120")
    b(f"s_add_u32 s{sK0}, s{sK0}, {SCR}")
    b(f"v_add_u32 v{vImgW}, s{sK0}, v{t}")
    b(f"v_lshrrev_b32 v{t+1}, 5, v{L}")
    b(f"v_lshlrev_b32 v{t+1}, 3, v{t+1}")
    b(f"v_bfe_u32 v{t+2}, v{L}, 2, 2")
    b(f"v_add_u32 v{t+1}, v{t+1}, v{t+2}")
    b(f"v_mul_u32_u24 v{t+1}, 80, v{t+1}")
    b(f"v_and_b32 v{t+2}, 1, v{L}")
    b(f"v_lshlrev_b32 v{t+2}, 5, v{t+2}")
    b(f"v_bfe_u32 v{t+3}, v{L}, 4, 1")
    b(f"v_lshlrev_b32 v{t+3}, 4, v{t+3}")
    b(f"v_add3_u32 v{t+1}, v{t+1}, v{t+2}, v{t+3}")
    b(f"v_bfe_u32 v{t+2}, v{L}, 1, 1")
    b(f"v_lshlrev_b32 v{t+2}, 3, v{t+2}")
    b(f"v_add3_u32 v{vImgR}, v{t+1}, v{t+2}, s{sK0}")
    return b

def k1_gjob_all(b):
    L = vLane
    xs0, gs, gu, t, w = 32, 112, 16, 120, 96
    b(f"v_and_b32 v{t}, 31, v{L}")
    b(f"v_lshlrev_b32 v{t}, 4, v{t}")
    b(f"global_load_dwordx4 {v(gs,4)}, v{t}, s[28:29]")
    b(f"global_load_dwordx4 {v(gs+4,4)}, v{t}, s[28:29] offset:512")
    b(f"v_lshrrev_b32 v{t+1}, 5, v{L}")
    b(f"s_lshl_b32 s{sT1}, s{sT0}, 4")
    b(f"v_add_u32 v{t+1}, s{sT1}, v{t+1}")
    b(f"v_lshlrev_b32 v{t+2}, 3, v{t+1}")
    b(f"v_add_u32 v{t+2}, {G_OFF}, v{t+2}")
    b(f"v_lshlrev_b32 v{t+1}, 10, v{t+1}")
    b(f"v_add_u32 v{t+1}, v{t+1}, v{t}")
    for p in range(8):
        r = xs0 + p * 8
        if p: b(f"v_add_u32 v{t+1}, 2048, v{t+1}")
        b(f"global_load_dwordx4 {v(r,4)}, v{t+1}, s[4:5]")
        b(f"global_load_dwordx4 {v(r+4,4)}, v{t+1}, s[4:5] offset:512")
    for _ in range(4): b("s_barrier")
    for k in range(8):
        b(f"v_lshlrev_b32 v{gu+2*k}, 16, v{gs+k}")
        b(f"v_and_b32 v{gu+2*k+1}, 0xffff0000, v{gs+k}")
    b(f"v_and_b32 v{t+3}, 31, v{L}")
    for p in range(8):
        xs = xs0 + p * 8
        acc = w
        for k in range(8):
            a0 = w + 2 + 2 * (k % 4)
            b(f"v_lshlrev_b32 v{a0}, 16, v{xs+k}")
            b(f"v_and_b32 v{a0+1}, 0xffff0000, v{xs+k}")
            b(f"v_pk_mul_f32 {v(a0,2)}, {v(a0,2)}, {v(gu+2*k,2)}")
            b(f"v_cvt_pk_bf16_f32 v{a0}, v{a0}, v{a0+1}")
            b(f"v_and_b32 v{a0+1}, 0xffff0000, v{a0}")
            b(f"v_lshlrev_b32 v{a0}, 16, v{a0}")
            if k == 0:
                b(f"v_add_f32 v{acc}, v{a0}, v{a0+1}")
            else:
                b(f"v_add_f32 v{a0}, v{a0}, v{a0+1}")
                b(f"v_add_f32 v{acc}, v{acc}, v{a0}")
        for r in (8, 4, 2, 1):
            b(f"v_add_f32_dpp v{acc}, v{acc}, v{acc} row_ror:{r} row_mask:0xf bank_mask:0xf")
        b(f"v_mov_b32 v{acc+1}, v{acc}")
        b(f"v_permlane16_swap_b32 v{acc}, v{acc+1}")
        b(f"v_add_f32 v{acc}, v{acc}, v{acc+1}")
        b(f"v_cvt_pk_bf16_f32 v{acc}, v{acc}, v{acc}")
        b(f"v_lshlrev_b32 v{acc}, 16, v{acc}")
        b(f"v_mul_f32 v{acc}, {LOG2E ^ 0x80000000:#x}, v{acc}")
        b(f"v_exp_f32 v{acc}, v{acc}")
        b(f"v_add_f32 v{acc}, 1.0, v{acc}")
        b(f"v_rcp_f32 v{acc}, v{acc}")
        b(f"v_cvt_pk_bf16_f32 v{acc}, v{acc}, v{acc}")
        d = xs
        b(f"v_lshlrev_b32 v{d}, 16, v{acc}")
        b(f"v_sub_f32 v{d+1}, 1.0, v{d}")
        b(f"v_cvt_pk_bf16_f32 v{d+1}, v{d+1}, v{d+1}")
        b(f"v_lshlrev_b32 v{d+1}, 16, v{d+1}")
    b(f"v_cmp_eq_u32 vcc, 0, v{t+3}")
    b(f"s_and_saveexec_b64 {s(sEX,2)}, vcc")
    for p in range(8):
        b(f"global_store_dwordx2 v{t+2}, {v(xs0+8*p,2)}, s[34:35] offset:{16*p} sc0 sc1")
    b(f"s_mov_b64 exec, {s(sEX,2)}")

def k1_nonce():
    b = F()
    t = vU + 26
    b(f"v_add_u32 v{t}, 1, v{t}")
    b(f"v_or_b32 v{t+1}, 1, v{t+1}")
    b(f"v_mov_b32 v{t+2}, {NONCE_OFF}")
    b(f"v_mov_b32 v{t+3}, 0")
    g = B()
    g(f"s_or_b32 s{sSpin}, s2, s{sWm}")
    g(f"s_cmp_lg_u32 s{sSpin}, 0")
    g("s_cbranch_scc1 L_k1_nononce")
    g(f"global_store_dwordx2 v{t+2}, {v(t,2)}, s[34:35] sc0 sc1", 'nocount')
    g(f"global_store_dwordx2 v{t+3}, {v(t,2)}, s[32:33] sc0 sc1", 'nocount')
    g("L_k1_nononce:")
    b.group(g)
    return b

def k1_S():
    b = k1_S_setup()
    if int(opts.get('sprio', 1)): b("s_setprio 2")
    m = B()
    for i in range(8):
        m("s_waitcnt lgkmcnt(0)")
        m("s_barrier")
        po = (i % NSLOT) * SLOT
        hi = po >= 65536 - 1024
        if hi:
            for k in range(4):
                m(f"v_add_u32 v{vTmp+k}, 0x10000, v{gPX+k}")
        for k in range(4):
            if hi: m(f"ds_read_b128 {a(aSX+4*k,4)}, v{vTmp+k} offset:{po - 65536}")
            else: m(f"ds_read_b128 {a(aSX+4*k,4)}, v{gPX+k} offset:{po}")
        if hi:
            for k in range(4):
                m(f"v_add_u32 v{vTmp+k}, 0x10000, v{gPB+k}")
        for k in range(4):
            for mm in range(2):
                if hi: m(f"ds_read_b128 {a(aSB+8*k+4*mm,4)}, v{vTmp+k} offset:{po - 65536 + mm*1024}")
                else: m(f"ds_read_b128 {a(aSB+8*k+4*mm,4)}, v{gPB+k} offset:{po + mm*1024}")
        for k in range(4):
            for mm, acc in ((0, aRE), (1, aIM)):
                c = v(acc, 16) if (i, k) != (0, 0) else "0"
                m(f"v_mfma_f32_32x32x16_bf16 {v(acc,16)}, {a(aSX+4*k,4)}, {a(aSB+8*k+4*mm,4)}, {c}")
    f = F()
    if not int(opts.get('nearly', 0)): f.ext(k1_nonce())
    if int(opts.get('pfw', 0)):
        g = B(); t = vP + 12
        g(f"s_cmp_eq_u32 s{sWm}, {int(opts.get('pfww', 1))}")
        g("s_cbranch_scc0 L_k1_pfw_done")
        g(f"v_lshrrev_b32 v{t}, 5, v{vLane}")
        g(f"s_lshl_b32 s{sSpin}, s2, 1")
        g(f"v_add_u32 v{t}, s{sSpin}, v{t}")
        g(f"v_mul_u32_u24 v{t}, 3584, v{t}")
        g(f"v_and_b32 v{t+1}, 31, v{vLane}")
        g(f"v_min_u32 v{t+1}, 27, v{t+1}")
        g(f"v_lshl_add_u32 v{t}, v{t+1}, 7, v{t}")
        g(f"global_load_dword v{vU+9}, v{t}, s[24:25]", 'nocount')
        g("L_k1_pfw_done:")
        f.group(g)
    f.ext(k1_params())
    f.ext(k1_setup_common())
    g = B()
    g(f"v_mov_b32 v{vTmp}, 0")
    g(f"global_load_dwordx2 {v(vNon,2)}, v{vTmp}, s[32:33] sc1")
    f.group(g)
    b.ext(merge(m.ops, f.ops, per=int(opts.get('per1', 5))))
    b("s_waitcnt vmcnt(0)")
    stamp(b, 2)
    s1 = flat(k1_scan1a().ops)
    cut = [j for j, o in enumerate(s1) if o.kind == 'ds'][0]
    if STAMP >= 2: stamp(b, 8)
    b.ext(s1[:cut])
    if STAMP >= 2: stamp(b, 9)
    b("s_barrier")
    b.ext(s1[cut:])
    if STAMP >= 2: stamp(b, 11)
    b("s_barrier")
    if STAMP >= 2: stamp(b, 12)
    b.ext(flat(k1_scan1b().ops))
    if STAMP >= 2: stamp(b, 13)
    b.ext(k1_publish())
    stamp(b, 3)
    b("s_barrier")
    b.ext(p2_S_csetup())
    if opts.get('lbfirst', '0') == '1':
        b("s_barrier")
        stamp(b, 4)
        b.ext(k1_lookback())
        stamp(b, 5)
        b.ext(k1_final())
        b.ext(p2_S_cdma())
        b.ext(p2_S_creads())
    else:
        b("s_barrier")
        b.ext(p2_S_cdma())
        stamp(b, 4)
        b.ext(k1_lookback())
        stamp(b, 5)
        b.ext(k1_final())
        b.ext(p2_S_creads())
    stamp(b, 6)
    return b

def cfma_sr(b, d, l, h, ure, uim, tmp):
    b(f"v_fma_f32 v{tmp}, v{l}, v{h}, v{ure}")
    b(f"v_fma_f32 v{tmp+1}, v{l}, v{h+1}, v{uim}")
    b(f"v_fma_f32 v{d}, -v{l+1}, v{h+1}, v{tmp}")
    b(f"v_fma_f32 v{d+1}, v{l+1}, v{h}, v{tmp+1}")

def k1_scan1a():
    b = F()
    tmp = vTmp
    R = lambda t: aRE + reg_of_t(t)
    I = lambda t: aIM + reg_of_t(t)
    b(f"v_mov_b32 v{vQ}, v{R(0)}\nv_mov_b32 v{vQ+1}, v{I(0)}")
    cur = vQ
    for t in range(1, 16):
        nxt = vQ if cur == vW_ else vW_
        cfma_sr(b, nxt, vL, cur, R(t), I(t), tmp)
        cur = nxt
    assert cur == vW_
    b(f"v_mov_b32 v{vPre}, v{cur}\nv_mov_b32 v{vPre+1}, v{cur+1}")
    b(f"v_mov_b32 v{vQ}, v{cur}\nv_mov_b32 v{vQ+1}, v{cur+1}")
    b(f"v_permlane32_swap_b32 v{vPre}, v{vQ}")
    b(f"v_permlane32_swap_b32 v{vPre+1}, v{vQ+1}")
    cfma_s(b, vW_, vL16, vPre, vQ, tmp)
    b(f"v_mul_f32 v{vPre}, v{vPre}, v{vHfm}\nv_mul_f32 v{vPre+1}, v{vPre+1}, v{vHfm}")
    t = vP
    b(f"v_and_b32 v{t+14}, 31, v{vLane}")
    b(f"v_lshlrev_b32 v{t+14}, 3, v{t+14}")
    b(f"v_add_u32 v{t+14}, {SCR}, v{t+14}")
    b(f"s_lshl_b32 s{sK0}, s{sWm}, 8")
    b(f"v_add_u32 v{t+15}, s{sK0}, v{t+14}")
    b(f"ds_write_b64 v{t+15}, {v(vW_,2)} offset:{SC}", "Wx")
    b.wait('lg', "Wx")
    return b

def k1_scan1b():
    b = F()
    t = vP; tmp = vTmp
    for w in range(4):
        b(f"ds_read_b64 {v(t+2*w,2)}, v{t+14} offset:{SC + 256*w}")
    W0, W1, W2, W3 = t, t+2, t+4, t+6
    Q2, Q3 = t+8, t+10
    cfma_s(b, Q2, vL32, W0, W1, tmp)
    cfma_s(b, Q3, vL32, Q2, W2, tmp)
    E = t + 12
    cfma_s(b, E, vL32, Q3, W3, tmp)
    for h in range(2):
        b(f"v_cndmask_b32 v{vQ+h}, 0, v{W0+h}, {s(sM1,2)}")
        b(f"v_cndmask_b32 v{vQ+h}, v{vQ+h}, v{Q2+h}, {s(sM2,2)}")
        b(f"v_cndmask_b32 v{vQ+h}, v{vQ+h}, v{Q3+h}, {s(sM3,2)}")
    cfma_s(b, vK, vF1, vQ, vPre, tmp)
    return b

def k1_publish():
    t = vP; E = t + 12; tmp = vTmp
    g = B()
    g(f"s_lshl_b32 s{sK0}, s{sR}, 13")
    g(f"v_add_u32 v{tmp}, s{sK0}, v{vLBa}")
    g(f"v_lshrrev_b32 v{tmp+1}, 3, v{vLane}")
    g(f"v_cmp_ne_u32 vcc, 0, v{vNon+1}")
    g("s_cbranch_vccnz L_k1_nonce_ok")
    g(f"s_mov_b32 s{sSpin}, 0")
    g("L_k1_nonce_retry:")
    g(f"v_mov_b32 v{tmp+2}, 0")
    g(f"global_load_dwordx2 {v(vNon,2)}, v{tmp+2}, s[32:33] sc1", 'nocount')
    g("s_waitcnt vmcnt(0)", 'nocount')
    g(f"s_add_u32 s{sSpin}, s{sSpin}, 1")
    g(f"s_cmp_gt_u32 s{sSpin}, 40000")
    g("s_cbranch_scc1 L_k1_nonce_ok")
    g(f"v_cmp_ne_u32 vcc, 0, v{vNon+1}")
    g("s_cbranch_vccz L_k1_nonce_retry")
    g("L_k1_nonce_ok:")
    g(f"v_mov_b32 v{E+2}, v{vNon}\nv_mov_b32 v{E+3}, v{vNon+1}")
    g(f"v_cmp_eq_u32 vcc, s{sWm}, v{tmp+1}")
    g(f"s_and_saveexec_b64 {s(sEX,2)}, vcc")
    g(f"global_store_dwordx4 v{tmp}, {v(E,4)}, s[34:35] sc0 sc1")
    g(f"s_mov_b64 exec, {s(sEX,2)}")
    return g

def k1_lookback():
    b = B(); tmp = vTmp; t = vP
    H = vW_
    def loads(tok):
        b(f"s_sub_u32 s{sK0}, s{sR}, 1")
        b(f"s_lshl_b32 s{sK0}, s{sK0}, 13")
        b(f"v_lshrrev_b32 v{t}, 5, v{vLane}")
        b(f"v_lshlrev_b32 v{t}, 13, v{t}")
        b(f"v_sub_u32 v{t}, s{sK0}, v{t}")
        b(f"v_add_u32 v{t}, v{vLBa}, v{t}")
        for mm in range(8):
            if mm: b(f"v_subrev_u32 v{t}, 16384, v{t}")
            b(f"v_max_i32 v{t+1}, v{t}, v{vLBa}")
            b(f"global_load_dwordx4 {v(vU+4*mm,4)}, v{t+1}, s[34:35] sc1", tok)
    b(f"s_cmp_eq_u32 s{sR}, 0")
    b("s_cbranch_scc1 L_k1_lb_zero")
    b(f"s_mov_b32 s{sSpin}, 0")
    b("L_k1_lb_again:")
    loads('nocount')
    b("s_waitcnt vmcnt(0)", 'nocount')
    b(f"s_mov_b64 {s(sEX,2)}, -1")
    for mm in range(8):
        b(f"s_cmp_le_u32 s{sR}, {2*mm}")
        b("s_cbranch_scc1 L_k1_lb_checked")
        b(f"s_cmp_ge_u32 s{sR}, {2*mm+2}")
        b(f"s_cselect_b32 s{sT1}, 0, -1")
        b(f"v_cmp_eq_u32 vcc, v{vU+4*mm+2}, v{vNon}")
        b(f"v_cmp_eq_u32 {s(sT2,2)}, v{vU+4*mm+3}, v{vNon+1}")
        b(f"s_and_b64 vcc, vcc, {s(sT2,2)}")
        b(f"s_or_b32 vcc_hi, vcc_hi, s{sT1}")
        b(f"s_and_b64 {s(sEX,2)}, {s(sEX,2)}, vcc")
    b("L_k1_lb_checked:")
    b(f"s_cmp_eq_u64 {s(sEX,2)}, -1")
    b("s_cbranch_scc1 L_k1_lb_ok")
    b(f"s_add_u32 s{sSpin}, s{sSpin}, 1")
    b(f"s_cmp_gt_u32 s{sSpin}, 40000")
    b("s_cbranch_scc1 L_k1_lb_ok")
    b(f"s_sleep {int(opts.get('lbsleep', 4))}")
    b("s_branch L_k1_lb_again")
    b("L_k1_lb_ok:")
    b(f"v_mov_b32 v{H}, 0\nv_mov_b32 v{H+1}, 0")
    for mm in range(7, -1, -1):
        b(f"s_cmp_le_u32 s{sR}, {2*mm}")
        b(f"s_cbranch_scc1 L_k1_lb_h{mm}")
        b(f"s_cmp_ge_u32 s{sR}, {2*mm+2}")
        b(f"s_cselect_b32 s{sT3}, -1, 0")
        b(f"s_mov_b32 s{sT2}, -1")
        b(f"v_cndmask_b32 v{vU+4*mm}, 0, v{vU+4*mm}, {s(sT2,2)}")
        b(f"v_cndmask_b32 v{vU+4*mm+1}, 0, v{vU+4*mm+1}, {s(sT2,2)}")
        b(f"v_fma_f32 v{tmp}, v{vL256}, v{H}, v{vU+4*mm}")
        b(f"v_fma_f32 v{tmp+1}, v{vL256}, v{H+1}, v{vU+4*mm+1}")
        b(f"v_fma_f32 v{tmp}, -v{vL256+1}, v{H+1}, v{tmp}")
        b(f"v_fma_f32 v{H+1}, v{vL256+1}, v{H}, v{tmp+1}")
        b(f"v_mov_b32 v{H}, v{tmp}")
        b(f"L_k1_lb_h{mm}:")
    b(f"v_mov_b32 v{vPre}, v{H}\nv_mov_b32 v{vPre+1}, v{H+1}")
    b(f"v_permlane32_swap_b32 v{H}, v{vPre}")
    b(f"v_permlane32_swap_b32 v{H+1}, v{vPre+1}")
    cfma_s(b, t, vL128, vPre, H, tmp)
    cfma_s(b, vQ, vG, t, vK, tmp)
    b("s_branch L_k1_lb_done")
    b("L_k1_lb_zero:")
    b(f"v_mov_b32 v{vQ}, v{vK}\nv_mov_b32 v{vQ+1}, v{vK+1}")
    b("L_k1_lb_done:")
    return b

def k1_final():
    b = B()
    tmp = vTmp
    prev = vQ
    for t in range(16):
        r = reg_of_t(t)
        u = vU + 2 * r
        cfma_sr(b, u, vL, prev, aRE + r, aIM + r, tmp)
        prev = u
    for r in range(16):
        u = vU + 2 * r
        tp = vP + 2 * (r % 4)
        b(f"v_mul_f32 v{tp}, v{vC2}, v{u}")
        b(f"v_mul_f32 v{tp+1}, v{vC2+1}, v{u}")
        b(f"v_fma_f32 v{u}, -v{vC2+1}, v{u+1}, v{tp}")
        b(f"v_fma_f32 v{u+1}, v{vC2}, v{u+1}, v{tp+1}")
    for k in range(8):
        b(f"v_cvt_pk_bf16_f32 v{aRE+k}, v{vU+4*k}, v{vU+4*k+2}")
    for h in range(2):
        b(f"ds_write_b128 v{vImgW}, {v(aRE+4*h,4)} offset:{IMG + h*16}", "img")
    for k in range(8):
        b(f"v_cvt_pk_bf16_f32 v{aRE+8+k}, -v{vU+4*k+1}, -v{vU+4*k+3}")
    for h in range(2):
        b(f"ds_write_b128 v{vImgW}, {v(aRE+8+4*h,4)} offset:{IMG + 2560 + h*16}", "img")
    b(f"s_lshl_b32 s{sT2}, s{sS}, 12")
    b(f"s_add_u32 s{sT1}, s{sHFb}, s{sT2}")
    b.wait('lg', "img")
    for m in range(2):
        for kk in range(2):
            r = aIM + (2*m + kk) * 4
            for rd in range(2):
                b(f"ds_read_b64_tr_b16 {v(r+2*rd,2)}, v{vImgR} offset:{IMG + (m*32 + 16*kk + 4*rd)*80}")
    for m in range(2):
        for kk in range(2):
            r = aIM + (2*m + kk) * 4
            b(f"s_add_u32 s{sT2}, s{sT1}, {(2*m+kk)*1024}")
            b(f"buffer_store_dwordx4 {v(r,4)}, v{vL16o}, {s(sHF,4)}, s{sT2} offen {STF}")
    return b


pA, pC1, pC2 = 36, 40, 44
pH, pN, pK0, pLw, pOff = 72, 73, 74, 75, 76
pNib = 84
CST = 98304
vCe, vCo, vPp = 2, 3, 4
vH0g, vH1g, vH0k, vH1k = 2, 3, 4, 5
vTau, vSg, vSk = 8, 10, 12
vWrq = 16
PITCH = 256

def p2_ids(b):
    b(f"s_lshr_b32 s{pH}, s{sS}, 3")
    b(f"s_and_b32 s{pN}, s{sS}, 7")

def p2_S_csetup():
    b = B(); L = vLane; t = vP
    p2_ids(b)
    srd(b, pC1, 14, 512*1024)
    srd(b, pC2, 16, 512*1024)
    b(f"v_and_b32 v{t}, 7, v{L}")
    b(f"v_lshrrev_b32 v{t+1}, 4, v{L}")
    b(f"v_xor_b32 v{t}, v{t}, v{t+1}")
    b(f"v_lshlrev_b32 v{t}, 4, v{t}")
    b(f"v_lshrrev_b32 v{t+1}, 3, v{L}")
    b(f"v_lshlrev_b32 v{t+1}, 10, v{t+1}")
    b(f"v_add_u32 v{vCe}, v{t}, v{t+1}")
    b(f"v_xor_b32 v{vCo}, 64, v{vCe}")
    b(f"s_lshl_b32 s{pOff}, s{pN}, 16")
    b(f"s_lshl_b32 s{sT0}, s{pH}, 9")
    b(f"s_add_u32 s{pOff}, s{pOff}, s{sT0}")
    b(f"s_lshl_b32 s{sT0}, s{sWm}, 7")
    b(f"s_add_u32 s{pOff}, s{pOff}, s{sT0}")
    b(f"s_lshl_b32 s{pLw}, s{sWm}, 14")
    b(f"s_add_u32 s{pLw}, s{pLw}, {CST}")
    b(f"v_and_b32 v{t}, 31, v{L}")
    b(f"v_lshlrev_b32 v{t}, 7, v{t}")
    b(f"v_add_u32 v{t}, s{pLw}, v{t}")
    b(f"v_lshrrev_b32 v{t+1}, 5, v{L}")
    b(f"v_bfe_u32 v{t+2}, v{L}, 1, 3")
    b(f"v_xor_b32 v{t+2}, v{t+1}, v{t+2}")
    for k in range(4):
        b(f"v_xor_b32 v{t+1}, {2*k}, v{t+2}")
        b(f"v_lshl_add_u32 v{vPp+k}, v{t+1}, 4, v{t}")
    return b

def p2_S_cdma():
    b = B()
    for m in range(2):
        for aa in range(8):
            b(f"s_add_u32 m0, s{pLw}, {m*8192 + aa*1024}")
            b(f"s_add_u32 s{sT0}, s{pOff}, {aa*8192}")
            b(f"buffer_load_dwordx4 v{vCe if aa % 2 == 0 else vCo}, {s(pC1 if m == 0 else pC2,4)}, s{sT0} offen lds", "cst")
    return b

ROT2 = int(opts.get('rot2', 0))
pKS = 48
def p2_S_creads():
    b = B()
    if not ROT2:
        b.wait('vm', "cst")
        for j in range(8):
            m = (j >> 1) & 1; ksp = 2 * (j >> 2) + (j & 1)
            for aa in range(2):
                b(f"ds_read_b128 {a(8*j+4*aa,4)}, v{vPp+ksp} offset:{m*8192 + aa*4096}")
        for j in range(8): b(f"s_mov_b32 s{pKS+j}, {j*1024}")
        return b
    t = vP; L = vLane
    b(f"v_and_b32 v{t}, 31, v{L}")
    b(f"v_lshlrev_b32 v{t}, 7, v{t}")
    b(f"v_add_u32 v{t}, s{pLw}, v{t}")
    b(f"v_lshrrev_b32 v{t+1}, 5, v{L}")
    b(f"v_bfe_u32 v{t+2}, v{L}, 1, 3")
    b(f"v_xor_b32 v{t+1}, v{t+1}, v{t+2}")
    b.wait('vm', "cst")
    for j in range(8):
        b(f"s_add_u32 s{sT0}, s{pN}, {j}")
        b(f"s_and_b32 s{sT0}, s{sT0}, 7")
        b(f"s_lshl_b32 s{pKS+j}, s{sT0}, 10")
        b(f"s_lshr_b32 s{sT1}, s{sT0}, 2")
        b(f"s_lshl_b32 s{sT1}, s{sT1}, 1")
        b(f"s_and_b32 s{sT2}, s{sT0}, 1")
        b(f"s_add_u32 s{sT1}, s{sT1}, s{sT2}")
        b(f"s_lshl_b32 s{sT1}, s{sT1}, 1")
        b(f"s_bfe_u32 s{sT2}, s{sT0}, 0x10001")
        b(f"s_lshl_b32 s{sT2}, s{sT2}, 13")
        tt = t + 4 + (j % 4)
        b(f"v_xor_b32 v{tt}, s{sT1}, v{t+1}")
        b(f"v_lshl_add_u32 v{tt}, v{tt}, 4, v{t}")
        b(f"v_add_u32 v{tt}, s{sT2}, v{tt}")
        for aa in range(2):
            b(f"ds_read_b128 {a(8*j+4*aa,4)}, v{tt} offset:{aa*4096}")
    return b

def p2_common(b, role):
    L = vLane
    srd(b, pA, 34, WS_USED)
    b(f"s_xor_b32 s{sT0}, s{pH}, 1")
    b(f"s_lshl_b32 s{sT0}, s{sT0}, 1")
    b(f"s_lshl_b32 s{sT1}, s{sR}, 2")
    b(f"s_add_u32 s{sT0}, s{sT0}, s{sT1}")
    b(f"s_mul_i32 s{sT0}, s{sT0}, {176*1024}")
    b(f"v_lshlrev_b32 v6, 4, v{L}")
    b(f"v_add_u32 v{vH0g}, s{sT0}, v6")
    b(f"v_add_u32 v{vH1g}, {176*1024}, v{vH0g}")
    b(f"s_lshl_b32 s{sT0}, s{pH}, 2")
    b(f"s_sub_u32 s{sT0}, s{sT0}, 2")
    b(f"s_mul_i32 s{sT0}, s{sT0}, {176*1024}")
    b(f"v_add_u32 v{vH0k}, s{sT0}, v{vH0g}")
    b(f"v_add_u32 v{vH1k}, s{sT0}, v{vH1g}")
    b(f"s_lshl_b32 s{pK0}, s{pH}, 2")
    b(f"s_add_u32 s{pK0}, s{pK0}, s{sWm}")
    if role == 0:
        b(f"s_lshl_b32 s{pK0}, s{pK0}, 13")
    else:
        b(f"s_mul_i32 s{pK0}, s{pK0}, {14*1024}")
        b(f"s_add_u32 s{pK0}, s{pK0}, {64*1024}")

def p2_common2(b, role):
    L = vLane
    b(f"v_bfe_u32 v6, v{L}, 3, 2")
    b(f"v_and_b32 v7, 7, v{L}")
    b(f"v_lshl_add_u32 v{vTau}, v7, 2, v6")
    b(f"s_xor_b32 s{sT0}, s{pH}, 1")
    b(f"s_lshl_b32 s{sT0}, s{sT0}, 6")
    b(f"s_lshl_b32 s{sT1}, s{sR}, 7")
    b(f"s_add_u32 s{sT0}, s{sT0}, s{sT1}")
    b(f"v_add_u32 v6, s{sT0}, v{vTau}")
    b("v_lshlrev_b32 v6, 3, v6")
    b(f"v_add_u32 v6, {G_OFF + 4*role}, v6")
    b(f"global_load_dword v{vSg}, v6, s[34:35] sc1")
    b(f"global_load_dword v{vSg+1}, v6, s[34:35] offset:256 sc1")
    b(f"s_lshl_b32 s{sT0}, s{pH}, 7")
    b(f"s_sub_u32 s{sT0}, s{sT0}, 64")
    b(f"s_lshl_b32 s{sT0}, s{sT0}, 3")
    b(f"v_add_u32 v6, s{sT0}, v6")
    b(f"global_load_dword v{vSk}, v6, s[34:35] sc1")
    b(f"global_load_dword v{vSk+1}, v6, s[34:35] offset:256 sc1")
    b(f"s_lshl_b32 s{sT0}, s{sWm}, 14")
    if role == 0: b(f"s_add_u32 s{sT0}, s{sT0}, {CST}")
    b(f"v_lshlrev_b32 v9, 8, v{vTau}")
    b(f"v_add_u32 v9, s{sT0}, v9")
    b(f"v_lshrrev_b32 v6, 5, v{L}")
    b(f"v_and_b32 v7, 7, v{L}")
    b("v_xor_b32 v6, v6, v7")
    for q in range(4):
        b(f"v_xor_b32 v7, {2*q}, v6")
        b(f"v_lshl_add_u32 v{vWrq+q}, v7, 4, v9")

def p2_rwrite(b, acc, sc, dup=None):
    if dup is not None:
        b(f"v_mov_b32 v{dup}, v{sc}\nv_mov_b32 v{dup+1}, v{sc}\nv_mov_b32 v{dup+2}, v{sc+1}\nv_mov_b32 v{dup+3}, v{sc+1}")
    for aa in range(2):
        for bb in range(2):
            S = acc + (aa*2+bb)*16
            g = sc + bb
            gp = g & ~1; o = g & 1
            if dup is not None:
                for p in range(8):
                    b(f"v_pk_mul_f32 {v(S+2*p,2)}, {v(S+2*p,2)}, {v(dup+2*bb,2)}")
            elif opts.get('rw', 'scalar') == 'pk':
                for p in range(8):
                    b(f"v_pk_mul_f32 {v(S+2*p,2)}, {v(S+2*p,2)}, {v(gp,2)} op_sel:[0,{o}] op_sel_hi:[1,{o}]")
            else:
                for p in range(16):
                    b(f"v_mul_f32 v{S+p}, v{g}, v{S+p}")
            for q in range(4):
                b(f"ds_write_b128 v{vWrq+q}, {v(S+4*q,4)} offset:{bb*32*PITCH + aa*128}", "red")
    b.wait('lg', "red")

def p2_F():
    b = B(); L = vLane
    b("L_p2_F:")
    b("s_waitcnt vmcnt(0) lgkmcnt(0)")
    b("s_barrier")
    if int(opts.get('p2prio', 0)): b(f"s_setprio {int(opts.get('p2prio', 0))}")
    stamp(b, 7)
    p2_ids(b)
    srd(b, pC1, 26, 1792*1024)
    vWa, vWb, vTp = 6, 7, 20
    t = 24
    b(f"v_bfe_u32 v{t}, v{L}, 4, 1")
    b(f"v_lshlrev_b32 v{t}, 2, v{t}")
    b(f"v_and_b32 v{t+1}, 7, v{L}")
    b(f"v_xor_b32 v{t}, v{t}, v{t+1}")
    b(f"v_lshlrev_b32 v{t}, 4, v{t}")
    b(f"v_lshrrev_b32 v{t+1}, 3, v{L}")
    b(f"v_lshlrev_b32 v{t+1}, 10, v{t+1}")
    b(f"v_add_u32 v{vWa}, v{t}, v{t+1}")
    b(f"v_add_u32 v{vWb}, {8192 - 1024}, v{vWa}")
    b(f"s_lshl_b32 s{sT0}, s{pH}, 2")
    b(f"s_add_u32 s{sT0}, s{sT0}, s{sWm}")
    b(f"s_mul_i32 s{pOff}, s{sT0}, {14*16*1024}")
    b(f"s_lshl_b32 s{sT0}, s{pN}, 7")
    b(f"s_add_u32 s{pOff}, s{pOff}, s{sT0}")
    b(f"s_lshl_b32 s{pLw}, s{sWm}, 14")
    pKF = [48, 49, 50, 51, 52, 53, 54, 55, 77, 78, 79, 80, 81, 82]
    if ROT2:
        b(f"s_mul_i32 s{sT2}, s{pN}, 7")
        b(f"s_lshr_b32 s{sT2}, s{sT2}, 2")
        for i in range(14):
            b(f"s_add_u32 s{pKF[i]}, s{sT2}, {i}")
            b(f"s_cmp_ge_u32 s{pKF[i]}, 14")
            b(f"s_cselect_b32 s{sT3}, 14, 0")
            b(f"s_sub_u32 s{pKF[i]}, s{pKF[i]}, s{sT3}")
            b(f"s_lshl_b32 s{pKF[i]}, s{pKF[i]}, 10")
    else:
        for i in range(14): b(f"s_mov_b32 s{pKF[i]}, {i*1024}")
    def wdma(i):
        b(f"s_add_u32 m0, s{pLw}, {(i % 8)*2048}")
        b(f"s_lshl_b32 s{sT1}, s{pKF[i]}, 4")
        b(f"s_add_u32 s{sT1}, s{sT1}, s{pOff}")
        b(f"buffer_load_dwordx4 v{vWa}, {s(pC1,4)}, s{sT1} offen lds", f"f{i}")
        b(f"buffer_load_dwordx4 v{vWb}, {s(pC1,4)}, s{sT1} offen offset:1024 lds", f"f{i}")
    NPRE = int(opts.get('npre', 8))
    for i in range(min(NPRE, 8)): wdma(i)
    tr_pattern(b, vTp, 4, t)
    b(f"v_add_u32 v{vTp}, s{pLw}, v{vTp}")
    b(f"v_add_u32 v{vTp+1}, s{pLw}, v{vTp+1}")
    b(f"v_mov_b32 v22, v{vWa}\nv_mov_b32 v23, v{vWb}")
    vWa, vWb = 22, 23
    p2_common(b, 1)
    def wreads(i):
        b.wait('vm', f"f{i}")
        for aa in range(2):
            for rd in range(2):
                b(f"ds_read_b64_tr_b16 {a(8*i+4*aa+2*rd,2)}, v{vTp+aa} offset:{(i % 8)*2048 + rd*1024}", f"wr{i}")
    NRD = max(0, NPRE - 8)
    for i in range(NRD):
        wreads(i)
        b.wait('lg', f"wr{i}")
        wdma(8 + i)
    stamp(b, 24)
    b("s_barrier")
    stamp(b, 25)
    NSF, D = 14, 7
    def hreg(idx, k):
        sl = idx % D
        return v(24 + sl*8 + 4*k, 4) if sl < 5 else a(112 + (sl-5)*8 + 4*k, 4)
    def hload(idx):
        ps, i = divmod(idx, NSF)
        h0, h1 = (vH0g, vH1g) if ps == 0 else (vH0k, vH1k)
        b(f"s_add_u32 s{sT0}, s{pK0}, s{pKF[i]}")
        b(f"buffer_load_dwordx4 {hreg(idx,0)}, v{h0}, {s(pA,4)}, s{sT0} offen sc1")
        b(f"buffer_load_dwordx4 {hreg(idx,1)}, v{h1}, {s(pA,4)}, s{sT0} offen sc1")
    hload(0)
    rest = list(range(NPRE, 8))
    if rest: wdma(rest.pop(0))
    hload(1)
    if rest: wdma(rest.pop(0))
    for i in range(max(NRD, 0), max(NRD, 2)): wreads(i)
    hload(2)
    if rest: wdma(rest.pop(0))
    hload(3)
    for i in rest: wdma(i)
    DH1 = int(opts.get('dh1', 7))
    p2_common2(b, 1)
    for k in range(4, DH1): hload(k)
    stamp(b, 26)
    acc = 64
    def step(idx):
        ps, i = divmod(idx, NSF)
        mf = [f"v_mfma_f32_32x32x16_bf16 {v(acc+(aa*2+bb)*16,16)}, {a(8*i+4*aa,4)}, {hreg(idx,bb)}, {v(acc+(aa*2+bb)*16,16) if i else 0}" for aa in range(2) for bb in range(2)]
        b.wait('lg', f"wr{i}")
        b(mf[0])
        if 8 + i < 14 and i >= NRD: wdma(8 + i)
        b(mf[1])
        if i + 2 < 14 and i + 2 >= max(NRD, 2): wreads(i + 2)
        b(mf[2])
        n0 = len(b.ops)
        KP = int(opts.get('kp', 1))
        tg = [i + DH1] if i + DH1 < NSF else ([NSF + (i - (NSF - KP))] if i >= NSF - KP else [])
        for t_ in tg: hload(t_)
        ld = b.ops[n0:]; del b.ops[n0:]
        cut = [j for j, o in enumerate(ld) if o.kind == 'vmem']
        if cut:
            b.ext(ld[:cut[0] + 1]); b(mf[3]); b.ext(ld[cut[0] + 1:])
        else: b(mf[3])
        if i == NSF - 1 - DH1: b("s_barrier")
    for idx in range(NSF): step(idx)
    stamp(b, 27)
    n0 = len(b.ops); p2_rwrite(b, acc, vSg); rw = b.ops[n0:]; del b.ops[n0:]
    n0 = len(b.ops)
    for k in range(int(opts.get('kp', 1)), 7): hload(NSF + k)
    hl = chunks_of(b.ops[n0:]); del b.ops[n0:]
    body, tail = rw[:-1], rw[-1:]
    if int(opts.get('r1il', 1)):
        gap = max(1, len(body) // (len(hl) + 1)); outp = []
        for j, o in enumerate(body):
            outp.append(o)
            if (j + 1) % gap == 0 and hl: outp.extend(hl.pop(0))
        for c in hl: outp.extend(c)
        b.ext(outp + tail)
        b("s_barrier")
    else:
        b.ext(body + tail)
        b("s_barrier")
        for c in hl: b.ext(c)
    def step2(idx):
        i = idx - NSF
        mf = [f"v_mfma_f32_32x32x16_bf16 {v(acc+(aa*2+bb)*16,16)}, {a(8*i+4*aa,4)}, {hreg(idx,bb)}, {v(acc+(aa*2+bb)*16,16) if i else 0}" for aa in range(2) for bb in range(2)]
        b(mf[0]); b(mf[1]); b(mf[2])
        n0 = len(b.ops)
        if idx + D < 2 * NSF: hload(idx + D)
        ld = b.ops[n0:]; del b.ops[n0:]
        cut = [j for j, o in enumerate(ld) if o.kind == 'vmem']
        if cut:
            b.ext(ld[:cut[0] + 1]); b(mf[3]); b.ext(ld[cut[0] + 1:])
        else: b(mf[3])
    for idx in range(NSF, 2 * NSF):
        step2(idx)
        if idx == NSF + 3: b("s_barrier")
    stamp(b, 28)
    p2_rwrite(b, acc, vSk, 24 if int(opts.get('r2pk', 1)) else None)
    b("s_barrier")
    stamp(b, 29)
    return b

def p2_S():
    b = B(); L = vLane
    b("s_waitcnt vmcnt(0) lgkmcnt(0)")
    b("s_barrier")
    stamp(b, 7)
    b(f"s_cmp_lg_u32 s{sWm}, 0")
    b("s_cbranch_scc1 L_p2_noflag")
    b(f"s_mul_i32 s{sT0}, s{sR}, {FLG_STRIDE}")
    b(f"s_add_u32 s{sT0}, s{sT0}, {FLG_OFF}")
    b(f"s_lshl_b32 s{sT1}, s{sS}, 3")
    b(f"s_add_u32 s{sT1}, s{sT1}, s{sT0}")
    b(f"v_mov_b32 v6, s{sT1}")
    b(f"global_store_dwordx2 v6, {v(vNon,2)}, s[34:35] sc0 sc1", 'nocount')
    b(f"v_and_b32 v6, 15, v{L}")
    b("v_lshlrev_b32 v6, 3, v6")
    b(f"v_add_u32 v6, s{sT0}, v6")
    b(f"s_mov_b32 s{sSpin}, 0")
    NP = int(opts.get('npoll', 1))
    SL = int(opts.get('pollsl', 0))
    for k in range(NP):
        b(f"global_load_dwordx2 {v(24+2*k,2)}, v6, s[34:35] sc1", 'nocount')
        if SL: b(f"s_sleep {SL}")
    b("L_p2_poll:")
    for k in range(NP):
        b(f"s_waitcnt vmcnt({NP-1})", 'nocount')
        b(f"v_cmp_eq_u32 vcc, v{24+2*k}, v{vNon}")
        b(f"v_cmp_eq_u32 {s(sT2,2)}, v{24+2*k+1}, v{vNon+1}")
        b(f"s_and_b64 vcc, vcc, {s(sT2,2)}")
        b("s_cmp_eq_u64 vcc, -1")
        b("s_cbranch_scc1 L_p2_polled")
        b(f"global_load_dwordx2 {v(24+2*k,2)}, v6, s[34:35] sc1", 'nocount')
    b(f"s_add_u32 s{sSpin}, s{sSpin}, 1")
    b(f"s_cmp_gt_u32 s{sSpin}, 100000")
    b("s_cbranch_scc0 L_p2_poll")
    b("L_p2_polled:")
    b("L_p2_noflag:")
    b(f"v_readfirstlane_b32 s{sT0}, v{vNon}")
    for j in range(4):
        b(f"s_bfe_u32 s{pNib+j}, s{sT0}, {(4 << 16) | (4*j):#x}")
    p2_common(b, 0)
    stamp(b, 24)
    b("s_barrier")
    if int(opts.get('p2prio', 0)): b("s_setprio 0")
    stamp(b, 25)
    def hreg(j, k): return a(64 + 8*j + 4*k, 4)
    def hload(j, ps):
        h0, h1 = (vH0g, vH1g) if ps == 0 else (vH0k, vH1k)
        b(f"s_add_u32 s{sT0}, s{pK0}, s{pKS+j}")
        b(f"buffer_load_dwordx4 {hreg(j,0)}, v{h0}, {s(pA,4)}, s{sT0} offen sc1")
        b(f"buffer_load_dwordx4 {hreg(j,1)}, v{h1}, {s(pA,4)}, s{sT0} offen sc1")
    DS1 = int(opts.get('ds1', 4))
    for j in range(DS1): hload(j, 0)
    p2_common2(b, 0)
    vRE, vRO, vREh, vROh = 20, 21, 22, 23
    b("v_lshrrev_b32 v6, 4, v0")
    b("v_and_b32 v7, 15, v0")
    b("v_lshrrev_b32 v9, 6, v0")
    b("v_xor_b32 v9, v9, v7")
    b(f"v_lshlrev_b32 v{vRE}, 8, v6")
    b(f"v_lshl_add_u32 v{vRE}, v9, 4, v{vRE}")
    b(f"v_xor_b32 v{vRO}, 64, v{vRE}")
    b(f"v_add_u32 v{vREh}, {CST}, v{vRE}")
    b(f"v_add_u32 v{vROh}, {CST}, v{vRO}")
    stamp(b, 26)
    acc = 64
    def mf(j): return [f"v_mfma_f32_32x32x16_bf16 {v(acc+(aa*2+bb)*16,16)}, {a(8*j+4*aa,4)}, {hreg(j,bb)}, {v(acc+(aa*2+bb)*16,16) if j else 0}" for aa in range(2) for bb in range(2)]
    for j in range(8):
        for t_ in mf(j): b(t_)
        if j + DS1 < 8: hload(j + DS1, 0)
    stamp(b, 27)
    p2_rwrite(b, acc, vSg)
    b("s_barrier")
    for j in range(8): hload(j, 1)
    for j in range(8):
        for t_ in mf(j): b(t_)
    stamp(b, 28)
    b("s_barrier")
    def padd(d, x, y, pk):
        if pk: b(f"v_pk_add_f32 {v(d,2)}, {v(x,2)}, {v(y,2)}")
        else:
            b(f"v_add_f32 v{d}, v{x}, v{y}"); b(f"v_add_f32 v{d+1}, v{x+1}, v{y+1}")
    def reduce(p, dst, pk):
        T = 24
        for w in range(8):
            base = (vRE if p % 2 == 0 else vRO) if w < 4 else (vREh if p % 2 == 0 else vROh)
            b(f"ds_read_b128 {v(T+4*w,4)}, v{base} offset:{(w % 4)*16384 + p*4096}")
        for w in range(0, 8, 2):
            padd(T+4*w, T+4*w, T+4*w+4, pk); padd(T+4*w+2, T+4*w+2, T+4*w+6, pk)
        for w in (0, 4):
            padd(T+4*w, T+4*w, T+4*w+8, pk); padd(T+4*w+2, T+4*w+2, T+4*w+10, pk)
        padd(dst, T, T+16, pk); padd(dst+2, T+2, T+18, pk)
    b("v_lshlrev_b32 v6, 4, v0")
    b(f"s_lshl_b32 s{sT0}, s2, 14")
    b(f"s_add_u32 s{sT0}, s{sT0}, {XCH_OFF}")
    b(f"v_add_u32 v6, s{sT0}, v6")
    for p in range(4):
        d = 56 + 4 * (p % 2)
        reduce(p, d, False)
        for e in range(4): b(f"v_and_or_b32 v{d+e}, v{d+e}, -16, s{pNib+e}")
        if p: b(f"v_add_u32 v6, 4096, v6")
        b(f"global_store_dwordx4 v6, {v(d,4)}, s[34:35] sc0 sc1")
    b("s_barrier")
    p2_rwrite(b, acc, vSk)
    PR_, BI, XV = 64, 80, 96
    b("v_lshlrev_b32 v6, 4, v0")
    b(f"s_xor_b32 s{sT1}, s2, 1")
    b(f"s_lshl_b32 s{sT0}, s{sT1}, 14")
    b(f"s_add_u32 s{sT0}, s{sT0}, {XCH_OFF}")
    b(f"v_add_u32 v9, s{sT0}, v6")
    def prt(tok):
        for p in range(4):
            if p: b(f"v_add_u32 v7, {p*4096}, v9")
            b(f"global_load_dwordx4 {v(PR_+4*p,4)}, v{7 if p else 9}, s[34:35] sc1", tok)
    prt("prt")
    b("v_lshrrev_b32 v6, 4, v0")
    b("v_and_b32 v8, 15, v0")
    b(f"s_lshl_b32 s{sT0}, s{sR}, 7")
    b(f"s_lshl_b32 s{sT1}, s{pH}, 6")
    b(f"s_add_u32 s{sT0}, s{sT0}, s{sT1}")
    b(f"v_add_u32 v6, s{sT0}, v6")
    b(f"s_lshl_b32 s{sT1}, s{pN}, 7")
    b("v_lshlrev_b32 v2, 10, v6")
    b("v_lshl_add_u32 v2, v8, 3, v2")
    b(f"v_add_u32 v2, s{sT1}, v2")
    for p in range(4):
        if p: b(f"v_add_u32 v2, {16*1024}, v2")
        b(f"global_load_dwordx2 {v(XV+2*p,2)}, v2, s[4:5]")
    b("v_lshlrev_b32 v2, 3, v8")
    b(f"v_add_u32 v2, s{sT1}, v2")
    b(f"global_load_dwordx2 {v(XV+8,2)}, v2, s[20:21]")
    b("v_lshlrev_b32 v2, 3, v6")
    b(f"v_add_u32 v2, {G_OFF}, v2")
    for p in range(4):
        b(f"global_load_dword v{XV+10+p}, v2, s[34:35] offset:{p*128} sc1")
    b(f"s_lshl_b32 s{sT1}, s{pN}, 8")
    b("v_lshlrev_b32 v2, 11, v6")
    b("v_lshl_add_u32 v2, v8, 4, v2")
    b(f"v_add_u32 v2, s{sT1}, v2")
    DS_ = XV + 14
    b(f"v_lshlrev_b32 v{DS_}, 16, v{XV+8}\nv_and_b32 v{DS_+1}, 0xffff0000, v{XV+8}\nv_lshlrev_b32 v{DS_+2}, 16, v{XV+9}\nv_and_b32 v{DS_+3}, 0xffff0000, v{XV+9}")
    for p in range(4):
        xs = XV + 2*p; tp = BI + 4*p
        b(f"v_lshlrev_b32 v{tp}, 16, v{xs}\nv_and_b32 v{tp+1}, 0xffff0000, v{xs}\nv_lshlrev_b32 v{tp+2}, 16, v{xs+1}\nv_and_b32 v{tp+3}, 0xffff0000, v{xs+1}")
        for e in range(4): b(f"v_mul_f32 v{tp+e}, v{tp+e}, v{DS_+e}")
        b(f"v_cvt_pk_bf16_f32 v56, v{tp}, v{tp+1}")
        b(f"v_cvt_pk_bf16_f32 v57, v{tp+2}, v{tp+3}")
        b(f"v_lshlrev_b32 v{tp}, 16, v56\nv_and_b32 v{tp+1}, 0xffff0000, v56\nv_lshlrev_b32 v{tp+2}, 16, v57\nv_and_b32 v{tp+3}, 0xffff0000, v57")
        for e in range(4): b(f"v_mul_f32 v{tp+e}, v{XV+10+p}, v{tp+e}")
    b.wait('vm', "prt")
    b(f"s_mov_b32 s{sSpin}, 0")
    if int(opts.get('prtpoll', 0)):
        b("L_p2_q:")
        b("v_mov_b32 v58, 0")
        for u in range(12, 16):
            b(f"v_xor_b32 v59, s{pNib + (u % 4)}, v{PR_+u}")
            b(f"v_and_or_b32 v58, v59, 15, v58")
        b("v_cmp_eq_u32 vcc, 0, v58")
        b("s_cmp_eq_u64 vcc, -1")
        b("s_cbranch_scc1 L_p2_qok")
        b(f"s_add_u32 s{sSpin}, s{sSpin}, 1")
        b(f"s_cmp_gt_u32 s{sSpin}, 100000")
        b("s_cbranch_scc1 L_p2_qok")
        b(f"v_add_u32 v7, {3*4096}, v9")
        b(f"global_load_dwordx4 {v(PR_+12,4)}, v7, s[34:35] sc1", 'nocount')
        b("s_waitcnt vmcnt(0)", 'nocount')
        b("s_branch L_p2_q")
        b("L_p2_qok:")
    b("L_p2_chk:")
    b("v_mov_b32 v58, 0")
    for u in range(16):
        b(f"v_xor_b32 v{PR_+u}, s{pNib + (u % 4)}, v{PR_+u}")
        b(f"v_and_or_b32 v58, v{PR_+u}, 15, v58")
    b("v_cmp_eq_u32 vcc, 0, v58")
    b("s_cmp_eq_u64 vcc, -1")
    b("s_cbranch_scc1 L_p2_ok")
    b(f"s_add_u32 s{sSpin}, s{sSpin}, 1")
    b(f"s_cmp_gt_u32 s{sSpin}, 100000")
    b("s_cbranch_scc1 L_p2_ok")
    prt('nocount')
    b("s_waitcnt vmcnt(0)", 'nocount')
    b("s_branch L_p2_chk")
    b("L_p2_ok:")
    for u in range(16): b(f"v_add_f32 v{BI+u}, v{BI+u}, v{PR_+u}")
    stamp(b, 29)
    b("s_barrier")
    for p in range(4):
        d = 56 + 4 * (p % 2)
        reduce(p, d, True)
        b(f"v_pk_add_f32 {v(d,2)}, {v(d,2)}, {v(BI+4*p,2)}")
        b(f"v_pk_add_f32 {v(d+2,2)}, {v(d+2,2)}, {v(BI+4*p+2,2)}")
        if p: b(f"v_add_u32 v2, {16*2048}, v2")
        b(f"global_store_dwordx4 v2, {v(d,4)}, s[30:31] {opts.get('outf', 'sc0+sc1').replace('+', ' ')}")
    stamp(b, 30)
    return b

def gen_k1():
    global STV
    STV = 15
    pro = k1_head()
    S = k1_S()
    S.ext(p2_S())
    stamp_end(S, sWm, "s[34:35]", 0x2000000, vLane, 3, 14)
    S("s_endpgm")
    Fm = B(); Fm("L_k1_F:")
    Fm(f"s_cmp_ge_u32 s{sS}, 14")
    Fm("s_cbranch_scc1 L_k1_Fn")
    f1 = k1_F(True)
    f1("s_branch L_p2_F")
    Fn = B(); Fn("L_k1_Fn:")
    f2 = k1_F(False)
    p2f = p2_F()
    if STAMP: p2f(f"s_add_u32 s{sWave}, s{sWm}, 4")
    stamp_end(p2f, sWave, "s[34:35]", 0x2000000, vLane, 3, 14)
    p2f("L_k1_end:")
    p2f("s_endpgm")
    def path(prefix, body, label=None):
        allops = insert_waits(copy.deepcopy(prefix) + body)
        if label:
            idx = [i for i, o in enumerate(allops) if o.text == label][0]
            allops = allops[idx:]
        return insert_hazard_nops(allops)
    out = path([], pro.ops + S.ops)
    out += path(pro.ops, Fm.ops + f1.ops, "L_k1_F:")
    out += path(pro.ops + Fm.ops, Fn.ops + f2.ops, "L_k1_Fn:")
    out += path([], p2f.ops)
    return out

def gen_k2():
    global STV
    STV = 9
    b = B()
    D = 15
    DW = int(opts.get('k2dw', 5))
    sWv, sH, sMt, sN = 40, 41, 42, 43
    sA, sCR, sCI, sW2 = 44, 48, 76, 80
    t0, t1, t2 = 52, 53, 54
    sS0, sF0 = 56, 57
    sLw = 58
    sCoff, sWoff2 = 59, 62
    vH0, vH1 = 4, 5
    vCe, vCo, vWa, vWb = 2, 3, 60, 61
    vPp, vTp = 48, 52
    accS, accF, vBuf = 64, 128, 192
    vNon2 = 14
    vTau = 8
    vG1, vG2 = 10, 12
    PITCH = 256
    LRED = 0
    LSTG = 65536
    code_prefetch(b, K2, "L_code_end", 2, "k2", 6, 63)
    dbgt_begin(b)
    stamp_begin(b)
    b("s_load_dwordx2 s[18:19], s[0:1], 112")
    b("s_load_dwordx2 s[4:5], s[0:1], 0")
    b("s_load_dwordx4 s[12:15], s[0:1], 40")
    b("s_load_dwordx2 s[6:7], s[0:1], 64")
    b("s_load_dwordx2 s[16:17], s[0:1], 88")
    b("s_load_dwordx2 s[8:9], s[0:1], 104")
    b("s_load_dwordx2 s[10:11], s[0:1], 120")
    b("s_cmp_ge_u32 s2, 256")
    b("s_cbranch_scc1 L_k2_end")
    b("v_lshrrev_b32 v6, 6, v0")
    b("v_and_b32 v1, 63, v0")
    b(f"v_readfirstlane_b32 s{sWv}, v6")
    b(f"s_and_b32 s{sH}, s2, 1")
    b(f"s_bfe_u32 s{t0}, s2, 0x20001")
    b(f"s_lshr_b32 s{t1}, s2, 3")
    b(f"s_and_b32 s{sMt}, s{t1}, 3")
    b(f"s_lshl_b32 s{t0}, s{t0}, 2")
    b(f"s_add_u32 s{sMt}, s{sMt}, s{t0}")
    b(f"s_lshr_b32 s{sN}, s{t1}, 2")
    b("v_and_b32 v6, 7, v1")
    b("v_lshrrev_b32 v7, 4, v1")
    b("v_xor_b32 v6, v6, v7")
    b("v_lshlrev_b32 v6, 4, v6")
    b("v_lshrrev_b32 v7, 3, v1")
    b("v_lshlrev_b32 v7, 10, v7")
    b(f"v_add_u32 v{vCe}, v6, v7")
    b(f"v_xor_b32 v{vCo}, 64, v{vCe}")
    b("v_bfe_u32 v6, v1, 4, 1")
    b("v_lshlrev_b32 v6, 2, v6")
    b("v_and_b32 v29, 7, v1")
    b("v_xor_b32 v6, v6, v29")
    b("v_lshlrev_b32 v6, 4, v6")
    b(f"v_add_u32 v{vWa}, v6, v7")
    b(f"v_add_u32 v{vWb}, {8192 - 1024}, v{vWa}")
    b(f"s_lshl_b32 s{sCoff}, s{sN}, 16")
    b(f"s_lshl_b32 s{t0}, s{sH}, 9")
    b(f"s_add_u32 s{sCoff}, s{sCoff}, s{t0}")
    b(f"s_lshl_b32 s{t0}, s{sWv}, 7")
    b(f"s_add_u32 s{sCoff}, s{sCoff}, s{t0}")
    b(f"s_lshl_b32 s{t0}, s{sH}, 2")
    b(f"s_add_u32 s{t0}, s{t0}, s{sWv}")
    b(f"s_mul_i32 s{sWoff2}, s{t0}, {14*16*1024}")
    b(f"s_lshl_b32 s{t0}, s{sN}, 7")
    b(f"s_add_u32 s{sWoff2}, s{sWoff2}, s{t0}")
    b(f"s_mul_i32 s{sLw}, s{sWv}, 24576")
    b(f"s_add_u32 s{sLw}, s{sLw}, {LSTG}")
    b(f"s_xor_b32 s{t0}, s{sH}, 1")
    b(f"s_lshl_b32 s{t0}, s{t0}, 1")
    b(f"s_lshl_b32 s{t1}, s{sMt}, 2")
    b(f"s_add_u32 s{t0}, s{t0}, s{t1}")
    b(f"s_mul_i32 s{t0}, s{t0}, {176*1024}")
    b("v_lshlrev_b32 v6, 4, v1")
    b(f"v_add_u32 v{vH0}, s{t0}, v6")
    b(f"v_add_u32 v{vH1}, {176*1024}, v{vH0}")
    b(f"s_lshl_b32 s{sS0}, s{sH}, 2")
    b(f"s_add_u32 s{sS0}, s{sS0}, s{sWv}")
    b(f"s_lshl_b32 s{sS0}, s{sS0}, 13")
    b(f"s_lshl_b32 s{sF0}, s{sH}, 2")
    b(f"s_add_u32 s{sF0}, s{sF0}, s{sWv}")
    b(f"s_mul_i32 s{sF0}, s{sF0}, {14*1024}")
    b(f"s_add_u32 s{sF0}, s{sF0}, {64*1024}")
    b("s_waitcnt lgkmcnt(0)")
    srd(b, sA, 10, WS_USED)
    srd(b, sCR, 12, 512*1024)
    srd(b, sCI, 14, 512*1024)
    srd(b, sW2, 16, 1792*1024)
    steps = [('S', i) for i in range(8)] + [('F', i) for i in range(14)]
    NS = len(steps)
    seq = [(1, st) for st in range(NS)] + [(2, st) for st in range(NS)]
    def hreg(idx, k):
        sl = idx % D
        if sl < 8: return v(vBuf + sl * 8 + k * 4, 4)
        return a(200 + (sl - 8) * 8 + k * 4, 4)
    def dma_c(m):
        for aa in range(8):
            b(f"s_add_u32 m0, s{sLw}, {m*8192 + aa*1024}")
            b(f"s_add_u32 s{t2}, s{sCoff}, {aa*8192}")
            b(f"buffer_load_dwordx4 v{vCe if aa % 2 == 0 else vCo}, {s(sCR if m == 0 else sCI,4)}, s{t2} offen lds", f"c{m}")
    def wslot(i):
        if i < 4: return 16384 + i * 2048
        if i < 12: return (i - 4) * 2048
        return 16384 + (i - 12) * 2048
    def dma_f(i):
        b(f"s_add_u32 m0, s{sLw}, {wslot(i)}")
        b(f"s_add_u32 s{t2}, s{sWoff2}, {i*16*1024}")
        b(f"buffer_load_dwordx4 v{vWa}, {s(sW2,4)}, s{t2} offen lds", f"f{i}")
        b(f"buffer_load_dwordx4 v{vWb}, {s(sW2,4)}, s{t2} offen offset:1024 lds", f"f{i}")
    def hloads(idx):
        ps, st = seq[idx]
        kind, i = steps[st]
        sb = sS0 if kind == 'S' else sF0
        if ps == 2 and st == 0:
            b(f"s_lshl_b32 s{t0}, s{sH}, 2")
            b(f"s_sub_u32 s{t0}, s{t0}, 2")
            b(f"s_mul_i32 s{t0}, s{t0}, {176*1024}")
            b(f"v_add_u32 v{vH0}, s{t0}, v{vH0}")
            b(f"v_add_u32 v{vH1}, s{t0}, v{vH1}")
        b(f"s_add_u32 s{t1}, s{sb}, {i*1024}")
        b(f"buffer_load_dwordx4 {hreg(idx,0)}, v{vH0}, {s(sA,4)}, s{t1} offen")
        b(f"buffer_load_dwordx4 {hreg(idx,1)}, v{vH1}, {s(sA,4)}, s{t1} offen")
    def wreads_s():
        for j in range(8):
            m = (j >> 1) & 1; ksp = 2 * (j >> 2) + (j & 1)
            if j == 0: b.wait('vm', "c0")
            if j == 2: b.wait('vm', "c1")
            for aa in range(2):
                b(f"ds_read_b128 {a(8*j+4*aa,4)}, v{vPp+ksp} offset:{m*8192 + aa*4096}", f"wr{j}")
    def wreads_f(i):
        st = 8 + i
        b.wait('vm', f"f{i}")
        for aa in range(2):
            for rd in range(2):
                b(f"ds_read_b64_tr_b16 {a(8*st+4*aa+2*rd,2)}, v{vTp+aa} offset:{wslot(i) + rd*8*128}", f"wr{st}")
    if STAMP >= 2: stamp(b, 24)
    dma_c(0)
    hloads(0); hloads(1)
    dma_c(1)
    b("v_and_b32 v6, 31, v1")
    b("v_lshlrev_b32 v6, 7, v6")
    b(f"v_add_u32 v6, s{sLw}, v6")
    b("v_lshrrev_b32 v7, 5, v1")
    b("v_bfe_u32 v29, v1, 1, 3")
    b("v_xor_b32 v29, v7, v29")
    for k in range(4):
        b(f"v_xor_b32 v7, {2*k}, v29")
        b(f"v_lshl_add_u32 v{vPp+k}, v7, 4, v6")
    tr_pattern(b, vTp, 4, 54)
    b(f"v_add_u32 v{vTp}, s{sLw}, v{vTp}")
    b(f"v_add_u32 v{vTp+1}, s{sLw}, v{vTp+1}")
    b("v_bfe_u32 v6, v1, 3, 2")
    b("v_and_b32 v7, 7, v1")
    b(f"v_lshl_add_u32 v{vTau}, v7, 2, v6")
    b(f"s_xor_b32 s{t0}, s{sH}, 1")
    b(f"s_lshl_b32 s{t0}, s{t0}, 6")
    b(f"s_lshl_b32 s{t1}, s{sMt}, 7")
    b(f"s_add_u32 s{t0}, s{t0}, s{t1}")
    b(f"v_add_u32 v6, s{t0}, v{vTau}")
    b("v_lshlrev_b32 v6, 3, v6")
    b(f"v_add_u32 v6, {G_OFF}, v6")
    b(f"global_load_dwordx2 v[10:11], v6, s[10:11]")
    b(f"global_load_dwordx2 v[12:13], v6, s[10:11] offset:256")
    b(f"s_lshl_b32 s{t0}, s{sH}, 7")
    b(f"s_sub_u32 s{t0}, s{t0}, 64")
    b(f"s_lshl_b32 s{t0}, s{t0}, 3")
    b(f"v_add_u32 v6, s{t0}, v6")
    b(f"global_load_dwordx2 v[16:17], v6, s[10:11]")
    b(f"global_load_dwordx2 v[18:19], v6, s[10:11] offset:256")
    b(f"v_mov_b32 v6, {NONCE_OFF}")
    b(f"global_load_dwordx2 {v(vNon2,2)}, v6, s[10:11]")
    if STAMP >= 2: stamp(b, 25)
    DH = int(opts.get('k2dh', 5))
    for idx in range(2, DH): hloads(idx)
    if STAMP >= 2: stamp(b, 26)
    vWr, vRd = 20, 21
    vWrq = 56
    b(f"s_lshl_b32 s{t0}, s{sWv}, 14")
    b(f"v_lshlrev_b32 v29, 8, v{vTau}")
    b(f"v_add_u32 v29, s{t0}, v29")
    b("v_lshrrev_b32 v6, 5, v1")
    b("v_and_b32 v7, 7, v1")
    b("v_xor_b32 v6, v6, v7")
    for q in range(4):
        b(f"v_xor_b32 v7, {2*q}, v6")
        b(f"v_lshl_add_u32 v{vWrq+q}, v7, 4, v29")
    b("v_lshrrev_b32 v22, 4, v0")
    b("v_and_b32 v23, 15, v0")
    b("v_lshrrev_b32 v6, 6, v0")
    b("v_xor_b32 v6, v6, v23")
    b(f"v_lshlrev_b32 v{vRd}, 8, v22")
    b(f"v_lshl_add_u32 v{vRd}, v6, 4, v{vRd}")
    b(f"v_xor_b32 v{vWr}, 64, v{vRd}")
    vXch = 24
    b(f"v_lshlrev_b32 v{vXch}, 4, v0")
    b(f"s_lshl_b32 s{t0}, s2, 14")
    b(f"s_add_u32 s{t0}, s{t0}, {XCH_OFF}")
    b(f"v_add_u32 v25, s{t0}, v{vXch}")
    b(f"s_xor_b32 s{t1}, s2, 1")
    b(f"s_lshl_b32 s{t0}, s{t1}, 14")
    b(f"s_add_u32 s{t0}, s{t0}, {XCH_OFF}")
    b(f"v_add_u32 v26, s{t0}, v{vXch}")
    if STAMP >= 2: stamp(b, 27)
    wreads_s()
    if STAMP >= 2: stamp(b, 28)

    def mfmas(idx):
        ps, st = seq[idx]
        kind, i = steps[st]
        acc = accS if kind == 'S' else accF
        out = []
        for aa in range(2):
            for bb in range(2):
                dreg = v(acc + (aa*2 + bb) * 16, 16)
                c = dreg if i else "0"
                out.append(f"v_mfma_f32_32x32x16_bf16 {dreg}, {a(8*st+4*aa,4)}, {hreg(idx,bb)}, {c}")
        return out

    def reduce_write(g0, g1):
        for aa in range(2):
            for bb in range(2):
                g = g0 if bb == 0 else g1
                S = accS + (aa*2+bb)*16; Fq = accF + (aa*2+bb)*16
                for p in range(8):
                    b(f"v_pk_mul_f32 {v(S+2*p,2)}, {v(S+2*p,2)}, {v(g,2)} op_sel_hi:[1,0]")
                for p in range(8):
                    b(f"v_pk_fma_f32 {v(S+2*p,2)}, {v(Fq+2*p,2)}, {v(g,2)}, {v(S+2*p,2)} op_sel:[0,1,0] op_sel_hi:[1,1,1]")
                for q in range(4):
                    b(f"ds_write_b128 v{vWrq+q}, {v(S+4*q,4)} offset:{LRED + bb*32*PITCH + aa*128}", "red")
        b.wait('lg', "red")
        b("s_barrier")
    def reduce_read(dst, gran=None):
        for p in range(4):
            for w in range(4):
                b(f"ds_read_b128 {v(dst+16*p+4*w,4)}, v{vRd if p % 2 == 0 else vWr} offset:{LRED + w*64*PITCH + p*16*PITCH}")
        for p in range(4):
            r = dst + 16*p
            b(f"v_pk_add_f32 {v(r,2)}, {v(r,2)}, {v(r+4,2)}")
            b(f"v_pk_add_f32 {v(r+2,2)}, {v(r+2,2)}, {v(r+6,2)}")
            b(f"v_pk_add_f32 {v(r+8,2)}, {v(r+8,2)}, {v(r+12,2)}")
            b(f"v_pk_add_f32 {v(r+10,2)}, {v(r+10,2)}, {v(r+14,2)}")
            if gran is None:
                b(f"v_pk_add_f32 {v(r,2)}, {v(r,2)}, {v(r+8,2)}")
                b(f"v_pk_add_f32 {v(r+2,2)}, {v(r+2,2)}, {v(r+10,2)}")
            else:
                for e in range(4):
                    u = 4 * p + e
                    b(f"v_add_f32 v{gran + 4*(u//3) + u%3}, v{r+e}, v{r+8+e}")

    total = len(seq)
    sNib = 84
    XS_ = 32
    PR_ = vBuf
    def r1c():
        f = F()
        for p in range(4):
            for w in range(4):
                f(f"ds_read_b128 {v(accF+16*p+4*w,4)}, v{vRd if p % 2 == 0 else vWr} offset:{LRED + w*64*PITCH + p*16*PITCH}")
        for p in range(4):
            r = accF + 16*p
            for e in range(4): f(f"v_add_f32 v{r+e}, v{r+e}, v{r+4+e}")
            for e in range(4): f(f"v_add_f32 v{r+8+e}, v{r+8+e}, v{r+12+e}")
            for e in range(4): f(f"v_add_f32 v{r+e}, v{r+e}, v{r+8+e}")
            for e in range(4): f(f"v_and_or_b32 v{XS_+4*p+e}, v{r+e}, -16, s{sNib+e}")
        return f
    def step_ops(idx):
        ps, st = seq[idx]
        kind, i = steps[st]
        n00 = len(b.ops)
        mf = mfmas(idx)
        if ps == 1: b.wait('lg', f"wr{st}")
        b(mf[0])
        if ps == 1:
            fi = st - 2
            if st == 6: b.wait('lg', "wr7")
            if 0 <= fi < 14: dma_f(fi)
        b(mf[1])
        if ps == 1 and 8 <= st + 1 < NS:
            wreads_f(st + 1 - 8)
        b(mf[2])
        n0 = len(b.ops)
        tg = []
        if ps == 1:
            if st + DH < NS: tg = [st + DH]
            else:
                j = st + DH - NS
                tg = [NS + 2 * j, NS + 2 * j + 1]
        elif idx + D < total: tg = [idx + D]
        for t_ in tg: hloads(t_)
        ld = b.ops[n0:]; del b.ops[n0:]
        cut = [j for j, o in enumerate(ld) if o.kind == 'vmem']
        if cut:
            b.ext(ld[:cut[0] + 1]); b(mf[3]); b.ext(ld[cut[0] + 1:])
        else:
            b(mf[3])
        ops = b.ops[n00:]; del b.ops[n00:]
        return ops
    for idx in range(NS):
        b.ext(step_ops(idx))
        st = idx
        if st == 2:
            b(f"v_readfirstlane_b32 s{t0}, v{vNon2}")
            for j in range(4):
                b(f"s_bfe_u32 s{sNib+j}, s{t0}, {(4 << 16) | (4*j):#x}")
        if STAMP >= 2 and st in (0, 3, 7, 11, 15, 19): stamp(b, 8 + (0, 3, 7, 11, 15, 19).index(st))
    stamp(b, 1)
    n0 = len(b.ops); reduce_write(vG1, vG2); rw = b.ops[n0:]; del b.ops[n0:]
    K0 = 2 * DH
    n0 = len(b.ops)
    for k in range(K0, 15): hloads(NS + k)
    hl = chunks_of(b.ops[n0:]); del b.ops[n0:]
    body, tail = rw[:-2], rw[-2:]
    gap = max(1, len(body) // (len(hl) + 1))
    outp = []
    for j, o in enumerate(body):
        outp.append(o)
        if (j + 1) % gap == 0 and hl: outp.extend(hl.pop(0))
    for c in hl: outp.extend(c)
    b.ext(outp + tail)
    stamp(b, 2)
    p2a = []
    for st in range(7): p2a += step_ops(NS + st)
    b.ext(merge(p2a, r1c().ops, per=4))
    PL = int(opts.get('k2pl', 16))
    BI = vBuf + 16
    def bias_fill():
        f = F()
        f("v_lshlrev_b32 v4, 16, v40\nv_and_b32 v5, 0xffff0000, v40\nv_lshlrev_b32 v6, 16, v41\nv_and_b32 v7, 0xffff0000, v41")
        for p in range(4):
            xs = 32 + 2*p; tp = BI + 4*p
            f(f"v_lshlrev_b32 v{tp}, 16, v{xs}\nv_and_b32 v{tp+1}, 0xffff0000, v{xs}\nv_lshlrev_b32 v{tp+2}, 16, v{xs+1}\nv_and_b32 v{tp+3}, 0xffff0000, v{xs+1}")
            for e in range(4): f(f"v_mul_f32 v{tp+e}, v{tp+e}, v{4+e}")
            f(f"v_cvt_pk_bf16_f32 v46, v{tp}, v{tp+1}")
            f(f"v_cvt_pk_bf16_f32 v47, v{tp+2}, v{tp+3}")
            f(f"v_lshlrev_b32 v{tp}, 16, v46\nv_and_b32 v{tp+1}, 0xffff0000, v46\nv_lshlrev_b32 v{tp+2}, 16, v47\nv_and_b32 v{tp+3}, 0xffff0000, v47")
            for e in range(4): f(f"v_mul_f32 v{tp+e}, v{42+p}, v{tp+e}")
        return f
    tail_steps = []
    for st in range(7, NS):
        idx = NS + st
        ops = step_ops(idx)
        if 7 <= st <= 10:
            p = st - 7
            pre = B()
            if p: pre(f"v_add_u32 v29, {p*4096}, v25")
            pre(f"global_store_dwordx4 v{29 if p else 25}, {v(XS_+4*p,4)}, s[10:11] sc0 sc1")
            ops = ops[:1] + pre.ops + ops[1:]
        if st >= 17:
            tail_steps += ops
            if st == NS - 1: b.ext(merge(tail_steps, bias_fill().ops, per=4))
            continue
        b.ext(ops)
        if STAMP >= 2 and st in (7, 11, 15, 19): stamp(b, 16 + (0, 3, 7, 11, 15, 19).index(st))
        if st == 11:
            b("s_barrier")
        if st == 11:
            b(f"s_lshl_b32 s{t0}, s{sMt}, 7")
            b(f"s_lshl_b32 s{t1}, s{sH}, 6")
            b(f"s_add_u32 s{t0}, s{t0}, s{t1}")
            b(f"v_add_u32 v30, s{t0}, v22")
            b(f"s_lshl_b32 s{t1}, s{sN}, 7")
            b("v_lshlrev_b32 v31, 10, v30")
            b("v_lshl_add_u32 v31, v23, 3, v31")
            b(f"v_add_u32 v31, s{t1}, v31")
            for p in range(4):
                if p: b(f"v_add_u32 v31, {16*1024}, v31")
                b(f"global_load_dwordx2 {v(32+2*p,2)}, v31, s[4:5]")
            b("v_lshlrev_b32 v31, 3, v23")
            b(f"v_add_u32 v31, s{t1}, v31")
            b(f"global_load_dwordx2 v[40:41], v31, s[6:7]")
            b("v_lshlrev_b32 v31, 3, v30")
            b(f"v_add_u32 v31, {G_OFF}, v31")
            for p in range(4):
                b(f"global_load_dword v{42+p}, v31, s[10:11] offset:{p*128}")
            b(f"s_lshl_b32 s{t1}, s{sN}, 8")
            b("v_lshlrev_b32 v2, 11, v30")
            b("v_lshl_add_u32 v2, v23, 4, v2")
            b(f"v_add_u32 v2, s{t1}, v2")
        if st == PL:
            for p in range(4):
                if p: b(f"v_add_u32 v29, {p*4096}, v26")
                b(f"global_load_dwordx4 {v(PR_+4*p,4)}, v{29 if p else 26}, s[10:11] sc1", "prt")
    stamp(b, 3)
    b.wait('vm', "prt")
    b(f"s_mov_b32 s{t0}, 0")
    b("L_k2_chk:")
    b("v_mov_b32 v46, 0")
    for u in range(16):
        b(f"v_xor_b32 v{PR_+u}, s{sNib + (u % 4)}, v{PR_+u}")
        b(f"v_and_or_b32 v46, v{PR_+u}, 15, v46")
    b("v_cmp_eq_u32 vcc, 0, v46")
    b("s_cmp_eq_u64 vcc, -1")
    b("s_cbranch_scc1 L_k2_ok")
    b(f"s_add_u32 s{t0}, s{t0}, 1")
    b(f"s_cmp_gt_u32 s{t0}, 40000")
    b("s_cbranch_scc1 L_k2_ok")
    for p in range(4):
        if p: b(f"v_add_u32 v29, {p*4096}, v26")
        b(f"global_load_dwordx4 {v(PR_+4*p,4)}, v{29 if p else 26}, s[10:11] sc1", 'nocount')
    b("s_waitcnt vmcnt(0)", 'nocount')
    b("s_branch L_k2_chk")
    b("L_k2_ok:")
    if STAMP >= 2: stamp(b, 30)
    n0 = len(b.ops)
    reduce_write(16, 18)
    rw = b.ops[n0:]; del b.ops[n0:]
    fl = F()
    for u in range(0, 16, 2): fl(f"v_pk_add_f32 {v(BI+u,2)}, {v(BI+u,2)}, {v(PR_+u,2)}")
    b.ext(merge(rw, fl.ops, after=lambda o: o.mn.startswith('ds_write'), per=1))
    if STAMP >= 2: stamp(b, 31)
    reduce_read(accF)
    if STAMP >= 2: stamp(b, 32)
    OUTF = opts.get('outf', '').replace('+', ' ')
    for p in range(4):
        r = accF + 16*p
        b(f"v_pk_add_f32 {v(r,2)}, {v(r,2)}, {v(BI+4*p,2)}")
        b(f"v_pk_add_f32 {v(r+2,2)}, {v(r+2,2)}, {v(BI+4*p+2,2)}")
        if p: b(f"v_add_u32 v2, {16*2048}, v2")
        b(f"global_store_dwordx4 v2, {v(r,4)}, s[8:9] {OUTF}")
    stamp(b, 4)
    dbgt_end(b, "s[18:19]", 32, True)
    stamp_end(b, sWv, "s[10:11]", 0x2100000, 1)
    b("L_k2_end:")
    b("s_endpgm")
    return finalize(b.ops)

KN = NAME + "_kernel"
def header():
    ref = open('cdna_kernels/%s.s.ref' % NAME).read().split('\n')
    hdr = []
    for line in ref:
        if not line.startswith(';'): break
        if '@launch' in line: continue
        hdr.append(line)
    hdr.append("; @launch grid=(256,1,1) block=(512,1,1) lds=163840")
    return '\n'.join(hdr)

def kd(name, nv, acc_off, nsg):
    return f""".amdhsa_kernel {name}
  .amdhsa_next_free_vgpr {nv}
  .amdhsa_next_free_sgpr {nsg}
  .amdhsa_accum_offset {acc_off}
  .amdhsa_group_segment_fixed_size 0
  .amdhsa_kernarg_size 128
  .amdhsa_user_sgpr_count 2
  .amdhsa_user_sgpr_kernarg_segment_ptr 1
  .amdhsa_system_sgpr_workgroup_id_x 1
  .amdhsa_float_denorm_mode_32 3
.end_amdhsa_kernel"""

def main():
    k1 = gen_k1()
    out = [header(), '.amdgcn_target "amdgcn-amd-amdhsa--gfx950"', '.text']
    out += [f".globl {KN}", ".p2align 8", f".type {KN},@function", f"{KN}:", render(k1)]
    out += ["L_code_end:", "  s_endpgm"]
    out += ['.section .rodata,"a"', '.p2align 6', kd(KN, 256, 128, 102)]
    print('\n'.join(out))

main()
```

```python
import sys, copy
sys.path.insert(0, 'dev')
from ir import *

NAME = "gated_mix__ssm_conv_s5__dense_activation_silu__prompt"
K1 = NAME + "_kernel"
K2 = "gm_k2_kernel"

opts = dict(a.split('=') for a in sys.argv[1:] if '=' in a)
HF_OFF = 0
HF_SIZE = 64 * 176 * 1024
W2F_OFF = HF_SIZE
W2F_SIZE = 16 * 176 * 1024
G_OFF = W2F_OFF + W2F_SIZE
E_OFF = G_OFF + 2048 * 8
E_SIZE = 16 * 16 * 512
NONCE_OFF = E_OFF + E_SIZE
FLG_OFF = NONCE_OFF + 256
FLG_STRIDE = int(opts.get('flgs', 1024)) if 'opts' in globals() else 128
XCH_OFF = FLG_OFF + 0x40000
WS_USED = XCH_OFF + 256 * 16384

LOG2E = 0x3fb8aa3b
INV2PI = 0x3e22f983

RB, XS, WR = 0, 65536, 114688
SC = 32768
IMG = 36864

STAMP = int(opts.get('stamp', 0))
STF = "sc0 sc1"

def v(n, k=1): return f"v{n}" if k == 1 else f"v[{n}:{n+k-1}]"
def a(n, k=1): return f"a{n}" if k == 1 else f"a[{n}:{n+k-1}]"
def s(n, k=1): return f"s{n}" if k == 1 else f"s[{n}:{n+k-1}]"


STV = 15
def reg_of_t(t): return (t >> 2) + 4 * (t & 3)
def srd(b, dst, ptr, size):
    b(f"s_mov_b32 s{dst}, s{ptr}")
    b(f"s_mov_b32 s{dst+1}, s{ptr+1}")
    b(f"s_mov_b32 s{dst+2}, {size}")
    b(f"s_mov_b32 s{dst+3}, 0x20000")


def cexp(b, dst, n_src, va, vang, t0):
    b(f"v_mul_f32 v{t0}, {n_src}, v{va}")
    b(f"v_mul_f32 v{t0+1}, {n_src}, v{vang}")
    b(f"v_exp_f32 v{t0}, v{t0}")
    b(f"v_rndne_f32 v{t0+2}, v{t0+1}")
    b(f"v_sub_f32 v{t0+1}, v{t0+1}, v{t0+2}")
    b(f"v_cos_f32 v{dst}, v{t0+1}")
    b(f"v_sin_f32 v{dst+1}, v{t0+1}")
    b(f"v_mul_f32 v{dst}, v{t0}, v{dst}")
    b(f"v_mul_f32 v{dst+1}, v{t0}, v{dst+1}")


def cfma(b, d, l, h, u, tmp):
    b(f"v_pk_fma_f32 {v(tmp,2)}, {v(l,2)}, {v(h,2)}, {v(u,2)} op_sel:[0,0,0] op_sel_hi:[0,1,1]")
    b(f"v_pk_fma_f32 {v(d,2)}, {v(l,2)}, {v(h,2)}, {v(tmp,2)} op_sel:[1,1,0] op_sel_hi:[1,0,1] neg_lo:[1,0,0]")


def cfma_s(b, d, l, h, u, tmp):
    b(f"v_fma_f32 v{tmp}, v{l}, v{h}, v{u}")
    b(f"v_fma_f32 v{tmp+1}, v{l}, v{h+1}, v{u+1}")
    b(f"v_fma_f32 v{d}, -v{l+1}, v{h+1}, v{tmp}")
    b(f"v_fma_f32 v{d+1}, v{l+1}, v{h}, v{tmp+1}")


def stamp(b, idx):
    if not STAMP: return
    g = B()
    g("s_memtime s[100:101]")
    g("s_waitcnt lgkmcnt(0)")
    g(f"v_writelane_b32 v{STV}, s100, {idx}")
    b.ext(g)


def stamp_begin(b):
    if not STAMP: return
    b(f"v_mov_b32 v{STV}, 0")
    b("s_memrealtime s[100:101]")
    b("s_waitcnt lgkmcnt(0)")
    b(f"v_writelane_b32 v{STV}, s100, 62")
    stamp(b, 0)


def stamp_end(b, wave, ws, off, lane, sh=2, tv=254):
    if not STAMP: return
    b("s_memrealtime s[100:101]")
    b("s_waitcnt lgkmcnt(0)")
    b(f"v_writelane_b32 v{STV}, s100, 63")
    b(f"s_lshl_b32 s100, s2, {sh}")
    b(f"s_add_u32 s100, s100, s{wave}")
    b(f"s_lshl_b32 s100, s100, 8")
    b(f"s_add_u32 s100, s100, {off}")
    b(f"v_lshlrev_b32 v{tv}, 2, v{lane}")
    b(f"v_add_u32 v{tv}, s100, v{tv}")
    b(f"global_store_dword v{tv}, v{STV}, {ws}")


vLane = 1
def tr_pattern(b, dst, hfmul, t):
    L = vLane
    b(f"v_lshrrev_b32 v{t}, 5, v{L}")
    b(f"v_mul_u32_u24 v{t}, {hfmul}, v{t}")
    b(f"v_bfe_u32 v{t+1}, v{L}, 2, 2")
    b(f"v_add_u32 v{t}, v{t}, v{t+1}")
    b(f"v_lshlrev_b32 v{t}, 7, v{t}")
    b(f"v_bfe_u32 v{t+1}, v{L}, 3, 1")
    b(f"v_lshlrev_b32 v{t+1}, 6, v{t+1}")
    b(f"v_bfe_u32 v{t+2}, v{L}, 4, 1")
    b(f"v_lshlrev_b32 v{t+2}, 5, v{t+2}")
    b(f"v_and_b32 v{t+3}, 3, v{L}")
    b(f"v_lshlrev_b32 v{t+3}, 3, v{t+3}")
    b(f"v_add3_u32 v{t}, v{t}, v{t+2}, v{t+3}")
    b(f"v_add_u32 v{dst}, v{t}, v{t+1}")
    b(f"v_xor_b32 v{t+1}, 64, v{t+1}")
    b(f"v_add_u32 v{dst+1}, v{t}, v{t+1}")

SLOT = 24576
NSLOT = 4
WB0 = 98304
SCR = 73728
SC = 0
IMG = 1024
def wblock_lds(q):
    if q < 8: return WB0 + q * 8192
    return (q - 8) * 8192

sX, sBRE, sBIM, sW1, sHF = 36, 40, 44, 48, 52
sWave, sWm, sR, sS, sRho = 60, 61, 62, 63, 56
sLdsX, sLdsB = 64, 65
sT0, sT1, sT2, sT3 = 68, 69, 70, 71
sWL = 72
sM1, sM2, sM3 = 80, 82, 84
sHFb, sK0, sEX = 86, 87, 88
sLo = 90
sSpin, sU = 98, 99

DBGT = int(opts.get('dbgt', 0))
def dbgt_begin(b):
    if not DBGT: return
    b("s_memrealtime s[100:101]")
    b("s_waitcnt lgkmcnt(0)")
    b("s_not_b32 s101, s100")
def dbgt_end(b, dbg, vt, k2=False):
    if not DBGT: return
    b("s_mov_b32 s99, s101")
    b("s_memrealtime s[100:101]")
    b("s_waitcnt lgkmcnt(0)")
    b(f"v_mov_b32 v{vt}, 0")
    b(f"v_mov_b32 v{vt+1}, s99")
    b(f"v_mov_b32 v{vt+2}, s100")
    b("s_mov_b64 exec, 1")
    b(f"global_atomic_umax v{vt}, v{vt+1}, {dbg} offset:16")
    b(f"global_atomic_umax v{vt}, v{vt+2}, {dbg} offset:20")
    if k2:
        b(f"global_load_dwordx2 {v(vt+2,2)}, v{vt}, {dbg} offset:-496 sc1")
        b("s_waitcnt vmcnt(0)")
        b(f"global_store_dwordx2 v{vt}, {v(vt+2,2)}, {dbg} offset:8")
    b("s_mov_b64 exec, -1")

def code_prefetch(b, kname, endlabel, wshift, tag, vt, vd):
    if not int(opts.get('pfc', 1)): return
    b("s_getpc_b64 s[40:41]")
    b(f"L_{tag}_pc:")
    b(f"s_sub_u32 s40, s40, L_{tag}_pc-{kname}")
    b("s_subb_u32 s41, s41, 0")
    b("s_lshr_b32 s42, s2, 3")
    b(f"s_lshl_b32 s42, s42, {wshift + 7}")
    b(f"v_lshrrev_b32 v{vt}, 6, v0")
    b(f"v_lshlrev_b32 v{vt}, 7, v{vt}")
    b(f"v_add_u32 v{vt}, s42, v{vt}")
    b(f"v_min_u32 v{vt}, {endlabel}-{kname}-4, v{vt}")
    b(f"global_load_dword v{vd}, v{vt}, s[40:41]", 'nocount')

def k1_head():
    b = B()
    code_prefetch(b, K1, "L_code_end", 3, "k1", 2, 14)
    dbgt_begin(b)
    stamp_begin(b)
    b("s_load_dwordx16 s[4:19], s[0:1], 0")
    b("s_load_dwordx16 s[20:35], s[0:1], 64")
    b("s_cmp_ge_u32 s2, 256")
    b("s_cbranch_scc1 L_k1_end")
    b("v_lshrrev_b32 v2, 6, v0")
    b(f"v_and_b32 v{vLane}, 63, v0")
    b(f"v_readfirstlane_b32 s{sWave}, v2")
    b(f"s_and_b32 s{sT0}, s2, 7")
    b(f"s_lshr_b32 s{sT1}, s2, 3")
    b(f"s_and_b32 s{sT2}, s{sT1}, 3")
    b(f"s_lshr_b32 s{sT3}, s{sT1}, 2")
    b(f"s_lshr_b32 s{sR}, s{sT0}, 1")
    b(f"s_lshl_b32 s{sR}, s{sR}, 2")
    b(f"s_add_u32 s{sR}, s{sR}, s{sT2}")
    b(f"s_and_b32 s{sS}, s{sT0}, 1")
    b(f"s_lshl_b32 s{sS}, s{sS}, 3")
    b(f"s_add_u32 s{sS}, s{sS}, s{sT3}")
    b(f"s_lshl_b32 s{sRho}, s{sT2}, 1")
    b(f"s_add_u32 s{sRho}, s{sRho}, s{sT3}")
    ROT1 = opts.get('rot1', 'two')
    if ROT1 == 'none': b(f"s_mov_b32 s{sRho}, 0")
    if ROT1 == 'half':
        b(f"s_and_b32 s{sRho}, s{sRho}, 1")
        b(f"s_lshl_b32 s{sRho}, s{sRho}, 2")
    if ROT1 == 'two':
        b(f"s_and_b32 s{sRho}, s{sRho}, 3")
        b(f"s_lshl_b32 s{sRho}, s{sRho}, 1")
    b(f"s_and_b32 s{sWm}, s{sWave}, 3")
    b(f"s_lshl_b32 s{sLdsX}, s{sWm}, 12")
    b(f"s_lshl_b32 s{sLdsB}, s{sWm}, 11")
    b(f"s_lshl_b32 s{sHFb}, s{sR}, 2")
    b(f"s_add_u32 s{sHFb}, s{sHFb}, s{sWm}")
    b(f"s_mul_i32 s{sHFb}, s{sHFb}, {176*1024}")
    if int(opts.get('swap', 0)):
        b(f"s_cmp_lt_u32 s{sWave}, 4")
        b("s_cbranch_scc1 L_k1_F")
        b("v_and_b32 v0, 0xff, v0")
    else:
        b(f"s_cmp_ge_u32 s{sWave}, 4")
        b("s_cbranch_scc1 L_k1_F")
    return b

fXe, fXo, fB, fW = 2, 3, 4, 5
fPX, fTA, fTB, fTC, fL16 = 7, 11, 13, 16, 6 + 0
fPX, fTA, fTB, fTC = 8, 12, 14, 16
fPX, fTA, fTB, fTC, fL16 = 8, 12, 16, 18, 7
fE, fD = 20, 28
fS, fAcc = 32, 64

def dma(b, voff, srdn, soff, tok, imm=0):
    o = f" offset:{imm}" if imm else ""
    b(f"buffer_load_dwordx4 v{voff}, {s(srdn,4)}, {soff} offen{o} lds", tok)
def dma_x(b, i):
    b(f"s_add_u32 m0, s{sLdsX}, {(i % NSLOT) * SLOT}")
    for k in range(4):
        dma(b, fXe if k % 2 == 0 else fXo, sX, f"s{sLo+i}", f"x{i}", k * 1024)
def dma_B(b, i):
    b(f"s_add_u32 m0, s{sLdsB}, {(i % NSLOT) * SLOT + 16384}")
    dma(b, fB, sBRE, f"s{sLo+i}", f"B{i}")
    dma(b, fB, sBIM, f"s{sLo+i}", f"B{i}", 1024)
def dma_w(b, q):
    i, hh = q % 8, q // 8
    b(f"s_add_u32 m0, s{sLdsB}, {wblock_lds(q)}")
    if hh:
        b(f"s_add_u32 s{sT0}, s{sWL+i}, 128")
        so = f"s{sT0}"
    else:
        so = f"s{sWL+i}"
    dma(b, fW, sW1, so, f"w{q}")
    dma(b, fW + 1, sW1, so, f"w{q}", 1024)

def chunks_of(ops):
    ch = []; cur = []
    for o in ops:
        cur.append(o)
        if o.kind == 'vmem': ch.append(cur); cur = []
    if cur: ch.append(cur)
    return ch

def k1_F(ffn):
    b = B(); L = vLane
    t = fE
    for i in range(8):
        b(f"s_add_u32 s{sLo+i}, s{sRho}, {i}")
        b(f"s_and_b32 s{sLo+i}, s{sLo+i}, 7")
        b(f"s_lshl_b32 s{sLo+i}, s{sLo+i}, 7")
    b(f"v_and_b32 v{t}, 7, v{L}")
    b(f"v_lshrrev_b32 v{t+1}, 4, v{L}")
    b(f"v_xor_b32 v{t+2}, v{t}, v{t+1}")
    b(f"v_lshlrev_b32 v{t+2}, 4, v{t+2}")
    b(f"v_lshrrev_b32 v{t+3}, 3, v{L}")
    b(f"s_lshl_b32 s{sT0}, s{sR}, 17")
    b(f"s_lshl_b32 s{sT1}, s{sWm}, 15")
    b(f"s_add_u32 s{sT0}, s{sT0}, s{sT1}")
    b(f"v_lshlrev_b32 v{t}, 12, v{t+3}")
    b(f"v_add3_u32 v{fXe}, v{t}, v{t+2}, s{sT0}")
    b(f"v_xor_b32 v{fXo}, 64, v{fXe}")
    b(f"s_and_b32 s{sT0}, s{sWm}, 1")
    b(f"s_lshl_b32 s{sT0}, s{sT0}, 6")
    b(f"v_xor_b32 v{t+1}, s{sT0}, v{t+2}")
    b(f"s_lshl_b32 s{sT0}, s{sWm}, 13")
    b(f"s_lshl_b32 s{sT1}, s{sS}, 15")
    b(f"s_add_u32 s{sT0}, s{sT0}, s{sT1}")
    b(f"v_lshlrev_b32 v{t}, 10, v{t+3}")
    b(f"v_add3_u32 v{fB}, v{t}, v{t+1}, s{sT0}")
    b("s_waitcnt lgkmcnt(0)")
    srd(b, sX, 4, 2048*1024)
    srd(b, sBRE, 10, 512*1024)
    b(f"s_sub_u32 s{sBIM}, s12, 1024")
    b(f"s_subb_u32 s{sBIM+1}, s13, 0")
    b(f"s_mov_b32 s{sBIM+2}, {512*1024 + 1024}")
    b(f"s_mov_b32 s{sBIM+3}, 0x20000")
    if STAMP >= 2: stamp(b, 8)
    INI = int(opts.get('ini', 3))
    for i in range(INI):
        dma_x(b, i); dma_B(b, i)
    if STAMP >= 2: stamp(b, 9)
    srd(b, sHF, 34, WS_USED)
    if ffn:
        srd(b, sW1, 24, 512*3584)
        b(f"v_bfe_u32 v{t+1}, v{L}, 4, 1")
        b(f"v_lshlrev_b32 v{t+1}, 2, v{t+1}")
        b(f"v_and_b32 v{t+3}, 7, v{L}")
        b(f"v_xor_b32 v{t+3}, v{t+3}, v{t+1}")
        b(f"v_lshlrev_b32 v{t+3}, 4, v{t+3}")
        b(f"v_lshrrev_b32 v{t+1}, 3, v{L}")
        b(f"s_lshl_b32 s{sT3}, s{sWm}, 4")
        b(f"v_add_u32 v{t+1}, s{sT3}, v{t+1}")
        b(f"v_mul_u32_u24 v{t+1}, 3584, v{t+1}")
        b(f"v_add_u32 v{fW}, v{t+1}, v{t+3}")
        b(f"v_add_u32 v{fW+1}, {8*3584 - 1024}, v{fW}")
        b(f"s_lshl_b32 s{sT3}, s{sS}, 8")
        for i in range(8):
            b(f"s_mul_i32 s{sWL+i}, s{sLo+i}, 1792")
            b(f"s_add_u32 s{sWL+i}, s{sWL+i}, s{sT3}")
        tr_pattern(b, fTA, 8, t)
        b(f"v_add_u32 v{fTB}, 0x10000, v{fTA}")
        b(f"v_add_u32 v{fTB+1}, 0x10000, v{fTA+1}")
        b(f"v_add_u32 v{fTC}, 0x20000, v{fTA}")
        b(f"v_add_u32 v{fTC+1}, 0x20000, v{fTA+1}")
        b(f"v_lshlrev_b32 v{fL16}, 4, v{L}")
        b(f"v_and_b32 v{t}, 31, v{L}")
        b(f"v_lshrrev_b32 v{t+1}, 5, v{L}")
        b(f"v_bfe_u32 v{t+2}, v{L}, 1, 3")
        b(f"v_xor_b32 v{t+2}, v{t+1}, v{t+2}")
        b(f"v_lshlrev_b32 v{t+1}, 7, v{t}")
        b(f"v_add_u32 v{t+1}, s{sLdsX}, v{t+1}")
        for k in range(4):
            b(f"v_xor_b32 v{t+3}, {2*k}, v{t+2}")
            b(f"v_lshl_add_u32 v{fPX+k}, v{t+3}, 4, v{t+1}")
        b(f"s_mov_b32 s66, {LOG2E ^ 0x80000000:#x}")
        b(f"s_mov_b32 s67, {LOG2E ^ 0x80000000:#x}")
        b(f"s_lshl_b32 s{sU}, s{sS}, 13")
        b(f"s_add_u32 s{sU}, s{sU}, s{sHFb}")
        b(f"s_add_u32 s{sU}, s{sU}, {64*1024}")
    stamp(b, 1)
    for i in range(8):
        if STAMP >= 2: stamp(b, 10 + 2*i)
        b.wait('vm', f"x{i}", f"B{i}")
        b("s_waitcnt lgkmcnt(0)")
        b("s_barrier")
        if STAMP >= 2: stamp(b, 11 + 2*i)
        if ffn:
            po = (i % NSLOT) * SLOT
            if po >= 65536:
                for k in range(4): b(f"v_add_u32 v{fE+k}, 0x10000, v{fPX+k}")
            for k in range(4):
                if po >= 65536: b(f"ds_read_b128 {a(16*i+4*k,4)}, v{fE+k} offset:{po - 65536}")
                else: b(f"ds_read_b128 {a(16*i+4*k,4)}, v{fPX+k} offset:{po}")
        if i == 0 and INI == 2:
            dma_x(b, 2); dma_B(b, 2)
        if i <= 4:
            dma_x(b, i + 3); dma_B(b, i + 3)
        elif ffn:
            for q in {5: (0, 1, 2), 6: (3, 4, 5), 7: (6, 7)}[i]: dma_w(b, q)
        if True:
            if not ffn and i == 5:
                b(f"s_lshl_b32 s{sT0}, s{sR}, 1")
                b(f"s_add_u32 s{sT0}, s{sT0}, s{sS}")
                b(f"s_sub_u32 s{sT0}, s{sT0}, 14")
                b(f"s_lshl_b32 s{sT0}, s{sT0}, 2")
                b(f"s_add_u32 s{sT0}, s{sT0}, s{sWm}")
                b(f"v_lshlrev_b32 v8, 7, v{L}")
                srd(b, sW1, 26, 1792*1024)
                srd(b, sHF, 14, 512*1024)
                srd(b, 76, 16, 512*1024)
                b(f"s_mul_i32 s{sT1}, s{sT0}, 14336")
                b(f"buffer_load_dword v9, v8, {s(sW1,4)}, s{sT1} offen")
                b(f"s_add_u32 s{sT1}, s{sT1}, 8192")
                b(f"buffer_load_dword v10, v8, {s(sW1,4)}, s{sT1} offen")
                b(f"s_lshl_b32 s{sT1}, s{sT0}, 12")
                b(f"buffer_load_dword v11, v8, {s(sHF,4)}, s{sT1} offen")
                b(f"buffer_load_dword v12, v8, {s(76,4)}, s{sT1} offen")
    stamp(b, 2)
    if not ffn:
        b(f"s_lshl_b32 s{sT0}, s{sR}, 1")
        b(f"s_add_u32 s{sT0}, s{sT0}, s{sS}")
        b(f"s_sub_u32 s{sT0}, s{sT0}, 14")
        b(f"s_lshl_b32 s{sT0}, s{sT0}, 2")
        b(f"s_add_u32 s{sT0}, s{sT0}, s{sWm}")
        k1_gjob_all(b)
        return b
    def ffn_phase(hh):
        p = B(); DEPTH = 3
        def lds_loc(n):
            i, k = divmod(n, 4)
            base = wblock_lds(8 * hh + i) + 16 * k * 128
            if base < 65536: return fTA, base
            if base < 131072: return fTB, base - 65536
            return fTC, base - 131072
        plan = {0: [0, 1, 2, 3], int(opts.get('bcn', 12)): [4, 5, 6, 7]} if hh == 0 else {0: list(range(8, 16))}
        def reads(n):
            if n in plan:
                p.wait('vm', *[f"w{q}" for q in plan[n]])
                if hh == 0 and n == 0: p("s_waitcnt lgkmcnt(0)")
                if STAMP >= 2: stamp(p, 26 + (0 if n == 0 else 1) if hh == 0 else 29)
                p("s_barrier")
                if STAMP >= 2 and hh == 0: stamp(p, 30 + (0 if n == 0 else 1))
            base, off = lds_loc(n)
            r = fS + (n % 4) * 8
            for ft in range(2):
                for rd in range(2):
                    p(f"ds_read_b64_tr_b16 {v(r+4*ft+2*rd,2)}, v{base+ft} offset:{off + rd*512}", f"r{hh}_{n}")
        ch = []
        if hh == 0:
            d = B()
            for q in range(8, 16): dma_w(d, q)
            ch = chunks_of(d.ops)
        for n in range(DEPTH): reads(n)
        for n in range(32):
            i, k = divmod(n, 4)
            r = fS + (n % 4) * 8
            p.wait('lg', f"r{hh}_{n}")
            for ft in range(2):
                acc = fAcc + (2*hh + ft) * 16
                c = v(acc, 16) if n else "0"
                p(f"v_mfma_f32_32x32x16_bf16 {v(acc,16)}, {v(r+4*ft,4)}, {a(16*i+4*k,4)}, {c}")
                if ft == 0 and ch: p.ext(ch.pop(0))
            if hh == 0 and n == int(opts.get('bxn', 1)): p("s_barrier")
            if n + DEPTH < 32: reads(n + DEPTH)
        assert not ch
        return p
    if int(opts.get('tseq', 0)):
        DEPTH = int(opts.get('tdepth', 6))
        def loc(g):
            t_, n = divmod(g, 32); i, k = divmod(n, 4)
            base = wblock_lds(8 * (t_ // 2) + i) + 16 * k * 128
            if base < 65536: return fTA + (t_ & 1), base
            if base < 131072: return fTB + (t_ & 1), base - 65536
            return fTC + (t_ & 1), base - 131072
        d = B()
        for q in range(8, 16): dma_w(d, q)
        ch = chunks_of(d.ops)
        tiles = []
        p = B()
        def rd(g):
            if g == 0:
                p.wait('vm', "w0", "w1", "w2", "w3"); p("s_waitcnt lgkmcnt(0)"); p("s_barrier")
            if g == 16:
                p.wait('vm', "w4", "w5", "w6", "w7"); p("s_barrier")
            if g == 64: p("s_barrier")
            base, off = loc(g); r = fS + (g % 8) * 4
            for r_ in range(2):
                p(f"ds_read_b64_tr_b16 {v(r+2*r_,2)}, v{base} offset:{off + r_*512}", f"t{g}")
        for g in range(DEPTH): rd(g)
        for g in range(128):
            t_, n = divmod(g, 32); i, k = divmod(n, 4)
            if n == 0 and t_: tiles.append(p); p = B()
            r = fS + (g % 8) * 4; acc = fAcc + t_ * 16
            if g % 2 == 0: p.wait('lg', f"t{g}", f"t{g+1}")
            p(f"v_mfma_f32_32x32x16_bf16 {v(acc,16)}, {v(r,4)}, {a(16*i+4*k,4)}, {v(acc,16) if n else 0}")
            if ch: p.ext(ch.pop(0))
            if g == int(opts.get('bxn', 3)): p("s_barrier")
            if g == 31: p.wait('vm', *[f"w{q}" for q in range(8, 16)])
            if g + DEPTH < 128: rd(g + DEPTH)
        tiles.append(p)
        PT = int(opts.get('pert', 3))
        b.ext(tiles[0])
        for t_ in range(1, 4):
            b.ext(merge(tiles[t_].ops, k1_silu(t_ - 1, False).ops, per=PT, start=1))
            if t_ == 1: stamp(b, 3)
        stamp(b, 4)
        b.ext(flat(k1_silu(3, True).ops))
        stamp(b, 5)
        return b
    b.ext(ffn_phase(0))
    stamp(b, 3)
    p3 = ffn_phase(1)
    fl = F()
    fl.ext(k1_silu(0, False)); fl.ext(k1_silu(1, False))
    if opts.get('p3mode') == 'nofill':
        b.ext(p3.ops); stamp(b, 6); b.ext(flat(fl.ops))
    elif opts.get('p3mode') == 'nostore':
        fo = [o for o in fl.ops if not (not isinstance(o, list) and o.kind == 'vmem')]
        st_ = [o for o in fl.ops if (not isinstance(o, list) and o.kind == 'vmem')]
        b.ext(merge(p3.ops, fo, per=int(opts.get('per3', 4)), start=1))
    else:
        b.ext(merge(p3.ops, fl.ops, per=int(opts.get('per3', 4)), start=1))
    stamp(b, 4)
    b.ext(flat(k1_silu(2, True).ops))
    b.ext(flat(k1_silu(3, True).ops))
    stamp(b, 5)
    return b

def k1_silu(ft, pk):
    b = F()
    acc = fAcc + ft * 16
    e, d = fE, fD
    for kk in range(2):
        base = acc + 8 * kk
        if pk:
            for q in range(4): b(f"v_pk_mul_f32 {v(e+2*q,2)}, {v(base+2*q,2)}, s[66:67]")
            for q in range(8): b(f"v_exp_f32 v{e+q}, v{e+q}")
            for q in range(4): b(f"v_pk_add_f32 {v(e+2*q,2)}, {v(e+2*q,2)}, 1.0 op_sel_hi:[1,0]")
            for q in range(8): b(f"v_rcp_f32 v{e+q}, v{e+q}")
            for q in range(4): b(f"v_pk_mul_f32 {v(e+2*q,2)}, {v(base+2*q,2)}, {v(e+2*q,2)}")
            for q in range(4): b(f"v_cvt_pk_bf16_f32 v{d+q}, v{e+2*q}, v{e+2*q+1}")
        else:
            seq = []
            for q in range(8):
                seq.append([f"v_mul_f32 v{e+q}, s66, v{base+q}", f"v_exp_f32 v{e+q}, v{e+q}", f"v_add_f32 v{e+q}, 1.0, v{e+q}",
                            f"v_rcp_f32 v{e+q}, v{e+q}", f"v_mul_f32 v{e+q}, v{base+q}, v{e+q}"])
            if opts.get('silu', 'diag') == 'diag':
                for tm in range(8 + 4):
                    for stg in range(5):
                        q = tm - stg
                        if 0 <= q < 8: b(seq[q][stg])
            elif opts.get('silu') == 'block':
                for stg in range(5):
                    for q in range(8): b(seq[q][stg])
            else:
                for tm in range(8 + 8):
                    for stg in range(5):
                        q = tm - 2 * stg
                        if 0 <= q < 8: b(seq[q][stg])
            for q in range(4): b(f"v_cvt_pk_bf16_f32 v{d+q}, v{e+2*q}, v{e+2*q+1}")
        b(f"s_add_u32 s{sK0}, s{sU}, {(2*ft+kk)*1024}")
        b(f"buffer_store_dwordx4 {v(d,4)}, v{fL16}, {s(sHF,4)}, s{sK0} offen {STF}")
    return b

gPX, gPB = 2, 6
vLBa, vImgW, vImgR, vL16o = 10, 11, 12, 13
vL, vC2, vL16, vL32, vL128, vL256, vF1, vG, vHfm = 16, 18, 20, 22, 24, 26, 28, 30, 32
vNon, vK, vQ, vW_, vPre, vTmp = 34, 36, 38, 40, 42, 44
vP = 48
aRE, aIM, vU = 64, 80, 96
aSX, aSB = 0, 16

def k1_S_setup():
    b = B(); L = vLane; t = vP
    b("s_waitcnt lgkmcnt(0)")
    srd(b, sHF, 34, WS_USED)
    b(f"v_and_b32 v{t}, 31, v{L}")
    b(f"s_lshl_b32 s{sT0}, s{sS}, 5")
    b(f"v_add_u32 v{t}, s{sT0}, v{t}")
    b(f"v_lshlrev_b32 v{t}, 1, v{t}")
    b(f"global_load_ushort v{vP+8}, v{t}, s[6:7]")
    b(f"global_load_ushort v{vP+9}, v{t}, s[8:9]")
    b(f"global_load_ushort v{vP+10}, v{t}, s[18:19]")
    if int(opts.get('nearly', 0)):
        b(f"s_or_b32 s{sT0}, s2, s{sWm}")
        b(f"s_cmp_lg_u32 s{sT0}, 0")
        b("s_cbranch_scc1 L_k1_nononce")
        b(f"v_mov_b32 v{t}, {NONCE_OFF}")
        b(f"global_load_dwordx2 {v(vU+26,2)}, v{t}, s[34:35] sc1", 'nocount')
        b("s_waitcnt vmcnt(0)", 'nocount')
        b(f"v_add_u32 v{vU+26}, 1, v{vU+26}")
        b(f"v_or_b32 v{vU+27}, 1, v{vU+27}")
        b(f"v_mov_b32 v{t+1}, 0")
        b(f"global_store_dwordx2 v{t+1}, {v(vU+26,2)}, s[32:33] sc0 sc1", 'nocount')
        b(f"global_store_dwordx2 v{t}, {v(vU+26,2)}, s[34:35] sc0 sc1", 'nocount')
        b("L_k1_nononce:")
    else:
        b(f"v_mov_b32 v{t}, {NONCE_OFF}")
        b(f"global_load_dwordx2 {v(vU+26,2)}, v{t}, s[34:35] sc1")
    if int(opts.get('flgw', 1)):
        b(f"s_mul_i32 s{sT0}, s{sR}, {FLG_STRIDE}")
        b(f"s_add_u32 s{sT0}, s{sT0}, {FLG_OFF}")
        b(f"v_mov_b32 v{t}, s{sT0}")
        b(f"global_load_dword v{vU+10}, v{t}, s[34:35] sc1", 'nocount')
        b(f"s_lshl_b32 s{sT0}, s{sR}, 10")
        b(f"s_add_u32 s{sT0}, s{sT0}, {G_OFF}")
        b(f"v_and_b32 v{t}, 7, v{L}")
        b(f"v_lshlrev_b32 v{t}, 7, v{t}")
        b(f"v_add_u32 v{t}, s{sT0}, v{t}")
        b(f"global_load_dword v{vU+11}, v{t}, s[34:35] sc1", 'nocount')
    if int(opts.get('tlbw', 1)):
        pd = vU + 12
        b(f"s_cmp_eq_u32 s{sWm}, 2")
        b("s_cbranch_scc0 L_k1_tlb_done")
        b(f"v_mov_b32 v{t}, 0")
        for k, ptr in enumerate((24, 14, 16, 26, 20)):
            b(f"global_load_dword v{pd+k}, v{t}, {s(ptr,2)}", 'nocount')
        b(f"v_min_u32 v{t}, 19, v{L}")
        b(f"v_lshlrev_b32 v{t}, 20, v{t}")
        b(f"global_load_dword v{pd+5}, v{t}, s[34:35]", 'nocount')
        b(f"v_and_b32 v{t}, 3, v{L}")
        b(f"v_lshlrev_b32 v{t}, 20, v{t}")
        b(f"global_load_dword v{pd+6}, v{t}, s[30:31]", 'nocount')
        b("L_k1_tlb_done:")
    PF = int(opts.get('pf', 0))
    if PF:
        pd = vU + 28
        b(f"s_cmp_eq_u32 s{sWm}, 0")
        b("s_cbranch_scc0 L_k1_pf_1")
        b(f"v_lshrrev_b32 v{t}, 3, v{L}")
        b(f"s_lshl_b32 s{sT2}, s2, 3")
        b(f"v_add_u32 v{t}, s{sT2}, v{t}")
        b(f"v_lshlrev_b32 v{t}, 10, v{t}")
        b(f"v_and_b32 v{t+1}, 7, v{L}")
        b(f"v_max_u32 v{t+1}, 3, v{t+1}")
        b(f"v_lshl_add_u32 v{t}, v{t+1}, 7, v{t}")
        b(f"global_load_dword v{pd}, v{t}, s[4:5]", 'nocount')
        b("L_k1_pf_1:")
        b(f"s_cmp_eq_u32 s{sWm}, 1")
        b("s_cbranch_scc0 L_k1_pf_2")
        b(f"v_bfe_u32 v{t}, v{L}, 3, 1")
        b(f"s_lshl_b32 s{sT2}, s2, 1")
        b(f"v_add_u32 v{t}, s{sT2}, v{t}")
        b(f"v_lshlrev_b32 v{t}, 10, v{t}")
        b(f"v_and_b32 v{t+1}, 7, v{L}")
        b(f"v_max_u32 v{t+1}, 3, v{t+1}")
        b(f"v_lshl_add_u32 v{t}, v{t+1}, 7, v{t}")
        b(f"global_load_dword v{pd}, v{t}, s[10:11]", 'nocount')
        b(f"global_load_dword v{pd+1}, v{t}, s[12:13]", 'nocount')
        b("L_k1_pf_2:")
        b(f"s_cmp_eq_u32 s{sWm}, 2")
        b("s_cbranch_scc0 L_k1_pf_done")
        b(f"v_lshrrev_b32 v{t}, 5, v{L}")
        b(f"s_lshl_b32 s{sT2}, s2, 1")
        b(f"v_add_u32 v{t}, s{sT2}, v{t}")
        b(f"v_mul_u32_u24 v{t}, 3584, v{t}")
        b(f"v_and_b32 v{t+1}, 31, v{L}")
        b(f"v_min_u32 v{t+1}, 27, v{t+1}")
        b(f"v_lshl_add_u32 v{t}, v{t+1}, 7, v{t}")
        b(f"global_load_dword v{pd}, v{t}, s[24:25]", 'nocount')
        b("L_k1_pf_done:")
    b(f"v_and_b32 v{t}, 31, v{L}")
    b(f"v_lshrrev_b32 v{t+1}, 5, v{L}")
    b(f"v_bfe_u32 v{t+2}, v{L}, 1, 3")
    b(f"v_xor_b32 v{t+2}, v{t+1}, v{t+2}")
    b(f"v_lshlrev_b32 v{t+1}, 7, v{t}")
    b(f"v_add_u32 v{t+1}, s{sLdsX}, v{t+1}")
    b(f"v_lshrrev_b32 v{t+3}, 3, v{t}")
    b(f"v_lshlrev_b32 v{t+3}, 11, v{t+3}")
    b(f"v_and_b32 v{t}, 7, v{t}")
    b(f"v_lshl_add_u32 v{t}, v{t}, 7, v{t+3}")
    b(f"v_add_u32 v{t}, 16384, v{t}")
    for k in range(4):
        b(f"v_xor_b32 v{t+3}, {2*k}, v{t+2}")
        b(f"v_lshl_add_u32 v{gPX+k}, v{t+3}, 4, v{t+1}")
        b(f"v_lshl_add_u32 v{gPB+k}, v{t+3}, 4, v{t}")
    return b

def k1_params():
    b = F()
    lre, lim, ldt = vP+8, vP+9, vP+10
    va, vang, t0 = vP, vP+1, vP+2
    b(f"v_lshlrev_b32 v{lre}, 16, v{lre}")
    b(f"v_lshlrev_b32 v{lim}, 16, v{lim}")
    b(f"v_lshlrev_b32 v{ldt}, 16, v{ldt}")
    b(f"v_mul_f32 v{ldt}, {LOG2E:#x}, v{ldt}")
    b(f"v_exp_f32 v{ldt}, v{ldt}")
    b(f"v_cvt_pk_bf16_f32 v{ldt}, v{ldt}, v{ldt}")
    b(f"v_lshlrev_b32 v{ldt}, 16, v{ldt}")
    b(f"v_mul_f32 v{va}, v{ldt}, v{lre}")
    b(f"v_mul_f32 v{vang}, v{ldt}, v{lim}")
    b(f"v_mul_f32 v{va}, {LOG2E:#x}, v{va}")
    b(f"v_mul_f32 v{vang}, {INV2PI:#x}, v{vang}")
    cexp(b, vL, "1.0", va, vang, t0)
    for dst, cst in ((vL16, 0x41800000), (vL32, 0x42000000), (vL128, 0x43000000), (vL256, 0x43800000)):
        b(f"v_mov_b32 v{t0+3}, {cst:#x}")
        cexp(b, dst, f"v{t0+3}", va, vang, t0)
    b(f"v_lshrrev_b32 v{t0+3}, 5, v{vLane}")
    b(f"v_cvt_f32_u32 v{vHfm}, v{t0+3}")
    b(f"v_lshlrev_b32 v{t0+3}, 4, v{t0+3}")
    b(f"v_cvt_f32_u32 v{t0+3}, v{t0+3}")
    cexp(b, vF1, f"v{t0+3}", va, vang, t0)
    b(f"v_lshrrev_b32 v{t0+3}, 5, v{vLane}")
    b(f"v_lshlrev_b32 v{t0+3}, 4, v{t0+3}")
    b(f"s_lshl_b32 s{sSpin}, s{sWm}, 5")
    b(f"v_add_u32 v{t0+3}, s{sSpin}, v{t0+3}")
    b(f"v_cvt_f32_u32 v{t0+3}, v{t0+3}")
    cexp(b, vG, f"v{t0+3}", va, vang, t0)
    b(f"v_add_f32 v{t0}, -1.0, v{vL}")
    b(f"v_mul_f32 v{t0+1}, v{lre}, v{lre}")
    b(f"v_fma_f32 v{t0+1}, v{lim}, v{lim}, v{t0+1}")
    b(f"v_rcp_f32 v{t0+1}, v{t0+1}")
    b(f"v_mul_f32 v{vC2}, v{t0}, v{lre}")
    b(f"v_fma_f32 v{vC2}, v{vL+1}, v{lim}, v{vC2}")
    b(f"v_mul_f32 v{vC2+1}, v{vL+1}, v{lre}")
    b(f"v_fma_f32 v{vC2+1}, -v{t0}, v{lim}, v{vC2+1}")
    b(f"v_add_f32 v{t0+1}, v{t0+1}, v{t0+1}")
    b(f"v_mul_f32 v{vC2}, v{vC2}, v{t0+1}")
    b(f"v_mul_f32 v{vC2+1}, v{vC2+1}, v{t0+1}")
    return b

def k1_setup_common():
    b = F(); t = vP + 12; L = vLane
    for k, m in ((1, sM1), (2, sM2), (3, sM3)):
        g = B()
        g(f"s_cmp_ge_u32 s{sWm}, {k}")
        g(f"s_cselect_b64 {s(m,2)}, -1, 0")
        b.group(g)
    b(f"v_lshlrev_b32 v{vL16o}, 4, v{L}")
    b(f"v_and_b32 v{t}, 31, v{L}")
    b(f"v_lshlrev_b32 v{t}, 4, v{t}")
    b(f"s_lshl_b32 s{sK0}, s{sS}, 9")
    b(f"s_add_u32 s{sK0}, s{sK0}, {E_OFF}")
    b(f"v_add_u32 v{vLBa}, s{sK0}, v{t}")
    b(f"v_and_b32 v{t}, 31, v{L}")
    b(f"v_mul_u32_u24 v{t}, 80, v{t}")
    b(f"v_lshrrev_b32 v{t+1}, 5, v{L}")
    b(f"v_lshl_add_u32 v{t}, v{t+1}, 5, v{t}")
    b(f"s_mul_i32 s{sK0}, s{sWm}, 5120")
    b(f"s_add_u32 s{sK0}, s{sK0}, {SCR}")
    b(f"v_add_u32 v{vImgW}, s{sK0}, v{t}")
    b(f"v_lshrrev_b32 v{t+1}, 5, v{L}")
    b(f"v_lshlrev_b32 v{t+1}, 3, v{t+1}")
    b(f"v_bfe_u32 v{t+2}, v{L}, 2, 2")
    b(f"v_add_u32 v{t+1}, v{t+1}, v{t+2}")
    b(f"v_mul_u32_u24 v{t+1}, 80, v{t+1}")
    b(f"v_and_b32 v{t+2}, 1, v{L}")
    b(f"v_lshlrev_b32 v{t+2}, 5, v{t+2}")
    b(f"v_bfe_u32 v{t+3}, v{L}, 4, 1")
    b(f"v_lshlrev_b32 v{t+3}, 4, v{t+3}")
    b(f"v_add3_u32 v{t+1}, v{t+1}, v{t+2}, v{t+3}")
    b(f"v_bfe_u32 v{t+2}, v{L}, 1, 1")
    b(f"v_lshlrev_b32 v{t+2}, 3, v{t+2}")
    b(f"v_add3_u32 v{vImgR}, v{t+1}, v{t+2}, s{sK0}")
    return b

def k1_gjob_all(b):
    L = vLane
    xs0, gs, gu, t, w = 32, 112, 16, 120, 96
    b(f"v_and_b32 v{t}, 31, v{L}")
    b(f"v_lshlrev_b32 v{t}, 4, v{t}")
    b(f"global_load_dwordx4 {v(gs,4)}, v{t}, s[28:29]")
    b(f"global_load_dwordx4 {v(gs+4,4)}, v{t}, s[28:29] offset:512")
    b(f"v_lshrrev_b32 v{t+1}, 5, v{L}")
    b(f"s_lshl_b32 s{sT1}, s{sT0}, 4")
    b(f"v_add_u32 v{t+1}, s{sT1}, v{t+1}")
    b(f"v_lshlrev_b32 v{t+2}, 3, v{t+1}")
    b(f"v_add_u32 v{t+2}, {G_OFF}, v{t+2}")
    b(f"v_lshlrev_b32 v{t+1}, 10, v{t+1}")
    b(f"v_add_u32 v{t+1}, v{t+1}, v{t}")
    for p in range(8):
        r = xs0 + p * 8
        if p: b(f"v_add_u32 v{t+1}, 2048, v{t+1}")
        b(f"global_load_dwordx4 {v(r,4)}, v{t+1}, s[4:5]")
        b(f"global_load_dwordx4 {v(r+4,4)}, v{t+1}, s[4:5] offset:512")
    for _ in range(4): b("s_barrier")
    for k in range(8):
        b(f"v_lshlrev_b32 v{gu+2*k}, 16, v{gs+k}")
        b(f"v_and_b32 v{gu+2*k+1}, 0xffff0000, v{gs+k}")
    b(f"v_and_b32 v{t+3}, 31, v{L}")
    for p in range(8):
        xs = xs0 + p * 8
        acc = w
        for k in range(8):
            a0 = w + 2 + 2 * (k % 4)
            b(f"v_lshlrev_b32 v{a0}, 16, v{xs+k}")
            b(f"v_and_b32 v{a0+1}, 0xffff0000, v{xs+k}")
            b(f"v_pk_mul_f32 {v(a0,2)}, {v(a0,2)}, {v(gu+2*k,2)}")
            b(f"v_cvt_pk_bf16_f32 v{a0}, v{a0}, v{a0+1}")
            b(f"v_and_b32 v{a0+1}, 0xffff0000, v{a0}")
            b(f"v_lshlrev_b32 v{a0}, 16, v{a0}")
            if k == 0:
                b(f"v_add_f32 v{acc}, v{a0}, v{a0+1}")
            else:
                b(f"v_add_f32 v{a0}, v{a0}, v{a0+1}")
                b(f"v_add_f32 v{acc}, v{acc}, v{a0}")
        for r in (8, 4, 2, 1):
            b(f"v_add_f32_dpp v{acc}, v{acc}, v{acc} row_ror:{r} row_mask:0xf bank_mask:0xf")
        b(f"v_mov_b32 v{acc+1}, v{acc}")
        b(f"v_permlane16_swap_b32 v{acc}, v{acc+1}")
        b(f"v_add_f32 v{acc}, v{acc}, v{acc+1}")
        b(f"v_cvt_pk_bf16_f32 v{acc}, v{acc}, v{acc}")
        b(f"v_lshlrev_b32 v{acc}, 16, v{acc}")
        b(f"v_mul_f32 v{acc}, {LOG2E ^ 0x80000000:#x}, v{acc}")
        b(f"v_exp_f32 v{acc}, v{acc}")
        b(f"v_add_f32 v{acc}, 1.0, v{acc}")
        b(f"v_rcp_f32 v{acc}, v{acc}")
        b(f"v_cvt_pk_bf16_f32 v{acc}, v{acc}, v{acc}")
        d = xs
        b(f"v_lshlrev_b32 v{d}, 16, v{acc}")
        b(f"v_sub_f32 v{d+1}, 1.0, v{d}")
        b(f"v_cvt_pk_bf16_f32 v{d+1}, v{d+1}, v{d+1}")
        b(f"v_lshlrev_b32 v{d+1}, 16, v{d+1}")
    b(f"v_cmp_eq_u32 vcc, 0, v{t+3}")
    b(f"s_and_saveexec_b64 {s(sEX,2)}, vcc")
    for p in range(8):
        b(f"global_store_dwordx2 v{t+2}, {v(xs0+8*p,2)}, s[34:35] offset:{16*p} sc0 sc1")
    b(f"s_mov_b64 exec, {s(sEX,2)}")

def k1_nonce():
    b = F()
    t = vU + 26
    b(f"v_add_u32 v{t}, 1, v{t}")
    b(f"v_or_b32 v{t+1}, 1, v{t+1}")
    b(f"v_mov_b32 v{t+2}, {NONCE_OFF}")
    b(f"v_mov_b32 v{t+3}, 0")
    g = B()
    g(f"s_or_b32 s{sSpin}, s2, s{sWm}")
    g(f"s_cmp_lg_u32 s{sSpin}, 0")
    g("s_cbranch_scc1 L_k1_nononce")
    g(f"global_store_dwordx2 v{t+2}, {v(t,2)}, s[34:35] sc0 sc1", 'nocount')
    g(f"global_store_dwordx2 v{t+3}, {v(t,2)}, s[32:33] sc0 sc1", 'nocount')
    g("L_k1_nononce:")
    b.group(g)
    return b

def k1_S():
    b = k1_S_setup()
    if int(opts.get('sprio', 1)): b("s_setprio 2")
    m = B()
    for i in range(8):
        m("s_waitcnt lgkmcnt(0)")
        m("s_barrier")
        po = (i % NSLOT) * SLOT
        hi = po >= 65536 - 1024
        if hi:
            for k in range(4):
                m(f"v_add_u32 v{vTmp+k}, 0x10000, v{gPX+k}")
        for k in range(4):
            if hi: m(f"ds_read_b128 {a(aSX+4*k,4)}, v{vTmp+k} offset:{po - 65536}")
            else: m(f"ds_read_b128 {a(aSX+4*k,4)}, v{gPX+k} offset:{po}")
        if hi:
            for k in range(4):
                m(f"v_add_u32 v{vTmp+k}, 0x10000, v{gPB+k}")
        for k in range(4):
            for mm in range(2):
                if hi: m(f"ds_read_b128 {a(aSB+8*k+4*mm,4)}, v{vTmp+k} offset:{po - 65536 + mm*1024}")
                else: m(f"ds_read_b128 {a(aSB+8*k+4*mm,4)}, v{gPB+k} offset:{po + mm*1024}")
        for k in range(4):
            for mm, acc in ((0, aRE), (1, aIM)):
                c = v(acc, 16) if (i, k) != (0, 0) else "0"
                m(f"v_mfma_f32_32x32x16_bf16 {v(acc,16)}, {a(aSX+4*k,4)}, {a(aSB+8*k+4*mm,4)}, {c}")
    f = F()
    if not int(opts.get('nearly', 0)): f.ext(k1_nonce())
    if int(opts.get('pfw', 0)):
        g = B(); t = vP + 12
        g(f"s_cmp_eq_u32 s{sWm}, {int(opts.get('pfww', 1))}")
        g("s_cbranch_scc0 L_k1_pfw_done")
        g(f"v_lshrrev_b32 v{t}, 5, v{vLane}")
        g(f"s_lshl_b32 s{sSpin}, s2, 1")
        g(f"v_add_u32 v{t}, s{sSpin}, v{t}")
        g(f"v_mul_u32_u24 v{t}, 3584, v{t}")
        g(f"v_and_b32 v{t+1}, 31, v{vLane}")
        g(f"v_min_u32 v{t+1}, 27, v{t+1}")
        g(f"v_lshl_add_u32 v{t}, v{t+1}, 7, v{t}")
        g(f"global_load_dword v{vU+9}, v{t}, s[24:25]", 'nocount')
        g("L_k1_pfw_done:")
        f.group(g)
    f.ext(k1_params())
    f.ext(k1_setup_common())
    g = B()
    g(f"v_mov_b32 v{vTmp}, 0")
    g(f"global_load_dwordx2 {v(vNon,2)}, v{vTmp}, s[32:33] sc1")
    f.group(g)
    b.ext(merge(m.ops, f.ops, per=int(opts.get('per1', 5))))
    b("s_waitcnt vmcnt(0)")
    stamp(b, 2)
    s1 = flat(k1_scan1a().ops)
    cut = [j for j, o in enumerate(s1) if o.kind == 'ds'][0]
    if STAMP >= 2: stamp(b, 8)
    if int(opts.get('hb8', 1)):
        b.ext(s1[:cut])
        if STAMP >= 2: stamp(b, 9)
        b("s_barrier")
        b.ext(s1[cut:])
    else:
        b("s_barrier")
        b.ext(s1)
    if STAMP >= 2: stamp(b, 11)
    b("s_barrier")
    if STAMP >= 2: stamp(b, 12)
    b.ext(flat(k1_scan1b().ops))
    if STAMP >= 2: stamp(b, 13)
    b.ext(k1_publish())
    stamp(b, 3)
    b("s_barrier")
    b.ext(p2_S_csetup())
    if opts.get('lbfirst', '0') == '1':
        b("s_barrier")
        stamp(b, 4)
        b.ext(k1_lookback())
        stamp(b, 5)
        b.ext(k1_final())
        b.ext(p2_S_cdma())
        b.ext(p2_S_creads())
    else:
        b("s_barrier")
        b.ext(p2_S_cdma())
        stamp(b, 4)
        b.ext(k1_lookback())
        stamp(b, 5)
        b.ext(k1_final())
        b.ext(p2_S_creads())
    stamp(b, 6)
    return b

def cfma_sr(b, d, l, h, ure, uim, tmp):
    b(f"v_fma_f32 v{tmp}, v{l}, v{h}, v{ure}")
    b(f"v_fma_f32 v{tmp+1}, v{l}, v{h+1}, v{uim}")
    b(f"v_fma_f32 v{d}, -v{l+1}, v{h+1}, v{tmp}")
    b(f"v_fma_f32 v{d+1}, v{l+1}, v{h}, v{tmp+1}")

def k1_scan1a():
    b = F()
    tmp = vTmp
    R = lambda t: aRE + reg_of_t(t)
    I = lambda t: aIM + reg_of_t(t)
    b(f"v_mov_b32 v{vQ}, v{R(0)}\nv_mov_b32 v{vQ+1}, v{I(0)}")
    cur = vQ
    for t in range(1, 16):
        nxt = vQ if cur == vW_ else vW_
        cfma_sr(b, nxt, vL, cur, R(t), I(t), tmp)
        cur = nxt
    assert cur == vW_
    b(f"v_mov_b32 v{vPre}, v{cur}\nv_mov_b32 v{vPre+1}, v{cur+1}")
    b(f"v_mov_b32 v{vQ}, v{cur}\nv_mov_b32 v{vQ+1}, v{cur+1}")
    b(f"v_permlane32_swap_b32 v{vPre}, v{vQ}")
    b(f"v_permlane32_swap_b32 v{vPre+1}, v{vQ+1}")
    cfma_s(b, vW_, vL16, vPre, vQ, tmp)
    b(f"v_mul_f32 v{vPre}, v{vPre}, v{vHfm}\nv_mul_f32 v{vPre+1}, v{vPre+1}, v{vHfm}")
    t = vP
    b(f"v_and_b32 v{t+14}, 31, v{vLane}")
    b(f"v_lshlrev_b32 v{t+14}, 3, v{t+14}")
    b(f"v_add_u32 v{t+14}, {SCR}, v{t+14}")
    b(f"s_lshl_b32 s{sK0}, s{sWm}, 8")
    b(f"v_add_u32 v{t+15}, s{sK0}, v{t+14}")
    b(f"ds_write_b64 v{t+15}, {v(vW_,2)} offset:{SC}", "Wx")
    b.wait('lg', "Wx")
    return b

def k1_scan1b():
    b = F()
    t = vP; tmp = vTmp
    for w in range(4):
        b(f"ds_read_b64 {v(t+2*w,2)}, v{t+14} offset:{SC + 256*w}")
    W0, W1, W2, W3 = t, t+2, t+4, t+6
    Q2, Q3 = t+8, t+10
    cfma_s(b, Q2, vL32, W0, W1, tmp)
    cfma_s(b, Q3, vL32, Q2, W2, tmp)
    E = t + 12
    cfma_s(b, E, vL32, Q3, W3, tmp)
    for h in range(2):
        b(f"v_cndmask_b32 v{vQ+h}, 0, v{W0+h}, {s(sM1,2)}")
        b(f"v_cndmask_b32 v{vQ+h}, v{vQ+h}, v{Q2+h}, {s(sM2,2)}")
        b(f"v_cndmask_b32 v{vQ+h}, v{vQ+h}, v{Q3+h}, {s(sM3,2)}")
    cfma_s(b, vK, vF1, vQ, vPre, tmp)
    return b

def k1_publish():
    t = vP; E = t + 12; tmp = vTmp
    g = B()
    g(f"s_lshl_b32 s{sK0}, s{sR}, 13")
    g(f"v_add_u32 v{tmp}, s{sK0}, v{vLBa}")
    g(f"v_lshrrev_b32 v{tmp+1}, 3, v{vLane}")
    g(f"v_cmp_ne_u32 vcc, 0, v{vNon+1}")
    g("s_cbranch_vccnz L_k1_nonce_ok")
    g(f"s_mov_b32 s{sSpin}, 0")
    g("L_k1_nonce_retry:")
    g(f"v_mov_b32 v{tmp+2}, 0")
    g(f"global_load_dwordx2 {v(vNon,2)}, v{tmp+2}, s[32:33] sc1", 'nocount')
    g("s_waitcnt vmcnt(0)", 'nocount')
    g(f"s_add_u32 s{sSpin}, s{sSpin}, 1")
    g(f"s_cmp_gt_u32 s{sSpin}, 40000")
    g("s_cbranch_scc1 L_k1_nonce_ok")
    g(f"v_cmp_ne_u32 vcc, 0, v{vNon+1}")
    g("s_cbranch_vccz L_k1_nonce_retry")
    g("L_k1_nonce_ok:")
    g(f"v_mov_b32 v{E+2}, v{vNon}\nv_mov_b32 v{E+3}, v{vNon+1}")
    g(f"v_cmp_eq_u32 vcc, s{sWm}, v{tmp+1}")
    g(f"s_and_saveexec_b64 {s(sEX,2)}, vcc")
    g(f"global_store_dwordx4 v{tmp}, {v(E,4)}, s[34:35] sc0 sc1")
    g(f"s_mov_b64 exec, {s(sEX,2)}")
    return g

def k1_lookback():
    b = B(); tmp = vTmp; t = vP
    H = vW_
    def loads(tok):
        b(f"s_sub_u32 s{sK0}, s{sR}, 1")
        b(f"s_lshl_b32 s{sK0}, s{sK0}, 13")
        b(f"v_lshrrev_b32 v{t}, 5, v{vLane}")
        b(f"v_lshlrev_b32 v{t}, 13, v{t}")
        b(f"v_sub_u32 v{t}, s{sK0}, v{t}")
        b(f"v_add_u32 v{t}, v{vLBa}, v{t}")
        for mm in range(8):
            if mm: b(f"v_subrev_u32 v{t}, 16384, v{t}")
            b(f"v_max_i32 v{t+1}, v{t}, v{vLBa}")
            b(f"global_load_dwordx4 {v(vU+4*mm,4)}, v{t+1}, s[34:35] sc1", tok)
    b(f"s_cmp_eq_u32 s{sR}, 0")
    b("s_cbranch_scc1 L_k1_lb_zero")
    b(f"s_mov_b32 s{sSpin}, 0")
    b("L_k1_lb_again:")
    loads('nocount')
    b("s_waitcnt vmcnt(0)", 'nocount')
    b(f"s_mov_b64 {s(sEX,2)}, -1")
    for mm in range(8):
        b(f"s_cmp_le_u32 s{sR}, {2*mm}")
        b("s_cbranch_scc1 L_k1_lb_checked")
        b(f"s_cmp_ge_u32 s{sR}, {2*mm+2}")
        b(f"s_cselect_b32 s{sT1}, 0, -1")
        b(f"v_cmp_eq_u32 vcc, v{vU+4*mm+2}, v{vNon}")
        b(f"v_cmp_eq_u32 {s(sT2,2)}, v{vU+4*mm+3}, v{vNon+1}")
        b(f"s_and_b64 vcc, vcc, {s(sT2,2)}")
        b(f"s_or_b32 vcc_hi, vcc_hi, s{sT1}")
        b(f"s_and_b64 {s(sEX,2)}, {s(sEX,2)}, vcc")
    b("L_k1_lb_checked:")
    b(f"s_cmp_eq_u64 {s(sEX,2)}, -1")
    b("s_cbranch_scc1 L_k1_lb_ok")
    b(f"s_add_u32 s{sSpin}, s{sSpin}, 1")
    b(f"s_cmp_gt_u32 s{sSpin}, 40000")
    b("s_cbranch_scc1 L_k1_lb_ok")
    b(f"s_sleep {int(opts.get('lbsleep', 4))}")
    b("s_branch L_k1_lb_again")
    b("L_k1_lb_ok:")
    b(f"v_mov_b32 v{H}, 0\nv_mov_b32 v{H+1}, 0")
    for mm in range(7, -1, -1):
        b(f"s_cmp_le_u32 s{sR}, {2*mm}")
        b(f"s_cbranch_scc1 L_k1_lb_h{mm}")
        b(f"s_cmp_ge_u32 s{sR}, {2*mm+2}")
        b(f"s_cselect_b32 s{sT3}, -1, 0")
        b(f"s_mov_b32 s{sT2}, -1")
        b(f"v_cndmask_b32 v{vU+4*mm}, 0, v{vU+4*mm}, {s(sT2,2)}")
        b(f"v_cndmask_b32 v{vU+4*mm+1}, 0, v{vU+4*mm+1}, {s(sT2,2)}")
        b(f"v_fma_f32 v{tmp}, v{vL256}, v{H}, v{vU+4*mm}")
        b(f"v_fma_f32 v{tmp+1}, v{vL256}, v{H+1}, v{vU+4*mm+1}")
        b(f"v_fma_f32 v{tmp}, -v{vL256+1}, v{H+1}, v{tmp}")
        b(f"v_fma_f32 v{H+1}, v{vL256+1}, v{H}, v{tmp+1}")
        b(f"v_mov_b32 v{H}, v{tmp}")
        b(f"L_k1_lb_h{mm}:")
    b(f"v_mov_b32 v{vPre}, v{H}\nv_mov_b32 v{vPre+1}, v{H+1}")
    b(f"v_permlane32_swap_b32 v{H}, v{vPre}")
    b(f"v_permlane32_swap_b32 v{H+1}, v{vPre+1}")
    cfma_s(b, t, vL128, vPre, H, tmp)
    cfma_s(b, vQ, vG, t, vK, tmp)
    b("s_branch L_k1_lb_done")
    b("L_k1_lb_zero:")
    b(f"v_mov_b32 v{vQ}, v{vK}\nv_mov_b32 v{vQ+1}, v{vK+1}")
    b("L_k1_lb_done:")
    return b

def k1_final():
    b = B()
    tmp = vTmp
    prev = vQ
    for t in range(16):
        r = reg_of_t(t)
        u = vU + 2 * r
        cfma_sr(b, u, vL, prev, aRE + r, aIM + r, tmp)
        prev = u
    for r in range(16):
        u = vU + 2 * r
        tp = vP + 2 * (r % 4)
        b(f"v_mul_f32 v{tp}, v{vC2}, v{u}")
        b(f"v_mul_f32 v{tp+1}, v{vC2+1}, v{u}")
        b(f"v_fma_f32 v{u}, -v{vC2+1}, v{u+1}, v{tp}")
        b(f"v_fma_f32 v{u+1}, v{vC2}, v{u+1}, v{tp+1}")
    for k in range(8):
        b(f"v_cvt_pk_bf16_f32 v{aRE+k}, v{vU+4*k}, v{vU+4*k+2}")
    for h in range(2):
        b(f"ds_write_b128 v{vImgW}, {v(aRE+4*h,4)} offset:{IMG + h*16}", "img")
    for k in range(8):
        b(f"v_cvt_pk_bf16_f32 v{aRE+8+k}, -v{vU+4*k+1}, -v{vU+4*k+3}")
    for h in range(2):
        b(f"ds_write_b128 v{vImgW}, {v(aRE+8+4*h,4)} offset:{IMG + 2560 + h*16}", "img")
    b(f"s_lshl_b32 s{sT2}, s{sS}, 12")
    b(f"s_add_u32 s{sT1}, s{sHFb}, s{sT2}")
    b.wait('lg', "img")
    for m in range(2):
        for kk in range(2):
            r = aIM + (2*m + kk) * 4
            for rd in range(2):
                b(f"ds_read_b64_tr_b16 {v(r+2*rd,2)}, v{vImgR} offset:{IMG + (m*32 + 16*kk + 4*rd)*80}")
    for m in range(2):
        for kk in range(2):
            r = aIM + (2*m + kk) * 4
            b(f"s_add_u32 s{sT2}, s{sT1}, {(2*m+kk)*1024}")
            b(f"buffer_store_dwordx4 {v(r,4)}, v{vL16o}, {s(sHF,4)}, s{sT2} offen {STF}")
    return b


pA, pC1, pC2 = 36, 40, 44
pH, pN, pK0, pLw, pOff = 72, 73, 74, 75, 76
pNib = 84
CST = 98304
vCe, vCo, vPp = 2, 3, 4
vH0g, vH1g, vH0k, vH1k = 2, 3, 4, 5
vTau, vSg, vSk = 8, 10, 12
vWrq = 16
PITCH = 256

def p2_ids(b):
    b(f"s_lshr_b32 s{pH}, s{sS}, 3")
    b(f"s_and_b32 s{pN}, s{sS}, 7")

def p2_S_csetup():
    b = B(); L = vLane; t = vP
    p2_ids(b)
    srd(b, pC1, 14, 512*1024)
    srd(b, pC2, 16, 512*1024)
    b(f"v_and_b32 v{t}, 7, v{L}")
    b(f"v_lshrrev_b32 v{t+1}, 4, v{L}")
    b(f"v_xor_b32 v{t}, v{t}, v{t+1}")
    b(f"v_lshlrev_b32 v{t}, 4, v{t}")
    b(f"v_lshrrev_b32 v{t+1}, 3, v{L}")
    b(f"v_lshlrev_b32 v{t+1}, 10, v{t+1}")
    b(f"v_add_u32 v{vCe}, v{t}, v{t+1}")
    b(f"v_xor_b32 v{vCo}, 64, v{vCe}")
    b(f"s_lshl_b32 s{pOff}, s{pN}, 16")
    b(f"s_lshl_b32 s{sT0}, s{pH}, 9")
    b(f"s_add_u32 s{pOff}, s{pOff}, s{sT0}")
    b(f"s_lshl_b32 s{sT0}, s{sWm}, 7")
    b(f"s_add_u32 s{pOff}, s{pOff}, s{sT0}")
    b(f"s_lshl_b32 s{pLw}, s{sWm}, 14")
    b(f"s_add_u32 s{pLw}, s{pLw}, {CST}")
    b(f"v_and_b32 v{t}, 31, v{L}")
    b(f"v_lshlrev_b32 v{t}, 7, v{t}")
    b(f"v_add_u32 v{t}, s{pLw}, v{t}")
    b(f"v_lshrrev_b32 v{t+1}, 5, v{L}")
    b(f"v_bfe_u32 v{t+2}, v{L}, 1, 3")
    b(f"v_xor_b32 v{t+2}, v{t+1}, v{t+2}")
    for k in range(4):
        b(f"v_xor_b32 v{t+1}, {2*k}, v{t+2}")
        b(f"v_lshl_add_u32 v{vPp+k}, v{t+1}, 4, v{t}")
    return b

def p2_S_cdma():
    b = B()
    for m in range(2):
        for aa in range(8):
            b(f"s_add_u32 m0, s{pLw}, {m*8192 + aa*1024}")
            b(f"s_add_u32 s{sT0}, s{pOff}, {aa*8192}")
            b(f"buffer_load_dwordx4 v{vCe if aa % 2 == 0 else vCo}, {s(pC1 if m == 0 else pC2,4)}, s{sT0} offen lds", "cst")
    return b

ROT2 = int(opts.get('rot2', 0))
pKS = 48
def p2_S_creads():
    b = B()
    if not ROT2:
        b.wait('vm', "cst")
        for j in range(8):
            m = (j >> 1) & 1; ksp = 2 * (j >> 2) + (j & 1)
            for aa in range(2):
                b(f"ds_read_b128 {a(8*j+4*aa,4)}, v{vPp+ksp} offset:{m*8192 + aa*4096}")
        for j in range(8): b(f"s_mov_b32 s{pKS+j}, {j*1024}")
        return b
    t = vP; L = vLane
    b(f"v_and_b32 v{t}, 31, v{L}")
    b(f"v_lshlrev_b32 v{t}, 7, v{t}")
    b(f"v_add_u32 v{t}, s{pLw}, v{t}")
    b(f"v_lshrrev_b32 v{t+1}, 5, v{L}")
    b(f"v_bfe_u32 v{t+2}, v{L}, 1, 3")
    b(f"v_xor_b32 v{t+1}, v{t+1}, v{t+2}")
    b.wait('vm', "cst")
    for j in range(8):
        b(f"s_add_u32 s{sT0}, s{pN}, {j}")
        b(f"s_and_b32 s{sT0}, s{sT0}, 7")
        b(f"s_lshl_b32 s{pKS+j}, s{sT0}, 10")
        b(f"s_lshr_b32 s{sT1}, s{sT0}, 2")
        b(f"s_lshl_b32 s{sT1}, s{sT1}, 1")
        b(f"s_and_b32 s{sT2}, s{sT0}, 1")
        b(f"s_add_u32 s{sT1}, s{sT1}, s{sT2}")
        b(f"s_lshl_b32 s{sT1}, s{sT1}, 1")
        b(f"s_bfe_u32 s{sT2}, s{sT0}, 0x10001")
        b(f"s_lshl_b32 s{sT2}, s{sT2}, 13")
        tt = t + 4 + (j % 4)
        b(f"v_xor_b32 v{tt}, s{sT1}, v{t+1}")
        b(f"v_lshl_add_u32 v{tt}, v{tt}, 4, v{t}")
        b(f"v_add_u32 v{tt}, s{sT2}, v{tt}")
        for aa in range(2):
            b(f"ds_read_b128 {a(8*j+4*aa,4)}, v{tt} offset:{aa*4096}")
    return b

def p2_common(b, role):
    L = vLane
    srd(b, pA, 34, WS_USED)
    b(f"s_xor_b32 s{sT0}, s{pH}, 1")
    b(f"s_lshl_b32 s{sT0}, s{sT0}, 1")
    b(f"s_lshl_b32 s{sT1}, s{sR}, 2")
    b(f"s_add_u32 s{sT0}, s{sT0}, s{sT1}")
    b(f"s_mul_i32 s{sT0}, s{sT0}, {176*1024}")
    b(f"v_lshlrev_b32 v6, 4, v{L}")
    b(f"v_add_u32 v{vH0g}, s{sT0}, v6")
    b(f"v_add_u32 v{vH1g}, {176*1024}, v{vH0g}")
    b(f"s_lshl_b32 s{sT0}, s{pH}, 2")
    b(f"s_sub_u32 s{sT0}, s{sT0}, 2")
    b(f"s_mul_i32 s{sT0}, s{sT0}, {176*1024}")
    b(f"v_add_u32 v{vH0k}, s{sT0}, v{vH0g}")
    b(f"v_add_u32 v{vH1k}, s{sT0}, v{vH1g}")
    b(f"s_lshl_b32 s{pK0}, s{pH}, 2")
    b(f"s_add_u32 s{pK0}, s{pK0}, s{sWm}")
    if role == 0:
        b(f"s_lshl_b32 s{pK0}, s{pK0}, 13")
    else:
        b(f"s_mul_i32 s{pK0}, s{pK0}, {14*1024}")
        b(f"s_add_u32 s{pK0}, s{pK0}, {64*1024}")

def p2_common2(b, role):
    L = vLane
    b(f"v_bfe_u32 v6, v{L}, 3, 2")
    b(f"v_and_b32 v7, 7, v{L}")
    b(f"v_lshl_add_u32 v{vTau}, v7, 2, v6")
    b(f"s_xor_b32 s{sT0}, s{pH}, 1")
    b(f"s_lshl_b32 s{sT0}, s{sT0}, 6")
    b(f"s_lshl_b32 s{sT1}, s{sR}, 7")
    b(f"s_add_u32 s{sT0}, s{sT0}, s{sT1}")
    b(f"v_add_u32 v6, s{sT0}, v{vTau}")
    b("v_lshlrev_b32 v6, 3, v6")
    b(f"v_add_u32 v6, {G_OFF + 4*role}, v6")
    b(f"global_load_dword v{vSg}, v6, s[34:35] sc1")
    b(f"global_load_dword v{vSg+1}, v6, s[34:35] offset:256 sc1")
    b(f"s_lshl_b32 s{sT0}, s{pH}, 7")
    b(f"s_sub_u32 s{sT0}, s{sT0}, 64")
    b(f"s_lshl_b32 s{sT0}, s{sT0}, 3")
    b(f"v_add_u32 v6, s{sT0}, v6")
    b(f"global_load_dword v{vSk}, v6, s[34:35] sc1")
    b(f"global_load_dword v{vSk+1}, v6, s[34:35] offset:256 sc1")
    b(f"s_lshl_b32 s{sT0}, s{sWm}, 14")
    if role == 0: b(f"s_add_u32 s{sT0}, s{sT0}, {CST}")
    b(f"v_lshlrev_b32 v9, 8, v{vTau}")
    b(f"v_add_u32 v9, s{sT0}, v9")
    b(f"v_lshrrev_b32 v6, 5, v{L}")
    b(f"v_and_b32 v7, 7, v{L}")
    b("v_xor_b32 v6, v6, v7")
    for q in range(4):
        b(f"v_xor_b32 v7, {2*q}, v6")
        b(f"v_lshl_add_u32 v{vWrq+q}, v7, 4, v9")

def p2_rwrite(b, acc, sc, dup=None):
    if dup is not None:
        b(f"v_mov_b32 v{dup}, v{sc}\nv_mov_b32 v{dup+1}, v{sc}\nv_mov_b32 v{dup+2}, v{sc+1}\nv_mov_b32 v{dup+3}, v{sc+1}")
    for aa in range(2):
        for bb in range(2):
            S = acc + (aa*2+bb)*16
            g = sc + bb
            gp = g & ~1; o = g & 1
            if dup is not None:
                for p in range(8):
                    b(f"v_pk_mul_f32 {v(S+2*p,2)}, {v(S+2*p,2)}, {v(dup+2*bb,2)}")
            elif opts.get('rw', 'scalar') == 'pk':
                for p in range(8):
                    b(f"v_pk_mul_f32 {v(S+2*p,2)}, {v(S+2*p,2)}, {v(gp,2)} op_sel:[0,{o}] op_sel_hi:[1,{o}]")
            else:
                for p in range(16):
                    b(f"v_mul_f32 v{S+p}, v{g}, v{S+p}")
            for q in range(4):
                b(f"ds_write_b128 v{vWrq+q}, {v(S+4*q,4)} offset:{bb*32*PITCH + aa*128}", "red")
    b.wait('lg', "red")

def p2_F():
    b = B(); L = vLane
    b("L_p2_F:")
    b("s_waitcnt vmcnt(0) lgkmcnt(0)")
    b("s_barrier")
    if int(opts.get('p2prio', 0)): b(f"s_setprio {int(opts.get('p2prio', 0))}")
    stamp(b, 7)
    p2_ids(b)
    srd(b, pC1, 26, 1792*1024)
    vWa, vWb, vTp = 6, 7, 20
    t = 24
    b(f"v_bfe_u32 v{t}, v{L}, 4, 1")
    b(f"v_lshlrev_b32 v{t}, 2, v{t}")
    b(f"v_and_b32 v{t+1}, 7, v{L}")
    b(f"v_xor_b32 v{t}, v{t}, v{t+1}")
    b(f"v_lshlrev_b32 v{t}, 4, v{t}")
    b(f"v_lshrrev_b32 v{t+1}, 3, v{L}")
    b(f"v_lshlrev_b32 v{t+1}, 10, v{t+1}")
    b(f"v_add_u32 v{vWa}, v{t}, v{t+1}")
    b(f"v_add_u32 v{vWb}, {8192 - 1024}, v{vWa}")
    b(f"s_lshl_b32 s{sT0}, s{pH}, 2")
    b(f"s_add_u32 s{sT0}, s{sT0}, s{sWm}")
    b(f"s_mul_i32 s{pOff}, s{sT0}, {14*16*1024}")
    b(f"s_lshl_b32 s{sT0}, s{pN}, 7")
    b(f"s_add_u32 s{pOff}, s{pOff}, s{sT0}")
    b(f"s_lshl_b32 s{pLw}, s{sWm}, 14")
    pKF = [48, 49, 50, 51, 52, 53, 54, 55, 77, 78, 79, 80, 81, 82]
    if ROT2:
        b(f"s_mul_i32 s{sT2}, s{pN}, 7")
        b(f"s_lshr_b32 s{sT2}, s{sT2}, 2")
        for i in range(14):
            b(f"s_add_u32 s{pKF[i]}, s{sT2}, {i}")
            b(f"s_cmp_ge_u32 s{pKF[i]}, 14")
            b(f"s_cselect_b32 s{sT3}, 14, 0")
            b(f"s_sub_u32 s{pKF[i]}, s{pKF[i]}, s{sT3}")
            b(f"s_lshl_b32 s{pKF[i]}, s{pKF[i]}, 10")
    else:
        for i in range(14): b(f"s_mov_b32 s{pKF[i]}, {i*1024}")
    def wdma(i):
        b(f"s_add_u32 m0, s{pLw}, {(i % 8)*2048}")
        b(f"s_lshl_b32 s{sT1}, s{pKF[i]}, 4")
        b(f"s_add_u32 s{sT1}, s{sT1}, s{pOff}")
        b(f"buffer_load_dwordx4 v{vWa}, {s(pC1,4)}, s{sT1} offen lds", f"f{i}")
        b(f"buffer_load_dwordx4 v{vWb}, {s(pC1,4)}, s{sT1} offen offset:1024 lds", f"f{i}")
    NPRE = int(opts.get('npre', 8))
    for i in range(min(NPRE, 8)): wdma(i)
    tr_pattern(b, vTp, 4, t)
    b(f"v_add_u32 v{vTp}, s{pLw}, v{vTp}")
    b(f"v_add_u32 v{vTp+1}, s{pLw}, v{vTp+1}")
    b(f"v_mov_b32 v22, v{vWa}\nv_mov_b32 v23, v{vWb}")
    vWa, vWb = 22, 23
    p2_common(b, 1)
    def wreads(i):
        b.wait('vm', f"f{i}")
        for aa in range(2):
            for rd in range(2):
                b(f"ds_read_b64_tr_b16 {a(8*i+4*aa+2*rd,2)}, v{vTp+aa} offset:{(i % 8)*2048 + rd*1024}", f"wr{i}")
    NRD = max(0, NPRE - 8)
    for i in range(NRD):
        wreads(i)
        b.wait('lg', f"wr{i}")
        wdma(8 + i)
    stamp(b, 24)
    b("s_barrier")
    stamp(b, 25)
    NSF, D = 14, 7
    def hreg(idx, k):
        sl = idx % D
        return v(24 + sl*8 + 4*k, 4) if sl < 5 else a(112 + (sl-5)*8 + 4*k, 4)
    def hload(idx):
        ps, i = divmod(idx, NSF)
        h0, h1 = (vH0g, vH1g) if ps == 0 else (vH0k, vH1k)
        b(f"s_add_u32 s{sT0}, s{pK0}, s{pKF[i]}")
        b(f"buffer_load_dwordx4 {hreg(idx,0)}, v{h0}, {s(pA,4)}, s{sT0} offen sc1")
        b(f"buffer_load_dwordx4 {hreg(idx,1)}, v{h1}, {s(pA,4)}, s{sT0} offen sc1")
    hload(0)
    rest = list(range(NPRE, 8))
    if rest: wdma(rest.pop(0))
    hload(1)
    if rest: wdma(rest.pop(0))
    for i in range(max(NRD, 0), max(NRD, 2)): wreads(i)
    hload(2)
    if rest: wdma(rest.pop(0))
    hload(3)
    for i in rest: wdma(i)
    DH1 = int(opts.get('dh1', 7))
    p2_common2(b, 1)
    for k in range(4, DH1): hload(k)
    stamp(b, 26)
    acc = 64
    def step(idx):
        ps, i = divmod(idx, NSF)
        mf = [f"v_mfma_f32_32x32x16_bf16 {v(acc+(aa*2+bb)*16,16)}, {a(8*i+4*aa,4)}, {hreg(idx,bb)}, {v(acc+(aa*2+bb)*16,16) if i else 0}" for aa in range(2) for bb in range(2)]
        b.wait('lg', f"wr{i}")
        b(mf[0])
        if 8 + i < 14 and i >= NRD: wdma(8 + i)
        b(mf[1])
        if i + 2 < 14 and i + 2 >= max(NRD, 2): wreads(i + 2)
        b(mf[2])
        n0 = len(b.ops)
        KP = int(opts.get('kp', 1))
        tg = [i + DH1] if i + DH1 < NSF else ([NSF + (i - (NSF - KP))] if i >= NSF - KP else [])
        for t_ in tg: hload(t_)
        ld = b.ops[n0:]; del b.ops[n0:]
        cut = [j for j, o in enumerate(ld) if o.kind == 'vmem']
        if cut:
            b.ext(ld[:cut[0] + 1]); b(mf[3]); b.ext(ld[cut[0] + 1:])
        else: b(mf[3])
        if i == NSF - 1 - DH1: b("s_barrier")
    for idx in range(NSF): step(idx)
    stamp(b, 27)
    n0 = len(b.ops); p2_rwrite(b, acc, vSg); rw = b.ops[n0:]; del b.ops[n0:]
    n0 = len(b.ops)
    for k in range(int(opts.get('kp', 1)), 7): hload(NSF + k)
    hl = chunks_of(b.ops[n0:]); del b.ops[n0:]
    body, tail = rw[:-1], rw[-1:]
    if int(opts.get('r1il', 1)):
        gap = max(1, len(body) // (len(hl) + 1)); outp = []
        for j, o in enumerate(body):
            outp.append(o)
            if (j + 1) % gap == 0 and hl: outp.extend(hl.pop(0))
        for c in hl: outp.extend(c)
        b.ext(outp + tail)
        b("s_barrier")
    else:
        b.ext(body + tail)
        b("s_barrier")
        for c in hl: b.ext(c)
    def step2(idx):
        i = idx - NSF
        mf = [f"v_mfma_f32_32x32x16_bf16 {v(acc+(aa*2+bb)*16,16)}, {a(8*i+4*aa,4)}, {hreg(idx,bb)}, {v(acc+(aa*2+bb)*16,16) if i else 0}" for aa in range(2) for bb in range(2)]
        b(mf[0]); b(mf[1]); b(mf[2])
        n0 = len(b.ops)
        if idx + D < 2 * NSF: hload(idx + D)
        ld = b.ops[n0:]; del b.ops[n0:]
        cut = [j for j, o in enumerate(ld) if o.kind == 'vmem']
        if cut:
            b.ext(ld[:cut[0] + 1]); b(mf[3]); b.ext(ld[cut[0] + 1:])
        else: b(mf[3])
    for idx in range(NSF, 2 * NSF):
        step2(idx)
        if idx == NSF + 3: b("s_barrier")
    stamp(b, 28)
    FSPLIT = int(opts.get('fsplit', 1))
    n0 = len(b.ops)
    p2_rwrite(b, acc, vSk, 24 if int(opts.get('r2pk', 1)) else None)
    rw = b.ops[n0:]; del b.ops[n0:]
    if FSPLIT:
        f = F()
        f("v_and_b32 v34, 0xff, v0")
        f("v_lshrrev_b32 v35, 4, v34")
        f("v_and_b32 v36, 15, v34")
        f("v_lshrrev_b32 v37, 6, v34")
        f("v_xor_b32 v37, v37, v36")
        f("v_lshlrev_b32 v28, 8, v35")
        f("v_lshl_add_u32 v28, v37, 4, v28")
        f("v_xor_b32 v29, 64, v28")
        f(f"v_add_u32 v30, {CST}, v28")
        f(f"v_add_u32 v31, {CST}, v29")
        f(f"s_lshl_b32 s{sT0}, s{sR}, 7")
        f(f"s_lshl_b32 s{sT1}, s{pH}, 6")
        f(f"s_add_u32 s{sT0}, s{sT0}, s{sT1}")
        f(f"s_add_u32 s{sT0}, s{sT0}, 32")
        f(f"v_add_u32 v35, s{sT0}, v35")
        f(f"s_lshl_b32 s{sT1}, s{pN}, 8")
        f("v_lshlrev_b32 v32, 11, v35")
        f("v_lshl_add_u32 v32, v36, 4, v32")
        f(f"v_add_u32 v32, s{sT1}, v32")
        f("v_lshlrev_b32 v33, 4, v34")
        f("v_add_u32 v33, 0x10000, v33")
        rw = merge(rw, f.ops, after=lambda o: o.mn.startswith('ds_write'), per=2)
    b.ext(rw)
    b("s_barrier")
    stamp(b, 29)
    if FSPLIT:
        T = 64
        for p in (2, 3):
            b(f"ds_read_b128 {v(100+4*(p-2),4)}, v33 offset:{(p-2)*4096}")
        for p in (2, 3):
            for w in range(8):
                base = (28 if p % 2 == 0 else 29) if w < 4 else (30 if p % 2 == 0 else 31)
                b(f"ds_read_b128 {v(T+4*w,4)}, v{base} offset:{(w % 4)*16384 + p*4096}")
            for w in range(0, 8, 2):
                b(f"v_pk_add_f32 {v(T+4*w,2)}, {v(T+4*w,2)}, {v(T+4*w+4,2)}")
                b(f"v_pk_add_f32 {v(T+4*w+2,2)}, {v(T+4*w+2,2)}, {v(T+4*w+6,2)}")
            for w in (0, 4):
                b(f"v_pk_add_f32 {v(T+4*w,2)}, {v(T+4*w,2)}, {v(T+4*w+8,2)}")
                b(f"v_pk_add_f32 {v(T+4*w+2,2)}, {v(T+4*w+2,2)}, {v(T+4*w+10,2)}")
            d = 108 + 4 * (p - 2)
            b(f"v_pk_add_f32 {v(d,2)}, {v(T,2)}, {v(T+16,2)}")
            b(f"v_pk_add_f32 {v(d+2,2)}, {v(T+2,2)}, {v(T+18,2)}")
            b(f"v_pk_add_f32 {v(d,2)}, {v(d,2)}, {v(100+4*(p-2),2)}")
            b(f"v_pk_add_f32 {v(d+2,2)}, {v(d+2,2)}, {v(102+4*(p-2),2)}")
            if p == 3: b(f"v_add_u32 v32, {16*2048}, v32")
            b(f"global_store_dwordx4 v32, {v(d,4)}, s[30:31] {opts.get('outf', 'sc0+sc1').replace('+', ' ')}")
    return b

def p2_S():
    b = B(); L = vLane
    b("s_waitcnt vmcnt(0) lgkmcnt(0)")
    b("s_barrier")
    stamp(b, 7)
    b(f"s_cmp_lg_u32 s{sWm}, 0")
    b("s_cbranch_scc1 L_p2_noflag")
    b(f"s_mul_i32 s{sT0}, s{sR}, {FLG_STRIDE}")
    b(f"s_add_u32 s{sT0}, s{sT0}, {FLG_OFF}")
    b(f"s_lshl_b32 s{sT1}, s{sS}, 3")
    b(f"s_add_u32 s{sT1}, s{sT1}, s{sT0}")
    b(f"v_mov_b32 v6, s{sT1}")
    b(f"global_store_dwordx2 v6, {v(vNon,2)}, s[34:35] sc0 sc1", 'nocount')
    b(f"v_and_b32 v6, 15, v{L}")
    b("v_lshlrev_b32 v6, 3, v6")
    b(f"v_add_u32 v6, s{sT0}, v6")
    b(f"s_mov_b32 s{sSpin}, 0")
    NP = int(opts.get('npoll', 1))
    SL = int(opts.get('pollsl', 0))
    for k in range(NP):
        b(f"global_load_dwordx2 {v(24+2*k,2)}, v6, s[34:35] sc1", 'nocount')
        if SL: b(f"s_sleep {SL}")
    b("L_p2_poll:")
    for k in range(NP):
        b(f"s_waitcnt vmcnt({NP-1})", 'nocount')
        b(f"v_cmp_eq_u32 vcc, v{24+2*k}, v{vNon}")
        b(f"v_cmp_eq_u32 {s(sT2,2)}, v{24+2*k+1}, v{vNon+1}")
        b(f"s_and_b64 vcc, vcc, {s(sT2,2)}")
        b("s_cmp_eq_u64 vcc, -1")
        b("s_cbranch_scc1 L_p2_polled")
        b(f"global_load_dwordx2 {v(24+2*k,2)}, v6, s[34:35] sc1", 'nocount')
    b(f"s_add_u32 s{sSpin}, s{sSpin}, 1")
    b(f"s_cmp_gt_u32 s{sSpin}, 100000")
    b("s_cbranch_scc0 L_p2_poll")
    b("L_p2_polled:")
    b("L_p2_noflag:")
    b(f"v_readfirstlane_b32 s{sT0}, v{vNon}")
    for j in range(4):
        b(f"s_bfe_u32 s{pNib+j}, s{sT0}, {(4 << 16) | (4*j):#x}")
    p2_common(b, 0)
    stamp(b, 24)
    b("s_barrier")
    if int(opts.get('p2prio', 0)): b("s_setprio 0")
    stamp(b, 25)
    def hreg(j, k): return a(64 + 8*j + 4*k, 4)
    def hload(j, ps):
        h0, h1 = (vH0g, vH1g) if ps == 0 else (vH0k, vH1k)
        b(f"s_add_u32 s{sT0}, s{pK0}, s{pKS+j}")
        b(f"buffer_load_dwordx4 {hreg(j,0)}, v{h0}, {s(pA,4)}, s{sT0} offen sc1")
        b(f"buffer_load_dwordx4 {hreg(j,1)}, v{h1}, {s(pA,4)}, s{sT0} offen sc1")
    DS1 = int(opts.get('ds1', 4))
    for j in range(DS1): hload(j, 0)
    p2_common2(b, 0)
    vRE, vRO, vREh, vROh = 20, 21, 22, 23
    b("v_lshrrev_b32 v6, 4, v0")
    b("v_and_b32 v7, 15, v0")
    b("v_lshrrev_b32 v9, 6, v0")
    b("v_xor_b32 v9, v9, v7")
    b(f"v_lshlrev_b32 v{vRE}, 8, v6")
    b(f"v_lshl_add_u32 v{vRE}, v9, 4, v{vRE}")
    b(f"v_xor_b32 v{vRO}, 64, v{vRE}")
    b(f"v_add_u32 v{vREh}, {CST}, v{vRE}")
    b(f"v_add_u32 v{vROh}, {CST}, v{vRO}")
    stamp(b, 26)
    acc = 64
    def mf(j): return [f"v_mfma_f32_32x32x16_bf16 {v(acc+(aa*2+bb)*16,16)}, {a(8*j+4*aa,4)}, {hreg(j,bb)}, {v(acc+(aa*2+bb)*16,16) if j else 0}" for aa in range(2) for bb in range(2)]
    for j in range(8):
        for t_ in mf(j): b(t_)
        if j + DS1 < 8: hload(j + DS1, 0)
    stamp(b, 27)
    p2_rwrite(b, acc, vSg)
    b("s_barrier")
    for j in range(8): hload(j, 1)
    for j in range(8):
        for t_ in mf(j): b(t_)
    stamp(b, 28)
    b("s_barrier")
    def padd(d, x, y, pk):
        if pk: b(f"v_pk_add_f32 {v(d,2)}, {v(x,2)}, {v(y,2)}")
        else:
            b(f"v_add_f32 v{d}, v{x}, v{y}"); b(f"v_add_f32 v{d+1}, v{x+1}, v{y+1}")
    def reduce(p, dst, pk):
        T = 24
        for w in range(8):
            base = (vRE if p % 2 == 0 else vRO) if w < 4 else (vREh if p % 2 == 0 else vROh)
            b(f"ds_read_b128 {v(T+4*w,4)}, v{base} offset:{(w % 4)*16384 + p*4096}")
        for w in range(0, 8, 2):
            padd(T+4*w, T+4*w, T+4*w+4, pk); padd(T+4*w+2, T+4*w+2, T+4*w+6, pk)
        for w in (0, 4):
            padd(T+4*w, T+4*w, T+4*w+8, pk); padd(T+4*w+2, T+4*w+2, T+4*w+10, pk)
        padd(dst, T, T+16, pk); padd(dst+2, T+2, T+18, pk)
    b("v_lshlrev_b32 v6, 4, v0")
    b(f"s_lshl_b32 s{sT0}, s2, 14")
    b(f"s_add_u32 s{sT0}, s{sT0}, {XCH_OFF}")
    b(f"v_add_u32 v6, s{sT0}, v6")
    for p in range(4):
        d = 56 + 4 * (p % 2)
        reduce(p, d, False)
        for e in range(4): b(f"v_and_or_b32 v{d+e}, v{d+e}, -16, s{pNib+e}")
        if p: b(f"v_add_u32 v6, 4096, v6")
        b(f"global_store_dwordx4 v6, {v(d,4)}, s[34:35] sc0 sc1")
    b("s_barrier")
    p2_rwrite(b, acc, vSk)
    PR_, BI, XV = 64, 80, 96
    b("v_lshlrev_b32 v6, 4, v0")
    b(f"s_xor_b32 s{sT1}, s2, 1")
    b(f"s_lshl_b32 s{sT0}, s{sT1}, 14")
    b(f"s_add_u32 s{sT0}, s{sT0}, {XCH_OFF}")
    b(f"v_add_u32 v9, s{sT0}, v6")
    def prt(tok):
        for p in range(4):
            if p: b(f"v_add_u32 v7, {p*4096}, v9")
            b(f"global_load_dwordx4 {v(PR_+4*p,4)}, v{7 if p else 9}, s[34:35] sc1", tok)
    prt("prt")
    b("v_lshrrev_b32 v6, 4, v0")
    b("v_and_b32 v8, 15, v0")
    b(f"s_lshl_b32 s{sT0}, s{sR}, 7")
    b(f"s_lshl_b32 s{sT1}, s{pH}, 6")
    b(f"s_add_u32 s{sT0}, s{sT0}, s{sT1}")
    b(f"v_add_u32 v6, s{sT0}, v6")
    b(f"s_lshl_b32 s{sT1}, s{pN}, 7")
    b("v_lshlrev_b32 v2, 10, v6")
    b("v_lshl_add_u32 v2, v8, 3, v2")
    b(f"v_add_u32 v2, s{sT1}, v2")
    for p in range(4):
        if p: b(f"v_add_u32 v2, {16*1024}, v2")
        b(f"global_load_dwordx2 {v(XV+2*p,2)}, v2, s[4:5]")
    b("v_lshlrev_b32 v2, 3, v8")
    b(f"v_add_u32 v2, s{sT1}, v2")
    b(f"global_load_dwordx2 {v(XV+8,2)}, v2, s[20:21]")
    b("v_lshlrev_b32 v2, 3, v6")
    b(f"v_add_u32 v2, {G_OFF}, v2")
    for p in range(4):
        b(f"global_load_dword v{XV+10+p}, v2, s[34:35] offset:{p*128} sc1")
    b(f"s_lshl_b32 s{sT1}, s{pN}, 8")
    b("v_lshlrev_b32 v2, 11, v6")
    b("v_lshl_add_u32 v2, v8, 4, v2")
    b(f"v_add_u32 v2, s{sT1}, v2")
    DS_ = XV + 14
    b(f"v_lshlrev_b32 v{DS_}, 16, v{XV+8}\nv_and_b32 v{DS_+1}, 0xffff0000, v{XV+8}\nv_lshlrev_b32 v{DS_+2}, 16, v{XV+9}\nv_and_b32 v{DS_+3}, 0xffff0000, v{XV+9}")
    for p in range(4):
        xs = XV + 2*p; tp = BI + 4*p
        b(f"v_lshlrev_b32 v{tp}, 16, v{xs}\nv_and_b32 v{tp+1}, 0xffff0000, v{xs}\nv_lshlrev_b32 v{tp+2}, 16, v{xs+1}\nv_and_b32 v{tp+3}, 0xffff0000, v{xs+1}")
        for e in range(4): b(f"v_mul_f32 v{tp+e}, v{tp+e}, v{DS_+e}")
        b(f"v_cvt_pk_bf16_f32 v56, v{tp}, v{tp+1}")
        b(f"v_cvt_pk_bf16_f32 v57, v{tp+2}, v{tp+3}")
        b(f"v_lshlrev_b32 v{tp}, 16, v56\nv_and_b32 v{tp+1}, 0xffff0000, v56\nv_lshlrev_b32 v{tp+2}, 16, v57\nv_and_b32 v{tp+3}, 0xffff0000, v57")
        for e in range(4): b(f"v_mul_f32 v{tp+e}, v{XV+10+p}, v{tp+e}")
    b.wait('vm', "prt")
    b(f"s_mov_b32 s{sSpin}, 0")
    if int(opts.get('prtpoll', 0)):
        b("L_p2_q:")
        b("v_mov_b32 v58, 0")
        for u in range(12, 16):
            b(f"v_xor_b32 v59, s{pNib + (u % 4)}, v{PR_+u}")
            b(f"v_and_or_b32 v58, v59, 15, v58")
        b("v_cmp_eq_u32 vcc, 0, v58")
        b("s_cmp_eq_u64 vcc, -1")
        b("s_cbranch_scc1 L_p2_qok")
        b(f"s_add_u32 s{sSpin}, s{sSpin}, 1")
        b(f"s_cmp_gt_u32 s{sSpin}, 100000")
        b("s_cbranch_scc1 L_p2_qok")
        b(f"v_add_u32 v7, {3*4096}, v9")
        b(f"global_load_dwordx4 {v(PR_+12,4)}, v7, s[34:35] sc1", 'nocount')
        b("s_waitcnt vmcnt(0)", 'nocount')
        b("s_branch L_p2_q")
        b("L_p2_qok:")
    b("L_p2_chk:")
    b("v_mov_b32 v58, 0")
    for u in range(16):
        b(f"v_xor_b32 v{PR_+u}, s{pNib + (u % 4)}, v{PR_+u}")
        b(f"v_and_or_b32 v58, v{PR_+u}, 15, v58")
    b("v_cmp_eq_u32 vcc, 0, v58")
    b("s_cmp_eq_u64 vcc, -1")
    b("s_cbranch_scc1 L_p2_ok")
    b(f"s_add_u32 s{sSpin}, s{sSpin}, 1")
    b(f"s_cmp_gt_u32 s{sSpin}, 100000")
    b("s_cbranch_scc1 L_p2_ok")
    prt('nocount')
    b("s_waitcnt vmcnt(0)", 'nocount')
    b("s_branch L_p2_chk")
    b("L_p2_ok:")
    for u in range(16): b(f"v_add_f32 v{BI+u}, v{BI+u}, v{PR_+u}")
    FSPLIT = int(opts.get('fsplit', 1))
    if FSPLIT:
        b("v_lshlrev_b32 v6, 4, v0")
        b("v_add_u32 v6, 0x10000, v6")
        for p in (2, 3): b(f"ds_write_b128 v6, {v(BI+4*p,4)} offset:{(p-2)*4096}", "biw")
        b.wait('lg', "biw")
    stamp(b, 29)
    b("s_barrier")
    for p in range(2 if FSPLIT else 4):
        d = 56 + 4 * (p % 2)
        reduce(p, d, True)
        b(f"v_pk_add_f32 {v(d,2)}, {v(d,2)}, {v(BI+4*p,2)}")
        b(f"v_pk_add_f32 {v(d+2,2)}, {v(d+2,2)}, {v(BI+4*p+2,2)}")
        if p: b(f"v_add_u32 v2, {16*2048}, v2")
        b(f"global_store_dwordx4 v2, {v(d,4)}, s[30:31] {opts.get('outf', 'sc0+sc1').replace('+', ' ')}")
    stamp(b, 30)
    return b

def gen_k1():
    global STV
    STV = 15
    pro = k1_head()
    S = k1_S()
    S.ext(p2_S())
    stamp_end(S, sWm, "s[34:35]", 0x2000000, vLane, 3, 14)
    S("s_endpgm")
    Fm = B(); Fm("L_k1_F:")
    Fm(f"s_cmp_ge_u32 s{sS}, 14")
    Fm("s_cbranch_scc1 L_k1_Fn")
    f1 = k1_F(True)
    f1("s_branch L_p2_F")
    Fn = B(); Fn("L_k1_Fn:")
    f2 = k1_F(False)
    p2f = p2_F()
    if STAMP: p2f(f"s_add_u32 s{sWave}, s{sWm}, 4")
    stamp_end(p2f, sWave, "s[34:35]", 0x2000000, vLane, 3, 14)
    p2f("L_k1_end:")
    p2f("s_endpgm")
    def path(prefix, body, label=None):
        allops = insert_waits(copy.deepcopy(prefix) + body)
        if label:
            idx = [i for i, o in enumerate(allops) if o.text == label][0]
            allops = allops[idx:]
        return insert_hazard_nops(allops)
    out = path([], pro.ops + S.ops)
    out += path(pro.ops, Fm.ops + f1.ops, "L_k1_F:")
    out += path(pro.ops + Fm.ops, Fn.ops + f2.ops, "L_k1_Fn:")
    out += path([], p2f.ops)
    return out

def gen_k2():
    global STV
    STV = 9
    b = B()
    D = 15
    DW = int(opts.get('k2dw', 5))
    sWv, sH, sMt, sN = 40, 41, 42, 43
    sA, sCR, sCI, sW2 = 44, 48, 76, 80
    t0, t1, t2 = 52, 53, 54
    sS0, sF0 = 56, 57
    sLw = 58
    sCoff, sWoff2 = 59, 62
    vH0, vH1 = 4, 5
    vCe, vCo, vWa, vWb = 2, 3, 60, 61
    vPp, vTp = 48, 52
    accS, accF, vBuf = 64, 128, 192
    vNon2 = 14
    vTau = 8
    vG1, vG2 = 10, 12
    PITCH = 256
    LRED = 0
    LSTG = 65536
    code_prefetch(b, K2, "L_code_end", 2, "k2", 6, 63)
    dbgt_begin(b)
    stamp_begin(b)
    b("s_load_dwordx2 s[18:19], s[0:1], 112")
    b("s_load_dwordx2 s[4:5], s[0:1], 0")
    b("s_load_dwordx4 s[12:15], s[0:1], 40")
    b("s_load_dwordx2 s[6:7], s[0:1], 64")
    b("s_load_dwordx2 s[16:17], s[0:1], 88")
    b("s_load_dwordx2 s[8:9], s[0:1], 104")
    b("s_load_dwordx2 s[10:11], s[0:1], 120")
    b("s_cmp_ge_u32 s2, 256")
    b("s_cbranch_scc1 L_k2_end")
    b("v_lshrrev_b32 v6, 6, v0")
    b("v_and_b32 v1, 63, v0")
    b(f"v_readfirstlane_b32 s{sWv}, v6")
    b(f"s_and_b32 s{sH}, s2, 1")
    b(f"s_bfe_u32 s{t0}, s2, 0x20001")
    b(f"s_lshr_b32 s{t1}, s2, 3")
    b(f"s_and_b32 s{sMt}, s{t1}, 3")
    b(f"s_lshl_b32 s{t0}, s{t0}, 2")
    b(f"s_add_u32 s{sMt}, s{sMt}, s{t0}")
    b(f"s_lshr_b32 s{sN}, s{t1}, 2")
    b("v_and_b32 v6, 7, v1")
    b("v_lshrrev_b32 v7, 4, v1")
    b("v_xor_b32 v6, v6, v7")
    b("v_lshlrev_b32 v6, 4, v6")
    b("v_lshrrev_b32 v7, 3, v1")
    b("v_lshlrev_b32 v7, 10, v7")
    b(f"v_add_u32 v{vCe}, v6, v7")
    b(f"v_xor_b32 v{vCo}, 64, v{vCe}")
    b("v_bfe_u32 v6, v1, 4, 1")
    b("v_lshlrev_b32 v6, 2, v6")
    b("v_and_b32 v29, 7, v1")
    b("v_xor_b32 v6, v6, v29")
    b("v_lshlrev_b32 v6, 4, v6")
    b(f"v_add_u32 v{vWa}, v6, v7")
    b(f"v_add_u32 v{vWb}, {8192 - 1024}, v{vWa}")
    b(f"s_lshl_b32 s{sCoff}, s{sN}, 16")
    b(f"s_lshl_b32 s{t0}, s{sH}, 9")
    b(f"s_add_u32 s{sCoff}, s{sCoff}, s{t0}")
    b(f"s_lshl_b32 s{t0}, s{sWv}, 7")
    b(f"s_add_u32 s{sCoff}, s{sCoff}, s{t0}")
    b(f"s_lshl_b32 s{t0}, s{sH}, 2")
    b(f"s_add_u32 s{t0}, s{t0}, s{sWv}")
    b(f"s_mul_i32 s{sWoff2}, s{t0}, {14*16*1024}")
    b(f"s_lshl_b32 s{t0}, s{sN}, 7")
    b(f"s_add_u32 s{sWoff2}, s{sWoff2}, s{t0}")
    b(f"s_mul_i32 s{sLw}, s{sWv}, 24576")
    b(f"s_add_u32 s{sLw}, s{sLw}, {LSTG}")
    b(f"s_xor_b32 s{t0}, s{sH}, 1")
    b(f"s_lshl_b32 s{t0}, s{t0}, 1")
    b(f"s_lshl_b32 s{t1}, s{sMt}, 2")
    b(f"s_add_u32 s{t0}, s{t0}, s{t1}")
    b(f"s_mul_i32 s{t0}, s{t0}, {176*1024}")
    b("v_lshlrev_b32 v6, 4, v1")
    b(f"v_add_u32 v{vH0}, s{t0}, v6")
    b(f"v_add_u32 v{vH1}, {176*1024}, v{vH0}")
    b(f"s_lshl_b32 s{sS0}, s{sH}, 2")
    b(f"s_add_u32 s{sS0}, s{sS0}, s{sWv}")
    b(f"s_lshl_b32 s{sS0}, s{sS0}, 13")
    b(f"s_lshl_b32 s{sF0}, s{sH}, 2")
    b(f"s_add_u32 s{sF0}, s{sF0}, s{sWv}")
    b(f"s_mul_i32 s{sF0}, s{sF0}, {14*1024}")
    b(f"s_add_u32 s{sF0}, s{sF0}, {64*1024}")
    b("s_waitcnt lgkmcnt(0)")
    srd(b, sA, 10, WS_USED)
    srd(b, sCR, 12, 512*1024)
    srd(b, sCI, 14, 512*1024)
    srd(b, sW2, 16, 1792*1024)
    steps = [('S', i) for i in range(8)] + [('F', i) for i in range(14)]
    NS = len(steps)
    seq = [(1, st) for st in range(NS)] + [(2, st) for st in range(NS)]
    def hreg(idx, k):
        sl = idx % D
        if sl < 8: return v(vBuf + sl * 8 + k * 4, 4)
        return a(200 + (sl - 8) * 8 + k * 4, 4)
    def dma_c(m):
        for aa in range(8):
            b(f"s_add_u32 m0, s{sLw}, {m*8192 + aa*1024}")
            b(f"s_add_u32 s{t2}, s{sCoff}, {aa*8192}")
            b(f"buffer_load_dwordx4 v{vCe if aa % 2 == 0 else vCo}, {s(sCR if m == 0 else sCI,4)}, s{t2} offen lds", f"c{m}")
    def wslot(i):
        if i < 4: return 16384 + i * 2048
        if i < 12: return (i - 4) * 2048
        return 16384 + (i - 12) * 2048
    def dma_f(i):
        b(f"s_add_u32 m0, s{sLw}, {wslot(i)}")
        b(f"s_add_u32 s{t2}, s{sWoff2}, {i*16*1024}")
        b(f"buffer_load_dwordx4 v{vWa}, {s(sW2,4)}, s{t2} offen lds", f"f{i}")
        b(f"buffer_load_dwordx4 v{vWb}, {s(sW2,4)}, s{t2} offen offset:1024 lds", f"f{i}")
    def hloads(idx):
        ps, st = seq[idx]
        kind, i = steps[st]
        sb = sS0 if kind == 'S' else sF0
        if ps == 2 and st == 0:
            b(f"s_lshl_b32 s{t0}, s{sH}, 2")
            b(f"s_sub_u32 s{t0}, s{t0}, 2")
            b(f"s_mul_i32 s{t0}, s{t0}, {176*1024}")
            b(f"v_add_u32 v{vH0}, s{t0}, v{vH0}")
            b(f"v_add_u32 v{vH1}, s{t0}, v{vH1}")
        b(f"s_add_u32 s{t1}, s{sb}, {i*1024}")
        b(f"buffer_load_dwordx4 {hreg(idx,0)}, v{vH0}, {s(sA,4)}, s{t1} offen")
        b(f"buffer_load_dwordx4 {hreg(idx,1)}, v{vH1}, {s(sA,4)}, s{t1} offen")
    def wreads_s():
        for j in range(8):
            m = (j >> 1) & 1; ksp = 2 * (j >> 2) + (j & 1)
            if j == 0: b.wait('vm', "c0")
            if j == 2: b.wait('vm', "c1")
            for aa in range(2):
                b(f"ds_read_b128 {a(8*j+4*aa,4)}, v{vPp+ksp} offset:{m*8192 + aa*4096}", f"wr{j}")
    def wreads_f(i):
        st = 8 + i
        b.wait('vm', f"f{i}")
        for aa in range(2):
            for rd in range(2):
                b(f"ds_read_b64_tr_b16 {a(8*st+4*aa+2*rd,2)}, v{vTp+aa} offset:{wslot(i) + rd*8*128}", f"wr{st}")
    if STAMP >= 2: stamp(b, 24)
    dma_c(0)
    hloads(0); hloads(1)
    dma_c(1)
    b("v_and_b32 v6, 31, v1")
    b("v_lshlrev_b32 v6, 7, v6")
    b(f"v_add_u32 v6, s{sLw}, v6")
    b("v_lshrrev_b32 v7, 5, v1")
    b("v_bfe_u32 v29, v1, 1, 3")
    b("v_xor_b32 v29, v7, v29")
    for k in range(4):
        b(f"v_xor_b32 v7, {2*k}, v29")
        b(f"v_lshl_add_u32 v{vPp+k}, v7, 4, v6")
    tr_pattern(b, vTp, 4, 54)
    b(f"v_add_u32 v{vTp}, s{sLw}, v{vTp}")
    b(f"v_add_u32 v{vTp+1}, s{sLw}, v{vTp+1}")
    b("v_bfe_u32 v6, v1, 3, 2")
    b("v_and_b32 v7, 7, v1")
    b(f"v_lshl_add_u32 v{vTau}, v7, 2, v6")
    b(f"s_xor_b32 s{t0}, s{sH}, 1")
    b(f"s_lshl_b32 s{t0}, s{t0}, 6")
    b(f"s_lshl_b32 s{t1}, s{sMt}, 7")
    b(f"s_add_u32 s{t0}, s{t0}, s{t1}")
    b(f"v_add_u32 v6, s{t0}, v{vTau}")
    b("v_lshlrev_b32 v6, 3, v6")
    b(f"v_add_u32 v6, {G_OFF}, v6")
    b(f"global_load_dwordx2 v[10:11], v6, s[10:11]")
    b(f"global_load_dwordx2 v[12:13], v6, s[10:11] offset:256")
    b(f"s_lshl_b32 s{t0}, s{sH}, 7")
    b(f"s_sub_u32 s{t0}, s{t0}, 64")
    b(f"s_lshl_b32 s{t0}, s{t0}, 3")
    b(f"v_add_u32 v6, s{t0}, v6")
    b(f"global_load_dwordx2 v[16:17], v6, s[10:11]")
    b(f"global_load_dwordx2 v[18:19], v6, s[10:11] offset:256")
    b(f"v_mov_b32 v6, {NONCE_OFF}")
    b(f"global_load_dwordx2 {v(vNon2,2)}, v6, s[10:11]")
    if STAMP >= 2: stamp(b, 25)
    DH = int(opts.get('k2dh', 5))
    for idx in range(2, DH): hloads(idx)
    if STAMP >= 2: stamp(b, 26)
    vWr, vRd = 20, 21
    vWrq = 56
    b(f"s_lshl_b32 s{t0}, s{sWv}, 14")
    b(f"v_lshlrev_b32 v29, 8, v{vTau}")
    b(f"v_add_u32 v29, s{t0}, v29")
    b("v_lshrrev_b32 v6, 5, v1")
    b("v_and_b32 v7, 7, v1")
    b("v_xor_b32 v6, v6, v7")
    for q in range(4):
        b(f"v_xor_b32 v7, {2*q}, v6")
        b(f"v_lshl_add_u32 v{vWrq+q}, v7, 4, v29")
    b("v_lshrrev_b32 v22, 4, v0")
    b("v_and_b32 v23, 15, v0")
    b("v_lshrrev_b32 v6, 6, v0")
    b("v_xor_b32 v6, v6, v23")
    b(f"v_lshlrev_b32 v{vRd}, 8, v22")
    b(f"v_lshl_add_u32 v{vRd}, v6, 4, v{vRd}")
    b(f"v_xor_b32 v{vWr}, 64, v{vRd}")
    vXch = 24
    b(f"v_lshlrev_b32 v{vXch}, 4, v0")
    b(f"s_lshl_b32 s{t0}, s2, 14")
    b(f"s_add_u32 s{t0}, s{t0}, {XCH_OFF}")
    b(f"v_add_u32 v25, s{t0}, v{vXch}")
    b(f"s_xor_b32 s{t1}, s2, 1")
    b(f"s_lshl_b32 s{t0}, s{t1}, 14")
    b(f"s_add_u32 s{t0}, s{t0}, {XCH_OFF}")
    b(f"v_add_u32 v26, s{t0}, v{vXch}")
    if STAMP >= 2: stamp(b, 27)
    wreads_s()
    if STAMP >= 2: stamp(b, 28)

    def mfmas(idx):
        ps, st = seq[idx]
        kind, i = steps[st]
        acc = accS if kind == 'S' else accF
        out = []
        for aa in range(2):
            for bb in range(2):
                dreg = v(acc + (aa*2 + bb) * 16, 16)
                c = dreg if i else "0"
                out.append(f"v_mfma_f32_32x32x16_bf16 {dreg}, {a(8*st+4*aa,4)}, {hreg(idx,bb)}, {c}")
        return out

    def reduce_write(g0, g1):
        for aa in range(2):
            for bb in range(2):
                g = g0 if bb == 0 else g1
                S = accS + (aa*2+bb)*16; Fq = accF + (aa*2+bb)*16
                for p in range(8):
                    b(f"v_pk_mul_f32 {v(S+2*p,2)}, {v(S+2*p,2)}, {v(g,2)} op_sel_hi:[1,0]")
                for p in range(8):
                    b(f"v_pk_fma_f32 {v(S+2*p,2)}, {v(Fq+2*p,2)}, {v(g,2)}, {v(S+2*p,2)} op_sel:[0,1,0] op_sel_hi:[1,1,1]")
                for q in range(4):
                    b(f"ds_write_b128 v{vWrq+q}, {v(S+4*q,4)} offset:{LRED + bb*32*PITCH + aa*128}", "red")
        b.wait('lg', "red")
        b("s_barrier")
    def reduce_read(dst, gran=None):
        for p in range(4):
            for w in range(4):
                b(f"ds_read_b128 {v(dst+16*p+4*w,4)}, v{vRd if p % 2 == 0 else vWr} offset:{LRED + w*64*PITCH + p*16*PITCH}")
        for p in range(4):
            r = dst + 16*p
            b(f"v_pk_add_f32 {v(r,2)}, {v(r,2)}, {v(r+4,2)}")
            b(f"v_pk_add_f32 {v(r+2,2)}, {v(r+2,2)}, {v(r+6,2)}")
            b(f"v_pk_add_f32 {v(r+8,2)}, {v(r+8,2)}, {v(r+12,2)}")
            b(f"v_pk_add_f32 {v(r+10,2)}, {v(r+10,2)}, {v(r+14,2)}")
            if gran is None:
                b(f"v_pk_add_f32 {v(r,2)}, {v(r,2)}, {v(r+8,2)}")
                b(f"v_pk_add_f32 {v(r+2,2)}, {v(r+2,2)}, {v(r+10,2)}")
            else:
                for e in range(4):
                    u = 4 * p + e
                    b(f"v_add_f32 v{gran + 4*(u//3) + u%3}, v{r+e}, v{r+8+e}")

    total = len(seq)
    sNib = 84
    XS_ = 32
    PR_ = vBuf
    def r1c():
        f = F()
        for p in range(4):
            for w in range(4):
                f(f"ds_read_b128 {v(accF+16*p+4*w,4)}, v{vRd if p % 2 == 0 else vWr} offset:{LRED + w*64*PITCH + p*16*PITCH}")
        for p in range(4):
            r = accF + 16*p
            for e in range(4): f(f"v_add_f32 v{r+e}, v{r+e}, v{r+4+e}")
            for e in range(4): f(f"v_add_f32 v{r+8+e}, v{r+8+e}, v{r+12+e}")
            for e in range(4): f(f"v_add_f32 v{r+e}, v{r+e}, v{r+8+e}")
            for e in range(4): f(f"v_and_or_b32 v{XS_+4*p+e}, v{r+e}, -16, s{sNib+e}")
        return f
    def step_ops(idx):
        ps, st = seq[idx]
        kind, i = steps[st]
        n00 = len(b.ops)
        mf = mfmas(idx)
        if ps == 1: b.wait('lg', f"wr{st}")
        b(mf[0])
        if ps == 1:
            fi = st - 2
            if st == 6: b.wait('lg', "wr7")
            if 0 <= fi < 14: dma_f(fi)
        b(mf[1])
        if ps == 1 and 8 <= st + 1 < NS:
            wreads_f(st + 1 - 8)
        b(mf[2])
        n0 = len(b.ops)
        tg = []
        if ps == 1:
            if st + DH < NS: tg = [st + DH]
            else:
                j = st + DH - NS
                tg = [NS + 2 * j, NS + 2 * j + 1]
        elif idx + D < total: tg = [idx + D]
        for t_ in tg: hloads(t_)
        ld = b.ops[n0:]; del b.ops[n0:]
        cut = [j for j, o in enumerate(ld) if o.kind == 'vmem']
        if cut:
            b.ext(ld[:cut[0] + 1]); b(mf[3]); b.ext(ld[cut[0] + 1:])
        else:
            b(mf[3])
        ops = b.ops[n00:]; del b.ops[n00:]
        return ops
    for idx in range(NS):
        b.ext(step_ops(idx))
        st = idx
        if st == 2:
            b(f"v_readfirstlane_b32 s{t0}, v{vNon2}")
            for j in range(4):
                b(f"s_bfe_u32 s{sNib+j}, s{t0}, {(4 << 16) | (4*j):#x}")
        if STAMP >= 2 and st in (0, 3, 7, 11, 15, 19): stamp(b, 8 + (0, 3, 7, 11, 15, 19).index(st))
    stamp(b, 1)
    n0 = len(b.ops); reduce_write(vG1, vG2); rw = b.ops[n0:]; del b.ops[n0:]
    K0 = 2 * DH
    n0 = len(b.ops)
    for k in range(K0, 15): hloads(NS + k)
    hl = chunks_of(b.ops[n0:]); del b.ops[n0:]
    body, tail = rw[:-2], rw[-2:]
    gap = max(1, len(body) // (len(hl) + 1))
    outp = []
    for j, o in enumerate(body):
        outp.append(o)
        if (j + 1) % gap == 0 and hl: outp.extend(hl.pop(0))
    for c in hl: outp.extend(c)
    b.ext(outp + tail)
    stamp(b, 2)
    p2a = []
    for st in range(7): p2a += step_ops(NS + st)
    b.ext(merge(p2a, r1c().ops, per=4))
    PL = int(opts.get('k2pl', 16))
    BI = vBuf + 16
    def bias_fill():
        f = F()
        f("v_lshlrev_b32 v4, 16, v40\nv_and_b32 v5, 0xffff0000, v40\nv_lshlrev_b32 v6, 16, v41\nv_and_b32 v7, 0xffff0000, v41")
        for p in range(4):
            xs = 32 + 2*p; tp = BI + 4*p
            f(f"v_lshlrev_b32 v{tp}, 16, v{xs}\nv_and_b32 v{tp+1}, 0xffff0000, v{xs}\nv_lshlrev_b32 v{tp+2}, 16, v{xs+1}\nv_and_b32 v{tp+3}, 0xffff0000, v{xs+1}")
            for e in range(4): f(f"v_mul_f32 v{tp+e}, v{tp+e}, v{4+e}")
            f(f"v_cvt_pk_bf16_f32 v46, v{tp}, v{tp+1}")
            f(f"v_cvt_pk_bf16_f32 v47, v{tp+2}, v{tp+3}")
            f(f"v_lshlrev_b32 v{tp}, 16, v46\nv_and_b32 v{tp+1}, 0xffff0000, v46\nv_lshlrev_b32 v{tp+2}, 16, v47\nv_and_b32 v{tp+3}, 0xffff0000, v47")
            for e in range(4): f(f"v_mul_f32 v{tp+e}, v{42+p}, v{tp+e}")
        return f
    tail_steps = []
    for st in range(7, NS):
        idx = NS + st
        ops = step_ops(idx)
        if 7 <= st <= 10:
            p = st - 7
            pre = B()
            if p: pre(f"v_add_u32 v29, {p*4096}, v25")
            pre(f"global_store_dwordx4 v{29 if p else 25}, {v(XS_+4*p,4)}, s[10:11] sc0 sc1")
            ops = ops[:1] + pre.ops + ops[1:]
        if st >= 17:
            tail_steps += ops
            if st == NS - 1: b.ext(merge(tail_steps, bias_fill().ops, per=4))
            continue
        b.ext(ops)
        if STAMP >= 2 and st in (7, 11, 15, 19): stamp(b, 16 + (0, 3, 7, 11, 15, 19).index(st))
        if st == 11:
            b("s_barrier")
        if st == 11:
            b(f"s_lshl_b32 s{t0}, s{sMt}, 7")
            b(f"s_lshl_b32 s{t1}, s{sH}, 6")
            b(f"s_add_u32 s{t0}, s{t0}, s{t1}")
            b(f"v_add_u32 v30, s{t0}, v22")
            b(f"s_lshl_b32 s{t1}, s{sN}, 7")
            b("v_lshlrev_b32 v31, 10, v30")
            b("v_lshl_add_u32 v31, v23, 3, v31")
            b(f"v_add_u32 v31, s{t1}, v31")
            for p in range(4):
                if p: b(f"v_add_u32 v31, {16*1024}, v31")
                b(f"global_load_dwordx2 {v(32+2*p,2)}, v31, s[4:5]")
            b("v_lshlrev_b32 v31, 3, v23")
            b(f"v_add_u32 v31, s{t1}, v31")
            b(f"global_load_dwordx2 v[40:41], v31, s[6:7]")
            b("v_lshlrev_b32 v31, 3, v30")
            b(f"v_add_u32 v31, {G_OFF}, v31")
            for p in range(4):
                b(f"global_load_dword v{42+p}, v31, s[10:11] offset:{p*128}")
            b(f"s_lshl_b32 s{t1}, s{sN}, 8")
            b("v_lshlrev_b32 v2, 11, v30")
            b("v_lshl_add_u32 v2, v23, 4, v2")
            b(f"v_add_u32 v2, s{t1}, v2")
        if st == PL:
            for p in range(4):
                if p: b(f"v_add_u32 v29, {p*4096}, v26")
                b(f"global_load_dwordx4 {v(PR_+4*p,4)}, v{29 if p else 26}, s[10:11] sc1", "prt")
    stamp(b, 3)
    b.wait('vm', "prt")
    b(f"s_mov_b32 s{t0}, 0")
    b("L_k2_chk:")
    b("v_mov_b32 v46, 0")
    for u in range(16):
        b(f"v_xor_b32 v{PR_+u}, s{sNib + (u % 4)}, v{PR_+u}")
        b(f"v_and_or_b32 v46, v{PR_+u}, 15, v46")
    b("v_cmp_eq_u32 vcc, 0, v46")
    b("s_cmp_eq_u64 vcc, -1")
    b("s_cbranch_scc1 L_k2_ok")
    b(f"s_add_u32 s{t0}, s{t0}, 1")
    b(f"s_cmp_gt_u32 s{t0}, 40000")
    b("s_cbranch_scc1 L_k2_ok")
    for p in range(4):
        if p: b(f"v_add_u32 v29, {p*4096}, v26")
        b(f"global_load_dwordx4 {v(PR_+4*p,4)}, v{29 if p else 26}, s[10:11] sc1", 'nocount')
    b("s_waitcnt vmcnt(0)", 'nocount')
    b("s_branch L_k2_chk")
    b("L_k2_ok:")
    if STAMP >= 2: stamp(b, 30)
    n0 = len(b.ops)
    reduce_write(16, 18)
    rw = b.ops[n0:]; del b.ops[n0:]
    fl = F()
    for u in range(0, 16, 2): fl(f"v_pk_add_f32 {v(BI+u,2)}, {v(BI+u,2)}, {v(PR_+u,2)}")
    b.ext(merge(rw, fl.ops, after=lambda o: o.mn.startswith('ds_write'), per=1))
    if STAMP >= 2: stamp(b, 31)
    reduce_read(accF)
    if STAMP >= 2: stamp(b, 32)
    OUTF = opts.get('outf', '').replace('+', ' ')
    for p in range(4):
        r = accF + 16*p
        b(f"v_pk_add_f32 {v(r,2)}, {v(r,2)}, {v(BI+4*p,2)}")
        b(f"v_pk_add_f32 {v(r+2,2)}, {v(r+2,2)}, {v(BI+4*p+2,2)}")
        if p: b(f"v_add_u32 v2, {16*2048}, v2")
        b(f"global_store_dwordx4 v2, {v(r,4)}, s[8:9] {OUTF}")
    stamp(b, 4)
    dbgt_end(b, "s[18:19]", 32, True)
    stamp_end(b, sWv, "s[10:11]", 0x2100000, 1)
    b("L_k2_end:")
    b("s_endpgm")
    return finalize(b.ops)

KN = NAME + "_kernel"
def header():
    ref = open('cdna_kernels/%s.s.ref' % NAME).read().split('\n')
    hdr = []
    for line in ref:
        if not line.startswith(';'): break
        if '@launch' in line: continue
        hdr.append(line)
    hdr.append("; @launch grid=(256,1,1) block=(512,1,1) lds=163840")
    return '\n'.join(hdr)

def kd(name, nv, acc_off, nsg):
    return f""".amdhsa_kernel {name}
  .amdhsa_next_free_vgpr {nv}
  .amdhsa_next_free_sgpr {nsg}
  .amdhsa_accum_offset {acc_off}
  .amdhsa_group_segment_fixed_size 0
  .amdhsa_kernarg_size 128
  .amdhsa_user_sgpr_count 2
  .amdhsa_user_sgpr_kernarg_segment_ptr 1
  .amdhsa_system_sgpr_workgroup_id_x 1
  .amdhsa_float_denorm_mode_32 3
.end_amdhsa_kernel"""

def main():
    k1 = gen_k1()
    out = [header(), '.amdgcn_target "amdgcn-amd-amdhsa--gfx950"', '.text']
    out += [f".globl {KN}", ".p2align 8", f".type {KN},@function", f"{KN}:", render(k1)]
    out += ["L_code_end:", "  s_endpgm"]
    out += ['.section .rodata,"a"', '.p2align 6', kd(KN, 256, 128, 102)]
    print('\n'.join(out))

main()
```

```python
import sys, copy
sys.path.insert(0, 'dev')
from ir import *

NAME = "gated_mix__ssm_conv_s5__dense_activation_silu__prompt"
K1 = NAME + "_kernel"
K2 = "gm_k2_kernel"

opts = dict(a.split('=') for a in sys.argv[1:] if '=' in a)
HF_OFF = 0
HF_SIZE = 64 * 176 * 1024
W2F_OFF = HF_SIZE
W2F_SIZE = 16 * 176 * 1024
G_OFF = W2F_OFF + W2F_SIZE
E_OFF = G_OFF + 2048 * 8
E_SIZE = 16 * 16 * 512
NONCE_OFF = E_OFF + E_SIZE
FLG_OFF = NONCE_OFF + 256
FLG_STRIDE = int(opts.get('flgs', 1024)) if 'opts' in globals() else 128
XCH_OFF = FLG_OFF + 0x40000
WS_USED = XCH_OFF + 256 * 16384

LOG2E = 0x3fb8aa3b
INV2PI = 0x3e22f983

RB, XS, WR = 0, 65536, 114688
SC = 32768
IMG = 36864

STAMP = int(opts.get('stamp', 0))
STF = "sc0 sc1"

def v(n, k=1): return f"v{n}" if k == 1 else f"v[{n}:{n+k-1}]"
def a(n, k=1): return f"a{n}" if k == 1 else f"a[{n}:{n+k-1}]"
def s(n, k=1): return f"s{n}" if k == 1 else f"s[{n}:{n+k-1}]"


STV = 15
def reg_of_t(t): return (t >> 2) + 4 * (t & 3)
def srd(b, dst, ptr, size):
    b(f"s_mov_b32 s{dst}, s{ptr}")
    b(f"s_mov_b32 s{dst+1}, s{ptr+1}")
    b(f"s_mov_b32 s{dst+2}, {size}")
    b(f"s_mov_b32 s{dst+3}, 0x20000")


def cexp(b, dst, n_src, va, vang, t0):
    b(f"v_mul_f32 v{t0}, {n_src}, v{va}")
    b(f"v_mul_f32 v{t0+1}, {n_src}, v{vang}")
    b(f"v_exp_f32 v{t0}, v{t0}")
    b(f"v_rndne_f32 v{t0+2}, v{t0+1}")
    b(f"v_sub_f32 v{t0+1}, v{t0+1}, v{t0+2}")
    b(f"v_cos_f32 v{dst}, v{t0+1}")
    b(f"v_sin_f32 v{dst+1}, v{t0+1}")
    b(f"v_mul_f32 v{dst}, v{t0}, v{dst}")
    b(f"v_mul_f32 v{dst+1}, v{t0}, v{dst+1}")


def cfma(b, d, l, h, u, tmp):
    b(f"v_pk_fma_f32 {v(tmp,2)}, {v(l,2)}, {v(h,2)}, {v(u,2)} op_sel:[0,0,0] op_sel_hi:[0,1,1]")
    b(f"v_pk_fma_f32 {v(d,2)}, {v(l,2)}, {v(h,2)}, {v(tmp,2)} op_sel:[1,1,0] op_sel_hi:[1,0,1] neg_lo:[1,0,0]")


def cfma_s(b, d, l, h, u, tmp):
    b(f"v_fma_f32 v{tmp}, v{l}, v{h}, v{u}")
    b(f"v_fma_f32 v{tmp+1}, v{l}, v{h+1}, v{u+1}")
    b(f"v_fma_f32 v{d}, -v{l+1}, v{h+1}, v{tmp}")
    b(f"v_fma_f32 v{d+1}, v{l+1}, v{h}, v{tmp+1}")


def stamp(b, idx):
    if not STAMP: return
    g = B()
    g("s_memtime s[100:101]")
    g("s_waitcnt lgkmcnt(0)")
    g(f"v_writelane_b32 v{STV}, s100, {idx}")
    b.ext(g)


def stamp_begin(b):
    if not STAMP: return
    b(f"v_mov_b32 v{STV}, 0")
    b("s_memrealtime s[100:101]")
    b("s_waitcnt lgkmcnt(0)")
    b(f"v_writelane_b32 v{STV}, s100, 62")
    stamp(b, 0)


def stamp_end(b, wave, ws, off, lane, sh=2, tv=254):
    if not STAMP: return
    b("s_memrealtime s[100:101]")
    b("s_waitcnt lgkmcnt(0)")
    b(f"v_writelane_b32 v{STV}, s100, 63")
    b(f"s_lshl_b32 s100, s2, {sh}")
    b(f"s_add_u32 s100, s100, s{wave}")
    b(f"s_lshl_b32 s100, s100, 8")
    b(f"s_add_u32 s100, s100, {off}")
    b(f"v_lshlrev_b32 v{tv}, 2, v{lane}")
    b(f"v_add_u32 v{tv}, s100, v{tv}")
    b(f"global_store_dword v{tv}, v{STV}, {ws}")


vLane = 1
def tr_pattern(b, dst, hfmul, t):
    L = vLane
    b(f"v_lshrrev_b32 v{t}, 5, v{L}")
    b(f"v_mul_u32_u24 v{t}, {hfmul}, v{t}")
    b(f"v_bfe_u32 v{t+1}, v{L}, 2, 2")
    b(f"v_add_u32 v{t}, v{t}, v{t+1}")
    b(f"v_lshlrev_b32 v{t}, 7, v{t}")
    b(f"v_bfe_u32 v{t+1}, v{L}, 3, 1")
    b(f"v_lshlrev_b32 v{t+1}, 6, v{t+1}")
    b(f"v_bfe_u32 v{t+2}, v{L}, 4, 1")
    b(f"v_lshlrev_b32 v{t+2}, 5, v{t+2}")
    b(f"v_and_b32 v{t+3}, 3, v{L}")
    b(f"v_lshlrev_b32 v{t+3}, 3, v{t+3}")
    b(f"v_add3_u32 v{t}, v{t}, v{t+2}, v{t+3}")
    b(f"v_add_u32 v{dst}, v{t}, v{t+1}")
    b(f"v_xor_b32 v{t+1}, 64, v{t+1}")
    b(f"v_add_u32 v{dst+1}, v{t}, v{t+1}")

SLOT = 24576
NSLOT = 4
WB0 = 98304
SCR = 73728
SC = 0
IMG = 1024
def wblock_lds(q):
    if q < 8: return WB0 + q * 8192
    return (q - 8) * 8192

sX, sBRE, sBIM, sW1, sHF = 36, 40, 44, 48, 52
sWave, sWm, sR, sS, sRho = 60, 61, 62, 63, 56
sLdsX, sLdsB = 64, 65
sT0, sT1, sT2, sT3 = 68, 69, 70, 71
sWL = 72
sM1, sM2, sM3 = 80, 82, 84
sHFb, sK0, sEX = 86, 87, 88
sLo = 90
sSpin, sU = 98, 99

DBGT = int(opts.get('dbgt', 0))
def dbgt_begin(b):
    if not DBGT: return
    b("s_memrealtime s[100:101]")
    b("s_waitcnt lgkmcnt(0)")
    b("s_not_b32 s101, s100")
def dbgt_end(b, dbg, vt, k2=False):
    if not DBGT: return
    b("s_mov_b32 s99, s101")
    b("s_memrealtime s[100:101]")
    b("s_waitcnt lgkmcnt(0)")
    b(f"v_mov_b32 v{vt}, 0")
    b(f"v_mov_b32 v{vt+1}, s99")
    b(f"v_mov_b32 v{vt+2}, s100")
    b("s_mov_b64 exec, 1")
    b(f"global_atomic_umax v{vt}, v{vt+1}, {dbg} offset:16")
    b(f"global_atomic_umax v{vt}, v{vt+2}, {dbg} offset:20")
    if k2:
        b(f"global_load_dwordx2 {v(vt+2,2)}, v{vt}, {dbg} offset:-496 sc1")
        b("s_waitcnt vmcnt(0)")
        b(f"global_store_dwordx2 v{vt}, {v(vt+2,2)}, {dbg} offset:8")
    b("s_mov_b64 exec, -1")

def code_prefetch(b, kname, endlabel, wshift, tag, vt, vd):
    if not int(opts.get('pfc', 1)): return
    b("s_getpc_b64 s[40:41]")
    b(f"L_{tag}_pc:")
    b(f"s_sub_u32 s40, s40, L_{tag}_pc-{kname}")
    b("s_subb_u32 s41, s41, 0")
    b("s_lshr_b32 s42, s2, 3")
    b(f"s_lshl_b32 s42, s42, {wshift + 7}")
    b(f"v_lshrrev_b32 v{vt}, 6, v0")
    b(f"v_lshlrev_b32 v{vt}, 7, v{vt}")
    b(f"v_add_u32 v{vt}, s42, v{vt}")
    b(f"v_min_u32 v{vt}, {endlabel}-{kname}-4, v{vt}")
    b(f"global_load_dword v{vd}, v{vt}, s[40:41]", 'nocount')

def k1_head():
    b = B()
    code_prefetch(b, K1, "L_code_end", 3, "k1", 2, 14)
    dbgt_begin(b)
    stamp_begin(b)
    b("s_load_dwordx16 s[4:19], s[0:1], 0")
    b("s_load_dwordx16 s[20:35], s[0:1], 64")
    b("s_cmp_ge_u32 s2, 256")
    b("s_cbranch_scc1 L_k1_end")
    b("v_lshrrev_b32 v2, 6, v0")
    b(f"v_and_b32 v{vLane}, 63, v0")
    b(f"v_readfirstlane_b32 s{sWave}, v2")
    b(f"s_and_b32 s{sT0}, s2, 7")
    b(f"s_lshr_b32 s{sT1}, s2, 3")
    b(f"s_and_b32 s{sT2}, s{sT1}, 3")
    b(f"s_lshr_b32 s{sT3}, s{sT1}, 2")
    b(f"s_lshr_b32 s{sR}, s{sT0}, 1")
    b(f"s_lshl_b32 s{sR}, s{sR}, 2")
    b(f"s_add_u32 s{sR}, s{sR}, s{sT2}")
    b(f"s_and_b32 s{sS}, s{sT0}, 1")
    b(f"s_lshl_b32 s{sS}, s{sS}, 3")
    b(f"s_add_u32 s{sS}, s{sS}, s{sT3}")
    b(f"s_lshl_b32 s{sRho}, s{sT2}, 1")
    b(f"s_add_u32 s{sRho}, s{sRho}, s{sT3}")
    ROT1 = opts.get('rot1', 'two')
    if ROT1 == 'none': b(f"s_mov_b32 s{sRho}, 0")
    if ROT1 == 'half':
        b(f"s_and_b32 s{sRho}, s{sRho}, 1")
        b(f"s_lshl_b32 s{sRho}, s{sRho}, 2")
    if ROT1 == 'two':
        b(f"s_and_b32 s{sRho}, s{sRho}, 3")
        b(f"s_lshl_b32 s{sRho}, s{sRho}, 1")
    b(f"s_and_b32 s{sWm}, s{sWave}, 3")
    b(f"s_lshl_b32 s{sLdsX}, s{sWm}, 12")
    b(f"s_lshl_b32 s{sLdsB}, s{sWm}, 11")
    b(f"s_lshl_b32 s{sHFb}, s{sR}, 2")
    b(f"s_add_u32 s{sHFb}, s{sHFb}, s{sWm}")
    b(f"s_mul_i32 s{sHFb}, s{sHFb}, {176*1024}")
    if int(opts.get('swap', 0)):
        b(f"s_cmp_lt_u32 s{sWave}, 4")
        b("s_cbranch_scc1 L_k1_F")
        b("v_and_b32 v0, 0xff, v0")
    else:
        b(f"s_cmp_ge_u32 s{sWave}, 4")
        b("s_cbranch_scc1 L_k1_F")
    return b

fXe, fXo, fB, fW = 2, 3, 4, 5
fPX, fTA, fTB, fTC, fL16 = 7, 11, 13, 16, 6 + 0
fPX, fTA, fTB, fTC = 8, 12, 14, 16
fPX, fTA, fTB, fTC, fL16 = 8, 12, 16, 18, 7
fE, fD = 20, 28
fS, fAcc = 32, 64

def dma(b, voff, srdn, soff, tok, imm=0):
    o = f" offset:{imm}" if imm else ""
    b(f"buffer_load_dwordx4 v{voff}, {s(srdn,4)}, {soff} offen{o} lds", tok)
def dma_x(b, i):
    b(f"s_add_u32 m0, s{sLdsX}, {(i % NSLOT) * SLOT}")
    for k in range(4):
        dma(b, fXe if k % 2 == 0 else fXo, sX, f"s{sLo+i}", f"x{i}", k * 1024)
def dma_B(b, i):
    b(f"s_add_u32 m0, s{sLdsB}, {(i % NSLOT) * SLOT + 16384}")
    dma(b, fB, sBRE, f"s{sLo+i}", f"B{i}")
    dma(b, fB, sBIM, f"s{sLo+i}", f"B{i}", 1024)
def dma_w(b, q):
    i, hh = q % 8, q // 8
    b(f"s_add_u32 m0, s{sLdsB}, {wblock_lds(q)}")
    if hh:
        b(f"s_add_u32 s{sT0}, s{sWL+i}, 128")
        so = f"s{sT0}"
    else:
        so = f"s{sWL+i}"
    dma(b, fW, sW1, so, f"w{q}")
    dma(b, fW + 1, sW1, so, f"w{q}", 1024)

def chunks_of(ops):
    ch = []; cur = []
    for o in ops:
        cur.append(o)
        if o.kind == 'vmem': ch.append(cur); cur = []
    if cur: ch.append(cur)
    return ch

def k1_F(ffn):
    b = B(); L = vLane
    t = fE
    for i in range(8):
        b(f"s_add_u32 s{sLo+i}, s{sRho}, {i}")
        b(f"s_and_b32 s{sLo+i}, s{sLo+i}, 7")
        b(f"s_lshl_b32 s{sLo+i}, s{sLo+i}, 7")
    b(f"v_and_b32 v{t}, 7, v{L}")
    b(f"v_lshrrev_b32 v{t+1}, 4, v{L}")
    b(f"v_xor_b32 v{t+2}, v{t}, v{t+1}")
    b(f"v_lshlrev_b32 v{t+2}, 4, v{t+2}")
    b(f"v_lshrrev_b32 v{t+3}, 3, v{L}")
    b(f"s_lshl_b32 s{sT0}, s{sR}, 17")
    b(f"s_lshl_b32 s{sT1}, s{sWm}, 15")
    b(f"s_add_u32 s{sT0}, s{sT0}, s{sT1}")
    b(f"v_lshlrev_b32 v{t}, 12, v{t+3}")
    b(f"v_add3_u32 v{fXe}, v{t}, v{t+2}, s{sT0}")
    b(f"v_xor_b32 v{fXo}, 64, v{fXe}")
    b(f"s_and_b32 s{sT0}, s{sWm}, 1")
    b(f"s_lshl_b32 s{sT0}, s{sT0}, 6")
    b(f"v_xor_b32 v{t+1}, s{sT0}, v{t+2}")
    b(f"s_lshl_b32 s{sT0}, s{sWm}, 13")
    b(f"s_lshl_b32 s{sT1}, s{sS}, 15")
    b(f"s_add_u32 s{sT0}, s{sT0}, s{sT1}")
    b(f"v_lshlrev_b32 v{t}, 10, v{t+3}")
    b(f"v_add3_u32 v{fB}, v{t}, v{t+1}, s{sT0}")
    b("s_waitcnt lgkmcnt(0)")
    srd(b, sX, 4, 2048*1024)
    srd(b, sBRE, 10, 512*1024)
    b(f"s_sub_u32 s{sBIM}, s12, 1024")
    b(f"s_subb_u32 s{sBIM+1}, s13, 0")
    b(f"s_mov_b32 s{sBIM+2}, {512*1024 + 1024}")
    b(f"s_mov_b32 s{sBIM+3}, 0x20000")
    if STAMP >= 2: stamp(b, 8)
    INI = int(opts.get('ini', 3))
    for i in range(INI):
        dma_x(b, i); dma_B(b, i)
    if STAMP >= 2: stamp(b, 9)
    srd(b, sHF, 34, WS_USED)
    if ffn:
        srd(b, sW1, 24, 512*3584)
        b(f"v_bfe_u32 v{t+1}, v{L}, 4, 1")
        b(f"v_lshlrev_b32 v{t+1}, 2, v{t+1}")
        b(f"v_and_b32 v{t+3}, 7, v{L}")
        b(f"v_xor_b32 v{t+3}, v{t+3}, v{t+1}")
        b(f"v_lshlrev_b32 v{t+3}, 4, v{t+3}")
        b(f"v_lshrrev_b32 v{t+1}, 3, v{L}")
        b(f"s_lshl_b32 s{sT3}, s{sWm}, 4")
        b(f"v_add_u32 v{t+1}, s{sT3}, v{t+1}")
        b(f"v_mul_u32_u24 v{t+1}, 3584, v{t+1}")
        b(f"v_add_u32 v{fW}, v{t+1}, v{t+3}")
        b(f"v_add_u32 v{fW+1}, {8*3584 - 1024}, v{fW}")
        b(f"s_lshl_b32 s{sT3}, s{sS}, 8")
        for i in range(8):
            b(f"s_mul_i32 s{sWL+i}, s{sLo+i}, 1792")
            b(f"s_add_u32 s{sWL+i}, s{sWL+i}, s{sT3}")
        tr_pattern(b, fTA, 8, t)
        b(f"v_add_u32 v{fTB}, 0x10000, v{fTA}")
        b(f"v_add_u32 v{fTB+1}, 0x10000, v{fTA+1}")
        b(f"v_add_u32 v{fTC}, 0x20000, v{fTA}")
        b(f"v_add_u32 v{fTC+1}, 0x20000, v{fTA+1}")
        b(f"v_lshlrev_b32 v{fL16}, 4, v{L}")
        b(f"v_and_b32 v{t}, 31, v{L}")
        b(f"v_lshrrev_b32 v{t+1}, 5, v{L}")
        b(f"v_bfe_u32 v{t+2}, v{L}, 1, 3")
        b(f"v_xor_b32 v{t+2}, v{t+1}, v{t+2}")
        b(f"v_lshlrev_b32 v{t+1}, 7, v{t}")
        b(f"v_add_u32 v{t+1}, s{sLdsX}, v{t+1}")
        for k in range(4):
            b(f"v_xor_b32 v{t+3}, {2*k}, v{t+2}")
            b(f"v_lshl_add_u32 v{fPX+k}, v{t+3}, 4, v{t+1}")
        b(f"s_mov_b32 s66, {LOG2E ^ 0x80000000:#x}")
        b(f"s_mov_b32 s67, {LOG2E ^ 0x80000000:#x}")
        b(f"s_lshl_b32 s{sU}, s{sS}, 13")
        b(f"s_add_u32 s{sU}, s{sU}, s{sHFb}")
        b(f"s_add_u32 s{sU}, s{sU}, {64*1024}")
    stamp(b, 1)
    for i in range(8):
        if STAMP >= 2: stamp(b, 10 + 2*i)
        b.wait('vm', f"x{i}", f"B{i}")
        b("s_waitcnt lgkmcnt(0)")
        b("s_barrier")
        if STAMP >= 2: stamp(b, 11 + 2*i)
        if ffn:
            po = (i % NSLOT) * SLOT
            if po >= 65536:
                for k in range(4): b(f"v_add_u32 v{fE+k}, 0x10000, v{fPX+k}")
            for k in range(4):
                if po >= 65536: b(f"ds_read_b128 {a(16*i+4*k,4)}, v{fE+k} offset:{po - 65536}")
                else: b(f"ds_read_b128 {a(16*i+4*k,4)}, v{fPX+k} offset:{po}")
        if i == 0 and INI == 2:
            dma_x(b, 2); dma_B(b, 2)
        if i <= 4:
            dma_x(b, i + 3); dma_B(b, i + 3)
        elif ffn:
            for q in {5: (0, 1, 2), 6: (3, 4, 5), 7: (6, 7)}[i]: dma_w(b, q)
        if True:
            if not ffn and i == 5:
                b(f"s_lshl_b32 s{sT0}, s{sR}, 1")
                b(f"s_add_u32 s{sT0}, s{sT0}, s{sS}")
                b(f"s_sub_u32 s{sT0}, s{sT0}, 14")
                b(f"s_lshl_b32 s{sT0}, s{sT0}, 2")
                b(f"s_add_u32 s{sT0}, s{sT0}, s{sWm}")
                b(f"v_lshlrev_b32 v8, 7, v{L}")
                srd(b, sW1, 26, 1792*1024)
                srd(b, sHF, 14, 512*1024)
                srd(b, 76, 16, 512*1024)
                b(f"s_mul_i32 s{sT1}, s{sT0}, 14336")
                b(f"buffer_load_dword v9, v8, {s(sW1,4)}, s{sT1} offen")
                b(f"s_add_u32 s{sT1}, s{sT1}, 8192")
                b(f"buffer_load_dword v10, v8, {s(sW1,4)}, s{sT1} offen")
                b(f"s_lshl_b32 s{sT1}, s{sT0}, 12")
                b(f"buffer_load_dword v11, v8, {s(sHF,4)}, s{sT1} offen")
                b(f"buffer_load_dword v12, v8, {s(76,4)}, s{sT1} offen")
    stamp(b, 2)
    if not ffn:
        b(f"s_lshl_b32 s{sT0}, s{sR}, 1")
        b(f"s_add_u32 s{sT0}, s{sT0}, s{sS}")
        b(f"s_sub_u32 s{sT0}, s{sT0}, 14")
        b(f"s_lshl_b32 s{sT0}, s{sT0}, 2")
        b(f"s_add_u32 s{sT0}, s{sT0}, s{sWm}")
        k1_gjob_all(b)
        return b
    def ffn_phase(hh):
        p = B(); DEPTH = 3
        def lds_loc(n):
            i, k = divmod(n, 4)
            base = wblock_lds(8 * hh + i) + 16 * k * 128
            if base < 65536: return fTA, base
            if base < 131072: return fTB, base - 65536
            return fTC, base - 131072
        plan = {0: [0, 1, 2, 3], int(opts.get('bcn', 12)): [4, 5, 6, 7]} if hh == 0 else {0: list(range(8, 16))}
        def reads(n):
            if n in plan:
                p.wait('vm', *[f"w{q}" for q in plan[n]])
                if hh == 0 and n == 0: p("s_waitcnt lgkmcnt(0)")
                if STAMP >= 2: stamp(p, 26 + (0 if n == 0 else 1) if hh == 0 else 29)
                p("s_barrier")
                if STAMP >= 2 and hh == 0: stamp(p, 30 + (0 if n == 0 else 1))
            base, off = lds_loc(n)
            r = fS + (n % 4) * 8
            for ft in range(2):
                for rd in range(2):
                    p(f"ds_read_b64_tr_b16 {v(r+4*ft+2*rd,2)}, v{base+ft} offset:{off + rd*512}", f"r{hh}_{n}")
        ch = []
        if hh == 0:
            d = B()
            for q in range(8, 16): dma_w(d, q)
            ch = chunks_of(d.ops)
        for n in range(DEPTH): reads(n)
        for n in range(32):
            i, k = divmod(n, 4)
            r = fS + (n % 4) * 8
            p.wait('lg', f"r{hh}_{n}")
            for ft in range(2):
                acc = fAcc + (2*hh + ft) * 16
                c = v(acc, 16) if n else "0"
                p(f"v_mfma_f32_32x32x16_bf16 {v(acc,16)}, {v(r+4*ft,4)}, {a(16*i+4*k,4)}, {c}")
                if ft == 0 and ch: p.ext(ch.pop(0))
            if hh == 0 and n == int(opts.get('bxn', 1)): p("s_barrier")
            if n + DEPTH < 32: reads(n + DEPTH)
        assert not ch
        return p
    if int(opts.get('tseq', 0)):
        DEPTH = int(opts.get('tdepth', 6))
        def loc(g):
            t_, n = divmod(g, 32); i, k = divmod(n, 4)
            base = wblock_lds(8 * (t_ // 2) + i) + 16 * k * 128
            if base < 65536: return fTA + (t_ & 1), base
            if base < 131072: return fTB + (t_ & 1), base - 65536
            return fTC + (t_ & 1), base - 131072
        d = B()
        for q in range(8, 16): dma_w(d, q)
        ch = chunks_of(d.ops)
        tiles = []
        p = B()
        def rd(g):
            if g == 0:
                p.wait('vm', "w0", "w1", "w2", "w3"); p("s_waitcnt lgkmcnt(0)"); p("s_barrier")
            if g == 16:
                p.wait('vm', "w4", "w5", "w6", "w7"); p("s_barrier")
            if g == 64: p("s_barrier")
            base, off = loc(g); r = fS + (g % 8) * 4
            for r_ in range(2):
                p(f"ds_read_b64_tr_b16 {v(r+2*r_,2)}, v{base} offset:{off + r_*512}", f"t{g}")
        for g in range(DEPTH): rd(g)
        for g in range(128):
            t_, n = divmod(g, 32); i, k = divmod(n, 4)
            if n == 0 and t_: tiles.append(p); p = B()
            r = fS + (g % 8) * 4; acc = fAcc + t_ * 16
            if g % 2 == 0: p.wait('lg', f"t{g}", f"t{g+1}")
            p(f"v_mfma_f32_32x32x16_bf16 {v(acc,16)}, {v(r,4)}, {a(16*i+4*k,4)}, {v(acc,16) if n else 0}")
            if ch: p.ext(ch.pop(0))
            if g == int(opts.get('bxn', 3)): p("s_barrier")
            if g == 31: p.wait('vm', *[f"w{q}" for q in range(8, 16)])
            if g + DEPTH < 128: rd(g + DEPTH)
        tiles.append(p)
        PT = int(opts.get('pert', 3))
        b.ext(tiles[0])
        for t_ in range(1, 4):
            b.ext(merge(tiles[t_].ops, k1_silu(t_ - 1, False).ops, per=PT, start=1))
            if t_ == 1: stamp(b, 3)
        stamp(b, 4)
        b.ext(flat(k1_silu(3, True).ops))
        stamp(b, 5)
        return b
    b.ext(ffn_phase(0))
    stamp(b, 3)
    p3 = ffn_phase(1)
    fl = F()
    fl.ext(k1_silu(0, False)); fl.ext(k1_silu(1, False))
    if opts.get('p3mode') == 'nofill':
        b.ext(p3.ops); stamp(b, 6); b.ext(flat(fl.ops))
    elif opts.get('p3mode') == 'nostore':
        fo = [o for o in fl.ops if not (not isinstance(o, list) and o.kind == 'vmem')]
        st_ = [o for o in fl.ops if (not isinstance(o, list) and o.kind == 'vmem')]
        b.ext(merge(p3.ops, fo, per=int(opts.get('per3', 4)), start=1))
    else:
        b.ext(merge(p3.ops, fl.ops, per=int(opts.get('per3', 4)), start=1))
    stamp(b, 4)
    b.ext(flat(k1_silu(2, True).ops))
    b.ext(flat(k1_silu(3, True).ops))
    stamp(b, 5)
    return b

def k1_silu(ft, pk):
    b = F()
    acc = fAcc + ft * 16
    e, d = fE, fD
    for kk in range(2):
        base = acc + 8 * kk
        if pk:
            for q in range(4): b(f"v_pk_mul_f32 {v(e+2*q,2)}, {v(base+2*q,2)}, s[66:67]")
            for q in range(8): b(f"v_exp_f32 v{e+q}, v{e+q}")
            for q in range(4): b(f"v_pk_add_f32 {v(e+2*q,2)}, {v(e+2*q,2)}, 1.0 op_sel_hi:[1,0]")
            for q in range(8): b(f"v_rcp_f32 v{e+q}, v{e+q}")
            for q in range(4): b(f"v_pk_mul_f32 {v(e+2*q,2)}, {v(base+2*q,2)}, {v(e+2*q,2)}")
            for q in range(4): b(f"v_cvt_pk_bf16_f32 v{d+q}, v{e+2*q}, v{e+2*q+1}")
        else:
            seq = []
            for q in range(8):
                seq.append([f"v_mul_f32 v{e+q}, s66, v{base+q}", f"v_exp_f32 v{e+q}, v{e+q}", f"v_add_f32 v{e+q}, 1.0, v{e+q}",
                            f"v_rcp_f32 v{e+q}, v{e+q}", f"v_mul_f32 v{e+q}, v{base+q}, v{e+q}"])
            if opts.get('silu', 'diag') == 'diag':
                for tm in range(8 + 4):
                    for stg in range(5):
                        q = tm - stg
                        if 0 <= q < 8: b(seq[q][stg])
            elif opts.get('silu') == 'block':
                for stg in range(5):
                    for q in range(8): b(seq[q][stg])
            else:
                for tm in range(8 + 8):
                    for stg in range(5):
                        q = tm - 2 * stg
                        if 0 <= q < 8: b(seq[q][stg])
            for q in range(4): b(f"v_cvt_pk_bf16_f32 v{d+q}, v{e+2*q}, v{e+2*q+1}")
        b(f"s_add_u32 s{sK0}, s{sU}, {(2*ft+kk)*1024}")
        b(f"buffer_store_dwordx4 {v(d,4)}, v{fL16}, {s(sHF,4)}, s{sK0} offen {STF}")
    return b

gPX, gPB = 2, 6
vLBa, vImgW, vImgR, vL16o = 10, 11, 12, 13
vL, vC2, vL16, vL32, vL128, vL256, vF1, vG, vHfm = 16, 18, 20, 22, 24, 26, 28, 30, 32
vNon, vK, vQ, vW_, vPre, vTmp = 34, 36, 38, 40, 42, 44
vP = 48
aRE, aIM, vU = 64, 80, 96
aSX, aSB = 0, 16

def k1_S_setup():
    b = B(); L = vLane; t = vP
    b("s_waitcnt lgkmcnt(0)")
    srd(b, sHF, 34, WS_USED)
    b(f"v_and_b32 v{t}, 31, v{L}")
    b(f"s_lshl_b32 s{sT0}, s{sS}, 5")
    b(f"v_add_u32 v{t}, s{sT0}, v{t}")
    b(f"v_lshlrev_b32 v{t}, 1, v{t}")
    b(f"global_load_ushort v{vP+8}, v{t}, s[6:7]")
    b(f"global_load_ushort v{vP+9}, v{t}, s[8:9]")
    b(f"global_load_ushort v{vP+10}, v{t}, s[18:19]")
    if int(opts.get('nearly', 0)):
        b(f"s_or_b32 s{sT0}, s2, s{sWm}")
        b(f"s_cmp_lg_u32 s{sT0}, 0")
        b("s_cbranch_scc1 L_k1_nononce")
        b(f"v_mov_b32 v{t}, {NONCE_OFF}")
        b(f"global_load_dwordx2 {v(vU+26,2)}, v{t}, s[34:35] sc1", 'nocount')
        b("s_waitcnt vmcnt(0)", 'nocount')
        b(f"v_add_u32 v{vU+26}, 1, v{vU+26}")
        b(f"v_or_b32 v{vU+27}, 1, v{vU+27}")
        b(f"v_mov_b32 v{t+1}, 0")
        b(f"global_store_dwordx2 v{t+1}, {v(vU+26,2)}, s[32:33] sc0 sc1", 'nocount')
        b(f"global_store_dwordx2 v{t}, {v(vU+26,2)}, s[34:35] sc0 sc1", 'nocount')
        b("L_k1_nononce:")
    else:
        b(f"v_mov_b32 v{t}, {NONCE_OFF}")
        b(f"global_load_dwordx2 {v(vU+26,2)}, v{t}, s[34:35] sc1")
    if int(opts.get('flgw', 1)):
        b(f"s_mul_i32 s{sT0}, s{sR}, {FLG_STRIDE}")
        b(f"s_add_u32 s{sT0}, s{sT0}, {FLG_OFF}")
        b(f"v_mov_b32 v{t}, s{sT0}")
        b(f"global_load_dword v{vU+10}, v{t}, s[34:35] sc1", 'nocount')
        b(f"s_lshl_b32 s{sT0}, s{sR}, 10")
        b(f"s_add_u32 s{sT0}, s{sT0}, {G_OFF}")
        b(f"v_and_b32 v{t}, 7, v{L}")
        b(f"v_lshlrev_b32 v{t}, 7, v{t}")
        b(f"v_add_u32 v{t}, s{sT0}, v{t}")
        b(f"global_load_dword v{vU+11}, v{t}, s[34:35] sc1", 'nocount')
    if int(opts.get('tlbw', 1)):
        pd = vU + 12
        b(f"s_cmp_eq_u32 s{sWm}, 2")
        b("s_cbranch_scc0 L_k1_tlb_done")
        b(f"v_mov_b32 v{t}, 0")
        for k, ptr in enumerate((24, 14, 16, 26, 20)):
            b(f"global_load_dword v{pd+k}, v{t}, {s(ptr,2)}", 'nocount')
        if int(opts.get('tlbw2', 1)):
            b(f"global_load_dword v{pd+7-8}, v{t}, s[32:33] sc1", 'nocount')
            b(f"v_and_b32 v{t+1}, 7, v{L}")
            b(f"v_lshlrev_b32 v{t+1}, 7, v{t+1}")
            b(f"global_load_dword v{pd+7-9}, v{t+1}, s[28:29]", 'nocount')
        b(f"v_min_u32 v{t}, 19, v{L}")
        b(f"v_lshlrev_b32 v{t}, 20, v{t}")
        b(f"global_load_dword v{pd+5}, v{t}, s[34:35]", 'nocount')
        b(f"v_and_b32 v{t}, 3, v{L}")
        b(f"v_lshlrev_b32 v{t}, 20, v{t}")
        b(f"global_load_dword v{pd+6}, v{t}, s[30:31]", 'nocount')
        b("L_k1_tlb_done:")
    PF = int(opts.get('pf', 0))
    if PF:
        pd = vU + 28
        b(f"s_cmp_eq_u32 s{sWm}, 0")
        b("s_cbranch_scc0 L_k1_pf_1")
        b(f"v_lshrrev_b32 v{t}, 3, v{L}")
        b(f"s_lshl_b32 s{sT2}, s2, 3")
        b(f"v_add_u32 v{t}, s{sT2}, v{t}")
        b(f"v_lshlrev_b32 v{t}, 10, v{t}")
        b(f"v_and_b32 v{t+1}, 7, v{L}")
        b(f"v_max_u32 v{t+1}, 3, v{t+1}")
        b(f"v_lshl_add_u32 v{t}, v{t+1}, 7, v{t}")
        b(f"global_load_dword v{pd}, v{t}, s[4:5]", 'nocount')
        b("L_k1_pf_1:")
        b(f"s_cmp_eq_u32 s{sWm}, 1")
        b("s_cbranch_scc0 L_k1_pf_2")
        b(f"v_bfe_u32 v{t}, v{L}, 3, 1")
        b(f"s_lshl_b32 s{sT2}, s2, 1")
        b(f"v_add_u32 v{t}, s{sT2}, v{t}")
        b(f"v_lshlrev_b32 v{t}, 10, v{t}")
        b(f"v_and_b32 v{t+1}, 7, v{L}")
        b(f"v_max_u32 v{t+1}, 3, v{t+1}")
        b(f"v_lshl_add_u32 v{t}, v{t+1}, 7, v{t}")
        b(f"global_load_dword v{pd}, v{t}, s[10:11]", 'nocount')
        b(f"global_load_dword v{pd+1}, v{t}, s[12:13]", 'nocount')
        b("L_k1_pf_2:")
        b(f"s_cmp_eq_u32 s{sWm}, 2")
        b("s_cbranch_scc0 L_k1_pf_done")
        b(f"v_lshrrev_b32 v{t}, 5, v{L}")
        b(f"s_lshl_b32 s{sT2}, s2, 1")
        b(f"v_add_u32 v{t}, s{sT2}, v{t}")
        b(f"v_mul_u32_u24 v{t}, 3584, v{t}")
        b(f"v_and_b32 v{t+1}, 31, v{L}")
        b(f"v_min_u32 v{t+1}, 27, v{t+1}")
        b(f"v_lshl_add_u32 v{t}, v{t+1}, 7, v{t}")
        b(f"global_load_dword v{pd}, v{t}, s[24:25]", 'nocount')
        b("L_k1_pf_done:")
    b(f"v_and_b32 v{t}, 31, v{L}")
    b(f"v_lshrrev_b32 v{t+1}, 5, v{L}")
    b(f"v_bfe_u32 v{t+2}, v{L}, 1, 3")
    b(f"v_xor_b32 v{t+2}, v{t+1}, v{t+2}")
    b(f"v_lshlrev_b32 v{t+1}, 7, v{t}")
    b(f"v_add_u32 v{t+1}, s{sLdsX}, v{t+1}")
    b(f"v_lshrrev_b32 v{t+3}, 3, v{t}")
    b(f"v_lshlrev_b32 v{t+3}, 11, v{t+3}")
    b(f"v_and_b32 v{t}, 7, v{t}")
    b(f"v_lshl_add_u32 v{t}, v{t}, 7, v{t+3}")
    b(f"v_add_u32 v{t}, 16384, v{t}")
    for k in range(4):
        b(f"v_xor_b32 v{t+3}, {2*k}, v{t+2}")
        b(f"v_lshl_add_u32 v{gPX+k}, v{t+3}, 4, v{t+1}")
        b(f"v_lshl_add_u32 v{gPB+k}, v{t+3}, 4, v{t}")
    return b

def k1_params():
    b = F()
    lre, lim, ldt = vP+8, vP+9, vP+10
    va, vang, t0 = vP, vP+1, vP+2
    b(f"v_lshlrev_b32 v{lre}, 16, v{lre}")
    b(f"v_lshlrev_b32 v{lim}, 16, v{lim}")
    b(f"v_lshlrev_b32 v{ldt}, 16, v{ldt}")
    b(f"v_mul_f32 v{ldt}, {LOG2E:#x}, v{ldt}")
    b(f"v_exp_f32 v{ldt}, v{ldt}")
    b(f"v_cvt_pk_bf16_f32 v{ldt}, v{ldt}, v{ldt}")
    b(f"v_lshlrev_b32 v{ldt}, 16, v{ldt}")
    b(f"v_mul_f32 v{va}, v{ldt}, v{lre}")
    b(f"v_mul_f32 v{vang}, v{ldt}, v{lim}")
    b(f"v_mul_f32 v{va}, {LOG2E:#x}, v{va}")
    b(f"v_mul_f32 v{vang}, {INV2PI:#x}, v{vang}")
    cexp(b, vL, "1.0", va, vang, t0)
    for dst, cst in ((vL16, 0x41800000), (vL32, 0x42000000), (vL128, 0x43000000), (vL256, 0x43800000)):
        b(f"v_mov_b32 v{t0+3}, {cst:#x}")
        cexp(b, dst, f"v{t0+3}", va, vang, t0)
    b(f"v_lshrrev_b32 v{t0+3}, 5, v{vLane}")
    b(f"v_cvt_f32_u32 v{vHfm}, v{t0+3}")
    b(f"v_lshlrev_b32 v{t0+3}, 4, v{t0+3}")
    b(f"v_cvt_f32_u32 v{t0+3}, v{t0+3}")
    cexp(b, vF1, f"v{t0+3}", va, vang, t0)
    b(f"v_lshrrev_b32 v{t0+3}, 5, v{vLane}")
    b(f"v_lshlrev_b32 v{t0+3}, 4, v{t0+3}")
    b(f"s_lshl_b32 s{sSpin}, s{sWm}, 5")
    b(f"v_add_u32 v{t0+3}, s{sSpin}, v{t0+3}")
    b(f"v_cvt_f32_u32 v{t0+3}, v{t0+3}")
    cexp(b, vG, f"v{t0+3}", va, vang, t0)
    b(f"v_add_f32 v{t0}, -1.0, v{vL}")
    b(f"v_mul_f32 v{t0+1}, v{lre}, v{lre}")
    b(f"v_fma_f32 v{t0+1}, v{lim}, v{lim}, v{t0+1}")
    b(f"v_rcp_f32 v{t0+1}, v{t0+1}")
    b(f"v_mul_f32 v{vC2}, v{t0}, v{lre}")
    b(f"v_fma_f32 v{vC2}, v{vL+1}, v{lim}, v{vC2}")
    b(f"v_mul_f32 v{vC2+1}, v{vL+1}, v{lre}")
    b(f"v_fma_f32 v{vC2+1}, -v{t0}, v{lim}, v{vC2+1}")
    b(f"v_add_f32 v{t0+1}, v{t0+1}, v{t0+1}")
    b(f"v_mul_f32 v{vC2}, v{vC2}, v{t0+1}")
    b(f"v_mul_f32 v{vC2+1}, v{vC2+1}, v{t0+1}")
    return b

def k1_setup_common():
    b = F(); t = vP + 12; L = vLane
    for k, m in ((1, sM1), (2, sM2), (3, sM3)):
        g = B()
        g(f"s_cmp_ge_u32 s{sWm}, {k}")
        g(f"s_cselect_b64 {s(m,2)}, -1, 0")
        b.group(g)
    b(f"v_lshlrev_b32 v{vL16o}, 4, v{L}")
    b(f"v_and_b32 v{t}, 31, v{L}")
    b(f"v_lshlrev_b32 v{t}, 4, v{t}")
    b(f"s_lshl_b32 s{sK0}, s{sS}, 9")
    b(f"s_add_u32 s{sK0}, s{sK0}, {E_OFF}")
    b(f"v_add_u32 v{vLBa}, s{sK0}, v{t}")
    b(f"v_and_b32 v{t}, 31, v{L}")
    b(f"v_mul_u32_u24 v{t}, 80, v{t}")
    b(f"v_lshrrev_b32 v{t+1}, 5, v{L}")
    b(f"v_lshl_add_u32 v{t}, v{t+1}, 5, v{t}")
    b(f"s_mul_i32 s{sK0}, s{sWm}, 5120")
    b(f"s_add_u32 s{sK0}, s{sK0}, {SCR}")
    b(f"v_add_u32 v{vImgW}, s{sK0}, v{t}")
    b(f"v_lshrrev_b32 v{t+1}, 5, v{L}")
    b(f"v_lshlrev_b32 v{t+1}, 3, v{t+1}")
    b(f"v_bfe_u32 v{t+2}, v{L}, 2, 2")
    b(f"v_add_u32 v{t+1}, v{t+1}, v{t+2}")
    b(f"v_mul_u32_u24 v{t+1}, 80, v{t+1}")
    b(f"v_and_b32 v{t+2}, 1, v{L}")
    b(f"v_lshlrev_b32 v{t+2}, 5, v{t+2}")
    b(f"v_bfe_u32 v{t+3}, v{L}, 4, 1")
    b(f"v_lshlrev_b32 v{t+3}, 4, v{t+3}")
    b(f"v_add3_u32 v{t+1}, v{t+1}, v{t+2}, v{t+3}")
    b(f"v_bfe_u32 v{t+2}, v{L}, 1, 1")
    b(f"v_lshlrev_b32 v{t+2}, 3, v{t+2}")
    b(f"v_add3_u32 v{vImgR}, v{t+1}, v{t+2}, s{sK0}")
    return b

def k1_gjob_all(b):
    L = vLane
    xs0, gs, gu, t, w = 32, 112, 16, 120, 96
    b(f"v_and_b32 v{t}, 31, v{L}")
    b(f"v_lshlrev_b32 v{t}, 4, v{t}")
    b(f"global_load_dwordx4 {v(gs,4)}, v{t}, s[28:29]")
    b(f"global_load_dwordx4 {v(gs+4,4)}, v{t}, s[28:29] offset:512")
    b(f"v_lshrrev_b32 v{t+1}, 5, v{L}")
    b(f"s_lshl_b32 s{sT1}, s{sT0}, 4")
    b(f"v_add_u32 v{t+1}, s{sT1}, v{t+1}")
    b(f"v_lshlrev_b32 v{t+2}, 3, v{t+1}")
    b(f"v_add_u32 v{t+2}, {G_OFF}, v{t+2}")
    b(f"v_lshlrev_b32 v{t+1}, 10, v{t+1}")
    b(f"v_add_u32 v{t+1}, v{t+1}, v{t}")
    for p in range(8):
        r = xs0 + p * 8
        if p: b(f"v_add_u32 v{t+1}, 2048, v{t+1}")
        b(f"global_load_dwordx4 {v(r,4)}, v{t+1}, s[4:5]")
        b(f"global_load_dwordx4 {v(r+4,4)}, v{t+1}, s[4:5] offset:512")
    for _ in range(4): b("s_barrier")
    for k in range(8):
        b(f"v_lshlrev_b32 v{gu+2*k}, 16, v{gs+k}")
        b(f"v_and_b32 v{gu+2*k+1}, 0xffff0000, v{gs+k}")
    b(f"v_and_b32 v{t+3}, 31, v{L}")
    for p in range(8):
        xs = xs0 + p * 8
        acc = w
        for k in range(8):
            a0 = w + 2 + 2 * (k % 4)
            b(f"v_lshlrev_b32 v{a0}, 16, v{xs+k}")
            b(f"v_and_b32 v{a0+1}, 0xffff0000, v{xs+k}")
            b(f"v_pk_mul_f32 {v(a0,2)}, {v(a0,2)}, {v(gu+2*k,2)}")
            b(f"v_cvt_pk_bf16_f32 v{a0}, v{a0}, v{a0+1}")
            b(f"v_and_b32 v{a0+1}, 0xffff0000, v{a0}")
            b(f"v_lshlrev_b32 v{a0}, 16, v{a0}")
            if k == 0:
                b(f"v_add_f32 v{acc}, v{a0}, v{a0+1}")
            else:
                b(f"v_add_f32 v{a0}, v{a0}, v{a0+1}")
                b(f"v_add_f32 v{acc}, v{acc}, v{a0}")
        for r in (8, 4, 2, 1):
            b(f"v_add_f32_dpp v{acc}, v{acc}, v{acc} row_ror:{r} row_mask:0xf bank_mask:0xf")
        b(f"v_mov_b32 v{acc+1}, v{acc}")
        b(f"v_permlane16_swap_b32 v{acc}, v{acc+1}")
        b(f"v_add_f32 v{acc}, v{acc}, v{acc+1}")
        b(f"v_cvt_pk_bf16_f32 v{acc}, v{acc}, v{acc}")
        b(f"v_lshlrev_b32 v{acc}, 16, v{acc}")
        b(f"v_mul_f32 v{acc}, {LOG2E ^ 0x80000000:#x}, v{acc}")
        b(f"v_exp_f32 v{acc}, v{acc}")
        b(f"v_add_f32 v{acc}, 1.0, v{acc}")
        b(f"v_rcp_f32 v{acc}, v{acc}")
        b(f"v_cvt_pk_bf16_f32 v{acc}, v{acc}, v{acc}")
        d = xs
        b(f"v_lshlrev_b32 v{d}, 16, v{acc}")
        b(f"v_sub_f32 v{d+1}, 1.0, v{d}")
        b(f"v_cvt_pk_bf16_f32 v{d+1}, v{d+1}, v{d+1}")
        b(f"v_lshlrev_b32 v{d+1}, 16, v{d+1}")
    b(f"v_cmp_eq_u32 vcc, 0, v{t+3}")
    b(f"s_and_saveexec_b64 {s(sEX,2)}, vcc")
    for p in range(8):
        b(f"global_store_dwordx2 v{t+2}, {v(xs0+8*p,2)}, s[34:35] offset:{16*p} sc0 sc1")
    b(f"s_mov_b64 exec, {s(sEX,2)}")

def k1_nonce():
    b = F()
    t = vU + 26
    b(f"v_add_u32 v{t}, 1, v{t}")
    b(f"v_or_b32 v{t+1}, 1, v{t+1}")
    b(f"v_mov_b32 v{t+2}, {NONCE_OFF}")
    b(f"v_mov_b32 v{t+3}, 0")
    g = B()
    g(f"s_or_b32 s{sSpin}, s2, s{sWm}")
    g(f"s_cmp_lg_u32 s{sSpin}, 0")
    g("s_cbranch_scc1 L_k1_nononce")
    g(f"global_store_dwordx2 v{t+2}, {v(t,2)}, s[34:35] sc0 sc1", 'nocount')
    g(f"global_store_dwordx2 v{t+3}, {v(t,2)}, s[32:33] sc0 sc1", 'nocount')
    g("L_k1_nononce:")
    b.group(g)
    return b

def k1_S():
    b = k1_S_setup()
    if int(opts.get('sprio', 1)): b("s_setprio 2")
    m = B()
    for i in range(8):
        m("s_waitcnt lgkmcnt(0)")
        m("s_barrier")
        po = (i % NSLOT) * SLOT
        hi = po >= 65536 - 1024
        if hi:
            for k in range(4):
                m(f"v_add_u32 v{vTmp+k}, 0x10000, v{gPX+k}")
        for k in range(4):
            if hi: m(f"ds_read_b128 {a(aSX+4*k,4)}, v{vTmp+k} offset:{po - 65536}")
            else: m(f"ds_read_b128 {a(aSX+4*k,4)}, v{gPX+k} offset:{po}")
        if hi:
            for k in range(4):
                m(f"v_add_u32 v{vTmp+k}, 0x10000, v{gPB+k}")
        for k in range(4):
            for mm in range(2):
                if hi: m(f"ds_read_b128 {a(aSB+8*k+4*mm,4)}, v{vTmp+k} offset:{po - 65536 + mm*1024}")
                else: m(f"ds_read_b128 {a(aSB+8*k+4*mm,4)}, v{gPB+k} offset:{po + mm*1024}")
        for k in range(4):
            for mm, acc in ((0, aRE), (1, aIM)):
                c = v(acc, 16) if (i, k) != (0, 0) else "0"
                m(f"v_mfma_f32_32x32x16_bf16 {v(acc,16)}, {a(aSX+4*k,4)}, {a(aSB+8*k+4*mm,4)}, {c}")
    f = F()
    if not int(opts.get('nearly', 0)): f.ext(k1_nonce())
    if int(opts.get('pfw', 0)):
        g = B(); t = vP + 12
        g(f"s_cmp_eq_u32 s{sWm}, {int(opts.get('pfww', 1))}")
        g("s_cbranch_scc0 L_k1_pfw_done")
        g(f"v_lshrrev_b32 v{t}, 5, v{vLane}")
        g(f"s_lshl_b32 s{sSpin}, s2, 1")
        g(f"v_add_u32 v{t}, s{sSpin}, v{t}")
        g(f"v_mul_u32_u24 v{t}, 3584, v{t}")
        g(f"v_and_b32 v{t+1}, 31, v{vLane}")
        g(f"v_min_u32 v{t+1}, 27, v{t+1}")
        g(f"v_lshl_add_u32 v{t}, v{t+1}, 7, v{t}")
        g(f"global_load_dword v{vU+9}, v{t}, s[24:25]", 'nocount')
        g("L_k1_pfw_done:")
        f.group(g)
    f.ext(k1_params())
    f.ext(k1_setup_common())
    g = B()
    g(f"v_mov_b32 v{vTmp}, 0")
    g(f"global_load_dwordx2 {v(vNon,2)}, v{vTmp}, s[32:33] sc1")
    f.group(g)
    b.ext(merge(m.ops, f.ops, per=int(opts.get('per1', 5))))
    b("s_waitcnt vmcnt(0)")
    stamp(b, 2)
    s1 = flat(k1_scan1a().ops)
    cut = [j for j, o in enumerate(s1) if o.kind == 'ds'][0]
    if STAMP >= 2: stamp(b, 8)
    if int(opts.get('hb8', 1)):
        b.ext(s1[:cut])
        if STAMP >= 2: stamp(b, 9)
        b("s_barrier")
        b.ext(s1[cut:])
    else:
        b("s_barrier")
        b.ext(s1)
    if STAMP >= 2: stamp(b, 11)
    b("s_barrier")
    if STAMP >= 2: stamp(b, 12)
    b.ext(flat(k1_scan1b().ops))
    if STAMP >= 2: stamp(b, 13)
    b.ext(k1_publish())
    stamp(b, 3)
    b("s_barrier")
    b.ext(p2_S_csetup())
    if opts.get('lbfirst', '0') == '1':
        b("s_barrier")
        stamp(b, 4)
        b.ext(k1_lookback())
        stamp(b, 5)
        b.ext(k1_final())
        b.ext(p2_S_cdma())
        b.ext(p2_S_creads())
    else:
        b("s_barrier")
        b.ext(p2_S_cdma())
        stamp(b, 4)
        b.ext(k1_lookback())
        stamp(b, 5)
        b.ext(k1_final())
        b.ext(p2_S_creads())
    stamp(b, 6)
    return b

def cfma_sr(b, d, l, h, ure, uim, tmp):
    b(f"v_fma_f32 v{tmp}, v{l}, v{h}, v{ure}")
    b(f"v_fma_f32 v{tmp+1}, v{l}, v{h+1}, v{uim}")
    b(f"v_fma_f32 v{d}, -v{l+1}, v{h+1}, v{tmp}")
    b(f"v_fma_f32 v{d+1}, v{l+1}, v{h}, v{tmp+1}")

def k1_scan1a():
    b = F()
    tmp = vTmp
    R = lambda t: aRE + reg_of_t(t)
    I = lambda t: aIM + reg_of_t(t)
    b(f"v_mov_b32 v{vQ}, v{R(0)}\nv_mov_b32 v{vQ+1}, v{I(0)}")
    cur = vQ
    for t in range(1, 16):
        nxt = vQ if cur == vW_ else vW_
        cfma_sr(b, nxt, vL, cur, R(t), I(t), tmp)
        cur = nxt
    assert cur == vW_
    b(f"v_mov_b32 v{vPre}, v{cur}\nv_mov_b32 v{vPre+1}, v{cur+1}")
    b(f"v_mov_b32 v{vQ}, v{cur}\nv_mov_b32 v{vQ+1}, v{cur+1}")
    b(f"v_permlane32_swap_b32 v{vPre}, v{vQ}")
    b(f"v_permlane32_swap_b32 v{vPre+1}, v{vQ+1}")
    cfma_s(b, vW_, vL16, vPre, vQ, tmp)
    b(f"v_mul_f32 v{vPre}, v{vPre}, v{vHfm}\nv_mul_f32 v{vPre+1}, v{vPre+1}, v{vHfm}")
    t = vP
    b(f"v_and_b32 v{t+14}, 31, v{vLane}")
    b(f"v_lshlrev_b32 v{t+14}, 3, v{t+14}")
    b(f"v_add_u32 v{t+14}, {SCR}, v{t+14}")
    b(f"s_lshl_b32 s{sK0}, s{sWm}, 8")
    b(f"v_add_u32 v{t+15}, s{sK0}, v{t+14}")
    b(f"ds_write_b64 v{t+15}, {v(vW_,2)} offset:{SC}", "Wx")
    b.wait('lg', "Wx")
    return b

def k1_scan1b():
    b = F()
    t = vP; tmp = vTmp
    for w in range(4):
        b(f"ds_read_b64 {v(t+2*w,2)}, v{t+14} offset:{SC + 256*w}")
    W0, W1, W2, W3 = t, t+2, t+4, t+6
    Q2, Q3 = t+8, t+10
    cfma_s(b, Q2, vL32, W0, W1, tmp)
    cfma_s(b, Q3, vL32, Q2, W2, tmp)
    E = t + 12
    cfma_s(b, E, vL32, Q3, W3, tmp)
    for h in range(2):
        b(f"v_cndmask_b32 v{vQ+h}, 0, v{W0+h}, {s(sM1,2)}")
        b(f"v_cndmask_b32 v{vQ+h}, v{vQ+h}, v{Q2+h}, {s(sM2,2)}")
        b(f"v_cndmask_b32 v{vQ+h}, v{vQ+h}, v{Q3+h}, {s(sM3,2)}")
    cfma_s(b, vK, vF1, vQ, vPre, tmp)
    return b

def k1_publish():
    t = vP; E = t + 12; tmp = vTmp
    g = B()
    g(f"s_lshl_b32 s{sK0}, s{sR}, 13")
    g(f"v_add_u32 v{tmp}, s{sK0}, v{vLBa}")
    g(f"v_lshrrev_b32 v{tmp+1}, 3, v{vLane}")
    g(f"v_cmp_ne_u32 vcc, 0, v{vNon+1}")
    g("s_cbranch_vccnz L_k1_nonce_ok")
    g(f"s_mov_b32 s{sSpin}, 0")
    g("L_k1_nonce_retry:")
    g(f"v_mov_b32 v{tmp+2}, 0")
    g(f"global_load_dwordx2 {v(vNon,2)}, v{tmp+2}, s[32:33] sc1", 'nocount')
    g("s_waitcnt vmcnt(0)", 'nocount')
    g(f"s_add_u32 s{sSpin}, s{sSpin}, 1")
    g(f"s_cmp_gt_u32 s{sSpin}, 40000")
    g("s_cbranch_scc1 L_k1_nonce_ok")
    g(f"v_cmp_ne_u32 vcc, 0, v{vNon+1}")
    g("s_cbranch_vccz L_k1_nonce_retry")
    g("L_k1_nonce_ok:")
    g(f"v_mov_b32 v{E+2}, v{vNon}\nv_mov_b32 v{E+3}, v{vNon+1}")
    g(f"v_cmp_eq_u32 vcc, s{sWm}, v{tmp+1}")
    g(f"s_and_saveexec_b64 {s(sEX,2)}, vcc")
    g(f"global_store_dwordx4 v{tmp}, {v(E,4)}, s[34:35] sc0 sc1")
    g(f"s_mov_b64 exec, {s(sEX,2)}")
    return g

def k1_lookback():
    b = B(); tmp = vTmp; t = vP
    H = vW_
    def loads(tok):
        b(f"s_sub_u32 s{sK0}, s{sR}, 1")
        b(f"s_lshl_b32 s{sK0}, s{sK0}, 13")
        b(f"v_lshrrev_b32 v{t}, 5, v{vLane}")
        b(f"v_lshlrev_b32 v{t}, 13, v{t}")
        b(f"v_sub_u32 v{t}, s{sK0}, v{t}")
        b(f"v_add_u32 v{t}, v{vLBa}, v{t}")
        for mm in range(8):
            if mm: b(f"v_subrev_u32 v{t}, 16384, v{t}")
            b(f"v_max_i32 v{t+1}, v{t}, v{vLBa}")
            b(f"global_load_dwordx4 {v(vU+4*mm,4)}, v{t+1}, s[34:35] sc1", tok)
    b(f"s_cmp_eq_u32 s{sR}, 0")
    b("s_cbranch_scc1 L_k1_lb_zero")
    b(f"s_mov_b32 s{sSpin}, 0")
    b("L_k1_lb_again:")
    loads('nocount')
    b("s_waitcnt vmcnt(0)", 'nocount')
    b(f"s_mov_b64 {s(sEX,2)}, -1")
    for mm in range(8):
        b(f"s_cmp_le_u32 s{sR}, {2*mm}")
        b("s_cbranch_scc1 L_k1_lb_checked")
        b(f"s_cmp_ge_u32 s{sR}, {2*mm+2}")
        b(f"s_cselect_b32 s{sT1}, 0, -1")
        b(f"v_cmp_eq_u32 vcc, v{vU+4*mm+2}, v{vNon}")
        b(f"v_cmp_eq_u32 {s(sT2,2)}, v{vU+4*mm+3}, v{vNon+1}")
        b(f"s_and_b64 vcc, vcc, {s(sT2,2)}")
        b(f"s_or_b32 vcc_hi, vcc_hi, s{sT1}")
        b(f"s_and_b64 {s(sEX,2)}, {s(sEX,2)}, vcc")
    b("L_k1_lb_checked:")
    b(f"s_cmp_eq_u64 {s(sEX,2)}, -1")
    b("s_cbranch_scc1 L_k1_lb_ok")
    b(f"s_add_u32 s{sSpin}, s{sSpin}, 1")
    b(f"s_cmp_gt_u32 s{sSpin}, 40000")
    b("s_cbranch_scc1 L_k1_lb_ok")
    b(f"s_sleep {int(opts.get('lbsleep', 4))}")
    b("s_branch L_k1_lb_again")
    b("L_k1_lb_ok:")
    b(f"v_mov_b32 v{H}, 0\nv_mov_b32 v{H+1}, 0")
    for mm in range(7, -1, -1):
        b(f"s_cmp_le_u32 s{sR}, {2*mm}")
        b(f"s_cbranch_scc1 L_k1_lb_h{mm}")
        b(f"s_cmp_ge_u32 s{sR}, {2*mm+2}")
        b(f"s_cselect_b32 s{sT3}, -1, 0")
        b(f"s_mov_b32 s{sT2}, -1")
        b(f"v_cndmask_b32 v{vU+4*mm}, 0, v{vU+4*mm}, {s(sT2,2)}")
        b(f"v_cndmask_b32 v{vU+4*mm+1}, 0, v{vU+4*mm+1}, {s(sT2,2)}")
        b(f"v_fma_f32 v{tmp}, v{vL256}, v{H}, v{vU+4*mm}")
        b(f"v_fma_f32 v{tmp+1}, v{vL256}, v{H+1}, v{vU+4*mm+1}")
        b(f"v_fma_f32 v{tmp}, -v{vL256+1}, v{H+1}, v{tmp}")
        b(f"v_fma_f32 v{H+1}, v{vL256+1}, v{H}, v{tmp+1}")
        b(f"v_mov_b32 v{H}, v{tmp}")
        b(f"L_k1_lb_h{mm}:")
    b(f"v_mov_b32 v{vPre}, v{H}\nv_mov_b32 v{vPre+1}, v{H+1}")
    b(f"v_permlane32_swap_b32 v{H}, v{vPre}")
    b(f"v_permlane32_swap_b32 v{H+1}, v{vPre+1}")
    cfma_s(b, t, vL128, vPre, H, tmp)
    cfma_s(b, vQ, vG, t, vK, tmp)
    b("s_branch L_k1_lb_done")
    b("L_k1_lb_zero:")
    b(f"v_mov_b32 v{vQ}, v{vK}\nv_mov_b32 v{vQ+1}, v{vK+1}")
    b("L_k1_lb_done:")
    return b

def k1_final():
    b = B()
    tmp = vTmp
    prev = vQ
    for t in range(16):
        r = reg_of_t(t)
        u = vU + 2 * r
        cfma_sr(b, u, vL, prev, aRE + r, aIM + r, tmp)
        prev = u
    for r in range(16):
        u = vU + 2 * r
        tp = vP + 2 * (r % 4)
        b(f"v_mul_f32 v{tp}, v{vC2}, v{u}")
        b(f"v_mul_f32 v{tp+1}, v{vC2+1}, v{u}")
        b(f"v_fma_f32 v{u}, -v{vC2+1}, v{u+1}, v{tp}")
        b(f"v_fma_f32 v{u+1}, v{vC2}, v{u+1}, v{tp+1}")
    for k in range(8):
        b(f"v_cvt_pk_bf16_f32 v{aRE+k}, v{vU+4*k}, v{vU+4*k+2}")
    for h in range(2):
        b(f"ds_write_b128 v{vImgW}, {v(aRE+4*h,4)} offset:{IMG + h*16}", "img")
    for k in range(8):
        b(f"v_cvt_pk_bf16_f32 v{aRE+8+k}, -v{vU+4*k+1}, -v{vU+4*k+3}")
    for h in range(2):
        b(f"ds_write_b128 v{vImgW}, {v(aRE+8+4*h,4)} offset:{IMG + 2560 + h*16}", "img")
    b(f"s_lshl_b32 s{sT2}, s{sS}, 12")
    b(f"s_add_u32 s{sT1}, s{sHFb}, s{sT2}")
    b.wait('lg', "img")
    for m in range(2):
        for kk in range(2):
            r = aIM + (2*m + kk) * 4
            for rd in range(2):
                b(f"ds_read_b64_tr_b16 {v(r+2*rd,2)}, v{vImgR} offset:{IMG + (m*32 + 16*kk + 4*rd)*80}")
    for m in range(2):
        for kk in range(2):
            r = aIM + (2*m + kk) * 4
            b(f"s_add_u32 s{sT2}, s{sT1}, {(2*m+kk)*1024}")
            b(f"buffer_store_dwordx4 {v(r,4)}, v{vL16o}, {s(sHF,4)}, s{sT2} offen {STF}")
    return b


pA, pC1, pC2 = 36, 40, 44
pH, pN, pK0, pLw, pOff = 72, 73, 74, 75, 76
pNib = 84
CST = 98304
vCe, vCo, vPp = 2, 3, 4
vH0g, vH1g, vH0k, vH1k = 2, 3, 4, 5
vTau, vSg, vSk = 8, 10, 12
vWrq = 16
PITCH = 256

def p2_ids(b):
    b(f"s_lshr_b32 s{pH}, s{sS}, 3")
    b(f"s_and_b32 s{pN}, s{sS}, 7")

def p2_S_csetup():
    b = B(); L = vLane; t = vP
    p2_ids(b)
    srd(b, pC1, 14, 512*1024)
    srd(b, pC2, 16, 512*1024)
    b(f"v_and_b32 v{t}, 7, v{L}")
    b(f"v_lshrrev_b32 v{t+1}, 4, v{L}")
    b(f"v_xor_b32 v{t}, v{t}, v{t+1}")
    b(f"v_lshlrev_b32 v{t}, 4, v{t}")
    b(f"v_lshrrev_b32 v{t+1}, 3, v{L}")
    b(f"v_lshlrev_b32 v{t+1}, 10, v{t+1}")
    b(f"v_add_u32 v{vCe}, v{t}, v{t+1}")
    b(f"v_xor_b32 v{vCo}, 64, v{vCe}")
    b(f"s_lshl_b32 s{pOff}, s{pN}, 16")
    b(f"s_lshl_b32 s{sT0}, s{pH}, 9")
    b(f"s_add_u32 s{pOff}, s{pOff}, s{sT0}")
    b(f"s_lshl_b32 s{sT0}, s{sWm}, 7")
    b(f"s_add_u32 s{pOff}, s{pOff}, s{sT0}")
    b(f"s_lshl_b32 s{pLw}, s{sWm}, 14")
    b(f"s_add_u32 s{pLw}, s{pLw}, {CST}")
    b(f"v_and_b32 v{t}, 31, v{L}")
    b(f"v_lshlrev_b32 v{t}, 7, v{t}")
    b(f"v_add_u32 v{t}, s{pLw}, v{t}")
    b(f"v_lshrrev_b32 v{t+1}, 5, v{L}")
    b(f"v_bfe_u32 v{t+2}, v{L}, 1, 3")
    b(f"v_xor_b32 v{t+2}, v{t+1}, v{t+2}")
    for k in range(4):
        b(f"v_xor_b32 v{t+1}, {2*k}, v{t+2}")
        b(f"v_lshl_add_u32 v{vPp+k}, v{t+1}, 4, v{t}")
    return b

def p2_S_cdma():
    b = B()
    for m in range(2):
        for aa in range(8):
            b(f"s_add_u32 m0, s{pLw}, {m*8192 + aa*1024}")
            b(f"s_add_u32 s{sT0}, s{pOff}, {aa*8192}")
            b(f"buffer_load_dwordx4 v{vCe if aa % 2 == 0 else vCo}, {s(pC1 if m == 0 else pC2,4)}, s{sT0} offen lds", "cst")
    return b

ROT2 = int(opts.get('rot2', 0))
pKS = 48
def p2_S_creads():
    b = B()
    if not ROT2:
        b.wait('vm', "cst")
        for j in range(8):
            m = (j >> 1) & 1; ksp = 2 * (j >> 2) + (j & 1)
            for aa in range(2):
                b(f"ds_read_b128 {a(8*j+4*aa,4)}, v{vPp+ksp} offset:{m*8192 + aa*4096}")
        for j in range(8): b(f"s_mov_b32 s{pKS+j}, {j*1024}")
        return b
    t = vP; L = vLane
    b(f"v_and_b32 v{t}, 31, v{L}")
    b(f"v_lshlrev_b32 v{t}, 7, v{t}")
    b(f"v_add_u32 v{t}, s{pLw}, v{t}")
    b(f"v_lshrrev_b32 v{t+1}, 5, v{L}")
    b(f"v_bfe_u32 v{t+2}, v{L}, 1, 3")
    b(f"v_xor_b32 v{t+1}, v{t+1}, v{t+2}")
    b.wait('vm', "cst")
    for j in range(8):
        b(f"s_add_u32 s{sT0}, s{pN}, {j}")
        b(f"s_and_b32 s{sT0}, s{sT0}, 7")
        b(f"s_lshl_b32 s{pKS+j}, s{sT0}, 10")
        b(f"s_lshr_b32 s{sT1}, s{sT0}, 2")
        b(f"s_lshl_b32 s{sT1}, s{sT1}, 1")
        b(f"s_and_b32 s{sT2}, s{sT0}, 1")
        b(f"s_add_u32 s{sT1}, s{sT1}, s{sT2}")
        b(f"s_lshl_b32 s{sT1}, s{sT1}, 1")
        b(f"s_bfe_u32 s{sT2}, s{sT0}, 0x10001")
        b(f"s_lshl_b32 s{sT2}, s{sT2}, 13")
        tt = t + 4 + (j % 4)
        b(f"v_xor_b32 v{tt}, s{sT1}, v{t+1}")
        b(f"v_lshl_add_u32 v{tt}, v{tt}, 4, v{t}")
        b(f"v_add_u32 v{tt}, s{sT2}, v{tt}")
        for aa in range(2):
            b(f"ds_read_b128 {a(8*j+4*aa,4)}, v{tt} offset:{aa*4096}")
    return b

def p2_common(b, role):
    L = vLane
    srd(b, pA, 34, WS_USED)
    b(f"s_xor_b32 s{sT0}, s{pH}, 1")
    b(f"s_lshl_b32 s{sT0}, s{sT0}, 1")
    b(f"s_lshl_b32 s{sT1}, s{sR}, 2")
    b(f"s_add_u32 s{sT0}, s{sT0}, s{sT1}")
    b(f"s_mul_i32 s{sT0}, s{sT0}, {176*1024}")
    b(f"v_lshlrev_b32 v6, 4, v{L}")
    b(f"v_add_u32 v{vH0g}, s{sT0}, v6")
    b(f"v_add_u32 v{vH1g}, {176*1024}, v{vH0g}")
    b(f"s_lshl_b32 s{sT0}, s{pH}, 2")
    b(f"s_sub_u32 s{sT0}, s{sT0}, 2")
    b(f"s_mul_i32 s{sT0}, s{sT0}, {176*1024}")
    b(f"v_add_u32 v{vH0k}, s{sT0}, v{vH0g}")
    b(f"v_add_u32 v{vH1k}, s{sT0}, v{vH1g}")
    b(f"s_lshl_b32 s{pK0}, s{pH}, 2")
    b(f"s_add_u32 s{pK0}, s{pK0}, s{sWm}")
    if role == 0:
        b(f"s_lshl_b32 s{pK0}, s{pK0}, 13")
    else:
        b(f"s_mul_i32 s{pK0}, s{pK0}, {14*1024}")
        b(f"s_add_u32 s{pK0}, s{pK0}, {64*1024}")

def p2_common2(b, role):
    L = vLane
    b(f"v_bfe_u32 v6, v{L}, 3, 2")
    b(f"v_and_b32 v7, 7, v{L}")
    b(f"v_lshl_add_u32 v{vTau}, v7, 2, v6")
    b(f"s_xor_b32 s{sT0}, s{pH}, 1")
    b(f"s_lshl_b32 s{sT0}, s{sT0}, 6")
    b(f"s_lshl_b32 s{sT1}, s{sR}, 7")
    b(f"s_add_u32 s{sT0}, s{sT0}, s{sT1}")
    b(f"v_add_u32 v6, s{sT0}, v{vTau}")
    b("v_lshlrev_b32 v6, 3, v6")
    b(f"v_add_u32 v6, {G_OFF + 4*role}, v6")
    b(f"global_load_dword v{vSg}, v6, s[34:35] sc1")
    b(f"global_load_dword v{vSg+1}, v6, s[34:35] offset:256 sc1")
    b(f"s_lshl_b32 s{sT0}, s{pH}, 7")
    b(f"s_sub_u32 s{sT0}, s{sT0}, 64")
    b(f"s_lshl_b32 s{sT0}, s{sT0}, 3")
    b(f"v_add_u32 v6, s{sT0}, v6")
    b(f"global_load_dword v{vSk}, v6, s[34:35] sc1")
    b(f"global_load_dword v{vSk+1}, v6, s[34:35] offset:256 sc1")
    b(f"s_lshl_b32 s{sT0}, s{sWm}, 14")
    if role == 0: b(f"s_add_u32 s{sT0}, s{sT0}, {CST}")
    b(f"v_lshlrev_b32 v9, 8, v{vTau}")
    b(f"v_add_u32 v9, s{sT0}, v9")
    b(f"v_lshrrev_b32 v6, 5, v{L}")
    b(f"v_and_b32 v7, 7, v{L}")
    b("v_xor_b32 v6, v6, v7")
    for q in range(4):
        b(f"v_xor_b32 v7, {2*q}, v6")
        b(f"v_lshl_add_u32 v{vWrq+q}, v7, 4, v9")

def p2_rwrite(b, acc, sc, dup=None):
    if dup is not None:
        b(f"v_mov_b32 v{dup}, v{sc}\nv_mov_b32 v{dup+1}, v{sc}\nv_mov_b32 v{dup+2}, v{sc+1}\nv_mov_b32 v{dup+3}, v{sc+1}")
    for aa in range(2):
        for bb in range(2):
            S = acc + (aa*2+bb)*16
            g = sc + bb
            gp = g & ~1; o = g & 1
            if dup is not None:
                for p in range(8):
                    b(f"v_pk_mul_f32 {v(S+2*p,2)}, {v(S+2*p,2)}, {v(dup+2*bb,2)}")
            elif opts.get('rw', 'scalar') == 'pk':
                for p in range(8):
                    b(f"v_pk_mul_f32 {v(S+2*p,2)}, {v(S+2*p,2)}, {v(gp,2)} op_sel:[0,{o}] op_sel_hi:[1,{o}]")
            else:
                for p in range(16):
                    b(f"v_mul_f32 v{S+p}, v{g}, v{S+p}")
            for q in range(4):
                b(f"ds_write_b128 v{vWrq+q}, {v(S+4*q,4)} offset:{bb*32*PITCH + aa*128}", "red")
    b.wait('lg', "red")

def p2_F():
    b = B(); L = vLane
    b("L_p2_F:")
    b("s_waitcnt vmcnt(0) lgkmcnt(0)")
    b("s_barrier")
    if int(opts.get('p2prio', 0)): b(f"s_setprio {int(opts.get('p2prio', 0))}")
    stamp(b, 7)
    p2_ids(b)
    srd(b, pC1, 26, 1792*1024)
    vWa, vWb, vTp = 6, 7, 20
    t = 24
    b(f"v_bfe_u32 v{t}, v{L}, 4, 1")
    b(f"v_lshlrev_b32 v{t}, 2, v{t}")
    b(f"v_and_b32 v{t+1}, 7, v{L}")
    b(f"v_xor_b32 v{t}, v{t}, v{t+1}")
    b(f"v_lshlrev_b32 v{t}, 4, v{t}")
    b(f"v_lshrrev_b32 v{t+1}, 3, v{L}")
    b(f"v_lshlrev_b32 v{t+1}, 10, v{t+1}")
    b(f"v_add_u32 v{vWa}, v{t}, v{t+1}")
    b(f"v_add_u32 v{vWb}, {8192 - 1024}, v{vWa}")
    b(f"s_lshl_b32 s{sT0}, s{pH}, 2")
    b(f"s_add_u32 s{sT0}, s{sT0}, s{sWm}")
    b(f"s_mul_i32 s{pOff}, s{sT0}, {14*16*1024}")
    b(f"s_lshl_b32 s{sT0}, s{pN}, 7")
    b(f"s_add_u32 s{pOff}, s{pOff}, s{sT0}")
    b(f"s_lshl_b32 s{pLw}, s{sWm}, 14")
    pKF = [48, 49, 50, 51, 52, 53, 54, 55, 77, 78, 79, 80, 81, 82]
    if ROT2:
        b(f"s_mul_i32 s{sT2}, s{pN}, 7")
        b(f"s_lshr_b32 s{sT2}, s{sT2}, 2")
        for i in range(14):
            b(f"s_add_u32 s{pKF[i]}, s{sT2}, {i}")
            b(f"s_cmp_ge_u32 s{pKF[i]}, 14")
            b(f"s_cselect_b32 s{sT3}, 14, 0")
            b(f"s_sub_u32 s{pKF[i]}, s{pKF[i]}, s{sT3}")
            b(f"s_lshl_b32 s{pKF[i]}, s{pKF[i]}, 10")
    else:
        for i in range(14): b(f"s_mov_b32 s{pKF[i]}, {i*1024}")
    def wdma(i):
        b(f"s_add_u32 m0, s{pLw}, {(i % 8)*2048}")
        b(f"s_lshl_b32 s{sT1}, s{pKF[i]}, 4")
        b(f"s_add_u32 s{sT1}, s{sT1}, s{pOff}")
        b(f"buffer_load_dwordx4 v{vWa}, {s(pC1,4)}, s{sT1} offen lds", f"f{i}")
        b(f"buffer_load_dwordx4 v{vWb}, {s(pC1,4)}, s{sT1} offen offset:1024 lds", f"f{i}")
    NPRE = int(opts.get('npre', 8))
    for i in range(min(NPRE, 8)): wdma(i)
    tr_pattern(b, vTp, 4, t)
    b(f"v_add_u32 v{vTp}, s{pLw}, v{vTp}")
    b(f"v_add_u32 v{vTp+1}, s{pLw}, v{vTp+1}")
    b(f"v_mov_b32 v22, v{vWa}\nv_mov_b32 v23, v{vWb}")
    vWa, vWb = 22, 23
    p2_common(b, 1)
    def wreads(i):
        b.wait('vm', f"f{i}")
        for aa in range(2):
            for rd in range(2):
                b(f"ds_read_b64_tr_b16 {a(8*i+4*aa+2*rd,2)}, v{vTp+aa} offset:{(i % 8)*2048 + rd*1024}", f"wr{i}")
    NRD = max(0, NPRE - 8)
    for i in range(NRD):
        wreads(i)
        b.wait('lg', f"wr{i}")
        wdma(8 + i)
    stamp(b, 24)
    b("s_barrier")
    stamp(b, 25)
    NSF, D = 14, 7
    def hreg(idx, k):
        sl = idx % D
        return v(24 + sl*8 + 4*k, 4) if sl < 5 else a(112 + (sl-5)*8 + 4*k, 4)
    def hload(idx):
        ps, i = divmod(idx, NSF)
        h0, h1 = (vH0g, vH1g) if ps == 0 else (vH0k, vH1k)
        b(f"s_add_u32 s{sT0}, s{pK0}, s{pKF[i]}")
        b(f"buffer_load_dwordx4 {hreg(idx,0)}, v{h0}, {s(pA,4)}, s{sT0} offen sc1")
        b(f"buffer_load_dwordx4 {hreg(idx,1)}, v{h1}, {s(pA,4)}, s{sT0} offen sc1")
    hload(0)
    rest = list(range(NPRE, 8))
    if rest: wdma(rest.pop(0))
    hload(1)
    if rest: wdma(rest.pop(0))
    for i in range(max(NRD, 0), max(NRD, 2)): wreads(i)
    hload(2)
    if rest: wdma(rest.pop(0))
    hload(3)
    for i in rest: wdma(i)
    DH1 = int(opts.get('dh1', 7))
    p2_common2(b, 1)
    for k in range(4, DH1): hload(k)
    stamp(b, 26)
    acc = 64
    def step(idx):
        ps, i = divmod(idx, NSF)
        mf = [f"v_mfma_f32_32x32x16_bf16 {v(acc+(aa*2+bb)*16,16)}, {a(8*i+4*aa,4)}, {hreg(idx,bb)}, {v(acc+(aa*2+bb)*16,16) if i else 0}" for aa in range(2) for bb in range(2)]
        b.wait('lg', f"wr{i}")
        b(mf[0])
        if 8 + i < 14 and i >= NRD: wdma(8 + i)
        b(mf[1])
        if i + 2 < 14 and i + 2 >= max(NRD, 2): wreads(i + 2)
        b(mf[2])
        n0 = len(b.ops)
        KP = int(opts.get('kp', 1))
        tg = [i + DH1] if i + DH1 < NSF else ([NSF + (i - (NSF - KP))] if i >= NSF - KP else [])
        for t_ in tg: hload(t_)
        ld = b.ops[n0:]; del b.ops[n0:]
        cut = [j for j, o in enumerate(ld) if o.kind == 'vmem']
        if cut:
            b.ext(ld[:cut[0] + 1]); b(mf[3]); b.ext(ld[cut[0] + 1:])
        else: b(mf[3])
        if i == NSF - 1 - DH1: b("s_barrier")
    for idx in range(NSF): step(idx)
    stamp(b, 27)
    n0 = len(b.ops); p2_rwrite(b, acc, vSg); rw = b.ops[n0:]; del b.ops[n0:]
    n0 = len(b.ops)
    for k in range(int(opts.get('kp', 1)), 7): hload(NSF + k)
    hl = chunks_of(b.ops[n0:]); del b.ops[n0:]
    body, tail = rw[:-1], rw[-1:]
    if int(opts.get('r1il', 1)):
        gap = max(1, len(body) // (len(hl) + 1)); outp = []
        for j, o in enumerate(body):
            outp.append(o)
            if (j + 1) % gap == 0 and hl: outp.extend(hl.pop(0))
        for c in hl: outp.extend(c)
        b.ext(outp + tail)
        b("s_barrier")
    else:
        b.ext(body + tail)
        b("s_barrier")
        for c in hl: b.ext(c)
    def step2(idx):
        i = idx - NSF
        mf = [f"v_mfma_f32_32x32x16_bf16 {v(acc+(aa*2+bb)*16,16)}, {a(8*i+4*aa,4)}, {hreg(idx,bb)}, {v(acc+(aa*2+bb)*16,16) if i else 0}" for aa in range(2) for bb in range(2)]
        b(mf[0]); b(mf[1]); b(mf[2])
        n0 = len(b.ops)
        if idx + D < 2 * NSF: hload(idx + D)
        ld = b.ops[n0:]; del b.ops[n0:]
        cut = [j for j, o in enumerate(ld) if o.kind == 'vmem']
        if cut:
            b.ext(ld[:cut[0] + 1]); b(mf[3]); b.ext(ld[cut[0] + 1:])
        else: b(mf[3])
    for idx in range(NSF, 2 * NSF):
        step2(idx)
        if idx == NSF + 3: b("s_barrier")
    stamp(b, 28)
    FSPLIT = int(opts.get('fsplit', 1))
    n0 = len(b.ops)
    p2_rwrite(b, acc, vSk, 24 if int(opts.get('r2pk', 1)) else None)
    rw = b.ops[n0:]; del b.ops[n0:]
    if FSPLIT:
        f = F()
        f("v_and_b32 v34, 0xff, v0")
        f("v_lshrrev_b32 v35, 4, v34")
        f("v_and_b32 v36, 15, v34")
        f("v_lshrrev_b32 v37, 6, v34")
        f("v_xor_b32 v37, v37, v36")
        f("v_lshlrev_b32 v28, 8, v35")
        f("v_lshl_add_u32 v28, v37, 4, v28")
        f("v_xor_b32 v29, 64, v28")
        f(f"v_add_u32 v30, {CST}, v28")
        f(f"v_add_u32 v31, {CST}, v29")
        f(f"s_lshl_b32 s{sT0}, s{sR}, 7")
        f(f"s_lshl_b32 s{sT1}, s{pH}, 6")
        f(f"s_add_u32 s{sT0}, s{sT0}, s{sT1}")
        f(f"s_add_u32 s{sT0}, s{sT0}, 32")
        f(f"v_add_u32 v35, s{sT0}, v35")
        f(f"s_lshl_b32 s{sT1}, s{pN}, 8")
        f("v_lshlrev_b32 v32, 11, v35")
        f("v_lshl_add_u32 v32, v36, 4, v32")
        f(f"v_add_u32 v32, s{sT1}, v32")
        f("v_lshlrev_b32 v33, 4, v34")
        f("v_add_u32 v33, 0x10000, v33")
        rw = merge(rw, f.ops, after=lambda o: o.mn.startswith('ds_write'), per=2)
    b.ext(rw)
    b("s_barrier")
    stamp(b, 29)
    if FSPLIT:
        T = 64
        for p in (2, 3):
            b(f"ds_read_b128 {v(100+4*(p-2),4)}, v33 offset:{(p-2)*4096}")
        for p in (2, 3):
            for w in range(8):
                base = (28 if p % 2 == 0 else 29) if w < 4 else (30 if p % 2 == 0 else 31)
                b(f"ds_read_b128 {v(T+4*w,4)}, v{base} offset:{(w % 4)*16384 + p*4096}")
            for w in range(0, 8, 2):
                b(f"v_pk_add_f32 {v(T+4*w,2)}, {v(T+4*w,2)}, {v(T+4*w+4,2)}")
                b(f"v_pk_add_f32 {v(T+4*w+2,2)}, {v(T+4*w+2,2)}, {v(T+4*w+6,2)}")
            for w in (0, 4):
                b(f"v_pk_add_f32 {v(T+4*w,2)}, {v(T+4*w,2)}, {v(T+4*w+8,2)}")
                b(f"v_pk_add_f32 {v(T+4*w+2,2)}, {v(T+4*w+2,2)}, {v(T+4*w+10,2)}")
            d = 108 + 4 * (p - 2)
            b(f"v_pk_add_f32 {v(d,2)}, {v(T,2)}, {v(T+16,2)}")
            b(f"v_pk_add_f32 {v(d+2,2)}, {v(T+2,2)}, {v(T+18,2)}")
            b(f"v_pk_add_f32 {v(d,2)}, {v(d,2)}, {v(100+4*(p-2),2)}")
            b(f"v_pk_add_f32 {v(d+2,2)}, {v(d+2,2)}, {v(102+4*(p-2),2)}")
            if p == 3: b(f"v_add_u32 v32, {16*2048}, v32")
            b(f"global_store_dwordx4 v32, {v(d,4)}, s[30:31] {opts.get('outf', 'sc0+sc1').replace('+', ' ')}")
    return b

def p2_S():
    b = B(); L = vLane
    b("s_waitcnt vmcnt(0) lgkmcnt(0)")
    b("s_barrier")
    stamp(b, 7)
    b(f"s_cmp_lg_u32 s{sWm}, 0")
    b("s_cbranch_scc1 L_p2_noflag")
    b(f"s_mul_i32 s{sT0}, s{sR}, {FLG_STRIDE}")
    b(f"s_add_u32 s{sT0}, s{sT0}, {FLG_OFF}")
    b(f"s_lshl_b32 s{sT1}, s{sS}, 3")
    b(f"s_add_u32 s{sT1}, s{sT1}, s{sT0}")
    b(f"v_mov_b32 v6, s{sT1}")
    b(f"global_store_dwordx2 v6, {v(vNon,2)}, s[34:35] sc0 sc1", 'nocount')
    b(f"v_and_b32 v6, 15, v{L}")
    b("v_lshlrev_b32 v6, 3, v6")
    b(f"v_add_u32 v6, s{sT0}, v6")
    b(f"s_mov_b32 s{sSpin}, 0")
    NP = int(opts.get('npoll', 1))
    SL = int(opts.get('pollsl', 0))
    for k in range(NP):
        b(f"global_load_dwordx2 {v(24+2*k,2)}, v6, s[34:35] sc1", 'nocount')
        if SL: b(f"s_sleep {SL}")
    b("L_p2_poll:")
    for k in range(NP):
        b(f"s_waitcnt vmcnt({NP-1})", 'nocount')
        b(f"v_cmp_eq_u32 vcc, v{24+2*k}, v{vNon}")
        b(f"v_cmp_eq_u32 {s(sT2,2)}, v{24+2*k+1}, v{vNon+1}")
        b(f"s_and_b64 vcc, vcc, {s(sT2,2)}")
        b("s_cmp_eq_u64 vcc, -1")
        b("s_cbranch_scc1 L_p2_polled")
        b(f"global_load_dwordx2 {v(24+2*k,2)}, v6, s[34:35] sc1", 'nocount')
    b(f"s_add_u32 s{sSpin}, s{sSpin}, 1")
    b(f"s_cmp_gt_u32 s{sSpin}, 100000")
    b("s_cbranch_scc0 L_p2_poll")
    b("L_p2_polled:")
    b("L_p2_noflag:")
    b(f"v_readfirstlane_b32 s{sT0}, v{vNon}")
    for j in range(4):
        b(f"s_bfe_u32 s{pNib+j}, s{sT0}, {(4 << 16) | (4*j):#x}")
    p2_common(b, 0)
    stamp(b, 24)
    b("s_barrier")
    if int(opts.get('p2prio', 0)): b("s_setprio 0")
    stamp(b, 25)
    def hreg(j, k): return a(64 + 8*j + 4*k, 4)
    def hload(j, ps):
        h0, h1 = (vH0g, vH1g) if ps == 0 else (vH0k, vH1k)
        b(f"s_add_u32 s{sT0}, s{pK0}, s{pKS+j}")
        b(f"buffer_load_dwordx4 {hreg(j,0)}, v{h0}, {s(pA,4)}, s{sT0} offen sc1")
        b(f"buffer_load_dwordx4 {hreg(j,1)}, v{h1}, {s(pA,4)}, s{sT0} offen sc1")
    DS1 = int(opts.get('ds1', 4))
    for j in range(DS1): hload(j, 0)
    p2_common2(b, 0)
    vRE, vRO, vREh, vROh = 20, 21, 22, 23
    b("v_lshrrev_b32 v6, 4, v0")
    b("v_and_b32 v7, 15, v0")
    b("v_lshrrev_b32 v9, 6, v0")
    b("v_xor_b32 v9, v9, v7")
    b(f"v_lshlrev_b32 v{vRE}, 8, v6")
    b(f"v_lshl_add_u32 v{vRE}, v9, 4, v{vRE}")
    b(f"v_xor_b32 v{vRO}, 64, v{vRE}")
    b(f"v_add_u32 v{vREh}, {CST}, v{vRE}")
    b(f"v_add_u32 v{vROh}, {CST}, v{vRO}")
    stamp(b, 26)
    acc = 64
    def mf(j): return [f"v_mfma_f32_32x32x16_bf16 {v(acc+(aa*2+bb)*16,16)}, {a(8*j+4*aa,4)}, {hreg(j,bb)}, {v(acc+(aa*2+bb)*16,16) if j else 0}" for aa in range(2) for bb in range(2)]
    for j in range(8):
        for t_ in mf(j): b(t_)
        if j + DS1 < 8: hload(j + DS1, 0)
    stamp(b, 27)
    p2_rwrite(b, acc, vSg)
    b("s_barrier")
    for j in range(8): hload(j, 1)
    for j in range(8):
        for t_ in mf(j): b(t_)
    stamp(b, 28)
    b("s_barrier")
    def padd(d, x, y, pk):
        if pk: b(f"v_pk_add_f32 {v(d,2)}, {v(x,2)}, {v(y,2)}")
        else:
            b(f"v_add_f32 v{d}, v{x}, v{y}"); b(f"v_add_f32 v{d+1}, v{x+1}, v{y+1}")
    def reduce(p, dst, pk):
        T = 24
        for w in range(8):
            base = (vRE if p % 2 == 0 else vRO) if w < 4 else (vREh if p % 2 == 0 else vROh)
            b(f"ds_read_b128 {v(T+4*w,4)}, v{base} offset:{(w % 4)*16384 + p*4096}")
        for w in range(0, 8, 2):
            padd(T+4*w, T+4*w, T+4*w+4, pk); padd(T+4*w+2, T+4*w+2, T+4*w+6, pk)
        for w in (0, 4):
            padd(T+4*w, T+4*w, T+4*w+8, pk); padd(T+4*w+2, T+4*w+2, T+4*w+10, pk)
        padd(dst, T, T+16, pk); padd(dst+2, T+2, T+18, pk)
    b("v_lshlrev_b32 v6, 4, v0")
    b(f"s_lshl_b32 s{sT0}, s2, 14")
    b(f"s_add_u32 s{sT0}, s{sT0}, {XCH_OFF}")
    b(f"v_add_u32 v6, s{sT0}, v6")
    for p in range(4):
        d = 56 + 4 * (p % 2)
        reduce(p, d, False)
        for e in range(4): b(f"v_and_or_b32 v{d+e}, v{d+e}, -16, s{pNib+e}")
        if p: b(f"v_add_u32 v6, 4096, v6")
        b(f"global_store_dwordx4 v6, {v(d,4)}, s[34:35] sc0 sc1")
    b("s_barrier")
    p2_rwrite(b, acc, vSk)
    PR_, BI, XV = 64, 80, 96
    b("v_lshlrev_b32 v6, 4, v0")
    b(f"s_xor_b32 s{sT1}, s2, 1")
    b(f"s_lshl_b32 s{sT0}, s{sT1}, 14")
    b(f"s_add_u32 s{sT0}, s{sT0}, {XCH_OFF}")
    b(f"v_add_u32 v9, s{sT0}, v6")
    def prt(tok):
        for p in range(4):
            if p: b(f"v_add_u32 v7, {p*4096}, v9")
            b(f"global_load_dwordx4 {v(PR_+4*p,4)}, v{7 if p else 9}, s[34:35] sc1", tok)
    prt("prt")
    b("v_lshrrev_b32 v6, 4, v0")
    b("v_and_b32 v8, 15, v0")
    b(f"s_lshl_b32 s{sT0}, s{sR}, 7")
    b(f"s_lshl_b32 s{sT1}, s{pH}, 6")
    b(f"s_add_u32 s{sT0}, s{sT0}, s{sT1}")
    b(f"v_add_u32 v6, s{sT0}, v6")
    b(f"s_lshl_b32 s{sT1}, s{pN}, 7")
    b("v_lshlrev_b32 v2, 10, v6")
    b("v_lshl_add_u32 v2, v8, 3, v2")
    b(f"v_add_u32 v2, s{sT1}, v2")
    for p in range(4):
        if p: b(f"v_add_u32 v2, {16*1024}, v2")
        b(f"global_load_dwordx2 {v(XV+2*p,2)}, v2, s[4:5]")
    b("v_lshlrev_b32 v2, 3, v8")
    b(f"v_add_u32 v2, s{sT1}, v2")
    b(f"global_load_dwordx2 {v(XV+8,2)}, v2, s[20:21]")
    b("v_lshlrev_b32 v2, 3, v6")
    b(f"v_add_u32 v2, {G_OFF}, v2")
    for p in range(4):
        b(f"global_load_dword v{XV+10+p}, v2, s[34:35] offset:{p*128} sc1")
    b(f"s_lshl_b32 s{sT1}, s{pN}, 8")
    b("v_lshlrev_b32 v2, 11, v6")
    b("v_lshl_add_u32 v2, v8, 4, v2")
    b(f"v_add_u32 v2, s{sT1}, v2")
    DS_ = XV + 14
    b(f"v_lshlrev_b32 v{DS_}, 16, v{XV+8}\nv_and_b32 v{DS_+1}, 0xffff0000, v{XV+8}\nv_lshlrev_b32 v{DS_+2}, 16, v{XV+9}\nv_and_b32 v{DS_+3}, 0xffff0000, v{XV+9}")
    for p in range(4):
        xs = XV + 2*p; tp = BI + 4*p
        b(f"v_lshlrev_b32 v{tp}, 16, v{xs}\nv_and_b32 v{tp+1}, 0xffff0000, v{xs}\nv_lshlrev_b32 v{tp+2}, 16, v{xs+1}\nv_and_b32 v{tp+3}, 0xffff0000, v{xs+1}")
        for e in range(4): b(f"v_mul_f32 v{tp+e}, v{tp+e}, v{DS_+e}")
        b(f"v_cvt_pk_bf16_f32 v56, v{tp}, v{tp+1}")
        b(f"v_cvt_pk_bf16_f32 v57, v{tp+2}, v{tp+3}")
        b(f"v_lshlrev_b32 v{tp}, 16, v56\nv_and_b32 v{tp+1}, 0xffff0000, v56\nv_lshlrev_b32 v{tp+2}, 16, v57\nv_and_b32 v{tp+3}, 0xffff0000, v57")
        for e in range(4): b(f"v_mul_f32 v{tp+e}, v{XV+10+p}, v{tp+e}")
    b.wait('vm', "prt")
    b(f"s_mov_b32 s{sSpin}, 0")
    if int(opts.get('prtpoll', 0)):
        b("L_p2_q:")
        b("v_mov_b32 v58, 0")
        for u in range(12, 16):
            b(f"v_xor_b32 v59, s{pNib + (u % 4)}, v{PR_+u}")
            b(f"v_and_or_b32 v58, v59, 15, v58")
        b("v_cmp_eq_u32 vcc, 0, v58")
        b("s_cmp_eq_u64 vcc, -1")
        b("s_cbranch_scc1 L_p2_qok")
        b(f"s_add_u32 s{sSpin}, s{sSpin}, 1")
        b(f"s_cmp_gt_u32 s{sSpin}, 100000")
        b("s_cbranch_scc1 L_p2_qok")
        b(f"v_add_u32 v7, {3*4096}, v9")
        b(f"global_load_dwordx4 {v(PR_+12,4)}, v7, s[34:35] sc1", 'nocount')
        b("s_waitcnt vmcnt(0)", 'nocount')
        b("s_branch L_p2_q")
        b("L_p2_qok:")
    b("L_p2_chk:")
    b("v_mov_b32 v58, 0")
    for u in range(16):
        b(f"v_xor_b32 v{PR_+u}, s{pNib + (u % 4)}, v{PR_+u}")
        b(f"v_and_or_b32 v58, v{PR_+u}, 15, v58")
    b("v_cmp_eq_u32 vcc, 0, v58")
    b("s_cmp_eq_u64 vcc, -1")
    b("s_cbranch_scc1 L_p2_ok")
    b(f"s_add_u32 s{sSpin}, s{sSpin}, 1")
    b(f"s_cmp_gt_u32 s{sSpin}, 100000")
    b("s_cbranch_scc1 L_p2_ok")
    prt('nocount')
    b("s_waitcnt vmcnt(0)", 'nocount')
    b("s_branch L_p2_chk")
    b("L_p2_ok:")
    for u in range(16): b(f"v_add_f32 v{BI+u}, v{BI+u}, v{PR_+u}")
    FSPLIT = int(opts.get('fsplit', 1))
    if FSPLIT:
        b("v_lshlrev_b32 v6, 4, v0")
        b("v_add_u32 v6, 0x10000, v6")
        for p in (2, 3): b(f"ds_write_b128 v6, {v(BI+4*p,4)} offset:{(p-2)*4096}", "biw")
        b.wait('lg', "biw")
    stamp(b, 29)
    b("s_barrier")
    for p in range(2 if FSPLIT else 4):
        d = 56 + 4 * (p % 2)
        reduce(p, d, True)
        b(f"v_pk_add_f32 {v(d,2)}, {v(d,2)}, {v(BI+4*p,2)}")
        b(f"v_pk_add_f32 {v(d+2,2)}, {v(d+2,2)}, {v(BI+4*p+2,2)}")
        if p: b(f"v_add_u32 v2, {16*2048}, v2")
        b(f"global_store_dwordx4 v2, {v(d,4)}, s[30:31] {opts.get('outf', 'sc0+sc1').replace('+', ' ')}")
    stamp(b, 30)
    return b

def gen_k1():
    global STV
    STV = 15
    pro = k1_head()
    S = k1_S()
    S.ext(p2_S())
    stamp_end(S, sWm, "s[34:35]", 0x2000000, vLane, 3, 14)
    S("s_endpgm")
    Fm = B(); Fm("L_k1_F:")
    Fm(f"s_cmp_ge_u32 s{sS}, 14")
    Fm("s_cbranch_scc1 L_k1_Fn")
    f1 = k1_F(True)
    f1("s_branch L_p2_F")
    Fn = B(); Fn("L_k1_Fn:")
    f2 = k1_F(False)
    p2f = p2_F()
    if STAMP: p2f(f"s_add_u32 s{sWave}, s{sWm}, 4")
    stamp_end(p2f, sWave, "s[34:35]", 0x2000000, vLane, 3, 14)
    p2f("L_k1_end:")
    p2f("s_endpgm")
    def path(prefix, body, label=None):
        allops = insert_waits(copy.deepcopy(prefix) + body)
        if label:
            idx = [i for i, o in enumerate(allops) if o.text == label][0]
            allops = allops[idx:]
        return insert_hazard_nops(allops)
    out = path([], pro.ops + S.ops)
    out += path(pro.ops, Fm.ops + f1.ops, "L_k1_F:")
    out += path(pro.ops + Fm.ops, Fn.ops + f2.ops, "L_k1_Fn:")
    out += path([], p2f.ops)
    return out

def gen_k2():
    global STV
    STV = 9
    b = B()
    D = 15
    DW = int(opts.get('k2dw', 5))
    sWv, sH, sMt, sN = 40, 41, 42, 43
    sA, sCR, sCI, sW2 = 44, 48, 76, 80
    t0, t1, t2 = 52, 53, 54
    sS0, sF0 = 56, 57
    sLw = 58
    sCoff, sWoff2 = 59, 62
    vH0, vH1 = 4, 5
    vCe, vCo, vWa, vWb = 2, 3, 60, 61
    vPp, vTp = 48, 52
    accS, accF, vBuf = 64, 128, 192
    vNon2 = 14
    vTau = 8
    vG1, vG2 = 10, 12
    PITCH = 256
    LRED = 0
    LSTG = 65536
    code_prefetch(b, K2, "L_code_end", 2, "k2", 6, 63)
    dbgt_begin(b)
    stamp_begin(b)
    b("s_load_dwordx2 s[18:19], s[0:1], 112")
    b("s_load_dwordx2 s[4:5], s[0:1], 0")
    b("s_load_dwordx4 s[12:15], s[0:1], 40")
    b("s_load_dwordx2 s[6:7], s[0:1], 64")
    b("s_load_dwordx2 s[16:17], s[0:1], 88")
    b("s_load_dwordx2 s[8:9], s[0:1], 104")
    b("s_load_dwordx2 s[10:11], s[0:1], 120")
    b("s_cmp_ge_u32 s2, 256")
    b("s_cbranch_scc1 L_k2_end")
    b("v_lshrrev_b32 v6, 6, v0")
    b("v_and_b32 v1, 63, v0")
    b(f"v_readfirstlane_b32 s{sWv}, v6")
    b(f"s_and_b32 s{sH}, s2, 1")
    b(f"s_bfe_u32 s{t0}, s2, 0x20001")
    b(f"s_lshr_b32 s{t1}, s2, 3")
    b(f"s_and_b32 s{sMt}, s{t1}, 3")
    b(f"s_lshl_b32 s{t0}, s{t0}, 2")
    b(f"s_add_u32 s{sMt}, s{sMt}, s{t0}")
    b(f"s_lshr_b32 s{sN}, s{t1}, 2")
    b("v_and_b32 v6, 7, v1")
    b("v_lshrrev_b32 v7, 4, v1")
    b("v_xor_b32 v6, v6, v7")
    b("v_lshlrev_b32 v6, 4, v6")
    b("v_lshrrev_b32 v7, 3, v1")
    b("v_lshlrev_b32 v7, 10, v7")
    b(f"v_add_u32 v{vCe}, v6, v7")
    b(f"v_xor_b32 v{vCo}, 64, v{vCe}")
    b("v_bfe_u32 v6, v1, 4, 1")
    b("v_lshlrev_b32 v6, 2, v6")
    b("v_and_b32 v29, 7, v1")
    b("v_xor_b32 v6, v6, v29")
    b("v_lshlrev_b32 v6, 4, v6")
    b(f"v_add_u32 v{vWa}, v6, v7")
    b(f"v_add_u32 v{vWb}, {8192 - 1024}, v{vWa}")
    b(f"s_lshl_b32 s{sCoff}, s{sN}, 16")
    b(f"s_lshl_b32 s{t0}, s{sH}, 9")
    b(f"s_add_u32 s{sCoff}, s{sCoff}, s{t0}")
    b(f"s_lshl_b32 s{t0}, s{sWv}, 7")
    b(f"s_add_u32 s{sCoff}, s{sCoff}, s{t0}")
    b(f"s_lshl_b32 s{t0}, s{sH}, 2")
    b(f"s_add_u32 s{t0}, s{t0}, s{sWv}")
    b(f"s_mul_i32 s{sWoff2}, s{t0}, {14*16*1024}")
    b(f"s_lshl_b32 s{t0}, s{sN}, 7")
    b(f"s_add_u32 s{sWoff2}, s{sWoff2}, s{t0}")
    b(f"s_mul_i32 s{sLw}, s{sWv}, 24576")
    b(f"s_add_u32 s{sLw}, s{sLw}, {LSTG}")
    b(f"s_xor_b32 s{t0}, s{sH}, 1")
    b(f"s_lshl_b32 s{t0}, s{t0}, 1")
    b(f"s_lshl_b32 s{t1}, s{sMt}, 2")
    b(f"s_add_u32 s{t0}, s{t0}, s{t1}")
    b(f"s_mul_i32 s{t0}, s{t0}, {176*1024}")
    b("v_lshlrev_b32 v6, 4, v1")
    b(f"v_add_u32 v{vH0}, s{t0}, v6")
    b(f"v_add_u32 v{vH1}, {176*1024}, v{vH0}")
    b(f"s_lshl_b32 s{sS0}, s{sH}, 2")
    b(f"s_add_u32 s{sS0}, s{sS0}, s{sWv}")
    b(f"s_lshl_b32 s{sS0}, s{sS0}, 13")
    b(f"s_lshl_b32 s{sF0}, s{sH}, 2")
    b(f"s_add_u32 s{sF0}, s{sF0}, s{sWv}")
    b(f"s_mul_i32 s{sF0}, s{sF0}, {14*1024}")
    b(f"s_add_u32 s{sF0}, s{sF0}, {64*1024}")
    b("s_waitcnt lgkmcnt(0)")
    srd(b, sA, 10, WS_USED)
    srd(b, sCR, 12, 512*1024)
    srd(b, sCI, 14, 512*1024)
    srd(b, sW2, 16, 1792*1024)
    steps = [('S', i) for i in range(8)] + [('F', i) for i in range(14)]
    NS = len(steps)
    seq = [(1, st) for st in range(NS)] + [(2, st) for st in range(NS)]
    def hreg(idx, k):
        sl = idx % D
        if sl < 8: return v(vBuf + sl * 8 + k * 4, 4)
        return a(200 + (sl - 8) * 8 + k * 4, 4)
    def dma_c(m):
        for aa in range(8):
            b(f"s_add_u32 m0, s{sLw}, {m*8192 + aa*1024}")
            b(f"s_add_u32 s{t2}, s{sCoff}, {aa*8192}")
            b(f"buffer_load_dwordx4 v{vCe if aa % 2 == 0 else vCo}, {s(sCR if m == 0 else sCI,4)}, s{t2} offen lds", f"c{m}")
    def wslot(i):
        if i < 4: return 16384 + i * 2048
        if i < 12: return (i - 4) * 2048
        return 16384 + (i - 12) * 2048
    def dma_f(i):
        b(f"s_add_u32 m0, s{sLw}, {wslot(i)}")
        b(f"s_add_u32 s{t2}, s{sWoff2}, {i*16*1024}")
        b(f"buffer_load_dwordx4 v{vWa}, {s(sW2,4)}, s{t2} offen lds", f"f{i}")
        b(f"buffer_load_dwordx4 v{vWb}, {s(sW2,4)}, s{t2} offen offset:1024 lds", f"f{i}")
    def hloads(idx):
        ps, st = seq[idx]
        kind, i = steps[st]
        sb = sS0 if kind == 'S' else sF0
        if ps == 2 and st == 0:
            b(f"s_lshl_b32 s{t0}, s{sH}, 2")
            b(f"s_sub_u32 s{t0}, s{t0}, 2")
            b(f"s_mul_i32 s{t0}, s{t0}, {176*1024}")
            b(f"v_add_u32 v{vH0}, s{t0}, v{vH0}")
            b(f"v_add_u32 v{vH1}, s{t0}, v{vH1}")
        b(f"s_add_u32 s{t1}, s{sb}, {i*1024}")
        b(f"buffer_load_dwordx4 {hreg(idx,0)}, v{vH0}, {s(sA,4)}, s{t1} offen")
        b(f"buffer_load_dwordx4 {hreg(idx,1)}, v{vH1}, {s(sA,4)}, s{t1} offen")
    def wreads_s():
        for j in range(8):
            m = (j >> 1) & 1; ksp = 2 * (j >> 2) + (j & 1)
            if j == 0: b.wait('vm', "c0")
            if j == 2: b.wait('vm', "c1")
            for aa in range(2):
                b(f"ds_read_b128 {a(8*j+4*aa,4)}, v{vPp+ksp} offset:{m*8192 + aa*4096}", f"wr{j}")
    def wreads_f(i):
        st = 8 + i
        b.wait('vm', f"f{i}")
        for aa in range(2):
            for rd in range(2):
                b(f"ds_read_b64_tr_b16 {a(8*st+4*aa+2*rd,2)}, v{vTp+aa} offset:{wslot(i) + rd*8*128}", f"wr{st}")
    if STAMP >= 2: stamp(b, 24)
    dma_c(0)
    hloads(0); hloads(1)
    dma_c(1)
    b("v_and_b32 v6, 31, v1")
    b("v_lshlrev_b32 v6, 7, v6")
    b(f"v_add_u32 v6, s{sLw}, v6")
    b("v_lshrrev_b32 v7, 5, v1")
    b("v_bfe_u32 v29, v1, 1, 3")
    b("v_xor_b32 v29, v7, v29")
    for k in range(4):
        b(f"v_xor_b32 v7, {2*k}, v29")
        b(f"v_lshl_add_u32 v{vPp+k}, v7, 4, v6")
    tr_pattern(b, vTp, 4, 54)
    b(f"v_add_u32 v{vTp}, s{sLw}, v{vTp}")
    b(f"v_add_u32 v{vTp+1}, s{sLw}, v{vTp+1}")
    b("v_bfe_u32 v6, v1, 3, 2")
    b("v_and_b32 v7, 7, v1")
    b(f"v_lshl_add_u32 v{vTau}, v7, 2, v6")
    b(f"s_xor_b32 s{t0}, s{sH}, 1")
    b(f"s_lshl_b32 s{t0}, s{t0}, 6")
    b(f"s_lshl_b32 s{t1}, s{sMt}, 7")
    b(f"s_add_u32 s{t0}, s{t0}, s{t1}")
    b(f"v_add_u32 v6, s{t0}, v{vTau}")
    b("v_lshlrev_b32 v6, 3, v6")
    b(f"v_add_u32 v6, {G_OFF}, v6")
    b(f"global_load_dwordx2 v[10:11], v6, s[10:11]")
    b(f"global_load_dwordx2 v[12:13], v6, s[10:11] offset:256")
    b(f"s_lshl_b32 s{t0}, s{sH}, 7")
    b(f"s_sub_u32 s{t0}, s{t0}, 64")
    b(f"s_lshl_b32 s{t0}, s{t0}, 3")
    b(f"v_add_u32 v6, s{t0}, v6")
    b(f"global_load_dwordx2 v[16:17], v6, s[10:11]")
    b(f"global_load_dwordx2 v[18:19], v6, s[10:11] offset:256")
    b(f"v_mov_b32 v6, {NONCE_OFF}")
    b(f"global_load_dwordx2 {v(vNon2,2)}, v6, s[10:11]")
    if STAMP >= 2: stamp(b, 25)
    DH = int(opts.get('k2dh', 5))
    for idx in range(2, DH): hloads(idx)
    if STAMP >= 2: stamp(b, 26)
    vWr, vRd = 20, 21
    vWrq = 56
    b(f"s_lshl_b32 s{t0}, s{sWv}, 14")
    b(f"v_lshlrev_b32 v29, 8, v{vTau}")
    b(f"v_add_u32 v29, s{t0}, v29")
    b("v_lshrrev_b32 v6, 5, v1")
    b("v_and_b32 v7, 7, v1")
    b("v_xor_b32 v6, v6, v7")
    for q in range(4):
        b(f"v_xor_b32 v7, {2*q}, v6")
        b(f"v_lshl_add_u32 v{vWrq+q}, v7, 4, v29")
    b("v_lshrrev_b32 v22, 4, v0")
    b("v_and_b32 v23, 15, v0")
    b("v_lshrrev_b32 v6, 6, v0")
    b("v_xor_b32 v6, v6, v23")
    b(f"v_lshlrev_b32 v{vRd}, 8, v22")
    b(f"v_lshl_add_u32 v{vRd}, v6, 4, v{vRd}")
    b(f"v_xor_b32 v{vWr}, 64, v{vRd}")
    vXch = 24
    b(f"v_lshlrev_b32 v{vXch}, 4, v0")
    b(f"s_lshl_b32 s{t0}, s2, 14")
    b(f"s_add_u32 s{t0}, s{t0}, {XCH_OFF}")
    b(f"v_add_u32 v25, s{t0}, v{vXch}")
    b(f"s_xor_b32 s{t1}, s2, 1")
    b(f"s_lshl_b32 s{t0}, s{t1}, 14")
    b(f"s_add_u32 s{t0}, s{t0}, {XCH_OFF}")
    b(f"v_add_u32 v26, s{t0}, v{vXch}")
    if STAMP >= 2: stamp(b, 27)
    wreads_s()
    if STAMP >= 2: stamp(b, 28)

    def mfmas(idx):
        ps, st = seq[idx]
        kind, i = steps[st]
        acc = accS if kind == 'S' else accF
        out = []
        for aa in range(2):
            for bb in range(2):
                dreg = v(acc + (aa*2 + bb) * 16, 16)
                c = dreg if i else "0"
                out.append(f"v_mfma_f32_32x32x16_bf16 {dreg}, {a(8*st+4*aa,4)}, {hreg(idx,bb)}, {c}")
        return out

    def reduce_write(g0, g1):
        for aa in range(2):
            for bb in range(2):
                g = g0 if bb == 0 else g1
                S = accS + (aa*2+bb)*16; Fq = accF + (aa*2+bb)*16
                for p in range(8):
                    b(f"v_pk_mul_f32 {v(S+2*p,2)}, {v(S+2*p,2)}, {v(g,2)} op_sel_hi:[1,0]")
                for p in range(8):
                    b(f"v_pk_fma_f32 {v(S+2*p,2)}, {v(Fq+2*p,2)}, {v(g,2)}, {v(S+2*p,2)} op_sel:[0,1,0] op_sel_hi:[1,1,1]")
                for q in range(4):
                    b(f"ds_write_b128 v{vWrq+q}, {v(S+4*q,4)} offset:{LRED + bb*32*PITCH + aa*128}", "red")
        b.wait('lg', "red")
        b("s_barrier")
    def reduce_read(dst, gran=None):
        for p in range(4):
            for w in range(4):
                b(f"ds_read_b128 {v(dst+16*p+4*w,4)}, v{vRd if p % 2 == 0 else vWr} offset:{LRED + w*64*PITCH + p*16*PITCH}")
        for p in range(4):
            r = dst + 16*p
            b(f"v_pk_add_f32 {v(r,2)}, {v(r,2)}, {v(r+4,2)}")
            b(f"v_pk_add_f32 {v(r+2,2)}, {v(r+2,2)}, {v(r+6,2)}")
            b(f"v_pk_add_f32 {v(r+8,2)}, {v(r+8,2)}, {v(r+12,2)}")
            b(f"v_pk_add_f32 {v(r+10,2)}, {v(r+10,2)}, {v(r+14,2)}")
            if gran is None:
                b(f"v_pk_add_f32 {v(r,2)}, {v(r,2)}, {v(r+8,2)}")
                b(f"v_pk_add_f32 {v(r+2,2)}, {v(r+2,2)}, {v(r+10,2)}")
            else:
                for e in range(4):
                    u = 4 * p + e
                    b(f"v_add_f32 v{gran + 4*(u//3) + u%3}, v{r+e}, v{r+8+e}")

    total = len(seq)
    sNib = 84
    XS_ = 32
    PR_ = vBuf
    def r1c():
        f = F()
        for p in range(4):
            for w in range(4):
                f(f"ds_read_b128 {v(accF+16*p+4*w,4)}, v{vRd if p % 2 == 0 else vWr} offset:{LRED + w*64*PITCH + p*16*PITCH}")
        for p in range(4):
            r = accF + 16*p
            for e in range(4): f(f"v_add_f32 v{r+e}, v{r+e}, v{r+4+e}")
            for e in range(4): f(f"v_add_f32 v{r+8+e}, v{r+8+e}, v{r+12+e}")
            for e in range(4): f(f"v_add_f32 v{r+e}, v{r+e}, v{r+8+e}")
            for e in range(4): f(f"v_and_or_b32 v{XS_+4*p+e}, v{r+e}, -16, s{sNib+e}")
        return f
    def step_ops(idx):
        ps, st = seq[idx]
        kind, i = steps[st]
        n00 = len(b.ops)
        mf = mfmas(idx)
        if ps == 1: b.wait('lg', f"wr{st}")
        b(mf[0])
        if ps == 1:
            fi = st - 2
            if st == 6: b.wait('lg', "wr7")
            if 0 <= fi < 14: dma_f(fi)
        b(mf[1])
        if ps == 1 and 8 <= st + 1 < NS:
            wreads_f(st + 1 - 8)
        b(mf[2])
        n0 = len(b.ops)
        tg = []
        if ps == 1:
            if st + DH < NS: tg = [st + DH]
            else:
                j = st + DH - NS
                tg = [NS + 2 * j, NS + 2 * j + 1]
        elif idx + D < total: tg = [idx + D]
        for t_ in tg: hloads(t_)
        ld = b.ops[n0:]; del b.ops[n0:]
        cut = [j for j, o in enumerate(ld) if o.kind == 'vmem']
        if cut:
            b.ext(ld[:cut[0] + 1]); b(mf[3]); b.ext(ld[cut[0] + 1:])
        else:
            b(mf[3])
        ops = b.ops[n00:]; del b.ops[n00:]
        return ops
    for idx in range(NS):
        b.ext(step_ops(idx))
        st = idx
        if st == 2:
            b(f"v_readfirstlane_b32 s{t0}, v{vNon2}")
            for j in range(4):
                b(f"s_bfe_u32 s{sNib+j}, s{t0}, {(4 << 16) | (4*j):#x}")
        if STAMP >= 2 and st in (0, 3, 7, 11, 15, 19): stamp(b, 8 + (0, 3, 7, 11, 15, 19).index(st))
    stamp(b, 1)
    n0 = len(b.ops); reduce_write(vG1, vG2); rw = b.ops[n0:]; del b.ops[n0:]
    K0 = 2 * DH
    n0 = len(b.ops)
    for k in range(K0, 15): hloads(NS + k)
    hl = chunks_of(b.ops[n0:]); del b.ops[n0:]
    body, tail = rw[:-2], rw[-2:]
    gap = max(1, len(body) // (len(hl) + 1))
    outp = []
    for j, o in enumerate(body):
        outp.append(o)
        if (j + 1) % gap == 0 and hl: outp.extend(hl.pop(0))
    for c in hl: outp.extend(c)
    b.ext(outp + tail)
    stamp(b, 2)
    p2a = []
    for st in range(7): p2a += step_ops(NS + st)
    b.ext(merge(p2a, r1c().ops, per=4))
    PL = int(opts.get('k2pl', 16))
    BI = vBuf + 16
    def bias_fill():
        f = F()
        f("v_lshlrev_b32 v4, 16, v40\nv_and_b32 v5, 0xffff0000, v40\nv_lshlrev_b32 v6, 16, v41\nv_and_b32 v7, 0xffff0000, v41")
        for p in range(4):
            xs = 32 + 2*p; tp = BI + 4*p
            f(f"v_lshlrev_b32 v{tp}, 16, v{xs}\nv_and_b32 v{tp+1}, 0xffff0000, v{xs}\nv_lshlrev_b32 v{tp+2}, 16, v{xs+1}\nv_and_b32 v{tp+3}, 0xffff0000, v{xs+1}")
            for e in range(4): f(f"v_mul_f32 v{tp+e}, v{tp+e}, v{4+e}")
            f(f"v_cvt_pk_bf16_f32 v46, v{tp}, v{tp+1}")
            f(f"v_cvt_pk_bf16_f32 v47, v{tp+2}, v{tp+3}")
            f(f"v_lshlrev_b32 v{tp}, 16, v46\nv_and_b32 v{tp+1}, 0xffff0000, v46\nv_lshlrev_b32 v{tp+2}, 16, v47\nv_and_b32 v{tp+3}, 0xffff0000, v47")
            for e in range(4): f(f"v_mul_f32 v{tp+e}, v{42+p}, v{tp+e}")
        return f
    tail_steps = []
    for st in range(7, NS):
        idx = NS + st
        ops = step_ops(idx)
        if 7 <= st <= 10:
            p = st - 7
            pre = B()
            if p: pre(f"v_add_u32 v29, {p*4096}, v25")
            pre(f"global_store_dwordx4 v{29 if p else 25}, {v(XS_+4*p,4)}, s[10:11] sc0 sc1")
            ops = ops[:1] + pre.ops + ops[1:]
        if st >= 17:
            tail_steps += ops
            if st == NS - 1: b.ext(merge(tail_steps, bias_fill().ops, per=4))
            continue
        b.ext(ops)
        if STAMP >= 2 and st in (7, 11, 15, 19): stamp(b, 16 + (0, 3, 7, 11, 15, 19).index(st))
        if st == 11:
            b("s_barrier")
        if st == 11:
            b(f"s_lshl_b32 s{t0}, s{sMt}, 7")
            b(f"s_lshl_b32 s{t1}, s{sH}, 6")
            b(f"s_add_u32 s{t0}, s{t0}, s{t1}")
            b(f"v_add_u32 v30, s{t0}, v22")
            b(f"s_lshl_b32 s{t1}, s{sN}, 7")
            b("v_lshlrev_b32 v31, 10, v30")
            b("v_lshl_add_u32 v31, v23, 3, v31")
            b(f"v_add_u32 v31, s{t1}, v31")
            for p in range(4):
                if p: b(f"v_add_u32 v31, {16*1024}, v31")
                b(f"global_load_dwordx2 {v(32+2*p,2)}, v31, s[4:5]")
            b("v_lshlrev_b32 v31, 3, v23")
            b(f"v_add_u32 v31, s{t1}, v31")
            b(f"global_load_dwordx2 v[40:41], v31, s[6:7]")
            b("v_lshlrev_b32 v31, 3, v30")
            b(f"v_add_u32 v31, {G_OFF}, v31")
            for p in range(4):
                b(f"global_load_dword v{42+p}, v31, s[10:11] offset:{p*128}")
            b(f"s_lshl_b32 s{t1}, s{sN}, 8")
            b("v_lshlrev_b32 v2, 11, v30")
            b("v_lshl_add_u32 v2, v23, 4, v2")
            b(f"v_add_u32 v2, s{t1}, v2")
        if st == PL:
            for p in range(4):
                if p: b(f"v_add_u32 v29, {p*4096}, v26")
                b(f"global_load_dwordx4 {v(PR_+4*p,4)}, v{29 if p else 26}, s[10:11] sc1", "prt")
    stamp(b, 3)
    b.wait('vm', "prt")
    b(f"s_mov_b32 s{t0}, 0")
    b("L_k2_chk:")
    b("v_mov_b32 v46, 0")
    for u in range(16):
        b(f"v_xor_b32 v{PR_+u}, s{sNib + (u % 4)}, v{PR_+u}")
        b(f"v_and_or_b32 v46, v{PR_+u}, 15, v46")
    b("v_cmp_eq_u32 vcc, 0, v46")
    b("s_cmp_eq_u64 vcc, -1")
    b("s_cbranch_scc1 L_k2_ok")
    b(f"s_add_u32 s{t0}, s{t0}, 1")
    b(f"s_cmp_gt_u32 s{t0}, 40000")
    b("s_cbranch_scc1 L_k2_ok")
    for p in range(4):
        if p: b(f"v_add_u32 v29, {p*4096}, v26")
        b(f"global_load_dwordx4 {v(PR_+4*p,4)}, v{29 if p else 26}, s[10:11] sc1", 'nocount')
    b("s_waitcnt vmcnt(0)", 'nocount')
    b("s_branch L_k2_chk")
    b("L_k2_ok:")
    if STAMP >= 2: stamp(b, 30)
    n0 = len(b.ops)
    reduce_write(16, 18)
    rw = b.ops[n0:]; del b.ops[n0:]
    fl = F()
    for u in range(0, 16, 2): fl(f"v_pk_add_f32 {v(BI+u,2)}, {v(BI+u,2)}, {v(PR_+u,2)}")
    b.ext(merge(rw, fl.ops, after=lambda o: o.mn.startswith('ds_write'), per=1))
    if STAMP >= 2: stamp(b, 31)
    reduce_read(accF)
    if STAMP >= 2: stamp(b, 32)
    OUTF = opts.get('outf', '').replace('+', ' ')
    for p in range(4):
        r = accF + 16*p
        b(f"v_pk_add_f32 {v(r,2)}, {v(r,2)}, {v(BI+4*p,2)}")
        b(f"v_pk_add_f32 {v(r+2,2)}, {v(r+2,2)}, {v(BI+4*p+2,2)}")
        if p: b(f"v_add_u32 v2, {16*2048}, v2")
        b(f"global_store_dwordx4 v2, {v(r,4)}, s[8:9] {OUTF}")
    stamp(b, 4)
    dbgt_end(b, "s[18:19]", 32, True)
    stamp_end(b, sWv, "s[10:11]", 0x2100000, 1)
    b("L_k2_end:")
    b("s_endpgm")
    return finalize(b.ops)

KN = NAME + "_kernel"
def header():
    ref = open('cdna_kernels/%s.s.ref' % NAME).read().split('\n')
    hdr = []
    for line in ref:
        if not line.startswith(';'): break
        if '@launch' in line: continue
        hdr.append(line)
    hdr.append("; @launch grid=(256,1,1) block=(512,1,1) lds=163840")
    return '\n'.join(hdr)

def kd(name, nv, acc_off, nsg):
    return f""".amdhsa_kernel {name}
  .amdhsa_next_free_vgpr {nv}
  .amdhsa_next_free_sgpr {nsg}
  .amdhsa_accum_offset {acc_off}
  .amdhsa_group_segment_fixed_size 0
  .amdhsa_kernarg_size 128
  .amdhsa_user_sgpr_count 2
  .amdhsa_user_sgpr_kernarg_segment_ptr 1
  .amdhsa_system_sgpr_workgroup_id_x 1
  .amdhsa_float_denorm_mode_32 3
.end_amdhsa_kernel"""

def main():
    k1 = gen_k1()
    out = [header(), '.amdgcn_target "amdgcn-amd-amdhsa--gfx950"', '.text']
    out += [f".globl {KN}", ".p2align 8", f".type {KN},@function", f"{KN}:", render(k1)]
    out += ["L_code_end:", "  s_endpgm"]
    out += ['.section .rodata,"a"', '.p2align 6', kd(KN, 256, 128, 102)]
    print('\n'.join(out))

main()
```

```python
import sys, copy
sys.path.insert(0, 'dev')
from ir import *

NAME = "gated_mix__ssm_conv_s5__dense_activation_silu__prompt"
K1 = NAME + "_kernel"
K2 = "gm_k2_kernel"

opts = dict(a.split('=') for a in sys.argv[1:] if '=' in a)
HF_OFF = 0
HF_SIZE = 64 * 176 * 1024
W2F_OFF = HF_SIZE
W2F_SIZE = 16 * 176 * 1024
G_OFF = W2F_OFF + W2F_SIZE
E_OFF = G_OFF + 2048 * 8
E_SIZE = 16 * 16 * 512
NONCE_OFF = E_OFF + E_SIZE
FLG_OFF = NONCE_OFF + 256
FLG_STRIDE = int(opts.get('flgs', 1024)) if 'opts' in globals() else 128
XCH_OFF = FLG_OFF + 0x40000
WS_USED = XCH_OFF + 256 * 16384

LOG2E = 0x3fb8aa3b
INV2PI = 0x3e22f983

RB, XS, WR = 0, 65536, 114688
SC = 32768
IMG = 36864

STAMP = int(opts.get('stamp', 0))
STF = "sc0 sc1"

def v(n, k=1): return f"v{n}" if k == 1 else f"v[{n}:{n+k-1}]"
def a(n, k=1): return f"a{n}" if k == 1 else f"a[{n}:{n+k-1}]"
def s(n, k=1): return f"s{n}" if k == 1 else f"s[{n}:{n+k-1}]"


STV = 15
def reg_of_t(t): return (t >> 2) + 4 * (t & 3)
def srd(b, dst, ptr, size):
    b(f"s_mov_b32 s{dst}, s{ptr}")
    b(f"s_mov_b32 s{dst+1}, s{ptr+1}")
    b(f"s_mov_b32 s{dst+2}, {size}")
    b(f"s_mov_b32 s{dst+3}, 0x20000")


def cexp(b, dst, n_src, va, vang, t0):
    b(f"v_mul_f32 v{t0}, {n_src}, v{va}")
    b(f"v_mul_f32 v{t0+1}, {n_src}, v{vang}")
    b(f"v_exp_f32 v{t0}, v{t0}")
    b(f"v_rndne_f32 v{t0+2}, v{t0+1}")
    b(f"v_sub_f32 v{t0+1}, v{t0+1}, v{t0+2}")
    b(f"v_cos_f32 v{dst}, v{t0+1}")
    b(f"v_sin_f32 v{dst+1}, v{t0+1}")
    b(f"v_mul_f32 v{dst}, v{t0}, v{dst}")
    b(f"v_mul_f32 v{dst+1}, v{t0}, v{dst+1}")


def cfma(b, d, l, h, u, tmp):
    b(f"v_pk_fma_f32 {v(tmp,2)}, {v(l,2)}, {v(h,2)}, {v(u,2)} op_sel:[0,0,0] op_sel_hi:[0,1,1]")
    b(f"v_pk_fma_f32 {v(d,2)}, {v(l,2)}, {v(h,2)}, {v(tmp,2)} op_sel:[1,1,0] op_sel_hi:[1,0,1] neg_lo:[1,0,0]")


def cfma_s(b, d, l, h, u, tmp):
    b(f"v_fma_f32 v{tmp}, v{l}, v{h}, v{u}")
    b(f"v_fma_f32 v{tmp+1}, v{l}, v{h+1}, v{u+1}")
    b(f"v_fma_f32 v{d}, -v{l+1}, v{h+1}, v{tmp}")
    b(f"v_fma_f32 v{d+1}, v{l+1}, v{h}, v{tmp+1}")


def stamp(b, idx):
    if not STAMP: return
    g = B()
    g("s_memtime s[100:101]")
    g("s_waitcnt lgkmcnt(0)")
    g(f"v_writelane_b32 v{STV}, s100, {idx}")
    b.ext(g)


def stamp_begin(b):
    if not STAMP: return
    b(f"v_mov_b32 v{STV}, 0")
    b("s_memrealtime s[100:101]")
    b("s_waitcnt lgkmcnt(0)")
    b(f"v_writelane_b32 v{STV}, s100, 62")
    stamp(b, 0)


def stamp_end(b, wave, ws, off, lane, sh=2, tv=254):
    if not STAMP: return
    b("s_memrealtime s[100:101]")
    b("s_waitcnt lgkmcnt(0)")
    b(f"v_writelane_b32 v{STV}, s100, 63")
    b(f"s_lshl_b32 s100, s2, {sh}")
    b(f"s_add_u32 s100, s100, s{wave}")
    b(f"s_lshl_b32 s100, s100, 8")
    b(f"s_add_u32 s100, s100, {off}")
    b(f"v_lshlrev_b32 v{tv}, 2, v{lane}")
    b(f"v_add_u32 v{tv}, s100, v{tv}")
    b(f"global_store_dword v{tv}, v{STV}, {ws}")


vLane = 1
def tr_pattern(b, dst, hfmul, t):
    L = vLane
    b(f"v_lshrrev_b32 v{t}, 5, v{L}")
    b(f"v_mul_u32_u24 v{t}, {hfmul}, v{t}")
    b(f"v_bfe_u32 v{t+1}, v{L}, 2, 2")
    b(f"v_add_u32 v{t}, v{t}, v{t+1}")
    b(f"v_lshlrev_b32 v{t}, 7, v{t}")
    b(f"v_bfe_u32 v{t+1}, v{L}, 3, 1")
    b(f"v_lshlrev_b32 v{t+1}, 6, v{t+1}")
    b(f"v_bfe_u32 v{t+2}, v{L}, 4, 1")
    b(f"v_lshlrev_b32 v{t+2}, 5, v{t+2}")
    b(f"v_and_b32 v{t+3}, 3, v{L}")
    b(f"v_lshlrev_b32 v{t+3}, 3, v{t+3}")
    b(f"v_add3_u32 v{t}, v{t}, v{t+2}, v{t+3}")
    b(f"v_add_u32 v{dst}, v{t}, v{t+1}")
    b(f"v_xor_b32 v{t+1}, 64, v{t+1}")
    b(f"v_add_u32 v{dst+1}, v{t}, v{t+1}")

SLOT = 24576
NSLOT = 4
WB0 = 98304
SCR = 73728
SC = 0
IMG = 1024
def wblock_lds(q):
    if q < 8: return WB0 + q * 8192
    return (q - 8) * 8192

sX, sBRE, sBIM, sW1, sHF = 36, 40, 44, 48, 52
sWave, sWm, sR, sS, sRho = 60, 61, 62, 63, 56
sLdsX, sLdsB = 64, 65
sT0, sT1, sT2, sT3 = 68, 69, 70, 71
sWL = 72
sM1, sM2, sM3 = 80, 82, 84
sHFb, sK0, sEX = 86, 87, 88
sLo = 90
sSpin, sU = 98, 99

DBGT = int(opts.get('dbgt', 0))
def dbgt_begin(b):
    if not DBGT: return
    b("s_memrealtime s[100:101]")
    b("s_waitcnt lgkmcnt(0)")
    b("s_not_b32 s101, s100")
def dbgt_end(b, dbg, vt, k2=False):
    if not DBGT: return
    b("s_mov_b32 s99, s101")
    b("s_memrealtime s[100:101]")
    b("s_waitcnt lgkmcnt(0)")
    b(f"v_mov_b32 v{vt}, 0")
    b(f"v_mov_b32 v{vt+1}, s99")
    b(f"v_mov_b32 v{vt+2}, s100")
    b("s_mov_b64 exec, 1")
    b(f"global_atomic_umax v{vt}, v{vt+1}, {dbg} offset:16")
    b(f"global_atomic_umax v{vt}, v{vt+2}, {dbg} offset:20")
    if k2:
        b(f"global_load_dwordx2 {v(vt+2,2)}, v{vt}, {dbg} offset:-496 sc1")
        b("s_waitcnt vmcnt(0)")
        b(f"global_store_dwordx2 v{vt}, {v(vt+2,2)}, {dbg} offset:8")
    b("s_mov_b64 exec, -1")

def code_prefetch(b, kname, endlabel, wshift, tag, vt, vd):
    if not int(opts.get('pfc', 1)): return
    b("s_getpc_b64 s[40:41]")
    b(f"L_{tag}_pc:")
    b(f"s_sub_u32 s40, s40, L_{tag}_pc-{kname}")
    b("s_subb_u32 s41, s41, 0")
    b("s_lshr_b32 s42, s2, 3")
    b(f"s_lshl_b32 s42, s42, {wshift + 7}")
    b(f"v_lshrrev_b32 v{vt}, 6, v0")
    b(f"v_lshlrev_b32 v{vt}, 7, v{vt}")
    b(f"v_add_u32 v{vt}, s42, v{vt}")
    b(f"v_min_u32 v{vt}, {endlabel}-{kname}-4, v{vt}")
    b(f"global_load_dword v{vd}, v{vt}, s[40:41]", 'nocount')

def k1_head():
    b = B()
    code_prefetch(b, K1, "L_code_end", 3, "k1", 2, 14)
    dbgt_begin(b)
    stamp_begin(b)
    b("s_load_dwordx16 s[4:19], s[0:1], 0")
    b("s_load_dwordx16 s[20:35], s[0:1], 64")
    b("s_cmp_ge_u32 s2, 256")
    b("s_cbranch_scc1 L_k1_end")
    b("v_lshrrev_b32 v2, 6, v0")
    b(f"v_and_b32 v{vLane}, 63, v0")
    b(f"v_readfirstlane_b32 s{sWave}, v2")
    b(f"s_and_b32 s{sT0}, s2, 7")
    b(f"s_lshr_b32 s{sT1}, s2, 3")
    b(f"s_and_b32 s{sT2}, s{sT1}, 3")
    b(f"s_lshr_b32 s{sT3}, s{sT1}, 2")
    b(f"s_lshr_b32 s{sR}, s{sT0}, 1")
    if int(opts.get('gray', 0)):
        b(f"s_lshr_b32 s{sS}, s{sR}, 1")
        b(f"s_xor_b32 s{sR}, s{sR}, s{sS}")
    b(f"s_lshl_b32 s{sR}, s{sR}, 2")
    b(f"s_add_u32 s{sR}, s{sR}, s{sT2}")
    b(f"s_and_b32 s{sS}, s{sT0}, 1")
    b(f"s_lshl_b32 s{sS}, s{sS}, 3")
    b(f"s_add_u32 s{sS}, s{sS}, s{sT3}")
    b(f"s_lshl_b32 s{sRho}, s{sT2}, 1")
    b(f"s_add_u32 s{sRho}, s{sRho}, s{sT3}")
    ROT1 = opts.get('rot1', 'two')
    if ROT1 == 'none': b(f"s_mov_b32 s{sRho}, 0")
    if ROT1 == 'half':
        b(f"s_and_b32 s{sRho}, s{sRho}, 1")
        b(f"s_lshl_b32 s{sRho}, s{sRho}, 2")
    if ROT1 == 'two':
        b(f"s_and_b32 s{sRho}, s{sRho}, 3")
        b(f"s_lshl_b32 s{sRho}, s{sRho}, 1")
    b(f"s_and_b32 s{sWm}, s{sWave}, 3")
    b(f"s_lshl_b32 s{sLdsX}, s{sWm}, 12")
    b(f"s_lshl_b32 s{sLdsB}, s{sWm}, 11")
    b(f"s_lshl_b32 s{sHFb}, s{sR}, 2")
    b(f"s_add_u32 s{sHFb}, s{sHFb}, s{sWm}")
    b(f"s_mul_i32 s{sHFb}, s{sHFb}, {176*1024}")
    if int(opts.get('swap', 0)):
        b(f"s_cmp_lt_u32 s{sWave}, 4")
        b("s_cbranch_scc1 L_k1_F")
        b("v_and_b32 v0, 0xff, v0")
    else:
        b(f"s_cmp_ge_u32 s{sWave}, 4")
        b("s_cbranch_scc1 L_k1_F")
    return b

fXe, fXo, fB, fW = 2, 3, 4, 5
fPX, fTA, fTB, fTC, fL16 = 7, 11, 13, 16, 6 + 0
fPX, fTA, fTB, fTC = 8, 12, 14, 16
fPX, fTA, fTB, fTC, fL16 = 8, 12, 16, 18, 7
fE, fD = 20, 28
fS, fAcc = 32, 64

def dma(b, voff, srdn, soff, tok, imm=0):
    o = f" offset:{imm}" if imm else ""
    b(f"buffer_load_dwordx4 v{voff}, {s(srdn,4)}, {soff} offen{o} lds", tok)
def dma_x(b, i):
    b(f"s_add_u32 m0, s{sLdsX}, {(i % NSLOT) * SLOT}")
    for k in range(4):
        dma(b, fXe if k % 2 == 0 else fXo, sX, f"s{sLo+i}", f"x{i}", k * 1024)
def dma_B(b, i):
    b(f"s_add_u32 m0, s{sLdsB}, {(i % NSLOT) * SLOT + 16384}")
    dma(b, fB, sBRE, f"s{sLo+i}", f"B{i}")
    dma(b, fB, sBIM, f"s{sLo+i}", f"B{i}", 1024)
def dma_w(b, q):
    i, hh = q % 8, q // 8
    b(f"s_add_u32 m0, s{sLdsB}, {wblock_lds(q)}")
    if hh:
        b(f"s_add_u32 s{sT0}, s{sWL+i}, 128")
        so = f"s{sT0}"
    else:
        so = f"s{sWL+i}"
    dma(b, fW, sW1, so, f"w{q}")
    dma(b, fW + 1, sW1, so, f"w{q}", 1024)

def chunks_of(ops):
    ch = []; cur = []
    for o in ops:
        cur.append(o)
        if o.kind == 'vmem': ch.append(cur); cur = []
    if cur: ch.append(cur)
    return ch

def k1_F(ffn):
    b = B(); L = vLane
    t = fE
    for i in range(8):
        b(f"s_add_u32 s{sLo+i}, s{sRho}, {i}")
        b(f"s_and_b32 s{sLo+i}, s{sLo+i}, 7")
        b(f"s_lshl_b32 s{sLo+i}, s{sLo+i}, 7")
    b(f"v_and_b32 v{t}, 7, v{L}")
    b(f"v_lshrrev_b32 v{t+1}, 4, v{L}")
    b(f"v_xor_b32 v{t+2}, v{t}, v{t+1}")
    b(f"v_lshlrev_b32 v{t+2}, 4, v{t+2}")
    b(f"v_lshrrev_b32 v{t+3}, 3, v{L}")
    b(f"s_lshl_b32 s{sT0}, s{sR}, 17")
    b(f"s_lshl_b32 s{sT1}, s{sWm}, 15")
    b(f"s_add_u32 s{sT0}, s{sT0}, s{sT1}")
    b(f"v_lshlrev_b32 v{t}, 12, v{t+3}")
    b(f"v_add3_u32 v{fXe}, v{t}, v{t+2}, s{sT0}")
    b(f"v_xor_b32 v{fXo}, 64, v{fXe}")
    b(f"s_and_b32 s{sT0}, s{sWm}, 1")
    b(f"s_lshl_b32 s{sT0}, s{sT0}, 6")
    b(f"v_xor_b32 v{t+1}, s{sT0}, v{t+2}")
    b(f"s_lshl_b32 s{sT0}, s{sWm}, 13")
    b(f"s_lshl_b32 s{sT1}, s{sS}, 15")
    b(f"s_add_u32 s{sT0}, s{sT0}, s{sT1}")
    b(f"v_lshlrev_b32 v{t}, 10, v{t+3}")
    b(f"v_add3_u32 v{fB}, v{t}, v{t+1}, s{sT0}")
    b("s_waitcnt lgkmcnt(0)")
    srd(b, sX, 4, 2048*1024)
    srd(b, sBRE, 10, 512*1024)
    b(f"s_sub_u32 s{sBIM}, s12, 1024")
    b(f"s_subb_u32 s{sBIM+1}, s13, 0")
    b(f"s_mov_b32 s{sBIM+2}, {512*1024 + 1024}")
    b(f"s_mov_b32 s{sBIM+3}, 0x20000")
    if STAMP >= 2: stamp(b, 8)
    INI = int(opts.get('ini', 3))
    for i in range(INI):
        dma_x(b, i); dma_B(b, i)
    if STAMP >= 2: stamp(b, 9)
    srd(b, sHF, 34, WS_USED)
    if ffn:
        srd(b, sW1, 24, 512*3584)
        b(f"v_bfe_u32 v{t+1}, v{L}, 4, 1")
        b(f"v_lshlrev_b32 v{t+1}, 2, v{t+1}")
        b(f"v_and_b32 v{t+3}, 7, v{L}")
        b(f"v_xor_b32 v{t+3}, v{t+3}, v{t+1}")
        b(f"v_lshlrev_b32 v{t+3}, 4, v{t+3}")
        b(f"v_lshrrev_b32 v{t+1}, 3, v{L}")
        b(f"s_lshl_b32 s{sT3}, s{sWm}, 4")
        b(f"v_add_u32 v{t+1}, s{sT3}, v{t+1}")
        b(f"v_mul_u32_u24 v{t+1}, 3584, v{t+1}")
        b(f"v_add_u32 v{fW}, v{t+1}, v{t+3}")
        b(f"v_add_u32 v{fW+1}, {8*3584 - 1024}, v{fW}")
        b(f"s_lshl_b32 s{sT3}, s{sS}, 8")
        for i in range(8):
            b(f"s_mul_i32 s{sWL+i}, s{sLo+i}, 1792")
            b(f"s_add_u32 s{sWL+i}, s{sWL+i}, s{sT3}")
        tr_pattern(b, fTA, 8, t)
        b(f"v_add_u32 v{fTB}, 0x10000, v{fTA}")
        b(f"v_add_u32 v{fTB+1}, 0x10000, v{fTA+1}")
        b(f"v_add_u32 v{fTC}, 0x20000, v{fTA}")
        b(f"v_add_u32 v{fTC+1}, 0x20000, v{fTA+1}")
        b(f"v_lshlrev_b32 v{fL16}, 4, v{L}")
        b(f"v_and_b32 v{t}, 31, v{L}")
        b(f"v_lshrrev_b32 v{t+1}, 5, v{L}")
        b(f"v_bfe_u32 v{t+2}, v{L}, 1, 3")
        b(f"v_xor_b32 v{t+2}, v{t+1}, v{t+2}")
        b(f"v_lshlrev_b32 v{t+1}, 7, v{t}")
        b(f"v_add_u32 v{t+1}, s{sLdsX}, v{t+1}")
        for k in range(4):
            b(f"v_xor_b32 v{t+3}, {2*k}, v{t+2}")
            b(f"v_lshl_add_u32 v{fPX+k}, v{t+3}, 4, v{t+1}")
        b(f"s_mov_b32 s66, {LOG2E ^ 0x80000000:#x}")
        b(f"s_mov_b32 s67, {LOG2E ^ 0x80000000:#x}")
        b(f"s_lshl_b32 s{sU}, s{sS}, 13")
        b(f"s_add_u32 s{sU}, s{sU}, s{sHFb}")
        b(f"s_add_u32 s{sU}, s{sU}, {64*1024}")
    stamp(b, 1)
    for i in range(8):
        if STAMP >= 2: stamp(b, 10 + 2*i)
        b.wait('vm', f"x{i}", f"B{i}")
        b("s_waitcnt lgkmcnt(0)")
        b("s_barrier")
        if STAMP >= 2: stamp(b, 11 + 2*i)
        if ffn:
            po = (i % NSLOT) * SLOT
            if po >= 65536:
                for k in range(4): b(f"v_add_u32 v{fE+k}, 0x10000, v{fPX+k}")
            for k in range(4):
                if po >= 65536: b(f"ds_read_b128 {a(16*i+4*k,4)}, v{fE+k} offset:{po - 65536}")
                else: b(f"ds_read_b128 {a(16*i+4*k,4)}, v{fPX+k} offset:{po}")
        if i == 0 and INI == 2:
            dma_x(b, 2); dma_B(b, 2)
        if i <= 4:
            dma_x(b, i + 3); dma_B(b, i + 3)
        elif ffn:
            for q in {5: (0, 1, 2), 6: (3, 4, 5), 7: (6, 7)}[i]: dma_w(b, q)
        if True:
            if not ffn and i == 5:
                b(f"s_lshl_b32 s{sT0}, s{sR}, 1")
                b(f"s_add_u32 s{sT0}, s{sT0}, s{sS}")
                b(f"s_sub_u32 s{sT0}, s{sT0}, 14")
                b(f"s_lshl_b32 s{sT0}, s{sT0}, 2")
                b(f"s_add_u32 s{sT0}, s{sT0}, s{sWm}")
                b(f"v_lshlrev_b32 v8, 7, v{L}")
                srd(b, sW1, 26, 1792*1024)
                srd(b, sHF, 14, 512*1024)
                srd(b, 76, 16, 512*1024)
                b(f"s_mul_i32 s{sT1}, s{sT0}, 14336")
                b(f"buffer_load_dword v9, v8, {s(sW1,4)}, s{sT1} offen")
                b(f"s_add_u32 s{sT1}, s{sT1}, 8192")
                b(f"buffer_load_dword v10, v8, {s(sW1,4)}, s{sT1} offen")
                b(f"s_lshl_b32 s{sT1}, s{sT0}, 12")
                b(f"buffer_load_dword v11, v8, {s(sHF,4)}, s{sT1} offen")
                b(f"buffer_load_dword v12, v8, {s(76,4)}, s{sT1} offen")
    stamp(b, 2)
    if not ffn:
        b(f"s_lshl_b32 s{sT0}, s{sR}, 1")
        b(f"s_add_u32 s{sT0}, s{sT0}, s{sS}")
        b(f"s_sub_u32 s{sT0}, s{sT0}, 14")
        b(f"s_lshl_b32 s{sT0}, s{sT0}, 2")
        b(f"s_add_u32 s{sT0}, s{sT0}, s{sWm}")
        k1_gjob_all(b)
        return b
    def ffn_phase(hh):
        p = B(); DEPTH = 3
        def lds_loc(n):
            i, k = divmod(n, 4)
            base = wblock_lds(8 * hh + i) + 16 * k * 128
            if base < 65536: return fTA, base
            if base < 131072: return fTB, base - 65536
            return fTC, base - 131072
        plan = {0: [0, 1, 2, 3], int(opts.get('bcn', 12)): [4, 5, 6, 7]} if hh == 0 else {0: list(range(8, 16))}
        def reads(n):
            if n in plan:
                p.wait('vm', *[f"w{q}" for q in plan[n]])
                if hh == 0 and n == 0: p("s_waitcnt lgkmcnt(0)")
                if STAMP >= 2: stamp(p, 26 + (0 if n == 0 else 1) if hh == 0 else 29)
                p("s_barrier")
                if STAMP >= 2 and hh == 0: stamp(p, 30 + (0 if n == 0 else 1))
            base, off = lds_loc(n)
            r = fS + (n % 4) * 8
            for ft in range(2):
                for rd in range(2):
                    p(f"ds_read_b64_tr_b16 {v(r+4*ft+2*rd,2)}, v{base+ft} offset:{off + rd*512}", f"r{hh}_{n}")
        ch = []
        if hh == 0:
            d = B()
            for q in range(8, 16): dma_w(d, q)
            ch = chunks_of(d.ops)
        for n in range(DEPTH): reads(n)
        for n in range(32):
            i, k = divmod(n, 4)
            r = fS + (n % 4) * 8
            p.wait('lg', f"r{hh}_{n}")
            for ft in range(2):
                acc = fAcc + (2*hh + ft) * 16
                c = v(acc, 16) if n else "0"
                p(f"v_mfma_f32_32x32x16_bf16 {v(acc,16)}, {v(r+4*ft,4)}, {a(16*i+4*k,4)}, {c}")
                if ft == 0 and ch: p.ext(ch.pop(0))
            if hh == 0 and n == int(opts.get('bxn', 1)): p("s_barrier")
            if hh == 0 and n == 16 and int(opts.get('cearly', 1)): p("s_barrier")
            if n + DEPTH < 32: reads(n + DEPTH)
        assert not ch
        return p
    if int(opts.get('tseq', 0)):
        DEPTH = int(opts.get('tdepth', 6))
        def loc(g):
            t_, n = divmod(g, 32); i, k = divmod(n, 4)
            base = wblock_lds(8 * (t_ // 2) + i) + 16 * k * 128
            if base < 65536: return fTA + (t_ & 1), base
            if base < 131072: return fTB + (t_ & 1), base - 65536
            return fTC + (t_ & 1), base - 131072
        d = B()
        for q in range(8, 16): dma_w(d, q)
        ch = chunks_of(d.ops)
        tiles = []
        p = B()
        def rd(g):
            if g == 0:
                p.wait('vm', "w0", "w1", "w2", "w3"); p("s_waitcnt lgkmcnt(0)"); p("s_barrier")
            if g == 16:
                p.wait('vm', "w4", "w5", "w6", "w7"); p("s_barrier")
            if g == 64: p("s_barrier")
            base, off = loc(g); r = fS + (g % 8) * 4
            for r_ in range(2):
                p(f"ds_read_b64_tr_b16 {v(r+2*r_,2)}, v{base} offset:{off + r_*512}", f"t{g}")
        for g in range(DEPTH): rd(g)
        for g in range(128):
            t_, n = divmod(g, 32); i, k = divmod(n, 4)
            if n == 0 and t_: tiles.append(p); p = B()
            r = fS + (g % 8) * 4; acc = fAcc + t_ * 16
            if g % 2 == 0: p.wait('lg', f"t{g}", f"t{g+1}")
            p(f"v_mfma_f32_32x32x16_bf16 {v(acc,16)}, {v(r,4)}, {a(16*i+4*k,4)}, {v(acc,16) if n else 0}")
            if ch: p.ext(ch.pop(0))
            if g == int(opts.get('bxn', 3)): p("s_barrier")
            if g == 31: p.wait('vm', *[f"w{q}" for q in range(8, 16)])
            if g + DEPTH < 128: rd(g + DEPTH)
        tiles.append(p)
        PT = int(opts.get('pert', 3))
        b.ext(tiles[0])
        for t_ in range(1, 4):
            b.ext(merge(tiles[t_].ops, k1_silu(t_ - 1, False).ops, per=PT, start=1))
            if t_ == 1: stamp(b, 3)
        stamp(b, 4)
        b.ext(flat(k1_silu(3, True).ops))
        stamp(b, 5)
        return b
    b.ext(ffn_phase(0))
    stamp(b, 3)
    p3 = ffn_phase(1)
    fl = F()
    fl.ext(k1_silu(0, False)); fl.ext(k1_silu(1, False))
    if opts.get('p3mode') == 'nofill':
        b.ext(p3.ops); stamp(b, 6); b.ext(flat(fl.ops))
    elif opts.get('p3mode') == 'nostore':
        fo = [o for o in fl.ops if not (not isinstance(o, list) and o.kind == 'vmem')]
        st_ = [o for o in fl.ops if (not isinstance(o, list) and o.kind == 'vmem')]
        b.ext(merge(p3.ops, fo, per=int(opts.get('per3', 4)), start=1))
    else:
        b.ext(merge(p3.ops, fl.ops, per=int(opts.get('per3', 4)), start=1))
    stamp(b, 4)
    b.ext(flat(k1_silu(2, True).ops))
    b.ext(flat(k1_silu(3, True).ops))
    stamp(b, 5)
    return b

def k1_silu(ft, pk):
    b = F()
    acc = fAcc + ft * 16
    e, d = fE, fD
    for kk in range(2):
        base = acc + 8 * kk
        if pk:
            for q in range(4): b(f"v_pk_mul_f32 {v(e+2*q,2)}, {v(base+2*q,2)}, s[66:67]")
            for q in range(8): b(f"v_exp_f32 v{e+q}, v{e+q}")
            for q in range(4): b(f"v_pk_add_f32 {v(e+2*q,2)}, {v(e+2*q,2)}, 1.0 op_sel_hi:[1,0]")
            for q in range(8): b(f"v_rcp_f32 v{e+q}, v{e+q}")
            for q in range(4): b(f"v_pk_mul_f32 {v(e+2*q,2)}, {v(base+2*q,2)}, {v(e+2*q,2)}")
            for q in range(4): b(f"v_cvt_pk_bf16_f32 v{d+q}, v{e+2*q}, v{e+2*q+1}")
        else:
            seq = []
            for q in range(8):
                seq.append([f"v_mul_f32 v{e+q}, s66, v{base+q}", f"v_exp_f32 v{e+q}, v{e+q}", f"v_add_f32 v{e+q}, 1.0, v{e+q}",
                            f"v_rcp_f32 v{e+q}, v{e+q}", f"v_mul_f32 v{e+q}, v{base+q}, v{e+q}"])
            if opts.get('silu', 'diag') == 'diag':
                for tm in range(8 + 4):
                    for stg in range(5):
                        q = tm - stg
                        if 0 <= q < 8: b(seq[q][stg])
            elif opts.get('silu') == 'block':
                for stg in range(5):
                    for q in range(8): b(seq[q][stg])
            else:
                for tm in range(8 + 8):
                    for stg in range(5):
                        q = tm - 2 * stg
                        if 0 <= q < 8: b(seq[q][stg])
            for q in range(4): b(f"v_cvt_pk_bf16_f32 v{d+q}, v{e+2*q}, v{e+2*q+1}")
        b(f"s_add_u32 s{sK0}, s{sU}, {(2*ft+kk)*1024}")
        b(f"buffer_store_dwordx4 {v(d,4)}, v{fL16}, {s(sHF,4)}, s{sK0} offen {STF}")
    return b

gPX, gPB = 2, 6
vLBa, vImgW, vImgR, vL16o = 10, 11, 12, 13
vL, vC2, vL16, vL32, vL128, vL256, vF1, vG, vHfm = 16, 18, 20, 22, 24, 26, 28, 30, 32
vNon, vK, vQ, vW_, vPre, vTmp = 34, 36, 38, 40, 42, 44
vP = 48
aRE, aIM, vU = 64, 80, 96
aSX, aSB = 0, 16

def k1_S_setup():
    b = B(); L = vLane; t = vP
    b("s_waitcnt lgkmcnt(0)")
    srd(b, sHF, 34, WS_USED)
    b(f"v_and_b32 v{t}, 31, v{L}")
    b(f"s_lshl_b32 s{sT0}, s{sS}, 5")
    b(f"v_add_u32 v{t}, s{sT0}, v{t}")
    b(f"v_lshlrev_b32 v{t}, 1, v{t}")
    b(f"global_load_ushort v{vP+8}, v{t}, s[6:7]")
    b(f"global_load_ushort v{vP+9}, v{t}, s[8:9]")
    b(f"global_load_ushort v{vP+10}, v{t}, s[18:19]")
    if int(opts.get('nearly', 0)):
        b(f"s_or_b32 s{sT0}, s2, s{sWm}")
        b(f"s_cmp_lg_u32 s{sT0}, 0")
        b("s_cbranch_scc1 L_k1_nononce")
        b(f"v_mov_b32 v{t}, {NONCE_OFF}")
        b(f"global_load_dwordx2 {v(vU+26,2)}, v{t}, s[34:35] sc1", 'nocount')
        b("s_waitcnt vmcnt(0)", 'nocount')
        b(f"v_add_u32 v{vU+26}, 1, v{vU+26}")
        b(f"v_or_b32 v{vU+27}, 1, v{vU+27}")
        b(f"v_mov_b32 v{t+1}, 0")
        b(f"global_store_dwordx2 v{t+1}, {v(vU+26,2)}, s[32:33] sc0 sc1", 'nocount')
        b(f"global_store_dwordx2 v{t}, {v(vU+26,2)}, s[34:35] sc0 sc1", 'nocount')
        b("L_k1_nononce:")
    else:
        b(f"v_mov_b32 v{t}, {NONCE_OFF}")
        b(f"global_load_dwordx2 {v(vU+26,2)}, v{t}, s[34:35] sc1")
    if int(opts.get('flgw', 1)):
        b(f"s_mul_i32 s{sT0}, s{sR}, {FLG_STRIDE}")
        b(f"s_add_u32 s{sT0}, s{sT0}, {FLG_OFF}")
        b(f"v_mov_b32 v{t}, s{sT0}")
        b(f"global_load_dword v{vU+10}, v{t}, s[34:35] sc1", 'nocount')
        b(f"s_lshl_b32 s{sT0}, s{sR}, 10")
        b(f"s_add_u32 s{sT0}, s{sT0}, {G_OFF}")
        b(f"v_and_b32 v{t}, 7, v{L}")
        b(f"v_lshlrev_b32 v{t}, 7, v{t}")
        b(f"v_add_u32 v{t}, s{sT0}, v{t}")
        b(f"global_load_dword v{vU+11}, v{t}, s[34:35] sc1", 'nocount')
    if int(opts.get('tlbw', 1)):
        pd = vU + 12
        b(f"s_cmp_eq_u32 s{sWm}, 2")
        b("s_cbranch_scc0 L_k1_tlb_done")
        b(f"v_mov_b32 v{t}, 0")
        for k, ptr in enumerate((24, 14, 16, 26, 20)):
            b(f"global_load_dword v{pd+k}, v{t}, {s(ptr,2)}", 'nocount')
        if int(opts.get('tlbw2', 0)):
            b(f"global_load_dword v{pd+7-8}, v{t}, s[32:33] sc1", 'nocount')
            b(f"v_and_b32 v{t+1}, 7, v{L}")
            b(f"v_lshlrev_b32 v{t+1}, 7, v{t+1}")
            b(f"global_load_dword v{pd+7-9}, v{t+1}, s[28:29]", 'nocount')
        b(f"v_min_u32 v{t}, 19, v{L}")
        b(f"v_lshlrev_b32 v{t}, 20, v{t}")
        b(f"global_load_dword v{pd+5}, v{t}, s[34:35]", 'nocount')
        b(f"v_and_b32 v{t}, 3, v{L}")
        b(f"v_lshlrev_b32 v{t}, 20, v{t}")
        b(f"global_load_dword v{pd+6}, v{t}, s[30:31]", 'nocount')
        b("L_k1_tlb_done:")
    PF = int(opts.get('pf', 0))
    if PF:
        pd = vU + 28
        b(f"s_cmp_eq_u32 s{sWm}, 0")
        b("s_cbranch_scc0 L_k1_pf_1")
        b(f"v_lshrrev_b32 v{t}, 3, v{L}")
        b(f"s_lshl_b32 s{sT2}, s2, 3")
        b(f"v_add_u32 v{t}, s{sT2}, v{t}")
        b(f"v_lshlrev_b32 v{t}, 10, v{t}")
        b(f"v_and_b32 v{t+1}, 7, v{L}")
        b(f"v_max_u32 v{t+1}, 3, v{t+1}")
        b(f"v_lshl_add_u32 v{t}, v{t+1}, 7, v{t}")
        b(f"global_load_dword v{pd}, v{t}, s[4:5]", 'nocount')
        b("L_k1_pf_1:")
        b(f"s_cmp_eq_u32 s{sWm}, 1")
        b("s_cbranch_scc0 L_k1_pf_2")
        b(f"v_bfe_u32 v{t}, v{L}, 3, 1")
        b(f"s_lshl_b32 s{sT2}, s2, 1")
        b(f"v_add_u32 v{t}, s{sT2}, v{t}")
        b(f"v_lshlrev_b32 v{t}, 10, v{t}")
        b(f"v_and_b32 v{t+1}, 7, v{L}")
        b(f"v_max_u32 v{t+1}, 3, v{t+1}")
        b(f"v_lshl_add_u32 v{t}, v{t+1}, 7, v{t}")
        b(f"global_load_dword v{pd}, v{t}, s[10:11]", 'nocount')
        b(f"global_load_dword v{pd+1}, v{t}, s[12:13]", 'nocount')
        b("L_k1_pf_2:")
        b(f"s_cmp_eq_u32 s{sWm}, 2")
        b("s_cbranch_scc0 L_k1_pf_done")
        b(f"v_lshrrev_b32 v{t}, 5, v{L}")
        b(f"s_lshl_b32 s{sT2}, s2, 1")
        b(f"v_add_u32 v{t}, s{sT2}, v{t}")
        b(f"v_mul_u32_u24 v{t}, 3584, v{t}")
        b(f"v_and_b32 v{t+1}, 31, v{L}")
        b(f"v_min_u32 v{t+1}, 27, v{t+1}")
        b(f"v_lshl_add_u32 v{t}, v{t+1}, 7, v{t}")
        b(f"global_load_dword v{pd}, v{t}, s[24:25]", 'nocount')
        b("L_k1_pf_done:")
    b(f"v_and_b32 v{t}, 31, v{L}")
    b(f"v_lshrrev_b32 v{t+1}, 5, v{L}")
    b(f"v_bfe_u32 v{t+2}, v{L}, 1, 3")
    b(f"v_xor_b32 v{t+2}, v{t+1}, v{t+2}")
    b(f"v_lshlrev_b32 v{t+1}, 7, v{t}")
    b(f"v_add_u32 v{t+1}, s{sLdsX}, v{t+1}")
    b(f"v_lshrrev_b32 v{t+3}, 3, v{t}")
    b(f"v_lshlrev_b32 v{t+3}, 11, v{t+3}")
    b(f"v_and_b32 v{t}, 7, v{t}")
    b(f"v_lshl_add_u32 v{t}, v{t}, 7, v{t+3}")
    b(f"v_add_u32 v{t}, 16384, v{t}")
    for k in range(4):
        b(f"v_xor_b32 v{t+3}, {2*k}, v{t+2}")
        b(f"v_lshl_add_u32 v{gPX+k}, v{t+3}, 4, v{t+1}")
        b(f"v_lshl_add_u32 v{gPB+k}, v{t+3}, 4, v{t}")
    return b

def k1_params():
    b = F()
    lre, lim, ldt = vP+8, vP+9, vP+10
    va, vang, t0 = vP, vP+1, vP+2
    b(f"v_lshlrev_b32 v{lre}, 16, v{lre}")
    b(f"v_lshlrev_b32 v{lim}, 16, v{lim}")
    b(f"v_lshlrev_b32 v{ldt}, 16, v{ldt}")
    b(f"v_mul_f32 v{ldt}, {LOG2E:#x}, v{ldt}")
    b(f"v_exp_f32 v{ldt}, v{ldt}")
    b(f"v_cvt_pk_bf16_f32 v{ldt}, v{ldt}, v{ldt}")
    b(f"v_lshlrev_b32 v{ldt}, 16, v{ldt}")
    b(f"v_mul_f32 v{va}, v{ldt}, v{lre}")
    b(f"v_mul_f32 v{vang}, v{ldt}, v{lim}")
    b(f"v_mul_f32 v{va}, {LOG2E:#x}, v{va}")
    b(f"v_mul_f32 v{vang}, {INV2PI:#x}, v{vang}")
    cexp(b, vL, "1.0", va, vang, t0)
    for dst, cst in ((vL16, 0x41800000), (vL32, 0x42000000), (vL128, 0x43000000), (vL256, 0x43800000)):
        b(f"v_mov_b32 v{t0+3}, {cst:#x}")
        cexp(b, dst, f"v{t0+3}", va, vang, t0)
    b(f"v_lshrrev_b32 v{t0+3}, 5, v{vLane}")
    b(f"v_cvt_f32_u32 v{vHfm}, v{t0+3}")
    b(f"v_lshlrev_b32 v{t0+3}, 4, v{t0+3}")
    b(f"v_cvt_f32_u32 v{t0+3}, v{t0+3}")
    cexp(b, vF1, f"v{t0+3}", va, vang, t0)
    b(f"v_lshrrev_b32 v{t0+3}, 5, v{vLane}")
    b(f"v_lshlrev_b32 v{t0+3}, 4, v{t0+3}")
    b(f"s_lshl_b32 s{sSpin}, s{sWm}, 5")
    b(f"v_add_u32 v{t0+3}, s{sSpin}, v{t0+3}")
    b(f"v_cvt_f32_u32 v{t0+3}, v{t0+3}")
    cexp(b, vG, f"v{t0+3}", va, vang, t0)
    b(f"v_add_f32 v{t0}, -1.0, v{vL}")
    b(f"v_mul_f32 v{t0+1}, v{lre}, v{lre}")
    b(f"v_fma_f32 v{t0+1}, v{lim}, v{lim}, v{t0+1}")
    b(f"v_rcp_f32 v{t0+1}, v{t0+1}")
    b(f"v_mul_f32 v{vC2}, v{t0}, v{lre}")
    b(f"v_fma_f32 v{vC2}, v{vL+1}, v{lim}, v{vC2}")
    b(f"v_mul_f32 v{vC2+1}, v{vL+1}, v{lre}")
    b(f"v_fma_f32 v{vC2+1}, -v{t0}, v{lim}, v{vC2+1}")
    b(f"v_add_f32 v{t0+1}, v{t0+1}, v{t0+1}")
    b(f"v_mul_f32 v{vC2}, v{vC2}, v{t0+1}")
    b(f"v_mul_f32 v{vC2+1}, v{vC2+1}, v{t0+1}")
    return b

def k1_setup_common():
    b = F(); t = vP + 12; L = vLane
    for k, m in ((1, sM1), (2, sM2), (3, sM3)):
        g = B()
        g(f"s_cmp_ge_u32 s{sWm}, {k}")
        g(f"s_cselect_b64 {s(m,2)}, -1, 0")
        b.group(g)
    b(f"v_lshlrev_b32 v{vL16o}, 4, v{L}")
    b(f"v_and_b32 v{t}, 31, v{L}")
    b(f"v_lshlrev_b32 v{t}, 4, v{t}")
    b(f"s_lshl_b32 s{sK0}, s{sS}, 9")
    b(f"s_add_u32 s{sK0}, s{sK0}, {E_OFF}")
    b(f"v_add_u32 v{vLBa}, s{sK0}, v{t}")
    b(f"v_and_b32 v{t}, 31, v{L}")
    b(f"v_mul_u32_u24 v{t}, 80, v{t}")
    b(f"v_lshrrev_b32 v{t+1}, 5, v{L}")
    b(f"v_lshl_add_u32 v{t}, v{t+1}, 5, v{t}")
    b(f"s_mul_i32 s{sK0}, s{sWm}, 5120")
    b(f"s_add_u32 s{sK0}, s{sK0}, {SCR}")
    b(f"v_add_u32 v{vImgW}, s{sK0}, v{t}")
    b(f"v_lshrrev_b32 v{t+1}, 5, v{L}")
    b(f"v_lshlrev_b32 v{t+1}, 3, v{t+1}")
    b(f"v_bfe_u32 v{t+2}, v{L}, 2, 2")
    b(f"v_add_u32 v{t+1}, v{t+1}, v{t+2}")
    b(f"v_mul_u32_u24 v{t+1}, 80, v{t+1}")
    b(f"v_and_b32 v{t+2}, 1, v{L}")
    b(f"v_lshlrev_b32 v{t+2}, 5, v{t+2}")
    b(f"v_bfe_u32 v{t+3}, v{L}, 4, 1")
    b(f"v_lshlrev_b32 v{t+3}, 4, v{t+3}")
    b(f"v_add3_u32 v{t+1}, v{t+1}, v{t+2}, v{t+3}")
    b(f"v_bfe_u32 v{t+2}, v{L}, 1, 1")
    b(f"v_lshlrev_b32 v{t+2}, 3, v{t+2}")
    b(f"v_add3_u32 v{vImgR}, v{t+1}, v{t+2}, s{sK0}")
    return b

def k1_gjob_all(b):
    L = vLane
    xs0, gs, gu, t, w = 32, 112, 16, 120, 96
    b(f"v_and_b32 v{t}, 31, v{L}")
    b(f"v_lshlrev_b32 v{t}, 4, v{t}")
    b(f"global_load_dwordx4 {v(gs,4)}, v{t}, s[28:29]")
    b(f"global_load_dwordx4 {v(gs+4,4)}, v{t}, s[28:29] offset:512")
    b(f"v_lshrrev_b32 v{t+1}, 5, v{L}")
    b(f"s_lshl_b32 s{sT1}, s{sT0}, 4")
    b(f"v_add_u32 v{t+1}, s{sT1}, v{t+1}")
    b(f"v_lshlrev_b32 v{t+2}, 3, v{t+1}")
    b(f"v_add_u32 v{t+2}, {G_OFF}, v{t+2}")
    b(f"v_lshlrev_b32 v{t+1}, 10, v{t+1}")
    b(f"v_add_u32 v{t+1}, v{t+1}, v{t}")
    for p in range(8):
        r = xs0 + p * 8
        if p: b(f"v_add_u32 v{t+1}, 2048, v{t+1}")
        b(f"global_load_dwordx4 {v(r,4)}, v{t+1}, s[4:5]")
        b(f"global_load_dwordx4 {v(r+4,4)}, v{t+1}, s[4:5] offset:512")
    for _ in range(5 if int(opts.get('cearly', 1)) else 4): b("s_barrier")
    for k in range(8):
        b(f"v_lshlrev_b32 v{gu+2*k}, 16, v{gs+k}")
        b(f"v_and_b32 v{gu+2*k+1}, 0xffff0000, v{gs+k}")
    b(f"v_and_b32 v{t+3}, 31, v{L}")
    for p in range(8):
        xs = xs0 + p * 8
        acc = w
        for k in range(8):
            a0 = w + 2 + 2 * (k % 4)
            b(f"v_lshlrev_b32 v{a0}, 16, v{xs+k}")
            b(f"v_and_b32 v{a0+1}, 0xffff0000, v{xs+k}")
            b(f"v_pk_mul_f32 {v(a0,2)}, {v(a0,2)}, {v(gu+2*k,2)}")
            b(f"v_cvt_pk_bf16_f32 v{a0}, v{a0}, v{a0+1}")
            b(f"v_and_b32 v{a0+1}, 0xffff0000, v{a0}")
            b(f"v_lshlrev_b32 v{a0}, 16, v{a0}")
            if k == 0:
                b(f"v_add_f32 v{acc}, v{a0}, v{a0+1}")
            else:
                b(f"v_add_f32 v{a0}, v{a0}, v{a0+1}")
                b(f"v_add_f32 v{acc}, v{acc}, v{a0}")
        for r in (8, 4, 2, 1):
            b(f"v_add_f32_dpp v{acc}, v{acc}, v{acc} row_ror:{r} row_mask:0xf bank_mask:0xf")
        b(f"v_mov_b32 v{acc+1}, v{acc}")
        b(f"v_permlane16_swap_b32 v{acc}, v{acc+1}")
        b(f"v_add_f32 v{acc}, v{acc}, v{acc+1}")
        b(f"v_cvt_pk_bf16_f32 v{acc}, v{acc}, v{acc}")
        b(f"v_lshlrev_b32 v{acc}, 16, v{acc}")
        b(f"v_mul_f32 v{acc}, {LOG2E ^ 0x80000000:#x}, v{acc}")
        b(f"v_exp_f32 v{acc}, v{acc}")
        b(f"v_add_f32 v{acc}, 1.0, v{acc}")
        b(f"v_rcp_f32 v{acc}, v{acc}")
        b(f"v_cvt_pk_bf16_f32 v{acc}, v{acc}, v{acc}")
        d = xs
        b(f"v_lshlrev_b32 v{d}, 16, v{acc}")
        b(f"v_sub_f32 v{d+1}, 1.0, v{d}")
        b(f"v_cvt_pk_bf16_f32 v{d+1}, v{d+1}, v{d+1}")
        b(f"v_lshlrev_b32 v{d+1}, 16, v{d+1}")
    b(f"v_cmp_eq_u32 vcc, 0, v{t+3}")
    b(f"s_and_saveexec_b64 {s(sEX,2)}, vcc")
    for p in range(8):
        b(f"global_store_dwordx2 v{t+2}, {v(xs0+8*p,2)}, s[34:35] offset:{16*p} sc0 sc1")
    b(f"s_mov_b64 exec, {s(sEX,2)}")

def k1_nonce():
    b = F()
    t = vU + 26
    b(f"v_add_u32 v{t}, 1, v{t}")
    b(f"v_or_b32 v{t+1}, 1, v{t+1}")
    b(f"v_mov_b32 v{t+2}, {NONCE_OFF}")
    b(f"v_mov_b32 v{t+3}, 0")
    g = B()
    g(f"s_or_b32 s{sSpin}, s2, s{sWm}")
    g(f"s_cmp_lg_u32 s{sSpin}, 0")
    g("s_cbranch_scc1 L_k1_nononce")
    g(f"global_store_dwordx2 v{t+2}, {v(t,2)}, s[34:35] sc0 sc1", 'nocount')
    g(f"global_store_dwordx2 v{t+3}, {v(t,2)}, s[32:33] sc0 sc1", 'nocount')
    g("L_k1_nononce:")
    b.group(g)
    return b

def k1_S():
    b = k1_S_setup()
    if int(opts.get('sprio', 1)): b("s_setprio 2")
    m = B()
    for i in range(8):
        m("s_waitcnt lgkmcnt(0)")
        m("s_barrier")
        po = (i % NSLOT) * SLOT
        hi = po >= 65536 - 1024
        if hi:
            for k in range(4):
                m(f"v_add_u32 v{vTmp+k}, 0x10000, v{gPX+k}")
        for k in range(4):
            if hi: m(f"ds_read_b128 {a(aSX+4*k,4)}, v{vTmp+k} offset:{po - 65536}")
            else: m(f"ds_read_b128 {a(aSX+4*k,4)}, v{gPX+k} offset:{po}")
        if hi:
            for k in range(4):
                m(f"v_add_u32 v{vTmp+k}, 0x10000, v{gPB+k}")
        for k in range(4):
            for mm in range(2):
                if hi: m(f"ds_read_b128 {a(aSB+8*k+4*mm,4)}, v{vTmp+k} offset:{po - 65536 + mm*1024}")
                else: m(f"ds_read_b128 {a(aSB+8*k+4*mm,4)}, v{gPB+k} offset:{po + mm*1024}")
        for k in range(4):
            for mm, acc in ((0, aRE), (1, aIM)):
                c = v(acc, 16) if (i, k) != (0, 0) else "0"
                m(f"v_mfma_f32_32x32x16_bf16 {v(acc,16)}, {a(aSX+4*k,4)}, {a(aSB+8*k+4*mm,4)}, {c}")
    f = F()
    if not int(opts.get('nearly', 0)): f.ext(k1_nonce())
    if int(opts.get('pfw', 0)):
        g = B(); t = vP + 12
        g(f"s_cmp_eq_u32 s{sWm}, {int(opts.get('pfww', 1))}")
        g("s_cbranch_scc0 L_k1_pfw_done")
        g(f"v_lshrrev_b32 v{t}, 5, v{vLane}")
        g(f"s_lshl_b32 s{sSpin}, s2, 1")
        g(f"v_add_u32 v{t}, s{sSpin}, v{t}")
        g(f"v_mul_u32_u24 v{t}, 3584, v{t}")
        g(f"v_and_b32 v{t+1}, 31, v{vLane}")
        g(f"v_min_u32 v{t+1}, 27, v{t+1}")
        g(f"v_lshl_add_u32 v{t}, v{t+1}, 7, v{t}")
        g(f"global_load_dword v{vU+9}, v{t}, s[24:25]", 'nocount')
        g("L_k1_pfw_done:")
        f.group(g)
    f.ext(k1_params())
    f.ext(k1_setup_common())
    g = B()
    g(f"v_mov_b32 v{vTmp}, 0")
    g(f"global_load_dwordx2 {v(vNon,2)}, v{vTmp}, s[32:33] sc1")
    f.group(g)
    b.ext(merge(m.ops, f.ops, per=int(opts.get('per1', 5))))
    b("s_waitcnt vmcnt(0)")
    stamp(b, 2)
    s1 = flat(k1_scan1a().ops)
    cut = [j for j, o in enumerate(s1) if o.kind == 'ds'][0]
    if STAMP >= 2: stamp(b, 8)
    if int(opts.get('hb8', 1)):
        b.ext(s1[:cut])
        if STAMP >= 2: stamp(b, 9)
        b("s_barrier")
        b.ext(s1[cut:])
    else:
        b("s_barrier")
        b.ext(s1)
    if STAMP >= 2: stamp(b, 11)
    b("s_barrier")
    if STAMP >= 2: stamp(b, 12)
    b.ext(flat(k1_scan1b().ops))
    if STAMP >= 2: stamp(b, 13)
    b.ext(k1_publish())
    stamp(b, 3)
    b("s_barrier")
    b.ext(p2_S_csetup())
    if opts.get('lbfirst', '0') == '1':
        b("s_barrier")
        stamp(b, 4)
        b.ext(k1_lookback())
        stamp(b, 5)
        b.ext(k1_final())
        b.ext(p2_S_cdma())
        b.ext(p2_S_creads())
    elif CEARLY:
        b("s_barrier")
        b.ext(p2_S_cdma((0,)))
        b("s_barrier")
        if int(opts.get('lbmid', 0)):
            stamp(b, 4)
            b.ext(k1_lookback(p2_S_cdma((1,)), 8))
        else:
            b.ext(p2_S_cdma((1,)))
            stamp(b, 4)
            b.ext(k1_lookback())
        stamp(b, 5)
        b.ext(k1_final())
        b.ext(p2_S_creads())
        stamp(b, 6)
        return b
    else:
        b("s_barrier")
        b.ext(p2_S_cdma())
        stamp(b, 4)
        b.ext(k1_lookback())
        stamp(b, 5)
        b.ext(k1_final())
        b.ext(p2_S_creads())
    stamp(b, 6)
    return b

def cfma_sr(b, d, l, h, ure, uim, tmp):
    b(f"v_fma_f32 v{tmp}, v{l}, v{h}, v{ure}")
    b(f"v_fma_f32 v{tmp+1}, v{l}, v{h+1}, v{uim}")
    b(f"v_fma_f32 v{d}, -v{l+1}, v{h+1}, v{tmp}")
    b(f"v_fma_f32 v{d+1}, v{l+1}, v{h}, v{tmp+1}")

def k1_scan1a():
    b = F()
    tmp = vTmp
    R = lambda t: aRE + reg_of_t(t)
    I = lambda t: aIM + reg_of_t(t)
    b(f"v_mov_b32 v{vQ}, v{R(0)}\nv_mov_b32 v{vQ+1}, v{I(0)}")
    cur = vQ
    for t in range(1, 16):
        nxt = vQ if cur == vW_ else vW_
        cfma_sr(b, nxt, vL, cur, R(t), I(t), tmp)
        cur = nxt
    assert cur == vW_
    b(f"v_mov_b32 v{vPre}, v{cur}\nv_mov_b32 v{vPre+1}, v{cur+1}")
    b(f"v_mov_b32 v{vQ}, v{cur}\nv_mov_b32 v{vQ+1}, v{cur+1}")
    b(f"v_permlane32_swap_b32 v{vPre}, v{vQ}")
    b(f"v_permlane32_swap_b32 v{vPre+1}, v{vQ+1}")
    cfma_s(b, vW_, vL16, vPre, vQ, tmp)
    b(f"v_mul_f32 v{vPre}, v{vPre}, v{vHfm}\nv_mul_f32 v{vPre+1}, v{vPre+1}, v{vHfm}")
    t = vP
    b(f"v_and_b32 v{t+14}, 31, v{vLane}")
    b(f"v_lshlrev_b32 v{t+14}, 3, v{t+14}")
    b(f"v_add_u32 v{t+14}, {SCR}, v{t+14}")
    b(f"s_lshl_b32 s{sK0}, s{sWm}, 8")
    b(f"v_add_u32 v{t+15}, s{sK0}, v{t+14}")
    b(f"ds_write_b64 v{t+15}, {v(vW_,2)} offset:{SC}", "Wx")
    b.wait('lg', "Wx")
    return b

def k1_scan1b():
    b = F()
    t = vP; tmp = vTmp
    for w in range(4):
        b(f"ds_read_b64 {v(t+2*w,2)}, v{t+14} offset:{SC + 256*w}")
    W0, W1, W2, W3 = t, t+2, t+4, t+6
    Q2, Q3 = t+8, t+10
    cfma_s(b, Q2, vL32, W0, W1, tmp)
    cfma_s(b, Q3, vL32, Q2, W2, tmp)
    E = t + 12
    cfma_s(b, E, vL32, Q3, W3, tmp)
    for h in range(2):
        b(f"v_cndmask_b32 v{vQ+h}, 0, v{W0+h}, {s(sM1,2)}")
        b(f"v_cndmask_b32 v{vQ+h}, v{vQ+h}, v{Q2+h}, {s(sM2,2)}")
        b(f"v_cndmask_b32 v{vQ+h}, v{vQ+h}, v{Q3+h}, {s(sM3,2)}")
    cfma_s(b, vK, vF1, vQ, vPre, tmp)
    return b

def k1_publish():
    t = vP; E = t + 12; tmp = vTmp
    g = B()
    g(f"s_lshl_b32 s{sK0}, s{sR}, 13")
    g(f"v_add_u32 v{tmp}, s{sK0}, v{vLBa}")
    g(f"v_lshrrev_b32 v{tmp+1}, 3, v{vLane}")
    g(f"v_cmp_ne_u32 vcc, 0, v{vNon+1}")
    g("s_cbranch_vccnz L_k1_nonce_ok")
    g(f"s_mov_b32 s{sSpin}, 0")
    g("L_k1_nonce_retry:")
    g(f"v_mov_b32 v{tmp+2}, 0")
    g(f"global_load_dwordx2 {v(vNon,2)}, v{tmp+2}, s[32:33] sc1", 'nocount')
    g("s_waitcnt vmcnt(0)", 'nocount')
    g(f"s_add_u32 s{sSpin}, s{sSpin}, 1")
    g(f"s_cmp_gt_u32 s{sSpin}, 40000")
    g("s_cbranch_scc1 L_k1_nonce_ok")
    g(f"v_cmp_ne_u32 vcc, 0, v{vNon+1}")
    g("s_cbranch_vccz L_k1_nonce_retry")
    g("L_k1_nonce_ok:")
    g(f"v_mov_b32 v{E+2}, v{vNon}\nv_mov_b32 v{E+3}, v{vNon+1}")
    g(f"v_cmp_eq_u32 vcc, s{sWm}, v{tmp+1}")
    g(f"s_and_saveexec_b64 {s(sEX,2)}, vcc")
    g(f"global_store_dwordx4 v{tmp}, {v(E,4)}, s[34:35] sc0 sc1")
    g(f"s_mov_b64 exec, {s(sEX,2)}")
    return g

def k1_lookback(mid=None, nmid=0):
    b = B(); tmp = vTmp; t = vP
    H = vW_
    def loads(tok):
        b(f"s_sub_u32 s{sK0}, s{sR}, 1")
        b(f"s_lshl_b32 s{sK0}, s{sK0}, 13")
        b(f"v_lshrrev_b32 v{t}, 5, v{vLane}")
        b(f"v_lshlrev_b32 v{t}, 13, v{t}")
        b(f"v_sub_u32 v{t}, s{sK0}, v{t}")
        b(f"v_add_u32 v{t}, v{vLBa}, v{t}")
        for mm in range(8):
            if mm: b(f"v_subrev_u32 v{t}, 16384, v{t}")
            b(f"v_max_i32 v{t+1}, v{t}, v{vLBa}")
            b(f"global_load_dwordx4 {v(vU+4*mm,4)}, v{t+1}, s[34:35] sc1", tok)
    if mid is not None:
        b(f"s_mov_b32 s{sSpin}, 0")
        loads('nocount')
        b.ext(mid)
        b(f"s_waitcnt vmcnt({nmid})", 'nocount')
        b(f"s_cmp_eq_u32 s{sR}, 0")
        b("s_cbranch_scc1 L_k1_lb_zero")
        b("s_branch L_k1_lb_first")
        b("L_k1_lb_again:")
        loads('nocount')
        b("s_waitcnt vmcnt(0)", 'nocount')
        b("L_k1_lb_first:")
    else:
        b(f"s_cmp_eq_u32 s{sR}, 0")
        b("s_cbranch_scc1 L_k1_lb_zero")
        b(f"s_mov_b32 s{sSpin}, 0")
        b("L_k1_lb_again:")
        loads('nocount')
        b("s_waitcnt vmcnt(0)", 'nocount')
    b(f"s_mov_b64 {s(sEX,2)}, -1")
    for mm in range(8):
        b(f"s_cmp_le_u32 s{sR}, {2*mm}")
        b("s_cbranch_scc1 L_k1_lb_checked")
        b(f"s_cmp_ge_u32 s{sR}, {2*mm+2}")
        b(f"s_cselect_b32 s{sT1}, 0, -1")
        b(f"v_cmp_eq_u32 vcc, v{vU+4*mm+2}, v{vNon}")
        b(f"v_cmp_eq_u32 {s(sT2,2)}, v{vU+4*mm+3}, v{vNon+1}")
        b(f"s_and_b64 vcc, vcc, {s(sT2,2)}")
        b(f"s_or_b32 vcc_hi, vcc_hi, s{sT1}")
        b(f"s_and_b64 {s(sEX,2)}, {s(sEX,2)}, vcc")
    b("L_k1_lb_checked:")
    b(f"s_cmp_eq_u64 {s(sEX,2)}, -1")
    b("s_cbranch_scc1 L_k1_lb_ok")
    b(f"s_add_u32 s{sSpin}, s{sSpin}, 1")
    b(f"s_cmp_gt_u32 s{sSpin}, 40000")
    b("s_cbranch_scc1 L_k1_lb_ok")
    b(f"s_sleep {int(opts.get('lbsleep', 4))}")
    b("s_branch L_k1_lb_again")
    b("L_k1_lb_ok:")
    b(f"v_mov_b32 v{H}, 0\nv_mov_b32 v{H+1}, 0")
    for mm in range(7, -1, -1):
        b(f"s_cmp_le_u32 s{sR}, {2*mm}")
        b(f"s_cbranch_scc1 L_k1_lb_h{mm}")
        b(f"s_cmp_ge_u32 s{sR}, {2*mm+2}")
        b(f"s_cselect_b32 s{sT3}, -1, 0")
        b(f"s_mov_b32 s{sT2}, -1")
        b(f"v_cndmask_b32 v{vU+4*mm}, 0, v{vU+4*mm}, {s(sT2,2)}")
        b(f"v_cndmask_b32 v{vU+4*mm+1}, 0, v{vU+4*mm+1}, {s(sT2,2)}")
        b(f"v_fma_f32 v{tmp}, v{vL256}, v{H}, v{vU+4*mm}")
        b(f"v_fma_f32 v{tmp+1}, v{vL256}, v{H+1}, v{vU+4*mm+1}")
        b(f"v_fma_f32 v{tmp}, -v{vL256+1}, v{H+1}, v{tmp}")
        b(f"v_fma_f32 v{H+1}, v{vL256+1}, v{H}, v{tmp+1}")
        b(f"v_mov_b32 v{H}, v{tmp}")
        b(f"L_k1_lb_h{mm}:")
    b(f"v_mov_b32 v{vPre}, v{H}\nv_mov_b32 v{vPre+1}, v{H+1}")
    b(f"v_permlane32_swap_b32 v{H}, v{vPre}")
    b(f"v_permlane32_swap_b32 v{H+1}, v{vPre+1}")
    cfma_s(b, t, vL128, vPre, H, tmp)
    cfma_s(b, vQ, vG, t, vK, tmp)
    b("s_branch L_k1_lb_done")
    b("L_k1_lb_zero:")
    b(f"v_mov_b32 v{vQ}, v{vK}\nv_mov_b32 v{vQ+1}, v{vK+1}")
    b("L_k1_lb_done:")
    return b

def k1_final():
    b = B()
    tmp = vTmp
    prev = vQ
    for t in range(16):
        r = reg_of_t(t)
        u = vU + 2 * r
        cfma_sr(b, u, vL, prev, aRE + r, aIM + r, tmp)
        prev = u
    for r in range(16):
        u = vU + 2 * r
        tp = vP + 2 * (r % 4)
        b(f"v_mul_f32 v{tp}, v{vC2}, v{u}")
        b(f"v_mul_f32 v{tp+1}, v{vC2+1}, v{u}")
        b(f"v_fma_f32 v{u}, -v{vC2+1}, v{u+1}, v{tp}")
        b(f"v_fma_f32 v{u+1}, v{vC2}, v{u+1}, v{tp+1}")
    for k in range(8):
        b(f"v_cvt_pk_bf16_f32 v{aRE+k}, v{vU+4*k}, v{vU+4*k+2}")
    for h in range(2):
        b(f"ds_write_b128 v{vImgW}, {v(aRE+4*h,4)} offset:{IMG + h*16}", "img")
    for k in range(8):
        b(f"v_cvt_pk_bf16_f32 v{aRE+8+k}, -v{vU+4*k+1}, -v{vU+4*k+3}")
    for h in range(2):
        b(f"ds_write_b128 v{vImgW}, {v(aRE+8+4*h,4)} offset:{IMG + 2560 + h*16}", "img")
    b(f"s_lshl_b32 s{sT2}, s{sS}, 12")
    b(f"s_add_u32 s{sT1}, s{sHFb}, s{sT2}")
    b.wait('lg', "img")
    for m in range(2):
        for kk in range(2):
            r = aIM + (2*m + kk) * 4
            for rd in range(2):
                b(f"ds_read_b64_tr_b16 {v(r+2*rd,2)}, v{vImgR} offset:{IMG + (m*32 + 16*kk + 4*rd)*80}")
    for m in range(2):
        for kk in range(2):
            r = aIM + (2*m + kk) * 4
            b(f"s_add_u32 s{sT2}, s{sT1}, {(2*m+kk)*1024}")
            b(f"buffer_store_dwordx4 {v(r,4)}, v{vL16o}, {s(sHF,4)}, s{sT2} offen {STF}")
    return b


pA, pC1, pC2 = 36, 40, 44
pH, pN, pK0, pLw, pOff = 72, 73, 74, 75, 76
pNib = 84
CST = 98304
CEARLY = int(opts.get('cearly', 1))
CM = 32768 if CEARLY else 8192
vCe, vCo, vPp = 2, 3, 4
vH0g, vH1g, vH0k, vH1k = 2, 3, 4, 5
vTau, vSg, vSk = 8, 10, 12
vWrq = 16
PITCH = 256

def p2_ids(b):
    b(f"s_lshr_b32 s{pH}, s{sS}, 3")
    b(f"s_and_b32 s{pN}, s{sS}, 7")

def p2_S_csetup():
    b = B(); L = vLane; t = vP
    p2_ids(b)
    srd(b, pC1, 14, 512*1024)
    srd(b, pC2, 16, 512*1024)
    b(f"v_and_b32 v{t}, 7, v{L}")
    b(f"v_lshrrev_b32 v{t+1}, 4, v{L}")
    b(f"v_xor_b32 v{t}, v{t}, v{t+1}")
    b(f"v_lshlrev_b32 v{t}, 4, v{t}")
    b(f"v_lshrrev_b32 v{t+1}, 3, v{L}")
    b(f"v_lshlrev_b32 v{t+1}, 10, v{t+1}")
    b(f"v_add_u32 v{vCe}, v{t}, v{t+1}")
    b(f"v_xor_b32 v{vCo}, 64, v{vCe}")
    b(f"s_lshl_b32 s{pOff}, s{pN}, 16")
    b(f"s_lshl_b32 s{sT0}, s{pH}, 9")
    b(f"s_add_u32 s{pOff}, s{pOff}, s{sT0}")
    b(f"s_lshl_b32 s{sT0}, s{sWm}, 7")
    b(f"s_add_u32 s{pOff}, s{pOff}, s{sT0}")
    b(f"s_lshl_b32 s{pLw}, s{sWm}, {13 if CEARLY else 14}")
    b(f"s_add_u32 s{pLw}, s{pLw}, {CST}")
    b(f"v_and_b32 v{t}, 31, v{L}")
    b(f"v_lshlrev_b32 v{t}, 7, v{t}")
    b(f"v_add_u32 v{t}, s{pLw}, v{t}")
    b(f"v_lshrrev_b32 v{t+1}, 5, v{L}")
    b(f"v_bfe_u32 v{t+2}, v{L}, 1, 3")
    b(f"v_xor_b32 v{t+2}, v{t+1}, v{t+2}")
    for k in range(4):
        b(f"v_xor_b32 v{t+1}, {2*k}, v{t+2}")
        b(f"v_lshl_add_u32 v{vPp+k}, v{t+1}, 4, v{t}")
    return b

def p2_S_cdma(ms=(0, 1)):
    b = B()
    for m in ms:
        for aa in range(8):
            b(f"s_add_u32 m0, s{pLw}, {m*CM + aa*1024}")
            b(f"s_add_u32 s{sT0}, s{pOff}, {aa*8192}")
            b(f"buffer_load_dwordx4 v{vCe if aa % 2 == 0 else vCo}, {s(pC1 if m == 0 else pC2,4)}, s{sT0} offen lds", "cst")
    return b

ROT2 = int(opts.get('rot2', 0))
pKS = 48
def p2_S_creads():
    b = B()
    if not ROT2:
        b.wait('vm', "cst")
        for j in range(8):
            m = (j >> 1) & 1; ksp = 2 * (j >> 2) + (j & 1)
            for aa in range(2):
                b(f"ds_read_b128 {a(8*j+4*aa,4)}, v{vPp+ksp} offset:{m*CM + aa*4096}")
        for j in range(8): b(f"s_mov_b32 s{pKS+j}, {j*1024}")
        return b
    t = vP; L = vLane
    b(f"v_and_b32 v{t}, 31, v{L}")
    b(f"v_lshlrev_b32 v{t}, 7, v{t}")
    b(f"v_add_u32 v{t}, s{pLw}, v{t}")
    b(f"v_lshrrev_b32 v{t+1}, 5, v{L}")
    b(f"v_bfe_u32 v{t+2}, v{L}, 1, 3")
    b(f"v_xor_b32 v{t+1}, v{t+1}, v{t+2}")
    b.wait('vm', "cst")
    for j in range(8):
        b(f"s_add_u32 s{sT0}, s{pN}, {j}")
        b(f"s_and_b32 s{sT0}, s{sT0}, 7")
        b(f"s_lshl_b32 s{pKS+j}, s{sT0}, 10")
        b(f"s_lshr_b32 s{sT1}, s{sT0}, 2")
        b(f"s_lshl_b32 s{sT1}, s{sT1}, 1")
        b(f"s_and_b32 s{sT2}, s{sT0}, 1")
        b(f"s_add_u32 s{sT1}, s{sT1}, s{sT2}")
        b(f"s_lshl_b32 s{sT1}, s{sT1}, 1")
        b(f"s_bfe_u32 s{sT2}, s{sT0}, 0x10001")
        b(f"s_lshl_b32 s{sT2}, s{sT2}, {15 if CEARLY else 13}")
        tt = t + 4 + (j % 4)
        b(f"v_xor_b32 v{tt}, s{sT1}, v{t+1}")
        b(f"v_lshl_add_u32 v{tt}, v{tt}, 4, v{t}")
        b(f"v_add_u32 v{tt}, s{sT2}, v{tt}")
        for aa in range(2):
            b(f"ds_read_b128 {a(8*j+4*aa,4)}, v{tt} offset:{aa*4096}")
    return b

def p2_common(b, role):
    L = vLane
    srd(b, pA, 34, WS_USED)
    b(f"s_xor_b32 s{sT0}, s{pH}, 1")
    b(f"s_lshl_b32 s{sT0}, s{sT0}, 1")
    b(f"s_lshl_b32 s{sT1}, s{sR}, 2")
    b(f"s_add_u32 s{sT0}, s{sT0}, s{sT1}")
    b(f"s_mul_i32 s{sT0}, s{sT0}, {176*1024}")
    b(f"v_lshlrev_b32 v6, 4, v{L}")
    b(f"v_add_u32 v{vH0g}, s{sT0}, v6")
    b(f"v_add_u32 v{vH1g}, {176*1024}, v{vH0g}")
    b(f"s_lshl_b32 s{sT0}, s{pH}, 2")
    b(f"s_sub_u32 s{sT0}, s{sT0}, 2")
    b(f"s_mul_i32 s{sT0}, s{sT0}, {176*1024}")
    b(f"v_add_u32 v{vH0k}, s{sT0}, v{vH0g}")
    b(f"v_add_u32 v{vH1k}, s{sT0}, v{vH1g}")
    b(f"s_lshl_b32 s{pK0}, s{pH}, 2")
    b(f"s_add_u32 s{pK0}, s{pK0}, s{sWm}")
    if role == 0:
        b(f"s_lshl_b32 s{pK0}, s{pK0}, 13")
    else:
        b(f"s_mul_i32 s{pK0}, s{pK0}, {14*1024}")
        b(f"s_add_u32 s{pK0}, s{pK0}, {64*1024}")

def p2_common2(b, role):
    L = vLane
    b(f"v_bfe_u32 v6, v{L}, 3, 2")
    b(f"v_and_b32 v7, 7, v{L}")
    b(f"v_lshl_add_u32 v{vTau}, v7, 2, v6")
    b(f"s_xor_b32 s{sT0}, s{pH}, 1")
    b(f"s_lshl_b32 s{sT0}, s{sT0}, 6")
    b(f"s_lshl_b32 s{sT1}, s{sR}, 7")
    b(f"s_add_u32 s{sT0}, s{sT0}, s{sT1}")
    b(f"v_add_u32 v6, s{sT0}, v{vTau}")
    b("v_lshlrev_b32 v6, 3, v6")
    b(f"v_add_u32 v6, {G_OFF + 4*role}, v6")
    b(f"global_load_dword v{vSg}, v6, s[34:35] sc1")
    b(f"global_load_dword v{vSg+1}, v6, s[34:35] offset:256 sc1")
    b(f"s_lshl_b32 s{sT0}, s{pH}, 7")
    b(f"s_sub_u32 s{sT0}, s{sT0}, 64")
    b(f"s_lshl_b32 s{sT0}, s{sT0}, 3")
    b(f"v_add_u32 v6, s{sT0}, v6")
    b(f"global_load_dword v{vSk}, v6, s[34:35] sc1")
    b(f"global_load_dword v{vSk+1}, v6, s[34:35] offset:256 sc1")
    b(f"s_lshl_b32 s{sT0}, s{sWm}, 14")
    if role == 0: b(f"s_add_u32 s{sT0}, s{sT0}, {CST}")
    b(f"v_lshlrev_b32 v9, 8, v{vTau}")
    b(f"v_add_u32 v9, s{sT0}, v9")
    b(f"v_lshrrev_b32 v6, 5, v{L}")
    b(f"v_and_b32 v7, 7, v{L}")
    b("v_xor_b32 v6, v6, v7")
    for q in range(4):
        b(f"v_xor_b32 v7, {2*q}, v6")
        b(f"v_lshl_add_u32 v{vWrq+q}, v7, 4, v9")

def p2_rwrite(b, acc, sc, dup=None):
    if dup is not None:
        b(f"v_mov_b32 v{dup}, v{sc}\nv_mov_b32 v{dup+1}, v{sc}\nv_mov_b32 v{dup+2}, v{sc+1}\nv_mov_b32 v{dup+3}, v{sc+1}")
    for aa in range(2):
        for bb in range(2):
            S = acc + (aa*2+bb)*16
            g = sc + bb
            gp = g & ~1; o = g & 1
            if dup is not None:
                for p in range(8):
                    b(f"v_pk_mul_f32 {v(S+2*p,2)}, {v(S+2*p,2)}, {v(dup+2*bb,2)}")
            elif opts.get('rw', 'scalar') == 'pk':
                for p in range(8):
                    b(f"v_pk_mul_f32 {v(S+2*p,2)}, {v(S+2*p,2)}, {v(gp,2)} op_sel:[0,{o}] op_sel_hi:[1,{o}]")
            else:
                for p in range(16):
                    b(f"v_mul_f32 v{S+p}, v{g}, v{S+p}")
            for q in range(4):
                b(f"ds_write_b128 v{vWrq+q}, {v(S+4*q,4)} offset:{bb*32*PITCH + aa*128}", "red")
    b.wait('lg', "red")

def p2_F():
    b = B(); L = vLane
    b("L_p2_F:")
    b("s_waitcnt vmcnt(0) lgkmcnt(0)")
    b("s_barrier")
    if int(opts.get('p2prio', 0)): b(f"s_setprio {int(opts.get('p2prio', 0))}")
    stamp(b, 7)
    p2_ids(b)
    srd(b, pC1, 26, 1792*1024)
    vWa, vWb, vTp = 6, 7, 20
    t = 24
    b(f"v_bfe_u32 v{t}, v{L}, 4, 1")
    b(f"v_lshlrev_b32 v{t}, 2, v{t}")
    b(f"v_and_b32 v{t+1}, 7, v{L}")
    b(f"v_xor_b32 v{t}, v{t}, v{t+1}")
    b(f"v_lshlrev_b32 v{t}, 4, v{t}")
    b(f"v_lshrrev_b32 v{t+1}, 3, v{L}")
    b(f"v_lshlrev_b32 v{t+1}, 10, v{t+1}")
    b(f"v_add_u32 v{vWa}, v{t}, v{t+1}")
    b(f"v_add_u32 v{vWb}, {8192 - 1024}, v{vWa}")
    b(f"s_lshl_b32 s{sT0}, s{pH}, 2")
    b(f"s_add_u32 s{sT0}, s{sT0}, s{sWm}")
    b(f"s_mul_i32 s{pOff}, s{sT0}, {14*16*1024}")
    b(f"s_lshl_b32 s{sT0}, s{pN}, 7")
    b(f"s_add_u32 s{pOff}, s{pOff}, s{sT0}")
    b(f"s_lshl_b32 s{pLw}, s{sWm}, 14")
    pKF = [48, 49, 50, 51, 52, 53, 54, 55, 77, 78, 79, 80, 81, 82]
    if ROT2:
        b(f"s_mul_i32 s{sT2}, s{pN}, 7")
        b(f"s_lshr_b32 s{sT2}, s{sT2}, 2")
        for i in range(14):
            b(f"s_add_u32 s{pKF[i]}, s{sT2}, {i}")
            b(f"s_cmp_ge_u32 s{pKF[i]}, 14")
            b(f"s_cselect_b32 s{sT3}, 14, 0")
            b(f"s_sub_u32 s{pKF[i]}, s{pKF[i]}, s{sT3}")
            b(f"s_lshl_b32 s{pKF[i]}, s{pKF[i]}, 10")
    else:
        for i in range(14): b(f"s_mov_b32 s{pKF[i]}, {i*1024}")
    def wdma(i):
        b(f"s_add_u32 m0, s{pLw}, {(i % 8)*2048}")
        b(f"s_lshl_b32 s{sT1}, s{pKF[i]}, 4")
        b(f"s_add_u32 s{sT1}, s{sT1}, s{pOff}")
        b(f"buffer_load_dwordx4 v{vWa}, {s(pC1,4)}, s{sT1} offen lds", f"f{i}")
        b(f"buffer_load_dwordx4 v{vWb}, {s(pC1,4)}, s{sT1} offen offset:1024 lds", f"f{i}")
    NPRE = int(opts.get('npre', 8))
    for i in range(min(NPRE, 8)): wdma(i)
    tr_pattern(b, vTp, 4, t)
    b(f"v_add_u32 v{vTp}, s{pLw}, v{vTp}")
    b(f"v_add_u32 v{vTp+1}, s{pLw}, v{vTp+1}")
    b(f"v_mov_b32 v22, v{vWa}\nv_mov_b32 v23, v{vWb}")
    vWa, vWb = 22, 23
    p2_common(b, 1)
    def wreads(i):
        b.wait('vm', f"f{i}")
        for aa in range(2):
            for rd in range(2):
                b(f"ds_read_b64_tr_b16 {a(8*i+4*aa+2*rd,2)}, v{vTp+aa} offset:{(i % 8)*2048 + rd*1024}", f"wr{i}")
    NRD = max(0, NPRE - 8)
    for i in range(NRD):
        wreads(i)
        b.wait('lg', f"wr{i}")
        wdma(8 + i)
    stamp(b, 24)
    b("s_barrier")
    stamp(b, 25)
    NSF, D = 14, 7
    def hreg(idx, k):
        sl = idx % D
        return v(24 + sl*8 + 4*k, 4) if sl < 5 else a(112 + (sl-5)*8 + 4*k, 4)
    def hload(idx):
        ps, i = divmod(idx, NSF)
        h0, h1 = (vH0g, vH1g) if ps == 0 else (vH0k, vH1k)
        b(f"s_add_u32 s{sT0}, s{pK0}, s{pKF[i]}")
        b(f"buffer_load_dwordx4 {hreg(idx,0)}, v{h0}, {s(pA,4)}, s{sT0} offen sc1")
        b(f"buffer_load_dwordx4 {hreg(idx,1)}, v{h1}, {s(pA,4)}, s{sT0} offen sc1")
    hload(0)
    rest = list(range(NPRE, 8))
    if rest: wdma(rest.pop(0))
    hload(1)
    if rest: wdma(rest.pop(0))
    for i in range(max(NRD, 0), max(NRD, 2)): wreads(i)
    hload(2)
    if rest: wdma(rest.pop(0))
    hload(3)
    for i in rest: wdma(i)
    DH1 = int(opts.get('dh1', 7))
    p2_common2(b, 1)
    for k in range(4, DH1): hload(k)
    stamp(b, 26)
    acc = 64
    def step(idx):
        ps, i = divmod(idx, NSF)
        mf = [f"v_mfma_f32_32x32x16_bf16 {v(acc+(aa*2+bb)*16,16)}, {a(8*i+4*aa,4)}, {hreg(idx,bb)}, {v(acc+(aa*2+bb)*16,16) if i else 0}" for aa in range(2) for bb in range(2)]
        b.wait('lg', f"wr{i}")
        b(mf[0])
        if 8 + i < 14 and i >= NRD: wdma(8 + i)
        b(mf[1])
        if i + 2 < 14 and i + 2 >= max(NRD, 2): wreads(i + 2)
        b(mf[2])
        n0 = len(b.ops)
        KP = int(opts.get('kp', 1))
        tg = [i + DH1] if i + DH1 < NSF else ([NSF + (i - (NSF - KP))] if i >= NSF - KP else [])
        for t_ in tg: hload(t_)
        ld = b.ops[n0:]; del b.ops[n0:]
        cut = [j for j, o in enumerate(ld) if o.kind == 'vmem']
        if cut:
            b.ext(ld[:cut[0] + 1]); b(mf[3]); b.ext(ld[cut[0] + 1:])
        else: b(mf[3])
        if i == NSF - 1 - DH1: b("s_barrier")
    for idx in range(NSF): step(idx)
    stamp(b, 27)
    n0 = len(b.ops); p2_rwrite(b, acc, vSg); rw = b.ops[n0:]; del b.ops[n0:]
    n0 = len(b.ops)
    for k in range(int(opts.get('kp', 1)), 7): hload(NSF + k)
    hl = chunks_of(b.ops[n0:]); del b.ops[n0:]
    body, tail = rw[:-1], rw[-1:]
    if int(opts.get('r1il', 1)):
        gap = max(1, len(body) // (len(hl) + 1)); outp = []
        for j, o in enumerate(body):
            outp.append(o)
            if (j + 1) % gap == 0 and hl: outp.extend(hl.pop(0))
        for c in hl: outp.extend(c)
        b.ext(outp + tail)
        b("s_barrier")
    else:
        b.ext(body + tail)
        b("s_barrier")
        for c in hl: b.ext(c)
    def step2(idx):
        i = idx - NSF
        mf = [f"v_mfma_f32_32x32x16_bf16 {v(acc+(aa*2+bb)*16,16)}, {a(8*i+4*aa,4)}, {hreg(idx,bb)}, {v(acc+(aa*2+bb)*16,16) if i else 0}" for aa in range(2) for bb in range(2)]
        b(mf[0]); b(mf[1]); b(mf[2])
        n0 = len(b.ops)
        if idx + D < 2 * NSF: hload(idx + D)
        ld = b.ops[n0:]; del b.ops[n0:]
        cut = [j for j, o in enumerate(ld) if o.kind == 'vmem']
        if cut:
            b.ext(ld[:cut[0] + 1]); b(mf[3]); b.ext(ld[cut[0] + 1:])
        else: b(mf[3])
    for idx in range(NSF, 2 * NSF):
        step2(idx)
        if idx == NSF + 3: b("s_barrier")
    stamp(b, 28)
    FSPLIT = int(opts.get('fsplit', 0))
    n0 = len(b.ops)
    p2_rwrite(b, acc, vSk, 24 if int(opts.get('r2pk', 1)) else None)
    rw = b.ops[n0:]; del b.ops[n0:]
    if FSPLIT:
        f = F()
        f("v_and_b32 v34, 0xff, v0")
        f("v_lshrrev_b32 v35, 4, v34")
        f("v_and_b32 v36, 15, v34")
        f("v_lshrrev_b32 v37, 6, v34")
        f("v_xor_b32 v37, v37, v36")
        f("v_lshlrev_b32 v28, 8, v35")
        f("v_lshl_add_u32 v28, v37, 4, v28")
        f("v_xor_b32 v29, 64, v28")
        f(f"v_add_u32 v30, {CST}, v28")
        f(f"v_add_u32 v31, {CST}, v29")
        f(f"s_lshl_b32 s{sT0}, s{sR}, 7")
        f(f"s_lshl_b32 s{sT1}, s{pH}, 6")
        f(f"s_add_u32 s{sT0}, s{sT0}, s{sT1}")
        f(f"s_add_u32 s{sT0}, s{sT0}, 32")
        f(f"v_add_u32 v35, s{sT0}, v35")
        f(f"s_lshl_b32 s{sT1}, s{pN}, 8")
        f("v_lshlrev_b32 v32, 11, v35")
        f("v_lshl_add_u32 v32, v36, 4, v32")
        f(f"v_add_u32 v32, s{sT1}, v32")
        f("v_lshlrev_b32 v33, 4, v34")
        f("v_add_u32 v33, 0x10000, v33")
        rw = merge(rw, f.ops, after=lambda o: o.mn.startswith('ds_write'), per=2)
    b.ext(rw)
    b("s_barrier")
    stamp(b, 29)
    if FSPLIT:
        T = 64
        for p in (2, 3):
            b(f"ds_read_b128 {v(100+4*(p-2),4)}, v33 offset:{(p-2)*4096}")
        for p in (2, 3):
            for w in range(8):
                base = (28 if p % 2 == 0 else 29) if w < 4 else (30 if p % 2 == 0 else 31)
                b(f"ds_read_b128 {v(T+4*w,4)}, v{base} offset:{(w % 4)*16384 + p*4096}")
            for w in range(0, 8, 2):
                b(f"v_pk_add_f32 {v(T+4*w,2)}, {v(T+4*w,2)}, {v(T+4*w+4,2)}")
                b(f"v_pk_add_f32 {v(T+4*w+2,2)}, {v(T+4*w+2,2)}, {v(T+4*w+6,2)}")
            for w in (0, 4):
                b(f"v_pk_add_f32 {v(T+4*w,2)}, {v(T+4*w,2)}, {v(T+4*w+8,2)}")
                b(f"v_pk_add_f32 {v(T+4*w+2,2)}, {v(T+4*w+2,2)}, {v(T+4*w+10,2)}")
            d = 108 + 4 * (p - 2)
            b(f"v_pk_add_f32 {v(d,2)}, {v(T,2)}, {v(T+16,2)}")
            b(f"v_pk_add_f32 {v(d+2,2)}, {v(T+2,2)}, {v(T+18,2)}")
            b(f"v_pk_add_f32 {v(d,2)}, {v(d,2)}, {v(100+4*(p-2),2)}")
            b(f"v_pk_add_f32 {v(d+2,2)}, {v(d+2,2)}, {v(102+4*(p-2),2)}")
            if p == 3: b(f"v_add_u32 v32, {16*2048}, v32")
            b(f"global_store_dwordx4 v32, {v(d,4)}, s[30:31] {opts.get('outf', 'sc0+sc1').replace('+', ' ')}")
    return b

def p2_S():
    b = B(); L = vLane
    b("s_waitcnt vmcnt(0) lgkmcnt(0)")
    b("s_barrier")
    stamp(b, 7)
    b(f"s_cmp_lg_u32 s{sWm}, 0")
    b("s_cbranch_scc1 L_p2_noflag")
    b(f"s_mul_i32 s{sT0}, s{sR}, {FLG_STRIDE}")
    b(f"s_add_u32 s{sT0}, s{sT0}, {FLG_OFF}")
    b(f"s_lshl_b32 s{sT1}, s{sS}, 3")
    b(f"s_add_u32 s{sT1}, s{sT1}, s{sT0}")
    b(f"v_mov_b32 v6, s{sT1}")
    b(f"global_store_dwordx2 v6, {v(vNon,2)}, s[34:35] sc0 sc1", 'nocount')
    b(f"v_and_b32 v6, 15, v{L}")
    b("v_lshlrev_b32 v6, 3, v6")
    b(f"v_add_u32 v6, s{sT0}, v6")
    b(f"s_mov_b32 s{sSpin}, 0")
    NP = int(opts.get('npoll', 1))
    SL = int(opts.get('pollsl', 0))
    for k in range(NP):
        b(f"global_load_dwordx2 {v(24+2*k,2)}, v6, s[34:35] sc1", 'nocount')
        if SL: b(f"s_sleep {SL}")
    b("L_p2_poll:")
    for k in range(NP):
        b(f"s_waitcnt vmcnt({NP-1})", 'nocount')
        b(f"v_cmp_eq_u32 vcc, v{24+2*k}, v{vNon}")
        b(f"v_cmp_eq_u32 {s(sT2,2)}, v{24+2*k+1}, v{vNon+1}")
        b(f"s_and_b64 vcc, vcc, {s(sT2,2)}")
        b("s_cmp_eq_u64 vcc, -1")
        b("s_cbranch_scc1 L_p2_polled")
        b(f"global_load_dwordx2 {v(24+2*k,2)}, v6, s[34:35] sc1", 'nocount')
    b(f"s_add_u32 s{sSpin}, s{sSpin}, 1")
    b(f"s_cmp_gt_u32 s{sSpin}, 100000")
    b("s_cbranch_scc0 L_p2_poll")
    b("L_p2_polled:")
    b("L_p2_noflag:")
    b(f"v_readfirstlane_b32 s{sT0}, v{vNon}")
    for j in range(4):
        b(f"s_bfe_u32 s{pNib+j}, s{sT0}, {(4 << 16) | (4*j):#x}")
    p2_common(b, 0)
    stamp(b, 24)
    b("s_barrier")
    if int(opts.get('p2prio', 0)): b("s_setprio 0")
    stamp(b, 25)
    def hreg(j, k): return a(64 + 8*j + 4*k, 4)
    def hload(j, ps):
        h0, h1 = (vH0g, vH1g) if ps == 0 else (vH0k, vH1k)
        b(f"s_add_u32 s{sT0}, s{pK0}, s{pKS+j}")
        b(f"buffer_load_dwordx4 {hreg(j,0)}, v{h0}, {s(pA,4)}, s{sT0} offen sc1")
        b(f"buffer_load_dwordx4 {hreg(j,1)}, v{h1}, {s(pA,4)}, s{sT0} offen sc1")
    DS1 = int(opts.get('ds1', 4))
    for j in range(DS1): hload(j, 0)
    p2_common2(b, 0)
    vRE, vRO, vREh, vROh = 20, 21, 22, 23
    b("v_lshrrev_b32 v6, 4, v0")
    b("v_and_b32 v7, 15, v0")
    b("v_lshrrev_b32 v9, 6, v0")
    b("v_xor_b32 v9, v9, v7")
    b(f"v_lshlrev_b32 v{vRE}, 8, v6")
    b(f"v_lshl_add_u32 v{vRE}, v9, 4, v{vRE}")
    b(f"v_xor_b32 v{vRO}, 64, v{vRE}")
    b(f"v_add_u32 v{vREh}, {CST}, v{vRE}")
    b(f"v_add_u32 v{vROh}, {CST}, v{vRO}")
    stamp(b, 26)
    acc = 64
    def mf(j): return [f"v_mfma_f32_32x32x16_bf16 {v(acc+(aa*2+bb)*16,16)}, {a(8*j+4*aa,4)}, {hreg(j,bb)}, {v(acc+(aa*2+bb)*16,16) if j else 0}" for aa in range(2) for bb in range(2)]
    for j in range(8):
        for t_ in mf(j): b(t_)
        if j + DS1 < 8: hload(j + DS1, 0)
    stamp(b, 27)
    p2_rwrite(b, acc, vSg)
    b("s_barrier")
    for j in range(8): hload(j, 1)
    for j in range(8):
        for t_ in mf(j): b(t_)
    stamp(b, 28)
    b("s_barrier")
    def padd(d, x, y, pk):
        if pk: b(f"v_pk_add_f32 {v(d,2)}, {v(x,2)}, {v(y,2)}")
        else:
            b(f"v_add_f32 v{d}, v{x}, v{y}"); b(f"v_add_f32 v{d+1}, v{x+1}, v{y+1}")
    def reduce(p, dst, pk):
        T = 24
        for w in range(8):
            base = (vRE if p % 2 == 0 else vRO) if w < 4 else (vREh if p % 2 == 0 else vROh)
            b(f"ds_read_b128 {v(T+4*w,4)}, v{base} offset:{(w % 4)*16384 + p*4096}")
        for w in range(0, 8, 2):
            padd(T+4*w, T+4*w, T+4*w+4, pk); padd(T+4*w+2, T+4*w+2, T+4*w+6, pk)
        for w in (0, 4):
            padd(T+4*w, T+4*w, T+4*w+8, pk); padd(T+4*w+2, T+4*w+2, T+4*w+10, pk)
        padd(dst, T, T+16, pk); padd(dst+2, T+2, T+18, pk)
    b("v_lshlrev_b32 v6, 4, v0")
    b(f"s_lshl_b32 s{sT0}, s2, 14")
    b(f"s_add_u32 s{sT0}, s{sT0}, {XCH_OFF}")
    b(f"v_add_u32 v6, s{sT0}, v6")
    for p in range(4):
        d = 56 + 4 * (p % 2)
        reduce(p, d, False)
        for e in range(4): b(f"v_and_or_b32 v{d+e}, v{d+e}, -16, s{pNib+e}")
        if p: b(f"v_add_u32 v6, 4096, v6")
        b(f"global_store_dwordx4 v6, {v(d,4)}, s[34:35] sc0 sc1")
    b("s_barrier")
    p2_rwrite(b, acc, vSk)
    PR_, BI, XV = 64, 80, 96
    b("v_lshlrev_b32 v6, 4, v0")
    b(f"s_xor_b32 s{sT1}, s2, 1")
    b(f"s_lshl_b32 s{sT0}, s{sT1}, 14")
    b(f"s_add_u32 s{sT0}, s{sT0}, {XCH_OFF}")
    b(f"v_add_u32 v9, s{sT0}, v6")
    def prt(tok):
        for p in range(4):
            if p: b(f"v_add_u32 v7, {p*4096}, v9")
            b(f"global_load_dwordx4 {v(PR_+4*p,4)}, v{7 if p else 9}, s[34:35] sc1", tok)
    prt("prt")
    b("v_lshrrev_b32 v6, 4, v0")
    b("v_and_b32 v8, 15, v0")
    b(f"s_lshl_b32 s{sT0}, s{sR}, 7")
    b(f"s_lshl_b32 s{sT1}, s{pH}, 6")
    b(f"s_add_u32 s{sT0}, s{sT0}, s{sT1}")
    b(f"v_add_u32 v6, s{sT0}, v6")
    b(f"s_lshl_b32 s{sT1}, s{pN}, 7")
    b("v_lshlrev_b32 v2, 10, v6")
    b("v_lshl_add_u32 v2, v8, 3, v2")
    b(f"v_add_u32 v2, s{sT1}, v2")
    for p in range(4):
        if p: b(f"v_add_u32 v2, {16*1024}, v2")
        b(f"global_load_dwordx2 {v(XV+2*p,2)}, v2, s[4:5]")
    b("v_lshlrev_b32 v2, 3, v8")
    b(f"v_add_u32 v2, s{sT1}, v2")
    b(f"global_load_dwordx2 {v(XV+8,2)}, v2, s[20:21]")
    b("v_lshlrev_b32 v2, 3, v6")
    b(f"v_add_u32 v2, {G_OFF}, v2")
    for p in range(4):
        b(f"global_load_dword v{XV+10+p}, v2, s[34:35] offset:{p*128} sc1")
    b(f"s_lshl_b32 s{sT1}, s{pN}, 8")
    b("v_lshlrev_b32 v2, 11, v6")
    b("v_lshl_add_u32 v2, v8, 4, v2")
    b(f"v_add_u32 v2, s{sT1}, v2")
    DS_ = XV + 14
    b(f"v_lshlrev_b32 v{DS_}, 16, v{XV+8}\nv_and_b32 v{DS_+1}, 0xffff0000, v{XV+8}\nv_lshlrev_b32 v{DS_+2}, 16, v{XV+9}\nv_and_b32 v{DS_+3}, 0xffff0000, v{XV+9}")
    for p in range(4):
        xs = XV + 2*p; tp = BI + 4*p
        b(f"v_lshlrev_b32 v{tp}, 16, v{xs}\nv_and_b32 v{tp+1}, 0xffff0000, v{xs}\nv_lshlrev_b32 v{tp+2}, 16, v{xs+1}\nv_and_b32 v{tp+3}, 0xffff0000, v{xs+1}")
        for e in range(4): b(f"v_mul_f32 v{tp+e}, v{tp+e}, v{DS_+e}")
        b(f"v_cvt_pk_bf16_f32 v56, v{tp}, v{tp+1}")
        b(f"v_cvt_pk_bf16_f32 v57, v{tp+2}, v{tp+3}")
        b(f"v_lshlrev_b32 v{tp}, 16, v56\nv_and_b32 v{tp+1}, 0xffff0000, v56\nv_lshlrev_b32 v{tp+2}, 16, v57\nv_and_b32 v{tp+3}, 0xffff0000, v57")
        for e in range(4): b(f"v_mul_f32 v{tp+e}, v{XV+10+p}, v{tp+e}")
    b.wait('vm', "prt")
    b(f"s_mov_b32 s{sSpin}, 0")
    if int(opts.get('prtpoll', 0)):
        b("L_p2_q:")
        b("v_mov_b32 v58, 0")
        for u in range(12, 16):
            b(f"v_xor_b32 v59, s{pNib + (u % 4)}, v{PR_+u}")
            b(f"v_and_or_b32 v58, v59, 15, v58")
        b("v_cmp_eq_u32 vcc, 0, v58")
        b("s_cmp_eq_u64 vcc, -1")
        b("s_cbranch_scc1 L_p2_qok")
        b(f"s_add_u32 s{sSpin}, s{sSpin}, 1")
        b(f"s_cmp_gt_u32 s{sSpin}, 100000")
        b("s_cbranch_scc1 L_p2_qok")
        b(f"v_add_u32 v7, {3*4096}, v9")
        b(f"global_load_dwordx4 {v(PR_+12,4)}, v7, s[34:35] sc1", 'nocount')
        b("s_waitcnt vmcnt(0)", 'nocount')
        b("s_branch L_p2_q")
        b("L_p2_qok:")
    b("L_p2_chk:")
    b("v_mov_b32 v58, 0")
    for u in range(16):
        b(f"v_xor_b32 v{PR_+u}, s{pNib + (u % 4)}, v{PR_+u}")
        b(f"v_and_or_b32 v58, v{PR_+u}, 15, v58")
    b("v_cmp_eq_u32 vcc, 0, v58")
    b("s_cmp_eq_u64 vcc, -1")
    b("s_cbranch_scc1 L_p2_ok")
    b(f"s_add_u32 s{sSpin}, s{sSpin}, 1")
    b(f"s_cmp_gt_u32 s{sSpin}, 100000")
    b("s_cbranch_scc1 L_p2_ok")
    prt('nocount')
    b("s_waitcnt vmcnt(0)", 'nocount')
    b("s_branch L_p2_chk")
    b("L_p2_ok:")
    for u in range(16): b(f"v_add_f32 v{BI+u}, v{BI+u}, v{PR_+u}")
    FSPLIT = int(opts.get('fsplit', 0))
    if FSPLIT:
        b("v_lshlrev_b32 v6, 4, v0")
        b("v_add_u32 v6, 0x10000, v6")
        for p in (2, 3): b(f"ds_write_b128 v6, {v(BI+4*p,4)} offset:{(p-2)*4096}", "biw")
        b.wait('lg', "biw")
    stamp(b, 29)
    b("s_barrier")
    for p in range(2 if FSPLIT else 4):
        d = 56 + 4 * (p % 2)
        reduce(p, d, True)
        b(f"v_pk_add_f32 {v(d,2)}, {v(d,2)}, {v(BI+4*p,2)}")
        b(f"v_pk_add_f32 {v(d+2,2)}, {v(d+2,2)}, {v(BI+4*p+2,2)}")
        if p: b(f"v_add_u32 v2, {16*2048}, v2")
        b(f"global_store_dwordx4 v2, {v(d,4)}, s[30:31] {opts.get('outf', 'sc0+sc1').replace('+', ' ')}")
    stamp(b, 30)
    return b

def gen_k1():
    global STV
    STV = 15
    pro = k1_head()
    S = k1_S()
    S.ext(p2_S())
    stamp_end(S, sWm, "s[34:35]", 0x2000000, vLane, 3, 14)
    S("s_endpgm")
    Fm = B(); Fm("L_k1_F:")
    Fm(f"s_cmp_ge_u32 s{sS}, 14")
    Fm("s_cbranch_scc1 L_k1_Fn")
    f1 = k1_F(True)
    f1("s_branch L_p2_F")
    Fn = B(); Fn("L_k1_Fn:")
    f2 = k1_F(False)
    p2f = p2_F()
    if STAMP: p2f(f"s_add_u32 s{sWave}, s{sWm}, 4")
    stamp_end(p2f, sWave, "s[34:35]", 0x2000000, vLane, 3, 14)
    p2f("L_k1_end:")
    p2f("s_endpgm")
    def path(prefix, body, label=None):
        allops = insert_waits(copy.deepcopy(prefix) + body)
        if label:
            idx = [i for i, o in enumerate(allops) if o.text == label][0]
            allops = allops[idx:]
        return insert_hazard_nops(allops)
    out = path([], pro.ops + S.ops)
    out += path(pro.ops, Fm.ops + f1.ops, "L_k1_F:")
    out += path(pro.ops + Fm.ops, Fn.ops + f2.ops, "L_k1_Fn:")
    out += path([], p2f.ops)
    return out

def gen_k2():
    global STV
    STV = 9
    b = B()
    D = 15
    DW = int(opts.get('k2dw', 5))
    sWv, sH, sMt, sN = 40, 41, 42, 43
    sA, sCR, sCI, sW2 = 44, 48, 76, 80
    t0, t1, t2 = 52, 53, 54
    sS0, sF0 = 56, 57
    sLw = 58
    sCoff, sWoff2 = 59, 62
    vH0, vH1 = 4, 5
    vCe, vCo, vWa, vWb = 2, 3, 60, 61
    vPp, vTp = 48, 52
    accS, accF, vBuf = 64, 128, 192
    vNon2 = 14
    vTau = 8
    vG1, vG2 = 10, 12
    PITCH = 256
    LRED = 0
    LSTG = 65536
    code_prefetch(b, K2, "L_code_end", 2, "k2", 6, 63)
    dbgt_begin(b)
    stamp_begin(b)
    b("s_load_dwordx2 s[18:19], s[0:1], 112")
    b("s_load_dwordx2 s[4:5], s[0:1], 0")
    b("s_load_dwordx4 s[12:15], s[0:1], 40")
    b("s_load_dwordx2 s[6:7], s[0:1], 64")
    b("s_load_dwordx2 s[16:17], s[0:1], 88")
    b("s_load_dwordx2 s[8:9], s[0:1], 104")
    b("s_load_dwordx2 s[10:11], s[0:1], 120")
    b("s_cmp_ge_u32 s2, 256")
    b("s_cbranch_scc1 L_k2_end")
    b("v_lshrrev_b32 v6, 6, v0")
    b("v_and_b32 v1, 63, v0")
    b(f"v_readfirstlane_b32 s{sWv}, v6")
    b(f"s_and_b32 s{sH}, s2, 1")
    b(f"s_bfe_u32 s{t0}, s2, 0x20001")
    b(f"s_lshr_b32 s{t1}, s2, 3")
    b(f"s_and_b32 s{sMt}, s{t1}, 3")
    b(f"s_lshl_b32 s{t0}, s{t0}, 2")
    b(f"s_add_u32 s{sMt}, s{sMt}, s{t0}")
    b(f"s_lshr_b32 s{sN}, s{t1}, 2")
    b("v_and_b32 v6, 7, v1")
    b("v_lshrrev_b32 v7, 4, v1")
    b("v_xor_b32 v6, v6, v7")
    b("v_lshlrev_b32 v6, 4, v6")
    b("v_lshrrev_b32 v7, 3, v1")
    b("v_lshlrev_b32 v7, 10, v7")
    b(f"v_add_u32 v{vCe}, v6, v7")
    b(f"v_xor_b32 v{vCo}, 64, v{vCe}")
    b("v_bfe_u32 v6, v1, 4, 1")
    b("v_lshlrev_b32 v6, 2, v6")
    b("v_and_b32 v29, 7, v1")
    b("v_xor_b32 v6, v6, v29")
    b("v_lshlrev_b32 v6, 4, v6")
    b(f"v_add_u32 v{vWa}, v6, v7")
    b(f"v_add_u32 v{vWb}, {8192 - 1024}, v{vWa}")
    b(f"s_lshl_b32 s{sCoff}, s{sN}, 16")
    b(f"s_lshl_b32 s{t0}, s{sH}, 9")
    b(f"s_add_u32 s{sCoff}, s{sCoff}, s{t0}")
    b(f"s_lshl_b32 s{t0}, s{sWv}, 7")
    b(f"s_add_u32 s{sCoff}, s{sCoff}, s{t0}")
    b(f"s_lshl_b32 s{t0}, s{sH}, 2")
    b(f"s_add_u32 s{t0}, s{t0}, s{sWv}")
    b(f"s_mul_i32 s{sWoff2}, s{t0}, {14*16*1024}")
    b(f"s_lshl_b32 s{t0}, s{sN}, 7")
    b(f"s_add_u32 s{sWoff2}, s{sWoff2}, s{t0}")
    b(f"s_mul_i32 s{sLw}, s{sWv}, 24576")
    b(f"s_add_u32 s{sLw}, s{sLw}, {LSTG}")
    b(f"s_xor_b32 s{t0}, s{sH}, 1")
    b(f"s_lshl_b32 s{t0}, s{t0}, 1")
    b(f"s_lshl_b32 s{t1}, s{sMt}, 2")
    b(f"s_add_u32 s{t0}, s{t0}, s{t1}")
    b(f"s_mul_i32 s{t0}, s{t0}, {176*1024}")
    b("v_lshlrev_b32 v6, 4, v1")
    b(f"v_add_u32 v{vH0}, s{t0}, v6")
    b(f"v_add_u32 v{vH1}, {176*1024}, v{vH0}")
    b(f"s_lshl_b32 s{sS0}, s{sH}, 2")
    b(f"s_add_u32 s{sS0}, s{sS0}, s{sWv}")
    b(f"s_lshl_b32 s{sS0}, s{sS0}, 13")
    b(f"s_lshl_b32 s{sF0}, s{sH}, 2")
    b(f"s_add_u32 s{sF0}, s{sF0}, s{sWv}")
    b(f"s_mul_i32 s{sF0}, s{sF0}, {14*1024}")
    b(f"s_add_u32 s{sF0}, s{sF0}, {64*1024}")
    b("s_waitcnt lgkmcnt(0)")
    srd(b, sA, 10, WS_USED)
    srd(b, sCR, 12, 512*1024)
    srd(b, sCI, 14, 512*1024)
    srd(b, sW2, 16, 1792*1024)
    steps = [('S', i) for i in range(8)] + [('F', i) for i in range(14)]
    NS = len(steps)
    seq = [(1, st) for st in range(NS)] + [(2, st) for st in range(NS)]
    def hreg(idx, k):
        sl = idx % D
        if sl < 8: return v(vBuf + sl * 8 + k * 4, 4)
        return a(200 + (sl - 8) * 8 + k * 4, 4)
    def dma_c(m):
        for aa in range(8):
            b(f"s_add_u32 m0, s{sLw}, {m*8192 + aa*1024}")
            b(f"s_add_u32 s{t2}, s{sCoff}, {aa*8192}")
            b(f"buffer_load_dwordx4 v{vCe if aa % 2 == 0 else vCo}, {s(sCR if m == 0 else sCI,4)}, s{t2} offen lds", f"c{m}")
    def wslot(i):
        if i < 4: return 16384 + i * 2048
        if i < 12: return (i - 4) * 2048
        return 16384 + (i - 12) * 2048
    def dma_f(i):
        b(f"s_add_u32 m0, s{sLw}, {wslot(i)}")
        b(f"s_add_u32 s{t2}, s{sWoff2}, {i*16*1024}")
        b(f"buffer_load_dwordx4 v{vWa}, {s(sW2,4)}, s{t2} offen lds", f"f{i}")
        b(f"buffer_load_dwordx4 v{vWb}, {s(sW2,4)}, s{t2} offen offset:1024 lds", f"f{i}")
    def hloads(idx):
        ps, st = seq[idx]
        kind, i = steps[st]
        sb = sS0 if kind == 'S' else sF0
        if ps == 2 and st == 0:
            b(f"s_lshl_b32 s{t0}, s{sH}, 2")
            b(f"s_sub_u32 s{t0}, s{t0}, 2")
            b(f"s_mul_i32 s{t0}, s{t0}, {176*1024}")
            b(f"v_add_u32 v{vH0}, s{t0}, v{vH0}")
            b(f"v_add_u32 v{vH1}, s{t0}, v{vH1}")
        b(f"s_add_u32 s{t1}, s{sb}, {i*1024}")
        b(f"buffer_load_dwordx4 {hreg(idx,0)}, v{vH0}, {s(sA,4)}, s{t1} offen")
        b(f"buffer_load_dwordx4 {hreg(idx,1)}, v{vH1}, {s(sA,4)}, s{t1} offen")
    def wreads_s():
        for j in range(8):
            m = (j >> 1) & 1; ksp = 2 * (j >> 2) + (j & 1)
            if j == 0: b.wait('vm', "c0")
            if j == 2: b.wait('vm', "c1")
            for aa in range(2):
                b(f"ds_read_b128 {a(8*j+4*aa,4)}, v{vPp+ksp} offset:{m*8192 + aa*4096}", f"wr{j}")
    def wreads_f(i):
        st = 8 + i
        b.wait('vm', f"f{i}")
        for aa in range(2):
            for rd in range(2):
                b(f"ds_read_b64_tr_b16 {a(8*st+4*aa+2*rd,2)}, v{vTp+aa} offset:{wslot(i) + rd*8*128}", f"wr{st}")
    if STAMP >= 2: stamp(b, 24)
    dma_c(0)
    hloads(0); hloads(1)
    dma_c(1)
    b("v_and_b32 v6, 31, v1")
    b("v_lshlrev_b32 v6, 7, v6")
    b(f"v_add_u32 v6, s{sLw}, v6")
    b("v_lshrrev_b32 v7, 5, v1")
    b("v_bfe_u32 v29, v1, 1, 3")
    b("v_xor_b32 v29, v7, v29")
    for k in range(4):
        b(f"v_xor_b32 v7, {2*k}, v29")
        b(f"v_lshl_add_u32 v{vPp+k}, v7, 4, v6")
    tr_pattern(b, vTp, 4, 54)
    b(f"v_add_u32 v{vTp}, s{sLw}, v{vTp}")
    b(f"v_add_u32 v{vTp+1}, s{sLw}, v{vTp+1}")
    b("v_bfe_u32 v6, v1, 3, 2")
    b("v_and_b32 v7, 7, v1")
    b(f"v_lshl_add_u32 v{vTau}, v7, 2, v6")
    b(f"s_xor_b32 s{t0}, s{sH}, 1")
    b(f"s_lshl_b32 s{t0}, s{t0}, 6")
    b(f"s_lshl_b32 s{t1}, s{sMt}, 7")
    b(f"s_add_u32 s{t0}, s{t0}, s{t1}")
    b(f"v_add_u32 v6, s{t0}, v{vTau}")
    b("v_lshlrev_b32 v6, 3, v6")
    b(f"v_add_u32 v6, {G_OFF}, v6")
    b(f"global_load_dwordx2 v[10:11], v6, s[10:11]")
    b(f"global_load_dwordx2 v[12:13], v6, s[10:11] offset:256")
    b(f"s_lshl_b32 s{t0}, s{sH}, 7")
    b(f"s_sub_u32 s{t0}, s{t0}, 64")
    b(f"s_lshl_b32 s{t0}, s{t0}, 3")
    b(f"v_add_u32 v6, s{t0}, v6")
    b(f"global_load_dwordx2 v[16:17], v6, s[10:11]")
    b(f"global_load_dwordx2 v[18:19], v6, s[10:11] offset:256")
    b(f"v_mov_b32 v6, {NONCE_OFF}")
    b(f"global_load_dwordx2 {v(vNon2,2)}, v6, s[10:11]")
    if STAMP >= 2: stamp(b, 25)
    DH = int(opts.get('k2dh', 5))
    for idx in range(2, DH): hloads(idx)
    if STAMP >= 2: stamp(b, 26)
    vWr, vRd = 20, 21
    vWrq = 56
    b(f"s_lshl_b32 s{t0}, s{sWv}, 14")
    b(f"v_lshlrev_b32 v29, 8, v{vTau}")
    b(f"v_add_u32 v29, s{t0}, v29")
    b("v_lshrrev_b32 v6, 5, v1")
    b("v_and_b32 v7, 7, v1")
    b("v_xor_b32 v6, v6, v7")
    for q in range(4):
        b(f"v_xor_b32 v7, {2*q}, v6")
        b(f"v_lshl_add_u32 v{vWrq+q}, v7, 4, v29")
    b("v_lshrrev_b32 v22, 4, v0")
    b("v_and_b32 v23, 15, v0")
    b("v_lshrrev_b32 v6, 6, v0")
    b("v_xor_b32 v6, v6, v23")
    b(f"v_lshlrev_b32 v{vRd}, 8, v22")
    b(f"v_lshl_add_u32 v{vRd}, v6, 4, v{vRd}")
    b(f"v_xor_b32 v{vWr}, 64, v{vRd}")
    vXch = 24
    b(f"v_lshlrev_b32 v{vXch}, 4, v0")
    b(f"s_lshl_b32 s{t0}, s2, 14")
    b(f"s_add_u32 s{t0}, s{t0}, {XCH_OFF}")
    b(f"v_add_u32 v25, s{t0}, v{vXch}")
    b(f"s_xor_b32 s{t1}, s2, 1")
    b(f"s_lshl_b32 s{t0}, s{t1}, 14")
    b(f"s_add_u32 s{t0}, s{t0}, {XCH_OFF}")
    b(f"v_add_u32 v26, s{t0}, v{vXch}")
    if STAMP >= 2: stamp(b, 27)
    wreads_s()
    if STAMP >= 2: stamp(b, 28)

    def mfmas(idx):
        ps, st = seq[idx]
        kind, i = steps[st]
        acc = accS if kind == 'S' else accF
        out = []
        for aa in range(2):
            for bb in range(2):
                dreg = v(acc + (aa*2 + bb) * 16, 16)
                c = dreg if i else "0"
                out.append(f"v_mfma_f32_32x32x16_bf16 {dreg}, {a(8*st+4*aa,4)}, {hreg(idx,bb)}, {c}")
        return out

    def reduce_write(g0, g1):
        for aa in range(2):
            for bb in range(2):
                g = g0 if bb == 0 else g1
                S = accS + (aa*2+bb)*16; Fq = accF + (aa*2+bb)*16
                for p in range(8):
                    b(f"v_pk_mul_f32 {v(S+2*p,2)}, {v(S+2*p,2)}, {v(g,2)} op_sel_hi:[1,0]")
                for p in range(8):
                    b(f"v_pk_fma_f32 {v(S+2*p,2)}, {v(Fq+2*p,2)}, {v(g,2)}, {v(S+2*p,2)} op_sel:[0,1,0] op_sel_hi:[1,1,1]")
                for q in range(4):
                    b(f"ds_write_b128 v{vWrq+q}, {v(S+4*q,4)} offset:{LRED + bb*32*PITCH + aa*128}", "red")
        b.wait('lg', "red")
        b("s_barrier")
    def reduce_read(dst, gran=None):
        for p in range(4):
            for w in range(4):
                b(f"ds_read_b128 {v(dst+16*p+4*w,4)}, v{vRd if p % 2 == 0 else vWr} offset:{LRED + w*64*PITCH + p*16*PITCH}")
        for p in range(4):
            r = dst + 16*p
            b(f"v_pk_add_f32 {v(r,2)}, {v(r,2)}, {v(r+4,2)}")
            b(f"v_pk_add_f32 {v(r+2,2)}, {v(r+2,2)}, {v(r+6,2)}")
            b(f"v_pk_add_f32 {v(r+8,2)}, {v(r+8,2)}, {v(r+12,2)}")
            b(f"v_pk_add_f32 {v(r+10,2)}, {v(r+10,2)}, {v(r+14,2)}")
            if gran is None:
                b(f"v_pk_add_f32 {v(r,2)}, {v(r,2)}, {v(r+8,2)}")
                b(f"v_pk_add_f32 {v(r+2,2)}, {v(r+2,2)}, {v(r+10,2)}")
            else:
                for e in range(4):
                    u = 4 * p + e
                    b(f"v_add_f32 v{gran + 4*(u//3) + u%3}, v{r+e}, v{r+8+e}")

    total = len(seq)
    sNib = 84
    XS_ = 32
    PR_ = vBuf
    def r1c():
        f = F()
        for p in range(4):
            for w in range(4):
                f(f"ds_read_b128 {v(accF+16*p+4*w,4)}, v{vRd if p % 2 == 0 else vWr} offset:{LRED + w*64*PITCH + p*16*PITCH}")
        for p in range(4):
            r = accF + 16*p
            for e in range(4): f(f"v_add_f32 v{r+e}, v{r+e}, v{r+4+e}")
            for e in range(4): f(f"v_add_f32 v{r+8+e}, v{r+8+e}, v{r+12+e}")
            for e in range(4): f(f"v_add_f32 v{r+e}, v{r+e}, v{r+8+e}")
            for e in range(4): f(f"v_and_or_b32 v{XS_+4*p+e}, v{r+e}, -16, s{sNib+e}")
        return f
    def step_ops(idx):
        ps, st = seq[idx]
        kind, i = steps[st]
        n00 = len(b.ops)
        mf = mfmas(idx)
        if ps == 1: b.wait('lg', f"wr{st}")
        b(mf[0])
        if ps == 1:
            fi = st - 2
            if st == 6: b.wait('lg', "wr7")
            if 0 <= fi < 14: dma_f(fi)
        b(mf[1])
        if ps == 1 and 8 <= st + 1 < NS:
            wreads_f(st + 1 - 8)
        b(mf[2])
        n0 = len(b.ops)
        tg = []
        if ps == 1:
            if st + DH < NS: tg = [st + DH]
            else:
                j = st + DH - NS
                tg = [NS + 2 * j, NS + 2 * j + 1]
        elif idx + D < total: tg = [idx + D]
        for t_ in tg: hloads(t_)
        ld = b.ops[n0:]; del b.ops[n0:]
        cut = [j for j, o in enumerate(ld) if o.kind == 'vmem']
        if cut:
            b.ext(ld[:cut[0] + 1]); b(mf[3]); b.ext(ld[cut[0] + 1:])
        else:
            b(mf[3])
        ops = b.ops[n00:]; del b.ops[n00:]
        return ops
    for idx in range(NS):
        b.ext(step_ops(idx))
        st = idx
        if st == 2:
            b(f"v_readfirstlane_b32 s{t0}, v{vNon2}")
            for j in range(4):
                b(f"s_bfe_u32 s{sNib+j}, s{t0}, {(4 << 16) | (4*j):#x}")
        if STAMP >= 2 and st in (0, 3, 7, 11, 15, 19): stamp(b, 8 + (0, 3, 7, 11, 15, 19).index(st))
    stamp(b, 1)
    n0 = len(b.ops); reduce_write(vG1, vG2); rw = b.ops[n0:]; del b.ops[n0:]
    K0 = 2 * DH
    n0 = len(b.ops)
    for k in range(K0, 15): hloads(NS + k)
    hl = chunks_of(b.ops[n0:]); del b.ops[n0:]
    body, tail = rw[:-2], rw[-2:]
    gap = max(1, len(body) // (len(hl) + 1))
    outp = []
    for j, o in enumerate(body):
        outp.append(o)
        if (j + 1) % gap == 0 and hl: outp.extend(hl.pop(0))
    for c in hl: outp.extend(c)
    b.ext(outp + tail)
    stamp(b, 2)
    p2a = []
    for st in range(7): p2a += step_ops(NS + st)
    b.ext(merge(p2a, r1c().ops, per=4))
    PL = int(opts.get('k2pl', 16))
    BI = vBuf + 16
    def bias_fill():
        f = F()
        f("v_lshlrev_b32 v4, 16, v40\nv_and_b32 v5, 0xffff0000, v40\nv_lshlrev_b32 v6, 16, v41\nv_and_b32 v7, 0xffff0000, v41")
        for p in range(4):
            xs = 32 + 2*p; tp = BI + 4*p
            f(f"v_lshlrev_b32 v{tp}, 16, v{xs}\nv_and_b32 v{tp+1}, 0xffff0000, v{xs}\nv_lshlrev_b32 v{tp+2}, 16, v{xs+1}\nv_and_b32 v{tp+3}, 0xffff0000, v{xs+1}")
            for e in range(4): f(f"v_mul_f32 v{tp+e}, v{tp+e}, v{4+e}")
            f(f"v_cvt_pk_bf16_f32 v46, v{tp}, v{tp+1}")
            f(f"v_cvt_pk_bf16_f32 v47, v{tp+2}, v{tp+3}")
            f(f"v_lshlrev_b32 v{tp}, 16, v46\nv_and_b32 v{tp+1}, 0xffff0000, v46\nv_lshlrev_b32 v{tp+2}, 16, v47\nv_and_b32 v{tp+3}, 0xffff0000, v47")
            for e in range(4): f(f"v_mul_f32 v{tp+e}, v{42+p}, v{tp+e}")
        return f
    tail_steps = []
    for st in range(7, NS):
        idx = NS + st
        ops = step_ops(idx)
        if 7 <= st <= 10:
            p = st - 7
            pre = B()
            if p: pre(f"v_add_u32 v29, {p*4096}, v25")
            pre(f"global_store_dwordx4 v{29 if p else 25}, {v(XS_+4*p,4)}, s[10:11] sc0 sc1")
            ops = ops[:1] + pre.ops + ops[1:]
        if st >= 17:
            tail_steps += ops
            if st == NS - 1: b.ext(merge(tail_steps, bias_fill().ops, per=4))
            continue
        b.ext(ops)
        if STAMP >= 2 and st in (7, 11, 15, 19): stamp(b, 16 + (0, 3, 7, 11, 15, 19).index(st))
        if st == 11:
            b("s_barrier")
        if st == 11:
            b(f"s_lshl_b32 s{t0}, s{sMt}, 7")
            b(f"s_lshl_b32 s{t1}, s{sH}, 6")
            b(f"s_add_u32 s{t0}, s{t0}, s{t1}")
            b(f"v_add_u32 v30, s{t0}, v22")
            b(f"s_lshl_b32 s{t1}, s{sN}, 7")
            b("v_lshlrev_b32 v31, 10, v30")
            b("v_lshl_add_u32 v31, v23, 3, v31")
            b(f"v_add_u32 v31, s{t1}, v31")
            for p in range(4):
                if p: b(f"v_add_u32 v31, {16*1024}, v31")
                b(f"global_load_dwordx2 {v(32+2*p,2)}, v31, s[4:5]")
            b("v_lshlrev_b32 v31, 3, v23")
            b(f"v_add_u32 v31, s{t1}, v31")
            b(f"global_load_dwordx2 v[40:41], v31, s[6:7]")
            b("v_lshlrev_b32 v31, 3, v30")
            b(f"v_add_u32 v31, {G_OFF}, v31")
            for p in range(4):
                b(f"global_load_dword v{42+p}, v31, s[10:11] offset:{p*128}")
            b(f"s_lshl_b32 s{t1}, s{sN}, 8")
            b("v_lshlrev_b32 v2, 11, v30")
            b("v_lshl_add_u32 v2, v23, 4, v2")
            b(f"v_add_u32 v2, s{t1}, v2")
        if st == PL:
            for p in range(4):
                if p: b(f"v_add_u32 v29, {p*4096}, v26")
                b(f"global_load_dwordx4 {v(PR_+4*p,4)}, v{29 if p else 26}, s[10:11] sc1", "prt")
    stamp(b, 3)
    b.wait('vm', "prt")
    b(f"s_mov_b32 s{t0}, 0")
    b("L_k2_chk:")
    b("v_mov_b32 v46, 0")
    for u in range(16):
        b(f"v_xor_b32 v{PR_+u}, s{sNib + (u % 4)}, v{PR_+u}")
        b(f"v_and_or_b32 v46, v{PR_+u}, 15, v46")
    b("v_cmp_eq_u32 vcc, 0, v46")
    b("s_cmp_eq_u64 vcc, -1")
    b("s_cbranch_scc1 L_k2_ok")
    b(f"s_add_u32 s{t0}, s{t0}, 1")
    b(f"s_cmp_gt_u32 s{t0}, 40000")
    b("s_cbranch_scc1 L_k2_ok")
    for p in range(4):
        if p: b(f"v_add_u32 v29, {p*4096}, v26")
        b(f"global_load_dwordx4 {v(PR_+4*p,4)}, v{29 if p else 26}, s[10:11] sc1", 'nocount')
    b("s_waitcnt vmcnt(0)", 'nocount')
    b("s_branch L_k2_chk")
    b("L_k2_ok:")
    if STAMP >= 2: stamp(b, 30)
    n0 = len(b.ops)
    reduce_write(16, 18)
    rw = b.ops[n0:]; del b.ops[n0:]
    fl = F()
    for u in range(0, 16, 2): fl(f"v_pk_add_f32 {v(BI+u,2)}, {v(BI+u,2)}, {v(PR_+u,2)}")
    b.ext(merge(rw, fl.ops, after=lambda o: o.mn.startswith('ds_write'), per=1))
    if STAMP >= 2: stamp(b, 31)
    reduce_read(accF)
    if STAMP >= 2: stamp(b, 32)
    OUTF = opts.get('outf', '').replace('+', ' ')
    for p in range(4):
        r = accF + 16*p
        b(f"v_pk_add_f32 {v(r,2)}, {v(r,2)}, {v(BI+4*p,2)}")
        b(f"v_pk_add_f32 {v(r+2,2)}, {v(r+2,2)}, {v(BI+4*p+2,2)}")
        if p: b(f"v_add_u32 v2, {16*2048}, v2")
        b(f"global_store_dwordx4 v2, {v(r,4)}, s[8:9] {OUTF}")
    stamp(b, 4)
    dbgt_end(b, "s[18:19]", 32, True)
    stamp_end(b, sWv, "s[10:11]", 0x2100000, 1)
    b("L_k2_end:")
    b("s_endpgm")
    return finalize(b.ops)

KN = NAME + "_kernel"
def header():
    ref = open('cdna_kernels/%s.s.ref' % NAME).read().split('\n')
    hdr = []
    for line in ref:
        if not line.startswith(';'): break
        if '@launch' in line: continue
        hdr.append(line)
    hdr.append("; @launch grid=(256,1,1) block=(512,1,1) lds=163840")
    return '\n'.join(hdr)

def kd(name, nv, acc_off, nsg):
    return f""".amdhsa_kernel {name}
  .amdhsa_next_free_vgpr {nv}
  .amdhsa_next_free_sgpr {nsg}
  .amdhsa_accum_offset {acc_off}
  .amdhsa_group_segment_fixed_size 0
  .amdhsa_kernarg_size 128
  .amdhsa_user_sgpr_count 2
  .amdhsa_user_sgpr_kernarg_segment_ptr 1
  .amdhsa_system_sgpr_workgroup_id_x 1
  .amdhsa_float_denorm_mode_32 3
.end_amdhsa_kernel"""

def main():
    k1 = gen_k1()
    out = [header(), '.amdgcn_target "amdgcn-amd-amdhsa--gfx950"', '.text']
    out += [f".globl {KN}", ".p2align 8", f".type {KN},@function", f"{KN}:", render(k1)]
    out += ["L_code_end:", "  s_endpgm"]
    out += ['.section .rodata,"a"', '.p2align 6', kd(KN, 256, 128, 102)]
    print('\n'.join(out))

main()
```

```python
import sys, copy
sys.path.insert(0, 'dev')
from ir import *

NAME = "gated_mix__ssm_conv_s5__dense_activation_silu__prompt"
K1 = NAME + "_kernel"
K2 = "gm_k2_kernel"

opts = dict(a.split('=') for a in sys.argv[1:] if '=' in a)
HF_OFF = 0
HF_SIZE = 64 * 176 * 1024
W2F_OFF = HF_SIZE
W2F_SIZE = 16 * 176 * 1024
G_OFF = W2F_OFF + W2F_SIZE
E_OFF = G_OFF + 2048 * 8
E_SIZE = 16 * 16 * 512
NONCE_OFF = E_OFF + E_SIZE
FLG_OFF = NONCE_OFF + 256
FLG_STRIDE = int(opts.get('flgs', 1024)) if 'opts' in globals() else 128
XCH_OFF = FLG_OFF + 0x40000
WS_USED = XCH_OFF + 256 * 16384

LOG2E = 0x3fb8aa3b
INV2PI = 0x3e22f983

RB, XS, WR = 0, 65536, 114688
SC = 32768
IMG = 36864

STAMP = int(opts.get('stamp', 0))
STF = "sc0 sc1"

def v(n, k=1): return f"v{n}" if k == 1 else f"v[{n}:{n+k-1}]"
def a(n, k=1): return f"a{n}" if k == 1 else f"a[{n}:{n+k-1}]"
def s(n, k=1): return f"s{n}" if k == 1 else f"s[{n}:{n+k-1}]"


STV = 15
def reg_of_t(t): return (t >> 2) + 4 * (t & 3)
def srd(b, dst, ptr, size):
    b(f"s_mov_b32 s{dst}, s{ptr}")
    b(f"s_mov_b32 s{dst+1}, s{ptr+1}")
    b(f"s_mov_b32 s{dst+2}, {size}")
    b(f"s_mov_b32 s{dst+3}, 0x20000")


def cexp(b, dst, n_src, va, vang, t0):
    b(f"v_mul_f32 v{t0}, {n_src}, v{va}")
    b(f"v_mul_f32 v{t0+1}, {n_src}, v{vang}")
    b(f"v_exp_f32 v{t0}, v{t0}")
    b(f"v_rndne_f32 v{t0+2}, v{t0+1}")
    b(f"v_sub_f32 v{t0+1}, v{t0+1}, v{t0+2}")
    b(f"v_cos_f32 v{dst}, v{t0+1}")
    b(f"v_sin_f32 v{dst+1}, v{t0+1}")
    b(f"v_mul_f32 v{dst}, v{t0}, v{dst}")
    b(f"v_mul_f32 v{dst+1}, v{t0}, v{dst+1}")


def cfma(b, d, l, h, u, tmp):
    b(f"v_pk_fma_f32 {v(tmp,2)}, {v(l,2)}, {v(h,2)}, {v(u,2)} op_sel:[0,0,0] op_sel_hi:[0,1,1]")
    b(f"v_pk_fma_f32 {v(d,2)}, {v(l,2)}, {v(h,2)}, {v(tmp,2)} op_sel:[1,1,0] op_sel_hi:[1,0,1] neg_lo:[1,0,0]")


def cfma_s(b, d, l, h, u, tmp):
    b(f"v_fma_f32 v{tmp}, v{l}, v{h}, v{u}")
    b(f"v_fma_f32 v{tmp+1}, v{l}, v{h+1}, v{u+1}")
    b(f"v_fma_f32 v{d}, -v{l+1}, v{h+1}, v{tmp}")
    b(f"v_fma_f32 v{d+1}, v{l+1}, v{h}, v{tmp+1}")


def stamp(b, idx):
    if not STAMP: return
    g = B()
    g("s_memtime s[100:101]")
    g("s_waitcnt lgkmcnt(0)")
    g(f"v_writelane_b32 v{STV}, s100, {idx}")
    b.ext(g)


def stamp_begin(b):
    if not STAMP: return
    b(f"v_mov_b32 v{STV}, 0")
    b("s_memrealtime s[100:101]")
    b("s_waitcnt lgkmcnt(0)")
    b(f"v_writelane_b32 v{STV}, s100, 62")
    stamp(b, 0)


def stamp_end(b, wave, ws, off, lane, sh=2, tv=254):
    if not STAMP: return
    b("s_memrealtime s[100:101]")
    b("s_waitcnt lgkmcnt(0)")
    b(f"v_writelane_b32 v{STV}, s100, 63")
    b(f"s_lshl_b32 s100, s2, {sh}")
    b(f"s_add_u32 s100, s100, s{wave}")
    b(f"s_lshl_b32 s100, s100, 8")
    b(f"s_add_u32 s100, s100, {off}")
    b(f"v_lshlrev_b32 v{tv}, 2, v{lane}")
    b(f"v_add_u32 v{tv}, s100, v{tv}")
    b(f"global_store_dword v{tv}, v{STV}, {ws}")


vLane = 1
def tr_pattern(b, dst, hfmul, t):
    L = vLane
    b(f"v_lshrrev_b32 v{t}, 5, v{L}")
    b(f"v_mul_u32_u24 v{t}, {hfmul}, v{t}")
    b(f"v_bfe_u32 v{t+1}, v{L}, 2, 2")
    b(f"v_add_u32 v{t}, v{t}, v{t+1}")
    b(f"v_lshlrev_b32 v{t}, 7, v{t}")
    b(f"v_bfe_u32 v{t+1}, v{L}, 3, 1")
    b(f"v_lshlrev_b32 v{t+1}, 6, v{t+1}")
    b(f"v_bfe_u32 v{t+2}, v{L}, 4, 1")
    b(f"v_lshlrev_b32 v{t+2}, 5, v{t+2}")
    b(f"v_and_b32 v{t+3}, 3, v{L}")
    b(f"v_lshlrev_b32 v{t+3}, 3, v{t+3}")
    b(f"v_add3_u32 v{t}, v{t}, v{t+2}, v{t+3}")
    b(f"v_add_u32 v{dst}, v{t}, v{t+1}")
    b(f"v_xor_b32 v{t+1}, 64, v{t+1}")
    b(f"v_add_u32 v{dst+1}, v{t}, v{t+1}")

SLOT = 24576
NSLOT = 4
WB0 = 98304
SCR = 73728
SC = 0
IMG = 1024
def wblock_lds(q):
    if q < 8: return WB0 + q * 8192
    return (q - 8) * 8192

sX, sBRE, sBIM, sW1, sHF = 36, 40, 44, 48, 52
sWave, sWm, sR, sS, sRho = 60, 61, 62, 63, 56
sLdsX, sLdsB = 64, 65
sT0, sT1, sT2, sT3 = 68, 69, 70, 71
sWL = 72
sM1, sM2, sM3 = 80, 82, 84
sHFb, sK0, sEX = 86, 87, 88
sLo = 90
sSpin, sU = 98, 99

DBGT = int(opts.get('dbgt', 0))
def dbgt_begin(b):
    if not DBGT: return
    b("s_memrealtime s[100:101]")
    b("s_waitcnt lgkmcnt(0)")
    b("s_not_b32 s101, s100")
def dbgt_end(b, dbg, vt, k2=False):
    if not DBGT: return
    b("s_mov_b32 s99, s101")
    b("s_memrealtime s[100:101]")
    b("s_waitcnt lgkmcnt(0)")
    b(f"v_mov_b32 v{vt}, 0")
    b(f"v_mov_b32 v{vt+1}, s99")
    b(f"v_mov_b32 v{vt+2}, s100")
    b("s_mov_b64 exec, 1")
    b(f"global_atomic_umax v{vt}, v{vt+1}, {dbg} offset:16")
    b(f"global_atomic_umax v{vt}, v{vt+2}, {dbg} offset:20")
    if k2:
        b(f"global_load_dwordx2 {v(vt+2,2)}, v{vt}, {dbg} offset:-496 sc1")
        b("s_waitcnt vmcnt(0)")
        b(f"global_store_dwordx2 v{vt}, {v(vt+2,2)}, {dbg} offset:8")
    b("s_mov_b64 exec, -1")

def code_prefetch(b, kname, endlabel, wshift, tag, vt, vd):
    if not int(opts.get('pfc', 1)): return
    b("s_getpc_b64 s[40:41]")
    b(f"L_{tag}_pc:")
    b(f"s_sub_u32 s40, s40, L_{tag}_pc-{kname}")
    b("s_subb_u32 s41, s41, 0")
    b("s_lshr_b32 s42, s2, 3")
    b(f"s_lshl_b32 s42, s42, {wshift + 7}")
    b(f"v_lshrrev_b32 v{vt}, 6, v0")
    b(f"v_lshlrev_b32 v{vt}, 7, v{vt}")
    b(f"v_add_u32 v{vt}, s42, v{vt}")
    b(f"v_min_u32 v{vt}, {endlabel}-{kname}-4, v{vt}")
    b(f"global_load_dword v{vd}, v{vt}, s[40:41]", 'nocount')

def k1_head():
    b = B()
    code_prefetch(b, K1, "L_code_end", 3, "k1", 2, 14)
    dbgt_begin(b)
    stamp_begin(b)
    b("s_load_dwordx16 s[4:19], s[0:1], 0")
    b("s_load_dwordx16 s[20:35], s[0:1], 64")
    b("s_cmp_ge_u32 s2, 256")
    b("s_cbranch_scc1 L_k1_end")
    b("v_lshrrev_b32 v2, 6, v0")
    b(f"v_and_b32 v{vLane}, 63, v0")
    b(f"v_readfirstlane_b32 s{sWave}, v2")
    b(f"s_and_b32 s{sT0}, s2, 7")
    b(f"s_lshr_b32 s{sT1}, s2, 3")
    b(f"s_and_b32 s{sT2}, s{sT1}, 3")
    b(f"s_lshr_b32 s{sT3}, s{sT1}, 2")
    b(f"s_lshr_b32 s{sR}, s{sT0}, 1")
    if int(opts.get('gray', 0)):
        b(f"s_lshr_b32 s{sS}, s{sR}, 1")
        b(f"s_xor_b32 s{sR}, s{sR}, s{sS}")
    b(f"s_lshl_b32 s{sR}, s{sR}, 2")
    b(f"s_add_u32 s{sR}, s{sR}, s{sT2}")
    b(f"s_and_b32 s{sS}, s{sT0}, 1")
    b(f"s_lshl_b32 s{sS}, s{sS}, 3")
    b(f"s_add_u32 s{sS}, s{sS}, s{sT3}")
    b(f"s_lshl_b32 s{sRho}, s{sT2}, 1")
    b(f"s_add_u32 s{sRho}, s{sRho}, s{sT3}")
    ROT1 = opts.get('rot1', 'two')
    if ROT1 == 'none': b(f"s_mov_b32 s{sRho}, 0")
    if ROT1 == 'half':
        b(f"s_and_b32 s{sRho}, s{sRho}, 1")
        b(f"s_lshl_b32 s{sRho}, s{sRho}, 2")
    if ROT1 == 'two':
        b(f"s_and_b32 s{sRho}, s{sRho}, 3")
        b(f"s_lshl_b32 s{sRho}, s{sRho}, 1")
    b(f"s_and_b32 s{sWm}, s{sWave}, 3")
    b(f"s_lshl_b32 s{sLdsX}, s{sWm}, 12")
    b(f"s_lshl_b32 s{sLdsB}, s{sWm}, 11")
    b(f"s_lshl_b32 s{sHFb}, s{sR}, 2")
    b(f"s_add_u32 s{sHFb}, s{sHFb}, s{sWm}")
    b(f"s_mul_i32 s{sHFb}, s{sHFb}, {176*1024}")
    if int(opts.get('swap', 0)):
        b(f"s_cmp_lt_u32 s{sWave}, 4")
        b("s_cbranch_scc1 L_k1_F")
        b("v_and_b32 v0, 0xff, v0")
    else:
        b(f"s_cmp_ge_u32 s{sWave}, 4")
        b("s_cbranch_scc1 L_k1_F")
    return b

fXe, fXo, fB, fW = 2, 3, 4, 5
fPX, fTA, fTB, fTC, fL16 = 7, 11, 13, 16, 6 + 0
fPX, fTA, fTB, fTC = 8, 12, 14, 16
fPX, fTA, fTB, fTC, fL16 = 8, 12, 16, 18, 7
fE, fD = 20, 28
fS, fAcc = 32, 64

def dma(b, voff, srdn, soff, tok, imm=0):
    o = f" offset:{imm}" if imm else ""
    b(f"buffer_load_dwordx4 v{voff}, {s(srdn,4)}, {soff} offen{o} lds", tok)
def dma_x(b, i):
    b(f"s_add_u32 m0, s{sLdsX}, {(i % NSLOT) * SLOT}")
    for k in range(4):
        dma(b, fXe if k % 2 == 0 else fXo, sX, f"s{sLo+i}", f"x{i}", k * 1024)
def dma_B(b, i):
    b(f"s_add_u32 m0, s{sLdsB}, {(i % NSLOT) * SLOT + 16384}")
    dma(b, fB, sBRE, f"s{sLo+i}", f"B{i}")
    dma(b, fB, sBIM, f"s{sLo+i}", f"B{i}", 1024)
def dma_w(b, q):
    i, hh = q % 8, q // 8
    b(f"s_add_u32 m0, s{sLdsB}, {wblock_lds(q)}")
    if hh:
        b(f"s_add_u32 s{sT0}, s{sWL+i}, 128")
        so = f"s{sT0}"
    else:
        so = f"s{sWL+i}"
    dma(b, fW, sW1, so, f"w{q}")
    dma(b, fW + 1, sW1, so, f"w{q}", 1024)

def chunks_of(ops):
    ch = []; cur = []
    for o in ops:
        cur.append(o)
        if o.kind == 'vmem': ch.append(cur); cur = []
    if cur: ch.append(cur)
    return ch

def k1_F(ffn):
    b = B(); L = vLane
    t = fE
    for i in range(8):
        b(f"s_add_u32 s{sLo+i}, s{sRho}, {i}")
        b(f"s_and_b32 s{sLo+i}, s{sLo+i}, 7")
        b(f"s_lshl_b32 s{sLo+i}, s{sLo+i}, 7")
    b(f"v_and_b32 v{t}, 7, v{L}")
    b(f"v_lshrrev_b32 v{t+1}, 4, v{L}")
    b(f"v_xor_b32 v{t+2}, v{t}, v{t+1}")
    b(f"v_lshlrev_b32 v{t+2}, 4, v{t+2}")
    b(f"v_lshrrev_b32 v{t+3}, 3, v{L}")
    b(f"s_lshl_b32 s{sT0}, s{sR}, 17")
    b(f"s_lshl_b32 s{sT1}, s{sWm}, 15")
    b(f"s_add_u32 s{sT0}, s{sT0}, s{sT1}")
    b(f"v_lshlrev_b32 v{t}, 12, v{t+3}")
    b(f"v_add3_u32 v{fXe}, v{t}, v{t+2}, s{sT0}")
    b(f"v_xor_b32 v{fXo}, 64, v{fXe}")
    b(f"s_and_b32 s{sT0}, s{sWm}, 1")
    b(f"s_lshl_b32 s{sT0}, s{sT0}, 6")
    b(f"v_xor_b32 v{t+1}, s{sT0}, v{t+2}")
    b(f"s_lshl_b32 s{sT0}, s{sWm}, 13")
    b(f"s_lshl_b32 s{sT1}, s{sS}, 15")
    b(f"s_add_u32 s{sT0}, s{sT0}, s{sT1}")
    b(f"v_lshlrev_b32 v{t}, 10, v{t+3}")
    b(f"v_add3_u32 v{fB}, v{t}, v{t+1}, s{sT0}")
    b("s_waitcnt lgkmcnt(0)")
    srd(b, sX, 4, 2048*1024)
    srd(b, sBRE, 10, 512*1024)
    b(f"s_sub_u32 s{sBIM}, s12, 1024")
    b(f"s_subb_u32 s{sBIM+1}, s13, 0")
    b(f"s_mov_b32 s{sBIM+2}, {512*1024 + 1024}")
    b(f"s_mov_b32 s{sBIM+3}, 0x20000")
    if STAMP >= 2: stamp(b, 8)
    INI = int(opts.get('ini', 3))
    for i in range(INI):
        dma_x(b, i); dma_B(b, i)
    if STAMP >= 2: stamp(b, 9)
    srd(b, sHF, 34, WS_USED)
    if ffn:
        srd(b, sW1, 24, 512*3584)
        b(f"v_bfe_u32 v{t+1}, v{L}, 4, 1")
        b(f"v_lshlrev_b32 v{t+1}, 2, v{t+1}")
        b(f"v_and_b32 v{t+3}, 7, v{L}")
        b(f"v_xor_b32 v{t+3}, v{t+3}, v{t+1}")
        b(f"v_lshlrev_b32 v{t+3}, 4, v{t+3}")
        b(f"v_lshrrev_b32 v{t+1}, 3, v{L}")
        b(f"s_lshl_b32 s{sT3}, s{sWm}, 4")
        b(f"v_add_u32 v{t+1}, s{sT3}, v{t+1}")
        b(f"v_mul_u32_u24 v{t+1}, 3584, v{t+1}")
        b(f"v_add_u32 v{fW}, v{t+1}, v{t+3}")
        b(f"v_add_u32 v{fW+1}, {8*3584 - 1024}, v{fW}")
        b(f"s_lshl_b32 s{sT3}, s{sS}, 8")
        for i in range(8):
            b(f"s_mul_i32 s{sWL+i}, s{sLo+i}, 1792")
            b(f"s_add_u32 s{sWL+i}, s{sWL+i}, s{sT3}")
        tr_pattern(b, fTA, 8, t)
        b(f"v_add_u32 v{fTB}, 0x10000, v{fTA}")
        b(f"v_add_u32 v{fTB+1}, 0x10000, v{fTA+1}")
        b(f"v_add_u32 v{fTC}, 0x20000, v{fTA}")
        b(f"v_add_u32 v{fTC+1}, 0x20000, v{fTA+1}")
        b(f"v_lshlrev_b32 v{fL16}, 4, v{L}")
        b(f"v_and_b32 v{t}, 31, v{L}")
        b(f"v_lshrrev_b32 v{t+1}, 5, v{L}")
        b(f"v_bfe_u32 v{t+2}, v{L}, 1, 3")
        b(f"v_xor_b32 v{t+2}, v{t+1}, v{t+2}")
        b(f"v_lshlrev_b32 v{t+1}, 7, v{t}")
        b(f"v_add_u32 v{t+1}, s{sLdsX}, v{t+1}")
        for k in range(4):
            b(f"v_xor_b32 v{t+3}, {2*k}, v{t+2}")
            b(f"v_lshl_add_u32 v{fPX+k}, v{t+3}, 4, v{t+1}")
        b(f"s_mov_b32 s66, {LOG2E ^ 0x80000000:#x}")
        b(f"s_mov_b32 s67, {LOG2E ^ 0x80000000:#x}")
        b(f"s_lshl_b32 s{sU}, s{sS}, 13")
        b(f"s_add_u32 s{sU}, s{sU}, s{sHFb}")
        b(f"s_add_u32 s{sU}, s{sU}, {64*1024}")
    stamp(b, 1)
    for i in range(8):
        if STAMP >= 2: stamp(b, 10 + 2*i)
        b.wait('vm', f"x{i}", f"B{i}")
        b("s_waitcnt lgkmcnt(0)")
        b("s_barrier")
        if STAMP >= 2: stamp(b, 11 + 2*i)
        if ffn:
            po = (i % NSLOT) * SLOT
            if po >= 65536:
                for k in range(4): b(f"v_add_u32 v{fE+k}, 0x10000, v{fPX+k}")
            for k in range(4):
                if po >= 65536: b(f"ds_read_b128 {a(16*i+4*k,4)}, v{fE+k} offset:{po - 65536}")
                else: b(f"ds_read_b128 {a(16*i+4*k,4)}, v{fPX+k} offset:{po}")
        if i == 0 and INI == 2:
            dma_x(b, 2); dma_B(b, 2)
        if i <= 4:
            dma_x(b, i + 3); dma_B(b, i + 3)
        elif ffn:
            for q in {5: (0, 1, 2), 6: (3, 4, 5), 7: (6, 7)}[i]: dma_w(b, q)
        if True:
            if not ffn and i == 5:
                b(f"s_lshl_b32 s{sT0}, s{sR}, 1")
                b(f"s_add_u32 s{sT0}, s{sT0}, s{sS}")
                b(f"s_sub_u32 s{sT0}, s{sT0}, 14")
                b(f"s_lshl_b32 s{sT0}, s{sT0}, 2")
                b(f"s_add_u32 s{sT0}, s{sT0}, s{sWm}")
                b(f"v_lshlrev_b32 v8, 7, v{L}")
                srd(b, sW1, 26, 1792*1024)
                srd(b, sHF, 14, 512*1024)
                srd(b, 76, 16, 512*1024)
                b(f"s_mul_i32 s{sT1}, s{sT0}, 14336")
                b(f"buffer_load_dword v9, v8, {s(sW1,4)}, s{sT1} offen")
                b(f"s_add_u32 s{sT1}, s{sT1}, 8192")
                b(f"buffer_load_dword v10, v8, {s(sW1,4)}, s{sT1} offen")
                b(f"s_lshl_b32 s{sT1}, s{sT0}, 12")
                b(f"buffer_load_dword v11, v8, {s(sHF,4)}, s{sT1} offen")
                b(f"buffer_load_dword v12, v8, {s(76,4)}, s{sT1} offen")
    stamp(b, 2)
    if not ffn:
        b(f"s_lshl_b32 s{sT0}, s{sR}, 1")
        b(f"s_add_u32 s{sT0}, s{sT0}, s{sS}")
        b(f"s_sub_u32 s{sT0}, s{sT0}, 14")
        b(f"s_lshl_b32 s{sT0}, s{sT0}, 2")
        b(f"s_add_u32 s{sT0}, s{sT0}, s{sWm}")
        k1_gjob_all(b)
        return b
    def ffn_phase(hh):
        p = B(); DEPTH = 3
        def lds_loc(n):
            i, k = divmod(n, 4)
            base = wblock_lds(8 * hh + i) + 16 * k * 128
            if base < 65536: return fTA, base
            if base < 131072: return fTB, base - 65536
            return fTC, base - 131072
        plan = {0: [0, 1, 2, 3], int(opts.get('bcn', 12)): [4, 5, 6, 7]} if hh == 0 else {0: list(range(8, 16))}
        def reads(n):
            if n in plan:
                p.wait('vm', *[f"w{q}" for q in plan[n]])
                if hh == 0 and n == 0: p("s_waitcnt lgkmcnt(0)")
                if STAMP >= 2: stamp(p, 26 + (0 if n == 0 else 1) if hh == 0 else 29)
                p("s_barrier")
                if STAMP >= 2 and hh == 0: stamp(p, 30 + (0 if n == 0 else 1))
            base, off = lds_loc(n)
            r = fS + (n % 4) * 8
            for ft in range(2):
                for rd in range(2):
                    p(f"ds_read_b64_tr_b16 {v(r+4*ft+2*rd,2)}, v{base+ft} offset:{off + rd*512}", f"r{hh}_{n}")
        ch = []
        if hh == 0:
            d = B()
            for q in range(8, 16): dma_w(d, q)
            ch = chunks_of(d.ops)
        for n in range(DEPTH): reads(n)
        for n in range(32):
            i, k = divmod(n, 4)
            r = fS + (n % 4) * 8
            p.wait('lg', f"r{hh}_{n}")
            for ft in range(2):
                acc = fAcc + (2*hh + ft) * 16
                c = v(acc, 16) if n else "0"
                p(f"v_mfma_f32_32x32x16_bf16 {v(acc,16)}, {v(r+4*ft,4)}, {a(16*i+4*k,4)}, {c}")
                if ft == 0 and ch: p.ext(ch.pop(0))
            if hh == 0 and n == int(opts.get('bxn', 1)): p("s_barrier")
            if hh == 0 and n == 16 and int(opts.get('cearly', 1)): p("s_barrier")
            if n + DEPTH < 32: reads(n + DEPTH)
        assert not ch
        return p
    if int(opts.get('tseq', 0)):
        DEPTH = int(opts.get('tdepth', 6))
        def loc(g):
            t_, n = divmod(g, 32); i, k = divmod(n, 4)
            base = wblock_lds(8 * (t_ // 2) + i) + 16 * k * 128
            if base < 65536: return fTA + (t_ & 1), base
            if base < 131072: return fTB + (t_ & 1), base - 65536
            return fTC + (t_ & 1), base - 131072
        d = B()
        for q in range(8, 16): dma_w(d, q)
        ch = chunks_of(d.ops)
        tiles = []
        p = B()
        def rd(g):
            if g == 0:
                p.wait('vm', "w0", "w1", "w2", "w3"); p("s_waitcnt lgkmcnt(0)"); p("s_barrier")
            if g == 16:
                p.wait('vm', "w4", "w5", "w6", "w7"); p("s_barrier")
            if g == 64: p("s_barrier")
            base, off = loc(g); r = fS + (g % 8) * 4
            for r_ in range(2):
                p(f"ds_read_b64_tr_b16 {v(r+2*r_,2)}, v{base} offset:{off + r_*512}", f"t{g}")
        for g in range(DEPTH): rd(g)
        for g in range(128):
            t_, n = divmod(g, 32); i, k = divmod(n, 4)
            if n == 0 and t_: tiles.append(p); p = B()
            r = fS + (g % 8) * 4; acc = fAcc + t_ * 16
            if g % 2 == 0: p.wait('lg', f"t{g}", f"t{g+1}")
            p(f"v_mfma_f32_32x32x16_bf16 {v(acc,16)}, {v(r,4)}, {a(16*i+4*k,4)}, {v(acc,16) if n else 0}")
            if ch: p.ext(ch.pop(0))
            if g == int(opts.get('bxn', 3)): p("s_barrier")
            if g == 31: p.wait('vm', *[f"w{q}" for q in range(8, 16)])
            if g + DEPTH < 128: rd(g + DEPTH)
        tiles.append(p)
        PT = int(opts.get('pert', 3))
        b.ext(tiles[0])
        for t_ in range(1, 4):
            b.ext(merge(tiles[t_].ops, k1_silu(t_ - 1, False).ops, per=PT, start=1))
            if t_ == 1: stamp(b, 3)
        stamp(b, 4)
        b.ext(flat(k1_silu(3, True).ops))
        stamp(b, 5)
        return b
    b.ext(ffn_phase(0))
    stamp(b, 3)
    p3 = ffn_phase(1)
    fl = F()
    fl.ext(k1_silu(0, False)); fl.ext(k1_silu(1, False))
    if opts.get('p3mode') == 'nofill':
        b.ext(p3.ops); stamp(b, 6); b.ext(flat(fl.ops))
    elif opts.get('p3mode') == 'nostore':
        fo = [o for o in fl.ops if not (not isinstance(o, list) and o.kind == 'vmem')]
        st_ = [o for o in fl.ops if (not isinstance(o, list) and o.kind == 'vmem')]
        b.ext(merge(p3.ops, fo, per=int(opts.get('per3', 4)), start=1))
    else:
        b.ext(merge(p3.ops, fl.ops, per=int(opts.get('per3', 4)), start=1))
    stamp(b, 4)
    b.ext(flat(k1_silu(2, True).ops))
    b.ext(flat(k1_silu(3, True).ops))
    stamp(b, 5)
    return b

def k1_silu(ft, pk):
    b = F()
    acc = fAcc + ft * 16
    e, d = fE, fD
    for kk in range(2):
        base = acc + 8 * kk
        if pk:
            for q in range(4): b(f"v_pk_mul_f32 {v(e+2*q,2)}, {v(base+2*q,2)}, s[66:67]")
            for q in range(8): b(f"v_exp_f32 v{e+q}, v{e+q}")
            for q in range(4): b(f"v_pk_add_f32 {v(e+2*q,2)}, {v(e+2*q,2)}, 1.0 op_sel_hi:[1,0]")
            for q in range(8): b(f"v_rcp_f32 v{e+q}, v{e+q}")
            for q in range(4): b(f"v_pk_mul_f32 {v(e+2*q,2)}, {v(base+2*q,2)}, {v(e+2*q,2)}")
            for q in range(4): b(f"v_cvt_pk_bf16_f32 v{d+q}, v{e+2*q}, v{e+2*q+1}")
        else:
            seq = []
            for q in range(8):
                seq.append([f"v_mul_f32 v{e+q}, s66, v{base+q}", f"v_exp_f32 v{e+q}, v{e+q}", f"v_add_f32 v{e+q}, 1.0, v{e+q}",
                            f"v_rcp_f32 v{e+q}, v{e+q}", f"v_mul_f32 v{e+q}, v{base+q}, v{e+q}"])
            if opts.get('silu', 'diag') == 'diag':
                for tm in range(8 + 4):
                    for stg in range(5):
                        q = tm - stg
                        if 0 <= q < 8: b(seq[q][stg])
            elif opts.get('silu') == 'block':
                for stg in range(5):
                    for q in range(8): b(seq[q][stg])
            else:
                for tm in range(8 + 8):
                    for stg in range(5):
                        q = tm - 2 * stg
                        if 0 <= q < 8: b(seq[q][stg])
            for q in range(4): b(f"v_cvt_pk_bf16_f32 v{d+q}, v{e+2*q}, v{e+2*q+1}")
        b(f"s_add_u32 s{sK0}, s{sU}, {(2*ft+kk)*1024}")
        b(f"buffer_store_dwordx4 {v(d,4)}, v{fL16}, {s(sHF,4)}, s{sK0} offen {STF}")
    return b

gPX, gPB = 2, 6
vLBa, vImgW, vImgR, vL16o = 10, 11, 12, 13
vL, vC2, vL16, vL32, vL128, vL256, vF1, vG, vHfm = 16, 18, 20, 22, 24, 26, 28, 30, 32
vNon, vK, vQ, vW_, vPre, vTmp = 34, 36, 38, 40, 42, 44
vP = 48
aRE, aIM, vU = 64, 80, 96
aSX, aSB = 0, 16

def k1_S_setup():
    b = B(); L = vLane; t = vP
    b("s_waitcnt lgkmcnt(0)")
    srd(b, sHF, 34, WS_USED)
    b(f"v_and_b32 v{t}, 31, v{L}")
    b(f"s_lshl_b32 s{sT0}, s{sS}, 5")
    b(f"v_add_u32 v{t}, s{sT0}, v{t}")
    b(f"v_lshlrev_b32 v{t}, 1, v{t}")
    b(f"global_load_ushort v{vP+8}, v{t}, s[6:7]")
    b(f"global_load_ushort v{vP+9}, v{t}, s[8:9]")
    b(f"global_load_ushort v{vP+10}, v{t}, s[18:19]")
    if int(opts.get('nearly', 0)):
        b(f"s_or_b32 s{sT0}, s2, s{sWm}")
        b(f"s_cmp_lg_u32 s{sT0}, 0")
        b("s_cbranch_scc1 L_k1_nononce")
        b(f"v_mov_b32 v{t}, {NONCE_OFF}")
        b(f"global_load_dwordx2 {v(vU+26,2)}, v{t}, s[34:35] sc1", 'nocount')
        b("s_waitcnt vmcnt(0)", 'nocount')
        b(f"v_add_u32 v{vU+26}, 1, v{vU+26}")
        b(f"v_or_b32 v{vU+27}, 1, v{vU+27}")
        b(f"v_mov_b32 v{t+1}, 0")
        b(f"global_store_dwordx2 v{t+1}, {v(vU+26,2)}, s[32:33] sc0 sc1", 'nocount')
        b(f"global_store_dwordx2 v{t}, {v(vU+26,2)}, s[34:35] sc0 sc1", 'nocount')
        b("L_k1_nononce:")
    else:
        b(f"v_mov_b32 v{t}, {NONCE_OFF}")
        b(f"global_load_dwordx2 {v(vU+26,2)}, v{t}, s[34:35] sc1")
    if int(opts.get('flgw', 1)):
        b(f"s_mul_i32 s{sT0}, s{sR}, {FLG_STRIDE}")
        b(f"s_add_u32 s{sT0}, s{sT0}, {FLG_OFF}")
        b(f"v_mov_b32 v{t}, s{sT0}")
        b(f"global_load_dword v{vU+10}, v{t}, s[34:35] sc1", 'nocount')
        b(f"s_lshl_b32 s{sT0}, s{sR}, 10")
        b(f"s_add_u32 s{sT0}, s{sT0}, {G_OFF}")
        b(f"v_and_b32 v{t}, 7, v{L}")
        b(f"v_lshlrev_b32 v{t}, 7, v{t}")
        b(f"v_add_u32 v{t}, s{sT0}, v{t}")
        b(f"global_load_dword v{vU+11}, v{t}, s[34:35] sc1", 'nocount')
    if int(opts.get('tlbw', 1)):
        pd = vU + 12
        b(f"s_cmp_eq_u32 s{sWm}, 2")
        b("s_cbranch_scc0 L_k1_tlb_done")
        b(f"v_mov_b32 v{t}, 0")
        for k, ptr in enumerate((24, 14, 16, 26, 20)):
            b(f"global_load_dword v{pd+k}, v{t}, {s(ptr,2)}", 'nocount')
        if int(opts.get('tlbw2', 0)):
            b(f"global_load_dword v{pd+7-8}, v{t}, s[32:33] sc1", 'nocount')
            b(f"v_and_b32 v{t+1}, 7, v{L}")
            b(f"v_lshlrev_b32 v{t+1}, 7, v{t+1}")
            b(f"global_load_dword v{pd+7-9}, v{t+1}, s[28:29]", 'nocount')
        b(f"v_min_u32 v{t}, 19, v{L}")
        b(f"v_lshlrev_b32 v{t}, 20, v{t}")
        b(f"global_load_dword v{pd+5}, v{t}, s[34:35]", 'nocount')
        b(f"v_and_b32 v{t}, 3, v{L}")
        b(f"v_lshlrev_b32 v{t}, 20, v{t}")
        b(f"global_load_dword v{pd+6}, v{t}, s[30:31]", 'nocount')
        b("L_k1_tlb_done:")
    PF = int(opts.get('pf', 0))
    if PF:
        pd = vU + 28
        b(f"s_cmp_eq_u32 s{sWm}, 0")
        b("s_cbranch_scc0 L_k1_pf_1")
        b(f"v_lshrrev_b32 v{t}, 3, v{L}")
        b(f"s_lshl_b32 s{sT2}, s2, 3")
        b(f"v_add_u32 v{t}, s{sT2}, v{t}")
        b(f"v_lshlrev_b32 v{t}, 10, v{t}")
        b(f"v_and_b32 v{t+1}, 7, v{L}")
        b(f"v_max_u32 v{t+1}, 3, v{t+1}")
        b(f"v_lshl_add_u32 v{t}, v{t+1}, 7, v{t}")
        b(f"global_load_dword v{pd}, v{t}, s[4:5]", 'nocount')
        b("L_k1_pf_1:")
        b(f"s_cmp_eq_u32 s{sWm}, 1")
        b("s_cbranch_scc0 L_k1_pf_2")
        b(f"v_bfe_u32 v{t}, v{L}, 3, 1")
        b(f"s_lshl_b32 s{sT2}, s2, 1")
        b(f"v_add_u32 v{t}, s{sT2}, v{t}")
        b(f"v_lshlrev_b32 v{t}, 10, v{t}")
        b(f"v_and_b32 v{t+1}, 7, v{L}")
        b(f"v_max_u32 v{t+1}, 3, v{t+1}")
        b(f"v_lshl_add_u32 v{t}, v{t+1}, 7, v{t}")
        b(f"global_load_dword v{pd}, v{t}, s[10:11]", 'nocount')
        b(f"global_load_dword v{pd+1}, v{t}, s[12:13]", 'nocount')
        b("L_k1_pf_2:")
        b(f"s_cmp_eq_u32 s{sWm}, 2")
        b("s_cbranch_scc0 L_k1_pf_done")
        b(f"v_lshrrev_b32 v{t}, 5, v{L}")
        b(f"s_lshl_b32 s{sT2}, s2, 1")
        b(f"v_add_u32 v{t}, s{sT2}, v{t}")
        b(f"v_mul_u32_u24 v{t}, 3584, v{t}")
        b(f"v_and_b32 v{t+1}, 31, v{L}")
        b(f"v_min_u32 v{t+1}, 27, v{t+1}")
        b(f"v_lshl_add_u32 v{t}, v{t+1}, 7, v{t}")
        b(f"global_load_dword v{pd}, v{t}, s[24:25]", 'nocount')
        b("L_k1_pf_done:")
    b(f"v_and_b32 v{t}, 31, v{L}")
    b(f"v_lshrrev_b32 v{t+1}, 5, v{L}")
    b(f"v_bfe_u32 v{t+2}, v{L}, 1, 3")
    b(f"v_xor_b32 v{t+2}, v{t+1}, v{t+2}")
    b(f"v_lshlrev_b32 v{t+1}, 7, v{t}")
    b(f"v_add_u32 v{t+1}, s{sLdsX}, v{t+1}")
    b(f"v_lshrrev_b32 v{t+3}, 3, v{t}")
    b(f"v_lshlrev_b32 v{t+3}, 11, v{t+3}")
    b(f"v_and_b32 v{t}, 7, v{t}")
    b(f"v_lshl_add_u32 v{t}, v{t}, 7, v{t+3}")
    b(f"v_add_u32 v{t}, 16384, v{t}")
    for k in range(4):
        b(f"v_xor_b32 v{t+3}, {2*k}, v{t+2}")
        b(f"v_lshl_add_u32 v{gPX+k}, v{t+3}, 4, v{t+1}")
        b(f"v_lshl_add_u32 v{gPB+k}, v{t+3}, 4, v{t}")
    return b

def k1_params():
    b = F()
    lre, lim, ldt = vP+8, vP+9, vP+10
    va, vang, t0 = vP, vP+1, vP+2
    b(f"v_lshlrev_b32 v{lre}, 16, v{lre}")
    b(f"v_lshlrev_b32 v{lim}, 16, v{lim}")
    b(f"v_lshlrev_b32 v{ldt}, 16, v{ldt}")
    b(f"v_mul_f32 v{ldt}, {LOG2E:#x}, v{ldt}")
    b(f"v_exp_f32 v{ldt}, v{ldt}")
    b(f"v_cvt_pk_bf16_f32 v{ldt}, v{ldt}, v{ldt}")
    b(f"v_lshlrev_b32 v{ldt}, 16, v{ldt}")
    b(f"v_mul_f32 v{va}, v{ldt}, v{lre}")
    b(f"v_mul_f32 v{vang}, v{ldt}, v{lim}")
    b(f"v_mul_f32 v{va}, {LOG2E:#x}, v{va}")
    b(f"v_mul_f32 v{vang}, {INV2PI:#x}, v{vang}")
    cexp(b, vL, "1.0", va, vang, t0)
    for dst, cst in ((vL16, 0x41800000), (vL32, 0x42000000), (vL128, 0x43000000), (vL256, 0x43800000)):
        b(f"v_mov_b32 v{t0+3}, {cst:#x}")
        cexp(b, dst, f"v{t0+3}", va, vang, t0)
    b(f"v_lshrrev_b32 v{t0+3}, 5, v{vLane}")
    b(f"v_cvt_f32_u32 v{vHfm}, v{t0+3}")
    b(f"v_lshlrev_b32 v{t0+3}, 4, v{t0+3}")
    b(f"v_cvt_f32_u32 v{t0+3}, v{t0+3}")
    cexp(b, vF1, f"v{t0+3}", va, vang, t0)
    b(f"v_lshrrev_b32 v{t0+3}, 5, v{vLane}")
    b(f"v_lshlrev_b32 v{t0+3}, 4, v{t0+3}")
    b(f"s_lshl_b32 s{sSpin}, s{sWm}, 5")
    b(f"v_add_u32 v{t0+3}, s{sSpin}, v{t0+3}")
    b(f"v_cvt_f32_u32 v{t0+3}, v{t0+3}")
    cexp(b, vG, f"v{t0+3}", va, vang, t0)
    b(f"v_add_f32 v{t0}, -1.0, v{vL}")
    b(f"v_mul_f32 v{t0+1}, v{lre}, v{lre}")
    b(f"v_fma_f32 v{t0+1}, v{lim}, v{lim}, v{t0+1}")
    b(f"v_rcp_f32 v{t0+1}, v{t0+1}")
    b(f"v_mul_f32 v{vC2}, v{t0}, v{lre}")
    b(f"v_fma_f32 v{vC2}, v{vL+1}, v{lim}, v{vC2}")
    b(f"v_mul_f32 v{vC2+1}, v{vL+1}, v{lre}")
    b(f"v_fma_f32 v{vC2+1}, -v{t0}, v{lim}, v{vC2+1}")
    b(f"v_add_f32 v{t0+1}, v{t0+1}, v{t0+1}")
    b(f"v_mul_f32 v{vC2}, v{vC2}, v{t0+1}")
    b(f"v_mul_f32 v{vC2+1}, v{vC2+1}, v{t0+1}")
    return b

def k1_setup_common():
    b = F(); t = vP + 12; L = vLane
    for k, m in ((1, sM1), (2, sM2), (3, sM3)):
        g = B()
        g(f"s_cmp_ge_u32 s{sWm}, {k}")
        g(f"s_cselect_b64 {s(m,2)}, -1, 0")
        b.group(g)
    b(f"v_lshlrev_b32 v{vL16o}, 4, v{L}")
    b(f"v_and_b32 v{t}, 31, v{L}")
    b(f"v_lshlrev_b32 v{t}, 4, v{t}")
    b(f"s_lshl_b32 s{sK0}, s{sS}, 9")
    b(f"s_add_u32 s{sK0}, s{sK0}, {E_OFF}")
    b(f"v_add_u32 v{vLBa}, s{sK0}, v{t}")
    b(f"v_and_b32 v{t}, 31, v{L}")
    b(f"v_mul_u32_u24 v{t}, 80, v{t}")
    b(f"v_lshrrev_b32 v{t+1}, 5, v{L}")
    b(f"v_lshl_add_u32 v{t}, v{t+1}, 5, v{t}")
    b(f"s_mul_i32 s{sK0}, s{sWm}, 5120")
    b(f"s_add_u32 s{sK0}, s{sK0}, {SCR}")
    b(f"v_add_u32 v{vImgW}, s{sK0}, v{t}")
    b(f"v_lshrrev_b32 v{t+1}, 5, v{L}")
    b(f"v_lshlrev_b32 v{t+1}, 3, v{t+1}")
    b(f"v_bfe_u32 v{t+2}, v{L}, 2, 2")
    b(f"v_add_u32 v{t+1}, v{t+1}, v{t+2}")
    b(f"v_mul_u32_u24 v{t+1}, 80, v{t+1}")
    b(f"v_and_b32 v{t+2}, 1, v{L}")
    b(f"v_lshlrev_b32 v{t+2}, 5, v{t+2}")
    b(f"v_bfe_u32 v{t+3}, v{L}, 4, 1")
    b(f"v_lshlrev_b32 v{t+3}, 4, v{t+3}")
    b(f"v_add3_u32 v{t+1}, v{t+1}, v{t+2}, v{t+3}")
    b(f"v_bfe_u32 v{t+2}, v{L}, 1, 1")
    b(f"v_lshlrev_b32 v{t+2}, 3, v{t+2}")
    b(f"v_add3_u32 v{vImgR}, v{t+1}, v{t+2}, s{sK0}")
    return b

def k1_gjob_all(b):
    L = vLane
    xs0, gs, gu, t, w = 32, 112, 16, 120, 96
    b(f"v_and_b32 v{t}, 31, v{L}")
    b(f"v_lshlrev_b32 v{t}, 4, v{t}")
    b(f"global_load_dwordx4 {v(gs,4)}, v{t}, s[28:29]")
    b(f"global_load_dwordx4 {v(gs+4,4)}, v{t}, s[28:29] offset:512")
    b(f"v_lshrrev_b32 v{t+1}, 5, v{L}")
    b(f"s_lshl_b32 s{sT1}, s{sT0}, 4")
    b(f"v_add_u32 v{t+1}, s{sT1}, v{t+1}")
    b(f"v_lshlrev_b32 v{t+2}, 3, v{t+1}")
    b(f"v_add_u32 v{t+2}, {G_OFF}, v{t+2}")
    b(f"v_lshlrev_b32 v{t+1}, 10, v{t+1}")
    b(f"v_add_u32 v{t+1}, v{t+1}, v{t}")
    for p in range(8):
        r = xs0 + p * 8
        if p: b(f"v_add_u32 v{t+1}, 2048, v{t+1}")
        b(f"global_load_dwordx4 {v(r,4)}, v{t+1}, s[4:5]")
        b(f"global_load_dwordx4 {v(r+4,4)}, v{t+1}, s[4:5] offset:512")
    for _ in range(5 if int(opts.get('cearly', 1)) else 4): b("s_barrier")
    for k in range(8):
        b(f"v_lshlrev_b32 v{gu+2*k}, 16, v{gs+k}")
        b(f"v_and_b32 v{gu+2*k+1}, 0xffff0000, v{gs+k}")
    b(f"v_and_b32 v{t+3}, 31, v{L}")
    for p in range(8):
        xs = xs0 + p * 8
        acc = w
        for k in range(8):
            a0 = w + 2 + 2 * (k % 4)
            b(f"v_lshlrev_b32 v{a0}, 16, v{xs+k}")
            b(f"v_and_b32 v{a0+1}, 0xffff0000, v{xs+k}")
            b(f"v_pk_mul_f32 {v(a0,2)}, {v(a0,2)}, {v(gu+2*k,2)}")
            b(f"v_cvt_pk_bf16_f32 v{a0}, v{a0}, v{a0+1}")
            b(f"v_and_b32 v{a0+1}, 0xffff0000, v{a0}")
            b(f"v_lshlrev_b32 v{a0}, 16, v{a0}")
            if k == 0:
                b(f"v_add_f32 v{acc}, v{a0}, v{a0+1}")
            else:
                b(f"v_add_f32 v{a0}, v{a0}, v{a0+1}")
                b(f"v_add_f32 v{acc}, v{acc}, v{a0}")
        for r in (8, 4, 2, 1):
            b(f"v_add_f32_dpp v{acc}, v{acc}, v{acc} row_ror:{r} row_mask:0xf bank_mask:0xf")
        b(f"v_mov_b32 v{acc+1}, v{acc}")
        b(f"v_permlane16_swap_b32 v{acc}, v{acc+1}")
        b(f"v_add_f32 v{acc}, v{acc}, v{acc+1}")
        b(f"v_cvt_pk_bf16_f32 v{acc}, v{acc}, v{acc}")
        b(f"v_lshlrev_b32 v{acc}, 16, v{acc}")
        b(f"v_mul_f32 v{acc}, {LOG2E ^ 0x80000000:#x}, v{acc}")
        b(f"v_exp_f32 v{acc}, v{acc}")
        b(f"v_add_f32 v{acc}, 1.0, v{acc}")
        b(f"v_rcp_f32 v{acc}, v{acc}")
        b(f"v_cvt_pk_bf16_f32 v{acc}, v{acc}, v{acc}")
        d = xs
        b(f"v_lshlrev_b32 v{d}, 16, v{acc}")
        b(f"v_sub_f32 v{d+1}, 1.0, v{d}")
        b(f"v_cvt_pk_bf16_f32 v{d+1}, v{d+1}, v{d+1}")
        b(f"v_lshlrev_b32 v{d+1}, 16, v{d+1}")
    b(f"v_cmp_eq_u32 vcc, 0, v{t+3}")
    b(f"s_and_saveexec_b64 {s(sEX,2)}, vcc")
    for p in range(8):
        b(f"global_store_dwordx2 v{t+2}, {v(xs0+8*p,2)}, s[34:35] offset:{16*p} sc0 sc1")
    b(f"s_mov_b64 exec, {s(sEX,2)}")

def k1_nonce():
    b = F()
    t = vU + 26
    b(f"v_add_u32 v{t}, 1, v{t}")
    b(f"v_or_b32 v{t+1}, 1, v{t+1}")
    b(f"v_mov_b32 v{t+2}, {NONCE_OFF}")
    b(f"v_mov_b32 v{t+3}, 0")
    g = B()
    g(f"s_or_b32 s{sSpin}, s2, s{sWm}")
    g(f"s_cmp_lg_u32 s{sSpin}, 0")
    g("s_cbranch_scc1 L_k1_nononce")
    g(f"global_store_dwordx2 v{t+2}, {v(t,2)}, s[34:35] sc0 sc1", 'nocount')
    g(f"global_store_dwordx2 v{t+3}, {v(t,2)}, s[32:33] sc0 sc1", 'nocount')
    g("L_k1_nononce:")
    b.group(g)
    return b

def k1_S():
    b = k1_S_setup()
    if int(opts.get('sprio', 1)): b("s_setprio 2")
    m = B()
    for i in range(8):
        m("s_waitcnt lgkmcnt(0)")
        m("s_barrier")
        po = (i % NSLOT) * SLOT
        hi = po >= 65536 - 1024
        if hi:
            for k in range(4):
                m(f"v_add_u32 v{vTmp+k}, 0x10000, v{gPX+k}")
        for k in range(4):
            if hi: m(f"ds_read_b128 {a(aSX+4*k,4)}, v{vTmp+k} offset:{po - 65536}")
            else: m(f"ds_read_b128 {a(aSX+4*k,4)}, v{gPX+k} offset:{po}")
        if hi:
            for k in range(4):
                m(f"v_add_u32 v{vTmp+k}, 0x10000, v{gPB+k}")
        for k in range(4):
            for mm in range(2):
                if hi: m(f"ds_read_b128 {a(aSB+8*k+4*mm,4)}, v{vTmp+k} offset:{po - 65536 + mm*1024}")
                else: m(f"ds_read_b128 {a(aSB+8*k+4*mm,4)}, v{gPB+k} offset:{po + mm*1024}")
        for k in range(4):
            for mm, acc in ((0, aRE), (1, aIM)):
                c = v(acc, 16) if (i, k) != (0, 0) else "0"
                m(f"v_mfma_f32_32x32x16_bf16 {v(acc,16)}, {a(aSX+4*k,4)}, {a(aSB+8*k+4*mm,4)}, {c}")
    f = F()
    if not int(opts.get('nearly', 0)): f.ext(k1_nonce())
    if int(opts.get('pfw', 0)):
        g = B(); t = vP + 12
        g(f"s_cmp_eq_u32 s{sWm}, {int(opts.get('pfww', 1))}")
        g("s_cbranch_scc0 L_k1_pfw_done")
        g(f"v_lshrrev_b32 v{t}, 5, v{vLane}")
        g(f"s_lshl_b32 s{sSpin}, s2, 1")
        g(f"v_add_u32 v{t}, s{sSpin}, v{t}")
        g(f"v_mul_u32_u24 v{t}, 3584, v{t}")
        g(f"v_and_b32 v{t+1}, 31, v{vLane}")
        g(f"v_min_u32 v{t+1}, 27, v{t+1}")
        g(f"v_lshl_add_u32 v{t}, v{t+1}, 7, v{t}")
        g(f"global_load_dword v{vU+9}, v{t}, s[24:25]", 'nocount')
        g("L_k1_pfw_done:")
        f.group(g)
    f.ext(k1_params())
    f.ext(k1_setup_common())
    g = B()
    g(f"v_mov_b32 v{vTmp}, 0")
    g(f"global_load_dwordx2 {v(vNon,2)}, v{vTmp}, s[32:33] sc1")
    f.group(g)
    b.ext(merge(m.ops, f.ops, per=int(opts.get('per1', 5))))
    b("s_waitcnt vmcnt(0)")
    stamp(b, 2)
    s1 = flat(k1_scan1a().ops)
    cut = [j for j, o in enumerate(s1) if o.kind == 'ds'][0]
    if STAMP >= 2: stamp(b, 8)
    if int(opts.get('hb8', 1)):
        b.ext(s1[:cut])
        if STAMP >= 2: stamp(b, 9)
        b("s_barrier")
        b.ext(s1[cut:])
    else:
        b("s_barrier")
        b.ext(s1)
    if STAMP >= 2: stamp(b, 11)
    b("s_barrier")
    if STAMP >= 2: stamp(b, 12)
    b.ext(flat(k1_scan1b().ops))
    if STAMP >= 2: stamp(b, 13)
    b.ext(k1_publish())
    stamp(b, 3)
    b("s_barrier")
    b.ext(p2_S_csetup())
    if opts.get('lbfirst', '0') == '1':
        b("s_barrier")
        stamp(b, 4)
        b.ext(k1_lookback())
        stamp(b, 5)
        b.ext(k1_final())
        b.ext(p2_S_cdma())
        b.ext(p2_S_creads())
    elif WEARLY:
        assert not ROT2
        b("s_barrier")
        b.ext(p2_S_cdma((0,)))
        b("s_barrier")
        b.ext(p2_S_cdma((1,)))
        b.ext(p2_S_creads_m(0))
        b.ext(p2_S_wdma(0))
        stamp(b, 4)
        b.ext(k1_lookback())
        stamp(b, 5)
        if int(opts.get('wb2', 0)) == 0:
            b.ext(p2_S_creads_m(1)); b.ext(p2_S_wdma(1)); b.ext(k1_final())
        else:
            b.ext(k1_final()); b.ext(p2_S_creads_m(1)); b.ext(p2_S_wdma(1))
        stamp(b, 6)
        return b
    elif CEARLY:
        b("s_barrier")
        b.ext(p2_S_cdma((0,)))
        b("s_barrier")
        if int(opts.get('lbmid', 0)):
            stamp(b, 4)
            b.ext(k1_lookback(p2_S_cdma((1,)), 8))
        else:
            b.ext(p2_S_cdma((1,)))
            stamp(b, 4)
            b.ext(k1_lookback())
        stamp(b, 5)
        b.ext(k1_final())
        b.ext(p2_S_creads())
        stamp(b, 6)
        return b
    else:
        b("s_barrier")
        b.ext(p2_S_cdma())
        stamp(b, 4)
        b.ext(k1_lookback())
        stamp(b, 5)
        b.ext(k1_final())
        b.ext(p2_S_creads())
    stamp(b, 6)
    return b

def cfma_sr(b, d, l, h, ure, uim, tmp):
    b(f"v_fma_f32 v{tmp}, v{l}, v{h}, v{ure}")
    b(f"v_fma_f32 v{tmp+1}, v{l}, v{h+1}, v{uim}")
    b(f"v_fma_f32 v{d}, -v{l+1}, v{h+1}, v{tmp}")
    b(f"v_fma_f32 v{d+1}, v{l+1}, v{h}, v{tmp+1}")

def k1_scan1a():
    b = F()
    tmp = vTmp
    R = lambda t: aRE + reg_of_t(t)
    I = lambda t: aIM + reg_of_t(t)
    b(f"v_mov_b32 v{vQ}, v{R(0)}\nv_mov_b32 v{vQ+1}, v{I(0)}")
    cur = vQ
    for t in range(1, 16):
        nxt = vQ if cur == vW_ else vW_
        cfma_sr(b, nxt, vL, cur, R(t), I(t), tmp)
        cur = nxt
    assert cur == vW_
    b(f"v_mov_b32 v{vPre}, v{cur}\nv_mov_b32 v{vPre+1}, v{cur+1}")
    b(f"v_mov_b32 v{vQ}, v{cur}\nv_mov_b32 v{vQ+1}, v{cur+1}")
    b(f"v_permlane32_swap_b32 v{vPre}, v{vQ}")
    b(f"v_permlane32_swap_b32 v{vPre+1}, v{vQ+1}")
    cfma_s(b, vW_, vL16, vPre, vQ, tmp)
    b(f"v_mul_f32 v{vPre}, v{vPre}, v{vHfm}\nv_mul_f32 v{vPre+1}, v{vPre+1}, v{vHfm}")
    t = vP
    b(f"v_and_b32 v{t+14}, 31, v{vLane}")
    b(f"v_lshlrev_b32 v{t+14}, 3, v{t+14}")
    b(f"v_add_u32 v{t+14}, {SCR}, v{t+14}")
    b(f"s_lshl_b32 s{sK0}, s{sWm}, 8")
    b(f"v_add_u32 v{t+15}, s{sK0}, v{t+14}")
    b(f"ds_write_b64 v{t+15}, {v(vW_,2)} offset:{SC}", "Wx")
    b.wait('lg', "Wx")
    return b

def k1_scan1b():
    b = F()
    t = vP; tmp = vTmp
    for w in range(4):
        b(f"ds_read_b64 {v(t+2*w,2)}, v{t+14} offset:{SC + 256*w}")
    W0, W1, W2, W3 = t, t+2, t+4, t+6
    Q2, Q3 = t+8, t+10
    cfma_s(b, Q2, vL32, W0, W1, tmp)
    cfma_s(b, Q3, vL32, Q2, W2, tmp)
    E = t + 12
    cfma_s(b, E, vL32, Q3, W3, tmp)
    for h in range(2):
        b(f"v_cndmask_b32 v{vQ+h}, 0, v{W0+h}, {s(sM1,2)}")
        b(f"v_cndmask_b32 v{vQ+h}, v{vQ+h}, v{Q2+h}, {s(sM2,2)}")
        b(f"v_cndmask_b32 v{vQ+h}, v{vQ+h}, v{Q3+h}, {s(sM3,2)}")
    cfma_s(b, vK, vF1, vQ, vPre, tmp)
    return b

def k1_publish():
    t = vP; E = t + 12; tmp = vTmp
    g = B()
    g(f"s_lshl_b32 s{sK0}, s{sR}, 13")
    g(f"v_add_u32 v{tmp}, s{sK0}, v{vLBa}")
    g(f"v_lshrrev_b32 v{tmp+1}, 3, v{vLane}")
    g(f"v_cmp_ne_u32 vcc, 0, v{vNon+1}")
    g("s_cbranch_vccnz L_k1_nonce_ok")
    g(f"s_mov_b32 s{sSpin}, 0")
    g("L_k1_nonce_retry:")
    g(f"v_mov_b32 v{tmp+2}, 0")
    g(f"global_load_dwordx2 {v(vNon,2)}, v{tmp+2}, s[32:33] sc1", 'nocount')
    g("s_waitcnt vmcnt(0)", 'nocount')
    g(f"s_add_u32 s{sSpin}, s{sSpin}, 1")
    g(f"s_cmp_gt_u32 s{sSpin}, 40000")
    g("s_cbranch_scc1 L_k1_nonce_ok")
    g(f"v_cmp_ne_u32 vcc, 0, v{vNon+1}")
    g("s_cbranch_vccz L_k1_nonce_retry")
    g("L_k1_nonce_ok:")
    g(f"v_mov_b32 v{E+2}, v{vNon}\nv_mov_b32 v{E+3}, v{vNon+1}")
    g(f"v_cmp_eq_u32 vcc, s{sWm}, v{tmp+1}")
    g(f"s_and_saveexec_b64 {s(sEX,2)}, vcc")
    g(f"global_store_dwordx4 v{tmp}, {v(E,4)}, s[34:35] sc0 sc1")
    g(f"s_mov_b64 exec, {s(sEX,2)}")
    return g

def k1_lookback(mid=None, nmid=0):
    b = B(); tmp = vTmp; t = vP
    H = vW_
    def loads(tok):
        b(f"s_sub_u32 s{sK0}, s{sR}, 1")
        b(f"s_lshl_b32 s{sK0}, s{sK0}, 13")
        b(f"v_lshrrev_b32 v{t}, 5, v{vLane}")
        b(f"v_lshlrev_b32 v{t}, 13, v{t}")
        b(f"v_sub_u32 v{t}, s{sK0}, v{t}")
        b(f"v_add_u32 v{t}, v{vLBa}, v{t}")
        for mm in range(8):
            if mm: b(f"v_subrev_u32 v{t}, 16384, v{t}")
            b(f"v_max_i32 v{t+1}, v{t}, v{vLBa}")
            b(f"global_load_dwordx4 {v(vU+4*mm,4)}, v{t+1}, s[34:35] sc1", tok)
    if mid is not None:
        b(f"s_mov_b32 s{sSpin}, 0")
        loads('nocount')
        b.ext(mid)
        b(f"s_waitcnt vmcnt({nmid})", 'nocount')
        b(f"s_cmp_eq_u32 s{sR}, 0")
        b("s_cbranch_scc1 L_k1_lb_zero")
        b("s_branch L_k1_lb_first")
        b("L_k1_lb_again:")
        loads('nocount')
        b("s_waitcnt vmcnt(0)", 'nocount')
        b("L_k1_lb_first:")
    else:
        b(f"s_cmp_eq_u32 s{sR}, 0")
        b("s_cbranch_scc1 L_k1_lb_zero")
        b(f"s_mov_b32 s{sSpin}, 0")
        b("L_k1_lb_again:")
        loads('nocount')
        b("s_waitcnt vmcnt(0)", 'nocount')
    b(f"s_mov_b64 {s(sEX,2)}, -1")
    for mm in range(8):
        b(f"s_cmp_le_u32 s{sR}, {2*mm}")
        b("s_cbranch_scc1 L_k1_lb_checked")
        b(f"s_cmp_ge_u32 s{sR}, {2*mm+2}")
        b(f"s_cselect_b32 s{sT1}, 0, -1")
        b(f"v_cmp_eq_u32 vcc, v{vU+4*mm+2}, v{vNon}")
        b(f"v_cmp_eq_u32 {s(sT2,2)}, v{vU+4*mm+3}, v{vNon+1}")
        b(f"s_and_b64 vcc, vcc, {s(sT2,2)}")
        b(f"s_or_b32 vcc_hi, vcc_hi, s{sT1}")
        b(f"s_and_b64 {s(sEX,2)}, {s(sEX,2)}, vcc")
    b("L_k1_lb_checked:")
    b(f"s_cmp_eq_u64 {s(sEX,2)}, -1")
    b("s_cbranch_scc1 L_k1_lb_ok")
    b(f"s_add_u32 s{sSpin}, s{sSpin}, 1")
    b(f"s_cmp_gt_u32 s{sSpin}, 40000")
    b("s_cbranch_scc1 L_k1_lb_ok")
    b(f"s_sleep {int(opts.get('lbsleep', 4))}")
    b("s_branch L_k1_lb_again")
    b("L_k1_lb_ok:")
    b(f"v_mov_b32 v{H}, 0\nv_mov_b32 v{H+1}, 0")
    for mm in range(7, -1, -1):
        b(f"s_cmp_le_u32 s{sR}, {2*mm}")
        b(f"s_cbranch_scc1 L_k1_lb_h{mm}")
        b(f"s_cmp_ge_u32 s{sR}, {2*mm+2}")
        b(f"s_cselect_b32 s{sT3}, -1, 0")
        b(f"s_mov_b32 s{sT2}, -1")
        b(f"v_cndmask_b32 v{vU+4*mm}, 0, v{vU+4*mm}, {s(sT2,2)}")
        b(f"v_cndmask_b32 v{vU+4*mm+1}, 0, v{vU+4*mm+1}, {s(sT2,2)}")
        b(f"v_fma_f32 v{tmp}, v{vL256}, v{H}, v{vU+4*mm}")
        b(f"v_fma_f32 v{tmp+1}, v{vL256}, v{H+1}, v{vU+4*mm+1}")
        b(f"v_fma_f32 v{tmp}, -v{vL256+1}, v{H+1}, v{tmp}")
        b(f"v_fma_f32 v{H+1}, v{vL256+1}, v{H}, v{tmp+1}")
        b(f"v_mov_b32 v{H}, v{tmp}")
        b(f"L_k1_lb_h{mm}:")
    b(f"v_mov_b32 v{vPre}, v{H}\nv_mov_b32 v{vPre+1}, v{H+1}")
    b(f"v_permlane32_swap_b32 v{H}, v{vPre}")
    b(f"v_permlane32_swap_b32 v{H+1}, v{vPre+1}")
    cfma_s(b, t, vL128, vPre, H, tmp)
    cfma_s(b, vQ, vG, t, vK, tmp)
    b("s_branch L_k1_lb_done")
    b("L_k1_lb_zero:")
    b(f"v_mov_b32 v{vQ}, v{vK}\nv_mov_b32 v{vQ+1}, v{vK+1}")
    b("L_k1_lb_done:")
    return b

def k1_final():
    b = B()
    tmp = vTmp
    prev = vQ
    for t in range(16):
        r = reg_of_t(t)
        u = vU + 2 * r
        cfma_sr(b, u, vL, prev, aRE + r, aIM + r, tmp)
        prev = u
    for r in range(16):
        u = vU + 2 * r
        tp = vP + 2 * (r % 4)
        b(f"v_mul_f32 v{tp}, v{vC2}, v{u}")
        b(f"v_mul_f32 v{tp+1}, v{vC2+1}, v{u}")
        b(f"v_fma_f32 v{u}, -v{vC2+1}, v{u+1}, v{tp}")
        b(f"v_fma_f32 v{u+1}, v{vC2}, v{u+1}, v{tp+1}")
    for k in range(8):
        b(f"v_cvt_pk_bf16_f32 v{aRE+k}, v{vU+4*k}, v{vU+4*k+2}")
    for h in range(2):
        b(f"ds_write_b128 v{vImgW}, {v(aRE+4*h,4)} offset:{IMG + h*16}", "img")
    for k in range(8):
        b(f"v_cvt_pk_bf16_f32 v{aRE+8+k}, -v{vU+4*k+1}, -v{vU+4*k+3}")
    for h in range(2):
        b(f"ds_write_b128 v{vImgW}, {v(aRE+8+4*h,4)} offset:{IMG + 2560 + h*16}", "img")
    b(f"s_lshl_b32 s{sT2}, s{sS}, 12")
    b(f"s_add_u32 s{sT1}, s{sHFb}, s{sT2}")
    b.wait('lg', "img")
    for m in range(2):
        for kk in range(2):
            r = aIM + (2*m + kk) * 4
            for rd in range(2):
                b(f"ds_read_b64_tr_b16 {v(r+2*rd,2)}, v{vImgR} offset:{IMG + (m*32 + 16*kk + 4*rd)*80}")
    for m in range(2):
        for kk in range(2):
            r = aIM + (2*m + kk) * 4
            b(f"s_add_u32 s{sT2}, s{sT1}, {(2*m+kk)*1024}")
            b(f"buffer_store_dwordx4 {v(r,4)}, v{vL16o}, {s(sHF,4)}, s{sT2} offen {STF}")
    return b


pA, pC1, pC2 = 36, 40, 44
pH, pN, pK0, pLw, pOff = 72, 73, 74, 75, 76
pNib = 84
CST = 98304
CEARLY = int(opts.get('cearly', 1))
CM = 32768 if CEARLY else 8192
ROT2 = int(opts.get('rot2', 0))
pKS = 48
WEARLY = int(opts.get('wearly', 0)) and CEARLY
pWS, pOffW = 56, 77
vWsa, vWsb = 8, 9
vCe, vCo, vPp = 2, 3, 4
vH0g, vH1g, vH0k, vH1k = 2, 3, 4, 5
vTau, vSg, vSk = 8, 10, 12
vWrq = 16
PITCH = 256

def p2_ids(b):
    b(f"s_lshr_b32 s{pH}, s{sS}, 3")
    b(f"s_and_b32 s{pN}, s{sS}, 7")

def p2_S_csetup():
    b = B(); L = vLane; t = vP
    p2_ids(b)
    srd(b, pC1, 14, 512*1024)
    srd(b, pC2, 16, 512*1024)
    b(f"v_and_b32 v{t}, 7, v{L}")
    b(f"v_lshrrev_b32 v{t+1}, 4, v{L}")
    b(f"v_xor_b32 v{t}, v{t}, v{t+1}")
    b(f"v_lshlrev_b32 v{t}, 4, v{t}")
    b(f"v_lshrrev_b32 v{t+1}, 3, v{L}")
    b(f"v_lshlrev_b32 v{t+1}, 10, v{t+1}")
    b(f"v_add_u32 v{vCe}, v{t}, v{t+1}")
    b(f"v_xor_b32 v{vCo}, 64, v{vCe}")
    b(f"s_lshl_b32 s{pOff}, s{pN}, 16")
    b(f"s_lshl_b32 s{sT0}, s{pH}, 9")
    b(f"s_add_u32 s{pOff}, s{pOff}, s{sT0}")
    b(f"s_lshl_b32 s{sT0}, s{sWm}, 7")
    b(f"s_add_u32 s{pOff}, s{pOff}, s{sT0}")
    b(f"s_lshl_b32 s{pLw}, s{sWm}, {13 if CEARLY else 14}")
    b(f"s_add_u32 s{pLw}, s{pLw}, {CST}")
    b(f"v_and_b32 v{t}, 31, v{L}")
    b(f"v_lshlrev_b32 v{t}, 7, v{t}")
    b(f"v_add_u32 v{t}, s{pLw}, v{t}")
    b(f"v_lshrrev_b32 v{t+1}, 5, v{L}")
    b(f"v_bfe_u32 v{t+2}, v{L}, 1, 3")
    b(f"v_xor_b32 v{t+2}, v{t+1}, v{t+2}")
    for k in range(4):
        b(f"v_xor_b32 v{t+1}, {2*k}, v{t+2}")
        b(f"v_lshl_add_u32 v{vPp+k}, v{t+1}, 4, v{t}")
    if WEARLY:
        srd(b, pWS, 26, 1792*1024)
        b(f"v_bfe_u32 v{t}, v{L}, 4, 1")
        b(f"v_lshlrev_b32 v{t}, 2, v{t}")
        b(f"v_and_b32 v{t+1}, 7, v{L}")
        b(f"v_xor_b32 v{t}, v{t}, v{t+1}")
        b(f"v_lshlrev_b32 v{t}, 4, v{t}")
        b(f"v_lshrrev_b32 v{t+1}, 3, v{L}")
        b(f"v_lshlrev_b32 v{t+1}, 10, v{t+1}")
        b(f"v_add_u32 v{vWsa}, v{t}, v{t+1}")
        b(f"v_add_u32 v{vWsb}, {8192 - 1024}, v{vWsa}")
        b(f"s_lshl_b32 s{sT0}, s{pH}, 2")
        b(f"s_add_u32 s{sT0}, s{sT0}, s{sWm}")
        b(f"s_mul_i32 s{pOffW}, s{sT0}, {14*16*1024}")
        b(f"s_lshl_b32 s{sT0}, s{pN}, 7")
        b(f"s_add_u32 s{pOffW}, s{pOffW}, s{sT0}")
    return b

def p2_S_wdma(batch):
    b = B()
    for i in range(4 * batch, 4 * batch + 4):
        b(f"s_add_u32 m0, s{pLw}, {batch*CM + (i % 4)*2048}")
        b(f"s_add_u32 s{sT0}, s{pOffW}, {i*16*1024}")
        b(f"buffer_load_dwordx4 v{vWsa}, {s(pWS,4)}, s{sT0} offen lds", "wst")
        b(f"buffer_load_dwordx4 v{vWsb}, {s(pWS,4)}, s{sT0} offen offset:1024 lds", "wst")
    return b

def p2_S_creads_m(m):
    b = B()
    b.wait('vm', f"cst{m}")
    for j in range(8):
        if ((j >> 1) & 1) != m: continue
        ksp = 2 * (j >> 2) + (j & 1)
        for aa in range(2):
            b(f"ds_read_b128 {a(8*j+4*aa,4)}, v{vPp+ksp} offset:{m*CM + aa*4096}", f"crd{m}")
    b.wait('lg', f"crd{m}")
    return b

def p2_S_cdma(ms=(0, 1)):
    b = B()
    for m in ms:
        for aa in range(8):
            b(f"s_add_u32 m0, s{pLw}, {m*CM + aa*1024}")
            b(f"s_add_u32 s{sT0}, s{pOff}, {aa*8192}")
            b(f"buffer_load_dwordx4 v{vCe if aa % 2 == 0 else vCo}, {s(pC1 if m == 0 else pC2,4)}, s{sT0} offen lds", f"cst{m}" if WEARLY else "cst")
    return b

def p2_S_creads():
    b = B()
    if not ROT2:
        b.wait('vm', "cst")
        for j in range(8):
            m = (j >> 1) & 1; ksp = 2 * (j >> 2) + (j & 1)
            for aa in range(2):
                b(f"ds_read_b128 {a(8*j+4*aa,4)}, v{vPp+ksp} offset:{m*CM + aa*4096}")
        for j in range(8): b(f"s_mov_b32 s{pKS+j}, {j*1024}")
        return b
    t = vP; L = vLane
    b(f"v_and_b32 v{t}, 31, v{L}")
    b(f"v_lshlrev_b32 v{t}, 7, v{t}")
    b(f"v_add_u32 v{t}, s{pLw}, v{t}")
    b(f"v_lshrrev_b32 v{t+1}, 5, v{L}")
    b(f"v_bfe_u32 v{t+2}, v{L}, 1, 3")
    b(f"v_xor_b32 v{t+1}, v{t+1}, v{t+2}")
    b.wait('vm', "cst")
    for j in range(8):
        b(f"s_add_u32 s{sT0}, s{pN}, {j}")
        b(f"s_and_b32 s{sT0}, s{sT0}, 7")
        b(f"s_lshl_b32 s{pKS+j}, s{sT0}, 10")
        b(f"s_lshr_b32 s{sT1}, s{sT0}, 2")
        b(f"s_lshl_b32 s{sT1}, s{sT1}, 1")
        b(f"s_and_b32 s{sT2}, s{sT0}, 1")
        b(f"s_add_u32 s{sT1}, s{sT1}, s{sT2}")
        b(f"s_lshl_b32 s{sT1}, s{sT1}, 1")
        b(f"s_bfe_u32 s{sT2}, s{sT0}, 0x10001")
        b(f"s_lshl_b32 s{sT2}, s{sT2}, {15 if CEARLY else 13}")
        tt = t + 4 + (j % 4)
        b(f"v_xor_b32 v{tt}, s{sT1}, v{t+1}")
        b(f"v_lshl_add_u32 v{tt}, v{tt}, 4, v{t}")
        b(f"v_add_u32 v{tt}, s{sT2}, v{tt}")
        for aa in range(2):
            b(f"ds_read_b128 {a(8*j+4*aa,4)}, v{tt} offset:{aa*4096}")
    return b

def p2_common(b, role):
    L = vLane
    srd(b, pA, 34, WS_USED)
    b(f"s_xor_b32 s{sT0}, s{pH}, 1")
    b(f"s_lshl_b32 s{sT0}, s{sT0}, 1")
    b(f"s_lshl_b32 s{sT1}, s{sR}, 2")
    b(f"s_add_u32 s{sT0}, s{sT0}, s{sT1}")
    b(f"s_mul_i32 s{sT0}, s{sT0}, {176*1024}")
    b(f"v_lshlrev_b32 v6, 4, v{L}")
    b(f"v_add_u32 v{vH0g}, s{sT0}, v6")
    b(f"v_add_u32 v{vH1g}, {176*1024}, v{vH0g}")
    b(f"s_lshl_b32 s{sT0}, s{pH}, 2")
    b(f"s_sub_u32 s{sT0}, s{sT0}, 2")
    b(f"s_mul_i32 s{sT0}, s{sT0}, {176*1024}")
    b(f"v_add_u32 v{vH0k}, s{sT0}, v{vH0g}")
    b(f"v_add_u32 v{vH1k}, s{sT0}, v{vH1g}")
    b(f"s_lshl_b32 s{pK0}, s{pH}, 2")
    b(f"s_add_u32 s{pK0}, s{pK0}, s{sWm}")
    if role == 0:
        b(f"s_lshl_b32 s{pK0}, s{pK0}, 13")
    else:
        b(f"s_mul_i32 s{pK0}, s{pK0}, {14*1024}")
        b(f"s_add_u32 s{pK0}, s{pK0}, {64*1024}")

def p2_common2(b, role):
    L = vLane
    b(f"v_bfe_u32 v6, v{L}, 3, 2")
    b(f"v_and_b32 v7, 7, v{L}")
    b(f"v_lshl_add_u32 v{vTau}, v7, 2, v6")
    b(f"s_xor_b32 s{sT0}, s{pH}, 1")
    b(f"s_lshl_b32 s{sT0}, s{sT0}, 6")
    b(f"s_lshl_b32 s{sT1}, s{sR}, 7")
    b(f"s_add_u32 s{sT0}, s{sT0}, s{sT1}")
    b(f"v_add_u32 v6, s{sT0}, v{vTau}")
    b("v_lshlrev_b32 v6, 3, v6")
    b(f"v_add_u32 v6, {G_OFF + 4*role}, v6")
    b(f"global_load_dword v{vSg}, v6, s[34:35] sc1")
    b(f"global_load_dword v{vSg+1}, v6, s[34:35] offset:256 sc1")
    b(f"s_lshl_b32 s{sT0}, s{pH}, 7")
    b(f"s_sub_u32 s{sT0}, s{sT0}, 64")
    b(f"s_lshl_b32 s{sT0}, s{sT0}, 3")
    b(f"v_add_u32 v6, s{sT0}, v6")
    b(f"global_load_dword v{vSk}, v6, s[34:35] sc1")
    b(f"global_load_dword v{vSk+1}, v6, s[34:35] offset:256 sc1")
    b(f"s_lshl_b32 s{sT0}, s{sWm}, 14")
    if role == 0: b(f"s_add_u32 s{sT0}, s{sT0}, {CST}")
    b(f"v_lshlrev_b32 v9, 8, v{vTau}")
    b(f"v_add_u32 v9, s{sT0}, v9")
    b(f"v_lshrrev_b32 v6, 5, v{L}")
    b(f"v_and_b32 v7, 7, v{L}")
    b("v_xor_b32 v6, v6, v7")
    for q in range(4):
        b(f"v_xor_b32 v7, {2*q}, v6")
        b(f"v_lshl_add_u32 v{vWrq+q}, v7, 4, v9")

def p2_rwrite(b, acc, sc, dup=None):
    if dup is not None:
        b(f"v_mov_b32 v{dup}, v{sc}\nv_mov_b32 v{dup+1}, v{sc}\nv_mov_b32 v{dup+2}, v{sc+1}\nv_mov_b32 v{dup+3}, v{sc+1}")
    for aa in range(2):
        for bb in range(2):
            S = acc + (aa*2+bb)*16
            g = sc + bb
            gp = g & ~1; o = g & 1
            if dup is not None:
                for p in range(8):
                    b(f"v_pk_mul_f32 {v(S+2*p,2)}, {v(S+2*p,2)}, {v(dup+2*bb,2)}")
            elif opts.get('rw', 'scalar') == 'pk':
                for p in range(8):
                    b(f"v_pk_mul_f32 {v(S+2*p,2)}, {v(S+2*p,2)}, {v(gp,2)} op_sel:[0,{o}] op_sel_hi:[1,{o}]")
            else:
                for p in range(16):
                    b(f"v_mul_f32 v{S+p}, v{g}, v{S+p}")
            for q in range(4):
                b(f"ds_write_b128 v{vWrq+q}, {v(S+4*q,4)} offset:{bb*32*PITCH + aa*128}", "red")
    b.wait('lg', "red")

def p2_F():
    b = B(); L = vLane
    b("L_p2_F:")
    b("s_waitcnt vmcnt(0) lgkmcnt(0)")
    b("s_barrier")
    if int(opts.get('p2prio', 0)): b(f"s_setprio {int(opts.get('p2prio', 0))}")
    stamp(b, 7)
    p2_ids(b)
    srd(b, pC1, 26, 1792*1024)
    vWa, vWb, vTp = 6, 7, 20
    t = 24
    b(f"v_bfe_u32 v{t}, v{L}, 4, 1")
    b(f"v_lshlrev_b32 v{t}, 2, v{t}")
    b(f"v_and_b32 v{t+1}, 7, v{L}")
    b(f"v_xor_b32 v{t}, v{t}, v{t+1}")
    b(f"v_lshlrev_b32 v{t}, 4, v{t}")
    b(f"v_lshrrev_b32 v{t+1}, 3, v{L}")
    b(f"v_lshlrev_b32 v{t+1}, 10, v{t+1}")
    b(f"v_add_u32 v{vWa}, v{t}, v{t+1}")
    b(f"v_add_u32 v{vWb}, {8192 - 1024}, v{vWa}")
    b(f"s_lshl_b32 s{sT0}, s{pH}, 2")
    b(f"s_add_u32 s{sT0}, s{sT0}, s{sWm}")
    b(f"s_mul_i32 s{pOff}, s{sT0}, {14*16*1024}")
    b(f"s_lshl_b32 s{sT0}, s{pN}, 7")
    b(f"s_add_u32 s{pOff}, s{pOff}, s{sT0}")
    b(f"s_lshl_b32 s{pLw}, s{sWm}, 14")
    pKF = [48, 49, 50, 51, 52, 53, 54, 55, 77, 78, 79, 80, 81, 82]
    if ROT2:
        b(f"s_mul_i32 s{sT2}, s{pN}, 7")
        b(f"s_lshr_b32 s{sT2}, s{sT2}, 2")
        for i in range(14):
            b(f"s_add_u32 s{pKF[i]}, s{sT2}, {i}")
            b(f"s_cmp_ge_u32 s{pKF[i]}, 14")
            b(f"s_cselect_b32 s{sT3}, 14, 0")
            b(f"s_sub_u32 s{pKF[i]}, s{pKF[i]}, s{sT3}")
            b(f"s_lshl_b32 s{pKF[i]}, s{pKF[i]}, 10")
    else:
        for i in range(14): b(f"s_mov_b32 s{pKF[i]}, {i*1024}")
    def wdma(i):
        b(f"s_add_u32 m0, s{pLw}, {(i % 8)*2048}")
        b(f"s_lshl_b32 s{sT1}, s{pKF[i]}, 4")
        b(f"s_add_u32 s{sT1}, s{sT1}, s{pOff}")
        b(f"buffer_load_dwordx4 v{vWa}, {s(pC1,4)}, s{sT1} offen lds", f"f{i}")
        b(f"buffer_load_dwordx4 v{vWb}, {s(pC1,4)}, s{sT1} offen offset:1024 lds", f"f{i}")
    NPRE = int(opts.get('npre', 8))
    if WEARLY:
        for i in range(8, 14): wdma(i)
    else:
        for i in range(min(NPRE, 8)): wdma(i)
    tr_pattern(b, vTp, 4, t)
    if WEARLY:
        b(f"s_lshl_b32 s{sT2}, s{sWm}, 13")
        b(f"s_add_u32 s{sT2}, s{sT2}, {CST}")
        b(f"v_add_u32 v{t+4}, s{sT2}, v{vTp}")
        b(f"v_add_u32 v{t+5}, s{sT2}, v{vTp+1}")
        for i in range(8):
            for aa in range(2):
                for rd in range(2):
                    b(f"ds_read_b64_tr_b16 {a(8*i+4*aa+2*rd,2)}, v{t+4+aa} offset:{(i // 4)*CM + (i % 4)*2048 + rd*1024}", f"wr{i}")
    b(f"v_add_u32 v{vTp}, s{pLw}, v{vTp}")
    b(f"v_add_u32 v{vTp+1}, s{pLw}, v{vTp+1}")
    b(f"v_mov_b32 v22, v{vWa}\nv_mov_b32 v23, v{vWb}")
    vWa, vWb = 22, 23
    p2_common(b, 1)
    def wreads(i):
        b.wait('vm', f"f{i}")
        for aa in range(2):
            for rd in range(2):
                b(f"ds_read_b64_tr_b16 {a(8*i+4*aa+2*rd,2)}, v{vTp+aa} offset:{(i % 8)*2048 + rd*1024}", f"wr{i}")
    NRD = max(0, NPRE - 8)
    if WEARLY:
        NRD = 8; NPRE = 14
        b.wait('lg', "wr7")
    for i in range(0 if WEARLY else NRD):
        wreads(i)
        b.wait('lg', f"wr{i}")
        wdma(8 + i)
    stamp(b, 24)
    b("s_barrier")
    stamp(b, 25)
    NSF, D = 14, 7
    def hreg(idx, k):
        sl = idx % D
        return v(24 + sl*8 + 4*k, 4) if sl < 5 else a(112 + (sl-5)*8 + 4*k, 4)
    def hload(idx):
        ps, i = divmod(idx, NSF)
        h0, h1 = (vH0g, vH1g) if ps == 0 else (vH0k, vH1k)
        b(f"s_add_u32 s{sT0}, s{pK0}, s{pKF[i]}")
        b(f"buffer_load_dwordx4 {hreg(idx,0)}, v{h0}, {s(pA,4)}, s{sT0} offen sc1")
        b(f"buffer_load_dwordx4 {hreg(idx,1)}, v{h1}, {s(pA,4)}, s{sT0} offen sc1")
    hload(0)
    rest = list(range(NPRE, 8))
    if rest: wdma(rest.pop(0))
    hload(1)
    if rest: wdma(rest.pop(0))
    for i in range(max(NRD, 0), max(NRD, 2)): wreads(i)
    hload(2)
    if rest: wdma(rest.pop(0))
    hload(3)
    for i in rest: wdma(i)
    DH1 = int(opts.get('dh1', 7))
    p2_common2(b, 1)
    for k in range(4, DH1): hload(k)
    stamp(b, 26)
    acc = 64
    def step(idx):
        ps, i = divmod(idx, NSF)
        mf = [f"v_mfma_f32_32x32x16_bf16 {v(acc+(aa*2+bb)*16,16)}, {a(8*i+4*aa,4)}, {hreg(idx,bb)}, {v(acc+(aa*2+bb)*16,16) if i else 0}" for aa in range(2) for bb in range(2)]
        b.wait('lg', f"wr{i}")
        b(mf[0])
        if 8 + i < 14 and i >= NRD and not WEARLY: wdma(8 + i)
        b(mf[1])
        if i + 2 < 14 and i + 2 >= max(NRD, 2): wreads(i + 2)
        b(mf[2])
        n0 = len(b.ops)
        KP = int(opts.get('kp', 1))
        tg = [i + DH1] if i + DH1 < NSF else ([NSF + (i - (NSF - KP))] if i >= NSF - KP else [])
        for t_ in tg: hload(t_)
        ld = b.ops[n0:]; del b.ops[n0:]
        cut = [j for j, o in enumerate(ld) if o.kind == 'vmem']
        if cut:
            b.ext(ld[:cut[0] + 1]); b(mf[3]); b.ext(ld[cut[0] + 1:])
        else: b(mf[3])
        if i == NSF - 1 - DH1: b("s_barrier")
    for idx in range(NSF): step(idx)
    stamp(b, 27)
    n0 = len(b.ops); p2_rwrite(b, acc, vSg); rw = b.ops[n0:]; del b.ops[n0:]
    n0 = len(b.ops)
    for k in range(int(opts.get('kp', 1)), 7): hload(NSF + k)
    hl = chunks_of(b.ops[n0:]); del b.ops[n0:]
    body, tail = rw[:-1], rw[-1:]
    if int(opts.get('r1il', 1)):
        gap = max(1, len(body) // (len(hl) + 1)); outp = []
        for j, o in enumerate(body):
            outp.append(o)
            if (j + 1) % gap == 0 and hl: outp.extend(hl.pop(0))
        for c in hl: outp.extend(c)
        b.ext(outp + tail)
        b("s_barrier")
    else:
        b.ext(body + tail)
        b("s_barrier")
        for c in hl: b.ext(c)
    def step2(idx):
        i = idx - NSF
        mf = [f"v_mfma_f32_32x32x16_bf16 {v(acc+(aa*2+bb)*16,16)}, {a(8*i+4*aa,4)}, {hreg(idx,bb)}, {v(acc+(aa*2+bb)*16,16) if i else 0}" for aa in range(2) for bb in range(2)]
        b(mf[0]); b(mf[1]); b(mf[2])
        n0 = len(b.ops)
        if idx + D < 2 * NSF: hload(idx + D)
        ld = b.ops[n0:]; del b.ops[n0:]
        cut = [j for j, o in enumerate(ld) if o.kind == 'vmem']
        if cut:
            b.ext(ld[:cut[0] + 1]); b(mf[3]); b.ext(ld[cut[0] + 1:])
        else: b(mf[3])
    for idx in range(NSF, 2 * NSF):
        step2(idx)
        if idx == NSF + 3: b("s_barrier")
    stamp(b, 28)
    FSPLIT = int(opts.get('fsplit', 0))
    n0 = len(b.ops)
    p2_rwrite(b, acc, vSk, 24 if int(opts.get('r2pk', 1)) else None)
    rw = b.ops[n0:]; del b.ops[n0:]
    if FSPLIT:
        f = F()
        f("v_and_b32 v34, 0xff, v0")
        f("v_lshrrev_b32 v35, 4, v34")
        f("v_and_b32 v36, 15, v34")
        f("v_lshrrev_b32 v37, 6, v34")
        f("v_xor_b32 v37, v37, v36")
        f("v_lshlrev_b32 v28, 8, v35")
        f("v_lshl_add_u32 v28, v37, 4, v28")
        f("v_xor_b32 v29, 64, v28")
        f(f"v_add_u32 v30, {CST}, v28")
        f(f"v_add_u32 v31, {CST}, v29")
        f(f"s_lshl_b32 s{sT0}, s{sR}, 7")
        f(f"s_lshl_b32 s{sT1}, s{pH}, 6")
        f(f"s_add_u32 s{sT0}, s{sT0}, s{sT1}")
        f(f"s_add_u32 s{sT0}, s{sT0}, 32")
        f(f"v_add_u32 v35, s{sT0}, v35")
        f(f"s_lshl_b32 s{sT1}, s{pN}, 8")
        f("v_lshlrev_b32 v32, 11, v35")
        f("v_lshl_add_u32 v32, v36, 4, v32")
        f(f"v_add_u32 v32, s{sT1}, v32")
        f("v_lshlrev_b32 v33, 4, v34")
        f("v_add_u32 v33, 0x10000, v33")
        rw = merge(rw, f.ops, after=lambda o: o.mn.startswith('ds_write'), per=2)
    b.ext(rw)
    b("s_barrier")
    stamp(b, 29)
    if FSPLIT:
        T = 64
        for p in (2, 3):
            b(f"ds_read_b128 {v(100+4*(p-2),4)}, v33 offset:{(p-2)*4096}")
        for p in (2, 3):
            for w in range(8):
                base = (28 if p % 2 == 0 else 29) if w < 4 else (30 if p % 2 == 0 else 31)
                b(f"ds_read_b128 {v(T+4*w,4)}, v{base} offset:{(w % 4)*16384 + p*4096}")
            for w in range(0, 8, 2):
                b(f"v_pk_add_f32 {v(T+4*w,2)}, {v(T+4*w,2)}, {v(T+4*w+4,2)}")
                b(f"v_pk_add_f32 {v(T+4*w+2,2)}, {v(T+4*w+2,2)}, {v(T+4*w+6,2)}")
            for w in (0, 4):
                b(f"v_pk_add_f32 {v(T+4*w,2)}, {v(T+4*w,2)}, {v(T+4*w+8,2)}")
                b(f"v_pk_add_f32 {v(T+4*w+2,2)}, {v(T+4*w+2,2)}, {v(T+4*w+10,2)}")
            d = 108 + 4 * (p - 2)
            b(f"v_pk_add_f32 {v(d,2)}, {v(T,2)}, {v(T+16,2)}")
            b(f"v_pk_add_f32 {v(d+2,2)}, {v(T+2,2)}, {v(T+18,2)}")
            b(f"v_pk_add_f32 {v(d,2)}, {v(d,2)}, {v(100+4*(p-2),2)}")
            b(f"v_pk_add_f32 {v(d+2,2)}, {v(d+2,2)}, {v(102+4*(p-2),2)}")
            if p == 3: b(f"v_add_u32 v32, {16*2048}, v32")
            b(f"global_store_dwordx4 v32, {v(d,4)}, s[30:31] {opts.get('outf', 'sc0+sc1').replace('+', ' ')}")
    return b

def p2_S():
    b = B(); L = vLane
    b("s_waitcnt vmcnt(0) lgkmcnt(0)")
    b("s_barrier")
    stamp(b, 7)
    b(f"s_cmp_lg_u32 s{sWm}, 0")
    b("s_cbranch_scc1 L_p2_noflag")
    b(f"s_mul_i32 s{sT0}, s{sR}, {FLG_STRIDE}")
    b(f"s_add_u32 s{sT0}, s{sT0}, {FLG_OFF}")
    b(f"s_lshl_b32 s{sT1}, s{sS}, 3")
    b(f"s_add_u32 s{sT1}, s{sT1}, s{sT0}")
    b(f"v_mov_b32 v6, s{sT1}")
    b(f"global_store_dwordx2 v6, {v(vNon,2)}, s[34:35] sc0 sc1", 'nocount')
    b(f"v_and_b32 v6, 15, v{L}")
    b("v_lshlrev_b32 v6, 3, v6")
    b(f"v_add_u32 v6, s{sT0}, v6")
    b(f"s_mov_b32 s{sSpin}, 0")
    NP = int(opts.get('npoll', 1))
    SL = int(opts.get('pollsl', 0))
    for k in range(NP):
        b(f"global_load_dwordx2 {v(24+2*k,2)}, v6, s[34:35] sc1", 'nocount')
        if SL: b(f"s_sleep {SL}")
    b("L_p2_poll:")
    for k in range(NP):
        b(f"s_waitcnt vmcnt({NP-1})", 'nocount')
        b(f"v_cmp_eq_u32 vcc, v{24+2*k}, v{vNon}")
        b(f"v_cmp_eq_u32 {s(sT2,2)}, v{24+2*k+1}, v{vNon+1}")
        b(f"s_and_b64 vcc, vcc, {s(sT2,2)}")
        b("s_cmp_eq_u64 vcc, -1")
        b("s_cbranch_scc1 L_p2_polled")
        b(f"global_load_dwordx2 {v(24+2*k,2)}, v6, s[34:35] sc1", 'nocount')
    b(f"s_add_u32 s{sSpin}, s{sSpin}, 1")
    b(f"s_cmp_gt_u32 s{sSpin}, 100000")
    b("s_cbranch_scc0 L_p2_poll")
    b("L_p2_polled:")
    b("L_p2_noflag:")
    if WEARLY:
        for j in range(8): b(f"s_mov_b32 s{pKS+j}, {j*1024}")
    b(f"v_readfirstlane_b32 s{sT0}, v{vNon}")
    for j in range(4):
        b(f"s_bfe_u32 s{pNib+j}, s{sT0}, {(4 << 16) | (4*j):#x}")
    p2_common(b, 0)
    stamp(b, 24)
    b("s_barrier")
    if int(opts.get('p2prio', 0)): b("s_setprio 0")
    stamp(b, 25)
    def hreg(j, k): return a(64 + 8*j + 4*k, 4)
    def hload(j, ps):
        h0, h1 = (vH0g, vH1g) if ps == 0 else (vH0k, vH1k)
        b(f"s_add_u32 s{sT0}, s{pK0}, s{pKS+j}")
        b(f"buffer_load_dwordx4 {hreg(j,0)}, v{h0}, {s(pA,4)}, s{sT0} offen sc1")
        b(f"buffer_load_dwordx4 {hreg(j,1)}, v{h1}, {s(pA,4)}, s{sT0} offen sc1")
    DS1 = int(opts.get('ds1', 4))
    for j in range(DS1): hload(j, 0)
    p2_common2(b, 0)
    vRE, vRO, vREh, vROh = 20, 21, 22, 23
    b("v_lshrrev_b32 v6, 4, v0")
    b("v_and_b32 v7, 15, v0")
    b("v_lshrrev_b32 v9, 6, v0")
    b("v_xor_b32 v9, v9, v7")
    b(f"v_lshlrev_b32 v{vRE}, 8, v6")
    b(f"v_lshl_add_u32 v{vRE}, v9, 4, v{vRE}")
    b(f"v_xor_b32 v{vRO}, 64, v{vRE}")
    b(f"v_add_u32 v{vREh}, {CST}, v{vRE}")
    b(f"v_add_u32 v{vROh}, {CST}, v{vRO}")
    stamp(b, 26)
    acc = 64
    def mf(j): return [f"v_mfma_f32_32x32x16_bf16 {v(acc+(aa*2+bb)*16,16)}, {a(8*j+4*aa,4)}, {hreg(j,bb)}, {v(acc+(aa*2+bb)*16,16) if j else 0}" for aa in range(2) for bb in range(2)]
    for j in range(8):
        for t_ in mf(j): b(t_)
        if j + DS1 < 8: hload(j + DS1, 0)
    stamp(b, 27)
    p2_rwrite(b, acc, vSg)
    b("s_barrier")
    for j in range(8): hload(j, 1)
    for j in range(8):
        for t_ in mf(j): b(t_)
    stamp(b, 28)
    b("s_barrier")
    def padd(d, x, y, pk):
        if pk: b(f"v_pk_add_f32 {v(d,2)}, {v(x,2)}, {v(y,2)}")
        else:
            b(f"v_add_f32 v{d}, v{x}, v{y}"); b(f"v_add_f32 v{d+1}, v{x+1}, v{y+1}")
    def reduce(p, dst, pk):
        T = 24
        for w in range(8):
            base = (vRE if p % 2 == 0 else vRO) if w < 4 else (vREh if p % 2 == 0 else vROh)
            b(f"ds_read_b128 {v(T+4*w,4)}, v{base} offset:{(w % 4)*16384 + p*4096}")
        for w in range(0, 8, 2):
            padd(T+4*w, T+4*w, T+4*w+4, pk); padd(T+4*w+2, T+4*w+2, T+4*w+6, pk)
        for w in (0, 4):
            padd(T+4*w, T+4*w, T+4*w+8, pk); padd(T+4*w+2, T+4*w+2, T+4*w+10, pk)
        padd(dst, T, T+16, pk); padd(dst+2, T+2, T+18, pk)
    b("v_lshlrev_b32 v6, 4, v0")
    b(f"s_lshl_b32 s{sT0}, s2, 14")
    b(f"s_add_u32 s{sT0}, s{sT0}, {XCH_OFF}")
    b(f"v_add_u32 v6, s{sT0}, v6")
    for p in range(4):
        d = 56 + 4 * (p % 2)
        reduce(p, d, False)
        for e in range(4): b(f"v_and_or_b32 v{d+e}, v{d+e}, -16, s{pNib+e}")
        if p: b(f"v_add_u32 v6, 4096, v6")
        b(f"global_store_dwordx4 v6, {v(d,4)}, s[34:35] sc0 sc1")
    b("s_barrier")
    p2_rwrite(b, acc, vSk)
    PR_, BI, XV = 64, 80, 96
    b("v_lshlrev_b32 v6, 4, v0")
    b(f"s_xor_b32 s{sT1}, s2, 1")
    b(f"s_lshl_b32 s{sT0}, s{sT1}, 14")
    b(f"s_add_u32 s{sT0}, s{sT0}, {XCH_OFF}")
    b(f"v_add_u32 v9, s{sT0}, v6")
    def prt(tok):
        for p in range(4):
            if p: b(f"v_add_u32 v7, {p*4096}, v9")
            b(f"global_load_dwordx4 {v(PR_+4*p,4)}, v{7 if p else 9}, s[34:35] sc1", tok)
    prt("prt")
    b("v_lshrrev_b32 v6, 4, v0")
    b("v_and_b32 v8, 15, v0")
    b(f"s_lshl_b32 s{sT0}, s{sR}, 7")
    b(f"s_lshl_b32 s{sT1}, s{pH}, 6")
    b(f"s_add_u32 s{sT0}, s{sT0}, s{sT1}")
    b(f"v_add_u32 v6, s{sT0}, v6")
    b(f"s_lshl_b32 s{sT1}, s{pN}, 7")
    b("v_lshlrev_b32 v2, 10, v6")
    b("v_lshl_add_u32 v2, v8, 3, v2")
    b(f"v_add_u32 v2, s{sT1}, v2")
    for p in range(4):
        if p: b(f"v_add_u32 v2, {16*1024}, v2")
        b(f"global_load_dwordx2 {v(XV+2*p,2)}, v2, s[4:5]")
    b("v_lshlrev_b32 v2, 3, v8")
    b(f"v_add_u32 v2, s{sT1}, v2")
    b(f"global_load_dwordx2 {v(XV+8,2)}, v2, s[20:21]")
    b("v_lshlrev_b32 v2, 3, v6")
    b(f"v_add_u32 v2, {G_OFF}, v2")
    for p in range(4):
        b(f"global_load_dword v{XV+10+p}, v2, s[34:35] offset:{p*128} sc1")
    b(f"s_lshl_b32 s{sT1}, s{pN}, 8")
    b("v_lshlrev_b32 v2, 11, v6")
    b("v_lshl_add_u32 v2, v8, 4, v2")
    b(f"v_add_u32 v2, s{sT1}, v2")
    DS_ = XV + 14
    b(f"v_lshlrev_b32 v{DS_}, 16, v{XV+8}\nv_and_b32 v{DS_+1}, 0xffff0000, v{XV+8}\nv_lshlrev_b32 v{DS_+2}, 16, v{XV+9}\nv_and_b32 v{DS_+3}, 0xffff0000, v{XV+9}")
    for p in range(4):
        xs = XV + 2*p; tp = BI + 4*p
        b(f"v_lshlrev_b32 v{tp}, 16, v{xs}\nv_and_b32 v{tp+1}, 0xffff0000, v{xs}\nv_lshlrev_b32 v{tp+2}, 16, v{xs+1}\nv_and_b32 v{tp+3}, 0xffff0000, v{xs+1}")
        for e in range(4): b(f"v_mul_f32 v{tp+e}, v{tp+e}, v{DS_+e}")
        b(f"v_cvt_pk_bf16_f32 v56, v{tp}, v{tp+1}")
        b(f"v_cvt_pk_bf16_f32 v57, v{tp+2}, v{tp+3}")
        b(f"v_lshlrev_b32 v{tp}, 16, v56\nv_and_b32 v{tp+1}, 0xffff0000, v56\nv_lshlrev_b32 v{tp+2}, 16, v57\nv_and_b32 v{tp+3}, 0xffff0000, v57")
        for e in range(4): b(f"v_mul_f32 v{tp+e}, v{XV+10+p}, v{tp+e}")
    b.wait('vm', "prt")
    b(f"s_mov_b32 s{sSpin}, 0")
    if int(opts.get('prtpoll', 0)):
        b("L_p2_q:")
        b("v_mov_b32 v58, 0")
        for u in range(12, 16):
            b(f"v_xor_b32 v59, s{pNib + (u % 4)}, v{PR_+u}")
            b(f"v_and_or_b32 v58, v59, 15, v58")
        b("v_cmp_eq_u32 vcc, 0, v58")
        b("s_cmp_eq_u64 vcc, -1")
        b("s_cbranch_scc1 L_p2_qok")
        b(f"s_add_u32 s{sSpin}, s{sSpin}, 1")
        b(f"s_cmp_gt_u32 s{sSpin}, 100000")
        b("s_cbranch_scc1 L_p2_qok")
        b(f"v_add_u32 v7, {3*4096}, v9")
        b(f"global_load_dwordx4 {v(PR_+12,4)}, v7, s[34:35] sc1", 'nocount')
        b("s_waitcnt vmcnt(0)", 'nocount')
        b("s_branch L_p2_q")
        b("L_p2_qok:")
    b("L_p2_chk:")
    b("v_mov_b32 v58, 0")
    for u in range(16):
        b(f"v_xor_b32 v{PR_+u}, s{pNib + (u % 4)}, v{PR_+u}")
        b(f"v_and_or_b32 v58, v{PR_+u}, 15, v58")
    b("v_cmp_eq_u32 vcc, 0, v58")
    b("s_cmp_eq_u64 vcc, -1")
    b("s_cbranch_scc1 L_p2_ok")
    b(f"s_add_u32 s{sSpin}, s{sSpin}, 1")
    b(f"s_cmp_gt_u32 s{sSpin}, 100000")
    b("s_cbranch_scc1 L_p2_ok")
    prt('nocount')
    b("s_waitcnt vmcnt(0)", 'nocount')
    b("s_branch L_p2_chk")
    b("L_p2_ok:")
    for u in range(16): b(f"v_add_f32 v{BI+u}, v{BI+u}, v{PR_+u}")
    FSPLIT = int(opts.get('fsplit', 0))
    if FSPLIT:
        b("v_lshlrev_b32 v6, 4, v0")
        b("v_add_u32 v6, 0x10000, v6")
        for p in (2, 3): b(f"ds_write_b128 v6, {v(BI+4*p,4)} offset:{(p-2)*4096}", "biw")
        b.wait('lg', "biw")
    stamp(b, 29)
    b("s_barrier")
    for p in range(2 if FSPLIT else 4):
        d = 56 + 4 * (p % 2)
        reduce(p, d, True)
        b(f"v_pk_add_f32 {v(d,2)}, {v(d,2)}, {v(BI+4*p,2)}")
        b(f"v_pk_add_f32 {v(d+2,2)}, {v(d+2,2)}, {v(BI+4*p+2,2)}")
        if p: b(f"v_add_u32 v2, {16*2048}, v2")
        b(f"global_store_dwordx4 v2, {v(d,4)}, s[30:31] {opts.get('outf', 'sc0+sc1').replace('+', ' ')}")
    stamp(b, 30)
    return b

def gen_k1():
    global STV
    STV = 15
    pro = k1_head()
    S = k1_S()
    S.ext(p2_S())
    stamp_end(S, sWm, "s[34:35]", 0x2000000, vLane, 3, 14)
    S("s_endpgm")
    Fm = B(); Fm("L_k1_F:")
    Fm(f"s_cmp_ge_u32 s{sS}, 14")
    Fm("s_cbranch_scc1 L_k1_Fn")
    f1 = k1_F(True)
    f1("s_branch L_p2_F")
    Fn = B(); Fn("L_k1_Fn:")
    f2 = k1_F(False)
    p2f = p2_F()
    if STAMP: p2f(f"s_add_u32 s{sWave}, s{sWm}, 4")
    stamp_end(p2f, sWave, "s[34:35]", 0x2000000, vLane, 3, 14)
    p2f("L_k1_end:")
    p2f("s_endpgm")
    def path(prefix, body, label=None):
        allops = insert_waits(copy.deepcopy(prefix) + body)
        if label:
            idx = [i for i, o in enumerate(allops) if o.text == label][0]
            allops = allops[idx:]
        return insert_hazard_nops(allops)
    out = path([], pro.ops + S.ops)
    out += path(pro.ops, Fm.ops + f1.ops, "L_k1_F:")
    out += path(pro.ops + Fm.ops, Fn.ops + f2.ops, "L_k1_Fn:")
    out += path([], p2f.ops)
    return out

def gen_k2():
    global STV
    STV = 9
    b = B()
    D = 15
    DW = int(opts.get('k2dw', 5))
    sWv, sH, sMt, sN = 40, 41, 42, 43
    sA, sCR, sCI, sW2 = 44, 48, 76, 80
    t0, t1, t2 = 52, 53, 54
    sS0, sF0 = 56, 57
    sLw = 58
    sCoff, sWoff2 = 59, 62
    vH0, vH1 = 4, 5
    vCe, vCo, vWa, vWb = 2, 3, 60, 61
    vPp, vTp = 48, 52
    accS, accF, vBuf = 64, 128, 192
    vNon2 = 14
    vTau = 8
    vG1, vG2 = 10, 12
    PITCH = 256
    LRED = 0
    LSTG = 65536
    code_prefetch(b, K2, "L_code_end", 2, "k2", 6, 63)
    dbgt_begin(b)
    stamp_begin(b)
    b("s_load_dwordx2 s[18:19], s[0:1], 112")
    b("s_load_dwordx2 s[4:5], s[0:1], 0")
    b("s_load_dwordx4 s[12:15], s[0:1], 40")
    b("s_load_dwordx2 s[6:7], s[0:1], 64")
    b("s_load_dwordx2 s[16:17], s[0:1], 88")
    b("s_load_dwordx2 s[8:9], s[0:1], 104")
    b("s_load_dwordx2 s[10:11], s[0:1], 120")
    b("s_cmp_ge_u32 s2, 256")
    b("s_cbranch_scc1 L_k2_end")
    b("v_lshrrev_b32 v6, 6, v0")
    b("v_and_b32 v1, 63, v0")
    b(f"v_readfirstlane_b32 s{sWv}, v6")
    b(f"s_and_b32 s{sH}, s2, 1")
    b(f"s_bfe_u32 s{t0}, s2, 0x20001")
    b(f"s_lshr_b32 s{t1}, s2, 3")
    b(f"s_and_b32 s{sMt}, s{t1}, 3")
    b(f"s_lshl_b32 s{t0}, s{t0}, 2")
    b(f"s_add_u32 s{sMt}, s{sMt}, s{t0}")
    b(f"s_lshr_b32 s{sN}, s{t1}, 2")
    b("v_and_b32 v6, 7, v1")
    b("v_lshrrev_b32 v7, 4, v1")
    b("v_xor_b32 v6, v6, v7")
    b("v_lshlrev_b32 v6, 4, v6")
    b("v_lshrrev_b32 v7, 3, v1")
    b("v_lshlrev_b32 v7, 10, v7")
    b(f"v_add_u32 v{vCe}, v6, v7")
    b(f"v_xor_b32 v{vCo}, 64, v{vCe}")
    b("v_bfe_u32 v6, v1, 4, 1")
    b("v_lshlrev_b32 v6, 2, v6")
    b("v_and_b32 v29, 7, v1")
    b("v_xor_b32 v6, v6, v29")
    b("v_lshlrev_b32 v6, 4, v6")
    b(f"v_add_u32 v{vWa}, v6, v7")
    b(f"v_add_u32 v{vWb}, {8192 - 1024}, v{vWa}")
    b(f"s_lshl_b32 s{sCoff}, s{sN}, 16")
    b(f"s_lshl_b32 s{t0}, s{sH}, 9")
    b(f"s_add_u32 s{sCoff}, s{sCoff}, s{t0}")
    b(f"s_lshl_b32 s{t0}, s{sWv}, 7")
    b(f"s_add_u32 s{sCoff}, s{sCoff}, s{t0}")
    b(f"s_lshl_b32 s{t0}, s{sH}, 2")
    b(f"s_add_u32 s{t0}, s{t0}, s{sWv}")
    b(f"s_mul_i32 s{sWoff2}, s{t0}, {14*16*1024}")
    b(f"s_lshl_b32 s{t0}, s{sN}, 7")
    b(f"s_add_u32 s{sWoff2}, s{sWoff2}, s{t0}")
    b(f"s_mul_i32 s{sLw}, s{sWv}, 24576")
    b(f"s_add_u32 s{sLw}, s{sLw}, {LSTG}")
    b(f"s_xor_b32 s{t0}, s{sH}, 1")
    b(f"s_lshl_b32 s{t0}, s{t0}, 1")
    b(f"s_lshl_b32 s{t1}, s{sMt}, 2")
    b(f"s_add_u32 s{t0}, s{t0}, s{t1}")
    b(f"s_mul_i32 s{t0}, s{t0}, {176*1024}")
    b("v_lshlrev_b32 v6, 4, v1")
    b(f"v_add_u32 v{vH0}, s{t0}, v6")
    b(f"v_add_u32 v{vH1}, {176*1024}, v{vH0}")
    b(f"s_lshl_b32 s{sS0}, s{sH}, 2")
    b(f"s_add_u32 s{sS0}, s{sS0}, s{sWv}")
    b(f"s_lshl_b32 s{sS0}, s{sS0}, 13")
    b(f"s_lshl_b32 s{sF0}, s{sH}, 2")
    b(f"s_add_u32 s{sF0}, s{sF0}, s{sWv}")
    b(f"s_mul_i32 s{sF0}, s{sF0}, {14*1024}")
    b(f"s_add_u32 s{sF0}, s{sF0}, {64*1024}")
    b("s_waitcnt lgkmcnt(0)")
    srd(b, sA, 10, WS_USED)
    srd(b, sCR, 12, 512*1024)
    srd(b, sCI, 14, 512*1024)
    srd(b, sW2, 16, 1792*1024)
    steps = [('S', i) for i in range(8)] + [('F', i) for i in range(14)]
    NS = len(steps)
    seq = [(1, st) for st in range(NS)] + [(2, st) for st in range(NS)]
    def hreg(idx, k):
        sl = idx % D
        if sl < 8: return v(vBuf + sl * 8 + k * 4, 4)
        return a(200 + (sl - 8) * 8 + k * 4, 4)
    def dma_c(m):
        for aa in range(8):
            b(f"s_add_u32 m0, s{sLw}, {m*8192 + aa*1024}")
            b(f"s_add_u32 s{t2}, s{sCoff}, {aa*8192}")
            b(f"buffer_load_dwordx4 v{vCe if aa % 2 == 0 else vCo}, {s(sCR if m == 0 else sCI,4)}, s{t2} offen lds", f"c{m}")
    def wslot(i):
        if i < 4: return 16384 + i * 2048
        if i < 12: return (i - 4) * 2048
        return 16384 + (i - 12) * 2048
    def dma_f(i):
        b(f"s_add_u32 m0, s{sLw}, {wslot(i)}")
        b(f"s_add_u32 s{t2}, s{sWoff2}, {i*16*1024}")
        b(f"buffer_load_dwordx4 v{vWa}, {s(sW2,4)}, s{t2} offen lds", f"f{i}")
        b(f"buffer_load_dwordx4 v{vWb}, {s(sW2,4)}, s{t2} offen offset:1024 lds", f"f{i}")
    def hloads(idx):
        ps, st = seq[idx]
        kind, i = steps[st]
        sb = sS0 if kind == 'S' else sF0
        if ps == 2 and st == 0:
            b(f"s_lshl_b32 s{t0}, s{sH}, 2")
            b(f"s_sub_u32 s{t0}, s{t0}, 2")
            b(f"s_mul_i32 s{t0}, s{t0}, {176*1024}")
            b(f"v_add_u32 v{vH0}, s{t0}, v{vH0}")
            b(f"v_add_u32 v{vH1}, s{t0}, v{vH1}")
        b(f"s_add_u32 s{t1}, s{sb}, {i*1024}")
        b(f"buffer_load_dwordx4 {hreg(idx,0)}, v{vH0}, {s(sA,4)}, s{t1} offen")
        b(f"buffer_load_dwordx4 {hreg(idx,1)}, v{vH1}, {s(sA,4)}, s{t1} offen")
    def wreads_s():
        for j in range(8):
            m = (j >> 1) & 1; ksp = 2 * (j >> 2) + (j & 1)
            if j == 0: b.wait('vm', "c0")
            if j == 2: b.wait('vm', "c1")
            for aa in range(2):
                b(f"ds_read_b128 {a(8*j+4*aa,4)}, v{vPp+ksp} offset:{m*8192 + aa*4096}", f"wr{j}")
    def wreads_f(i):
        st = 8 + i
        b.wait('vm', f"f{i}")
        for aa in range(2):
            for rd in range(2):
                b(f"ds_read_b64_tr_b16 {a(8*st+4*aa+2*rd,2)}, v{vTp+aa} offset:{wslot(i) + rd*8*128}", f"wr{st}")
    if STAMP >= 2: stamp(b, 24)
    dma_c(0)
    hloads(0); hloads(1)
    dma_c(1)
    b("v_and_b32 v6, 31, v1")
    b("v_lshlrev_b32 v6, 7, v6")
    b(f"v_add_u32 v6, s{sLw}, v6")
    b("v_lshrrev_b32 v7, 5, v1")
    b("v_bfe_u32 v29, v1, 1, 3")
    b("v_xor_b32 v29, v7, v29")
    for k in range(4):
        b(f"v_xor_b32 v7, {2*k}, v29")
        b(f"v_lshl_add_u32 v{vPp+k}, v7, 4, v6")
    tr_pattern(b, vTp, 4, 54)
    b(f"v_add_u32 v{vTp}, s{sLw}, v{vTp}")
    b(f"v_add_u32 v{vTp+1}, s{sLw}, v{vTp+1}")
    b("v_bfe_u32 v6, v1, 3, 2")
    b("v_and_b32 v7, 7, v1")
    b(f"v_lshl_add_u32 v{vTau}, v7, 2, v6")
    b(f"s_xor_b32 s{t0}, s{sH}, 1")
    b(f"s_lshl_b32 s{t0}, s{t0}, 6")
    b(f"s_lshl_b32 s{t1}, s{sMt}, 7")
    b(f"s_add_u32 s{t0}, s{t0}, s{t1}")
    b(f"v_add_u32 v6, s{t0}, v{vTau}")
    b("v_lshlrev_b32 v6, 3, v6")
    b(f"v_add_u32 v6, {G_OFF}, v6")
    b(f"global_load_dwordx2 v[10:11], v6, s[10:11]")
    b(f"global_load_dwordx2 v[12:13], v6, s[10:11] offset:256")
    b(f"s_lshl_b32 s{t0}, s{sH}, 7")
    b(f"s_sub_u32 s{t0}, s{t0}, 64")
    b(f"s_lshl_b32 s{t0}, s{t0}, 3")
    b(f"v_add_u32 v6, s{t0}, v6")
    b(f"global_load_dwordx2 v[16:17], v6, s[10:11]")
    b(f"global_load_dwordx2 v[18:19], v6, s[10:11] offset:256")
    b(f"v_mov_b32 v6, {NONCE_OFF}")
    b(f"global_load_dwordx2 {v(vNon2,2)}, v6, s[10:11]")
    if STAMP >= 2: stamp(b, 25)
    DH = int(opts.get('k2dh', 5))
    for idx in range(2, DH): hloads(idx)
    if STAMP >= 2: stamp(b, 26)
    vWr, vRd = 20, 21
    vWrq = 56
    b(f"s_lshl_b32 s{t0}, s{sWv}, 14")
    b(f"v_lshlrev_b32 v29, 8, v{vTau}")
    b(f"v_add_u32 v29, s{t0}, v29")
    b("v_lshrrev_b32 v6, 5, v1")
    b("v_and_b32 v7, 7, v1")
    b("v_xor_b32 v6, v6, v7")
    for q in range(4):
        b(f"v_xor_b32 v7, {2*q}, v6")
        b(f"v_lshl_add_u32 v{vWrq+q}, v7, 4, v29")
    b("v_lshrrev_b32 v22, 4, v0")
    b("v_and_b32 v23, 15, v0")
    b("v_lshrrev_b32 v6, 6, v0")
    b("v_xor_b32 v6, v6, v23")
    b(f"v_lshlrev_b32 v{vRd}, 8, v22")
    b(f"v_lshl_add_u32 v{vRd}, v6, 4, v{vRd}")
    b(f"v_xor_b32 v{vWr}, 64, v{vRd}")
    vXch = 24
    b(f"v_lshlrev_b32 v{vXch}, 4, v0")
    b(f"s_lshl_b32 s{t0}, s2, 14")
    b(f"s_add_u32 s{t0}, s{t0}, {XCH_OFF}")
    b(f"v_add_u32 v25, s{t0}, v{vXch}")
    b(f"s_xor_b32 s{t1}, s2, 1")
    b(f"s_lshl_b32 s{t0}, s{t1}, 14")
    b(f"s_add_u32 s{t0}, s{t0}, {XCH_OFF}")
    b(f"v_add_u32 v26, s{t0}, v{vXch}")
    if STAMP >= 2: stamp(b, 27)
    wreads_s()
    if STAMP >= 2: stamp(b, 28)

    def mfmas(idx):
        ps, st = seq[idx]
        kind, i = steps[st]
        acc = accS if kind == 'S' else accF
        out = []
        for aa in range(2):
            for bb in range(2):
                dreg = v(acc + (aa*2 + bb) * 16, 16)
                c = dreg if i else "0"
                out.append(f"v_mfma_f32_32x32x16_bf16 {dreg}, {a(8*st+4*aa,4)}, {hreg(idx,bb)}, {c}")
        return out

    def reduce_write(g0, g1):
        for aa in range(2):
            for bb in range(2):
                g = g0 if bb == 0 else g1
                S = accS + (aa*2+bb)*16; Fq = accF + (aa*2+bb)*16
                for p in range(8):
                    b(f"v_pk_mul_f32 {v(S+2*p,2)}, {v(S+2*p,2)}, {v(g,2)} op_sel_hi:[1,0]")
                for p in range(8):
                    b(f"v_pk_fma_f32 {v(S+2*p,2)}, {v(Fq+2*p,2)}, {v(g,2)}, {v(S+2*p,2)} op_sel:[0,1,0] op_sel_hi:[1,1,1]")
                for q in range(4):
                    b(f"ds_write_b128 v{vWrq+q}, {v(S+4*q,4)} offset:{LRED + bb*32*PITCH + aa*128}", "red")
        b.wait('lg', "red")
        b("s_barrier")
    def reduce_read(dst, gran=None):
        for p in range(4):
            for w in range(4):
                b(f"ds_read_b128 {v(dst+16*p+4*w,4)}, v{vRd if p % 2 == 0 else vWr} offset:{LRED + w*64*PITCH + p*16*PITCH}")
        for p in range(4):
            r = dst + 16*p
            b(f"v_pk_add_f32 {v(r,2)}, {v(r,2)}, {v(r+4,2)}")
            b(f"v_pk_add_f32 {v(r+2,2)}, {v(r+2,2)}, {v(r+6,2)}")
            b(f"v_pk_add_f32 {v(r+8,2)}, {v(r+8,2)}, {v(r+12,2)}")
            b(f"v_pk_add_f32 {v(r+10,2)}, {v(r+10,2)}, {v(r+14,2)}")
            if gran is None:
                b(f"v_pk_add_f32 {v(r,2)}, {v(r,2)}, {v(r+8,2)}")
                b(f"v_pk_add_f32 {v(r+2,2)}, {v(r+2,2)}, {v(r+10,2)}")
            else:
                for e in range(4):
                    u = 4 * p + e
                    b(f"v_add_f32 v{gran + 4*(u//3) + u%3}, v{r+e}, v{r+8+e}")

    total = len(seq)
    sNib = 84
    XS_ = 32
    PR_ = vBuf
    def r1c():
        f = F()
        for p in range(4):
            for w in range(4):
                f(f"ds_read_b128 {v(accF+16*p+4*w,4)}, v{vRd if p % 2 == 0 else vWr} offset:{LRED + w*64*PITCH + p*16*PITCH}")
        for p in range(4):
            r = accF + 16*p
            for e in range(4): f(f"v_add_f32 v{r+e}, v{r+e}, v{r+4+e}")
            for e in range(4): f(f"v_add_f32 v{r+8+e}, v{r+8+e}, v{r+12+e}")
            for e in range(4): f(f"v_add_f32 v{r+e}, v{r+e}, v{r+8+e}")
            for e in range(4): f(f"v_and_or_b32 v{XS_+4*p+e}, v{r+e}, -16, s{sNib+e}")
        return f
    def step_ops(idx):
        ps, st = seq[idx]
        kind, i = steps[st]
        n00 = len(b.ops)
        mf = mfmas(idx)
        if ps == 1: b.wait('lg', f"wr{st}")
        b(mf[0])
        if ps == 1:
            fi = st - 2
            if st == 6: b.wait('lg', "wr7")
            if 0 <= fi < 14: dma_f(fi)
        b(mf[1])
        if ps == 1 and 8 <= st + 1 < NS:
            wreads_f(st + 1 - 8)
        b(mf[2])
        n0 = len(b.ops)
        tg = []
        if ps == 1:
            if st + DH < NS: tg = [st + DH]
            else:
                j = st + DH - NS
                tg = [NS + 2 * j, NS + 2 * j + 1]
        elif idx + D < total: tg = [idx + D]
        for t_ in tg: hloads(t_)
        ld = b.ops[n0:]; del b.ops[n0:]
        cut = [j for j, o in enumerate(ld) if o.kind == 'vmem']
        if cut:
            b.ext(ld[:cut[0] + 1]); b(mf[3]); b.ext(ld[cut[0] + 1:])
        else:
            b(mf[3])
        ops = b.ops[n00:]; del b.ops[n00:]
        return ops
    for idx in range(NS):
        b.ext(step_ops(idx))
        st = idx
        if st == 2:
            b(f"v_readfirstlane_b32 s{t0}, v{vNon2}")
            for j in range(4):
                b(f"s_bfe_u32 s{sNib+j}, s{t0}, {(4 << 16) | (4*j):#x}")
        if STAMP >= 2 and st in (0, 3, 7, 11, 15, 19): stamp(b, 8 + (0, 3, 7, 11, 15, 19).index(st))
    stamp(b, 1)
    n0 = len(b.ops); reduce_write(vG1, vG2); rw = b.ops[n0:]; del b.ops[n0:]
    K0 = 2 * DH
    n0 = len(b.ops)
    for k in range(K0, 15): hloads(NS + k)
    hl = chunks_of(b.ops[n0:]); del b.ops[n0:]
    body, tail = rw[:-2], rw[-2:]
    gap = max(1, len(body) // (len(hl) + 1))
    outp = []
    for j, o in enumerate(body):
        outp.append(o)
        if (j + 1) % gap == 0 and hl: outp.extend(hl.pop(0))
    for c in hl: outp.extend(c)
    b.ext(outp + tail)
    stamp(b, 2)
    p2a = []
    for st in range(7): p2a += step_ops(NS + st)
    b.ext(merge(p2a, r1c().ops, per=4))
    PL = int(opts.get('k2pl', 16))
    BI = vBuf + 16
    def bias_fill():
        f = F()
        f("v_lshlrev_b32 v4, 16, v40\nv_and_b32 v5, 0xffff0000, v40\nv_lshlrev_b32 v6, 16, v41\nv_and_b32 v7, 0xffff0000, v41")
        for p in range(4):
            xs = 32 + 2*p; tp = BI + 4*p
            f(f"v_lshlrev_b32 v{tp}, 16, v{xs}\nv_and_b32 v{tp+1}, 0xffff0000, v{xs}\nv_lshlrev_b32 v{tp+2}, 16, v{xs+1}\nv_and_b32 v{tp+3}, 0xffff0000, v{xs+1}")
            for e in range(4): f(f"v_mul_f32 v{tp+e}, v{tp+e}, v{4+e}")
            f(f"v_cvt_pk_bf16_f32 v46, v{tp}, v{tp+1}")
            f(f"v_cvt_pk_bf16_f32 v47, v{tp+2}, v{tp+3}")
            f(f"v_lshlrev_b32 v{tp}, 16, v46\nv_and_b32 v{tp+1}, 0xffff0000, v46\nv_lshlrev_b32 v{tp+2}, 16, v47\nv_and_b32 v{tp+3}, 0xffff0000, v47")
            for e in range(4): f(f"v_mul_f32 v{tp+e}, v{42+p}, v{tp+e}")
        return f
    tail_steps = []
    for st in range(7, NS):
        idx = NS + st
        ops = step_ops(idx)
        if 7 <= st <= 10:
            p = st - 7
            pre = B()
            if p: pre(f"v_add_u32 v29, {p*4096}, v25")
            pre(f"global_store_dwordx4 v{29 if p else 25}, {v(XS_+4*p,4)}, s[10:11] sc0 sc1")
            ops = ops[:1] + pre.ops + ops[1:]
        if st >= 17:
            tail_steps += ops
            if st == NS - 1: b.ext(merge(tail_steps, bias_fill().ops, per=4))
            continue
        b.ext(ops)
        if STAMP >= 2 and st in (7, 11, 15, 19): stamp(b, 16 + (0, 3, 7, 11, 15, 19).index(st))
        if st == 11:
            b("s_barrier")
        if st == 11:
            b(f"s_lshl_b32 s{t0}, s{sMt}, 7")
            b(f"s_lshl_b32 s{t1}, s{sH}, 6")
            b(f"s_add_u32 s{t0}, s{t0}, s{t1}")
            b(f"v_add_u32 v30, s{t0}, v22")
            b(f"s_lshl_b32 s{t1}, s{sN}, 7")
            b("v_lshlrev_b32 v31, 10, v30")
            b("v_lshl_add_u32 v31, v23, 3, v31")
            b(f"v_add_u32 v31, s{t1}, v31")
            for p in range(4):
                if p: b(f"v_add_u32 v31, {16*1024}, v31")
                b(f"global_load_dwordx2 {v(32+2*p,2)}, v31, s[4:5]")
            b("v_lshlrev_b32 v31, 3, v23")
            b(f"v_add_u32 v31, s{t1}, v31")
            b(f"global_load_dwordx2 v[40:41], v31, s[6:7]")
            b("v_lshlrev_b32 v31, 3, v30")
            b(f"v_add_u32 v31, {G_OFF}, v31")
            for p in range(4):
                b(f"global_load_dword v{42+p}, v31, s[10:11] offset:{p*128}")
            b(f"s_lshl_b32 s{t1}, s{sN}, 8")
            b("v_lshlrev_b32 v2, 11, v30")
            b("v_lshl_add_u32 v2, v23, 4, v2")
            b(f"v_add_u32 v2, s{t1}, v2")
        if st == PL:
            for p in range(4):
                if p: b(f"v_add_u32 v29, {p*4096}, v26")
                b(f"global_load_dwordx4 {v(PR_+4*p,4)}, v{29 if p else 26}, s[10:11] sc1", "prt")
    stamp(b, 3)
    b.wait('vm', "prt")
    b(f"s_mov_b32 s{t0}, 0")
    b("L_k2_chk:")
    b("v_mov_b32 v46, 0")
    for u in range(16):
        b(f"v_xor_b32 v{PR_+u}, s{sNib + (u % 4)}, v{PR_+u}")
        b(f"v_and_or_b32 v46, v{PR_+u}, 15, v46")
    b("v_cmp_eq_u32 vcc, 0, v46")
    b("s_cmp_eq_u64 vcc, -1")
    b("s_cbranch_scc1 L_k2_ok")
    b(f"s_add_u32 s{t0}, s{t0}, 1")
    b(f"s_cmp_gt_u32 s{t0}, 40000")
    b("s_cbranch_scc1 L_k2_ok")
    for p in range(4):
        if p: b(f"v_add_u32 v29, {p*4096}, v26")
        b(f"global_load_dwordx4 {v(PR_+4*p,4)}, v{29 if p else 26}, s[10:11] sc1", 'nocount')
    b("s_waitcnt vmcnt(0)", 'nocount')
    b("s_branch L_k2_chk")
    b("L_k2_ok:")
    if STAMP >= 2: stamp(b, 30)
    n0 = len(b.ops)
    reduce_write(16, 18)
    rw = b.ops[n0:]; del b.ops[n0:]
    fl = F()
    for u in range(0, 16, 2): fl(f"v_pk_add_f32 {v(BI+u,2)}, {v(BI+u,2)}, {v(PR_+u,2)}")
    b.ext(merge(rw, fl.ops, after=lambda o: o.mn.startswith('ds_write'), per=1))
    if STAMP >= 2: stamp(b, 31)
    reduce_read(accF)
    if STAMP >= 2: stamp(b, 32)
    OUTF = opts.get('outf', '').replace('+', ' ')
    for p in range(4):
        r = accF + 16*p
        b(f"v_pk_add_f32 {v(r,2)}, {v(r,2)}, {v(BI+4*p,2)}")
        b(f"v_pk_add_f32 {v(r+2,2)}, {v(r+2,2)}, {v(BI+4*p+2,2)}")
        if p: b(f"v_add_u32 v2, {16*2048}, v2")
        b(f"global_store_dwordx4 v2, {v(r,4)}, s[8:9] {OUTF}")
    stamp(b, 4)
    dbgt_end(b, "s[18:19]", 32, True)
    stamp_end(b, sWv, "s[10:11]", 0x2100000, 1)
    b("L_k2_end:")
    b("s_endpgm")
    return finalize(b.ops)

KN = NAME + "_kernel"
def header():
    ref = open('cdna_kernels/%s.s.ref' % NAME).read().split('\n')
    hdr = []
    for line in ref:
        if not line.startswith(';'): break
        if '@launch' in line: continue
        hdr.append(line)
    hdr.append("; @launch grid=(256,1,1) block=(512,1,1) lds=163840")
    return '\n'.join(hdr)

def kd(name, nv, acc_off, nsg):
    return f""".amdhsa_kernel {name}
  .amdhsa_next_free_vgpr {nv}
  .amdhsa_next_free_sgpr {nsg}
  .amdhsa_accum_offset {acc_off}
  .amdhsa_group_segment_fixed_size 0
  .amdhsa_kernarg_size 128
  .amdhsa_user_sgpr_count 2
  .amdhsa_user_sgpr_kernarg_segment_ptr 1
  .amdhsa_system_sgpr_workgroup_id_x 1
  .amdhsa_float_denorm_mode_32 3
.end_amdhsa_kernel"""

def main():
    k1 = gen_k1()
    out = [header(), '.amdgcn_target "amdgcn-amd-amdhsa--gfx950"', '.text']
    out += [f".globl {KN}", ".p2align 8", f".type {KN},@function", f"{KN}:", render(k1)]
    out += ["L_code_end:", "  s_endpgm"]
    out += ['.section .rodata,"a"', '.p2align 6', kd(KN, 256, 128, 102)]
    print('\n'.join(out))

main()
```

```python
import sys, copy
sys.path.insert(0, 'dev')
from ir import *

NAME = "gated_mix__ssm_conv_s5__dense_activation_silu__prompt"
K1 = NAME + "_kernel"
K2 = "gm_k2_kernel"

opts = dict(a.split('=') for a in sys.argv[1:] if '=' in a)
HF_OFF = 0
HF_SIZE = 64 * 176 * 1024
W2F_OFF = HF_SIZE
W2F_SIZE = 16 * 176 * 1024
G_OFF = W2F_OFF + W2F_SIZE
E_OFF = G_OFF + 2048 * 8
E_SIZE = 16 * 16 * 512
NONCE_OFF = E_OFF + E_SIZE
FLG_OFF = NONCE_OFF + 256
FLG_STRIDE = int(opts.get('flgs', 1024)) if 'opts' in globals() else 128
XCH_OFF = FLG_OFF + 0x40000
WS_USED = XCH_OFF + 256 * 16384

LOG2E = 0x3fb8aa3b
INV2PI = 0x3e22f983

RB, XS, WR = 0, 65536, 114688
SC = 32768
IMG = 36864

STAMP = int(opts.get('stamp', 0))
STF = "sc0 sc1"

def v(n, k=1): return f"v{n}" if k == 1 else f"v[{n}:{n+k-1}]"
def a(n, k=1): return f"a{n}" if k == 1 else f"a[{n}:{n+k-1}]"
def s(n, k=1): return f"s{n}" if k == 1 else f"s[{n}:{n+k-1}]"


STV = 15
def reg_of_t(t): return (t >> 2) + 4 * (t & 3)
def srd(b, dst, ptr, size):
    b(f"s_mov_b32 s{dst}, s{ptr}")
    b(f"s_mov_b32 s{dst+1}, s{ptr+1}")
    b(f"s_mov_b32 s{dst+2}, {size}")
    b(f"s_mov_b32 s{dst+3}, 0x20000")


def cexp(b, dst, n_src, va, vang, t0):
    b(f"v_mul_f32 v{t0}, {n_src}, v{va}")
    b(f"v_mul_f32 v{t0+1}, {n_src}, v{vang}")
    b(f"v_exp_f32 v{t0}, v{t0}")
    b(f"v_rndne_f32 v{t0+2}, v{t0+1}")
    b(f"v_sub_f32 v{t0+1}, v{t0+1}, v{t0+2}")
    b(f"v_cos_f32 v{dst}, v{t0+1}")
    b(f"v_sin_f32 v{dst+1}, v{t0+1}")
    b(f"v_mul_f32 v{dst}, v{t0}, v{dst}")
    b(f"v_mul_f32 v{dst+1}, v{t0}, v{dst+1}")


def cfma(b, d, l, h, u, tmp):
    b(f"v_pk_fma_f32 {v(tmp,2)}, {v(l,2)}, {v(h,2)}, {v(u,2)} op_sel:[0,0,0] op_sel_hi:[0,1,1]")
    b(f"v_pk_fma_f32 {v(d,2)}, {v(l,2)}, {v(h,2)}, {v(tmp,2)} op_sel:[1,1,0] op_sel_hi:[1,0,1] neg_lo:[1,0,0]")


def cfma_s(b, d, l, h, u, tmp):
    b(f"v_fma_f32 v{tmp}, v{l}, v{h}, v{u}")
    b(f"v_fma_f32 v{tmp+1}, v{l}, v{h+1}, v{u+1}")
    b(f"v_fma_f32 v{d}, -v{l+1}, v{h+1}, v{tmp}")
    b(f"v_fma_f32 v{d+1}, v{l+1}, v{h}, v{tmp+1}")


def stamp(b, idx):
    if not STAMP: return
    g = B()
    g("s_memtime s[100:101]")
    g("s_waitcnt lgkmcnt(0)")
    g(f"v_writelane_b32 v{STV}, s100, {idx}")
    b.ext(g)


def stamp_begin(b):
    if not STAMP: return
    b(f"v_mov_b32 v{STV}, 0")
    b("s_memrealtime s[100:101]")
    b("s_waitcnt lgkmcnt(0)")
    b(f"v_writelane_b32 v{STV}, s100, 62")
    stamp(b, 0)


def stamp_end(b, wave, ws, off, lane, sh=2, tv=254):
    if not STAMP: return
    b("s_memrealtime s[100:101]")
    b("s_waitcnt lgkmcnt(0)")
    b(f"v_writelane_b32 v{STV}, s100, 63")
    b(f"s_lshl_b32 s100, s2, {sh}")
    b(f"s_add_u32 s100, s100, s{wave}")
    b(f"s_lshl_b32 s100, s100, 8")
    b(f"s_add_u32 s100, s100, {off}")
    b(f"v_lshlrev_b32 v{tv}, 2, v{lane}")
    b(f"v_add_u32 v{tv}, s100, v{tv}")
    b(f"global_store_dword v{tv}, v{STV}, {ws}")


vLane = 1
def tr_pattern(b, dst, hfmul, t):
    L = vLane
    b(f"v_lshrrev_b32 v{t}, 5, v{L}")
    b(f"v_mul_u32_u24 v{t}, {hfmul}, v{t}")
    b(f"v_bfe_u32 v{t+1}, v{L}, 2, 2")
    b(f"v_add_u32 v{t}, v{t}, v{t+1}")
    b(f"v_lshlrev_b32 v{t}, 7, v{t}")
    b(f"v_bfe_u32 v{t+1}, v{L}, 3, 1")
    b(f"v_lshlrev_b32 v{t+1}, 6, v{t+1}")
    b(f"v_bfe_u32 v{t+2}, v{L}, 4, 1")
    b(f"v_lshlrev_b32 v{t+2}, 5, v{t+2}")
    b(f"v_and_b32 v{t+3}, 3, v{L}")
    b(f"v_lshlrev_b32 v{t+3}, 3, v{t+3}")
    b(f"v_add3_u32 v{t}, v{t}, v{t+2}, v{t+3}")
    b(f"v_add_u32 v{dst}, v{t}, v{t+1}")
    b(f"v_xor_b32 v{t+1}, 64, v{t+1}")
    b(f"v_add_u32 v{dst+1}, v{t}, v{t+1}")

SLOT = 24576
NSLOT = 4
WB0 = 98304
SCR = 73728
SC = 0
IMG = 1024
def wblock_lds(q):
    if q < 8: return WB0 + q * 8192
    return (q - 8) * 8192

sX, sBRE, sBIM, sW1, sHF = 36, 40, 44, 48, 52
sWave, sWm, sR, sS, sRho = 60, 61, 62, 63, 56
sLdsX, sLdsB = 64, 65
sT0, sT1, sT2, sT3 = 68, 69, 70, 71
sWL = 72
sM1, sM2, sM3 = 80, 82, 84
sHFb, sK0, sEX = 86, 87, 88
sLo = 90
sSpin, sU = 98, 99

DBGT = int(opts.get('dbgt', 0))
def dbgt_begin(b):
    if not DBGT: return
    b("s_memrealtime s[100:101]")
    b("s_waitcnt lgkmcnt(0)")
    b("s_not_b32 s101, s100")
def dbgt_end(b, dbg, vt, k2=False):
    if not DBGT: return
    b("s_mov_b32 s99, s101")
    b("s_memrealtime s[100:101]")
    b("s_waitcnt lgkmcnt(0)")
    b(f"v_mov_b32 v{vt}, 0")
    b(f"v_mov_b32 v{vt+1}, s99")
    b(f"v_mov_b32 v{vt+2}, s100")
    b("s_mov_b64 exec, 1")
    b(f"global_atomic_umax v{vt}, v{vt+1}, {dbg} offset:16")
    b(f"global_atomic_umax v{vt}, v{vt+2}, {dbg} offset:20")
    if k2:
        b(f"global_load_dwordx2 {v(vt+2,2)}, v{vt}, {dbg} offset:-496 sc1")
        b("s_waitcnt vmcnt(0)")
        b(f"global_store_dwordx2 v{vt}, {v(vt+2,2)}, {dbg} offset:8")
    b("s_mov_b64 exec, -1")

def code_prefetch(b, kname, endlabel, wshift, tag, vt, vd):
    if not int(opts.get('pfc', 1)): return
    b("s_getpc_b64 s[40:41]")
    b(f"L_{tag}_pc:")
    b(f"s_sub_u32 s40, s40, L_{tag}_pc-{kname}")
    b("s_subb_u32 s41, s41, 0")
    b("s_lshr_b32 s42, s2, 3")
    b(f"s_lshl_b32 s42, s42, {wshift + 7}")
    b(f"v_lshrrev_b32 v{vt}, 6, v0")
    b(f"v_lshlrev_b32 v{vt}, 7, v{vt}")
    b(f"v_add_u32 v{vt}, s42, v{vt}")
    b(f"v_min_u32 v{vt}, {endlabel}-{kname}-4, v{vt}")
    b(f"global_load_dword v{vd}, v{vt}, s[40:41]", 'nocount')

def k1_head():
    b = B()
    code_prefetch(b, K1, "L_code_end", 3, "k1", 2, 14)
    dbgt_begin(b)
    stamp_begin(b)
    b("s_load_dwordx16 s[4:19], s[0:1], 0")
    b("s_load_dwordx16 s[20:35], s[0:1], 64")
    b("s_cmp_ge_u32 s2, 256")
    b("s_cbranch_scc1 L_k1_end")
    b("v_lshrrev_b32 v2, 6, v0")
    b(f"v_and_b32 v{vLane}, 63, v0")
    b(f"v_readfirstlane_b32 s{sWave}, v2")
    b(f"s_and_b32 s{sT0}, s2, 7")
    b(f"s_lshr_b32 s{sT1}, s2, 3")
    b(f"s_and_b32 s{sT2}, s{sT1}, 3")
    b(f"s_lshr_b32 s{sT3}, s{sT1}, 2")
    b(f"s_lshr_b32 s{sR}, s{sT0}, 1")
    if int(opts.get('gray', 0)):
        b(f"s_lshr_b32 s{sS}, s{sR}, 1")
        b(f"s_xor_b32 s{sR}, s{sR}, s{sS}")
    b(f"s_lshl_b32 s{sR}, s{sR}, 2")
    b(f"s_add_u32 s{sR}, s{sR}, s{sT2}")
    b(f"s_and_b32 s{sS}, s{sT0}, 1")
    b(f"s_lshl_b32 s{sS}, s{sS}, 3")
    b(f"s_add_u32 s{sS}, s{sS}, s{sT3}")
    b(f"s_lshl_b32 s{sRho}, s{sT2}, 1")
    b(f"s_add_u32 s{sRho}, s{sRho}, s{sT3}")
    ROT1 = opts.get('rot1', 'two')
    if ROT1 == 'none': b(f"s_mov_b32 s{sRho}, 0")
    if ROT1 == 'half':
        b(f"s_and_b32 s{sRho}, s{sRho}, 1")
        b(f"s_lshl_b32 s{sRho}, s{sRho}, 2")
    if ROT1 == 'two':
        b(f"s_and_b32 s{sRho}, s{sRho}, 3")
        b(f"s_lshl_b32 s{sRho}, s{sRho}, 1")
    b(f"s_and_b32 s{sWm}, s{sWave}, 3")
    b(f"s_lshl_b32 s{sLdsX}, s{sWm}, 12")
    b(f"s_lshl_b32 s{sLdsB}, s{sWm}, 11")
    b(f"s_lshl_b32 s{sHFb}, s{sR}, 2")
    b(f"s_add_u32 s{sHFb}, s{sHFb}, s{sWm}")
    b(f"s_mul_i32 s{sHFb}, s{sHFb}, {176*1024}")
    if int(opts.get('swap', 0)):
        b(f"s_cmp_lt_u32 s{sWave}, 4")
        b("s_cbranch_scc1 L_k1_F")
        b("v_and_b32 v0, 0xff, v0")
    else:
        b(f"s_cmp_ge_u32 s{sWave}, 4")
        b("s_cbranch_scc1 L_k1_F")
    return b

fXe, fXo, fB, fW = 2, 3, 4, 5
fPX, fTA, fTB, fTC, fL16 = 7, 11, 13, 16, 6 + 0
fPX, fTA, fTB, fTC = 8, 12, 14, 16
fPX, fTA, fTB, fTC, fL16 = 8, 12, 16, 18, 7
fE, fD = 20, 28
fS, fAcc = 32, 64

def dma(b, voff, srdn, soff, tok, imm=0):
    o = f" offset:{imm}" if imm else ""
    b(f"buffer_load_dwordx4 v{voff}, {s(srdn,4)}, {soff} offen{o} lds", tok)
def dma_x(b, i):
    b(f"s_add_u32 m0, s{sLdsX}, {(i % NSLOT) * SLOT}")
    for k in range(4):
        dma(b, fXe if k % 2 == 0 else fXo, sX, f"s{sLo+i}", f"x{i}", k * 1024)
def dma_B(b, i):
    b(f"s_add_u32 m0, s{sLdsB}, {(i % NSLOT) * SLOT + 16384}")
    dma(b, fB, sBRE, f"s{sLo+i}", f"B{i}")
    dma(b, fB, sBIM, f"s{sLo+i}", f"B{i}", 1024)
def dma_w(b, q):
    i, hh = q % 8, q // 8
    b(f"s_add_u32 m0, s{sLdsB}, {wblock_lds(q)}")
    if hh:
        b(f"s_add_u32 s{sT0}, s{sWL+i}, 128")
        so = f"s{sT0}"
    else:
        so = f"s{sWL+i}"
    dma(b, fW, sW1, so, f"w{q}")
    dma(b, fW + 1, sW1, so, f"w{q}", 1024)

def chunks_of(ops):
    ch = []; cur = []
    for o in ops:
        cur.append(o)
        if o.kind == 'vmem': ch.append(cur); cur = []
    if cur: ch.append(cur)
    return ch

def k1_F(ffn):
    b = B(); L = vLane
    t = fE
    for i in range(8):
        b(f"s_add_u32 s{sLo+i}, s{sRho}, {i}")
        b(f"s_and_b32 s{sLo+i}, s{sLo+i}, 7")
        b(f"s_lshl_b32 s{sLo+i}, s{sLo+i}, 7")
    b(f"v_and_b32 v{t}, 7, v{L}")
    b(f"v_lshrrev_b32 v{t+1}, 4, v{L}")
    b(f"v_xor_b32 v{t+2}, v{t}, v{t+1}")
    b(f"v_lshlrev_b32 v{t+2}, 4, v{t+2}")
    b(f"v_lshrrev_b32 v{t+3}, 3, v{L}")
    b(f"s_lshl_b32 s{sT0}, s{sR}, 17")
    b(f"s_lshl_b32 s{sT1}, s{sWm}, 15")
    b(f"s_add_u32 s{sT0}, s{sT0}, s{sT1}")
    b(f"v_lshlrev_b32 v{t}, 12, v{t+3}")
    b(f"v_add3_u32 v{fXe}, v{t}, v{t+2}, s{sT0}")
    b(f"v_xor_b32 v{fXo}, 64, v{fXe}")
    b(f"s_and_b32 s{sT0}, s{sWm}, 1")
    b(f"s_lshl_b32 s{sT0}, s{sT0}, 6")
    b(f"v_xor_b32 v{t+1}, s{sT0}, v{t+2}")
    b(f"s_lshl_b32 s{sT0}, s{sWm}, 13")
    b(f"s_lshl_b32 s{sT1}, s{sS}, 15")
    b(f"s_add_u32 s{sT0}, s{sT0}, s{sT1}")
    b(f"v_lshlrev_b32 v{t}, 10, v{t+3}")
    b(f"v_add3_u32 v{fB}, v{t}, v{t+1}, s{sT0}")
    b("s_waitcnt lgkmcnt(0)")
    srd(b, sX, 4, 2048*1024)
    srd(b, sBRE, 10, 512*1024)
    b(f"s_sub_u32 s{sBIM}, s12, 1024")
    b(f"s_subb_u32 s{sBIM+1}, s13, 0")
    b(f"s_mov_b32 s{sBIM+2}, {512*1024 + 1024}")
    b(f"s_mov_b32 s{sBIM+3}, 0x20000")
    if STAMP >= 2: stamp(b, 8)
    INI = int(opts.get('ini', 3))
    for i in range(INI):
        dma_x(b, i); dma_B(b, i)
    if STAMP >= 2: stamp(b, 9)
    srd(b, sHF, 34, WS_USED)
    if ffn:
        srd(b, sW1, 24, 512*3584)
        b(f"v_bfe_u32 v{t+1}, v{L}, 4, 1")
        b(f"v_lshlrev_b32 v{t+1}, 2, v{t+1}")
        b(f"v_and_b32 v{t+3}, 7, v{L}")
        b(f"v_xor_b32 v{t+3}, v{t+3}, v{t+1}")
        b(f"v_lshlrev_b32 v{t+3}, 4, v{t+3}")
        b(f"v_lshrrev_b32 v{t+1}, 3, v{L}")
        b(f"s_lshl_b32 s{sT3}, s{sWm}, 4")
        b(f"v_add_u32 v{t+1}, s{sT3}, v{t+1}")
        b(f"v_mul_u32_u24 v{t+1}, 3584, v{t+1}")
        b(f"v_add_u32 v{fW}, v{t+1}, v{t+3}")
        b(f"v_add_u32 v{fW+1}, {8*3584 - 1024}, v{fW}")
        b(f"s_lshl_b32 s{sT3}, s{sS}, 8")
        for i in range(8):
            b(f"s_mul_i32 s{sWL+i}, s{sLo+i}, 1792")
            b(f"s_add_u32 s{sWL+i}, s{sWL+i}, s{sT3}")
        tr_pattern(b, fTA, 8, t)
        b(f"v_add_u32 v{fTB}, 0x10000, v{fTA}")
        b(f"v_add_u32 v{fTB+1}, 0x10000, v{fTA+1}")
        b(f"v_add_u32 v{fTC}, 0x20000, v{fTA}")
        b(f"v_add_u32 v{fTC+1}, 0x20000, v{fTA+1}")
        b(f"v_lshlrev_b32 v{fL16}, 4, v{L}")
        b(f"v_and_b32 v{t}, 31, v{L}")
        b(f"v_lshrrev_b32 v{t+1}, 5, v{L}")
        b(f"v_bfe_u32 v{t+2}, v{L}, 1, 3")
        b(f"v_xor_b32 v{t+2}, v{t+1}, v{t+2}")
        b(f"v_lshlrev_b32 v{t+1}, 7, v{t}")
        b(f"v_add_u32 v{t+1}, s{sLdsX}, v{t+1}")
        for k in range(4):
            b(f"v_xor_b32 v{t+3}, {2*k}, v{t+2}")
            b(f"v_lshl_add_u32 v{fPX+k}, v{t+3}, 4, v{t+1}")
        b(f"s_mov_b32 s66, {LOG2E ^ 0x80000000:#x}")
        b(f"s_mov_b32 s67, {LOG2E ^ 0x80000000:#x}")
        b(f"s_lshl_b32 s{sU}, s{sS}, 13")
        b(f"s_add_u32 s{sU}, s{sU}, s{sHFb}")
        b(f"s_add_u32 s{sU}, s{sU}, {64*1024}")
    stamp(b, 1)
    for i in range(8):
        if STAMP >= 2: stamp(b, 10 + 2*i)
        b.wait('vm', f"x{i}", f"B{i}")
        b("s_waitcnt lgkmcnt(0)")
        b("s_barrier")
        if STAMP >= 2: stamp(b, 11 + 2*i)
        if ffn:
            po = (i % NSLOT) * SLOT
            if po >= 65536:
                for k in range(4): b(f"v_add_u32 v{fE+k}, 0x10000, v{fPX+k}")
            for k in range(4):
                if po >= 65536: b(f"ds_read_b128 {a(16*i+4*k,4)}, v{fE+k} offset:{po - 65536}")
                else: b(f"ds_read_b128 {a(16*i+4*k,4)}, v{fPX+k} offset:{po}")
        if i == 0 and INI == 2:
            dma_x(b, 2); dma_B(b, 2)
        if i <= 4:
            dma_x(b, i + 3); dma_B(b, i + 3)
        elif ffn:
            for q in {5: (0, 1, 2), 6: (3, 4, 5), 7: (6, 7)}[i]: dma_w(b, q)
        if True:
            if not ffn and i == 5:
                b(f"s_lshl_b32 s{sT0}, s{sR}, 1")
                b(f"s_add_u32 s{sT0}, s{sT0}, s{sS}")
                b(f"s_sub_u32 s{sT0}, s{sT0}, 14")
                b(f"s_lshl_b32 s{sT0}, s{sT0}, 2")
                b(f"s_add_u32 s{sT0}, s{sT0}, s{sWm}")
                b(f"v_lshlrev_b32 v8, 7, v{L}")
                srd(b, sW1, 26, 1792*1024)
                srd(b, sHF, 14, 512*1024)
                srd(b, 76, 16, 512*1024)
                b(f"s_mul_i32 s{sT1}, s{sT0}, 14336")
                b(f"buffer_load_dword v9, v8, {s(sW1,4)}, s{sT1} offen")
                b(f"s_add_u32 s{sT1}, s{sT1}, 8192")
                b(f"buffer_load_dword v10, v8, {s(sW1,4)}, s{sT1} offen")
                b(f"s_lshl_b32 s{sT1}, s{sT0}, 12")
                b(f"buffer_load_dword v11, v8, {s(sHF,4)}, s{sT1} offen")
                b(f"buffer_load_dword v12, v8, {s(76,4)}, s{sT1} offen")
    stamp(b, 2)
    if ffn and int(opts.get('fprio', 3)): b(f"s_setprio {int(opts.get('fprio', 3))}")
    if not ffn:
        b(f"s_lshl_b32 s{sT0}, s{sR}, 1")
        b(f"s_add_u32 s{sT0}, s{sT0}, s{sS}")
        b(f"s_sub_u32 s{sT0}, s{sT0}, 14")
        b(f"s_lshl_b32 s{sT0}, s{sT0}, 2")
        b(f"s_add_u32 s{sT0}, s{sT0}, s{sWm}")
        k1_gjob_all(b)
        return b
    def ffn_phase(hh):
        p = B(); DEPTH = int(opts.get('fdepth', 3))
        def lds_loc(n):
            i, k = divmod(n, 4)
            base = wblock_lds(8 * hh + i) + 16 * k * 128
            if base < 65536: return fTA, base
            if base < 131072: return fTB, base - 65536
            return fTC, base - 131072
        plan = {0: [0, 1, 2, 3], int(opts.get('bcn', 12)): [4, 5, 6, 7]} if hh == 0 else {0: list(range(8, 16))}
        def reads(n):
            if n in plan:
                p.wait('vm', *[f"w{q}" for q in plan[n]])
                if hh == 0 and n == 0: p("s_waitcnt lgkmcnt(0)")
                if STAMP >= 2: stamp(p, 26 + (0 if n == 0 else 1) if hh == 0 else 29)
                p("s_barrier")
                if STAMP >= 2 and hh == 0: stamp(p, 30 + (0 if n == 0 else 1))
            base, off = lds_loc(n)
            r = fS + (n % 4) * 8
            for ft in range(2):
                for rd in range(2):
                    p(f"ds_read_b64_tr_b16 {v(r+4*ft+2*rd,2)}, v{base+ft} offset:{off + rd*512}", f"r{hh}_{n}")
        ch = []
        if hh == 0:
            d = B()
            for q in range(8, 16): dma_w(d, q)
            ch = chunks_of(d.ops)
        for n in range(DEPTH): reads(n)
        for n in range(32):
            i, k = divmod(n, 4)
            r = fS + (n % 4) * 8
            p.wait('lg', f"r{hh}_{n}")
            for ft in range(2):
                acc = fAcc + (2*hh + ft) * 16
                c = v(acc, 16) if n else "0"
                p(f"v_mfma_f32_32x32x16_bf16 {v(acc,16)}, {v(r+4*ft,4)}, {a(16*i+4*k,4)}, {c}")
                if ft == 0 and ch: p.ext(ch.pop(0))
            if hh == 0 and n == int(opts.get('bxn', 1)): p("s_barrier")
            if hh == 0 and n == 16 and int(opts.get('cearly', 1)): p("s_barrier")
            if hh == 1 and opts.get('fprion') is not None and n == int(opts.get('fprion')): p(f"s_setprio {int(opts.get('fprio2', 0))}")
            if n + DEPTH < 32: reads(n + DEPTH)
        assert not ch
        return p
    if int(opts.get('tseq', 0)):
        DEPTH = int(opts.get('tdepth', 6))
        def loc(g):
            t_, n = divmod(g, 32); i, k = divmod(n, 4)
            base = wblock_lds(8 * (t_ // 2) + i) + 16 * k * 128
            if base < 65536: return fTA + (t_ & 1), base
            if base < 131072: return fTB + (t_ & 1), base - 65536
            return fTC + (t_ & 1), base - 131072
        d = B()
        for q in range(8, 16): dma_w(d, q)
        ch = chunks_of(d.ops)
        tiles = []
        p = B()
        def rd(g):
            if g == 0:
                p.wait('vm', "w0", "w1", "w2", "w3"); p("s_waitcnt lgkmcnt(0)"); p("s_barrier")
            if g == 16:
                p.wait('vm', "w4", "w5", "w6", "w7"); p("s_barrier")
            if g == 64: p("s_barrier")
            base, off = loc(g); r = fS + (g % 8) * 4
            for r_ in range(2):
                p(f"ds_read_b64_tr_b16 {v(r+2*r_,2)}, v{base} offset:{off + r_*512}", f"t{g}")
        for g in range(DEPTH): rd(g)
        for g in range(128):
            t_, n = divmod(g, 32); i, k = divmod(n, 4)
            if n == 0 and t_: tiles.append(p); p = B()
            r = fS + (g % 8) * 4; acc = fAcc + t_ * 16
            if g % 2 == 0: p.wait('lg', f"t{g}", f"t{g+1}")
            p(f"v_mfma_f32_32x32x16_bf16 {v(acc,16)}, {v(r,4)}, {a(16*i+4*k,4)}, {v(acc,16) if n else 0}")
            if ch: p.ext(ch.pop(0))
            if g == int(opts.get('bxn', 3)): p("s_barrier")
            if g == 31: p.wait('vm', *[f"w{q}" for q in range(8, 16)])
            if g + DEPTH < 128: rd(g + DEPTH)
        tiles.append(p)
        PT = int(opts.get('pert', 3))
        b.ext(tiles[0])
        for t_ in range(1, 4):
            b.ext(merge(tiles[t_].ops, k1_silu(t_ - 1, False).ops, per=PT, start=1))
            if t_ == 1: stamp(b, 3)
        stamp(b, 4)
        b.ext(flat(k1_silu(3, True).ops))
        stamp(b, 5)
        return b
    b.ext(ffn_phase(0))
    stamp(b, 3)
    p3 = ffn_phase(1)
    fl = F()
    fl.ext(k1_silu(0, False)); fl.ext(k1_silu(1, False))
    if opts.get('p3mode') == 'nofill':
        b.ext(p3.ops); stamp(b, 6); b.ext(flat(fl.ops))
    elif opts.get('p3mode') == 'nostore':
        fo = [o for o in fl.ops if not (not isinstance(o, list) and o.kind == 'vmem')]
        st_ = [o for o in fl.ops if (not isinstance(o, list) and o.kind == 'vmem')]
        b.ext(merge(p3.ops, fo, per=int(opts.get('per3', 4)), start=1))
    else:
        b.ext(merge(p3.ops, fl.ops, per=int(opts.get('per3', 4)), start=1))
    stamp(b, 4)
    if int(opts.get('fprio', 3)) and int(opts.get('fprio2', 0)) >= 0: b(f"s_setprio {int(opts.get('fprio2', 0))}")
    b.ext(flat(k1_silu(2, True).ops))
    b.ext(flat(k1_silu(3, True).ops))
    stamp(b, 5)
    return b

def k1_silu(ft, pk):
    b = F()
    acc = fAcc + ft * 16
    e, d = fE, fD
    for kk in range(2):
        base = acc + 8 * kk
        if pk:
            for q in range(4): b(f"v_pk_mul_f32 {v(e+2*q,2)}, {v(base+2*q,2)}, s[66:67]")
            for q in range(8): b(f"v_exp_f32 v{e+q}, v{e+q}")
            for q in range(4): b(f"v_pk_add_f32 {v(e+2*q,2)}, {v(e+2*q,2)}, 1.0 op_sel_hi:[1,0]")
            for q in range(8): b(f"v_rcp_f32 v{e+q}, v{e+q}")
            for q in range(4): b(f"v_pk_mul_f32 {v(e+2*q,2)}, {v(base+2*q,2)}, {v(e+2*q,2)}")
            for q in range(4): b(f"v_cvt_pk_bf16_f32 v{d+q}, v{e+2*q}, v{e+2*q+1}")
        else:
            seq = []
            for q in range(8):
                seq.append([f"v_mul_f32 v{e+q}, s66, v{base+q}", f"v_exp_f32 v{e+q}, v{e+q}", f"v_add_f32 v{e+q}, 1.0, v{e+q}",
                            f"v_rcp_f32 v{e+q}, v{e+q}", f"v_mul_f32 v{e+q}, v{base+q}, v{e+q}"])
            if opts.get('silu', 'diag') == 'diag':
                for tm in range(8 + 4):
                    for stg in range(5):
                        q = tm - stg
                        if 0 <= q < 8: b(seq[q][stg])
            elif opts.get('silu') == 'block':
                for stg in range(5):
                    for q in range(8): b(seq[q][stg])
            else:
                for tm in range(8 + 8):
                    for stg in range(5):
                        q = tm - 2 * stg
                        if 0 <= q < 8: b(seq[q][stg])
            for q in range(4): b(f"v_cvt_pk_bf16_f32 v{d+q}, v{e+2*q}, v{e+2*q+1}")
        b(f"s_add_u32 s{sK0}, s{sU}, {(2*ft+kk)*1024}")
        b(f"buffer_store_dwordx4 {v(d,4)}, v{fL16}, {s(sHF,4)}, s{sK0} offen {STF}")
    return b

gPX, gPB = 2, 6
vLBa, vImgW, vImgR, vL16o = 10, 11, 12, 13
vL, vC2, vL16, vL32, vL128, vL256, vF1, vG, vHfm = 16, 18, 20, 22, 24, 26, 28, 30, 32
vNon, vK, vQ, vW_, vPre, vTmp = 34, 36, 38, 40, 42, 44
vP = 48
aRE, aIM, vU = 64, 80, 96
aSX, aSB = 0, 16

def k1_S_setup():
    b = B(); L = vLane; t = vP
    b("s_waitcnt lgkmcnt(0)")
    srd(b, sHF, 34, WS_USED)
    b(f"v_and_b32 v{t}, 31, v{L}")
    b(f"s_lshl_b32 s{sT0}, s{sS}, 5")
    b(f"v_add_u32 v{t}, s{sT0}, v{t}")
    b(f"v_lshlrev_b32 v{t}, 1, v{t}")
    b(f"global_load_ushort v{vP+8}, v{t}, s[6:7]")
    b(f"global_load_ushort v{vP+9}, v{t}, s[8:9]")
    b(f"global_load_ushort v{vP+10}, v{t}, s[18:19]")
    if int(opts.get('nearly', 0)):
        b(f"s_or_b32 s{sT0}, s2, s{sWm}")
        b(f"s_cmp_lg_u32 s{sT0}, 0")
        b("s_cbranch_scc1 L_k1_nononce")
        b(f"v_mov_b32 v{t}, {NONCE_OFF}")
        b(f"global_load_dwordx2 {v(vU+26,2)}, v{t}, s[34:35] sc1", 'nocount')
        b("s_waitcnt vmcnt(0)", 'nocount')
        b(f"v_add_u32 v{vU+26}, 1, v{vU+26}")
        b(f"v_or_b32 v{vU+27}, 1, v{vU+27}")
        b(f"v_mov_b32 v{t+1}, 0")
        b(f"global_store_dwordx2 v{t+1}, {v(vU+26,2)}, s[32:33] sc0 sc1", 'nocount')
        b(f"global_store_dwordx2 v{t}, {v(vU+26,2)}, s[34:35] sc0 sc1", 'nocount')
        b("L_k1_nononce:")
    else:
        b(f"v_mov_b32 v{t}, {NONCE_OFF}")
        b(f"global_load_dwordx2 {v(vU+26,2)}, v{t}, s[34:35] sc1")
    if int(opts.get('flgw', 1)):
        b(f"s_mul_i32 s{sT0}, s{sR}, {FLG_STRIDE}")
        b(f"s_add_u32 s{sT0}, s{sT0}, {FLG_OFF}")
        b(f"v_mov_b32 v{t}, s{sT0}")
        b(f"global_load_dword v{vU+10}, v{t}, s[34:35] sc1", 'nocount')
        b(f"s_lshl_b32 s{sT0}, s{sR}, 10")
        b(f"s_add_u32 s{sT0}, s{sT0}, {G_OFF}")
        b(f"v_and_b32 v{t}, 7, v{L}")
        b(f"v_lshlrev_b32 v{t}, 7, v{t}")
        b(f"v_add_u32 v{t}, s{sT0}, v{t}")
        b(f"global_load_dword v{vU+11}, v{t}, s[34:35] sc1", 'nocount')
    if int(opts.get('tlbw', 1)):
        pd = vU + 12
        b(f"s_cmp_eq_u32 s{sWm}, 2")
        b("s_cbranch_scc0 L_k1_tlb_done")
        b(f"v_mov_b32 v{t}, 0")
        for k, ptr in enumerate((24, 14, 16, 26, 20)):
            b(f"global_load_dword v{pd+k}, v{t}, {s(ptr,2)}", 'nocount')
        if int(opts.get('tlbw2', 0)):
            b(f"global_load_dword v{pd+7-8}, v{t}, s[32:33] sc1", 'nocount')
            b(f"v_and_b32 v{t+1}, 7, v{L}")
            b(f"v_lshlrev_b32 v{t+1}, 7, v{t+1}")
            b(f"global_load_dword v{pd+7-9}, v{t+1}, s[28:29]", 'nocount')
        b(f"v_min_u32 v{t}, 19, v{L}")
        b(f"v_lshlrev_b32 v{t}, 20, v{t}")
        b(f"global_load_dword v{pd+5}, v{t}, s[34:35]", 'nocount')
        b(f"v_and_b32 v{t}, 3, v{L}")
        b(f"v_lshlrev_b32 v{t}, 20, v{t}")
        b(f"global_load_dword v{pd+6}, v{t}, s[30:31]", 'nocount')
        b("L_k1_tlb_done:")
    PF = int(opts.get('pf', 0))
    if PF:
        pd = vU + 28
        b(f"s_cmp_eq_u32 s{sWm}, 0")
        b("s_cbranch_scc0 L_k1_pf_1")
        b(f"v_lshrrev_b32 v{t}, 3, v{L}")
        b(f"s_lshl_b32 s{sT2}, s2, 3")
        b(f"v_add_u32 v{t}, s{sT2}, v{t}")
        b(f"v_lshlrev_b32 v{t}, 10, v{t}")
        b(f"v_and_b32 v{t+1}, 7, v{L}")
        b(f"v_max_u32 v{t+1}, 3, v{t+1}")
        b(f"v_lshl_add_u32 v{t}, v{t+1}, 7, v{t}")
        b(f"global_load_dword v{pd}, v{t}, s[4:5]", 'nocount')
        b("L_k1_pf_1:")
        b(f"s_cmp_eq_u32 s{sWm}, 1")
        b("s_cbranch_scc0 L_k1_pf_2")
        b(f"v_bfe_u32 v{t}, v{L}, 3, 1")
        b(f"s_lshl_b32 s{sT2}, s2, 1")
        b(f"v_add_u32 v{t}, s{sT2}, v{t}")
        b(f"v_lshlrev_b32 v{t}, 10, v{t}")
        b(f"v_and_b32 v{t+1}, 7, v{L}")
        b(f"v_max_u32 v{t+1}, 3, v{t+1}")
        b(f"v_lshl_add_u32 v{t}, v{t+1}, 7, v{t}")
        b(f"global_load_dword v{pd}, v{t}, s[10:11]", 'nocount')
        b(f"global_load_dword v{pd+1}, v{t}, s[12:13]", 'nocount')
        b("L_k1_pf_2:")
        b(f"s_cmp_eq_u32 s{sWm}, 2")
        b("s_cbranch_scc0 L_k1_pf_done")
        b(f"v_lshrrev_b32 v{t}, 5, v{L}")
        b(f"s_lshl_b32 s{sT2}, s2, 1")
        b(f"v_add_u32 v{t}, s{sT2}, v{t}")
        b(f"v_mul_u32_u24 v{t}, 3584, v{t}")
        b(f"v_and_b32 v{t+1}, 31, v{L}")
        b(f"v_min_u32 v{t+1}, 27, v{t+1}")
        b(f"v_lshl_add_u32 v{t}, v{t+1}, 7, v{t}")
        b(f"global_load_dword v{pd}, v{t}, s[24:25]", 'nocount')
        b("L_k1_pf_done:")
    b(f"v_and_b32 v{t}, 31, v{L}")
    b(f"v_lshrrev_b32 v{t+1}, 5, v{L}")
    b(f"v_bfe_u32 v{t+2}, v{L}, 1, 3")
    b(f"v_xor_b32 v{t+2}, v{t+1}, v{t+2}")
    b(f"v_lshlrev_b32 v{t+1}, 7, v{t}")
    b(f"v_add_u32 v{t+1}, s{sLdsX}, v{t+1}")
    b(f"v_lshrrev_b32 v{t+3}, 3, v{t}")
    b(f"v_lshlrev_b32 v{t+3}, 11, v{t+3}")
    b(f"v_and_b32 v{t}, 7, v{t}")
    b(f"v_lshl_add_u32 v{t}, v{t}, 7, v{t+3}")
    b(f"v_add_u32 v{t}, 16384, v{t}")
    for k in range(4):
        b(f"v_xor_b32 v{t+3}, {2*k}, v{t+2}")
        b(f"v_lshl_add_u32 v{gPX+k}, v{t+3}, 4, v{t+1}")
        b(f"v_lshl_add_u32 v{gPB+k}, v{t+3}, 4, v{t}")
    return b

def k1_params():
    b = F()
    lre, lim, ldt = vP+8, vP+9, vP+10
    va, vang, t0 = vP, vP+1, vP+2
    b(f"v_lshlrev_b32 v{lre}, 16, v{lre}")
    b(f"v_lshlrev_b32 v{lim}, 16, v{lim}")
    b(f"v_lshlrev_b32 v{ldt}, 16, v{ldt}")
    b(f"v_mul_f32 v{ldt}, {LOG2E:#x}, v{ldt}")
    b(f"v_exp_f32 v{ldt}, v{ldt}")
    b(f"v_cvt_pk_bf16_f32 v{ldt}, v{ldt}, v{ldt}")
    b(f"v_lshlrev_b32 v{ldt}, 16, v{ldt}")
    b(f"v_mul_f32 v{va}, v{ldt}, v{lre}")
    b(f"v_mul_f32 v{vang}, v{ldt}, v{lim}")
    b(f"v_mul_f32 v{va}, {LOG2E:#x}, v{va}")
    b(f"v_mul_f32 v{vang}, {INV2PI:#x}, v{vang}")
    cexp(b, vL, "1.0", va, vang, t0)
    for dst, cst in ((vL16, 0x41800000), (vL32, 0x42000000), (vL128, 0x43000000), (vL256, 0x43800000)):
        b(f"v_mov_b32 v{t0+3}, {cst:#x}")
        cexp(b, dst, f"v{t0+3}", va, vang, t0)
    b(f"v_lshrrev_b32 v{t0+3}, 5, v{vLane}")
    b(f"v_cvt_f32_u32 v{vHfm}, v{t0+3}")
    b(f"v_lshlrev_b32 v{t0+3}, 4, v{t0+3}")
    b(f"v_cvt_f32_u32 v{t0+3}, v{t0+3}")
    cexp(b, vF1, f"v{t0+3}", va, vang, t0)
    b(f"v_lshrrev_b32 v{t0+3}, 5, v{vLane}")
    b(f"v_lshlrev_b32 v{t0+3}, 4, v{t0+3}")
    b(f"s_lshl_b32 s{sSpin}, s{sWm}, 5")
    b(f"v_add_u32 v{t0+3}, s{sSpin}, v{t0+3}")
    b(f"v_cvt_f32_u32 v{t0+3}, v{t0+3}")
    cexp(b, vG, f"v{t0+3}", va, vang, t0)
    b(f"v_add_f32 v{t0}, -1.0, v{vL}")
    b(f"v_mul_f32 v{t0+1}, v{lre}, v{lre}")
    b(f"v_fma_f32 v{t0+1}, v{lim}, v{lim}, v{t0+1}")
    b(f"v_rcp_f32 v{t0+1}, v{t0+1}")
    b(f"v_mul_f32 v{vC2}, v{t0}, v{lre}")
    b(f"v_fma_f32 v{vC2}, v{vL+1}, v{lim}, v{vC2}")
    b(f"v_mul_f32 v{vC2+1}, v{vL+1}, v{lre}")
    b(f"v_fma_f32 v{vC2+1}, -v{t0}, v{lim}, v{vC2+1}")
    b(f"v_add_f32 v{t0+1}, v{t0+1}, v{t0+1}")
    b(f"v_mul_f32 v{vC2}, v{vC2}, v{t0+1}")
    b(f"v_mul_f32 v{vC2+1}, v{vC2+1}, v{t0+1}")
    return b

def k1_setup_common():
    b = F(); t = vP + 12; L = vLane
    for k, m in ((1, sM1), (2, sM2), (3, sM3)):
        g = B()
        g(f"s_cmp_ge_u32 s{sWm}, {k}")
        g(f"s_cselect_b64 {s(m,2)}, -1, 0")
        b.group(g)
    b(f"v_lshlrev_b32 v{vL16o}, 4, v{L}")
    b(f"v_and_b32 v{t}, 31, v{L}")
    b(f"v_lshlrev_b32 v{t}, 4, v{t}")
    b(f"s_lshl_b32 s{sK0}, s{sS}, 9")
    b(f"s_add_u32 s{sK0}, s{sK0}, {E_OFF}")
    b(f"v_add_u32 v{vLBa}, s{sK0}, v{t}")
    b(f"v_and_b32 v{t}, 31, v{L}")
    b(f"v_mul_u32_u24 v{t}, 80, v{t}")
    b(f"v_lshrrev_b32 v{t+1}, 5, v{L}")
    b(f"v_lshl_add_u32 v{t}, v{t+1}, 5, v{t}")
    b(f"s_mul_i32 s{sK0}, s{sWm}, 5120")
    b(f"s_add_u32 s{sK0}, s{sK0}, {SCR}")
    b(f"v_add_u32 v{vImgW}, s{sK0}, v{t}")
    b(f"v_lshrrev_b32 v{t+1}, 5, v{L}")
    b(f"v_lshlrev_b32 v{t+1}, 3, v{t+1}")
    b(f"v_bfe_u32 v{t+2}, v{L}, 2, 2")
    b(f"v_add_u32 v{t+1}, v{t+1}, v{t+2}")
    b(f"v_mul_u32_u24 v{t+1}, 80, v{t+1}")
    b(f"v_and_b32 v{t+2}, 1, v{L}")
    b(f"v_lshlrev_b32 v{t+2}, 5, v{t+2}")
    b(f"v_bfe_u32 v{t+3}, v{L}, 4, 1")
    b(f"v_lshlrev_b32 v{t+3}, 4, v{t+3}")
    b(f"v_add3_u32 v{t+1}, v{t+1}, v{t+2}, v{t+3}")
    b(f"v_bfe_u32 v{t+2}, v{L}, 1, 1")
    b(f"v_lshlrev_b32 v{t+2}, 3, v{t+2}")
    b(f"v_add3_u32 v{vImgR}, v{t+1}, v{t+2}, s{sK0}")
    return b

def k1_gjob_all(b):
    L = vLane
    xs0, gs, gu, t, w = 32, 112, 16, 120, 96
    b(f"v_and_b32 v{t}, 31, v{L}")
    b(f"v_lshlrev_b32 v{t}, 4, v{t}")
    b(f"global_load_dwordx4 {v(gs,4)}, v{t}, s[28:29]")
    b(f"global_load_dwordx4 {v(gs+4,4)}, v{t}, s[28:29] offset:512")
    b(f"v_lshrrev_b32 v{t+1}, 5, v{L}")
    b(f"s_lshl_b32 s{sT1}, s{sT0}, 4")
    b(f"v_add_u32 v{t+1}, s{sT1}, v{t+1}")
    b(f"v_lshlrev_b32 v{t+2}, 3, v{t+1}")
    b(f"v_add_u32 v{t+2}, {G_OFF}, v{t+2}")
    b(f"v_lshlrev_b32 v{t+1}, 10, v{t+1}")
    b(f"v_add_u32 v{t+1}, v{t+1}, v{t}")
    for p in range(8):
        r = xs0 + p * 8
        if p: b(f"v_add_u32 v{t+1}, 2048, v{t+1}")
        b(f"global_load_dwordx4 {v(r,4)}, v{t+1}, s[4:5]")
        b(f"global_load_dwordx4 {v(r+4,4)}, v{t+1}, s[4:5] offset:512")
    for _ in range(5 if int(opts.get('cearly', 1)) else 4): b("s_barrier")
    for k in range(8):
        b(f"v_lshlrev_b32 v{gu+2*k}, 16, v{gs+k}")
        b(f"v_and_b32 v{gu+2*k+1}, 0xffff0000, v{gs+k}")
    b(f"v_and_b32 v{t+3}, 31, v{L}")
    for p in range(8):
        xs = xs0 + p * 8
        acc = w
        for k in range(8):
            a0 = w + 2 + 2 * (k % 4)
            b(f"v_lshlrev_b32 v{a0}, 16, v{xs+k}")
            b(f"v_and_b32 v{a0+1}, 0xffff0000, v{xs+k}")
            b(f"v_pk_mul_f32 {v(a0,2)}, {v(a0,2)}, {v(gu+2*k,2)}")
            b(f"v_cvt_pk_bf16_f32 v{a0}, v{a0}, v{a0+1}")
            b(f"v_and_b32 v{a0+1}, 0xffff0000, v{a0}")
            b(f"v_lshlrev_b32 v{a0}, 16, v{a0}")
            if k == 0:
                b(f"v_add_f32 v{acc}, v{a0}, v{a0+1}")
            else:
                b(f"v_add_f32 v{a0}, v{a0}, v{a0+1}")
                b(f"v_add_f32 v{acc}, v{acc}, v{a0}")
        for r in (8, 4, 2, 1):
            b(f"v_add_f32_dpp v{acc}, v{acc}, v{acc} row_ror:{r} row_mask:0xf bank_mask:0xf")
        b(f"v_mov_b32 v{acc+1}, v{acc}")
        b(f"v_permlane16_swap_b32 v{acc}, v{acc+1}")
        b(f"v_add_f32 v{acc}, v{acc}, v{acc+1}")
        b(f"v_cvt_pk_bf16_f32 v{acc}, v{acc}, v{acc}")
        b(f"v_lshlrev_b32 v{acc}, 16, v{acc}")
        b(f"v_mul_f32 v{acc}, {LOG2E ^ 0x80000000:#x}, v{acc}")
        b(f"v_exp_f32 v{acc}, v{acc}")
        b(f"v_add_f32 v{acc}, 1.0, v{acc}")
        b(f"v_rcp_f32 v{acc}, v{acc}")
        b(f"v_cvt_pk_bf16_f32 v{acc}, v{acc}, v{acc}")
        d = xs
        b(f"v_lshlrev_b32 v{d}, 16, v{acc}")
        b(f"v_sub_f32 v{d+1}, 1.0, v{d}")
        b(f"v_cvt_pk_bf16_f32 v{d+1}, v{d+1}, v{d+1}")
        b(f"v_lshlrev_b32 v{d+1}, 16, v{d+1}")
    b(f"v_cmp_eq_u32 vcc, 0, v{t+3}")
    b(f"s_and_saveexec_b64 {s(sEX,2)}, vcc")
    for p in range(8):
        b(f"global_store_dwordx2 v{t+2}, {v(xs0+8*p,2)}, s[34:35] offset:{16*p} sc0 sc1")
    b(f"s_mov_b64 exec, {s(sEX,2)}")

def k1_nonce():
    b = F()
    t = vU + 26
    b(f"v_add_u32 v{t}, 1, v{t}")
    b(f"v_or_b32 v{t+1}, 1, v{t+1}")
    b(f"v_mov_b32 v{t+2}, {NONCE_OFF}")
    b(f"v_mov_b32 v{t+3}, 0")
    g = B()
    g(f"s_or_b32 s{sSpin}, s2, s{sWm}")
    g(f"s_cmp_lg_u32 s{sSpin}, 0")
    g("s_cbranch_scc1 L_k1_nononce")
    g(f"global_store_dwordx2 v{t+2}, {v(t,2)}, s[34:35] sc0 sc1", 'nocount')
    g(f"global_store_dwordx2 v{t+3}, {v(t,2)}, s[32:33] sc0 sc1", 'nocount')
    g("L_k1_nononce:")
    b.group(g)
    return b

def k1_S():
    b = k1_S_setup()
    if int(opts.get('sprio', 1)): b("s_setprio 2")
    m = B()
    for i in range(8):
        m("s_waitcnt lgkmcnt(0)")
        m("s_barrier")
        po = (i % NSLOT) * SLOT
        hi = po >= 65536 - 1024
        if hi:
            for k in range(4):
                m(f"v_add_u32 v{vTmp+k}, 0x10000, v{gPX+k}")
        for k in range(4):
            if hi: m(f"ds_read_b128 {a(aSX+4*k,4)}, v{vTmp+k} offset:{po - 65536}")
            else: m(f"ds_read_b128 {a(aSX+4*k,4)}, v{gPX+k} offset:{po}")
        if hi:
            for k in range(4):
                m(f"v_add_u32 v{vTmp+k}, 0x10000, v{gPB+k}")
        for k in range(4):
            for mm in range(2):
                if hi: m(f"ds_read_b128 {a(aSB+8*k+4*mm,4)}, v{vTmp+k} offset:{po - 65536 + mm*1024}")
                else: m(f"ds_read_b128 {a(aSB+8*k+4*mm,4)}, v{gPB+k} offset:{po + mm*1024}")
        for k in range(4):
            for mm, acc in ((0, aRE), (1, aIM)):
                c = v(acc, 16) if (i, k) != (0, 0) else "0"
                m(f"v_mfma_f32_32x32x16_bf16 {v(acc,16)}, {a(aSX+4*k,4)}, {a(aSB+8*k+4*mm,4)}, {c}")
    f = F()
    if not int(opts.get('nearly', 0)): f.ext(k1_nonce())
    if int(opts.get('pfw', 0)):
        g = B(); t = vP + 12
        g(f"s_cmp_eq_u32 s{sWm}, {int(opts.get('pfww', 1))}")
        g("s_cbranch_scc0 L_k1_pfw_done")
        g(f"v_lshrrev_b32 v{t}, 5, v{vLane}")
        g(f"s_lshl_b32 s{sSpin}, s2, 1")
        g(f"v_add_u32 v{t}, s{sSpin}, v{t}")
        g(f"v_mul_u32_u24 v{t}, 3584, v{t}")
        g(f"v_and_b32 v{t+1}, 31, v{vLane}")
        g(f"v_min_u32 v{t+1}, 27, v{t+1}")
        g(f"v_lshl_add_u32 v{t}, v{t+1}, 7, v{t}")
        g(f"global_load_dword v{vU+9}, v{t}, s[24:25]", 'nocount')
        g("L_k1_pfw_done:")
        f.group(g)
    f.ext(k1_params())
    f.ext(k1_setup_common())
    g = B()
    g(f"v_mov_b32 v{vTmp}, 0")
    g(f"global_load_dwordx2 {v(vNon,2)}, v{vTmp}, s[32:33] sc1")
    f.group(g)
    b.ext(merge(m.ops, f.ops, per=int(opts.get('per1', 5))))
    b("s_waitcnt vmcnt(0)")
    stamp(b, 2)
    s1 = flat(k1_scan1a().ops)
    cut = [j for j, o in enumerate(s1) if o.kind == 'ds'][0]
    if STAMP >= 2: stamp(b, 8)
    if int(opts.get('hb8', 1)):
        b.ext(s1[:cut])
        if STAMP >= 2: stamp(b, 9)
        b("s_barrier")
        b.ext(s1[cut:])
    else:
        b("s_barrier")
        b.ext(s1)
    if STAMP >= 2: stamp(b, 11)
    b("s_barrier")
    if STAMP >= 2: stamp(b, 12)
    b.ext(flat(k1_scan1b().ops))
    if STAMP >= 2: stamp(b, 13)
    b.ext(k1_publish())
    stamp(b, 3)
    b("s_barrier")
    b.ext(p2_S_csetup())
    if opts.get('lbfirst', '0') == '1':
        b("s_barrier")
        stamp(b, 4)
        b.ext(k1_lookback())
        stamp(b, 5)
        b.ext(k1_final())
        b.ext(p2_S_cdma())
        b.ext(p2_S_creads())
    elif WEARLY:
        assert not ROT2
        b("s_barrier")
        b.ext(p2_S_cdma((0,)))
        b("s_barrier")
        if int(opts.get('lbmid', 0)):
            mid = B()
            mid.ext(p2_S_cdma((1,))); mid.ext(p2_S_creads_m(0)); mid.ext(p2_S_wdma(0))
            stamp(b, 4)
            b.ext(k1_lookback(mid, 16))
        else:
            b.ext(p2_S_cdma((1,)))
            b.ext(p2_S_creads_m(0))
            b.ext(p2_S_wdma(0))
            stamp(b, 4)
            b.ext(k1_lookback())
        stamp(b, 5)
        if int(opts.get('wb2', 0)) == 0:
            if WBN == 2:
                b.ext(p2_S_creads_m(1)); b.ext(p2_S_wdma(1)); b.ext(k1_final())
            else:
                b.ext(k1_final()); b.ext(p2_S_creads_m(1))
        else:
            b.ext(k1_final()); b.ext(p2_S_creads_m(1)); b.ext(p2_S_wdma(1))
        stamp(b, 6)
        return b
    elif CEARLY:
        b("s_barrier")
        b.ext(p2_S_cdma((0,)))
        b("s_barrier")
        if int(opts.get('lbmid', 0)):
            stamp(b, 4)
            b.ext(k1_lookback(p2_S_cdma((1,)), 8))
        else:
            b.ext(p2_S_cdma((1,)))
            stamp(b, 4)
            b.ext(k1_lookback())
        stamp(b, 5)
        b.ext(k1_final())
        b.ext(p2_S_creads())
        stamp(b, 6)
        return b
    else:
        b("s_barrier")
        b.ext(p2_S_cdma())
        stamp(b, 4)
        b.ext(k1_lookback())
        stamp(b, 5)
        b.ext(k1_final())
        b.ext(p2_S_creads())
    stamp(b, 6)
    return b

def cfma_sr(b, d, l, h, ure, uim, tmp):
    b(f"v_fma_f32 v{tmp}, v{l}, v{h}, v{ure}")
    b(f"v_fma_f32 v{tmp+1}, v{l}, v{h+1}, v{uim}")
    b(f"v_fma_f32 v{d}, -v{l+1}, v{h+1}, v{tmp}")
    b(f"v_fma_f32 v{d+1}, v{l+1}, v{h}, v{tmp+1}")

def k1_scan1a():
    b = F()
    tmp = vTmp
    R = lambda t: aRE + reg_of_t(t)
    I = lambda t: aIM + reg_of_t(t)
    b(f"v_mov_b32 v{vQ}, v{R(0)}\nv_mov_b32 v{vQ+1}, v{I(0)}")
    cur = vQ
    for t in range(1, 16):
        nxt = vQ if cur == vW_ else vW_
        cfma_sr(b, nxt, vL, cur, R(t), I(t), tmp)
        cur = nxt
    assert cur == vW_
    b(f"v_mov_b32 v{vPre}, v{cur}\nv_mov_b32 v{vPre+1}, v{cur+1}")
    b(f"v_mov_b32 v{vQ}, v{cur}\nv_mov_b32 v{vQ+1}, v{cur+1}")
    b(f"v_permlane32_swap_b32 v{vPre}, v{vQ}")
    b(f"v_permlane32_swap_b32 v{vPre+1}, v{vQ+1}")
    cfma_s(b, vW_, vL16, vPre, vQ, tmp)
    b(f"v_mul_f32 v{vPre}, v{vPre}, v{vHfm}\nv_mul_f32 v{vPre+1}, v{vPre+1}, v{vHfm}")
    t = vP
    b(f"v_and_b32 v{t+14}, 31, v{vLane}")
    b(f"v_lshlrev_b32 v{t+14}, 3, v{t+14}")
    b(f"v_add_u32 v{t+14}, {SCR}, v{t+14}")
    b(f"s_lshl_b32 s{sK0}, s{sWm}, 8")
    b(f"v_add_u32 v{t+15}, s{sK0}, v{t+14}")
    b(f"ds_write_b64 v{t+15}, {v(vW_,2)} offset:{SC}", "Wx")
    b.wait('lg', "Wx")
    return b

def k1_scan1b():
    b = F()
    t = vP; tmp = vTmp
    for w in range(4):
        b(f"ds_read_b64 {v(t+2*w,2)}, v{t+14} offset:{SC + 256*w}")
    W0, W1, W2, W3 = t, t+2, t+4, t+6
    Q2, Q3 = t+8, t+10
    cfma_s(b, Q2, vL32, W0, W1, tmp)
    cfma_s(b, Q3, vL32, Q2, W2, tmp)
    E = t + 12
    cfma_s(b, E, vL32, Q3, W3, tmp)
    for h in range(2):
        b(f"v_cndmask_b32 v{vQ+h}, 0, v{W0+h}, {s(sM1,2)}")
        b(f"v_cndmask_b32 v{vQ+h}, v{vQ+h}, v{Q2+h}, {s(sM2,2)}")
        b(f"v_cndmask_b32 v{vQ+h}, v{vQ+h}, v{Q3+h}, {s(sM3,2)}")
    cfma_s(b, vK, vF1, vQ, vPre, tmp)
    return b

def k1_publish():
    t = vP; E = t + 12; tmp = vTmp
    g = B()
    g(f"s_lshl_b32 s{sK0}, s{sR}, 13")
    g(f"v_add_u32 v{tmp}, s{sK0}, v{vLBa}")
    g(f"v_lshrrev_b32 v{tmp+1}, 3, v{vLane}")
    g(f"v_cmp_ne_u32 vcc, 0, v{vNon+1}")
    g("s_cbranch_vccnz L_k1_nonce_ok")
    g(f"s_mov_b32 s{sSpin}, 0")
    g("L_k1_nonce_retry:")
    g(f"v_mov_b32 v{tmp+2}, 0")
    g(f"global_load_dwordx2 {v(vNon,2)}, v{tmp+2}, s[32:33] sc1", 'nocount')
    g("s_waitcnt vmcnt(0)", 'nocount')
    g(f"s_add_u32 s{sSpin}, s{sSpin}, 1")
    g(f"s_cmp_gt_u32 s{sSpin}, 40000")
    g("s_cbranch_scc1 L_k1_nonce_ok")
    g(f"v_cmp_ne_u32 vcc, 0, v{vNon+1}")
    g("s_cbranch_vccz L_k1_nonce_retry")
    g("L_k1_nonce_ok:")
    g(f"v_mov_b32 v{E+2}, v{vNon}\nv_mov_b32 v{E+3}, v{vNon+1}")
    g(f"v_cmp_eq_u32 vcc, s{sWm}, v{tmp+1}")
    g(f"s_and_saveexec_b64 {s(sEX,2)}, vcc")
    g(f"global_store_dwordx4 v{tmp}, {v(E,4)}, s[34:35] sc0 sc1")
    g(f"s_mov_b64 exec, {s(sEX,2)}")
    return g

def k1_lookback(mid=None, nmid=0):
    b = B(); tmp = vTmp; t = vP
    H = vW_
    def loads(tok):
        b(f"s_sub_u32 s{sK0}, s{sR}, 1")
        b(f"s_lshl_b32 s{sK0}, s{sK0}, 13")
        b(f"v_lshrrev_b32 v{t}, 5, v{vLane}")
        b(f"v_lshlrev_b32 v{t}, 13, v{t}")
        b(f"v_sub_u32 v{t}, s{sK0}, v{t}")
        b(f"v_add_u32 v{t}, v{vLBa}, v{t}")
        for mm in range(8):
            if mm: b(f"v_subrev_u32 v{t}, 16384, v{t}")
            b(f"v_max_i32 v{t+1}, v{t}, v{vLBa}")
            b(f"global_load_dwordx4 {v(vU+4*mm,4)}, v{t+1}, s[34:35] sc1", tok)
    if mid is not None:
        b(f"s_mov_b32 s{sSpin}, 0")
        loads('nocount')
        b.ext(mid)
        b(f"s_waitcnt vmcnt({nmid})", 'nocount')
        b(f"s_cmp_eq_u32 s{sR}, 0")
        b("s_cbranch_scc1 L_k1_lb_zero")
        b("s_branch L_k1_lb_first")
        b("L_k1_lb_again:")
        loads('nocount')
        b("s_waitcnt vmcnt(0)", 'nocount')
        b("L_k1_lb_first:")
    else:
        b(f"s_cmp_eq_u32 s{sR}, 0")
        b("s_cbranch_scc1 L_k1_lb_zero")
        b(f"s_mov_b32 s{sSpin}, 0")
        b("L_k1_lb_again:")
        loads('nocount')
        b("s_waitcnt vmcnt(0)", 'nocount')
    b(f"s_mov_b64 {s(sEX,2)}, -1")
    for mm in range(8):
        b(f"s_cmp_le_u32 s{sR}, {2*mm}")
        b("s_cbranch_scc1 L_k1_lb_checked")
        b(f"s_cmp_ge_u32 s{sR}, {2*mm+2}")
        b(f"s_cselect_b32 s{sT1}, 0, -1")
        b(f"v_cmp_eq_u32 vcc, v{vU+4*mm+2}, v{vNon}")
        b(f"v_cmp_eq_u32 {s(sT2,2)}, v{vU+4*mm+3}, v{vNon+1}")
        b(f"s_and_b64 vcc, vcc, {s(sT2,2)}")
        b(f"s_or_b32 vcc_hi, vcc_hi, s{sT1}")
        b(f"s_and_b64 {s(sEX,2)}, {s(sEX,2)}, vcc")
    b("L_k1_lb_checked:")
    b(f"s_cmp_eq_u64 {s(sEX,2)}, -1")
    b("s_cbranch_scc1 L_k1_lb_ok")
    b(f"s_add_u32 s{sSpin}, s{sSpin}, 1")
    b(f"s_cmp_gt_u32 s{sSpin}, 40000")
    b("s_cbranch_scc1 L_k1_lb_ok")
    b(f"s_sleep {int(opts.get('lbsleep', 4))}")
    b("s_branch L_k1_lb_again")
    b("L_k1_lb_ok:")
    b(f"v_mov_b32 v{H}, 0\nv_mov_b32 v{H+1}, 0")
    for mm in range(7, -1, -1):
        b(f"s_cmp_le_u32 s{sR}, {2*mm}")
        b(f"s_cbranch_scc1 L_k1_lb_h{mm}")
        b(f"s_cmp_ge_u32 s{sR}, {2*mm+2}")
        b(f"s_cselect_b32 s{sT3}, -1, 0")
        b(f"s_mov_b32 s{sT2}, -1")
        b(f"v_cndmask_b32 v{vU+4*mm}, 0, v{vU+4*mm}, {s(sT2,2)}")
        b(f"v_cndmask_b32 v{vU+4*mm+1}, 0, v{vU+4*mm+1}, {s(sT2,2)}")
        b(f"v_fma_f32 v{tmp}, v{vL256}, v{H}, v{vU+4*mm}")
        b(f"v_fma_f32 v{tmp+1}, v{vL256}, v{H+1}, v{vU+4*mm+1}")
        b(f"v_fma_f32 v{tmp}, -v{vL256+1}, v{H+1}, v{tmp}")
        b(f"v_fma_f32 v{H+1}, v{vL256+1}, v{H}, v{tmp+1}")
        b(f"v_mov_b32 v{H}, v{tmp}")
        b(f"L_k1_lb_h{mm}:")
    b(f"v_mov_b32 v{vPre}, v{H}\nv_mov_b32 v{vPre+1}, v{H+1}")
    b(f"v_permlane32_swap_b32 v{H}, v{vPre}")
    b(f"v_permlane32_swap_b32 v{H+1}, v{vPre+1}")
    cfma_s(b, t, vL128, vPre, H, tmp)
    cfma_s(b, vQ, vG, t, vK, tmp)
    b("s_branch L_k1_lb_done")
    b("L_k1_lb_zero:")
    b(f"v_mov_b32 v{vQ}, v{vK}\nv_mov_b32 v{vQ+1}, v{vK+1}")
    b("L_k1_lb_done:")
    return b

def k1_final():
    b = B()
    tmp = vTmp
    prev = vQ
    for t in range(16):
        r = reg_of_t(t)
        u = vU + 2 * r
        cfma_sr(b, u, vL, prev, aRE + r, aIM + r, tmp)
        prev = u
    for r in range(16):
        u = vU + 2 * r
        tp = vP + 2 * (r % 4)
        b(f"v_mul_f32 v{tp}, v{vC2}, v{u}")
        b(f"v_mul_f32 v{tp+1}, v{vC2+1}, v{u}")
        b(f"v_fma_f32 v{u}, -v{vC2+1}, v{u+1}, v{tp}")
        b(f"v_fma_f32 v{u+1}, v{vC2}, v{u+1}, v{tp+1}")
    for k in range(8):
        b(f"v_cvt_pk_bf16_f32 v{aRE+k}, v{vU+4*k}, v{vU+4*k+2}")
    for h in range(2):
        b(f"ds_write_b128 v{vImgW}, {v(aRE+4*h,4)} offset:{IMG + h*16}", "img")
    for k in range(8):
        b(f"v_cvt_pk_bf16_f32 v{aRE+8+k}, -v{vU+4*k+1}, -v{vU+4*k+3}")
    for h in range(2):
        b(f"ds_write_b128 v{vImgW}, {v(aRE+8+4*h,4)} offset:{IMG + 2560 + h*16}", "img")
    b(f"s_lshl_b32 s{sT2}, s{sS}, 12")
    b(f"s_add_u32 s{sT1}, s{sHFb}, s{sT2}")
    b.wait('lg', "img")
    for m in range(2):
        for kk in range(2):
            r = aIM + (2*m + kk) * 4
            for rd in range(2):
                b(f"ds_read_b64_tr_b16 {v(r+2*rd,2)}, v{vImgR} offset:{IMG + (m*32 + 16*kk + 4*rd)*80}")
    for m in range(2):
        for kk in range(2):
            r = aIM + (2*m + kk) * 4
            b(f"s_add_u32 s{sT2}, s{sT1}, {(2*m+kk)*1024}")
            b(f"buffer_store_dwordx4 {v(r,4)}, v{vL16o}, {s(sHF,4)}, s{sT2} offen {STF}")
    return b


pA, pC1, pC2 = 36, 40, 44
pH, pN, pK0, pLw, pOff = 72, 73, 74, 75, 76
pNib = 84
CST = 98304
CEARLY = int(opts.get('cearly', 1))
CM = 32768 if CEARLY else 8192
ROT2 = int(opts.get('rot2', 0))
pKS = 48
WEARLY = int(opts.get('wearly', 1)) and CEARLY
WBN = int(opts.get('wbn', 2))
pWS, pOffW = 56, 77
vWsa, vWsb = 8, 9
vCe, vCo, vPp = 2, 3, 4
vH0g, vH1g, vH0k, vH1k = 2, 3, 4, 5
vTau, vSg, vSk = 8, 10, 12
vWrq = 16
PITCH = 256

def p2_ids(b):
    b(f"s_lshr_b32 s{pH}, s{sS}, 3")
    b(f"s_and_b32 s{pN}, s{sS}, 7")

def p2_S_csetup():
    b = B(); L = vLane; t = vP
    p2_ids(b)
    srd(b, pC1, 14, 512*1024)
    srd(b, pC2, 16, 512*1024)
    b(f"v_and_b32 v{t}, 7, v{L}")
    b(f"v_lshrrev_b32 v{t+1}, 4, v{L}")
    b(f"v_xor_b32 v{t}, v{t}, v{t+1}")
    b(f"v_lshlrev_b32 v{t}, 4, v{t}")
    b(f"v_lshrrev_b32 v{t+1}, 3, v{L}")
    b(f"v_lshlrev_b32 v{t+1}, 10, v{t+1}")
    b(f"v_add_u32 v{vCe}, v{t}, v{t+1}")
    b(f"v_xor_b32 v{vCo}, 64, v{vCe}")
    b(f"s_lshl_b32 s{pOff}, s{pN}, 16")
    b(f"s_lshl_b32 s{sT0}, s{pH}, 9")
    b(f"s_add_u32 s{pOff}, s{pOff}, s{sT0}")
    b(f"s_lshl_b32 s{sT0}, s{sWm}, 7")
    b(f"s_add_u32 s{pOff}, s{pOff}, s{sT0}")
    b(f"s_lshl_b32 s{pLw}, s{sWm}, {13 if CEARLY else 14}")
    b(f"s_add_u32 s{pLw}, s{pLw}, {CST}")
    b(f"v_and_b32 v{t}, 31, v{L}")
    b(f"v_lshlrev_b32 v{t}, 7, v{t}")
    b(f"v_add_u32 v{t}, s{pLw}, v{t}")
    b(f"v_lshrrev_b32 v{t+1}, 5, v{L}")
    b(f"v_bfe_u32 v{t+2}, v{L}, 1, 3")
    b(f"v_xor_b32 v{t+2}, v{t+1}, v{t+2}")
    for k in range(4):
        b(f"v_xor_b32 v{t+1}, {2*k}, v{t+2}")
        b(f"v_lshl_add_u32 v{vPp+k}, v{t+1}, 4, v{t}")
    if WEARLY:
        srd(b, pWS, 26, 1792*1024)
        b(f"v_bfe_u32 v{t}, v{L}, 4, 1")
        b(f"v_lshlrev_b32 v{t}, 2, v{t}")
        b(f"v_and_b32 v{t+1}, 7, v{L}")
        b(f"v_xor_b32 v{t}, v{t}, v{t+1}")
        b(f"v_lshlrev_b32 v{t}, 4, v{t}")
        b(f"v_lshrrev_b32 v{t+1}, 3, v{L}")
        b(f"v_lshlrev_b32 v{t+1}, 10, v{t+1}")
        b(f"v_add_u32 v{vWsa}, v{t}, v{t+1}")
        b(f"v_add_u32 v{vWsb}, {8192 - 1024}, v{vWsa}")
        b(f"s_lshl_b32 s{sT0}, s{pH}, 2")
        b(f"s_add_u32 s{sT0}, s{sT0}, s{sWm}")
        b(f"s_mul_i32 s{pOffW}, s{sT0}, {14*16*1024}")
        b(f"s_lshl_b32 s{sT0}, s{pN}, 7")
        b(f"s_add_u32 s{pOffW}, s{pOffW}, s{sT0}")
    return b

def p2_S_wdma(batch):
    b = B()
    for i in range(4 * batch, 4 * batch + 4):
        b(f"s_add_u32 m0, s{pLw}, {batch*CM + (i % 4)*2048}")
        b(f"s_add_u32 s{sT0}, s{pOffW}, {i*16*1024}")
        b(f"buffer_load_dwordx4 v{vWsa}, {s(pWS,4)}, s{sT0} offen lds", "wst")
        b(f"buffer_load_dwordx4 v{vWsb}, {s(pWS,4)}, s{sT0} offen offset:1024 lds", "wst")
    return b

def p2_S_creads_m(m):
    b = B()
    b.wait('vm', f"cst{m}")
    for j in range(8):
        if ((j >> 1) & 1) != m: continue
        ksp = 2 * (j >> 2) + (j & 1)
        for aa in range(2):
            b(f"ds_read_b128 {a(8*j+4*aa,4)}, v{vPp+ksp} offset:{m*CM + aa*4096}", f"crd{m}")
    b.wait('lg', f"crd{m}")
    return b

def p2_S_cdma(ms=(0, 1)):
    b = B()
    for m in ms:
        for aa in range(8):
            b(f"s_add_u32 m0, s{pLw}, {m*CM + aa*1024}")
            b(f"s_add_u32 s{sT0}, s{pOff}, {aa*8192}")
            b(f"buffer_load_dwordx4 v{vCe if aa % 2 == 0 else vCo}, {s(pC1 if m == 0 else pC2,4)}, s{sT0} offen lds", f"cst{m}" if WEARLY else "cst")
    return b

def p2_S_creads():
    b = B()
    if not ROT2:
        b.wait('vm', "cst")
        for j in range(8):
            m = (j >> 1) & 1; ksp = 2 * (j >> 2) + (j & 1)
            for aa in range(2):
                b(f"ds_read_b128 {a(8*j+4*aa,4)}, v{vPp+ksp} offset:{m*CM + aa*4096}")
        for j in range(8): b(f"s_mov_b32 s{pKS+j}, {j*1024}")
        return b
    t = vP; L = vLane
    b(f"v_and_b32 v{t}, 31, v{L}")
    b(f"v_lshlrev_b32 v{t}, 7, v{t}")
    b(f"v_add_u32 v{t}, s{pLw}, v{t}")
    b(f"v_lshrrev_b32 v{t+1}, 5, v{L}")
    b(f"v_bfe_u32 v{t+2}, v{L}, 1, 3")
    b(f"v_xor_b32 v{t+1}, v{t+1}, v{t+2}")
    b.wait('vm', "cst")
    for j in range(8):
        b(f"s_add_u32 s{sT0}, s{pN}, {j}")
        b(f"s_and_b32 s{sT0}, s{sT0}, 7")
        b(f"s_lshl_b32 s{pKS+j}, s{sT0}, 10")
        b(f"s_lshr_b32 s{sT1}, s{sT0}, 2")
        b(f"s_lshl_b32 s{sT1}, s{sT1}, 1")
        b(f"s_and_b32 s{sT2}, s{sT0}, 1")
        b(f"s_add_u32 s{sT1}, s{sT1}, s{sT2}")
        b(f"s_lshl_b32 s{sT1}, s{sT1}, 1")
        b(f"s_bfe_u32 s{sT2}, s{sT0}, 0x10001")
        b(f"s_lshl_b32 s{sT2}, s{sT2}, {15 if CEARLY else 13}")
        tt = t + 4 + (j % 4)
        b(f"v_xor_b32 v{tt}, s{sT1}, v{t+1}")
        b(f"v_lshl_add_u32 v{tt}, v{tt}, 4, v{t}")
        b(f"v_add_u32 v{tt}, s{sT2}, v{tt}")
        for aa in range(2):
            b(f"ds_read_b128 {a(8*j+4*aa,4)}, v{tt} offset:{aa*4096}")
    return b

def p2_common(b, role):
    L = vLane
    srd(b, pA, 34, WS_USED)
    b(f"s_xor_b32 s{sT0}, s{pH}, 1")
    b(f"s_lshl_b32 s{sT0}, s{sT0}, 1")
    b(f"s_lshl_b32 s{sT1}, s{sR}, 2")
    b(f"s_add_u32 s{sT0}, s{sT0}, s{sT1}")
    b(f"s_mul_i32 s{sT0}, s{sT0}, {176*1024}")
    b(f"v_lshlrev_b32 v6, 4, v{L}")
    b(f"v_add_u32 v{vH0g}, s{sT0}, v6")
    b(f"v_add_u32 v{vH1g}, {176*1024}, v{vH0g}")
    b(f"s_lshl_b32 s{sT0}, s{pH}, 2")
    b(f"s_sub_u32 s{sT0}, s{sT0}, 2")
    b(f"s_mul_i32 s{sT0}, s{sT0}, {176*1024}")
    b(f"v_add_u32 v{vH0k}, s{sT0}, v{vH0g}")
    b(f"v_add_u32 v{vH1k}, s{sT0}, v{vH1g}")
    b(f"s_lshl_b32 s{pK0}, s{pH}, 2")
    b(f"s_add_u32 s{pK0}, s{pK0}, s{sWm}")
    if role == 0:
        b(f"s_lshl_b32 s{pK0}, s{pK0}, 13")
    else:
        b(f"s_mul_i32 s{pK0}, s{pK0}, {14*1024}")
        b(f"s_add_u32 s{pK0}, s{pK0}, {64*1024}")

def p2_common2(b, role):
    L = vLane
    b(f"v_bfe_u32 v6, v{L}, 3, 2")
    b(f"v_and_b32 v7, 7, v{L}")
    b(f"v_lshl_add_u32 v{vTau}, v7, 2, v6")
    b(f"s_xor_b32 s{sT0}, s{pH}, 1")
    b(f"s_lshl_b32 s{sT0}, s{sT0}, 6")
    b(f"s_lshl_b32 s{sT1}, s{sR}, 7")
    b(f"s_add_u32 s{sT0}, s{sT0}, s{sT1}")
    b(f"v_add_u32 v6, s{sT0}, v{vTau}")
    b("v_lshlrev_b32 v6, 3, v6")
    b(f"v_add_u32 v6, {G_OFF + 4*role}, v6")
    b(f"global_load_dword v{vSg}, v6, s[34:35] sc1")
    b(f"global_load_dword v{vSg+1}, v6, s[34:35] offset:256 sc1")
    b(f"s_lshl_b32 s{sT0}, s{pH}, 7")
    b(f"s_sub_u32 s{sT0}, s{sT0}, 64")
    b(f"s_lshl_b32 s{sT0}, s{sT0}, 3")
    b(f"v_add_u32 v6, s{sT0}, v6")
    b(f"global_load_dword v{vSk}, v6, s[34:35] sc1")
    b(f"global_load_dword v{vSk+1}, v6, s[34:35] offset:256 sc1")
    b(f"s_lshl_b32 s{sT0}, s{sWm}, 14")
    if role == 0: b(f"s_add_u32 s{sT0}, s{sT0}, {CST}")
    b(f"v_lshlrev_b32 v9, 8, v{vTau}")
    b(f"v_add_u32 v9, s{sT0}, v9")
    b(f"v_lshrrev_b32 v6, 5, v{L}")
    b(f"v_and_b32 v7, 7, v{L}")
    b("v_xor_b32 v6, v6, v7")
    for q in range(4):
        b(f"v_xor_b32 v7, {2*q}, v6")
        b(f"v_lshl_add_u32 v{vWrq+q}, v7, 4, v9")

def p2_rwrite(b, acc, sc, dup=None):
    if dup is not None:
        b(f"v_mov_b32 v{dup}, v{sc}\nv_mov_b32 v{dup+1}, v{sc}\nv_mov_b32 v{dup+2}, v{sc+1}\nv_mov_b32 v{dup+3}, v{sc+1}")
    for aa in range(2):
        for bb in range(2):
            S = acc + (aa*2+bb)*16
            g = sc + bb
            gp = g & ~1; o = g & 1
            if dup is not None:
                for p in range(8):
                    b(f"v_pk_mul_f32 {v(S+2*p,2)}, {v(S+2*p,2)}, {v(dup+2*bb,2)}")
            elif opts.get('rw', 'scalar') == 'pk':
                for p in range(8):
                    b(f"v_pk_mul_f32 {v(S+2*p,2)}, {v(S+2*p,2)}, {v(gp,2)} op_sel:[0,{o}] op_sel_hi:[1,{o}]")
            else:
                for p in range(16):
                    b(f"v_mul_f32 v{S+p}, v{g}, v{S+p}")
            for q in range(4):
                b(f"ds_write_b128 v{vWrq+q}, {v(S+4*q,4)} offset:{bb*32*PITCH + aa*128}", "red")
    b.wait('lg', "red")

def p2_F():
    b = B(); L = vLane
    b("L_p2_F:")
    b("s_waitcnt vmcnt(0) lgkmcnt(0)")
    b("s_barrier")
    if int(opts.get('p2prio', 0)) or int(opts.get('fprio', 3)): b(f"s_setprio {int(opts.get('p2prio', 0))}")
    stamp(b, 7)
    p2_ids(b)
    srd(b, pC1, 26, 1792*1024)
    vWa, vWb, vTp = 6, 7, 20
    t = 24
    b(f"v_bfe_u32 v{t}, v{L}, 4, 1")
    b(f"v_lshlrev_b32 v{t}, 2, v{t}")
    b(f"v_and_b32 v{t+1}, 7, v{L}")
    b(f"v_xor_b32 v{t}, v{t}, v{t+1}")
    b(f"v_lshlrev_b32 v{t}, 4, v{t}")
    b(f"v_lshrrev_b32 v{t+1}, 3, v{L}")
    b(f"v_lshlrev_b32 v{t+1}, 10, v{t+1}")
    b(f"v_add_u32 v{vWa}, v{t}, v{t+1}")
    b(f"v_add_u32 v{vWb}, {8192 - 1024}, v{vWa}")
    b(f"s_lshl_b32 s{sT0}, s{pH}, 2")
    b(f"s_add_u32 s{sT0}, s{sT0}, s{sWm}")
    b(f"s_mul_i32 s{pOff}, s{sT0}, {14*16*1024}")
    b(f"s_lshl_b32 s{sT0}, s{pN}, 7")
    b(f"s_add_u32 s{pOff}, s{pOff}, s{sT0}")
    b(f"s_lshl_b32 s{pLw}, s{sWm}, 14")
    pKF = [48, 49, 50, 51, 52, 53, 54, 55, 77, 78, 79, 80, 81, 82]
    if ROT2:
        b(f"s_mul_i32 s{sT2}, s{pN}, 7")
        b(f"s_lshr_b32 s{sT2}, s{sT2}, 2")
        for i in range(14):
            b(f"s_add_u32 s{pKF[i]}, s{sT2}, {i}")
            b(f"s_cmp_ge_u32 s{pKF[i]}, 14")
            b(f"s_cselect_b32 s{sT3}, 14, 0")
            b(f"s_sub_u32 s{pKF[i]}, s{pKF[i]}, s{sT3}")
            b(f"s_lshl_b32 s{pKF[i]}, s{pKF[i]}, 10")
    else:
        for i in range(14): b(f"s_mov_b32 s{pKF[i]}, {i*1024}")
    NST = 4 * WBN if WEARLY else 0
    def wslot(i): return ((i - NST) % 8) * 2048
    def wdma(i):
        b(f"s_add_u32 m0, s{pLw}, {wslot(i)}")
        b(f"s_lshl_b32 s{sT1}, s{pKF[i]}, 4")
        b(f"s_add_u32 s{sT1}, s{sT1}, s{pOff}")
        b(f"buffer_load_dwordx4 v{vWa}, {s(pC1,4)}, s{sT1} offen lds", f"f{i}")
        b(f"buffer_load_dwordx4 v{vWb}, {s(pC1,4)}, s{sT1} offen offset:1024 lds", f"f{i}")
    NPRE = int(opts.get('npre', 8))
    if WEARLY:
        for i in range(NST, min(NST + 8, 14)): wdma(i)
    else:
        for i in range(min(NPRE, 8)): wdma(i)
    tr_pattern(b, vTp, 4, t)
    if WEARLY:
        b(f"s_lshl_b32 s{sT2}, s{sWm}, 13")
        b(f"s_add_u32 s{sT2}, s{sT2}, {CST}")
        b(f"v_add_u32 v{t+4}, s{sT2}, v{vTp}")
        b(f"v_add_u32 v{t+5}, s{sT2}, v{vTp+1}")
        for i in range(NST):
            for aa in range(2):
                for rd in range(2):
                    b(f"ds_read_b64_tr_b16 {a(8*i+4*aa+2*rd,2)}, v{t+4+aa} offset:{(i // 4)*CM + (i % 4)*2048 + rd*1024}", f"wr{i}")
    b(f"v_add_u32 v{vTp}, s{pLw}, v{vTp}")
    b(f"v_add_u32 v{vTp+1}, s{pLw}, v{vTp+1}")
    b(f"v_mov_b32 v22, v{vWa}\nv_mov_b32 v23, v{vWb}")
    vWa, vWb = 22, 23
    p2_common(b, 1)
    def wreads(i):
        b.wait('vm', f"f{i}")
        for aa in range(2):
            for rd in range(2):
                b(f"ds_read_b64_tr_b16 {a(8*i+4*aa+2*rd,2)}, v{vTp+aa} offset:{wslot(i) + rd*1024}", f"wr{i}")
    NRD = max(0, NPRE - 8)
    if WEARLY:
        NRD = NST; NPRE = 14
        b.wait('lg', f"wr{NST-1}")
    for i in range(0 if WEARLY else NRD):
        wreads(i)
        b.wait('lg', f"wr{i}")
        wdma(8 + i)
    stamp(b, 24)
    b("s_barrier")
    stamp(b, 25)
    NSF, D = 14, 7
    def hreg(idx, k):
        sl = idx % D
        return v(24 + sl*8 + 4*k, 4) if sl < 5 else a(112 + (sl-5)*8 + 4*k, 4)
    def hload(idx):
        ps, i = divmod(idx, NSF)
        h0, h1 = (vH0g, vH1g) if ps == 0 else (vH0k, vH1k)
        b(f"s_add_u32 s{sT0}, s{pK0}, s{pKF[i]}")
        b(f"buffer_load_dwordx4 {hreg(idx,0)}, v{h0}, {s(pA,4)}, s{sT0} offen sc1")
        b(f"buffer_load_dwordx4 {hreg(idx,1)}, v{h1}, {s(pA,4)}, s{sT0} offen sc1")
    hload(0)
    rest = list(range(NPRE, 8))
    if rest: wdma(rest.pop(0))
    hload(1)
    if rest: wdma(rest.pop(0))
    for i in range(max(NRD, 0), max(NRD, 2)): wreads(i)
    hload(2)
    if rest: wdma(rest.pop(0))
    hload(3)
    for i in rest: wdma(i)
    DH1 = int(opts.get('dh1', 7))
    p2_common2(b, 1)
    for k in range(4, DH1): hload(k)
    stamp(b, 26)
    acc = 64
    def step(idx):
        ps, i = divmod(idx, NSF)
        mf = [f"v_mfma_f32_32x32x16_bf16 {v(acc+(aa*2+bb)*16,16)}, {a(8*i+4*aa,4)}, {hreg(idx,bb)}, {v(acc+(aa*2+bb)*16,16) if i else 0}" for aa in range(2) for bb in range(2)]
        b.wait('lg', f"wr{i}")
        b(mf[0])
        if 8 + i < 14 and i >= NRD and not WEARLY: wdma(8 + i)
        if WEARLY and NST + 8 + (i - NST) < 14 and i >= NST: wdma(i + 8)
        b(mf[1])
        if i + 2 < 14 and i + 2 >= max(NRD, 2): wreads(i + 2)
        b(mf[2])
        n0 = len(b.ops)
        KP = int(opts.get('kp', 1))
        tg = [i + DH1] if i + DH1 < NSF else ([NSF + (i - (NSF - KP))] if i >= NSF - KP else [])
        for t_ in tg: hload(t_)
        ld = b.ops[n0:]; del b.ops[n0:]
        cut = [j for j, o in enumerate(ld) if o.kind == 'vmem']
        if cut:
            b.ext(ld[:cut[0] + 1]); b(mf[3]); b.ext(ld[cut[0] + 1:])
        else: b(mf[3])
        if i == NSF - 1 - DH1: b("s_barrier")
    for idx in range(NSF): step(idx)
    stamp(b, 27)
    n0 = len(b.ops); p2_rwrite(b, acc, vSg); rw = b.ops[n0:]; del b.ops[n0:]
    n0 = len(b.ops)
    for k in range(int(opts.get('kp', 1)), 7): hload(NSF + k)
    hl = chunks_of(b.ops[n0:]); del b.ops[n0:]
    body, tail = rw[:-1], rw[-1:]
    if int(opts.get('r1il', 1)):
        gap = max(1, len(body) // (len(hl) + 1)); outp = []
        for j, o in enumerate(body):
            outp.append(o)
            if (j + 1) % gap == 0 and hl: outp.extend(hl.pop(0))
        for c in hl: outp.extend(c)
        b.ext(outp + tail)
        b("s_barrier")
    else:
        b.ext(body + tail)
        b("s_barrier")
        for c in hl: b.ext(c)
    def step2(idx):
        i = idx - NSF
        mf = [f"v_mfma_f32_32x32x16_bf16 {v(acc+(aa*2+bb)*16,16)}, {a(8*i+4*aa,4)}, {hreg(idx,bb)}, {v(acc+(aa*2+bb)*16,16) if i else 0}" for aa in range(2) for bb in range(2)]
        b(mf[0]); b(mf[1]); b(mf[2])
        n0 = len(b.ops)
        if idx + D < 2 * NSF: hload(idx + D)
        ld = b.ops[n0:]; del b.ops[n0:]
        cut = [j for j, o in enumerate(ld) if o.kind == 'vmem']
        if cut:
            b.ext(ld[:cut[0] + 1]); b(mf[3]); b.ext(ld[cut[0] + 1:])
        else: b(mf[3])
    for idx in range(NSF, 2 * NSF):
        step2(idx)
        if idx == NSF + 3: b("s_barrier")
    stamp(b, 28)
    FSPLIT = int(opts.get('fsplit', 0))
    n0 = len(b.ops)
    p2_rwrite(b, acc, vSk, 24 if int(opts.get('r2pk', 1)) else None)
    rw = b.ops[n0:]; del b.ops[n0:]
    if FSPLIT:
        f = F()
        f("v_and_b32 v34, 0xff, v0")
        f("v_lshrrev_b32 v35, 4, v34")
        f("v_and_b32 v36, 15, v34")
        f("v_lshrrev_b32 v37, 6, v34")
        f("v_xor_b32 v37, v37, v36")
        f("v_lshlrev_b32 v28, 8, v35")
        f("v_lshl_add_u32 v28, v37, 4, v28")
        f("v_xor_b32 v29, 64, v28")
        f(f"v_add_u32 v30, {CST}, v28")
        f(f"v_add_u32 v31, {CST}, v29")
        f(f"s_lshl_b32 s{sT0}, s{sR}, 7")
        f(f"s_lshl_b32 s{sT1}, s{pH}, 6")
        f(f"s_add_u32 s{sT0}, s{sT0}, s{sT1}")
        f(f"s_add_u32 s{sT0}, s{sT0}, 32")
        f(f"v_add_u32 v35, s{sT0}, v35")
        f(f"s_lshl_b32 s{sT1}, s{pN}, 8")
        f("v_lshlrev_b32 v32, 11, v35")
        f("v_lshl_add_u32 v32, v36, 4, v32")
        f(f"v_add_u32 v32, s{sT1}, v32")
        f("v_lshlrev_b32 v33, 4, v34")
        f("v_add_u32 v33, 0x10000, v33")
        rw = merge(rw, f.ops, after=lambda o: o.mn.startswith('ds_write'), per=2)
    b.ext(rw)
    b("s_barrier")
    stamp(b, 29)
    if FSPLIT:
        T = 64
        for p in (2, 3):
            b(f"ds_read_b128 {v(100+4*(p-2),4)}, v33 offset:{(p-2)*4096}")
        for p in (2, 3):
            for w in range(8):
                base = (28 if p % 2 == 0 else 29) if w < 4 else (30 if p % 2 == 0 else 31)
                b(f"ds_read_b128 {v(T+4*w,4)}, v{base} offset:{(w % 4)*16384 + p*4096}")
            for w in range(0, 8, 2):
                b(f"v_pk_add_f32 {v(T+4*w,2)}, {v(T+4*w,2)}, {v(T+4*w+4,2)}")
                b(f"v_pk_add_f32 {v(T+4*w+2,2)}, {v(T+4*w+2,2)}, {v(T+4*w+6,2)}")
            for w in (0, 4):
                b(f"v_pk_add_f32 {v(T+4*w,2)}, {v(T+4*w,2)}, {v(T+4*w+8,2)}")
                b(f"v_pk_add_f32 {v(T+4*w+2,2)}, {v(T+4*w+2,2)}, {v(T+4*w+10,2)}")
            d = 108 + 4 * (p - 2)
            b(f"v_pk_add_f32 {v(d,2)}, {v(T,2)}, {v(T+16,2)}")
            b(f"v_pk_add_f32 {v(d+2,2)}, {v(T+2,2)}, {v(T+18,2)}")
            b(f"v_pk_add_f32 {v(d,2)}, {v(d,2)}, {v(100+4*(p-2),2)}")
            b(f"v_pk_add_f32 {v(d+2,2)}, {v(d+2,2)}, {v(102+4*(p-2),2)}")
            if p == 3: b(f"v_add_u32 v32, {16*2048}, v32")
            b(f"global_store_dwordx4 v32, {v(d,4)}, s[30:31] {opts.get('outf', 'sc0+sc1').replace('+', ' ')}")
    return b

def p2_S():
    b = B(); L = vLane
    b("s_waitcnt vmcnt(0) lgkmcnt(0)")
    b("s_barrier")
    stamp(b, 7)
    b(f"s_cmp_lg_u32 s{sWm}, 0")
    b("s_cbranch_scc1 L_p2_noflag")
    b(f"s_mul_i32 s{sT0}, s{sR}, {FLG_STRIDE}")
    b(f"s_add_u32 s{sT0}, s{sT0}, {FLG_OFF}")
    b(f"s_lshl_b32 s{sT1}, s{sS}, 3")
    b(f"s_add_u32 s{sT1}, s{sT1}, s{sT0}")
    b(f"v_mov_b32 v6, s{sT1}")
    b(f"global_store_dwordx2 v6, {v(vNon,2)}, s[34:35] sc0 sc1", 'nocount')
    b(f"v_and_b32 v6, 15, v{L}")
    b("v_lshlrev_b32 v6, 3, v6")
    b(f"v_add_u32 v6, s{sT0}, v6")
    b(f"s_mov_b32 s{sSpin}, 0")
    NP = int(opts.get('npoll', 1))
    SL = int(opts.get('pollsl', 0))
    for k in range(NP):
        b(f"global_load_dwordx2 {v(24+2*k,2)}, v6, s[34:35] sc1", 'nocount')
        if SL: b(f"s_sleep {SL}")
    b("L_p2_poll:")
    for k in range(NP):
        b(f"s_waitcnt vmcnt({NP-1})", 'nocount')
        b(f"v_cmp_eq_u32 vcc, v{24+2*k}, v{vNon}")
        b(f"v_cmp_eq_u32 {s(sT2,2)}, v{24+2*k+1}, v{vNon+1}")
        b(f"s_and_b64 vcc, vcc, {s(sT2,2)}")
        b("s_cmp_eq_u64 vcc, -1")
        b("s_cbranch_scc1 L_p2_polled")
        b(f"global_load_dwordx2 {v(24+2*k,2)}, v6, s[34:35] sc1", 'nocount')
    b(f"s_add_u32 s{sSpin}, s{sSpin}, 1")
    b(f"s_cmp_gt_u32 s{sSpin}, 100000")
    b("s_cbranch_scc0 L_p2_poll")
    b("L_p2_polled:")
    b("L_p2_noflag:")
    if WEARLY:
        for j in range(8): b(f"s_mov_b32 s{pKS+j}, {j*1024}")
    b(f"v_readfirstlane_b32 s{sT0}, v{vNon}")
    for j in range(4):
        b(f"s_bfe_u32 s{pNib+j}, s{sT0}, {(4 << 16) | (4*j):#x}")
    p2_common(b, 0)
    stamp(b, 24)
    b("s_barrier")
    if int(opts.get('p2prio', 0)): b("s_setprio 0")
    stamp(b, 25)
    def hreg(j, k): return a(64 + 8*j + 4*k, 4)
    def hload(j, ps):
        h0, h1 = (vH0g, vH1g) if ps == 0 else (vH0k, vH1k)
        b(f"s_add_u32 s{sT0}, s{pK0}, s{pKS+j}")
        b(f"buffer_load_dwordx4 {hreg(j,0)}, v{h0}, {s(pA,4)}, s{sT0} offen sc1")
        b(f"buffer_load_dwordx4 {hreg(j,1)}, v{h1}, {s(pA,4)}, s{sT0} offen sc1")
    DS1 = int(opts.get('ds1', 4))
    for j in range(DS1): hload(j, 0)
    p2_common2(b, 0)
    vRE, vRO, vREh, vROh = 20, 21, 22, 23
    b("v_lshrrev_b32 v6, 4, v0")
    b("v_and_b32 v7, 15, v0")
    b("v_lshrrev_b32 v9, 6, v0")
    b("v_xor_b32 v9, v9, v7")
    b(f"v_lshlrev_b32 v{vRE}, 8, v6")
    b(f"v_lshl_add_u32 v{vRE}, v9, 4, v{vRE}")
    b(f"v_xor_b32 v{vRO}, 64, v{vRE}")
    b(f"v_add_u32 v{vREh}, {CST}, v{vRE}")
    b(f"v_add_u32 v{vROh}, {CST}, v{vRO}")
    stamp(b, 26)
    acc = 64
    def mf(j): return [f"v_mfma_f32_32x32x16_bf16 {v(acc+(aa*2+bb)*16,16)}, {a(8*j+4*aa,4)}, {hreg(j,bb)}, {v(acc+(aa*2+bb)*16,16) if j else 0}" for aa in range(2) for bb in range(2)]
    for j in range(8):
        for t_ in mf(j): b(t_)
        if j + DS1 < 8: hload(j + DS1, 0)
    stamp(b, 27)
    p2_rwrite(b, acc, vSg)
    b("s_barrier")
    for j in range(8): hload(j, 1)
    for j in range(8):
        for t_ in mf(j): b(t_)
    stamp(b, 28)
    b("s_barrier")
    def padd(d, x, y, pk):
        if pk: b(f"v_pk_add_f32 {v(d,2)}, {v(x,2)}, {v(y,2)}")
        else:
            b(f"v_add_f32 v{d}, v{x}, v{y}"); b(f"v_add_f32 v{d+1}, v{x+1}, v{y+1}")
    def reduce(p, dst, pk):
        T = 24
        for w in range(8):
            base = (vRE if p % 2 == 0 else vRO) if w < 4 else (vREh if p % 2 == 0 else vROh)
            b(f"ds_read_b128 {v(T+4*w,4)}, v{base} offset:{(w % 4)*16384 + p*4096}")
        for w in range(0, 8, 2):
            padd(T+4*w, T+4*w, T+4*w+4, pk); padd(T+4*w+2, T+4*w+2, T+4*w+6, pk)
        for w in (0, 4):
            padd(T+4*w, T+4*w, T+4*w+8, pk); padd(T+4*w+2, T+4*w+2, T+4*w+10, pk)
        padd(dst, T, T+16, pk); padd(dst+2, T+2, T+18, pk)
    b("v_lshlrev_b32 v6, 4, v0")
    b(f"s_lshl_b32 s{sT0}, s2, 14")
    b(f"s_add_u32 s{sT0}, s{sT0}, {XCH_OFF}")
    b(f"v_add_u32 v6, s{sT0}, v6")
    for p in range(4):
        d = 56 + 4 * (p % 2)
        reduce(p, d, False)
        for e in range(4): b(f"v_and_or_b32 v{d+e}, v{d+e}, -16, s{pNib+e}")
        if p: b(f"v_add_u32 v6, 4096, v6")
        b(f"global_store_dwordx4 v6, {v(d,4)}, s[34:35] sc0 sc1")
    b("s_barrier")
    p2_rwrite(b, acc, vSk)
    PR_, BI, XV = 64, 80, 96
    b("v_lshlrev_b32 v6, 4, v0")
    b(f"s_xor_b32 s{sT1}, s2, 1")
    b(f"s_lshl_b32 s{sT0}, s{sT1}, 14")
    b(f"s_add_u32 s{sT0}, s{sT0}, {XCH_OFF}")
    b(f"v_add_u32 v9, s{sT0}, v6")
    def prt(tok):
        for p in range(4):
            if p: b(f"v_add_u32 v7, {p*4096}, v9")
            b(f"global_load_dwordx4 {v(PR_+4*p,4)}, v{7 if p else 9}, s[34:35] sc1", tok)
    prt("prt")
    b("v_lshrrev_b32 v6, 4, v0")
    b("v_and_b32 v8, 15, v0")
    b(f"s_lshl_b32 s{sT0}, s{sR}, 7")
    b(f"s_lshl_b32 s{sT1}, s{pH}, 6")
    b(f"s_add_u32 s{sT0}, s{sT0}, s{sT1}")
    b(f"v_add_u32 v6, s{sT0}, v6")
    b(f"s_lshl_b32 s{sT1}, s{pN}, 7")
    b("v_lshlrev_b32 v2, 10, v6")
    b("v_lshl_add_u32 v2, v8, 3, v2")
    b(f"v_add_u32 v2, s{sT1}, v2")
    for p in range(4):
        if p: b(f"v_add_u32 v2, {16*1024}, v2")
        b(f"global_load_dwordx2 {v(XV+2*p,2)}, v2, s[4:5]")
    b("v_lshlrev_b32 v2, 3, v8")
    b(f"v_add_u32 v2, s{sT1}, v2")
    b(f"global_load_dwordx2 {v(XV+8,2)}, v2, s[20:21]")
    b("v_lshlrev_b32 v2, 3, v6")
    b(f"v_add_u32 v2, {G_OFF}, v2")
    for p in range(4):
        b(f"global_load_dword v{XV+10+p}, v2, s[34:35] offset:{p*128} sc1")
    b(f"s_lshl_b32 s{sT1}, s{pN}, 8")
    b("v_lshlrev_b32 v2, 11, v6")
    b("v_lshl_add_u32 v2, v8, 4, v2")
    b(f"v_add_u32 v2, s{sT1}, v2")
    DS_ = XV + 14
    b(f"v_lshlrev_b32 v{DS_}, 16, v{XV+8}\nv_and_b32 v{DS_+1}, 0xffff0000, v{XV+8}\nv_lshlrev_b32 v{DS_+2}, 16, v{XV+9}\nv_and_b32 v{DS_+3}, 0xffff0000, v{XV+9}")
    for p in range(4):
        xs = XV + 2*p; tp = BI + 4*p
        b(f"v_lshlrev_b32 v{tp}, 16, v{xs}\nv_and_b32 v{tp+1}, 0xffff0000, v{xs}\nv_lshlrev_b32 v{tp+2}, 16, v{xs+1}\nv_and_b32 v{tp+3}, 0xffff0000, v{xs+1}")
        for e in range(4): b(f"v_mul_f32 v{tp+e}, v{tp+e}, v{DS_+e}")
        b(f"v_cvt_pk_bf16_f32 v56, v{tp}, v{tp+1}")
        b(f"v_cvt_pk_bf16_f32 v57, v{tp+2}, v{tp+3}")
        b(f"v_lshlrev_b32 v{tp}, 16, v56\nv_and_b32 v{tp+1}, 0xffff0000, v56\nv_lshlrev_b32 v{tp+2}, 16, v57\nv_and_b32 v{tp+3}, 0xffff0000, v57")
        for e in range(4): b(f"v_mul_f32 v{tp+e}, v{XV+10+p}, v{tp+e}")
    b.wait('vm', "prt")
    b(f"s_mov_b32 s{sSpin}, 0")
    if int(opts.get('prtpoll', 0)):
        b("L_p2_q:")
        b("v_mov_b32 v58, 0")
        for u in range(12, 16):
            b(f"v_xor_b32 v59, s{pNib + (u % 4)}, v{PR_+u}")
            b(f"v_and_or_b32 v58, v59, 15, v58")
        b("v_cmp_eq_u32 vcc, 0, v58")
        b("s_cmp_eq_u64 vcc, -1")
        b("s_cbranch_scc1 L_p2_qok")
        b(f"s_add_u32 s{sSpin}, s{sSpin}, 1")
        b(f"s_cmp_gt_u32 s{sSpin}, 100000")
        b("s_cbranch_scc1 L_p2_qok")
        b(f"v_add_u32 v7, {3*4096}, v9")
        b(f"global_load_dwordx4 {v(PR_+12,4)}, v7, s[34:35] sc1", 'nocount')
        b("s_waitcnt vmcnt(0)", 'nocount')
        b("s_branch L_p2_q")
        b("L_p2_qok:")
    b("L_p2_chk:")
    b("v_mov_b32 v58, 0")
    for u in range(16):
        b(f"v_xor_b32 v{PR_+u}, s{pNib + (u % 4)}, v{PR_+u}")
        b(f"v_and_or_b32 v58, v{PR_+u}, 15, v58")
    b("v_cmp_eq_u32 vcc, 0, v58")
    b("s_cmp_eq_u64 vcc, -1")
    b("s_cbranch_scc1 L_p2_ok")
    b(f"s_add_u32 s{sSpin}, s{sSpin}, 1")
    b(f"s_cmp_gt_u32 s{sSpin}, 100000")
    b("s_cbranch_scc1 L_p2_ok")
    prt('nocount')
    b("s_waitcnt vmcnt(0)", 'nocount')
    b("s_branch L_p2_chk")
    b("L_p2_ok:")
    for u in range(16): b(f"v_add_f32 v{BI+u}, v{BI+u}, v{PR_+u}")
    FSPLIT = int(opts.get('fsplit', 0))
    if FSPLIT:
        b("v_lshlrev_b32 v6, 4, v0")
        b("v_add_u32 v6, 0x10000, v6")
        for p in (2, 3): b(f"ds_write_b128 v6, {v(BI+4*p,4)} offset:{(p-2)*4096}", "biw")
        b.wait('lg', "biw")
    stamp(b, 29)
    b("s_barrier")
    for p in range(2 if FSPLIT else 4):
        d = 56 + 4 * (p % 2)
        reduce(p, d, True)
        b(f"v_pk_add_f32 {v(d,2)}, {v(d,2)}, {v(BI+4*p,2)}")
        b(f"v_pk_add_f32 {v(d+2,2)}, {v(d+2,2)}, {v(BI+4*p+2,2)}")
        if p: b(f"v_add_u32 v2, {16*2048}, v2")
        b(f"global_store_dwordx4 v2, {v(d,4)}, s[30:31] {opts.get('outf', 'sc0+sc1').replace('+', ' ')}")
    stamp(b, 30)
    return b

def gen_k1():
    global STV
    STV = 15
    pro = k1_head()
    S = k1_S()
    S.ext(p2_S())
    stamp_end(S, sWm, "s[34:35]", 0x2000000, vLane, 3, 14)
    S("s_endpgm")
    Fm = B(); Fm("L_k1_F:")
    Fm(f"s_cmp_ge_u32 s{sS}, 14")
    Fm("s_cbranch_scc1 L_k1_Fn")
    f1 = k1_F(True)
    f1("s_branch L_p2_F")
    Fn = B(); Fn("L_k1_Fn:")
    f2 = k1_F(False)
    p2f = p2_F()
    if STAMP: p2f(f"s_add_u32 s{sWave}, s{sWm}, 4")
    stamp_end(p2f, sWave, "s[34:35]", 0x2000000, vLane, 3, 14)
    p2f("L_k1_end:")
    p2f("s_endpgm")
    def path(prefix, body, label=None):
        allops = insert_waits(copy.deepcopy(prefix) + body)
        if label:
            idx = [i for i, o in enumerate(allops) if o.text == label][0]
            allops = allops[idx:]
        return insert_hazard_nops(allops)
    out = path([], pro.ops + S.ops)
    out += path(pro.ops, Fm.ops + f1.ops, "L_k1_F:")
    out += path(pro.ops + Fm.ops, Fn.ops + f2.ops, "L_k1_Fn:")
    out += path([], p2f.ops)
    return out

def gen_k2():
    global STV
    STV = 9
    b = B()
    D = 15
    DW = int(opts.get('k2dw', 5))
    sWv, sH, sMt, sN = 40, 41, 42, 43
    sA, sCR, sCI, sW2 = 44, 48, 76, 80
    t0, t1, t2 = 52, 53, 54
    sS0, sF0 = 56, 57
    sLw = 58
    sCoff, sWoff2 = 59, 62
    vH0, vH1 = 4, 5
    vCe, vCo, vWa, vWb = 2, 3, 60, 61
    vPp, vTp = 48, 52
    accS, accF, vBuf = 64, 128, 192
    vNon2 = 14
    vTau = 8
    vG1, vG2 = 10, 12
    PITCH = 256
    LRED = 0
    LSTG = 65536
    code_prefetch(b, K2, "L_code_end", 2, "k2", 6, 63)
    dbgt_begin(b)
    stamp_begin(b)
    b("s_load_dwordx2 s[18:19], s[0:1], 112")
    b("s_load_dwordx2 s[4:5], s[0:1], 0")
    b("s_load_dwordx4 s[12:15], s[0:1], 40")
    b("s_load_dwordx2 s[6:7], s[0:1], 64")
    b("s_load_dwordx2 s[16:17], s[0:1], 88")
    b("s_load_dwordx2 s[8:9], s[0:1], 104")
    b("s_load_dwordx2 s[10:11], s[0:1], 120")
    b("s_cmp_ge_u32 s2, 256")
    b("s_cbranch_scc1 L_k2_end")
    b("v_lshrrev_b32 v6, 6, v0")
    b("v_and_b32 v1, 63, v0")
    b(f"v_readfirstlane_b32 s{sWv}, v6")
    b(f"s_and_b32 s{sH}, s2, 1")
    b(f"s_bfe_u32 s{t0}, s2, 0x20001")
    b(f"s_lshr_b32 s{t1}, s2, 3")
    b(f"s_and_b32 s{sMt}, s{t1}, 3")
    b(f"s_lshl_b32 s{t0}, s{t0}, 2")
    b(f"s_add_u32 s{sMt}, s{sMt}, s{t0}")
    b(f"s_lshr_b32 s{sN}, s{t1}, 2")
    b("v_and_b32 v6, 7, v1")
    b("v_lshrrev_b32 v7, 4, v1")
    b("v_xor_b32 v6, v6, v7")
    b("v_lshlrev_b32 v6, 4, v6")
    b("v_lshrrev_b32 v7, 3, v1")
    b("v_lshlrev_b32 v7, 10, v7")
    b(f"v_add_u32 v{vCe}, v6, v7")
    b(f"v_xor_b32 v{vCo}, 64, v{vCe}")
    b("v_bfe_u32 v6, v1, 4, 1")
    b("v_lshlrev_b32 v6, 2, v6")
    b("v_and_b32 v29, 7, v1")
    b("v_xor_b32 v6, v6, v29")
    b("v_lshlrev_b32 v6, 4, v6")
    b(f"v_add_u32 v{vWa}, v6, v7")
    b(f"v_add_u32 v{vWb}, {8192 - 1024}, v{vWa}")
    b(f"s_lshl_b32 s{sCoff}, s{sN}, 16")
    b(f"s_lshl_b32 s{t0}, s{sH}, 9")
    b(f"s_add_u32 s{sCoff}, s{sCoff}, s{t0}")
    b(f"s_lshl_b32 s{t0}, s{sWv}, 7")
    b(f"s_add_u32 s{sCoff}, s{sCoff}, s{t0}")
    b(f"s_lshl_b32 s{t0}, s{sH}, 2")
    b(f"s_add_u32 s{t0}, s{t0}, s{sWv}")
    b(f"s_mul_i32 s{sWoff2}, s{t0}, {14*16*1024}")
    b(f"s_lshl_b32 s{t0}, s{sN}, 7")
    b(f"s_add_u32 s{sWoff2}, s{sWoff2}, s{t0}")
    b(f"s_mul_i32 s{sLw}, s{sWv}, 24576")
    b(f"s_add_u32 s{sLw}, s{sLw}, {LSTG}")
    b(f"s_xor_b32 s{t0}, s{sH}, 1")
    b(f"s_lshl_b32 s{t0}, s{t0}, 1")
    b(f"s_lshl_b32 s{t1}, s{sMt}, 2")
    b(f"s_add_u32 s{t0}, s{t0}, s{t1}")
    b(f"s_mul_i32 s{t0}, s{t0}, {176*1024}")
    b("v_lshlrev_b32 v6, 4, v1")
    b(f"v_add_u32 v{vH0}, s{t0}, v6")
    b(f"v_add_u32 v{vH1}, {176*1024}, v{vH0}")
    b(f"s_lshl_b32 s{sS0}, s{sH}, 2")
    b(f"s_add_u32 s{sS0}, s{sS0}, s{sWv}")
    b(f"s_lshl_b32 s{sS0}, s{sS0}, 13")
    b(f"s_lshl_b32 s{sF0}, s{sH}, 2")
    b(f"s_add_u32 s{sF0}, s{sF0}, s{sWv}")
    b(f"s_mul_i32 s{sF0}, s{sF0}, {14*1024}")
    b(f"s_add_u32 s{sF0}, s{sF0}, {64*1024}")
    b("s_waitcnt lgkmcnt(0)")
    srd(b, sA, 10, WS_USED)
    srd(b, sCR, 12, 512*1024)
    srd(b, sCI, 14, 512*1024)
    srd(b, sW2, 16, 1792*1024)
    steps = [('S', i) for i in range(8)] + [('F', i) for i in range(14)]
    NS = len(steps)
    seq = [(1, st) for st in range(NS)] + [(2, st) for st in range(NS)]
    def hreg(idx, k):
        sl = idx % D
        if sl < 8: return v(vBuf + sl * 8 + k * 4, 4)
        return a(200 + (sl - 8) * 8 + k * 4, 4)
    def dma_c(m):
        for aa in range(8):
            b(f"s_add_u32 m0, s{sLw}, {m*8192 + aa*1024}")
            b(f"s_add_u32 s{t2}, s{sCoff}, {aa*8192}")
            b(f"buffer_load_dwordx4 v{vCe if aa % 2 == 0 else vCo}, {s(sCR if m == 0 else sCI,4)}, s{t2} offen lds", f"c{m}")
    def wslot(i):
        if i < 4: return 16384 + i * 2048
        if i < 12: return (i - 4) * 2048
        return 16384 + (i - 12) * 2048
    def dma_f(i):
        b(f"s_add_u32 m0, s{sLw}, {wslot(i)}")
        b(f"s_add_u32 s{t2}, s{sWoff2}, {i*16*1024}")
        b(f"buffer_load_dwordx4 v{vWa}, {s(sW2,4)}, s{t2} offen lds", f"f{i}")
        b(f"buffer_load_dwordx4 v{vWb}, {s(sW2,4)}, s{t2} offen offset:1024 lds", f"f{i}")
    def hloads(idx):
        ps, st = seq[idx]
        kind, i = steps[st]
        sb = sS0 if kind == 'S' else sF0
        if ps == 2 and st == 0:
            b(f"s_lshl_b32 s{t0}, s{sH}, 2")
            b(f"s_sub_u32 s{t0}, s{t0}, 2")
            b(f"s_mul_i32 s{t0}, s{t0}, {176*1024}")
            b(f"v_add_u32 v{vH0}, s{t0}, v{vH0}")
            b(f"v_add_u32 v{vH1}, s{t0}, v{vH1}")
        b(f"s_add_u32 s{t1}, s{sb}, {i*1024}")
        b(f"buffer_load_dwordx4 {hreg(idx,0)}, v{vH0}, {s(sA,4)}, s{t1} offen")
        b(f"buffer_load_dwordx4 {hreg(idx,1)}, v{vH1}, {s(sA,4)}, s{t1} offen")
    def wreads_s():
        for j in range(8):
            m = (j >> 1) & 1; ksp = 2 * (j >> 2) + (j & 1)
            if j == 0: b.wait('vm', "c0")
            if j == 2: b.wait('vm', "c1")
            for aa in range(2):
                b(f"ds_read_b128 {a(8*j+4*aa,4)}, v{vPp+ksp} offset:{m*8192 + aa*4096}", f"wr{j}")
    def wreads_f(i):
        st = 8 + i
        b.wait('vm', f"f{i}")
        for aa in range(2):
            for rd in range(2):
                b(f"ds_read_b64_tr_b16 {a(8*st+4*aa+2*rd,2)}, v{vTp+aa} offset:{wslot(i) + rd*8*128}", f"wr{st}")
    if STAMP >= 2: stamp(b, 24)
    dma_c(0)
    hloads(0); hloads(1)
    dma_c(1)
    b("v_and_b32 v6, 31, v1")
    b("v_lshlrev_b32 v6, 7, v6")
    b(f"v_add_u32 v6, s{sLw}, v6")
    b("v_lshrrev_b32 v7, 5, v1")
    b("v_bfe_u32 v29, v1, 1, 3")
    b("v_xor_b32 v29, v7, v29")
    for k in range(4):
        b(f"v_xor_b32 v7, {2*k}, v29")
        b(f"v_lshl_add_u32 v{vPp+k}, v7, 4, v6")
    tr_pattern(b, vTp, 4, 54)
    b(f"v_add_u32 v{vTp}, s{sLw}, v{vTp}")
    b(f"v_add_u32 v{vTp+1}, s{sLw}, v{vTp+1}")
    b("v_bfe_u32 v6, v1, 3, 2")
    b("v_and_b32 v7, 7, v1")
    b(f"v_lshl_add_u32 v{vTau}, v7, 2, v6")
    b(f"s_xor_b32 s{t0}, s{sH}, 1")
    b(f"s_lshl_b32 s{t0}, s{t0}, 6")
    b(f"s_lshl_b32 s{t1}, s{sMt}, 7")
    b(f"s_add_u32 s{t0}, s{t0}, s{t1}")
    b(f"v_add_u32 v6, s{t0}, v{vTau}")
    b("v_lshlrev_b32 v6, 3, v6")
    b(f"v_add_u32 v6, {G_OFF}, v6")
    b(f"global_load_dwordx2 v[10:11], v6, s[10:11]")
    b(f"global_load_dwordx2 v[12:13], v6, s[10:11] offset:256")
    b(f"s_lshl_b32 s{t0}, s{sH}, 7")
    b(f"s_sub_u32 s{t0}, s{t0}, 64")
    b(f"s_lshl_b32 s{t0}, s{t0}, 3")
    b(f"v_add_u32 v6, s{t0}, v6")
    b(f"global_load_dwordx2 v[16:17], v6, s[10:11]")
    b(f"global_load_dwordx2 v[18:19], v6, s[10:11] offset:256")
    b(f"v_mov_b32 v6, {NONCE_OFF}")
    b(f"global_load_dwordx2 {v(vNon2,2)}, v6, s[10:11]")
    if STAMP >= 2: stamp(b, 25)
    DH = int(opts.get('k2dh', 5))
    for idx in range(2, DH): hloads(idx)
    if STAMP >= 2: stamp(b, 26)
    vWr, vRd = 20, 21
    vWrq = 56
    b(f"s_lshl_b32 s{t0}, s{sWv}, 14")
    b(f"v_lshlrev_b32 v29, 8, v{vTau}")
    b(f"v_add_u32 v29, s{t0}, v29")
    b("v_lshrrev_b32 v6, 5, v1")
    b("v_and_b32 v7, 7, v1")
    b("v_xor_b32 v6, v6, v7")
    for q in range(4):
        b(f"v_xor_b32 v7, {2*q}, v6")
        b(f"v_lshl_add_u32 v{vWrq+q}, v7, 4, v29")
    b("v_lshrrev_b32 v22, 4, v0")
    b("v_and_b32 v23, 15, v0")
    b("v_lshrrev_b32 v6, 6, v0")
    b("v_xor_b32 v6, v6, v23")
    b(f"v_lshlrev_b32 v{vRd}, 8, v22")
    b(f"v_lshl_add_u32 v{vRd}, v6, 4, v{vRd}")
    b(f"v_xor_b32 v{vWr}, 64, v{vRd}")
    vXch = 24
    b(f"v_lshlrev_b32 v{vXch}, 4, v0")
    b(f"s_lshl_b32 s{t0}, s2, 14")
    b(f"s_add_u32 s{t0}, s{t0}, {XCH_OFF}")
    b(f"v_add_u32 v25, s{t0}, v{vXch}")
    b(f"s_xor_b32 s{t1}, s2, 1")
    b(f"s_lshl_b32 s{t0}, s{t1}, 14")
    b(f"s_add_u32 s{t0}, s{t0}, {XCH_OFF}")
    b(f"v_add_u32 v26, s{t0}, v{vXch}")
    if STAMP >= 2: stamp(b, 27)
    wreads_s()
    if STAMP >= 2: stamp(b, 28)

    def mfmas(idx):
        ps, st = seq[idx]
        kind, i = steps[st]
        acc = accS if kind == 'S' else accF
        out = []
        for aa in range(2):
            for bb in range(2):
                dreg = v(acc + (aa*2 + bb) * 16, 16)
                c = dreg if i else "0"
                out.append(f"v_mfma_f32_32x32x16_bf16 {dreg}, {a(8*st+4*aa,4)}, {hreg(idx,bb)}, {c}")
        return out

    def reduce_write(g0, g1):
        for aa in range(2):
            for bb in range(2):
                g = g0 if bb == 0 else g1
                S = accS + (aa*2+bb)*16; Fq = accF + (aa*2+bb)*16
                for p in range(8):
                    b(f"v_pk_mul_f32 {v(S+2*p,2)}, {v(S+2*p,2)}, {v(g,2)} op_sel_hi:[1,0]")
                for p in range(8):
                    b(f"v_pk_fma_f32 {v(S+2*p,2)}, {v(Fq+2*p,2)}, {v(g,2)}, {v(S+2*p,2)} op_sel:[0,1,0] op_sel_hi:[1,1,1]")
                for q in range(4):
                    b(f"ds_write_b128 v{vWrq+q}, {v(S+4*q,4)} offset:{LRED + bb*32*PITCH + aa*128}", "red")
        b.wait('lg', "red")
        b("s_barrier")
    def reduce_read(dst, gran=None):
        for p in range(4):
            for w in range(4):
                b(f"ds_read_b128 {v(dst+16*p+4*w,4)}, v{vRd if p % 2 == 0 else vWr} offset:{LRED + w*64*PITCH + p*16*PITCH}")
        for p in range(4):
            r = dst + 16*p
            b(f"v_pk_add_f32 {v(r,2)}, {v(r,2)}, {v(r+4,2)}")
            b(f"v_pk_add_f32 {v(r+2,2)}, {v(r+2,2)}, {v(r+6,2)}")
            b(f"v_pk_add_f32 {v(r+8,2)}, {v(r+8,2)}, {v(r+12,2)}")
            b(f"v_pk_add_f32 {v(r+10,2)}, {v(r+10,2)}, {v(r+14,2)}")
            if gran is None:
                b(f"v_pk_add_f32 {v(r,2)}, {v(r,2)}, {v(r+8,2)}")
                b(f"v_pk_add_f32 {v(r+2,2)}, {v(r+2,2)}, {v(r+10,2)}")
            else:
                for e in range(4):
                    u = 4 * p + e
                    b(f"v_add_f32 v{gran + 4*(u//3) + u%3}, v{r+e}, v{r+8+e}")

    total = len(seq)
    sNib = 84
    XS_ = 32
    PR_ = vBuf
    def r1c():
        f = F()
        for p in range(4):
            for w in range(4):
                f(f"ds_read_b128 {v(accF+16*p+4*w,4)}, v{vRd if p % 2 == 0 else vWr} offset:{LRED + w*64*PITCH + p*16*PITCH}")
        for p in range(4):
            r = accF + 16*p
            for e in range(4): f(f"v_add_f32 v{r+e}, v{r+e}, v{r+4+e}")
            for e in range(4): f(f"v_add_f32 v{r+8+e}, v{r+8+e}, v{r+12+e}")
            for e in range(4): f(f"v_add_f32 v{r+e}, v{r+e}, v{r+8+e}")
            for e in range(4): f(f"v_and_or_b32 v{XS_+4*p+e}, v{r+e}, -16, s{sNib+e}")
        return f
    def step_ops(idx):
        ps, st = seq[idx]
        kind, i = steps[st]
        n00 = len(b.ops)
        mf = mfmas(idx)
        if ps == 1: b.wait('lg', f"wr{st}")
        b(mf[0])
        if ps == 1:
            fi = st - 2
            if st == 6: b.wait('lg', "wr7")
            if 0 <= fi < 14: dma_f(fi)
        b(mf[1])
        if ps == 1 and 8 <= st + 1 < NS:
            wreads_f(st + 1 - 8)
        b(mf[2])
        n0 = len(b.ops)
        tg = []
        if ps == 1:
            if st + DH < NS: tg = [st + DH]
            else:
                j = st + DH - NS
                tg = [NS + 2 * j, NS + 2 * j + 1]
        elif idx + D < total: tg = [idx + D]
        for t_ in tg: hloads(t_)
        ld = b.ops[n0:]; del b.ops[n0:]
        cut = [j for j, o in enumerate(ld) if o.kind == 'vmem']
        if cut:
            b.ext(ld[:cut[0] + 1]); b(mf[3]); b.ext(ld[cut[0] + 1:])
        else:
            b(mf[3])
        ops = b.ops[n00:]; del b.ops[n00:]
        return ops
    for idx in range(NS):
        b.ext(step_ops(idx))
        st = idx
        if st == 2:
            b(f"v_readfirstlane_b32 s{t0}, v{vNon2}")
            for j in range(4):
                b(f"s_bfe_u32 s{sNib+j}, s{t0}, {(4 << 16) | (4*j):#x}")
        if STAMP >= 2 and st in (0, 3, 7, 11, 15, 19): stamp(b, 8 + (0, 3, 7, 11, 15, 19).index(st))
    stamp(b, 1)
    n0 = len(b.ops); reduce_write(vG1, vG2); rw = b.ops[n0:]; del b.ops[n0:]
    K0 = 2 * DH
    n0 = len(b.ops)
    for k in range(K0, 15): hloads(NS + k)
    hl = chunks_of(b.ops[n0:]); del b.ops[n0:]
    body, tail = rw[:-2], rw[-2:]
    gap = max(1, len(body) // (len(hl) + 1))
    outp = []
    for j, o in enumerate(body):
        outp.append(o)
        if (j + 1) % gap == 0 and hl: outp.extend(hl.pop(0))
    for c in hl: outp.extend(c)
    b.ext(outp + tail)
    stamp(b, 2)
    p2a = []
    for st in range(7): p2a += step_ops(NS + st)
    b.ext(merge(p2a, r1c().ops, per=4))
    PL = int(opts.get('k2pl', 16))
    BI = vBuf + 16
    def bias_fill():
        f = F()
        f("v_lshlrev_b32 v4, 16, v40\nv_and_b32 v5, 0xffff0000, v40\nv_lshlrev_b32 v6, 16, v41\nv_and_b32 v7, 0xffff0000, v41")
        for p in range(4):
            xs = 32 + 2*p; tp = BI + 4*p
            f(f"v_lshlrev_b32 v{tp}, 16, v{xs}\nv_and_b32 v{tp+1}, 0xffff0000, v{xs}\nv_lshlrev_b32 v{tp+2}, 16, v{xs+1}\nv_and_b32 v{tp+3}, 0xffff0000, v{xs+1}")
            for e in range(4): f(f"v_mul_f32 v{tp+e}, v{tp+e}, v{4+e}")
            f(f"v_cvt_pk_bf16_f32 v46, v{tp}, v{tp+1}")
            f(f"v_cvt_pk_bf16_f32 v47, v{tp+2}, v{tp+3}")
            f(f"v_lshlrev_b32 v{tp}, 16, v46\nv_and_b32 v{tp+1}, 0xffff0000, v46\nv_lshlrev_b32 v{tp+2}, 16, v47\nv_and_b32 v{tp+3}, 0xffff0000, v47")
            for e in range(4): f(f"v_mul_f32 v{tp+e}, v{42+p}, v{tp+e}")
        return f
    tail_steps = []
    for st in range(7, NS):
        idx = NS + st
        ops = step_ops(idx)
        if 7 <= st <= 10:
            p = st - 7
            pre = B()
            if p: pre(f"v_add_u32 v29, {p*4096}, v25")
            pre(f"global_store_dwordx4 v{29 if p else 25}, {v(XS_+4*p,4)}, s[10:11] sc0 sc1")
            ops = ops[:1] + pre.ops + ops[1:]
        if st >= 17:
            tail_steps += ops
            if st == NS - 1: b.ext(merge(tail_steps, bias_fill().ops, per=4))
            continue
        b.ext(ops)
        if STAMP >= 2 and st in (7, 11, 15, 19): stamp(b, 16 + (0, 3, 7, 11, 15, 19).index(st))
        if st == 11:
            b("s_barrier")
        if st == 11:
            b(f"s_lshl_b32 s{t0}, s{sMt}, 7")
            b(f"s_lshl_b32 s{t1}, s{sH}, 6")
            b(f"s_add_u32 s{t0}, s{t0}, s{t1}")
            b(f"v_add_u32 v30, s{t0}, v22")
            b(f"s_lshl_b32 s{t1}, s{sN}, 7")
            b("v_lshlrev_b32 v31, 10, v30")
            b("v_lshl_add_u32 v31, v23, 3, v31")
            b(f"v_add_u32 v31, s{t1}, v31")
            for p in range(4):
                if p: b(f"v_add_u32 v31, {16*1024}, v31")
                b(f"global_load_dwordx2 {v(32+2*p,2)}, v31, s[4:5]")
            b("v_lshlrev_b32 v31, 3, v23")
            b(f"v_add_u32 v31, s{t1}, v31")
            b(f"global_load_dwordx2 v[40:41], v31, s[6:7]")
            b("v_lshlrev_b32 v31, 3, v30")
            b(f"v_add_u32 v31, {G_OFF}, v31")
            for p in range(4):
                b(f"global_load_dword v{42+p}, v31, s[10:11] offset:{p*128}")
            b(f"s_lshl_b32 s{t1}, s{sN}, 8")
            b("v_lshlrev_b32 v2, 11, v30")
            b("v_lshl_add_u32 v2, v23, 4, v2")
            b(f"v_add_u32 v2, s{t1}, v2")
        if st == PL:
            for p in range(4):
                if p: b(f"v_add_u32 v29, {p*4096}, v26")
                b(f"global_load_dwordx4 {v(PR_+4*p,4)}, v{29 if p else 26}, s[10:11] sc1", "prt")
    stamp(b, 3)
    b.wait('vm', "prt")
    b(f"s_mov_b32 s{t0}, 0")
    b("L_k2_chk:")
    b("v_mov_b32 v46, 0")
    for u in range(16):
        b(f"v_xor_b32 v{PR_+u}, s{sNib + (u % 4)}, v{PR_+u}")
        b(f"v_and_or_b32 v46, v{PR_+u}, 15, v46")
    b("v_cmp_eq_u32 vcc, 0, v46")
    b("s_cmp_eq_u64 vcc, -1")
    b("s_cbranch_scc1 L_k2_ok")
    b(f"s_add_u32 s{t0}, s{t0}, 1")
    b(f"s_cmp_gt_u32 s{t0}, 40000")
    b("s_cbranch_scc1 L_k2_ok")
    for p in range(4):
        if p: b(f"v_add_u32 v29, {p*4096}, v26")
        b(f"global_load_dwordx4 {v(PR_+4*p,4)}, v{29 if p else 26}, s[10:11] sc1", 'nocount')
    b("s_waitcnt vmcnt(0)", 'nocount')
    b("s_branch L_k2_chk")
    b("L_k2_ok:")
    if STAMP >= 2: stamp(b, 30)
    n0 = len(b.ops)
    reduce_write(16, 18)
    rw = b.ops[n0:]; del b.ops[n0:]
    fl = F()
    for u in range(0, 16, 2): fl(f"v_pk_add_f32 {v(BI+u,2)}, {v(BI+u,2)}, {v(PR_+u,2)}")
    b.ext(merge(rw, fl.ops, after=lambda o: o.mn.startswith('ds_write'), per=1))
    if STAMP >= 2: stamp(b, 31)
    reduce_read(accF)
    if STAMP >= 2: stamp(b, 32)
    OUTF = opts.get('outf', '').replace('+', ' ')
    for p in range(4):
        r = accF + 16*p
        b(f"v_pk_add_f32 {v(r,2)}, {v(r,2)}, {v(BI+4*p,2)}")
        b(f"v_pk_add_f32 {v(r+2,2)}, {v(r+2,2)}, {v(BI+4*p+2,2)}")
        if p: b(f"v_add_u32 v2, {16*2048}, v2")
        b(f"global_store_dwordx4 v2, {v(r,4)}, s[8:9] {OUTF}")
    stamp(b, 4)
    dbgt_end(b, "s[18:19]", 32, True)
    stamp_end(b, sWv, "s[10:11]", 0x2100000, 1)
    b("L_k2_end:")
    b("s_endpgm")
    return finalize(b.ops)

KN = NAME + "_kernel"
def header():
    ref = open('cdna_kernels/%s.s.ref' % NAME).read().split('\n')
    hdr = []
    for line in ref:
        if not line.startswith(';'): break
        if '@launch' in line: continue
        hdr.append(line)
    hdr.append("; @launch grid=(256,1,1) block=(512,1,1) lds=163840")
    return '\n'.join(hdr)

def kd(name, nv, acc_off, nsg):
    return f""".amdhsa_kernel {name}
  .amdhsa_next_free_vgpr {nv}
  .amdhsa_next_free_sgpr {nsg}
  .amdhsa_accum_offset {acc_off}
  .amdhsa_group_segment_fixed_size 0
  .amdhsa_kernarg_size 128
  .amdhsa_user_sgpr_count 2
  .amdhsa_user_sgpr_kernarg_segment_ptr 1
  .amdhsa_system_sgpr_workgroup_id_x 1
  .amdhsa_float_denorm_mode_32 3
.end_amdhsa_kernel"""

def main():
    k1 = gen_k1()
    out = [header(), '.amdgcn_target "amdgcn-amd-amdhsa--gfx950"', '.text']
    out += [f".globl {KN}", ".p2align 8", f".type {KN},@function", f"{KN}:", render(k1)]
    out += ["L_code_end:", "  s_endpgm"]
    out += ['.section .rodata,"a"', '.p2align 6', kd(KN, 256, 128, 102)]
    print('\n'.join(out))

main()
```

```python
import sys, copy
sys.path.insert(0, 'dev')
from ir import *

NAME = "gated_mix__ssm_conv_s5__dense_activation_silu__prompt"
K1 = NAME + "_kernel"
K2 = "gm_k2_kernel"

opts = dict(a.split('=') for a in sys.argv[1:] if '=' in a)
HF_OFF = 0
HF_SIZE = 64 * 176 * 1024
W2F_OFF = HF_SIZE
W2F_SIZE = 16 * 176 * 1024
G_OFF = W2F_OFF + W2F_SIZE
E_OFF = G_OFF + 2048 * 8
E_SIZE = 16 * 16 * 512
NONCE_OFF = E_OFF + E_SIZE
FLG_OFF = NONCE_OFF + 256
FLG_STRIDE = int(opts.get('flgs', 1024)) if 'opts' in globals() else 128
XCH_OFF = FLG_OFF + 0x40000
WS_USED = XCH_OFF + 256 * 16384

LOG2E = 0x3fb8aa3b
INV2PI = 0x3e22f983

RB, XS, WR = 0, 65536, 114688
SC = 32768
IMG = 36864

STAMP = int(opts.get('stamp', 0))
STF = "sc0 sc1"

def v(n, k=1): return f"v{n}" if k == 1 else f"v[{n}:{n+k-1}]"
def a(n, k=1): return f"a{n}" if k == 1 else f"a[{n}:{n+k-1}]"
def s(n, k=1): return f"s{n}" if k == 1 else f"s[{n}:{n+k-1}]"


STV = 15
def reg_of_t(t): return (t >> 2) + 4 * (t & 3)
def srd(b, dst, ptr, size):
    b(f"s_mov_b32 s{dst}, s{ptr}")
    b(f"s_mov_b32 s{dst+1}, s{ptr+1}")
    b(f"s_mov_b32 s{dst+2}, {size}")
    b(f"s_mov_b32 s{dst+3}, 0x20000")


def cexp(b, dst, n_src, va, vang, t0):
    b(f"v_mul_f32 v{t0}, {n_src}, v{va}")
    b(f"v_mul_f32 v{t0+1}, {n_src}, v{vang}")
    b(f"v_exp_f32 v{t0}, v{t0}")
    b(f"v_rndne_f32 v{t0+2}, v{t0+1}")
    b(f"v_sub_f32 v{t0+1}, v{t0+1}, v{t0+2}")
    b(f"v_cos_f32 v{dst}, v{t0+1}")
    b(f"v_sin_f32 v{dst+1}, v{t0+1}")
    b(f"v_mul_f32 v{dst}, v{t0}, v{dst}")
    b(f"v_mul_f32 v{dst+1}, v{t0}, v{dst+1}")


def cfma(b, d, l, h, u, tmp):
    b(f"v_pk_fma_f32 {v(tmp,2)}, {v(l,2)}, {v(h,2)}, {v(u,2)} op_sel:[0,0,0] op_sel_hi:[0,1,1]")
    b(f"v_pk_fma_f32 {v(d,2)}, {v(l,2)}, {v(h,2)}, {v(tmp,2)} op_sel:[1,1,0] op_sel_hi:[1,0,1] neg_lo:[1,0,0]")


def cfma_s(b, d, l, h, u, tmp):
    b(f"v_fma_f32 v{tmp}, v{l}, v{h}, v{u}")
    b(f"v_fma_f32 v{tmp+1}, v{l}, v{h+1}, v{u+1}")
    b(f"v_fma_f32 v{d}, -v{l+1}, v{h+1}, v{tmp}")
    b(f"v_fma_f32 v{d+1}, v{l+1}, v{h}, v{tmp+1}")


def stamp(b, idx):
    if not STAMP: return
    g = B()
    g("s_memtime s[100:101]")
    g("s_waitcnt lgkmcnt(0)")
    g(f"v_writelane_b32 v{STV}, s100, {idx}")
    b.ext(g)


def stamp_begin(b):
    if not STAMP: return
    b(f"v_mov_b32 v{STV}, 0")
    b("s_memrealtime s[100:101]")
    b("s_waitcnt lgkmcnt(0)")
    b(f"v_writelane_b32 v{STV}, s100, 62")
    stamp(b, 0)


def stamp_end(b, wave, ws, off, lane, sh=2, tv=254):
    if not STAMP: return
    b("s_memrealtime s[100:101]")
    b("s_waitcnt lgkmcnt(0)")
    b(f"v_writelane_b32 v{STV}, s100, 63")
    b(f"s_lshl_b32 s100, s2, {sh}")
    b(f"s_add_u32 s100, s100, s{wave}")
    b(f"s_lshl_b32 s100, s100, 8")
    b(f"s_add_u32 s100, s100, {off}")
    b(f"v_lshlrev_b32 v{tv}, 2, v{lane}")
    b(f"v_add_u32 v{tv}, s100, v{tv}")
    b(f"global_store_dword v{tv}, v{STV}, {ws}")


vLane = 1
def tr_pattern(b, dst, hfmul, t):
    L = vLane
    b(f"v_lshrrev_b32 v{t}, 5, v{L}")
    b(f"v_mul_u32_u24 v{t}, {hfmul}, v{t}")
    b(f"v_bfe_u32 v{t+1}, v{L}, 2, 2")
    b(f"v_add_u32 v{t}, v{t}, v{t+1}")
    b(f"v_lshlrev_b32 v{t}, 7, v{t}")
    b(f"v_bfe_u32 v{t+1}, v{L}, 3, 1")
    b(f"v_lshlrev_b32 v{t+1}, 6, v{t+1}")
    b(f"v_bfe_u32 v{t+2}, v{L}, 4, 1")
    b(f"v_lshlrev_b32 v{t+2}, 5, v{t+2}")
    b(f"v_and_b32 v{t+3}, 3, v{L}")
    b(f"v_lshlrev_b32 v{t+3}, 3, v{t+3}")
    b(f"v_add3_u32 v{t}, v{t}, v{t+2}, v{t+3}")
    b(f"v_add_u32 v{dst}, v{t}, v{t+1}")
    b(f"v_xor_b32 v{t+1}, 64, v{t+1}")
    b(f"v_add_u32 v{dst+1}, v{t}, v{t+1}")

SLOT = 24576
NSLOT = 4
WB0 = 98304
SCR = 73728
SC = 0
IMG = 1024
def wblock_lds(q):
    if q < 8: return WB0 + q * 8192
    return (q - 8) * 8192

sX, sBRE, sBIM, sW1, sHF = 36, 40, 44, 48, 52
sWave, sWm, sR, sS, sRho = 60, 61, 62, 63, 56
sLdsX, sLdsB = 64, 65
sT0, sT1, sT2, sT3 = 68, 69, 70, 71
sWL = 72
sM1, sM2, sM3 = 80, 82, 84
sHFb, sK0, sEX = 86, 87, 88
sLo = 90
sSpin, sU = 98, 99

DBGT = int(opts.get('dbgt', 0))
def dbgt_begin(b):
    if not DBGT: return
    b("s_memrealtime s[100:101]")
    b("s_waitcnt lgkmcnt(0)")
    b("s_not_b32 s101, s100")
def dbgt_end(b, dbg, vt, k2=False):
    if not DBGT: return
    b("s_mov_b32 s99, s101")
    b("s_memrealtime s[100:101]")
    b("s_waitcnt lgkmcnt(0)")
    b(f"v_mov_b32 v{vt}, 0")
    b(f"v_mov_b32 v{vt+1}, s99")
    b(f"v_mov_b32 v{vt+2}, s100")
    b("s_mov_b64 exec, 1")
    b(f"global_atomic_umax v{vt}, v{vt+1}, {dbg} offset:16")
    b(f"global_atomic_umax v{vt}, v{vt+2}, {dbg} offset:20")
    if k2:
        b(f"global_load_dwordx2 {v(vt+2,2)}, v{vt}, {dbg} offset:-496 sc1")
        b("s_waitcnt vmcnt(0)")
        b(f"global_store_dwordx2 v{vt}, {v(vt+2,2)}, {dbg} offset:8")
    b("s_mov_b64 exec, -1")

def code_prefetch(b, kname, endlabel, wshift, tag, vt, vd):
    if not int(opts.get('pfc', 1)): return
    b("s_getpc_b64 s[40:41]")
    b(f"L_{tag}_pc:")
    b(f"s_sub_u32 s40, s40, L_{tag}_pc-{kname}")
    b("s_subb_u32 s41, s41, 0")
    b("s_lshr_b32 s42, s2, 3")
    b(f"s_lshl_b32 s42, s42, {wshift + 7}")
    b(f"v_lshrrev_b32 v{vt}, 6, v0")
    b(f"v_lshlrev_b32 v{vt}, 7, v{vt}")
    b(f"v_add_u32 v{vt}, s42, v{vt}")
    b(f"v_min_u32 v{vt}, {endlabel}-{kname}-4, v{vt}")
    b(f"global_load_dword v{vd}, v{vt}, s[40:41]", 'nocount')

def k1_head():
    b = B()
    code_prefetch(b, K1, "L_code_end", 3, "k1", 2, 14)
    dbgt_begin(b)
    stamp_begin(b)
    b("s_load_dwordx16 s[4:19], s[0:1], 0")
    b("s_load_dwordx16 s[20:35], s[0:1], 64")
    b("s_cmp_ge_u32 s2, 256")
    b("s_cbranch_scc1 L_k1_end")
    b("v_lshrrev_b32 v2, 6, v0")
    b(f"v_and_b32 v{vLane}, 63, v0")
    b(f"v_readfirstlane_b32 s{sWave}, v2")
    b(f"s_and_b32 s{sT0}, s2, 7")
    b(f"s_lshr_b32 s{sT1}, s2, 3")
    b(f"s_and_b32 s{sT2}, s{sT1}, 3")
    b(f"s_lshr_b32 s{sT3}, s{sT1}, 2")
    b(f"s_lshr_b32 s{sR}, s{sT0}, 1")
    if int(opts.get('gray', 0)):
        b(f"s_lshr_b32 s{sS}, s{sR}, 1")
        b(f"s_xor_b32 s{sR}, s{sR}, s{sS}")
    b(f"s_lshl_b32 s{sR}, s{sR}, 2")
    b(f"s_add_u32 s{sR}, s{sR}, s{sT2}")
    b(f"s_and_b32 s{sS}, s{sT0}, 1")
    b(f"s_lshl_b32 s{sS}, s{sS}, 3")
    b(f"s_add_u32 s{sS}, s{sS}, s{sT3}")
    b(f"s_lshl_b32 s{sRho}, s{sT2}, 1")
    b(f"s_add_u32 s{sRho}, s{sRho}, s{sT3}")
    ROT1 = opts.get('rot1', 'two')
    if ROT1 == 'none': b(f"s_mov_b32 s{sRho}, 0")
    if ROT1 == 'half':
        b(f"s_and_b32 s{sRho}, s{sRho}, 1")
        b(f"s_lshl_b32 s{sRho}, s{sRho}, 2")
    if ROT1 == 'two':
        b(f"s_and_b32 s{sRho}, s{sRho}, 3")
        b(f"s_lshl_b32 s{sRho}, s{sRho}, 1")
    b(f"s_and_b32 s{sWm}, s{sWave}, 3")
    b(f"s_lshl_b32 s{sLdsX}, s{sWm}, 12")
    b(f"s_lshl_b32 s{sLdsB}, s{sWm}, 11")
    b(f"s_lshl_b32 s{sHFb}, s{sR}, 2")
    b(f"s_add_u32 s{sHFb}, s{sHFb}, s{sWm}")
    b(f"s_mul_i32 s{sHFb}, s{sHFb}, {176*1024}")
    if int(opts.get('swap', 0)):
        b(f"s_cmp_lt_u32 s{sWave}, 4")
        b("s_cbranch_scc1 L_k1_F")
        b("v_and_b32 v0, 0xff, v0")
    else:
        b(f"s_cmp_ge_u32 s{sWave}, 4")
        b("s_cbranch_scc1 L_k1_F")
    return b

fXe, fXo, fB, fW = 2, 3, 4, 5
fPX, fTA, fTB, fTC, fL16 = 7, 11, 13, 16, 6 + 0
fPX, fTA, fTB, fTC = 8, 12, 14, 16
fPX, fTA, fTB, fTC, fL16 = 8, 12, 16, 18, 7
fE, fD = 20, 28
fS, fAcc = 32, 64

def dma(b, voff, srdn, soff, tok, imm=0):
    o = f" offset:{imm}" if imm else ""
    b(f"buffer_load_dwordx4 v{voff}, {s(srdn,4)}, {soff} offen{o} lds", tok)
def dma_x(b, i):
    b(f"s_add_u32 m0, s{sLdsX}, {(i % NSLOT) * SLOT}")
    for k in range(4):
        dma(b, fXe if k % 2 == 0 else fXo, sX, f"s{sLo+i}", f"x{i}", k * 1024)
def dma_B(b, i):
    b(f"s_add_u32 m0, s{sLdsB}, {(i % NSLOT) * SLOT + 16384}")
    dma(b, fB, sBRE, f"s{sLo+i}", f"B{i}")
    dma(b, fB, sBIM, f"s{sLo+i}", f"B{i}", 1024)
def dma_w(b, q):
    i, hh = q % 8, q // 8
    b(f"s_add_u32 m0, s{sLdsB}, {wblock_lds(q)}")
    if hh:
        b(f"s_add_u32 s{sT0}, s{sWL+i}, 128")
        so = f"s{sT0}"
    else:
        so = f"s{sWL+i}"
    dma(b, fW, sW1, so, f"w{q}")
    dma(b, fW + 1, sW1, so, f"w{q}", 1024)

def chunks_of(ops):
    ch = []; cur = []
    for o in ops:
        cur.append(o)
        if o.kind == 'vmem': ch.append(cur); cur = []
    if cur: ch.append(cur)
    return ch

def k1_F(ffn):
    b = B(); L = vLane
    t = fE
    for i in range(8):
        b(f"s_add_u32 s{sLo+i}, s{sRho}, {i}")
        b(f"s_and_b32 s{sLo+i}, s{sLo+i}, 7")
        b(f"s_lshl_b32 s{sLo+i}, s{sLo+i}, 7")
    b(f"v_and_b32 v{t}, 7, v{L}")
    b(f"v_lshrrev_b32 v{t+1}, 4, v{L}")
    b(f"v_xor_b32 v{t+2}, v{t}, v{t+1}")
    b(f"v_lshlrev_b32 v{t+2}, 4, v{t+2}")
    b(f"v_lshrrev_b32 v{t+3}, 3, v{L}")
    b(f"s_lshl_b32 s{sT0}, s{sR}, 17")
    b(f"s_lshl_b32 s{sT1}, s{sWm}, 15")
    b(f"s_add_u32 s{sT0}, s{sT0}, s{sT1}")
    b(f"v_lshlrev_b32 v{t}, 12, v{t+3}")
    b(f"v_add3_u32 v{fXe}, v{t}, v{t+2}, s{sT0}")
    b(f"v_xor_b32 v{fXo}, 64, v{fXe}")
    b(f"s_and_b32 s{sT0}, s{sWm}, 1")
    b(f"s_lshl_b32 s{sT0}, s{sT0}, 6")
    b(f"v_xor_b32 v{t+1}, s{sT0}, v{t+2}")
    b(f"s_lshl_b32 s{sT0}, s{sWm}, 13")
    b(f"s_lshl_b32 s{sT1}, s{sS}, 15")
    b(f"s_add_u32 s{sT0}, s{sT0}, s{sT1}")
    b(f"v_lshlrev_b32 v{t}, 10, v{t+3}")
    b(f"v_add3_u32 v{fB}, v{t}, v{t+1}, s{sT0}")
    b("s_waitcnt lgkmcnt(0)")
    srd(b, sX, 4, 2048*1024)
    srd(b, sBRE, 10, 512*1024)
    b(f"s_sub_u32 s{sBIM}, s12, 1024")
    b(f"s_subb_u32 s{sBIM+1}, s13, 0")
    b(f"s_mov_b32 s{sBIM+2}, {512*1024 + 1024}")
    b(f"s_mov_b32 s{sBIM+3}, 0x20000")
    if STAMP >= 2: stamp(b, 8)
    INI = int(opts.get('ini', 3))
    for i in range(INI):
        dma_x(b, i); dma_B(b, i)
    if STAMP >= 2: stamp(b, 9)
    srd(b, sHF, 34, WS_USED)
    if ffn:
        srd(b, sW1, 24, 512*3584)
        b(f"v_bfe_u32 v{t+1}, v{L}, 4, 1")
        b(f"v_lshlrev_b32 v{t+1}, 2, v{t+1}")
        b(f"v_and_b32 v{t+3}, 7, v{L}")
        b(f"v_xor_b32 v{t+3}, v{t+3}, v{t+1}")
        b(f"v_lshlrev_b32 v{t+3}, 4, v{t+3}")
        b(f"v_lshrrev_b32 v{t+1}, 3, v{L}")
        b(f"s_lshl_b32 s{sT3}, s{sWm}, 4")
        b(f"v_add_u32 v{t+1}, s{sT3}, v{t+1}")
        b(f"v_mul_u32_u24 v{t+1}, 3584, v{t+1}")
        b(f"v_add_u32 v{fW}, v{t+1}, v{t+3}")
        b(f"v_add_u32 v{fW+1}, {8*3584 - 1024}, v{fW}")
        b(f"s_lshl_b32 s{sT3}, s{sS}, 8")
        for i in range(8):
            b(f"s_mul_i32 s{sWL+i}, s{sLo+i}, 1792")
            b(f"s_add_u32 s{sWL+i}, s{sWL+i}, s{sT3}")
        tr_pattern(b, fTA, 8, t)
        b(f"v_add_u32 v{fTB}, 0x10000, v{fTA}")
        b(f"v_add_u32 v{fTB+1}, 0x10000, v{fTA+1}")
        b(f"v_add_u32 v{fTC}, 0x20000, v{fTA}")
        b(f"v_add_u32 v{fTC+1}, 0x20000, v{fTA+1}")
        b(f"v_lshlrev_b32 v{fL16}, 4, v{L}")
        b(f"v_and_b32 v{t}, 31, v{L}")
        b(f"v_lshrrev_b32 v{t+1}, 5, v{L}")
        b(f"v_bfe_u32 v{t+2}, v{L}, 1, 3")
        b(f"v_xor_b32 v{t+2}, v{t+1}, v{t+2}")
        b(f"v_lshlrev_b32 v{t+1}, 7, v{t}")
        b(f"v_add_u32 v{t+1}, s{sLdsX}, v{t+1}")
        for k in range(4):
            b(f"v_xor_b32 v{t+3}, {2*k}, v{t+2}")
            b(f"v_lshl_add_u32 v{fPX+k}, v{t+3}, 4, v{t+1}")
        b(f"s_mov_b32 s66, {LOG2E ^ 0x80000000:#x}")
        b(f"s_mov_b32 s67, {LOG2E ^ 0x80000000:#x}")
        b(f"s_lshl_b32 s{sU}, s{sS}, 13")
        b(f"s_add_u32 s{sU}, s{sU}, s{sHFb}")
        b(f"s_add_u32 s{sU}, s{sU}, {64*1024}")
    stamp(b, 1)
    for i in range(8):
        if STAMP >= 2: stamp(b, 10 + 2*i)
        b.wait('vm', f"x{i}", f"B{i}")
        b("s_waitcnt lgkmcnt(0)")
        b("s_barrier")
        if STAMP >= 2: stamp(b, 11 + 2*i)
        if ffn:
            po = (i % NSLOT) * SLOT
            if po >= 65536:
                for k in range(4): b(f"v_add_u32 v{fE+k}, 0x10000, v{fPX+k}")
            for k in range(4):
                if po >= 65536: b(f"ds_read_b128 {a(16*i+4*k,4)}, v{fE+k} offset:{po - 65536}")
                else: b(f"ds_read_b128 {a(16*i+4*k,4)}, v{fPX+k} offset:{po}")
        if i == 0 and INI == 2:
            dma_x(b, 2); dma_B(b, 2)
        if i <= 4:
            dma_x(b, i + 3); dma_B(b, i + 3)
        elif ffn:
            for q in {5: (0, 1, 2), 6: (3, 4, 5), 7: (6, 7)}[i]: dma_w(b, q)
        if True:
            if not ffn and i == 5:
                b(f"s_lshl_b32 s{sT0}, s{sR}, 1")
                b(f"s_add_u32 s{sT0}, s{sT0}, s{sS}")
                b(f"s_sub_u32 s{sT0}, s{sT0}, 14")
                b(f"s_lshl_b32 s{sT0}, s{sT0}, 2")
                b(f"s_add_u32 s{sT0}, s{sT0}, s{sWm}")
                b(f"v_lshlrev_b32 v8, 7, v{L}")
                srd(b, sW1, 26, 1792*1024)
                srd(b, sHF, 14, 512*1024)
                srd(b, 76, 16, 512*1024)
                b(f"s_mul_i32 s{sT1}, s{sT0}, 14336")
                b(f"buffer_load_dword v9, v8, {s(sW1,4)}, s{sT1} offen")
                b(f"s_add_u32 s{sT1}, s{sT1}, 8192")
                b(f"buffer_load_dword v10, v8, {s(sW1,4)}, s{sT1} offen")
                b(f"s_lshl_b32 s{sT1}, s{sT0}, 12")
                b(f"buffer_load_dword v11, v8, {s(sHF,4)}, s{sT1} offen")
                b(f"buffer_load_dword v12, v8, {s(76,4)}, s{sT1} offen")
    stamp(b, 2)
    if ffn and int(opts.get('fprio', 3)): b(f"s_setprio {int(opts.get('fprio', 3))}")
    if not ffn:
        b(f"s_lshl_b32 s{sT0}, s{sR}, 1")
        b(f"s_add_u32 s{sT0}, s{sT0}, s{sS}")
        b(f"s_sub_u32 s{sT0}, s{sT0}, 14")
        b(f"s_lshl_b32 s{sT0}, s{sT0}, 2")
        b(f"s_add_u32 s{sT0}, s{sT0}, s{sWm}")
        k1_gjob_all(b)
        return b
    def ffn_phase(hh):
        p = B(); DEPTH = int(opts.get('fdepth', 3))
        def lds_loc(n):
            i, k = divmod(n, 4)
            base = wblock_lds(8 * hh + i) + 16 * k * 128
            if base < 65536: return fTA, base
            if base < 131072: return fTB, base - 65536
            return fTC, base - 131072
        plan = {0: [0, 1, 2, 3], int(opts.get('bcn', 12)): [4, 5, 6, 7]} if hh == 0 else {0: list(range(8, 16))}
        def reads(n):
            if n in plan:
                p.wait('vm', *[f"w{q}" for q in plan[n]])
                if hh == 0 and n == 0: p("s_waitcnt lgkmcnt(0)")
                if STAMP >= 2: stamp(p, 26 + (0 if n == 0 else 1) if hh == 0 else 29)
                p("s_barrier")
                if STAMP >= 2 and hh == 0: stamp(p, 30 + (0 if n == 0 else 1))
            base, off = lds_loc(n)
            r = fS + (n % 4) * 8
            for ft in range(2):
                for rd in range(2):
                    p(f"ds_read_b64_tr_b16 {v(r+4*ft+2*rd,2)}, v{base+ft} offset:{off + rd*512}", f"r{hh}_{n}")
        ch = []
        if hh == 0:
            d = B()
            for q in range(8, 16): dma_w(d, q)
            ch = chunks_of(d.ops)
        for n in range(DEPTH): reads(n)
        for n in range(32):
            i, k = divmod(n, 4)
            r = fS + (n % 4) * 8
            p.wait('lg', f"r{hh}_{n}")
            for ft in range(2):
                acc = fAcc + (2*hh + ft) * 16
                c = v(acc, 16) if n else "0"
                p(f"v_mfma_f32_32x32x16_bf16 {v(acc,16)}, {v(r+4*ft,4)}, {a(16*i+4*k,4)}, {c}")
                if ft == 0 and ch: p.ext(ch.pop(0))
            if hh == 0 and n == int(opts.get('bxn', 1)): p("s_barrier")
            if hh == 0 and n == 16 and int(opts.get('cearly', 1)): p("s_barrier")
            if hh == 1 and opts.get('fprion') is not None and n == int(opts.get('fprion')): p(f"s_setprio {int(opts.get('fprio2', 0))}")
            if n + DEPTH < 32: reads(n + DEPTH)
        assert not ch
        return p
    if int(opts.get('tseq', 0)):
        DEPTH = int(opts.get('tdepth', 6))
        def loc(g):
            t_, n = divmod(g, 32); i, k = divmod(n, 4)
            base = wblock_lds(8 * (t_ // 2) + i) + 16 * k * 128
            if base < 65536: return fTA + (t_ & 1), base
            if base < 131072: return fTB + (t_ & 1), base - 65536
            return fTC + (t_ & 1), base - 131072
        d = B()
        for q in range(8, 16): dma_w(d, q)
        ch = chunks_of(d.ops)
        tiles = []
        p = B()
        def rd(g):
            if g == 0:
                p.wait('vm', "w0", "w1", "w2", "w3"); p("s_waitcnt lgkmcnt(0)"); p("s_barrier")
            if g == 16:
                p.wait('vm', "w4", "w5", "w6", "w7"); p("s_barrier")
            if g == 64: p("s_barrier")
            base, off = loc(g); r = fS + (g % 8) * 4
            for r_ in range(2):
                p(f"ds_read_b64_tr_b16 {v(r+2*r_,2)}, v{base} offset:{off + r_*512}", f"t{g}")
        for g in range(DEPTH): rd(g)
        for g in range(128):
            t_, n = divmod(g, 32); i, k = divmod(n, 4)
            if n == 0 and t_: tiles.append(p); p = B()
            r = fS + (g % 8) * 4; acc = fAcc + t_ * 16
            if g % 2 == 0: p.wait('lg', f"t{g}", f"t{g+1}")
            p(f"v_mfma_f32_32x32x16_bf16 {v(acc,16)}, {v(r,4)}, {a(16*i+4*k,4)}, {v(acc,16) if n else 0}")
            if ch: p.ext(ch.pop(0))
            if g == int(opts.get('bxn', 3)): p("s_barrier")
            if g == 31: p.wait('vm', *[f"w{q}" for q in range(8, 16)])
            if g + DEPTH < 128: rd(g + DEPTH)
        tiles.append(p)
        PT = int(opts.get('pert', 3))
        b.ext(tiles[0])
        for t_ in range(1, 4):
            b.ext(merge(tiles[t_].ops, k1_silu(t_ - 1, False).ops, per=PT, start=1))
            if t_ == 1: stamp(b, 3)
        stamp(b, 4)
        b.ext(flat(k1_silu(3, True).ops))
        stamp(b, 5)
        return b
    b.ext(ffn_phase(0))
    stamp(b, 3)
    p3 = ffn_phase(1)
    fl = F()
    fl.ext(k1_silu(0, False)); fl.ext(k1_silu(1, False))
    if opts.get('p3mode') == 'nofill':
        b.ext(p3.ops); stamp(b, 6); b.ext(flat(fl.ops))
    elif opts.get('p3mode') == 'nostore':
        fo = [o for o in fl.ops if not (not isinstance(o, list) and o.kind == 'vmem')]
        st_ = [o for o in fl.ops if (not isinstance(o, list) and o.kind == 'vmem')]
        b.ext(merge(p3.ops, fo, per=int(opts.get('per3', 4)), start=1))
    else:
        b.ext(merge(p3.ops, fl.ops, per=int(opts.get('per3', 4)), start=1))
    stamp(b, 4)
    if int(opts.get('fprio', 3)) and int(opts.get('fprio2', 0)) >= 0: b(f"s_setprio {int(opts.get('fprio2', 0))}")
    b.ext(flat(k1_silu(2, True).ops))
    b.ext(flat(k1_silu(3, True).ops))
    stamp(b, 5)
    return b

def k1_silu(ft, pk):
    b = F()
    acc = fAcc + ft * 16
    e, d = fE, fD
    for kk in range(2):
        base = acc + 8 * kk
        if pk:
            for q in range(4): b(f"v_pk_mul_f32 {v(e+2*q,2)}, {v(base+2*q,2)}, s[66:67]")
            for q in range(8): b(f"v_exp_f32 v{e+q}, v{e+q}")
            for q in range(4): b(f"v_pk_add_f32 {v(e+2*q,2)}, {v(e+2*q,2)}, 1.0 op_sel_hi:[1,0]")
            for q in range(8): b(f"v_rcp_f32 v{e+q}, v{e+q}")
            for q in range(4): b(f"v_pk_mul_f32 {v(e+2*q,2)}, {v(base+2*q,2)}, {v(e+2*q,2)}")
            for q in range(4): b(f"v_cvt_pk_bf16_f32 v{d+q}, v{e+2*q}, v{e+2*q+1}")
        else:
            seq = []
            for q in range(8):
                seq.append([f"v_mul_f32 v{e+q}, s66, v{base+q}", f"v_exp_f32 v{e+q}, v{e+q}", f"v_add_f32 v{e+q}, 1.0, v{e+q}",
                            f"v_rcp_f32 v{e+q}, v{e+q}", f"v_mul_f32 v{e+q}, v{base+q}, v{e+q}"])
            if opts.get('silu', 'diag') == 'diag':
                for tm in range(8 + 4):
                    for stg in range(5):
                        q = tm - stg
                        if 0 <= q < 8: b(seq[q][stg])
            elif opts.get('silu') == 'block':
                for stg in range(5):
                    for q in range(8): b(seq[q][stg])
            else:
                for tm in range(8 + 8):
                    for stg in range(5):
                        q = tm - 2 * stg
                        if 0 <= q < 8: b(seq[q][stg])
            for q in range(4): b(f"v_cvt_pk_bf16_f32 v{d+q}, v{e+2*q}, v{e+2*q+1}")
        b(f"s_add_u32 s{sK0}, s{sU}, {(2*ft+kk)*1024}")
        b(f"buffer_store_dwordx4 {v(d,4)}, v{fL16}, {s(sHF,4)}, s{sK0} offen {STF}")
    return b

gPX, gPB = 2, 6
vLBa, vImgW, vImgR, vL16o = 10, 11, 12, 13
vL, vC2, vL16, vL32, vL128, vL256, vF1, vG, vHfm = 16, 18, 20, 22, 24, 26, 28, 30, 32
vNon, vK, vQ, vW_, vPre, vTmp = 34, 36, 38, 40, 42, 44
vP = 48
aRE, aIM, vU = 64, 80, 96
aSX, aSB = 0, 16

def k1_S_setup():
    b = B(); L = vLane; t = vP
    b("s_waitcnt lgkmcnt(0)")
    srd(b, sHF, 34, WS_USED)
    b(f"v_and_b32 v{t}, 31, v{L}")
    b(f"s_lshl_b32 s{sT0}, s{sS}, 5")
    b(f"v_add_u32 v{t}, s{sT0}, v{t}")
    b(f"v_lshlrev_b32 v{t}, 1, v{t}")
    b(f"global_load_ushort v{vP+8}, v{t}, s[6:7]")
    b(f"global_load_ushort v{vP+9}, v{t}, s[8:9]")
    b(f"global_load_ushort v{vP+10}, v{t}, s[18:19]")
    if int(opts.get('nearly', 0)):
        b(f"s_or_b32 s{sT0}, s2, s{sWm}")
        b(f"s_cmp_lg_u32 s{sT0}, 0")
        b("s_cbranch_scc1 L_k1_nononce")
        b(f"v_mov_b32 v{t}, {NONCE_OFF}")
        b(f"global_load_dwordx2 {v(vU+26,2)}, v{t}, s[34:35] sc1", 'nocount')
        b("s_waitcnt vmcnt(0)", 'nocount')
        b(f"v_add_u32 v{vU+26}, 1, v{vU+26}")
        b(f"v_or_b32 v{vU+27}, 1, v{vU+27}")
        b(f"v_mov_b32 v{t+1}, 0")
        b(f"global_store_dwordx2 v{t+1}, {v(vU+26,2)}, s[32:33] sc0 sc1", 'nocount')
        b(f"global_store_dwordx2 v{t}, {v(vU+26,2)}, s[34:35] sc0 sc1", 'nocount')
        b("L_k1_nononce:")
    else:
        b(f"v_mov_b32 v{t}, {NONCE_OFF}")
        b(f"global_load_dwordx2 {v(vU+26,2)}, v{t}, s[34:35] sc1")
    if int(opts.get('flgw', 1)):
        b(f"s_mul_i32 s{sT0}, s{sR}, {FLG_STRIDE}")
        b(f"s_add_u32 s{sT0}, s{sT0}, {FLG_OFF}")
        b(f"v_mov_b32 v{t}, s{sT0}")
        b(f"global_load_dword v{vU+10}, v{t}, s[34:35] sc1", 'nocount')
        b(f"s_lshl_b32 s{sT0}, s{sR}, 10")
        b(f"s_add_u32 s{sT0}, s{sT0}, {G_OFF}")
        b(f"v_and_b32 v{t}, 7, v{L}")
        b(f"v_lshlrev_b32 v{t}, 7, v{t}")
        b(f"v_add_u32 v{t}, s{sT0}, v{t}")
        b(f"global_load_dword v{vU+11}, v{t}, s[34:35] sc1", 'nocount')
    if int(opts.get('tlbw', 1)):
        pd = vU + 12
        b(f"s_cmp_eq_u32 s{sWm}, 2")
        b("s_cbranch_scc0 L_k1_tlb_done")
        b(f"v_mov_b32 v{t}, 0")
        for k, ptr in enumerate((24, 14, 16, 26, 20)):
            b(f"global_load_dword v{pd+k}, v{t}, {s(ptr,2)}", 'nocount')
        if int(opts.get('tlbw2', 0)):
            b(f"global_load_dword v{pd+7-8}, v{t}, s[32:33] sc1", 'nocount')
            b(f"v_and_b32 v{t+1}, 7, v{L}")
            b(f"v_lshlrev_b32 v{t+1}, 7, v{t+1}")
            b(f"global_load_dword v{pd+7-9}, v{t+1}, s[28:29]", 'nocount')
        b(f"v_min_u32 v{t}, 19, v{L}")
        b(f"v_lshlrev_b32 v{t}, 20, v{t}")
        b(f"global_load_dword v{pd+5}, v{t}, s[34:35] sc1", 'nocount')
        b(f"v_and_b32 v{t}, 3, v{L}")
        b(f"v_lshlrev_b32 v{t}, 20, v{t}")
        b(f"global_load_dword v{pd+6}, v{t}, s[30:31]", 'nocount')
        b("L_k1_tlb_done:")
    PF = int(opts.get('pf', 0))
    if PF:
        pd = vU + 28
        b(f"s_cmp_eq_u32 s{sWm}, 0")
        b("s_cbranch_scc0 L_k1_pf_1")
        b(f"v_lshrrev_b32 v{t}, 3, v{L}")
        b(f"s_lshl_b32 s{sT2}, s2, 3")
        b(f"v_add_u32 v{t}, s{sT2}, v{t}")
        b(f"v_lshlrev_b32 v{t}, 10, v{t}")
        b(f"v_and_b32 v{t+1}, 7, v{L}")
        b(f"v_max_u32 v{t+1}, 3, v{t+1}")
        b(f"v_lshl_add_u32 v{t}, v{t+1}, 7, v{t}")
        b(f"global_load_dword v{pd}, v{t}, s[4:5]", 'nocount')
        b("L_k1_pf_1:")
        b(f"s_cmp_eq_u32 s{sWm}, 1")
        b("s_cbranch_scc0 L_k1_pf_2")
        b(f"v_bfe_u32 v{t}, v{L}, 3, 1")
        b(f"s_lshl_b32 s{sT2}, s2, 1")
        b(f"v_add_u32 v{t}, s{sT2}, v{t}")
        b(f"v_lshlrev_b32 v{t}, 10, v{t}")
        b(f"v_and_b32 v{t+1}, 7, v{L}")
        b(f"v_max_u32 v{t+1}, 3, v{t+1}")
        b(f"v_lshl_add_u32 v{t}, v{t+1}, 7, v{t}")
        b(f"global_load_dword v{pd}, v{t}, s[10:11]", 'nocount')
        b(f"global_load_dword v{pd+1}, v{t}, s[12:13]", 'nocount')
        b("L_k1_pf_2:")
        b(f"s_cmp_eq_u32 s{sWm}, 2")
        b("s_cbranch_scc0 L_k1_pf_done")
        b(f"v_lshrrev_b32 v{t}, 5, v{L}")
        b(f"s_lshl_b32 s{sT2}, s2, 1")
        b(f"v_add_u32 v{t}, s{sT2}, v{t}")
        b(f"v_mul_u32_u24 v{t}, 3584, v{t}")
        b(f"v_and_b32 v{t+1}, 31, v{L}")
        b(f"v_min_u32 v{t+1}, 27, v{t+1}")
        b(f"v_lshl_add_u32 v{t}, v{t+1}, 7, v{t}")
        b(f"global_load_dword v{pd}, v{t}, s[24:25]", 'nocount')
        b("L_k1_pf_done:")
    b(f"v_and_b32 v{t}, 31, v{L}")
    b(f"v_lshrrev_b32 v{t+1}, 5, v{L}")
    b(f"v_bfe_u32 v{t+2}, v{L}, 1, 3")
    b(f"v_xor_b32 v{t+2}, v{t+1}, v{t+2}")
    b(f"v_lshlrev_b32 v{t+1}, 7, v{t}")
    b(f"v_add_u32 v{t+1}, s{sLdsX}, v{t+1}")
    b(f"v_lshrrev_b32 v{t+3}, 3, v{t}")
    b(f"v_lshlrev_b32 v{t+3}, 11, v{t+3}")
    b(f"v_and_b32 v{t}, 7, v{t}")
    b(f"v_lshl_add_u32 v{t}, v{t}, 7, v{t+3}")
    b(f"v_add_u32 v{t}, 16384, v{t}")
    for k in range(4):
        b(f"v_xor_b32 v{t+3}, {2*k}, v{t+2}")
        b(f"v_lshl_add_u32 v{gPX+k}, v{t+3}, 4, v{t+1}")
        b(f"v_lshl_add_u32 v{gPB+k}, v{t+3}, 4, v{t}")
    return b

def k1_params():
    b = F()
    lre, lim, ldt = vP+8, vP+9, vP+10
    va, vang, t0 = vP, vP+1, vP+2
    b(f"v_lshlrev_b32 v{lre}, 16, v{lre}")
    b(f"v_lshlrev_b32 v{lim}, 16, v{lim}")
    b(f"v_lshlrev_b32 v{ldt}, 16, v{ldt}")
    b(f"v_mul_f32 v{ldt}, {LOG2E:#x}, v{ldt}")
    b(f"v_exp_f32 v{ldt}, v{ldt}")
    b(f"v_cvt_pk_bf16_f32 v{ldt}, v{ldt}, v{ldt}")
    b(f"v_lshlrev_b32 v{ldt}, 16, v{ldt}")
    b(f"v_mul_f32 v{va}, v{ldt}, v{lre}")
    b(f"v_mul_f32 v{vang}, v{ldt}, v{lim}")
    b(f"v_mul_f32 v{va}, {LOG2E:#x}, v{va}")
    b(f"v_mul_f32 v{vang}, {INV2PI:#x}, v{vang}")
    cexp(b, vL, "1.0", va, vang, t0)
    for dst, cst in ((vL16, 0x41800000), (vL32, 0x42000000), (vL128, 0x43000000), (vL256, 0x43800000)):
        b(f"v_mov_b32 v{t0+3}, {cst:#x}")
        cexp(b, dst, f"v{t0+3}", va, vang, t0)
    b(f"v_lshrrev_b32 v{t0+3}, 5, v{vLane}")
    b(f"v_cvt_f32_u32 v{vHfm}, v{t0+3}")
    b(f"v_lshlrev_b32 v{t0+3}, 4, v{t0+3}")
    b(f"v_cvt_f32_u32 v{t0+3}, v{t0+3}")
    cexp(b, vF1, f"v{t0+3}", va, vang, t0)
    b(f"v_lshrrev_b32 v{t0+3}, 5, v{vLane}")
    b(f"v_lshlrev_b32 v{t0+3}, 4, v{t0+3}")
    b(f"s_lshl_b32 s{sSpin}, s{sWm}, 5")
    b(f"v_add_u32 v{t0+3}, s{sSpin}, v{t0+3}")
    b(f"v_cvt_f32_u32 v{t0+3}, v{t0+3}")
    cexp(b, vG, f"v{t0+3}", va, vang, t0)
    b(f"v_add_f32 v{t0}, -1.0, v{vL}")
    b(f"v_mul_f32 v{t0+1}, v{lre}, v{lre}")
    b(f"v_fma_f32 v{t0+1}, v{lim}, v{lim}, v{t0+1}")
    b(f"v_rcp_f32 v{t0+1}, v{t0+1}")
    b(f"v_mul_f32 v{vC2}, v{t0}, v{lre}")
    b(f"v_fma_f32 v{vC2}, v{vL+1}, v{lim}, v{vC2}")
    b(f"v_mul_f32 v{vC2+1}, v{vL+1}, v{lre}")
    b(f"v_fma_f32 v{vC2+1}, -v{t0}, v{lim}, v{vC2+1}")
    b(f"v_add_f32 v{t0+1}, v{t0+1}, v{t0+1}")
    b(f"v_mul_f32 v{vC2}, v{vC2}, v{t0+1}")
    b(f"v_mul_f32 v{vC2+1}, v{vC2+1}, v{t0+1}")
    return b

def k1_setup_common():
    b = F(); t = vP + 12; L = vLane
    for k, m in ((1, sM1), (2, sM2), (3, sM3)):
        g = B()
        g(f"s_cmp_ge_u32 s{sWm}, {k}")
        g(f"s_cselect_b64 {s(m,2)}, -1, 0")
        b.group(g)
    b(f"v_lshlrev_b32 v{vL16o}, 4, v{L}")
    b(f"v_and_b32 v{t}, 31, v{L}")
    b(f"v_lshlrev_b32 v{t}, 4, v{t}")
    b(f"s_lshl_b32 s{sK0}, s{sS}, 9")
    b(f"s_add_u32 s{sK0}, s{sK0}, {E_OFF}")
    b(f"v_add_u32 v{vLBa}, s{sK0}, v{t}")
    b(f"v_and_b32 v{t}, 31, v{L}")
    b(f"v_mul_u32_u24 v{t}, 80, v{t}")
    b(f"v_lshrrev_b32 v{t+1}, 5, v{L}")
    b(f"v_lshl_add_u32 v{t}, v{t+1}, 5, v{t}")
    b(f"s_mul_i32 s{sK0}, s{sWm}, 5120")
    b(f"s_add_u32 s{sK0}, s{sK0}, {SCR}")
    b(f"v_add_u32 v{vImgW}, s{sK0}, v{t}")
    b(f"v_lshrrev_b32 v{t+1}, 5, v{L}")
    b(f"v_lshlrev_b32 v{t+1}, 3, v{t+1}")
    b(f"v_bfe_u32 v{t+2}, v{L}, 2, 2")
    b(f"v_add_u32 v{t+1}, v{t+1}, v{t+2}")
    b(f"v_mul_u32_u24 v{t+1}, 80, v{t+1}")
    b(f"v_and_b32 v{t+2}, 1, v{L}")
    b(f"v_lshlrev_b32 v{t+2}, 5, v{t+2}")
    b(f"v_bfe_u32 v{t+3}, v{L}, 4, 1")
    b(f"v_lshlrev_b32 v{t+3}, 4, v{t+3}")
    b(f"v_add3_u32 v{t+1}, v{t+1}, v{t+2}, v{t+3}")
    b(f"v_bfe_u32 v{t+2}, v{L}, 1, 1")
    b(f"v_lshlrev_b32 v{t+2}, 3, v{t+2}")
    b(f"v_add3_u32 v{vImgR}, v{t+1}, v{t+2}, s{sK0}")
    return b

def k1_gjob_all(b):
    L = vLane
    xs0, gs, gu, t, w = 32, 112, 16, 120, 96
    b(f"v_and_b32 v{t}, 31, v{L}")
    b(f"v_lshlrev_b32 v{t}, 4, v{t}")
    b(f"global_load_dwordx4 {v(gs,4)}, v{t}, s[28:29]")
    b(f"global_load_dwordx4 {v(gs+4,4)}, v{t}, s[28:29] offset:512")
    b(f"v_lshrrev_b32 v{t+1}, 5, v{L}")
    b(f"s_lshl_b32 s{sT1}, s{sT0}, 4")
    b(f"v_add_u32 v{t+1}, s{sT1}, v{t+1}")
    b(f"v_lshlrev_b32 v{t+2}, 3, v{t+1}")
    b(f"v_add_u32 v{t+2}, {G_OFF}, v{t+2}")
    b(f"v_lshlrev_b32 v{t+1}, 10, v{t+1}")
    b(f"v_add_u32 v{t+1}, v{t+1}, v{t}")
    for p in range(8):
        r = xs0 + p * 8
        if p: b(f"v_add_u32 v{t+1}, 2048, v{t+1}")
        b(f"global_load_dwordx4 {v(r,4)}, v{t+1}, s[4:5]")
        b(f"global_load_dwordx4 {v(r+4,4)}, v{t+1}, s[4:5] offset:512")
    for _ in range(5 if int(opts.get('cearly', 1)) else 4): b("s_barrier")
    for k in range(8):
        b(f"v_lshlrev_b32 v{gu+2*k}, 16, v{gs+k}")
        b(f"v_and_b32 v{gu+2*k+1}, 0xffff0000, v{gs+k}")
    b(f"v_and_b32 v{t+3}, 31, v{L}")
    for p in range(8):
        xs = xs0 + p * 8
        acc = w
        for k in range(8):
            a0 = w + 2 + 2 * (k % 4)
            b(f"v_lshlrev_b32 v{a0}, 16, v{xs+k}")
            b(f"v_and_b32 v{a0+1}, 0xffff0000, v{xs+k}")
            b(f"v_pk_mul_f32 {v(a0,2)}, {v(a0,2)}, {v(gu+2*k,2)}")
            b(f"v_cvt_pk_bf16_f32 v{a0}, v{a0}, v{a0+1}")
            b(f"v_and_b32 v{a0+1}, 0xffff0000, v{a0}")
            b(f"v_lshlrev_b32 v{a0}, 16, v{a0}")
            if k == 0:
                b(f"v_add_f32 v{acc}, v{a0}, v{a0+1}")
            else:
                b(f"v_add_f32 v{a0}, v{a0}, v{a0+1}")
                b(f"v_add_f32 v{acc}, v{acc}, v{a0}")
        for r in (8, 4, 2, 1):
            b(f"v_add_f32_dpp v{acc}, v{acc}, v{acc} row_ror:{r} row_mask:0xf bank_mask:0xf")
        b(f"v_mov_b32 v{acc+1}, v{acc}")
        b(f"v_permlane16_swap_b32 v{acc}, v{acc+1}")
        b(f"v_add_f32 v{acc}, v{acc}, v{acc+1}")
        b(f"v_cvt_pk_bf16_f32 v{acc}, v{acc}, v{acc}")
        b(f"v_lshlrev_b32 v{acc}, 16, v{acc}")
        b(f"v_mul_f32 v{acc}, {LOG2E ^ 0x80000000:#x}, v{acc}")
        b(f"v_exp_f32 v{acc}, v{acc}")
        b(f"v_add_f32 v{acc}, 1.0, v{acc}")
        b(f"v_rcp_f32 v{acc}, v{acc}")
        b(f"v_cvt_pk_bf16_f32 v{acc}, v{acc}, v{acc}")
        d = xs
        b(f"v_lshlrev_b32 v{d}, 16, v{acc}")
        b(f"v_sub_f32 v{d+1}, 1.0, v{d}")
        b(f"v_cvt_pk_bf16_f32 v{d+1}, v{d+1}, v{d+1}")
        b(f"v_lshlrev_b32 v{d+1}, 16, v{d+1}")
    b(f"v_cmp_eq_u32 vcc, 0, v{t+3}")
    b(f"s_and_saveexec_b64 {s(sEX,2)}, vcc")
    for p in range(8):
        b(f"global_store_dwordx2 v{t+2}, {v(xs0+8*p,2)}, s[34:35] offset:{16*p} sc0 sc1")
    b(f"s_mov_b64 exec, {s(sEX,2)}")

def k1_nonce():
    b = F()
    t = vU + 26
    b(f"v_add_u32 v{t}, 1, v{t}")
    b(f"v_or_b32 v{t+1}, 1, v{t+1}")
    b(f"v_mov_b32 v{t+2}, {NONCE_OFF}")
    b(f"v_mov_b32 v{t+3}, 0")
    g = B()
    g(f"s_or_b32 s{sSpin}, s2, s{sWm}")
    g(f"s_cmp_lg_u32 s{sSpin}, 0")
    g("s_cbranch_scc1 L_k1_nononce")
    g(f"global_store_dwordx2 v{t+2}, {v(t,2)}, s[34:35] sc0 sc1", 'nocount')
    g(f"global_store_dwordx2 v{t+3}, {v(t,2)}, s[32:33] sc0 sc1", 'nocount')
    g("L_k1_nononce:")
    b.group(g)
    return b

def k1_S():
    b = k1_S_setup()
    if int(opts.get('sprio', 1)): b("s_setprio 2")
    m = B()
    for i in range(8):
        m("s_waitcnt lgkmcnt(0)")
        m("s_barrier")
        po = (i % NSLOT) * SLOT
        hi = po >= 65536 - 1024
        if hi:
            for k in range(4):
                m(f"v_add_u32 v{vTmp+k}, 0x10000, v{gPX+k}")
        for k in range(4):
            if hi: m(f"ds_read_b128 {a(aSX+4*k,4)}, v{vTmp+k} offset:{po - 65536}")
            else: m(f"ds_read_b128 {a(aSX+4*k,4)}, v{gPX+k} offset:{po}")
        if hi:
            for k in range(4):
                m(f"v_add_u32 v{vTmp+k}, 0x10000, v{gPB+k}")
        for k in range(4):
            for mm in range(2):
                if hi: m(f"ds_read_b128 {a(aSB+8*k+4*mm,4)}, v{vTmp+k} offset:{po - 65536 + mm*1024}")
                else: m(f"ds_read_b128 {a(aSB+8*k+4*mm,4)}, v{gPB+k} offset:{po + mm*1024}")
        for k in range(4):
            for mm, acc in ((0, aRE), (1, aIM)):
                c = v(acc, 16) if (i, k) != (0, 0) else "0"
                m(f"v_mfma_f32_32x32x16_bf16 {v(acc,16)}, {a(aSX+4*k,4)}, {a(aSB+8*k+4*mm,4)}, {c}")
    f = F()
    if not int(opts.get('nearly', 0)): f.ext(k1_nonce())
    if int(opts.get('pfw', 0)):
        g = B(); t = vP + 12
        g(f"s_cmp_eq_u32 s{sWm}, {int(opts.get('pfww', 1))}")
        g("s_cbranch_scc0 L_k1_pfw_done")
        g(f"v_lshrrev_b32 v{t}, 5, v{vLane}")
        g(f"s_lshl_b32 s{sSpin}, s2, 1")
        g(f"v_add_u32 v{t}, s{sSpin}, v{t}")
        g(f"v_mul_u32_u24 v{t}, 3584, v{t}")
        g(f"v_and_b32 v{t+1}, 31, v{vLane}")
        g(f"v_min_u32 v{t+1}, 27, v{t+1}")
        g(f"v_lshl_add_u32 v{t}, v{t+1}, 7, v{t}")
        g(f"global_load_dword v{vU+9}, v{t}, s[24:25]", 'nocount')
        g("L_k1_pfw_done:")
        f.group(g)
    f.ext(k1_params())
    f.ext(k1_setup_common())
    g = B()
    g(f"v_mov_b32 v{vTmp}, 0")
    g(f"global_load_dwordx2 {v(vNon,2)}, v{vTmp}, s[32:33] sc1")
    f.group(g)
    b.ext(merge(m.ops, f.ops, per=int(opts.get('per1', 5))))
    b("s_waitcnt vmcnt(0)")
    stamp(b, 2)
    s1 = flat(k1_scan1a().ops)
    cut = [j for j, o in enumerate(s1) if o.kind == 'ds'][0]
    if STAMP >= 2: stamp(b, 8)
    if int(opts.get('hb8', 1)):
        b.ext(s1[:cut])
        if STAMP >= 2: stamp(b, 9)
        b("s_barrier")
        b.ext(s1[cut:])
    else:
        b("s_barrier")
        b.ext(s1)
    if STAMP >= 2: stamp(b, 11)
    b("s_barrier")
    if STAMP >= 2: stamp(b, 12)
    b.ext(flat(k1_scan1b().ops))
    if STAMP >= 2: stamp(b, 13)
    b.ext(k1_publish())
    stamp(b, 3)
    b("s_barrier")
    b.ext(p2_S_csetup())
    if opts.get('lbfirst', '0') == '1':
        b("s_barrier")
        stamp(b, 4)
        b.ext(k1_lookback())
        stamp(b, 5)
        b.ext(k1_final())
        b.ext(p2_S_cdma())
        b.ext(p2_S_creads())
    elif WEARLY:
        assert not ROT2
        b("s_barrier")
        b.ext(p2_S_cdma((0,)))
        b("s_barrier")
        if int(opts.get('lbmid', 0)):
            mid = B()
            mid.ext(p2_S_cdma((1,))); mid.ext(p2_S_creads_m(0)); mid.ext(p2_S_wdma(0))
            stamp(b, 4)
            b.ext(k1_lookback(mid, 16))
        else:
            b.ext(p2_S_cdma((1,)))
            b.ext(p2_S_creads_m(0))
            b.ext(p2_S_wdma(0))
            stamp(b, 4)
            b.ext(k1_lookback())
        stamp(b, 5)
        if int(opts.get('wb2', 0)) == 0:
            if WBN == 2:
                b.ext(p2_S_creads_m(1)); b.ext(p2_S_wdma(1)); b.ext(k1_final())
            else:
                b.ext(k1_final()); b.ext(p2_S_creads_m(1))
        else:
            b.ext(k1_final()); b.ext(p2_S_creads_m(1)); b.ext(p2_S_wdma(1))
        stamp(b, 6)
        return b
    elif CEARLY:
        b("s_barrier")
        b.ext(p2_S_cdma((0,)))
        b("s_barrier")
        if int(opts.get('lbmid', 0)):
            stamp(b, 4)
            b.ext(k1_lookback(p2_S_cdma((1,)), 8))
        else:
            b.ext(p2_S_cdma((1,)))
            stamp(b, 4)
            b.ext(k1_lookback())
        stamp(b, 5)
        b.ext(k1_final())
        b.ext(p2_S_creads())
        stamp(b, 6)
        return b
    else:
        b("s_barrier")
        b.ext(p2_S_cdma())
        stamp(b, 4)
        b.ext(k1_lookback())
        stamp(b, 5)
        b.ext(k1_final())
        b.ext(p2_S_creads())
    stamp(b, 6)
    return b

def cfma_sr(b, d, l, h, ure, uim, tmp):
    b(f"v_fma_f32 v{tmp}, v{l}, v{h}, v{ure}")
    b(f"v_fma_f32 v{tmp+1}, v{l}, v{h+1}, v{uim}")
    b(f"v_fma_f32 v{d}, -v{l+1}, v{h+1}, v{tmp}")
    b(f"v_fma_f32 v{d+1}, v{l+1}, v{h}, v{tmp+1}")

def k1_scan1a():
    b = F()
    tmp = vTmp
    R = lambda t: aRE + reg_of_t(t)
    I = lambda t: aIM + reg_of_t(t)
    b(f"v_mov_b32 v{vQ}, v{R(0)}\nv_mov_b32 v{vQ+1}, v{I(0)}")
    cur = vQ
    for t in range(1, 16):
        nxt = vQ if cur == vW_ else vW_
        cfma_sr(b, nxt, vL, cur, R(t), I(t), tmp)
        cur = nxt
    assert cur == vW_
    b(f"v_mov_b32 v{vPre}, v{cur}\nv_mov_b32 v{vPre+1}, v{cur+1}")
    b(f"v_mov_b32 v{vQ}, v{cur}\nv_mov_b32 v{vQ+1}, v{cur+1}")
    b(f"v_permlane32_swap_b32 v{vPre}, v{vQ}")
    b(f"v_permlane32_swap_b32 v{vPre+1}, v{vQ+1}")
    cfma_s(b, vW_, vL16, vPre, vQ, tmp)
    b(f"v_mul_f32 v{vPre}, v{vPre}, v{vHfm}\nv_mul_f32 v{vPre+1}, v{vPre+1}, v{vHfm}")
    t = vP
    b(f"v_and_b32 v{t+14}, 31, v{vLane}")
    b(f"v_lshlrev_b32 v{t+14}, 3, v{t+14}")
    b(f"v_add_u32 v{t+14}, {SCR}, v{t+14}")
    b(f"s_lshl_b32 s{sK0}, s{sWm}, 8")
    b(f"v_add_u32 v{t+15}, s{sK0}, v{t+14}")
    b(f"ds_write_b64 v{t+15}, {v(vW_,2)} offset:{SC}", "Wx")
    b.wait('lg', "Wx")
    return b

def k1_scan1b():
    b = F()
    t = vP; tmp = vTmp
    for w in range(4):
        b(f"ds_read_b64 {v(t+2*w,2)}, v{t+14} offset:{SC + 256*w}")
    W0, W1, W2, W3 = t, t+2, t+4, t+6
    Q2, Q3 = t+8, t+10
    cfma_s(b, Q2, vL32, W0, W1, tmp)
    cfma_s(b, Q3, vL32, Q2, W2, tmp)
    E = t + 12
    cfma_s(b, E, vL32, Q3, W3, tmp)
    for h in range(2):
        b(f"v_cndmask_b32 v{vQ+h}, 0, v{W0+h}, {s(sM1,2)}")
        b(f"v_cndmask_b32 v{vQ+h}, v{vQ+h}, v{Q2+h}, {s(sM2,2)}")
        b(f"v_cndmask_b32 v{vQ+h}, v{vQ+h}, v{Q3+h}, {s(sM3,2)}")
    cfma_s(b, vK, vF1, vQ, vPre, tmp)
    return b

def k1_publish():
    t = vP; E = t + 12; tmp = vTmp
    g = B()
    g(f"s_lshl_b32 s{sK0}, s{sR}, 13")
    g(f"v_add_u32 v{tmp}, s{sK0}, v{vLBa}")
    g(f"v_lshrrev_b32 v{tmp+1}, 3, v{vLane}")
    g(f"v_cmp_ne_u32 vcc, 0, v{vNon+1}")
    g("s_cbranch_vccnz L_k1_nonce_ok")
    g(f"s_mov_b32 s{sSpin}, 0")
    g("L_k1_nonce_retry:")
    g(f"v_mov_b32 v{tmp+2}, 0")
    g(f"global_load_dwordx2 {v(vNon,2)}, v{tmp+2}, s[32:33] sc1", 'nocount')
    g("s_waitcnt vmcnt(0)", 'nocount')
    g(f"s_add_u32 s{sSpin}, s{sSpin}, 1")
    g(f"s_cmp_gt_u32 s{sSpin}, 40000")
    g("s_cbranch_scc1 L_k1_nonce_ok")
    g(f"v_cmp_ne_u32 vcc, 0, v{vNon+1}")
    g("s_cbranch_vccz L_k1_nonce_retry")
    g("L_k1_nonce_ok:")
    g(f"v_mov_b32 v{E+2}, v{vNon}\nv_mov_b32 v{E+3}, v{vNon+1}")
    g(f"v_cmp_eq_u32 vcc, s{sWm}, v{tmp+1}")
    g(f"s_and_saveexec_b64 {s(sEX,2)}, vcc")
    g(f"global_store_dwordx4 v{tmp}, {v(E,4)}, s[34:35] sc0 sc1")
    g(f"s_mov_b64 exec, {s(sEX,2)}")
    return g

def k1_lookback(mid=None, nmid=0):
    b = B(); tmp = vTmp; t = vP
    H = vW_
    def loads(tok):
        b(f"s_sub_u32 s{sK0}, s{sR}, 1")
        b(f"s_lshl_b32 s{sK0}, s{sK0}, 13")
        b(f"v_lshrrev_b32 v{t}, 5, v{vLane}")
        b(f"v_lshlrev_b32 v{t}, 13, v{t}")
        b(f"v_sub_u32 v{t}, s{sK0}, v{t}")
        b(f"v_add_u32 v{t}, v{vLBa}, v{t}")
        for mm in range(8):
            if mm: b(f"v_subrev_u32 v{t}, 16384, v{t}")
            b(f"v_max_i32 v{t+1}, v{t}, v{vLBa}")
            b(f"global_load_dwordx4 {v(vU+4*mm,4)}, v{t+1}, s[34:35] sc1", tok)
    if mid is not None:
        b(f"s_mov_b32 s{sSpin}, 0")
        loads('nocount')
        b.ext(mid)
        b(f"s_waitcnt vmcnt({nmid})", 'nocount')
        b(f"s_cmp_eq_u32 s{sR}, 0")
        b("s_cbranch_scc1 L_k1_lb_zero")
        b("s_branch L_k1_lb_first")
        b("L_k1_lb_again:")
        loads('nocount')
        b("s_waitcnt vmcnt(0)", 'nocount')
        b("L_k1_lb_first:")
    else:
        b(f"s_cmp_eq_u32 s{sR}, 0")
        b("s_cbranch_scc1 L_k1_lb_zero")
        b(f"s_mov_b32 s{sSpin}, 0")
        b("L_k1_lb_again:")
        loads('nocount')
        b("s_waitcnt vmcnt(0)", 'nocount')
    b(f"s_mov_b64 {s(sEX,2)}, -1")
    for mm in range(8):
        b(f"s_cmp_le_u32 s{sR}, {2*mm}")
        b("s_cbranch_scc1 L_k1_lb_checked")
        b(f"s_cmp_ge_u32 s{sR}, {2*mm+2}")
        b(f"s_cselect_b32 s{sT1}, 0, -1")
        b(f"v_cmp_eq_u32 vcc, v{vU+4*mm+2}, v{vNon}")
        b(f"v_cmp_eq_u32 {s(sT2,2)}, v{vU+4*mm+3}, v{vNon+1}")
        b(f"s_and_b64 vcc, vcc, {s(sT2,2)}")
        b(f"s_or_b32 vcc_hi, vcc_hi, s{sT1}")
        b(f"s_and_b64 {s(sEX,2)}, {s(sEX,2)}, vcc")
    b("L_k1_lb_checked:")
    b(f"s_cmp_eq_u64 {s(sEX,2)}, -1")
    b("s_cbranch_scc1 L_k1_lb_ok")
    b(f"s_add_u32 s{sSpin}, s{sSpin}, 1")
    b(f"s_cmp_gt_u32 s{sSpin}, 40000")
    b("s_cbranch_scc1 L_k1_lb_ok")
    b(f"s_sleep {int(opts.get('lbsleep', 4))}")
    b("s_branch L_k1_lb_again")
    b("L_k1_lb_ok:")
    b(f"v_mov_b32 v{H}, 0\nv_mov_b32 v{H+1}, 0")
    for mm in range(7, -1, -1):
        b(f"s_cmp_le_u32 s{sR}, {2*mm}")
        b(f"s_cbranch_scc1 L_k1_lb_h{mm}")
        b(f"s_cmp_ge_u32 s{sR}, {2*mm+2}")
        b(f"s_cselect_b32 s{sT3}, -1, 0")
        b(f"s_mov_b32 s{sT2}, -1")
        b(f"v_cndmask_b32 v{vU+4*mm}, 0, v{vU+4*mm}, {s(sT2,2)}")
        b(f"v_cndmask_b32 v{vU+4*mm+1}, 0, v{vU+4*mm+1}, {s(sT2,2)}")
        b(f"v_fma_f32 v{tmp}, v{vL256}, v{H}, v{vU+4*mm}")
        b(f"v_fma_f32 v{tmp+1}, v{vL256}, v{H+1}, v{vU+4*mm+1}")
        b(f"v_fma_f32 v{tmp}, -v{vL256+1}, v{H+1}, v{tmp}")
        b(f"v_fma_f32 v{H+1}, v{vL256+1}, v{H}, v{tmp+1}")
        b(f"v_mov_b32 v{H}, v{tmp}")
        b(f"L_k1_lb_h{mm}:")
    b(f"v_mov_b32 v{vPre}, v{H}\nv_mov_b32 v{vPre+1}, v{H+1}")
    b(f"v_permlane32_swap_b32 v{H}, v{vPre}")
    b(f"v_permlane32_swap_b32 v{H+1}, v{vPre+1}")
    cfma_s(b, t, vL128, vPre, H, tmp)
    cfma_s(b, vQ, vG, t, vK, tmp)
    b("s_branch L_k1_lb_done")
    b("L_k1_lb_zero:")
    b(f"v_mov_b32 v{vQ}, v{vK}\nv_mov_b32 v{vQ+1}, v{vK+1}")
    b("L_k1_lb_done:")
    return b

def k1_final():
    b = B()
    tmp = vTmp
    prev = vQ
    for t in range(16):
        r = reg_of_t(t)
        u = vU + 2 * r
        cfma_sr(b, u, vL, prev, aRE + r, aIM + r, tmp)
        prev = u
    for r in range(16):
        u = vU + 2 * r
        tp = vP + 2 * (r % 4)
        b(f"v_mul_f32 v{tp}, v{vC2}, v{u}")
        b(f"v_mul_f32 v{tp+1}, v{vC2+1}, v{u}")
        b(f"v_fma_f32 v{u}, -v{vC2+1}, v{u+1}, v{tp}")
        b(f"v_fma_f32 v{u+1}, v{vC2}, v{u+1}, v{tp+1}")
    for k in range(8):
        b(f"v_cvt_pk_bf16_f32 v{aRE+k}, v{vU+4*k}, v{vU+4*k+2}")
    for h in range(2):
        b(f"ds_write_b128 v{vImgW}, {v(aRE+4*h,4)} offset:{IMG + h*16}", "img")
    for k in range(8):
        b(f"v_cvt_pk_bf16_f32 v{aRE+8+k}, -v{vU+4*k+1}, -v{vU+4*k+3}")
    for h in range(2):
        b(f"ds_write_b128 v{vImgW}, {v(aRE+8+4*h,4)} offset:{IMG + 2560 + h*16}", "img")
    b(f"s_lshl_b32 s{sT2}, s{sS}, 12")
    b(f"s_add_u32 s{sT1}, s{sHFb}, s{sT2}")
    b.wait('lg', "img")
    for m in range(2):
        for kk in range(2):
            r = aIM + (2*m + kk) * 4
            for rd in range(2):
                b(f"ds_read_b64_tr_b16 {v(r+2*rd,2)}, v{vImgR} offset:{IMG + (m*32 + 16*kk + 4*rd)*80}")
    for m in range(2):
        for kk in range(2):
            r = aIM + (2*m + kk) * 4
            b(f"s_add_u32 s{sT2}, s{sT1}, {(2*m+kk)*1024}")
            b(f"buffer_store_dwordx4 {v(r,4)}, v{vL16o}, {s(sHF,4)}, s{sT2} offen {STF}")
    return b


pA, pC1, pC2 = 36, 40, 44
pH, pN, pK0, pLw, pOff = 72, 73, 74, 75, 76
pNib = 84
CST = 98304
CEARLY = int(opts.get('cearly', 1))
CM = 32768 if CEARLY else 8192
ROT2 = int(opts.get('rot2', 0))
pKS = 48
WEARLY = int(opts.get('wearly', 1)) and CEARLY
WBN = int(opts.get('wbn', 2))
pWS, pOffW = 56, 77
vWsa, vWsb = 8, 9
vCe, vCo, vPp = 2, 3, 4
vH0g, vH1g, vH0k, vH1k = 2, 3, 4, 5
vTau, vSg, vSk = 8, 10, 12
vWrq = 16
PITCH = 256
HFL = opts.get('hfl', 'sc1').replace('none', '')

def p2_ids(b):
    b(f"s_lshr_b32 s{pH}, s{sS}, 3")
    b(f"s_and_b32 s{pN}, s{sS}, 7")

def p2_S_csetup():
    b = B(); L = vLane; t = vP
    p2_ids(b)
    srd(b, pC1, 14, 512*1024)
    srd(b, pC2, 16, 512*1024)
    b(f"v_and_b32 v{t}, 7, v{L}")
    b(f"v_lshrrev_b32 v{t+1}, 4, v{L}")
    b(f"v_xor_b32 v{t}, v{t}, v{t+1}")
    b(f"v_lshlrev_b32 v{t}, 4, v{t}")
    b(f"v_lshrrev_b32 v{t+1}, 3, v{L}")
    b(f"v_lshlrev_b32 v{t+1}, 10, v{t+1}")
    b(f"v_add_u32 v{vCe}, v{t}, v{t+1}")
    b(f"v_xor_b32 v{vCo}, 64, v{vCe}")
    b(f"s_lshl_b32 s{pOff}, s{pN}, 16")
    b(f"s_lshl_b32 s{sT0}, s{pH}, 9")
    b(f"s_add_u32 s{pOff}, s{pOff}, s{sT0}")
    b(f"s_lshl_b32 s{sT0}, s{sWm}, 7")
    b(f"s_add_u32 s{pOff}, s{pOff}, s{sT0}")
    b(f"s_lshl_b32 s{pLw}, s{sWm}, {13 if CEARLY else 14}")
    b(f"s_add_u32 s{pLw}, s{pLw}, {CST}")
    b(f"v_and_b32 v{t}, 31, v{L}")
    b(f"v_lshlrev_b32 v{t}, 7, v{t}")
    b(f"v_add_u32 v{t}, s{pLw}, v{t}")
    b(f"v_lshrrev_b32 v{t+1}, 5, v{L}")
    b(f"v_bfe_u32 v{t+2}, v{L}, 1, 3")
    b(f"v_xor_b32 v{t+2}, v{t+1}, v{t+2}")
    for k in range(4):
        b(f"v_xor_b32 v{t+1}, {2*k}, v{t+2}")
        b(f"v_lshl_add_u32 v{vPp+k}, v{t+1}, 4, v{t}")
    if WEARLY:
        srd(b, pWS, 26, 1792*1024)
        b(f"v_bfe_u32 v{t}, v{L}, 4, 1")
        b(f"v_lshlrev_b32 v{t}, 2, v{t}")
        b(f"v_and_b32 v{t+1}, 7, v{L}")
        b(f"v_xor_b32 v{t}, v{t}, v{t+1}")
        b(f"v_lshlrev_b32 v{t}, 4, v{t}")
        b(f"v_lshrrev_b32 v{t+1}, 3, v{L}")
        b(f"v_lshlrev_b32 v{t+1}, 10, v{t+1}")
        b(f"v_add_u32 v{vWsa}, v{t}, v{t+1}")
        b(f"v_add_u32 v{vWsb}, {8192 - 1024}, v{vWsa}")
        b(f"s_lshl_b32 s{sT0}, s{pH}, 2")
        b(f"s_add_u32 s{sT0}, s{sT0}, s{sWm}")
        b(f"s_mul_i32 s{pOffW}, s{sT0}, {14*16*1024}")
        b(f"s_lshl_b32 s{sT0}, s{pN}, 7")
        b(f"s_add_u32 s{pOffW}, s{pOffW}, s{sT0}")
    return b

def p2_S_wdma(batch):
    b = B()
    for i in range(4 * batch, 4 * batch + 4):
        b(f"s_add_u32 m0, s{pLw}, {batch*CM + (i % 4)*2048}")
        b(f"s_add_u32 s{sT0}, s{pOffW}, {i*16*1024}")
        b(f"buffer_load_dwordx4 v{vWsa}, {s(pWS,4)}, s{sT0} offen lds", "wst")
        b(f"buffer_load_dwordx4 v{vWsb}, {s(pWS,4)}, s{sT0} offen offset:1024 lds", "wst")
    return b

def p2_S_creads_m(m):
    b = B()
    b.wait('vm', f"cst{m}")
    for j in range(8):
        if ((j >> 1) & 1) != m: continue
        ksp = 2 * (j >> 2) + (j & 1)
        for aa in range(2):
            b(f"ds_read_b128 {a(8*j+4*aa,4)}, v{vPp+ksp} offset:{m*CM + aa*4096}", f"crd{m}")
    b.wait('lg', f"crd{m}")
    return b

def p2_S_cdma(ms=(0, 1)):
    b = B()
    for m in ms:
        for aa in range(8):
            b(f"s_add_u32 m0, s{pLw}, {m*CM + aa*1024}")
            b(f"s_add_u32 s{sT0}, s{pOff}, {aa*8192}")
            b(f"buffer_load_dwordx4 v{vCe if aa % 2 == 0 else vCo}, {s(pC1 if m == 0 else pC2,4)}, s{sT0} offen lds", f"cst{m}" if WEARLY else "cst")
    return b

def p2_S_creads():
    b = B()
    if not ROT2:
        b.wait('vm', "cst")
        for j in range(8):
            m = (j >> 1) & 1; ksp = 2 * (j >> 2) + (j & 1)
            for aa in range(2):
                b(f"ds_read_b128 {a(8*j+4*aa,4)}, v{vPp+ksp} offset:{m*CM + aa*4096}")
        for j in range(8): b(f"s_mov_b32 s{pKS+j}, {j*1024}")
        return b
    t = vP; L = vLane
    b(f"v_and_b32 v{t}, 31, v{L}")
    b(f"v_lshlrev_b32 v{t}, 7, v{t}")
    b(f"v_add_u32 v{t}, s{pLw}, v{t}")
    b(f"v_lshrrev_b32 v{t+1}, 5, v{L}")
    b(f"v_bfe_u32 v{t+2}, v{L}, 1, 3")
    b(f"v_xor_b32 v{t+1}, v{t+1}, v{t+2}")
    b.wait('vm', "cst")
    for j in range(8):
        b(f"s_add_u32 s{sT0}, s{pN}, {j}")
        b(f"s_and_b32 s{sT0}, s{sT0}, 7")
        b(f"s_lshl_b32 s{pKS+j}, s{sT0}, 10")
        b(f"s_lshr_b32 s{sT1}, s{sT0}, 2")
        b(f"s_lshl_b32 s{sT1}, s{sT1}, 1")
        b(f"s_and_b32 s{sT2}, s{sT0}, 1")
        b(f"s_add_u32 s{sT1}, s{sT1}, s{sT2}")
        b(f"s_lshl_b32 s{sT1}, s{sT1}, 1")
        b(f"s_bfe_u32 s{sT2}, s{sT0}, 0x10001")
        b(f"s_lshl_b32 s{sT2}, s{sT2}, {15 if CEARLY else 13}")
        tt = t + 4 + (j % 4)
        b(f"v_xor_b32 v{tt}, s{sT1}, v{t+1}")
        b(f"v_lshl_add_u32 v{tt}, v{tt}, 4, v{t}")
        b(f"v_add_u32 v{tt}, s{sT2}, v{tt}")
        for aa in range(2):
            b(f"ds_read_b128 {a(8*j+4*aa,4)}, v{tt} offset:{aa*4096}")
    return b

def p2_common(b, role):
    L = vLane
    srd(b, pA, 34, WS_USED)
    b(f"s_xor_b32 s{sT0}, s{pH}, 1")
    b(f"s_lshl_b32 s{sT0}, s{sT0}, 1")
    b(f"s_lshl_b32 s{sT1}, s{sR}, 2")
    b(f"s_add_u32 s{sT0}, s{sT0}, s{sT1}")
    b(f"s_mul_i32 s{sT0}, s{sT0}, {176*1024}")
    b(f"v_lshlrev_b32 v6, 4, v{L}")
    b(f"v_add_u32 v{vH0g}, s{sT0}, v6")
    b(f"v_add_u32 v{vH1g}, {176*1024}, v{vH0g}")
    b(f"s_lshl_b32 s{sT0}, s{pH}, 2")
    b(f"s_sub_u32 s{sT0}, s{sT0}, 2")
    b(f"s_mul_i32 s{sT0}, s{sT0}, {176*1024}")
    b(f"v_add_u32 v{vH0k}, s{sT0}, v{vH0g}")
    b(f"v_add_u32 v{vH1k}, s{sT0}, v{vH1g}")
    b(f"s_lshl_b32 s{pK0}, s{pH}, 2")
    b(f"s_add_u32 s{pK0}, s{pK0}, s{sWm}")
    if role == 0:
        b(f"s_lshl_b32 s{pK0}, s{pK0}, 13")
    else:
        b(f"s_mul_i32 s{pK0}, s{pK0}, {14*1024}")
        b(f"s_add_u32 s{pK0}, s{pK0}, {64*1024}")

def p2_common2(b, role):
    L = vLane
    b(f"v_bfe_u32 v6, v{L}, 3, 2")
    b(f"v_and_b32 v7, 7, v{L}")
    b(f"v_lshl_add_u32 v{vTau}, v7, 2, v6")
    b(f"s_xor_b32 s{sT0}, s{pH}, 1")
    b(f"s_lshl_b32 s{sT0}, s{sT0}, 6")
    b(f"s_lshl_b32 s{sT1}, s{sR}, 7")
    b(f"s_add_u32 s{sT0}, s{sT0}, s{sT1}")
    b(f"v_add_u32 v6, s{sT0}, v{vTau}")
    b("v_lshlrev_b32 v6, 3, v6")
    b(f"v_add_u32 v6, {G_OFF + 4*role}, v6")
    b(f"global_load_dword v{vSg}, v6, s[34:35] sc1")
    b(f"global_load_dword v{vSg+1}, v6, s[34:35] offset:256 sc1")
    b(f"s_lshl_b32 s{sT0}, s{pH}, 7")
    b(f"s_sub_u32 s{sT0}, s{sT0}, 64")
    b(f"s_lshl_b32 s{sT0}, s{sT0}, 3")
    b(f"v_add_u32 v6, s{sT0}, v6")
    b(f"global_load_dword v{vSk}, v6, s[34:35] sc1")
    b(f"global_load_dword v{vSk+1}, v6, s[34:35] offset:256 sc1")
    b(f"s_lshl_b32 s{sT0}, s{sWm}, 14")
    if role == 0: b(f"s_add_u32 s{sT0}, s{sT0}, {CST}")
    b(f"v_lshlrev_b32 v9, 8, v{vTau}")
    b(f"v_add_u32 v9, s{sT0}, v9")
    b(f"v_lshrrev_b32 v6, 5, v{L}")
    b(f"v_and_b32 v7, 7, v{L}")
    b("v_xor_b32 v6, v6, v7")
    for q in range(4):
        b(f"v_xor_b32 v7, {2*q}, v6")
        b(f"v_lshl_add_u32 v{vWrq+q}, v7, 4, v9")

def p2_rwrite(b, acc, sc, dup=None):
    if dup is not None:
        b(f"v_mov_b32 v{dup}, v{sc}\nv_mov_b32 v{dup+1}, v{sc}\nv_mov_b32 v{dup+2}, v{sc+1}\nv_mov_b32 v{dup+3}, v{sc+1}")
    for aa in range(2):
        for bb in range(2):
            S = acc + (aa*2+bb)*16
            g = sc + bb
            gp = g & ~1; o = g & 1
            if dup is not None:
                for p in range(8):
                    b(f"v_pk_mul_f32 {v(S+2*p,2)}, {v(S+2*p,2)}, {v(dup+2*bb,2)}")
            elif opts.get('rw', 'scalar') == 'pk':
                for p in range(8):
                    b(f"v_pk_mul_f32 {v(S+2*p,2)}, {v(S+2*p,2)}, {v(gp,2)} op_sel:[0,{o}] op_sel_hi:[1,{o}]")
            else:
                for p in range(16):
                    b(f"v_mul_f32 v{S+p}, v{g}, v{S+p}")
            for q in range(4):
                b(f"ds_write_b128 v{vWrq+q}, {v(S+4*q,4)} offset:{bb*32*PITCH + aa*128}", "red")
    b.wait('lg', "red")

def p2_F():
    b = B(); L = vLane
    b("L_p2_F:")
    b("s_waitcnt vmcnt(0) lgkmcnt(0)")
    b("s_barrier")
    if int(opts.get('p2prio', 0)) or int(opts.get('fprio', 3)): b(f"s_setprio {int(opts.get('p2prio', 0))}")
    stamp(b, 7)
    p2_ids(b)
    srd(b, pC1, 26, 1792*1024)
    vWa, vWb, vTp = 6, 7, 20
    t = 24
    b(f"v_bfe_u32 v{t}, v{L}, 4, 1")
    b(f"v_lshlrev_b32 v{t}, 2, v{t}")
    b(f"v_and_b32 v{t+1}, 7, v{L}")
    b(f"v_xor_b32 v{t}, v{t}, v{t+1}")
    b(f"v_lshlrev_b32 v{t}, 4, v{t}")
    b(f"v_lshrrev_b32 v{t+1}, 3, v{L}")
    b(f"v_lshlrev_b32 v{t+1}, 10, v{t+1}")
    b(f"v_add_u32 v{vWa}, v{t}, v{t+1}")
    b(f"v_add_u32 v{vWb}, {8192 - 1024}, v{vWa}")
    b(f"s_lshl_b32 s{sT0}, s{pH}, 2")
    b(f"s_add_u32 s{sT0}, s{sT0}, s{sWm}")
    b(f"s_mul_i32 s{pOff}, s{sT0}, {14*16*1024}")
    b(f"s_lshl_b32 s{sT0}, s{pN}, 7")
    b(f"s_add_u32 s{pOff}, s{pOff}, s{sT0}")
    b(f"s_lshl_b32 s{pLw}, s{sWm}, 14")
    pKF = [48, 49, 50, 51, 52, 53, 54, 55, 77, 78, 79, 80, 81, 82]
    if ROT2:
        b(f"s_mul_i32 s{sT2}, s{pN}, 7")
        b(f"s_lshr_b32 s{sT2}, s{sT2}, 2")
        for i in range(14):
            b(f"s_add_u32 s{pKF[i]}, s{sT2}, {i}")
            b(f"s_cmp_ge_u32 s{pKF[i]}, 14")
            b(f"s_cselect_b32 s{sT3}, 14, 0")
            b(f"s_sub_u32 s{pKF[i]}, s{pKF[i]}, s{sT3}")
            b(f"s_lshl_b32 s{pKF[i]}, s{pKF[i]}, 10")
    else:
        for i in range(14): b(f"s_mov_b32 s{pKF[i]}, {i*1024}")
    NST = 4 * WBN if WEARLY else 0
    def wslot(i): return ((i - NST) % 8) * 2048
    def wdma(i):
        b(f"s_add_u32 m0, s{pLw}, {wslot(i)}")
        b(f"s_lshl_b32 s{sT1}, s{pKF[i]}, 4")
        b(f"s_add_u32 s{sT1}, s{sT1}, s{pOff}")
        b(f"buffer_load_dwordx4 v{vWa}, {s(pC1,4)}, s{sT1} offen lds", f"f{i}")
        b(f"buffer_load_dwordx4 v{vWb}, {s(pC1,4)}, s{sT1} offen offset:1024 lds", f"f{i}")
    NPRE = int(opts.get('npre', 8))
    if WEARLY:
        for i in range(NST, min(NST + 8, 14)): wdma(i)
    else:
        for i in range(min(NPRE, 8)): wdma(i)
    tr_pattern(b, vTp, 4, t)
    if WEARLY:
        b(f"s_lshl_b32 s{sT2}, s{sWm}, 13")
        b(f"s_add_u32 s{sT2}, s{sT2}, {CST}")
        b(f"v_add_u32 v{t+4}, s{sT2}, v{vTp}")
        b(f"v_add_u32 v{t+5}, s{sT2}, v{vTp+1}")
        for i in range(NST):
            for aa in range(2):
                for rd in range(2):
                    b(f"ds_read_b64_tr_b16 {a(8*i+4*aa+2*rd,2)}, v{t+4+aa} offset:{(i // 4)*CM + (i % 4)*2048 + rd*1024}", f"wr{i}")
    b(f"v_add_u32 v{vTp}, s{pLw}, v{vTp}")
    b(f"v_add_u32 v{vTp+1}, s{pLw}, v{vTp+1}")
    b(f"v_mov_b32 v22, v{vWa}\nv_mov_b32 v23, v{vWb}")
    vWa, vWb = 22, 23
    p2_common(b, 1)
    def wreads(i):
        b.wait('vm', f"f{i}")
        for aa in range(2):
            for rd in range(2):
                b(f"ds_read_b64_tr_b16 {a(8*i+4*aa+2*rd,2)}, v{vTp+aa} offset:{wslot(i) + rd*1024}", f"wr{i}")
    NRD = max(0, NPRE - 8)
    HLDS = int(opts.get('hlds', 0)) and WEARLY and WBN == 2
    if WEARLY:
        NRD = NST; NPRE = 14
        if HLDS:
            for i in range(NST, 14): wreads(i)
            NRD = 14
            b(f"v_lshlrev_b32 v28, 4, v{L}")
            b(f"v_add_u32 v22, s{pLw}, v28")
        b.wait('lg', f"wr{NRD-1}")
    for i in range(0 if WEARLY else NRD):
        wreads(i)
        b.wait('lg', f"wr{i}")
        wdma(8 + i)
    stamp(b, 24)
    b("s_barrier")
    stamp(b, 25)
    NSF, D = 14, 7
    def hreg(idx, k):
        sl = idx % D
        return v(24 + sl*8 + 4*k, 4) if sl < 5 else a(112 + (sl-5)*8 + 4*k, 4)
    def hload(idx):
        ps, i = divmod(idx, NSF)
        h0, h1 = (vH0g, vH1g) if ps == 0 else (vH0k, vH1k)
        b(f"s_add_u32 s{sT0}, s{pK0}, s{pKF[i]}")
        b(f"buffer_load_dwordx4 {hreg(idx,0)}, v{h0}, {s(pA,4)}, s{sT0} offen {HFL}")
        b(f"buffer_load_dwordx4 {hreg(idx,1)}, v{h1}, {s(pA,4)}, s{sT0} offen {HFL}")
    def hdma(i):
        b(f"s_add_u32 s{sT0}, s{pK0}, s{pKF[i]}")
        b(f"s_add_u32 m0, s{pLw}, {(i-7)*2048}")
        b(f"buffer_load_dwordx4 v{vH0g}, {s(pA,4)}, s{sT0} offen sc1 lds", f"h{i}")
        b(f"s_add_u32 m0, s{pLw}, {(i-7)*2048 + 1024}")
        b(f"buffer_load_dwordx4 v{vH1g}, {s(pA,4)}, s{sT0} offen sc1 lds", f"h{i}")
    def hlread(i, k):
        if k == 0: b.wait('vm', f"h{i}")
        b(f"ds_read_b128 {hreg(i,k)}, v22 offset:{(i-7)*2048 + k*1024}")
    hload(0)
    rest = list(range(NPRE, 8))
    if rest: wdma(rest.pop(0))
    hload(1)
    if rest: wdma(rest.pop(0))
    for i in range(max(NRD, 0), max(NRD, 2)): wreads(i)
    hload(2)
    if rest: wdma(rest.pop(0))
    hload(3)
    for i in rest: wdma(i)
    DH1 = int(opts.get('dh1', 7))
    p2_common2(b, 1)
    for k in range(4, DH1): hload(k)
    if HLDS:
        assert DH1 == 7
        for k in range(7, 14): hdma(k)
        b("s_barrier")
    stamp(b, 26)
    acc = 64
    def step(idx):
        ps, i = divmod(idx, NSF)
        mf = [f"v_mfma_f32_32x32x16_bf16 {v(acc+(aa*2+bb)*16,16)}, {a(8*i+4*aa,4)}, {hreg(idx,bb)}, {v(acc+(aa*2+bb)*16,16) if i else 0}" for aa in range(2) for bb in range(2)]
        b.wait('lg', f"wr{i}")
        b(mf[0])
        if 8 + i < 14 and i >= NRD and not WEARLY: wdma(8 + i)
        if WEARLY and NST + 8 + (i - NST) < 14 and i >= NST: wdma(i + 8)
        b(mf[1])
        if i + 2 < 14 and i + 2 >= max(NRD, 2): wreads(i + 2)
        b(mf[2])
        n0 = len(b.ops)
        KP = int(opts.get('kp', 1))
        tg = [i + DH1] if i + DH1 < NSF else ([NSF + (i - (NSF - KP))] if i >= NSF - KP else [])
        if HLDS and i + 7 < NSF:
            hlread(i + 7, 0); b(mf[3]); hlread(i + 7, 1)
            return
        for t_ in tg: hload(t_)
        ld = b.ops[n0:]; del b.ops[n0:]
        cut = [j for j, o in enumerate(ld) if o.kind == 'vmem']
        if cut:
            b.ext(ld[:cut[0] + 1]); b(mf[3]); b.ext(ld[cut[0] + 1:])
        else: b(mf[3])
        if i == NSF - 1 - DH1 and not HLDS: b("s_barrier")
    for idx in range(NSF): step(idx)
    stamp(b, 27)
    n0 = len(b.ops); p2_rwrite(b, acc, vSg); rw = b.ops[n0:]; del b.ops[n0:]
    n0 = len(b.ops)
    for k in range(int(opts.get('kp', 1)), 7): hload(NSF + k)
    hl = chunks_of(b.ops[n0:]); del b.ops[n0:]
    body, tail = rw[:-1], rw[-1:]
    if int(opts.get('r1il', 1)):
        gap = max(1, len(body) // (len(hl) + 1)); outp = []
        for j, o in enumerate(body):
            outp.append(o)
            if (j + 1) % gap == 0 and hl: outp.extend(hl.pop(0))
        for c in hl: outp.extend(c)
        b.ext(outp + tail)
        b("s_barrier")
    else:
        b.ext(body + tail)
        b("s_barrier")
        for c in hl: b.ext(c)
    def step2(idx):
        i = idx - NSF
        mf = [f"v_mfma_f32_32x32x16_bf16 {v(acc+(aa*2+bb)*16,16)}, {a(8*i+4*aa,4)}, {hreg(idx,bb)}, {v(acc+(aa*2+bb)*16,16) if i else 0}" for aa in range(2) for bb in range(2)]
        b(mf[0]); b(mf[1]); b(mf[2])
        n0 = len(b.ops)
        if idx + D < 2 * NSF: hload(idx + D)
        ld = b.ops[n0:]; del b.ops[n0:]
        cut = [j for j, o in enumerate(ld) if o.kind == 'vmem']
        if cut:
            b.ext(ld[:cut[0] + 1]); b(mf[3]); b.ext(ld[cut[0] + 1:])
        else: b(mf[3])
    for idx in range(NSF, 2 * NSF):
        step2(idx)
        if idx == NSF + 3: b("s_barrier")
    stamp(b, 28)
    FSPLIT = int(opts.get('fsplit', 0))
    n0 = len(b.ops)
    p2_rwrite(b, acc, vSk, 24 if int(opts.get('r2pk', 1)) else None)
    rw = b.ops[n0:]; del b.ops[n0:]
    if FSPLIT:
        f = F()
        f("v_and_b32 v34, 0xff, v0")
        f("v_lshrrev_b32 v35, 4, v34")
        f("v_and_b32 v36, 15, v34")
        f("v_lshrrev_b32 v37, 6, v34")
        f("v_xor_b32 v37, v37, v36")
        f("v_lshlrev_b32 v28, 8, v35")
        f("v_lshl_add_u32 v28, v37, 4, v28")
        f("v_xor_b32 v29, 64, v28")
        f(f"v_add_u32 v30, {CST}, v28")
        f(f"v_add_u32 v31, {CST}, v29")
        f(f"s_lshl_b32 s{sT0}, s{sR}, 7")
        f(f"s_lshl_b32 s{sT1}, s{pH}, 6")
        f(f"s_add_u32 s{sT0}, s{sT0}, s{sT1}")
        f(f"s_add_u32 s{sT0}, s{sT0}, 32")
        f(f"v_add_u32 v35, s{sT0}, v35")
        f(f"s_lshl_b32 s{sT1}, s{pN}, 8")
        f("v_lshlrev_b32 v32, 11, v35")
        f("v_lshl_add_u32 v32, v36, 4, v32")
        f(f"v_add_u32 v32, s{sT1}, v32")
        f("v_lshlrev_b32 v33, 4, v34")
        f("v_add_u32 v33, 0x10000, v33")
        rw = merge(rw, f.ops, after=lambda o: o.mn.startswith('ds_write'), per=2)
    b.ext(rw)
    b("s_barrier")
    stamp(b, 29)
    if FSPLIT:
        T = 64
        for p in (2, 3):
            b(f"ds_read_b128 {v(100+4*(p-2),4)}, v33 offset:{(p-2)*4096}")
        for p in (2, 3):
            for w in range(8):
                base = (28 if p % 2 == 0 else 29) if w < 4 else (30 if p % 2 == 0 else 31)
                b(f"ds_read_b128 {v(T+4*w,4)}, v{base} offset:{(w % 4)*16384 + p*4096}")
            for w in range(0, 8, 2):
                b(f"v_pk_add_f32 {v(T+4*w,2)}, {v(T+4*w,2)}, {v(T+4*w+4,2)}")
                b(f"v_pk_add_f32 {v(T+4*w+2,2)}, {v(T+4*w+2,2)}, {v(T+4*w+6,2)}")
            for w in (0, 4):
                b(f"v_pk_add_f32 {v(T+4*w,2)}, {v(T+4*w,2)}, {v(T+4*w+8,2)}")
                b(f"v_pk_add_f32 {v(T+4*w+2,2)}, {v(T+4*w+2,2)}, {v(T+4*w+10,2)}")
            d = 108 + 4 * (p - 2)
            b(f"v_pk_add_f32 {v(d,2)}, {v(T,2)}, {v(T+16,2)}")
            b(f"v_pk_add_f32 {v(d+2,2)}, {v(T+2,2)}, {v(T+18,2)}")
            b(f"v_pk_add_f32 {v(d,2)}, {v(d,2)}, {v(100+4*(p-2),2)}")
            b(f"v_pk_add_f32 {v(d+2,2)}, {v(d+2,2)}, {v(102+4*(p-2),2)}")
            if p == 3: b(f"v_add_u32 v32, {16*2048}, v32")
            b(f"global_store_dwordx4 v32, {v(d,4)}, s[30:31] {opts.get('outf', 'sc0+sc1').replace('+', ' ')}")
    return b

def p2_S():
    b = B(); L = vLane
    b("s_waitcnt vmcnt(0) lgkmcnt(0)")
    b("s_barrier")
    stamp(b, 7)
    b(f"s_cmp_lg_u32 s{sWm}, 0")
    b("s_cbranch_scc1 L_p2_noflag")
    b(f"s_mul_i32 s{sT0}, s{sR}, {FLG_STRIDE}")
    b(f"s_add_u32 s{sT0}, s{sT0}, {FLG_OFF}")
    b(f"s_lshl_b32 s{sT1}, s{sS}, 3")
    b(f"s_add_u32 s{sT1}, s{sT1}, s{sT0}")
    b(f"v_mov_b32 v6, s{sT1}")
    b(f"global_store_dwordx2 v6, {v(vNon,2)}, s[34:35] sc0 sc1", 'nocount')
    b(f"v_and_b32 v6, 15, v{L}")
    b("v_lshlrev_b32 v6, 3, v6")
    b(f"v_add_u32 v6, s{sT0}, v6")
    b(f"s_mov_b32 s{sSpin}, 0")
    NP = int(opts.get('npoll', 1))
    SL = int(opts.get('pollsl', 0))
    for k in range(NP):
        b(f"global_load_dwordx2 {v(24+2*k,2)}, v6, s[34:35] sc1", 'nocount')
        if SL: b(f"s_sleep {SL}")
    b("L_p2_poll:")
    for k in range(NP):
        b(f"s_waitcnt vmcnt({NP-1})", 'nocount')
        b(f"v_cmp_eq_u32 vcc, v{24+2*k}, v{vNon}")
        b(f"v_cmp_eq_u32 {s(sT2,2)}, v{24+2*k+1}, v{vNon+1}")
        b(f"s_and_b64 vcc, vcc, {s(sT2,2)}")
        b("s_cmp_eq_u64 vcc, -1")
        b("s_cbranch_scc1 L_p2_polled")
        b(f"global_load_dwordx2 {v(24+2*k,2)}, v6, s[34:35] sc1", 'nocount')
    b(f"s_add_u32 s{sSpin}, s{sSpin}, 1")
    b(f"s_cmp_gt_u32 s{sSpin}, 100000")
    b("s_cbranch_scc0 L_p2_poll")
    b("L_p2_polled:")
    b("L_p2_noflag:")
    if WEARLY:
        for j in range(8): b(f"s_mov_b32 s{pKS+j}, {j*1024}")
    b(f"v_readfirstlane_b32 s{sT0}, v{vNon}")
    for j in range(4):
        b(f"s_bfe_u32 s{pNib+j}, s{sT0}, {(4 << 16) | (4*j):#x}")
    p2_common(b, 0)
    stamp(b, 24)
    b("s_barrier")
    if int(opts.get('p2prio', 0)): b("s_setprio 0")
    if opts.get('sp_bg') is not None: b(f"s_setprio {int(opts.get('sp_bg'))}")
    stamp(b, 25)
    def hreg(j, k): return a(64 + 8*j + 4*k, 4)
    def hload(j, ps):
        h0, h1 = (vH0g, vH1g) if ps == 0 else (vH0k, vH1k)
        b(f"s_add_u32 s{sT0}, s{pK0}, s{pKS+j}")
        b(f"buffer_load_dwordx4 {hreg(j,0)}, v{h0}, {s(pA,4)}, s{sT0} offen {HFL}")
        b(f"buffer_load_dwordx4 {hreg(j,1)}, v{h1}, {s(pA,4)}, s{sT0} offen {HFL}")
    DS1 = int(opts.get('ds1', 4))
    for j in range(DS1): hload(j, 0)
    p2_common2(b, 0)
    vRE, vRO, vREh, vROh = 20, 21, 22, 23
    b("v_lshrrev_b32 v6, 4, v0")
    b("v_and_b32 v7, 15, v0")
    b("v_lshrrev_b32 v9, 6, v0")
    b("v_xor_b32 v9, v9, v7")
    b(f"v_lshlrev_b32 v{vRE}, 8, v6")
    b(f"v_lshl_add_u32 v{vRE}, v9, 4, v{vRE}")
    b(f"v_xor_b32 v{vRO}, 64, v{vRE}")
    b(f"v_add_u32 v{vREh}, {CST}, v{vRE}")
    b(f"v_add_u32 v{vROh}, {CST}, v{vRO}")
    stamp(b, 26)
    acc = 64
    def mf(j): return [f"v_mfma_f32_32x32x16_bf16 {v(acc+(aa*2+bb)*16,16)}, {a(8*j+4*aa,4)}, {hreg(j,bb)}, {v(acc+(aa*2+bb)*16,16) if j else 0}" for aa in range(2) for bb in range(2)]
    for j in range(8):
        for t_ in mf(j): b(t_)
        if j + DS1 < 8: hload(j + DS1, 0)
    stamp(b, 27)
    p2_rwrite(b, acc, vSg)
    b("s_barrier")
    for j in range(8): hload(j, 1)
    for j in range(8):
        for t_ in mf(j): b(t_)
    stamp(b, 28)
    b("s_barrier")
    if opts.get('sp_r1') is not None: b(f"s_setprio {int(opts.get('sp_r1'))}")
    def padd(d, x, y, pk):
        if pk: b(f"v_pk_add_f32 {v(d,2)}, {v(x,2)}, {v(y,2)}")
        else:
            b(f"v_add_f32 v{d}, v{x}, v{y}"); b(f"v_add_f32 v{d+1}, v{x+1}, v{y+1}")
    def reduce(p, dst, pk):
        T = 24
        for w in range(8):
            base = (vRE if p % 2 == 0 else vRO) if w < 4 else (vREh if p % 2 == 0 else vROh)
            b(f"ds_read_b128 {v(T+4*w,4)}, v{base} offset:{(w % 4)*16384 + p*4096}")
        for w in range(0, 8, 2):
            padd(T+4*w, T+4*w, T+4*w+4, pk); padd(T+4*w+2, T+4*w+2, T+4*w+6, pk)
        for w in (0, 4):
            padd(T+4*w, T+4*w, T+4*w+8, pk); padd(T+4*w+2, T+4*w+2, T+4*w+10, pk)
        padd(dst, T, T+16, pk); padd(dst+2, T+2, T+18, pk)
    b("v_lshlrev_b32 v6, 4, v0")
    b(f"s_lshl_b32 s{sT0}, s2, 14")
    b(f"s_add_u32 s{sT0}, s{sT0}, {XCH_OFF}")
    b(f"v_add_u32 v6, s{sT0}, v6")
    for p in range(4):
        d = 56 + 4 * (p % 2)
        reduce(p, d, False)
        for e in range(4): b(f"v_and_or_b32 v{d+e}, v{d+e}, -16, s{pNib+e}")
        if p: b(f"v_add_u32 v6, 4096, v6")
        b(f"global_store_dwordx4 v6, {v(d,4)}, s[34:35] sc0 sc1")
    if opts.get('sp_rx') is not None: b(f"s_setprio {int(opts.get('sp_rx'))}")
    b("s_barrier")
    p2_rwrite(b, acc, vSk)
    PR_, BI, XV = 64, 80, 96
    b("v_lshlrev_b32 v6, 4, v0")
    b(f"s_xor_b32 s{sT1}, s2, 1")
    b(f"s_lshl_b32 s{sT0}, s{sT1}, 14")
    b(f"s_add_u32 s{sT0}, s{sT0}, {XCH_OFF}")
    b(f"v_add_u32 v9, s{sT0}, v6")
    def prt(tok):
        for p in range(4):
            if p: b(f"v_add_u32 v7, {p*4096}, v9")
            b(f"global_load_dwordx4 {v(PR_+4*p,4)}, v{7 if p else 9}, s[34:35] sc1", tok)
    prt("prt")
    b("v_lshrrev_b32 v6, 4, v0")
    b("v_and_b32 v8, 15, v0")
    b(f"s_lshl_b32 s{sT0}, s{sR}, 7")
    b(f"s_lshl_b32 s{sT1}, s{pH}, 6")
    b(f"s_add_u32 s{sT0}, s{sT0}, s{sT1}")
    b(f"v_add_u32 v6, s{sT0}, v6")
    b(f"s_lshl_b32 s{sT1}, s{pN}, 7")
    b("v_lshlrev_b32 v2, 10, v6")
    b("v_lshl_add_u32 v2, v8, 3, v2")
    b(f"v_add_u32 v2, s{sT1}, v2")
    for p in range(4):
        if p: b(f"v_add_u32 v2, {16*1024}, v2")
        b(f"global_load_dwordx2 {v(XV+2*p,2)}, v2, s[4:5]")
    b("v_lshlrev_b32 v2, 3, v8")
    b(f"v_add_u32 v2, s{sT1}, v2")
    b(f"global_load_dwordx2 {v(XV+8,2)}, v2, s[20:21]")
    b("v_lshlrev_b32 v2, 3, v6")
    b(f"v_add_u32 v2, {G_OFF}, v2")
    for p in range(4):
        b(f"global_load_dword v{XV+10+p}, v2, s[34:35] offset:{p*128} sc1")
    b(f"s_lshl_b32 s{sT1}, s{pN}, 8")
    b("v_lshlrev_b32 v2, 11, v6")
    b("v_lshl_add_u32 v2, v8, 4, v2")
    b(f"v_add_u32 v2, s{sT1}, v2")
    DS_ = XV + 14
    b(f"v_lshlrev_b32 v{DS_}, 16, v{XV+8}\nv_and_b32 v{DS_+1}, 0xffff0000, v{XV+8}\nv_lshlrev_b32 v{DS_+2}, 16, v{XV+9}\nv_and_b32 v{DS_+3}, 0xffff0000, v{XV+9}")
    for p in range(4):
        xs = XV + 2*p; tp = BI + 4*p
        b(f"v_lshlrev_b32 v{tp}, 16, v{xs}\nv_and_b32 v{tp+1}, 0xffff0000, v{xs}\nv_lshlrev_b32 v{tp+2}, 16, v{xs+1}\nv_and_b32 v{tp+3}, 0xffff0000, v{xs+1}")
        for e in range(4): b(f"v_mul_f32 v{tp+e}, v{tp+e}, v{DS_+e}")
        b(f"v_cvt_pk_bf16_f32 v56, v{tp}, v{tp+1}")
        b(f"v_cvt_pk_bf16_f32 v57, v{tp+2}, v{tp+3}")
        b(f"v_lshlrev_b32 v{tp}, 16, v56\nv_and_b32 v{tp+1}, 0xffff0000, v56\nv_lshlrev_b32 v{tp+2}, 16, v57\nv_and_b32 v{tp+3}, 0xffff0000, v57")
        for e in range(4): b(f"v_mul_f32 v{tp+e}, v{XV+10+p}, v{tp+e}")
    b.wait('vm', "prt")
    b(f"s_mov_b32 s{sSpin}, 0")
    if int(opts.get('prtpoll', 0)):
        b("L_p2_q:")
        b("v_mov_b32 v58, 0")
        for u in range(12, 16):
            b(f"v_xor_b32 v59, s{pNib + (u % 4)}, v{PR_+u}")
            b(f"v_and_or_b32 v58, v59, 15, v58")
        b("v_cmp_eq_u32 vcc, 0, v58")
        b("s_cmp_eq_u64 vcc, -1")
        b("s_cbranch_scc1 L_p2_qok")
        b(f"s_add_u32 s{sSpin}, s{sSpin}, 1")
        b(f"s_cmp_gt_u32 s{sSpin}, 100000")
        b("s_cbranch_scc1 L_p2_qok")
        b(f"v_add_u32 v7, {3*4096}, v9")
        b(f"global_load_dwordx4 {v(PR_+12,4)}, v7, s[34:35] sc1", 'nocount')
        b("s_waitcnt vmcnt(0)", 'nocount')
        b("s_branch L_p2_q")
        b("L_p2_qok:")
    b("L_p2_chk:")
    b("v_mov_b32 v58, 0")
    for u in range(16):
        b(f"v_xor_b32 v{PR_+u}, s{pNib + (u % 4)}, v{PR_+u}")
        b(f"v_and_or_b32 v58, v{PR_+u}, 15, v58")
    b("v_cmp_eq_u32 vcc, 0, v58")
    b("s_cmp_eq_u64 vcc, -1")
    b("s_cbranch_scc1 L_p2_ok")
    b(f"s_add_u32 s{sSpin}, s{sSpin}, 1")
    b(f"s_cmp_gt_u32 s{sSpin}, 100000")
    b("s_cbranch_scc1 L_p2_ok")
    prt('nocount')
    b("s_waitcnt vmcnt(0)", 'nocount')
    b("s_branch L_p2_chk")
    b("L_p2_ok:")
    for u in range(16): b(f"v_add_f32 v{BI+u}, v{BI+u}, v{PR_+u}")
    FSPLIT = int(opts.get('fsplit', 0))
    if FSPLIT:
        b("v_lshlrev_b32 v6, 4, v0")
        b("v_add_u32 v6, 0x10000, v6")
        for p in (2, 3): b(f"ds_write_b128 v6, {v(BI+4*p,4)} offset:{(p-2)*4096}", "biw")
        b.wait('lg', "biw")
    stamp(b, 29)
    b("s_barrier")
    for p in range(2 if FSPLIT else 4):
        d = 56 + 4 * (p % 2)
        reduce(p, d, True)
        b(f"v_pk_add_f32 {v(d,2)}, {v(d,2)}, {v(BI+4*p,2)}")
        b(f"v_pk_add_f32 {v(d+2,2)}, {v(d+2,2)}, {v(BI+4*p+2,2)}")
        if p: b(f"v_add_u32 v2, {16*2048}, v2")
        b(f"global_store_dwordx4 v2, {v(d,4)}, s[30:31] {opts.get('outf', 'sc0+sc1').replace('+', ' ')}")
    stamp(b, 30)
    return b

def gen_k1():
    global STV
    STV = 15
    pro = k1_head()
    S = k1_S()
    S.ext(p2_S())
    stamp_end(S, sWm, "s[34:35]", 0x2000000, vLane, 3, 14)
    S("s_endpgm")
    Fm = B(); Fm("L_k1_F:")
    Fm(f"s_cmp_ge_u32 s{sS}, 14")
    Fm("s_cbranch_scc1 L_k1_Fn")
    f1 = k1_F(True)
    f1("s_branch L_p2_F")
    Fn = B(); Fn("L_k1_Fn:")
    f2 = k1_F(False)
    p2f = p2_F()
    if STAMP: p2f(f"s_add_u32 s{sWave}, s{sWm}, 4")
    stamp_end(p2f, sWave, "s[34:35]", 0x2000000, vLane, 3, 14)
    p2f("L_k1_end:")
    p2f("s_endpgm")
    def path(prefix, body, label=None):
        allops = insert_waits(copy.deepcopy(prefix) + body)
        if label:
            idx = [i for i, o in enumerate(allops) if o.text == label][0]
            allops = allops[idx:]
        return insert_hazard_nops(allops)
    out = path([], pro.ops + S.ops)
    out += path(pro.ops, Fm.ops + f1.ops, "L_k1_F:")
    out += path(pro.ops + Fm.ops, Fn.ops + f2.ops, "L_k1_Fn:")
    out += path([], p2f.ops)
    return out

def gen_k2():
    global STV
    STV = 9
    b = B()
    D = 15
    DW = int(opts.get('k2dw', 5))
    sWv, sH, sMt, sN = 40, 41, 42, 43
    sA, sCR, sCI, sW2 = 44, 48, 76, 80
    t0, t1, t2 = 52, 53, 54
    sS0, sF0 = 56, 57
    sLw = 58
    sCoff, sWoff2 = 59, 62
    vH0, vH1 = 4, 5
    vCe, vCo, vWa, vWb = 2, 3, 60, 61
    vPp, vTp = 48, 52
    accS, accF, vBuf = 64, 128, 192
    vNon2 = 14
    vTau = 8
    vG1, vG2 = 10, 12
    PITCH = 256
    LRED = 0
    LSTG = 65536
    code_prefetch(b, K2, "L_code_end", 2, "k2", 6, 63)
    dbgt_begin(b)
    stamp_begin(b)
    b("s_load_dwordx2 s[18:19], s[0:1], 112")
    b("s_load_dwordx2 s[4:5], s[0:1], 0")
    b("s_load_dwordx4 s[12:15], s[0:1], 40")
    b("s_load_dwordx2 s[6:7], s[0:1], 64")
    b("s_load_dwordx2 s[16:17], s[0:1], 88")
    b("s_load_dwordx2 s[8:9], s[0:1], 104")
    b("s_load_dwordx2 s[10:11], s[0:1], 120")
    b("s_cmp_ge_u32 s2, 256")
    b("s_cbranch_scc1 L_k2_end")
    b("v_lshrrev_b32 v6, 6, v0")
    b("v_and_b32 v1, 63, v0")
    b(f"v_readfirstlane_b32 s{sWv}, v6")
    b(f"s_and_b32 s{sH}, s2, 1")
    b(f"s_bfe_u32 s{t0}, s2, 0x20001")
    b(f"s_lshr_b32 s{t1}, s2, 3")
    b(f"s_and_b32 s{sMt}, s{t1}, 3")
    b(f"s_lshl_b32 s{t0}, s{t0}, 2")
    b(f"s_add_u32 s{sMt}, s{sMt}, s{t0}")
    b(f"s_lshr_b32 s{sN}, s{t1}, 2")
    b("v_and_b32 v6, 7, v1")
    b("v_lshrrev_b32 v7, 4, v1")
    b("v_xor_b32 v6, v6, v7")
    b("v_lshlrev_b32 v6, 4, v6")
    b("v_lshrrev_b32 v7, 3, v1")
    b("v_lshlrev_b32 v7, 10, v7")
    b(f"v_add_u32 v{vCe}, v6, v7")
    b(f"v_xor_b32 v{vCo}, 64, v{vCe}")
    b("v_bfe_u32 v6, v1, 4, 1")
    b("v_lshlrev_b32 v6, 2, v6")
    b("v_and_b32 v29, 7, v1")
    b("v_xor_b32 v6, v6, v29")
    b("v_lshlrev_b32 v6, 4, v6")
    b(f"v_add_u32 v{vWa}, v6, v7")
    b(f"v_add_u32 v{vWb}, {8192 - 1024}, v{vWa}")
    b(f"s_lshl_b32 s{sCoff}, s{sN}, 16")
    b(f"s_lshl_b32 s{t0}, s{sH}, 9")
    b(f"s_add_u32 s{sCoff}, s{sCoff}, s{t0}")
    b(f"s_lshl_b32 s{t0}, s{sWv}, 7")
    b(f"s_add_u32 s{sCoff}, s{sCoff}, s{t0}")
    b(f"s_lshl_b32 s{t0}, s{sH}, 2")
    b(f"s_add_u32 s{t0}, s{t0}, s{sWv}")
    b(f"s_mul_i32 s{sWoff2}, s{t0}, {14*16*1024}")
    b(f"s_lshl_b32 s{t0}, s{sN}, 7")
    b(f"s_add_u32 s{sWoff2}, s{sWoff2}, s{t0}")
    b(f"s_mul_i32 s{sLw}, s{sWv}, 24576")
    b(f"s_add_u32 s{sLw}, s{sLw}, {LSTG}")
    b(f"s_xor_b32 s{t0}, s{sH}, 1")
    b(f"s_lshl_b32 s{t0}, s{t0}, 1")
    b(f"s_lshl_b32 s{t1}, s{sMt}, 2")
    b(f"s_add_u32 s{t0}, s{t0}, s{t1}")
    b(f"s_mul_i32 s{t0}, s{t0}, {176*1024}")
    b("v_lshlrev_b32 v6, 4, v1")
    b(f"v_add_u32 v{vH0}, s{t0}, v6")
    b(f"v_add_u32 v{vH1}, {176*1024}, v{vH0}")
    b(f"s_lshl_b32 s{sS0}, s{sH}, 2")
    b(f"s_add_u32 s{sS0}, s{sS0}, s{sWv}")
    b(f"s_lshl_b32 s{sS0}, s{sS0}, 13")
    b(f"s_lshl_b32 s{sF0}, s{sH}, 2")
    b(f"s_add_u32 s{sF0}, s{sF0}, s{sWv}")
    b(f"s_mul_i32 s{sF0}, s{sF0}, {14*1024}")
    b(f"s_add_u32 s{sF0}, s{sF0}, {64*1024}")
    b("s_waitcnt lgkmcnt(0)")
    srd(b, sA, 10, WS_USED)
    srd(b, sCR, 12, 512*1024)
    srd(b, sCI, 14, 512*1024)
    srd(b, sW2, 16, 1792*1024)
    steps = [('S', i) for i in range(8)] + [('F', i) for i in range(14)]
    NS = len(steps)
    seq = [(1, st) for st in range(NS)] + [(2, st) for st in range(NS)]
    def hreg(idx, k):
        sl = idx % D
        if sl < 8: return v(vBuf + sl * 8 + k * 4, 4)
        return a(200 + (sl - 8) * 8 + k * 4, 4)
    def dma_c(m):
        for aa in range(8):
            b(f"s_add_u32 m0, s{sLw}, {m*8192 + aa*1024}")
            b(f"s_add_u32 s{t2}, s{sCoff}, {aa*8192}")
            b(f"buffer_load_dwordx4 v{vCe if aa % 2 == 0 else vCo}, {s(sCR if m == 0 else sCI,4)}, s{t2} offen lds", f"c{m}")
    def wslot(i):
        if i < 4: return 16384 + i * 2048
        if i < 12: return (i - 4) * 2048
        return 16384 + (i - 12) * 2048
    def dma_f(i):
        b(f"s_add_u32 m0, s{sLw}, {wslot(i)}")
        b(f"s_add_u32 s{t2}, s{sWoff2}, {i*16*1024}")
        b(f"buffer_load_dwordx4 v{vWa}, {s(sW2,4)}, s{t2} offen lds", f"f{i}")
        b(f"buffer_load_dwordx4 v{vWb}, {s(sW2,4)}, s{t2} offen offset:1024 lds", f"f{i}")
    def hloads(idx):
        ps, st = seq[idx]
        kind, i = steps[st]
        sb = sS0 if kind == 'S' else sF0
        if ps == 2 and st == 0:
            b(f"s_lshl_b32 s{t0}, s{sH}, 2")
            b(f"s_sub_u32 s{t0}, s{t0}, 2")
            b(f"s_mul_i32 s{t0}, s{t0}, {176*1024}")
            b(f"v_add_u32 v{vH0}, s{t0}, v{vH0}")
            b(f"v_add_u32 v{vH1}, s{t0}, v{vH1}")
        b(f"s_add_u32 s{t1}, s{sb}, {i*1024}")
        b(f"buffer_load_dwordx4 {hreg(idx,0)}, v{vH0}, {s(sA,4)}, s{t1} offen")
        b(f"buffer_load_dwordx4 {hreg(idx,1)}, v{vH1}, {s(sA,4)}, s{t1} offen")
    def wreads_s():
        for j in range(8):
            m = (j >> 1) & 1; ksp = 2 * (j >> 2) + (j & 1)
            if j == 0: b.wait('vm', "c0")
            if j == 2: b.wait('vm', "c1")
            for aa in range(2):
                b(f"ds_read_b128 {a(8*j+4*aa,4)}, v{vPp+ksp} offset:{m*8192 + aa*4096}", f"wr{j}")
    def wreads_f(i):
        st = 8 + i
        b.wait('vm', f"f{i}")
        for aa in range(2):
            for rd in range(2):
                b(f"ds_read_b64_tr_b16 {a(8*st+4*aa+2*rd,2)}, v{vTp+aa} offset:{wslot(i) + rd*8*128}", f"wr{st}")
    if STAMP >= 2: stamp(b, 24)
    dma_c(0)
    hloads(0); hloads(1)
    dma_c(1)
    b("v_and_b32 v6, 31, v1")
    b("v_lshlrev_b32 v6, 7, v6")
    b(f"v_add_u32 v6, s{sLw}, v6")
    b("v_lshrrev_b32 v7, 5, v1")
    b("v_bfe_u32 v29, v1, 1, 3")
    b("v_xor_b32 v29, v7, v29")
    for k in range(4):
        b(f"v_xor_b32 v7, {2*k}, v29")
        b(f"v_lshl_add_u32 v{vPp+k}, v7, 4, v6")
    tr_pattern(b, vTp, 4, 54)
    b(f"v_add_u32 v{vTp}, s{sLw}, v{vTp}")
    b(f"v_add_u32 v{vTp+1}, s{sLw}, v{vTp+1}")
    b("v_bfe_u32 v6, v1, 3, 2")
    b("v_and_b32 v7, 7, v1")
    b(f"v_lshl_add_u32 v{vTau}, v7, 2, v6")
    b(f"s_xor_b32 s{t0}, s{sH}, 1")
    b(f"s_lshl_b32 s{t0}, s{t0}, 6")
    b(f"s_lshl_b32 s{t1}, s{sMt}, 7")
    b(f"s_add_u32 s{t0}, s{t0}, s{t1}")
    b(f"v_add_u32 v6, s{t0}, v{vTau}")
    b("v_lshlrev_b32 v6, 3, v6")
    b(f"v_add_u32 v6, {G_OFF}, v6")
    b(f"global_load_dwordx2 v[10:11], v6, s[10:11]")
    b(f"global_load_dwordx2 v[12:13], v6, s[10:11] offset:256")
    b(f"s_lshl_b32 s{t0}, s{sH}, 7")
    b(f"s_sub_u32 s{t0}, s{t0}, 64")
    b(f"s_lshl_b32 s{t0}, s{t0}, 3")
    b(f"v_add_u32 v6, s{t0}, v6")
    b(f"global_load_dwordx2 v[16:17], v6, s[10:11]")
    b(f"global_load_dwordx2 v[18:19], v6, s[10:11] offset:256")
    b(f"v_mov_b32 v6, {NONCE_OFF}")
    b(f"global_load_dwordx2 {v(vNon2,2)}, v6, s[10:11]")
    if STAMP >= 2: stamp(b, 25)
    DH = int(opts.get('k2dh', 5))
    for idx in range(2, DH): hloads(idx)
    if STAMP >= 2: stamp(b, 26)
    vWr, vRd = 20, 21
    vWrq = 56
    b(f"s_lshl_b32 s{t0}, s{sWv}, 14")
    b(f"v_lshlrev_b32 v29, 8, v{vTau}")
    b(f"v_add_u32 v29, s{t0}, v29")
    b("v_lshrrev_b32 v6, 5, v1")
    b("v_and_b32 v7, 7, v1")
    b("v_xor_b32 v6, v6, v7")
    for q in range(4):
        b(f"v_xor_b32 v7, {2*q}, v6")
        b(f"v_lshl_add_u32 v{vWrq+q}, v7, 4, v29")
    b("v_lshrrev_b32 v22, 4, v0")
    b("v_and_b32 v23, 15, v0")
    b("v_lshrrev_b32 v6, 6, v0")
    b("v_xor_b32 v6, v6, v23")
    b(f"v_lshlrev_b32 v{vRd}, 8, v22")
    b(f"v_lshl_add_u32 v{vRd}, v6, 4, v{vRd}")
    b(f"v_xor_b32 v{vWr}, 64, v{vRd}")
    vXch = 24
    b(f"v_lshlrev_b32 v{vXch}, 4, v0")
    b(f"s_lshl_b32 s{t0}, s2, 14")
    b(f"s_add_u32 s{t0}, s{t0}, {XCH_OFF}")
    b(f"v_add_u32 v25, s{t0}, v{vXch}")
    b(f"s_xor_b32 s{t1}, s2, 1")
    b(f"s_lshl_b32 s{t0}, s{t1}, 14")
    b(f"s_add_u32 s{t0}, s{t0}, {XCH_OFF}")
    b(f"v_add_u32 v26, s{t0}, v{vXch}")
    if STAMP >= 2: stamp(b, 27)
    wreads_s()
    if STAMP >= 2: stamp(b, 28)

    def mfmas(idx):
        ps, st = seq[idx]
        kind, i = steps[st]
        acc = accS if kind == 'S' else accF
        out = []
        for aa in range(2):
            for bb in range(2):
                dreg = v(acc + (aa*2 + bb) * 16, 16)
                c = dreg if i else "0"
                out.append(f"v_mfma_f32_32x32x16_bf16 {dreg}, {a(8*st+4*aa,4)}, {hreg(idx,bb)}, {c}")
        return out

    def reduce_write(g0, g1):
        for aa in range(2):
            for bb in range(2):
                g = g0 if bb == 0 else g1
                S = accS + (aa*2+bb)*16; Fq = accF + (aa*2+bb)*16
                for p in range(8):
                    b(f"v_pk_mul_f32 {v(S+2*p,2)}, {v(S+2*p,2)}, {v(g,2)} op_sel_hi:[1,0]")
                for p in range(8):
                    b(f"v_pk_fma_f32 {v(S+2*p,2)}, {v(Fq+2*p,2)}, {v(g,2)}, {v(S+2*p,2)} op_sel:[0,1,0] op_sel_hi:[1,1,1]")
                for q in range(4):
                    b(f"ds_write_b128 v{vWrq+q}, {v(S+4*q,4)} offset:{LRED + bb*32*PITCH + aa*128}", "red")
        b.wait('lg', "red")
        b("s_barrier")
    def reduce_read(dst, gran=None):
        for p in range(4):
            for w in range(4):
                b(f"ds_read_b128 {v(dst+16*p+4*w,4)}, v{vRd if p % 2 == 0 else vWr} offset:{LRED + w*64*PITCH + p*16*PITCH}")
        for p in range(4):
            r = dst + 16*p
            b(f"v_pk_add_f32 {v(r,2)}, {v(r,2)}, {v(r+4,2)}")
            b(f"v_pk_add_f32 {v(r+2,2)}, {v(r+2,2)}, {v(r+6,2)}")
            b(f"v_pk_add_f32 {v(r+8,2)}, {v(r+8,2)}, {v(r+12,2)}")
            b(f"v_pk_add_f32 {v(r+10,2)}, {v(r+10,2)}, {v(r+14,2)}")
            if gran is None:
                b(f"v_pk_add_f32 {v(r,2)}, {v(r,2)}, {v(r+8,2)}")
                b(f"v_pk_add_f32 {v(r+2,2)}, {v(r+2,2)}, {v(r+10,2)}")
            else:
                for e in range(4):
                    u = 4 * p + e
                    b(f"v_add_f32 v{gran + 4*(u//3) + u%3}, v{r+e}, v{r+8+e}")

    total = len(seq)
    sNib = 84
    XS_ = 32
    PR_ = vBuf
    def r1c():
        f = F()
        for p in range(4):
            for w in range(4):
                f(f"ds_read_b128 {v(accF+16*p+4*w,4)}, v{vRd if p % 2 == 0 else vWr} offset:{LRED + w*64*PITCH + p*16*PITCH}")
        for p in range(4):
            r = accF + 16*p
            for e in range(4): f(f"v_add_f32 v{r+e}, v{r+e}, v{r+4+e}")
            for e in range(4): f(f"v_add_f32 v{r+8+e}, v{r+8+e}, v{r+12+e}")
            for e in range(4): f(f"v_add_f32 v{r+e}, v{r+e}, v{r+8+e}")
            for e in range(4): f(f"v_and_or_b32 v{XS_+4*p+e}, v{r+e}, -16, s{sNib+e}")
        return f
    def step_ops(idx):
        ps, st = seq[idx]
        kind, i = steps[st]
        n00 = len(b.ops)
        mf = mfmas(idx)
        if ps == 1: b.wait('lg', f"wr{st}")
        b(mf[0])
        if ps == 1:
            fi = st - 2
            if st == 6: b.wait('lg', "wr7")
            if 0 <= fi < 14: dma_f(fi)
        b(mf[1])
        if ps == 1 and 8 <= st + 1 < NS:
            wreads_f(st + 1 - 8)
        b(mf[2])
        n0 = len(b.ops)
        tg = []
        if ps == 1:
            if st + DH < NS: tg = [st + DH]
            else:
                j = st + DH - NS
                tg = [NS + 2 * j, NS + 2 * j + 1]
        elif idx + D < total: tg = [idx + D]
        for t_ in tg: hloads(t_)
        ld = b.ops[n0:]; del b.ops[n0:]
        cut = [j for j, o in enumerate(ld) if o.kind == 'vmem']
        if cut:
            b.ext(ld[:cut[0] + 1]); b(mf[3]); b.ext(ld[cut[0] + 1:])
        else:
            b(mf[3])
        ops = b.ops[n00:]; del b.ops[n00:]
        return ops
    for idx in range(NS):
        b.ext(step_ops(idx))
        st = idx
        if st == 2:
            b(f"v_readfirstlane_b32 s{t0}, v{vNon2}")
            for j in range(4):
                b(f"s_bfe_u32 s{sNib+j}, s{t0}, {(4 << 16) | (4*j):#x}")
        if STAMP >= 2 and st in (0, 3, 7, 11, 15, 19): stamp(b, 8 + (0, 3, 7, 11, 15, 19).index(st))
    stamp(b, 1)
    n0 = len(b.ops); reduce_write(vG1, vG2); rw = b.ops[n0:]; del b.ops[n0:]
    K0 = 2 * DH
    n0 = len(b.ops)
    for k in range(K0, 15): hloads(NS + k)
    hl = chunks_of(b.ops[n0:]); del b.ops[n0:]
    body, tail = rw[:-2], rw[-2:]
    gap = max(1, len(body) // (len(hl) + 1))
    outp = []
    for j, o in enumerate(body):
        outp.append(o)
        if (j + 1) % gap == 0 and hl: outp.extend(hl.pop(0))
    for c in hl: outp.extend(c)
    b.ext(outp + tail)
    stamp(b, 2)
    p2a = []
    for st in range(7): p2a += step_ops(NS + st)
    b.ext(merge(p2a, r1c().ops, per=4))
    PL = int(opts.get('k2pl', 16))
    BI = vBuf + 16
    def bias_fill():
        f = F()
        f("v_lshlrev_b32 v4, 16, v40\nv_and_b32 v5, 0xffff0000, v40\nv_lshlrev_b32 v6, 16, v41\nv_and_b32 v7, 0xffff0000, v41")
        for p in range(4):
            xs = 32 + 2*p; tp = BI + 4*p
            f(f"v_lshlrev_b32 v{tp}, 16, v{xs}\nv_and_b32 v{tp+1}, 0xffff0000, v{xs}\nv_lshlrev_b32 v{tp+2}, 16, v{xs+1}\nv_and_b32 v{tp+3}, 0xffff0000, v{xs+1}")
            for e in range(4): f(f"v_mul_f32 v{tp+e}, v{tp+e}, v{4+e}")
            f(f"v_cvt_pk_bf16_f32 v46, v{tp}, v{tp+1}")
            f(f"v_cvt_pk_bf16_f32 v47, v{tp+2}, v{tp+3}")
            f(f"v_lshlrev_b32 v{tp}, 16, v46\nv_and_b32 v{tp+1}, 0xffff0000, v46\nv_lshlrev_b32 v{tp+2}, 16, v47\nv_and_b32 v{tp+3}, 0xffff0000, v47")
            for e in range(4): f(f"v_mul_f32 v{tp+e}, v{42+p}, v{tp+e}")
        return f
    tail_steps = []
    for st in range(7, NS):
        idx = NS + st
        ops = step_ops(idx)
        if 7 <= st <= 10:
            p = st - 7
            pre = B()
            if p: pre(f"v_add_u32 v29, {p*4096}, v25")
            pre(f"global_store_dwordx4 v{29 if p else 25}, {v(XS_+4*p,4)}, s[10:11] sc0 sc1")
            ops = ops[:1] + pre.ops + ops[1:]
        if st >= 17:
            tail_steps += ops
            if st == NS - 1: b.ext(merge(tail_steps, bias_fill().ops, per=4))
            continue
        b.ext(ops)
        if STAMP >= 2 and st in (7, 11, 15, 19): stamp(b, 16 + (0, 3, 7, 11, 15, 19).index(st))
        if st == 11:
            b("s_barrier")
        if st == 11:
            b(f"s_lshl_b32 s{t0}, s{sMt}, 7")
            b(f"s_lshl_b32 s{t1}, s{sH}, 6")
            b(f"s_add_u32 s{t0}, s{t0}, s{t1}")
            b(f"v_add_u32 v30, s{t0}, v22")
            b(f"s_lshl_b32 s{t1}, s{sN}, 7")
            b("v_lshlrev_b32 v31, 10, v30")
            b("v_lshl_add_u32 v31, v23, 3, v31")
            b(f"v_add_u32 v31, s{t1}, v31")
            for p in range(4):
                if p: b(f"v_add_u32 v31, {16*1024}, v31")
                b(f"global_load_dwordx2 {v(32+2*p,2)}, v31, s[4:5]")
            b("v_lshlrev_b32 v31, 3, v23")
            b(f"v_add_u32 v31, s{t1}, v31")
            b(f"global_load_dwordx2 v[40:41], v31, s[6:7]")
            b("v_lshlrev_b32 v31, 3, v30")
            b(f"v_add_u32 v31, {G_OFF}, v31")
            for p in range(4):
                b(f"global_load_dword v{42+p}, v31, s[10:11] offset:{p*128}")
            b(f"s_lshl_b32 s{t1}, s{sN}, 8")
            b("v_lshlrev_b32 v2, 11, v30")
            b("v_lshl_add_u32 v2, v23, 4, v2")
            b(f"v_add_u32 v2, s{t1}, v2")
        if st == PL:
            for p in range(4):
                if p: b(f"v_add_u32 v29, {p*4096}, v26")
                b(f"global_load_dwordx4 {v(PR_+4*p,4)}, v{29 if p else 26}, s[10:11] sc1", "prt")
    stamp(b, 3)
    b.wait('vm', "prt")
    b(f"s_mov_b32 s{t0}, 0")
    b("L_k2_chk:")
    b("v_mov_b32 v46, 0")
    for u in range(16):
        b(f"v_xor_b32 v{PR_+u}, s{sNib + (u % 4)}, v{PR_+u}")
        b(f"v_and_or_b32 v46, v{PR_+u}, 15, v46")
    b("v_cmp_eq_u32 vcc, 0, v46")
    b("s_cmp_eq_u64 vcc, -1")
    b("s_cbranch_scc1 L_k2_ok")
    b(f"s_add_u32 s{t0}, s{t0}, 1")
    b(f"s_cmp_gt_u32 s{t0}, 40000")
    b("s_cbranch_scc1 L_k2_ok")
    for p in range(4):
        if p: b(f"v_add_u32 v29, {p*4096}, v26")
        b(f"global_load_dwordx4 {v(PR_+4*p,4)}, v{29 if p else 26}, s[10:11] sc1", 'nocount')
    b("s_waitcnt vmcnt(0)", 'nocount')
    b("s_branch L_k2_chk")
    b("L_k2_ok:")
    if STAMP >= 2: stamp(b, 30)
    n0 = len(b.ops)
    reduce_write(16, 18)
    rw = b.ops[n0:]; del b.ops[n0:]
    fl = F()
    for u in range(0, 16, 2): fl(f"v_pk_add_f32 {v(BI+u,2)}, {v(BI+u,2)}, {v(PR_+u,2)}")
    b.ext(merge(rw, fl.ops, after=lambda o: o.mn.startswith('ds_write'), per=1))
    if STAMP >= 2: stamp(b, 31)
    reduce_read(accF)
    if STAMP >= 2: stamp(b, 32)
    OUTF = opts.get('outf', '').replace('+', ' ')
    for p in range(4):
        r = accF + 16*p
        b(f"v_pk_add_f32 {v(r,2)}, {v(r,2)}, {v(BI+4*p,2)}")
        b(f"v_pk_add_f32 {v(r+2,2)}, {v(r+2,2)}, {v(BI+4*p+2,2)}")
        if p: b(f"v_add_u32 v2, {16*2048}, v2")
        b(f"global_store_dwordx4 v2, {v(r,4)}, s[8:9] {OUTF}")
    stamp(b, 4)
    dbgt_end(b, "s[18:19]", 32, True)
    stamp_end(b, sWv, "s[10:11]", 0x2100000, 1)
    b("L_k2_end:")
    b("s_endpgm")
    return finalize(b.ops)

KN = NAME + "_kernel"
def header():
    ref = open('cdna_kernels/%s.s.ref' % NAME).read().split('\n')
    hdr = []
    for line in ref:
        if not line.startswith(';'): break
        if '@launch' in line: continue
        hdr.append(line)
    hdr.append("; @launch grid=(256,1,1) block=(512,1,1) lds=163840")
    return '\n'.join(hdr)

def kd(name, nv, acc_off, nsg):
    return f""".amdhsa_kernel {name}
  .amdhsa_next_free_vgpr {nv}
  .amdhsa_next_free_sgpr {nsg}
  .amdhsa_accum_offset {acc_off}
  .amdhsa_group_segment_fixed_size 0
  .amdhsa_kernarg_size 128
  .amdhsa_user_sgpr_count 2
  .amdhsa_user_sgpr_kernarg_segment_ptr 1
  .amdhsa_system_sgpr_workgroup_id_x 1
  .amdhsa_float_denorm_mode_32 3
.end_amdhsa_kernel"""

def main():
    k1 = gen_k1()
    out = [header(), '.amdgcn_target "amdgcn-amd-amdhsa--gfx950"', '.text']
    out += [f".globl {KN}", ".p2align 8", f".type {KN},@function", f"{KN}:", render(k1)]
    out += ["L_code_end:", "  s_endpgm"]
    out += ['.section .rodata,"a"', '.p2align 6', kd(KN, 256, 128, 102)]
    print('\n'.join(out))

main()
```
